```python
import torch

def _softmax(x, axis=-1):
    return torch.softmax(x, dim=axis)
def _gelu(x):
    return torch.nn.functional.gelu(x, approximate="tanh")
def _silu(x):
    return torch.nn.functional.silu(x)
def _sigmoid(x):
    return torch.sigmoid(x)
def _layernorm(x, axis=-1, eps=1e-5):
    m = x.mean(dim=axis, keepdim=True)
    v = x.var(dim=axis, keepdim=True, unbiased=False)
    return (x - m) / torch.sqrt(v + eps)
def _scatter_add(tgt, idx, src, axis=0):
    return tgt.clone().index_add_(axis, idx, src)
def _segment_sum(src, seg, n):
    out = torch.zeros((n,) + src.shape[1:], dtype=src.dtype)
    return out.index_add_(0, seg, src)
def _pad(x, pw):
    flat = tuple(v for pair in reversed(pw) for v in pair)
    return torch.nn.functional.pad(x, flat)

kernel_name = 'recurrent_scan__gqa_block_cached__dense_activation_relu__decode'

def setup_inputs():

    _w = (lambda a: (lambda t: t.to(torch.bfloat16) if t.is_floating_point() else t)(torch.as_tensor(a)))
    def _A_setup():
        B, Sq, D = 2, 1, 512
        Hq, Hkv, Sk, Dh = 32, 8, 32768, 128
        assert Hq % Hkv == 0, (Hq, Hkv)
        return {
            "x": _w((lambda *s: torch.randn(*s, dtype=torch.bfloat16) * 0.05)(B, Sq, D)),
            "k_cache": _w((lambda *s: torch.randn(*s, dtype=torch.bfloat16) * 0.8)(B, Hkv, Sk, Dh)),
            "v_cache": _w((lambda *s: torch.randn(*s, dtype=torch.bfloat16) * 0.8)(B, Hkv, Sk, Dh)),
            "wq": _w((lambda *s: torch.randn(*s, dtype=torch.bfloat16) * 0.8)(D, Hq * Dh) * (D ** -0.5)),
            "wo": _w((lambda *s: torch.randn(*s, dtype=torch.bfloat16) * 0.8)(Hq * Dh, D) * ((Hq * Dh) ** -0.5)),
        }
    _A_in = _A_setup()

    def _B_setup():
        B, S, D, Dff = 2, 1, 512, 1792
        return {
            "x": _w((lambda *s: torch.randn(*s, dtype=torch.bfloat16) * 0.05)(B, S, D)),
            "w1": _w((lambda *s: torch.randn(*s, dtype=torch.bfloat16) * 0.2)(D, Dff)),
            "w2": _w((lambda *s: torch.randn(*s, dtype=torch.bfloat16) * 0.2)(Dff, D)),
        }
    _B_in = _B_setup()

    return {
        "A_x": _A_in["x"],
        "A_k_cache": _A_in["k_cache"],
        "A_v_cache": _A_in["v_cache"],
        "A_wq": _A_in["wq"],
        "A_wo": _A_in["wo"],
        "B_x": _B_in["x"],
        "B_w1": _B_in["w1"],
        "B_w2": _B_in["w2"],
    }

def reference(A_x, A_k_cache, A_v_cache, A_wq, A_wo, B_x, B_w1, B_w2):
    def _A_ref(x, k_cache, v_cache, wq, wo):
        B, Sq, D = x.shape
        Hq, Dh = 32, 128
        Hkv = k_cache.shape[1]
        rep = Hq // Hkv
        q = (lambda x, *d: x.permute(*d))((x @ wq).reshape(B, Sq, Hq, Dh), 0, 2, 1, 3)
        k = (lambda x, n, axis: torch.repeat_interleave(x, n, dim=axis))(k_cache, rep, axis=1)
        v = (lambda x, n, axis: torch.repeat_interleave(x, n, dim=axis))(v_cache, rep, axis=1)
        scores = torch.einsum("bhqd,bhkd->bhqk", q, k) * (Dh ** -0.5)
        p = _softmax(scores, axis=-1)
        o = torch.einsum("bhqk,bhkd->bhqd", p, v)
        return (lambda x, *d: x.permute(*d))(o, 0, 2, 1, 3).reshape(B, Sq, Hq * Dh) @ wo

    def _B_ref(x, w1, w2):
        h = torch.einsum("bsd,df->bsf", x, w1)
        zero = torch.zeros_like(h)
        h = torch.maximum(h, zero)
        return torch.einsum("bsf,fd->bsd", h, w2)

    x = A_x
    xn = _layernorm(x, axis=-1)
    s = _A_ref(xn, A_k_cache, A_v_cache, A_wq, A_wo)
    g = _silu(_B_ref(xn, B_w1, B_w2))
    return x + s * g
```

```python
import sys

NAME = "recurrent_scan__gqa_block_cached__dense_activation_relu__decode"

HEADER = """; Kernarg layout for this problem (88 bytes, ptrs only, base s[0:1]):
"""

WS_Q = 0
WS_H = 16384
WS_ML = 32768
WS_O = 65536
WS_P = 1 << 20
WS_SIZE = 536870912

K_BYTES = 2 * 8 * 32768 * 128 * 2

out = []
def e(s=""):
    out.append(s)

def vr(a, n=1):
    return f"v{a}" if n == 1 else f"v[{a}:{a+n-1}]"
def sr(a, n=1):
    return f"s{a}" if n == 1 else f"s[{a}:{a+n-1}]"

def srd(dst, src, nbytes):
    e(f"  s_mov_b32 s{dst}, s{src}")
    e(f"  s_and_b32 s{dst+1}, s{src+1}, 0xffff")
    e(f"  s_mov_b32 s{dst+2}, {nbytes}")
    e(f"  s_mov_b32 s{dst+3}, 0x00020000")

def wave_sum(regs, tmp):
    for ctrl in ["quad_perm:[1,0,3,2]", "quad_perm:[2,3,0,1]", "row_half_mirror", "row_mirror"]:
        e("  s_nop 1")
        for r in regs:
            e(f"  v_add_f32_dpp v{r}, v{r}, v{r} {ctrl} row_mask:0xf bank_mask:0xf")
    for sw in ["v_permlane16_swap_b32", "v_permlane32_swap_b32"]:
        for r, t in zip(regs, tmp):
            e(f"  v_mov_b32 v{t}, v{r}")
        e("  s_nop 1")
        for r, t in zip(regs, tmp):
            e(f"  {sw} v{r}, v{t}")
        e("  s_nop 1")
        for r, t in zip(regs, tmp):
            e(f"  v_add_f32 v{r}, v{r}, v{t}")

def round_bf16(dst, src):
    e(f"  v_cvt_pk_bf16_f32 v{dst}, v{src}, v{src}")
    e(f"  v_lshlrev_b32 v{dst}, 16, v{dst}")

def kernel_begin(name):
    e(".text")
    e(f".globl {name}")
    e(".p2align 8")
    e(f".type {name},@function")
    e(f"{name}:")

def kernel_desc(name, vgpr, sgpr=102):
    acc = (vgpr + 3) // 4 * 4
    e('.section .rodata,"a"')
    e(".p2align 6")
    e(f".amdhsa_kernel {name}")
    e(f"  .amdhsa_next_free_vgpr {vgpr}")
    e(f"  .amdhsa_next_free_sgpr {sgpr}")
    e(f"  .amdhsa_accum_offset {acc}")
    e("  .amdhsa_group_segment_fixed_size 0")
    e("  .amdhsa_kernarg_size 88")
    e("  .amdhsa_user_sgpr_count 2")
    e("  .amdhsa_user_sgpr_kernarg_segment_ptr 1")
    e("  .amdhsa_system_sgpr_workgroup_id_x 1")
    e(".end_amdhsa_kernel")

def gen_k1():
    name = "k1_proj_kernel"
    kernel_begin(name)
    e("  s_cmp_ge_u32 s2, 184")
    e("  s_cbranch_scc1 K1_END")
    e("  s_load_dwordx2 s[4:5], s[0:1], 0")
    e("  s_load_dwordx2 s[6:7], s[0:1], 24")
    e("  s_load_dwordx2 s[8:9], s[0:1], 48")
    e("  s_load_dwordx2 s[10:11], s[0:1], 80")
    e("  v_and_b32 v1, 63, v0")
    e("  v_lshrrev_b32 v2, 6, v0")
    e("  s_waitcnt lgkmcnt(0)")
    srd(12, 4, 2048)
    srd(16, 10, WS_SIZE)
    e("  s_cmp_ge_u32 s2, 128")
    e("  s_cbranch_scc1 K1_FFN")
    srd(20, 6, 512 * 4096 * 2)
    e("  s_mov_b32 s24, 8192")
    e("  s_lshl_b32 s25, s2, 6")
    e(f"  s_add_u32 s26, s25, {WS_Q}")
    e("  s_mov_b32 s27, 8192")
    e("  s_mov_b32 s28, 0xff7fffff")
    e("  s_branch K1_GO")
    e("K1_FFN:")
    srd(20, 8, 512 * 1792 * 2)
    e("  s_mov_b32 s24, 3584")
    e("  s_sub_u32 s25, s2, 128")
    e("  s_lshl_b32 s25, s25, 6")
    e(f"  s_add_u32 s26, s25, {WS_H}")
    e("  s_mov_b32 s27, 3584")
    e("  s_mov_b32 s28, 0")
    e("K1_GO:")
    e("  v_lshlrev_b32 v3, 4, v1")
    e("  buffer_load_dwordx4 v[4:7], v3, s[12:15], 0 offen")
    e("  buffer_load_dwordx4 v[8:11], v3, s[12:15], 0 offen offset:1024")
    e("  v_lshrrev_b32 v12, 2, v1")
    e("  v_lshl_add_u32 v12, v2, 7, v12")
    e("  v_mul_lo_u32 v13, v12, s24")
    e("  v_and_b32 v14, 3, v1")
    e("  v_lshl_add_u32 v13, v14, 4, v13")
    e("  s_lshl_b32 s29, s24, 4")
    e("  s_mov_b32 s30, s25")
    for i in range(8):
        e(f"  buffer_load_dwordx4 v[{64+4*i}:{67+4*i}], v13, s[20:23], s30 offen")
        if i < 7:
            e("  s_add_u32 s30, s30, s29")
    e("  s_waitcnt vmcnt(8)")
    for b in range(2):
        for c in range(4):
            e(f"  v_lshlrev_b32 v{16+8*b+2*c}, 16, v{4+4*b+c}")
            e(f"  v_and_b32 v{17+8*b+2*c}, 0xffff0000, v{4+4*b+c}")
    for b in range(2):
        e(f"  v_add_f32 v{32+b}, v{16+8*b}, v{17+8*b}")
        for c in range(2, 8):
            e(f"  v_add_f32 v{32+b}, v{32+b}, v{16+8*b+c}")
    wave_sum([32, 33], [34, 35])
    e("  v_mul_f32 v32, 0x3b000000, v32")
    e("  v_mul_f32 v33, 0x3b000000, v33")
    for b in range(2):
        e(f"  v_sub_f32 v38, v{16+8*b}, v{32+b}")
        e(f"  v_mul_f32 v{36+b}, v38, v38")
        for c in range(1, 8):
            e(f"  v_sub_f32 v38, v{16+8*b+c}, v{32+b}")
            e(f"  v_fmac_f32 v{36+b}, v38, v38")
    wave_sum([36, 37], [34, 35])
    e("  v_mul_f32 v36, 0x3b000000, v36")
    e("  v_mul_f32 v37, 0x3b000000, v37")
    for b in range(2):
        round_bf16(36 + b, 36 + b)
        e(f"  v_add_f32 v{36+b}, 0x3727c5ac, v{36+b}")
        round_bf16(36 + b, 36 + b)
        e(f"  v_sqrt_f32 v{36+b}, v{36+b}")
        e("  s_nop 0")
        round_bf16(36 + b, 36 + b)
        e(f"  v_rcp_f32 v{36+b}, v{36+b}")
        round_bf16(32 + b, 32 + b)
    for b in range(2):
        for c in range(8):
            r = 16 + 8 * b + c
            e(f"  v_sub_f32 v{r}, v{r}, v{32+b}")
            round_bf16(r, r)
            e(f"  v_mul_f32 v{r}, v{r}, v{36+b}")
            round_bf16(r, r)
    e("  v_lshlrev_b32 v3, 6, v1")
    for c in range(0, 8, 2):
        e(f"  v_mov_b32 v40, v{16+c}")
        e(f"  v_mov_b32 v41, v{24+c}")
        e(f"  v_mov_b32 v42, v{16+c+1}")
        e(f"  v_mov_b32 v43, v{24+c+1}")
        e(f"  ds_write_b128 v3, v[40:43] offset:{c*8}")
        e("  s_nop 1")
    e("  s_waitcnt lgkmcnt(0)")
    for r in range(44, 60):
        e(f"  v_mov_b32 v{r}, 0")
    e("  v_lshlrev_b32 v3, 3, v12")
    for i in range(8):
        e(f"  ds_read_b64 v[{96+2*i}:{97+2*i}], v3 offset:{i*16*8}")
    e("  s_waitcnt lgkmcnt(0)")
    for i in range(8):
        e(f"  s_waitcnt vmcnt({7-i})")
        for c in range(4):
            w = 64 + 4 * i + c
            e(f"  v_lshlrev_b32 v60, 16, v{w}")
            e(f"  v_and_b32 v61, 0xffff0000, v{w}")
            e(f"  v_fmac_f32 v{44+2*c}, v60, v{96+2*i}")
            e(f"  v_fmac_f32 v{45+2*c}, v61, v{96+2*i}")
            e(f"  v_fmac_f32 v{52+2*c}, v60, v{97+2*i}")
            e(f"  v_fmac_f32 v{53+2*c}, v61, v{97+2*i}")
    e("  v_lshrrev_b32 v3, 2, v1")
    e("  v_lshl_add_u32 v3, v2, 4, v3")
    e("  v_lshlrev_b32 v3, 8, v3")
    e("  v_lshl_add_u32 v3, v14, 5, v3")
    e("  ds_write_b128 v3, v[44:47] offset:4096")
    e("  ds_write_b128 v3, v[48:51] offset:4112")
    e(f"  ds_write_b128 v3, v[52:55] offset:{4096+128}")
    e(f"  ds_write_b128 v3, v[56:59] offset:{4096+128+16}")
    e("  s_waitcnt lgkmcnt(0)")
    e("  v_lshlrev_b32 v3, 12, v2")
    e("  v_lshl_add_u32 v3, v1, 2, v3")
    for j in range(16):
        e(f"  ds_read_b32 v{64+j}, v3 offset:{4096 + j*256}")
    e("  s_waitcnt lgkmcnt(0)")
    for j in range(1, 16):
        e(f"  v_add_f32 v64, v64, v{64+j}")
    e("  v_lshlrev_b32 v3, 2, v0")
    e("  ds_write_b32 v3, v64 offset:20480")
    e("  s_waitcnt lgkmcnt(0)")
    e("  s_barrier")
    e("  v_cmp_gt_u32 vcc, 64, v0")
    e("  s_and_saveexec_b64 s[32:33], vcc")
    e("  s_cbranch_execz K1_END")
    e("  v_lshlrev_b32 v3, 2, v1")
    for j in range(4):
        e(f"  ds_read_b32 v{64+j}, v3 offset:{20480 + j*256}")
    e("  s_waitcnt lgkmcnt(0)")
    e("  v_add_f32 v64, v64, v65")
    e("  v_add_f32 v66, v66, v67")
    e("  v_add_f32 v64, v64, v66")
    e("  v_max_f32 v64, s28, v64")
    e("  v_cvt_pk_bf16_f32 v64, v64, v64")
    e("  v_lshrrev_b32 v4, 5, v1")
    e("  v_mul_lo_u32 v4, v4, s27")
    e("  v_and_b32 v5, 31, v1")
    e("  v_lshl_add_u32 v4, v5, 1, v4")
    e("  buffer_store_short v64, v4, s[16:19], s26 offen")
    e("K1_END:")
    e("  s_endpgm")
    kernel_desc(name, 128)

NBLK = 8
def gen_k2(nt=" nt"):
    name = "k2_attn_kernel"
    kernel_begin(name)
    SETK = [0, 64]
    KA, VA, KB, VB = 16, 48, 80, 112
    ACC = 144
    QF = 176
    ST = 192
    PF = 200
    TR = 204
    M_, L_, T0, T1, AL, MC = 236, 237, 238, 239, 240, 241
    VKOFF, VVOFF = 242, 243
    e("  s_cmp_ge_u32 s2, 256")
    e("  s_cbranch_scc1 K2_END")
    e("  s_load_dwordx4 s[4:7], s[0:1], 8")
    e("  s_load_dwordx2 s[10:11], s[0:1], 80")
    e("  v_and_b32 v1, 63, v0")
    e("  v_lshrrev_b32 v2, 6, v0")
    e("  v_and_b32 v3, 15, v1")
    e("  v_lshrrev_b32 v4, 4, v1")
    e("  s_nop 0")
    e("  v_readfirstlane_b32 s3, v2")
    e("  s_waitcnt lgkmcnt(0)")
    srd(12, 4, K_BYTES)
    srd(16, 6, K_BYTES)
    srd(20, 10, WS_SIZE)
    e("  s_lshl_b32 s24, s2, 19")
    e("  s_lshl_b32 s25, s3, 16")
    e("  s_add_u32 s24, s24, s25")
    e("  s_add_u32 s25, s24, 4096")
    e("  v_and_b32 v5, 3, v3")
    e("  v_lshrrev_b32 v6, 2, v3")
    e("  v_lshl_add_u32 v5, v5, 2, v6")
    e("  v_lshlrev_b32 v5, 8, v5")
    e(f"  v_lshl_add_u32 v{VKOFF}, v4, 4, v5")
    e(f"  v_lshlrev_b32 v{VVOFF}, 4, v1")
    e("  s_lshr_b32 s26, s2, 4")
    e("  s_lshl_b32 s27, s26, 10")
    e("  v_and_b32 v5, 3, v3")
    e("  v_lshlrev_b32 v5, 8, v5")
    e("  v_lshl_add_u32 v5, v4, 4, v5")
    for i in range(4):
        e(f"  buffer_load_dwordx4 v[{QF+4*i}:{QF+4*i+3}], v5, s[20:23], s27 offen offset:{WS_Q + i*64}")

    def loads(KR, VR):
        for t in range(2):
            for i in range(4):
                so = "s24" if t == 0 else "s25"
                e(f"  buffer_load_dwordx4 v[{KR+16*t+4*i}:{KR+16*t+4*i+3}], v{VKOFF}, s[12:15], {so} offen offset:{i*64}{nt}")
        for j in range(8):
            so = "s24" if j < 4 else "s25"
            e(f"  buffer_load_dwordx4 v[{VR+4*j}:{VR+4*j+3}], v{VVOFF}, s[16:19], {so} offen offset:{(j&3)*1024}{nt}")
        e("  s_add_u32 s24, s24, 8192")
        e("  s_add_u32 s25, s25, 8192")

    def compute(KR, VR, vk, vv):
        e(f"  s_waitcnt vmcnt({vk})")
        for t in range(2):
            for i in range(4):
                c = "0" if i == 0 else f"v[{ST+4*t}:{ST+4*t+3}]"
                e(f"  v_mfma_f32_16x16x32_bf16 v[{ST+4*t}:{ST+4*t+3}], v[{KR+16*t+4*i}:{KR+16*t+4*i+3}], v[{QF+4*i}:{QF+4*i+3}], {c}")
        e("  s_nop 7")
        e("  s_nop 0")
        e(f"  v_max3_f32 v{T0}, v{ST}, v{ST+1}, v{ST+2}")
        e(f"  v_max3_f32 v{T1}, v{ST+3}, v{ST+4}, v{ST+5}")
        e(f"  v_max3_f32 v{T0}, v{T0}, v{ST+6}, v{ST+7}")
        e(f"  v_max_f32 v{T0}, v{T0}, v{T1}")
        e(f"  v_mov_b32 v{T1}, v{T0}")
        e("  s_nop 1")
        e(f"  v_permlane16_swap_b32 v{T0}, v{T1}")
        e("  s_nop 1")
        e(f"  v_max_f32 v{T0}, v{T0}, v{T1}")
        e(f"  v_mov_b32 v{T1}, v{T0}")
        e("  s_nop 1")
        e(f"  v_permlane32_swap_b32 v{T0}, v{T1}")
        e("  s_nop 1")
        e(f"  v_max3_f32 v{T0}, v{T0}, v{T1}, v{M_}")
        e(f"  v_sub_f32 v{AL}, v{M_}, v{T0}")
        e(f"  v_mul_f32 v{AL}, s28, v{AL}")
        e(f"  v_exp_f32 v{AL}, v{AL}")
        e(f"  v_mov_b32 v{M_}, v{T0}")
        e(f"  v_mul_f32 v{MC}, s28, v{T0}")
        for k in range(8):
            e(f"  v_fma_f32 v{ST+k}, v{ST+k}, s28, -v{MC}")
        for k in range(8):
            e(f"  v_exp_f32 v{ST+k}, v{ST+k}")
        e("  s_nop 0")
        e(f"  v_mul_f32 v{L_}, v{L_}, v{AL}")
        for k in range(8):
            e(f"  v_add_f32 v{L_}, v{L_}, v{ST+k}")
        for q in range(4):
            e(f"  v_cvt_pk_bf16_f32 v{PF+q}, v{ST+2*q}, v{ST+2*q+1}")
        for r in range(32):
            e(f"  v_mul_f32 v{ACC+r}, v{ACC+r}, v{AL}")
        e(f"  s_waitcnt vmcnt({vv})")
        for t in range(8):
            c = t >> 1
            sel = "s30" if (t & 1) else "s29"
            for q in range(4):
                e(f"  v_perm_b32 v{TR+4*t+q}, v{VR+4*(2*q+1)+c}, v{VR+4*(2*q)+c}, {sel}")
        e("  s_nop 1")
        for t in range(8):
            e(f"  v_mfma_f32_16x16x32_bf16 v[{ACC+4*t}:{ACC+4*t+3}], v[{TR+4*t}:{TR+4*t+3}], v[{PF}:{PF+3}], v[{ACC+4*t}:{ACC+4*t+3}]")

    e("  s_mov_b32 s28, 0x3e0293ee")
    e("  s_mov_b32 s29, 0x05040100")
    e("  s_mov_b32 s30, 0x07060302")
    for r in range(32):
        e(f"  v_mov_b32 v{ACC+r}, 0")
    e(f"  v_mov_b32 v{M_}, 0xf149f2ca")
    e(f"  v_mov_b32 v{L_}, 0")
    loads(KA, VA)
    e(f"  s_mov_b32 s31, {NBLK//2 - 1}")
    e("K2_LOOP:")
    loads(KB, VB)
    compute(KA, VA, 24, 16)
    loads(KA, VA)
    compute(KB, VB, 24, 16)
    e("  s_sub_u32 s31, s31, 1")
    e("  s_cmp_lg_u32 s31, 0")
    e("  s_cbranch_scc1 K2_LOOP")
    loads(KB, VB)
    compute(KA, VA, 24, 16)
    compute(KB, VB, 8, 0)
    e(f"  v_mov_b32 v{T1}, v{L_}")
    e("  s_nop 1")
    e(f"  v_permlane16_swap_b32 v{L_}, v{T1}")
    e("  s_nop 1")
    e(f"  v_add_f32 v{L_}, v{L_}, v{T1}")
    e(f"  v_mov_b32 v{T1}, v{L_}")
    e("  s_nop 1")
    e(f"  v_permlane32_swap_b32 v{L_}, v{T1}")
    e("  s_nop 1")
    e(f"  v_add_f32 v{L_}, v{L_}, v{T1}")
    e("  v_cmp_gt_u32 vcc, 4, v3")
    e("  s_and_saveexec_b64 s[32:33], vcc")
    e("  v_lshlrev_b32 v5, 11, v2")
    e("  v_lshl_add_u32 v5, v3, 9, v5")
    e("  v_lshl_add_u32 v5, v4, 7, v5")
    e("  s_nop 4")
    for t in range(8):
        for r in range(4):
            e(f"  ds_write_b32 v5, v{ACC+4*t+r} offset:{(r*8+t)*4}")
    e("  v_cmp_gt_u32 vcc, 4, v1")
    e("  s_and_b64 exec, exec, vcc")
    e("  v_lshlrev_b32 v6, 5, v2")
    e("  v_lshl_add_u32 v6, v3, 3, v6")
    e(f"  ds_write_b32 v6, v{M_} offset:16384")
    e(f"  ds_write_b32 v6, v{L_} offset:16388")
    e("  s_mov_b64 exec, s[32:33]")
    e("  s_waitcnt lgkmcnt(0)")
    e("  s_barrier")
    e("  v_lshrrev_b32 v5, 7, v0")
    e("  v_and_b32 v6, 127, v0")
    e("  v_lshlrev_b32 v7, 3, v5")
    for w in range(8):
        e(f"  ds_read_b64 v[{16+2*w}:{17+2*w}], v7 offset:{16384 + w*32}")
    e("  v_lshlrev_b32 v8, 9, v5")
    e("  v_lshl_add_u32 v8, v6, 2, v8")
    for w in range(8):
        e(f"  ds_read_b32 v{32+w}, v8 offset:{w*2048}")
    e("  s_waitcnt lgkmcnt(0)")
    e("  v_max3_f32 v40, v16, v18, v20")
    e("  v_max3_f32 v41, v22, v24, v26")
    e("  v_max3_f32 v40, v40, v28, v30")
    e("  v_max_f32 v40, v40, v41")
    e("  v_mov_b32 v42, 0")
    e("  v_mov_b32 v43, 0")
    for w in range(8):
        e(f"  v_sub_f32 v41, v{16+2*w}, v40")
        e("  v_mul_f32 v41, s28, v41")
        e("  v_exp_f32 v41, v41")
        e("  s_nop 0")
        e(f"  v_fmac_f32 v42, v41, v{17+2*w}")
        e(f"  v_fmac_f32 v43, v41, v{32+w}")
    e("  s_and_b32 s27, s2, 15")
    e("  s_lshl_b32 s26, s26, 6")
    e("  s_add_u32 s26, s26, s27")
    e("  v_lshlrev_b32 v7, 4, v5")
    e("  v_add_u32 v7, s26, v7")
    e("  v_lshlrev_b32 v8, 9, v7")
    e("  v_lshl_add_u32 v8, v6, 2, v8")
    e(f"  s_mov_b32 s27, {WS_O}")
    e("  buffer_store_dword v43, v8, s[20:23], s27 offen")
    e("  v_cmp_eq_u32 vcc, 0, v6")
    e("  s_and_saveexec_b64 s[32:33], vcc")
    e("  s_cbranch_execz K2_END")
    e("  v_lshlrev_b32 v7, 3, v7")
    e("  v_mov_b32 v41, v42")
    e(f"  buffer_store_dwordx2 v[40:41], v7, s[20:23], 0 offen offset:{0}") if False else None
    e(f"  s_mov_b32 s27, {WS_ML}")
    e("  buffer_store_dwordx2 v[40:41], v7, s[20:23], s27 offen")
    e("K2_END:")
    e("  s_endpgm")
    kernel_desc(name, 256)

def gen_k3():
    name = "k3_comb_kernel"
    kernel_begin(name)
    e("  s_cmp_ge_u32 s2, 368")
    e("  s_cbranch_scc1 K3_END")
    e("  s_load_dwordx2 s[4:5], s[0:1], 32")
    e("  s_load_dwordx2 s[6:7], s[0:1], 56")
    e("  s_load_dwordx2 s[10:11], s[0:1], 80")
    e("  v_and_b32 v1, 63, v0")
    e("  v_lshrrev_b32 v2, 6, v0")
    e("  s_and_b32 s24, s2, 7")
    e("  s_lshr_b32 s25, s2, 3")
    e("  s_mov_b32 s28, 0x3e0293ee")
    e("  s_waitcnt lgkmcnt(0)")
    srd(16, 10, WS_SIZE)
    e("  s_cmp_ge_u32 s25, 32")
    e("  s_cbranch_scc1 K3_FFN")
    srd(20, 4, 4096 * 512 * 2)
    e("  s_lshl_b32 s26, s25, 17")
    e("  s_branch K3_GO")
    e("K3_FFN:")
    srd(20, 6, 1792 * 512 * 2)
    e("  s_sub_u32 s26, s25, 32")
    e("  s_lshl_b32 s26, s26, 17")
    e("K3_GO:")
    e("  s_lshl_b32 s27, s24, 7")
    e("  s_add_u32 s26, s26, s27")
    e("  v_lshrrev_b32 v3, 3, v1")
    e("  v_lshl_add_u32 v3, v2, 5, v3")
    e("  v_lshlrev_b32 v4, 10, v3")
    e("  v_and_b32 v5, 7, v1")
    e("  v_lshl_add_u32 v4, v5, 4, v4")
    for i in range(4):
        e(f"  s_add_u32 s27, s26, {i*8192}")
        e(f"  buffer_load_dwordx4 v[{64+4*i}:{67+4*i}], v4, s[20:23], s27 offen")
    e("  v_lshrrev_b32 v6, 7, v0")
    e("  v_and_b32 v7, 127, v0")
    e("  s_cmp_ge_u32 s25, 32")
    e("  s_cbranch_scc1 K3_FFN2")
    e("  v_lshlrev_b32 v8, 5, v6")
    e("  v_add_u32 v8, s25, v8")
    e("  v_lshlrev_b32 v9, 7, v8")
    e(f"  s_mov_b32 s27, {WS_ML}")
    for j in range(8):
        e(f"  buffer_load_dwordx4 v[{16+4*j}:{19+4*j}], v9, s[16:19], s27 offen offset:{j*16}")
    e("  v_lshlrev_b32 v9, 13, v8")
    e("  v_lshl_add_u32 v9, v7, 2, v9")
    e(f"  s_mov_b32 s27, {WS_O}")
    e(f"  s_mov_b32 s29, {WS_O + 4096}")
    for s in range(16):
        so = "s27" if s < 8 else "s29"
        e(f"  buffer_load_dword v{96+s}, v9, s[16:19], {so} offen offset:{(s&7)*512}")
    e("  s_waitcnt vmcnt(16)")
    e("  v_max3_f32 v48, v16, v18, v20")
    for s in range(3, 15, 2):
        e(f"  v_max3_f32 v48, v48, v{16+2*s}, v{18+2*s}")
    e("  v_max_f32 v48, v48, v46")
    e("  v_mov_b32 v49, 0")
    e("  v_mov_b32 v50, 0")
    for s in range(16):
        e(f"  v_sub_f32 v{16+2*s}, v{16+2*s}, v48")
        e(f"  v_mul_f32 v{16+2*s}, s28, v{16+2*s}")
        e(f"  v_exp_f32 v{16+2*s}, v{16+2*s}")
    e("  s_nop 0")
    for s in range(16):
        e(f"  v_fmac_f32 v49, v{16+2*s}, v{17+2*s}")
    e("  s_waitcnt vmcnt(0)")
    for s in range(16):
        e(f"  v_fmac_f32 v50, v{16+2*s}, v{96+s}")
    e("  v_rcp_f32 v49, v49")
    e("  s_nop 0")
    e("  v_mul_f32 v50, v50, v49")
    round_bf16(50, 50)
    e("  s_branch K3_VEC")
    e("K3_FFN2:")
    e("  s_sub_u32 s27, s25, 32")
    e("  s_lshl_b32 s27, s27, 8")
    e(f"  s_add_u32 s27, s27, {WS_H}")
    e("  s_movk_i32 s29, 3584")
    e("  v_mul_lo_u32 v8, v6, s29")
    e("  v_lshl_add_u32 v8, v7, 1, v8")
    e("  buffer_load_ushort v50, v8, s[16:19], s27 offen")
    e("  s_waitcnt vmcnt(0)")
    e("  v_lshlrev_b32 v50, 16, v50")
    e("K3_VEC:")
    e("  v_lshlrev_b32 v8, 2, v0")
    e("  ds_write_b32 v8, v50")
    e("  s_waitcnt lgkmcnt(0)")
    e("  s_barrier")
    e("  v_lshlrev_b32 v8, 2, v3")
    for i in range(4):
        e(f"  ds_read_b32 v{16+2*i}, v8 offset:{i*32}")
        e(f"  ds_read_b32 v{17+2*i}, v8 offset:{512 + i*32}")
    for r in range(44, 60):
        e(f"  v_mov_b32 v{r}, 0")
    e("  s_waitcnt vmcnt(0) lgkmcnt(0)")
    for i in range(4):
        for c in range(4):
            w = 64 + 4 * i + c
            e(f"  v_lshlrev_b32 v60, 16, v{w}")
            e(f"  v_and_b32 v61, 0xffff0000, v{w}")
            e(f"  v_fmac_f32 v{44+2*c}, v60, v{16+2*i}")
            e(f"  v_fmac_f32 v{45+2*c}, v61, v{16+2*i}")
            e(f"  v_fmac_f32 v{52+2*c}, v60, v{17+2*i}")
            e(f"  v_fmac_f32 v{53+2*c}, v61, v{17+2*i}")
    e("  v_lshrrev_b32 v8, 3, v1")
    e("  v_lshl_add_u32 v8, v2, 3, v8")
    e("  v_lshlrev_b32 v8, 9, v8")
    e("  v_lshl_add_u32 v8, v5, 5, v8")
    e("  ds_write_b128 v8, v[44:47] offset:1024")
    e("  ds_write_b128 v8, v[48:51] offset:1040")
    e(f"  ds_write_b128 v8, v[52:55] offset:{1024+256}")
    e(f"  ds_write_b128 v8, v[56:59] offset:{1024+256+16}")
    e("  s_waitcnt lgkmcnt(0)")
    e("  s_barrier")
    e("  v_cmp_gt_u32 vcc, 128, v0")
    e("  s_and_saveexec_b64 s[32:33], vcc")
    e("  s_cbranch_execz K3_END")
    e("  v_lshlrev_b32 v8, 2, v0")
    for p in range(32):
        e(f"  ds_read_b32 v{64+p}, v8 offset:{1024 + p*512}")
    e("  s_waitcnt lgkmcnt(0)")
    for p in range(1, 32):
        e(f"  v_add_f32 v64, v64, v{64+p}")
    e("  v_lshrrev_b32 v8, 6, v0")
    e("  v_lshlrev_b32 v8, 11, v8")
    e("  v_lshl_add_u32 v8, v1, 2, v8")
    e("  s_lshl_b32 s27, s25, 12")
    e("  s_lshl_b32 s29, s24, 8")
    e("  s_add_u32 s27, s27, s29")
    e(f"  s_add_u32 s27, s27, {WS_P}")
    e("  buffer_store_dword v64, v8, s[16:19], s27 offen")
    e("K3_END:")
    e("  s_endpgm")
    kernel_desc(name, 128)

def gen_k4():
    name = "k4_final_kernel"
    kernel_begin(name)
    e("  s_cmp_ge_u32 s2, 4")
    e("  s_cbranch_scc1 K4_END")
    e("  s_load_dwordx2 s[4:5], s[0:1], 0")
    e("  s_load_dwordx2 s[6:7], s[0:1], 64")
    e("  s_load_dwordx2 s[10:11], s[0:1], 80")
    e("  s_lshl_b32 s3, s2, 8")
    e("  v_add_u32 v1, s3, v0")
    e("  v_lshlrev_b32 v2, 2, v1")
    e("  v_lshlrev_b32 v3, 1, v1")
    e("  s_waitcnt lgkmcnt(0)")
    srd(12, 4, 2048)
    srd(16, 10, WS_SIZE)
    srd(20, 6, 2048)
    e("  buffer_load_ushort v4, v3, s[12:15], 0 offen")
    for k in range(46):
        e(f"  s_mov_b32 s24, {WS_P + k*4096}")
        e(f"  buffer_load_dword v{8+k}, v2, s[16:19], s24 offen")
    e("  s_waitcnt vmcnt(0)")
    for k in range(1, 32):
        e(f"  v_add_f32 v8, v8, v{8+k}")
    for k in range(33, 46):
        e(f"  v_add_f32 v40, v40, v{8+k}")
    round_bf16(8, 8)
    round_bf16(40, 40)
    e("  v_mul_f32 v5, 0xbfb8aa3b, v40")
    e("  v_exp_f32 v5, v5")
    e("  s_nop 0")
    e("  v_add_f32 v5, 1.0, v5")
    e("  v_rcp_f32 v5, v5")
    e("  s_nop 0")
    e("  v_mul_f32 v5, v5, v40")
    round_bf16(5, 5)
    e("  v_mul_f32 v5, v5, v8")
    round_bf16(5, 5)
    e("  v_lshlrev_b32 v4, 16, v4")
    e("  v_add_f32 v5, v5, v4")
    e("  v_cvt_pk_bf16_f32 v5, v5, v5")
    e("  buffer_store_short v5, v3, s[20:23], 0 offen")
    e("K4_END:")
    e("  s_endpgm")
    kernel_desc(name, 64)

def main():
    e(HEADER.rstrip("\n"))
    e("; @launch kernel=k1_proj_kernel grid=(184,1,1) block=(256,1,1) lds=21504")
    e("; @launch kernel=k2_attn_kernel grid=(256,1,1) block=(512,1,1) lds=16896")
    e("; @launch kernel=k3_comb_kernel grid=(368,1,1) block=(256,1,1) lds=17408")
    e("; @launch kernel=k4_final_kernel grid=(4,1,1) block=(256,1,1) lds=0")
    e('.amdgcn_target "amdgcn-amd-amdhsa--gfx950"')
    gen_k1()
    gen_k2()
    gen_k3()
    gen_k4()
    txt = "\n".join(x for x in out if x is not None) + "\n"
    path = sys.argv[1] if len(sys.argv) > 1 else f"cdna_kernels/{NAME}.s"
    open(path, "w").write(txt)

main()
```

```python
import sys

NAME = "recurrent_scan__gqa_block_cached__dense_activation_relu__decode"

HEADER = """; Kernarg layout for this problem (88 bytes, ptrs only, base s[0:1]):
;   offset   0: d_in[0] A_x  shape=(2, 1, 512) dtype=bfloat16 strides=(1024, 1024, 2) contiguous=True
;   offset   8: d_in[1] A_k_cache  shape=(2, 8, 32768, 128) dtype=bfloat16 strides=(67108864, 8388608, 256, 2) contiguous=True
;   offset  16: d_in[2] A_v_cache  shape=(2, 8, 32768, 128) dtype=bfloat16 strides=(67108864, 8388608, 256, 2) contiguous=True
;   offset  24: d_in[3] A_wq  shape=(512, 4096) dtype=bfloat16 strides=(8192, 2) contiguous=True
;   offset  32: d_in[4] A_wo  shape=(4096, 512) dtype=bfloat16 strides=(1024, 2) contiguous=True
;   offset  40: d_in[5] B_x  shape=(2, 1, 512) dtype=bfloat16 strides=(1024, 1024, 2) contiguous=True
;   offset  48: d_in[6] B_w1  shape=(512, 1792) dtype=bfloat16 strides=(3584, 2) contiguous=True
;   offset  56: d_in[7] B_w2  shape=(1792, 512) dtype=bfloat16 strides=(1024, 2) contiguous=True
"""

WS_Q = 0
WS_H = 16384
WS_ML = 32768
WS_O = 65536
WS_P = 1 << 20
WS_G = WS_P + 131072
WS_SIZE = 536870912

L_XN = 0
L_QP = 4096
L_Q = 5632
L_HV = 6656
L_CNT = 7168
L_O = 8192
L_ML = 24576
L_FP = 25600
L_VEC = 0
L_SP = 8192
L_GX = 1024
LDS_SIZE = 41984

OPT = dict(nt=" nt", sleep=1)

out = []
def e(s=""):
    out.append(s)

def srd(dst, lo, hi, nbytes):
    e(f"  s_mov_b32 s{dst}, s{lo}")
    e(f"  s_and_b32 s{dst+1}, s{hi}, 0xffff")
    e(f"  s_mov_b32 s{dst+2}, {nbytes}")
    e(f"  s_mov_b32 s{dst+3}, 0x00020000")

def dpp_steps(regs, ctrls):
    for ctrl in ctrls:
        e("  s_nop 1")
        for r in regs:
            e(f"  v_add_f32_dpp v{r}, v{r}, v{r} {ctrl} row_mask:0xf bank_mask:0xf")

def swap_steps(regs, tmp):
    for sw in ["v_permlane16_swap_b32", "v_permlane32_swap_b32"]:
        for r, t in zip(regs, tmp):
            e(f"  v_mov_b32 v{t}, v{r}")
        e("  s_nop 1")
        for r, t in zip(regs, tmp):
            e(f"  {sw} v{r}, v{t}")
        e("  s_nop 1")
        for r, t in zip(regs, tmp):
            e(f"  v_add_f32 v{r}, v{r}, v{t}")

def wave_sum(regs, tmp):
    dpp_steps(regs, ["quad_perm:[1,0,3,2]", "quad_perm:[2,3,0,1]", "row_half_mirror", "row_mirror"])
    swap_steps(regs, tmp)

def round_bf16(dst, src):
    e(f"  v_cvt_pk_bf16_f32 v{dst}, v{src}, v{src}")
    e(f"  v_lshlrev_b32 v{dst}, 16, v{dst}")

SX, SK, SV, SWQ, SW1, SWO, SW2, SWS, SDBG, SOUT = 28, 32, 36, 40, 44, 48, 52, 56, 60, 64
SC, SP0, SP1 = 68, 69, 70
IDXA, IDXB = 72, 73
SG, SR, SB, SSPL, SNC, SHEAD = 86, 87, 88, 89, 90, 91

def poll(label, nlanes, voff, target, tmpv):
    e(f"  s_mov_b64 exec, {(1<<nlanes)-1:#x}")
    e("  s_mov_b32 s74, 0x400000")
    e(f"{label}:")
    e(f"  buffer_load_dword v{tmpv}, v{voff}, s[{SDBG}:{SDBG+3}], 0 offen sc1")
    e("  s_waitcnt vmcnt(0)")
    e(f"  v_cmp_ne_u32 vcc, {target}, v{tmpv}")
    e("  s_cmp_eq_u64 vcc, 0")
    e(f"  s_cbranch_scc1 {label}_DONE")
    if OPT["sleep"]:
        e(f"  s_sleep {OPT['sleep']}")
    e("  s_sub_u32 s74, s74, 1")
    e("  s_cmp_lg_u32 s74, 0")
    e(f"  s_cbranch_scc1 {label}")
    e(f"{label}_DONE:")
    e("  s_mov_b64 exec, -1")

def gen():
    nt = OPT["nt"]
    name = NAME + "_kernel"
    e(".text")
    e(f".globl {name}")
    e(".p2align 8")
    e(f".type {name},@function")
    e(f"{name}:")
    KA, VA, KB, VB = 16, 48, 80, 112
    ACC = 144
    QF = 176
    ST = 192
    PF = 200
    TR = 204
    M_, L_, T0, T1, AL, MC = 236, 237, 238, 239, 240, 241
    VKOFF, VVOFF = 242, 243
    WO = 244
    W2 = 252
    e("  s_cmp_ge_u32 s2, 256")
    e("  s_cbranch_scc1 K_END")
    e("  s_load_dwordx16 s[4:19], s[0:1], 0")
    e("  s_load_dwordx4 s[20:23], s[0:1], 64")
    e("  s_load_dwordx2 s[24:25], s[0:1], 80")
    e("  v_and_b32 v1, 63, v0")
    e("  v_lshrrev_b32 v2, 6, v0")
    e("  v_and_b32 v3, 15, v1")
    e("  v_lshrrev_b32 v4, 4, v1")
    e("  v_readfirstlane_b32 s3, v2")
    e(f"  s_lshr_b32 s{SG}, s2, 5")
    e(f"  s_and_b32 s{SR}, s2, 31")
    e(f"  s_lshr_b32 s{SB}, s{SR}, 4")
    e(f"  s_and_b32 s{SSPL}, s{SR}, 15")
    e(f"  s_and_b32 s{SNC}, s2, 7")
    e(f"  s_lshr_b32 s{SHEAD}, s{SR}, 3")
    e(f"  s_lshl_b32 s74, s{SG}, 2")
    e(f"  s_add_u32 s{SHEAD}, s{SHEAD}, s74")
    e(f"  s_lshl_b32 s74, s{SB}, 3")
    e(f"  s_add_u32 s74, s74, s{SG}")
    e("  s_lshl_b32 s74, s74, 23")
    e(f"  s_lshl_b32 s75, s{SSPL}, 19")
    e("  s_add_u32 s74, s74, s75")
    e(f"  s_mov_b32 s{SC}, 0x3e0293ee")
    e(f"  s_mov_b32 s{SP0}, 0x05040100")
    e(f"  s_mov_b32 s{SP1}, 0x07060302")
    e("  s_lshl_b32 s75, s3, 1")
    e(f"  s_sub_u32 s{IDXA}, s75, 2")
    e(f"  s_sub_u32 s{IDXB}, s75, 1")
    e("  s_cmp_eq_u32 s3, 0")
    e(f"  s_cselect_b32 s{IDXA}, 64, s{IDXA}")
    e(f"  s_cselect_b32 s{IDXB}, 64, s{IDXB}")
    e("  v_and_b32 v5, 3, v3")
    e("  v_lshrrev_b32 v6, 2, v3")
    e("  v_lshl_add_u32 v5, v5, 2, v6")
    e("  v_lshlrev_b32 v5, 8, v5")
    e(f"  v_lshl_add_u32 v{VKOFF}, v4, 4, v5")
    e(f"  v_lshlrev_b32 v{VVOFF}, 4, v1")
    e("  s_waitcnt lgkmcnt(0)")
    srd(SX, 4, 5, 2048)
    srd(SWQ, 10, 11, 512 * 4096 * 2)
    srd(SW1, 16, 17, 512 * 1792 * 2)
    srd(SWO, 12, 13, 4096 * 512 * 2)
    srd(SW2, 18, 19, 1792 * 512 * 2)
    e("  v_lshlrev_b32 v5, 4, v1")
    e(f"  buffer_load_dwordx4 v[204:207], v5, s[{SX}:{SX+3}], 0 offen")
    e(f"  buffer_load_dwordx4 v[208:211], v5, s[{SX}:{SX+3}], 0 offen offset:1024")
    e("  v_lshrrev_b32 v6, 2, v0")
    e("  v_and_b32 v7, 3, v0")
    e("  v_lshlrev_b32 v8, 13, v6")
    e("  v_lshl_add_u32 v8, v7, 3, v8")
    e("  s_lshl_b32 s75, s2, 5")
    e("  v_add_u32 v8, s75, v8")
    for i in range(4):
        if i == 0:
            e(f"  buffer_load_dwordx2 v[212:213], v8, s[{SWQ}:{SWQ+3}], 0 offen")
        else:
            e(f"  v_add_u32 v8, 0x100000, v8")
            e(f"  buffer_load_dwordx2 v[{212+2*i}:{213+2*i}], v8, s[{SWQ}:{SWQ+3}], 0 offen")
    e("  v_lshrrev_b32 v9, 1, v0")
    e("  v_and_b32 v10, 1, v0")
    e("  s_movk_i32 s75, 3584")
    e("  v_mul_lo_u32 v11, v9, s75")
    e("  v_lshl_add_u32 v11, v10, 3, v11")
    e("  s_lshl_b32 s75, s2, 4")
    e("  v_add_u32 v11, s75, v11")
    e(f"  buffer_load_dwordx2 v[220:221], v11, s[{SW1}:{SW1+3}], 0 offen")
    e(f"  v_add_u32 v11, {256*3584}, v11")
    e(f"  buffer_load_dwordx2 v[222:223], v11, s[{SW1}:{SW1+3}], 0 offen")
    e("  v_lshrrev_b32 v12, 3, v0")
    e("  v_and_b32 v13, 7, v0")
    e("  v_lshlrev_b32 v14, 10, v12")
    e("  v_lshl_add_u32 v14, v13, 4, v14")
    e(f"  s_lshl_b32 s75, s{SNC}, 7")
    e("  v_add_u32 v14, s75, v14")
    e(f"  s_lshl_b32 s75, s{SHEAD}, 17")
    e("  v_add_u32 v15, s75, v14")
    e(f"  buffer_load_dwordx4 v[{WO}:{WO+3}], v15, s[{SWO}:{SWO+3}], 0 offen")
    e("  v_add_u32 v15, 0x10000, v15")
    e(f"  buffer_load_dwordx4 v[{WO+4}:{WO+7}], v15, s[{SWO}:{SWO+3}], 0 offen")
    e("  s_lshr_b32 s75, s2, 3")
    e("  s_lshl_b32 s75, s75, 16")
    e("  v_add_u32 v15, s75, v14")
    e(f"  buffer_load_dwordx4 v[{W2}:{W2+3}], v15, s[{SW2}:{SW2+3}], 0 offen")
    e(f"  s_add_u32 s{SK}, s6, s74")
    e(f"  s_addc_u32 s{SK+1}, s7, 0")
    e(f"  s_and_b32 s{SK+1}, s{SK+1}, 0xffff")
    e(f"  s_mov_b32 s{SK+2}, 524288")
    e(f"  s_mov_b32 s{SK+3}, 0x00020000")
    e(f"  s_add_u32 s{SV}, s8, s74")
    e(f"  s_addc_u32 s{SV+1}, s9, 0")
    e(f"  s_and_b32 s{SV+1}, s{SV+1}, 0xffff")
    e(f"  s_mov_b32 s{SV+2}, 524288")
    e(f"  s_mov_b32 s{SV+3}, 0x00020000")
    e("  s_movk_i32 s71, 4096")

    def loads(KR, VR, sidx):
        e(f"  s_lshl_b32 s75, s{sidx}, 13")
        e(f"  v_add_u32 v5, s75, v{VKOFF}")
        e(f"  v_add_u32 v6, s75, v{VVOFF}")
        for t in range(2):
            for i in range(4):
                so = "0" if t == 0 else "s71"
                e(f"  buffer_load_dwordx4 v[{KR+16*t+4*i}:{KR+16*t+4*i+3}], v5, s[{SK}:{SK+3}], {so} offen offset:{i*64}{nt}")
        for j in range(8):
            so = "0" if j < 4 else "s71"
            e(f"  buffer_load_dwordx4 v[{VR+4*j}:{VR+4*j+3}], v6, s[{SV}:{SV+3}], {so} offen offset:{(j&3)*1024}{nt}")

    loads(KA, VA, IDXA)
    loads(KB, VB, IDXB)
    srd(SWS, 24, 25, WS_SIZE)
    srd(SDBG, 22, 23, 256)
    srd(SOUT, 20, 21, 2048)
    X = 144
    e("  s_waitcnt vmcnt(41)")
    for b in range(2):
        for c in range(4):
            e(f"  v_lshlrev_b32 v{X+8*b+2*c}, 16, v{204+4*b+c}")
            e(f"  v_and_b32 v{X+1+8*b+2*c}, 0xffff0000, v{204+4*b+c}")
    for b in range(2):
        e(f"  v_add_f32 v{160+b}, v{X+8*b}, v{X+1+8*b}")
        for c in range(2, 8):
            e(f"  v_add_f32 v{160+b}, v{160+b}, v{X+8*b+c}")
    wave_sum([160, 161], [162, 163])
    e("  v_mul_f32 v160, 0x3b000000, v160")
    e("  v_mul_f32 v161, 0x3b000000, v161")
    for b in range(2):
        e(f"  v_sub_f32 v166, v{X+8*b}, v{160+b}")
        e(f"  v_mul_f32 v{164+b}, v166, v166")
        for c in range(1, 8):
            e(f"  v_sub_f32 v166, v{X+8*b+c}, v{160+b}")
            e(f"  v_fmac_f32 v{164+b}, v166, v166")
    wave_sum([164, 165], [162, 163])
    e("  v_mul_f32 v164, 0x3b000000, v164")
    e("  v_mul_f32 v165, 0x3b000000, v165")
    for b in range(2):
        round_bf16(164 + b, 164 + b)
        e(f"  v_add_f32 v{164+b}, 0x3727c5ac, v{164+b}")
        round_bf16(164 + b, 164 + b)
        e(f"  v_sqrt_f32 v{164+b}, v{164+b}")
        e("  s_nop 0")
        round_bf16(164 + b, 164 + b)
        e(f"  v_rcp_f32 v{164+b}, v{164+b}")
        round_bf16(160 + b, 160 + b)
    for b in range(2):
        for c in range(8):
            r = X + 8 * b + c
            e(f"  v_sub_f32 v{r}, v{r}, v{160+b}")
            round_bf16(r, r)
            e(f"  v_mul_f32 v{r}, v{r}, v{164+b}")
            round_bf16(r, r)
    e("  v_lshlrev_b32 v5, 6, v1")
    for c in range(0, 8, 2):
        e(f"  v_mov_b32 v{168+2*c}, v{X+c}")
        e(f"  v_mov_b32 v{169+2*c}, v{X+8+c}")
        e(f"  v_mov_b32 v{170+2*c}, v{X+c+1}")
        e(f"  v_mov_b32 v{171+2*c}, v{X+8+c+1}")
        e(f"  ds_write_b128 v5, v[{168+2*c}:{171+2*c}] offset:{L_XN + c*8}")
    e("  s_waitcnt lgkmcnt(0)")
    e("  v_lshrrev_b32 v5, 2, v0")
    e("  v_lshlrev_b32 v5, 3, v5")
    e("  v_lshlrev_b32 v6, 3, v9")
    for i in range(4):
        e(f"  ds_read_b64 v[{168+2*i}:{169+2*i}], v5 offset:{L_XN + i*1024}")
    for i in range(2):
        e(f"  ds_read_b64 v[{176+2*i}:{177+2*i}], v6 offset:{L_XN + i*2048}")
    for r in range(180, 196):
        e(f"  v_mov_b32 v{r}, 0")
    e("  s_waitcnt vmcnt(35) lgkmcnt(0)")
    for i in range(4):
        for c in range(2):
            w = 212 + 2 * i + c
            e(f"  v_lshlrev_b32 v160, 16, v{w}")
            e(f"  v_and_b32 v161, 0xffff0000, v{w}")
            e(f"  v_fmac_f32 v{180+2*c}, v160, v{168+2*i}")
            e(f"  v_fmac_f32 v{181+2*c}, v161, v{168+2*i}")
            e(f"  v_fmac_f32 v{184+2*c}, v160, v{169+2*i}")
            e(f"  v_fmac_f32 v{185+2*c}, v161, v{169+2*i}")
    for i in range(2):
        for c in range(2):
            w = 220 + 2 * i + c
            e(f"  v_lshlrev_b32 v160, 16, v{w}")
            e(f"  v_and_b32 v161, 0xffff0000, v{w}")
            e(f"  v_fmac_f32 v{188+2*c}, v160, v{176+2*i}")
            e(f"  v_fmac_f32 v{189+2*c}, v161, v{176+2*i}")
            e(f"  v_fmac_f32 v{192+2*c}, v160, v{177+2*i}")
            e(f"  v_fmac_f32 v{193+2*c}, v161, v{177+2*i}")
    dpp_steps(list(range(188, 196)), ["quad_perm:[2,3,0,1]"])
    dpp_steps(list(range(180, 196)), ["row_ror:4", "row_ror:8"])
    swap_steps(list(range(180, 196)), list(range(204, 220)))
    e("  s_mul_i32 s75, s3, 192")
    e("  v_lshlrev_b32 v5, 4, v1")
    e("  v_add_u32 v5, s75, v5")
    e("  s_mov_b64 exec, 0xf")
    e(f"  ds_write_b128 v5, v[180:183] offset:{L_QP}")
    e(f"  ds_write_b128 v5, v[184:187] offset:{L_QP+64}")
    e("  s_mov_b64 exec, 0x3")
    e(f"  ds_write_b128 v5, v[188:191] offset:{L_QP+128}")
    e(f"  ds_write_b128 v5, v[192:195] offset:{L_QP+160}")
    e("  s_mov_b64 exec, -1")
    e("  s_waitcnt lgkmcnt(0)")
    e("  s_barrier")
    e("  s_cmp_lg_u32 s3, 0")
    e("  s_cbranch_scc1 K_B2")
    e("  v_lshlrev_b32 v5, 3, v1")
    e("  s_mov_b64 exec, 0xffffff")
    for w in range(8):
        e(f"  ds_read_b64 v[{160+2*w}:{161+2*w}], v5 offset:{L_QP + w*192}")
    e("  v_lshrrev_b32 v6, 3, v1")
    e("  v_lshlrev_b32 v6, 13, v6")
    e("  v_and_b32 v7, 7, v1")
    e("  v_lshl_add_u32 v6, v7, 2, v6")
    e("  s_lshl_b32 s75, s2, 5")
    e(f"  s_add_u32 s75, s75, {WS_Q}")
    e("  v_add_u32 v6, s75, v6")
    e("  v_bfe_u32 v7, v1, 2, 1")
    e("  s_movk_i32 s75, 3584")
    e("  v_mul_lo_u32 v7, v7, s75")
    e("  v_and_b32 v8, 3, v1")
    e("  v_lshl_add_u32 v7, v8, 2, v7")
    e("  s_lshl_b32 s75, s2, 4")
    e(f"  s_add_u32 s75, s75, {WS_H}")
    e("  v_add_u32 v7, s75, v7")
    e("  v_cmp_gt_u32 vcc, 16, v1")
    e("  v_cndmask_b32 v6, v7, v6, vcc")
    e("  s_waitcnt lgkmcnt(0)")
    for w in range(1, 8):
        e(f"  v_add_f32 v160, v160, v{160+2*w}")
        e(f"  v_add_f32 v161, v161, v{161+2*w}")
    e("  v_max_f32 v162, 0, v160")
    e("  v_max_f32 v163, 0, v161")
    e("  v_cndmask_b32 v160, v162, v160, vcc")
    e("  v_cndmask_b32 v161, v163, v161, vcc")
    e("  v_cvt_pk_bf16_f32 v160, v160, v161")
    e("  s_mov_b32 s77, 0xffff")
    e("  s_cmp_lt_u32 s2, 224")
    e("  s_cselect_b32 s76, 0xffffff, s77")
    e("  s_mov_b32 exec_lo, s76")
    e(f"  buffer_store_dword v160, v6, s[{SWS}:{SWS+3}], 0 offen sc1")
    e("  s_waitcnt vmcnt(0)")
    e("  s_mov_b64 exec, 1")
    e(f"  v_mov_b32 v5, s{SNC}")
    e("  v_lshlrev_b32 v5, 5, v5")
    e("  v_mov_b32 v6, 1")
    e(f"  buffer_atomic_add v6, v5, s[{SDBG}:{SDBG+3}], 0 offen sc1")
    e("  s_mov_b64 exec, -1")
    e("  v_lshlrev_b32 v7, 5, v1")
    poll("K_P1", 8, 7, 32, 8)
    e(f"  s_lshl_b32 s75, s{SB}, 13")
    e(f"  s_lshl_b32 s76, s{SG}, 10")
    e("  s_add_u32 s75, s75, s76")
    e(f"  s_add_u32 s75, s75, {WS_Q}")
    e("  v_lshlrev_b32 v5, 4, v1")
    e("  v_add_u32 v6, s75, v5")
    e(f"  buffer_load_dwordx4 v[160:163], v6, s[{SWS}:{SWS+3}], 0 offen sc1")
    e("  v_lshrrev_b32 v6, 3, v1")
    e("  s_movk_i32 s75, 3584")
    e("  v_mul_lo_u32 v7, v6, s75")
    e("  v_and_b32 v8, 7, v1")
    e("  v_lshl_add_u32 v7, v8, 4, v7")
    e("  s_lshr_b32 s75, s2, 3")
    e("  s_lshl_b32 s75, s75, 7")
    e(f"  s_add_u32 s75, s75, {WS_H}")
    e("  v_add_u32 v7, s75, v7")
    e("  s_mov_b64 exec, 0xffff")
    e(f"  buffer_load_dwordx4 v[164:167], v7, s[{SWS}:{SWS+3}], 0 offen sc1")
    e("  s_mov_b64 exec, -1")
    e(f"  s_mov_b32 s{IDXA}, 14")
    e(f"  s_mov_b32 s{IDXB}, 15")
    e("  v_mov_b32 v9, 16")
    e(f"  v_mov_b32 v10, {L_CNT}")
    e("  ds_write_b32 v10, v9")
    e("  s_waitcnt vmcnt(1)")
    e(f"  ds_write_b128 v5, v[160:163] offset:{L_Q}")
    e("  s_waitcnt vmcnt(0)")
    for c in range(4):
        e(f"  v_lshlrev_b32 v{168+2*c}, 16, v{164+c}")
        e(f"  v_and_b32 v{169+2*c}, 0xffff0000, v{164+c}")
    e("  v_lshlrev_b32 v6, 8, v6")
    e("  v_lshl_add_u32 v6, v8, 5, v6")
    e("  s_mov_b64 exec, 0xffff")
    e(f"  ds_write_b128 v6, v[168:171] offset:{L_HV}")
    e(f"  ds_write_b128 v6, v[172:175] offset:{L_HV+16}")
    e("  s_mov_b64 exec, -1")
    loads(KA, VA, IDXA)
    loads(KB, VB, IDXB)
    e("  s_waitcnt lgkmcnt(0)")
    e("K_B2:")
    e("  s_barrier")
    e("  v_and_b32 v5, 3, v3")
    e("  v_lshlrev_b32 v5, 8, v5")
    e("  v_lshl_add_u32 v5, v4, 4, v5")
    for i in range(4):
        e(f"  ds_read_b128 v[{QF+4*i}:{QF+4*i+3}], v5 offset:{L_Q + i*64}")
    for r in range(32):
        e(f"  v_mov_b32 v{ACC+r}, 0")
    e(f"  v_mov_b32 v{M_}, 0xf149f2ca")
    e(f"  v_mov_b32 v{L_}, 0")
    e(f"  v_mov_b32 v7, {L_CNT}")
    e("  v_mov_b32 v8, 1")
    e("  s_waitcnt lgkmcnt(0)")

    def compute(KR, VR, vk, vv):
        e(f"  s_waitcnt vmcnt({vk})")
        for t in range(2):
            for i in range(4):
                c = "0" if i == 0 else f"v[{ST+4*t}:{ST+4*t+3}]"
                e(f"  v_mfma_f32_16x16x32_bf16 v[{ST+4*t}:{ST+4*t+3}], v[{KR+16*t+4*i}:{KR+16*t+4*i+3}], v[{QF+4*i}:{QF+4*i+3}], {c}")
        e("  s_nop 7")
        e("  s_nop 0")
        e(f"  v_max3_f32 v{T0}, v{ST}, v{ST+1}, v{ST+2}")
        e(f"  v_max3_f32 v{T1}, v{ST+3}, v{ST+4}, v{ST+5}")
        e(f"  v_max3_f32 v{T0}, v{T0}, v{ST+6}, v{ST+7}")
        e(f"  v_max_f32 v{T0}, v{T0}, v{T1}")
        e(f"  v_mov_b32 v{T1}, v{T0}")
        e("  s_nop 1")
        e(f"  v_permlane16_swap_b32 v{T0}, v{T1}")
        e("  s_nop 1")
        e(f"  v_max_f32 v{T0}, v{T0}, v{T1}")
        e(f"  v_mov_b32 v{T1}, v{T0}")
        e("  s_nop 1")
        e(f"  v_permlane32_swap_b32 v{T0}, v{T1}")
        e("  s_nop 1")
        e(f"  v_max3_f32 v{T0}, v{T0}, v{T1}, v{M_}")
        e(f"  v_sub_f32 v{AL}, v{M_}, v{T0}")
        e(f"  v_mul_f32 v{AL}, s{SC}, v{AL}")
        e(f"  v_exp_f32 v{AL}, v{AL}")
        e(f"  v_mov_b32 v{M_}, v{T0}")
        e(f"  v_mul_f32 v{MC}, s{SC}, v{T0}")
        for k in range(8):
            e(f"  v_fma_f32 v{ST+k}, v{ST+k}, s{SC}, -v{MC}")
        for k in range(8):
            e(f"  v_exp_f32 v{ST+k}, v{ST+k}")
        e("  s_nop 0")
        e(f"  v_mul_f32 v{L_}, v{L_}, v{AL}")
        for k in range(8):
            e(f"  v_add_f32 v{L_}, v{L_}, v{ST+k}")
        for q in range(4):
            e(f"  v_cvt_pk_bf16_f32 v{PF+q}, v{ST+2*q}, v{ST+2*q+1}")
        for r in range(32):
            e(f"  v_mul_f32 v{ACC+r}, v{ACC+r}, v{AL}")
        e(f"  s_waitcnt vmcnt({vv})")
        for t in range(8):
            c = t >> 1
            sel = f"s{SP1}" if (t & 1) else f"s{SP0}"
            for q in range(4):
                e(f"  v_perm_b32 v{TR+4*t+q}, v{VR+4*(2*q+1)+c}, v{VR+4*(2*q)+c}, {sel}")
        e("  s_nop 1")
        for t in range(8):
            e(f"  v_mfma_f32_16x16x32_bf16 v[{ACC+4*t}:{ACC+4*t+3}], v[{TR+4*t}:{TR+4*t+3}], v[{PF}:{PF+3}], v[{ACC+4*t}:{ACC+4*t+3}]")

    def fetch():
        e("  s_mov_b64 exec, 1")
        e("  ds_add_rtn_u32 v9, v7, v8")
        e("  s_mov_b64 exec, -1")
    def getidx(sidx):
        e("  s_waitcnt lgkmcnt(0)")
        e(f"  v_readfirstlane_b32 s{sidx}, v9")

    e("K_LOOP:")
    fetch()
    compute(KA, VA, 24, 16)
    getidx(IDXA)
    loads(KA, VA, IDXA)
    e(f"  s_cmp_ge_u32 s{IDXB}, 64")
    e("  s_cbranch_scc1 K_EXIT")
    fetch()
    compute(KB, VB, 24, 16)
    getidx(IDXB)
    loads(KB, VB, IDXB)
    e(f"  s_cmp_lt_u32 s{IDXA}, 64")
    e("  s_cbranch_scc1 K_LOOP")
    e("K_EXIT:")
    e(f"  v_mov_b32 v{T1}, v{L_}")
    e("  s_nop 1")
    e(f"  v_permlane16_swap_b32 v{L_}, v{T1}")
    e("  s_nop 1")
    e(f"  v_add_f32 v{L_}, v{L_}, v{T1}")
    e(f"  v_mov_b32 v{T1}, v{L_}")
    e("  s_nop 1")
    e(f"  v_permlane32_swap_b32 v{L_}, v{T1}")
    e("  s_nop 1")
    e(f"  v_add_f32 v{L_}, v{L_}, v{T1}")
    e("  v_cmp_gt_u32 vcc, 4, v3")
    e("  s_and_saveexec_b64 s[78:79], vcc")
    e("  v_lshlrev_b32 v5, 11, v2")
    e("  v_lshl_add_u32 v5, v3, 9, v5")
    e("  v_lshl_add_u32 v5, v4, 7, v5")
    e("  s_nop 4")
    for t in range(8):
        for r in range(4):
            e(f"  ds_write_b32 v5, v{ACC+4*t+r} offset:{L_O + (r*8+t)*4}")
    e("  v_cmp_gt_u32 vcc, 4, v1")
    e("  s_and_b64 exec, exec, vcc")
    e("  v_lshlrev_b32 v6, 5, v2")
    e("  v_lshl_add_u32 v6, v3, 3, v6")
    e(f"  ds_write_b32 v6, v{M_} offset:{L_ML}")
    e(f"  ds_write_b32 v6, v{L_} offset:{L_ML+4}")
    e("  s_mov_b64 exec, s[78:79]")
    e("  s_waitcnt lgkmcnt(0)")
    e("  s_barrier")
    e("  v_lshrrev_b32 v5, 7, v0")
    e("  v_and_b32 v6, 127, v0")
    e("  v_lshlrev_b32 v7, 3, v5")
    for w in range(8):
        e(f"  ds_read_b64 v[{160+2*w}:{161+2*w}], v7 offset:{L_ML + w*32}")
    e("  v_lshlrev_b32 v8, 9, v5")
    e("  v_lshl_add_u32 v8, v6, 2, v8")
    for w in range(8):
        e(f"  ds_read_b32 v{176+w}, v8 offset:{L_O + w*2048}")
    e("  s_waitcnt lgkmcnt(0)")
    e("  v_max3_f32 v184, v160, v162, v164")
    e("  v_max3_f32 v185, v166, v168, v170")
    e("  v_max3_f32 v184, v184, v172, v174")
    e("  v_max_f32 v184, v184, v185")
    e("  v_mov_b32 v186, 0")
    e("  v_mov_b32 v187, 0")
    for w in range(8):
        e(f"  v_sub_f32 v185, v{160+2*w}, v184")
        e(f"  v_mul_f32 v185, s{SC}, v185")
        e("  v_exp_f32 v185, v185")
        e("  s_nop 0")
        e(f"  v_fmac_f32 v186, v185, v{161+2*w}")
        e(f"  v_fmac_f32 v187, v185, v{176+w}")
    e(f"  s_lshl_b32 s75, s{SB}, 5")
    e(f"  s_lshl_b32 s76, s{SG}, 2")
    e("  s_add_u32 s75, s75, s76")
    e("  s_lshl_b32 s75, s75, 4")
    e(f"  s_add_u32 s75, s75, s{SSPL}")
    e("  v_lshlrev_b32 v7, 4, v5")
    e("  v_add_u32 v7, s75, v7")
    e("  v_lshlrev_b32 v8, 9, v7")
    e("  v_lshl_add_u32 v8, v6, 2, v8")
    e(f"  s_mov_b32 s75, {WS_O}")
    e(f"  buffer_store_dword v187, v8, s[{SWS}:{SWS+3}], s75 offen sc1")
    e("  v_cmp_eq_u32 vcc, 0, v6")
    e("  s_and_saveexec_b64 s[78:79], vcc")
    e("  v_lshlrev_b32 v7, 3, v7")
    e("  v_mov_b32 v185, v186")
    e(f"  s_mov_b32 s75, {WS_ML}")
    e(f"  buffer_store_dwordx2 v[184:185], v7, s[{SWS}:{SWS+3}], s75 offen sc1")
    e("  s_mov_b64 exec, s[78:79]")
    e("  s_waitcnt vmcnt(0)")
    e("  s_barrier")
    e("  s_cmp_lg_u32 s3, 0")
    e("  s_cbranch_scc1 K_T3")
    e("  s_mov_b64 exec, 1")
    e(f"  v_mov_b32 v5, s{SG}")
    e("  v_lshlrev_b32 v5, 5, v5")
    e("  v_mov_b32 v6, 1")
    e(f"  buffer_atomic_add v6, v5, s[{SDBG}:{SDBG+3}], 0 offen offset:4 sc1")
    e("  s_mov_b64 exec, -1")
    e("K_T3:")

    def prod(wregs, vecaddr_rows, accbase, nrows):
        for r in range(16):
            e(f"  v_mov_b32 v{accbase+r}, 0")
        for i in range(nrows):
            for c in range(4):
                w = wregs + 4 * i + c
                e(f"  v_lshlrev_b32 v160, 16, v{w}")
                e(f"  v_and_b32 v161, 0xffff0000, v{w}")
                e(f"  v_fmac_f32 v{accbase+2*c}, v160, v{168+2*i}")
                e(f"  v_fmac_f32 v{accbase+1+2*c}, v161, v{168+2*i}")
                e(f"  v_fmac_f32 v{accbase+8+2*c}, v160, v{169+2*i}")
                e(f"  v_fmac_f32 v{accbase+9+2*c}, v161, v{169+2*i}")
        dpp_steps(list(range(accbase, accbase + 16)), ["row_ror:8"])

    def reduce_store(lbase, label, sbase_expr):
        e("  v_lshlrev_b32 v5, 2, v2")
        e("  v_add_u32 v5, v5, v4")
        e("  v_lshlrev_b32 v5, 9, v5")
        e("  v_and_b32 v6, 7, v1")
        e("  v_lshl_add_u32 v5, v6, 5, v5")
        e("  v_and_b32 v6, 8, v1")
        e("  v_cmp_eq_u32 vcc, 0, v6")
        e("  s_and_saveexec_b64 s[78:79], vcc")
        e(f"  ds_write_b128 v5, v[180:183] offset:{lbase}")
        e(f"  ds_write_b128 v5, v[184:187] offset:{lbase+16}")
        e(f"  ds_write_b128 v5, v[188:191] offset:{lbase+256}")
        e(f"  ds_write_b128 v5, v[192:195] offset:{lbase+256+16}")
        e("  s_mov_b64 exec, s[78:79]")
        e("  s_waitcnt lgkmcnt(0)")
        e("  s_barrier")
        e("  s_cmp_ge_u32 s3, 2")
        e(f"  s_cbranch_scc1 {label}")
        e("  v_lshlrev_b32 v5, 2, v0")
        for p in range(32):
            e(f"  ds_read_b32 v{204+p}, v5 offset:{lbase + p*512}")
        e("  s_waitcnt lgkmcnt(0)")
        for p in range(1, 31, 2):
            e(f"  v_add_f32 v{204+p}, v{204+p}, v{205+p}")
        e("  v_add_f32 v204, v204, v235")
        for p in range(1, 31, 2):
            e(f"  v_add_f32 v204, v204, v{204+p}")
        e("  v_lshlrev_b32 v5, 11, v2")
        e("  v_lshl_add_u32 v5, v1, 2, v5")
        e(f"  s_lshl_b32 s76, s{SNC}, 8")
        e(f"  s_add_u32 s75, s75, s76")
        e(f"  buffer_store_dword v204, v5, s[{SWS}:{SWS+3}], s75 offen sc1")
        e(f"{label}:")

    e("  s_cmp_ge_u32 s2, 224")
    e("  s_cbranch_scc1 K_T4")
    e("  v_lshlrev_b32 v5, 2, v12")
    e(f"  ds_read_b32 v168, v5 offset:{L_HV}")
    e(f"  ds_read_b32 v169, v5 offset:{L_HV+256}")
    e("  s_waitcnt lgkmcnt(0)")
    prod(W2, None, 180, 1)
    e("  s_lshr_b32 s75, s2, 3")
    e("  s_lshl_b32 s75, s75, 12")
    e(f"  s_add_u32 s75, s75, {WS_G}")
    reduce_store(L_FP, "K_T3B", None)
    e("K_T4:")
    e("  s_cmp_lg_u32 s3, 0")
    e("  s_cbranch_scc1 K_T5")
    e(f"  v_mov_b32 v7, s{SG}")
    e("  v_lshlrev_b32 v7, 5, v7")
    e("  v_add_u32 v7, 4, v7")
    poll("K_P2", 1, 7, 32, 8)
    e("K_T5:")
    e("  s_barrier")
    e("  s_cmp_ge_u32 s3, 4")
    e("  s_cbranch_scc1 K_T6")
    e("  v_lshrrev_b32 v6, 7, v0")
    e("  v_and_b32 v7, 127, v0")
    e("  v_lshlrev_b32 v8, 5, v6")
    e(f"  v_add_u32 v8, s{SHEAD}, v8")
    e("  v_lshlrev_b32 v9, 7, v8")
    e(f"  s_mov_b32 s75, {WS_ML}")
    for j in range(8):
        e(f"  buffer_load_dwordx4 v[{16+4*j}:{19+4*j}], v9, s[{SWS}:{SWS+3}], s75 offen offset:{j*16} sc1")
    e("  v_lshlrev_b32 v9, 13, v8")
    e("  v_lshl_add_u32 v9, v7, 2, v9")
    e(f"  s_mov_b32 s75, {WS_O}")
    e(f"  s_mov_b32 s76, {WS_O + 4096}")
    for s in range(16):
        so = "s75" if s < 8 else "s76"
        e(f"  buffer_load_dword v{96+s}, v9, s[{SWS}:{SWS+3}], {so} offen offset:{(s&7)*512} sc1")
    e("  s_waitcnt vmcnt(16)")
    e("  v_max3_f32 v48, v16, v18, v20")
    for s in range(3, 15, 2):
        e(f"  v_max3_f32 v48, v48, v{16+2*s}, v{18+2*s}")
    e("  v_max_f32 v48, v48, v46")
    e("  v_mov_b32 v49, 0")
    e("  v_mov_b32 v50, 0")
    for s in range(16):
        e(f"  v_sub_f32 v{16+2*s}, v{16+2*s}, v48")
        e(f"  v_mul_f32 v{16+2*s}, s{SC}, v{16+2*s}")
        e(f"  v_exp_f32 v{16+2*s}, v{16+2*s}")
    e("  s_nop 0")
    for s in range(16):
        e(f"  v_fmac_f32 v49, v{16+2*s}, v{17+2*s}")
    e("  s_waitcnt vmcnt(0)")
    for s in range(16):
        e(f"  v_fmac_f32 v50, v{16+2*s}, v{96+s}")
    e("  v_rcp_f32 v49, v49")
    e("  s_nop 0")
    e("  v_mul_f32 v50, v50, v49")
    round_bf16(50, 50)
    e("  v_lshlrev_b32 v8, 2, v0")
    e(f"  ds_write_b32 v8, v50 offset:{L_VEC}")
    e("  s_waitcnt lgkmcnt(0)")
    e("K_T6:")
    e("  s_barrier")
    e("  v_lshlrev_b32 v5, 2, v12")
    e(f"  ds_read_b32 v168, v5 offset:{L_VEC}")
    e(f"  ds_read_b32 v169, v5 offset:{L_VEC+512}")
    e(f"  ds_read_b32 v170, v5 offset:{L_VEC+256}")
    e(f"  ds_read_b32 v171, v5 offset:{L_VEC+512+256}")
    e("  s_waitcnt lgkmcnt(0)")
    prod(WO, None, 180, 2)
    e(f"  s_lshl_b32 s75, s{SHEAD}, 12")
    e(f"  s_add_u32 s75, s75, {WS_P}")
    reduce_store(L_SP, "K_T6B", None)
    e("  s_waitcnt vmcnt(0)")
    e("  s_barrier")
    e("  s_cmp_lg_u32 s3, 0")
    e("  s_cbranch_scc1 K_T8")
    e("  s_mov_b64 exec, 1")
    e(f"  v_mov_b32 v5, s{SNC}")
    e("  v_lshlrev_b32 v5, 5, v5")
    e("  v_mov_b32 v6, 1")
    e(f"  buffer_atomic_add v6, v5, s[{SDBG}:{SDBG+3}], 0 offen offset:8 sc1")
    e("  s_mov_b64 exec, -1")
    e("K_T8:")
    e("  s_cmp_ge_u32 s2, 8")
    e("  s_cbranch_scc1 K_END")
    e("  s_cmp_ge_u32 s3, 4")
    e("  s_cbranch_scc1 K_END")
    e("  s_cmp_lg_u32 s3, 0")
    e("  s_cbranch_scc1 K_F1")
    e(f"  v_mov_b32 v7, s{SNC}")
    e("  v_lshlrev_b32 v7, 5, v7")
    e("  v_add_u32 v7, 8, v7")
    poll("K_P3", 1, 7, 32, 8)
    e("K_F1:")
    e("  s_barrier")
    e("  v_and_b32 v5, 1, v2")
    e("  v_lshlrev_b32 v5, 11, v5")
    e("  v_lshl_add_u32 v5, v1, 2, v5")
    e(f"  s_lshl_b32 s76, s{SNC}, 8")
    e("  v_add_u32 v5, s76, v5")
    e("  s_cmp_ge_u32 s3, 2")
    e("  s_cbranch_scc1 K_FG")
    e("  v_lshrrev_b32 v6, 1, v5")
    e(f"  buffer_load_ushort v4, v6, s[{SX}:{SX+3}], 0 offen")
    for k in range(32):
        e(f"  s_mov_b32 s75, {WS_P + k*4096}")
        e(f"  buffer_load_dword v{16+k}, v5, s[{SWS}:{SWS+3}], s75 offen sc1")
    e("  s_waitcnt vmcnt(0)")
    for k in range(1, 32):
        e(f"  v_add_f32 v16, v16, v{16+k}")
    round_bf16(16, 16)
    e("  s_barrier")
    e("  v_lshlrev_b32 v7, 2, v0")
    e(f"  ds_read_b32 v8, v7 offset:{L_GX}")
    e("  s_waitcnt lgkmcnt(0)")
    e("  v_mul_f32 v8, v8, v16")
    round_bf16(8, 8)
    e("  v_lshlrev_b32 v4, 16, v4")
    e("  v_add_f32 v8, v8, v4")
    e("  v_cvt_pk_bf16_f32 v8, v8, v8")
    e(f"  buffer_store_short v8, v6, s[{SOUT}:{SOUT+3}], 0 offen")
    e("  s_branch K_END")
    e("K_FG:")
    for k in range(28):
        e(f"  s_mov_b32 s75, {WS_G + k*4096}")
        e(f"  buffer_load_dword v{16+k}, v5, s[{SWS}:{SWS+3}], s75 offen sc1")
    e("  s_waitcnt vmcnt(0)")
    for k in range(1, 28):
        e(f"  v_add_f32 v16, v16, v{16+k}")
    round_bf16(16, 16)
    e("  v_mul_f32 v5, 0xbfb8aa3b, v16")
    e("  v_exp_f32 v5, v5")
    e("  s_nop 0")
    e("  v_add_f32 v5, 1.0, v5")
    e("  v_rcp_f32 v5, v5")
    e("  s_nop 0")
    e("  v_mul_f32 v5, v5, v16")
    round_bf16(5, 5)
    e("  v_and_b32 v7, 127, v0")
    e("  v_lshlrev_b32 v7, 2, v7")
    e(f"  ds_write_b32 v7, v5 offset:{L_GX}")
    e("  s_waitcnt lgkmcnt(0)")
    e("  s_barrier")
    e("K_END:")
    e("  s_endpgm")
    e('.section .rodata,"a"')
    e(".p2align 6")
    e(f".amdhsa_kernel {name}")
    e("  .amdhsa_next_free_vgpr 256")
    e("  .amdhsa_next_free_sgpr 102")
    e("  .amdhsa_accum_offset 256")
    e("  .amdhsa_group_segment_fixed_size 0")
    e("  .amdhsa_kernarg_size 88")
    e("  .amdhsa_user_sgpr_count 2")
    e("  .amdhsa_user_sgpr_kernarg_segment_ptr 1")
    e("  .amdhsa_system_sgpr_workgroup_id_x 1")
    e(".end_amdhsa_kernel")

def main():
    path = f"cdna_kernels/{NAME}.s"
    for a in sys.argv[1:]:
        if "=" in a:
            k, v = a.split("=", 1)
            OPT[k] = (" " + v if v else "") if k == "nt" else int(v)
        else:
            path = a
    e(HEADER.rstrip("\n"))
    e(f"; @launch grid=(256,1,1) block=(512,1,1) lds={LDS_SIZE}")
    e('.amdgcn_target "amdgcn-amd-amdhsa--gfx950"')
    gen()
    open(path, "w").write("\n".join(out) + "\n")

main()
```

```python
import sys

NAME = "recurrent_scan__gqa_block_cached__dense_activation_relu__decode"

HEADER = """; Kernarg layout for this problem (88 bytes, ptrs only, base s[0:1]):
;   offset   0: d_in[0] A_x  shape=(2, 1, 512) dtype=bfloat16 strides=(1024, 1024, 2) contiguous=True
;   offset   8: d_in[1] A_k_cache  shape=(2, 8, 32768, 128) dtype=bfloat16 strides=(67108864, 8388608, 256, 2) contiguous=True
;   offset  16: d_in[2] A_v_cache  shape=(2, 8, 32768, 128) dtype=bfloat16 strides=(67108864, 8388608, 256, 2) contiguous=True
;   offset  24: d_in[3] A_wq  shape=(512, 4096) dtype=bfloat16 strides=(8192, 2) contiguous=True
;   offset  32: d_in[4] A_wo  shape=(4096, 512) dtype=bfloat16 strides=(1024, 2) contiguous=True
;   offset  40: d_in[5] B_x  shape=(2, 1, 512) dtype=bfloat16 strides=(1024, 1024, 2) contiguous=True
;   offset  48: d_in[6] B_w1  shape=(512, 1792) dtype=bfloat16 strides=(3584, 2) contiguous=True
;   offset  56: d_in[7] B_w2  shape=(1792, 512) dtype=bfloat16 strides=(1024, 2) contiguous=True
"""

WS_Q = 0
WS_H = 16384
WS_ML = 32768
WS_O = 65536
WS_P = 1 << 20
WS_G = WS_P + 131072
WS_SIZE = 536870912
WS_QG = 2 << 20
WS_HG = WS_QG + 32768
WS_EP = WS_QG + 65536
WS_OG = 5 << 20
WS_MG = 6 << 20
WS_SG = WS_MG + 65536
WS_GG = 7 << 20

L_XN = 0
L_QP = 4096
L_Q = 5632
L_HV = 6656
L_CNT = 7168
L_O = 8192
L_ML = 24576
L_FP = 25600
L_VEC = 0
L_SP = 8192
L_GX = 1024
LDS_SIZE = 41984

OPT = dict(nt=" nt", sleep=1, prof=0, pre0=8, pace=8, bar0=1, wsc=0)

out = []
def e(s=""):
    out.append(s)

def srd(dst, lo, hi, nbytes):
    e(f"  s_mov_b32 s{dst}, s{lo}")
    e(f"  s_and_b32 s{dst+1}, s{hi}, 0xffff")
    e(f"  s_mov_b32 s{dst+2}, {nbytes}")
    e(f"  s_mov_b32 s{dst+3}, 0x00020000")

def dpp_steps(regs, ctrls):
    for ctrl in ctrls:
        e("  s_nop 1")
        for r in regs:
            e(f"  v_add_f32_dpp v{r}, v{r}, v{r} {ctrl} row_mask:0xf bank_mask:0xf")

def swap_steps(regs, tmp):
    for sw in ["v_permlane16_swap_b32", "v_permlane32_swap_b32"]:
        for r, t in zip(regs, tmp):
            e(f"  v_mov_b32 v{t}, v{r}")
        e("  s_nop 1")
        for r, t in zip(regs, tmp):
            e(f"  {sw} v{r}, v{t}")
        e("  s_nop 1")
        for r, t in zip(regs, tmp):
            e(f"  v_add_f32 v{r}, v{r}, v{t}")

def wave_sum(regs, tmp):
    dpp_steps(regs, ["quad_perm:[1,0,3,2]", "quad_perm:[2,3,0,1]", "row_half_mirror", "row_mirror"])
    swap_steps(regs, tmp)

def round_bf16(dst, src):
    e(f"  v_cvt_pk_bf16_f32 v{dst}, v{src}, v{src}")
    e(f"  v_lshlrev_b32 v{dst}, 16, v{dst}")

WS_PROF = 4 << 20
def stamp(k):
    if not OPT["prof"]:
        return
    e("  s_memrealtime s[80:81]")
    e("  s_waitcnt lgkmcnt(0)")
    e(f"  s_mov_b32 s{92+k}, s80")

def dump_stamps():
    if not OPT["prof"]:
        return
    e("  s_cmp_ge_u32 s3, 2")
    e("  s_cbranch_scc1 K_END2")
    e("  s_cmp_ge_u32 s2, 256")
    e("  s_cbranch_scc1 K_END2")
    stamp(8)
    e("  s_lshl_b32 s82, s2, 1")
    e("  s_add_u32 s82, s82, s3")
    e("  s_lshl_b32 s82, s82, 6")
    e(f"  s_add_u32 s82, s82, {WS_PROF}")
    e("  s_mov_b64 exec, 1")
    e("  v_mov_b32 v6, 0")
    for k in range(9):
        e(f"  v_mov_b32 v5, s{92+k}")
        e(f"  buffer_store_dword v5, v6, s[{SWS}:{SWS+3}], s82 offen offset:{k*4}")
    e("K_END2:")

SX, SK, SV, SWQ, SW1, SWO, SW2, SWS, SDBG, SOUT = 28, 32, 36, 40, 44, 48, 52, 56, 60, 64
SC, SP0, SP1 = 68, 69, 70
IDXA, IDXB = 72, 73
SG, SR, SB, SSPL, SNC, SHEAD = 86, 87, 88, 89, 90, 91
SNO, SCG, SHC = 83, 84, 85

def poll(label, nlanes, voff, target, tmpv):
    e(f"  s_mov_b64 exec, {(1<<nlanes)-1:#x}")
    e("  s_mov_b32 s74, 0x400000")
    e(f"{label}:")
    e(f"  buffer_load_dword v{tmpv}, v{voff}, s[{SDBG}:{SDBG+3}], 0 offen sc1")
    e("  s_waitcnt vmcnt(0)")
    e(f"  v_cmp_ne_u32 vcc, {target}, v{tmpv}")
    e("  s_cmp_eq_u64 vcc, 0")
    e(f"  s_cbranch_scc1 {label}_DONE")
    if OPT["sleep"]:
        e(f"  s_sleep {OPT['sleep']}")
    e("  s_sub_u32 s74, s74, 1")
    e("  s_cmp_lg_u32 s74, 0")
    e(f"  s_cbranch_scc1 {label}")
    e(f"{label}_DONE:")
    e("  s_mov_b64 exec, -1")

def gen():
    nt = OPT["nt"]
    name = NAME + "_kernel"
    e(".text")
    e(f".globl {name}")
    e(".p2align 8")
    e(f".type {name},@function")
    e(f"{name}:")
    KA, VA, KB, VB = 16, 48, 80, 112
    ACC = 144
    QF = 176
    ST = 192
    PF = 200
    TR = 204
    M_, L_, T0, T1, AL, MC = 236, 237, 238, 239, 240, 241
    VKOFF, VVOFF = 242, 243
    WO = 244
    W2 = 252
    e("  s_cmp_ge_u32 s2, 256")
    e("  s_cbranch_scc1 K_END2" if OPT["prof"] else "  s_cbranch_scc1 K_END")
    e("  s_load_dwordx16 s[4:19], s[0:1], 0")
    e("  s_load_dwordx4 s[20:23], s[0:1], 64")
    e("  s_load_dwordx2 s[24:25], s[0:1], 80")
    e("  v_and_b32 v1, 63, v0")
    e("  v_lshrrev_b32 v2, 6, v0")
    e("  v_and_b32 v3, 15, v1")
    e("  v_lshrrev_b32 v4, 4, v1")
    e("  v_readfirstlane_b32 s3, v2")
    e(f"  s_and_b32 s{SG}, s2, 7")
    e(f"  s_lshr_b32 s{SR}, s2, 3")
    e(f"  s_and_b32 s{SNO}, s{SR}, 7")
    e(f"  s_lshl_b32 s{SCG}, s{SG}, 5")
    e(f"  s_add_u32 s{SCG}, s{SCG}, s{SR}")
    e(f"  s_lshr_b32 s{SHC}, s{SR}, 3")
    e(f"  s_lshl_b32 s{SHC}, s{SHC}, 6")
    e(f"  s_lshl_b32 s74, s{SG}, 3")
    e(f"  s_add_u32 s{SHC}, s{SHC}, s74")
    e(f"  s_add_u32 s{SHC}, s{SHC}, s{SNO}")
    e(f"  s_lshr_b32 s{SB}, s{SR}, 4")
    e(f"  s_and_b32 s{SSPL}, s{SR}, 15")
    e(f"  s_and_b32 s{SNC}, s2, 7")
    e(f"  s_lshr_b32 s{SHEAD}, s{SR}, 3")
    e(f"  s_lshl_b32 s74, s{SG}, 2")
    e(f"  s_add_u32 s{SHEAD}, s{SHEAD}, s74")
    e(f"  s_lshl_b32 s74, s{SB}, 3")
    e(f"  s_add_u32 s74, s74, s{SG}")
    e("  s_lshl_b32 s74, s74, 23")
    e(f"  s_lshl_b32 s75, s{SSPL}, 19")
    e("  s_add_u32 s74, s74, s75")
    e(f"  s_mov_b32 s{SC}, 0x3e0293ee")
    e(f"  s_mov_b32 s{SP0}, 0x05040100")
    e(f"  s_mov_b32 s{SP1}, 0x07060302")
    e("  s_lshl_b32 s75, s3, 1")
    e(f"  s_sub_u32 s{IDXA}, s75, 2")
    e(f"  s_sub_u32 s{IDXB}, s75, 1")
    e("  s_cmp_eq_u32 s3, 0")
    e(f"  s_cselect_b32 s{IDXA}, 64, s{IDXA}")
    e(f"  s_cselect_b32 s{IDXB}, 64, s{IDXB}")
    e("  v_and_b32 v5, 3, v3")
    e("  v_lshrrev_b32 v6, 2, v3")
    e("  v_lshl_add_u32 v5, v5, 2, v6")
    e("  v_lshlrev_b32 v5, 8, v5")
    e(f"  v_lshl_add_u32 v{VKOFF}, v4, 4, v5")
    e(f"  v_lshlrev_b32 v{VVOFF}, 4, v1")
    e("  s_waitcnt lgkmcnt(0)")
    srd(SX, 4, 5, 2048)
    srd(SWQ, 10, 11, 512 * 4096 * 2)
    srd(SW1, 16, 17, 512 * 1792 * 2)
    srd(SWO, 12, 13, 4096 * 512 * 2)
    srd(SW2, 18, 19, 1792 * 512 * 2)
    srd(SWS, 24, 25, WS_SIZE)
    srd(SDBG, 22, 23, 256)
    srd(SOUT, 20, 21, 2048)
    e(f"  s_add_u32 s{SK}, s6, s74")
    e(f"  s_addc_u32 s{SK+1}, s7, 0")
    e(f"  s_and_b32 s{SK+1}, s{SK+1}, 0xffff")
    e(f"  s_mov_b32 s{SK+2}, 524288")
    e(f"  s_mov_b32 s{SK+3}, 0x00020000")
    e(f"  s_add_u32 s{SV}, s8, s74")
    e(f"  s_addc_u32 s{SV+1}, s9, 0")
    e(f"  s_and_b32 s{SV+1}, s{SV+1}, 0xffff")
    e(f"  s_mov_b32 s{SV+2}, 524288")
    e(f"  s_mov_b32 s{SV+3}, 0x00020000")
    e("  s_movk_i32 s71, 4096")
    stamp(0)
    e(f"  v_mov_b32 v5, {WS_EP}")
    e(f"  buffer_load_dword v231, v5, s[{SWS}:{SWS+3}], 0 offen sc1")
    e("  v_lshlrev_b32 v5, 4, v1")
    e(f"  buffer_load_dwordx4 v[204:207], v5, s[{SX}:{SX+3}], 0 offen")
    e(f"  buffer_load_dwordx4 v[208:211], v5, s[{SX}:{SX+3}], 0 offen offset:1024")
    e("  v_lshrrev_b32 v6, 2, v0")
    e("  v_and_b32 v7, 3, v0")
    e("  v_lshlrev_b32 v8, 13, v6")
    e("  v_lshl_add_u32 v8, v7, 3, v8")
    e(f"  s_lshl_b32 s75, s{SCG}, 5")
    e("  v_add_u32 v8, s75, v8")
    for i in range(4):
        if i == 0:
            e(f"  buffer_load_dwordx2 v[212:213], v8, s[{SWQ}:{SWQ+3}], 0 offen")
        else:
            e(f"  v_add_u32 v8, 0x100000, v8")
            e(f"  buffer_load_dwordx2 v[{212+2*i}:{213+2*i}], v8, s[{SWQ}:{SWQ+3}], 0 offen")
    e("  v_lshrrev_b32 v9, 1, v0")
    e("  v_and_b32 v10, 1, v0")
    e("  s_movk_i32 s75, 3584")
    e("  v_mul_lo_u32 v11, v9, s75")
    e("  v_lshl_add_u32 v11, v10, 3, v11")
    e(f"  s_lshl_b32 s75, s{SHC}, 4")
    e("  v_add_u32 v11, s75, v11")
    e(f"  buffer_load_dwordx2 v[220:221], v11, s[{SW1}:{SW1+3}], 0 offen")
    e(f"  v_add_u32 v11, {256*3584}, v11")
    e(f"  buffer_load_dwordx2 v[222:223], v11, s[{SW1}:{SW1+3}], 0 offen")

    def kchunk_l(KR, vo):
        r=[]
        for t in range(2):
            for i in range(4):
                so = "0" if t == 0 else "s71"
                r.append(f"  buffer_load_dwordx4 v[{KR+16*t+4*i}:{KR+16*t+4*i+3}], v{vo}, s[{SK}:{SK+3}], {so} offen offset:{i*64}{nt}")
        return r
    def vchunk_l(VR, vo):
        r=[]
        for j in range(8):
            so = "0" if j < 4 else "s71"
            r.append(f"  buffer_load_dwordx4 v[{VR+4*j}:{VR+4*j+3}], v{vo}, s[{SV}:{SV+3}], {so} offen offset:{(j&3)*1024}{nt}")
        return r
    def kchunk(KR, vo):
        for l in kchunk_l(KR, vo): e(l)
    def vchunk(VR, vo):
        for l in vchunk_l(VR, vo): e(l)
    def loads(KR, VR, sidx):
        e(f"  s_lshl_b32 s75, s{sidx}, 13")
        e(f"  v_add_u32 v5, s75, v{VKOFF}")
        e(f"  v_add_u32 v6, s75, v{VVOFF}")
        kchunk(KR, 5)
        vchunk(VR, 6)
    def wo_loads():
        e("  v_lshlrev_b32 v14, 10, v12")
        e("  v_lshl_add_u32 v14, v13, 4, v14")
        e(f"  s_lshl_b32 s75, s{SNO}, 7")
        e("  v_add_u32 v15, s75, v14")
        e(f"  s_lshl_b32 s75, s{SHEAD}, 17")
        e("  v_add_u32 v15, s75, v15")
        e(f"  buffer_load_dwordx4 v[{WO}:{WO+3}], v15, s[{SWO}:{SWO+3}], 0 offen")
        e("  v_add_u32 v15, 0x10000, v15")
        e(f"  buffer_load_dwordx4 v[{WO+4}:{WO+7}], v15, s[{SWO}:{SWO+3}], 0 offen")
        e("  s_lshr_b32 s75, s2, 3")
        e("  s_lshl_b32 s75, s75, 16")
        e("  v_add_u32 v15, s75, v14")
        e(f"  s_lshl_b32 s75, s{SNC}, 7")
        e("  v_add_u32 v15, s75, v15")
        e(f"  buffer_load_dwordx4 v[{W2}:{W2+3}], v15, s[{SW2}:{SW2+3}], 0 offen")
    e("  v_lshrrev_b32 v12, 3, v0")
    e("  v_and_b32 v13, 7, v0")
    e(f"  s_lshl_b32 s75, s{IDXA}, 13")
    e(f"  v_add_u32 v224, s75, v{VKOFF}")
    e(f"  v_add_u32 v225, s75, v{VVOFF}")
    e(f"  s_lshl_b32 s75, s{IDXB}, 13")
    e(f"  v_add_u32 v226, s75, v{VKOFF}")
    e(f"  v_add_u32 v227, s75, v{VVOFF}")
    pl = kchunk_l(KA, 224) + vchunk_l(VA, 225) + kchunk_l(KB, 226) + vchunk_l(VB, 227)
    PRE0 = OPT["pre0"]
    if OPT["bar0"]:
        e("  s_barrier")
    for c in range(PRE0):
        e(pl[c])
    X = 144
    e(f"  s_waitcnt vmcnt({6+PRE0})")
    e("  v_readfirstlane_b32 s26, v231")
    e("  s_add_u32 s26, s26, 1")
    if OPT["prof"] == 2: stamp(4)
    for b in range(2):
        for c in range(4):
            e(f"  v_lshlrev_b32 v{X+8*b+2*c}, 16, v{204+4*b+c}")
            e(f"  v_and_b32 v{X+1+8*b+2*c}, 0xffff0000, v{204+4*b+c}")
    for b in range(2):
        e(f"  v_add_f32 v{160+b}, v{X+8*b}, v{X+1+8*b}")
        for c in range(2, 8):
            e(f"  v_add_f32 v{160+b}, v{160+b}, v{X+8*b+c}")
    wave_sum([160, 161], [162, 163])
    e("  v_mul_f32 v160, 0x3b000000, v160")
    e("  v_mul_f32 v161, 0x3b000000, v161")
    for b in range(2):
        e(f"  v_sub_f32 v166, v{X+8*b}, v{160+b}")
        e(f"  v_mul_f32 v{164+b}, v166, v166")
        for c in range(1, 8):
            e(f"  v_sub_f32 v166, v{X+8*b+c}, v{160+b}")
            e(f"  v_fmac_f32 v{164+b}, v166, v166")
    wave_sum([164, 165], [162, 163])
    e("  v_mul_f32 v164, 0x3b000000, v164")
    e("  v_mul_f32 v165, 0x3b000000, v165")
    for b in range(2):
        round_bf16(164 + b, 164 + b)
        e(f"  v_add_f32 v{164+b}, 0x3727c5ac, v{164+b}")
        round_bf16(164 + b, 164 + b)
        e(f"  v_sqrt_f32 v{164+b}, v{164+b}")
        e("  s_nop 0")
        round_bf16(164 + b, 164 + b)
        e(f"  v_rcp_f32 v{164+b}, v{164+b}")
        round_bf16(160 + b, 160 + b)
    for b in range(2):
        for c in range(8):
            r = X + 8 * b + c
            e(f"  v_sub_f32 v{r}, v{r}, v{160+b}")
            round_bf16(r, r)
            e(f"  v_mul_f32 v{r}, v{r}, v{164+b}")
            round_bf16(r, r)
    e("  v_lshlrev_b32 v5, 6, v1")
    for c in range(0, 8, 2):
        e(f"  v_mov_b32 v{168+2*c}, v{X+c}")
        e(f"  v_mov_b32 v{169+2*c}, v{X+8+c}")
        e(f"  v_mov_b32 v{170+2*c}, v{X+c+1}")
        e(f"  v_mov_b32 v{171+2*c}, v{X+8+c+1}")
        e(f"  ds_write_b128 v5, v[{168+2*c}:{171+2*c}] offset:{L_XN + c*8}")
    e("  s_waitcnt lgkmcnt(0)")
    e("  v_lshrrev_b32 v5, 2, v0")
    e("  v_lshlrev_b32 v5, 3, v5")
    e("  v_lshlrev_b32 v6, 3, v9")
    for i in range(4):
        e(f"  ds_read_b64 v[{168+2*i}:{169+2*i}], v5 offset:{L_XN + i*1024}")
    for i in range(2):
        e(f"  ds_read_b64 v[{176+2*i}:{177+2*i}], v6 offset:{L_XN + i*2048}")
    for r in range(180, 196):
        e(f"  v_mov_b32 v{r}, 0")
    if OPT["prof"] == 2: stamp(5)
    e(f"  s_waitcnt vmcnt({PRE0}) lgkmcnt(0)")
    if OPT["prof"] == 2: stamp(6)
    for i in range(4):
        for c in range(2):
            w = 212 + 2 * i + c
            e(f"  v_lshlrev_b32 v160, 16, v{w}")
            e(f"  v_and_b32 v161, 0xffff0000, v{w}")
            e(f"  v_fmac_f32 v{180+2*c}, v160, v{168+2*i}")
            e(f"  v_fmac_f32 v{181+2*c}, v161, v{168+2*i}")
            e(f"  v_fmac_f32 v{184+2*c}, v160, v{169+2*i}")
            e(f"  v_fmac_f32 v{185+2*c}, v161, v{169+2*i}")
    for i in range(2):
        for c in range(2):
            w = 220 + 2 * i + c
            e(f"  v_lshlrev_b32 v160, 16, v{w}")
            e(f"  v_and_b32 v161, 0xffff0000, v{w}")
            e(f"  v_fmac_f32 v{188+2*c}, v160, v{176+2*i}")
            e(f"  v_fmac_f32 v{189+2*c}, v161, v{176+2*i}")
            e(f"  v_fmac_f32 v{192+2*c}, v160, v{177+2*i}")
            e(f"  v_fmac_f32 v{193+2*c}, v161, v{177+2*i}")
    dpp_steps(list(range(188, 196)), ["quad_perm:[2,3,0,1]"])
    dpp_steps(list(range(180, 196)), ["row_ror:4", "row_ror:8"])
    swap_steps(list(range(180, 196)), list(range(204, 220)))
    e("  s_mul_i32 s75, s3, 192")
    e("  v_lshlrev_b32 v5, 4, v1")
    e("  v_add_u32 v5, s75, v5")
    e("  s_mov_b64 exec, 0xf")
    e(f"  ds_write_b128 v5, v[180:183] offset:{L_QP}")
    e(f"  ds_write_b128 v5, v[184:187] offset:{L_QP+64}")
    e("  s_mov_b64 exec, 0x3")
    e(f"  ds_write_b128 v5, v[188:191] offset:{L_QP+128}")
    e(f"  ds_write_b128 v5, v[192:195] offset:{L_QP+160}")
    e("  s_mov_b64 exec, -1")
    e("  s_waitcnt lgkmcnt(0)")
    if OPT["prof"] == 2: stamp(7)
    e("  s_barrier")
    e("  s_cmp_eq_u32 s3, 0")
    e("  s_cbranch_scc1 K_SRV")
    for c in range(PRE0, 32):
        if OPT["pace"]:
            e(f"  s_waitcnt vmcnt({OPT['pace']-1})")
        e(pl[c])
    wo_loads()
    e("  s_branch K_B2")
    e("K_SRV:")
    e("  v_lshlrev_b32 v5, 3, v1")
    e("  s_mov_b64 exec, 0xffffff")
    for w in range(8):
        e(f"  ds_read_b64 v[{160+2*w}:{161+2*w}], v5 offset:{L_QP + w*192}")
    e("  v_lshrrev_b32 v6, 3, v1")
    e("  v_lshlrev_b32 v6, 14, v6")
    e("  v_and_b32 v7, 7, v1")
    e("  v_lshl_add_u32 v6, v7, 3, v6")
    stamp(1)
    e(f"  s_lshl_b32 s75, s{SCG}, 6")
    e(f"  s_add_u32 s75, s75, {WS_QG}")
    e("  v_add_u32 v6, s75, v6")
    e("  v_bfe_u32 v7, v1, 2, 1")
    e("  s_movk_i32 s75, 7168")
    e("  v_mul_lo_u32 v7, v7, s75")
    e("  v_and_b32 v8, 3, v1")
    e("  v_lshl_add_u32 v7, v8, 3, v7")
    e(f"  s_lshl_b32 s75, s{SHC}, 5")
    e(f"  s_add_u32 s75, s75, {WS_HG}")
    e("  v_add_u32 v7, s75, v7")
    e("  v_cmp_gt_u32 vcc, 16, v1")
    e("  v_cndmask_b32 v6, v7, v6, vcc")
    e("  s_waitcnt lgkmcnt(0)")
    for w in range(1, 8):
        e(f"  v_add_f32 v160, v160, v{160+2*w}")
        e(f"  v_add_f32 v161, v161, v{161+2*w}")
    e("  v_max_f32 v162, 0, v160")
    e("  v_max_f32 v163, 0, v161")
    e("  v_cndmask_b32 v160, v162, v160, vcc")
    e("  v_cndmask_b32 v161, v163, v161, vcc")
    e("  v_cvt_pk_bf16_f32 v160, v160, v161")
    e("  v_mov_b32 v161, s26")
    e("  s_mov_b32 s77, 0xffff")
    e(f"  s_cmp_lt_u32 s{SHC}, 224")
    e("  s_cselect_b32 s76, 0xffffff, s77")
    e("  s_mov_b32 exec_lo, s76")
    e(f"  buffer_store_dwordx2 v[160:161], v6, s[{SWS}:{SWS+3}], 0 offen sc1")
    e("  s_mov_b64 exec, -1")
    stamp(2)
    e(f"  s_lshl_b32 s75, s{SB}, 14")
    e(f"  s_lshl_b32 s76, s{SG}, 11")
    e("  s_add_u32 s75, s75, s76")
    e(f"  s_add_u32 s75, s75, {WS_QG}")
    e("  v_lshlrev_b32 v5, 5, v1")
    e("  v_add_u32 v5, s75, v5")
    e("  v_lshrrev_b32 v6, 5, v1")
    e("  s_movk_i32 s75, 7168")
    e("  v_mul_lo_u32 v7, v6, s75")
    e("  v_and_b32 v8, 31, v1")
    e("  v_lshl_add_u32 v7, v8, 3, v7")
    e("  s_lshr_b32 s75, s2, 3")
    e("  s_lshl_b32 s75, s75, 8")
    e(f"  s_add_u32 s75, s75, {WS_HG}")
    e("  v_add_u32 v7, s75, v7")
    e("  s_mov_b32 s74, 0x400000")
    e("K_P1:")
    e(f"  buffer_load_dwordx4 v[160:163], v5, s[{SWS}:{SWS+3}], 0 offen sc1")
    e(f"  buffer_load_dwordx4 v[164:167], v5, s[{SWS}:{SWS+3}], 0 offen offset:16 sc1")
    e(f"  buffer_load_dwordx2 v[168:169], v7, s[{SWS}:{SWS+3}], 0 offen sc1")
    e("  s_waitcnt vmcnt(0)")
    e("  v_cmp_ne_u32 vcc, s26, v161")
    e("  v_cmp_ne_u32 s[76:77], s26, v163")
    e("  s_or_b64 vcc, vcc, s[76:77]")
    e("  v_cmp_ne_u32 s[76:77], s26, v165")
    e("  s_or_b64 vcc, vcc, s[76:77]")
    e("  v_cmp_ne_u32 s[76:77], s26, v167")
    e("  s_or_b64 vcc, vcc, s[76:77]")
    e("  s_cmp_ge_u32 s2, 224")
    e("  s_cbranch_scc1 K_P1C")
    e("  v_cmp_ne_u32 s[76:77], s26, v169")
    e("  s_or_b64 vcc, vcc, s[76:77]")
    e("K_P1C:")
    e("  s_cmp_eq_u64 vcc, 0")
    e("  s_cbranch_scc1 K_P1_DONE")
    if OPT["sleep"]:
        e(f"  s_sleep {OPT['sleep']}")
    e("  s_sub_u32 s74, s74, 1")
    e("  s_cmp_lg_u32 s74, 0")
    e("  s_cbranch_scc1 K_P1")
    e("K_P1_DONE:")
    stamp(3)
    e("  v_mov_b32 v161, v162")
    e("  v_mov_b32 v162, v164")
    e("  v_mov_b32 v163, v166")
    e("  v_lshlrev_b32 v5, 4, v1")
    e(f"  ds_write_b128 v5, v[160:163] offset:{L_Q}")
    e("  v_lshlrev_b32 v164, 16, v168")
    e("  v_and_b32 v165, 0xffff0000, v168")
    e("  v_lshlrev_b32 v5, 3, v1")
    e(f"  ds_write_b64 v5, v[164:165] offset:{L_HV}")
    e(f"  s_mov_b32 s{IDXA}, 14")
    e(f"  s_mov_b32 s{IDXB}, 15")
    e("  v_mov_b32 v9, 16")
    e(f"  v_mov_b32 v10, {L_CNT}")
    e("  ds_write_b32 v10, v9")
    wo_loads()
    loads(KA, VA, IDXA)
    loads(KB, VB, IDXB)
    e("  s_waitcnt lgkmcnt(0)")
    e("K_B2:")
    e("  s_barrier")
    e("  v_and_b32 v5, 3, v3")
    e("  v_lshlrev_b32 v5, 8, v5")
    e("  v_lshl_add_u32 v5, v4, 4, v5")
    for i in range(4):
        e(f"  ds_read_b128 v[{QF+4*i}:{QF+4*i+3}], v5 offset:{L_Q + i*64}")
    for r in range(32):
        e(f"  v_mov_b32 v{ACC+r}, 0")
    e(f"  v_mov_b32 v{M_}, 0xf149f2ca")
    e(f"  v_mov_b32 v{L_}, 0")
    e(f"  v_mov_b32 v7, {L_CNT}")
    e("  v_mov_b32 v8, 1")
    e("  s_waitcnt lgkmcnt(0)")

    def compute(KR, VR, vk, vv):
        e(f"  s_waitcnt vmcnt({vk})")
        for t in range(2):
            for i in range(4):
                c = "0" if i == 0 else f"v[{ST+4*t}:{ST+4*t+3}]"
                e(f"  v_mfma_f32_16x16x32_bf16 v[{ST+4*t}:{ST+4*t+3}], v[{KR+16*t+4*i}:{KR+16*t+4*i+3}], v[{QF+4*i}:{QF+4*i+3}], {c}")
        e("  s_nop 7")
        e("  s_nop 0")
        e(f"  v_max3_f32 v{T0}, v{ST}, v{ST+1}, v{ST+2}")
        e(f"  v_max3_f32 v{T1}, v{ST+3}, v{ST+4}, v{ST+5}")
        e(f"  v_max3_f32 v{T0}, v{T0}, v{ST+6}, v{ST+7}")
        e(f"  v_max_f32 v{T0}, v{T0}, v{T1}")
        e(f"  v_mov_b32 v{T1}, v{T0}")
        e("  s_nop 1")
        e(f"  v_permlane16_swap_b32 v{T0}, v{T1}")
        e("  s_nop 1")
        e(f"  v_max_f32 v{T0}, v{T0}, v{T1}")
        e(f"  v_mov_b32 v{T1}, v{T0}")
        e("  s_nop 1")
        e(f"  v_permlane32_swap_b32 v{T0}, v{T1}")
        e("  s_nop 1")
        e(f"  v_max3_f32 v{T0}, v{T0}, v{T1}, v{M_}")
        e(f"  v_sub_f32 v{AL}, v{M_}, v{T0}")
        e(f"  v_mul_f32 v{AL}, s{SC}, v{AL}")
        e(f"  v_exp_f32 v{AL}, v{AL}")
        e(f"  v_mov_b32 v{M_}, v{T0}")
        e(f"  v_mul_f32 v{MC}, s{SC}, v{T0}")
        for k in range(8):
            e(f"  v_fma_f32 v{ST+k}, v{ST+k}, s{SC}, -v{MC}")
        for k in range(8):
            e(f"  v_exp_f32 v{ST+k}, v{ST+k}")
        e("  s_nop 0")
        e(f"  v_mul_f32 v{L_}, v{L_}, v{AL}")
        for k in range(8):
            e(f"  v_add_f32 v{L_}, v{L_}, v{ST+k}")
        for q in range(4):
            e(f"  v_cvt_pk_bf16_f32 v{PF+q}, v{ST+2*q}, v{ST+2*q+1}")
        for r in range(32):
            e(f"  v_mul_f32 v{ACC+r}, v{ACC+r}, v{AL}")
        e(f"  s_waitcnt vmcnt({vv})")
        for t in range(8):
            c = t >> 1
            sel = f"s{SP1}" if (t & 1) else f"s{SP0}"
            for q in range(4):
                e(f"  v_perm_b32 v{TR+4*t+q}, v{VR+4*(2*q+1)+c}, v{VR+4*(2*q)+c}, {sel}")
        e("  s_nop 1")
        for t in range(8):
            e(f"  v_mfma_f32_16x16x32_bf16 v[{ACC+4*t}:{ACC+4*t+3}], v[{TR+4*t}:{TR+4*t+3}], v[{PF}:{PF+3}], v[{ACC+4*t}:{ACC+4*t+3}]")

    def fetch():
        e("  s_mov_b64 exec, 1")
        e("  ds_add_rtn_u32 v9, v7, v8")
        e("  s_mov_b64 exec, -1")
    def getidx(sidx):
        e("  s_waitcnt lgkmcnt(0)")
        e(f"  v_readfirstlane_b32 s{sidx}, v9")

    e("K_LOOP:")
    fetch()
    compute(KA, VA, 24, 16)
    getidx(IDXA)
    loads(KA, VA, IDXA)
    e(f"  s_cmp_ge_u32 s{IDXB}, 64")
    e("  s_cbranch_scc1 K_EXIT")
    fetch()
    compute(KB, VB, 24, 16)
    getidx(IDXB)
    loads(KB, VB, IDXB)
    e(f"  s_cmp_lt_u32 s{IDXA}, 64")
    e("  s_cbranch_scc1 K_LOOP")
    e("K_EXIT:")
    if OPT["prof"] == 1: stamp(4)
    e(f"  v_mov_b32 v{T1}, v{L_}")
    e("  s_nop 1")
    e(f"  v_permlane16_swap_b32 v{L_}, v{T1}")
    e("  s_nop 1")
    e(f"  v_add_f32 v{L_}, v{L_}, v{T1}")
    e(f"  v_mov_b32 v{T1}, v{L_}")
    e("  s_nop 1")
    e(f"  v_permlane32_swap_b32 v{L_}, v{T1}")
    e("  s_nop 1")
    e(f"  v_add_f32 v{L_}, v{L_}, v{T1}")
    e("  v_cmp_gt_u32 vcc, 4, v3")
    e("  s_and_saveexec_b64 s[78:79], vcc")
    e("  v_lshlrev_b32 v5, 11, v2")
    e("  v_lshl_add_u32 v5, v3, 9, v5")
    e("  v_lshl_add_u32 v5, v4, 7, v5")
    e("  s_nop 4")
    for t in range(8):
        for r in range(4):
            e(f"  ds_write_b32 v5, v{ACC+4*t+r} offset:{L_O + (r*8+t)*4}")
    e("  v_cmp_gt_u32 vcc, 4, v1")
    e("  s_and_b64 exec, exec, vcc")
    e("  v_lshlrev_b32 v6, 5, v2")
    e("  v_lshl_add_u32 v6, v3, 3, v6")
    e(f"  ds_write_b32 v6, v{M_} offset:{L_ML}")
    e(f"  ds_write_b32 v6, v{L_} offset:{L_ML+4}")
    e("  s_mov_b64 exec, s[78:79]")
    e("  s_waitcnt lgkmcnt(0)")
    e("  s_barrier")
    e("  v_lshrrev_b32 v5, 7, v0")
    e("  v_and_b32 v6, 127, v0")
    e("  v_lshlrev_b32 v7, 3, v5")
    for w in range(8):
        e(f"  ds_read_b64 v[{160+2*w}:{161+2*w}], v7 offset:{L_ML + w*32}")
    e("  v_lshlrev_b32 v8, 9, v5")
    e("  v_lshl_add_u32 v8, v6, 2, v8")
    for w in range(8):
        e(f"  ds_read_b32 v{176+w}, v8 offset:{L_O + w*2048}")
    e("  s_waitcnt lgkmcnt(0)")
    e("  v_max3_f32 v184, v160, v162, v164")
    e("  v_max3_f32 v185, v166, v168, v170")
    e("  v_max3_f32 v184, v184, v172, v174")
    e("  v_max_f32 v184, v184, v185")
    e("  v_mov_b32 v186, 0")
    e("  v_mov_b32 v187, 0")
    for w in range(8):
        e(f"  v_sub_f32 v185, v{160+2*w}, v184")
        e(f"  v_mul_f32 v185, s{SC}, v185")
        e("  v_exp_f32 v185, v185")
        e("  s_nop 0")
        e(f"  v_fmac_f32 v186, v185, v{161+2*w}")
        e(f"  v_fmac_f32 v187, v185, v{176+w}")
    e(f"  s_lshl_b32 s75, s{SB}, 5")
    e(f"  s_lshl_b32 s76, s{SG}, 2")
    e("  s_add_u32 s75, s75, s76")
    e("  s_lshl_b32 s75, s75, 4")
    e(f"  s_add_u32 s75, s75, s{SSPL}")
    e("  v_lshlrev_b32 v7, 4, v5")
    e("  v_add_u32 v7, s75, v7")
    e("  v_lshlrev_b32 v8, 10, v7")
    e("  v_lshl_add_u32 v8, v6, 3, v8")
    e(f"  s_mov_b32 s75, {WS_OG}")
    e("  v_mov_b32 v188, v187")
    e("  v_mov_b32 v189, s26")
    e(f"  buffer_store_dwordx2 v[188:189], v8, s[{SWS}:{SWS+3}], s75 offen sc1")
    e("  v_cmp_eq_u32 vcc, 0, v6")
    e("  s_and_saveexec_b64 s[78:79], vcc")
    e("  v_lshlrev_b32 v7, 4, v7")
    e("  v_mov_b32 v185, v186")
    e("  v_mov_b32 v186, s26")
    e(f"  s_mov_b32 s75, {WS_MG}")
    e(f"  buffer_store_dwordx3 v[184:186], v7, s[{SWS}:{SWS+3}], s75 offen sc1")
    e("  s_mov_b64 exec, s[78:79]")
    if OPT["prof"] == 1: stamp(5)

    def prod(wregs, vecaddr_rows, accbase, nrows):
        for r in range(16):
            e(f"  v_mov_b32 v{accbase+r}, 0")
        for i in range(nrows):
            for c in range(4):
                w = wregs + 4 * i + c
                e(f"  v_lshlrev_b32 v160, 16, v{w}")
                e(f"  v_and_b32 v161, 0xffff0000, v{w}")
                e(f"  v_fmac_f32 v{accbase+2*c}, v160, v{168+2*i}")
                e(f"  v_fmac_f32 v{accbase+1+2*c}, v161, v{168+2*i}")
                e(f"  v_fmac_f32 v{accbase+8+2*c}, v160, v{169+2*i}")
                e(f"  v_fmac_f32 v{accbase+9+2*c}, v161, v{169+2*i}")
        dpp_steps(list(range(accbase, accbase + 16)), ["row_ror:8"])

    def reduce_store(lbase, label, snc):
        e("  v_lshlrev_b32 v5, 2, v2")
        e("  v_add_u32 v5, v5, v4")
        e("  v_lshlrev_b32 v5, 9, v5")
        e("  v_and_b32 v6, 7, v1")
        e("  v_lshl_add_u32 v5, v6, 5, v5")
        e("  v_and_b32 v6, 8, v1")
        e("  v_cmp_eq_u32 vcc, 0, v6")
        e("  s_and_saveexec_b64 s[78:79], vcc")
        e(f"  ds_write_b128 v5, v[180:183] offset:{lbase}")
        e(f"  ds_write_b128 v5, v[184:187] offset:{lbase+16}")
        e(f"  ds_write_b128 v5, v[188:191] offset:{lbase+256}")
        e(f"  ds_write_b128 v5, v[192:195] offset:{lbase+256+16}")
        e("  s_mov_b64 exec, s[78:79]")
        e("  s_waitcnt lgkmcnt(0)")
        e("  s_barrier")
        e("  s_cmp_ge_u32 s3, 2")
        e(f"  s_cbranch_scc1 {label}")
        e("  v_lshlrev_b32 v5, 2, v0")
        for p in range(32):
            e(f"  ds_read_b32 v{204+p}, v5 offset:{lbase + p*512}")
        e("  s_waitcnt lgkmcnt(0)")
        for p in range(1, 31, 2):
            e(f"  v_add_f32 v{204+p}, v{204+p}, v{205+p}")
        e("  v_add_f32 v204, v204, v235")
        for p in range(1, 31, 2):
            e(f"  v_add_f32 v204, v204, v{204+p}")
        e("  v_lshlrev_b32 v5, 12, v2")
        e("  v_lshl_add_u32 v5, v1, 3, v5")
        e(f"  s_lshl_b32 s76, s{snc}, 9")
        e(f"  s_add_u32 s75, s75, s76")
        e("  v_mov_b32 v205, s26")
        e(f"  buffer_store_dwordx2 v[204:205], v5, s[{SWS}:{SWS+3}], s75 offen sc1")
        e(f"{label}:")

    e("  s_cmp_ge_u32 s2, 224")
    e("  s_cbranch_scc1 K_T4")
    e("  v_lshlrev_b32 v5, 2, v12")
    e(f"  ds_read_b32 v168, v5 offset:{L_HV}")
    e(f"  ds_read_b32 v169, v5 offset:{L_HV+256}")
    e("  s_waitcnt lgkmcnt(0)")
    prod(W2, None, 180, 1)
    e("  s_lshr_b32 s75, s2, 3")
    e("  s_lshl_b32 s75, s75, 13")
    e(f"  s_add_u32 s75, s75, {WS_GG}")
    reduce_store(L_FP, "K_T3B", SNC)
    e("K_T4:")
    e("  s_cmp_ge_u32 s3, 4")
    e("  s_cbranch_scc1 K_T6")
    e("  v_lshrrev_b32 v6, 7, v0")
    e("  v_and_b32 v7, 127, v0")
    e("  v_lshlrev_b32 v8, 5, v6")
    e(f"  v_add_u32 v8, s{SHEAD}, v8")
    e("  v_lshlrev_b32 v9, 8, v8")
    e("  v_lshlrev_b32 v10, 14, v8")
    e("  v_lshl_add_u32 v10, v7, 3, v10")
    e("  s_mov_b32 s77, 0")
    e("  s_mov_b32 s74, 0x100000")
    e(f"  s_mov_b32 s76, {WS_MG}")
    e("K_P2:")
    for sp in range(16):
        e(f"  s_bitcmp1_b32 s77, {sp}")
        e(f"  s_cbranch_scc1 K_P2S{sp}")
        e(f"  s_mov_b32 s75, {WS_OG + 4096*(sp>>2)}")
        e(f"  buffer_load_dwordx2 v[{16+2*sp}:{17+2*sp}], v10, s[{SWS}:{SWS+3}], s75 offen offset:{(sp&3)*1024} sc1")
        e(f"  buffer_load_dwordx3 v[{48+4*sp}:{50+4*sp}], v9, s[{SWS}:{SWS+3}], s76 offen offset:{sp*16} sc1")
        e(f"K_P2S{sp}:")
    e("  s_waitcnt vmcnt(0)")
    for sp in range(16):
        e(f"  v_cmp_eq_u32 vcc, s26, v{17+2*sp}")
        e(f"  v_cmp_eq_u32 s[78:79], s26, v{50+4*sp}")
        e("  s_and_b64 vcc, vcc, s[78:79]")
        e("  s_cmp_eq_u64 vcc, -1")
        e(f"  s_cselect_b32 s75, {1<<sp}, 0")
        e("  s_or_b32 s77, s77, s75")
    e("  s_cmp_eq_u32 s77, 0xffff")
    e("  s_cbranch_scc1 K_P2_DONE")
    if OPT["sleep"]:
        e(f"  s_sleep {OPT['sleep']}")
    e("  s_sub_u32 s74, s74, 1")
    e("  s_cmp_lg_u32 s74, 0")
    e("  s_cbranch_scc1 K_P2")
    e("K_P2_DONE:")
    if OPT["prof"] == 1: stamp(6)
    M = lambda sp: 48+4*sp
    e(f"  v_max3_f32 v112, v{M(0)}, v{M(1)}, v{M(2)}")
    for sp in range(3, 15, 2):
        e(f"  v_max3_f32 v112, v112, v{M(sp)}, v{M(sp+1)}")
    e(f"  v_max_f32 v112, v112, v{M(15)}")
    e("  v_mov_b32 v113, 0")
    e("  v_mov_b32 v114, 0")
    for sp in range(16):
        e(f"  v_sub_f32 v{M(sp)}, v{M(sp)}, v112")
        e(f"  v_mul_f32 v{M(sp)}, s{SC}, v{M(sp)}")
        e(f"  v_exp_f32 v{M(sp)}, v{M(sp)}")
    e("  s_nop 0")
    for sp in range(16):
        e(f"  v_fmac_f32 v113, v{M(sp)}, v{M(sp)+1}")
        e(f"  v_fmac_f32 v114, v{M(sp)}, v{16+2*sp}")
    e("  v_mov_b32 v49, v113")
    e("  v_mov_b32 v50, v114")
    e("  v_rcp_f32 v49, v49")
    e("  s_nop 0")
    e("  v_mul_f32 v50, v50, v49")
    round_bf16(50, 50)
    e("  v_lshlrev_b32 v8, 2, v0")
    e(f"  ds_write_b32 v8, v50 offset:{L_VEC}")
    e("  s_waitcnt lgkmcnt(0)")
    e("K_T6:")
    e("  s_barrier")
    e("  v_lshlrev_b32 v5, 2, v12")
    e(f"  ds_read_b32 v168, v5 offset:{L_VEC}")
    e(f"  ds_read_b32 v169, v5 offset:{L_VEC+512}")
    e(f"  ds_read_b32 v170, v5 offset:{L_VEC+256}")
    e(f"  ds_read_b32 v171, v5 offset:{L_VEC+512+256}")
    e("  s_waitcnt lgkmcnt(0)")
    prod(WO, None, 180, 2)
    e(f"  s_lshl_b32 s75, s{SHEAD}, 13")
    e(f"  s_add_u32 s75, s75, {WS_SG}")
    reduce_store(L_SP, "K_T6B", SNO)
    if OPT["prof"] == 1: stamp(7)
    e("  s_cmp_ge_u32 s2, 8")
    e("  s_cbranch_scc1 K_END")
    e("  s_cmp_ge_u32 s3, 4")
    e("  s_cbranch_scc1 K_END")
    def gpoll(label, n, base):
        e("  s_mov_b32 s74, 0x100000")
        e(f"{label}:")
        for k in range(n):
            e(f"  s_mov_b32 s75, {base + k*8192}")
            e(f"  buffer_load_dwordx2 v[{16+2*k}:{17+2*k}], v10, s[{SWS}:{SWS+3}], s75 offen sc1")
        e("  s_waitcnt vmcnt(0)")
        e(f"  v_cmp_eq_u32 vcc, s26, v17")
        for k in range(1, n):
            e(f"  v_cmp_eq_u32 s[78:79], s26, v{17+2*k}")
            e("  s_and_b64 vcc, vcc, s[78:79]")
        e("  s_cmp_eq_u64 vcc, -1")
        e(f"  s_cbranch_scc1 {label}_DONE")
        if OPT["sleep"]:
            e(f"  s_sleep {OPT['sleep']}")
        e("  s_sub_u32 s74, s74, 1")
        e("  s_cmp_lg_u32 s74, 0")
        e(f"  s_cbranch_scc1 {label}")
        e(f"{label}_DONE:")
        for k in range(1, n):
            e(f"  v_add_f32 v16, v16, v{16+2*k}")
    e("  v_and_b32 v5, 1, v2")
    e("  v_lshlrev_b32 v5, 11, v5")
    e("  v_lshl_add_u32 v5, v1, 2, v5")
    e(f"  s_lshl_b32 s76, s{SNC}, 8")
    e("  v_add_u32 v5, s76, v5")
    e("  v_lshlrev_b32 v10, 1, v5")
    e("  s_cmp_ge_u32 s3, 2")
    e("  s_cbranch_scc1 K_FG")
    e("  v_lshrrev_b32 v6, 1, v5")
    e(f"  buffer_load_ushort v4, v6, s[{SX}:{SX+3}], 0 offen")
    gpoll("K_P3", 32, WS_SG)
    round_bf16(16, 16)
    e("  s_barrier")
    e("  v_lshlrev_b32 v7, 2, v0")
    e(f"  ds_read_b32 v8, v7 offset:{L_GX}")
    e("  s_waitcnt lgkmcnt(0)")
    e("  v_mul_f32 v8, v8, v16")
    round_bf16(8, 8)
    e("  v_lshlrev_b32 v4, 16, v4")
    e("  v_add_f32 v8, v8, v4")
    e("  v_cvt_pk_bf16_f32 v8, v8, v8")
    e(f"  buffer_store_short v8, v6, s[{SOUT}:{SOUT+3}], 0 offen")
    e("  s_or_b32 s75, s2, s3")
    e("  s_cmp_lg_u32 s75, 0")
    e("  s_cbranch_scc1 K_END")
    e("  s_mov_b64 exec, 1")
    e(f"  v_mov_b32 v5, {WS_EP}")
    e("  v_mov_b32 v6, s26")
    e(f"  buffer_store_dword v6, v5, s[{SWS}:{SWS+3}], 0 offen")
    e("  s_branch K_END")
    e("K_FG:")
    gpoll("K_P4", 28, WS_GG)
    round_bf16(16, 16)
    e("  v_mul_f32 v5, 0xbfb8aa3b, v16")
    e("  v_exp_f32 v5, v5")
    e("  s_nop 0")
    e("  v_add_f32 v5, 1.0, v5")
    e("  v_rcp_f32 v5, v5")
    e("  s_nop 0")
    e("  v_mul_f32 v5, v5, v16")
    round_bf16(5, 5)
    e("  v_and_b32 v7, 127, v0")
    e("  v_lshlrev_b32 v7, 2, v7")
    e(f"  ds_write_b32 v7, v5 offset:{L_GX}")
    e("  s_waitcnt lgkmcnt(0)")
    e("  s_barrier")
    e("K_END:")
    dump_stamps()
    e("  s_endpgm")
    e('.section .rodata,"a"')
    e(".p2align 6")
    e(f".amdhsa_kernel {name}")
    e("  .amdhsa_next_free_vgpr 256")
    e("  .amdhsa_next_free_sgpr 102")
    e("  .amdhsa_accum_offset 256")
    e("  .amdhsa_group_segment_fixed_size 0")
    e("  .amdhsa_kernarg_size 88")
    e("  .amdhsa_user_sgpr_count 2")
    e("  .amdhsa_user_sgpr_kernarg_segment_ptr 1")
    e("  .amdhsa_system_sgpr_workgroup_id_x 1")
    e(".end_amdhsa_kernel")

def main():
    path = f"cdna_kernels/{NAME}.s"
    for a in sys.argv[1:]:
        if "=" in a:
            k, v = a.split("=", 1)
            OPT[k] = (" " + v if v else "") if k == "nt" else int(v)
        else:
            path = a
    e(HEADER.rstrip("\n"))
    e(f"; @launch grid=(256,1,1) block=(512,1,1) lds={LDS_SIZE}")
    e('.amdgcn_target "amdgcn-amd-amdhsa--gfx950"')
    gen()
    open(path, "w").write("\n".join(out) + "\n")

main()
```

```python
import sys

NAME = "recurrent_scan__gqa_block_cached__dense_activation_relu__decode"

HEADER = """; Kernarg layout for this problem (88 bytes, ptrs only, base s[0:1]):
;   offset   0: d_in[0] A_x  shape=(2, 1, 512) dtype=bfloat16 strides=(1024, 1024, 2) contiguous=True
;   offset   8: d_in[1] A_k_cache  shape=(2, 8, 32768, 128) dtype=bfloat16 strides=(67108864, 8388608, 256, 2) contiguous=True
;   offset  16: d_in[2] A_v_cache  shape=(2, 8, 32768, 128) dtype=bfloat16 strides=(67108864, 8388608, 256, 2) contiguous=True
;   offset  24: d_in[3] A_wq  shape=(512, 4096) dtype=bfloat16 strides=(8192, 2) contiguous=True
;   offset  32: d_in[4] A_wo  shape=(4096, 512) dtype=bfloat16 strides=(1024, 2) contiguous=True
;   offset  40: d_in[5] B_x  shape=(2, 1, 512) dtype=bfloat16 strides=(1024, 1024, 2) contiguous=True
;   offset  48: d_in[6] B_w1  shape=(512, 1792) dtype=bfloat16 strides=(3584, 2) contiguous=True
;   offset  56: d_in[7] B_w2  shape=(1792, 512) dtype=bfloat16 strides=(1024, 2) contiguous=True
"""

WS_Q = 0
WS_H = 16384
WS_ML = 32768
WS_O = 65536
WS_P = 1 << 20
WS_G = WS_P + 131072
WS_SIZE = 536870912
WS_QG = 2 << 20
WS_HG = WS_QG + 32768
WS_EP = WS_QG + 65536
WS_OG = 5 << 20
WS_MG = 6 << 20
WS_SG = WS_MG + 65536
WS_GG = 7 << 20

L_XN = 0
L_QP = 4096
L_Q = 5632
L_HV = 6656
L_CNT = 7168
L_O = 8192
L_ML = 24576
L_FP = 25600
L_VEC = 0
L_SP = 8192
L_GX = 1024
LDS_SIZE = 41984

OPT = dict(nt=" nt", sleep=1, prof=0, pre0=8, pace=8, bar0=1, wsc=0, thr=2)

out = []
def e(s=""):
    out.append(s)

def srd(dst, lo, hi, nbytes):
    e(f"  s_mov_b32 s{dst}, s{lo}")
    e(f"  s_and_b32 s{dst+1}, s{hi}, 0xffff")
    e(f"  s_mov_b32 s{dst+2}, {nbytes}")
    e(f"  s_mov_b32 s{dst+3}, 0x00020000")

def dpp_steps(regs, ctrls):
    for ctrl in ctrls:
        e("  s_nop 1")
        for r in regs:
            e(f"  v_add_f32_dpp v{r}, v{r}, v{r} {ctrl} row_mask:0xf bank_mask:0xf")

def swap_steps(regs, tmp):
    for sw in ["v_permlane16_swap_b32", "v_permlane32_swap_b32"]:
        for r, t in zip(regs, tmp):
            e(f"  v_mov_b32 v{t}, v{r}")
        e("  s_nop 1")
        for r, t in zip(regs, tmp):
            e(f"  {sw} v{r}, v{t}")
        e("  s_nop 1")
        for r, t in zip(regs, tmp):
            e(f"  v_add_f32 v{r}, v{r}, v{t}")

def wave_sum(regs, tmp):
    dpp_steps(regs, ["quad_perm:[1,0,3,2]", "quad_perm:[2,3,0,1]", "row_half_mirror", "row_mirror"])
    swap_steps(regs, tmp)

def round_bf16(dst, src):
    e(f"  v_cvt_pk_bf16_f32 v{dst}, v{src}, v{src}")
    e(f"  v_lshlrev_b32 v{dst}, 16, v{dst}")

WS_PROF = 4 << 20
def stamp(k):
    if not OPT["prof"]:
        return
    e("  s_memrealtime s[80:81]")
    e("  s_waitcnt lgkmcnt(0)")
    e(f"  s_mov_b32 s{92+k}, s80")

def dump_stamps():
    if not OPT["prof"]:
        return
    e("  s_cmp_ge_u32 s3, 2")
    e("  s_cbranch_scc1 K_END2")
    e("  s_cmp_ge_u32 s2, 256")
    e("  s_cbranch_scc1 K_END2")
    stamp(8)
    e("  s_lshl_b32 s82, s2, 1")
    e("  s_add_u32 s82, s82, s3")
    e("  s_lshl_b32 s82, s82, 6")
    e(f"  s_add_u32 s82, s82, {WS_PROF}")
    e("  s_mov_b64 exec, 1")
    e("  v_mov_b32 v6, 0")
    for k in range(9):
        e(f"  v_mov_b32 v5, s{92+k}")
        e(f"  buffer_store_dword v5, v6, s[{SWS}:{SWS+3}], s82 offen offset:{k*4}")
    e("K_END2:")

SX, SK, SV, SWQ, SW1, SWO, SW2, SWS, SDBG, SOUT = 28, 32, 36, 40, 44, 48, 52, 56, 60, 64
SC, SP0, SP1 = 68, 69, 70
IDXA, IDXB = 72, 73
SG, SR, SB, SSPL, SNC, SHEAD = 86, 87, 88, 89, 90, 91
SNO, SCG, SHC = 83, 84, 85

def poll(label, nlanes, voff, target, tmpv):
    e(f"  s_mov_b64 exec, {(1<<nlanes)-1:#x}")
    e("  s_mov_b32 s74, 0x400000")
    e(f"{label}:")
    e(f"  buffer_load_dword v{tmpv}, v{voff}, s[{SDBG}:{SDBG+3}], 0 offen sc1")
    e("  s_waitcnt vmcnt(0)")
    e(f"  v_cmp_ne_u32 vcc, {target}, v{tmpv}")
    e("  s_cmp_eq_u64 vcc, 0")
    e(f"  s_cbranch_scc1 {label}_DONE")
    if OPT["sleep"]:
        e(f"  s_sleep {OPT['sleep']}")
    e("  s_sub_u32 s74, s74, 1")
    e("  s_cmp_lg_u32 s74, 0")
    e(f"  s_cbranch_scc1 {label}")
    e(f"{label}_DONE:")
    e("  s_mov_b64 exec, -1")

def mpoll(label, n, issue, tags, thr):
    full = (1 << n) - 1
    e("  s_not_b32 s75, s26")
    for k in range(n):
        for x in tags(k):
            e(f"  v_mov_b32 v{x}, s75")
    e("  s_mov_b32 s77, 0")
    e("  s_mov_b32 s74, 0x100000")
    e(f"{label}:")
    for k in range(n):
        e(f"  s_bitcmp1_b32 s77, {k}")
        e(f"  s_cbranch_scc1 {label}S{k}")
        issue(k)
        e(f"{label}S{k}:")
    if thr is not None:
        e(f"  s_xor_b32 s75, s77, {full:#x}")
        e("  s_bcnt1_i32_b32 s75, s75")
        e(f"  s_cmp_le_u32 s75, {thr}")
        e(f"  s_cbranch_scc1 {label}F")
        e("  s_waitcnt vmcnt(0)")
        e(f"{label}F:")
    if OPT["sleep"]:
        e(f"  s_sleep {OPT['sleep']}")
    for k in range(n):
        t = tags(k)
        e(f"  v_cmp_eq_u32 vcc, s26, v{t[0]}")
        for x in t[1:]:
            e(f"  v_cmp_eq_u32 s[78:79], s26, v{x}")
            e("  s_and_b64 vcc, vcc, s[78:79]")
        e("  s_cmp_eq_u64 vcc, -1")
        e(f"  s_cselect_b32 s75, {1<<k:#x}, 0")
        e("  s_or_b32 s77, s77, s75")
    e(f"  s_cmp_eq_u32 s77, {full:#x}")
    e(f"  s_cbranch_scc1 {label}_DONE")
    e("  s_sub_u32 s74, s74, 1")
    e("  s_cmp_lg_u32 s74, 0")
    e(f"  s_cbranch_scc1 {label}")
    e(f"{label}_DONE:")
    e("  s_waitcnt vmcnt(0)")

def gen():
    nt = OPT["nt"]
    name = NAME + "_kernel"
    e(".text")
    e(f".globl {name}")
    e(".p2align 8")
    e(f".type {name},@function")
    e(f"{name}:")
    KA, VA, KB, VB = 16, 48, 80, 112
    ACC = 144
    QF = 176
    ST = 192
    PF = 200
    TR = 204
    M_, L_, T0, T1, AL, MC = 236, 237, 238, 239, 240, 241
    VKOFF, VVOFF = 242, 243
    WO = 244
    W2 = 252
    e("  s_cmp_ge_u32 s2, 256")
    e("  s_cbranch_scc1 K_END2" if OPT["prof"] else "  s_cbranch_scc1 K_END")
    e("  s_load_dwordx16 s[4:19], s[0:1], 0")
    e("  s_load_dwordx4 s[20:23], s[0:1], 64")
    e("  s_load_dwordx2 s[24:25], s[0:1], 80")
    e("  v_and_b32 v1, 63, v0")
    e("  v_lshrrev_b32 v2, 6, v0")
    e("  v_and_b32 v3, 15, v1")
    e("  v_lshrrev_b32 v4, 4, v1")
    e("  v_readfirstlane_b32 s3, v2")
    e(f"  s_and_b32 s{SG}, s2, 7")
    e(f"  s_lshr_b32 s{SR}, s2, 3")
    e(f"  s_and_b32 s{SNO}, s{SR}, 7")
    e(f"  s_lshl_b32 s{SCG}, s{SG}, 5")
    e(f"  s_add_u32 s{SCG}, s{SCG}, s{SR}")
    e(f"  s_lshr_b32 s{SHC}, s{SR}, 3")
    e(f"  s_lshl_b32 s{SHC}, s{SHC}, 6")
    e(f"  s_lshl_b32 s74, s{SG}, 3")
    e(f"  s_add_u32 s{SHC}, s{SHC}, s74")
    e(f"  s_add_u32 s{SHC}, s{SHC}, s{SNO}")
    e(f"  s_lshr_b32 s{SB}, s{SR}, 4")
    e(f"  s_and_b32 s{SSPL}, s{SR}, 15")
    e(f"  s_and_b32 s{SNC}, s2, 7")
    e(f"  s_lshr_b32 s{SHEAD}, s{SR}, 3")
    e(f"  s_lshl_b32 s74, s{SG}, 2")
    e(f"  s_add_u32 s{SHEAD}, s{SHEAD}, s74")
    e(f"  s_lshl_b32 s74, s{SB}, 3")
    e(f"  s_add_u32 s74, s74, s{SG}")
    e("  s_lshl_b32 s74, s74, 23")
    e(f"  s_lshl_b32 s75, s{SSPL}, 19")
    e("  s_add_u32 s74, s74, s75")
    e(f"  s_mov_b32 s{SC}, 0x3e0293ee")
    e(f"  s_mov_b32 s{SP0}, 0x05040100")
    e(f"  s_mov_b32 s{SP1}, 0x07060302")
    e("  s_lshl_b32 s75, s3, 1")
    e(f"  s_sub_u32 s{IDXA}, s75, 2")
    e(f"  s_sub_u32 s{IDXB}, s75, 1")
    e("  s_cmp_eq_u32 s3, 0")
    e(f"  s_cselect_b32 s{IDXA}, 64, s{IDXA}")
    e(f"  s_cselect_b32 s{IDXB}, 64, s{IDXB}")
    e("  v_and_b32 v5, 3, v3")
    e("  v_lshrrev_b32 v6, 2, v3")
    e("  v_lshl_add_u32 v5, v5, 2, v6")
    e("  v_lshlrev_b32 v5, 8, v5")
    e(f"  v_lshl_add_u32 v{VKOFF}, v4, 4, v5")
    e(f"  v_lshlrev_b32 v{VVOFF}, 4, v1")
    e("  s_waitcnt lgkmcnt(0)")
    srd(SX, 4, 5, 2048)
    srd(SWQ, 10, 11, 512 * 4096 * 2)
    srd(SW1, 16, 17, 512 * 1792 * 2)
    srd(SWO, 12, 13, 4096 * 512 * 2)
    srd(SW2, 18, 19, 1792 * 512 * 2)
    srd(SWS, 24, 25, WS_SIZE)
    srd(SDBG, 22, 23, 256)
    srd(SOUT, 20, 21, 2048)
    e(f"  s_add_u32 s{SK}, s6, s74")
    e(f"  s_addc_u32 s{SK+1}, s7, 0")
    e(f"  s_and_b32 s{SK+1}, s{SK+1}, 0xffff")
    e(f"  s_mov_b32 s{SK+2}, 524288")
    e(f"  s_mov_b32 s{SK+3}, 0x00020000")
    e(f"  s_add_u32 s{SV}, s8, s74")
    e(f"  s_addc_u32 s{SV+1}, s9, 0")
    e(f"  s_and_b32 s{SV+1}, s{SV+1}, 0xffff")
    e(f"  s_mov_b32 s{SV+2}, 524288")
    e(f"  s_mov_b32 s{SV+3}, 0x00020000")
    e("  s_movk_i32 s71, 4096")
    stamp(0)
    e(f"  v_mov_b32 v5, {WS_EP}")
    e(f"  buffer_load_dword v231, v5, s[{SWS}:{SWS+3}], 0 offen sc1")
    e("  v_lshlrev_b32 v5, 4, v1")
    e(f"  buffer_load_dwordx4 v[204:207], v5, s[{SX}:{SX+3}], 0 offen")
    e(f"  buffer_load_dwordx4 v[208:211], v5, s[{SX}:{SX+3}], 0 offen offset:1024")
    e("  v_lshrrev_b32 v6, 2, v0")
    e("  v_and_b32 v7, 3, v0")
    e("  v_lshlrev_b32 v8, 13, v6")
    e("  v_lshl_add_u32 v8, v7, 3, v8")
    e(f"  s_lshl_b32 s75, s{SCG}, 5")
    e("  v_add_u32 v8, s75, v8")
    for i in range(4):
        if i == 0:
            e(f"  buffer_load_dwordx2 v[212:213], v8, s[{SWQ}:{SWQ+3}], 0 offen")
        else:
            e(f"  v_add_u32 v8, 0x100000, v8")
            e(f"  buffer_load_dwordx2 v[{212+2*i}:{213+2*i}], v8, s[{SWQ}:{SWQ+3}], 0 offen")
    e("  v_lshrrev_b32 v9, 1, v0")
    e("  v_and_b32 v10, 1, v0")
    e("  s_movk_i32 s75, 3584")
    e("  v_mul_lo_u32 v11, v9, s75")
    e("  v_lshl_add_u32 v11, v10, 3, v11")
    e(f"  s_lshl_b32 s75, s{SHC}, 4")
    e("  v_add_u32 v11, s75, v11")
    e(f"  buffer_load_dwordx2 v[220:221], v11, s[{SW1}:{SW1+3}], 0 offen")
    e(f"  v_add_u32 v11, {256*3584}, v11")
    e(f"  buffer_load_dwordx2 v[222:223], v11, s[{SW1}:{SW1+3}], 0 offen")

    def kchunk_l(KR, vo):
        r=[]
        for t in range(2):
            for i in range(4):
                so = "0" if t == 0 else "s71"
                r.append(f"  buffer_load_dwordx4 v[{KR+16*t+4*i}:{KR+16*t+4*i+3}], v{vo}, s[{SK}:{SK+3}], {so} offen offset:{i*64}{nt}")
        return r
    def vchunk_l(VR, vo):
        r=[]
        for j in range(8):
            so = "0" if j < 4 else "s71"
            r.append(f"  buffer_load_dwordx4 v[{VR+4*j}:{VR+4*j+3}], v{vo}, s[{SV}:{SV+3}], {so} offen offset:{(j&3)*1024}{nt}")
        return r
    def kchunk(KR, vo):
        for l in kchunk_l(KR, vo): e(l)
    def vchunk(VR, vo):
        for l in vchunk_l(VR, vo): e(l)
    def loads(KR, VR, sidx):
        e(f"  s_lshl_b32 s75, s{sidx}, 13")
        e(f"  v_add_u32 v5, s75, v{VKOFF}")
        e(f"  v_add_u32 v6, s75, v{VVOFF}")
        kchunk(KR, 5)
        vchunk(VR, 6)
    def wo_loads():
        e("  v_lshlrev_b32 v14, 10, v12")
        e("  v_lshl_add_u32 v14, v13, 4, v14")
        e(f"  s_lshl_b32 s75, s{SNO}, 7")
        e("  v_add_u32 v15, s75, v14")
        e(f"  s_lshl_b32 s75, s{SHEAD}, 17")
        e("  v_add_u32 v15, s75, v15")
        e(f"  buffer_load_dwordx4 v[{WO}:{WO+3}], v15, s[{SWO}:{SWO+3}], 0 offen")
        e("  v_add_u32 v15, 0x10000, v15")
        e(f"  buffer_load_dwordx4 v[{WO+4}:{WO+7}], v15, s[{SWO}:{SWO+3}], 0 offen")
        e("  s_lshr_b32 s75, s2, 3")
        e("  s_lshl_b32 s75, s75, 16")
        e("  v_add_u32 v15, s75, v14")
        e(f"  s_lshl_b32 s75, s{SNC}, 7")
        e("  v_add_u32 v15, s75, v15")
        e(f"  buffer_load_dwordx4 v[{W2}:{W2+3}], v15, s[{SW2}:{SW2+3}], 0 offen")
    e("  v_lshrrev_b32 v12, 3, v0")
    e("  v_and_b32 v13, 7, v0")
    e(f"  s_lshl_b32 s75, s{IDXA}, 13")
    e(f"  v_add_u32 v224, s75, v{VKOFF}")
    e(f"  v_add_u32 v225, s75, v{VVOFF}")
    e(f"  s_lshl_b32 s75, s{IDXB}, 13")
    e(f"  v_add_u32 v226, s75, v{VKOFF}")
    e(f"  v_add_u32 v227, s75, v{VVOFF}")
    pl = kchunk_l(KA, 224) + vchunk_l(VA, 225) + kchunk_l(KB, 226) + vchunk_l(VB, 227)
    PRE0 = OPT["pre0"]
    if OPT["bar0"]:
        e("  s_barrier")
    for c in range(PRE0):
        e(pl[c])
    X = 144
    e(f"  s_waitcnt vmcnt({6+PRE0})")
    e("  v_readfirstlane_b32 s26, v231")
    e("  s_add_u32 s26, s26, 1")
    if OPT["prof"] == 2: stamp(4)
    for b in range(2):
        for c in range(4):
            e(f"  v_lshlrev_b32 v{X+8*b+2*c}, 16, v{204+4*b+c}")
            e(f"  v_and_b32 v{X+1+8*b+2*c}, 0xffff0000, v{204+4*b+c}")
    for b in range(2):
        e(f"  v_add_f32 v{160+b}, v{X+8*b}, v{X+1+8*b}")
        for c in range(2, 8):
            e(f"  v_add_f32 v{160+b}, v{160+b}, v{X+8*b+c}")
    wave_sum([160, 161], [162, 163])
    e("  v_mul_f32 v160, 0x3b000000, v160")
    e("  v_mul_f32 v161, 0x3b000000, v161")
    for b in range(2):
        e(f"  v_sub_f32 v166, v{X+8*b}, v{160+b}")
        e(f"  v_mul_f32 v{164+b}, v166, v166")
        for c in range(1, 8):
            e(f"  v_sub_f32 v166, v{X+8*b+c}, v{160+b}")
            e(f"  v_fmac_f32 v{164+b}, v166, v166")
    wave_sum([164, 165], [162, 163])
    e("  v_mul_f32 v164, 0x3b000000, v164")
    e("  v_mul_f32 v165, 0x3b000000, v165")
    for b in range(2):
        round_bf16(164 + b, 164 + b)
        e(f"  v_add_f32 v{164+b}, 0x3727c5ac, v{164+b}")
        round_bf16(164 + b, 164 + b)
        e(f"  v_sqrt_f32 v{164+b}, v{164+b}")
        e("  s_nop 0")
        round_bf16(164 + b, 164 + b)
        e(f"  v_rcp_f32 v{164+b}, v{164+b}")
        round_bf16(160 + b, 160 + b)
    for b in range(2):
        for c in range(8):
            r = X + 8 * b + c
            e(f"  v_sub_f32 v{r}, v{r}, v{160+b}")
            round_bf16(r, r)
            e(f"  v_mul_f32 v{r}, v{r}, v{164+b}")
            round_bf16(r, r)
    e("  v_lshlrev_b32 v5, 6, v1")
    for c in range(0, 8, 2):
        e(f"  v_mov_b32 v{168+2*c}, v{X+c}")
        e(f"  v_mov_b32 v{169+2*c}, v{X+8+c}")
        e(f"  v_mov_b32 v{170+2*c}, v{X+c+1}")
        e(f"  v_mov_b32 v{171+2*c}, v{X+8+c+1}")
        e(f"  ds_write_b128 v5, v[{168+2*c}:{171+2*c}] offset:{L_XN + c*8}")
    e("  s_waitcnt lgkmcnt(0)")
    e("  v_lshrrev_b32 v5, 2, v0")
    e("  v_lshlrev_b32 v5, 3, v5")
    e("  v_lshlrev_b32 v6, 3, v9")
    for i in range(4):
        e(f"  ds_read_b64 v[{168+2*i}:{169+2*i}], v5 offset:{L_XN + i*1024}")
    for i in range(2):
        e(f"  ds_read_b64 v[{176+2*i}:{177+2*i}], v6 offset:{L_XN + i*2048}")
    for r in range(180, 196):
        e(f"  v_mov_b32 v{r}, 0")
    if OPT["prof"] == 2: stamp(5)
    e(f"  s_waitcnt vmcnt({PRE0}) lgkmcnt(0)")
    if OPT["prof"] == 2: stamp(6)
    for i in range(4):
        for c in range(2):
            w = 212 + 2 * i + c
            e(f"  v_lshlrev_b32 v160, 16, v{w}")
            e(f"  v_and_b32 v161, 0xffff0000, v{w}")
            e(f"  v_fmac_f32 v{180+2*c}, v160, v{168+2*i}")
            e(f"  v_fmac_f32 v{181+2*c}, v161, v{168+2*i}")
            e(f"  v_fmac_f32 v{184+2*c}, v160, v{169+2*i}")
            e(f"  v_fmac_f32 v{185+2*c}, v161, v{169+2*i}")
    for i in range(2):
        for c in range(2):
            w = 220 + 2 * i + c
            e(f"  v_lshlrev_b32 v160, 16, v{w}")
            e(f"  v_and_b32 v161, 0xffff0000, v{w}")
            e(f"  v_fmac_f32 v{188+2*c}, v160, v{176+2*i}")
            e(f"  v_fmac_f32 v{189+2*c}, v161, v{176+2*i}")
            e(f"  v_fmac_f32 v{192+2*c}, v160, v{177+2*i}")
            e(f"  v_fmac_f32 v{193+2*c}, v161, v{177+2*i}")
    dpp_steps(list(range(188, 196)), ["quad_perm:[2,3,0,1]"])
    dpp_steps(list(range(180, 196)), ["row_ror:4", "row_ror:8"])
    swap_steps(list(range(180, 196)), list(range(204, 220)))
    e("  s_mul_i32 s75, s3, 192")
    e("  v_lshlrev_b32 v5, 4, v1")
    e("  v_add_u32 v5, s75, v5")
    e("  s_mov_b64 exec, 0xf")
    e(f"  ds_write_b128 v5, v[180:183] offset:{L_QP}")
    e(f"  ds_write_b128 v5, v[184:187] offset:{L_QP+64}")
    e("  s_mov_b64 exec, 0x3")
    e(f"  ds_write_b128 v5, v[188:191] offset:{L_QP+128}")
    e(f"  ds_write_b128 v5, v[192:195] offset:{L_QP+160}")
    e("  s_mov_b64 exec, -1")
    e("  s_waitcnt lgkmcnt(0)")
    if OPT["prof"] == 2: stamp(7)
    e("  s_barrier")
    e("  s_cmp_eq_u32 s3, 0")
    e("  s_cbranch_scc1 K_SRV")
    for c in range(PRE0, 32):
        if OPT["pace"]:
            e(f"  s_waitcnt vmcnt({OPT['pace']-1})")
        e(pl[c])
    wo_loads()
    e("  s_branch K_B2")
    e("K_SRV:")
    e("  v_lshlrev_b32 v5, 3, v1")
    e("  s_mov_b64 exec, 0xffffff")
    for w in range(8):
        e(f"  ds_read_b64 v[{160+2*w}:{161+2*w}], v5 offset:{L_QP + w*192}")
    e("  v_lshrrev_b32 v6, 3, v1")
    e("  v_lshlrev_b32 v6, 14, v6")
    e("  v_and_b32 v7, 7, v1")
    e("  v_lshl_add_u32 v6, v7, 3, v6")
    stamp(1)
    e(f"  s_lshl_b32 s75, s{SCG}, 6")
    e(f"  s_add_u32 s75, s75, {WS_QG}")
    e("  v_add_u32 v6, s75, v6")
    e("  v_bfe_u32 v7, v1, 2, 1")
    e("  s_movk_i32 s75, 7168")
    e("  v_mul_lo_u32 v7, v7, s75")
    e("  v_and_b32 v8, 3, v1")
    e("  v_lshl_add_u32 v7, v8, 3, v7")
    e(f"  s_lshl_b32 s75, s{SHC}, 5")
    e(f"  s_add_u32 s75, s75, {WS_HG}")
    e("  v_add_u32 v7, s75, v7")
    e("  v_cmp_gt_u32 vcc, 16, v1")
    e("  v_cndmask_b32 v6, v7, v6, vcc")
    e("  s_waitcnt lgkmcnt(0)")
    for w in range(1, 8):
        e(f"  v_add_f32 v160, v160, v{160+2*w}")
        e(f"  v_add_f32 v161, v161, v{161+2*w}")
    e("  v_max_f32 v162, 0, v160")
    e("  v_max_f32 v163, 0, v161")
    e("  v_cndmask_b32 v160, v162, v160, vcc")
    e("  v_cndmask_b32 v161, v163, v161, vcc")
    e("  v_cvt_pk_bf16_f32 v160, v160, v161")
    e("  v_mov_b32 v161, s26")
    e("  s_mov_b32 s77, 0xffff")
    e(f"  s_cmp_lt_u32 s{SHC}, 224")
    e("  s_cselect_b32 s76, 0xffffff, s77")
    e("  s_mov_b32 exec_lo, s76")
    e(f"  buffer_store_dwordx2 v[160:161], v6, s[{SWS}:{SWS+3}], 0 offen sc1")
    e("  s_mov_b64 exec, -1")
    stamp(2)
    e(f"  s_lshl_b32 s75, s{SB}, 14")
    e(f"  s_lshl_b32 s76, s{SG}, 11")
    e("  s_add_u32 s75, s75, s76")
    e(f"  s_add_u32 s75, s75, {WS_QG}")
    e("  v_lshlrev_b32 v5, 5, v1")
    e("  v_add_u32 v5, s75, v5")
    e("  v_lshrrev_b32 v6, 5, v1")
    e("  s_movk_i32 s75, 7168")
    e("  v_mul_lo_u32 v7, v6, s75")
    e("  v_and_b32 v8, 31, v1")
    e("  v_lshl_add_u32 v7, v8, 3, v7")
    e("  s_lshr_b32 s75, s2, 3")
    e("  s_lshl_b32 s75, s75, 8")
    e(f"  s_add_u32 s75, s75, {WS_HG}")
    e("  v_add_u32 v7, s75, v7")
    e("  s_mov_b32 s74, 0x400000")
    e("K_P1:")
    e(f"  buffer_load_dwordx4 v[160:163], v5, s[{SWS}:{SWS+3}], 0 offen sc1")
    e(f"  buffer_load_dwordx4 v[164:167], v5, s[{SWS}:{SWS+3}], 0 offen offset:16 sc1")
    e(f"  buffer_load_dwordx2 v[168:169], v7, s[{SWS}:{SWS+3}], 0 offen sc1")
    e("  s_waitcnt vmcnt(0)")
    e("  v_cmp_ne_u32 vcc, s26, v161")
    e("  v_cmp_ne_u32 s[76:77], s26, v163")
    e("  s_or_b64 vcc, vcc, s[76:77]")
    e("  v_cmp_ne_u32 s[76:77], s26, v165")
    e("  s_or_b64 vcc, vcc, s[76:77]")
    e("  v_cmp_ne_u32 s[76:77], s26, v167")
    e("  s_or_b64 vcc, vcc, s[76:77]")
    e("  s_cmp_ge_u32 s2, 224")
    e("  s_cbranch_scc1 K_P1C")
    e("  v_cmp_ne_u32 s[76:77], s26, v169")
    e("  s_or_b64 vcc, vcc, s[76:77]")
    e("K_P1C:")
    e("  s_cmp_eq_u64 vcc, 0")
    e("  s_cbranch_scc1 K_P1_DONE")
    if OPT["sleep"]:
        e(f"  s_sleep {OPT['sleep']}")
    e("  s_sub_u32 s74, s74, 1")
    e("  s_cmp_lg_u32 s74, 0")
    e("  s_cbranch_scc1 K_P1")
    e("K_P1_DONE:")
    stamp(3)
    e("  v_mov_b32 v161, v162")
    e("  v_mov_b32 v162, v164")
    e("  v_mov_b32 v163, v166")
    e("  v_lshlrev_b32 v5, 4, v1")
    e(f"  ds_write_b128 v5, v[160:163] offset:{L_Q}")
    e("  v_lshlrev_b32 v164, 16, v168")
    e("  v_and_b32 v165, 0xffff0000, v168")
    e("  v_lshlrev_b32 v5, 3, v1")
    e(f"  ds_write_b64 v5, v[164:165] offset:{L_HV}")
    e(f"  s_mov_b32 s{IDXA}, 14")
    e(f"  s_mov_b32 s{IDXB}, 15")
    e("  v_mov_b32 v9, 16")
    e(f"  v_mov_b32 v10, {L_CNT}")
    e("  ds_write_b32 v10, v9")
    wo_loads()
    loads(KA, VA, IDXA)
    loads(KB, VB, IDXB)
    e("  s_waitcnt lgkmcnt(0)")
    e("K_B2:")
    e("  s_barrier")
    e("  v_and_b32 v5, 3, v3")
    e("  v_lshlrev_b32 v5, 8, v5")
    e("  v_lshl_add_u32 v5, v4, 4, v5")
    for i in range(4):
        e(f"  ds_read_b128 v[{QF+4*i}:{QF+4*i+3}], v5 offset:{L_Q + i*64}")
    for r in range(32):
        e(f"  v_mov_b32 v{ACC+r}, 0")
    e(f"  v_mov_b32 v{M_}, 0xf149f2ca")
    e(f"  v_mov_b32 v{L_}, 0")
    e(f"  v_mov_b32 v7, {L_CNT}")
    e("  v_mov_b32 v8, 1")
    e("  s_waitcnt lgkmcnt(0)")

    def compute(KR, VR, vk, vv):
        e(f"  s_waitcnt vmcnt({vk})")
        for t in range(2):
            for i in range(4):
                c = "0" if i == 0 else f"v[{ST+4*t}:{ST+4*t+3}]"
                e(f"  v_mfma_f32_16x16x32_bf16 v[{ST+4*t}:{ST+4*t+3}], v[{KR+16*t+4*i}:{KR+16*t+4*i+3}], v[{QF+4*i}:{QF+4*i+3}], {c}")
        e("  s_nop 7")
        e("  s_nop 0")
        e(f"  v_max3_f32 v{T0}, v{ST}, v{ST+1}, v{ST+2}")
        e(f"  v_max3_f32 v{T1}, v{ST+3}, v{ST+4}, v{ST+5}")
        e(f"  v_max3_f32 v{T0}, v{T0}, v{ST+6}, v{ST+7}")
        e(f"  v_max_f32 v{T0}, v{T0}, v{T1}")
        e(f"  v_mov_b32 v{T1}, v{T0}")
        e("  s_nop 1")
        e(f"  v_permlane16_swap_b32 v{T0}, v{T1}")
        e("  s_nop 1")
        e(f"  v_max_f32 v{T0}, v{T0}, v{T1}")
        e(f"  v_mov_b32 v{T1}, v{T0}")
        e("  s_nop 1")
        e(f"  v_permlane32_swap_b32 v{T0}, v{T1}")
        e("  s_nop 1")
        e(f"  v_max3_f32 v{T0}, v{T0}, v{T1}, v{M_}")
        e(f"  v_sub_f32 v{AL}, v{M_}, v{T0}")
        e(f"  v_mul_f32 v{AL}, s{SC}, v{AL}")
        e(f"  v_exp_f32 v{AL}, v{AL}")
        e(f"  v_mov_b32 v{M_}, v{T0}")
        e(f"  v_mul_f32 v{MC}, s{SC}, v{T0}")
        for k in range(8):
            e(f"  v_fma_f32 v{ST+k}, v{ST+k}, s{SC}, -v{MC}")
        for k in range(8):
            e(f"  v_exp_f32 v{ST+k}, v{ST+k}")
        e("  s_nop 0")
        e(f"  v_mul_f32 v{L_}, v{L_}, v{AL}")
        for k in range(8):
            e(f"  v_add_f32 v{L_}, v{L_}, v{ST+k}")
        for q in range(4):
            e(f"  v_cvt_pk_bf16_f32 v{PF+q}, v{ST+2*q}, v{ST+2*q+1}")
        for r in range(32):
            e(f"  v_mul_f32 v{ACC+r}, v{ACC+r}, v{AL}")
        e(f"  s_waitcnt vmcnt({vv})")
        for t in range(8):
            c = t >> 1
            sel = f"s{SP1}" if (t & 1) else f"s{SP0}"
            for q in range(4):
                e(f"  v_perm_b32 v{TR+4*t+q}, v{VR+4*(2*q+1)+c}, v{VR+4*(2*q)+c}, {sel}")
        e("  s_nop 1")
        for t in range(8):
            e(f"  v_mfma_f32_16x16x32_bf16 v[{ACC+4*t}:{ACC+4*t+3}], v[{TR+4*t}:{TR+4*t+3}], v[{PF}:{PF+3}], v[{ACC+4*t}:{ACC+4*t+3}]")

    def fetch():
        e("  s_mov_b64 exec, 1")
        e("  ds_add_rtn_u32 v9, v7, v8")
        e("  s_mov_b64 exec, -1")
    def getidx(sidx):
        e("  s_waitcnt lgkmcnt(0)")
        e(f"  v_readfirstlane_b32 s{sidx}, v9")

    e("K_LOOP:")
    fetch()
    compute(KA, VA, 24, 16)
    getidx(IDXA)
    loads(KA, VA, IDXA)
    e(f"  s_cmp_ge_u32 s{IDXB}, 64")
    e("  s_cbranch_scc1 K_EXIT")
    fetch()
    compute(KB, VB, 24, 16)
    getidx(IDXB)
    loads(KB, VB, IDXB)
    e(f"  s_cmp_lt_u32 s{IDXA}, 64")
    e("  s_cbranch_scc1 K_LOOP")
    e("K_EXIT:")
    if OPT["prof"] == 1: stamp(4)
    e(f"  v_mov_b32 v{T1}, v{L_}")
    e("  s_nop 1")
    e(f"  v_permlane16_swap_b32 v{L_}, v{T1}")
    e("  s_nop 1")
    e(f"  v_add_f32 v{L_}, v{L_}, v{T1}")
    e(f"  v_mov_b32 v{T1}, v{L_}")
    e("  s_nop 1")
    e(f"  v_permlane32_swap_b32 v{L_}, v{T1}")
    e("  s_nop 1")
    e(f"  v_add_f32 v{L_}, v{L_}, v{T1}")
    e("  v_cmp_gt_u32 vcc, 4, v3")
    e("  s_and_saveexec_b64 s[78:79], vcc")
    e("  v_lshlrev_b32 v5, 11, v2")
    e("  v_lshl_add_u32 v5, v3, 9, v5")
    e("  v_lshl_add_u32 v5, v4, 7, v5")
    e("  s_nop 4")
    for t in range(8):
        for r in range(4):
            e(f"  ds_write_b32 v5, v{ACC+4*t+r} offset:{L_O + (r*8+t)*4}")
    e("  v_cmp_gt_u32 vcc, 4, v1")
    e("  s_and_b64 exec, exec, vcc")
    e("  v_lshlrev_b32 v6, 5, v2")
    e("  v_lshl_add_u32 v6, v3, 3, v6")
    e(f"  ds_write_b32 v6, v{M_} offset:{L_ML}")
    e(f"  ds_write_b32 v6, v{L_} offset:{L_ML+4}")
    e("  s_mov_b64 exec, s[78:79]")
    e("  s_waitcnt lgkmcnt(0)")
    e("  s_barrier")
    e("  v_lshrrev_b32 v5, 7, v0")
    e("  v_and_b32 v6, 127, v0")
    e("  v_lshlrev_b32 v7, 3, v5")
    for w in range(8):
        e(f"  ds_read_b64 v[{160+2*w}:{161+2*w}], v7 offset:{L_ML + w*32}")
    e("  v_lshlrev_b32 v8, 9, v5")
    e("  v_lshl_add_u32 v8, v6, 2, v8")
    for w in range(8):
        e(f"  ds_read_b32 v{176+w}, v8 offset:{L_O + w*2048}")
    e("  s_waitcnt lgkmcnt(0)")
    e("  v_max3_f32 v184, v160, v162, v164")
    e("  v_max3_f32 v185, v166, v168, v170")
    e("  v_max3_f32 v184, v184, v172, v174")
    e("  v_max_f32 v184, v184, v185")
    e("  v_mov_b32 v186, 0")
    e("  v_mov_b32 v187, 0")
    for w in range(8):
        e(f"  v_sub_f32 v185, v{160+2*w}, v184")
        e(f"  v_mul_f32 v185, s{SC}, v185")
        e("  v_exp_f32 v185, v185")
        e("  s_nop 0")
        e(f"  v_fmac_f32 v186, v185, v{161+2*w}")
        e(f"  v_fmac_f32 v187, v185, v{176+w}")
    e(f"  s_lshl_b32 s75, s{SB}, 5")
    e(f"  s_lshl_b32 s76, s{SG}, 2")
    e("  s_add_u32 s75, s75, s76")
    e("  s_lshl_b32 s75, s75, 4")
    e(f"  s_add_u32 s75, s75, s{SSPL}")
    e("  v_lshlrev_b32 v7, 4, v5")
    e("  v_add_u32 v7, s75, v7")
    e("  v_lshlrev_b32 v8, 10, v7")
    e("  v_lshl_add_u32 v8, v6, 3, v8")
    e(f"  s_mov_b32 s75, {WS_OG}")
    e("  v_mov_b32 v188, v187")
    e("  v_mov_b32 v189, s26")
    e(f"  buffer_store_dwordx2 v[188:189], v8, s[{SWS}:{SWS+3}], s75 offen sc1")
    e("  v_cmp_eq_u32 vcc, 0, v6")
    e("  s_and_saveexec_b64 s[78:79], vcc")
    e("  v_lshlrev_b32 v7, 4, v7")
    e("  v_mov_b32 v185, v186")
    e("  v_mov_b32 v186, s26")
    e(f"  s_mov_b32 s75, {WS_MG}")
    e(f"  buffer_store_dwordx3 v[184:186], v7, s[{SWS}:{SWS+3}], s75 offen sc1")
    e("  s_mov_b64 exec, s[78:79]")
    if OPT["prof"] == 1: stamp(5)

    def prod(wregs, vecaddr_rows, accbase, nrows):
        for r in range(16):
            e(f"  v_mov_b32 v{accbase+r}, 0")
        for i in range(nrows):
            for c in range(4):
                w = wregs + 4 * i + c
                e(f"  v_lshlrev_b32 v160, 16, v{w}")
                e(f"  v_and_b32 v161, 0xffff0000, v{w}")
                e(f"  v_fmac_f32 v{accbase+2*c}, v160, v{168+2*i}")
                e(f"  v_fmac_f32 v{accbase+1+2*c}, v161, v{168+2*i}")
                e(f"  v_fmac_f32 v{accbase+8+2*c}, v160, v{169+2*i}")
                e(f"  v_fmac_f32 v{accbase+9+2*c}, v161, v{169+2*i}")
        dpp_steps(list(range(accbase, accbase + 16)), ["row_ror:8"])

    def reduce_store(lbase, label, snc):
        e("  v_lshlrev_b32 v5, 2, v2")
        e("  v_add_u32 v5, v5, v4")
        e("  v_lshlrev_b32 v5, 9, v5")
        e("  v_and_b32 v6, 7, v1")
        e("  v_lshl_add_u32 v5, v6, 5, v5")
        e("  v_and_b32 v6, 8, v1")
        e("  v_cmp_eq_u32 vcc, 0, v6")
        e("  s_and_saveexec_b64 s[78:79], vcc")
        e(f"  ds_write_b128 v5, v[180:183] offset:{lbase}")
        e(f"  ds_write_b128 v5, v[184:187] offset:{lbase+16}")
        e(f"  ds_write_b128 v5, v[188:191] offset:{lbase+256}")
        e(f"  ds_write_b128 v5, v[192:195] offset:{lbase+256+16}")
        e("  s_mov_b64 exec, s[78:79]")
        e("  s_waitcnt lgkmcnt(0)")
        e("  s_barrier")
        e("  s_cmp_ge_u32 s3, 2")
        e(f"  s_cbranch_scc1 {label}")
        e("  v_lshlrev_b32 v5, 2, v0")
        for p in range(32):
            e(f"  ds_read_b32 v{204+p}, v5 offset:{lbase + p*512}")
        e("  s_waitcnt lgkmcnt(0)")
        for p in range(1, 31, 2):
            e(f"  v_add_f32 v{204+p}, v{204+p}, v{205+p}")
        e("  v_add_f32 v204, v204, v235")
        for p in range(1, 31, 2):
            e(f"  v_add_f32 v204, v204, v{204+p}")
        e("  v_lshlrev_b32 v5, 12, v2")
        e("  v_lshl_add_u32 v5, v1, 3, v5")
        e(f"  s_lshl_b32 s76, s{snc}, 9")
        e(f"  s_add_u32 s75, s75, s76")
        e("  v_mov_b32 v205, s26")
        e(f"  buffer_store_dwordx2 v[204:205], v5, s[{SWS}:{SWS+3}], s75 offen sc1")
        e(f"{label}:")

    e("  s_cmp_ge_u32 s2, 224")
    e("  s_cbranch_scc1 K_T4")
    e("  v_lshlrev_b32 v5, 2, v12")
    e(f"  ds_read_b32 v168, v5 offset:{L_HV}")
    e(f"  ds_read_b32 v169, v5 offset:{L_HV+256}")
    e("  s_waitcnt lgkmcnt(0)")
    prod(W2, None, 180, 1)
    e("  s_lshr_b32 s75, s2, 3")
    e("  s_lshl_b32 s75, s75, 13")
    e(f"  s_add_u32 s75, s75, {WS_GG}")
    reduce_store(L_FP, "K_T3B", SNC)
    e("K_T4:")
    e("  s_cmp_ge_u32 s3, 4")
    e("  s_cbranch_scc1 K_T6")
    e("  v_lshrrev_b32 v6, 7, v0")
    e("  v_and_b32 v7, 127, v0")
    e("  v_lshlrev_b32 v8, 5, v6")
    e(f"  v_add_u32 v8, s{SHEAD}, v8")
    e("  v_lshlrev_b32 v9, 8, v8")
    e("  v_lshlrev_b32 v10, 14, v8")
    e("  v_lshl_add_u32 v10, v7, 3, v10")
    e(f"  s_mov_b32 s76, {WS_MG}")
    def iss2(sp):
        e(f"  s_mov_b32 s75, {WS_OG + 4096*(sp>>2)}")
        e(f"  buffer_load_dwordx2 v[{16+2*sp}:{17+2*sp}], v10, s[{SWS}:{SWS+3}], s75 offen offset:{(sp&3)*1024} sc1")
        e(f"  buffer_load_dwordx3 v[{48+4*sp}:{50+4*sp}], v9, s[{SWS}:{SWS+3}], s76 offen offset:{sp*16} sc1")
    mpoll("K_P2", 16, iss2, lambda sp: [17+2*sp, 50+4*sp], OPT["thr"])
    if OPT["prof"] == 1: stamp(6)
    M = lambda sp: 48+4*sp
    e(f"  v_max3_f32 v112, v{M(0)}, v{M(1)}, v{M(2)}")
    for sp in range(3, 15, 2):
        e(f"  v_max3_f32 v112, v112, v{M(sp)}, v{M(sp+1)}")
    e(f"  v_max_f32 v112, v112, v{M(15)}")
    e("  v_mov_b32 v113, 0")
    e("  v_mov_b32 v114, 0")
    for sp in range(16):
        e(f"  v_sub_f32 v{M(sp)}, v{M(sp)}, v112")
        e(f"  v_mul_f32 v{M(sp)}, s{SC}, v{M(sp)}")
        e(f"  v_exp_f32 v{M(sp)}, v{M(sp)}")
    e("  s_nop 0")
    for sp in range(16):
        e(f"  v_fmac_f32 v113, v{M(sp)}, v{M(sp)+1}")
        e(f"  v_fmac_f32 v114, v{M(sp)}, v{16+2*sp}")
    e("  v_mov_b32 v49, v113")
    e("  v_mov_b32 v50, v114")
    e("  v_rcp_f32 v49, v49")
    e("  s_nop 0")
    e("  v_mul_f32 v50, v50, v49")
    round_bf16(50, 50)
    e("  v_lshlrev_b32 v8, 2, v0")
    e(f"  ds_write_b32 v8, v50 offset:{L_VEC}")
    e("  s_waitcnt lgkmcnt(0)")
    e("K_T6:")
    e("  s_barrier")
    e("  v_lshlrev_b32 v5, 2, v12")
    e(f"  ds_read_b32 v168, v5 offset:{L_VEC}")
    e(f"  ds_read_b32 v169, v5 offset:{L_VEC+512}")
    e(f"  ds_read_b32 v170, v5 offset:{L_VEC+256}")
    e(f"  ds_read_b32 v171, v5 offset:{L_VEC+512+256}")
    e("  s_waitcnt lgkmcnt(0)")
    prod(WO, None, 180, 2)
    e(f"  s_lshl_b32 s75, s{SHEAD}, 13")
    e(f"  s_add_u32 s75, s75, {WS_SG}")
    reduce_store(L_SP, "K_T6B", SNO)
    if OPT["prof"] == 1: stamp(7)
    e("  s_cmp_ge_u32 s2, 8")
    e("  s_cbranch_scc1 K_END")
    e("  s_cmp_ge_u32 s3, 4")
    e("  s_cbranch_scc1 K_END")
    def gpoll(label, n, base):
        def iss(k):
            e(f"  s_mov_b32 s75, {base + k*8192}")
            e(f"  buffer_load_dwordx2 v[{16+2*k}:{17+2*k}], v10, s[{SWS}:{SWS+3}], s75 offen sc1")
        mpoll(label, n, iss, lambda k: [17+2*k], None)
        for k in range(1, n):
            e(f"  v_add_f32 v16, v16, v{16+2*k}")
    e("  v_and_b32 v5, 1, v2")
    e("  v_lshlrev_b32 v5, 11, v5")
    e("  v_lshl_add_u32 v5, v1, 2, v5")
    e(f"  s_lshl_b32 s76, s{SNC}, 8")
    e("  v_add_u32 v5, s76, v5")
    e("  v_lshlrev_b32 v10, 1, v5")
    e("  s_cmp_ge_u32 s3, 2")
    e("  s_cbranch_scc1 K_FG")
    e("  v_lshrrev_b32 v6, 1, v5")
    e(f"  buffer_load_ushort v4, v6, s[{SX}:{SX+3}], 0 offen")
    gpoll("K_P3", 32, WS_SG)
    round_bf16(16, 16)
    e("  s_barrier")
    e("  v_lshlrev_b32 v7, 2, v0")
    e(f"  ds_read_b32 v8, v7 offset:{L_GX}")
    e("  s_waitcnt lgkmcnt(0)")
    e("  v_mul_f32 v8, v8, v16")
    round_bf16(8, 8)
    e("  v_lshlrev_b32 v4, 16, v4")
    e("  v_add_f32 v8, v8, v4")
    e("  v_cvt_pk_bf16_f32 v8, v8, v8")
    e(f"  buffer_store_short v8, v6, s[{SOUT}:{SOUT+3}], 0 offen")
    e("  s_or_b32 s75, s2, s3")
    e("  s_cmp_lg_u32 s75, 0")
    e("  s_cbranch_scc1 K_END")
    e("  s_mov_b64 exec, 1")
    e(f"  v_mov_b32 v5, {WS_EP}")
    e("  v_mov_b32 v6, s26")
    e(f"  buffer_store_dword v6, v5, s[{SWS}:{SWS+3}], 0 offen")
    e("  s_branch K_END")
    e("K_FG:")
    gpoll("K_P4", 28, WS_GG)
    round_bf16(16, 16)
    e("  v_mul_f32 v5, 0xbfb8aa3b, v16")
    e("  v_exp_f32 v5, v5")
    e("  s_nop 0")
    e("  v_add_f32 v5, 1.0, v5")
    e("  v_rcp_f32 v5, v5")
    e("  s_nop 0")
    e("  v_mul_f32 v5, v5, v16")
    round_bf16(5, 5)
    e("  v_and_b32 v7, 127, v0")
    e("  v_lshlrev_b32 v7, 2, v7")
    e(f"  ds_write_b32 v7, v5 offset:{L_GX}")
    e("  s_waitcnt lgkmcnt(0)")
    e("  s_barrier")
    e("K_END:")
    dump_stamps()
    e("  s_endpgm")
    e('.section .rodata,"a"')
    e(".p2align 6")
    e(f".amdhsa_kernel {name}")
    e("  .amdhsa_next_free_vgpr 256")
    e("  .amdhsa_next_free_sgpr 102")
    e("  .amdhsa_accum_offset 256")
    e("  .amdhsa_group_segment_fixed_size 0")
    e("  .amdhsa_kernarg_size 88")
    e("  .amdhsa_user_sgpr_count 2")
    e("  .amdhsa_user_sgpr_kernarg_segment_ptr 1")
    e("  .amdhsa_system_sgpr_workgroup_id_x 1")
    e(".end_amdhsa_kernel")

def main():
    path = f"cdna_kernels/{NAME}.s"
    for a in sys.argv[1:]:
        if "=" in a:
            k, v = a.split("=", 1)
            OPT[k] = (" " + v if v else "") if k == "nt" else int(v)
        else:
            path = a
    e(HEADER.rstrip("\n"))
    e(f"; @launch grid=(256,1,1) block=(512,1,1) lds={LDS_SIZE}")
    e('.amdgcn_target "amdgcn-amd-amdhsa--gfx950"')
    gen()
    open(path, "w").write("\n".join(out) + "\n")

main()
```

```python
import sys

NAME = "recurrent_scan__gqa_block_cached__dense_activation_relu__decode"

HEADER = """; Kernarg layout for this problem (88 bytes, ptrs only, base s[0:1]):
;   offset   0: d_in[0] A_x  shape=(2, 1, 512) dtype=bfloat16 strides=(1024, 1024, 2) contiguous=True
;   offset   8: d_in[1] A_k_cache  shape=(2, 8, 32768, 128) dtype=bfloat16 strides=(67108864, 8388608, 256, 2) contiguous=True
;   offset  16: d_in[2] A_v_cache  shape=(2, 8, 32768, 128) dtype=bfloat16 strides=(67108864, 8388608, 256, 2) contiguous=True
;   offset  24: d_in[3] A_wq  shape=(512, 4096) dtype=bfloat16 strides=(8192, 2) contiguous=True
;   offset  32: d_in[4] A_wo  shape=(4096, 512) dtype=bfloat16 strides=(1024, 2) contiguous=True
;   offset  40: d_in[5] B_x  shape=(2, 1, 512) dtype=bfloat16 strides=(1024, 1024, 2) contiguous=True
;   offset  48: d_in[6] B_w1  shape=(512, 1792) dtype=bfloat16 strides=(3584, 2) contiguous=True
;   offset  56: d_in[7] B_w2  shape=(1792, 512) dtype=bfloat16 strides=(1024, 2) contiguous=True
"""

WS_Q = 0
WS_H = 16384
WS_ML = 32768
WS_O = 65536
WS_P = 1 << 20
WS_G = WS_P + 131072
WS_SIZE = 536870912
WS_QG = 2 << 20
WS_HG = WS_QG + 32768
WS_EP = WS_QG + 65536
WS_OG = 5 << 20
WS_MG = 6 << 20
WS_SG = WS_MG + 65536
WS_GG = 7 << 20

L_XN = 0
L_QP = 4096
L_Q = 5632
L_HV = 6656
L_CNT = 7168
L_O = 8192
L_ML = 24576
L_FP = 25600
L_VEC = 0
L_SP = 8192
L_GX = 1024
LDS_SIZE = 41984

OPT = dict(nt=" nt", sleep=1, prof=0, pre0=8, pace=8, bar0=1, wsc=0, thr=2, p2=1, ilv=0)

out = []
def e(s=""):
    out.append(s)

def srd(dst, lo, hi, nbytes):
    e(f"  s_mov_b32 s{dst}, s{lo}")
    e(f"  s_and_b32 s{dst+1}, s{hi}, 0xffff")
    e(f"  s_mov_b32 s{dst+2}, {nbytes}")
    e(f"  s_mov_b32 s{dst+3}, 0x00020000")

def dpp_steps(regs, ctrls):
    for ctrl in ctrls:
        e("  s_nop 1")
        for r in regs:
            e(f"  v_add_f32_dpp v{r}, v{r}, v{r} {ctrl} row_mask:0xf bank_mask:0xf")

def swap_steps(regs, tmp):
    for sw in ["v_permlane16_swap_b32", "v_permlane32_swap_b32"]:
        for r, t in zip(regs, tmp):
            e(f"  v_mov_b32 v{t}, v{r}")
        e("  s_nop 1")
        for r, t in zip(regs, tmp):
            e(f"  {sw} v{r}, v{t}")
        e("  s_nop 1")
        for r, t in zip(regs, tmp):
            e(f"  v_add_f32 v{r}, v{r}, v{t}")

def wave_sum(regs, tmp):
    dpp_steps(regs, ["quad_perm:[1,0,3,2]", "quad_perm:[2,3,0,1]", "row_half_mirror", "row_mirror"])
    swap_steps(regs, tmp)

def round_bf16(dst, src):
    e(f"  v_cvt_pk_bf16_f32 v{dst}, v{src}, v{src}")
    e(f"  v_lshlrev_b32 v{dst}, 16, v{dst}")

WS_PROF = 4 << 20
def stamp(k):
    if not OPT["prof"]:
        return
    e("  s_memrealtime s[80:81]")
    e("  s_waitcnt lgkmcnt(0)")
    e(f"  s_mov_b32 s{92+k}, s80")

def dump_stamps():
    if not OPT["prof"]:
        return
    e("  s_cmp_ge_u32 s3, 2")
    e("  s_cbranch_scc1 K_END2")
    e("  s_cmp_ge_u32 s2, 256")
    e("  s_cbranch_scc1 K_END2")
    stamp(8)
    e("  s_lshl_b32 s82, s2, 1")
    e("  s_add_u32 s82, s82, s3")
    e("  s_lshl_b32 s82, s82, 6")
    e(f"  s_add_u32 s82, s82, {WS_PROF}")
    e("  s_mov_b64 exec, 1")
    e("  v_mov_b32 v6, 0")
    for k in range(9):
        e(f"  v_mov_b32 v5, s{92+k}")
        e(f"  buffer_store_dword v5, v6, s[{SWS}:{SWS+3}], s82 offen offset:{k*4}")
    e("K_END2:")

SX, SK, SV, SWQ, SW1, SWO, SW2, SWS, SDBG, SOUT = 28, 32, 36, 40, 44, 48, 52, 56, 60, 64
SC, SP0, SP1 = 68, 69, 70
IDXA, IDXB = 72, 73
SG, SR, SB, SSPL, SNC, SHEAD = 86, 87, 88, 89, 90, 91
SNO, SCG, SHC = 83, 84, 85

def poll(label, nlanes, voff, target, tmpv):
    e(f"  s_mov_b64 exec, {(1<<nlanes)-1:#x}")
    e("  s_mov_b32 s74, 0x400000")
    e(f"{label}:")
    e(f"  buffer_load_dword v{tmpv}, v{voff}, s[{SDBG}:{SDBG+3}], 0 offen sc1")
    e("  s_waitcnt vmcnt(0)")
    e(f"  v_cmp_ne_u32 vcc, {target}, v{tmpv}")
    e("  s_cmp_eq_u64 vcc, 0")
    e(f"  s_cbranch_scc1 {label}_DONE")
    if OPT["sleep"]:
        e(f"  s_sleep {OPT['sleep']}")
    e("  s_sub_u32 s74, s74, 1")
    e("  s_cmp_lg_u32 s74, 0")
    e(f"  s_cbranch_scc1 {label}")
    e(f"{label}_DONE:")
    e("  s_mov_b64 exec, -1")

def mpoll(label, n, issue, tags, thr):
    full = (1 << n) - 1
    e("  s_not_b32 s75, s26")
    for k in range(n):
        for x in tags(k):
            e(f"  v_mov_b32 v{x}, s75")
    e("  s_mov_b32 s77, 0")
    e("  s_mov_b32 s74, 0x100000")
    e(f"{label}:")
    for k in range(n):
        e(f"  s_bitcmp1_b32 s77, {k}")
        e(f"  s_cbranch_scc1 {label}S{k}")
        issue(k)
        e(f"{label}S{k}:")
    if thr is not None:
        e(f"  s_xor_b32 s75, s77, {full:#x}")
        e("  s_bcnt1_i32_b32 s75, s75")
        e(f"  s_cmp_le_u32 s75, {thr}")
        e(f"  s_cbranch_scc1 {label}F")
        e("  s_waitcnt vmcnt(0)")
        e(f"{label}F:")
    if OPT["sleep"]:
        e(f"  s_sleep {OPT['sleep']}")
    for k in range(n):
        t = tags(k)
        e(f"  v_cmp_eq_u32 vcc, s26, v{t[0]}")
        for x in t[1:]:
            e(f"  v_cmp_eq_u32 s[78:79], s26, v{x}")
            e("  s_and_b64 vcc, vcc, s[78:79]")
        e("  s_cmp_eq_u64 vcc, -1")
        e(f"  s_cselect_b32 s75, {1<<k:#x}, 0")
        e("  s_or_b32 s77, s77, s75")
    e(f"  s_cmp_eq_u32 s77, {full:#x}")
    e(f"  s_cbranch_scc1 {label}_DONE")
    e("  s_sub_u32 s74, s74, 1")
    e("  s_cmp_lg_u32 s74, 0")
    e(f"  s_cbranch_scc1 {label}")
    e(f"{label}_DONE:")
    e("  s_waitcnt vmcnt(0)")

def gen():
    nt = OPT["nt"]
    BS = 17 if OPT["ilv"] else 13
    name = NAME + "_kernel"
    e(".text")
    e(f".globl {name}")
    e(".p2align 8")
    e(f".type {name},@function")
    e(f"{name}:")
    KA, VA, KB, VB = 16, 48, 80, 112
    ACC = 144
    QF = 176
    ST = 192
    PF = 200
    TR = 204
    M_, L_, T0, T1, AL, MC = 236, 237, 238, 239, 240, 241
    VKOFF, VVOFF = 242, 243
    WO = 244
    W2 = 252
    e("  s_cmp_ge_u32 s2, 256")
    e("  s_cbranch_scc1 K_END2" if OPT["prof"] else "  s_cbranch_scc1 K_END")
    e("  s_load_dwordx16 s[4:19], s[0:1], 0")
    e("  s_load_dwordx4 s[20:23], s[0:1], 64")
    e("  s_load_dwordx2 s[24:25], s[0:1], 80")
    e("  v_and_b32 v1, 63, v0")
    e("  v_lshrrev_b32 v2, 6, v0")
    e("  v_and_b32 v3, 15, v1")
    e("  v_lshrrev_b32 v4, 4, v1")
    e("  v_readfirstlane_b32 s3, v2")
    e(f"  s_and_b32 s{SG}, s2, 7")
    e(f"  s_lshr_b32 s{SR}, s2, 3")
    e(f"  s_and_b32 s{SNO}, s{SR}, 7")
    e(f"  s_lshl_b32 s{SCG}, s{SG}, 5")
    e(f"  s_add_u32 s{SCG}, s{SCG}, s{SR}")
    e(f"  s_lshr_b32 s{SHC}, s{SR}, 3")
    e(f"  s_lshl_b32 s{SHC}, s{SHC}, 6")
    e(f"  s_lshl_b32 s74, s{SG}, 3")
    e(f"  s_add_u32 s{SHC}, s{SHC}, s74")
    e(f"  s_add_u32 s{SHC}, s{SHC}, s{SNO}")
    e(f"  s_lshr_b32 s{SB}, s{SR}, 4")
    e(f"  s_and_b32 s{SSPL}, s{SR}, 15")
    e(f"  s_and_b32 s{SNC}, s2, 7")
    e(f"  s_lshr_b32 s{SHEAD}, s{SR}, 3")
    e(f"  s_lshl_b32 s74, s{SG}, 2")
    e(f"  s_add_u32 s{SHEAD}, s{SHEAD}, s74")
    e(f"  s_lshl_b32 s74, s{SB}, 3")
    e(f"  s_add_u32 s74, s74, s{SG}")
    e("  s_lshl_b32 s74, s74, 23")
    e(f"  s_lshl_b32 s75, s{SSPL}, {13 if OPT['ilv'] else 19}")
    e("  s_add_u32 s74, s74, s75")
    e(f"  s_mov_b32 s{SC}, 0x3e0293ee")
    e(f"  s_mov_b32 s{SP0}, 0x05040100")
    e(f"  s_mov_b32 s{SP1}, 0x07060302")
    e("  s_lshl_b32 s75, s3, 1")
    e(f"  s_sub_u32 s{IDXA}, s75, 2")
    e(f"  s_sub_u32 s{IDXB}, s75, 1")
    e("  s_cmp_eq_u32 s3, 0")
    e(f"  s_cselect_b32 s{IDXA}, 64, s{IDXA}")
    e(f"  s_cselect_b32 s{IDXB}, 64, s{IDXB}")
    e("  v_and_b32 v5, 3, v3")
    e("  v_lshrrev_b32 v6, 2, v3")
    e("  v_lshl_add_u32 v5, v5, 2, v6")
    e("  v_lshlrev_b32 v5, 8, v5")
    e(f"  v_lshl_add_u32 v{VKOFF}, v4, 4, v5")
    e(f"  v_lshlrev_b32 v{VVOFF}, 4, v1")
    e("  s_waitcnt lgkmcnt(0)")
    srd(SX, 4, 5, 2048)
    srd(SWQ, 10, 11, 512 * 4096 * 2)
    srd(SW1, 16, 17, 512 * 1792 * 2)
    srd(SWO, 12, 13, 4096 * 512 * 2)
    srd(SW2, 18, 19, 1792 * 512 * 2)
    srd(SWS, 24, 25, WS_SIZE)
    srd(SDBG, 22, 23, 256)
    srd(SOUT, 20, 21, 2048)
    e(f"  s_add_u32 s{SK}, s6, s74")
    e(f"  s_addc_u32 s{SK+1}, s7, 0")
    e(f"  s_and_b32 s{SK+1}, s{SK+1}, 0xffff")
    if OPT['ilv']:
        e(f"  s_lshl_b32 s75, s{SSPL}, 13")
        e(f"  s_sub_u32 s{SK+2}, {8<<20}, s75")
    else:
        e(f"  s_mov_b32 s{SK+2}, 524288")
    e(f"  s_mov_b32 s{SK+3}, 0x00020000")
    e(f"  s_add_u32 s{SV}, s8, s74")
    e(f"  s_addc_u32 s{SV+1}, s9, 0")
    e(f"  s_and_b32 s{SV+1}, s{SV+1}, 0xffff")
    e(f"  s_mov_b32 s{SV+2}, s{SK+2}")
    e(f"  s_mov_b32 s{SV+3}, 0x00020000")
    e("  s_movk_i32 s71, 4096")
    stamp(0)
    e(f"  v_mov_b32 v5, {WS_EP}")
    e(f"  buffer_load_dword v231, v5, s[{SWS}:{SWS+3}], 0 offen sc1")
    e("  v_lshlrev_b32 v5, 4, v1")
    e(f"  buffer_load_dwordx4 v[204:207], v5, s[{SX}:{SX+3}], 0 offen")
    e(f"  buffer_load_dwordx4 v[208:211], v5, s[{SX}:{SX+3}], 0 offen offset:1024")
    e("  v_lshrrev_b32 v6, 2, v0")
    e("  v_and_b32 v7, 3, v0")
    e("  v_lshlrev_b32 v8, 13, v6")
    e("  v_lshl_add_u32 v8, v7, 3, v8")
    e(f"  s_lshl_b32 s75, s{SCG}, 5")
    e("  v_add_u32 v8, s75, v8")
    for i in range(4):
        if i == 0:
            e(f"  buffer_load_dwordx2 v[212:213], v8, s[{SWQ}:{SWQ+3}], 0 offen")
        else:
            e(f"  v_add_u32 v8, 0x100000, v8")
            e(f"  buffer_load_dwordx2 v[{212+2*i}:{213+2*i}], v8, s[{SWQ}:{SWQ+3}], 0 offen")
    e("  v_lshrrev_b32 v9, 1, v0")
    e("  v_and_b32 v10, 1, v0")
    e("  s_movk_i32 s75, 3584")
    e("  v_mul_lo_u32 v11, v9, s75")
    e("  v_lshl_add_u32 v11, v10, 3, v11")
    e(f"  s_lshl_b32 s75, s{SHC}, 4")
    e("  v_add_u32 v11, s75, v11")
    e(f"  buffer_load_dwordx2 v[220:221], v11, s[{SW1}:{SW1+3}], 0 offen")
    e(f"  v_add_u32 v11, {256*3584}, v11")
    e(f"  buffer_load_dwordx2 v[222:223], v11, s[{SW1}:{SW1+3}], 0 offen")

    def kchunk_l(KR, vo):
        r=[]
        for t in range(2):
            for i in range(4):
                so = "0" if t == 0 else "s71"
                r.append(f"  buffer_load_dwordx4 v[{KR+16*t+4*i}:{KR+16*t+4*i+3}], v{vo}, s[{SK}:{SK+3}], {so} offen offset:{i*64}{nt}")
        return r
    def vchunk_l(VR, vo):
        r=[]
        for j in range(8):
            so = "0" if j < 4 else "s71"
            r.append(f"  buffer_load_dwordx4 v[{VR+4*j}:{VR+4*j+3}], v{vo}, s[{SV}:{SV+3}], {so} offen offset:{(j&3)*1024}{nt}")
        return r
    def kchunk(KR, vo):
        for l in kchunk_l(KR, vo): e(l)
    def vchunk(VR, vo):
        for l in vchunk_l(VR, vo): e(l)
    def loads(KR, VR, sidx):
        e(f"  s_lshl_b32 s75, s{sidx}, {BS}")
        e(f"  v_add_u32 v5, s75, v{VKOFF}")
        e(f"  v_add_u32 v6, s75, v{VVOFF}")
        kchunk(KR, 5)
        vchunk(VR, 6)
    def wo_loads():
        e("  v_lshlrev_b32 v14, 10, v12")
        e("  v_lshl_add_u32 v14, v13, 4, v14")
        e(f"  s_lshl_b32 s75, s{SNO}, 7")
        e("  v_add_u32 v15, s75, v14")
        e(f"  s_lshl_b32 s75, s{SHEAD}, 17")
        e("  v_add_u32 v15, s75, v15")
        e(f"  buffer_load_dwordx4 v[{WO}:{WO+3}], v15, s[{SWO}:{SWO+3}], 0 offen")
        e("  v_add_u32 v15, 0x10000, v15")
        e(f"  buffer_load_dwordx4 v[{WO+4}:{WO+7}], v15, s[{SWO}:{SWO+3}], 0 offen")
        e("  s_lshr_b32 s75, s2, 3")
        e("  s_lshl_b32 s75, s75, 16")
        e("  v_add_u32 v15, s75, v14")
        e(f"  s_lshl_b32 s75, s{SNC}, 7")
        e("  v_add_u32 v15, s75, v15")
        e(f"  buffer_load_dwordx4 v[{W2}:{W2+3}], v15, s[{SW2}:{SW2+3}], 0 offen")
    e("  v_lshrrev_b32 v12, 3, v0")
    e("  v_and_b32 v13, 7, v0")
    e(f"  s_lshl_b32 s75, s{IDXA}, {BS}")
    e(f"  v_add_u32 v224, s75, v{VKOFF}")
    e(f"  v_add_u32 v225, s75, v{VVOFF}")
    e(f"  s_lshl_b32 s75, s{IDXB}, {BS}")
    e(f"  v_add_u32 v226, s75, v{VKOFF}")
    e(f"  v_add_u32 v227, s75, v{VVOFF}")
    pl = kchunk_l(KA, 224) + vchunk_l(VA, 225) + kchunk_l(KB, 226) + vchunk_l(VB, 227)
    PRE0 = OPT["pre0"]
    if OPT["bar0"]:
        e("  s_barrier")
    for c in range(PRE0):
        e(pl[c])
    X = 144
    e(f"  s_waitcnt vmcnt({6+PRE0})")
    e("  v_readfirstlane_b32 s26, v231")
    e("  s_add_u32 s26, s26, 1")
    if OPT["prof"] == 2: stamp(4)
    for b in range(2):
        for c in range(4):
            e(f"  v_lshlrev_b32 v{X+8*b+2*c}, 16, v{204+4*b+c}")
            e(f"  v_and_b32 v{X+1+8*b+2*c}, 0xffff0000, v{204+4*b+c}")
    for b in range(2):
        e(f"  v_add_f32 v{160+b}, v{X+8*b}, v{X+1+8*b}")
        for c in range(2, 8):
            e(f"  v_add_f32 v{160+b}, v{160+b}, v{X+8*b+c}")
    wave_sum([160, 161], [162, 163])
    e("  v_mul_f32 v160, 0x3b000000, v160")
    e("  v_mul_f32 v161, 0x3b000000, v161")
    for b in range(2):
        e(f"  v_sub_f32 v166, v{X+8*b}, v{160+b}")
        e(f"  v_mul_f32 v{164+b}, v166, v166")
        for c in range(1, 8):
            e(f"  v_sub_f32 v166, v{X+8*b+c}, v{160+b}")
            e(f"  v_fmac_f32 v{164+b}, v166, v166")
    wave_sum([164, 165], [162, 163])
    e("  v_mul_f32 v164, 0x3b000000, v164")
    e("  v_mul_f32 v165, 0x3b000000, v165")
    for b in range(2):
        round_bf16(164 + b, 164 + b)
        e(f"  v_add_f32 v{164+b}, 0x3727c5ac, v{164+b}")
        round_bf16(164 + b, 164 + b)
        e(f"  v_sqrt_f32 v{164+b}, v{164+b}")
        e("  s_nop 0")
        round_bf16(164 + b, 164 + b)
        e(f"  v_rcp_f32 v{164+b}, v{164+b}")
        round_bf16(160 + b, 160 + b)
    for b in range(2):
        for c in range(8):
            r = X + 8 * b + c
            e(f"  v_sub_f32 v{r}, v{r}, v{160+b}")
            round_bf16(r, r)
            e(f"  v_mul_f32 v{r}, v{r}, v{164+b}")
            round_bf16(r, r)
    e("  v_lshlrev_b32 v5, 6, v1")
    for c in range(0, 8, 2):
        e(f"  v_mov_b32 v{168+2*c}, v{X+c}")
        e(f"  v_mov_b32 v{169+2*c}, v{X+8+c}")
        e(f"  v_mov_b32 v{170+2*c}, v{X+c+1}")
        e(f"  v_mov_b32 v{171+2*c}, v{X+8+c+1}")
        e(f"  ds_write_b128 v5, v[{168+2*c}:{171+2*c}] offset:{L_XN + c*8}")
    e("  s_waitcnt lgkmcnt(0)")
    e("  v_lshrrev_b32 v5, 2, v0")
    e("  v_lshlrev_b32 v5, 3, v5")
    e("  v_lshlrev_b32 v6, 3, v9")
    for i in range(4):
        e(f"  ds_read_b64 v[{168+2*i}:{169+2*i}], v5 offset:{L_XN + i*1024}")
    for i in range(2):
        e(f"  ds_read_b64 v[{176+2*i}:{177+2*i}], v6 offset:{L_XN + i*2048}")
    for r in range(180, 196):
        e(f"  v_mov_b32 v{r}, 0")
    if OPT["prof"] == 2: stamp(5)
    e(f"  s_waitcnt vmcnt({PRE0}) lgkmcnt(0)")
    if OPT["prof"] == 2: stamp(6)
    for i in range(4):
        for c in range(2):
            w = 212 + 2 * i + c
            e(f"  v_lshlrev_b32 v160, 16, v{w}")
            e(f"  v_and_b32 v161, 0xffff0000, v{w}")
            e(f"  v_fmac_f32 v{180+2*c}, v160, v{168+2*i}")
            e(f"  v_fmac_f32 v{181+2*c}, v161, v{168+2*i}")
            e(f"  v_fmac_f32 v{184+2*c}, v160, v{169+2*i}")
            e(f"  v_fmac_f32 v{185+2*c}, v161, v{169+2*i}")
    for i in range(2):
        for c in range(2):
            w = 220 + 2 * i + c
            e(f"  v_lshlrev_b32 v160, 16, v{w}")
            e(f"  v_and_b32 v161, 0xffff0000, v{w}")
            e(f"  v_fmac_f32 v{188+2*c}, v160, v{176+2*i}")
            e(f"  v_fmac_f32 v{189+2*c}, v161, v{176+2*i}")
            e(f"  v_fmac_f32 v{192+2*c}, v160, v{177+2*i}")
            e(f"  v_fmac_f32 v{193+2*c}, v161, v{177+2*i}")
    dpp_steps(list(range(188, 196)), ["quad_perm:[2,3,0,1]"])
    dpp_steps(list(range(180, 196)), ["row_ror:4", "row_ror:8"])
    swap_steps(list(range(180, 196)), list(range(204, 220)))
    e("  s_mul_i32 s75, s3, 192")
    e("  v_lshlrev_b32 v5, 4, v1")
    e("  v_add_u32 v5, s75, v5")
    e("  s_mov_b64 exec, 0xf")
    e(f"  ds_write_b128 v5, v[180:183] offset:{L_QP}")
    e(f"  ds_write_b128 v5, v[184:187] offset:{L_QP+64}")
    e("  s_mov_b64 exec, 0x3")
    e(f"  ds_write_b128 v5, v[188:191] offset:{L_QP+128}")
    e(f"  ds_write_b128 v5, v[192:195] offset:{L_QP+160}")
    e("  s_mov_b64 exec, -1")
    e("  s_waitcnt lgkmcnt(0)")
    if OPT["prof"] == 2: stamp(7)
    e("  s_barrier")
    e("  s_cmp_eq_u32 s3, 0")
    e("  s_cbranch_scc1 K_SRV")
    for c in range(PRE0, 32):
        if OPT["pace"]:
            e(f"  s_waitcnt vmcnt({OPT['pace']-1})")
        e(pl[c])
    wo_loads()
    e("  s_branch K_B2")
    e("K_SRV:")
    e("  v_lshlrev_b32 v5, 3, v1")
    e("  s_mov_b64 exec, 0xffffff")
    for w in range(8):
        e(f"  ds_read_b64 v[{160+2*w}:{161+2*w}], v5 offset:{L_QP + w*192}")
    e("  v_lshrrev_b32 v6, 3, v1")
    e("  v_lshlrev_b32 v6, 14, v6")
    e("  v_and_b32 v7, 7, v1")
    e("  v_lshl_add_u32 v6, v7, 3, v6")
    stamp(1)
    e(f"  s_lshl_b32 s75, s{SCG}, 6")
    e(f"  s_add_u32 s75, s75, {WS_QG}")
    e("  v_add_u32 v6, s75, v6")
    e("  v_bfe_u32 v7, v1, 2, 1")
    e("  s_movk_i32 s75, 7168")
    e("  v_mul_lo_u32 v7, v7, s75")
    e("  v_and_b32 v8, 3, v1")
    e("  v_lshl_add_u32 v7, v8, 3, v7")
    e(f"  s_lshl_b32 s75, s{SHC}, 5")
    e(f"  s_add_u32 s75, s75, {WS_HG}")
    e("  v_add_u32 v7, s75, v7")
    e("  v_cmp_gt_u32 vcc, 16, v1")
    e("  v_cndmask_b32 v6, v7, v6, vcc")
    e("  s_waitcnt lgkmcnt(0)")
    for w in range(1, 8):
        e(f"  v_add_f32 v160, v160, v{160+2*w}")
        e(f"  v_add_f32 v161, v161, v{161+2*w}")
    e("  v_max_f32 v162, 0, v160")
    e("  v_max_f32 v163, 0, v161")
    e("  v_cndmask_b32 v160, v162, v160, vcc")
    e("  v_cndmask_b32 v161, v163, v161, vcc")
    e("  v_cvt_pk_bf16_f32 v160, v160, v161")
    e("  v_mov_b32 v161, s26")
    e("  s_mov_b32 s77, 0xffff")
    e(f"  s_cmp_lt_u32 s{SHC}, 224")
    e("  s_cselect_b32 s76, 0xffffff, s77")
    e("  s_mov_b32 exec_lo, s76")
    e(f"  buffer_store_dwordx2 v[160:161], v6, s[{SWS}:{SWS+3}], 0 offen sc1")
    e("  s_mov_b64 exec, -1")
    stamp(2)
    e(f"  s_lshl_b32 s75, s{SB}, 14")
    e(f"  s_lshl_b32 s76, s{SG}, 11")
    e("  s_add_u32 s75, s75, s76")
    e(f"  s_add_u32 s75, s75, {WS_QG}")
    e("  v_lshlrev_b32 v5, 5, v1")
    e("  v_add_u32 v5, s75, v5")
    e("  v_lshrrev_b32 v6, 5, v1")
    e("  s_movk_i32 s75, 7168")
    e("  v_mul_lo_u32 v7, v6, s75")
    e("  v_and_b32 v8, 31, v1")
    e("  v_lshl_add_u32 v7, v8, 3, v7")
    e("  s_lshr_b32 s75, s2, 3")
    e("  s_lshl_b32 s75, s75, 8")
    e(f"  s_add_u32 s75, s75, {WS_HG}")
    e("  v_add_u32 v7, s75, v7")
    e("  s_mov_b32 s74, 0x400000")
    e("K_P1:")
    e(f"  buffer_load_dwordx4 v[160:163], v5, s[{SWS}:{SWS+3}], 0 offen sc1")
    e(f"  buffer_load_dwordx4 v[164:167], v5, s[{SWS}:{SWS+3}], 0 offen offset:16 sc1")
    e(f"  buffer_load_dwordx2 v[168:169], v7, s[{SWS}:{SWS+3}], 0 offen sc1")
    e("  s_waitcnt vmcnt(0)")
    e("  v_cmp_ne_u32 vcc, s26, v161")
    e("  v_cmp_ne_u32 s[76:77], s26, v163")
    e("  s_or_b64 vcc, vcc, s[76:77]")
    e("  v_cmp_ne_u32 s[76:77], s26, v165")
    e("  s_or_b64 vcc, vcc, s[76:77]")
    e("  v_cmp_ne_u32 s[76:77], s26, v167")
    e("  s_or_b64 vcc, vcc, s[76:77]")
    e("  s_cmp_ge_u32 s2, 224")
    e("  s_cbranch_scc1 K_P1C")
    e("  v_cmp_ne_u32 s[76:77], s26, v169")
    e("  s_or_b64 vcc, vcc, s[76:77]")
    e("K_P1C:")
    e("  s_cmp_eq_u64 vcc, 0")
    e("  s_cbranch_scc1 K_P1_DONE")
    if OPT["sleep"]:
        e(f"  s_sleep {OPT['sleep']}")
    e("  s_sub_u32 s74, s74, 1")
    e("  s_cmp_lg_u32 s74, 0")
    e("  s_cbranch_scc1 K_P1")
    e("K_P1_DONE:")
    stamp(3)
    e("  v_mov_b32 v161, v162")
    e("  v_mov_b32 v162, v164")
    e("  v_mov_b32 v163, v166")
    e("  v_lshlrev_b32 v5, 4, v1")
    e(f"  ds_write_b128 v5, v[160:163] offset:{L_Q}")
    e("  v_lshlrev_b32 v164, 16, v168")
    e("  v_and_b32 v165, 0xffff0000, v168")
    e("  v_lshlrev_b32 v5, 3, v1")
    e(f"  ds_write_b64 v5, v[164:165] offset:{L_HV}")
    e(f"  s_mov_b32 s{IDXA}, 14")
    e(f"  s_mov_b32 s{IDXB}, 15")
    e("  v_mov_b32 v9, 16")
    e(f"  v_mov_b32 v10, {L_CNT}")
    e("  ds_write_b32 v10, v9")
    wo_loads()
    loads(KA, VA, IDXA)
    loads(KB, VB, IDXB)
    e("  s_waitcnt lgkmcnt(0)")
    e("K_B2:")
    e("  s_barrier")
    e("  v_and_b32 v5, 3, v3")
    e("  v_lshlrev_b32 v5, 8, v5")
    e("  v_lshl_add_u32 v5, v4, 4, v5")
    for i in range(4):
        e(f"  ds_read_b128 v[{QF+4*i}:{QF+4*i+3}], v5 offset:{L_Q + i*64}")
    for r in range(32):
        e(f"  v_mov_b32 v{ACC+r}, 0")
    e(f"  v_mov_b32 v{M_}, 0xf149f2ca")
    e(f"  v_mov_b32 v{L_}, 0")
    e(f"  v_mov_b32 v7, {L_CNT}")
    e("  v_mov_b32 v8, 1")
    e("  s_waitcnt lgkmcnt(0)")

    def compute(KR, VR, vk, vv):
        e(f"  s_waitcnt vmcnt({vk})")
        for t in range(2):
            for i in range(4):
                c = "0" if i == 0 else f"v[{ST+4*t}:{ST+4*t+3}]"
                e(f"  v_mfma_f32_16x16x32_bf16 v[{ST+4*t}:{ST+4*t+3}], v[{KR+16*t+4*i}:{KR+16*t+4*i+3}], v[{QF+4*i}:{QF+4*i+3}], {c}")
        e("  s_nop 7")
        e("  s_nop 0")
        e(f"  v_max3_f32 v{T0}, v{ST}, v{ST+1}, v{ST+2}")
        e(f"  v_max3_f32 v{T1}, v{ST+3}, v{ST+4}, v{ST+5}")
        e(f"  v_max3_f32 v{T0}, v{T0}, v{ST+6}, v{ST+7}")
        e(f"  v_max_f32 v{T0}, v{T0}, v{T1}")
        e(f"  v_mov_b32 v{T1}, v{T0}")
        e("  s_nop 1")
        e(f"  v_permlane16_swap_b32 v{T0}, v{T1}")
        e("  s_nop 1")
        e(f"  v_max_f32 v{T0}, v{T0}, v{T1}")
        e(f"  v_mov_b32 v{T1}, v{T0}")
        e("  s_nop 1")
        e(f"  v_permlane32_swap_b32 v{T0}, v{T1}")
        e("  s_nop 1")
        e(f"  v_max3_f32 v{T0}, v{T0}, v{T1}, v{M_}")
        e(f"  v_sub_f32 v{AL}, v{M_}, v{T0}")
        e(f"  v_mul_f32 v{AL}, s{SC}, v{AL}")
        e(f"  v_exp_f32 v{AL}, v{AL}")
        e(f"  v_mov_b32 v{M_}, v{T0}")
        e(f"  v_mul_f32 v{MC}, s{SC}, v{T0}")
        for k in range(8):
            e(f"  v_fma_f32 v{ST+k}, v{ST+k}, s{SC}, -v{MC}")
        for k in range(8):
            e(f"  v_exp_f32 v{ST+k}, v{ST+k}")
        e("  s_nop 0")
        e(f"  v_mul_f32 v{L_}, v{L_}, v{AL}")
        for k in range(8):
            e(f"  v_add_f32 v{L_}, v{L_}, v{ST+k}")
        for q in range(4):
            e(f"  v_cvt_pk_bf16_f32 v{PF+q}, v{ST+2*q}, v{ST+2*q+1}")
        for r in range(32):
            e(f"  v_mul_f32 v{ACC+r}, v{ACC+r}, v{AL}")
        e(f"  s_waitcnt vmcnt({vv})")
        for t in range(8):
            c = t >> 1
            sel = f"s{SP1}" if (t & 1) else f"s{SP0}"
            for q in range(4):
                e(f"  v_perm_b32 v{TR+4*t+q}, v{VR+4*(2*q+1)+c}, v{VR+4*(2*q)+c}, {sel}")
        e("  s_nop 1")
        for t in range(8):
            e(f"  v_mfma_f32_16x16x32_bf16 v[{ACC+4*t}:{ACC+4*t+3}], v[{TR+4*t}:{TR+4*t+3}], v[{PF}:{PF+3}], v[{ACC+4*t}:{ACC+4*t+3}]")

    def fetch():
        e("  s_mov_b64 exec, 1")
        e("  ds_add_rtn_u32 v9, v7, v8")
        e("  s_mov_b64 exec, -1")
    def getidx(sidx):
        e("  s_waitcnt lgkmcnt(0)")
        e(f"  v_readfirstlane_b32 s{sidx}, v9")

    e("K_LOOP:")
    fetch()
    compute(KA, VA, 24, 16)
    getidx(IDXA)
    loads(KA, VA, IDXA)
    e(f"  s_cmp_ge_u32 s{IDXB}, 64")
    e("  s_cbranch_scc1 K_EXIT")
    fetch()
    compute(KB, VB, 24, 16)
    getidx(IDXB)
    loads(KB, VB, IDXB)
    e(f"  s_cmp_lt_u32 s{IDXA}, 64")
    e("  s_cbranch_scc1 K_LOOP")
    e("K_EXIT:")
    if OPT["prof"] == 1: stamp(4)
    e(f"  v_mov_b32 v{T1}, v{L_}")
    e("  s_nop 1")
    e(f"  v_permlane16_swap_b32 v{L_}, v{T1}")
    e("  s_nop 1")
    e(f"  v_add_f32 v{L_}, v{L_}, v{T1}")
    e(f"  v_mov_b32 v{T1}, v{L_}")
    e("  s_nop 1")
    e(f"  v_permlane32_swap_b32 v{L_}, v{T1}")
    e("  s_nop 1")
    e(f"  v_add_f32 v{L_}, v{L_}, v{T1}")
    e("  v_cmp_gt_u32 vcc, 4, v3")
    e("  s_and_saveexec_b64 s[78:79], vcc")
    e("  v_lshlrev_b32 v5, 11, v2")
    e("  v_lshl_add_u32 v5, v3, 9, v5")
    e("  v_lshl_add_u32 v5, v4, 7, v5")
    e("  s_nop 4")
    for t in range(8):
        for r in range(4):
            e(f"  ds_write_b32 v5, v{ACC+4*t+r} offset:{L_O + (r*8+t)*4}")
    e("  v_cmp_gt_u32 vcc, 4, v1")
    e("  s_and_b64 exec, exec, vcc")
    e("  v_lshlrev_b32 v6, 5, v2")
    e("  v_lshl_add_u32 v6, v3, 3, v6")
    e(f"  ds_write_b32 v6, v{M_} offset:{L_ML}")
    e(f"  ds_write_b32 v6, v{L_} offset:{L_ML+4}")
    e("  s_mov_b64 exec, s[78:79]")
    e("  s_waitcnt lgkmcnt(0)")
    e("  s_barrier")
    e("  v_lshrrev_b32 v5, 7, v0")
    e("  v_and_b32 v6, 127, v0")
    e("  v_lshlrev_b32 v7, 3, v5")
    for w in range(8):
        e(f"  ds_read_b64 v[{160+2*w}:{161+2*w}], v7 offset:{L_ML + w*32}")
    e("  v_lshlrev_b32 v8, 9, v5")
    e("  v_lshl_add_u32 v8, v6, 2, v8")
    for w in range(8):
        e(f"  ds_read_b32 v{176+w}, v8 offset:{L_O + w*2048}")
    e("  s_waitcnt lgkmcnt(0)")
    e("  v_max3_f32 v184, v160, v162, v164")
    e("  v_max3_f32 v185, v166, v168, v170")
    e("  v_max3_f32 v184, v184, v172, v174")
    e("  v_max_f32 v184, v184, v185")
    e("  v_mov_b32 v186, 0")
    e("  v_mov_b32 v187, 0")
    for w in range(8):
        e(f"  v_sub_f32 v185, v{160+2*w}, v184")
        e(f"  v_mul_f32 v185, s{SC}, v185")
        e("  v_exp_f32 v185, v185")
        e("  s_nop 0")
        e(f"  v_fmac_f32 v186, v185, v{161+2*w}")
        e(f"  v_fmac_f32 v187, v185, v{176+w}")
    e(f"  s_lshl_b32 s75, s{SB}, 5")
    e(f"  s_lshl_b32 s76, s{SG}, 2")
    e("  s_add_u32 s75, s75, s76")
    e("  s_lshl_b32 s75, s75, 4")
    e(f"  s_add_u32 s75, s75, s{SSPL}")
    e("  v_lshlrev_b32 v7, 4, v5")
    e("  v_add_u32 v7, s75, v7")
    e("  v_lshlrev_b32 v8, 10, v7")
    e("  v_lshl_add_u32 v8, v6, 3, v8")
    e(f"  s_mov_b32 s75, {WS_OG}")
    e("  v_mov_b32 v188, v187")
    e("  v_mov_b32 v189, s26")
    e(f"  buffer_store_dwordx2 v[188:189], v8, s[{SWS}:{SWS+3}], s75 offen sc1")
    e("  v_cmp_eq_u32 vcc, 0, v6")
    e("  s_and_saveexec_b64 s[78:79], vcc")
    e("  v_lshlrev_b32 v7, 4, v7")
    e("  v_mov_b32 v185, v186")
    e("  v_mov_b32 v186, s26")
    e(f"  s_mov_b32 s75, {WS_MG}")
    e(f"  buffer_store_dwordx3 v[184:186], v7, s[{SWS}:{SWS+3}], s75 offen sc1")
    e("  s_mov_b64 exec, s[78:79]")
    if OPT["prof"] == 1: stamp(5)

    def prod(wregs, vecaddr_rows, accbase, nrows):
        for r in range(16):
            e(f"  v_mov_b32 v{accbase+r}, 0")
        for i in range(nrows):
            for c in range(4):
                w = wregs + 4 * i + c
                e(f"  v_lshlrev_b32 v160, 16, v{w}")
                e(f"  v_and_b32 v161, 0xffff0000, v{w}")
                e(f"  v_fmac_f32 v{accbase+2*c}, v160, v{168+2*i}")
                e(f"  v_fmac_f32 v{accbase+1+2*c}, v161, v{168+2*i}")
                e(f"  v_fmac_f32 v{accbase+8+2*c}, v160, v{169+2*i}")
                e(f"  v_fmac_f32 v{accbase+9+2*c}, v161, v{169+2*i}")
        dpp_steps(list(range(accbase, accbase + 16)), ["row_ror:8"])

    def reduce_store(lbase, label, snc):
        e("  v_lshlrev_b32 v5, 2, v2")
        e("  v_add_u32 v5, v5, v4")
        e("  v_lshlrev_b32 v5, 9, v5")
        e("  v_and_b32 v6, 7, v1")
        e("  v_lshl_add_u32 v5, v6, 5, v5")
        e("  v_and_b32 v6, 8, v1")
        e("  v_cmp_eq_u32 vcc, 0, v6")
        e("  s_and_saveexec_b64 s[78:79], vcc")
        e(f"  ds_write_b128 v5, v[180:183] offset:{lbase}")
        e(f"  ds_write_b128 v5, v[184:187] offset:{lbase+16}")
        e(f"  ds_write_b128 v5, v[188:191] offset:{lbase+256}")
        e(f"  ds_write_b128 v5, v[192:195] offset:{lbase+256+16}")
        e("  s_mov_b64 exec, s[78:79]")
        e("  s_waitcnt lgkmcnt(0)")
        e("  s_barrier")
        e("  s_cmp_ge_u32 s3, 2")
        e(f"  s_cbranch_scc1 {label}")
        e("  v_lshlrev_b32 v5, 2, v0")
        for p in range(32):
            e(f"  ds_read_b32 v{204+p}, v5 offset:{lbase + p*512}")
        e("  s_waitcnt lgkmcnt(0)")
        for p in range(1, 31, 2):
            e(f"  v_add_f32 v{204+p}, v{204+p}, v{205+p}")
        e("  v_add_f32 v204, v204, v235")
        for p in range(1, 31, 2):
            e(f"  v_add_f32 v204, v204, v{204+p}")
        e("  v_lshlrev_b32 v5, 12, v2")
        e("  v_lshl_add_u32 v5, v1, 3, v5")
        e(f"  s_lshl_b32 s76, s{snc}, 9")
        e(f"  s_add_u32 s75, s75, s76")
        e("  v_mov_b32 v205, s26")
        e(f"  buffer_store_dwordx2 v[204:205], v5, s[{SWS}:{SWS+3}], s75 offen sc1")
        e(f"{label}:")

    e("  s_cmp_ge_u32 s2, 224")
    e("  s_cbranch_scc1 K_T4")
    e("  v_lshlrev_b32 v5, 2, v12")
    e(f"  ds_read_b32 v168, v5 offset:{L_HV}")
    e(f"  ds_read_b32 v169, v5 offset:{L_HV+256}")
    e("  s_waitcnt lgkmcnt(0)")
    prod(W2, None, 180, 1)
    e("  s_lshr_b32 s75, s2, 3")
    e("  s_lshl_b32 s75, s75, 13")
    e(f"  s_add_u32 s75, s75, {WS_GG}")
    reduce_store(L_FP, "K_T3B", SNC)
    e("K_T4:")
    e("  s_cmp_ge_u32 s3, 4")
    e("  s_cbranch_scc1 K_T6")
    e("  v_lshrrev_b32 v6, 7, v0")
    e("  v_and_b32 v7, 127, v0")
    e("  v_lshlrev_b32 v8, 5, v6")
    e(f"  v_add_u32 v8, s{SHEAD}, v8")
    e("  v_lshlrev_b32 v9, 8, v8")
    e("  v_lshlrev_b32 v10, 14, v8")
    e("  v_lshl_add_u32 v10, v7, 3, v10")
    e(f"  s_mov_b32 s76, {WS_MG}")
    def iss2(sp):
        e(f"  s_mov_b32 s75, {WS_OG + 4096*(sp>>2)}")
        bits = {0:"", 1:" sc1", 2:" sc0", 3:" sc0 sc1", 4:" nt", 5:" sc0 nt"}[OPT["p2"]]
        e(f"  buffer_load_dwordx2 v[{16+2*sp}:{17+2*sp}], v10, s[{SWS}:{SWS+3}], s75 offen offset:{(sp&3)*1024}{bits}")
        e(f"  buffer_load_dwordx3 v[{48+4*sp}:{50+4*sp}], v9, s[{SWS}:{SWS+3}], s76 offen offset:{sp*16}{bits}")
    mpoll("K_P2", 16, iss2, lambda sp: [17+2*sp, 50+4*sp], OPT["thr"])
    if OPT["prof"] == 1: stamp(6)
    M = lambda sp: 48+4*sp
    e(f"  v_max3_f32 v112, v{M(0)}, v{M(1)}, v{M(2)}")
    for sp in range(3, 15, 2):
        e(f"  v_max3_f32 v112, v112, v{M(sp)}, v{M(sp+1)}")
    e(f"  v_max_f32 v112, v112, v{M(15)}")
    e("  v_mov_b32 v113, 0")
    e("  v_mov_b32 v114, 0")
    for sp in range(16):
        e(f"  v_sub_f32 v{M(sp)}, v{M(sp)}, v112")
        e(f"  v_mul_f32 v{M(sp)}, s{SC}, v{M(sp)}")
        e(f"  v_exp_f32 v{M(sp)}, v{M(sp)}")
    e("  s_nop 0")
    for sp in range(16):
        e(f"  v_fmac_f32 v113, v{M(sp)}, v{M(sp)+1}")
        e(f"  v_fmac_f32 v114, v{M(sp)}, v{16+2*sp}")
    e("  v_mov_b32 v49, v113")
    e("  v_mov_b32 v50, v114")
    e("  v_rcp_f32 v49, v49")
    e("  s_nop 0")
    e("  v_mul_f32 v50, v50, v49")
    round_bf16(50, 50)
    e("  v_lshlrev_b32 v8, 2, v0")
    e(f"  ds_write_b32 v8, v50 offset:{L_VEC}")
    e("  s_waitcnt lgkmcnt(0)")
    e("K_T6:")
    e("  s_barrier")
    e("  v_lshlrev_b32 v5, 2, v12")
    e(f"  ds_read_b32 v168, v5 offset:{L_VEC}")
    e(f"  ds_read_b32 v169, v5 offset:{L_VEC+512}")
    e(f"  ds_read_b32 v170, v5 offset:{L_VEC+256}")
    e(f"  ds_read_b32 v171, v5 offset:{L_VEC+512+256}")
    e("  s_waitcnt lgkmcnt(0)")
    prod(WO, None, 180, 2)
    e(f"  s_lshl_b32 s75, s{SHEAD}, 13")
    e(f"  s_add_u32 s75, s75, {WS_SG}")
    reduce_store(L_SP, "K_T6B", SNO)
    if OPT["prof"] == 1: stamp(7)
    e("  s_cmp_ge_u32 s2, 8")
    e("  s_cbranch_scc1 K_END")
    e("  s_cmp_ge_u32 s3, 4")
    e("  s_cbranch_scc1 K_END")
    def gpoll(label, n, base):
        def iss(k):
            e(f"  s_mov_b32 s75, {base + k*8192}")
            e(f"  buffer_load_dwordx2 v[{16+2*k}:{17+2*k}], v10, s[{SWS}:{SWS+3}], s75 offen sc1")
        mpoll(label, n, iss, lambda k: [17+2*k], None)
        for k in range(1, n):
            e(f"  v_add_f32 v16, v16, v{16+2*k}")
    e("  v_and_b32 v5, 1, v2")
    e("  v_lshlrev_b32 v5, 11, v5")
    e("  v_lshl_add_u32 v5, v1, 2, v5")
    e(f"  s_lshl_b32 s76, s{SNC}, 8")
    e("  v_add_u32 v5, s76, v5")
    e("  v_lshlrev_b32 v10, 1, v5")
    e("  s_cmp_ge_u32 s3, 2")
    e("  s_cbranch_scc1 K_FG")
    e("  v_lshrrev_b32 v6, 1, v5")
    e(f"  buffer_load_ushort v4, v6, s[{SX}:{SX+3}], 0 offen")
    gpoll("K_P3", 32, WS_SG)
    round_bf16(16, 16)
    e("  s_barrier")
    e("  v_lshlrev_b32 v7, 2, v0")
    e(f"  ds_read_b32 v8, v7 offset:{L_GX}")
    e("  s_waitcnt lgkmcnt(0)")
    e("  v_mul_f32 v8, v8, v16")
    round_bf16(8, 8)
    e("  v_lshlrev_b32 v4, 16, v4")
    e("  v_add_f32 v8, v8, v4")
    e("  v_cvt_pk_bf16_f32 v8, v8, v8")
    e(f"  buffer_store_short v8, v6, s[{SOUT}:{SOUT+3}], 0 offen")
    e("  s_or_b32 s75, s2, s3")
    e("  s_cmp_lg_u32 s75, 0")
    e("  s_cbranch_scc1 K_END")
    e("  s_mov_b64 exec, 1")
    e(f"  v_mov_b32 v5, {WS_EP}")
    e("  v_mov_b32 v6, s26")
    e(f"  buffer_store_dword v6, v5, s[{SWS}:{SWS+3}], 0 offen")
    e("  s_branch K_END")
    e("K_FG:")
    gpoll("K_P4", 28, WS_GG)
    round_bf16(16, 16)
    e("  v_mul_f32 v5, 0xbfb8aa3b, v16")
    e("  v_exp_f32 v5, v5")
    e("  s_nop 0")
    e("  v_add_f32 v5, 1.0, v5")
    e("  v_rcp_f32 v5, v5")
    e("  s_nop 0")
    e("  v_mul_f32 v5, v5, v16")
    round_bf16(5, 5)
    e("  v_and_b32 v7, 127, v0")
    e("  v_lshlrev_b32 v7, 2, v7")
    e(f"  ds_write_b32 v7, v5 offset:{L_GX}")
    e("  s_waitcnt lgkmcnt(0)")
    e("  s_barrier")
    e("K_END:")
    dump_stamps()
    e("  s_endpgm")
    e('.section .rodata,"a"')
    e(".p2align 6")
    e(f".amdhsa_kernel {name}")
    e("  .amdhsa_next_free_vgpr 256")
    e("  .amdhsa_next_free_sgpr 102")
    e("  .amdhsa_accum_offset 256")
    e("  .amdhsa_group_segment_fixed_size 0")
    e("  .amdhsa_kernarg_size 88")
    e("  .amdhsa_user_sgpr_count 2")
    e("  .amdhsa_user_sgpr_kernarg_segment_ptr 1")
    e("  .amdhsa_system_sgpr_workgroup_id_x 1")
    e(".end_amdhsa_kernel")

def main():
    path = f"cdna_kernels/{NAME}.s"
    for a in sys.argv[1:]:
        if "=" in a:
            k, v = a.split("=", 1)
            OPT[k] = (" " + v if v else "") if k == "nt" else int(v)
        else:
            path = a
    e(HEADER.rstrip("\n"))
    e(f"; @launch grid=(256,1,1) block=(512,1,1) lds={LDS_SIZE}")
    e('.amdgcn_target "amdgcn-amd-amdhsa--gfx950"')
    gen()
    open(path, "w").write("\n".join(out) + "\n")

main()
```

```python
import sys

NAME = "recurrent_scan__gqa_block_cached__dense_activation_relu__decode"

HEADER = """; Kernarg layout for this problem (88 bytes, ptrs only, base s[0:1]):
;   offset   0: d_in[0] A_x  shape=(2, 1, 512) dtype=bfloat16 strides=(1024, 1024, 2) contiguous=True
;   offset   8: d_in[1] A_k_cache  shape=(2, 8, 32768, 128) dtype=bfloat16 strides=(67108864, 8388608, 256, 2) contiguous=True
;   offset  16: d_in[2] A_v_cache  shape=(2, 8, 32768, 128) dtype=bfloat16 strides=(67108864, 8388608, 256, 2) contiguous=True
;   offset  24: d_in[3] A_wq  shape=(512, 4096) dtype=bfloat16 strides=(8192, 2) contiguous=True
;   offset  32: d_in[4] A_wo  shape=(4096, 512) dtype=bfloat16 strides=(1024, 2) contiguous=True
;   offset  40: d_in[5] B_x  shape=(2, 1, 512) dtype=bfloat16 strides=(1024, 1024, 2) contiguous=True
;   offset  48: d_in[6] B_w1  shape=(512, 1792) dtype=bfloat16 strides=(3584, 2) contiguous=True
;   offset  56: d_in[7] B_w2  shape=(1792, 512) dtype=bfloat16 strides=(1024, 2) contiguous=True
"""

WS_Q = 0
WS_H = 16384
WS_ML = 32768
WS_O = 65536
WS_P = 1 << 20
WS_G = WS_P + 131072
WS_SIZE = 536870912
WS_QG = 2 << 20
WS_HG = WS_QG + 32768
WS_EP = WS_QG + 65536
WS_OG = 5 << 20
WS_MG = 6 << 20
WS_SG = WS_MG + 65536
WS_GG = 7 << 20

L_XN = 0
L_QP = 4096
L_Q = 5632
L_HV = 6656
L_CNT = 7168
L_O = 8192
L_ML = 24576
L_FP = 25600
L_VEC = 0
L_SP = 8192
L_GX = 1024
LDS_SIZE = 41984

OPT = dict(nt=" nt", sleep=1, prof=0, pre0=8, pace=8, bar0=1, wsc=0, thr=2, p2=1, ilv=0, kx=0, nbuf=2, nw=8)

out = []
def e(s=""):
    out.append(s)

def srd(dst, lo, hi, nbytes):
    e(f"  s_mov_b32 s{dst}, s{lo}")
    e(f"  s_and_b32 s{dst+1}, s{hi}, 0xffff")
    e(f"  s_mov_b32 s{dst+2}, {nbytes}")
    e(f"  s_mov_b32 s{dst+3}, 0x00020000")

def dpp_steps(regs, ctrls):
    for ctrl in ctrls:
        e("  s_nop 1")
        for r in regs:
            e(f"  v_add_f32_dpp v{r}, v{r}, v{r} {ctrl} row_mask:0xf bank_mask:0xf")

def swap_steps(regs, tmp):
    for sw in ["v_permlane16_swap_b32", "v_permlane32_swap_b32"]:
        for r, t in zip(regs, tmp):
            e(f"  v_mov_b32 v{t}, v{r}")
        e("  s_nop 1")
        for r, t in zip(regs, tmp):
            e(f"  {sw} v{r}, v{t}")
        e("  s_nop 1")
        for r, t in zip(regs, tmp):
            e(f"  v_add_f32 v{r}, v{r}, v{t}")

def wave_sum(regs, tmp):
    dpp_steps(regs, ["quad_perm:[1,0,3,2]", "quad_perm:[2,3,0,1]", "row_half_mirror", "row_mirror"])
    swap_steps(regs, tmp)

def round_bf16(dst, src):
    e(f"  v_cvt_pk_bf16_f32 v{dst}, v{src}, v{src}")
    e(f"  v_lshlrev_b32 v{dst}, 16, v{dst}")

WS_PROF = 4 << 20
def stamp(k):
    if not OPT["prof"]:
        return
    e("  s_memrealtime s[80:81]")
    e("  s_waitcnt lgkmcnt(0)")
    e(f"  s_mov_b32 s{92+k}, s80")

def dump_stamps():
    if not OPT["prof"]:
        return
    e("  s_cmp_ge_u32 s3, 2")
    e("  s_cbranch_scc1 K_END2")
    e("  s_cmp_ge_u32 s2, 256")
    e("  s_cbranch_scc1 K_END2")
    stamp(8)
    e("  s_lshl_b32 s82, s2, 1")
    e("  s_add_u32 s82, s82, s3")
    e("  s_lshl_b32 s82, s82, 6")
    e(f"  s_add_u32 s82, s82, {WS_PROF}")
    e("  s_mov_b64 exec, 1")
    e("  v_mov_b32 v6, 0")
    for k in range(9):
        e(f"  v_mov_b32 v5, s{92+k}")
        e(f"  buffer_store_dword v5, v6, s[{SWS}:{SWS+3}], s82 offen offset:{k*4}")
    e("K_END2:")

SX, SK, SV, SWQ, SW1, SWO, SW2, SWS, SDBG, SOUT = 28, 32, 36, 40, 44, 48, 52, 56, 60, 64
SC, SP0, SP1 = 68, 69, 70
IDXA, IDXB = 72, 73
SG, SR, SB, SSPL, SNC, SHEAD = 86, 87, 88, 89, 90, 91
SNO, SCG, SHC = 83, 84, 85

def poll(label, nlanes, voff, target, tmpv):
    e(f"  s_mov_b64 exec, {(1<<nlanes)-1:#x}")
    e("  s_mov_b32 s74, 0x400000")
    e(f"{label}:")
    e(f"  buffer_load_dword v{tmpv}, v{voff}, s[{SDBG}:{SDBG+3}], 0 offen sc1")
    e("  s_waitcnt vmcnt(0)")
    e(f"  v_cmp_ne_u32 vcc, {target}, v{tmpv}")
    e("  s_cmp_eq_u64 vcc, 0")
    e(f"  s_cbranch_scc1 {label}_DONE")
    if OPT["sleep"]:
        e(f"  s_sleep {OPT['sleep']}")
    e("  s_sub_u32 s74, s74, 1")
    e("  s_cmp_lg_u32 s74, 0")
    e(f"  s_cbranch_scc1 {label}")
    e(f"{label}_DONE:")
    e("  s_mov_b64 exec, -1")

def mpoll(label, n, issue, tags, thr):
    full = (1 << n) - 1
    e("  s_not_b32 s75, s26")
    for k in range(n):
        for x in tags(k):
            e(f"  v_mov_b32 v{x}, s75")
    e("  s_mov_b32 s77, 0")
    e("  s_mov_b32 s74, 0x100000")
    e(f"{label}:")
    for k in range(n):
        e(f"  s_bitcmp1_b32 s77, {k}")
        e(f"  s_cbranch_scc1 {label}S{k}")
        issue(k)
        e(f"{label}S{k}:")
    if thr is not None:
        e(f"  s_xor_b32 s75, s77, {full:#x}")
        e("  s_bcnt1_i32_b32 s75, s75")
        e(f"  s_cmp_le_u32 s75, {thr}")
        e(f"  s_cbranch_scc1 {label}F")
        e("  s_waitcnt vmcnt(0)")
        e(f"{label}F:")
    if OPT["sleep"]:
        e(f"  s_sleep {OPT['sleep']}")
    for k in range(n):
        t = tags(k)
        e(f"  v_cmp_eq_u32 vcc, s26, v{t[0]}")
        for x in t[1:]:
            e(f"  v_cmp_eq_u32 s[78:79], s26, v{x}")
            e("  s_and_b64 vcc, vcc, s[78:79]")
        e("  s_cmp_eq_u64 vcc, -1")
        e(f"  s_cselect_b32 s75, {1<<k:#x}, 0")
        e("  s_or_b32 s77, s77, s75")
    e(f"  s_cmp_eq_u32 s77, {full:#x}")
    e(f"  s_cbranch_scc1 {label}_DONE")
    e("  s_sub_u32 s74, s74, 1")
    e("  s_cmp_lg_u32 s74, 0")
    e(f"  s_cbranch_scc1 {label}")
    e(f"{label}_DONE:")
    e("  s_waitcnt vmcnt(0)")

def gen():
    nt = OPT["nt"]
    BS = 17 if OPT["ilv"] else 13
    name = NAME + "_kernel"
    e(".text")
    e(f".globl {name}")
    e(".p2align 8")
    e(f".type {name},@function")
    e(f"{name}:")
    KA, VA, KB, VB = 16, 48, 80, 112
    ACC = 144
    QF = 176
    ST = 192
    PF = 200
    TR = 204
    M_, L_, T0, T1, AL, MC = 236, 237, 238, 239, 240, 241
    VKOFF, VVOFF = 242, 243
    WO = 244
    W2 = 252
    e("  s_cmp_ge_u32 s2, 256")
    e("  s_cbranch_scc1 K_END2" if OPT["prof"] else "  s_cbranch_scc1 K_END")
    e("  s_load_dwordx16 s[4:19], s[0:1], 0")
    e("  s_load_dwordx4 s[20:23], s[0:1], 64")
    e("  s_load_dwordx2 s[24:25], s[0:1], 80")
    e("  v_and_b32 v1, 63, v0")
    e("  v_lshrrev_b32 v2, 6, v0")
    e("  v_and_b32 v3, 15, v1")
    e("  v_lshrrev_b32 v4, 4, v1")
    e("  v_readfirstlane_b32 s3, v2")
    e(f"  s_and_b32 s{SG}, s2, 7")
    e(f"  s_lshr_b32 s{SR}, s2, 3")
    e(f"  s_and_b32 s{SNO}, s{SR}, 7")
    e(f"  s_lshl_b32 s{SCG}, s{SG}, 5")
    e(f"  s_add_u32 s{SCG}, s{SCG}, s{SR}")
    e(f"  s_lshr_b32 s{SHC}, s{SR}, 3")
    e(f"  s_lshl_b32 s{SHC}, s{SHC}, 6")
    e(f"  s_lshl_b32 s74, s{SG}, 3")
    e(f"  s_add_u32 s{SHC}, s{SHC}, s74")
    e(f"  s_add_u32 s{SHC}, s{SHC}, s{SNO}")
    e(f"  s_lshr_b32 s{SB}, s{SR}, 4")
    e(f"  s_and_b32 s{SSPL}, s{SR}, 15")
    e(f"  s_and_b32 s{SNC}, s2, 7")
    e(f"  s_lshr_b32 s{SHEAD}, s{SR}, 3")
    e(f"  s_lshl_b32 s74, s{SG}, 2")
    e(f"  s_add_u32 s{SHEAD}, s{SHEAD}, s74")
    e(f"  s_lshl_b32 s74, s{SB}, 3")
    e(f"  s_add_u32 s74, s74, s{SG}")
    e("  s_lshl_b32 s74, s74, 23")
    e(f"  s_lshl_b32 s75, s{SSPL}, {13 if OPT['ilv'] else 19}")
    e("  s_add_u32 s74, s74, s75")
    e(f"  s_mov_b32 s{SC}, 0x3e0293ee")
    e(f"  s_mov_b32 s{SP0}, 0x05040100")
    e(f"  s_mov_b32 s{SP1}, 0x07060302")
    e("  s_lshl_b32 s75, s3, 1")
    e(f"  s_sub_u32 s{IDXA}, s75, 2")
    e(f"  s_sub_u32 s{IDXB}, s75, 1")
    if OPT["nbuf"] == 1:
        e(f"  s_sub_u32 s{IDXA}, s3, 1")
        if OPT["nw"] < 8:
            e(f"  s_cmp_ge_u32 s3, {OPT['nw']}")
            e(f"  s_cselect_b32 s{IDXA}, 64, s{IDXA}")
    e("  s_cmp_eq_u32 s3, 0")
    e(f"  s_cselect_b32 s{IDXA}, 64, s{IDXA}")
    e(f"  s_cselect_b32 s{IDXB}, 64, s{IDXB}")
    e("  v_and_b32 v5, 3, v3")
    e("  v_lshrrev_b32 v6, 2, v3")
    e("  v_lshl_add_u32 v5, v5, 2, v6")
    e("  v_lshlrev_b32 v5, 8, v5")
    e(f"  v_lshl_add_u32 v{VKOFF}, v4, 4, v5")
    e(f"  v_lshlrev_b32 v{VVOFF}, 4, v1")
    if OPT["kx"]:
        e(f"  v_lshlrev_b32 v{VKOFF}, 4, v1")
    e("  s_waitcnt lgkmcnt(0)")
    srd(SX, 4, 5, 2048)
    srd(SWQ, 10, 11, 512 * 4096 * 2)
    srd(SW1, 16, 17, 512 * 1792 * 2)
    srd(SWO, 12, 13, 4096 * 512 * 2)
    srd(SW2, 18, 19, 1792 * 512 * 2)
    srd(SWS, 24, 25, WS_SIZE)
    srd(SDBG, 22, 23, 256)
    srd(SOUT, 20, 21, 2048)
    e(f"  s_add_u32 s{SK}, s6, s74")
    e(f"  s_addc_u32 s{SK+1}, s7, 0")
    e(f"  s_and_b32 s{SK+1}, s{SK+1}, 0xffff")
    if OPT['ilv']:
        e(f"  s_lshl_b32 s75, s{SSPL}, 13")
        e(f"  s_sub_u32 s{SK+2}, {8<<20}, s75")
    else:
        e(f"  s_mov_b32 s{SK+2}, 524288")
    e(f"  s_mov_b32 s{SK+3}, 0x00020000")
    e(f"  s_add_u32 s{SV}, s8, s74")
    e(f"  s_addc_u32 s{SV+1}, s9, 0")
    e(f"  s_and_b32 s{SV+1}, s{SV+1}, 0xffff")
    e(f"  s_mov_b32 s{SV+2}, s{SK+2}")
    e(f"  s_mov_b32 s{SV+3}, 0x00020000")
    e("  s_movk_i32 s71, 4096")
    stamp(0)
    e(f"  v_mov_b32 v5, {WS_EP}")
    e(f"  buffer_load_dword v231, v5, s[{SWS}:{SWS+3}], 0 offen sc1")
    e("  v_lshlrev_b32 v5, 4, v1")
    e(f"  buffer_load_dwordx4 v[204:207], v5, s[{SX}:{SX+3}], 0 offen")
    e(f"  buffer_load_dwordx4 v[208:211], v5, s[{SX}:{SX+3}], 0 offen offset:1024")
    e("  v_lshrrev_b32 v6, 2, v0")
    e("  v_and_b32 v7, 3, v0")
    e("  v_lshlrev_b32 v8, 13, v6")
    e("  v_lshl_add_u32 v8, v7, 3, v8")
    e(f"  s_lshl_b32 s75, s{SCG}, 5")
    e("  v_add_u32 v8, s75, v8")
    for i in range(4):
        if i == 0:
            e(f"  buffer_load_dwordx2 v[212:213], v8, s[{SWQ}:{SWQ+3}], 0 offen")
        else:
            e(f"  v_add_u32 v8, 0x100000, v8")
            e(f"  buffer_load_dwordx2 v[{212+2*i}:{213+2*i}], v8, s[{SWQ}:{SWQ+3}], 0 offen")
    e("  v_lshrrev_b32 v9, 1, v0")
    e("  v_and_b32 v10, 1, v0")
    e("  s_movk_i32 s75, 3584")
    e("  v_mul_lo_u32 v11, v9, s75")
    e("  v_lshl_add_u32 v11, v10, 3, v11")
    e(f"  s_lshl_b32 s75, s{SHC}, 4")
    e("  v_add_u32 v11, s75, v11")
    e(f"  buffer_load_dwordx2 v[220:221], v11, s[{SW1}:{SW1+3}], 0 offen")
    e(f"  v_add_u32 v11, {256*3584}, v11")
    e(f"  buffer_load_dwordx2 v[222:223], v11, s[{SW1}:{SW1+3}], 0 offen")

    def kchunk_l(KR, vo):
        r=[]
        if OPT["kx"]:
            for j in range(8):
                so = "0" if j < 4 else "s71"
                r.append(f"  buffer_load_dwordx4 v[{KR+4*j}:{KR+4*j+3}], v{vo}, s[{SK}:{SK+3}], {so} offen offset:{(j&3)*1024}{nt}")
            return r
        for t in range(2):
            for i in range(4):
                so = "0" if t == 0 else "s71"
                r.append(f"  buffer_load_dwordx4 v[{KR+16*t+4*i}:{KR+16*t+4*i+3}], v{vo}, s[{SK}:{SK+3}], {so} offen offset:{i*64}{nt}")
        return r
    def vchunk_l(VR, vo):
        r=[]
        for j in range(8):
            so = "0" if j < 4 else "s71"
            r.append(f"  buffer_load_dwordx4 v[{VR+4*j}:{VR+4*j+3}], v{vo}, s[{SV}:{SV+3}], {so} offen offset:{(j&3)*1024}{nt}")
        return r
    def kchunk(KR, vo):
        for l in kchunk_l(KR, vo): e(l)
    def vchunk(VR, vo):
        for l in vchunk_l(VR, vo): e(l)
    def loads(KR, VR, sidx):
        e(f"  s_lshl_b32 s75, s{sidx}, {BS}")
        e(f"  v_add_u32 v5, s75, v{VKOFF}")
        e(f"  v_add_u32 v6, s75, v{VVOFF}")
        kchunk(KR, 5)
        vchunk(VR, 6)
    def wo_loads():
        e("  v_lshlrev_b32 v14, 10, v12")
        e("  v_lshl_add_u32 v14, v13, 4, v14")
        e(f"  s_lshl_b32 s75, s{SNO}, 7")
        e("  v_add_u32 v15, s75, v14")
        e(f"  s_lshl_b32 s75, s{SHEAD}, 17")
        e("  v_add_u32 v15, s75, v15")
        e(f"  buffer_load_dwordx4 v[{WO}:{WO+3}], v15, s[{SWO}:{SWO+3}], 0 offen")
        e("  v_add_u32 v15, 0x10000, v15")
        e(f"  buffer_load_dwordx4 v[{WO+4}:{WO+7}], v15, s[{SWO}:{SWO+3}], 0 offen")
        e("  s_lshr_b32 s75, s2, 3")
        e("  s_lshl_b32 s75, s75, 16")
        e("  v_add_u32 v15, s75, v14")
        e(f"  s_lshl_b32 s75, s{SNC}, 7")
        e("  v_add_u32 v15, s75, v15")
        e(f"  buffer_load_dwordx4 v[{W2}:{W2+3}], v15, s[{SW2}:{SW2+3}], 0 offen")
    e("  v_lshrrev_b32 v12, 3, v0")
    e("  v_and_b32 v13, 7, v0")
    e(f"  s_lshl_b32 s75, s{IDXA}, {BS}")
    e(f"  v_add_u32 v224, s75, v{VKOFF}")
    e(f"  v_add_u32 v225, s75, v{VVOFF}")
    e(f"  s_lshl_b32 s75, s{IDXB}, {BS}")
    e(f"  v_add_u32 v226, s75, v{VKOFF}")
    e(f"  v_add_u32 v227, s75, v{VVOFF}")
    pl = kchunk_l(KA, 224) + vchunk_l(VA, 225) + kchunk_l(KB, 226) + vchunk_l(VB, 227)
    if OPT["nbuf"] == 1: pl = pl[:16]
    PRE0 = OPT["pre0"]
    if OPT["bar0"]:
        e("  s_barrier")
    for c in range(PRE0):
        e(pl[c])
    X = 144
    e(f"  s_waitcnt vmcnt({6+PRE0})")
    e("  v_readfirstlane_b32 s26, v231")
    e("  s_add_u32 s26, s26, 1")
    if OPT["prof"] == 2: stamp(4)
    for b in range(2):
        for c in range(4):
            e(f"  v_lshlrev_b32 v{X+8*b+2*c}, 16, v{204+4*b+c}")
            e(f"  v_and_b32 v{X+1+8*b+2*c}, 0xffff0000, v{204+4*b+c}")
    for b in range(2):
        e(f"  v_add_f32 v{160+b}, v{X+8*b}, v{X+1+8*b}")
        for c in range(2, 8):
            e(f"  v_add_f32 v{160+b}, v{160+b}, v{X+8*b+c}")
    wave_sum([160, 161], [162, 163])
    e("  v_mul_f32 v160, 0x3b000000, v160")
    e("  v_mul_f32 v161, 0x3b000000, v161")
    for b in range(2):
        e(f"  v_sub_f32 v166, v{X+8*b}, v{160+b}")
        e(f"  v_mul_f32 v{164+b}, v166, v166")
        for c in range(1, 8):
            e(f"  v_sub_f32 v166, v{X+8*b+c}, v{160+b}")
            e(f"  v_fmac_f32 v{164+b}, v166, v166")
    wave_sum([164, 165], [162, 163])
    e("  v_mul_f32 v164, 0x3b000000, v164")
    e("  v_mul_f32 v165, 0x3b000000, v165")
    for b in range(2):
        round_bf16(164 + b, 164 + b)
        e(f"  v_add_f32 v{164+b}, 0x3727c5ac, v{164+b}")
        round_bf16(164 + b, 164 + b)
        e(f"  v_sqrt_f32 v{164+b}, v{164+b}")
        e("  s_nop 0")
        round_bf16(164 + b, 164 + b)
        e(f"  v_rcp_f32 v{164+b}, v{164+b}")
        round_bf16(160 + b, 160 + b)
    for b in range(2):
        for c in range(8):
            r = X + 8 * b + c
            e(f"  v_sub_f32 v{r}, v{r}, v{160+b}")
            round_bf16(r, r)
            e(f"  v_mul_f32 v{r}, v{r}, v{164+b}")
            round_bf16(r, r)
    e("  v_lshlrev_b32 v5, 6, v1")
    for c in range(0, 8, 2):
        e(f"  v_mov_b32 v{168+2*c}, v{X+c}")
        e(f"  v_mov_b32 v{169+2*c}, v{X+8+c}")
        e(f"  v_mov_b32 v{170+2*c}, v{X+c+1}")
        e(f"  v_mov_b32 v{171+2*c}, v{X+8+c+1}")
        e(f"  ds_write_b128 v5, v[{168+2*c}:{171+2*c}] offset:{L_XN + c*8}")
    e("  s_waitcnt lgkmcnt(0)")
    e("  v_lshrrev_b32 v5, 2, v0")
    e("  v_lshlrev_b32 v5, 3, v5")
    e("  v_lshlrev_b32 v6, 3, v9")
    for i in range(4):
        e(f"  ds_read_b64 v[{168+2*i}:{169+2*i}], v5 offset:{L_XN + i*1024}")
    for i in range(2):
        e(f"  ds_read_b64 v[{176+2*i}:{177+2*i}], v6 offset:{L_XN + i*2048}")
    for r in range(180, 196):
        e(f"  v_mov_b32 v{r}, 0")
    if OPT["prof"] == 2: stamp(5)
    e(f"  s_waitcnt vmcnt({PRE0}) lgkmcnt(0)")
    if OPT["prof"] == 2: stamp(6)
    for i in range(4):
        for c in range(2):
            w = 212 + 2 * i + c
            e(f"  v_lshlrev_b32 v160, 16, v{w}")
            e(f"  v_and_b32 v161, 0xffff0000, v{w}")
            e(f"  v_fmac_f32 v{180+2*c}, v160, v{168+2*i}")
            e(f"  v_fmac_f32 v{181+2*c}, v161, v{168+2*i}")
            e(f"  v_fmac_f32 v{184+2*c}, v160, v{169+2*i}")
            e(f"  v_fmac_f32 v{185+2*c}, v161, v{169+2*i}")
    for i in range(2):
        for c in range(2):
            w = 220 + 2 * i + c
            e(f"  v_lshlrev_b32 v160, 16, v{w}")
            e(f"  v_and_b32 v161, 0xffff0000, v{w}")
            e(f"  v_fmac_f32 v{188+2*c}, v160, v{176+2*i}")
            e(f"  v_fmac_f32 v{189+2*c}, v161, v{176+2*i}")
            e(f"  v_fmac_f32 v{192+2*c}, v160, v{177+2*i}")
            e(f"  v_fmac_f32 v{193+2*c}, v161, v{177+2*i}")
    dpp_steps(list(range(188, 196)), ["quad_perm:[2,3,0,1]"])
    dpp_steps(list(range(180, 196)), ["row_ror:4", "row_ror:8"])
    swap_steps(list(range(180, 196)), list(range(204, 220)))
    e("  s_mul_i32 s75, s3, 192")
    e("  v_lshlrev_b32 v5, 4, v1")
    e("  v_add_u32 v5, s75, v5")
    e("  s_mov_b64 exec, 0xf")
    e(f"  ds_write_b128 v5, v[180:183] offset:{L_QP}")
    e(f"  ds_write_b128 v5, v[184:187] offset:{L_QP+64}")
    e("  s_mov_b64 exec, 0x3")
    e(f"  ds_write_b128 v5, v[188:191] offset:{L_QP+128}")
    e(f"  ds_write_b128 v5, v[192:195] offset:{L_QP+160}")
    e("  s_mov_b64 exec, -1")
    e("  s_waitcnt lgkmcnt(0)")
    if OPT["prof"] == 2: stamp(7)
    e("  s_barrier")
    e("  s_cmp_eq_u32 s3, 0")
    e("  s_cbranch_scc1 K_SRV")
    for c in range(PRE0, len(pl)):
        if OPT["pace"]:
            e(f"  s_waitcnt vmcnt({OPT['pace']-1})")
        e(pl[c])
    wo_loads()
    e("  s_branch K_B2")
    e("K_SRV:")
    e("  v_lshlrev_b32 v5, 3, v1")
    e("  s_mov_b64 exec, 0xffffff")
    for w in range(8):
        e(f"  ds_read_b64 v[{160+2*w}:{161+2*w}], v5 offset:{L_QP + w*192}")
    e("  v_lshrrev_b32 v6, 3, v1")
    e("  v_lshlrev_b32 v6, 14, v6")
    e("  v_and_b32 v7, 7, v1")
    e("  v_lshl_add_u32 v6, v7, 3, v6")
    stamp(1)
    e(f"  s_lshl_b32 s75, s{SCG}, 6")
    e(f"  s_add_u32 s75, s75, {WS_QG}")
    e("  v_add_u32 v6, s75, v6")
    e("  v_bfe_u32 v7, v1, 2, 1")
    e("  s_movk_i32 s75, 7168")
    e("  v_mul_lo_u32 v7, v7, s75")
    e("  v_and_b32 v8, 3, v1")
    e("  v_lshl_add_u32 v7, v8, 3, v7")
    e(f"  s_lshl_b32 s75, s{SHC}, 5")
    e(f"  s_add_u32 s75, s75, {WS_HG}")
    e("  v_add_u32 v7, s75, v7")
    e("  v_cmp_gt_u32 vcc, 16, v1")
    e("  v_cndmask_b32 v6, v7, v6, vcc")
    e("  s_waitcnt lgkmcnt(0)")
    for w in range(1, 8):
        e(f"  v_add_f32 v160, v160, v{160+2*w}")
        e(f"  v_add_f32 v161, v161, v{161+2*w}")
    e("  v_max_f32 v162, 0, v160")
    e("  v_max_f32 v163, 0, v161")
    e("  v_cndmask_b32 v160, v162, v160, vcc")
    e("  v_cndmask_b32 v161, v163, v161, vcc")
    e("  v_cvt_pk_bf16_f32 v160, v160, v161")
    e("  v_mov_b32 v161, s26")
    e("  s_mov_b32 s77, 0xffff")
    e(f"  s_cmp_lt_u32 s{SHC}, 224")
    e("  s_cselect_b32 s76, 0xffffff, s77")
    e("  s_mov_b32 exec_lo, s76")
    e(f"  buffer_store_dwordx2 v[160:161], v6, s[{SWS}:{SWS+3}], 0 offen sc1")
    e("  s_mov_b64 exec, -1")
    stamp(2)
    e(f"  s_lshl_b32 s75, s{SB}, 14")
    e(f"  s_lshl_b32 s76, s{SG}, 11")
    e("  s_add_u32 s75, s75, s76")
    e(f"  s_add_u32 s75, s75, {WS_QG}")
    e("  v_lshlrev_b32 v5, 5, v1")
    e("  v_add_u32 v5, s75, v5")
    e("  v_lshrrev_b32 v6, 5, v1")
    e("  s_movk_i32 s75, 7168")
    e("  v_mul_lo_u32 v7, v6, s75")
    e("  v_and_b32 v8, 31, v1")
    e("  v_lshl_add_u32 v7, v8, 3, v7")
    e("  s_lshr_b32 s75, s2, 3")
    e("  s_lshl_b32 s75, s75, 8")
    e(f"  s_add_u32 s75, s75, {WS_HG}")
    e("  v_add_u32 v7, s75, v7")
    e("  s_mov_b32 s74, 0x400000")
    e("K_P1:")
    e(f"  buffer_load_dwordx4 v[160:163], v5, s[{SWS}:{SWS+3}], 0 offen sc1")
    e(f"  buffer_load_dwordx4 v[164:167], v5, s[{SWS}:{SWS+3}], 0 offen offset:16 sc1")
    e(f"  buffer_load_dwordx2 v[168:169], v7, s[{SWS}:{SWS+3}], 0 offen sc1")
    e("  s_waitcnt vmcnt(0)")
    e("  v_cmp_ne_u32 vcc, s26, v161")
    e("  v_cmp_ne_u32 s[76:77], s26, v163")
    e("  s_or_b64 vcc, vcc, s[76:77]")
    e("  v_cmp_ne_u32 s[76:77], s26, v165")
    e("  s_or_b64 vcc, vcc, s[76:77]")
    e("  v_cmp_ne_u32 s[76:77], s26, v167")
    e("  s_or_b64 vcc, vcc, s[76:77]")
    e("  s_cmp_ge_u32 s2, 224")
    e("  s_cbranch_scc1 K_P1C")
    e("  v_cmp_ne_u32 s[76:77], s26, v169")
    e("  s_or_b64 vcc, vcc, s[76:77]")
    e("K_P1C:")
    e("  s_cmp_eq_u64 vcc, 0")
    e("  s_cbranch_scc1 K_P1_DONE")
    if OPT["sleep"]:
        e(f"  s_sleep {OPT['sleep']}")
    e("  s_sub_u32 s74, s74, 1")
    e("  s_cmp_lg_u32 s74, 0")
    e("  s_cbranch_scc1 K_P1")
    e("K_P1_DONE:")
    stamp(3)
    e("  v_mov_b32 v161, v162")
    e("  v_mov_b32 v162, v164")
    e("  v_mov_b32 v163, v166")
    e("  v_lshlrev_b32 v5, 4, v1")
    e(f"  ds_write_b128 v5, v[160:163] offset:{L_Q}")
    e("  v_lshlrev_b32 v164, 16, v168")
    e("  v_and_b32 v165, 0xffff0000, v168")
    e("  v_lshlrev_b32 v5, 3, v1")
    e(f"  ds_write_b64 v5, v[164:165] offset:{L_HV}")
    e(f"  s_mov_b32 s{IDXA}, {14 if OPT['nbuf']==2 else OPT['nw']-1}")
    e(f"  s_mov_b32 s{IDXB}, 15")
    e(f"  v_mov_b32 v9, {16 if OPT['nbuf']==2 else OPT['nw']}")
    e(f"  v_mov_b32 v10, {L_CNT}")
    e("  ds_write_b32 v10, v9")
    wo_loads()
    loads(KA, VA, IDXA)
    if OPT["nbuf"] == 2: loads(KB, VB, IDXB)
    e("  s_waitcnt lgkmcnt(0)")
    e("K_B2:")
    e("  s_barrier")
    e("  v_and_b32 v5, 3, v3")
    e("  v_lshlrev_b32 v5, 8, v5")
    e("  v_lshl_add_u32 v5, v4, 4, v5")
    for i in range(4):
        e(f"  ds_read_b128 v[{QF+4*i}:{QF+4*i+3}], v5 offset:{L_Q + i*64}")
    for r in range(32):
        e(f"  v_mov_b32 v{ACC+r}, 0")
    e(f"  v_mov_b32 v{M_}, 0xf149f2ca")
    e(f"  v_mov_b32 v{L_}, 0")
    e(f"  v_mov_b32 v7, {L_CNT}")
    e("  v_mov_b32 v8, 1")
    e("  s_waitcnt lgkmcnt(0)")

    def compute(KR, VR, vk, vv):
        e(f"  s_waitcnt vmcnt({vk})")
        for t in range(2):
            for i in range(4):
                c = "0" if i == 0 else f"v[{ST+4*t}:{ST+4*t+3}]"
                e(f"  v_mfma_f32_16x16x32_bf16 v[{ST+4*t}:{ST+4*t+3}], v[{KR+16*t+4*i}:{KR+16*t+4*i+3}], v[{QF+4*i}:{QF+4*i+3}], {c}")
        e("  s_nop 7")
        e("  s_nop 0")
        e(f"  v_max3_f32 v{T0}, v{ST}, v{ST+1}, v{ST+2}")
        e(f"  v_max3_f32 v{T1}, v{ST+3}, v{ST+4}, v{ST+5}")
        e(f"  v_max3_f32 v{T0}, v{T0}, v{ST+6}, v{ST+7}")
        e(f"  v_max_f32 v{T0}, v{T0}, v{T1}")
        e(f"  v_mov_b32 v{T1}, v{T0}")
        e("  s_nop 1")
        e(f"  v_permlane16_swap_b32 v{T0}, v{T1}")
        e("  s_nop 1")
        e(f"  v_max_f32 v{T0}, v{T0}, v{T1}")
        e(f"  v_mov_b32 v{T1}, v{T0}")
        e("  s_nop 1")
        e(f"  v_permlane32_swap_b32 v{T0}, v{T1}")
        e("  s_nop 1")
        e(f"  v_max3_f32 v{T0}, v{T0}, v{T1}, v{M_}")
        e(f"  v_sub_f32 v{AL}, v{M_}, v{T0}")
        e(f"  v_mul_f32 v{AL}, s{SC}, v{AL}")
        e(f"  v_exp_f32 v{AL}, v{AL}")
        e(f"  v_mov_b32 v{M_}, v{T0}")
        e(f"  v_mul_f32 v{MC}, s{SC}, v{T0}")
        for k in range(8):
            e(f"  v_fma_f32 v{ST+k}, v{ST+k}, s{SC}, -v{MC}")
        for k in range(8):
            e(f"  v_exp_f32 v{ST+k}, v{ST+k}")
        e("  s_nop 0")
        e(f"  v_mul_f32 v{L_}, v{L_}, v{AL}")
        for k in range(8):
            e(f"  v_add_f32 v{L_}, v{L_}, v{ST+k}")
        for q in range(4):
            e(f"  v_cvt_pk_bf16_f32 v{PF+q}, v{ST+2*q}, v{ST+2*q+1}")
        for r in range(32):
            e(f"  v_mul_f32 v{ACC+r}, v{ACC+r}, v{AL}")
        e(f"  s_waitcnt vmcnt({vv})")
        for t in range(8):
            c = t >> 1
            sel = f"s{SP1}" if (t & 1) else f"s{SP0}"
            for q in range(4):
                e(f"  v_perm_b32 v{TR+4*t+q}, v{VR+4*(2*q+1)+c}, v{VR+4*(2*q)+c}, {sel}")
        e("  s_nop 1")
        for t in range(8):
            e(f"  v_mfma_f32_16x16x32_bf16 v[{ACC+4*t}:{ACC+4*t+3}], v[{TR+4*t}:{TR+4*t+3}], v[{PF}:{PF+3}], v[{ACC+4*t}:{ACC+4*t+3}]")

    def fetch():
        e("  s_mov_b64 exec, 1")
        e("  ds_add_rtn_u32 v9, v7, v8")
        e("  s_mov_b64 exec, -1")
    def getidx(sidx):
        e("  s_waitcnt lgkmcnt(0)")
        e(f"  v_readfirstlane_b32 s{sidx}, v9")

    if OPT["nw"] < 8:
        e(f"  s_cmp_ge_u32 s3, {OPT['nw']}")
        e("  s_cbranch_scc1 K_EXIT")
    e("K_LOOP:")
    if OPT["nbuf"] == 2:
        fetch()
        compute(KA, VA, 24, 16)
        getidx(IDXA)
        loads(KA, VA, IDXA)
        e(f"  s_cmp_ge_u32 s{IDXB}, 64")
        e("  s_cbranch_scc1 K_EXIT")
        fetch()
        compute(KB, VB, 24, 16)
        getidx(IDXB)
        loads(KB, VB, IDXB)
        e(f"  s_cmp_lt_u32 s{IDXA}, 64")
        e("  s_cbranch_scc1 K_LOOP")
    else:
        fetch()
        compute(KA, VA, 8, 0)
        getidx(IDXA)
        loads(KA, VA, IDXA)
        e(f"  s_cmp_lt_u32 s{IDXA}, 64")
        e("  s_cbranch_scc1 K_LOOP")
    e("K_EXIT:")
    if OPT["prof"] == 1: stamp(4)
    e(f"  v_mov_b32 v{T1}, v{L_}")
    e("  s_nop 1")
    e(f"  v_permlane16_swap_b32 v{L_}, v{T1}")
    e("  s_nop 1")
    e(f"  v_add_f32 v{L_}, v{L_}, v{T1}")
    e(f"  v_mov_b32 v{T1}, v{L_}")
    e("  s_nop 1")
    e(f"  v_permlane32_swap_b32 v{L_}, v{T1}")
    e("  s_nop 1")
    e(f"  v_add_f32 v{L_}, v{L_}, v{T1}")
    e("  v_cmp_gt_u32 vcc, 4, v3")
    e("  s_and_saveexec_b64 s[78:79], vcc")
    e("  v_lshlrev_b32 v5, 11, v2")
    e("  v_lshl_add_u32 v5, v3, 9, v5")
    e("  v_lshl_add_u32 v5, v4, 7, v5")
    e("  s_nop 4")
    for t in range(8):
        for r in range(4):
            e(f"  ds_write_b32 v5, v{ACC+4*t+r} offset:{L_O + (r*8+t)*4}")
    e("  v_cmp_gt_u32 vcc, 4, v1")
    e("  s_and_b64 exec, exec, vcc")
    e("  v_lshlrev_b32 v6, 5, v2")
    e("  v_lshl_add_u32 v6, v3, 3, v6")
    e(f"  ds_write_b32 v6, v{M_} offset:{L_ML}")
    e(f"  ds_write_b32 v6, v{L_} offset:{L_ML+4}")
    e("  s_mov_b64 exec, s[78:79]")
    e("  s_waitcnt lgkmcnt(0)")
    e("  s_barrier")
    e("  v_lshrrev_b32 v5, 7, v0")
    e("  v_and_b32 v6, 127, v0")
    e("  v_lshlrev_b32 v7, 3, v5")
    for w in range(8):
        e(f"  ds_read_b64 v[{160+2*w}:{161+2*w}], v7 offset:{L_ML + w*32}")
    e("  v_lshlrev_b32 v8, 9, v5")
    e("  v_lshl_add_u32 v8, v6, 2, v8")
    for w in range(8):
        e(f"  ds_read_b32 v{176+w}, v8 offset:{L_O + w*2048}")
    e("  s_waitcnt lgkmcnt(0)")
    e("  v_max3_f32 v184, v160, v162, v164")
    e("  v_max3_f32 v185, v166, v168, v170")
    e("  v_max3_f32 v184, v184, v172, v174")
    e("  v_max_f32 v184, v184, v185")
    e("  v_mov_b32 v186, 0")
    e("  v_mov_b32 v187, 0")
    for w in range(8):
        e(f"  v_sub_f32 v185, v{160+2*w}, v184")
        e(f"  v_mul_f32 v185, s{SC}, v185")
        e("  v_exp_f32 v185, v185")
        e("  s_nop 0")
        e(f"  v_fmac_f32 v186, v185, v{161+2*w}")
        e(f"  v_fmac_f32 v187, v185, v{176+w}")
    e(f"  s_lshl_b32 s75, s{SB}, 5")
    e(f"  s_lshl_b32 s76, s{SG}, 2")
    e("  s_add_u32 s75, s75, s76")
    e("  s_lshl_b32 s75, s75, 4")
    e(f"  s_add_u32 s75, s75, s{SSPL}")
    e("  v_lshlrev_b32 v7, 4, v5")
    e("  v_add_u32 v7, s75, v7")
    e("  v_lshlrev_b32 v8, 10, v7")
    e("  v_lshl_add_u32 v8, v6, 3, v8")
    e(f"  s_mov_b32 s75, {WS_OG}")
    e("  v_mov_b32 v188, v187")
    e("  v_mov_b32 v189, s26")
    e(f"  buffer_store_dwordx2 v[188:189], v8, s[{SWS}:{SWS+3}], s75 offen sc1")
    e("  v_cmp_eq_u32 vcc, 0, v6")
    e("  s_and_saveexec_b64 s[78:79], vcc")
    e("  v_lshlrev_b32 v7, 4, v7")
    e("  v_mov_b32 v185, v186")
    e("  v_mov_b32 v186, s26")
    e(f"  s_mov_b32 s75, {WS_MG}")
    e(f"  buffer_store_dwordx3 v[184:186], v7, s[{SWS}:{SWS+3}], s75 offen sc1")
    e("  s_mov_b64 exec, s[78:79]")
    if OPT["prof"] == 1: stamp(5)

    def prod(wregs, vecaddr_rows, accbase, nrows):
        for r in range(16):
            e(f"  v_mov_b32 v{accbase+r}, 0")
        for i in range(nrows):
            for c in range(4):
                w = wregs + 4 * i + c
                e(f"  v_lshlrev_b32 v160, 16, v{w}")
                e(f"  v_and_b32 v161, 0xffff0000, v{w}")
                e(f"  v_fmac_f32 v{accbase+2*c}, v160, v{168+2*i}")
                e(f"  v_fmac_f32 v{accbase+1+2*c}, v161, v{168+2*i}")
                e(f"  v_fmac_f32 v{accbase+8+2*c}, v160, v{169+2*i}")
                e(f"  v_fmac_f32 v{accbase+9+2*c}, v161, v{169+2*i}")
        dpp_steps(list(range(accbase, accbase + 16)), ["row_ror:8"])

    def reduce_store(lbase, label, snc):
        e("  v_lshlrev_b32 v5, 2, v2")
        e("  v_add_u32 v5, v5, v4")
        e("  v_lshlrev_b32 v5, 9, v5")
        e("  v_and_b32 v6, 7, v1")
        e("  v_lshl_add_u32 v5, v6, 5, v5")
        e("  v_and_b32 v6, 8, v1")
        e("  v_cmp_eq_u32 vcc, 0, v6")
        e("  s_and_saveexec_b64 s[78:79], vcc")
        e(f"  ds_write_b128 v5, v[180:183] offset:{lbase}")
        e(f"  ds_write_b128 v5, v[184:187] offset:{lbase+16}")
        e(f"  ds_write_b128 v5, v[188:191] offset:{lbase+256}")
        e(f"  ds_write_b128 v5, v[192:195] offset:{lbase+256+16}")
        e("  s_mov_b64 exec, s[78:79]")
        e("  s_waitcnt lgkmcnt(0)")
        e("  s_barrier")
        e("  s_cmp_ge_u32 s3, 2")
        e(f"  s_cbranch_scc1 {label}")
        e("  v_lshlrev_b32 v5, 2, v0")
        for p in range(32):
            e(f"  ds_read_b32 v{204+p}, v5 offset:{lbase + p*512}")
        e("  s_waitcnt lgkmcnt(0)")
        for p in range(1, 31, 2):
            e(f"  v_add_f32 v{204+p}, v{204+p}, v{205+p}")
        e("  v_add_f32 v204, v204, v235")
        for p in range(1, 31, 2):
            e(f"  v_add_f32 v204, v204, v{204+p}")
        e("  v_lshlrev_b32 v5, 12, v2")
        e("  v_lshl_add_u32 v5, v1, 3, v5")
        e(f"  s_lshl_b32 s76, s{snc}, 9")
        e(f"  s_add_u32 s75, s75, s76")
        e("  v_mov_b32 v205, s26")
        e(f"  buffer_store_dwordx2 v[204:205], v5, s[{SWS}:{SWS+3}], s75 offen sc1")
        e(f"{label}:")

    e("  s_cmp_ge_u32 s2, 224")
    e("  s_cbranch_scc1 K_T4")
    e("  v_lshlrev_b32 v5, 2, v12")
    e(f"  ds_read_b32 v168, v5 offset:{L_HV}")
    e(f"  ds_read_b32 v169, v5 offset:{L_HV+256}")
    e("  s_waitcnt lgkmcnt(0)")
    prod(W2, None, 180, 1)
    e("  s_lshr_b32 s75, s2, 3")
    e("  s_lshl_b32 s75, s75, 13")
    e(f"  s_add_u32 s75, s75, {WS_GG}")
    reduce_store(L_FP, "K_T3B", SNC)
    e("K_T4:")
    e("  s_cmp_ge_u32 s3, 4")
    e("  s_cbranch_scc1 K_T6")
    e("  v_lshrrev_b32 v6, 7, v0")
    e("  v_and_b32 v7, 127, v0")
    e("  v_lshlrev_b32 v8, 5, v6")
    e(f"  v_add_u32 v8, s{SHEAD}, v8")
    e("  v_lshlrev_b32 v9, 8, v8")
    e("  v_lshlrev_b32 v10, 14, v8")
    e("  v_lshl_add_u32 v10, v7, 3, v10")
    e(f"  s_mov_b32 s76, {WS_MG}")
    def iss2(sp):
        e(f"  s_mov_b32 s75, {WS_OG + 4096*(sp>>2)}")
        bits = {0:"", 1:" sc1", 2:" sc0", 3:" sc0 sc1", 4:" nt", 5:" sc0 nt"}[OPT["p2"]]
        e(f"  buffer_load_dwordx2 v[{16+2*sp}:{17+2*sp}], v10, s[{SWS}:{SWS+3}], s75 offen offset:{(sp&3)*1024}{bits}")
        e(f"  buffer_load_dwordx3 v[{48+4*sp}:{50+4*sp}], v9, s[{SWS}:{SWS+3}], s76 offen offset:{sp*16}{bits}")
    mpoll("K_P2", 16, iss2, lambda sp: [17+2*sp, 50+4*sp], OPT["thr"])
    if OPT["prof"] == 1: stamp(6)
    M = lambda sp: 48+4*sp
    e(f"  v_max3_f32 v112, v{M(0)}, v{M(1)}, v{M(2)}")
    for sp in range(3, 15, 2):
        e(f"  v_max3_f32 v112, v112, v{M(sp)}, v{M(sp+1)}")
    e(f"  v_max_f32 v112, v112, v{M(15)}")
    e("  v_mov_b32 v113, 0")
    e("  v_mov_b32 v114, 0")
    for sp in range(16):
        e(f"  v_sub_f32 v{M(sp)}, v{M(sp)}, v112")
        e(f"  v_mul_f32 v{M(sp)}, s{SC}, v{M(sp)}")
        e(f"  v_exp_f32 v{M(sp)}, v{M(sp)}")
    e("  s_nop 0")
    for sp in range(16):
        e(f"  v_fmac_f32 v113, v{M(sp)}, v{M(sp)+1}")
        e(f"  v_fmac_f32 v114, v{M(sp)}, v{16+2*sp}")
    e("  v_mov_b32 v49, v113")
    e("  v_mov_b32 v50, v114")
    e("  v_rcp_f32 v49, v49")
    e("  s_nop 0")
    e("  v_mul_f32 v50, v50, v49")
    round_bf16(50, 50)
    e("  v_lshlrev_b32 v8, 2, v0")
    e(f"  ds_write_b32 v8, v50 offset:{L_VEC}")
    e("  s_waitcnt lgkmcnt(0)")
    e("K_T6:")
    e("  s_barrier")
    e("  v_lshlrev_b32 v5, 2, v12")
    e(f"  ds_read_b32 v168, v5 offset:{L_VEC}")
    e(f"  ds_read_b32 v169, v5 offset:{L_VEC+512}")
    e(f"  ds_read_b32 v170, v5 offset:{L_VEC+256}")
    e(f"  ds_read_b32 v171, v5 offset:{L_VEC+512+256}")
    e("  s_waitcnt lgkmcnt(0)")
    prod(WO, None, 180, 2)
    e(f"  s_lshl_b32 s75, s{SHEAD}, 13")
    e(f"  s_add_u32 s75, s75, {WS_SG}")
    reduce_store(L_SP, "K_T6B", SNO)
    if OPT["prof"] == 1: stamp(7)
    e("  s_cmp_ge_u32 s2, 8")
    e("  s_cbranch_scc1 K_END")
    e("  s_cmp_ge_u32 s3, 4")
    e("  s_cbranch_scc1 K_END")
    def gpoll(label, n, base):
        def iss(k):
            e(f"  s_mov_b32 s75, {base + k*8192}")
            e(f"  buffer_load_dwordx2 v[{16+2*k}:{17+2*k}], v10, s[{SWS}:{SWS+3}], s75 offen sc1")
        mpoll(label, n, iss, lambda k: [17+2*k], None)
        for k in range(1, n):
            e(f"  v_add_f32 v16, v16, v{16+2*k}")
    e("  v_and_b32 v5, 1, v2")
    e("  v_lshlrev_b32 v5, 11, v5")
    e("  v_lshl_add_u32 v5, v1, 2, v5")
    e(f"  s_lshl_b32 s76, s{SNC}, 8")
    e("  v_add_u32 v5, s76, v5")
    e("  v_lshlrev_b32 v10, 1, v5")
    e("  s_cmp_ge_u32 s3, 2")
    e("  s_cbranch_scc1 K_FG")
    e("  v_lshrrev_b32 v6, 1, v5")
    e(f"  buffer_load_ushort v4, v6, s[{SX}:{SX+3}], 0 offen")
    gpoll("K_P3", 32, WS_SG)
    round_bf16(16, 16)
    e("  s_barrier")
    e("  v_lshlrev_b32 v7, 2, v0")
    e(f"  ds_read_b32 v8, v7 offset:{L_GX}")
    e("  s_waitcnt lgkmcnt(0)")
    e("  v_mul_f32 v8, v8, v16")
    round_bf16(8, 8)
    e("  v_lshlrev_b32 v4, 16, v4")
    e("  v_add_f32 v8, v8, v4")
    e("  v_cvt_pk_bf16_f32 v8, v8, v8")
    e(f"  buffer_store_short v8, v6, s[{SOUT}:{SOUT+3}], 0 offen")
    e("  s_or_b32 s75, s2, s3")
    e("  s_cmp_lg_u32 s75, 0")
    e("  s_cbranch_scc1 K_END")
    e("  s_mov_b64 exec, 1")
    e(f"  v_mov_b32 v5, {WS_EP}")
    e("  v_mov_b32 v6, s26")
    e(f"  buffer_store_dword v6, v5, s[{SWS}:{SWS+3}], 0 offen")
    e("  s_branch K_END")
    e("K_FG:")
    gpoll("K_P4", 28, WS_GG)
    round_bf16(16, 16)
    e("  v_mul_f32 v5, 0xbfb8aa3b, v16")
    e("  v_exp_f32 v5, v5")
    e("  s_nop 0")
    e("  v_add_f32 v5, 1.0, v5")
    e("  v_rcp_f32 v5, v5")
    e("  s_nop 0")
    e("  v_mul_f32 v5, v5, v16")
    round_bf16(5, 5)
    e("  v_and_b32 v7, 127, v0")
    e("  v_lshlrev_b32 v7, 2, v7")
    e(f"  ds_write_b32 v7, v5 offset:{L_GX}")
    e("  s_waitcnt lgkmcnt(0)")
    e("  s_barrier")
    e("K_END:")
    dump_stamps()
    e("  s_endpgm")
    e('.section .rodata,"a"')
    e(".p2align 6")
    e(f".amdhsa_kernel {name}")
    e("  .amdhsa_next_free_vgpr 256")
    e("  .amdhsa_next_free_sgpr 102")
    e("  .amdhsa_accum_offset 256")
    e("  .amdhsa_group_segment_fixed_size 0")
    e("  .amdhsa_kernarg_size 88")
    e("  .amdhsa_user_sgpr_count 2")
    e("  .amdhsa_user_sgpr_kernarg_segment_ptr 1")
    e("  .amdhsa_system_sgpr_workgroup_id_x 1")
    e(".end_amdhsa_kernel")

def main():
    path = f"cdna_kernels/{NAME}.s"
    for a in sys.argv[1:]:
        if "=" in a:
            k, v = a.split("=", 1)
            OPT[k] = (" " + v if v else "") if k == "nt" else int(v)
        else:
            path = a
    e(HEADER.rstrip("\n"))
    e(f"; @launch grid=(256,1,1) block=(512,1,1) lds={LDS_SIZE}")
    e('.amdgcn_target "amdgcn-amd-amdhsa--gfx950"')
    gen()
    open(path, "w").write("\n".join(out) + "\n")

main()
```

```python
import sys

NAME = "recurrent_scan__gqa_block_cached__dense_activation_relu__decode"

HEADER = """; Kernarg layout for this problem (88 bytes, ptrs only, base s[0:1]):
;   offset   0: d_in[0] A_x  shape=(2, 1, 512) dtype=bfloat16 strides=(1024, 1024, 2) contiguous=True
;   offset   8: d_in[1] A_k_cache  shape=(2, 8, 32768, 128) dtype=bfloat16 strides=(67108864, 8388608, 256, 2) contiguous=True
;   offset  16: d_in[2] A_v_cache  shape=(2, 8, 32768, 128) dtype=bfloat16 strides=(67108864, 8388608, 256, 2) contiguous=True
;   offset  24: d_in[3] A_wq  shape=(512, 4096) dtype=bfloat16 strides=(8192, 2) contiguous=True
;   offset  32: d_in[4] A_wo  shape=(4096, 512) dtype=bfloat16 strides=(1024, 2) contiguous=True
;   offset  40: d_in[5] B_x  shape=(2, 1, 512) dtype=bfloat16 strides=(1024, 1024, 2) contiguous=True
;   offset  48: d_in[6] B_w1  shape=(512, 1792) dtype=bfloat16 strides=(3584, 2) contiguous=True
;   offset  56: d_in[7] B_w2  shape=(1792, 512) dtype=bfloat16 strides=(1024, 2) contiguous=True
"""

WS_Q = 0
WS_H = 16384
WS_ML = 32768
WS_O = 65536
WS_P = 1 << 20
WS_G = WS_P + 131072
WS_SIZE = 536870912
WS_QG = 2 << 20
WS_HG = WS_QG + 32768
WS_EP = WS_QG + 65536
WS_OG = 5 << 20
WS_MG = 6 << 20
WS_SG = WS_MG + 65536
WS_GG = 7 << 20

L_XN = 0
L_QP = 4096
L_Q = 5632
L_HV = 6656
L_CNT = 7168
L_O = 8192
L_ML = 24576
L_FP = 25600
L_VEC = 0
L_SP = 8192
L_GX = 1024
LDS_SIZE = 41984

OPT = dict(nt=" nt", sleep=1, prof=0, pre0=8, pace=8, bar0=1, wsc=0, thr=2, p2=1, ilv=0, kx=0, nbuf=2, nw=8, kpl=0, vpl=0)

out = []
def e(s=""):
    out.append(s)

def srd(dst, lo, hi, nbytes):
    e(f"  s_mov_b32 s{dst}, s{lo}")
    e(f"  s_and_b32 s{dst+1}, s{hi}, 0xffff")
    e(f"  s_mov_b32 s{dst+2}, {nbytes}")
    e(f"  s_mov_b32 s{dst+3}, 0x00020000")

def dpp_steps(regs, ctrls):
    for ctrl in ctrls:
        e("  s_nop 1")
        for r in regs:
            e(f"  v_add_f32_dpp v{r}, v{r}, v{r} {ctrl} row_mask:0xf bank_mask:0xf")

def swap_steps(regs, tmp):
    for sw in ["v_permlane16_swap_b32", "v_permlane32_swap_b32"]:
        for r, t in zip(regs, tmp):
            e(f"  v_mov_b32 v{t}, v{r}")
        e("  s_nop 1")
        for r, t in zip(regs, tmp):
            e(f"  {sw} v{r}, v{t}")
        e("  s_nop 1")
        for r, t in zip(regs, tmp):
            e(f"  v_add_f32 v{r}, v{r}, v{t}")

def wave_sum(regs, tmp):
    dpp_steps(regs, ["quad_perm:[1,0,3,2]", "quad_perm:[2,3,0,1]", "row_half_mirror", "row_mirror"])
    swap_steps(regs, tmp)

def round_bf16(dst, src):
    e(f"  v_cvt_pk_bf16_f32 v{dst}, v{src}, v{src}")
    e(f"  v_lshlrev_b32 v{dst}, 16, v{dst}")

WS_PROF = 4 << 20
def stamp(k):
    if not OPT["prof"]:
        return
    e("  s_memrealtime s[80:81]")
    e("  s_waitcnt lgkmcnt(0)")
    e(f"  s_mov_b32 s{92+k}, s80")

def dump_stamps():
    if not OPT["prof"]:
        return
    e("  s_cmp_ge_u32 s3, 2")
    e("  s_cbranch_scc1 K_END2")
    e("  s_cmp_ge_u32 s2, 256")
    e("  s_cbranch_scc1 K_END2")
    stamp(8)
    e("  s_lshl_b32 s82, s2, 1")
    e("  s_add_u32 s82, s82, s3")
    e("  s_lshl_b32 s82, s82, 6")
    e(f"  s_add_u32 s82, s82, {WS_PROF}")
    e("  s_mov_b64 exec, 1")
    e("  v_mov_b32 v6, 0")
    for k in range(9):
        e(f"  v_mov_b32 v5, s{92+k}")
        e(f"  buffer_store_dword v5, v6, s[{SWS}:{SWS+3}], s82 offen offset:{k*4}")
    e("K_END2:")

SX, SK, SV, SWQ, SW1, SWO, SW2, SWS, SDBG, SOUT = 28, 32, 36, 40, 44, 48, 52, 56, 60, 64
SC, SP0, SP1 = 68, 69, 70
IDXA, IDXB = 72, 73
SG, SR, SB, SSPL, SNC, SHEAD = 86, 87, 88, 89, 90, 91
SNO, SCG, SHC = 83, 84, 85

def poll(label, nlanes, voff, target, tmpv):
    e(f"  s_mov_b64 exec, {(1<<nlanes)-1:#x}")
    e("  s_mov_b32 s74, 0x400000")
    e(f"{label}:")
    e(f"  buffer_load_dword v{tmpv}, v{voff}, s[{SDBG}:{SDBG+3}], 0 offen sc1")
    e("  s_waitcnt vmcnt(0)")
    e(f"  v_cmp_ne_u32 vcc, {target}, v{tmpv}")
    e("  s_cmp_eq_u64 vcc, 0")
    e(f"  s_cbranch_scc1 {label}_DONE")
    if OPT["sleep"]:
        e(f"  s_sleep {OPT['sleep']}")
    e("  s_sub_u32 s74, s74, 1")
    e("  s_cmp_lg_u32 s74, 0")
    e(f"  s_cbranch_scc1 {label}")
    e(f"{label}_DONE:")
    e("  s_mov_b64 exec, -1")

def mpoll(label, n, issue, tags, thr):
    full = (1 << n) - 1
    e("  s_not_b32 s75, s26")
    for k in range(n):
        for x in tags(k):
            e(f"  v_mov_b32 v{x}, s75")
    e("  s_mov_b32 s77, 0")
    e("  s_mov_b32 s74, 0x100000")
    e(f"{label}:")
    for k in range(n):
        e(f"  s_bitcmp1_b32 s77, {k}")
        e(f"  s_cbranch_scc1 {label}S{k}")
        issue(k)
        e(f"{label}S{k}:")
    if thr is not None:
        e(f"  s_xor_b32 s75, s77, {full:#x}")
        e("  s_bcnt1_i32_b32 s75, s75")
        e(f"  s_cmp_le_u32 s75, {thr}")
        e(f"  s_cbranch_scc1 {label}F")
        e("  s_waitcnt vmcnt(0)")
        e(f"{label}F:")
    if OPT["sleep"]:
        e(f"  s_sleep {OPT['sleep']}")
    for k in range(n):
        t = tags(k)
        e(f"  v_cmp_eq_u32 vcc, s26, v{t[0]}")
        for x in t[1:]:
            e(f"  v_cmp_eq_u32 s[78:79], s26, v{x}")
            e("  s_and_b64 vcc, vcc, s[78:79]")
        e("  s_cmp_eq_u64 vcc, -1")
        e(f"  s_cselect_b32 s75, {1<<k:#x}, 0")
        e("  s_or_b32 s77, s77, s75")
    e(f"  s_cmp_eq_u32 s77, {full:#x}")
    e(f"  s_cbranch_scc1 {label}_DONE")
    e("  s_sub_u32 s74, s74, 1")
    e("  s_cmp_lg_u32 s74, 0")
    e(f"  s_cbranch_scc1 {label}")
    e(f"{label}_DONE:")
    e("  s_waitcnt vmcnt(0)")

def gen():
    nt = OPT["nt"]
    BS = 17 if OPT["ilv"] else 13
    knt = "" if OPT["kpl"] else nt
    vnt = "" if OPT["vpl"] else nt
    name = NAME + "_kernel"
    e(".text")
    e(f".globl {name}")
    e(".p2align 8")
    e(f".type {name},@function")
    e(f"{name}:")
    KA, VA, KB, VB = 16, 48, 80, 112
    ACC = 144
    QF = 176
    ST = 192
    PF = 200
    TR = 204
    M_, L_, T0, T1, AL, MC = 236, 237, 238, 239, 240, 241
    VKOFF, VVOFF = 242, 243
    WO = 244
    W2 = 252
    e("  s_cmp_ge_u32 s2, 256")
    e("  s_cbranch_scc1 K_END2" if OPT["prof"] else "  s_cbranch_scc1 K_END")
    e("  s_load_dwordx16 s[4:19], s[0:1], 0")
    e("  s_load_dwordx4 s[20:23], s[0:1], 64")
    e("  s_load_dwordx2 s[24:25], s[0:1], 80")
    e("  v_and_b32 v1, 63, v0")
    e("  v_lshrrev_b32 v2, 6, v0")
    e("  v_and_b32 v3, 15, v1")
    e("  v_lshrrev_b32 v4, 4, v1")
    e("  v_readfirstlane_b32 s3, v2")
    e(f"  s_and_b32 s{SG}, s2, 7")
    e(f"  s_lshr_b32 s{SR}, s2, 3")
    e(f"  s_and_b32 s{SNO}, s{SR}, 7")
    e(f"  s_lshl_b32 s{SCG}, s{SG}, 5")
    e(f"  s_add_u32 s{SCG}, s{SCG}, s{SR}")
    e(f"  s_lshr_b32 s{SHC}, s{SR}, 3")
    e(f"  s_lshl_b32 s{SHC}, s{SHC}, 6")
    e(f"  s_lshl_b32 s74, s{SG}, 3")
    e(f"  s_add_u32 s{SHC}, s{SHC}, s74")
    e(f"  s_add_u32 s{SHC}, s{SHC}, s{SNO}")
    e(f"  s_lshr_b32 s{SB}, s{SR}, 4")
    e(f"  s_and_b32 s{SSPL}, s{SR}, 15")
    e(f"  s_and_b32 s{SNC}, s2, 7")
    e(f"  s_lshr_b32 s{SHEAD}, s{SR}, 3")
    e(f"  s_lshl_b32 s74, s{SG}, 2")
    e(f"  s_add_u32 s{SHEAD}, s{SHEAD}, s74")
    e(f"  s_lshl_b32 s74, s{SB}, 3")
    e(f"  s_add_u32 s74, s74, s{SG}")
    e("  s_lshl_b32 s74, s74, 23")
    e(f"  s_lshl_b32 s75, s{SSPL}, {13 if OPT['ilv'] else 19}")
    e("  s_add_u32 s74, s74, s75")
    e(f"  s_mov_b32 s{SC}, 0x3e0293ee")
    e(f"  s_mov_b32 s{SP0}, 0x05040100")
    e(f"  s_mov_b32 s{SP1}, 0x07060302")
    e("  s_lshl_b32 s75, s3, 1")
    e(f"  s_sub_u32 s{IDXA}, s75, 2")
    e(f"  s_sub_u32 s{IDXB}, s75, 1")
    if OPT["nbuf"] == 1:
        e(f"  s_sub_u32 s{IDXA}, s3, 1")
        if OPT["nw"] < 8:
            e(f"  s_cmp_ge_u32 s3, {OPT['nw']}")
            e(f"  s_cselect_b32 s{IDXA}, 64, s{IDXA}")
    e("  s_cmp_eq_u32 s3, 0")
    e(f"  s_cselect_b32 s{IDXA}, 64, s{IDXA}")
    e(f"  s_cselect_b32 s{IDXB}, 64, s{IDXB}")
    e("  v_and_b32 v5, 3, v3")
    e("  v_lshrrev_b32 v6, 2, v3")
    e("  v_lshl_add_u32 v5, v5, 2, v6")
    e("  v_lshlrev_b32 v5, 8, v5")
    e(f"  v_lshl_add_u32 v{VKOFF}, v4, 4, v5")
    e(f"  v_lshlrev_b32 v{VVOFF}, 4, v1")
    if OPT["kx"]:
        e(f"  v_lshlrev_b32 v{VKOFF}, 4, v1")
    e("  s_waitcnt lgkmcnt(0)")
    srd(SX, 4, 5, 2048)
    srd(SWQ, 10, 11, 512 * 4096 * 2)
    srd(SW1, 16, 17, 512 * 1792 * 2)
    srd(SWO, 12, 13, 4096 * 512 * 2)
    srd(SW2, 18, 19, 1792 * 512 * 2)
    srd(SWS, 24, 25, WS_SIZE)
    srd(SDBG, 22, 23, 256)
    srd(SOUT, 20, 21, 2048)
    e(f"  s_add_u32 s{SK}, s6, s74")
    e(f"  s_addc_u32 s{SK+1}, s7, 0")
    e(f"  s_and_b32 s{SK+1}, s{SK+1}, 0xffff")
    if OPT['ilv']:
        e(f"  s_lshl_b32 s75, s{SSPL}, 13")
        e(f"  s_sub_u32 s{SK+2}, {8<<20}, s75")
    else:
        e(f"  s_mov_b32 s{SK+2}, 524288")
    e(f"  s_mov_b32 s{SK+3}, 0x00020000")
    e(f"  s_add_u32 s{SV}, s8, s74")
    e(f"  s_addc_u32 s{SV+1}, s9, 0")
    e(f"  s_and_b32 s{SV+1}, s{SV+1}, 0xffff")
    e(f"  s_mov_b32 s{SV+2}, s{SK+2}")
    e(f"  s_mov_b32 s{SV+3}, 0x00020000")
    e("  s_movk_i32 s71, 4096")
    stamp(0)
    e(f"  v_mov_b32 v5, {WS_EP}")
    e(f"  buffer_load_dword v231, v5, s[{SWS}:{SWS+3}], 0 offen sc1")
    e("  v_lshlrev_b32 v5, 4, v1")
    e(f"  buffer_load_dwordx4 v[204:207], v5, s[{SX}:{SX+3}], 0 offen")
    e(f"  buffer_load_dwordx4 v[208:211], v5, s[{SX}:{SX+3}], 0 offen offset:1024")
    e("  v_lshrrev_b32 v6, 2, v0")
    e("  v_and_b32 v7, 3, v0")
    e("  v_lshlrev_b32 v8, 13, v6")
    e("  v_lshl_add_u32 v8, v7, 3, v8")
    e(f"  s_lshl_b32 s75, s{SCG}, 5")
    e("  v_add_u32 v8, s75, v8")
    for i in range(4):
        if i == 0:
            e(f"  buffer_load_dwordx2 v[212:213], v8, s[{SWQ}:{SWQ+3}], 0 offen")
        else:
            e(f"  v_add_u32 v8, 0x100000, v8")
            e(f"  buffer_load_dwordx2 v[{212+2*i}:{213+2*i}], v8, s[{SWQ}:{SWQ+3}], 0 offen")
    e("  v_lshrrev_b32 v9, 1, v0")
    e("  v_and_b32 v10, 1, v0")
    e("  s_movk_i32 s75, 3584")
    e("  v_mul_lo_u32 v11, v9, s75")
    e("  v_lshl_add_u32 v11, v10, 3, v11")
    e(f"  s_lshl_b32 s75, s{SHC}, 4")
    e("  v_add_u32 v11, s75, v11")
    e(f"  buffer_load_dwordx2 v[220:221], v11, s[{SW1}:{SW1+3}], 0 offen")
    e(f"  v_add_u32 v11, {256*3584}, v11")
    e(f"  buffer_load_dwordx2 v[222:223], v11, s[{SW1}:{SW1+3}], 0 offen")

    def kchunk_l(KR, vo):
        r=[]
        if OPT["kx"]:
            for j in range(8):
                so = "0" if j < 4 else "s71"
                r.append(f"  buffer_load_dwordx4 v[{KR+4*j}:{KR+4*j+3}], v{vo}, s[{SK}:{SK+3}], {so} offen offset:{(j&3)*1024}{nt}")
            return r
        for t in range(2):
            for i in range(4):
                so = "0" if t == 0 else "s71"
                r.append(f"  buffer_load_dwordx4 v[{KR+16*t+4*i}:{KR+16*t+4*i+3}], v{vo}, s[{SK}:{SK+3}], {so} offen offset:{i*64}{knt}")
        return r
    def vchunk_l(VR, vo):
        r=[]
        for j in range(8):
            so = "0" if j < 4 else "s71"
            r.append(f"  buffer_load_dwordx4 v[{VR+4*j}:{VR+4*j+3}], v{vo}, s[{SV}:{SV+3}], {so} offen offset:{(j&3)*1024}{vnt}")
        return r
    def kchunk(KR, vo):
        for l in kchunk_l(KR, vo): e(l)
    def vchunk(VR, vo):
        for l in vchunk_l(VR, vo): e(l)
    def loads(KR, VR, sidx):
        e(f"  s_lshl_b32 s75, s{sidx}, {BS}")
        e(f"  v_add_u32 v5, s75, v{VKOFF}")
        e(f"  v_add_u32 v6, s75, v{VVOFF}")
        kchunk(KR, 5)
        vchunk(VR, 6)
    def wo_loads():
        e("  v_lshlrev_b32 v14, 10, v12")
        e("  v_lshl_add_u32 v14, v13, 4, v14")
        e(f"  s_lshl_b32 s75, s{SNO}, 7")
        e("  v_add_u32 v15, s75, v14")
        e(f"  s_lshl_b32 s75, s{SHEAD}, 17")
        e("  v_add_u32 v15, s75, v15")
        e(f"  buffer_load_dwordx4 v[{WO}:{WO+3}], v15, s[{SWO}:{SWO+3}], 0 offen")
        e("  v_add_u32 v15, 0x10000, v15")
        e(f"  buffer_load_dwordx4 v[{WO+4}:{WO+7}], v15, s[{SWO}:{SWO+3}], 0 offen")
        e("  s_lshr_b32 s75, s2, 3")
        e("  s_lshl_b32 s75, s75, 16")
        e("  v_add_u32 v15, s75, v14")
        e(f"  s_lshl_b32 s75, s{SNC}, 7")
        e("  v_add_u32 v15, s75, v15")
        e(f"  buffer_load_dwordx4 v[{W2}:{W2+3}], v15, s[{SW2}:{SW2+3}], 0 offen")
    e("  v_lshrrev_b32 v12, 3, v0")
    e("  v_and_b32 v13, 7, v0")
    e(f"  s_lshl_b32 s75, s{IDXA}, {BS}")
    e(f"  v_add_u32 v224, s75, v{VKOFF}")
    e(f"  v_add_u32 v225, s75, v{VVOFF}")
    e(f"  s_lshl_b32 s75, s{IDXB}, {BS}")
    e(f"  v_add_u32 v226, s75, v{VKOFF}")
    e(f"  v_add_u32 v227, s75, v{VVOFF}")
    pl = kchunk_l(KA, 224) + vchunk_l(VA, 225) + kchunk_l(KB, 226) + vchunk_l(VB, 227)
    if OPT["nbuf"] == 1: pl = pl[:16]
    PRE0 = OPT["pre0"]
    if OPT["bar0"]:
        e("  s_barrier")
    for c in range(PRE0):
        e(pl[c])
    X = 144
    e(f"  s_waitcnt vmcnt({6+PRE0})")
    e("  v_readfirstlane_b32 s26, v231")
    e("  s_add_u32 s26, s26, 1")
    if OPT["prof"] == 2: stamp(4)
    for b in range(2):
        for c in range(4):
            e(f"  v_lshlrev_b32 v{X+8*b+2*c}, 16, v{204+4*b+c}")
            e(f"  v_and_b32 v{X+1+8*b+2*c}, 0xffff0000, v{204+4*b+c}")
    for b in range(2):
        e(f"  v_add_f32 v{160+b}, v{X+8*b}, v{X+1+8*b}")
        for c in range(2, 8):
            e(f"  v_add_f32 v{160+b}, v{160+b}, v{X+8*b+c}")
    wave_sum([160, 161], [162, 163])
    e("  v_mul_f32 v160, 0x3b000000, v160")
    e("  v_mul_f32 v161, 0x3b000000, v161")
    for b in range(2):
        e(f"  v_sub_f32 v166, v{X+8*b}, v{160+b}")
        e(f"  v_mul_f32 v{164+b}, v166, v166")
        for c in range(1, 8):
            e(f"  v_sub_f32 v166, v{X+8*b+c}, v{160+b}")
            e(f"  v_fmac_f32 v{164+b}, v166, v166")
    wave_sum([164, 165], [162, 163])
    e("  v_mul_f32 v164, 0x3b000000, v164")
    e("  v_mul_f32 v165, 0x3b000000, v165")
    for b in range(2):
        round_bf16(164 + b, 164 + b)
        e(f"  v_add_f32 v{164+b}, 0x3727c5ac, v{164+b}")
        round_bf16(164 + b, 164 + b)
        e(f"  v_sqrt_f32 v{164+b}, v{164+b}")
        e("  s_nop 0")
        round_bf16(164 + b, 164 + b)
        e(f"  v_rcp_f32 v{164+b}, v{164+b}")
        round_bf16(160 + b, 160 + b)
    for b in range(2):
        for c in range(8):
            r = X + 8 * b + c
            e(f"  v_sub_f32 v{r}, v{r}, v{160+b}")
            round_bf16(r, r)
            e(f"  v_mul_f32 v{r}, v{r}, v{164+b}")
            round_bf16(r, r)
    e("  v_lshlrev_b32 v5, 6, v1")
    for c in range(0, 8, 2):
        e(f"  v_mov_b32 v{168+2*c}, v{X+c}")
        e(f"  v_mov_b32 v{169+2*c}, v{X+8+c}")
        e(f"  v_mov_b32 v{170+2*c}, v{X+c+1}")
        e(f"  v_mov_b32 v{171+2*c}, v{X+8+c+1}")
        e(f"  ds_write_b128 v5, v[{168+2*c}:{171+2*c}] offset:{L_XN + c*8}")
    e("  s_waitcnt lgkmcnt(0)")
    e("  v_lshrrev_b32 v5, 2, v0")
    e("  v_lshlrev_b32 v5, 3, v5")
    e("  v_lshlrev_b32 v6, 3, v9")
    for i in range(4):
        e(f"  ds_read_b64 v[{168+2*i}:{169+2*i}], v5 offset:{L_XN + i*1024}")
    for i in range(2):
        e(f"  ds_read_b64 v[{176+2*i}:{177+2*i}], v6 offset:{L_XN + i*2048}")
    for r in range(180, 196):
        e(f"  v_mov_b32 v{r}, 0")
    if OPT["prof"] == 2: stamp(5)
    e(f"  s_waitcnt vmcnt({PRE0}) lgkmcnt(0)")
    if OPT["prof"] == 2: stamp(6)
    for i in range(4):
        for c in range(2):
            w = 212 + 2 * i + c
            e(f"  v_lshlrev_b32 v160, 16, v{w}")
            e(f"  v_and_b32 v161, 0xffff0000, v{w}")
            e(f"  v_fmac_f32 v{180+2*c}, v160, v{168+2*i}")
            e(f"  v_fmac_f32 v{181+2*c}, v161, v{168+2*i}")
            e(f"  v_fmac_f32 v{184+2*c}, v160, v{169+2*i}")
            e(f"  v_fmac_f32 v{185+2*c}, v161, v{169+2*i}")
    for i in range(2):
        for c in range(2):
            w = 220 + 2 * i + c
            e(f"  v_lshlrev_b32 v160, 16, v{w}")
            e(f"  v_and_b32 v161, 0xffff0000, v{w}")
            e(f"  v_fmac_f32 v{188+2*c}, v160, v{176+2*i}")
            e(f"  v_fmac_f32 v{189+2*c}, v161, v{176+2*i}")
            e(f"  v_fmac_f32 v{192+2*c}, v160, v{177+2*i}")
            e(f"  v_fmac_f32 v{193+2*c}, v161, v{177+2*i}")
    dpp_steps(list(range(188, 196)), ["quad_perm:[2,3,0,1]"])
    dpp_steps(list(range(180, 196)), ["row_ror:4", "row_ror:8"])
    swap_steps(list(range(180, 196)), list(range(204, 220)))
    e("  s_mul_i32 s75, s3, 192")
    e("  v_lshlrev_b32 v5, 4, v1")
    e("  v_add_u32 v5, s75, v5")
    e("  s_mov_b64 exec, 0xf")
    e(f"  ds_write_b128 v5, v[180:183] offset:{L_QP}")
    e(f"  ds_write_b128 v5, v[184:187] offset:{L_QP+64}")
    e("  s_mov_b64 exec, 0x3")
    e(f"  ds_write_b128 v5, v[188:191] offset:{L_QP+128}")
    e(f"  ds_write_b128 v5, v[192:195] offset:{L_QP+160}")
    e("  s_mov_b64 exec, -1")
    e("  s_waitcnt lgkmcnt(0)")
    if OPT["prof"] == 2: stamp(7)
    e("  s_barrier")
    e("  s_cmp_eq_u32 s3, 0")
    e("  s_cbranch_scc1 K_SRV")
    for c in range(PRE0, len(pl)):
        if OPT["pace"]:
            e(f"  s_waitcnt vmcnt({OPT['pace']-1})")
        e(pl[c])
    wo_loads()
    e("  s_branch K_B2")
    e("K_SRV:")
    e("  v_lshlrev_b32 v5, 3, v1")
    e("  s_mov_b64 exec, 0xffffff")
    for w in range(8):
        e(f"  ds_read_b64 v[{160+2*w}:{161+2*w}], v5 offset:{L_QP + w*192}")
    e("  v_lshrrev_b32 v6, 3, v1")
    e("  v_lshlrev_b32 v6, 14, v6")
    e("  v_and_b32 v7, 7, v1")
    e("  v_lshl_add_u32 v6, v7, 3, v6")
    stamp(1)
    e(f"  s_lshl_b32 s75, s{SCG}, 6")
    e(f"  s_add_u32 s75, s75, {WS_QG}")
    e("  v_add_u32 v6, s75, v6")
    e("  v_bfe_u32 v7, v1, 2, 1")
    e("  s_movk_i32 s75, 7168")
    e("  v_mul_lo_u32 v7, v7, s75")
    e("  v_and_b32 v8, 3, v1")
    e("  v_lshl_add_u32 v7, v8, 3, v7")
    e(f"  s_lshl_b32 s75, s{SHC}, 5")
    e(f"  s_add_u32 s75, s75, {WS_HG}")
    e("  v_add_u32 v7, s75, v7")
    e("  v_cmp_gt_u32 vcc, 16, v1")
    e("  v_cndmask_b32 v6, v7, v6, vcc")
    e("  s_waitcnt lgkmcnt(0)")
    for w in range(1, 8):
        e(f"  v_add_f32 v160, v160, v{160+2*w}")
        e(f"  v_add_f32 v161, v161, v{161+2*w}")
    e("  v_max_f32 v162, 0, v160")
    e("  v_max_f32 v163, 0, v161")
    e("  v_cndmask_b32 v160, v162, v160, vcc")
    e("  v_cndmask_b32 v161, v163, v161, vcc")
    e("  v_cvt_pk_bf16_f32 v160, v160, v161")
    e("  v_mov_b32 v161, s26")
    e("  s_mov_b32 s77, 0xffff")
    e(f"  s_cmp_lt_u32 s{SHC}, 224")
    e("  s_cselect_b32 s76, 0xffffff, s77")
    e("  s_mov_b32 exec_lo, s76")
    e(f"  buffer_store_dwordx2 v[160:161], v6, s[{SWS}:{SWS+3}], 0 offen sc1")
    e("  s_mov_b64 exec, -1")
    stamp(2)
    e(f"  s_lshl_b32 s75, s{SB}, 14")
    e(f"  s_lshl_b32 s76, s{SG}, 11")
    e("  s_add_u32 s75, s75, s76")
    e(f"  s_add_u32 s75, s75, {WS_QG}")
    e("  v_lshlrev_b32 v5, 5, v1")
    e("  v_add_u32 v5, s75, v5")
    e("  v_lshrrev_b32 v6, 5, v1")
    e("  s_movk_i32 s75, 7168")
    e("  v_mul_lo_u32 v7, v6, s75")
    e("  v_and_b32 v8, 31, v1")
    e("  v_lshl_add_u32 v7, v8, 3, v7")
    e("  s_lshr_b32 s75, s2, 3")
    e("  s_lshl_b32 s75, s75, 8")
    e(f"  s_add_u32 s75, s75, {WS_HG}")
    e("  v_add_u32 v7, s75, v7")
    e("  s_mov_b32 s74, 0x400000")
    e("K_P1:")
    e(f"  buffer_load_dwordx4 v[160:163], v5, s[{SWS}:{SWS+3}], 0 offen sc1")
    e(f"  buffer_load_dwordx4 v[164:167], v5, s[{SWS}:{SWS+3}], 0 offen offset:16 sc1")
    e(f"  buffer_load_dwordx2 v[168:169], v7, s[{SWS}:{SWS+3}], 0 offen sc1")
    e("  s_waitcnt vmcnt(0)")
    e("  v_cmp_ne_u32 vcc, s26, v161")
    e("  v_cmp_ne_u32 s[76:77], s26, v163")
    e("  s_or_b64 vcc, vcc, s[76:77]")
    e("  v_cmp_ne_u32 s[76:77], s26, v165")
    e("  s_or_b64 vcc, vcc, s[76:77]")
    e("  v_cmp_ne_u32 s[76:77], s26, v167")
    e("  s_or_b64 vcc, vcc, s[76:77]")
    e("  s_cmp_ge_u32 s2, 224")
    e("  s_cbranch_scc1 K_P1C")
    e("  v_cmp_ne_u32 s[76:77], s26, v169")
    e("  s_or_b64 vcc, vcc, s[76:77]")
    e("K_P1C:")
    e("  s_cmp_eq_u64 vcc, 0")
    e("  s_cbranch_scc1 K_P1_DONE")
    if OPT["sleep"]:
        e(f"  s_sleep {OPT['sleep']}")
    e("  s_sub_u32 s74, s74, 1")
    e("  s_cmp_lg_u32 s74, 0")
    e("  s_cbranch_scc1 K_P1")
    e("K_P1_DONE:")
    stamp(3)
    e("  v_mov_b32 v161, v162")
    e("  v_mov_b32 v162, v164")
    e("  v_mov_b32 v163, v166")
    e("  v_lshlrev_b32 v5, 4, v1")
    e(f"  ds_write_b128 v5, v[160:163] offset:{L_Q}")
    e("  v_lshlrev_b32 v164, 16, v168")
    e("  v_and_b32 v165, 0xffff0000, v168")
    e("  v_lshlrev_b32 v5, 3, v1")
    e(f"  ds_write_b64 v5, v[164:165] offset:{L_HV}")
    e(f"  s_mov_b32 s{IDXA}, {14 if OPT['nbuf']==2 else OPT['nw']-1}")
    e(f"  s_mov_b32 s{IDXB}, 15")
    e(f"  v_mov_b32 v9, {16 if OPT['nbuf']==2 else OPT['nw']}")
    e(f"  v_mov_b32 v10, {L_CNT}")
    e("  ds_write_b32 v10, v9")
    wo_loads()
    loads(KA, VA, IDXA)
    if OPT["nbuf"] == 2: loads(KB, VB, IDXB)
    e("  s_waitcnt lgkmcnt(0)")
    e("K_B2:")
    e("  s_barrier")
    e("  v_and_b32 v5, 3, v3")
    e("  v_lshlrev_b32 v5, 8, v5")
    e("  v_lshl_add_u32 v5, v4, 4, v5")
    for i in range(4):
        e(f"  ds_read_b128 v[{QF+4*i}:{QF+4*i+3}], v5 offset:{L_Q + i*64}")
    for r in range(32):
        e(f"  v_mov_b32 v{ACC+r}, 0")
    e(f"  v_mov_b32 v{M_}, 0xf149f2ca")
    e(f"  v_mov_b32 v{L_}, 0")
    e(f"  v_mov_b32 v7, {L_CNT}")
    e("  v_mov_b32 v8, 1")
    e("  s_waitcnt lgkmcnt(0)")

    def compute(KR, VR, vk, vv):
        e(f"  s_waitcnt vmcnt({vk})")
        for t in range(2):
            for i in range(4):
                c = "0" if i == 0 else f"v[{ST+4*t}:{ST+4*t+3}]"
                e(f"  v_mfma_f32_16x16x32_bf16 v[{ST+4*t}:{ST+4*t+3}], v[{KR+16*t+4*i}:{KR+16*t+4*i+3}], v[{QF+4*i}:{QF+4*i+3}], {c}")
        e("  s_nop 7")
        e("  s_nop 0")
        e(f"  v_max3_f32 v{T0}, v{ST}, v{ST+1}, v{ST+2}")
        e(f"  v_max3_f32 v{T1}, v{ST+3}, v{ST+4}, v{ST+5}")
        e(f"  v_max3_f32 v{T0}, v{T0}, v{ST+6}, v{ST+7}")
        e(f"  v_max_f32 v{T0}, v{T0}, v{T1}")
        e(f"  v_mov_b32 v{T1}, v{T0}")
        e("  s_nop 1")
        e(f"  v_permlane16_swap_b32 v{T0}, v{T1}")
        e("  s_nop 1")
        e(f"  v_max_f32 v{T0}, v{T0}, v{T1}")
        e(f"  v_mov_b32 v{T1}, v{T0}")
        e("  s_nop 1")
        e(f"  v_permlane32_swap_b32 v{T0}, v{T1}")
        e("  s_nop 1")
        e(f"  v_max3_f32 v{T0}, v{T0}, v{T1}, v{M_}")
        e(f"  v_sub_f32 v{AL}, v{M_}, v{T0}")
        e(f"  v_mul_f32 v{AL}, s{SC}, v{AL}")
        e(f"  v_exp_f32 v{AL}, v{AL}")
        e(f"  v_mov_b32 v{M_}, v{T0}")
        e(f"  v_mul_f32 v{MC}, s{SC}, v{T0}")
        for k in range(8):
            e(f"  v_fma_f32 v{ST+k}, v{ST+k}, s{SC}, -v{MC}")
        for k in range(8):
            e(f"  v_exp_f32 v{ST+k}, v{ST+k}")
        e("  s_nop 0")
        e(f"  v_mul_f32 v{L_}, v{L_}, v{AL}")
        for k in range(8):
            e(f"  v_add_f32 v{L_}, v{L_}, v{ST+k}")
        for q in range(4):
            e(f"  v_cvt_pk_bf16_f32 v{PF+q}, v{ST+2*q}, v{ST+2*q+1}")
        for r in range(32):
            e(f"  v_mul_f32 v{ACC+r}, v{ACC+r}, v{AL}")
        e(f"  s_waitcnt vmcnt({vv})")
        for t in range(8):
            c = t >> 1
            sel = f"s{SP1}" if (t & 1) else f"s{SP0}"
            for q in range(4):
                e(f"  v_perm_b32 v{TR+4*t+q}, v{VR+4*(2*q+1)+c}, v{VR+4*(2*q)+c}, {sel}")
        e("  s_nop 1")
        for t in range(8):
            e(f"  v_mfma_f32_16x16x32_bf16 v[{ACC+4*t}:{ACC+4*t+3}], v[{TR+4*t}:{TR+4*t+3}], v[{PF}:{PF+3}], v[{ACC+4*t}:{ACC+4*t+3}]")

    def fetch():
        e("  s_mov_b64 exec, 1")
        e("  ds_add_rtn_u32 v9, v7, v8")
        e("  s_mov_b64 exec, -1")
    def getidx(sidx):
        e("  s_waitcnt lgkmcnt(0)")
        e(f"  v_readfirstlane_b32 s{sidx}, v9")

    if OPT["nw"] < 8:
        e(f"  s_cmp_ge_u32 s3, {OPT['nw']}")
        e("  s_cbranch_scc1 K_EXIT")
    e("K_LOOP:")
    if OPT["nbuf"] == 2:
        fetch()
        compute(KA, VA, 24, 16)
        getidx(IDXA)
        loads(KA, VA, IDXA)
        e(f"  s_cmp_ge_u32 s{IDXB}, 64")
        e("  s_cbranch_scc1 K_EXIT")
        fetch()
        compute(KB, VB, 24, 16)
        getidx(IDXB)
        loads(KB, VB, IDXB)
        e(f"  s_cmp_lt_u32 s{IDXA}, 64")
        e("  s_cbranch_scc1 K_LOOP")
    else:
        fetch()
        compute(KA, VA, 8, 0)
        getidx(IDXA)
        loads(KA, VA, IDXA)
        e(f"  s_cmp_lt_u32 s{IDXA}, 64")
        e("  s_cbranch_scc1 K_LOOP")
    e("K_EXIT:")
    if OPT["prof"] == 1: stamp(4)
    e(f"  v_mov_b32 v{T1}, v{L_}")
    e("  s_nop 1")
    e(f"  v_permlane16_swap_b32 v{L_}, v{T1}")
    e("  s_nop 1")
    e(f"  v_add_f32 v{L_}, v{L_}, v{T1}")
    e(f"  v_mov_b32 v{T1}, v{L_}")
    e("  s_nop 1")
    e(f"  v_permlane32_swap_b32 v{L_}, v{T1}")
    e("  s_nop 1")
    e(f"  v_add_f32 v{L_}, v{L_}, v{T1}")
    e("  v_cmp_gt_u32 vcc, 4, v3")
    e("  s_and_saveexec_b64 s[78:79], vcc")
    e("  v_lshlrev_b32 v5, 11, v2")
    e("  v_lshl_add_u32 v5, v3, 9, v5")
    e("  v_lshl_add_u32 v5, v4, 7, v5")
    e("  s_nop 4")
    for t in range(8):
        for r in range(4):
            e(f"  ds_write_b32 v5, v{ACC+4*t+r} offset:{L_O + (r*8+t)*4}")
    e("  v_cmp_gt_u32 vcc, 4, v1")
    e("  s_and_b64 exec, exec, vcc")
    e("  v_lshlrev_b32 v6, 5, v2")
    e("  v_lshl_add_u32 v6, v3, 3, v6")
    e(f"  ds_write_b32 v6, v{M_} offset:{L_ML}")
    e(f"  ds_write_b32 v6, v{L_} offset:{L_ML+4}")
    e("  s_mov_b64 exec, s[78:79]")
    e("  s_waitcnt lgkmcnt(0)")
    e("  s_barrier")
    e("  v_lshrrev_b32 v5, 7, v0")
    e("  v_and_b32 v6, 127, v0")
    e("  v_lshlrev_b32 v7, 3, v5")
    for w in range(8):
        e(f"  ds_read_b64 v[{160+2*w}:{161+2*w}], v7 offset:{L_ML + w*32}")
    e("  v_lshlrev_b32 v8, 9, v5")
    e("  v_lshl_add_u32 v8, v6, 2, v8")
    for w in range(8):
        e(f"  ds_read_b32 v{176+w}, v8 offset:{L_O + w*2048}")
    e("  s_waitcnt lgkmcnt(0)")
    e("  v_max3_f32 v184, v160, v162, v164")
    e("  v_max3_f32 v185, v166, v168, v170")
    e("  v_max3_f32 v184, v184, v172, v174")
    e("  v_max_f32 v184, v184, v185")
    e("  v_mov_b32 v186, 0")
    e("  v_mov_b32 v187, 0")
    for w in range(8):
        e(f"  v_sub_f32 v185, v{160+2*w}, v184")
        e(f"  v_mul_f32 v185, s{SC}, v185")
        e("  v_exp_f32 v185, v185")
        e("  s_nop 0")
        e(f"  v_fmac_f32 v186, v185, v{161+2*w}")
        e(f"  v_fmac_f32 v187, v185, v{176+w}")
    e(f"  s_lshl_b32 s75, s{SB}, 5")
    e(f"  s_lshl_b32 s76, s{SG}, 2")
    e("  s_add_u32 s75, s75, s76")
    e("  s_lshl_b32 s75, s75, 4")
    e(f"  s_add_u32 s75, s75, s{SSPL}")
    e("  v_lshlrev_b32 v7, 4, v5")
    e("  v_add_u32 v7, s75, v7")
    e("  v_lshlrev_b32 v8, 10, v7")
    e("  v_lshl_add_u32 v8, v6, 3, v8")
    e(f"  s_mov_b32 s75, {WS_OG}")
    e("  v_mov_b32 v188, v187")
    e("  v_mov_b32 v189, s26")
    e(f"  buffer_store_dwordx2 v[188:189], v8, s[{SWS}:{SWS+3}], s75 offen sc1")
    e("  v_cmp_eq_u32 vcc, 0, v6")
    e("  s_and_saveexec_b64 s[78:79], vcc")
    e("  v_lshlrev_b32 v7, 4, v7")
    e("  v_mov_b32 v185, v186")
    e("  v_mov_b32 v186, s26")
    e(f"  s_mov_b32 s75, {WS_MG}")
    e(f"  buffer_store_dwordx3 v[184:186], v7, s[{SWS}:{SWS+3}], s75 offen sc1")
    e("  s_mov_b64 exec, s[78:79]")
    if OPT["prof"] == 1: stamp(5)

    def prod(wregs, vecaddr_rows, accbase, nrows):
        for r in range(16):
            e(f"  v_mov_b32 v{accbase+r}, 0")
        for i in range(nrows):
            for c in range(4):
                w = wregs + 4 * i + c
                e(f"  v_lshlrev_b32 v160, 16, v{w}")
                e(f"  v_and_b32 v161, 0xffff0000, v{w}")
                e(f"  v_fmac_f32 v{accbase+2*c}, v160, v{168+2*i}")
                e(f"  v_fmac_f32 v{accbase+1+2*c}, v161, v{168+2*i}")
                e(f"  v_fmac_f32 v{accbase+8+2*c}, v160, v{169+2*i}")
                e(f"  v_fmac_f32 v{accbase+9+2*c}, v161, v{169+2*i}")
        dpp_steps(list(range(accbase, accbase + 16)), ["row_ror:8"])

    def reduce_store(lbase, label, snc):
        e("  v_lshlrev_b32 v5, 2, v2")
        e("  v_add_u32 v5, v5, v4")
        e("  v_lshlrev_b32 v5, 9, v5")
        e("  v_and_b32 v6, 7, v1")
        e("  v_lshl_add_u32 v5, v6, 5, v5")
        e("  v_and_b32 v6, 8, v1")
        e("  v_cmp_eq_u32 vcc, 0, v6")
        e("  s_and_saveexec_b64 s[78:79], vcc")
        e(f"  ds_write_b128 v5, v[180:183] offset:{lbase}")
        e(f"  ds_write_b128 v5, v[184:187] offset:{lbase+16}")
        e(f"  ds_write_b128 v5, v[188:191] offset:{lbase+256}")
        e(f"  ds_write_b128 v5, v[192:195] offset:{lbase+256+16}")
        e("  s_mov_b64 exec, s[78:79]")
        e("  s_waitcnt lgkmcnt(0)")
        e("  s_barrier")
        e("  s_cmp_ge_u32 s3, 2")
        e(f"  s_cbranch_scc1 {label}")
        e("  v_lshlrev_b32 v5, 2, v0")
        for p in range(32):
            e(f"  ds_read_b32 v{204+p}, v5 offset:{lbase + p*512}")
        e("  s_waitcnt lgkmcnt(0)")
        for p in range(1, 31, 2):
            e(f"  v_add_f32 v{204+p}, v{204+p}, v{205+p}")
        e("  v_add_f32 v204, v204, v235")
        for p in range(1, 31, 2):
            e(f"  v_add_f32 v204, v204, v{204+p}")
        e("  v_lshlrev_b32 v5, 12, v2")
        e("  v_lshl_add_u32 v5, v1, 3, v5")
        e(f"  s_lshl_b32 s76, s{snc}, 9")
        e(f"  s_add_u32 s75, s75, s76")
        e("  v_mov_b32 v205, s26")
        e(f"  buffer_store_dwordx2 v[204:205], v5, s[{SWS}:{SWS+3}], s75 offen sc1")
        e(f"{label}:")

    e("  s_cmp_ge_u32 s2, 224")
    e("  s_cbranch_scc1 K_T4")
    e("  v_lshlrev_b32 v5, 2, v12")
    e(f"  ds_read_b32 v168, v5 offset:{L_HV}")
    e(f"  ds_read_b32 v169, v5 offset:{L_HV+256}")
    e("  s_waitcnt lgkmcnt(0)")
    prod(W2, None, 180, 1)
    e("  s_lshr_b32 s75, s2, 3")
    e("  s_lshl_b32 s75, s75, 13")
    e(f"  s_add_u32 s75, s75, {WS_GG}")
    reduce_store(L_FP, "K_T3B", SNC)
    e("K_T4:")
    e("  s_cmp_ge_u32 s3, 4")
    e("  s_cbranch_scc1 K_T6")
    e("  v_lshrrev_b32 v6, 7, v0")
    e("  v_and_b32 v7, 127, v0")
    e("  v_lshlrev_b32 v8, 5, v6")
    e(f"  v_add_u32 v8, s{SHEAD}, v8")
    e("  v_lshlrev_b32 v9, 8, v8")
    e("  v_lshlrev_b32 v10, 14, v8")
    e("  v_lshl_add_u32 v10, v7, 3, v10")
    e(f"  s_mov_b32 s76, {WS_MG}")
    def iss2(sp):
        e(f"  s_mov_b32 s75, {WS_OG + 4096*(sp>>2)}")
        bits = {0:"", 1:" sc1", 2:" sc0", 3:" sc0 sc1", 4:" nt", 5:" sc0 nt"}[OPT["p2"]]
        e(f"  buffer_load_dwordx2 v[{16+2*sp}:{17+2*sp}], v10, s[{SWS}:{SWS+3}], s75 offen offset:{(sp&3)*1024}{bits}")
        e(f"  buffer_load_dwordx3 v[{48+4*sp}:{50+4*sp}], v9, s[{SWS}:{SWS+3}], s76 offen offset:{sp*16}{bits}")
    mpoll("K_P2", 16, iss2, lambda sp: [17+2*sp, 50+4*sp], OPT["thr"])
    if OPT["prof"] == 1: stamp(6)
    M = lambda sp: 48+4*sp
    e(f"  v_max3_f32 v112, v{M(0)}, v{M(1)}, v{M(2)}")
    for sp in range(3, 15, 2):
        e(f"  v_max3_f32 v112, v112, v{M(sp)}, v{M(sp+1)}")
    e(f"  v_max_f32 v112, v112, v{M(15)}")
    e("  v_mov_b32 v113, 0")
    e("  v_mov_b32 v114, 0")
    for sp in range(16):
        e(f"  v_sub_f32 v{M(sp)}, v{M(sp)}, v112")
        e(f"  v_mul_f32 v{M(sp)}, s{SC}, v{M(sp)}")
        e(f"  v_exp_f32 v{M(sp)}, v{M(sp)}")
    e("  s_nop 0")
    for sp in range(16):
        e(f"  v_fmac_f32 v113, v{M(sp)}, v{M(sp)+1}")
        e(f"  v_fmac_f32 v114, v{M(sp)}, v{16+2*sp}")
    e("  v_mov_b32 v49, v113")
    e("  v_mov_b32 v50, v114")
    e("  v_rcp_f32 v49, v49")
    e("  s_nop 0")
    e("  v_mul_f32 v50, v50, v49")
    round_bf16(50, 50)
    e("  v_lshlrev_b32 v8, 2, v0")
    e(f"  ds_write_b32 v8, v50 offset:{L_VEC}")
    e("  s_waitcnt lgkmcnt(0)")
    e("K_T6:")
    e("  s_barrier")
    e("  v_lshlrev_b32 v5, 2, v12")
    e(f"  ds_read_b32 v168, v5 offset:{L_VEC}")
    e(f"  ds_read_b32 v169, v5 offset:{L_VEC+512}")
    e(f"  ds_read_b32 v170, v5 offset:{L_VEC+256}")
    e(f"  ds_read_b32 v171, v5 offset:{L_VEC+512+256}")
    e("  s_waitcnt lgkmcnt(0)")
    prod(WO, None, 180, 2)
    e(f"  s_lshl_b32 s75, s{SHEAD}, 13")
    e(f"  s_add_u32 s75, s75, {WS_SG}")
    reduce_store(L_SP, "K_T6B", SNO)
    if OPT["prof"] == 1: stamp(7)
    e("  s_cmp_ge_u32 s2, 8")
    e("  s_cbranch_scc1 K_END")
    e("  s_cmp_ge_u32 s3, 4")
    e("  s_cbranch_scc1 K_END")
    def gpoll(label, n, base):
        def iss(k):
            e(f"  s_mov_b32 s75, {base + k*8192}")
            e(f"  buffer_load_dwordx2 v[{16+2*k}:{17+2*k}], v10, s[{SWS}:{SWS+3}], s75 offen sc1")
        mpoll(label, n, iss, lambda k: [17+2*k], None)
        for k in range(1, n):
            e(f"  v_add_f32 v16, v16, v{16+2*k}")
    e("  v_and_b32 v5, 1, v2")
    e("  v_lshlrev_b32 v5, 11, v5")
    e("  v_lshl_add_u32 v5, v1, 2, v5")
    e(f"  s_lshl_b32 s76, s{SNC}, 8")
    e("  v_add_u32 v5, s76, v5")
    e("  v_lshlrev_b32 v10, 1, v5")
    e("  s_cmp_ge_u32 s3, 2")
    e("  s_cbranch_scc1 K_FG")
    e("  v_lshrrev_b32 v6, 1, v5")
    e(f"  buffer_load_ushort v4, v6, s[{SX}:{SX+3}], 0 offen")
    gpoll("K_P3", 32, WS_SG)
    round_bf16(16, 16)
    e("  s_barrier")
    e("  v_lshlrev_b32 v7, 2, v0")
    e(f"  ds_read_b32 v8, v7 offset:{L_GX}")
    e("  s_waitcnt lgkmcnt(0)")
    e("  v_mul_f32 v8, v8, v16")
    round_bf16(8, 8)
    e("  v_lshlrev_b32 v4, 16, v4")
    e("  v_add_f32 v8, v8, v4")
    e("  v_cvt_pk_bf16_f32 v8, v8, v8")
    e(f"  buffer_store_short v8, v6, s[{SOUT}:{SOUT+3}], 0 offen")
    e("  s_or_b32 s75, s2, s3")
    e("  s_cmp_lg_u32 s75, 0")
    e("  s_cbranch_scc1 K_END")
    e("  s_mov_b64 exec, 1")
    e(f"  v_mov_b32 v5, {WS_EP}")
    e("  v_mov_b32 v6, s26")
    e(f"  buffer_store_dword v6, v5, s[{SWS}:{SWS+3}], 0 offen")
    e("  s_branch K_END")
    e("K_FG:")
    gpoll("K_P4", 28, WS_GG)
    round_bf16(16, 16)
    e("  v_mul_f32 v5, 0xbfb8aa3b, v16")
    e("  v_exp_f32 v5, v5")
    e("  s_nop 0")
    e("  v_add_f32 v5, 1.0, v5")
    e("  v_rcp_f32 v5, v5")
    e("  s_nop 0")
    e("  v_mul_f32 v5, v5, v16")
    round_bf16(5, 5)
    e("  v_and_b32 v7, 127, v0")
    e("  v_lshlrev_b32 v7, 2, v7")
    e(f"  ds_write_b32 v7, v5 offset:{L_GX}")
    e("  s_waitcnt lgkmcnt(0)")
    e("  s_barrier")
    e("K_END:")
    dump_stamps()
    e("  s_endpgm")
    e('.section .rodata,"a"')
    e(".p2align 6")
    e(f".amdhsa_kernel {name}")
    e("  .amdhsa_next_free_vgpr 256")
    e("  .amdhsa_next_free_sgpr 102")
    e("  .amdhsa_accum_offset 256")
    e("  .amdhsa_group_segment_fixed_size 0")
    e("  .amdhsa_kernarg_size 88")
    e("  .amdhsa_user_sgpr_count 2")
    e("  .amdhsa_user_sgpr_kernarg_segment_ptr 1")
    e("  .amdhsa_system_sgpr_workgroup_id_x 1")
    e(".end_amdhsa_kernel")

def main():
    path = f"cdna_kernels/{NAME}.s"
    for a in sys.argv[1:]:
        if "=" in a:
            k, v = a.split("=", 1)
            OPT[k] = (" " + v if v else "") if k == "nt" else int(v)
        else:
            path = a
    e(HEADER.rstrip("\n"))
    e(f"; @launch grid=(256,1,1) block=(512,1,1) lds={LDS_SIZE}")
    e('.amdgcn_target "amdgcn-amd-amdhsa--gfx950"')
    gen()
    open(path, "w").write("\n".join(out) + "\n")

main()
```

```python
import sys

NAME = "recurrent_scan__gqa_block_cached__dense_activation_relu__decode"

HEADER = """; Kernarg layout for this problem (88 bytes, ptrs only, base s[0:1]):
;   offset   0: d_in[0] A_x  shape=(2, 1, 512) dtype=bfloat16 strides=(1024, 1024, 2) contiguous=True
;   offset   8: d_in[1] A_k_cache  shape=(2, 8, 32768, 128) dtype=bfloat16 strides=(67108864, 8388608, 256, 2) contiguous=True
;   offset  16: d_in[2] A_v_cache  shape=(2, 8, 32768, 128) dtype=bfloat16 strides=(67108864, 8388608, 256, 2) contiguous=True
;   offset  24: d_in[3] A_wq  shape=(512, 4096) dtype=bfloat16 strides=(8192, 2) contiguous=True
;   offset  32: d_in[4] A_wo  shape=(4096, 512) dtype=bfloat16 strides=(1024, 2) contiguous=True
;   offset  40: d_in[5] B_x  shape=(2, 1, 512) dtype=bfloat16 strides=(1024, 1024, 2) contiguous=True
;   offset  48: d_in[6] B_w1  shape=(512, 1792) dtype=bfloat16 strides=(3584, 2) contiguous=True
;   offset  56: d_in[7] B_w2  shape=(1792, 512) dtype=bfloat16 strides=(1024, 2) contiguous=True
"""

WS_Q = 0
WS_H = 16384
WS_ML = 32768
WS_O = 65536
WS_P = 1 << 20
WS_G = WS_P + 131072
WS_SIZE = 536870912
WS_QG = 2 << 20
WS_HG = WS_QG + 32768
WS_EP = WS_QG + 65536
WS_OG = 5 << 20
WS_MG = 6 << 20
WS_SG = WS_MG + 65536
WS_GG = 7 << 20

L_XN = 0
L_QP = 4096
L_Q = 5632
L_HV = 6656
L_CNT = 7168
L_O = 8192
L_ML = 24576
L_FP = 25600
L_VEC = 0
L_SP = 8192
L_GX = 1024
LDS_SIZE = 41984

OPT = dict(nt=" nt", sleep=1, prof=0, pre0=8, pace=8, bar0=1, wsc=0, thr=2, p2=1, ilv=0, kx=0, nbuf=2, nw=8, kpl=0, vpl=0, T=0, plo=0, phi=0)

out = []
def e(s=""):
    out.append(s)

def srd(dst, lo, hi, nbytes):
    e(f"  s_mov_b32 s{dst}, s{lo}")
    e(f"  s_and_b32 s{dst+1}, s{hi}, 0xffff")
    e(f"  s_mov_b32 s{dst+2}, {nbytes}")
    e(f"  s_mov_b32 s{dst+3}, 0x00020000")

def dpp_steps(regs, ctrls):
    for ctrl in ctrls:
        e("  s_nop 1")
        for r in regs:
            e(f"  v_add_f32_dpp v{r}, v{r}, v{r} {ctrl} row_mask:0xf bank_mask:0xf")

def swap_steps(regs, tmp):
    for sw in ["v_permlane16_swap_b32", "v_permlane32_swap_b32"]:
        for r, t in zip(regs, tmp):
            e(f"  v_mov_b32 v{t}, v{r}")
        e("  s_nop 1")
        for r, t in zip(regs, tmp):
            e(f"  {sw} v{r}, v{t}")
        e("  s_nop 1")
        for r, t in zip(regs, tmp):
            e(f"  v_add_f32 v{r}, v{r}, v{t}")

def wave_sum(regs, tmp):
    dpp_steps(regs, ["quad_perm:[1,0,3,2]", "quad_perm:[2,3,0,1]", "row_half_mirror", "row_mirror"])
    swap_steps(regs, tmp)

def round_bf16(dst, src):
    e(f"  v_cvt_pk_bf16_f32 v{dst}, v{src}, v{src}")
    e(f"  v_lshlrev_b32 v{dst}, 16, v{dst}")

WS_PROF = 4 << 20
def stamp(k):
    if not OPT["prof"]:
        return
    e("  s_memrealtime s[80:81]")
    e("  s_waitcnt lgkmcnt(0)")
    e(f"  s_mov_b32 s{92+k}, s80")

def dump_stamps():
    if not OPT["prof"]:
        return
    e("  s_cmp_ge_u32 s3, 2")
    e("  s_cbranch_scc1 K_END2")
    e("  s_cmp_ge_u32 s2, 256")
    e("  s_cbranch_scc1 K_END2")
    stamp(8)
    e("  s_lshl_b32 s82, s2, 1")
    e("  s_add_u32 s82, s82, s3")
    e("  s_lshl_b32 s82, s82, 6")
    e(f"  s_add_u32 s82, s82, {WS_PROF}")
    e("  s_mov_b64 exec, 1")
    e("  v_mov_b32 v6, 0")
    for k in range(9):
        e(f"  v_mov_b32 v5, s{92+k}")
        e(f"  buffer_store_dword v5, v6, s[{SWS}:{SWS+3}], s82 offen offset:{k*4}")
    e("K_END2:")

SX, SK, SV, SWQ, SW1, SWO, SW2, SWS, SDBG, SOUT = 28, 32, 36, 40, 44, 48, 52, 56, 60, 64
SC, SP0, SP1 = 68, 69, 70
IDXA, IDXB = 72, 73
SG, SR, SB, SSPL, SNC, SHEAD = 86, 87, 88, 89, 90, 91
SNO, SCG, SHC = 83, 84, 85

def poll(label, nlanes, voff, target, tmpv):
    e(f"  s_mov_b64 exec, {(1<<nlanes)-1:#x}")
    e("  s_mov_b32 s74, 0x400000")
    e(f"{label}:")
    e(f"  buffer_load_dword v{tmpv}, v{voff}, s[{SDBG}:{SDBG+3}], 0 offen sc1")
    e("  s_waitcnt vmcnt(0)")
    e(f"  v_cmp_ne_u32 vcc, {target}, v{tmpv}")
    e("  s_cmp_eq_u64 vcc, 0")
    e(f"  s_cbranch_scc1 {label}_DONE")
    if OPT["sleep"]:
        e(f"  s_sleep {OPT['sleep']}")
    e("  s_sub_u32 s74, s74, 1")
    e("  s_cmp_lg_u32 s74, 0")
    e(f"  s_cbranch_scc1 {label}")
    e(f"{label}_DONE:")
    e("  s_mov_b64 exec, -1")

def mpoll(label, n, issue, tags, thr):
    full = (1 << n) - 1
    e("  s_not_b32 s75, s26")
    for k in range(n):
        for x in tags(k):
            e(f"  v_mov_b32 v{x}, s75")
    e("  s_mov_b32 s77, 0")
    e("  s_mov_b32 s74, 0x100000")
    e(f"{label}:")
    for k in range(n):
        e(f"  s_bitcmp1_b32 s77, {k}")
        e(f"  s_cbranch_scc1 {label}S{k}")
        issue(k)
        e(f"{label}S{k}:")
    if thr is not None:
        e(f"  s_xor_b32 s75, s77, {full:#x}")
        e("  s_bcnt1_i32_b32 s75, s75")
        e(f"  s_cmp_le_u32 s75, {thr}")
        e(f"  s_cbranch_scc1 {label}F")
        e("  s_waitcnt vmcnt(0)")
        e(f"{label}F:")
    if OPT["sleep"]:
        e(f"  s_sleep {OPT['sleep']}")
    for k in range(n):
        t = tags(k)
        e(f"  v_cmp_eq_u32 vcc, s26, v{t[0]}")
        for x in t[1:]:
            e(f"  v_cmp_eq_u32 s[78:79], s26, v{x}")
            e("  s_and_b64 vcc, vcc, s[78:79]")
        e("  s_cmp_eq_u64 vcc, -1")
        e(f"  s_cselect_b32 s75, {1<<k:#x}, 0")
        e("  s_or_b32 s77, s77, s75")
    e(f"  s_cmp_eq_u32 s77, {full:#x}")
    e(f"  s_cbranch_scc1 {label}_DONE")
    e("  s_sub_u32 s74, s74, 1")
    e("  s_cmp_lg_u32 s74, 0")
    e(f"  s_cbranch_scc1 {label}")
    e(f"{label}_DONE:")
    e("  s_waitcnt vmcnt(0)")

def gen():
    nt = OPT["nt"]
    BS = 17 if OPT["ilv"] else 13
    POL = dict(k="" if OPT["kpl"] else nt, v="" if OPT["vpl"] else nt)
    name = NAME + "_kernel"
    e(".text")
    e(f".globl {name}")
    e(".p2align 8")
    e(f".type {name},@function")
    e(f"{name}:")
    KA, VA, KB, VB = 16, 48, 80, 112
    ACC = 144
    QF = 176
    ST = 192
    PF = 200
    TR = 204
    M_, L_, T0, T1, AL, MC = 236, 237, 238, 239, 240, 241
    VKOFF, VVOFF = 242, 243
    WO = 244
    W2 = 252
    e("  s_cmp_ge_u32 s2, 256")
    e("  s_cbranch_scc1 K_END2" if OPT["prof"] else "  s_cbranch_scc1 K_END")
    e("  s_load_dwordx16 s[4:19], s[0:1], 0")
    e("  s_load_dwordx4 s[20:23], s[0:1], 64")
    e("  s_load_dwordx2 s[24:25], s[0:1], 80")
    e("  v_and_b32 v1, 63, v0")
    e("  v_lshrrev_b32 v2, 6, v0")
    e("  v_and_b32 v3, 15, v1")
    e("  v_lshrrev_b32 v4, 4, v1")
    e("  v_readfirstlane_b32 s3, v2")
    e(f"  s_and_b32 s{SG}, s2, 7")
    e(f"  s_lshr_b32 s{SR}, s2, 3")
    e(f"  s_and_b32 s{SNO}, s{SR}, 7")
    e(f"  s_lshl_b32 s{SCG}, s{SG}, 5")
    e(f"  s_add_u32 s{SCG}, s{SCG}, s{SR}")
    e(f"  s_lshr_b32 s{SHC}, s{SR}, 3")
    e(f"  s_lshl_b32 s{SHC}, s{SHC}, 6")
    e(f"  s_lshl_b32 s74, s{SG}, 3")
    e(f"  s_add_u32 s{SHC}, s{SHC}, s74")
    e(f"  s_add_u32 s{SHC}, s{SHC}, s{SNO}")
    e(f"  s_lshr_b32 s{SB}, s{SR}, 4")
    e(f"  s_and_b32 s{SSPL}, s{SR}, 15")
    e(f"  s_and_b32 s{SNC}, s2, 7")
    e(f"  s_lshr_b32 s{SHEAD}, s{SR}, 3")
    e(f"  s_lshl_b32 s74, s{SG}, 2")
    e(f"  s_add_u32 s{SHEAD}, s{SHEAD}, s74")
    e(f"  s_lshl_b32 s74, s{SB}, 3")
    e(f"  s_add_u32 s74, s74, s{SG}")
    e("  s_lshl_b32 s74, s74, 23")
    e(f"  s_lshl_b32 s75, s{SSPL}, {13 if OPT['ilv'] else 19}")
    e("  s_add_u32 s74, s74, s75")
    e(f"  s_mov_b32 s{SC}, 0x3e0293ee")
    e(f"  s_mov_b32 s{SP0}, 0x05040100")
    e(f"  s_mov_b32 s{SP1}, 0x07060302")
    e("  s_lshl_b32 s75, s3, 1")
    e(f"  s_sub_u32 s{IDXA}, s75, 2")
    e(f"  s_sub_u32 s{IDXB}, s75, 1")
    if OPT["nbuf"] == 1:
        e(f"  s_sub_u32 s{IDXA}, s3, 1")
        if OPT["nw"] < 8:
            e(f"  s_cmp_ge_u32 s3, {OPT['nw']}")
            e(f"  s_cselect_b32 s{IDXA}, 64, s{IDXA}")
    e("  s_cmp_eq_u32 s3, 0")
    e(f"  s_cselect_b32 s{IDXA}, 64, s{IDXA}")
    e(f"  s_cselect_b32 s{IDXB}, 64, s{IDXB}")
    e("  v_and_b32 v5, 3, v3")
    e("  v_lshrrev_b32 v6, 2, v3")
    e("  v_lshl_add_u32 v5, v5, 2, v6")
    e("  v_lshlrev_b32 v5, 8, v5")
    e(f"  v_lshl_add_u32 v{VKOFF}, v4, 4, v5")
    e(f"  v_lshlrev_b32 v{VVOFF}, 4, v1")
    if OPT["kx"]:
        e(f"  v_lshlrev_b32 v{VKOFF}, 4, v1")
    e("  s_waitcnt lgkmcnt(0)")
    srd(SX, 4, 5, 2048)
    srd(SWQ, 10, 11, 512 * 4096 * 2)
    srd(SW1, 16, 17, 512 * 1792 * 2)
    srd(SWO, 12, 13, 4096 * 512 * 2)
    srd(SW2, 18, 19, 1792 * 512 * 2)
    srd(SWS, 24, 25, WS_SIZE)
    srd(SDBG, 22, 23, 256)
    srd(SOUT, 20, 21, 2048)
    e(f"  s_add_u32 s{SK}, s6, s74")
    e(f"  s_addc_u32 s{SK+1}, s7, 0")
    e(f"  s_and_b32 s{SK+1}, s{SK+1}, 0xffff")
    if OPT['ilv']:
        e(f"  s_lshl_b32 s75, s{SSPL}, 13")
        e(f"  s_sub_u32 s{SK+2}, {8<<20}, s75")
    else:
        e(f"  s_mov_b32 s{SK+2}, 524288")
    e(f"  s_mov_b32 s{SK+3}, 0x00020000")
    e(f"  s_add_u32 s{SV}, s8, s74")
    e(f"  s_addc_u32 s{SV+1}, s9, 0")
    e(f"  s_and_b32 s{SV+1}, s{SV+1}, 0xffff")
    e(f"  s_mov_b32 s{SV+2}, s{SK+2}")
    e(f"  s_mov_b32 s{SV+3}, 0x00020000")
    e("  s_movk_i32 s71, 4096")
    stamp(0)
    e(f"  v_mov_b32 v5, {WS_EP}")
    e(f"  buffer_load_dword v231, v5, s[{SWS}:{SWS+3}], 0 offen sc1")
    e("  v_lshlrev_b32 v5, 4, v1")
    e(f"  buffer_load_dwordx4 v[204:207], v5, s[{SX}:{SX+3}], 0 offen")
    e(f"  buffer_load_dwordx4 v[208:211], v5, s[{SX}:{SX+3}], 0 offen offset:1024")
    e("  v_lshrrev_b32 v6, 2, v0")
    e("  v_and_b32 v7, 3, v0")
    e("  v_lshlrev_b32 v8, 13, v6")
    e("  v_lshl_add_u32 v8, v7, 3, v8")
    e(f"  s_lshl_b32 s75, s{SCG}, 5")
    e("  v_add_u32 v8, s75, v8")
    for i in range(4):
        if i == 0:
            e(f"  buffer_load_dwordx2 v[212:213], v8, s[{SWQ}:{SWQ+3}], 0 offen")
        else:
            e(f"  v_add_u32 v8, 0x100000, v8")
            e(f"  buffer_load_dwordx2 v[{212+2*i}:{213+2*i}], v8, s[{SWQ}:{SWQ+3}], 0 offen")
    e("  v_lshrrev_b32 v9, 1, v0")
    e("  v_and_b32 v10, 1, v0")
    e("  s_movk_i32 s75, 3584")
    e("  v_mul_lo_u32 v11, v9, s75")
    e("  v_lshl_add_u32 v11, v10, 3, v11")
    e(f"  s_lshl_b32 s75, s{SHC}, 4")
    e("  v_add_u32 v11, s75, v11")
    e(f"  buffer_load_dwordx2 v[220:221], v11, s[{SW1}:{SW1+3}], 0 offen")
    e(f"  v_add_u32 v11, {256*3584}, v11")
    e(f"  buffer_load_dwordx2 v[222:223], v11, s[{SW1}:{SW1+3}], 0 offen")

    def kchunk_l(KR, vo):
        r=[]
        if OPT["kx"]:
            for j in range(8):
                so = "0" if j < 4 else "s71"
                r.append(f"  buffer_load_dwordx4 v[{KR+4*j}:{KR+4*j+3}], v{vo}, s[{SK}:{SK+3}], {so} offen offset:{(j&3)*1024}{nt}")
            return r
        for t in range(2):
            for i in range(4):
                so = "0" if t == 0 else "s71"
                r.append(f"  buffer_load_dwordx4 v[{KR+16*t+4*i}:{KR+16*t+4*i+3}], v{vo}, s[{SK}:{SK+3}], {so} offen offset:{i*64}{POL['k']}")
        return r
    def vchunk_l(VR, vo):
        r=[]
        for j in range(8):
            so = "0" if j < 4 else "s71"
            r.append(f"  buffer_load_dwordx4 v[{VR+4*j}:{VR+4*j+3}], v{vo}, s[{SV}:{SV+3}], {so} offen offset:{(j&3)*1024}{POL['v']}")
        return r
    def kchunk(KR, vo):
        for l in kchunk_l(KR, vo): e(l)
    def vchunk(VR, vo):
        for l in vchunk_l(VR, vo): e(l)
    def loads(KR, VR, sidx):
        e(f"  s_lshl_b32 s75, s{sidx}, {BS}")
        e(f"  v_add_u32 v5, s75, v{VKOFF}")
        e(f"  v_add_u32 v6, s75, v{VVOFF}")
        kchunk(KR, 5)
        vchunk(VR, 6)
    def wo_loads():
        e("  v_lshlrev_b32 v14, 10, v12")
        e("  v_lshl_add_u32 v14, v13, 4, v14")
        e(f"  s_lshl_b32 s75, s{SNO}, 7")
        e("  v_add_u32 v15, s75, v14")
        e(f"  s_lshl_b32 s75, s{SHEAD}, 17")
        e("  v_add_u32 v15, s75, v15")
        e(f"  buffer_load_dwordx4 v[{WO}:{WO+3}], v15, s[{SWO}:{SWO+3}], 0 offen")
        e("  v_add_u32 v15, 0x10000, v15")
        e(f"  buffer_load_dwordx4 v[{WO+4}:{WO+7}], v15, s[{SWO}:{SWO+3}], 0 offen")
        e("  s_lshr_b32 s75, s2, 3")
        e("  s_lshl_b32 s75, s75, 16")
        e("  v_add_u32 v15, s75, v14")
        e(f"  s_lshl_b32 s75, s{SNC}, 7")
        e("  v_add_u32 v15, s75, v15")
        e(f"  buffer_load_dwordx4 v[{W2}:{W2+3}], v15, s[{SW2}:{SW2+3}], 0 offen")
    e("  v_lshrrev_b32 v12, 3, v0")
    e("  v_and_b32 v13, 7, v0")
    e(f"  s_lshl_b32 s75, s{IDXA}, {BS}")
    e(f"  v_add_u32 v224, s75, v{VKOFF}")
    e(f"  v_add_u32 v225, s75, v{VVOFF}")
    e(f"  s_lshl_b32 s75, s{IDXB}, {BS}")
    e(f"  v_add_u32 v226, s75, v{VKOFF}")
    e(f"  v_add_u32 v227, s75, v{VVOFF}")
    pl = kchunk_l(KA, 224) + vchunk_l(VA, 225) + kchunk_l(KB, 226) + vchunk_l(VB, 227)
    if OPT["nbuf"] == 1: pl = pl[:16]
    PRE0 = OPT["pre0"]
    if OPT["bar0"]:
        e("  s_barrier")
    for c in range(PRE0):
        e(pl[c])
    X = 144
    e(f"  s_waitcnt vmcnt({6+PRE0})")
    e("  v_readfirstlane_b32 s26, v231")
    e("  s_add_u32 s26, s26, 1")
    if OPT["prof"] == 2: stamp(4)
    for b in range(2):
        for c in range(4):
            e(f"  v_lshlrev_b32 v{X+8*b+2*c}, 16, v{204+4*b+c}")
            e(f"  v_and_b32 v{X+1+8*b+2*c}, 0xffff0000, v{204+4*b+c}")
    for b in range(2):
        e(f"  v_add_f32 v{160+b}, v{X+8*b}, v{X+1+8*b}")
        for c in range(2, 8):
            e(f"  v_add_f32 v{160+b}, v{160+b}, v{X+8*b+c}")
    wave_sum([160, 161], [162, 163])
    e("  v_mul_f32 v160, 0x3b000000, v160")
    e("  v_mul_f32 v161, 0x3b000000, v161")
    for b in range(2):
        e(f"  v_sub_f32 v166, v{X+8*b}, v{160+b}")
        e(f"  v_mul_f32 v{164+b}, v166, v166")
        for c in range(1, 8):
            e(f"  v_sub_f32 v166, v{X+8*b+c}, v{160+b}")
            e(f"  v_fmac_f32 v{164+b}, v166, v166")
    wave_sum([164, 165], [162, 163])
    e("  v_mul_f32 v164, 0x3b000000, v164")
    e("  v_mul_f32 v165, 0x3b000000, v165")
    for b in range(2):
        round_bf16(164 + b, 164 + b)
        e(f"  v_add_f32 v{164+b}, 0x3727c5ac, v{164+b}")
        round_bf16(164 + b, 164 + b)
        e(f"  v_sqrt_f32 v{164+b}, v{164+b}")
        e("  s_nop 0")
        round_bf16(164 + b, 164 + b)
        e(f"  v_rcp_f32 v{164+b}, v{164+b}")
        round_bf16(160 + b, 160 + b)
    for b in range(2):
        for c in range(8):
            r = X + 8 * b + c
            e(f"  v_sub_f32 v{r}, v{r}, v{160+b}")
            round_bf16(r, r)
            e(f"  v_mul_f32 v{r}, v{r}, v{164+b}")
            round_bf16(r, r)
    e("  v_lshlrev_b32 v5, 6, v1")
    for c in range(0, 8, 2):
        e(f"  v_mov_b32 v{168+2*c}, v{X+c}")
        e(f"  v_mov_b32 v{169+2*c}, v{X+8+c}")
        e(f"  v_mov_b32 v{170+2*c}, v{X+c+1}")
        e(f"  v_mov_b32 v{171+2*c}, v{X+8+c+1}")
        e(f"  ds_write_b128 v5, v[{168+2*c}:{171+2*c}] offset:{L_XN + c*8}")
    e("  s_waitcnt lgkmcnt(0)")
    e("  v_lshrrev_b32 v5, 2, v0")
    e("  v_lshlrev_b32 v5, 3, v5")
    e("  v_lshlrev_b32 v6, 3, v9")
    for i in range(4):
        e(f"  ds_read_b64 v[{168+2*i}:{169+2*i}], v5 offset:{L_XN + i*1024}")
    for i in range(2):
        e(f"  ds_read_b64 v[{176+2*i}:{177+2*i}], v6 offset:{L_XN + i*2048}")
    for r in range(180, 196):
        e(f"  v_mov_b32 v{r}, 0")
    if OPT["prof"] == 2: stamp(5)
    e(f"  s_waitcnt vmcnt({PRE0}) lgkmcnt(0)")
    if OPT["prof"] == 2: stamp(6)
    for i in range(4):
        for c in range(2):
            w = 212 + 2 * i + c
            e(f"  v_lshlrev_b32 v160, 16, v{w}")
            e(f"  v_and_b32 v161, 0xffff0000, v{w}")
            e(f"  v_fmac_f32 v{180+2*c}, v160, v{168+2*i}")
            e(f"  v_fmac_f32 v{181+2*c}, v161, v{168+2*i}")
            e(f"  v_fmac_f32 v{184+2*c}, v160, v{169+2*i}")
            e(f"  v_fmac_f32 v{185+2*c}, v161, v{169+2*i}")
    for i in range(2):
        for c in range(2):
            w = 220 + 2 * i + c
            e(f"  v_lshlrev_b32 v160, 16, v{w}")
            e(f"  v_and_b32 v161, 0xffff0000, v{w}")
            e(f"  v_fmac_f32 v{188+2*c}, v160, v{176+2*i}")
            e(f"  v_fmac_f32 v{189+2*c}, v161, v{176+2*i}")
            e(f"  v_fmac_f32 v{192+2*c}, v160, v{177+2*i}")
            e(f"  v_fmac_f32 v{193+2*c}, v161, v{177+2*i}")
    dpp_steps(list(range(188, 196)), ["quad_perm:[2,3,0,1]"])
    dpp_steps(list(range(180, 196)), ["row_ror:4", "row_ror:8"])
    swap_steps(list(range(180, 196)), list(range(204, 220)))
    e("  s_mul_i32 s75, s3, 192")
    e("  v_lshlrev_b32 v5, 4, v1")
    e("  v_add_u32 v5, s75, v5")
    e("  s_mov_b64 exec, 0xf")
    e(f"  ds_write_b128 v5, v[180:183] offset:{L_QP}")
    e(f"  ds_write_b128 v5, v[184:187] offset:{L_QP+64}")
    e("  s_mov_b64 exec, 0x3")
    e(f"  ds_write_b128 v5, v[188:191] offset:{L_QP+128}")
    e(f"  ds_write_b128 v5, v[192:195] offset:{L_QP+160}")
    e("  s_mov_b64 exec, -1")
    e("  s_waitcnt lgkmcnt(0)")
    if OPT["prof"] == 2: stamp(7)
    e("  s_barrier")
    e("  s_cmp_eq_u32 s3, 0")
    e("  s_cbranch_scc1 K_SRV")
    for c in range(PRE0, len(pl)):
        if OPT["pace"]:
            e(f"  s_waitcnt vmcnt({OPT['pace']-1})")
        e(pl[c])
    wo_loads()
    e("  s_branch K_B2")
    e("K_SRV:")
    e("  v_lshlrev_b32 v5, 3, v1")
    e("  s_mov_b64 exec, 0xffffff")
    for w in range(8):
        e(f"  ds_read_b64 v[{160+2*w}:{161+2*w}], v5 offset:{L_QP + w*192}")
    e("  v_lshrrev_b32 v6, 3, v1")
    e("  v_lshlrev_b32 v6, 14, v6")
    e("  v_and_b32 v7, 7, v1")
    e("  v_lshl_add_u32 v6, v7, 3, v6")
    stamp(1)
    e(f"  s_lshl_b32 s75, s{SCG}, 6")
    e(f"  s_add_u32 s75, s75, {WS_QG}")
    e("  v_add_u32 v6, s75, v6")
    e("  v_bfe_u32 v7, v1, 2, 1")
    e("  s_movk_i32 s75, 7168")
    e("  v_mul_lo_u32 v7, v7, s75")
    e("  v_and_b32 v8, 3, v1")
    e("  v_lshl_add_u32 v7, v8, 3, v7")
    e(f"  s_lshl_b32 s75, s{SHC}, 5")
    e(f"  s_add_u32 s75, s75, {WS_HG}")
    e("  v_add_u32 v7, s75, v7")
    e("  v_cmp_gt_u32 vcc, 16, v1")
    e("  v_cndmask_b32 v6, v7, v6, vcc")
    e("  s_waitcnt lgkmcnt(0)")
    for w in range(1, 8):
        e(f"  v_add_f32 v160, v160, v{160+2*w}")
        e(f"  v_add_f32 v161, v161, v{161+2*w}")
    e("  v_max_f32 v162, 0, v160")
    e("  v_max_f32 v163, 0, v161")
    e("  v_cndmask_b32 v160, v162, v160, vcc")
    e("  v_cndmask_b32 v161, v163, v161, vcc")
    e("  v_cvt_pk_bf16_f32 v160, v160, v161")
    e("  v_mov_b32 v161, s26")
    e("  s_mov_b32 s77, 0xffff")
    e(f"  s_cmp_lt_u32 s{SHC}, 224")
    e("  s_cselect_b32 s76, 0xffffff, s77")
    e("  s_mov_b32 exec_lo, s76")
    e(f"  buffer_store_dwordx2 v[160:161], v6, s[{SWS}:{SWS+3}], 0 offen sc1")
    e("  s_mov_b64 exec, -1")
    stamp(2)
    e(f"  s_lshl_b32 s75, s{SB}, 14")
    e(f"  s_lshl_b32 s76, s{SG}, 11")
    e("  s_add_u32 s75, s75, s76")
    e(f"  s_add_u32 s75, s75, {WS_QG}")
    e("  v_lshlrev_b32 v5, 5, v1")
    e("  v_add_u32 v5, s75, v5")
    e("  v_lshrrev_b32 v6, 5, v1")
    e("  s_movk_i32 s75, 7168")
    e("  v_mul_lo_u32 v7, v6, s75")
    e("  v_and_b32 v8, 31, v1")
    e("  v_lshl_add_u32 v7, v8, 3, v7")
    e("  s_lshr_b32 s75, s2, 3")
    e("  s_lshl_b32 s75, s75, 8")
    e(f"  s_add_u32 s75, s75, {WS_HG}")
    e("  v_add_u32 v7, s75, v7")
    e("  s_mov_b32 s74, 0x400000")
    e("K_P1:")
    e(f"  buffer_load_dwordx4 v[160:163], v5, s[{SWS}:{SWS+3}], 0 offen sc1")
    e(f"  buffer_load_dwordx4 v[164:167], v5, s[{SWS}:{SWS+3}], 0 offen offset:16 sc1")
    e(f"  buffer_load_dwordx2 v[168:169], v7, s[{SWS}:{SWS+3}], 0 offen sc1")
    e("  s_waitcnt vmcnt(0)")
    e("  v_cmp_ne_u32 vcc, s26, v161")
    e("  v_cmp_ne_u32 s[76:77], s26, v163")
    e("  s_or_b64 vcc, vcc, s[76:77]")
    e("  v_cmp_ne_u32 s[76:77], s26, v165")
    e("  s_or_b64 vcc, vcc, s[76:77]")
    e("  v_cmp_ne_u32 s[76:77], s26, v167")
    e("  s_or_b64 vcc, vcc, s[76:77]")
    e("  s_cmp_ge_u32 s2, 224")
    e("  s_cbranch_scc1 K_P1C")
    e("  v_cmp_ne_u32 s[76:77], s26, v169")
    e("  s_or_b64 vcc, vcc, s[76:77]")
    e("K_P1C:")
    e("  s_cmp_eq_u64 vcc, 0")
    e("  s_cbranch_scc1 K_P1_DONE")
    if OPT["sleep"]:
        e(f"  s_sleep {OPT['sleep']}")
    e("  s_sub_u32 s74, s74, 1")
    e("  s_cmp_lg_u32 s74, 0")
    e("  s_cbranch_scc1 K_P1")
    e("K_P1_DONE:")
    stamp(3)
    e("  v_mov_b32 v161, v162")
    e("  v_mov_b32 v162, v164")
    e("  v_mov_b32 v163, v166")
    e("  v_lshlrev_b32 v5, 4, v1")
    e(f"  ds_write_b128 v5, v[160:163] offset:{L_Q}")
    e("  v_lshlrev_b32 v164, 16, v168")
    e("  v_and_b32 v165, 0xffff0000, v168")
    e("  v_lshlrev_b32 v5, 3, v1")
    e(f"  ds_write_b64 v5, v[164:165] offset:{L_HV}")
    e(f"  s_mov_b32 s{IDXA}, {14 if OPT['nbuf']==2 else OPT['nw']-1}")
    e(f"  s_mov_b32 s{IDXB}, 15")
    e(f"  v_mov_b32 v9, {16 if OPT['nbuf']==2 else OPT['nw']}")
    e(f"  v_mov_b32 v10, {L_CNT}")
    e("  ds_write_b32 v10, v9")
    wo_loads()
    loads(KA, VA, IDXA)
    if OPT["nbuf"] == 2: loads(KB, VB, IDXB)
    e("  s_waitcnt lgkmcnt(0)")
    e("K_B2:")
    e("  s_barrier")
    e("  v_and_b32 v5, 3, v3")
    e("  v_lshlrev_b32 v5, 8, v5")
    e("  v_lshl_add_u32 v5, v4, 4, v5")
    for i in range(4):
        e(f"  ds_read_b128 v[{QF+4*i}:{QF+4*i+3}], v5 offset:{L_Q + i*64}")
    for r in range(32):
        e(f"  v_mov_b32 v{ACC+r}, 0")
    e(f"  v_mov_b32 v{M_}, 0xf149f2ca")
    e(f"  v_mov_b32 v{L_}, 0")
    e(f"  v_mov_b32 v7, {L_CNT}")
    e("  v_mov_b32 v8, 1")
    e("  s_waitcnt lgkmcnt(0)")

    def compute(KR, VR, vk, vv):
        e(f"  s_waitcnt vmcnt({vk})")
        for t in range(2):
            for i in range(4):
                c = "0" if i == 0 else f"v[{ST+4*t}:{ST+4*t+3}]"
                e(f"  v_mfma_f32_16x16x32_bf16 v[{ST+4*t}:{ST+4*t+3}], v[{KR+16*t+4*i}:{KR+16*t+4*i+3}], v[{QF+4*i}:{QF+4*i+3}], {c}")
        e("  s_nop 7")
        e("  s_nop 0")
        e(f"  v_max3_f32 v{T0}, v{ST}, v{ST+1}, v{ST+2}")
        e(f"  v_max3_f32 v{T1}, v{ST+3}, v{ST+4}, v{ST+5}")
        e(f"  v_max3_f32 v{T0}, v{T0}, v{ST+6}, v{ST+7}")
        e(f"  v_max_f32 v{T0}, v{T0}, v{T1}")
        e(f"  v_mov_b32 v{T1}, v{T0}")
        e("  s_nop 1")
        e(f"  v_permlane16_swap_b32 v{T0}, v{T1}")
        e("  s_nop 1")
        e(f"  v_max_f32 v{T0}, v{T0}, v{T1}")
        e(f"  v_mov_b32 v{T1}, v{T0}")
        e("  s_nop 1")
        e(f"  v_permlane32_swap_b32 v{T0}, v{T1}")
        e("  s_nop 1")
        e(f"  v_max3_f32 v{T0}, v{T0}, v{T1}, v{M_}")
        e(f"  v_sub_f32 v{AL}, v{M_}, v{T0}")
        e(f"  v_mul_f32 v{AL}, s{SC}, v{AL}")
        e(f"  v_exp_f32 v{AL}, v{AL}")
        e(f"  v_mov_b32 v{M_}, v{T0}")
        e(f"  v_mul_f32 v{MC}, s{SC}, v{T0}")
        for k in range(8):
            e(f"  v_fma_f32 v{ST+k}, v{ST+k}, s{SC}, -v{MC}")
        for k in range(8):
            e(f"  v_exp_f32 v{ST+k}, v{ST+k}")
        e("  s_nop 0")
        e(f"  v_mul_f32 v{L_}, v{L_}, v{AL}")
        for k in range(8):
            e(f"  v_add_f32 v{L_}, v{L_}, v{ST+k}")
        for q in range(4):
            e(f"  v_cvt_pk_bf16_f32 v{PF+q}, v{ST+2*q}, v{ST+2*q+1}")
        for r in range(32):
            e(f"  v_mul_f32 v{ACC+r}, v{ACC+r}, v{AL}")
        e(f"  s_waitcnt vmcnt({vv})")
        for t in range(8):
            c = t >> 1
            sel = f"s{SP1}" if (t & 1) else f"s{SP0}"
            for q in range(4):
                e(f"  v_perm_b32 v{TR+4*t+q}, v{VR+4*(2*q+1)+c}, v{VR+4*(2*q)+c}, {sel}")
        e("  s_nop 1")
        for t in range(8):
            e(f"  v_mfma_f32_16x16x32_bf16 v[{ACC+4*t}:{ACC+4*t+3}], v[{TR+4*t}:{TR+4*t+3}], v[{PF}:{PF+3}], v[{ACC+4*t}:{ACC+4*t+3}]")

    def fetch():
        e("  s_mov_b64 exec, 1")
        e("  ds_add_rtn_u32 v9, v7, v8")
        e("  s_mov_b64 exec, -1")
    def getidx(sidx):
        e("  s_waitcnt lgkmcnt(0)")
        e(f"  v_readfirstlane_b32 s{sidx}, v9")

    if OPT["nw"] < 8:
        e(f"  s_cmp_ge_u32 s3, {OPT['nw']}")
        e("  s_cbranch_scc1 K_EXIT")
    def gen_loop(sfx, last):
        e(f"K_LOOP{sfx}:")
        if OPT["nbuf"] == 2:
            fetch()
            compute(KA, VA, 24, 16)
            getidx(IDXA)
            loads(KA, VA, IDXA)
            e(f"  s_cmp_ge_u32 s{IDXB}, 64")
            e("  s_cbranch_scc1 K_EXIT")
            fetch()
            compute(KB, VB, 24, 16)
            getidx(IDXB)
            loads(KB, VB, IDXB)
            e(f"  s_cmp_lt_u32 s{IDXA}, 64")
            e(f"  s_cbranch_scc1 K_LOOP{sfx}")
        else:
            fetch()
            compute(KA, VA, 8, 0)
            getidx(IDXA)
            loads(KA, VA, IDXA)
            e(f"  s_cmp_lt_u32 s{IDXA}, 64")
            e(f"  s_cbranch_scc1 K_LOOP{sfx}")
        if not last:
            e("  s_branch K_EXIT")
    if OPT["T"]:
        e(f"  s_lshl_b32 s75, s{SB}, 3")
        e(f"  s_add_u32 s75, s75, s{SG}")
        e(f"  s_cmp_lt_u32 s75, {OPT['T']}")
        e("  s_cbranch_scc1 K_LOOPlo")
        POL["k"] = "" if OPT["phi"] & 1 else nt
        POL["v"] = "" if OPT["phi"] & 2 else nt
        gen_loop("hi", False)
        POL["k"] = "" if OPT["plo"] & 1 else nt
        POL["v"] = "" if OPT["plo"] & 2 else nt
        gen_loop("lo", True)
    else:
        gen_loop("", True)
    e("K_EXIT:")
    if OPT["prof"] == 1: stamp(4)
    e(f"  v_mov_b32 v{T1}, v{L_}")
    e("  s_nop 1")
    e(f"  v_permlane16_swap_b32 v{L_}, v{T1}")
    e("  s_nop 1")
    e(f"  v_add_f32 v{L_}, v{L_}, v{T1}")
    e(f"  v_mov_b32 v{T1}, v{L_}")
    e("  s_nop 1")
    e(f"  v_permlane32_swap_b32 v{L_}, v{T1}")
    e("  s_nop 1")
    e(f"  v_add_f32 v{L_}, v{L_}, v{T1}")
    e("  v_cmp_gt_u32 vcc, 4, v3")
    e("  s_and_saveexec_b64 s[78:79], vcc")
    e("  v_lshlrev_b32 v5, 11, v2")
    e("  v_lshl_add_u32 v5, v3, 9, v5")
    e("  v_lshl_add_u32 v5, v4, 7, v5")
    e("  s_nop 4")
    for t in range(8):
        for r in range(4):
            e(f"  ds_write_b32 v5, v{ACC+4*t+r} offset:{L_O + (r*8+t)*4}")
    e("  v_cmp_gt_u32 vcc, 4, v1")
    e("  s_and_b64 exec, exec, vcc")
    e("  v_lshlrev_b32 v6, 5, v2")
    e("  v_lshl_add_u32 v6, v3, 3, v6")
    e(f"  ds_write_b32 v6, v{M_} offset:{L_ML}")
    e(f"  ds_write_b32 v6, v{L_} offset:{L_ML+4}")
    e("  s_mov_b64 exec, s[78:79]")
    e("  s_waitcnt lgkmcnt(0)")
    e("  s_barrier")
    e("  v_lshrrev_b32 v5, 7, v0")
    e("  v_and_b32 v6, 127, v0")
    e("  v_lshlrev_b32 v7, 3, v5")
    for w in range(8):
        e(f"  ds_read_b64 v[{160+2*w}:{161+2*w}], v7 offset:{L_ML + w*32}")
    e("  v_lshlrev_b32 v8, 9, v5")
    e("  v_lshl_add_u32 v8, v6, 2, v8")
    for w in range(8):
        e(f"  ds_read_b32 v{176+w}, v8 offset:{L_O + w*2048}")
    e("  s_waitcnt lgkmcnt(0)")
    e("  v_max3_f32 v184, v160, v162, v164")
    e("  v_max3_f32 v185, v166, v168, v170")
    e("  v_max3_f32 v184, v184, v172, v174")
    e("  v_max_f32 v184, v184, v185")
    e("  v_mov_b32 v186, 0")
    e("  v_mov_b32 v187, 0")
    for w in range(8):
        e(f"  v_sub_f32 v185, v{160+2*w}, v184")
        e(f"  v_mul_f32 v185, s{SC}, v185")
        e("  v_exp_f32 v185, v185")
        e("  s_nop 0")
        e(f"  v_fmac_f32 v186, v185, v{161+2*w}")
        e(f"  v_fmac_f32 v187, v185, v{176+w}")
    e(f"  s_lshl_b32 s75, s{SB}, 5")
    e(f"  s_lshl_b32 s76, s{SG}, 2")
    e("  s_add_u32 s75, s75, s76")
    e("  s_lshl_b32 s75, s75, 4")
    e(f"  s_add_u32 s75, s75, s{SSPL}")
    e("  v_lshlrev_b32 v7, 4, v5")
    e("  v_add_u32 v7, s75, v7")
    e("  v_lshlrev_b32 v8, 10, v7")
    e("  v_lshl_add_u32 v8, v6, 3, v8")
    e(f"  s_mov_b32 s75, {WS_OG}")
    e("  v_mov_b32 v188, v187")
    e("  v_mov_b32 v189, s26")
    e(f"  buffer_store_dwordx2 v[188:189], v8, s[{SWS}:{SWS+3}], s75 offen sc1")
    e("  v_cmp_eq_u32 vcc, 0, v6")
    e("  s_and_saveexec_b64 s[78:79], vcc")
    e("  v_lshlrev_b32 v7, 4, v7")
    e("  v_mov_b32 v185, v186")
    e("  v_mov_b32 v186, s26")
    e(f"  s_mov_b32 s75, {WS_MG}")
    e(f"  buffer_store_dwordx3 v[184:186], v7, s[{SWS}:{SWS+3}], s75 offen sc1")
    e("  s_mov_b64 exec, s[78:79]")
    if OPT["prof"] == 1: stamp(5)

    def prod(wregs, vecaddr_rows, accbase, nrows):
        for r in range(16):
            e(f"  v_mov_b32 v{accbase+r}, 0")
        for i in range(nrows):
            for c in range(4):
                w = wregs + 4 * i + c
                e(f"  v_lshlrev_b32 v160, 16, v{w}")
                e(f"  v_and_b32 v161, 0xffff0000, v{w}")
                e(f"  v_fmac_f32 v{accbase+2*c}, v160, v{168+2*i}")
                e(f"  v_fmac_f32 v{accbase+1+2*c}, v161, v{168+2*i}")
                e(f"  v_fmac_f32 v{accbase+8+2*c}, v160, v{169+2*i}")
                e(f"  v_fmac_f32 v{accbase+9+2*c}, v161, v{169+2*i}")
        dpp_steps(list(range(accbase, accbase + 16)), ["row_ror:8"])

    def reduce_store(lbase, label, snc):
        e("  v_lshlrev_b32 v5, 2, v2")
        e("  v_add_u32 v5, v5, v4")
        e("  v_lshlrev_b32 v5, 9, v5")
        e("  v_and_b32 v6, 7, v1")
        e("  v_lshl_add_u32 v5, v6, 5, v5")
        e("  v_and_b32 v6, 8, v1")
        e("  v_cmp_eq_u32 vcc, 0, v6")
        e("  s_and_saveexec_b64 s[78:79], vcc")
        e(f"  ds_write_b128 v5, v[180:183] offset:{lbase}")
        e(f"  ds_write_b128 v5, v[184:187] offset:{lbase+16}")
        e(f"  ds_write_b128 v5, v[188:191] offset:{lbase+256}")
        e(f"  ds_write_b128 v5, v[192:195] offset:{lbase+256+16}")
        e("  s_mov_b64 exec, s[78:79]")
        e("  s_waitcnt lgkmcnt(0)")
        e("  s_barrier")
        e("  s_cmp_ge_u32 s3, 2")
        e(f"  s_cbranch_scc1 {label}")
        e("  v_lshlrev_b32 v5, 2, v0")
        for p in range(32):
            e(f"  ds_read_b32 v{204+p}, v5 offset:{lbase + p*512}")
        e("  s_waitcnt lgkmcnt(0)")
        for p in range(1, 31, 2):
            e(f"  v_add_f32 v{204+p}, v{204+p}, v{205+p}")
        e("  v_add_f32 v204, v204, v235")
        for p in range(1, 31, 2):
            e(f"  v_add_f32 v204, v204, v{204+p}")
        e("  v_lshlrev_b32 v5, 12, v2")
        e("  v_lshl_add_u32 v5, v1, 3, v5")
        e(f"  s_lshl_b32 s76, s{snc}, 9")
        e(f"  s_add_u32 s75, s75, s76")
        e("  v_mov_b32 v205, s26")
        e(f"  buffer_store_dwordx2 v[204:205], v5, s[{SWS}:{SWS+3}], s75 offen sc1")
        e(f"{label}:")

    e("  s_cmp_ge_u32 s2, 224")
    e("  s_cbranch_scc1 K_T4")
    e("  v_lshlrev_b32 v5, 2, v12")
    e(f"  ds_read_b32 v168, v5 offset:{L_HV}")
    e(f"  ds_read_b32 v169, v5 offset:{L_HV+256}")
    e("  s_waitcnt lgkmcnt(0)")
    prod(W2, None, 180, 1)
    e("  s_lshr_b32 s75, s2, 3")
    e("  s_lshl_b32 s75, s75, 13")
    e(f"  s_add_u32 s75, s75, {WS_GG}")
    reduce_store(L_FP, "K_T3B", SNC)
    e("K_T4:")
    e("  s_cmp_ge_u32 s3, 4")
    e("  s_cbranch_scc1 K_T6")
    e("  v_lshrrev_b32 v6, 7, v0")
    e("  v_and_b32 v7, 127, v0")
    e("  v_lshlrev_b32 v8, 5, v6")
    e(f"  v_add_u32 v8, s{SHEAD}, v8")
    e("  v_lshlrev_b32 v9, 8, v8")
    e("  v_lshlrev_b32 v10, 14, v8")
    e("  v_lshl_add_u32 v10, v7, 3, v10")
    e(f"  s_mov_b32 s76, {WS_MG}")
    def iss2(sp):
        e(f"  s_mov_b32 s75, {WS_OG + 4096*(sp>>2)}")
        bits = {0:"", 1:" sc1", 2:" sc0", 3:" sc0 sc1", 4:" nt", 5:" sc0 nt"}[OPT["p2"]]
        e(f"  buffer_load_dwordx2 v[{16+2*sp}:{17+2*sp}], v10, s[{SWS}:{SWS+3}], s75 offen offset:{(sp&3)*1024}{bits}")
        e(f"  buffer_load_dwordx3 v[{48+4*sp}:{50+4*sp}], v9, s[{SWS}:{SWS+3}], s76 offen offset:{sp*16}{bits}")
    mpoll("K_P2", 16, iss2, lambda sp: [17+2*sp, 50+4*sp], OPT["thr"])
    if OPT["prof"] == 1: stamp(6)
    M = lambda sp: 48+4*sp
    e(f"  v_max3_f32 v112, v{M(0)}, v{M(1)}, v{M(2)}")
    for sp in range(3, 15, 2):
        e(f"  v_max3_f32 v112, v112, v{M(sp)}, v{M(sp+1)}")
    e(f"  v_max_f32 v112, v112, v{M(15)}")
    e("  v_mov_b32 v113, 0")
    e("  v_mov_b32 v114, 0")
    for sp in range(16):
        e(f"  v_sub_f32 v{M(sp)}, v{M(sp)}, v112")
        e(f"  v_mul_f32 v{M(sp)}, s{SC}, v{M(sp)}")
        e(f"  v_exp_f32 v{M(sp)}, v{M(sp)}")
    e("  s_nop 0")
    for sp in range(16):
        e(f"  v_fmac_f32 v113, v{M(sp)}, v{M(sp)+1}")
        e(f"  v_fmac_f32 v114, v{M(sp)}, v{16+2*sp}")
    e("  v_mov_b32 v49, v113")
    e("  v_mov_b32 v50, v114")
    e("  v_rcp_f32 v49, v49")
    e("  s_nop 0")
    e("  v_mul_f32 v50, v50, v49")
    round_bf16(50, 50)
    e("  v_lshlrev_b32 v8, 2, v0")
    e(f"  ds_write_b32 v8, v50 offset:{L_VEC}")
    e("  s_waitcnt lgkmcnt(0)")
    e("K_T6:")
    e("  s_barrier")
    e("  v_lshlrev_b32 v5, 2, v12")
    e(f"  ds_read_b32 v168, v5 offset:{L_VEC}")
    e(f"  ds_read_b32 v169, v5 offset:{L_VEC+512}")
    e(f"  ds_read_b32 v170, v5 offset:{L_VEC+256}")
    e(f"  ds_read_b32 v171, v5 offset:{L_VEC+512+256}")
    e("  s_waitcnt lgkmcnt(0)")
    prod(WO, None, 180, 2)
    e(f"  s_lshl_b32 s75, s{SHEAD}, 13")
    e(f"  s_add_u32 s75, s75, {WS_SG}")
    reduce_store(L_SP, "K_T6B", SNO)
    if OPT["prof"] == 1: stamp(7)
    e("  s_cmp_ge_u32 s2, 8")
    e("  s_cbranch_scc1 K_END")
    e("  s_cmp_ge_u32 s3, 4")
    e("  s_cbranch_scc1 K_END")
    def gpoll(label, n, base):
        def iss(k):
            e(f"  s_mov_b32 s75, {base + k*8192}")
            e(f"  buffer_load_dwordx2 v[{16+2*k}:{17+2*k}], v10, s[{SWS}:{SWS+3}], s75 offen sc1")
        mpoll(label, n, iss, lambda k: [17+2*k], None)
        for k in range(1, n):
            e(f"  v_add_f32 v16, v16, v{16+2*k}")
    e("  v_and_b32 v5, 1, v2")
    e("  v_lshlrev_b32 v5, 11, v5")
    e("  v_lshl_add_u32 v5, v1, 2, v5")
    e(f"  s_lshl_b32 s76, s{SNC}, 8")
    e("  v_add_u32 v5, s76, v5")
    e("  v_lshlrev_b32 v10, 1, v5")
    e("  s_cmp_ge_u32 s3, 2")
    e("  s_cbranch_scc1 K_FG")
    e("  v_lshrrev_b32 v6, 1, v5")
    e(f"  buffer_load_ushort v4, v6, s[{SX}:{SX+3}], 0 offen")
    gpoll("K_P3", 32, WS_SG)
    round_bf16(16, 16)
    e("  s_barrier")
    e("  v_lshlrev_b32 v7, 2, v0")
    e(f"  ds_read_b32 v8, v7 offset:{L_GX}")
    e("  s_waitcnt lgkmcnt(0)")
    e("  v_mul_f32 v8, v8, v16")
    round_bf16(8, 8)
    e("  v_lshlrev_b32 v4, 16, v4")
    e("  v_add_f32 v8, v8, v4")
    e("  v_cvt_pk_bf16_f32 v8, v8, v8")
    e(f"  buffer_store_short v8, v6, s[{SOUT}:{SOUT+3}], 0 offen")
    e("  s_or_b32 s75, s2, s3")
    e("  s_cmp_lg_u32 s75, 0")
    e("  s_cbranch_scc1 K_END")
    e("  s_mov_b64 exec, 1")
    e(f"  v_mov_b32 v5, {WS_EP}")
    e("  v_mov_b32 v6, s26")
    e(f"  buffer_store_dword v6, v5, s[{SWS}:{SWS+3}], 0 offen")
    e("  s_branch K_END")
    e("K_FG:")
    gpoll("K_P4", 28, WS_GG)
    round_bf16(16, 16)
    e("  v_mul_f32 v5, 0xbfb8aa3b, v16")
    e("  v_exp_f32 v5, v5")
    e("  s_nop 0")
    e("  v_add_f32 v5, 1.0, v5")
    e("  v_rcp_f32 v5, v5")
    e("  s_nop 0")
    e("  v_mul_f32 v5, v5, v16")
    round_bf16(5, 5)
    e("  v_and_b32 v7, 127, v0")
    e("  v_lshlrev_b32 v7, 2, v7")
    e(f"  ds_write_b32 v7, v5 offset:{L_GX}")
    e("  s_waitcnt lgkmcnt(0)")
    e("  s_barrier")
    e("K_END:")
    dump_stamps()
    e("  s_endpgm")
    e('.section .rodata,"a"')
    e(".p2align 6")
    e(f".amdhsa_kernel {name}")
    e("  .amdhsa_next_free_vgpr 256")
    e("  .amdhsa_next_free_sgpr 102")
    e("  .amdhsa_accum_offset 256")
    e("  .amdhsa_group_segment_fixed_size 0")
    e("  .amdhsa_kernarg_size 88")
    e("  .amdhsa_user_sgpr_count 2")
    e("  .amdhsa_user_sgpr_kernarg_segment_ptr 1")
    e("  .amdhsa_system_sgpr_workgroup_id_x 1")
    e(".end_amdhsa_kernel")

def main():
    path = f"cdna_kernels/{NAME}.s"
    for a in sys.argv[1:]:
        if "=" in a:
            k, v = a.split("=", 1)
            OPT[k] = (" " + v if v else "") if k == "nt" else int(v)
        else:
            path = a
    e(HEADER.rstrip("\n"))
    e(f"; @launch grid=(256,1,1) block=(512,1,1) lds={LDS_SIZE}")
    e('.amdgcn_target "amdgcn-amd-amdhsa--gfx950"')
    gen()
    open(path, "w").write("\n".join(out) + "\n")

main()
```

```python
import sys

NAME = "recurrent_scan__gqa_block_cached__dense_activation_relu__decode"

HEADER = """; Kernarg layout for this problem (88 bytes, ptrs only, base s[0:1]):
;   offset   0: d_in[0] A_x  shape=(2, 1, 512) dtype=bfloat16 strides=(1024, 1024, 2) contiguous=True
;   offset   8: d_in[1] A_k_cache  shape=(2, 8, 32768, 128) dtype=bfloat16 strides=(67108864, 8388608, 256, 2) contiguous=True
;   offset  16: d_in[2] A_v_cache  shape=(2, 8, 32768, 128) dtype=bfloat16 strides=(67108864, 8388608, 256, 2) contiguous=True
;   offset  24: d_in[3] A_wq  shape=(512, 4096) dtype=bfloat16 strides=(8192, 2) contiguous=True
;   offset  32: d_in[4] A_wo  shape=(4096, 512) dtype=bfloat16 strides=(1024, 2) contiguous=True
;   offset  40: d_in[5] B_x  shape=(2, 1, 512) dtype=bfloat16 strides=(1024, 1024, 2) contiguous=True
;   offset  48: d_in[6] B_w1  shape=(512, 1792) dtype=bfloat16 strides=(3584, 2) contiguous=True
;   offset  56: d_in[7] B_w2  shape=(1792, 512) dtype=bfloat16 strides=(1024, 2) contiguous=True
"""

WS_Q = 0
WS_H = 16384
WS_ML = 32768
WS_O = 65536
WS_P = 1 << 20
WS_G = WS_P + 131072
WS_SIZE = 536870912
WS_QG = 2 << 20
WS_HG = WS_QG + 32768
WS_EP = WS_QG + 65536
WS_OG = 5 << 20
WS_MG = 6 << 20
WS_SG = WS_MG + 65536
WS_GG = 7 << 20

L_XN = 0
L_QP = 4096
L_Q = 5632
L_HV = 6656
L_CNT = 7168
L_O = 8192
L_ML = 24576
L_FP = 25600
L_VEC = 0
L_SP = 8192
L_GX = 1024
LDS_SIZE = 41984

OPT = dict(nt=" nt", sleep=1, prof=0, pre0=8, pace=8, bar0=1, wsc=0, thr=2, p2=1, ilv=0, kx=0, nbuf=1, nw=8, kpl=0, vpl=0, T=0, plo=0, phi=0, mf=1)

out = []
def e(s=""):
    out.append(s)

def srd(dst, lo, hi, nbytes):
    e(f"  s_mov_b32 s{dst}, s{lo}")
    e(f"  s_and_b32 s{dst+1}, s{hi}, 0xffff")
    e(f"  s_mov_b32 s{dst+2}, {nbytes}")
    e(f"  s_mov_b32 s{dst+3}, 0x00020000")

def dpp_steps(regs, ctrls):
    for ctrl in ctrls:
        e("  s_nop 1")
        for r in regs:
            e(f"  v_add_f32_dpp v{r}, v{r}, v{r} {ctrl} row_mask:0xf bank_mask:0xf")

def swap_steps(regs, tmp):
    for sw in ["v_permlane16_swap_b32", "v_permlane32_swap_b32"]:
        for r, t in zip(regs, tmp):
            e(f"  v_mov_b32 v{t}, v{r}")
        e("  s_nop 1")
        for r, t in zip(regs, tmp):
            e(f"  {sw} v{r}, v{t}")
        e("  s_nop 1")
        for r, t in zip(regs, tmp):
            e(f"  v_add_f32 v{r}, v{r}, v{t}")

def wave_sum(regs, tmp):
    dpp_steps(regs, ["quad_perm:[1,0,3,2]", "quad_perm:[2,3,0,1]", "row_half_mirror", "row_mirror"])
    swap_steps(regs, tmp)

def round_bf16(dst, src):
    e(f"  v_cvt_pk_bf16_f32 v{dst}, v{src}, v{src}")
    e(f"  v_lshlrev_b32 v{dst}, 16, v{dst}")

WS_PROF = 4 << 20
def stamp(k):
    if not OPT["prof"]:
        return
    e("  s_memrealtime s[80:81]")
    e("  s_waitcnt lgkmcnt(0)")
    e(f"  s_mov_b32 s{92+k}, s80")

def dump_stamps():
    if not OPT["prof"]:
        return
    e("  s_cmp_ge_u32 s3, 2")
    e("  s_cbranch_scc1 K_END2")
    e("  s_cmp_ge_u32 s2, 256")
    e("  s_cbranch_scc1 K_END2")
    stamp(8)
    e("  s_lshl_b32 s82, s2, 1")
    e("  s_add_u32 s82, s82, s3")
    e("  s_lshl_b32 s82, s82, 6")
    e(f"  s_add_u32 s82, s82, {WS_PROF}")
    e("  s_mov_b64 exec, 1")
    e("  v_mov_b32 v6, 0")
    for k in range(9):
        e(f"  v_mov_b32 v5, s{92+k}")
        e(f"  buffer_store_dword v5, v6, s[{SWS}:{SWS+3}], s82 offen offset:{k*4}")
    e("K_END2:")

SX, SK, SV, SWQ, SW1, SWO, SW2, SWS, SDBG, SOUT = 28, 32, 36, 40, 44, 48, 52, 56, 60, 64
SC, SP0, SP1 = 68, 69, 70
IDXA, IDXB = 72, 73
SG, SR, SB, SSPL, SNC, SHEAD = 86, 87, 88, 89, 90, 91
SNO, SCG, SHC = 83, 84, 85

def poll(label, nlanes, voff, target, tmpv):
    e(f"  s_mov_b64 exec, {(1<<nlanes)-1:#x}")
    e("  s_mov_b32 s74, 0x400000")
    e(f"{label}:")
    e(f"  buffer_load_dword v{tmpv}, v{voff}, s[{SDBG}:{SDBG+3}], 0 offen sc1")
    e("  s_waitcnt vmcnt(0)")
    e(f"  v_cmp_ne_u32 vcc, {target}, v{tmpv}")
    e("  s_cmp_eq_u64 vcc, 0")
    e(f"  s_cbranch_scc1 {label}_DONE")
    if OPT["sleep"]:
        e(f"  s_sleep {OPT['sleep']}")
    e("  s_sub_u32 s74, s74, 1")
    e("  s_cmp_lg_u32 s74, 0")
    e(f"  s_cbranch_scc1 {label}")
    e(f"{label}_DONE:")
    e("  s_mov_b64 exec, -1")

def mpoll(label, n, issue, tags, thr):
    full = (1 << n) - 1
    e("  s_not_b32 s75, s26")
    for k in range(n):
        for x in tags(k):
            e(f"  v_mov_b32 v{x}, s75")
    e("  s_mov_b32 s77, 0")
    e("  s_mov_b32 s74, 0x100000")
    e(f"{label}:")
    for k in range(n):
        e(f"  s_bitcmp1_b32 s77, {k}")
        e(f"  s_cbranch_scc1 {label}S{k}")
        issue(k)
        e(f"{label}S{k}:")
    if thr is not None:
        e(f"  s_xor_b32 s75, s77, {full:#x}")
        e("  s_bcnt1_i32_b32 s75, s75")
        e(f"  s_cmp_le_u32 s75, {thr}")
        e(f"  s_cbranch_scc1 {label}F")
        e("  s_waitcnt vmcnt(0)")
        e(f"{label}F:")
    if OPT["sleep"]:
        e(f"  s_sleep {OPT['sleep']}")
    for k in range(n):
        t = tags(k)
        e(f"  v_cmp_eq_u32 vcc, s26, v{t[0]}")
        for x in t[1:]:
            e(f"  v_cmp_eq_u32 s[78:79], s26, v{x}")
            e("  s_and_b64 vcc, vcc, s[78:79]")
        e("  s_cmp_eq_u64 vcc, -1")
        e(f"  s_cselect_b32 s75, {1<<k:#x}, 0")
        e("  s_or_b32 s77, s77, s75")
    e(f"  s_cmp_eq_u32 s77, {full:#x}")
    e(f"  s_cbranch_scc1 {label}_DONE")
    e("  s_sub_u32 s74, s74, 1")
    e("  s_cmp_lg_u32 s74, 0")
    e(f"  s_cbranch_scc1 {label}")
    e(f"{label}_DONE:")
    e("  s_waitcnt vmcnt(0)")

def gen():
    nt = OPT["nt"]
    BS = 17 if OPT["ilv"] else 13
    POL = dict(k="" if OPT["kpl"] else nt, v="" if OPT["vpl"] else nt)
    name = NAME + "_kernel"
    e(".text")
    e(f".globl {name}")
    e(".p2align 8")
    e(f".type {name},@function")
    e(f"{name}:")
    KA, VA, KB, VB = 16, 48, 80, 112
    ACC = 144
    QF = 176
    ST = 192
    PF = 200
    TR = 204
    M_, L_, T0, T1, AL, MC = 236, 237, 238, 239, 240, 241
    VKOFF, VVOFF = 242, 243
    WO = 244
    W2 = 252
    e("  s_cmp_ge_u32 s2, 256")
    e("  s_cbranch_scc1 K_END2" if OPT["prof"] else "  s_cbranch_scc1 K_END")
    e("  s_load_dwordx16 s[4:19], s[0:1], 0")
    e("  s_load_dwordx4 s[20:23], s[0:1], 64")
    e("  s_load_dwordx2 s[24:25], s[0:1], 80")
    e("  v_and_b32 v1, 63, v0")
    e("  v_lshrrev_b32 v2, 6, v0")
    e("  v_and_b32 v3, 15, v1")
    e("  v_lshrrev_b32 v4, 4, v1")
    e("  v_readfirstlane_b32 s3, v2")
    e(f"  s_and_b32 s{SG}, s2, 7")
    e(f"  s_lshr_b32 s{SR}, s2, 3")
    e(f"  s_and_b32 s{SNO}, s{SR}, 7")
    e(f"  s_lshl_b32 s{SCG}, s{SG}, 5")
    e(f"  s_add_u32 s{SCG}, s{SCG}, s{SR}")
    e(f"  s_lshr_b32 s{SHC}, s{SR}, 3")
    e(f"  s_lshl_b32 s{SHC}, s{SHC}, 6")
    e(f"  s_lshl_b32 s74, s{SG}, 3")
    e(f"  s_add_u32 s{SHC}, s{SHC}, s74")
    e(f"  s_add_u32 s{SHC}, s{SHC}, s{SNO}")
    e(f"  s_lshr_b32 s{SB}, s{SR}, 4")
    e(f"  s_and_b32 s{SSPL}, s{SR}, 15")
    e(f"  s_and_b32 s{SNC}, s2, 7")
    e(f"  s_lshr_b32 s{SHEAD}, s{SR}, 3")
    e(f"  s_lshl_b32 s74, s{SG}, 2")
    e(f"  s_add_u32 s{SHEAD}, s{SHEAD}, s74")
    e(f"  s_lshl_b32 s74, s{SB}, 3")
    e(f"  s_add_u32 s74, s74, s{SG}")
    e("  s_lshl_b32 s74, s74, 23")
    e(f"  s_lshl_b32 s75, s{SSPL}, {13 if OPT['ilv'] else 19}")
    e("  s_add_u32 s74, s74, s75")
    e(f"  s_mov_b32 s{SC}, 0x3e0293ee")
    e(f"  s_mov_b32 s{SP0}, 0x05040100")
    e(f"  s_mov_b32 s{SP1}, 0x07060302")
    e("  s_lshl_b32 s75, s3, 1")
    e(f"  s_sub_u32 s{IDXA}, s75, 2")
    e(f"  s_sub_u32 s{IDXB}, s75, 1")
    if OPT["nbuf"] == 1:
        e(f"  s_sub_u32 s{IDXA}, s3, 1")
        if OPT["nw"] < 8:
            e(f"  s_cmp_ge_u32 s3, {OPT['nw']}")
            e(f"  s_cselect_b32 s{IDXA}, 64, s{IDXA}")
    e("  s_cmp_eq_u32 s3, 0")
    e(f"  s_cselect_b32 s{IDXA}, 64, s{IDXA}")
    e(f"  s_cselect_b32 s{IDXB}, 64, s{IDXB}")
    e("  v_and_b32 v5, 3, v3")
    e("  v_lshrrev_b32 v6, 2, v3")
    e("  v_lshl_add_u32 v5, v5, 2, v6")
    e("  v_lshlrev_b32 v5, 8, v5")
    e(f"  v_lshl_add_u32 v{VKOFF}, v4, 4, v5")
    e(f"  v_lshlrev_b32 v{VVOFF}, 4, v1")
    if OPT["kx"]:
        e(f"  v_lshlrev_b32 v{VKOFF}, 4, v1")
    e("  s_waitcnt lgkmcnt(0)")
    srd(SX, 4, 5, 2048)
    srd(SWQ, 10, 11, 512 * 4096 * 2)
    srd(SW1, 16, 17, 512 * 1792 * 2)
    srd(SWO, 12, 13, 4096 * 512 * 2)
    srd(SW2, 18, 19, 1792 * 512 * 2)
    srd(SWS, 24, 25, WS_SIZE)
    srd(SDBG, 22, 23, 256)
    srd(SOUT, 20, 21, 2048)
    e(f"  s_add_u32 s{SK}, s6, s74")
    e(f"  s_addc_u32 s{SK+1}, s7, 0")
    e(f"  s_and_b32 s{SK+1}, s{SK+1}, 0xffff")
    if OPT['ilv']:
        e(f"  s_lshl_b32 s75, s{SSPL}, 13")
        e(f"  s_sub_u32 s{SK+2}, {8<<20}, s75")
    else:
        e(f"  s_mov_b32 s{SK+2}, 524288")
    e(f"  s_mov_b32 s{SK+3}, 0x00020000")
    e(f"  s_add_u32 s{SV}, s8, s74")
    e(f"  s_addc_u32 s{SV+1}, s9, 0")
    e(f"  s_and_b32 s{SV+1}, s{SV+1}, 0xffff")
    e(f"  s_mov_b32 s{SV+2}, s{SK+2}")
    e(f"  s_mov_b32 s{SV+3}, 0x00020000")
    e("  s_movk_i32 s71, 4096")
    stamp(0)
    e(f"  v_mov_b32 v5, {WS_EP}")
    e(f"  buffer_load_dword v231, v5, s[{SWS}:{SWS+3}], 0 offen sc1")
    e("  v_lshlrev_b32 v5, 4, v1")
    e(f"  buffer_load_dwordx4 v[204:207], v5, s[{SX}:{SX+3}], 0 offen")
    e(f"  buffer_load_dwordx4 v[208:211], v5, s[{SX}:{SX+3}], 0 offen offset:1024")
    e("  v_lshrrev_b32 v6, 2, v0")
    e("  v_and_b32 v7, 3, v0")
    e("  v_lshlrev_b32 v8, 13, v6")
    e("  v_lshl_add_u32 v8, v7, 3, v8")
    e(f"  s_lshl_b32 s75, s{SCG}, 5")
    e("  v_add_u32 v8, s75, v8")
    for i in range(4):
        if i == 0:
            e(f"  buffer_load_dwordx2 v[212:213], v8, s[{SWQ}:{SWQ+3}], 0 offen")
        else:
            e(f"  v_add_u32 v8, 0x100000, v8")
            e(f"  buffer_load_dwordx2 v[{212+2*i}:{213+2*i}], v8, s[{SWQ}:{SWQ+3}], 0 offen")
    e("  v_lshrrev_b32 v9, 1, v0")
    e("  v_and_b32 v10, 1, v0")
    e("  s_movk_i32 s75, 3584")
    e("  v_mul_lo_u32 v11, v9, s75")
    e("  v_lshl_add_u32 v11, v10, 3, v11")
    e(f"  s_lshl_b32 s75, s{SHC}, 4")
    e("  v_add_u32 v11, s75, v11")
    e(f"  buffer_load_dwordx2 v[220:221], v11, s[{SW1}:{SW1+3}], 0 offen")
    e(f"  v_add_u32 v11, {256*3584}, v11")
    e(f"  buffer_load_dwordx2 v[222:223], v11, s[{SW1}:{SW1+3}], 0 offen")

    def kchunk_l(KR, vo):
        r=[]
        if OPT["kx"]:
            for j in range(8):
                so = "0" if j < 4 else "s71"
                r.append(f"  buffer_load_dwordx4 v[{KR+4*j}:{KR+4*j+3}], v{vo}, s[{SK}:{SK+3}], {so} offen offset:{(j&3)*1024}{nt}")
            return r
        for t in range(2):
            for i in range(4):
                so = "0" if t == 0 else "s71"
                r.append(f"  buffer_load_dwordx4 v[{KR+16*t+4*i}:{KR+16*t+4*i+3}], v{vo}, s[{SK}:{SK+3}], {so} offen offset:{i*64}{POL['k']}")
        return r
    def vchunk_l(VR, vo):
        r=[]
        for j in range(8):
            so = "0" if j < 4 else "s71"
            r.append(f"  buffer_load_dwordx4 v[{VR+4*j}:{VR+4*j+3}], v{vo}, s[{SV}:{SV+3}], {so} offen offset:{(j&3)*1024}{POL['v']}")
        return r
    def kchunk(KR, vo):
        for l in kchunk_l(KR, vo): e(l)
    def vchunk(VR, vo):
        for l in vchunk_l(VR, vo): e(l)
    def loads(KR, VR, sidx):
        e(f"  s_lshl_b32 s75, s{sidx}, {BS}")
        e(f"  v_add_u32 v5, s75, v{VKOFF}")
        e(f"  v_add_u32 v6, s75, v{VVOFF}")
        kchunk(KR, 5)
        vchunk(VR, 6)
    def wo_loads():
        e("  v_lshlrev_b32 v14, 10, v12")
        e("  v_lshl_add_u32 v14, v13, 4, v14")
        if not OPT["mf"]:
            e(f"  s_lshl_b32 s75, s{SNO}, 7")
            e("  v_add_u32 v15, s75, v14")
            e(f"  s_lshl_b32 s75, s{SHEAD}, 17")
            e("  v_add_u32 v15, s75, v15")
            e(f"  buffer_load_dwordx4 v[{WO}:{WO+3}], v15, s[{SWO}:{SWO+3}], 0 offen")
            e("  v_add_u32 v15, 0x10000, v15")
            e(f"  buffer_load_dwordx4 v[{WO+4}:{WO+7}], v15, s[{SWO}:{SWO+3}], 0 offen")
        else:
            lab = f"K_WOS{len(out)}"
            e("  s_cmp_ge_u32 s3, 4")
            e(f"  s_cbranch_scc1 {lab}")
            e("  v_lshlrev_b32 v15, 13, v4")
            e("  v_lshl_add_u32 v15, v3, 2, v15")
            e(f"  s_lshl_b32 s75, s{SHEAD}, 17")
            e(f"  s_lshl_b32 s76, s{SNO}, 7")
            e("  s_add_u32 s75, s75, s76")
            e("  s_lshr_b32 s76, s3, 1")
            e("  s_lshl_b32 s76, s76, 6")
            e("  s_add_u32 s75, s75, s76")
            for ks in range(4):
                for jh in range(2):
                    for j in range(4):
                        e(f"  buffer_load_dword v{80+ks*8+jh*4+j}, v15, s[{SWO}:{SWO+3}], s75 offen offset:{j*1024}")
                    if not (ks == 3 and jh == 1):
                        e(f"  s_add_u32 s75, s75, {4096 if jh == 0 else 32768-4096}")
            e(f"{lab}:")
        e("  s_lshr_b32 s75, s2, 3")
        e("  s_lshl_b32 s75, s75, 16")
        e("  v_add_u32 v15, s75, v14")
        e(f"  s_lshl_b32 s75, s{SNC}, 7")
        e("  v_add_u32 v15, s75, v15")
        e(f"  buffer_load_dwordx4 v[{W2}:{W2+3}], v15, s[{SW2}:{SW2+3}], 0 offen")
    e("  v_lshrrev_b32 v12, 3, v0")
    e("  v_and_b32 v13, 7, v0")
    e(f"  s_lshl_b32 s75, s{IDXA}, {BS}")
    e(f"  v_add_u32 v224, s75, v{VKOFF}")
    e(f"  v_add_u32 v225, s75, v{VVOFF}")
    e(f"  s_lshl_b32 s75, s{IDXB}, {BS}")
    e(f"  v_add_u32 v226, s75, v{VKOFF}")
    e(f"  v_add_u32 v227, s75, v{VVOFF}")
    pl = kchunk_l(KA, 224) + vchunk_l(VA, 225) + kchunk_l(KB, 226) + vchunk_l(VB, 227)
    if OPT["nbuf"] == 1: pl = pl[:16]
    PRE0 = OPT["pre0"]
    if OPT["bar0"]:
        e("  s_barrier")
    for c in range(PRE0):
        e(pl[c])
    X = 144
    e(f"  s_waitcnt vmcnt({6+PRE0})")
    e("  v_readfirstlane_b32 s26, v231")
    e("  s_add_u32 s26, s26, 1")
    if OPT["prof"] == 2: stamp(4)
    for b in range(2):
        for c in range(4):
            e(f"  v_lshlrev_b32 v{X+8*b+2*c}, 16, v{204+4*b+c}")
            e(f"  v_and_b32 v{X+1+8*b+2*c}, 0xffff0000, v{204+4*b+c}")
    for b in range(2):
        e(f"  v_add_f32 v{160+b}, v{X+8*b}, v{X+1+8*b}")
        for c in range(2, 8):
            e(f"  v_add_f32 v{160+b}, v{160+b}, v{X+8*b+c}")
    wave_sum([160, 161], [162, 163])
    e("  v_mul_f32 v160, 0x3b000000, v160")
    e("  v_mul_f32 v161, 0x3b000000, v161")
    for b in range(2):
        e(f"  v_sub_f32 v166, v{X+8*b}, v{160+b}")
        e(f"  v_mul_f32 v{164+b}, v166, v166")
        for c in range(1, 8):
            e(f"  v_sub_f32 v166, v{X+8*b+c}, v{160+b}")
            e(f"  v_fmac_f32 v{164+b}, v166, v166")
    wave_sum([164, 165], [162, 163])
    e("  v_mul_f32 v164, 0x3b000000, v164")
    e("  v_mul_f32 v165, 0x3b000000, v165")
    for b in range(2):
        round_bf16(164 + b, 164 + b)
        e(f"  v_add_f32 v{164+b}, 0x3727c5ac, v{164+b}")
        round_bf16(164 + b, 164 + b)
        e(f"  v_sqrt_f32 v{164+b}, v{164+b}")
        e("  s_nop 0")
        round_bf16(164 + b, 164 + b)
        e(f"  v_rcp_f32 v{164+b}, v{164+b}")
        round_bf16(160 + b, 160 + b)
    for b in range(2):
        for c in range(8):
            r = X + 8 * b + c
            e(f"  v_sub_f32 v{r}, v{r}, v{160+b}")
            round_bf16(r, r)
            e(f"  v_mul_f32 v{r}, v{r}, v{164+b}")
            round_bf16(r, r)
    e("  v_lshlrev_b32 v5, 6, v1")
    for c in range(0, 8, 2):
        e(f"  v_mov_b32 v{168+2*c}, v{X+c}")
        e(f"  v_mov_b32 v{169+2*c}, v{X+8+c}")
        e(f"  v_mov_b32 v{170+2*c}, v{X+c+1}")
        e(f"  v_mov_b32 v{171+2*c}, v{X+8+c+1}")
        e(f"  ds_write_b128 v5, v[{168+2*c}:{171+2*c}] offset:{L_XN + c*8}")
    e("  s_waitcnt lgkmcnt(0)")
    e("  v_lshrrev_b32 v5, 2, v0")
    e("  v_lshlrev_b32 v5, 3, v5")
    e("  v_lshlrev_b32 v6, 3, v9")
    for i in range(4):
        e(f"  ds_read_b64 v[{168+2*i}:{169+2*i}], v5 offset:{L_XN + i*1024}")
    for i in range(2):
        e(f"  ds_read_b64 v[{176+2*i}:{177+2*i}], v6 offset:{L_XN + i*2048}")
    for r in range(180, 196):
        e(f"  v_mov_b32 v{r}, 0")
    if OPT["prof"] == 2: stamp(5)
    e(f"  s_waitcnt vmcnt({PRE0}) lgkmcnt(0)")
    if OPT["prof"] == 2: stamp(6)
    for i in range(4):
        for c in range(2):
            w = 212 + 2 * i + c
            e(f"  v_lshlrev_b32 v160, 16, v{w}")
            e(f"  v_and_b32 v161, 0xffff0000, v{w}")
            e(f"  v_fmac_f32 v{180+2*c}, v160, v{168+2*i}")
            e(f"  v_fmac_f32 v{181+2*c}, v161, v{168+2*i}")
            e(f"  v_fmac_f32 v{184+2*c}, v160, v{169+2*i}")
            e(f"  v_fmac_f32 v{185+2*c}, v161, v{169+2*i}")
    for i in range(2):
        for c in range(2):
            w = 220 + 2 * i + c
            e(f"  v_lshlrev_b32 v160, 16, v{w}")
            e(f"  v_and_b32 v161, 0xffff0000, v{w}")
            e(f"  v_fmac_f32 v{188+2*c}, v160, v{176+2*i}")
            e(f"  v_fmac_f32 v{189+2*c}, v161, v{176+2*i}")
            e(f"  v_fmac_f32 v{192+2*c}, v160, v{177+2*i}")
            e(f"  v_fmac_f32 v{193+2*c}, v161, v{177+2*i}")
    dpp_steps(list(range(188, 196)), ["quad_perm:[2,3,0,1]"])
    dpp_steps(list(range(180, 196)), ["row_ror:4", "row_ror:8"])
    swap_steps(list(range(180, 196)), list(range(204, 220)))
    e("  s_mul_i32 s75, s3, 192")
    e("  v_lshlrev_b32 v5, 4, v1")
    e("  v_add_u32 v5, s75, v5")
    e("  s_mov_b64 exec, 0xf")
    e(f"  ds_write_b128 v5, v[180:183] offset:{L_QP}")
    e(f"  ds_write_b128 v5, v[184:187] offset:{L_QP+64}")
    e("  s_mov_b64 exec, 0x3")
    e(f"  ds_write_b128 v5, v[188:191] offset:{L_QP+128}")
    e(f"  ds_write_b128 v5, v[192:195] offset:{L_QP+160}")
    e("  s_mov_b64 exec, -1")
    e("  s_waitcnt lgkmcnt(0)")
    if OPT["prof"] == 2: stamp(7)
    e("  s_barrier")
    e("  s_cmp_eq_u32 s3, 0")
    e("  s_cbranch_scc1 K_SRV")
    for c in range(PRE0, len(pl)):
        if OPT["pace"]:
            e(f"  s_waitcnt vmcnt({OPT['pace']-1})")
        e(pl[c])
    wo_loads()
    e("  s_branch K_B2")
    e("K_SRV:")
    e("  v_lshlrev_b32 v5, 3, v1")
    e("  s_mov_b64 exec, 0xffffff")
    for w in range(8):
        e(f"  ds_read_b64 v[{160+2*w}:{161+2*w}], v5 offset:{L_QP + w*192}")
    e("  v_lshrrev_b32 v6, 3, v1")
    e("  v_lshlrev_b32 v6, 14, v6")
    e("  v_and_b32 v7, 7, v1")
    e("  v_lshl_add_u32 v6, v7, 3, v6")
    stamp(1)
    e(f"  s_lshl_b32 s75, s{SCG}, 6")
    e(f"  s_add_u32 s75, s75, {WS_QG}")
    e("  v_add_u32 v6, s75, v6")
    e("  v_bfe_u32 v7, v1, 2, 1")
    e("  s_movk_i32 s75, 7168")
    e("  v_mul_lo_u32 v7, v7, s75")
    e("  v_and_b32 v8, 3, v1")
    e("  v_lshl_add_u32 v7, v8, 3, v7")
    e(f"  s_lshl_b32 s75, s{SHC}, 5")
    e(f"  s_add_u32 s75, s75, {WS_HG}")
    e("  v_add_u32 v7, s75, v7")
    e("  v_cmp_gt_u32 vcc, 16, v1")
    e("  v_cndmask_b32 v6, v7, v6, vcc")
    e("  s_waitcnt lgkmcnt(0)")
    for w in range(1, 8):
        e(f"  v_add_f32 v160, v160, v{160+2*w}")
        e(f"  v_add_f32 v161, v161, v{161+2*w}")
    e("  v_max_f32 v162, 0, v160")
    e("  v_max_f32 v163, 0, v161")
    e("  v_cndmask_b32 v160, v162, v160, vcc")
    e("  v_cndmask_b32 v161, v163, v161, vcc")
    e("  v_cvt_pk_bf16_f32 v160, v160, v161")
    e("  v_mov_b32 v161, s26")
    e("  s_mov_b32 s77, 0xffff")
    e(f"  s_cmp_lt_u32 s{SHC}, 224")
    e("  s_cselect_b32 s76, 0xffffff, s77")
    e("  s_mov_b32 exec_lo, s76")
    e(f"  buffer_store_dwordx2 v[160:161], v6, s[{SWS}:{SWS+3}], 0 offen sc1")
    e("  s_mov_b64 exec, -1")
    stamp(2)
    e(f"  s_lshl_b32 s75, s{SB}, 14")
    e(f"  s_lshl_b32 s76, s{SG}, 11")
    e("  s_add_u32 s75, s75, s76")
    e(f"  s_add_u32 s75, s75, {WS_QG}")
    e("  v_lshlrev_b32 v5, 5, v1")
    e("  v_add_u32 v5, s75, v5")
    e("  v_lshrrev_b32 v6, 5, v1")
    e("  s_movk_i32 s75, 7168")
    e("  v_mul_lo_u32 v7, v6, s75")
    e("  v_and_b32 v8, 31, v1")
    e("  v_lshl_add_u32 v7, v8, 3, v7")
    e("  s_lshr_b32 s75, s2, 3")
    e("  s_lshl_b32 s75, s75, 8")
    e(f"  s_add_u32 s75, s75, {WS_HG}")
    e("  v_add_u32 v7, s75, v7")
    e("  s_mov_b32 s74, 0x400000")
    e("K_P1:")
    e(f"  buffer_load_dwordx4 v[160:163], v5, s[{SWS}:{SWS+3}], 0 offen sc1")
    e(f"  buffer_load_dwordx4 v[164:167], v5, s[{SWS}:{SWS+3}], 0 offen offset:16 sc1")
    e(f"  buffer_load_dwordx2 v[168:169], v7, s[{SWS}:{SWS+3}], 0 offen sc1")
    e("  s_waitcnt vmcnt(0)")
    e("  v_cmp_ne_u32 vcc, s26, v161")
    e("  v_cmp_ne_u32 s[76:77], s26, v163")
    e("  s_or_b64 vcc, vcc, s[76:77]")
    e("  v_cmp_ne_u32 s[76:77], s26, v165")
    e("  s_or_b64 vcc, vcc, s[76:77]")
    e("  v_cmp_ne_u32 s[76:77], s26, v167")
    e("  s_or_b64 vcc, vcc, s[76:77]")
    e("  s_cmp_ge_u32 s2, 224")
    e("  s_cbranch_scc1 K_P1C")
    e("  v_cmp_ne_u32 s[76:77], s26, v169")
    e("  s_or_b64 vcc, vcc, s[76:77]")
    e("K_P1C:")
    e("  s_cmp_eq_u64 vcc, 0")
    e("  s_cbranch_scc1 K_P1_DONE")
    if OPT["sleep"]:
        e(f"  s_sleep {OPT['sleep']}")
    e("  s_sub_u32 s74, s74, 1")
    e("  s_cmp_lg_u32 s74, 0")
    e("  s_cbranch_scc1 K_P1")
    e("K_P1_DONE:")
    stamp(3)
    e("  v_mov_b32 v161, v162")
    e("  v_mov_b32 v162, v164")
    e("  v_mov_b32 v163, v166")
    e("  v_lshlrev_b32 v5, 4, v1")
    e(f"  ds_write_b128 v5, v[160:163] offset:{L_Q}")
    e("  v_lshlrev_b32 v164, 16, v168")
    e("  v_and_b32 v165, 0xffff0000, v168")
    e("  v_lshlrev_b32 v5, 3, v1")
    e(f"  ds_write_b64 v5, v[164:165] offset:{L_HV}")
    e(f"  s_mov_b32 s{IDXA}, {14 if OPT['nbuf']>=2 else OPT['nw']-1}")
    e(f"  s_mov_b32 s{IDXB}, 15")
    e(f"  v_mov_b32 v9, {16 if OPT['nbuf']>=2 else OPT['nw']}")
    e(f"  v_mov_b32 v10, {L_CNT}")
    e("  ds_write_b32 v10, v9")
    wo_loads()
    loads(KA, VA, IDXA)
    if OPT["nbuf"] >= 2: loads(KB, VB, IDXB)
    e("  s_waitcnt lgkmcnt(0)")
    e("K_B2:")
    e("  s_barrier")
    e("  v_and_b32 v5, 3, v3")
    e("  v_lshlrev_b32 v5, 8, v5")
    e("  v_lshl_add_u32 v5, v4, 4, v5")
    for i in range(4):
        e(f"  ds_read_b128 v[{QF+4*i}:{QF+4*i+3}], v5 offset:{L_Q + i*64}")
    for r in range(32):
        e(f"  v_mov_b32 v{ACC+r}, 0")
    e(f"  v_mov_b32 v{M_}, 0xf149f2ca")
    e(f"  v_mov_b32 v{L_}, 0")
    e(f"  v_mov_b32 v7, {L_CNT}")
    e("  v_mov_b32 v8, 1")
    e("  s_waitcnt lgkmcnt(0)")

    def compute(KR, VR, vk, vv):
        e(f"  s_waitcnt vmcnt({vk})")
        for t in range(2):
            for i in range(4):
                c = "0" if i == 0 else f"v[{ST+4*t}:{ST+4*t+3}]"
                e(f"  v_mfma_f32_16x16x32_bf16 v[{ST+4*t}:{ST+4*t+3}], v[{KR+16*t+4*i}:{KR+16*t+4*i+3}], v[{QF+4*i}:{QF+4*i+3}], {c}")
        e("  s_nop 7")
        e("  s_nop 0")
        e(f"  v_max3_f32 v{T0}, v{ST}, v{ST+1}, v{ST+2}")
        e(f"  v_max3_f32 v{T1}, v{ST+3}, v{ST+4}, v{ST+5}")
        e(f"  v_max3_f32 v{T0}, v{T0}, v{ST+6}, v{ST+7}")
        e(f"  v_max_f32 v{T0}, v{T0}, v{T1}")
        e(f"  v_mov_b32 v{T1}, v{T0}")
        e("  s_nop 1")
        e(f"  v_permlane16_swap_b32 v{T0}, v{T1}")
        e("  s_nop 1")
        e(f"  v_max_f32 v{T0}, v{T0}, v{T1}")
        e(f"  v_mov_b32 v{T1}, v{T0}")
        e("  s_nop 1")
        e(f"  v_permlane32_swap_b32 v{T0}, v{T1}")
        e("  s_nop 1")
        e(f"  v_max3_f32 v{T0}, v{T0}, v{T1}, v{M_}")
        e(f"  v_sub_f32 v{AL}, v{M_}, v{T0}")
        e(f"  v_mul_f32 v{AL}, s{SC}, v{AL}")
        e(f"  v_exp_f32 v{AL}, v{AL}")
        e(f"  v_mov_b32 v{M_}, v{T0}")
        e(f"  v_mul_f32 v{MC}, s{SC}, v{T0}")
        for k in range(8):
            e(f"  v_fma_f32 v{ST+k}, v{ST+k}, s{SC}, -v{MC}")
        for k in range(8):
            e(f"  v_exp_f32 v{ST+k}, v{ST+k}")
        e("  s_nop 0")
        e(f"  v_mul_f32 v{L_}, v{L_}, v{AL}")
        for k in range(8):
            e(f"  v_add_f32 v{L_}, v{L_}, v{ST+k}")
        for q in range(4):
            e(f"  v_cvt_pk_bf16_f32 v{PF+q}, v{ST+2*q}, v{ST+2*q+1}")
        for r in range(32):
            e(f"  v_mul_f32 v{ACC+r}, v{ACC+r}, v{AL}")
        e(f"  s_waitcnt vmcnt({vv})")
        for t in range(8):
            c = t >> 1
            sel = f"s{SP1}" if (t & 1) else f"s{SP0}"
            for q in range(4):
                e(f"  v_perm_b32 v{TR+4*t+q}, v{VR+4*(2*q+1)+c}, v{VR+4*(2*q)+c}, {sel}")
        e("  s_nop 1")
        for t in range(8):
            e(f"  v_mfma_f32_16x16x32_bf16 v[{ACC+4*t}:{ACC+4*t+3}], v[{TR+4*t}:{TR+4*t+3}], v[{PF}:{PF+3}], v[{ACC+4*t}:{ACC+4*t+3}]")

    def fetch():
        e("  s_mov_b64 exec, 1")
        e("  ds_add_rtn_u32 v9, v7, v8")
        e("  s_mov_b64 exec, -1")
    def getidx(sidx):
        e("  s_waitcnt lgkmcnt(0)")
        e(f"  v_readfirstlane_b32 s{sidx}, v9")

    if OPT["nw"] < 8:
        e(f"  s_cmp_ge_u32 s3, {OPT['nw']}")
        e("  s_cbranch_scc1 K_EXIT")
    def gen_loop(sfx, last):
        if OPT["nbuf"] == 3:
            fetch()
            compute(KA, VA, 24, 16)
            getidx(IDXA)
            loads(KA, VA, IDXA)
            compute(KB, VB, 24, 16)
            e(f"  s_cmp_ge_u32 s{IDXA}, 64")
            e("  s_cbranch_scc1 K_EXIT")
        e(f"K_LOOP{sfx}:")
        if OPT["nbuf"] == 2:
            fetch()
            compute(KA, VA, 24, 16)
            getidx(IDXA)
            loads(KA, VA, IDXA)
            e(f"  s_cmp_ge_u32 s{IDXB}, 64")
            e("  s_cbranch_scc1 K_EXIT")
            fetch()
            compute(KB, VB, 24, 16)
            getidx(IDXB)
            loads(KB, VB, IDXB)
            e(f"  s_cmp_lt_u32 s{IDXA}, 64")
            e(f"  s_cbranch_scc1 K_LOOP{sfx}")
        else:
            fetch()
            compute(KA, VA, 8, 0)
            getidx(IDXA)
            loads(KA, VA, IDXA)
            e(f"  s_cmp_lt_u32 s{IDXA}, 64")
            e(f"  s_cbranch_scc1 K_LOOP{sfx}")
        if not last:
            e("  s_branch K_EXIT")
    if OPT["T"]:
        e(f"  s_lshl_b32 s75, s{SB}, 3")
        e(f"  s_add_u32 s75, s75, s{SG}")
        e(f"  s_cmp_lt_u32 s75, {OPT['T']}")
        e("  s_cbranch_scc1 K_LOOPlo")
        POL["k"] = "" if OPT["phi"] & 1 else nt
        POL["v"] = "" if OPT["phi"] & 2 else nt
        gen_loop("hi", False)
        POL["k"] = "" if OPT["plo"] & 1 else nt
        POL["v"] = "" if OPT["plo"] & 2 else nt
        gen_loop("lo", True)
    else:
        gen_loop("", True)
    e("K_EXIT:")
    if OPT["prof"] == 1: stamp(4)
    e(f"  v_mov_b32 v{T1}, v{L_}")
    e("  s_nop 1")
    e(f"  v_permlane16_swap_b32 v{L_}, v{T1}")
    e("  s_nop 1")
    e(f"  v_add_f32 v{L_}, v{L_}, v{T1}")
    e(f"  v_mov_b32 v{T1}, v{L_}")
    e("  s_nop 1")
    e(f"  v_permlane32_swap_b32 v{L_}, v{T1}")
    e("  s_nop 1")
    e(f"  v_add_f32 v{L_}, v{L_}, v{T1}")
    e("  v_cmp_gt_u32 vcc, 4, v3")
    e("  s_and_saveexec_b64 s[78:79], vcc")
    e("  v_lshlrev_b32 v5, 11, v2")
    e("  v_lshl_add_u32 v5, v3, 9, v5")
    e("  v_lshl_add_u32 v5, v4, 7, v5")
    e("  s_nop 4")
    for t in range(8):
        for r in range(4):
            e(f"  ds_write_b32 v5, v{ACC+4*t+r} offset:{L_O + (r*8+t)*4}")
    e("  v_cmp_gt_u32 vcc, 4, v1")
    e("  s_and_b64 exec, exec, vcc")
    e("  v_lshlrev_b32 v6, 5, v2")
    e("  v_lshl_add_u32 v6, v3, 3, v6")
    e(f"  ds_write_b32 v6, v{M_} offset:{L_ML}")
    e(f"  ds_write_b32 v6, v{L_} offset:{L_ML+4}")
    e("  s_mov_b64 exec, s[78:79]")
    e("  s_waitcnt lgkmcnt(0)")
    e("  s_barrier")
    e("  v_lshrrev_b32 v5, 7, v0")
    e("  v_and_b32 v6, 127, v0")
    e("  v_lshlrev_b32 v7, 3, v5")
    for w in range(8):
        e(f"  ds_read_b64 v[{160+2*w}:{161+2*w}], v7 offset:{L_ML + w*32}")
    e("  v_lshlrev_b32 v8, 9, v5")
    e("  v_lshl_add_u32 v8, v6, 2, v8")
    for w in range(8):
        e(f"  ds_read_b32 v{176+w}, v8 offset:{L_O + w*2048}")
    e("  s_waitcnt lgkmcnt(0)")
    e("  v_max3_f32 v184, v160, v162, v164")
    e("  v_max3_f32 v185, v166, v168, v170")
    e("  v_max3_f32 v184, v184, v172, v174")
    e("  v_max_f32 v184, v184, v185")
    e("  v_mov_b32 v186, 0")
    e("  v_mov_b32 v187, 0")
    for w in range(8):
        e(f"  v_sub_f32 v185, v{160+2*w}, v184")
        e(f"  v_mul_f32 v185, s{SC}, v185")
        e("  v_exp_f32 v185, v185")
        e("  s_nop 0")
        e(f"  v_fmac_f32 v186, v185, v{161+2*w}")
        e(f"  v_fmac_f32 v187, v185, v{176+w}")
    e(f"  s_lshl_b32 s75, s{SB}, 5")
    e(f"  s_lshl_b32 s76, s{SG}, 2")
    e("  s_add_u32 s75, s75, s76")
    e("  s_lshl_b32 s75, s75, 4")
    e(f"  s_add_u32 s75, s75, s{SSPL}")
    e("  v_lshlrev_b32 v7, 4, v5")
    e("  v_add_u32 v7, s75, v7")
    e("  v_lshlrev_b32 v8, 10, v7")
    e("  v_lshl_add_u32 v8, v6, 3, v8")
    e(f"  s_mov_b32 s75, {WS_OG}")
    e("  v_mov_b32 v188, v187")
    e("  v_mov_b32 v189, s26")
    e(f"  buffer_store_dwordx2 v[188:189], v8, s[{SWS}:{SWS+3}], s75 offen sc1")
    e("  v_cmp_eq_u32 vcc, 0, v6")
    e("  s_and_saveexec_b64 s[78:79], vcc")
    e("  v_lshlrev_b32 v7, 4, v7")
    e("  v_mov_b32 v185, v186")
    e("  v_mov_b32 v186, s26")
    e(f"  s_mov_b32 s75, {WS_MG}")
    e(f"  buffer_store_dwordx3 v[184:186], v7, s[{SWS}:{SWS+3}], s75 offen sc1")
    e("  s_mov_b64 exec, s[78:79]")
    if OPT["prof"] == 1: stamp(5)

    def prod(wregs, vecaddr_rows, accbase, nrows):
        for r in range(16):
            e(f"  v_mov_b32 v{accbase+r}, 0")
        for i in range(nrows):
            for c in range(4):
                w = wregs + 4 * i + c
                e(f"  v_lshlrev_b32 v160, 16, v{w}")
                e(f"  v_and_b32 v161, 0xffff0000, v{w}")
                e(f"  v_fmac_f32 v{accbase+2*c}, v160, v{168+2*i}")
                e(f"  v_fmac_f32 v{accbase+1+2*c}, v161, v{168+2*i}")
                e(f"  v_fmac_f32 v{accbase+8+2*c}, v160, v{169+2*i}")
                e(f"  v_fmac_f32 v{accbase+9+2*c}, v161, v{169+2*i}")
        dpp_steps(list(range(accbase, accbase + 16)), ["row_ror:8"])

    def reduce_store(lbase, label, snc):
        e("  v_lshlrev_b32 v5, 2, v2")
        e("  v_add_u32 v5, v5, v4")
        e("  v_lshlrev_b32 v5, 9, v5")
        e("  v_and_b32 v6, 7, v1")
        e("  v_lshl_add_u32 v5, v6, 5, v5")
        e("  v_and_b32 v6, 8, v1")
        e("  v_cmp_eq_u32 vcc, 0, v6")
        e("  s_and_saveexec_b64 s[78:79], vcc")
        e(f"  ds_write_b128 v5, v[180:183] offset:{lbase}")
        e(f"  ds_write_b128 v5, v[184:187] offset:{lbase+16}")
        e(f"  ds_write_b128 v5, v[188:191] offset:{lbase+256}")
        e(f"  ds_write_b128 v5, v[192:195] offset:{lbase+256+16}")
        e("  s_mov_b64 exec, s[78:79]")
        e("  s_waitcnt lgkmcnt(0)")
        e("  s_barrier")
        e("  s_cmp_ge_u32 s3, 2")
        e(f"  s_cbranch_scc1 {label}")
        e("  v_lshlrev_b32 v5, 2, v0")
        for p in range(32):
            e(f"  ds_read_b32 v{204+p}, v5 offset:{lbase + p*512}")
        e("  s_waitcnt lgkmcnt(0)")
        for p in range(1, 31, 2):
            e(f"  v_add_f32 v{204+p}, v{204+p}, v{205+p}")
        e("  v_add_f32 v204, v204, v235")
        for p in range(1, 31, 2):
            e(f"  v_add_f32 v204, v204, v{204+p}")
        e("  v_lshlrev_b32 v5, 12, v2")
        e("  v_lshl_add_u32 v5, v1, 3, v5")
        e(f"  s_lshl_b32 s76, s{snc}, 9")
        e(f"  s_add_u32 s75, s75, s76")
        e("  v_mov_b32 v205, s26")
        e(f"  buffer_store_dwordx2 v[204:205], v5, s[{SWS}:{SWS+3}], s75 offen sc1")
        e(f"{label}:")

    e("  s_cmp_ge_u32 s2, 224")
    e("  s_cbranch_scc1 K_T4")
    e("  v_lshlrev_b32 v5, 2, v12")
    e(f"  ds_read_b32 v168, v5 offset:{L_HV}")
    e(f"  ds_read_b32 v169, v5 offset:{L_HV+256}")
    e("  s_waitcnt lgkmcnt(0)")
    prod(W2, None, 180, 1)
    e("  s_lshr_b32 s75, s2, 3")
    e("  s_lshl_b32 s75, s75, 13")
    e(f"  s_add_u32 s75, s75, {WS_GG}")
    reduce_store(L_FP, "K_T3B", SNC)
    e("K_T4:")
    if not OPT["mf"]:
        e("  s_cmp_ge_u32 s3, 4")
        e("  s_cbranch_scc1 K_T6")
        e("  v_lshrrev_b32 v6, 7, v0")
        e("  v_and_b32 v7, 127, v0")
        e("  v_lshlrev_b32 v8, 5, v6")
        e(f"  v_add_u32 v8, s{SHEAD}, v8")
        e("  v_lshlrev_b32 v9, 8, v8")
        e("  v_lshlrev_b32 v10, 14, v8")
        e("  v_lshl_add_u32 v10, v7, 3, v10")
        e(f"  s_mov_b32 s76, {WS_MG}")
        def iss2(sp):
            e(f"  s_mov_b32 s75, {WS_OG + 4096*(sp>>2)}")
            bits = {0:"", 1:" sc1", 2:" sc0", 3:" sc0 sc1", 4:" nt", 5:" sc0 nt"}[OPT["p2"]]
            e(f"  buffer_load_dwordx2 v[{16+2*sp}:{17+2*sp}], v10, s[{SWS}:{SWS+3}], s75 offen offset:{(sp&3)*1024}{bits}")
            e(f"  buffer_load_dwordx3 v[{48+4*sp}:{50+4*sp}], v9, s[{SWS}:{SWS+3}], s76 offen offset:{sp*16}{bits}")
        mpoll("K_P2", 16, iss2, lambda sp: [17+2*sp, 50+4*sp], OPT["thr"])
        if OPT["prof"] == 1: stamp(6)
        M = lambda sp: 48+4*sp
        e(f"  v_max3_f32 v112, v{M(0)}, v{M(1)}, v{M(2)}")
        for sp in range(3, 15, 2):
            e(f"  v_max3_f32 v112, v112, v{M(sp)}, v{M(sp+1)}")
        e(f"  v_max_f32 v112, v112, v{M(15)}")
        e("  v_mov_b32 v113, 0")
        e("  v_mov_b32 v114, 0")
        for sp in range(16):
            e(f"  v_sub_f32 v{M(sp)}, v{M(sp)}, v112")
            e(f"  v_mul_f32 v{M(sp)}, s{SC}, v{M(sp)}")
            e(f"  v_exp_f32 v{M(sp)}, v{M(sp)}")
        e("  s_nop 0")
        for sp in range(16):
            e(f"  v_fmac_f32 v113, v{M(sp)}, v{M(sp)+1}")
            e(f"  v_fmac_f32 v114, v{M(sp)}, v{16+2*sp}")
        e("  v_mov_b32 v49, v113")
        e("  v_mov_b32 v50, v114")
        e("  v_rcp_f32 v49, v49")
        e("  s_nop 0")
        e("  v_mul_f32 v50, v50, v49")
        round_bf16(50, 50)
        e("  v_lshlrev_b32 v8, 2, v0")
        e(f"  ds_write_b32 v8, v50 offset:{L_VEC}")
        e("  s_waitcnt lgkmcnt(0)")
        e("K_T6:")
        e("  s_barrier")
        e("  v_lshlrev_b32 v5, 2, v12")
        e(f"  ds_read_b32 v168, v5 offset:{L_VEC}")
        e(f"  ds_read_b32 v169, v5 offset:{L_VEC+512}")
        e(f"  ds_read_b32 v170, v5 offset:{L_VEC+256}")
        e(f"  ds_read_b32 v171, v5 offset:{L_VEC+512+256}")
        e("  s_waitcnt lgkmcnt(0)")
        prod(WO, None, 180, 2)
        e(f"  s_lshl_b32 s75, s{SHEAD}, 13")
        e(f"  s_add_u32 s75, s75, {WS_SG}")
        reduce_store(L_SP, "K_T6B", SNO)
    else:
        e("  s_cmp_ge_u32 s3, 4")
        e("  s_cbranch_scc1 K_END")
        e("  s_and_b32 s75, s3, 1")
        e("  s_cmp_eq_u32 s75, 1")
        e(f"  s_cselect_b32 s75, s{SP1}, s{SP0}")
        for ks in range(4):
            for q in range(4):
                e(f"  v_perm_b32 v{112+ks*4+q}, v{80+ks*8+2*q+1}, v{80+ks*8+2*q}, s75")
        e("  v_lshrrev_b32 v6, 7, v0")
        e("  v_and_b32 v7, 127, v0")
        e("  v_lshlrev_b32 v8, 5, v6")
        e(f"  v_add_u32 v8, s{SHEAD}, v8")
        e("  v_lshlrev_b32 v9, 8, v8")
        e("  v_lshlrev_b32 v10, 14, v8")
        e("  v_lshl_add_u32 v10, v7, 3, v10")
        e(f"  s_mov_b32 s76, {WS_MG}")
        def iss2(sp):
            e(f"  s_mov_b32 s75, {WS_OG + 4096*(sp>>2)}")
            e(f"  buffer_load_dwordx2 v[{16+2*sp}:{17+2*sp}], v10, s[{SWS}:{SWS+3}], s75 offen offset:{(sp&3)*1024} sc1")
            e(f"  buffer_load_dwordx3 v[{48+4*sp}:{50+4*sp}], v9, s[{SWS}:{SWS+3}], s76 offen offset:{sp*16} sc1")
        e("  v_and_b32 v11, 1, v3")
        e("  v_lshlrev_b32 v11, 8, v11")
        e("  v_lshl_add_u32 v11, v4, 4, v11")
        e("  v_and_b32 v12, 1, v4")
        e("  v_lshlrev_b32 v13, 12, v12")
        e("  v_lshl_add_u32 v13, v3, 4, v13")
        e("  s_lshr_b32 s75, s3, 1")
        e("  s_lshl_b32 s75, s75, 8")
        e("  s_and_b32 s78, s3, 1")
        e("  s_lshl_b32 s78, s78, 3")
        e("  s_add_u32 s75, s75, s78")
        e(f"  s_lshl_b32 s78, s{SNO}, 9")
        e("  s_add_u32 s75, s75, s78")
        e(f"  s_lshl_b32 s78, s{SHEAD}, 13")
        e("  s_add_u32 s75, s75, s78")
        e(f"  s_add_u32 s75, s75, {WS_SG}")
        e("  v_add_u32 v13, s75, v13")
        mpoll("K_P2", 16, iss2, lambda sp: [17+2*sp, 50+4*sp], OPT["thr"])
        if OPT["prof"] == 1: stamp(6)
        M = lambda sp: 48+4*sp
        e(f"  v_max3_f32 v128, v{M(0)}, v{M(1)}, v{M(2)}")
        for sp in range(3, 15, 2):
            e(f"  v_max3_f32 v128, v128, v{M(sp)}, v{M(sp+1)}")
        e(f"  v_max_f32 v128, v128, v{M(15)}")
        e("  v_mov_b32 v129, 0")
        e("  v_mov_b32 v130, 0")
        for sp in range(16):
            e(f"  v_sub_f32 v{M(sp)}, v{M(sp)}, v128")
            e(f"  v_mul_f32 v{M(sp)}, s{SC}, v{M(sp)}")
            e(f"  v_exp_f32 v{M(sp)}, v{M(sp)}")
        e("  s_nop 0")
        for sp in range(16):
            e(f"  v_fmac_f32 v129, v{M(sp)}, v{M(sp)+1}")
            e(f"  v_fmac_f32 v130, v{M(sp)}, v{16+2*sp}")
        e("  v_rcp_f32 v129, v129")
        e("  s_nop 0")
        e("  v_mul_f32 v130, v130, v129")
        e("  v_cvt_pk_bf16_f32 v130, v130, v130")
        e("  v_lshlrev_b32 v8, 1, v0")
        e(f"  ds_write_b16 v8, v130 offset:{L_VEC}")
        e("  s_waitcnt lgkmcnt(0)")
        e("  s_barrier")
        for ks in range(4):
            e(f"  ds_read_b128 v[{132+4*ks}:{135+4*ks}], v11 offset:{L_VEC + ks*64}")
        e("  s_waitcnt lgkmcnt(0)")
        for ks in range(4):
            c = "0" if ks == 0 else "v[148:151]"
            e(f"  v_mfma_f32_16x16x32_bf16 v[148:151], v[{132+4*ks}:{135+4*ks}], v[{112+4*ks}:{115+4*ks}], {c}")
        e("  v_cmp_eq_u32 vcc, 1, v12")
        e("  v_mov_b32 v153, s26")
        e("  s_nop 7")
        e("  s_nop 7")
        e("  v_cndmask_b32 v152, v148, v149, vcc")
        e("  s_mov_b64 exec, 0xffffffff")
        e(f"  buffer_store_dwordx2 v[152:153], v13, s[{SWS}:{SWS+3}], 0 offen sc1")
        e("  s_mov_b64 exec, -1")
    if OPT["prof"] == 1: stamp(7)
    e("  s_cmp_ge_u32 s2, 8")
    e("  s_cbranch_scc1 K_END")
    e("  s_cmp_ge_u32 s3, 4")
    e("  s_cbranch_scc1 K_END")
    def gpoll(label, n, base):
        def iss(k):
            e(f"  s_mov_b32 s75, {base + k*8192}")
            e(f"  buffer_load_dwordx2 v[{16+2*k}:{17+2*k}], v10, s[{SWS}:{SWS+3}], s75 offen sc1")
        mpoll(label, n, iss, lambda k: [17+2*k], None)
        for k in range(1, n):
            e(f"  v_add_f32 v16, v16, v{16+2*k}")
    e("  v_and_b32 v5, 1, v2")
    e("  v_lshlrev_b32 v5, 11, v5")
    e("  v_lshl_add_u32 v5, v1, 2, v5")
    e(f"  s_lshl_b32 s76, s{SNC}, 8")
    e("  v_add_u32 v5, s76, v5")
    e("  v_lshlrev_b32 v10, 1, v5")
    e("  s_cmp_ge_u32 s3, 2")
    e("  s_cbranch_scc1 K_FG")
    e("  v_lshrrev_b32 v6, 1, v5")
    e(f"  buffer_load_ushort v4, v6, s[{SX}:{SX+3}], 0 offen")
    gpoll("K_P3", 32, WS_SG)
    round_bf16(16, 16)
    e("  s_barrier")
    e("  v_lshlrev_b32 v7, 2, v0")
    e(f"  ds_read_b32 v8, v7 offset:{L_GX}")
    e("  s_waitcnt lgkmcnt(0)")
    e("  v_mul_f32 v8, v8, v16")
    round_bf16(8, 8)
    e("  v_lshlrev_b32 v4, 16, v4")
    e("  v_add_f32 v8, v8, v4")
    e("  v_cvt_pk_bf16_f32 v8, v8, v8")
    e(f"  buffer_store_short v8, v6, s[{SOUT}:{SOUT+3}], 0 offen")
    e("  s_or_b32 s75, s2, s3")
    e("  s_cmp_lg_u32 s75, 0")
    e("  s_cbranch_scc1 K_END")
    e("  s_mov_b64 exec, 1")
    e(f"  v_mov_b32 v5, {WS_EP}")
    e("  v_mov_b32 v6, s26")
    e(f"  buffer_store_dword v6, v5, s[{SWS}:{SWS+3}], 0 offen")
    e("  s_branch K_END")
    e("K_FG:")
    gpoll("K_P4", 28, WS_GG)
    round_bf16(16, 16)
    e("  v_mul_f32 v5, 0xbfb8aa3b, v16")
    e("  v_exp_f32 v5, v5")
    e("  s_nop 0")
    e("  v_add_f32 v5, 1.0, v5")
    e("  v_rcp_f32 v5, v5")
    e("  s_nop 0")
    e("  v_mul_f32 v5, v5, v16")
    round_bf16(5, 5)
    e("  v_and_b32 v7, 127, v0")
    e("  v_lshlrev_b32 v7, 2, v7")
    e(f"  ds_write_b32 v7, v5 offset:{L_GX}")
    e("  s_waitcnt lgkmcnt(0)")
    e("  s_barrier")
    e("K_END:")
    dump_stamps()
    e("  s_endpgm")
    e('.section .rodata,"a"')
    e(".p2align 6")
    e(f".amdhsa_kernel {name}")
    e("  .amdhsa_next_free_vgpr 256")
    e("  .amdhsa_next_free_sgpr 102")
    e("  .amdhsa_accum_offset 256")
    e("  .amdhsa_group_segment_fixed_size 0")
    e("  .amdhsa_kernarg_size 88")
    e("  .amdhsa_user_sgpr_count 2")
    e("  .amdhsa_user_sgpr_kernarg_segment_ptr 1")
    e("  .amdhsa_system_sgpr_workgroup_id_x 1")
    e(".end_amdhsa_kernel")

def main():
    path = f"cdna_kernels/{NAME}.s"
    for a in sys.argv[1:]:
        if "=" in a:
            k, v = a.split("=", 1)
            OPT[k] = (" " + v if v else "") if k == "nt" else int(v)
        else:
            path = a
    e(HEADER.rstrip("\n"))
    e(f"; @launch grid=(256,1,1) block=(512,1,1) lds={LDS_SIZE}")
    e('.amdgcn_target "amdgcn-amd-amdhsa--gfx950"')
    gen()
    open(path, "w").write("\n".join(out) + "\n")

main()
```

```python
import sys

NAME = "recurrent_scan__gqa_block_cached__dense_activation_relu__decode"

HEADER = """; Kernarg layout for this problem (88 bytes, ptrs only, base s[0:1]):
;   offset   0: d_in[0] A_x  shape=(2, 1, 512) dtype=bfloat16 strides=(1024, 1024, 2) contiguous=True
;   offset   8: d_in[1] A_k_cache  shape=(2, 8, 32768, 128) dtype=bfloat16 strides=(67108864, 8388608, 256, 2) contiguous=True
;   offset  16: d_in[2] A_v_cache  shape=(2, 8, 32768, 128) dtype=bfloat16 strides=(67108864, 8388608, 256, 2) contiguous=True
;   offset  24: d_in[3] A_wq  shape=(512, 4096) dtype=bfloat16 strides=(8192, 2) contiguous=True
;   offset  32: d_in[4] A_wo  shape=(4096, 512) dtype=bfloat16 strides=(1024, 2) contiguous=True
;   offset  40: d_in[5] B_x  shape=(2, 1, 512) dtype=bfloat16 strides=(1024, 1024, 2) contiguous=True
;   offset  48: d_in[6] B_w1  shape=(512, 1792) dtype=bfloat16 strides=(3584, 2) contiguous=True
;   offset  56: d_in[7] B_w2  shape=(1792, 512) dtype=bfloat16 strides=(1024, 2) contiguous=True
"""

WS_Q = 0
WS_H = 16384
WS_ML = 32768
WS_O = 65536
WS_P = 1 << 20
WS_G = WS_P + 131072
WS_SIZE = 536870912
WS_QG = 2 << 20
WS_HG = WS_QG + 32768
WS_EP = WS_QG + 65536
WS_QF = WS_QG + 131072
WS_OG = 5 << 20
WS_MG = 6 << 20
WS_SG = WS_MG + 65536
WS_GG = 7 << 20

L_XN = 0
L_QP = 4096
L_Q = 5632
L_HV = 6656
L_CNT = 7168
L_O = 8192
L_ML = 24576
L_FP = 25600
L_VEC = 0
L_SP = 8192
L_GX = 1024
LDS_SIZE = 41984

OPT = dict(nt=" nt", sleep=1, prof=0, pre0=0, pace=8, bar0=1, wsc=0, thr=2, p2=1, ilv=0, kx=0, nbuf=1, nw=8, kpl=0, vpl=0, T=0, plo=0, phi=0, mf=1, qp=0, prex=0, qs=0, warm=0, xb=1, f1=8, np=8, sl=8, psl=8, bnd=0x100000, bar2=1, f2=8, rot=0)

out = []
def e(s=""):
    out.append(s)

def srd(dst, lo, hi, nbytes):
    e(f"  s_mov_b32 s{dst}, s{lo}")
    e(f"  s_and_b32 s{dst+1}, s{hi}, 0xffff")
    e(f"  s_mov_b32 s{dst+2}, {nbytes}")
    e(f"  s_mov_b32 s{dst+3}, 0x00020000")

def dpp_steps(regs, ctrls):
    for ctrl in ctrls:
        e("  s_nop 1")
        for r in regs:
            e(f"  v_add_f32_dpp v{r}, v{r}, v{r} {ctrl} row_mask:0xf bank_mask:0xf")

def swap_steps(regs, tmp):
    for sw in ["v_permlane16_swap_b32", "v_permlane32_swap_b32"]:
        for r, t in zip(regs, tmp):
            e(f"  v_mov_b32 v{t}, v{r}")
        e("  s_nop 1")
        for r, t in zip(regs, tmp):
            e(f"  {sw} v{r}, v{t}")
        e("  s_nop 1")
        for r, t in zip(regs, tmp):
            e(f"  v_add_f32 v{r}, v{r}, v{t}")

def wave_sum(regs, tmp):
    dpp_steps(regs, ["quad_perm:[1,0,3,2]", "quad_perm:[2,3,0,1]", "row_half_mirror", "row_mirror"])
    swap_steps(regs, tmp)

def round_bf16(dst, src):
    e(f"  v_cvt_pk_bf16_f32 v{dst}, v{src}, v{src}")
    e(f"  v_lshlrev_b32 v{dst}, 16, v{dst}")

WS_PROF = 4 << 20
def stamp(k):
    if not OPT["prof"] or OPT["prof"] >= 3:
        return
    e("  s_memrealtime s[80:81]")
    e("  s_waitcnt lgkmcnt(0)")
    e(f"  s_mov_b32 s{92+k}, s80")

WS_PROF3 = 8 << 20
def tl(k=3):
    if OPT["prof"] != k:
        return
    e("  s_memrealtime s[98:99]")
    e("  s_waitcnt lgkmcnt(0)")
    e("  v_writelane_b32 v251, s98, m0")
    e("  s_add_u32 m0, m0, 1")

def tl_dump():
    if OPT["prof"] < 3:
        return
    e("  s_lshl_b32 s82, s2, 3")
    e("  s_add_u32 s82, s82, s3")
    e("  s_lshl_b32 s82, s82, 8")
    e(f"  s_add_u32 s82, s82, {WS_PROF3}")
    e("  v_lshlrev_b32 v5, 2, v1")
    e(f"  buffer_store_dword v251, v5, s[{SWS}:{SWS+3}], s82 offen")

def dump_stamps():
    if not OPT["prof"]:
        return
    if OPT["prof"] >= 3:
        e("K_END2:")
        return
    e("  s_cmp_ge_u32 s3, 2")
    e("  s_cbranch_scc1 K_END2")
    e("  s_cmp_ge_u32 s2, 256")
    e("  s_cbranch_scc1 K_END2")
    stamp(8)
    e("  s_lshl_b32 s82, s2, 1")
    e("  s_add_u32 s82, s82, s3")
    e("  s_lshl_b32 s82, s82, 6")
    e(f"  s_add_u32 s82, s82, {WS_PROF}")
    e("  s_mov_b64 exec, 1")
    e("  v_mov_b32 v6, 0")
    for k in range(9):
        e(f"  v_mov_b32 v5, s{92+k}")
        e(f"  buffer_store_dword v5, v6, s[{SWS}:{SWS+3}], s82 offen offset:{k*4}")
    e("K_END2:")

SX, SK, SV, SWQ, SW1, SWO, SW2, SWS, SDBG, SOUT = 28, 60, 64, 40, 44, 48, 52, 20, 999, 32
SC, SP0, SP1 = 68, 69, 70
IDXA, IDXB = 72, 73
SG, SR, SB, SSPL, SNC, SHEAD = 86, 87, 88, 89, 90, 91
SNO, SCG, SHC = 83, 84, 85

def poll(label, nlanes, voff, target, tmpv):
    e(f"  s_mov_b64 exec, {(1<<nlanes)-1:#x}")
    e("  s_mov_b32 s74, 0x400000")
    e(f"{label}:")
    e(f"  buffer_load_dword v{tmpv}, v{voff}, s[{SDBG}:{SDBG+3}], 0 offen sc1")
    e("  s_waitcnt vmcnt(0)")
    e(f"  v_cmp_ne_u32 vcc, {target}, v{tmpv}")
    e("  s_cmp_eq_u64 vcc, 0")
    e(f"  s_cbranch_scc1 {label}_DONE")
    if OPT["sleep"]:
        e(f"  s_sleep {OPT['sleep']}")
    e("  s_sub_u32 s74, s74, 1")
    e("  s_cmp_lg_u32 s74, 0")
    e(f"  s_cbranch_scc1 {label}")
    e(f"{label}_DONE:")
    e("  s_mov_b64 exec, -1")

def mpoll(label, n, issue, tags, thr):
    full = (1 << n) - 1
    e("  s_not_b32 s75, s26")
    for k in range(n):
        for x in tags(k):
            e(f"  v_mov_b32 v{x}, s75")
    e("  s_mov_b32 s77, 0")
    e(f"  s_mov_b32 s74, {OPT['bnd']:#x}")
    e(f"{label}:")
    for k in range(n):
        e(f"  s_bitcmp1_b32 s77, {k}")
        e(f"  s_cbranch_scc1 {label}S{k}")
        issue(k)
        e(f"{label}S{k}:")
    if thr is not None:
        e(f"  s_xor_b32 s75, s77, {full:#x}")
        e("  s_bcnt1_i32_b32 s75, s75")
        e(f"  s_cmp_le_u32 s75, {thr}")
        e(f"  s_cbranch_scc1 {label}F")
        e("  s_waitcnt vmcnt(0)")
        e(f"{label}F:")
    if OPT["sleep"]:
        e(f"  s_sleep {OPT['sleep']}")
    for k in range(n):
        t = tags(k)
        e(f"  v_cmp_eq_u32 vcc, s26, v{t[0]}")
        for x in t[1:]:
            e(f"  v_cmp_eq_u32 s[78:79], s26, v{x}")
            e("  s_and_b64 vcc, vcc, s[78:79]")
        e("  s_cmp_eq_u64 vcc, -1")
        e(f"  s_cselect_b32 s75, {1<<k:#x}, 0")
        e("  s_or_b32 s77, s77, s75")
    e(f"  s_cmp_eq_u32 s77, {full:#x}")
    e(f"  s_cbranch_scc1 {label}_DONE")
    e("  s_sub_u32 s74, s74, 1")
    e("  s_cmp_lg_u32 s74, 0")
    e(f"  s_cbranch_scc1 {label}")
    e(f"{label}_DONE:")
    e("  s_waitcnt vmcnt(0)")

def gen():
    nt = OPT["nt"]
    BS = 17 if OPT["ilv"] else 13
    POL = dict(k="" if OPT["kpl"] else nt, v="" if OPT["vpl"] else nt)
    name = NAME + "_kernel"
    e(".text")
    e(f".globl {name}")
    e(".p2align 8")
    e(f".type {name},@function")
    e(f"{name}:")
    KA, VA, KB, VB = 16, 48, 80, 112
    ACC = 144
    QF = 176
    ST = 192
    PF = 200
    TR = 204
    M_, L_, T0, T1, AL, MC = 236, 237, 238, 239, 240, 241
    VKOFF, VVOFF = 242, 243
    WO = 244
    W2 = 252
    e("  s_cmp_ge_u32 s2, 256")
    e("  s_cbranch_scc1 K_END2" if OPT["prof"] else "  s_cbranch_scc1 K_END")
    e("  s_load_dwordx16 s[4:19], s[0:1], 0")
    e("  s_load_dwordx2 s[24:25], s[0:1], 80")
    e("  v_and_b32 v1, 63, v0")
    e("  v_lshrrev_b32 v2, 6, v0")
    e("  v_and_b32 v3, 15, v1")
    e("  v_lshrrev_b32 v4, 4, v1")
    e("  v_readfirstlane_b32 s3, v2")
    def derive():
        e(f"  s_and_b32 s{SG}, s2, 7")
        e(f"  s_lshr_b32 s{SR}, s2, 3")
        e(f"  s_and_b32 s{SNO}, s{SR}, 7")
        e(f"  s_lshl_b32 s{SCG}, s{SG}, 5")
        e(f"  s_add_u32 s{SCG}, s{SCG}, s{SR}")
        e(f"  s_lshr_b32 s{SHC}, s{SR}, 3")
        e(f"  s_lshl_b32 s{SHC}, s{SHC}, 6")
        e(f"  s_lshl_b32 s74, s{SG}, 3")
        e(f"  s_add_u32 s{SHC}, s{SHC}, s74")
        e(f"  s_add_u32 s{SHC}, s{SHC}, s{SNO}")
        e(f"  s_lshr_b32 s{SB}, s{SR}, 4")
        e(f"  s_and_b32 s{SSPL}, s{SR}, 15")
        e(f"  s_and_b32 s{SNC}, s2, 7")
        e(f"  s_lshr_b32 s{SHEAD}, s{SR}, 3")
        e(f"  s_lshl_b32 s74, s{SG}, 2")
        e(f"  s_add_u32 s{SHEAD}, s{SHEAD}, s74")
    derive()
    e(f"  s_lshl_b32 s74, s{SB}, 3")
    e(f"  s_add_u32 s74, s74, s{SG}")
    e("  s_lshl_b32 s74, s74, 23")
    e(f"  s_lshl_b32 s75, s{SSPL}, {13 if OPT['ilv'] else 19}")
    e("  s_add_u32 s74, s74, s75")
    e(f"  s_mov_b32 s{SC}, 0x3e0293ee")
    e(f"  s_mov_b32 s{SP0}, 0x05040100")
    e(f"  s_mov_b32 s{SP1}, 0x07060302")
    e("  s_lshl_b32 s75, s3, 1")
    e(f"  s_sub_u32 s{IDXA}, s75, 2")
    e(f"  s_sub_u32 s{IDXB}, s75, 1")
    if OPT["nbuf"] == 1:
        e(f"  s_mov_b32 s{IDXA}, s3")
        if OPT["nw"] < 8:
            e(f"  s_cmp_ge_u32 s3, {OPT['nw']}")
            e(f"  s_cselect_b32 s{IDXA}, 64, s{IDXA}")
    e("  v_and_b32 v5, 3, v3")
    e("  v_lshrrev_b32 v6, 2, v3")
    e("  v_lshl_add_u32 v5, v5, 2, v6")
    e("  v_lshlrev_b32 v5, 8, v5")
    e(f"  v_lshl_add_u32 v{VKOFF}, v4, 4, v5")
    e(f"  v_lshlrev_b32 v{VVOFF}, 4, v1")
    if OPT["kx"]:
        e(f"  v_lshlrev_b32 v{VKOFF}, 4, v1")
    e("  s_waitcnt lgkmcnt(0)")
    e(f"  s_mov_b32 s75, {WS_EP}")
    e("  s_load_dword s26, s[24:25], s75")
    srd(SX, 4, 5, 2048)
    srd(SWQ, 10, 11, 512 * 4096 * 2)
    srd(SWS, 24, 25, WS_SIZE)
    e(f"  s_add_u32 s{SK}, s6, s74")
    e(f"  s_addc_u32 s{SK+1}, s7, 0")
    e(f"  s_and_b32 s{SK+1}, s{SK+1}, 0xffff")
    if OPT['ilv']:
        e(f"  s_lshl_b32 s75, s{SSPL}, 13")
        e(f"  s_sub_u32 s{SK+2}, {8<<20}, s75")
    else:
        e(f"  s_mov_b32 s{SK+2}, 524288")
    e(f"  s_mov_b32 s{SK+3}, 0x00020000")
    e(f"  s_add_u32 s{SV}, s8, s74")
    e(f"  s_addc_u32 s{SV+1}, s9, 0")
    e(f"  s_and_b32 s{SV+1}, s{SV+1}, 0xffff")
    e(f"  s_mov_b32 s{SV+2}, s{SK+2}")
    e(f"  s_mov_b32 s{SV+3}, 0x00020000")
    e("  s_movk_i32 s71, 4096")
    if OPT["warm"]:
        e(f"  s_lshl_b32 s75, s{SCG}, 6")
        e(f"  s_add_u32 s75, s75, {WS_QG}")
        e("  s_load_dword s98, s[24:25], s75")
        e("  s_add_u32 s75, s75, 16384")
        e("  s_load_dword s99, s[24:25], s75")
    stamp(0)
    if OPT["prof"] >= 3:
        e("  v_mov_b32 v251, 0")
        e("  s_mov_b32 m0, 0")
        tl(OPT["prof"])
    F1 = max(OPT["f1"], OPT["pre0"])
    e("  v_lshlrev_b32 v5, 4, v1")
    e(f"  buffer_load_dwordx4 v[204:207], v5, s[{SX}:{SX+3}], 0 offen")
    e(f"  buffer_load_dwordx4 v[208:211], v5, s[{SX}:{SX+3}], 0 offen offset:1024")
    if OPT["xb"]:
        e("  s_barrier")
    e("  v_lshrrev_b32 v6, 2, v0")
    e("  v_and_b32 v7, 3, v0")
    e("  v_lshlrev_b32 v8, 13, v6")
    e("  v_lshl_add_u32 v8, v7, 3, v8")
    e(f"  s_lshl_b32 s75, s{SCG}, 5")
    e("  v_add_u32 v8, s75, v8")
    for i in range(4):
        if i == 0:
            e(f"  buffer_load_dwordx2 v[212:213], v8, s[{SWQ}:{SWQ+3}], 0 offen")
        else:
            e(f"  v_add_u32 v8, 0x100000, v8")
            e(f"  buffer_load_dwordx2 v[{212+2*i}:{213+2*i}], v8, s[{SWQ}:{SWQ+3}], 0 offen")
    def kchunk_l(KR, vo):
        r=[]
        if OPT["kx"]:
            for j in range(8):
                so = "0" if j < 4 else "s71"
                r.append(f"  buffer_load_dwordx4 v[{KR+4*j}:{KR+4*j+3}], v{vo}, s[{SK}:{SK+3}], {so} offen offset:{(j&3)*1024}{nt}")
            return r
        for t in range(2):
            for i in range(4):
                so = "0" if t == 0 else "s71"
                r.append(f"  buffer_load_dwordx4 v[{KR+16*t+4*i}:{KR+16*t+4*i+3}], v{vo}, s[{SK}:{SK+3}], {so} offen offset:{i*64}{POL['k']}")
        return r
    def vchunk_l(VR, vo):
        r=[]
        for j in range(8):
            so = "0" if j < 4 else "s71"
            r.append(f"  buffer_load_dwordx4 v[{VR+4*j}:{VR+4*j+3}], v{vo}, s[{SV}:{SV+3}], {so} offen offset:{(j&3)*1024}{POL['v']}")
        return r
    def kchunk(KR, vo):
        for l in kchunk_l(KR, vo): e(l)
    def vchunk(VR, vo):
        for l in vchunk_l(VR, vo): e(l)
    def blkoff(sidx):
        if OPT["rot"]:
            e(f"  s_add_u32 s75, s{sidx}, s73")
            e("  s_and_b32 s75, s75, 63")
            e(f"  s_lshl_b32 s75, s75, {BS}")
            e(f"  s_cmp_lt_u32 s{sidx}, 64")
            e("  s_cselect_b32 s75, s75, 0x100000")
        else:
            e(f"  s_lshl_b32 s75, s{sidx}, {BS}")
    def loads(KR, VR, sidx):
        blkoff(sidx)
        e(f"  v_add_u32 v5, s75, v{VKOFF}")
        e(f"  v_add_u32 v6, s75, v{VVOFF}")
        kchunk(KR, 5)
        vchunk(VR, 6)
    def wo_loads():
        e("  v_lshlrev_b32 v14, 10, v12")
        e("  v_lshl_add_u32 v14, v13, 4, v14")
        if not OPT["mf"]:
            e(f"  s_lshl_b32 s75, s{SNO}, 7")
            e("  v_add_u32 v15, s75, v14")
            e(f"  s_lshl_b32 s75, s{SHEAD}, 17")
            e("  v_add_u32 v15, s75, v15")
            e(f"  buffer_load_dwordx4 v[{WO}:{WO+3}], v15, s[{SWO}:{SWO+3}], 0 offen")
            e("  v_add_u32 v15, 0x10000, v15")
            e(f"  buffer_load_dwordx4 v[{WO+4}:{WO+7}], v15, s[{SWO}:{SWO+3}], 0 offen")
        else:
            lab = f"K_WOS{len(out)}"
            e("  s_cmp_ge_u32 s3, 4")
            e(f"  s_cbranch_scc1 {lab}")
            e("  v_lshlrev_b32 v15, 13, v4")
            e("  v_lshl_add_u32 v15, v3, 2, v15")
            e(f"  s_lshl_b32 s75, s{SHEAD}, 17")
            e(f"  s_lshl_b32 s76, s{SNO}, 7")
            e("  s_add_u32 s75, s75, s76")
            e("  s_lshr_b32 s76, s3, 1")
            e("  s_lshl_b32 s76, s76, 6")
            e("  s_add_u32 s75, s75, s76")
            for ks in range(4):
                for jh in range(2):
                    for j in range(4):
                        e(f"  buffer_load_dword v{80+ks*8+jh*4+j}, v15, s[{SWO}:{SWO+3}], s75 offen offset:{j*1024}")
                    if not (ks == 3 and jh == 1):
                        e(f"  s_add_u32 s75, s75, {4096 if jh == 0 else 32768-4096}")
            e(f"{lab}:")
        e("  s_lshr_b32 s75, s2, 3")
        e("  s_lshl_b32 s75, s75, 16")
        e("  v_add_u32 v15, s75, v14")
        e(f"  s_lshl_b32 s75, s{SNC}, 7")
        e("  v_add_u32 v15, s75, v15")
        e(f"  buffer_load_dwordx4 v[{W2}:{W2+3}], v15, s[{SW2}:{SW2+3}], 0 offen")
    e("  v_lshrrev_b32 v12, 3, v0")
    e("  v_and_b32 v13, 7, v0")
    if OPT["rot"]:
        e(f"  s_mul_i32 s73, s2, {OPT['rot']}")
    blkoff(IDXA)
    e(f"  v_add_u32 v224, s75, v{VKOFF}")
    e(f"  v_add_u32 v225, s75, v{VVOFF}")
    pl = kchunk_l(KA, 224) + vchunk_l(VA, 225)
    PRE0 = OPT["pre0"]
    if OPT["bar0"] and PRE0:
        e("  s_barrier")
    for c in range(PRE0):
        e(pl[c])
    X = 144
    e(f"  s_waitcnt vmcnt({4+PRE0})")
    tl(4)
    for b in range(2):
        for c in range(4):
            e(f"  v_lshlrev_b32 v{X+8*b+2*c}, 16, v{204+4*b+c}")
            e(f"  v_and_b32 v{X+1+8*b+2*c}, 0xffff0000, v{204+4*b+c}")
    for b in range(2):
        t = 160 + 4 * b
        e(f"  v_pk_add_f32 v[{t}:{t+1}], v[{X+8*b}:{X+8*b+1}], v[{X+8*b+2}:{X+8*b+3}]")
        e(f"  v_pk_add_f32 v[{t+2}:{t+3}], v[{X+8*b+4}:{X+8*b+5}], v[{X+8*b+6}:{X+8*b+7}]")
    for b in range(2):
        t = 160 + 4 * b
        e(f"  v_pk_add_f32 v[{t}:{t+1}], v[{t}:{t+1}], v[{t+2}:{t+3}]")
    e("  v_add_f32 v160, v160, v161")
    e("  v_add_f32 v161, v164, v165")
    wave_sum([160, 161], [162, 163])
    e("  v_mul_f32 v160, 0x3b000000, v160")
    e("  v_mul_f32 v161, 0x3b000000, v161")
    bsel = [" op_sel_hi:[1,0]", " op_sel:[0,1] op_sel_hi:[1,1]"]
    for b in range(2):
        for c in range(4):
            t = 168 + 8 * b + 2 * c
            e(f"  v_pk_add_f32 v[{t}:{t+1}], v[{X+8*b+2*c}:{X+8*b+2*c+1}], v[160:161]{bsel[b]} neg_lo:[0,1] neg_hi:[0,1]")
    for b in range(2):
        t = 168 + 8 * b
        e(f"  v_pk_mul_f32 v[{164+2*b}:{165+2*b}], v[{t}:{t+1}], v[{t}:{t+1}]")
    for c in range(1, 4):
        for b in range(2):
            t = 168 + 8 * b + 2 * c
            e(f"  v_pk_fma_f32 v[{164+2*b}:{165+2*b}], v[{t}:{t+1}], v[{t}:{t+1}], v[{164+2*b}:{165+2*b}]")
    e("  v_add_f32 v164, v164, v165")
    e("  v_add_f32 v165, v166, v167")
    wave_sum([164, 165], [162, 163])
    e("  v_mul_f32 v164, 0x3b000000, v164")
    e("  v_mul_f32 v165, 0x3b000000, v165")
    for b in range(2):
        round_bf16(164 + b, 164 + b)
        e(f"  v_add_f32 v{164+b}, 0x3727c5ac, v{164+b}")
        round_bf16(164 + b, 164 + b)
        e(f"  v_sqrt_f32 v{164+b}, v{164+b}")
        e("  s_nop 0")
        round_bf16(164 + b, 164 + b)
        e(f"  v_rcp_f32 v{164+b}, v{164+b}")
        round_bf16(160 + b, 160 + b)
    for b in range(2):
        for c in range(4):
            r = X + 8 * b + 2 * c
            e(f"  v_pk_add_f32 v[{r}:{r+1}], v[{r}:{r+1}], v[160:161]{bsel[b]} neg_lo:[0,1] neg_hi:[0,1]")
        for c in range(4):
            r = X + 8 * b + 2 * c
            e(f"  v_cvt_pk_bf16_f32 v{168+c}, v{r}, v{r+1}")
        for c in range(4):
            r = X + 8 * b + 2 * c
            e(f"  v_lshlrev_b32 v{r}, 16, v{168+c}")
            e(f"  v_and_b32 v{r+1}, 0xffff0000, v{168+c}")
        for c in range(4):
            r = X + 8 * b + 2 * c
            e(f"  v_pk_mul_f32 v[{r}:{r+1}], v[{r}:{r+1}], v[164:165]{bsel[b]}")
        for c in range(4):
            r = X + 8 * b + 2 * c
            e(f"  v_cvt_pk_bf16_f32 v{168+c}, v{r}, v{r+1}")
        for c in range(4):
            r = X + 8 * b + 2 * c
            e(f"  v_lshlrev_b32 v{r}, 16, v{168+c}")
            e(f"  v_and_b32 v{r+1}, 0xffff0000, v{168+c}")
    e("  v_lshlrev_b32 v5, 5, v1")
    for b in range(2):
        e(f"  ds_write_b128 v5, v[{X+8*b}:{X+8*b+3}] offset:{L_XN + b*2048}")
        e(f"  ds_write_b128 v5, v[{X+8*b+4}:{X+8*b+7}] offset:{L_XN + b*2048 + 16}")
    e("  s_waitcnt lgkmcnt(0)")
    e("  s_add_u32 s26, s26, 1")
    e("  v_lshrrev_b32 v5, 2, v0")
    e("  v_lshlrev_b32 v5, 2, v5")
    for i in range(4):
        e(f"  ds_read2st64_b32 v[{168+2*i}:{169+2*i}], v5 offset0:{(L_XN + i*512)//256} offset1:{(L_XN + i*512 + 2048)//256}")
    tl(4)
    e(f"  s_waitcnt vmcnt({PRE0}) lgkmcnt(0)")
    tl(4)
    for c in range(PRE0, F1):
        e(pl[c])
    def pk_part(w, xr, acc0, acc1, first):
        e(f"  v_lshlrev_b32 v160, 16, v{w}")
        e(f"  v_and_b32 v161, 0xffff0000, v{w}")
        if first:
            e(f"  v_pk_mul_f32 v[{acc0}:{acc0+1}], v[160:161], v[{xr}:{xr+1}] op_sel_hi:[1,0]")
            e(f"  v_pk_mul_f32 v[{acc1}:{acc1+1}], v[160:161], v[{xr}:{xr+1}] op_sel:[0,1] op_sel_hi:[1,1]")
        else:
            e(f"  v_pk_fma_f32 v[{acc0}:{acc0+1}], v[160:161], v[{xr}:{xr+1}], v[{acc0}:{acc0+1}] op_sel_hi:[1,0,1]")
            e(f"  v_pk_fma_f32 v[{acc1}:{acc1+1}], v[160:161], v[{xr}:{xr+1}], v[{acc1}:{acc1+1}] op_sel:[0,1,0] op_sel_hi:[1,1,1]")
    for i in range(4):
        for c in range(2):
            pk_part(212 + 2 * i + c, 168 + 2 * i, 180 + 2 * c, 184 + 2 * c, i == 0)
    dpp_steps(list(range(180, 188)), ["row_ror:4", "row_ror:8"])
    swap_steps(list(range(180, 188)), list(range(204, 212)))
    e("  s_mul_i32 s75, s3, 192")
    e("  v_lshlrev_b32 v5, 4, v1")
    e("  v_add_u32 v5, s75, v5")
    e("  s_mov_b64 exec, 0xf")
    e(f"  ds_write_b128 v5, v[180:183] offset:{L_QP}")
    e(f"  ds_write_b128 v5, v[184:187] offset:{L_QP+64}")
    e("  s_mov_b64 exec, -1")
    e("  s_waitcnt lgkmcnt(0)")
    tl(4)
    e("  s_barrier")
    e("  s_cmp_lg_u32 s3, 0")
    e("  s_cbranch_scc1 K_B2")
    e("  v_lshlrev_b32 v5, 3, v1")
    e("  s_mov_b64 exec, 0xffff")
    for w in range(8):
        e(f"  ds_read_b64 v[{160+2*w}:{161+2*w}], v5 offset:{L_QP + w*192}")
    e("  v_lshrrev_b32 v6, 3, v1")
    e("  v_lshlrev_b32 v6, 14, v6")
    e("  v_and_b32 v7, 7, v1")
    e("  v_lshl_add_u32 v6, v7, 3, v6")
    e(f"  s_lshl_b32 s75, s{SCG}, 6")
    e(f"  s_add_u32 s75, s75, {WS_QG}")
    e("  v_add_u32 v6, s75, v6")
    e("  v_mov_b32 v8, 8")
    e("  v_mov_b32 v9, 0")
    e(f"  v_mov_b32 v11, {L_CNT}")
    e("  s_waitcnt lgkmcnt(0)")
    e("  v_pk_add_f32 v[160:161], v[160:161], v[162:163]")
    e("  v_pk_add_f32 v[164:165], v[164:165], v[166:167]")
    e("  v_pk_add_f32 v[168:169], v[168:169], v[170:171]")
    e("  v_pk_add_f32 v[172:173], v[172:173], v[174:175]")
    e("  v_pk_add_f32 v[160:161], v[160:161], v[164:165]")
    e("  v_pk_add_f32 v[168:169], v[168:169], v[172:173]")
    e("  v_pk_add_f32 v[160:161], v[160:161], v[168:169]")
    e("  v_cvt_pk_bf16_f32 v160, v160, v161")
    e("  v_mov_b32 v161, s26")
    e(f"  buffer_store_dwordx2 v[160:161], v6, s[{SWS}:{SWS+3}], 0 offen sc1")
    e("  ds_write_b64 v11, v[8:9]")
    e("  s_mov_b64 exec, -1")
    e("K_B2:")
    tl(4)
    if OPT["bar2"]:
        e("  s_barrier")
    F2 = max(F1, OPT["f2"])
    for c in range(F1, F2):
        e(pl[c])
    e(f"  s_lshl_b32 s75, s{SB}, 14")
    e(f"  s_lshl_b32 s76, s{SG}, 11")
    e("  s_add_u32 s75, s75, s76")
    e("  s_lshl_b32 s76, s3, 8")
    e("  s_add_u32 s75, s75, s76")
    e(f"  s_add_u32 s75, s75, {WS_QG}")
    e("  s_lshl_b32 s76, s3, 7")
    e("  v_lshlrev_b32 v6, 2, v1")
    e("  v_add_u32 v6, s76, v6")
    e(f"  s_mov_b32 s74, {OPT['bnd']:#x}")
    PB = [4, 28, 44, 80]
    tl(4)
    e("K_SP:")
    for i, b_ in enumerate(PB):
        e(f"  s_load_dwordx16 s[{b_}:{b_+15}], s[24:25], s75 offset:{64*i} glc")
    e("  s_waitcnt lgkmcnt(0)")
    prs = [b_ + 2*k for b_ in PB for k in range(8)]
    e(f"  s_and_b64 s[76:77], s[{prs[0]}:{prs[0]+1}], s[{prs[1]}:{prs[1]+1}]")
    e(f"  s_or_b64 s[78:79], s[{prs[0]}:{prs[0]+1}], s[{prs[1]}:{prs[1]+1}]")
    for r in prs[2:]:
        e(f"  s_and_b64 s[76:77], s[76:77], s[{r}:{r+1}]")
        e(f"  s_or_b64 s[78:79], s[78:79], s[{r}:{r+1}]")
    e("  s_xor_b32 s77, s77, s26")
    e("  s_xor_b32 s79, s79, s26")
    e("  s_or_b32 s77, s77, s79")
    e("  s_cmp_eq_u32 s77, 0")
    e("  s_cbranch_scc1 K_SPD")
    e("  s_sub_u32 s74, s74, 1")
    e("  s_cmp_lg_u32 s74, 0")
    e("  s_cbranch_scc1 K_SP")
    e("K_SPD:")
    tl(4)
    for k, r in enumerate(prs):
        e(f"  v_writelane_b32 v5, s{r}, {k}")
    e("  s_mov_b64 exec, 0xffffffff")
    e(f"  ds_write_b32 v6, v5 offset:{L_Q}")
    e("  s_mov_b64 exec, -1")
    e("  s_waitcnt lgkmcnt(0)")
    e("  s_barrier")
    e("K_B3:")
    tl(4)
    e("  s_load_dwordx16 s[4:19], s[0:1], 0")
    e("  s_load_dwordx2 s[96:97], s[0:1], 64")
    for c in range(F2, len(pl)):
        e(pl[c])
    e("  v_and_b32 v5, 3, v3")
    e("  v_lshlrev_b32 v5, 8, v5")
    e("  v_lshl_add_u32 v5, v4, 4, v5")
    for i in range(4):
        e(f"  ds_read_b128 v[{QF+4*i}:{QF+4*i+3}], v5 offset:{L_Q + i*64}")
    derive()
    for r in range(32):
        e(f"  v_mov_b32 v{ACC+r}, 0")
    e(f"  v_mov_b32 v{M_}, 0xf149f2ca")
    e(f"  v_mov_b32 v{L_}, 0")
    e(f"  v_mov_b32 v7, {L_CNT}")
    e("  v_mov_b32 v8, 1")
    e("  s_waitcnt lgkmcnt(0)")
    srd(SX, 4, 5, 2048)
    srd(SW1, 16, 17, 512 * 1792 * 2)
    srd(SWO, 12, 13, 4096 * 512 * 2)
    srd(SW2, 18, 19, 1792 * 512 * 2)
    srd(SOUT, 96, 97, 2048)
    e("  s_mov_b32 s27, 2")
    def x_loads(sfx):
        e("  s_cmp_lg_u32 s27, 2")
        e(f"  s_cbranch_scc1 K_XL{sfx}")
        e("  s_mov_b32 s27, 3")
        e("  v_lshrrev_b32 v9, 1, v0")
        e("  v_and_b32 v10, 1, v0")
        e("  s_movk_i32 s75, 3584")
        e("  v_mul_lo_u32 v11, v9, s75")
        e("  v_lshl_add_u32 v11, v10, 3, v11")
        e(f"  s_lshl_b32 s75, s{SHC}, 4")
        e("  v_add_u32 v11, s75, v11")
        e(f"  buffer_load_dwordx2 v[244:245], v11, s[{SW1}:{SW1+3}], 0 offen")
        e(f"  v_add_u32 v11, {256*3584}, v11")
        e(f"  buffer_load_dwordx2 v[246:247], v11, s[{SW1}:{SW1+3}], 0 offen")
        wo_loads()
        e(f"K_XL{sfx}:")

    def h_phase(sfx):
        e("  s_cmp_eq_u32 s27, 0")
        e(f"  s_cbranch_scc1 K_HSKP{sfx}")
        e("  s_sub_u32 s27, s27, 2")
        e("  s_cmp_eq_u32 s27, 1")
        e(f"  s_cbranch_scc1 K_HSKP{sfx}")
        e("  s_mov_b32 s27, 0")
        e(f"  s_cmp_ge_u32 s{SHC}, 224")
        e(f"  s_cbranch_scc1 K_HSKP{sfx}")
        e("  v_lshrrev_b32 v5, 1, v0")
        e("  v_lshlrev_b32 v5, 2, v5")
        for i in range(2):
            e(f"  ds_read2st64_b32 v[{204+2*i}:{205+2*i}], v5 offset0:{(L_XN + i*1024)//256} offset1:{(L_XN + i*1024 + 2048)//256}")
        e("  s_waitcnt lgkmcnt(0)")
        A = 212
        for i in range(2):
            for c in range(2):
                w = 244 + 2*i + c
                xr = 204 + 2*i
                a0, a1 = A + 2*c, A + 4 + 2*c
                e(f"  v_lshlrev_b32 v208, 16, v{w}")
                e(f"  v_and_b32 v209, 0xffff0000, v{w}")
                if i == 0:
                    e(f"  v_pk_mul_f32 v[{a0}:{a0+1}], v[208:209], v[{xr}:{xr+1}] op_sel_hi:[1,0]")
                    e(f"  v_pk_mul_f32 v[{a1}:{a1+1}], v[208:209], v[{xr}:{xr+1}] op_sel:[0,1] op_sel_hi:[1,1]")
                else:
                    e(f"  v_pk_fma_f32 v[{a0}:{a0+1}], v[208:209], v[{xr}:{xr+1}], v[{a0}:{a0+1}] op_sel_hi:[1,0,1]")
                    e(f"  v_pk_fma_f32 v[{a1}:{a1+1}], v[208:209], v[{xr}:{xr+1}], v[{a1}:{a1+1}] op_sel:[0,1,0] op_sel_hi:[1,1,1]")
        dpp_steps(list(range(A, A+8)), ["quad_perm:[2,3,0,1]", "row_ror:4", "row_ror:8"])
        swap_steps(list(range(A, A+8)), list(range(220, 228)))
        e("  s_mul_i32 s75, s3, 192")
        e("  v_lshlrev_b32 v5, 4, v1")
        e("  v_add_u32 v5, s75, v5")
        e("  s_mov_b64 exec, 0x3")
        e(f"  ds_write_b128 v5, v[{A}:{A+3}] offset:{L_QP+128}")
        e(f"  ds_write_b128 v5, v[{A+4}:{A+7}] offset:{L_QP+160}")
        e("  s_mov_b64 exec, 1")
        e(f"  ds_add_rtn_u32 v6, v7, v8 offset:4")
        e("  s_mov_b64 exec, -1")
        e("  s_waitcnt lgkmcnt(0)")
        e("  v_readfirstlane_b32 s75, v6")
        e("  s_cmp_lg_u32 s75, 7")
        e(f"  s_cbranch_scc1 K_HSKP{sfx}")
        e("  v_lshlrev_b32 v5, 3, v1")
        e("  s_mov_b64 exec, 0xff")
        for w in range(8):
            e(f"  ds_read_b64 v[{204+2*w}:{205+2*w}], v5 offset:{L_QP + w*192 + 128}")
        e("  v_lshrrev_b32 v6, 2, v1")
        e("  s_movk_i32 s75, 7168")
        e("  v_mul_lo_u32 v6, v6, s75")
        e("  v_and_b32 v9, 3, v1")
        e("  v_lshl_add_u32 v6, v9, 3, v6")
        e(f"  s_lshl_b32 s75, s{SHC}, 5")
        e(f"  s_add_u32 s75, s75, {WS_HG}")
        e("  s_waitcnt lgkmcnt(0)")
        e("  v_pk_add_f32 v[204:205], v[204:205], v[206:207]")
        e("  v_pk_add_f32 v[208:209], v[208:209], v[210:211]")
        e("  v_pk_add_f32 v[212:213], v[212:213], v[214:215]")
        e("  v_pk_add_f32 v[216:217], v[216:217], v[218:219]")
        e("  v_pk_add_f32 v[204:205], v[204:205], v[208:209]")
        e("  v_pk_add_f32 v[212:213], v[212:213], v[216:217]")
        e("  v_pk_add_f32 v[204:205], v[204:205], v[212:213]")
        e("  v_max_f32 v204, 0, v204")
        e("  v_max_f32 v205, 0, v205")
        e("  v_cvt_pk_bf16_f32 v204, v204, v205")
        e("  v_mov_b32 v205, s26")
        e(f"  buffer_store_dwordx2 v[204:205], v6, s[{SWS}:{SWS+3}], s75 offen sc1")
        e("  s_mov_b64 exec, -1")
        e(f"K_HSKP{sfx}:")
    def h_loads():
        e("  s_movk_i32 s75, 7168")
        e(f"  buffer_load_dwordx2 v[244:245], v248, s[{SWS}:{SWS+3}], 0 offen sc1")
        e(f"  buffer_load_dwordx2 v[246:247], v248, s[{SWS}:{SWS+3}], s75 offen sc1")

    def compute(KR, VR, vk, vv):
        e(f"  s_waitcnt vmcnt({vk})")
        tl()
        for t in range(2):
            for i in range(4):
                c = "0" if i == 0 else f"v[{ST+4*t}:{ST+4*t+3}]"
                e(f"  v_mfma_f32_16x16x32_bf16 v[{ST+4*t}:{ST+4*t+3}], v[{KR+16*t+4*i}:{KR+16*t+4*i+3}], v[{QF+4*i}:{QF+4*i+3}], {c}")
        e("  s_nop 7")
        e("  s_nop 0")
        e(f"  v_max3_f32 v{T0}, v{ST}, v{ST+1}, v{ST+2}")
        e(f"  v_max3_f32 v{T1}, v{ST+3}, v{ST+4}, v{ST+5}")
        e(f"  v_max3_f32 v{T0}, v{T0}, v{ST+6}, v{ST+7}")
        e(f"  v_max_f32 v{T0}, v{T0}, v{T1}")
        e(f"  v_mov_b32 v{T1}, v{T0}")
        e("  s_nop 1")
        e(f"  v_permlane16_swap_b32 v{T0}, v{T1}")
        e("  s_nop 1")
        e(f"  v_max_f32 v{T0}, v{T0}, v{T1}")
        e(f"  v_mov_b32 v{T1}, v{T0}")
        e("  s_nop 1")
        e(f"  v_permlane32_swap_b32 v{T0}, v{T1}")
        e("  s_nop 1")
        e(f"  v_max3_f32 v{T0}, v{T0}, v{T1}, v{M_}")
        e(f"  v_sub_f32 v{AL}, v{M_}, v{T0}")
        e(f"  v_mul_f32 v{AL}, s{SC}, v{AL}")
        e(f"  v_exp_f32 v{AL}, v{AL}")
        e(f"  v_mov_b32 v{M_}, v{T0}")
        e(f"  v_mul_f32 v{MC}, s{SC}, v{T0}")
        for k in range(8):
            e(f"  v_fma_f32 v{ST+k}, v{ST+k}, s{SC}, -v{MC}")
        for k in range(8):
            e(f"  v_exp_f32 v{ST+k}, v{ST+k}")
        e("  s_nop 0")
        e(f"  v_mul_f32 v{L_}, v{L_}, v{AL}")
        for k in range(8):
            e(f"  v_add_f32 v{L_}, v{L_}, v{ST+k}")
        for q in range(4):
            e(f"  v_cvt_pk_bf16_f32 v{PF+q}, v{ST+2*q}, v{ST+2*q+1}")
        for r in range(32):
            e(f"  v_mul_f32 v{ACC+r}, v{ACC+r}, v{AL}")
        e(f"  s_waitcnt vmcnt({vv})")
        tl()
        for t in range(8):
            c = t >> 1
            sel = f"s{SP1}" if (t & 1) else f"s{SP0}"
            for q in range(4):
                e(f"  v_perm_b32 v{TR+4*t+q}, v{VR+4*(2*q+1)+c}, v{VR+4*(2*q)+c}, {sel}")
        e("  s_nop 1")
        for t in range(8):
            e(f"  v_mfma_f32_16x16x32_bf16 v[{ACC+4*t}:{ACC+4*t+3}], v[{TR+4*t}:{TR+4*t+3}], v[{PF}:{PF+3}], v[{ACC+4*t}:{ACC+4*t+3}]")

    def fetch():
        e("  s_mov_b64 exec, 1")
        e("  ds_add_rtn_u32 v9, v7, v8")
        e("  s_mov_b64 exec, -1")
    def getidx(sidx):
        e("  s_waitcnt lgkmcnt(0)")
        e(f"  v_readfirstlane_b32 s{sidx}, v9")

    if OPT["nw"] < 8:
        e(f"  s_cmp_ge_u32 s3, {OPT['nw']}")
        e("  s_cbranch_scc1 K_EXIT")
    def gen_loop(sfx, last):
        if OPT["nbuf"] == 3:
            fetch()
            compute(KA, VA, 24, 16)
            getidx(IDXA)
            loads(KA, VA, IDXA)
            compute(KB, VB, 24, 16)
            e(f"  s_cmp_ge_u32 s{IDXA}, 64")
            e("  s_cbranch_scc1 K_EXIT")
        e(f"K_LOOP{sfx}:")
        if OPT["nbuf"] == 2:
            fetch()
            compute(KA, VA, 24, 16)
            getidx(IDXA)
            loads(KA, VA, IDXA)
            e(f"  s_cmp_ge_u32 s{IDXB}, 64")
            e("  s_cbranch_scc1 K_EXIT")
            fetch()
            compute(KB, VB, 24, 16)
            getidx(IDXB)
            loads(KB, VB, IDXB)
            e(f"  s_cmp_lt_u32 s{IDXA}, 64")
            e(f"  s_cbranch_scc1 K_LOOP{sfx}")
        else:
            fetch()
            compute(KA, VA, 8, 0)
            getidx(IDXA)
            x_loads("L")
            loads(KA, VA, IDXA)
            h_phase("L")
            e(f"  s_cmp_lt_u32 s{IDXA}, 64")
            e(f"  s_cbranch_scc1 K_LOOP{sfx}")
        if not last:
            e("  s_branch K_EXIT")
    if OPT["T"]:
        e(f"  s_lshl_b32 s75, s{SB}, 3")
        e(f"  s_add_u32 s75, s75, s{SG}")
        e(f"  s_cmp_lt_u32 s75, {OPT['T']}")
        e("  s_cbranch_scc1 K_LOOPlo")
        POL["k"] = "" if OPT["phi"] & 1 else nt
        POL["v"] = "" if OPT["phi"] & 2 else nt
        gen_loop("hi", False)
        POL["k"] = "" if OPT["plo"] & 1 else nt
        POL["v"] = "" if OPT["plo"] & 2 else nt
        gen_loop("lo", True)
    else:
        gen_loop("", True)
    e("K_EXIT:")
    if OPT["prof"] == 1: stamp(4)
    tl(OPT["prof"])
    tl_dump()
    e("  s_cmp_eq_u32 s27, 0")
    e("  s_cbranch_scc1 K_X0")
    x_loads("E")
    e("  s_mov_b32 s27, 1")
    e("  s_waitcnt vmcnt(0)")
    h_phase("E")
    e("K_X0:")
    e("  s_cmp_ge_u32 s2, 224")
    e("  s_cbranch_scc1 K_HSK")
    e("  v_lshrrev_b32 v5, 1, v12")
    e("  v_lshlrev_b32 v248, 3, v5")
    e("  s_lshr_b32 s75, s2, 3")
    e("  s_lshl_b32 s75, s75, 8")
    e(f"  s_add_u32 s75, s75, {WS_HG}")
    e("  v_add_u32 v248, s75, v248")
    h_loads()
    e("K_HSK:")
    e(f"  v_mov_b32 v{T1}, v{L_}")
    e("  s_nop 1")
    e(f"  v_permlane16_swap_b32 v{L_}, v{T1}")
    e("  s_nop 1")
    e(f"  v_add_f32 v{L_}, v{L_}, v{T1}")
    e(f"  v_mov_b32 v{T1}, v{L_}")
    e("  s_nop 1")
    e(f"  v_permlane32_swap_b32 v{L_}, v{T1}")
    e("  s_nop 1")
    e(f"  v_add_f32 v{L_}, v{L_}, v{T1}")
    e("  v_cmp_gt_u32 vcc, 4, v3")
    e("  s_and_saveexec_b64 s[78:79], vcc")
    e("  v_lshlrev_b32 v5, 11, v2")
    e("  v_lshl_add_u32 v5, v3, 9, v5")
    e("  v_lshl_add_u32 v5, v4, 7, v5")
    e("  s_nop 4")
    for t in range(8):
        for r in range(4):
            e(f"  ds_write_b32 v5, v{ACC+4*t+r} offset:{L_O + (r*8+t)*4}")
    e("  v_cmp_gt_u32 vcc, 4, v1")
    e("  s_and_b64 exec, exec, vcc")
    e("  v_lshlrev_b32 v6, 5, v2")
    e("  v_lshl_add_u32 v6, v3, 3, v6")
    e(f"  ds_write_b32 v6, v{M_} offset:{L_ML}")
    e(f"  ds_write_b32 v6, v{L_} offset:{L_ML+4}")
    e("  s_mov_b64 exec, s[78:79]")
    e("  s_waitcnt lgkmcnt(0)")
    e("  s_barrier")
    e("  v_lshrrev_b32 v5, 7, v0")
    e("  v_and_b32 v6, 127, v0")
    e("  v_lshlrev_b32 v7, 3, v5")
    for w in range(8):
        e(f"  ds_read_b64 v[{160+2*w}:{161+2*w}], v7 offset:{L_ML + w*32}")
    e("  v_lshlrev_b32 v8, 9, v5")
    e("  v_lshl_add_u32 v8, v6, 2, v8")
    for w in range(8):
        e(f"  ds_read_b32 v{176+w}, v8 offset:{L_O + w*2048}")
    e("  s_waitcnt lgkmcnt(0)")
    e("  v_max3_f32 v184, v160, v162, v164")
    e("  v_max3_f32 v185, v166, v168, v170")
    e("  v_max3_f32 v184, v184, v172, v174")
    e("  v_max_f32 v184, v184, v185")
    e("  v_mov_b32 v186, 0")
    e("  v_mov_b32 v187, 0")
    for w in range(8):
        e(f"  v_sub_f32 v185, v{160+2*w}, v184")
        e(f"  v_mul_f32 v185, s{SC}, v185")
        e("  v_exp_f32 v185, v185")
        e("  s_nop 0")
        e(f"  v_fmac_f32 v186, v185, v{161+2*w}")
        e(f"  v_fmac_f32 v187, v185, v{176+w}")
    e(f"  s_lshl_b32 s75, s{SB}, 5")
    e(f"  s_lshl_b32 s76, s{SG}, 2")
    e("  s_add_u32 s75, s75, s76")
    e("  s_lshl_b32 s75, s75, 4")
    e(f"  s_add_u32 s75, s75, s{SSPL}")
    e("  v_lshlrev_b32 v7, 4, v5")
    e("  v_add_u32 v7, s75, v7")
    e("  v_lshlrev_b32 v8, 10, v7")
    e("  v_lshl_add_u32 v8, v6, 3, v8")
    e(f"  s_mov_b32 s75, {WS_OG}")
    e("  v_mov_b32 v188, v187")
    e("  v_mov_b32 v189, s26")
    e(f"  buffer_store_dwordx2 v[188:189], v8, s[{SWS}:{SWS+3}], s75 offen sc1")
    e("  v_cmp_eq_u32 vcc, 0, v6")
    e("  s_and_saveexec_b64 s[78:79], vcc")
    e("  v_lshlrev_b32 v7, 4, v7")
    e("  v_mov_b32 v185, v186")
    e("  v_mov_b32 v186, s26")
    e(f"  s_mov_b32 s75, {WS_MG}")
    e(f"  buffer_store_dwordx3 v[184:186], v7, s[{SWS}:{SWS+3}], s75 offen sc1")
    e("  s_mov_b64 exec, s[78:79]")
    if OPT["prof"] == 1: stamp(5)

    def prod(wregs, vecaddr_rows, accbase, nrows):
        for r in range(16):
            e(f"  v_mov_b32 v{accbase+r}, 0")
        for i in range(nrows):
            for c in range(4):
                w = wregs + 4 * i + c
                e(f"  v_lshlrev_b32 v160, 16, v{w}")
                e(f"  v_and_b32 v161, 0xffff0000, v{w}")
                e(f"  v_fmac_f32 v{accbase+2*c}, v160, v{168+2*i}")
                e(f"  v_fmac_f32 v{accbase+1+2*c}, v161, v{168+2*i}")
                e(f"  v_fmac_f32 v{accbase+8+2*c}, v160, v{169+2*i}")
                e(f"  v_fmac_f32 v{accbase+9+2*c}, v161, v{169+2*i}")
        dpp_steps(list(range(accbase, accbase + 16)), ["row_ror:8"])

    def reduce_store(lbase, label, snc):
        e("  v_lshlrev_b32 v5, 2, v2")
        e("  v_add_u32 v5, v5, v4")
        e("  v_lshlrev_b32 v5, 9, v5")
        e("  v_and_b32 v6, 7, v1")
        e("  v_lshl_add_u32 v5, v6, 5, v5")
        e("  v_and_b32 v6, 8, v1")
        e("  v_cmp_eq_u32 vcc, 0, v6")
        e("  s_and_saveexec_b64 s[78:79], vcc")
        e(f"  ds_write_b128 v5, v[180:183] offset:{lbase}")
        e(f"  ds_write_b128 v5, v[184:187] offset:{lbase+16}")
        e(f"  ds_write_b128 v5, v[188:191] offset:{lbase+256}")
        e(f"  ds_write_b128 v5, v[192:195] offset:{lbase+256+16}")
        e("  s_mov_b64 exec, s[78:79]")
        e("  s_waitcnt lgkmcnt(0)")
        e("  s_barrier")
        e("  s_cmp_ge_u32 s3, 2")
        e(f"  s_cbranch_scc1 {label}")
        e("  v_lshlrev_b32 v5, 2, v0")
        for p in range(32):
            e(f"  ds_read_b32 v{204+p}, v5 offset:{lbase + p*512}")
        e("  s_waitcnt lgkmcnt(0)")
        for p in range(1, 31, 2):
            e(f"  v_add_f32 v{204+p}, v{204+p}, v{205+p}")
        e("  v_add_f32 v204, v204, v235")
        for p in range(1, 31, 2):
            e(f"  v_add_f32 v204, v204, v{204+p}")
        e("  v_lshlrev_b32 v5, 12, v2")
        e("  v_lshl_add_u32 v5, v1, 3, v5")
        e(f"  s_lshl_b32 s76, s{snc}, 9")
        e(f"  s_add_u32 s75, s75, s76")
        e("  v_mov_b32 v205, s26")
        e(f"  buffer_store_dwordx2 v[204:205], v5, s[{SWS}:{SWS+3}], s75 offen sc1")
        e(f"{label}:")

    e("  s_cmp_ge_u32 s2, 224")
    e("  s_cbranch_scc1 K_T4")
    e(f"  s_mov_b32 s74, {OPT['bnd']:#x}")
    e("  s_waitcnt vmcnt(1)")
    e("K_HR:")
    e("  v_cmp_ne_u32 vcc, s26, v245")
    e("  v_cmp_ne_u32 s[78:79], s26, v247")
    e("  s_or_b64 vcc, vcc, s[78:79]")
    e("  s_cmp_eq_u64 vcc, 0")
    e("  s_cbranch_scc1 K_HOK")
    h_loads()
    e("  s_waitcnt vmcnt(0)")
    e("  s_sub_u32 s74, s74, 1")
    e("  s_cmp_lg_u32 s74, 0")
    e("  s_cbranch_scc1 K_HR")
    e("K_HOK:")
    e("  v_and_b32 v5, 1, v12")
    e("  v_cmp_eq_u32 vcc, 1, v5")
    e("  v_lshlrev_b32 v168, 16, v244")
    e("  v_and_b32 v5, 0xffff0000, v244")
    e("  v_lshlrev_b32 v169, 16, v246")
    e("  v_and_b32 v6, 0xffff0000, v246")
    e("  v_cndmask_b32 v168, v168, v5, vcc")
    e("  v_cndmask_b32 v169, v169, v6, vcc")
    prod(W2, None, 180, 1)
    e("  s_lshr_b32 s75, s2, 3")
    e("  s_lshl_b32 s75, s75, 13")
    e(f"  s_add_u32 s75, s75, {WS_GG}")
    reduce_store(L_FP, "K_T3B", SNC)
    e("K_T4:")
    if not OPT["mf"]:
        e("  s_cmp_ge_u32 s3, 4")
        e("  s_cbranch_scc1 K_T6")
        e("  v_lshrrev_b32 v6, 7, v0")
        e("  v_and_b32 v7, 127, v0")
        e("  v_lshlrev_b32 v8, 5, v6")
        e(f"  v_add_u32 v8, s{SHEAD}, v8")
        e("  v_lshlrev_b32 v9, 8, v8")
        e("  v_lshlrev_b32 v10, 14, v8")
        e("  v_lshl_add_u32 v10, v7, 3, v10")
        e(f"  s_mov_b32 s76, {WS_MG}")
        def iss2(sp):
            e(f"  s_mov_b32 s75, {WS_OG + 4096*(sp>>2)}")
            bits = {0:"", 1:" sc1", 2:" sc0", 3:" sc0 sc1", 4:" nt", 5:" sc0 nt"}[OPT["p2"]]
            e(f"  buffer_load_dwordx2 v[{16+2*sp}:{17+2*sp}], v10, s[{SWS}:{SWS+3}], s75 offen offset:{(sp&3)*1024}{bits}")
            e(f"  buffer_load_dwordx3 v[{48+4*sp}:{50+4*sp}], v9, s[{SWS}:{SWS+3}], s76 offen offset:{sp*16}{bits}")
        mpoll("K_P2", 16, iss2, lambda sp: [17+2*sp, 50+4*sp], OPT["thr"])
        if OPT["prof"] == 1: stamp(6)
        M = lambda sp: 48+4*sp
        e(f"  v_max3_f32 v112, v{M(0)}, v{M(1)}, v{M(2)}")
        for sp in range(3, 15, 2):
            e(f"  v_max3_f32 v112, v112, v{M(sp)}, v{M(sp+1)}")
        e(f"  v_max_f32 v112, v112, v{M(15)}")
        e("  v_mov_b32 v113, 0")
        e("  v_mov_b32 v114, 0")
        for sp in range(16):
            e(f"  v_sub_f32 v{M(sp)}, v{M(sp)}, v112")
            e(f"  v_mul_f32 v{M(sp)}, s{SC}, v{M(sp)}")
            e(f"  v_exp_f32 v{M(sp)}, v{M(sp)}")
        e("  s_nop 0")
        for sp in range(16):
            e(f"  v_fmac_f32 v113, v{M(sp)}, v{M(sp)+1}")
            e(f"  v_fmac_f32 v114, v{M(sp)}, v{16+2*sp}")
        e("  v_mov_b32 v49, v113")
        e("  v_mov_b32 v50, v114")
        e("  v_rcp_f32 v49, v49")
        e("  s_nop 0")
        e("  v_mul_f32 v50, v50, v49")
        round_bf16(50, 50)
        e("  v_lshlrev_b32 v8, 2, v0")
        e(f"  ds_write_b32 v8, v50 offset:{L_VEC}")
        e("  s_waitcnt lgkmcnt(0)")
        e("K_T6:")
        e("  s_barrier")
        e("  v_lshlrev_b32 v5, 2, v12")
        e(f"  ds_read_b32 v168, v5 offset:{L_VEC}")
        e(f"  ds_read_b32 v169, v5 offset:{L_VEC+512}")
        e(f"  ds_read_b32 v170, v5 offset:{L_VEC+256}")
        e(f"  ds_read_b32 v171, v5 offset:{L_VEC+512+256}")
        e("  s_waitcnt lgkmcnt(0)")
        prod(WO, None, 180, 2)
        e(f"  s_lshl_b32 s75, s{SHEAD}, 13")
        e(f"  s_add_u32 s75, s75, {WS_SG}")
        reduce_store(L_SP, "K_T6B", SNO)
    else:
        e("  s_cmp_ge_u32 s3, 4")
        e("  s_cbranch_scc1 K_END")
        e("  s_and_b32 s75, s3, 1")
        e("  s_cmp_eq_u32 s75, 1")
        e(f"  s_cselect_b32 s75, s{SP1}, s{SP0}")
        for ks in range(4):
            for q in range(4):
                e(f"  v_perm_b32 v{112+ks*4+q}, v{80+ks*8+2*q+1}, v{80+ks*8+2*q}, s75")
        e("  v_lshrrev_b32 v6, 7, v0")
        e("  v_and_b32 v7, 127, v0")
        e("  v_lshlrev_b32 v8, 5, v6")
        e(f"  v_add_u32 v8, s{SHEAD}, v8")
        e("  v_lshlrev_b32 v9, 8, v8")
        e("  v_lshlrev_b32 v10, 14, v8")
        e("  v_lshl_add_u32 v10, v7, 3, v10")
        e(f"  s_mov_b32 s76, {WS_MG}")
        def iss2(sp):
            e(f"  s_mov_b32 s75, {WS_OG + 4096*(sp>>2)}")
            e(f"  buffer_load_dwordx2 v[{16+2*sp}:{17+2*sp}], v10, s[{SWS}:{SWS+3}], s75 offen offset:{(sp&3)*1024} sc1")
            e(f"  buffer_load_dwordx3 v[{48+4*sp}:{50+4*sp}], v9, s[{SWS}:{SWS+3}], s76 offen offset:{sp*16} sc1")
        e("  v_and_b32 v11, 1, v3")
        e("  v_lshlrev_b32 v11, 8, v11")
        e("  v_lshl_add_u32 v11, v4, 4, v11")
        e("  v_and_b32 v12, 1, v4")
        e("  v_lshlrev_b32 v13, 12, v12")
        e("  v_lshl_add_u32 v13, v3, 4, v13")
        e("  s_lshr_b32 s75, s3, 1")
        e("  s_lshl_b32 s75, s75, 8")
        e("  s_and_b32 s78, s3, 1")
        e("  s_lshl_b32 s78, s78, 3")
        e("  s_add_u32 s75, s75, s78")
        e(f"  s_lshl_b32 s78, s{SNO}, 9")
        e("  s_add_u32 s75, s75, s78")
        e(f"  s_lshl_b32 s78, s{SHEAD}, 13")
        e("  s_add_u32 s75, s75, s78")
        e(f"  s_add_u32 s75, s75, {WS_SG}")
        e("  v_add_u32 v13, s75, v13")
        mpoll("K_P2", 16, iss2, lambda sp: [17+2*sp, 50+4*sp], OPT["thr"])
        if OPT["prof"] == 1: stamp(6)
        M = lambda sp: 48+4*sp
        e(f"  v_max3_f32 v128, v{M(0)}, v{M(1)}, v{M(2)}")
        for sp in range(3, 15, 2):
            e(f"  v_max3_f32 v128, v128, v{M(sp)}, v{M(sp+1)}")
        e(f"  v_max_f32 v128, v128, v{M(15)}")
        e("  v_mov_b32 v129, 0")
        e("  v_mov_b32 v130, 0")
        for sp in range(16):
            e(f"  v_sub_f32 v{M(sp)}, v{M(sp)}, v128")
            e(f"  v_mul_f32 v{M(sp)}, s{SC}, v{M(sp)}")
            e(f"  v_exp_f32 v{M(sp)}, v{M(sp)}")
        e("  s_nop 0")
        for sp in range(16):
            e(f"  v_fmac_f32 v129, v{M(sp)}, v{M(sp)+1}")
            e(f"  v_fmac_f32 v130, v{M(sp)}, v{16+2*sp}")
        e("  v_rcp_f32 v129, v129")
        e("  s_nop 0")
        e("  v_mul_f32 v130, v130, v129")
        e("  v_cvt_pk_bf16_f32 v130, v130, v130")
        e("  v_lshlrev_b32 v8, 1, v0")
        e(f"  ds_write_b16 v8, v130 offset:{L_VEC}")
        e("  s_waitcnt lgkmcnt(0)")
        e("  s_barrier")
        for ks in range(4):
            e(f"  ds_read_b128 v[{132+4*ks}:{135+4*ks}], v11 offset:{L_VEC + ks*64}")
        e("  s_waitcnt lgkmcnt(0)")
        for ks in range(4):
            c = "0" if ks == 0 else "v[148:151]"
            e(f"  v_mfma_f32_16x16x32_bf16 v[148:151], v[{132+4*ks}:{135+4*ks}], v[{112+4*ks}:{115+4*ks}], {c}")
        e("  v_cmp_eq_u32 vcc, 1, v12")
        e("  v_mov_b32 v153, s26")
        e("  s_nop 7")
        e("  s_nop 7")
        e("  v_cndmask_b32 v152, v148, v149, vcc")
        e("  s_mov_b64 exec, 0xffffffff")
        e(f"  buffer_store_dwordx2 v[152:153], v13, s[{SWS}:{SWS+3}], 0 offen sc1")
        e("  s_mov_b64 exec, -1")
    if OPT["prof"] == 1: stamp(7)
    e("  s_cmp_ge_u32 s2, 8")
    e("  s_cbranch_scc1 K_END")
    e("  s_cmp_ge_u32 s3, 4")
    e("  s_cbranch_scc1 K_END")
    def gpoll(label, n, base):
        def iss(k):
            e(f"  s_mov_b32 s75, {base + k*8192}")
            e(f"  buffer_load_dwordx2 v[{16+2*k}:{17+2*k}], v10, s[{SWS}:{SWS+3}], s75 offen sc1")
        mpoll(label, n, iss, lambda k: [17+2*k], None)
        for k in range(1, n):
            e(f"  v_add_f32 v16, v16, v{16+2*k}")
    e("  v_and_b32 v5, 1, v2")
    e("  v_lshlrev_b32 v5, 11, v5")
    e("  v_lshl_add_u32 v5, v1, 2, v5")
    e(f"  s_lshl_b32 s76, s{SNC}, 8")
    e("  v_add_u32 v5, s76, v5")
    e("  v_lshlrev_b32 v10, 1, v5")
    e("  s_cmp_ge_u32 s3, 2")
    e("  s_cbranch_scc1 K_FG")
    e("  v_lshrrev_b32 v6, 1, v5")
    e(f"  buffer_load_ushort v4, v6, s[{SX}:{SX+3}], 0 offen")
    gpoll("K_P3", 32, WS_SG)
    round_bf16(16, 16)
    e("  s_barrier")
    e("  v_lshlrev_b32 v7, 2, v0")
    e(f"  ds_read_b32 v8, v7 offset:{L_GX}")
    e("  s_waitcnt lgkmcnt(0)")
    e("  v_mul_f32 v8, v8, v16")
    round_bf16(8, 8)
    e("  v_lshlrev_b32 v4, 16, v4")
    e("  v_add_f32 v8, v8, v4")
    e("  v_cvt_pk_bf16_f32 v8, v8, v8")
    e(f"  buffer_store_short v8, v6, s[{SOUT}:{SOUT+3}], 0 offen")
    e("  s_or_b32 s75, s2, s3")
    e("  s_cmp_lg_u32 s75, 0")
    e("  s_cbranch_scc1 K_END")
    e("  s_mov_b64 exec, 1")
    e(f"  v_mov_b32 v5, {WS_EP}")
    e("  v_mov_b32 v6, s26")
    e(f"  buffer_store_dword v6, v5, s[{SWS}:{SWS+3}], 0 offen")
    e("  s_branch K_END")
    e("K_FG:")
    gpoll("K_P4", 28, WS_GG)
    round_bf16(16, 16)
    e("  v_mul_f32 v5, 0xbfb8aa3b, v16")
    e("  v_exp_f32 v5, v5")
    e("  s_nop 0")
    e("  v_add_f32 v5, 1.0, v5")
    e("  v_rcp_f32 v5, v5")
    e("  s_nop 0")
    e("  v_mul_f32 v5, v5, v16")
    round_bf16(5, 5)
    e("  v_and_b32 v7, 127, v0")
    e("  v_lshlrev_b32 v7, 2, v7")
    e(f"  ds_write_b32 v7, v5 offset:{L_GX}")
    e("  s_waitcnt lgkmcnt(0)")
    e("  s_barrier")
    e("K_END:")
    dump_stamps()
    e("  s_endpgm")
    e('.section .rodata,"a"')
    e(".p2align 6")
    e(f".amdhsa_kernel {name}")
    e("  .amdhsa_next_free_vgpr 256")
    e("  .amdhsa_next_free_sgpr 102")
    e("  .amdhsa_accum_offset 256")
    e("  .amdhsa_group_segment_fixed_size 0")
    e("  .amdhsa_kernarg_size 88")
    e("  .amdhsa_user_sgpr_count 2")
    e("  .amdhsa_user_sgpr_kernarg_segment_ptr 1")
    e("  .amdhsa_system_sgpr_workgroup_id_x 1")
    e(".end_amdhsa_kernel")

def main():
    path = f"cdna_kernels/{NAME}.s"
    for a in sys.argv[1:]:
        if "=" in a:
            k, v = a.split("=", 1)
            OPT[k] = (" " + v if v else "") if k == "nt" else int(v)
        else:
            path = a
    e(HEADER.rstrip("\n"))
    e(f"; @launch grid=(256,1,1) block=(512,1,1) lds={LDS_SIZE}")
    e('.amdgcn_target "amdgcn-amd-amdhsa--gfx950"')
    gen()
    open(path, "w").write("\n".join(out) + "\n")

main()
```

```python
import sys

NAME = "recurrent_scan__gqa_block_cached__dense_activation_relu__decode"

HEADER = """; Kernarg layout for this problem (88 bytes, ptrs only, base s[0:1]):
;   offset   0: d_in[0] A_x  shape=(2, 1, 512) dtype=bfloat16 strides=(1024, 1024, 2) contiguous=True
;   offset   8: d_in[1] A_k_cache  shape=(2, 8, 32768, 128) dtype=bfloat16 strides=(67108864, 8388608, 256, 2) contiguous=True
;   offset  16: d_in[2] A_v_cache  shape=(2, 8, 32768, 128) dtype=bfloat16 strides=(67108864, 8388608, 256, 2) contiguous=True
;   offset  24: d_in[3] A_wq  shape=(512, 4096) dtype=bfloat16 strides=(8192, 2) contiguous=True
;   offset  32: d_in[4] A_wo  shape=(4096, 512) dtype=bfloat16 strides=(1024, 2) contiguous=True
;   offset  40: d_in[5] B_x  shape=(2, 1, 512) dtype=bfloat16 strides=(1024, 1024, 2) contiguous=True
;   offset  48: d_in[6] B_w1  shape=(512, 1792) dtype=bfloat16 strides=(3584, 2) contiguous=True
;   offset  56: d_in[7] B_w2  shape=(1792, 512) dtype=bfloat16 strides=(1024, 2) contiguous=True
"""

WS_Q = 0
WS_H = 16384
WS_ML = 32768
WS_O = 65536
WS_P = 1 << 20
WS_G = WS_P + 131072
WS_SIZE = 536870912
WS_QG = 2 << 20
WS_HG = WS_QG + 32768
WS_EP = WS_QG + 65536
WS_QF = WS_QG + 131072
WS_OG = 5 << 20
WS_MG = 6 << 20
WS_SG = WS_MG + 65536
WS_GG = 7 << 20

L_XN = 0
L_QP = 4096
L_Q = 5632
L_HV = 6656
L_CNT = 7168
L_O = 8192
L_ML = 24576
L_FP = 25600
L_VEC = 0
L_SP = 8192
L_GX = 1024
LDS_SIZE = 41984

OPT = dict(nt=" nt", sleep=1, prof=0, pre0=0, pace=8, bar0=1, wsc=0, thr=2, p2=1, ilv=0, kx=0, nbuf=1, nw=8, kpl=0, vpl=0, T=0, plo=0, phi=0, mf=1, qp=0, prex=0, qs=0, warm=0, xb=1, f1=8, np=8, sl=8, psl=8, bnd=0x100000, bar2=1, f2=8, rot=0)

out = []
def e(s=""):
    out.append(s)

def srd(dst, lo, hi, nbytes):
    e(f"  s_mov_b32 s{dst}, s{lo}")
    e(f"  s_and_b32 s{dst+1}, s{hi}, 0xffff")
    e(f"  s_mov_b32 s{dst+2}, {nbytes}")
    e(f"  s_mov_b32 s{dst+3}, 0x00020000")

def dpp_steps(regs, ctrls):
    for ctrl in ctrls:
        e("  s_nop 1")
        for r in regs:
            e(f"  v_add_f32_dpp v{r}, v{r}, v{r} {ctrl} row_mask:0xf bank_mask:0xf")

def swap_steps(regs, tmp):
    for sw in ["v_permlane16_swap_b32", "v_permlane32_swap_b32"]:
        for r, t in zip(regs, tmp):
            e(f"  v_mov_b32 v{t}, v{r}")
        e("  s_nop 1")
        for r, t in zip(regs, tmp):
            e(f"  {sw} v{r}, v{t}")
        e("  s_nop 1")
        for r, t in zip(regs, tmp):
            e(f"  v_add_f32 v{r}, v{r}, v{t}")

def wave_sum(regs, tmp):
    dpp_steps(regs, ["quad_perm:[1,0,3,2]", "quad_perm:[2,3,0,1]", "row_half_mirror", "row_mirror"])
    swap_steps(regs, tmp)

def round_bf16(dst, src):
    e(f"  v_cvt_pk_bf16_f32 v{dst}, v{src}, v{src}")
    e(f"  v_lshlrev_b32 v{dst}, 16, v{dst}")

WS_PROF = 4 << 20
def stamp(k):
    if not OPT["prof"] or OPT["prof"] >= 3:
        return
    e("  s_memrealtime s[80:81]")
    e("  s_waitcnt lgkmcnt(0)")
    e(f"  s_mov_b32 s{92+k}, s80")

WS_PROF3 = 8 << 20
def tl(k=3):
    if OPT["prof"] != k:
        return
    e("  s_memrealtime s[98:99]")
    e("  s_waitcnt lgkmcnt(0)")
    e("  v_writelane_b32 v251, s98, m0")
    e("  s_add_u32 m0, m0, 1")

def tl_dump():
    if OPT["prof"] < 3:
        return
    e("  s_lshl_b32 s82, s2, 3")
    e("  s_add_u32 s82, s82, s3")
    e("  s_lshl_b32 s82, s82, 8")
    e(f"  s_add_u32 s82, s82, {WS_PROF3}")
    e("  v_lshlrev_b32 v5, 2, v1")
    e(f"  buffer_store_dword v251, v5, s[{SWS}:{SWS+3}], s82 offen")

def dump_stamps():
    if not OPT["prof"]:
        return
    if OPT["prof"] >= 3:
        e("K_END2:")
        return
    e("  s_cmp_ge_u32 s3, 2")
    e("  s_cbranch_scc1 K_END2")
    e("  s_cmp_ge_u32 s2, 256")
    e("  s_cbranch_scc1 K_END2")
    stamp(8)
    e("  s_lshl_b32 s82, s2, 1")
    e("  s_add_u32 s82, s82, s3")
    e("  s_lshl_b32 s82, s82, 6")
    e(f"  s_add_u32 s82, s82, {WS_PROF}")
    e("  s_mov_b64 exec, 1")
    e("  v_mov_b32 v6, 0")
    for k in range(9):
        e(f"  v_mov_b32 v5, s{92+k}")
        e(f"  buffer_store_dword v5, v6, s[{SWS}:{SWS+3}], s82 offen offset:{k*4}")
    e("K_END2:")

SX, SK, SV, SWQ, SW1, SWO, SW2, SWS, SDBG, SOUT = 28, 60, 64, 40, 44, 48, 52, 20, 999, 32
SC, SP0, SP1 = 68, 69, 70
IDXA, IDXB = 72, 73
SG, SR, SB, SSPL, SNC, SHEAD = 86, 87, 88, 89, 90, 91
SNO, SCG, SHC = 83, 84, 85

def poll(label, nlanes, voff, target, tmpv):
    e(f"  s_mov_b64 exec, {(1<<nlanes)-1:#x}")
    e("  s_mov_b32 s74, 0x400000")
    e(f"{label}:")
    e(f"  buffer_load_dword v{tmpv}, v{voff}, s[{SDBG}:{SDBG+3}], 0 offen sc1")
    e("  s_waitcnt vmcnt(0)")
    e(f"  v_cmp_ne_u32 vcc, {target}, v{tmpv}")
    e("  s_cmp_eq_u64 vcc, 0")
    e(f"  s_cbranch_scc1 {label}_DONE")
    if OPT["sleep"]:
        e(f"  s_sleep {OPT['sleep']}")
    e("  s_sub_u32 s74, s74, 1")
    e("  s_cmp_lg_u32 s74, 0")
    e(f"  s_cbranch_scc1 {label}")
    e(f"{label}_DONE:")
    e("  s_mov_b64 exec, -1")

def mpoll(label, n, issue, tags, thr):
    full = (1 << n) - 1
    e("  s_not_b32 s75, s26")
    for k in range(n):
        for x in tags(k):
            e(f"  v_mov_b32 v{x}, s75")
    e("  s_mov_b32 s77, 0")
    e(f"  s_mov_b32 s74, {OPT['bnd']:#x}")
    e(f"{label}:")
    for k in range(n):
        e(f"  s_bitcmp1_b32 s77, {k}")
        e(f"  s_cbranch_scc1 {label}S{k}")
        issue(k)
        e(f"{label}S{k}:")
    if thr is not None:
        e(f"  s_xor_b32 s75, s77, {full:#x}")
        e("  s_bcnt1_i32_b32 s75, s75")
        e(f"  s_cmp_le_u32 s75, {thr}")
        e(f"  s_cbranch_scc1 {label}F")
        e("  s_waitcnt vmcnt(0)")
        e(f"{label}F:")
    if OPT["sleep"]:
        e(f"  s_sleep {OPT['sleep']}")
    for k in range(n):
        t = tags(k)
        e(f"  v_cmp_eq_u32 vcc, s26, v{t[0]}")
        for x in t[1:]:
            e(f"  v_cmp_eq_u32 s[78:79], s26, v{x}")
            e("  s_and_b64 vcc, vcc, s[78:79]")
        e("  s_cmp_eq_u64 vcc, -1")
        e(f"  s_cselect_b32 s75, {1<<k:#x}, 0")
        e("  s_or_b32 s77, s77, s75")
    e(f"  s_cmp_eq_u32 s77, {full:#x}")
    e(f"  s_cbranch_scc1 {label}_DONE")
    e("  s_sub_u32 s74, s74, 1")
    e("  s_cmp_lg_u32 s74, 0")
    e(f"  s_cbranch_scc1 {label}")
    e(f"{label}_DONE:")
    e("  s_waitcnt vmcnt(0)")

def gen():
    nt = OPT["nt"]
    BS = 17 if OPT["ilv"] else 13
    POL = dict(k="" if OPT["kpl"] else nt, v="" if OPT["vpl"] else nt)
    name = NAME + "_kernel"
    e(".text")
    e(f".globl {name}")
    e(".p2align 8")
    e(f".type {name},@function")
    e(f"{name}:")
    KA, VA, KB, VB = 16, 48, 80, 112
    ACC = 144
    QF = 176
    ST = 192
    PF = 200
    TR = 204
    M_, L_, T0, T1, AL, MC = 236, 237, 238, 239, 240, 241
    VKOFF, VVOFF = 242, 243
    WO = 244
    W2 = 252
    e("  s_cmp_ge_u32 s2, 256")
    e("  s_cbranch_scc1 K_END2" if OPT["prof"] else "  s_cbranch_scc1 K_END")
    e("  s_load_dwordx16 s[4:19], s[0:1], 0")
    e("  s_load_dwordx2 s[24:25], s[0:1], 80")
    e("  v_and_b32 v1, 63, v0")
    e("  v_lshrrev_b32 v2, 6, v0")
    e("  v_and_b32 v3, 15, v1")
    e("  v_lshrrev_b32 v4, 4, v1")
    e("  v_mov_b32 v248, 0")
    e("  v_readfirstlane_b32 s3, v2")
    def derive():
        e(f"  s_and_b32 s{SG}, s2, 7")
        e(f"  s_lshr_b32 s{SR}, s2, 3")
        e(f"  s_and_b32 s{SNO}, s{SR}, 7")
        e(f"  s_lshl_b32 s{SCG}, s{SG}, 5")
        e(f"  s_add_u32 s{SCG}, s{SCG}, s{SR}")
        e(f"  s_lshr_b32 s{SHC}, s{SR}, 3")
        e(f"  s_lshl_b32 s{SHC}, s{SHC}, 6")
        e(f"  s_lshl_b32 s74, s{SG}, 3")
        e(f"  s_add_u32 s{SHC}, s{SHC}, s74")
        e(f"  s_add_u32 s{SHC}, s{SHC}, s{SNO}")
        e(f"  s_lshr_b32 s{SB}, s{SR}, 4")
        e(f"  s_and_b32 s{SSPL}, s{SR}, 15")
        e(f"  s_and_b32 s{SNC}, s2, 7")
        e(f"  s_lshr_b32 s{SHEAD}, s{SR}, 3")
        e(f"  s_lshl_b32 s74, s{SG}, 2")
        e(f"  s_add_u32 s{SHEAD}, s{SHEAD}, s74")
    derive()
    e(f"  s_lshl_b32 s74, s{SB}, 3")
    e(f"  s_add_u32 s74, s74, s{SG}")
    e("  s_lshl_b32 s74, s74, 23")
    e(f"  s_lshl_b32 s75, s{SSPL}, {13 if OPT['ilv'] else 19}")
    e("  s_add_u32 s74, s74, s75")
    e(f"  s_mov_b32 s{SC}, 0x3e0293ee")
    e(f"  s_mov_b32 s{SP0}, 0x05040100")
    e(f"  s_mov_b32 s{SP1}, 0x07060302")
    e("  s_lshl_b32 s75, s3, 1")
    e(f"  s_sub_u32 s{IDXA}, s75, 2")
    e(f"  s_sub_u32 s{IDXB}, s75, 1")
    if OPT["nbuf"] == 1:
        e(f"  s_mov_b32 s{IDXA}, s3")
        if OPT["nw"] < 8:
            e(f"  s_cmp_ge_u32 s3, {OPT['nw']}")
            e(f"  s_cselect_b32 s{IDXA}, 64, s{IDXA}")
    e("  v_and_b32 v5, 3, v3")
    e("  v_lshrrev_b32 v6, 2, v3")
    e("  v_lshl_add_u32 v5, v5, 2, v6")
    e("  v_lshlrev_b32 v5, 8, v5")
    e(f"  v_lshl_add_u32 v{VKOFF}, v4, 4, v5")
    e(f"  v_lshlrev_b32 v{VVOFF}, 4, v1")
    if OPT["kx"]:
        e(f"  v_lshlrev_b32 v{VKOFF}, 4, v1")
    e("  s_waitcnt lgkmcnt(0)")
    e(f"  s_mov_b32 s75, {WS_EP}")
    e("  s_load_dword s26, s[24:25], s75")
    srd(SX, 4, 5, 2048)
    srd(SWQ, 10, 11, 512 * 4096 * 2)
    srd(SWS, 24, 25, WS_SIZE)
    e(f"  s_add_u32 s{SK}, s6, s74")
    e(f"  s_addc_u32 s{SK+1}, s7, 0")
    e(f"  s_and_b32 s{SK+1}, s{SK+1}, 0xffff")
    if OPT['ilv']:
        e(f"  s_lshl_b32 s75, s{SSPL}, 13")
        e(f"  s_sub_u32 s{SK+2}, {8<<20}, s75")
    else:
        e(f"  s_mov_b32 s{SK+2}, 524288")
    e(f"  s_mov_b32 s{SK+3}, 0x00020000")
    e(f"  s_add_u32 s{SV}, s8, s74")
    e(f"  s_addc_u32 s{SV+1}, s9, 0")
    e(f"  s_and_b32 s{SV+1}, s{SV+1}, 0xffff")
    e(f"  s_mov_b32 s{SV+2}, s{SK+2}")
    e(f"  s_mov_b32 s{SV+3}, 0x00020000")
    e("  s_movk_i32 s71, 4096")
    if OPT["warm"]:
        e(f"  s_lshl_b32 s75, s{SCG}, 6")
        e(f"  s_add_u32 s75, s75, {WS_QG}")
        e("  s_load_dword s98, s[24:25], s75")
        e("  s_add_u32 s75, s75, 16384")
        e("  s_load_dword s99, s[24:25], s75")
    stamp(0)
    if OPT["prof"] >= 3:
        e("  v_mov_b32 v251, 0")
        e("  s_mov_b32 m0, 0")
        tl(OPT["prof"])
    F1 = max(OPT["f1"], OPT["pre0"])
    e("  v_lshlrev_b32 v5, 4, v1")
    e(f"  buffer_load_dwordx4 v[204:207], v5, s[{SX}:{SX+3}], 0 offen")
    e(f"  buffer_load_dwordx4 v[208:211], v5, s[{SX}:{SX+3}], 0 offen offset:1024")
    if OPT["xb"]:
        e("  s_barrier")
    e("  v_lshrrev_b32 v6, 2, v0")
    e("  v_and_b32 v7, 3, v0")
    e("  v_lshlrev_b32 v8, 13, v6")
    e("  v_lshl_add_u32 v8, v7, 3, v8")
    e(f"  s_lshl_b32 s75, s{SCG}, 5")
    e("  v_add_u32 v8, s75, v8")
    for i in range(4):
        if i == 0:
            e(f"  buffer_load_dwordx2 v[212:213], v8, s[{SWQ}:{SWQ+3}], 0 offen")
        else:
            e(f"  v_add_u32 v8, 0x100000, v8")
            e(f"  buffer_load_dwordx2 v[{212+2*i}:{213+2*i}], v8, s[{SWQ}:{SWQ+3}], 0 offen")
    def kchunk_l(KR, vo):
        r=[]
        if OPT["kx"]:
            for j in range(8):
                so = "0" if j < 4 else "s71"
                r.append(f"  buffer_load_dwordx4 v[{KR+4*j}:{KR+4*j+3}], v{vo}, s[{SK}:{SK+3}], {so} offen offset:{(j&3)*1024}{nt}")
            return r
        for t in range(2):
            for i in range(4):
                so = "0" if t == 0 else "s71"
                r.append(f"  buffer_load_dwordx4 v[{KR+16*t+4*i}:{KR+16*t+4*i+3}], v{vo}, s[{SK}:{SK+3}], {so} offen offset:{i*64}{POL['k']}")
        return r
    def vchunk_l(VR, vo):
        r=[]
        for j in range(8):
            so = "0" if j < 4 else "s71"
            r.append(f"  buffer_load_dwordx4 v[{VR+4*j}:{VR+4*j+3}], v{vo}, s[{SV}:{SV+3}], {so} offen offset:{(j&3)*1024}{POL['v']}")
        return r
    def kchunk(KR, vo):
        for l in kchunk_l(KR, vo): e(l)
    def vchunk(VR, vo):
        for l in vchunk_l(VR, vo): e(l)
    def blkoff(sidx):
        if OPT["rot"]:
            e(f"  s_add_u32 s75, s{sidx}, s73")
            e("  s_and_b32 s75, s75, 63")
            e(f"  s_lshl_b32 s75, s75, {BS}")
            e(f"  s_cmp_lt_u32 s{sidx}, 64")
            e("  s_cselect_b32 s75, s75, 0x100000")
        else:
            e(f"  s_lshl_b32 s75, s{sidx}, {BS}")
    def loads(KR, VR, sidx):
        blkoff(sidx)
        e(f"  v_add_u32 v5, s75, v{VKOFF}")
        e(f"  v_add_u32 v6, s75, v{VVOFF}")
        kchunk(KR, 5)
        vchunk(VR, 6)
    def wo_loads():
        e("  v_lshlrev_b32 v14, 10, v12")
        e("  v_lshl_add_u32 v14, v13, 4, v14")
        if not OPT["mf"]:
            e(f"  s_lshl_b32 s75, s{SNO}, 7")
            e("  v_add_u32 v15, s75, v14")
            e(f"  s_lshl_b32 s75, s{SHEAD}, 17")
            e("  v_add_u32 v15, s75, v15")
            e(f"  buffer_load_dwordx4 v[{WO}:{WO+3}], v15, s[{SWO}:{SWO+3}], 0 offen")
            e("  v_add_u32 v15, 0x10000, v15")
            e(f"  buffer_load_dwordx4 v[{WO+4}:{WO+7}], v15, s[{SWO}:{SWO+3}], 0 offen")
        else:
            lab = f"K_WOS{len(out)}"
            e("  s_cmp_ge_u32 s3, 4")
            e(f"  s_cbranch_scc1 {lab}")
            e("  v_lshlrev_b32 v15, 13, v4")
            e("  v_lshl_add_u32 v15, v3, 2, v15")
            e(f"  s_lshl_b32 s75, s{SHEAD}, 17")
            e(f"  s_lshl_b32 s76, s{SNO}, 7")
            e("  s_add_u32 s75, s75, s76")
            e("  s_lshr_b32 s76, s3, 1")
            e("  s_lshl_b32 s76, s76, 6")
            e("  s_add_u32 s75, s75, s76")
            for ks in range(4):
                for jh in range(2):
                    for j in range(4):
                        e(f"  buffer_load_dword v{80+ks*8+jh*4+j}, v15, s[{SWO}:{SWO+3}], s75 offen offset:{j*1024}")
                    if not (ks == 3 and jh == 1):
                        e(f"  s_add_u32 s75, s75, {4096 if jh == 0 else 32768-4096}")
            e(f"{lab}:")
        e("  s_lshr_b32 s75, s2, 3")
        e("  s_lshl_b32 s75, s75, 16")
        e("  v_add_u32 v15, s75, v14")
        e(f"  s_lshl_b32 s75, s{SNC}, 7")
        e("  v_add_u32 v15, s75, v15")
        e(f"  buffer_load_dwordx4 v[{W2}:{W2+3}], v15, s[{SW2}:{SW2+3}], 0 offen")
    e("  v_lshrrev_b32 v12, 3, v0")
    e("  v_and_b32 v13, 7, v0")
    if OPT["rot"]:
        e(f"  s_mul_i32 s73, s2, {OPT['rot']}")
    blkoff(IDXA)
    e(f"  v_add_u32 v224, s75, v{VKOFF}")
    e(f"  v_add_u32 v225, s75, v{VVOFF}")
    pl = kchunk_l(KA, 224) + vchunk_l(VA, 225)
    PRE0 = OPT["pre0"]
    if OPT["bar0"] and PRE0:
        e("  s_barrier")
    for c in range(PRE0):
        e(pl[c])
    X = 144
    e(f"  s_waitcnt vmcnt({4+PRE0})")
    tl(4)
    for b in range(2):
        for c in range(4):
            e(f"  v_lshlrev_b32 v{X+8*b+2*c}, 16, v{204+4*b+c}")
            e(f"  v_and_b32 v{X+1+8*b+2*c}, 0xffff0000, v{204+4*b+c}")
    for b in range(2):
        t = 160 + 4 * b
        e(f"  v_pk_add_f32 v[{t}:{t+1}], v[{X+8*b}:{X+8*b+1}], v[{X+8*b+2}:{X+8*b+3}]")
        e(f"  v_pk_add_f32 v[{t+2}:{t+3}], v[{X+8*b+4}:{X+8*b+5}], v[{X+8*b+6}:{X+8*b+7}]")
    for b in range(2):
        t = 160 + 4 * b
        e(f"  v_pk_add_f32 v[{t}:{t+1}], v[{t}:{t+1}], v[{t+2}:{t+3}]")
    e("  v_add_f32 v160, v160, v161")
    e("  v_add_f32 v161, v164, v165")
    wave_sum([160, 161], [162, 163])
    e("  v_mul_f32 v160, 0x3b000000, v160")
    e("  v_mul_f32 v161, 0x3b000000, v161")
    bsel = [" op_sel_hi:[1,0]", " op_sel:[0,1] op_sel_hi:[1,1]"]
    for b in range(2):
        for c in range(4):
            t = 168 + 8 * b + 2 * c
            e(f"  v_pk_add_f32 v[{t}:{t+1}], v[{X+8*b+2*c}:{X+8*b+2*c+1}], v[160:161]{bsel[b]} neg_lo:[0,1] neg_hi:[0,1]")
    for b in range(2):
        t = 168 + 8 * b
        e(f"  v_pk_mul_f32 v[{164+2*b}:{165+2*b}], v[{t}:{t+1}], v[{t}:{t+1}]")
    for c in range(1, 4):
        for b in range(2):
            t = 168 + 8 * b + 2 * c
            e(f"  v_pk_fma_f32 v[{164+2*b}:{165+2*b}], v[{t}:{t+1}], v[{t}:{t+1}], v[{164+2*b}:{165+2*b}]")
    e("  v_add_f32 v164, v164, v165")
    e("  v_add_f32 v165, v166, v167")
    wave_sum([164, 165], [162, 163])
    e("  v_mul_f32 v164, 0x3b000000, v164")
    e("  v_mul_f32 v165, 0x3b000000, v165")
    for b in range(2):
        round_bf16(164 + b, 164 + b)
        e(f"  v_add_f32 v{164+b}, 0x3727c5ac, v{164+b}")
        round_bf16(164 + b, 164 + b)
        e(f"  v_sqrt_f32 v{164+b}, v{164+b}")
        e("  s_nop 0")
        round_bf16(164 + b, 164 + b)
        e(f"  v_rcp_f32 v{164+b}, v{164+b}")
        round_bf16(160 + b, 160 + b)
    for b in range(2):
        for c in range(4):
            r = X + 8 * b + 2 * c
            e(f"  v_pk_add_f32 v[{r}:{r+1}], v[{r}:{r+1}], v[160:161]{bsel[b]} neg_lo:[0,1] neg_hi:[0,1]")
        for c in range(4):
            r = X + 8 * b + 2 * c
            e(f"  v_cvt_pk_bf16_f32 v{168+c}, v{r}, v{r+1}")
        for c in range(4):
            r = X + 8 * b + 2 * c
            e(f"  v_lshlrev_b32 v{r}, 16, v{168+c}")
            e(f"  v_and_b32 v{r+1}, 0xffff0000, v{168+c}")
        for c in range(4):
            r = X + 8 * b + 2 * c
            e(f"  v_pk_mul_f32 v[{r}:{r+1}], v[{r}:{r+1}], v[164:165]{bsel[b]}")
        for c in range(4):
            r = X + 8 * b + 2 * c
            e(f"  v_cvt_pk_bf16_f32 v{168+c}, v{r}, v{r+1}")
        for c in range(4):
            r = X + 8 * b + 2 * c
            e(f"  v_lshlrev_b32 v{r}, 16, v{168+c}")
            e(f"  v_and_b32 v{r+1}, 0xffff0000, v{168+c}")
    e("  v_lshlrev_b32 v5, 5, v1")
    for b in range(2):
        e(f"  ds_write_b128 v5, v[{X+8*b}:{X+8*b+3}] offset:{L_XN + b*2048}")
        e(f"  ds_write_b128 v5, v[{X+8*b+4}:{X+8*b+7}] offset:{L_XN + b*2048 + 16}")
    e("  s_waitcnt lgkmcnt(0)")
    e("  s_add_u32 s26, s26, 1")
    e("  v_lshrrev_b32 v5, 2, v0")
    e("  v_lshlrev_b32 v5, 2, v5")
    for i in range(4):
        e(f"  ds_read2st64_b32 v[{168+2*i}:{169+2*i}], v5 offset0:{(L_XN + i*512)//256} offset1:{(L_XN + i*512 + 2048)//256}")
    tl(4)
    e(f"  s_waitcnt vmcnt({PRE0}) lgkmcnt(0)")
    tl(4)
    for c in range(PRE0, F1):
        e(pl[c])
    def pk_part(w, xr, acc0, acc1, first):
        e(f"  v_lshlrev_b32 v160, 16, v{w}")
        e(f"  v_and_b32 v161, 0xffff0000, v{w}")
        if first:
            e(f"  v_pk_mul_f32 v[{acc0}:{acc0+1}], v[160:161], v[{xr}:{xr+1}] op_sel_hi:[1,0]")
            e(f"  v_pk_mul_f32 v[{acc1}:{acc1+1}], v[160:161], v[{xr}:{xr+1}] op_sel:[0,1] op_sel_hi:[1,1]")
        else:
            e(f"  v_pk_fma_f32 v[{acc0}:{acc0+1}], v[160:161], v[{xr}:{xr+1}], v[{acc0}:{acc0+1}] op_sel_hi:[1,0,1]")
            e(f"  v_pk_fma_f32 v[{acc1}:{acc1+1}], v[160:161], v[{xr}:{xr+1}], v[{acc1}:{acc1+1}] op_sel:[0,1,0] op_sel_hi:[1,1,1]")
    for i in range(4):
        for c in range(2):
            pk_part(212 + 2 * i + c, 168 + 2 * i, 180 + 2 * c, 184 + 2 * c, i == 0)
    dpp_steps(list(range(180, 188)), ["row_ror:4", "row_ror:8"])
    swap_steps(list(range(180, 188)), list(range(204, 212)))
    e("  s_mul_i32 s75, s3, 192")
    e("  v_lshlrev_b32 v5, 4, v1")
    e("  v_add_u32 v5, s75, v5")
    e("  s_mov_b64 exec, 0xf")
    e(f"  ds_write_b128 v5, v[180:183] offset:{L_QP}")
    e(f"  ds_write_b128 v5, v[184:187] offset:{L_QP+64}")
    e("  s_mov_b64 exec, -1")
    e("  s_waitcnt lgkmcnt(0)")
    tl(4)
    e("  s_barrier")
    e("  s_cmp_lg_u32 s3, 0")
    e("  s_cbranch_scc1 K_B2")
    e("  v_lshlrev_b32 v5, 3, v1")
    e("  s_mov_b64 exec, 0xffff")
    for w in range(8):
        e(f"  ds_read_b64 v[{160+2*w}:{161+2*w}], v5 offset:{L_QP + w*192}")
    e("  v_lshrrev_b32 v6, 3, v1")
    e("  v_lshlrev_b32 v6, 14, v6")
    e("  v_and_b32 v7, 7, v1")
    e("  v_lshl_add_u32 v6, v7, 3, v6")
    e(f"  s_lshl_b32 s75, s{SCG}, 6")
    e(f"  s_add_u32 s75, s75, {WS_QG}")
    e("  v_add_u32 v6, s75, v6")
    e("  v_mov_b32 v8, 8")
    e("  v_mov_b32 v9, 0")
    e(f"  v_mov_b32 v11, {L_CNT}")
    e("  s_waitcnt lgkmcnt(0)")
    e("  v_pk_add_f32 v[160:161], v[160:161], v[162:163]")
    e("  v_pk_add_f32 v[164:165], v[164:165], v[166:167]")
    e("  v_pk_add_f32 v[168:169], v[168:169], v[170:171]")
    e("  v_pk_add_f32 v[172:173], v[172:173], v[174:175]")
    e("  v_pk_add_f32 v[160:161], v[160:161], v[164:165]")
    e("  v_pk_add_f32 v[168:169], v[168:169], v[172:173]")
    e("  v_pk_add_f32 v[160:161], v[160:161], v[168:169]")
    e("  v_cvt_pk_bf16_f32 v160, v160, v161")
    e("  v_mov_b32 v161, s26")
    e(f"  buffer_store_dwordx2 v[160:161], v6, s[{SWS}:{SWS+3}], 0 offen sc1")
    e("  ds_write_b64 v11, v[8:9]")
    e("  s_mov_b64 exec, -1")
    e("K_B2:")
    tl(4)
    if OPT["bar2"]:
        e("  s_barrier")
    F2 = max(F1, OPT["f2"])
    for c in range(F1, F2):
        e(pl[c])
    e(f"  s_lshl_b32 s75, s{SB}, 14")
    e(f"  s_lshl_b32 s76, s{SG}, 11")
    e("  s_add_u32 s75, s75, s76")
    e("  s_lshl_b32 s76, s3, 8")
    e("  s_add_u32 s75, s75, s76")
    e(f"  s_add_u32 s75, s75, {WS_QG}")
    e("  s_lshl_b32 s76, s3, 7")
    e("  v_lshlrev_b32 v6, 2, v1")
    e("  v_add_u32 v6, s76, v6")
    e(f"  s_mov_b32 s74, {OPT['bnd']:#x}")
    PB = [4, 28, 44, 80]
    tl(4)
    e("K_SP:")
    for i, b_ in enumerate(PB):
        e(f"  s_load_dwordx16 s[{b_}:{b_+15}], s[24:25], s75 offset:{64*i} glc")
    e("  s_waitcnt lgkmcnt(0)")
    prs = [b_ + 2*k for b_ in PB for k in range(8)]
    e(f"  s_and_b64 s[76:77], s[{prs[0]}:{prs[0]+1}], s[{prs[1]}:{prs[1]+1}]")
    e(f"  s_or_b64 s[78:79], s[{prs[0]}:{prs[0]+1}], s[{prs[1]}:{prs[1]+1}]")
    for r in prs[2:]:
        e(f"  s_and_b64 s[76:77], s[76:77], s[{r}:{r+1}]")
        e(f"  s_or_b64 s[78:79], s[78:79], s[{r}:{r+1}]")
    e("  s_xor_b32 s77, s77, s26")
    e("  s_xor_b32 s79, s79, s26")
    e("  s_or_b32 s77, s77, s79")
    e("  s_cmp_eq_u32 s77, 0")
    e("  s_cbranch_scc1 K_SPD")
    e("  s_sub_u32 s74, s74, 1")
    e("  s_cmp_lg_u32 s74, 0")
    e("  s_cbranch_scc1 K_SP")
    e("K_SPD:")
    tl(4)
    for k, r in enumerate(prs):
        e(f"  v_writelane_b32 v5, s{r}, {k}")
    e("  s_mov_b64 exec, 0xffffffff")
    e(f"  ds_write_b32 v6, v5 offset:{L_Q}")
    e("  s_mov_b64 exec, -1")
    e("  s_waitcnt lgkmcnt(0)")
    e("  s_barrier")
    e("K_B3:")
    tl(4)
    e("  s_load_dwordx16 s[4:19], s[0:1], 0")
    e("  s_load_dwordx2 s[96:97], s[0:1], 64")
    for c in range(F2, len(pl)):
        e(pl[c])
    e("  v_and_b32 v5, 3, v3")
    e("  v_lshlrev_b32 v5, 8, v5")
    e("  v_lshl_add_u32 v5, v4, 4, v5")
    for i in range(4):
        e(f"  ds_read_b128 v[{QF+4*i}:{QF+4*i+3}], v5 offset:{L_Q + i*64}")
    derive()
    for r in range(32):
        e(f"  v_mov_b32 v{ACC+r}, 0")
    e(f"  v_mov_b32 v{M_}, 0xf149f2ca")
    e(f"  v_mov_b32 v{L_}, 0")
    e(f"  v_mov_b32 v7, {L_CNT}")
    e("  v_mov_b32 v8, 1")
    e("  s_waitcnt lgkmcnt(0)")
    srd(SX, 4, 5, 2048)
    srd(SW1, 16, 17, 512 * 1792 * 2)
    srd(SWO, 12, 13, 4096 * 512 * 2)
    srd(SW2, 18, 19, 1792 * 512 * 2)
    srd(SOUT, 96, 97, 2048)
    e("  s_mov_b32 s27, 2")
    def x_loads(sfx):
        e("  s_cmp_lg_u32 s27, 2")
        e(f"  s_cbranch_scc1 K_XL{sfx}")
        e("  s_mov_b32 s27, 3")
        e("  v_lshrrev_b32 v9, 1, v0")
        e("  v_and_b32 v10, 1, v0")
        e("  s_movk_i32 s75, 3584")
        e("  v_mul_lo_u32 v11, v9, s75")
        e("  v_lshl_add_u32 v11, v10, 3, v11")
        e(f"  s_lshl_b32 s75, s{SHC}, 4")
        e("  v_add_u32 v11, s75, v11")
        e(f"  buffer_load_dwordx2 v[244:245], v11, s[{SW1}:{SW1+3}], 0 offen")
        e(f"  v_add_u32 v11, {256*3584}, v11")
        e(f"  buffer_load_dwordx2 v[246:247], v11, s[{SW1}:{SW1+3}], 0 offen")
        wo_loads()
        e(f"K_XL{sfx}:")

    def h_phase(sfx):
        e("  s_cmp_eq_u32 s27, 0")
        e(f"  s_cbranch_scc1 K_HSKP{sfx}")
        e("  s_sub_u32 s27, s27, 2")
        e("  s_cmp_eq_u32 s27, 1")
        e(f"  s_cbranch_scc1 K_HSKP{sfx}")
        e("  s_mov_b32 s27, 0")
        e(f"  s_cmp_ge_u32 s{SHC}, 224")
        e(f"  s_cbranch_scc1 K_HSKP{sfx}")
        e("  v_lshrrev_b32 v5, 1, v0")
        e("  v_lshlrev_b32 v5, 2, v5")
        for i in range(2):
            e(f"  ds_read2st64_b32 v[{204+2*i}:{205+2*i}], v5 offset0:{(L_XN + i*1024)//256} offset1:{(L_XN + i*1024 + 2048)//256}")
        e("  s_waitcnt lgkmcnt(0)")
        A = 212
        for i in range(2):
            for c in range(2):
                w = 244 + 2*i + c
                xr = 204 + 2*i
                a0, a1 = A + 2*c, A + 4 + 2*c
                e(f"  v_lshlrev_b32 v208, 16, v{w}")
                e(f"  v_and_b32 v209, 0xffff0000, v{w}")
                if i == 0:
                    e(f"  v_pk_mul_f32 v[{a0}:{a0+1}], v[208:209], v[{xr}:{xr+1}] op_sel_hi:[1,0]")
                    e(f"  v_pk_mul_f32 v[{a1}:{a1+1}], v[208:209], v[{xr}:{xr+1}] op_sel:[0,1] op_sel_hi:[1,1]")
                else:
                    e(f"  v_pk_fma_f32 v[{a0}:{a0+1}], v[208:209], v[{xr}:{xr+1}], v[{a0}:{a0+1}] op_sel_hi:[1,0,1]")
                    e(f"  v_pk_fma_f32 v[{a1}:{a1+1}], v[208:209], v[{xr}:{xr+1}], v[{a1}:{a1+1}] op_sel:[0,1,0] op_sel_hi:[1,1,1]")
        dpp_steps(list(range(A, A+8)), ["quad_perm:[2,3,0,1]", "row_ror:4", "row_ror:8"])
        swap_steps(list(range(A, A+8)), list(range(220, 228)))
        e("  s_mul_i32 s75, s3, 192")
        e("  v_lshlrev_b32 v5, 4, v1")
        e("  v_add_u32 v5, s75, v5")
        e("  s_mov_b64 exec, 0x3")
        e(f"  ds_write_b128 v5, v[{A}:{A+3}] offset:{L_QP+128}")
        e(f"  ds_write_b128 v5, v[{A+4}:{A+7}] offset:{L_QP+160}")
        e("  s_mov_b64 exec, 1")
        e(f"  ds_add_rtn_u32 v6, v7, v8 offset:4")
        e("  s_mov_b64 exec, -1")
        e("  s_waitcnt lgkmcnt(0)")
        e("  v_readfirstlane_b32 s75, v6")
        e("  s_cmp_lg_u32 s75, 7")
        e(f"  s_cbranch_scc1 K_HSKP{sfx}")
        e("  v_lshlrev_b32 v5, 3, v1")
        e("  s_mov_b64 exec, 0xff")
        for w in range(8):
            e(f"  ds_read_b64 v[{204+2*w}:{205+2*w}], v5 offset:{L_QP + w*192 + 128}")
        e("  v_lshrrev_b32 v6, 2, v1")
        e("  s_movk_i32 s75, 7168")
        e("  v_mul_lo_u32 v6, v6, s75")
        e("  v_and_b32 v9, 3, v1")
        e("  v_lshl_add_u32 v6, v9, 3, v6")
        e(f"  s_lshl_b32 s75, s{SHC}, 5")
        e(f"  s_add_u32 s75, s75, {WS_HG}")
        e("  s_waitcnt lgkmcnt(0)")
        e("  v_pk_add_f32 v[204:205], v[204:205], v[206:207]")
        e("  v_pk_add_f32 v[208:209], v[208:209], v[210:211]")
        e("  v_pk_add_f32 v[212:213], v[212:213], v[214:215]")
        e("  v_pk_add_f32 v[216:217], v[216:217], v[218:219]")
        e("  v_pk_add_f32 v[204:205], v[204:205], v[208:209]")
        e("  v_pk_add_f32 v[212:213], v[212:213], v[216:217]")
        e("  v_pk_add_f32 v[204:205], v[204:205], v[212:213]")
        e("  v_max_f32 v204, 0, v204")
        e("  v_max_f32 v205, 0, v205")
        e("  v_cvt_pk_bf16_f32 v204, v204, v205")
        e("  v_mov_b32 v205, s26")
        e(f"  buffer_store_dwordx2 v[204:205], v6, s[{SWS}:{SWS+3}], s75 offen sc1")
        e("  s_mov_b64 exec, -1")
        e(f"K_HSKP{sfx}:")
    def h_loads():
        e("  s_movk_i32 s75, 7168")
        e(f"  buffer_load_dwordx2 v[244:245], v248, s[{SWS}:{SWS+3}], 0 offen sc1")
        e(f"  buffer_load_dwordx2 v[246:247], v248, s[{SWS}:{SWS+3}], s75 offen sc1")

    def compute(KR, VR, vk, vv):
        e(f"  s_waitcnt vmcnt({vk})")
        tl()
        for t in range(2):
            for i in range(4):
                c = "0" if i == 0 else f"v[{ST+4*t}:{ST+4*t+3}]"
                e(f"  v_mfma_f32_16x16x32_bf16 v[{ST+4*t}:{ST+4*t+3}], v[{KR+16*t+4*i}:{KR+16*t+4*i+3}], v[{QF+4*i}:{QF+4*i+3}], {c}")
        e("  s_nop 7")
        e("  s_nop 0")
        e(f"  v_max3_f32 v{T0}, v{ST}, v{ST+1}, v{ST+2}")
        e(f"  v_max3_f32 v{T1}, v{ST+3}, v{ST+4}, v{ST+5}")
        e(f"  v_max3_f32 v{T0}, v{T0}, v{ST+6}, v{ST+7}")
        e(f"  v_max_f32 v{T0}, v{T0}, v{T1}")
        e(f"  v_mov_b32 v{T1}, v{T0}")
        e("  s_nop 1")
        e(f"  v_permlane16_swap_b32 v{T0}, v{T1}")
        e("  s_nop 1")
        e(f"  v_max_f32 v{T0}, v{T0}, v{T1}")
        e(f"  v_mov_b32 v{T1}, v{T0}")
        e("  s_nop 1")
        e(f"  v_permlane32_swap_b32 v{T0}, v{T1}")
        e("  s_nop 1")
        e(f"  v_max3_f32 v{T0}, v{T0}, v{T1}, v{M_}")
        e(f"  v_sub_f32 v{AL}, v{M_}, v{T0}")
        e(f"  v_mul_f32 v{AL}, s{SC}, v{AL}")
        e(f"  v_exp_f32 v{AL}, v{AL}")
        e(f"  v_mov_b32 v{M_}, v{T0}")
        e(f"  v_mul_f32 v{MC}, s{SC}, v{T0}")
        for k in range(8):
            e(f"  v_fma_f32 v{ST+k}, v{ST+k}, s{SC}, -v{MC}")
        for k in range(8):
            e(f"  v_exp_f32 v{ST+k}, v{ST+k}")
        e("  s_nop 0")
        e(f"  v_mul_f32 v{L_}, v{L_}, v{AL}")
        for k in range(8):
            e(f"  v_add_f32 v{L_}, v{L_}, v{ST+k}")
        for q in range(4):
            e(f"  v_cvt_pk_bf16_f32 v{PF+q}, v{ST+2*q}, v{ST+2*q+1}")
        for r in range(32):
            e(f"  v_mul_f32 v{ACC+r}, v{ACC+r}, v{AL}")
        e(f"  s_waitcnt vmcnt({vv})")
        tl()
        for t in range(8):
            c = t >> 1
            sel = f"s{SP1}" if (t & 1) else f"s{SP0}"
            for q in range(4):
                e(f"  v_perm_b32 v{TR+4*t+q}, v{VR+4*(2*q+1)+c}, v{VR+4*(2*q)+c}, {sel}")
        e("  s_nop 1")
        for t in range(8):
            e(f"  v_mfma_f32_16x16x32_bf16 v[{ACC+4*t}:{ACC+4*t+3}], v[{TR+4*t}:{TR+4*t+3}], v[{PF}:{PF+3}], v[{ACC+4*t}:{ACC+4*t+3}]")

    def fetch():
        e("  s_mov_b64 exec, 1")
        e("  ds_add_rtn_u32 v9, v7, v8")
        e("  s_mov_b64 exec, -1")
    def getidx(sidx):
        e("  s_waitcnt lgkmcnt(0)")
        e(f"  v_readfirstlane_b32 s{sidx}, v9")

    if OPT["nw"] < 8:
        e(f"  s_cmp_ge_u32 s3, {OPT['nw']}")
        e("  s_cbranch_scc1 K_EXIT")
    def gen_loop(sfx, last):
        if OPT["nbuf"] == 3:
            fetch()
            compute(KA, VA, 24, 16)
            getidx(IDXA)
            loads(KA, VA, IDXA)
            compute(KB, VB, 24, 16)
            e(f"  s_cmp_ge_u32 s{IDXA}, 64")
            e("  s_cbranch_scc1 K_EXIT")
        e(f"K_LOOP{sfx}:")
        if OPT["nbuf"] == 2:
            fetch()
            compute(KA, VA, 24, 16)
            getidx(IDXA)
            loads(KA, VA, IDXA)
            e(f"  s_cmp_ge_u32 s{IDXB}, 64")
            e("  s_cbranch_scc1 K_EXIT")
            fetch()
            compute(KB, VB, 24, 16)
            getidx(IDXB)
            loads(KB, VB, IDXB)
            e(f"  s_cmp_lt_u32 s{IDXA}, 64")
            e(f"  s_cbranch_scc1 K_LOOP{sfx}")
        else:
            fetch()
            compute(KA, VA, 8, 0)
            getidx(IDXA)
            x_loads("L"+sfx)
            loads(KA, VA, IDXA)
            h_phase("L"+sfx)
            e(f"  s_cmp_lt_u32 s{IDXA}, 64")
            e(f"  s_cbranch_scc1 K_LOOP{sfx}")
        if not last:
            e("  s_branch K_EXIT")
    if OPT["T"]:
        e(f"  s_lshl_b32 s75, s{SB}, 3")
        e(f"  s_add_u32 s75, s75, s{SG}")
        e(f"  s_cmp_lt_u32 s75, {OPT['T']}")
        e("  s_cbranch_scc1 K_LOOPlo")
        POL["k"] = "" if OPT["phi"] & 1 else nt
        POL["v"] = "" if OPT["phi"] & 2 else nt
        gen_loop("hi", False)
        POL["k"] = "" if OPT["plo"] & 1 else nt
        POL["v"] = "" if OPT["plo"] & 2 else nt
        gen_loop("lo", True)
    else:
        gen_loop("", True)
    e("K_EXIT:")
    if OPT["prof"] == 1: stamp(4)
    tl(OPT["prof"])
    tl_dump()
    e("  s_cmp_eq_u32 s27, 0")
    e("  s_cbranch_scc1 K_X0")
    x_loads("E")
    e("  s_mov_b32 s27, 1")
    e("  s_waitcnt vmcnt(0)")
    h_phase("E")
    e("K_X0:")
    e("  s_cmp_ge_u32 s2, 224")
    e("  s_cbranch_scc1 K_HSK")
    e("  v_lshrrev_b32 v5, 1, v12")
    e("  v_lshlrev_b32 v248, 3, v5")
    e("  s_lshr_b32 s75, s2, 3")
    e("  s_lshl_b32 s75, s75, 8")
    e(f"  s_add_u32 s75, s75, {WS_HG}")
    e("  v_add_u32 v248, s75, v248")
    h_loads()
    e("K_HSK:")
    e(f"  v_mov_b32 v{T1}, v{L_}")
    e("  s_nop 1")
    e(f"  v_permlane16_swap_b32 v{L_}, v{T1}")
    e("  s_nop 1")
    e(f"  v_add_f32 v{L_}, v{L_}, v{T1}")
    e(f"  v_mov_b32 v{T1}, v{L_}")
    e("  s_nop 1")
    e(f"  v_permlane32_swap_b32 v{L_}, v{T1}")
    e("  s_nop 1")
    e(f"  v_add_f32 v{L_}, v{L_}, v{T1}")
    e("  v_cmp_gt_u32 vcc, 4, v3")
    e("  s_and_saveexec_b64 s[78:79], vcc")
    e("  v_lshlrev_b32 v5, 11, v2")
    e("  v_lshl_add_u32 v5, v3, 9, v5")
    e("  v_lshl_add_u32 v5, v4, 7, v5")
    e("  s_nop 4")
    for t in range(8):
        for r in range(4):
            e(f"  ds_write_b32 v5, v{ACC+4*t+r} offset:{L_O + (r*8+t)*4}")
    e("  v_cmp_gt_u32 vcc, 4, v1")
    e("  s_and_b64 exec, exec, vcc")
    e("  v_lshlrev_b32 v6, 5, v2")
    e("  v_lshl_add_u32 v6, v3, 3, v6")
    e(f"  ds_write_b32 v6, v{M_} offset:{L_ML}")
    e(f"  ds_write_b32 v6, v{L_} offset:{L_ML+4}")
    e("  s_mov_b64 exec, s[78:79]")
    e("  s_waitcnt lgkmcnt(0)")
    e("  s_barrier")
    e("  v_lshrrev_b32 v5, 7, v0")
    e("  v_and_b32 v6, 127, v0")
    e("  v_lshlrev_b32 v7, 3, v5")
    for w in range(8):
        e(f"  ds_read_b64 v[{160+2*w}:{161+2*w}], v7 offset:{L_ML + w*32}")
    e("  v_lshlrev_b32 v8, 9, v5")
    e("  v_lshl_add_u32 v8, v6, 2, v8")
    for w in range(8):
        e(f"  ds_read_b32 v{176+w}, v8 offset:{L_O + w*2048}")
    e("  s_waitcnt lgkmcnt(0)")
    e("  v_max3_f32 v184, v160, v162, v164")
    e("  v_max3_f32 v185, v166, v168, v170")
    e("  v_max3_f32 v184, v184, v172, v174")
    e("  v_max_f32 v184, v184, v185")
    e("  v_mov_b32 v186, 0")
    e("  v_mov_b32 v187, 0")
    for w in range(8):
        e(f"  v_sub_f32 v185, v{160+2*w}, v184")
        e(f"  v_mul_f32 v185, s{SC}, v185")
        e("  v_exp_f32 v185, v185")
        e("  s_nop 0")
        e(f"  v_fmac_f32 v186, v185, v{161+2*w}")
        e(f"  v_fmac_f32 v187, v185, v{176+w}")
    e(f"  s_lshl_b32 s75, s{SB}, 5")
    e(f"  s_lshl_b32 s76, s{SG}, 2")
    e("  s_add_u32 s75, s75, s76")
    e("  s_lshl_b32 s75, s75, 4")
    e(f"  s_add_u32 s75, s75, s{SSPL}")
    e("  v_lshlrev_b32 v7, 4, v5")
    e("  v_add_u32 v7, s75, v7")
    e("  v_lshlrev_b32 v8, 10, v7")
    e("  v_lshl_add_u32 v8, v6, 3, v8")
    e(f"  s_mov_b32 s75, {WS_OG}")
    e("  v_mov_b32 v188, v187")
    e("  v_mov_b32 v189, s26")
    e(f"  buffer_store_dwordx2 v[188:189], v8, s[{SWS}:{SWS+3}], s75 offen sc1")
    e("  v_cmp_eq_u32 vcc, 0, v6")
    e("  s_and_saveexec_b64 s[78:79], vcc")
    e("  v_lshlrev_b32 v7, 4, v7")
    e("  v_mov_b32 v185, v186")
    e("  v_mov_b32 v186, s26")
    e(f"  s_mov_b32 s75, {WS_MG}")
    e(f"  buffer_store_dwordx3 v[184:186], v7, s[{SWS}:{SWS+3}], s75 offen sc1")
    e("  s_mov_b64 exec, s[78:79]")
    if OPT["prof"] == 1: stamp(5)

    def prod(wregs, vecaddr_rows, accbase, nrows):
        for r in range(16):
            e(f"  v_mov_b32 v{accbase+r}, 0")
        for i in range(nrows):
            for c in range(4):
                w = wregs + 4 * i + c
                e(f"  v_lshlrev_b32 v160, 16, v{w}")
                e(f"  v_and_b32 v161, 0xffff0000, v{w}")
                e(f"  v_fmac_f32 v{accbase+2*c}, v160, v{168+2*i}")
                e(f"  v_fmac_f32 v{accbase+1+2*c}, v161, v{168+2*i}")
                e(f"  v_fmac_f32 v{accbase+8+2*c}, v160, v{169+2*i}")
                e(f"  v_fmac_f32 v{accbase+9+2*c}, v161, v{169+2*i}")
        dpp_steps(list(range(accbase, accbase + 16)), ["row_ror:8"])

    def reduce_store(lbase, label, snc):
        e("  v_lshlrev_b32 v5, 2, v2")
        e("  v_add_u32 v5, v5, v4")
        e("  v_lshlrev_b32 v5, 9, v5")
        e("  v_and_b32 v6, 7, v1")
        e("  v_lshl_add_u32 v5, v6, 5, v5")
        e("  v_and_b32 v6, 8, v1")
        e("  v_cmp_eq_u32 vcc, 0, v6")
        e("  s_and_saveexec_b64 s[78:79], vcc")
        e(f"  ds_write_b128 v5, v[180:183] offset:{lbase}")
        e(f"  ds_write_b128 v5, v[184:187] offset:{lbase+16}")
        e(f"  ds_write_b128 v5, v[188:191] offset:{lbase+256}")
        e(f"  ds_write_b128 v5, v[192:195] offset:{lbase+256+16}")
        e("  s_mov_b64 exec, s[78:79]")
        e("  s_waitcnt lgkmcnt(0)")
        e("  s_barrier")
        e("  s_cmp_ge_u32 s3, 2")
        e(f"  s_cbranch_scc1 {label}")
        e("  v_lshlrev_b32 v5, 2, v0")
        for p in range(32):
            e(f"  ds_read_b32 v{204+p}, v5 offset:{lbase + p*512}")
        e("  s_waitcnt lgkmcnt(0)")
        for p in range(1, 31, 2):
            e(f"  v_add_f32 v{204+p}, v{204+p}, v{205+p}")
        e("  v_add_f32 v204, v204, v235")
        for p in range(1, 31, 2):
            e(f"  v_add_f32 v204, v204, v{204+p}")
        e("  v_lshlrev_b32 v5, 12, v2")
        e("  v_lshl_add_u32 v5, v1, 3, v5")
        e(f"  s_lshl_b32 s76, s{snc}, 9")
        e(f"  s_add_u32 s75, s75, s76")
        e("  v_mov_b32 v205, s26")
        e(f"  buffer_store_dwordx2 v[204:205], v5, s[{SWS}:{SWS+3}], s75 offen sc1")
        e(f"{label}:")

    e("  s_cmp_ge_u32 s2, 224")
    e("  s_cbranch_scc1 K_T4")
    e(f"  s_mov_b32 s74, {OPT['bnd']:#x}")
    e("  s_waitcnt vmcnt(1)")
    e("K_HR:")
    e("  v_cmp_ne_u32 vcc, s26, v245")
    e("  v_cmp_ne_u32 s[78:79], s26, v247")
    e("  s_or_b64 vcc, vcc, s[78:79]")
    e("  s_cmp_eq_u64 vcc, 0")
    e("  s_cbranch_scc1 K_HOK")
    h_loads()
    e("  s_waitcnt vmcnt(0)")
    e("  s_sub_u32 s74, s74, 1")
    e("  s_cmp_lg_u32 s74, 0")
    e("  s_cbranch_scc1 K_HR")
    e("K_HOK:")
    e("  v_and_b32 v5, 1, v12")
    e("  v_cmp_eq_u32 vcc, 1, v5")
    e("  v_lshlrev_b32 v168, 16, v244")
    e("  v_and_b32 v5, 0xffff0000, v244")
    e("  v_lshlrev_b32 v169, 16, v246")
    e("  v_and_b32 v6, 0xffff0000, v246")
    e("  v_cndmask_b32 v168, v168, v5, vcc")
    e("  v_cndmask_b32 v169, v169, v6, vcc")
    prod(W2, None, 180, 1)
    e("  s_lshr_b32 s75, s2, 3")
    e("  s_lshl_b32 s75, s75, 13")
    e(f"  s_add_u32 s75, s75, {WS_GG}")
    reduce_store(L_FP, "K_T3B", SNC)
    e("K_T4:")
    if not OPT["mf"]:
        e("  s_cmp_ge_u32 s3, 4")
        e("  s_cbranch_scc1 K_T6")
        e("  v_lshrrev_b32 v6, 7, v0")
        e("  v_and_b32 v7, 127, v0")
        e("  v_lshlrev_b32 v8, 5, v6")
        e(f"  v_add_u32 v8, s{SHEAD}, v8")
        e("  v_lshlrev_b32 v9, 8, v8")
        e("  v_lshlrev_b32 v10, 14, v8")
        e("  v_lshl_add_u32 v10, v7, 3, v10")
        e(f"  s_mov_b32 s76, {WS_MG}")
        def iss2(sp):
            e(f"  s_mov_b32 s75, {WS_OG + 4096*(sp>>2)}")
            bits = {0:"", 1:" sc1", 2:" sc0", 3:" sc0 sc1", 4:" nt", 5:" sc0 nt"}[OPT["p2"]]
            e(f"  buffer_load_dwordx2 v[{16+2*sp}:{17+2*sp}], v10, s[{SWS}:{SWS+3}], s75 offen offset:{(sp&3)*1024}{bits}")
            e(f"  buffer_load_dwordx3 v[{48+4*sp}:{50+4*sp}], v9, s[{SWS}:{SWS+3}], s76 offen offset:{sp*16}{bits}")
        mpoll("K_P2", 16, iss2, lambda sp: [17+2*sp, 50+4*sp], OPT["thr"])
        if OPT["prof"] == 1: stamp(6)
        M = lambda sp: 48+4*sp
        e(f"  v_max3_f32 v112, v{M(0)}, v{M(1)}, v{M(2)}")
        for sp in range(3, 15, 2):
            e(f"  v_max3_f32 v112, v112, v{M(sp)}, v{M(sp+1)}")
        e(f"  v_max_f32 v112, v112, v{M(15)}")
        e("  v_mov_b32 v113, 0")
        e("  v_mov_b32 v114, 0")
        for sp in range(16):
            e(f"  v_sub_f32 v{M(sp)}, v{M(sp)}, v112")
            e(f"  v_mul_f32 v{M(sp)}, s{SC}, v{M(sp)}")
            e(f"  v_exp_f32 v{M(sp)}, v{M(sp)}")
        e("  s_nop 0")
        for sp in range(16):
            e(f"  v_fmac_f32 v113, v{M(sp)}, v{M(sp)+1}")
            e(f"  v_fmac_f32 v114, v{M(sp)}, v{16+2*sp}")
        e("  v_mov_b32 v49, v113")
        e("  v_mov_b32 v50, v114")
        e("  v_rcp_f32 v49, v49")
        e("  s_nop 0")
        e("  v_mul_f32 v50, v50, v49")
        round_bf16(50, 50)
        e("  v_lshlrev_b32 v8, 2, v0")
        e(f"  ds_write_b32 v8, v50 offset:{L_VEC}")
        e("  s_waitcnt lgkmcnt(0)")
        e("K_T6:")
        e("  s_barrier")
        e("  v_lshlrev_b32 v5, 2, v12")
        e(f"  ds_read_b32 v168, v5 offset:{L_VEC}")
        e(f"  ds_read_b32 v169, v5 offset:{L_VEC+512}")
        e(f"  ds_read_b32 v170, v5 offset:{L_VEC+256}")
        e(f"  ds_read_b32 v171, v5 offset:{L_VEC+512+256}")
        e("  s_waitcnt lgkmcnt(0)")
        prod(WO, None, 180, 2)
        e(f"  s_lshl_b32 s75, s{SHEAD}, 13")
        e(f"  s_add_u32 s75, s75, {WS_SG}")
        reduce_store(L_SP, "K_T6B", SNO)
    else:
        e("  s_cmp_ge_u32 s3, 4")
        e("  s_cbranch_scc1 K_END")
        e("  s_and_b32 s75, s3, 1")
        e("  s_cmp_eq_u32 s75, 1")
        e(f"  s_cselect_b32 s75, s{SP1}, s{SP0}")
        for ks in range(4):
            for q in range(4):
                e(f"  v_perm_b32 v{112+ks*4+q}, v{80+ks*8+2*q+1}, v{80+ks*8+2*q}, s75")
        e("  v_lshrrev_b32 v6, 7, v0")
        e("  v_and_b32 v7, 127, v0")
        e("  v_lshlrev_b32 v8, 5, v6")
        e(f"  v_add_u32 v8, s{SHEAD}, v8")
        e("  v_lshlrev_b32 v9, 8, v8")
        e("  v_lshlrev_b32 v10, 14, v8")
        e("  v_lshl_add_u32 v10, v7, 3, v10")
        e(f"  s_mov_b32 s76, {WS_MG}")
        def iss2(sp):
            e(f"  s_mov_b32 s75, {WS_OG + 4096*(sp>>2)}")
            e(f"  buffer_load_dwordx2 v[{16+2*sp}:{17+2*sp}], v10, s[{SWS}:{SWS+3}], s75 offen offset:{(sp&3)*1024} sc1")
            e(f"  buffer_load_dwordx3 v[{48+4*sp}:{50+4*sp}], v9, s[{SWS}:{SWS+3}], s76 offen offset:{sp*16} sc1")
        e("  v_and_b32 v11, 1, v3")
        e("  v_lshlrev_b32 v11, 8, v11")
        e("  v_lshl_add_u32 v11, v4, 4, v11")
        e("  v_and_b32 v12, 1, v4")
        e("  v_lshlrev_b32 v13, 12, v12")
        e("  v_lshl_add_u32 v13, v3, 4, v13")
        e("  s_lshr_b32 s75, s3, 1")
        e("  s_lshl_b32 s75, s75, 8")
        e("  s_and_b32 s78, s3, 1")
        e("  s_lshl_b32 s78, s78, 3")
        e("  s_add_u32 s75, s75, s78")
        e(f"  s_lshl_b32 s78, s{SNO}, 9")
        e("  s_add_u32 s75, s75, s78")
        e(f"  s_lshl_b32 s78, s{SHEAD}, 13")
        e("  s_add_u32 s75, s75, s78")
        e(f"  s_add_u32 s75, s75, {WS_SG}")
        e("  v_add_u32 v13, s75, v13")
        mpoll("K_P2", 16, iss2, lambda sp: [17+2*sp, 50+4*sp], OPT["thr"])
        if OPT["prof"] == 1: stamp(6)
        M = lambda sp: 48+4*sp
        e(f"  v_max3_f32 v128, v{M(0)}, v{M(1)}, v{M(2)}")
        for sp in range(3, 15, 2):
            e(f"  v_max3_f32 v128, v128, v{M(sp)}, v{M(sp+1)}")
        e(f"  v_max_f32 v128, v128, v{M(15)}")
        e("  v_mov_b32 v129, 0")
        e("  v_mov_b32 v130, 0")
        for sp in range(16):
            e(f"  v_sub_f32 v{M(sp)}, v{M(sp)}, v128")
            e(f"  v_mul_f32 v{M(sp)}, s{SC}, v{M(sp)}")
            e(f"  v_exp_f32 v{M(sp)}, v{M(sp)}")
        e("  s_nop 0")
        for sp in range(16):
            e(f"  v_fmac_f32 v129, v{M(sp)}, v{M(sp)+1}")
            e(f"  v_fmac_f32 v130, v{M(sp)}, v{16+2*sp}")
        e("  v_rcp_f32 v129, v129")
        e("  s_nop 0")
        e("  v_mul_f32 v130, v130, v129")
        e("  v_cvt_pk_bf16_f32 v130, v130, v130")
        e("  v_lshlrev_b32 v8, 1, v0")
        e(f"  ds_write_b16 v8, v130 offset:{L_VEC}")
        e("  s_waitcnt lgkmcnt(0)")
        e("  s_barrier")
        for ks in range(4):
            e(f"  ds_read_b128 v[{132+4*ks}:{135+4*ks}], v11 offset:{L_VEC + ks*64}")
        e("  s_waitcnt lgkmcnt(0)")
        for ks in range(4):
            c = "0" if ks == 0 else "v[148:151]"
            e(f"  v_mfma_f32_16x16x32_bf16 v[148:151], v[{132+4*ks}:{135+4*ks}], v[{112+4*ks}:{115+4*ks}], {c}")
        e("  v_cmp_eq_u32 vcc, 1, v12")
        e("  v_mov_b32 v153, s26")
        e("  s_nop 7")
        e("  s_nop 7")
        e("  v_cndmask_b32 v152, v148, v149, vcc")
        e("  s_mov_b64 exec, 0xffffffff")
        e(f"  buffer_store_dwordx2 v[152:153], v13, s[{SWS}:{SWS+3}], 0 offen sc1")
        e("  s_mov_b64 exec, -1")
    if OPT["prof"] == 1: stamp(7)
    e("  s_cmp_ge_u32 s2, 8")
    e("  s_cbranch_scc1 K_END")
    e("  s_cmp_ge_u32 s3, 4")
    e("  s_cbranch_scc1 K_END")
    def gpoll(label, n, base):
        def iss(k):
            e(f"  s_mov_b32 s75, {base + k*8192}")
            e(f"  buffer_load_dwordx2 v[{16+2*k}:{17+2*k}], v10, s[{SWS}:{SWS+3}], s75 offen sc1")
        mpoll(label, n, iss, lambda k: [17+2*k], None)
        for k in range(1, n):
            e(f"  v_add_f32 v16, v16, v{16+2*k}")
    e("  v_and_b32 v5, 1, v2")
    e("  v_lshlrev_b32 v5, 11, v5")
    e("  v_lshl_add_u32 v5, v1, 2, v5")
    e(f"  s_lshl_b32 s76, s{SNC}, 8")
    e("  v_add_u32 v5, s76, v5")
    e("  v_lshlrev_b32 v10, 1, v5")
    e("  s_cmp_ge_u32 s3, 2")
    e("  s_cbranch_scc1 K_FG")
    e("  v_lshrrev_b32 v6, 1, v5")
    e(f"  buffer_load_ushort v4, v6, s[{SX}:{SX+3}], 0 offen")
    gpoll("K_P3", 32, WS_SG)
    round_bf16(16, 16)
    e("  s_barrier")
    e("  v_lshlrev_b32 v7, 2, v0")
    e(f"  ds_read_b32 v8, v7 offset:{L_GX}")
    e("  s_waitcnt lgkmcnt(0)")
    e("  v_mul_f32 v8, v8, v16")
    round_bf16(8, 8)
    e("  v_lshlrev_b32 v4, 16, v4")
    e("  v_add_f32 v8, v8, v4")
    e("  v_cvt_pk_bf16_f32 v8, v8, v8")
    e(f"  buffer_store_short v8, v6, s[{SOUT}:{SOUT+3}], 0 offen")
    e("  s_or_b32 s75, s2, s3")
    e("  s_cmp_lg_u32 s75, 0")
    e("  s_cbranch_scc1 K_END")
    e("  s_mov_b64 exec, 1")
    e(f"  v_mov_b32 v5, {WS_EP}")
    e("  v_mov_b32 v6, s26")
    e(f"  buffer_store_dword v6, v5, s[{SWS}:{SWS+3}], 0 offen")
    e("  s_branch K_END")
    e("K_FG:")
    gpoll("K_P4", 28, WS_GG)
    round_bf16(16, 16)
    e("  v_mul_f32 v5, 0xbfb8aa3b, v16")
    e("  v_exp_f32 v5, v5")
    e("  s_nop 0")
    e("  v_add_f32 v5, 1.0, v5")
    e("  v_rcp_f32 v5, v5")
    e("  s_nop 0")
    e("  v_mul_f32 v5, v5, v16")
    round_bf16(5, 5)
    e("  v_and_b32 v7, 127, v0")
    e("  v_lshlrev_b32 v7, 2, v7")
    e(f"  ds_write_b32 v7, v5 offset:{L_GX}")
    e("  s_waitcnt lgkmcnt(0)")
    e("  s_barrier")
    e("K_END:")
    dump_stamps()
    e("  s_endpgm")
    e('.section .rodata,"a"')
    e(".p2align 6")
    e(f".amdhsa_kernel {name}")
    e("  .amdhsa_next_free_vgpr 256")
    e("  .amdhsa_next_free_sgpr 102")
    e("  .amdhsa_accum_offset 256")
    e("  .amdhsa_group_segment_fixed_size 0")
    e("  .amdhsa_kernarg_size 88")
    e("  .amdhsa_user_sgpr_count 2")
    e("  .amdhsa_user_sgpr_kernarg_segment_ptr 1")
    e("  .amdhsa_system_sgpr_workgroup_id_x 1")
    e(".end_amdhsa_kernel")

def main():
    path = f"cdna_kernels/{NAME}.s"
    for a in sys.argv[1:]:
        if "=" in a:
            k, v = a.split("=", 1)
            OPT[k] = (" " + v if v else "") if k == "nt" else int(v)
        else:
            path = a
    e(HEADER.rstrip("\n"))
    e(f"; @launch grid=(256,1,1) block=(512,1,1) lds={LDS_SIZE}")
    e('.amdgcn_target "amdgcn-amd-amdhsa--gfx950"')
    gen()
    open(path, "w").write("\n".join(out) + "\n")

main()
```

```python
import sys

NAME = "recurrent_scan__gqa_block_cached__dense_activation_relu__decode"

HEADER = """; Kernarg layout for this problem (88 bytes, ptrs only, base s[0:1]):
;   offset   0: d_in[0] A_x  shape=(2, 1, 512) dtype=bfloat16 strides=(1024, 1024, 2) contiguous=True
;   offset   8: d_in[1] A_k_cache  shape=(2, 8, 32768, 128) dtype=bfloat16 strides=(67108864, 8388608, 256, 2) contiguous=True
;   offset  16: d_in[2] A_v_cache  shape=(2, 8, 32768, 128) dtype=bfloat16 strides=(67108864, 8388608, 256, 2) contiguous=True
;   offset  24: d_in[3] A_wq  shape=(512, 4096) dtype=bfloat16 strides=(8192, 2) contiguous=True
;   offset  32: d_in[4] A_wo  shape=(4096, 512) dtype=bfloat16 strides=(1024, 2) contiguous=True
;   offset  40: d_in[5] B_x  shape=(2, 1, 512) dtype=bfloat16 strides=(1024, 1024, 2) contiguous=True
;   offset  48: d_in[6] B_w1  shape=(512, 1792) dtype=bfloat16 strides=(3584, 2) contiguous=True
;   offset  56: d_in[7] B_w2  shape=(1792, 512) dtype=bfloat16 strides=(1024, 2) contiguous=True
"""

WS_Q = 0
WS_H = 16384
WS_ML = 32768
WS_O = 65536
WS_P = 1 << 20
WS_G = WS_P + 131072
WS_SIZE = 536870912
WS_QG = 2 << 20
WS_HG = WS_QG + 32768
WS_EP = WS_QG + 65536
WS_QF = WS_QG + 131072
WS_OG = 5 << 20
WS_MG = 6 << 20
WS_SG = WS_MG + 65536
WS_GG = 7 << 20
WS_PC = 3 << 20

L_XN = 0
L_QP = 4096
L_Q = 5632
L_HV = 6656
L_CNT = 7168
L_O = 8192
L_ML = 24576
L_FP = 25600
L_VEC = 0
L_SP = 8192
L_GX = 1024
LDS_SIZE = 41984

OPT = dict(nt=" nt", sleep=1, prof=0, pre0=0, pace=8, bar0=1, wsc=0, thr=2, p2=1, ilv=0, kx=0, nbuf=1, nw=8, kpl=0, vpl=0, T=0, plo=0, phi=0, mf=1, qp=0, prex=0, qs=0, warm=0, xb=1, f1=8, np=8, sl=8, psl=8, bnd=0x100000, bar2=1, f2=8, rot=0, map=1, ns=48, fake=0, warmp=0, nsub=4, fifo=1, fw=0, fsl=1, dup=1)

out = []
def e(s=""):
    out.append(s)

def srd(dst, lo, hi, nbytes):
    e(f"  s_mov_b32 s{dst}, s{lo}")
    e(f"  s_and_b32 s{dst+1}, s{hi}, 0xffff")
    e(f"  s_mov_b32 s{dst+2}, {nbytes}")
    e(f"  s_mov_b32 s{dst+3}, 0x00020000")

def dpp_steps(regs, ctrls):
    for ctrl in ctrls:
        e("  s_nop 1")
        for r in regs:
            e(f"  v_add_f32_dpp v{r}, v{r}, v{r} {ctrl} row_mask:0xf bank_mask:0xf")

def swap_steps(regs, tmp):
    for sw in ["v_permlane16_swap_b32", "v_permlane32_swap_b32"]:
        for r, t in zip(regs, tmp):
            e(f"  v_mov_b32 v{t}, v{r}")
        e("  s_nop 1")
        for r, t in zip(regs, tmp):
            e(f"  {sw} v{r}, v{t}")
        e("  s_nop 1")
        for r, t in zip(regs, tmp):
            e(f"  v_add_f32 v{r}, v{r}, v{t}")

def wave_sum(regs, tmp):
    dpp_steps(regs, ["quad_perm:[1,0,3,2]", "quad_perm:[2,3,0,1]", "row_half_mirror", "row_mirror"])
    swap_steps(regs, tmp)

def round_bf16(dst, src):
    e(f"  v_cvt_pk_bf16_f32 v{dst}, v{src}, v{src}")
    e(f"  v_lshlrev_b32 v{dst}, 16, v{dst}")

WS_PROF = 4 << 20
def stamp(k):
    if not OPT["prof"] or OPT["prof"] >= 3:
        return
    e("  s_memrealtime s[80:81]")
    e("  s_waitcnt lgkmcnt(0)")
    e(f"  s_mov_b32 s{92+k}, s80")

WS_PROF3 = 8 << 20
def tl(k=3):
    if OPT["prof"] != k:
        return
    e("  s_memrealtime s[98:99]")
    e("  s_waitcnt lgkmcnt(0)")
    e("  v_writelane_b32 v251, s98, m0")
    e("  s_add_u32 m0, m0, 1")

def tl_dump():
    if OPT["prof"] < 3:
        return
    e("  s_lshl_b32 s82, s2, 3")
    e("  s_add_u32 s82, s82, s3")
    e("  s_lshl_b32 s82, s82, 8")
    e(f"  s_add_u32 s82, s82, {WS_PROF3}")
    e("  v_lshlrev_b32 v5, 2, v1")
    e(f"  buffer_store_dword v251, v5, s[{SWS}:{SWS+3}], s82 offen")

def dump_stamps():
    if not OPT["prof"]:
        return
    if OPT["prof"] >= 3:
        e("K_END2:")
        return
    e("  s_cmp_ge_u32 s3, 2")
    e("  s_cbranch_scc1 K_END2")
    e("  s_cmp_ge_u32 s2, 256")
    e("  s_cbranch_scc1 K_END2")
    stamp(8)
    e("  s_lshl_b32 s82, s2, 1")
    e("  s_add_u32 s82, s82, s3")
    e("  s_lshl_b32 s82, s82, 6")
    e(f"  s_add_u32 s82, s82, {WS_PROF}")
    e("  s_mov_b64 exec, 1")
    e("  v_mov_b32 v6, 0")
    for k in range(9):
        e(f"  v_mov_b32 v5, s{92+k}")
        e(f"  buffer_store_dword v5, v6, s[{SWS}:{SWS+3}], s82 offen offset:{k*4}")
    e("K_END2:")

SX, SK, SV, SWQ, SW1, SWO, SW2, SWS, SDBG, SOUT = 28, 60, 64, 40, 44, 48, 52, 20, 999, 32
SC, SP0, SP1 = 68, 69, 70
IDXA, IDXB = 72, 73
SG, SR, SB, SSPL, SNC, SHEAD = 86, 87, 88, 89, 90, 91
SNO, SCG, SHC = 83, 84, 85

def poll(label, nlanes, voff, target, tmpv):
    e(f"  s_mov_b64 exec, {(1<<nlanes)-1:#x}")
    e("  s_mov_b32 s74, 0x400000")
    e(f"{label}:")
    e(f"  buffer_load_dword v{tmpv}, v{voff}, s[{SDBG}:{SDBG+3}], 0 offen sc1")
    e("  s_waitcnt vmcnt(0)")
    e(f"  v_cmp_ne_u32 vcc, {target}, v{tmpv}")
    e("  s_cmp_eq_u64 vcc, 0")
    e(f"  s_cbranch_scc1 {label}_DONE")
    if OPT["sleep"]:
        e(f"  s_sleep {OPT['sleep']}")
    e("  s_sub_u32 s74, s74, 1")
    e("  s_cmp_lg_u32 s74, 0")
    e(f"  s_cbranch_scc1 {label}")
    e(f"{label}_DONE:")
    e("  s_mov_b64 exec, -1")

def mpoll(label, n, issue, tags, thr):
    full = (1 << n) - 1
    e("  s_not_b32 s75, s26")
    for k in range(n):
        for x in tags(k):
            e(f"  v_mov_b32 v{x}, s75")
    e("  s_mov_b32 s77, 0")
    e(f"  s_mov_b32 s74, {OPT['bnd']:#x}")
    e(f"{label}:")
    for k in range(n):
        e(f"  s_bitcmp1_b32 s77, {k}")
        e(f"  s_cbranch_scc1 {label}S{k}")
        issue(k)
        e(f"{label}S{k}:")
    if thr is not None:
        e(f"  s_xor_b32 s75, s77, {full:#x}")
        e("  s_bcnt1_i32_b32 s75, s75")
        e(f"  s_cmp_le_u32 s75, {thr}")
        e(f"  s_cbranch_scc1 {label}F")
        e("  s_waitcnt vmcnt(0)")
        e(f"{label}F:")
    if OPT["sleep"]:
        e(f"  s_sleep {OPT['sleep']}")
    for k in range(n):
        t = tags(k)
        e(f"  v_cmp_eq_u32 vcc, s26, v{t[0]}")
        for x in t[1:]:
            e(f"  v_cmp_eq_u32 s[78:79], s26, v{x}")
            e("  s_and_b64 vcc, vcc, s[78:79]")
        e("  s_cmp_eq_u64 vcc, -1")
        e(f"  s_cselect_b32 s75, {1<<k:#x}, 0")
        e("  s_or_b32 s77, s77, s75")
    e(f"  s_cmp_eq_u32 s77, {full:#x}")
    e(f"  s_cbranch_scc1 {label}_DONE")
    e("  s_sub_u32 s74, s74, 1")
    e("  s_cmp_lg_u32 s74, 0")
    e(f"  s_cbranch_scc1 {label}")
    e(f"{label}_DONE:")
    e("  s_waitcnt vmcnt(0)")

def gen():
    nt = OPT["nt"]
    BS = 17 if OPT["ilv"] else 13
    POL = dict(k="" if OPT["kpl"] else nt, v="" if OPT["vpl"] else nt)
    name = NAME + "_kernel"
    e(".text")
    e(f".globl {name}")
    e(".p2align 8")
    e(f".type {name},@function")
    e(f"{name}:")
    KA, VA, KB, VB = 16, 48, 80, 112
    ACC = 144
    QF = 176
    ST = 192
    PF = 200
    TR = 204
    M_, L_, T0, T1, AL, MC = 236, 237, 238, 239, 240, 241
    VKOFF, VVOFF = 242, 243
    WO = 244
    W2 = 252
    e("  s_cmp_ge_u32 s2, 256")
    e("  s_cbranch_scc1 K_END2" if OPT["prof"] else "  s_cbranch_scc1 K_END")
    e("  s_load_dwordx16 s[4:19], s[0:1], 0")
    e("  s_load_dwordx2 s[24:25], s[0:1], 80")
    e("  v_and_b32 v1, 63, v0")
    e("  v_lshrrev_b32 v2, 6, v0")
    e("  v_and_b32 v3, 15, v1")
    e("  v_lshrrev_b32 v4, 4, v1")
    e("  v_mov_b32 v248, 0")
    e("  v_readfirstlane_b32 s3, v2")
    def derive():
        e(f"  s_and_b32 s{SG}, s2, 7")
        e(f"  s_lshr_b32 s{SR}, s2, 3")
        e(f"  s_and_b32 s{SNO}, s{SR}, 7")
        e(f"  s_lshl_b32 s{SCG}, s{SG}, 5")
        e(f"  s_add_u32 s{SCG}, s{SCG}, s{SR}")
        e(f"  s_lshr_b32 s{SHC}, s{SR}, 3")
        e(f"  s_lshl_b32 s{SHC}, s{SHC}, 6")
        e(f"  s_lshl_b32 s74, s{SG}, 3")
        e(f"  s_add_u32 s{SHC}, s{SHC}, s74")
        e(f"  s_add_u32 s{SHC}, s{SHC}, s{SNO}")
        e(f"  s_lshr_b32 s{SB}, s{SR}, 4")
        e(f"  s_and_b32 s{SSPL}, s{SR}, 15")
        e(f"  s_and_b32 s{SNC}, s2, 7")
        e(f"  s_lshr_b32 s{SHEAD}, s{SR}, 3")
        e(f"  s_lshl_b32 s74, s{SG}, 2")
        e(f"  s_add_u32 s{SHEAD}, s{SHEAD}, s74")
        if OPT["map"]:
            e(f"  s_lshr_b32 s{SB}, s2, 7")
            e(f"  s_lshr_b32 s{SG}, s2, 4")
            e(f"  s_and_b32 s{SG}, s{SG}, 7")
            e(f"  s_and_b32 s{SSPL}, s2, 15")
        e(f"  s_lshl_b32 s93, s{SB}, 3")
        e(f"  s_add_u32 s93, s93, s{SG}")
        e(f"  s_mul_i32 s93, s93, {OPT['nsub']}")
        e(f"  s_and_b32 s74, s3, {OPT['nsub']-1}")
        e(f"  s_add_u32 s93, s93, s74")
        e(f"  s_lshl_b32 s93, s93, 8")
        e(f"  s_add_u32 s93, s93, {WS_PC}")
        e(f"  s_mul_i32 s92, s74, {(1024-16*OPT['ns'])//OPT['nsub']}")
        e(f"  s_add_u32 s92, s92, {16*OPT['ns']}")
        e(f"  s_mul_i32 s94, s{SSPL}, {OPT['ns']}")
        e("  s_mov_b32 s95, 0")
    derive()
    e(f"  s_lshl_b32 s74, s{SB}, 3")
    e(f"  s_add_u32 s74, s74, s{SG}")
    e("  s_lshl_b32 s74, s74, 23")

    e(f"  s_mov_b32 s{SC}, 0x3e0293ee")
    e(f"  s_mov_b32 s{SP0}, 0x05040100")
    e(f"  s_mov_b32 s{SP1}, 0x07060302")
    e("  s_lshl_b32 s75, s3, 1")
    e(f"  s_sub_u32 s{IDXA}, s75, 2")
    e(f"  s_sub_u32 s{IDXB}, s75, 1")
    if OPT["nbuf"] == 1:
        e(f"  s_add_u32 s{IDXA}, s3, s94")
        if OPT["nw"] < 8:
            e(f"  s_cmp_ge_u32 s3, {OPT['nw']}")
            e(f"  s_cselect_b32 s{IDXA}, 64, s{IDXA}")
    e("  v_and_b32 v5, 3, v3")
    e("  v_lshrrev_b32 v6, 2, v3")
    e("  v_lshl_add_u32 v5, v5, 2, v6")
    e("  v_lshlrev_b32 v5, 8, v5")
    e(f"  v_lshl_add_u32 v{VKOFF}, v4, 4, v5")
    e(f"  v_lshlrev_b32 v{VVOFF}, 4, v1")
    if OPT["kx"]:
        e(f"  v_lshlrev_b32 v{VKOFF}, 4, v1")
    e("  s_waitcnt lgkmcnt(0)")
    e(f"  s_mov_b32 s75, {WS_EP}")
    e("  s_load_dword s26, s[24:25], s75")
    srd(SX, 4, 5, 2048)
    srd(SWQ, 10, 11, 512 * 4096 * 2)
    srd(SWS, 24, 25, WS_SIZE)
    e(f"  s_add_u32 s{SK}, s6, s74")
    e(f"  s_addc_u32 s{SK+1}, s7, 0")
    e(f"  s_and_b32 s{SK+1}, s{SK+1}, 0xffff")
    if OPT['ilv']:
        e(f"  s_lshl_b32 s75, s{SSPL}, 13")
        e(f"  s_sub_u32 s{SK+2}, {8<<20}, s75")
    else:
        e(f"  s_mov_b32 s{SK+2}, {8<<20}")
    e(f"  s_mov_b32 s{SK+3}, 0x00020000")
    e(f"  s_add_u32 s{SV}, s8, s74")
    e(f"  s_addc_u32 s{SV+1}, s9, 0")
    e(f"  s_and_b32 s{SV+1}, s{SV+1}, 0xffff")
    e(f"  s_mov_b32 s{SV+2}, s{SK+2}")
    e(f"  s_mov_b32 s{SV+3}, 0x00020000")
    e("  s_movk_i32 s71, 4096")
    e("  s_and_b32 s75, s2, 0x78")
    e("  s_or_b32 s75, s75, s3")
    e("  s_cmp_lg_u32 s75, 0")
    e("  s_cbranch_scc1 K_NOINIT")
    e("  s_lshr_b32 s75, s2, 7")
    e("  s_lshl_b32 s75, s75, 3")
    e("  s_and_b32 s76, s2, 7")
    e("  s_add_u32 s75, s75, s76")
    e(f"  s_mul_i32 s75, s75, {OPT['nsub']*256}")
    e(f"  s_add_u32 s75, s75, {WS_PC}")
    e("  v_mov_b32 v5, 0")
    e("  v_lshlrev_b32 v6, 8, v1")
    e(f"  s_mov_b64 exec, {(1<<OPT['nsub'])-1}")
    e(f"  buffer_store_dword v5, v6, s[{SWS}:{SWS+3}], s75 offen sc1")
    e("  s_mov_b64 exec, -1")
    e("K_NOINIT:")
    if OPT["warm"]:
        e(f"  s_lshl_b32 s75, s{SCG}, 6")
        e(f"  s_add_u32 s75, s75, {WS_QG}")
        e("  s_load_dword s98, s[24:25], s75")
        e("  s_add_u32 s75, s75, 16384")
        e("  s_load_dword s99, s[24:25], s75")
    stamp(0)
    if OPT["prof"] >= 3:
        e("  v_mov_b32 v251, 0")
        e("  s_mov_b32 m0, 0")
        tl(OPT["prof"])
    F1 = max(OPT["f1"], OPT["pre0"])
    e("  v_lshlrev_b32 v5, 4, v1")
    e(f"  buffer_load_dwordx4 v[204:207], v5, s[{SX}:{SX+3}], 0 offen")
    e(f"  buffer_load_dwordx4 v[208:211], v5, s[{SX}:{SX+3}], 0 offen offset:1024")
    if OPT["xb"]:
        e("  s_barrier")
    e("  v_lshrrev_b32 v6, 2, v0")
    e("  v_and_b32 v7, 3, v0")
    e("  v_lshlrev_b32 v8, 13, v6")
    e("  v_lshl_add_u32 v8, v7, 3, v8")
    e(f"  s_lshl_b32 s75, s{SCG}, 5")
    e("  v_add_u32 v8, s75, v8")
    for i in range(4):
        if i == 0:
            e(f"  buffer_load_dwordx2 v[212:213], v8, s[{SWQ}:{SWQ+3}], 0 offen")
        else:
            e(f"  v_add_u32 v8, 0x100000, v8")
            e(f"  buffer_load_dwordx2 v[{212+2*i}:{213+2*i}], v8, s[{SWQ}:{SWQ+3}], 0 offen")
    def kchunk_l(KR, vo):
        r=[]
        if OPT["kx"]:
            for j in range(8):
                so = "0" if j < 4 else "s71"
                r.append(f"  buffer_load_dwordx4 v[{KR+4*j}:{KR+4*j+3}], v{vo}, s[{SK}:{SK+3}], {so} offen offset:{(j&3)*1024}{nt}")
            return r
        for t in range(2):
            for i in range(4):
                so = "0" if t == 0 else "s71"
                r.append(f"  buffer_load_dwordx4 v[{KR+16*t+4*i}:{KR+16*t+4*i+3}], v{vo}, s[{SK}:{SK+3}], {so} offen offset:{i*64}{POL['k']}")
        return r
    def vchunk_l(VR, vo):
        r=[]
        for j in range(8):
            so = "0" if j < 4 else "s71"
            r.append(f"  buffer_load_dwordx4 v[{VR+4*j}:{VR+4*j+3}], v{vo}, s[{SV}:{SV+3}], {so} offen offset:{(j&3)*1024}{POL['v']}")
        return r
    def kchunk(KR, vo):
        for l in kchunk_l(KR, vo): e(l)
    def vchunk(VR, vo):
        for l in vchunk_l(VR, vo): e(l)
    def blkoff(sidx):
        if OPT["rot"]:
            e(f"  s_add_u32 s75, s{sidx}, s73")
            e("  s_and_b32 s75, s75, 63")
            e(f"  s_lshl_b32 s75, s75, {BS}")
            e(f"  s_cmp_lt_u32 s{sidx}, 64")
            e("  s_cselect_b32 s75, s75, 0x100000")
        else:
            e(f"  s_lshl_b32 s75, s{sidx}, {BS}")
    def loads(KR, VR, sidx):
        blkoff(sidx)
        e(f"  v_add_u32 v5, s75, v{VKOFF}")
        e(f"  v_add_u32 v6, s75, v{VVOFF}")
        kchunk(KR, 5)
        vchunk(VR, 6)
    def wo_loads():
        e("  v_lshlrev_b32 v14, 10, v12")
        e("  v_lshl_add_u32 v14, v13, 4, v14")
        if not OPT["mf"]:
            e(f"  s_lshl_b32 s75, s{SNO}, 7")
            e("  v_add_u32 v15, s75, v14")
            e(f"  s_lshl_b32 s75, s{SHEAD}, 17")
            e("  v_add_u32 v15, s75, v15")
            e(f"  buffer_load_dwordx4 v[{WO}:{WO+3}], v15, s[{SWO}:{SWO+3}], 0 offen")
            e("  v_add_u32 v15, 0x10000, v15")
            e(f"  buffer_load_dwordx4 v[{WO+4}:{WO+7}], v15, s[{SWO}:{SWO+3}], 0 offen")
        else:
            lab = f"K_WOS{len(out)}"
            e("  s_cmp_ge_u32 s3, 4")
            e(f"  s_cbranch_scc1 {lab}")
            e("  v_lshlrev_b32 v15, 13, v4")
            e("  v_lshl_add_u32 v15, v3, 2, v15")
            e(f"  s_lshl_b32 s75, s{SHEAD}, 17")
            e(f"  s_lshl_b32 s76, s{SNO}, 7")
            e("  s_add_u32 s75, s75, s76")
            e("  s_lshr_b32 s76, s3, 1")
            e("  s_lshl_b32 s76, s76, 6")
            e("  s_add_u32 s75, s75, s76")
            for ks in range(4):
                for jh in range(2):
                    for j in range(4):
                        e(f"  buffer_load_dword v{80+ks*8+jh*4+j}, v15, s[{SWO}:{SWO+3}], s75 offen offset:{j*1024}")
                    if not (ks == 3 and jh == 1):
                        e(f"  s_add_u32 s75, s75, {4096 if jh == 0 else 32768-4096}")
            e(f"{lab}:")
        e("  s_lshr_b32 s75, s2, 3")
        e("  s_lshl_b32 s75, s75, 16")
        e("  v_add_u32 v15, s75, v14")
        e(f"  s_lshl_b32 s75, s{SNC}, 7")
        e("  v_add_u32 v15, s75, v15")
        e(f"  buffer_load_dwordx4 v[{W2}:{W2+3}], v15, s[{SW2}:{SW2+3}], 0 offen")
    e("  v_lshrrev_b32 v12, 3, v0")
    e("  v_and_b32 v13, 7, v0")
    if OPT["rot"]:
        e(f"  s_mul_i32 s73, s2, {OPT['rot']}")
    blkoff(IDXA)
    e(f"  v_add_u32 v224, s75, v{VKOFF}")
    e(f"  v_add_u32 v225, s75, v{VVOFF}")
    pl = kchunk_l(KA, 224) + vchunk_l(VA, 225)
    PRE0 = OPT["pre0"]
    if OPT["bar0"] and PRE0:
        e("  s_barrier")
    for c in range(PRE0):
        e(pl[c])
    X = 144
    e(f"  s_waitcnt vmcnt({4+PRE0})")
    tl(4)
    for b in range(2):
        for c in range(4):
            e(f"  v_lshlrev_b32 v{X+8*b+2*c}, 16, v{204+4*b+c}")
            e(f"  v_and_b32 v{X+1+8*b+2*c}, 0xffff0000, v{204+4*b+c}")
    for b in range(2):
        t = 160 + 4 * b
        e(f"  v_pk_add_f32 v[{t}:{t+1}], v[{X+8*b}:{X+8*b+1}], v[{X+8*b+2}:{X+8*b+3}]")
        e(f"  v_pk_add_f32 v[{t+2}:{t+3}], v[{X+8*b+4}:{X+8*b+5}], v[{X+8*b+6}:{X+8*b+7}]")
    for b in range(2):
        t = 160 + 4 * b
        e(f"  v_pk_add_f32 v[{t}:{t+1}], v[{t}:{t+1}], v[{t+2}:{t+3}]")
    e("  v_add_f32 v160, v160, v161")
    e("  v_add_f32 v161, v164, v165")
    wave_sum([160, 161], [162, 163])
    e("  v_mul_f32 v160, 0x3b000000, v160")
    e("  v_mul_f32 v161, 0x3b000000, v161")
    bsel = [" op_sel_hi:[1,0]", " op_sel:[0,1] op_sel_hi:[1,1]"]
    for b in range(2):
        for c in range(4):
            t = 168 + 8 * b + 2 * c
            e(f"  v_pk_add_f32 v[{t}:{t+1}], v[{X+8*b+2*c}:{X+8*b+2*c+1}], v[160:161]{bsel[b]} neg_lo:[0,1] neg_hi:[0,1]")
    for b in range(2):
        t = 168 + 8 * b
        e(f"  v_pk_mul_f32 v[{164+2*b}:{165+2*b}], v[{t}:{t+1}], v[{t}:{t+1}]")
    for c in range(1, 4):
        for b in range(2):
            t = 168 + 8 * b + 2 * c
            e(f"  v_pk_fma_f32 v[{164+2*b}:{165+2*b}], v[{t}:{t+1}], v[{t}:{t+1}], v[{164+2*b}:{165+2*b}]")
    e("  v_add_f32 v164, v164, v165")
    e("  v_add_f32 v165, v166, v167")
    wave_sum([164, 165], [162, 163])
    e("  v_mul_f32 v164, 0x3b000000, v164")
    e("  v_mul_f32 v165, 0x3b000000, v165")
    for b in range(2):
        round_bf16(164 + b, 164 + b)
        e(f"  v_add_f32 v{164+b}, 0x3727c5ac, v{164+b}")
        round_bf16(164 + b, 164 + b)
        e(f"  v_sqrt_f32 v{164+b}, v{164+b}")
        e("  s_nop 0")
        round_bf16(164 + b, 164 + b)
        e(f"  v_rcp_f32 v{164+b}, v{164+b}")
        round_bf16(160 + b, 160 + b)
    for b in range(2):
        for c in range(4):
            r = X + 8 * b + 2 * c
            e(f"  v_pk_add_f32 v[{r}:{r+1}], v[{r}:{r+1}], v[160:161]{bsel[b]} neg_lo:[0,1] neg_hi:[0,1]")
        for c in range(4):
            r = X + 8 * b + 2 * c
            e(f"  v_cvt_pk_bf16_f32 v{168+c}, v{r}, v{r+1}")
        for c in range(4):
            r = X + 8 * b + 2 * c
            e(f"  v_lshlrev_b32 v{r}, 16, v{168+c}")
            e(f"  v_and_b32 v{r+1}, 0xffff0000, v{168+c}")
        for c in range(4):
            r = X + 8 * b + 2 * c
            e(f"  v_pk_mul_f32 v[{r}:{r+1}], v[{r}:{r+1}], v[164:165]{bsel[b]}")
        for c in range(4):
            r = X + 8 * b + 2 * c
            e(f"  v_cvt_pk_bf16_f32 v{168+c}, v{r}, v{r+1}")
        for c in range(4):
            r = X + 8 * b + 2 * c
            e(f"  v_lshlrev_b32 v{r}, 16, v{168+c}")
            e(f"  v_and_b32 v{r+1}, 0xffff0000, v{168+c}")
    e("  v_lshlrev_b32 v5, 5, v1")
    for b in range(2):
        e(f"  ds_write_b128 v5, v[{X+8*b}:{X+8*b+3}] offset:{L_XN + b*2048}")
        e(f"  ds_write_b128 v5, v[{X+8*b+4}:{X+8*b+7}] offset:{L_XN + b*2048 + 16}")
    e("  s_waitcnt lgkmcnt(0)")
    e("  s_add_u32 s26, s26, 1")
    e("  v_lshrrev_b32 v5, 2, v0")
    e("  v_lshlrev_b32 v5, 2, v5")
    for i in range(4):
        e(f"  ds_read2st64_b32 v[{168+2*i}:{169+2*i}], v5 offset0:{(L_XN + i*512)//256} offset1:{(L_XN + i*512 + 2048)//256}")
    tl(4)
    e(f"  s_waitcnt vmcnt({PRE0}) lgkmcnt(0)")
    tl(4)
    for c in range(PRE0, F1):
        e(pl[c])
    def pk_part(w, xr, acc0, acc1, first):
        e(f"  v_lshlrev_b32 v160, 16, v{w}")
        e(f"  v_and_b32 v161, 0xffff0000, v{w}")
        if first:
            e(f"  v_pk_mul_f32 v[{acc0}:{acc0+1}], v[160:161], v[{xr}:{xr+1}] op_sel_hi:[1,0]")
            e(f"  v_pk_mul_f32 v[{acc1}:{acc1+1}], v[160:161], v[{xr}:{xr+1}] op_sel:[0,1] op_sel_hi:[1,1]")
        else:
            e(f"  v_pk_fma_f32 v[{acc0}:{acc0+1}], v[160:161], v[{xr}:{xr+1}], v[{acc0}:{acc0+1}] op_sel_hi:[1,0,1]")
            e(f"  v_pk_fma_f32 v[{acc1}:{acc1+1}], v[160:161], v[{xr}:{xr+1}], v[{acc1}:{acc1+1}] op_sel:[0,1,0] op_sel_hi:[1,1,1]")
    for i in range(4):
        for c in range(2):
            pk_part(212 + 2 * i + c, 168 + 2 * i, 180 + 2 * c, 184 + 2 * c, i == 0)
    dpp_steps(list(range(180, 188)), ["row_ror:4", "row_ror:8"])
    swap_steps(list(range(180, 188)), list(range(204, 212)))
    e("  s_mul_i32 s75, s3, 192")
    e("  v_lshlrev_b32 v5, 4, v1")
    e("  v_add_u32 v5, s75, v5")
    e("  s_mov_b64 exec, 0xf")
    e(f"  ds_write_b128 v5, v[180:183] offset:{L_QP}")
    e(f"  ds_write_b128 v5, v[184:187] offset:{L_QP+64}")
    e("  s_mov_b64 exec, -1")
    e("  s_waitcnt lgkmcnt(0)")
    tl(4)
    e("  s_barrier")
    e("  s_cmp_lg_u32 s3, 0")
    e("  s_cbranch_scc1 K_B2")
    e("  v_lshlrev_b32 v5, 3, v1")
    e("  s_mov_b64 exec, 0xffff")
    for w in range(8):
        e(f"  ds_read_b64 v[{160+2*w}:{161+2*w}], v5 offset:{L_QP + w*192}")
    e("  v_lshrrev_b32 v6, 3, v1")
    e("  v_lshlrev_b32 v6, 14, v6")
    e("  v_and_b32 v7, 7, v1")
    e("  v_lshl_add_u32 v6, v7, 3, v6")
    e(f"  s_lshl_b32 s75, s{SCG}, 6")
    e(f"  s_add_u32 s75, s75, {WS_QG}")
    e("  v_add_u32 v6, s75, v6")
    e("  v_mov_b32 v8, 8")
    e("  v_mov_b32 v9, 0")
    e("  v_mov_b32 v10, 8")
    e(f"  v_mov_b32 v11, {L_CNT}")
    e("  s_waitcnt lgkmcnt(0)")
    e("  v_pk_add_f32 v[160:161], v[160:161], v[162:163]")
    e("  v_pk_add_f32 v[164:165], v[164:165], v[166:167]")
    e("  v_pk_add_f32 v[168:169], v[168:169], v[170:171]")
    e("  v_pk_add_f32 v[172:173], v[172:173], v[174:175]")
    e("  v_pk_add_f32 v[160:161], v[160:161], v[164:165]")
    e("  v_pk_add_f32 v[168:169], v[168:169], v[172:173]")
    e("  v_pk_add_f32 v[160:161], v[160:161], v[168:169]")
    e("  v_cvt_pk_bf16_f32 v160, v160, v161")
    e("  v_mov_b32 v161, s26")
    e(f"  buffer_store_dwordx2 v[160:161], v6, s[{SWS}:{SWS+3}], 0 offen sc1")
    e("  ds_write_b96 v11, v[8:10]")
    e("  s_mov_b64 exec, -1")
    e("K_B2:")
    tl(4)
    if OPT["bar2"]:
        e("  s_barrier")
    F2 = max(F1, OPT["f2"])
    for c in range(F1, F2):
        e(pl[c])
    e(f"  s_lshl_b32 s75, s{SB}, 14")
    e(f"  s_lshl_b32 s76, s{SG}, 11")
    e("  s_add_u32 s75, s75, s76")
    e("  s_lshl_b32 s76, s3, 8")
    e("  s_add_u32 s75, s75, s76")
    e(f"  s_add_u32 s75, s75, {WS_QG}")
    e("  s_lshl_b32 s76, s3, 7")
    e("  v_lshlrev_b32 v6, 2, v1")
    e("  v_add_u32 v6, s76, v6")
    e(f"  s_mov_b32 s74, {OPT['bnd']:#x}")
    PB = [4, 28, 44, 80]
    tl(4)
    e("K_SP:")
    for i, b_ in enumerate(PB):
        e(f"  s_load_dwordx16 s[{b_}:{b_+15}], s[24:25], s75 offset:{64*i} glc")
    e("  s_waitcnt lgkmcnt(0)")
    prs = [b_ + 2*k for b_ in PB for k in range(8)]
    e(f"  s_and_b64 s[76:77], s[{prs[0]}:{prs[0]+1}], s[{prs[1]}:{prs[1]+1}]")
    e(f"  s_or_b64 s[78:79], s[{prs[0]}:{prs[0]+1}], s[{prs[1]}:{prs[1]+1}]")
    for r in prs[2:]:
        e(f"  s_and_b64 s[76:77], s[76:77], s[{r}:{r+1}]")
        e(f"  s_or_b64 s[78:79], s[78:79], s[{r}:{r+1}]")
    e("  s_xor_b32 s77, s77, s26")
    e("  s_xor_b32 s79, s79, s26")
    e("  s_or_b32 s77, s77, s79")
    e("  s_cmp_eq_u32 s77, 0")
    e("  s_cbranch_scc1 K_SPD")
    e("  s_sub_u32 s74, s74, 1")
    e("  s_cmp_lg_u32 s74, 0")
    e("  s_cbranch_scc1 K_SP")
    e("K_SPD:")
    tl(4)
    for k, r in enumerate(prs):
        e(f"  v_writelane_b32 v5, s{r}, {k}")
    e("  s_mov_b64 exec, 0xffffffff")
    e(f"  ds_write_b32 v6, v5 offset:{L_Q}")
    e("  s_mov_b64 exec, -1")
    e("  s_waitcnt lgkmcnt(0)")
    e("  s_barrier")
    e("K_B3:")
    tl(4)
    e("  s_load_dwordx16 s[4:19], s[0:1], 0")
    e("  s_load_dwordx2 s[96:97], s[0:1], 64")
    for c in range(F2, len(pl)):
        e(pl[c])
    e("  v_and_b32 v5, 3, v3")
    e("  v_lshlrev_b32 v5, 8, v5")
    e("  v_lshl_add_u32 v5, v4, 4, v5")
    for i in range(4):
        e(f"  ds_read_b128 v[{QF+4*i}:{QF+4*i+3}], v5 offset:{L_Q + i*64}")
    derive()
    for r in range(32):
        e(f"  v_mov_b32 v{ACC+r}, 0")
    e(f"  v_mov_b32 v{M_}, 0xf149f2ca")
    e(f"  v_mov_b32 v{L_}, 0")
    e(f"  v_mov_b32 v7, {L_CNT}")
    e("  v_mov_b32 v8, 1")
    e("  s_waitcnt lgkmcnt(0)")
    srd(SX, 4, 5, 2048)
    srd(SW1, 16, 17, 512 * 1792 * 2)
    srd(SWO, 12, 13, 4096 * 512 * 2)
    srd(SW2, 18, 19, 1792 * 512 * 2)
    srd(SOUT, 96, 97, 2048)
    if OPT["warmp"]:
        e("  v_mov_b32 v10, 0")
        e("  s_mov_b64 exec, 1")
        if OPT["warmp"] & 1:
            e(f"  buffer_load_dword v249, v10, s[{SWS}:{SWS+3}], s93 offen sc1")
        if OPT["warmp"] & 2:
            e(f"  s_mov_b32 s75, {16*OPT['ns']*8192}")
            e(f"  buffer_load_dword v249, v10, s[{SK}:{SK+3}], s75 offen nt")
            e(f"  buffer_load_dword v250, v10, s[{SV}:{SV+3}], s75 offen nt")
        e("  s_mov_b64 exec, -1")
    e("  s_mov_b32 s27, 2")
    def x_loads(sfx):
        e("  s_cmp_lg_u32 s27, 2")
        e(f"  s_cbranch_scc1 K_XL{sfx}")
        e("  s_mov_b32 s27, 3")
        e("  v_lshrrev_b32 v9, 1, v0")
        e("  v_and_b32 v10, 1, v0")
        e("  s_movk_i32 s75, 3584")
        e("  v_mul_lo_u32 v11, v9, s75")
        e("  v_lshl_add_u32 v11, v10, 3, v11")
        e(f"  s_lshl_b32 s75, s{SHC}, 4")
        e("  v_add_u32 v11, s75, v11")
        e(f"  buffer_load_dwordx2 v[244:245], v11, s[{SW1}:{SW1+3}], 0 offen")
        e(f"  v_add_u32 v11, {256*3584}, v11")
        e(f"  buffer_load_dwordx2 v[246:247], v11, s[{SW1}:{SW1+3}], 0 offen")
        wo_loads()
        e(f"K_XL{sfx}:")

    def h_phase(sfx):
        e("  s_cmp_eq_u32 s27, 0")
        e(f"  s_cbranch_scc1 K_HSKP{sfx}")
        e("  s_sub_u32 s27, s27, 2")
        e("  s_cmp_eq_u32 s27, 1")
        e(f"  s_cbranch_scc1 K_HSKP{sfx}")
        e("  s_mov_b32 s27, 0")
        e(f"  s_cmp_ge_u32 s{SHC}, 224")
        e(f"  s_cbranch_scc1 K_HSKP{sfx}")
        e("  v_lshrrev_b32 v5, 1, v0")
        e("  v_lshlrev_b32 v5, 2, v5")
        for i in range(2):
            e(f"  ds_read2st64_b32 v[{204+2*i}:{205+2*i}], v5 offset0:{(L_XN + i*1024)//256} offset1:{(L_XN + i*1024 + 2048)//256}")
        e("  s_waitcnt lgkmcnt(0)")
        A = 212
        for i in range(2):
            for c in range(2):
                w = 244 + 2*i + c
                xr = 204 + 2*i
                a0, a1 = A + 2*c, A + 4 + 2*c
                e(f"  v_lshlrev_b32 v208, 16, v{w}")
                e(f"  v_and_b32 v209, 0xffff0000, v{w}")
                if i == 0:
                    e(f"  v_pk_mul_f32 v[{a0}:{a0+1}], v[208:209], v[{xr}:{xr+1}] op_sel_hi:[1,0]")
                    e(f"  v_pk_mul_f32 v[{a1}:{a1+1}], v[208:209], v[{xr}:{xr+1}] op_sel:[0,1] op_sel_hi:[1,1]")
                else:
                    e(f"  v_pk_fma_f32 v[{a0}:{a0+1}], v[208:209], v[{xr}:{xr+1}], v[{a0}:{a0+1}] op_sel_hi:[1,0,1]")
                    e(f"  v_pk_fma_f32 v[{a1}:{a1+1}], v[208:209], v[{xr}:{xr+1}], v[{a1}:{a1+1}] op_sel:[0,1,0] op_sel_hi:[1,1,1]")
        dpp_steps(list(range(A, A+8)), ["quad_perm:[2,3,0,1]", "row_ror:4", "row_ror:8"])
        swap_steps(list(range(A, A+8)), list(range(220, 228)))
        e("  s_mul_i32 s75, s3, 192")
        e("  v_lshlrev_b32 v5, 4, v1")
        e("  v_add_u32 v5, s75, v5")
        e("  s_mov_b64 exec, 0x3")
        e(f"  ds_write_b128 v5, v[{A}:{A+3}] offset:{L_QP+128}")
        e(f"  ds_write_b128 v5, v[{A+4}:{A+7}] offset:{L_QP+160}")
        e("  s_mov_b64 exec, 1")
        e(f"  ds_add_rtn_u32 v6, v7, v8 offset:4")
        e("  s_mov_b64 exec, -1")
        e("  s_waitcnt lgkmcnt(0)")
        e("  v_readfirstlane_b32 s75, v6")
        e("  s_cmp_lg_u32 s75, 7")
        e(f"  s_cbranch_scc1 K_HSKP{sfx}")
        e("  v_lshlrev_b32 v5, 3, v1")
        e("  s_mov_b64 exec, 0xff")
        for w in range(8):
            e(f"  ds_read_b64 v[{204+2*w}:{205+2*w}], v5 offset:{L_QP + w*192 + 128}")
        e("  v_lshrrev_b32 v6, 2, v1")
        e("  s_movk_i32 s75, 7168")
        e("  v_mul_lo_u32 v6, v6, s75")
        e("  v_and_b32 v9, 3, v1")
        e("  v_lshl_add_u32 v6, v9, 3, v6")
        e(f"  s_lshl_b32 s75, s{SHC}, 5")
        e(f"  s_add_u32 s75, s75, {WS_HG}")
        e("  s_waitcnt lgkmcnt(0)")
        e("  v_pk_add_f32 v[204:205], v[204:205], v[206:207]")
        e("  v_pk_add_f32 v[208:209], v[208:209], v[210:211]")
        e("  v_pk_add_f32 v[212:213], v[212:213], v[214:215]")
        e("  v_pk_add_f32 v[216:217], v[216:217], v[218:219]")
        e("  v_pk_add_f32 v[204:205], v[204:205], v[208:209]")
        e("  v_pk_add_f32 v[212:213], v[212:213], v[216:217]")
        e("  v_pk_add_f32 v[204:205], v[204:205], v[212:213]")
        e("  v_max_f32 v204, 0, v204")
        e("  v_max_f32 v205, 0, v205")
        e("  v_cvt_pk_bf16_f32 v204, v204, v205")
        e("  v_mov_b32 v205, s26")
        e(f"  buffer_store_dwordx2 v[204:205], v6, s[{SWS}:{SWS+3}], s75 offen sc1")
        e("  s_mov_b64 exec, -1")
        e(f"K_HSKP{sfx}:")
    def h_loads():
        e("  s_movk_i32 s75, 7168")
        e(f"  buffer_load_dwordx2 v[244:245], v248, s[{SWS}:{SWS+3}], 0 offen sc1")
        e(f"  buffer_load_dwordx2 v[246:247], v248, s[{SWS}:{SWS+3}], s75 offen sc1")

    def compute(KR, VR, vk, vv):
        e(f"  s_waitcnt vmcnt({vk})")
        tl()
        for t in range(2):
            for i in range(4):
                c = "0" if i == 0 else f"v[{ST+4*t}:{ST+4*t+3}]"
                e(f"  v_mfma_f32_16x16x32_bf16 v[{ST+4*t}:{ST+4*t+3}], v[{KR+16*t+4*i}:{KR+16*t+4*i+3}], v[{QF+4*i}:{QF+4*i+3}], {c}")
        e("  s_nop 7")
        e("  s_nop 0")
        e(f"  v_max3_f32 v{T0}, v{ST}, v{ST+1}, v{ST+2}")
        e(f"  v_max3_f32 v{T1}, v{ST+3}, v{ST+4}, v{ST+5}")
        e(f"  v_max3_f32 v{T0}, v{T0}, v{ST+6}, v{ST+7}")
        e(f"  v_max_f32 v{T0}, v{T0}, v{T1}")
        e(f"  v_mov_b32 v{T1}, v{T0}")
        e("  s_nop 1")
        e(f"  v_permlane16_swap_b32 v{T0}, v{T1}")
        e("  s_nop 1")
        e(f"  v_max_f32 v{T0}, v{T0}, v{T1}")
        e(f"  v_mov_b32 v{T1}, v{T0}")
        e("  s_nop 1")
        e(f"  v_permlane32_swap_b32 v{T0}, v{T1}")
        e("  s_nop 1")
        e(f"  v_max3_f32 v{T0}, v{T0}, v{T1}, v{M_}")
        e(f"  v_sub_f32 v{AL}, v{M_}, v{T0}")
        e(f"  v_mul_f32 v{AL}, s{SC}, v{AL}")
        e(f"  v_exp_f32 v{AL}, v{AL}")
        e(f"  v_mov_b32 v{M_}, v{T0}")
        e(f"  v_mul_f32 v{MC}, s{SC}, v{T0}")
        for k in range(8):
            e(f"  v_fma_f32 v{ST+k}, v{ST+k}, s{SC}, -v{MC}")
        for k in range(8):
            e(f"  v_exp_f32 v{ST+k}, v{ST+k}")
        e("  s_nop 0")
        e(f"  v_mul_f32 v{L_}, v{L_}, v{AL}")
        for k in range(8):
            e(f"  v_add_f32 v{L_}, v{L_}, v{ST+k}")
        for q in range(4):
            e(f"  v_cvt_pk_bf16_f32 v{PF+q}, v{ST+2*q}, v{ST+2*q+1}")
        for r in range(32):
            e(f"  v_mul_f32 v{ACC+r}, v{ACC+r}, v{AL}")
        e(f"  s_waitcnt vmcnt({vv})")
        tl()
        for t in range(8):
            c = t >> 1
            sel = f"s{SP1}" if (t & 1) else f"s{SP0}"
            for q in range(4):
                e(f"  v_perm_b32 v{TR+4*t+q}, v{VR+4*(2*q+1)+c}, v{VR+4*(2*q)+c}, {sel}")
        e("  s_nop 1")
        for t in range(8):
            e(f"  v_mfma_f32_16x16x32_bf16 v[{ACC+4*t}:{ACC+4*t+3}], v[{TR+4*t}:{TR+4*t+3}], v[{PF}:{PF+3}], v[{ACC+4*t}:{ACC+4*t+3}]")

    def fetch():
        e("  s_mov_b64 exec, 1")
        e("  ds_add_rtn_u32 v9, v7, v8")
        e("  s_mov_b64 exec, -1")
    def getidx(sidx):
        e("  s_waitcnt lgkmcnt(0)")
        e(f"  v_readfirstlane_b32 s{sidx}, v9")

    if OPT["nw"] < 8:
        e(f"  s_cmp_ge_u32 s3, {OPT['nw']}")
        e("  s_cbranch_scc1 K_EXIT")
    def gen_loop(sfx, last):
        if OPT["nbuf"] == 3:
            fetch()
            compute(KA, VA, 24, 16)
            getidx(IDXA)
            loads(KA, VA, IDXA)
            compute(KB, VB, 24, 16)
            e(f"  s_cmp_ge_u32 s{IDXA}, 64")
            e("  s_cbranch_scc1 K_EXIT")
        e(f"K_LOOP{sfx}:")
        if OPT["nbuf"] == 2:
            fetch()
            compute(KA, VA, 24, 16)
            getidx(IDXA)
            loads(KA, VA, IDXA)
            e(f"  s_cmp_ge_u32 s{IDXB}, 64")
            e("  s_cbranch_scc1 K_EXIT")
            fetch()
            compute(KB, VB, 24, 16)
            getidx(IDXB)
            loads(KB, VB, IDXB)
            e(f"  s_cmp_lt_u32 s{IDXA}, 64")
            e(f"  s_cbranch_scc1 K_LOOP{sfx}")
        else:
            NS = OPT["ns"]
            fetch()
            getidx(73)
            if OPT["dup"] > 1:
                e(f"  s_cmp_lt_u32 s73, {OPT['dup']}")
                e(f"  s_cselect_b32 s75, 0, 4096")
                e(f"  s_and_b32 s73, s73, 63")
                e(f"  s_add_u32 s73, s73, s75")
            e(f"  s_cmp_lt_u32 s73, {NS}")
            e(f"  s_cbranch_scc1 K_STA{sfx}")
            e("  v_mov_b32 v9, 1")
            e("  v_mov_b32 v10, 0")
            e("  s_mov_b64 exec, 1")
            e(f"  buffer_atomic_add v9, v10, s[{SWS}:{SWS+3}], s93 offen sc0 sc1")
            e("  s_mov_b64 exec, -1")
            e(f"K_STA{sfx}:")
            compute(KA, VA, 8, 0)
            e(f"  s_cmp_ge_u32 s73, {NS}")
            e(f"  s_cbranch_scc1 K_DY2{sfx}")
            e(f"  s_add_u32 s{IDXA}, s73, s94")
            e(f"  s_branch K_ST2{sfx}")
            e(f"K_DY2{sfx}:")
            e(f"  v_readfirstlane_b32 s{IDXA}, v9")
            e(f"  s_cmp_lt_u32 s{IDXA}, {(1024-16*NS)//OPT['nsub']}")
            e(f"  s_cselect_b32 s{IDXA}, s{IDXA}, 2048")
            e(f"  s_add_u32 s{IDXA}, s{IDXA}, s92")
            e(f"K_ST2{sfx}:")
            if OPT["fifo"]:
                e(f"  s_cmp_ge_u32 s{IDXA}, 1024")
                e(f"  s_cbranch_scc1 K_FD{sfx}")
                e(f"  s_sub_u32 s73, s73, {OPT['fw']}")
                e(f"  s_mov_b32 s74, {OPT['bnd']:#x}")
                e(f"K_FW{sfx}:")
                e("  ds_read_b32 v9, v7 offset:8")
                e("  s_waitcnt lgkmcnt(0)")
                e("  v_readfirstlane_b32 s75, v9")
                e("  s_cmp_ge_u32 s75, s73")
                e(f"  s_cbranch_scc1 K_FD{sfx}")
                if OPT["fsl"]: e(f"  s_sleep {OPT['fsl']}")
                e("  s_sub_u32 s74, s74, 1")
                e("  s_cmp_lg_u32 s74, 0")
                e(f"  s_cbranch_scc1 K_FW{sfx}")
                e(f"K_FD{sfx}:")
            x_loads("L"+sfx)
            loads(KA, VA, IDXA)
            if OPT["fifo"]:
                e("  s_mov_b64 exec, 1")
                e("  ds_add_u32 v7, v8 offset:8")
                e("  s_mov_b64 exec, -1")
            h_phase("L"+sfx)
            e(f"  s_cmp_lt_u32 s{IDXA}, 1024")
            e(f"  s_cbranch_scc1 K_LOOP{sfx}")
        if not last:
            e("  s_branch K_EXIT")
    if OPT["T"]:
        e(f"  s_lshl_b32 s75, s{SB}, 3")
        e(f"  s_add_u32 s75, s75, s{SG}")
        e(f"  s_cmp_lt_u32 s75, {OPT['T']}")
        e("  s_cbranch_scc1 K_LOOPlo")
        POL["k"] = "" if OPT["phi"] & 1 else nt
        POL["v"] = "" if OPT["phi"] & 2 else nt
        gen_loop("hi", False)
        POL["k"] = "" if OPT["plo"] & 1 else nt
        POL["v"] = "" if OPT["plo"] & 2 else nt
        gen_loop("lo", True)
    else:
        gen_loop("", True)
    e("K_EXIT:")
    if OPT["prof"] == 1: stamp(4)
    tl(OPT["prof"])
    tl_dump()
    e("  s_cmp_eq_u32 s27, 0")
    e("  s_cbranch_scc1 K_X0")
    x_loads("E")
    e("  s_mov_b32 s27, 1")
    e("  s_waitcnt vmcnt(0)")
    h_phase("E")
    e("K_X0:")
    e("  s_cmp_ge_u32 s2, 224")
    e("  s_cbranch_scc1 K_HSK")
    e("  v_lshrrev_b32 v5, 1, v12")
    e("  v_lshlrev_b32 v248, 3, v5")
    e("  s_lshr_b32 s75, s2, 3")
    e("  s_lshl_b32 s75, s75, 8")
    e(f"  s_add_u32 s75, s75, {WS_HG}")
    e("  v_add_u32 v248, s75, v248")
    h_loads()
    e("K_HSK:")
    e(f"  v_mov_b32 v{T1}, v{L_}")
    e("  s_nop 1")
    e(f"  v_permlane16_swap_b32 v{L_}, v{T1}")
    e("  s_nop 1")
    e(f"  v_add_f32 v{L_}, v{L_}, v{T1}")
    e(f"  v_mov_b32 v{T1}, v{L_}")
    e("  s_nop 1")
    e(f"  v_permlane32_swap_b32 v{L_}, v{T1}")
    e("  s_nop 1")
    e(f"  v_add_f32 v{L_}, v{L_}, v{T1}")
    e("  v_cmp_gt_u32 vcc, 4, v3")
    e("  s_and_saveexec_b64 s[78:79], vcc")
    e("  v_lshlrev_b32 v5, 11, v2")
    e("  v_lshl_add_u32 v5, v3, 9, v5")
    e("  v_lshl_add_u32 v5, v4, 7, v5")
    e("  s_nop 4")
    for t in range(8):
        for r in range(4):
            e(f"  ds_write_b32 v5, v{ACC+4*t+r} offset:{L_O + (r*8+t)*4}")
    e("  v_cmp_gt_u32 vcc, 4, v1")
    e("  s_and_b64 exec, exec, vcc")
    e("  v_lshlrev_b32 v6, 5, v2")
    e("  v_lshl_add_u32 v6, v3, 3, v6")
    e(f"  ds_write_b32 v6, v{M_} offset:{L_ML}")
    e(f"  ds_write_b32 v6, v{L_} offset:{L_ML+4}")
    e("  s_mov_b64 exec, s[78:79]")
    e("  s_waitcnt lgkmcnt(0)")
    e("  s_barrier")
    e("  v_lshrrev_b32 v5, 7, v0")
    e("  v_and_b32 v6, 127, v0")
    e("  v_lshlrev_b32 v7, 3, v5")
    for w in range(8):
        e(f"  ds_read_b64 v[{160+2*w}:{161+2*w}], v7 offset:{L_ML + w*32}")
    e("  v_lshlrev_b32 v8, 9, v5")
    e("  v_lshl_add_u32 v8, v6, 2, v8")
    for w in range(8):
        e(f"  ds_read_b32 v{176+w}, v8 offset:{L_O + w*2048}")
    e("  s_waitcnt lgkmcnt(0)")
    e("  v_max3_f32 v184, v160, v162, v164")
    e("  v_max3_f32 v185, v166, v168, v170")
    e("  v_max3_f32 v184, v184, v172, v174")
    e("  v_max_f32 v184, v184, v185")
    e("  v_mov_b32 v186, 0")
    e("  v_mov_b32 v187, 0")
    for w in range(8):
        e(f"  v_sub_f32 v185, v{160+2*w}, v184")
        e(f"  v_mul_f32 v185, s{SC}, v185")
        e("  v_exp_f32 v185, v185")
        e("  s_nop 0")
        e(f"  v_fmac_f32 v186, v185, v{161+2*w}")
        e(f"  v_fmac_f32 v187, v185, v{176+w}")
    e(f"  s_lshl_b32 s75, s{SB}, 5")
    e(f"  s_lshl_b32 s76, s{SG}, 2")
    e("  s_add_u32 s75, s75, s76")
    e("  s_lshl_b32 s75, s75, 4")
    e(f"  s_add_u32 s75, s75, s{SSPL}")
    e("  v_lshlrev_b32 v7, 4, v5")
    e("  v_add_u32 v7, s75, v7")
    e("  v_lshlrev_b32 v8, 10, v7")
    e("  v_lshl_add_u32 v8, v6, 3, v8")
    e(f"  s_mov_b32 s75, {WS_OG}")
    e("  v_mov_b32 v188, v187")
    e("  v_mov_b32 v189, s26")
    e(f"  buffer_store_dwordx2 v[188:189], v8, s[{SWS}:{SWS+3}], s75 offen sc1")
    e("  v_cmp_eq_u32 vcc, 0, v6")
    e("  s_and_saveexec_b64 s[78:79], vcc")
    e("  v_lshlrev_b32 v7, 4, v7")
    e("  v_mov_b32 v185, v186")
    e("  v_mov_b32 v186, s26")
    e(f"  s_mov_b32 s75, {WS_MG}")
    e(f"  buffer_store_dwordx3 v[184:186], v7, s[{SWS}:{SWS+3}], s75 offen sc1")
    e("  s_mov_b64 exec, s[78:79]")
    if OPT["prof"] == 1: stamp(5)

    def prod(wregs, vecaddr_rows, accbase, nrows):
        for r in range(16):
            e(f"  v_mov_b32 v{accbase+r}, 0")
        for i in range(nrows):
            for c in range(4):
                w = wregs + 4 * i + c
                e(f"  v_lshlrev_b32 v160, 16, v{w}")
                e(f"  v_and_b32 v161, 0xffff0000, v{w}")
                e(f"  v_fmac_f32 v{accbase+2*c}, v160, v{168+2*i}")
                e(f"  v_fmac_f32 v{accbase+1+2*c}, v161, v{168+2*i}")
                e(f"  v_fmac_f32 v{accbase+8+2*c}, v160, v{169+2*i}")
                e(f"  v_fmac_f32 v{accbase+9+2*c}, v161, v{169+2*i}")
        dpp_steps(list(range(accbase, accbase + 16)), ["row_ror:8"])

    def reduce_store(lbase, label, snc):
        e("  v_lshlrev_b32 v5, 2, v2")
        e("  v_add_u32 v5, v5, v4")
        e("  v_lshlrev_b32 v5, 9, v5")
        e("  v_and_b32 v6, 7, v1")
        e("  v_lshl_add_u32 v5, v6, 5, v5")
        e("  v_and_b32 v6, 8, v1")
        e("  v_cmp_eq_u32 vcc, 0, v6")
        e("  s_and_saveexec_b64 s[78:79], vcc")
        e(f"  ds_write_b128 v5, v[180:183] offset:{lbase}")
        e(f"  ds_write_b128 v5, v[184:187] offset:{lbase+16}")
        e(f"  ds_write_b128 v5, v[188:191] offset:{lbase+256}")
        e(f"  ds_write_b128 v5, v[192:195] offset:{lbase+256+16}")
        e("  s_mov_b64 exec, s[78:79]")
        e("  s_waitcnt lgkmcnt(0)")
        e("  s_barrier")
        e("  s_cmp_ge_u32 s3, 2")
        e(f"  s_cbranch_scc1 {label}")
        e("  v_lshlrev_b32 v5, 2, v0")
        for p in range(32):
            e(f"  ds_read_b32 v{204+p}, v5 offset:{lbase + p*512}")
        e("  s_waitcnt lgkmcnt(0)")
        for p in range(1, 31, 2):
            e(f"  v_add_f32 v{204+p}, v{204+p}, v{205+p}")
        e("  v_add_f32 v204, v204, v235")
        for p in range(1, 31, 2):
            e(f"  v_add_f32 v204, v204, v{204+p}")
        e("  v_lshlrev_b32 v5, 12, v2")
        e("  v_lshl_add_u32 v5, v1, 3, v5")
        e(f"  s_lshl_b32 s76, s{snc}, 9")
        e(f"  s_add_u32 s75, s75, s76")
        e("  v_mov_b32 v205, s26")
        e(f"  buffer_store_dwordx2 v[204:205], v5, s[{SWS}:{SWS+3}], s75 offen sc1")
        e(f"{label}:")

    e("  s_cmp_ge_u32 s2, 224")
    e("  s_cbranch_scc1 K_T4")
    e(f"  s_mov_b32 s74, {OPT['bnd']:#x}")
    e("  s_waitcnt vmcnt(1)")
    e("K_HR:")
    e("  v_cmp_ne_u32 vcc, s26, v245")
    e("  v_cmp_ne_u32 s[78:79], s26, v247")
    e("  s_or_b64 vcc, vcc, s[78:79]")
    e("  s_cmp_eq_u64 vcc, 0")
    e("  s_cbranch_scc1 K_HOK")
    h_loads()
    e("  s_waitcnt vmcnt(0)")
    e("  s_sub_u32 s74, s74, 1")
    e("  s_cmp_lg_u32 s74, 0")
    e("  s_cbranch_scc1 K_HR")
    e("K_HOK:")
    e("  v_and_b32 v5, 1, v12")
    e("  v_cmp_eq_u32 vcc, 1, v5")
    e("  v_lshlrev_b32 v168, 16, v244")
    e("  v_and_b32 v5, 0xffff0000, v244")
    e("  v_lshlrev_b32 v169, 16, v246")
    e("  v_and_b32 v6, 0xffff0000, v246")
    e("  v_cndmask_b32 v168, v168, v5, vcc")
    e("  v_cndmask_b32 v169, v169, v6, vcc")
    prod(W2, None, 180, 1)
    e("  s_lshr_b32 s75, s2, 3")
    e("  s_lshl_b32 s75, s75, 13")
    e(f"  s_add_u32 s75, s75, {WS_GG}")
    reduce_store(L_FP, "K_T3B", SNC)
    e("K_T4:")
    if not OPT["mf"]:
        e("  s_cmp_ge_u32 s3, 4")
        e("  s_cbranch_scc1 K_T6")
        e("  v_lshrrev_b32 v6, 7, v0")
        e("  v_and_b32 v7, 127, v0")
        e("  v_lshlrev_b32 v8, 5, v6")
        e(f"  v_add_u32 v8, s{SHEAD}, v8")
        e("  v_lshlrev_b32 v9, 8, v8")
        e("  v_lshlrev_b32 v10, 14, v8")
        e("  v_lshl_add_u32 v10, v7, 3, v10")
        e(f"  s_mov_b32 s76, {WS_MG}")
        def iss2(sp):
            e(f"  s_mov_b32 s75, {WS_OG + 4096*(sp>>2)}")
            bits = {0:"", 1:" sc1", 2:" sc0", 3:" sc0 sc1", 4:" nt", 5:" sc0 nt"}[OPT["p2"]]
            e(f"  buffer_load_dwordx2 v[{16+2*sp}:{17+2*sp}], v10, s[{SWS}:{SWS+3}], s75 offen offset:{(sp&3)*1024}{bits}")
            e(f"  buffer_load_dwordx3 v[{48+4*sp}:{50+4*sp}], v9, s[{SWS}:{SWS+3}], s76 offen offset:{sp*16}{bits}")
        mpoll("K_P2", 16, iss2, lambda sp: [17+2*sp, 50+4*sp], OPT["thr"])
        if OPT["prof"] == 1: stamp(6)
        M = lambda sp: 48+4*sp
        e(f"  v_max3_f32 v112, v{M(0)}, v{M(1)}, v{M(2)}")
        for sp in range(3, 15, 2):
            e(f"  v_max3_f32 v112, v112, v{M(sp)}, v{M(sp+1)}")
        e(f"  v_max_f32 v112, v112, v{M(15)}")
        e("  v_mov_b32 v113, 0")
        e("  v_mov_b32 v114, 0")
        for sp in range(16):
            e(f"  v_sub_f32 v{M(sp)}, v{M(sp)}, v112")
            e(f"  v_mul_f32 v{M(sp)}, s{SC}, v{M(sp)}")
            e(f"  v_exp_f32 v{M(sp)}, v{M(sp)}")
        e("  s_nop 0")
        for sp in range(16):
            e(f"  v_fmac_f32 v113, v{M(sp)}, v{M(sp)+1}")
            e(f"  v_fmac_f32 v114, v{M(sp)}, v{16+2*sp}")
        e("  v_mov_b32 v49, v113")
        e("  v_mov_b32 v50, v114")
        e("  v_rcp_f32 v49, v49")
        e("  s_nop 0")
        e("  v_mul_f32 v50, v50, v49")
        round_bf16(50, 50)
        e("  v_lshlrev_b32 v8, 2, v0")
        e(f"  ds_write_b32 v8, v50 offset:{L_VEC}")
        e("  s_waitcnt lgkmcnt(0)")
        e("K_T6:")
        e("  s_barrier")
        e("  v_lshlrev_b32 v5, 2, v12")
        e(f"  ds_read_b32 v168, v5 offset:{L_VEC}")
        e(f"  ds_read_b32 v169, v5 offset:{L_VEC+512}")
        e(f"  ds_read_b32 v170, v5 offset:{L_VEC+256}")
        e(f"  ds_read_b32 v171, v5 offset:{L_VEC+512+256}")
        e("  s_waitcnt lgkmcnt(0)")
        prod(WO, None, 180, 2)
        e(f"  s_lshl_b32 s75, s{SHEAD}, 13")
        e(f"  s_add_u32 s75, s75, {WS_SG}")
        reduce_store(L_SP, "K_T6B", SNO)
    else:
        e("  s_cmp_ge_u32 s3, 4")
        e("  s_cbranch_scc1 K_END")
        e("  s_and_b32 s75, s3, 1")
        e("  s_cmp_eq_u32 s75, 1")
        e(f"  s_cselect_b32 s75, s{SP1}, s{SP0}")
        for ks in range(4):
            for q in range(4):
                e(f"  v_perm_b32 v{112+ks*4+q}, v{80+ks*8+2*q+1}, v{80+ks*8+2*q}, s75")
        e("  v_lshrrev_b32 v6, 7, v0")
        e("  v_and_b32 v7, 127, v0")
        e("  v_lshlrev_b32 v8, 5, v6")
        e(f"  v_add_u32 v8, s{SHEAD}, v8")
        e("  v_lshlrev_b32 v9, 8, v8")
        e("  v_lshlrev_b32 v10, 14, v8")
        e("  v_lshl_add_u32 v10, v7, 3, v10")
        e(f"  s_mov_b32 s76, {WS_MG}")
        def iss2(sp):
            e(f"  s_mov_b32 s75, {WS_OG + 4096*(sp>>2)}")
            e(f"  buffer_load_dwordx2 v[{16+2*sp}:{17+2*sp}], v10, s[{SWS}:{SWS+3}], s75 offen offset:{(sp&3)*1024} sc1")
            e(f"  buffer_load_dwordx3 v[{48+4*sp}:{50+4*sp}], v9, s[{SWS}:{SWS+3}], s76 offen offset:{sp*16} sc1")
        e("  v_and_b32 v11, 1, v3")
        e("  v_lshlrev_b32 v11, 8, v11")
        e("  v_lshl_add_u32 v11, v4, 4, v11")
        e("  v_and_b32 v12, 1, v4")
        e("  v_lshlrev_b32 v13, 12, v12")
        e("  v_lshl_add_u32 v13, v3, 4, v13")
        e("  s_lshr_b32 s75, s3, 1")
        e("  s_lshl_b32 s75, s75, 8")
        e("  s_and_b32 s78, s3, 1")
        e("  s_lshl_b32 s78, s78, 3")
        e("  s_add_u32 s75, s75, s78")
        e(f"  s_lshl_b32 s78, s{SNO}, 9")
        e("  s_add_u32 s75, s75, s78")
        e(f"  s_lshl_b32 s78, s{SHEAD}, 13")
        e("  s_add_u32 s75, s75, s78")
        e(f"  s_add_u32 s75, s75, {WS_SG}")
        e("  v_add_u32 v13, s75, v13")
        mpoll("K_P2", 16, iss2, lambda sp: [17+2*sp, 50+4*sp], OPT["thr"])
        if OPT["prof"] == 1: stamp(6)
        M = lambda sp: 48+4*sp
        e(f"  v_max3_f32 v128, v{M(0)}, v{M(1)}, v{M(2)}")
        for sp in range(3, 15, 2):
            e(f"  v_max3_f32 v128, v128, v{M(sp)}, v{M(sp+1)}")
        e(f"  v_max_f32 v128, v128, v{M(15)}")
        e("  v_mov_b32 v129, 0")
        e("  v_mov_b32 v130, 0")
        for sp in range(16):
            e(f"  v_sub_f32 v{M(sp)}, v{M(sp)}, v128")
            e(f"  v_mul_f32 v{M(sp)}, s{SC}, v{M(sp)}")
            e(f"  v_exp_f32 v{M(sp)}, v{M(sp)}")
        e("  s_nop 0")
        for sp in range(16):
            e(f"  v_fmac_f32 v129, v{M(sp)}, v{M(sp)+1}")
            e(f"  v_fmac_f32 v130, v{M(sp)}, v{16+2*sp}")
        e("  v_rcp_f32 v129, v129")
        e("  s_nop 0")
        e("  v_mul_f32 v130, v130, v129")
        e("  v_cvt_pk_bf16_f32 v130, v130, v130")
        e("  v_lshlrev_b32 v8, 1, v0")
        e(f"  ds_write_b16 v8, v130 offset:{L_VEC}")
        e("  s_waitcnt lgkmcnt(0)")
        e("  s_barrier")
        for ks in range(4):
            e(f"  ds_read_b128 v[{132+4*ks}:{135+4*ks}], v11 offset:{L_VEC + ks*64}")
        e("  s_waitcnt lgkmcnt(0)")
        for ks in range(4):
            c = "0" if ks == 0 else "v[148:151]"
            e(f"  v_mfma_f32_16x16x32_bf16 v[148:151], v[{132+4*ks}:{135+4*ks}], v[{112+4*ks}:{115+4*ks}], {c}")
        e("  v_cmp_eq_u32 vcc, 1, v12")
        e("  v_mov_b32 v153, s26")
        e("  s_nop 7")
        e("  s_nop 7")
        e("  v_cndmask_b32 v152, v148, v149, vcc")
        e("  s_mov_b64 exec, 0xffffffff")
        e(f"  buffer_store_dwordx2 v[152:153], v13, s[{SWS}:{SWS+3}], 0 offen sc1")
        e("  s_mov_b64 exec, -1")
    if OPT["prof"] == 1: stamp(7)
    e("  s_cmp_ge_u32 s2, 8")
    e("  s_cbranch_scc1 K_END")
    e("  s_cmp_ge_u32 s3, 4")
    e("  s_cbranch_scc1 K_END")
    def gpoll(label, n, base):
        def iss(k):
            e(f"  s_mov_b32 s75, {base + k*8192}")
            e(f"  buffer_load_dwordx2 v[{16+2*k}:{17+2*k}], v10, s[{SWS}:{SWS+3}], s75 offen sc1")
        mpoll(label, n, iss, lambda k: [17+2*k], None)
        for k in range(1, n):
            e(f"  v_add_f32 v16, v16, v{16+2*k}")
    e("  v_and_b32 v5, 1, v2")
    e("  v_lshlrev_b32 v5, 11, v5")
    e("  v_lshl_add_u32 v5, v1, 2, v5")
    e(f"  s_lshl_b32 s76, s{SNC}, 8")
    e("  v_add_u32 v5, s76, v5")
    e("  v_lshlrev_b32 v10, 1, v5")
    e("  s_cmp_ge_u32 s3, 2")
    e("  s_cbranch_scc1 K_FG")
    e("  v_lshrrev_b32 v6, 1, v5")
    e(f"  buffer_load_ushort v4, v6, s[{SX}:{SX+3}], 0 offen")
    gpoll("K_P3", 32, WS_SG)
    round_bf16(16, 16)
    e("  s_barrier")
    e("  v_lshlrev_b32 v7, 2, v0")
    e(f"  ds_read_b32 v8, v7 offset:{L_GX}")
    e("  s_waitcnt lgkmcnt(0)")
    e("  v_mul_f32 v8, v8, v16")
    round_bf16(8, 8)
    e("  v_lshlrev_b32 v4, 16, v4")
    e("  v_add_f32 v8, v8, v4")
    e("  v_cvt_pk_bf16_f32 v8, v8, v8")
    e(f"  buffer_store_short v8, v6, s[{SOUT}:{SOUT+3}], 0 offen")
    e("  s_or_b32 s75, s2, s3")
    e("  s_cmp_lg_u32 s75, 0")
    e("  s_cbranch_scc1 K_END")
    e("  s_mov_b64 exec, 1")
    e(f"  v_mov_b32 v5, {WS_EP}")
    e("  v_mov_b32 v6, s26")
    e(f"  buffer_store_dword v6, v5, s[{SWS}:{SWS+3}], 0 offen")
    e("  s_branch K_END")
    e("K_FG:")
    gpoll("K_P4", 28, WS_GG)
    round_bf16(16, 16)
    e("  v_mul_f32 v5, 0xbfb8aa3b, v16")
    e("  v_exp_f32 v5, v5")
    e("  s_nop 0")
    e("  v_add_f32 v5, 1.0, v5")
    e("  v_rcp_f32 v5, v5")
    e("  s_nop 0")
    e("  v_mul_f32 v5, v5, v16")
    round_bf16(5, 5)
    e("  v_and_b32 v7, 127, v0")
    e("  v_lshlrev_b32 v7, 2, v7")
    e(f"  ds_write_b32 v7, v5 offset:{L_GX}")
    e("  s_waitcnt lgkmcnt(0)")
    e("  s_barrier")
    e("K_END:")
    dump_stamps()
    e("  s_endpgm")
    e('.section .rodata,"a"')
    e(".p2align 6")
    e(f".amdhsa_kernel {name}")
    e("  .amdhsa_next_free_vgpr 256")
    e("  .amdhsa_next_free_sgpr 102")
    e("  .amdhsa_accum_offset 256")
    e("  .amdhsa_group_segment_fixed_size 0")
    e("  .amdhsa_kernarg_size 88")
    e("  .amdhsa_user_sgpr_count 2")
    e("  .amdhsa_user_sgpr_kernarg_segment_ptr 1")
    e("  .amdhsa_system_sgpr_workgroup_id_x 1")
    e(".end_amdhsa_kernel")

def main():
    path = f"cdna_kernels/{NAME}.s"
    for a in sys.argv[1:]:
        if "=" in a:
            k, v = a.split("=", 1)
            OPT[k] = (" " + v if v else "") if k == "nt" else int(v)
        else:
            path = a
    e(HEADER.rstrip("\n"))
    e(f"; @launch grid=(256,1,1) block=(512,1,1) lds={LDS_SIZE}")
    e('.amdgcn_target "amdgcn-amd-amdhsa--gfx950"')
    gen()
    open(path, "w").write("\n".join(out) + "\n")

main()
```

```python
import sys

NAME = "recurrent_scan__gqa_block_cached__dense_activation_relu__decode"

HEADER = """; Kernarg layout for this problem (88 bytes, ptrs only, base s[0:1]):
;   offset   0: d_in[0] A_x  shape=(2, 1, 512) dtype=bfloat16 strides=(1024, 1024, 2) contiguous=True
;   offset   8: d_in[1] A_k_cache  shape=(2, 8, 32768, 128) dtype=bfloat16 strides=(67108864, 8388608, 256, 2) contiguous=True
;   offset  16: d_in[2] A_v_cache  shape=(2, 8, 32768, 128) dtype=bfloat16 strides=(67108864, 8388608, 256, 2) contiguous=True
;   offset  24: d_in[3] A_wq  shape=(512, 4096) dtype=bfloat16 strides=(8192, 2) contiguous=True
;   offset  32: d_in[4] A_wo  shape=(4096, 512) dtype=bfloat16 strides=(1024, 2) contiguous=True
;   offset  40: d_in[5] B_x  shape=(2, 1, 512) dtype=bfloat16 strides=(1024, 1024, 2) contiguous=True
;   offset  48: d_in[6] B_w1  shape=(512, 1792) dtype=bfloat16 strides=(3584, 2) contiguous=True
;   offset  56: d_in[7] B_w2  shape=(1792, 512) dtype=bfloat16 strides=(1024, 2) contiguous=True
"""

WS_Q = 0
WS_H = 16384
WS_ML = 32768
WS_O = 65536
WS_P = 1 << 20
WS_G = WS_P + 131072
WS_SIZE = 536870912
WS_QG = 2 << 20
WS_HG = WS_QG + 32768
WS_EP = WS_QG + 65536
WS_QF = WS_QG + 131072
WS_OG = 5 << 20
WS_MG = 6 << 20
WS_SG = WS_MG + 65536
WS_GG = 7 << 20
WS_PC = 3 << 20

L_XN = 0
L_QP = 4096
L_Q = 5632
L_HV = 6656
L_CNT = 7168
L_O = 8192
L_ML = 24576
L_FP = 25600
L_VEC = 0
L_SP = 8192
L_GX = 1024
LDS_SIZE = 41984

OPT = dict(nt=" nt", sleep=1, prof=0, pre0=0, pace=8, bar0=1, wsc=0, thr=2, p2=1, ilv=0, kx=0, nbuf=1, nw=8, kpl=0, vpl=0, T=0, plo=0, phi=0, mf=1, prex=0, qs=0, warm=0, xb=1, f1=8, np=8, sl=8, psl=8, bnd=0x100000, bar2=1, f2=8, rot=0, map=1, ns=64, fake=0, warmp=0, nsub=4, fifo=1, fw=0, fsl=1, dup=1, rs=1, qsl=0, qp=4, sp=1, nf=16)

out = []
def e(s=""):
    out.append(s)

def srd(dst, lo, hi, nbytes):
    e(f"  s_mov_b32 s{dst}, s{lo}")
    e(f"  s_and_b32 s{dst+1}, s{hi}, 0xffff")
    e(f"  s_mov_b32 s{dst+2}, {nbytes}")
    e(f"  s_mov_b32 s{dst+3}, 0x00020000")

def dpp_steps(regs, ctrls):
    for ctrl in ctrls:
        e("  s_nop 1")
        for r in regs:
            e(f"  v_add_f32_dpp v{r}, v{r}, v{r} {ctrl} row_mask:0xf bank_mask:0xf")

def swap_steps(regs, tmp):
    for sw in ["v_permlane16_swap_b32", "v_permlane32_swap_b32"]:
        for r, t in zip(regs, tmp):
            e(f"  v_mov_b32 v{t}, v{r}")
        e("  s_nop 1")
        for r, t in zip(regs, tmp):
            e(f"  {sw} v{r}, v{t}")
        e("  s_nop 1")
        for r, t in zip(regs, tmp):
            e(f"  v_add_f32 v{r}, v{r}, v{t}")

def wave_sum(regs, tmp):
    dpp_steps(regs, ["quad_perm:[1,0,3,2]", "quad_perm:[2,3,0,1]", "row_half_mirror", "row_mirror"])
    swap_steps(regs, tmp)

def round_bf16(dst, src):
    e(f"  v_cvt_pk_bf16_f32 v{dst}, v{src}, v{src}")
    e(f"  v_lshlrev_b32 v{dst}, 16, v{dst}")

WS_PROF = 4 << 20
def stamp(k):
    if not OPT["prof"] or OPT["prof"] >= 3:
        return
    e("  s_memrealtime s[80:81]")
    e("  s_waitcnt lgkmcnt(0)")
    e(f"  s_mov_b32 s{92+k}, s80")

WS_PROF3 = 8 << 20
def tl(k=3):
    if OPT["prof"] != k:
        return
    e("  s_memrealtime s[98:99]")
    e("  s_waitcnt lgkmcnt(0)")
    e("  v_writelane_b32 v251, s98, m0")
    e("  s_add_u32 m0, m0, 1")

def tl_dump():
    if OPT["prof"] < 3:
        return
    e("  s_lshl_b32 s82, s2, 3")
    e("  s_add_u32 s82, s82, s3")
    e("  s_lshl_b32 s82, s82, 8")
    e(f"  s_add_u32 s82, s82, {WS_PROF3}")
    e("  v_lshlrev_b32 v5, 2, v1")
    e(f"  buffer_store_dword v251, v5, s[{SWS}:{SWS+3}], s82 offen")

def dump_stamps():
    if not OPT["prof"]:
        return
    if OPT["prof"] >= 3:
        e("K_END2:")
        return
    e("  s_cmp_ge_u32 s3, 2")
    e("  s_cbranch_scc1 K_END2")
    e("  s_cmp_ge_u32 s2, 256")
    e("  s_cbranch_scc1 K_END2")
    stamp(8)
    e("  s_lshl_b32 s82, s2, 1")
    e("  s_add_u32 s82, s82, s3")
    e("  s_lshl_b32 s82, s82, 6")
    e(f"  s_add_u32 s82, s82, {WS_PROF}")
    e("  s_mov_b64 exec, 1")
    e("  v_mov_b32 v6, 0")
    for k in range(9):
        e(f"  v_mov_b32 v5, s{92+k}")
        e(f"  buffer_store_dword v5, v6, s[{SWS}:{SWS+3}], s82 offen offset:{k*4}")
    e("K_END2:")

SX, SK, SV, SWQ, SW1, SWO, SW2, SWS, SDBG, SOUT = 28, 60, 64, 40, 44, 48, 52, 20, 999, 32
SC, SP0, SP1 = 68, 69, 70
IDXA, IDXB = 72, 73
SG, SR, SB, SSPL, SNC, SHEAD = 86, 87, 88, 89, 90, 91
SNO, SCG, SHC = 83, 84, 85

def poll(label, nlanes, voff, target, tmpv):
    e(f"  s_mov_b64 exec, {(1<<nlanes)-1:#x}")
    e("  s_mov_b32 s74, 0x400000")
    e(f"{label}:")
    e(f"  buffer_load_dword v{tmpv}, v{voff}, s[{SDBG}:{SDBG+3}], 0 offen sc1")
    e("  s_waitcnt vmcnt(0)")
    e(f"  v_cmp_ne_u32 vcc, {target}, v{tmpv}")
    e("  s_cmp_eq_u64 vcc, 0")
    e(f"  s_cbranch_scc1 {label}_DONE")
    if OPT["sleep"]:
        e(f"  s_sleep {OPT['sleep']}")
    e("  s_sub_u32 s74, s74, 1")
    e("  s_cmp_lg_u32 s74, 0")
    e(f"  s_cbranch_scc1 {label}")
    e(f"{label}_DONE:")
    e("  s_mov_b64 exec, -1")

def mpoll(label, n, issue, tags, thr):
    full = (1 << n) - 1
    e("  s_not_b32 s75, s26")
    for k in range(n):
        for x in tags(k):
            e(f"  v_mov_b32 v{x}, s75")
    e("  s_mov_b32 s77, 0")
    e(f"  s_mov_b32 s74, {OPT['bnd']:#x}")
    e(f"{label}:")
    for k in range(n):
        e(f"  s_bitcmp1_b32 s77, {k}")
        e(f"  s_cbranch_scc1 {label}S{k}")
        issue(k)
        e(f"{label}S{k}:")
    if thr is not None:
        e(f"  s_xor_b32 s75, s77, {full:#x}")
        e("  s_bcnt1_i32_b32 s75, s75")
        e(f"  s_cmp_le_u32 s75, {thr}")
        e(f"  s_cbranch_scc1 {label}F")
        e("  s_waitcnt vmcnt(0)")
        e(f"{label}F:")
    if OPT["sleep"]:
        e(f"  s_sleep {OPT['sleep']}")
    for k in range(n):
        t = tags(k)
        e(f"  v_cmp_eq_u32 vcc, s26, v{t[0]}")
        for x in t[1:]:
            e(f"  v_cmp_eq_u32 s[78:79], s26, v{x}")
            e("  s_and_b64 vcc, vcc, s[78:79]")
        e("  s_cmp_eq_u64 vcc, -1")
        e(f"  s_cselect_b32 s75, {1<<k:#x}, 0")
        e("  s_or_b32 s77, s77, s75")
    e(f"  s_cmp_eq_u32 s77, {full:#x}")
    e(f"  s_cbranch_scc1 {label}_DONE")
    e("  s_sub_u32 s74, s74, 1")
    e("  s_cmp_lg_u32 s74, 0")
    e(f"  s_cbranch_scc1 {label}")
    e(f"{label}_DONE:")
    e("  s_waitcnt vmcnt(0)")

def gen():
    nt = OPT["nt"]
    BS = 17 if OPT["ilv"] else 13
    POL = dict(k="" if OPT["kpl"] else nt, v="" if OPT["vpl"] else nt)
    name = NAME + "_kernel"
    e(".text")
    e(f".globl {name}")
    e(".p2align 8")
    e(f".type {name},@function")
    e(f"{name}:")
    KA, VA, KB, VB = 16, 48, 80, 112
    ACC = 144
    QF = 176
    ST = 192
    PF = 200
    TR = 204
    M_, L_, T0, T1, AL, MC = 236, 237, 238, 239, 240, 241
    VKOFF, VVOFF = 242, 243
    WO = 244
    W2 = 252
    e("  s_cmp_ge_u32 s2, 256")
    e("  s_cbranch_scc1 K_END2" if OPT["prof"] else "  s_cbranch_scc1 K_END")
    e("  s_load_dwordx16 s[4:19], s[0:1], 0")
    e("  s_load_dwordx2 s[24:25], s[0:1], 80")
    e("  v_and_b32 v1, 63, v0")
    e("  v_lshrrev_b32 v2, 6, v0")
    e("  v_and_b32 v3, 15, v1")
    e("  v_lshrrev_b32 v4, 4, v1")
    e("  v_mov_b32 v248, 0")
    e("  v_readfirstlane_b32 s3, v2")
    def derive():
        e(f"  s_and_b32 s{SG}, s2, 7")
        e(f"  s_lshr_b32 s{SR}, s2, 3")
        e(f"  s_and_b32 s{SNO}, s{SR}, 7")
        e(f"  s_lshl_b32 s{SCG}, s{SG}, 5")
        e(f"  s_add_u32 s{SCG}, s{SCG}, s{SR}")
        e(f"  s_lshr_b32 s{SHC}, s{SR}, 3")
        e(f"  s_lshl_b32 s{SHC}, s{SHC}, 6")
        e(f"  s_lshl_b32 s74, s{SG}, 3")
        e(f"  s_add_u32 s{SHC}, s{SHC}, s74")
        e(f"  s_add_u32 s{SHC}, s{SHC}, s{SNO}")
        e(f"  s_lshr_b32 s{SB}, s{SR}, 4")
        e(f"  s_and_b32 s{SSPL}, s{SR}, 15")
        e(f"  s_and_b32 s{SNC}, s2, 7")
        e(f"  s_lshr_b32 s{SHEAD}, s{SR}, 3")
        e(f"  s_lshl_b32 s74, s{SG}, 2")
        e(f"  s_add_u32 s{SHEAD}, s{SHEAD}, s74")
        if OPT["map"]:
            e(f"  s_lshr_b32 s{SB}, s2, 7")
            e(f"  s_lshr_b32 s{SG}, s2, 4")
            e(f"  s_and_b32 s{SG}, s{SG}, 7")
            e(f"  s_and_b32 s{SSPL}, s2, 15")
        e(f"  s_lshl_b32 s93, s{SB}, 3")
        e(f"  s_add_u32 s93, s93, s{SG}")
        e(f"  s_mul_i32 s93, s93, {OPT['nsub']}")
        e(f"  s_and_b32 s74, s3, {OPT['nsub']-1}")
        e(f"  s_add_u32 s93, s93, s74")
        e(f"  s_lshl_b32 s93, s93, 8")
        e(f"  s_add_u32 s93, s93, {WS_PC}")
        e(f"  s_mul_i32 s92, s74, {(1024-16*OPT['ns'])//OPT['nsub']}")
        e(f"  s_add_u32 s92, s92, {16*OPT['ns']}")
        e(f"  s_mul_i32 s94, s{SSPL}, {OPT['ns']}")
        e("  s_mov_b32 s95, 0")
    derive()
    e(f"  s_lshl_b32 s74, s{SB}, 3")
    e(f"  s_add_u32 s74, s74, s{SG}")
    e("  s_lshl_b32 s74, s74, 23")

    e(f"  s_mov_b32 s{SC}, 0x3e0293ee")
    e(f"  s_mov_b32 s{SP0}, 0x05040100")
    e(f"  s_mov_b32 s{SP1}, 0x07060302")
    e("  s_lshl_b32 s75, s3, 1")
    e(f"  s_sub_u32 s{IDXA}, s75, 2")
    e(f"  s_sub_u32 s{IDXB}, s75, 1")
    if OPT["nbuf"] == 1:
        e(f"  s_add_u32 s{IDXA}, s3, s94")
        if OPT["nw"] < 8:
            e(f"  s_cmp_ge_u32 s3, {OPT['nw']}")
            e(f"  s_cselect_b32 s{IDXA}, 64, s{IDXA}")
    e("  v_and_b32 v5, 3, v3")
    e("  v_lshrrev_b32 v6, 2, v3")
    e("  v_lshl_add_u32 v5, v5, 2, v6")
    e("  v_lshlrev_b32 v5, 8, v5")
    e(f"  v_lshl_add_u32 v{VKOFF}, v4, 4, v5")
    e(f"  v_lshlrev_b32 v{VVOFF}, 4, v1")
    if OPT["kx"]:
        e(f"  v_lshlrev_b32 v{VKOFF}, 4, v1")
    e("  s_waitcnt lgkmcnt(0)")
    if not OPT["rs"]:
        e(f"  s_mov_b32 s75, {WS_EP}")
        e("  s_load_dword s26, s[24:25], s75")
    srd(SX, 4, 5, 2048)
    srd(SWQ, 10, 11, 512 * 4096 * 2)
    srd(SWS, 24, 25, WS_SIZE)
    e(f"  s_add_u32 s{SK}, s6, s74")
    e(f"  s_addc_u32 s{SK+1}, s7, 0")
    e(f"  s_and_b32 s{SK+1}, s{SK+1}, 0xffff")
    if OPT['ilv']:
        e(f"  s_lshl_b32 s75, s{SSPL}, 13")
        e(f"  s_sub_u32 s{SK+2}, {8<<20}, s75")
    else:
        e(f"  s_mov_b32 s{SK+2}, {8<<20}")
    e(f"  s_mov_b32 s{SK+3}, 0x00020000")
    e(f"  s_add_u32 s{SV}, s8, s74")
    e(f"  s_addc_u32 s{SV+1}, s9, 0")
    e(f"  s_and_b32 s{SV+1}, s{SV+1}, 0xffff")
    e(f"  s_mov_b32 s{SV+2}, s{SK+2}")
    e(f"  s_mov_b32 s{SV+3}, 0x00020000")
    e("  s_movk_i32 s71, 4096")
    e("  s_and_b32 s75, s2, 0x78")
    e("  s_or_b32 s75, s75, s3")
    e("  s_cmp_lg_u32 s75, 0")
    e("  s_cbranch_scc1 K_NOINIT")
    e("  s_lshr_b32 s75, s2, 7")
    e("  s_lshl_b32 s75, s75, 3")
    e("  s_and_b32 s76, s2, 7")
    e("  s_add_u32 s75, s75, s76")
    e(f"  s_mul_i32 s75, s75, {OPT['nsub']*256}")
    e(f"  s_add_u32 s75, s75, {WS_PC}")
    e("  v_mov_b32 v5, 0")
    e("  v_lshlrev_b32 v6, 8, v1")
    e(f"  s_mov_b64 exec, {(1<<OPT['nsub'])-1}")
    e(f"  buffer_store_dword v5, v6, s[{SWS}:{SWS+3}], s75 offen sc1")
    e("  s_mov_b64 exec, -1")
    e("K_NOINIT:")
    if OPT["warm"]:
        e(f"  s_lshl_b32 s75, s{SCG}, 6")
        e(f"  s_add_u32 s75, s75, {WS_QG}")
        e("  s_load_dword s98, s[24:25], s75")
        e("  s_add_u32 s75, s75, 16384")
        e("  s_load_dword s99, s[24:25], s75")
    stamp(0)
    if OPT["prof"] >= 3:
        e("  v_mov_b32 v251, 0")
        e("  s_mov_b32 m0, 0")
        tl(OPT["prof"])
    F1 = max(OPT["f1"], OPT["pre0"])
    def kchunk_l(KR, vo):
        r=[]
        if OPT["kx"]:
            for j in range(8):
                so = "0" if j < 4 else "s71"
                r.append(f"  buffer_load_dwordx4 v[{KR+4*j}:{KR+4*j+3}], v{vo}, s[{SK}:{SK+3}], {so} offen offset:{(j&3)*1024}{nt}")
            return r
        for t in range(2):
            for i in range(4):
                so = "0" if t == 0 else "s71"
                r.append(f"  buffer_load_dwordx4 v[{KR+16*t+4*i}:{KR+16*t+4*i+3}], v{vo}, s[{SK}:{SK+3}], {so} offen offset:{i*64}{POL['k']}")
        return r
    def vchunk_l(VR, vo):
        r=[]
        for j in range(8):
            so = "0" if j < 4 else "s71"
            r.append(f"  buffer_load_dwordx4 v[{VR+4*j}:{VR+4*j+3}], v{vo}, s[{SV}:{SV+3}], {so} offen offset:{(j&3)*1024}{POL['v']}")
        return r
    def kchunk(KR, vo):
        for l in kchunk_l(KR, vo): e(l)
    def vchunk(VR, vo):
        for l in vchunk_l(VR, vo): e(l)
    def blkoff(sidx):
        if OPT["rot"]:
            e(f"  s_add_u32 s75, s{sidx}, s73")
            e("  s_and_b32 s75, s75, 63")
            e(f"  s_lshl_b32 s75, s75, {BS}")
            e(f"  s_cmp_lt_u32 s{sidx}, 64")
            e("  s_cselect_b32 s75, s75, 0x100000")
        else:
            e(f"  s_lshl_b32 s75, s{sidx}, {BS}")
    def loads(KR, VR, sidx):
        blkoff(sidx)
        e(f"  v_add_u32 v5, s75, v{VKOFF}")
        e(f"  v_add_u32 v6, s75, v{VVOFF}")
        kchunk(KR, 5)
        vchunk(VR, 6)
    def wo_loads():
        e("  v_lshlrev_b32 v14, 10, v12")
        e("  v_lshl_add_u32 v14, v13, 4, v14")
        if not OPT["mf"]:
            e(f"  s_lshl_b32 s75, s{SNO}, 7")
            e("  v_add_u32 v15, s75, v14")
            e(f"  s_lshl_b32 s75, s{SHEAD}, 17")
            e("  v_add_u32 v15, s75, v15")
            e(f"  buffer_load_dwordx4 v[{WO}:{WO+3}], v15, s[{SWO}:{SWO+3}], 0 offen")
            e("  v_add_u32 v15, 0x10000, v15")
            e(f"  buffer_load_dwordx4 v[{WO+4}:{WO+7}], v15, s[{SWO}:{SWO+3}], 0 offen")
        else:
            lab = f"K_WOS{len(out)}"
            e("  s_cmp_ge_u32 s3, 4")
            e(f"  s_cbranch_scc1 {lab}")
            e("  v_lshlrev_b32 v15, 13, v4")
            e("  v_lshl_add_u32 v15, v3, 2, v15")
            e(f"  s_lshl_b32 s75, s{SHEAD}, 17")
            e(f"  s_lshl_b32 s76, s{SNO}, 7")
            e("  s_add_u32 s75, s75, s76")
            e("  s_lshr_b32 s76, s3, 1")
            e("  s_lshl_b32 s76, s76, 6")
            e("  s_add_u32 s75, s75, s76")
            for ks in range(4):
                for jh in range(2):
                    for j in range(4):
                        e(f"  buffer_load_dword v{80+ks*8+jh*4+j}, v15, s[{SWO}:{SWO+3}], s75 offen offset:{j*1024}")
                    if not (ks == 3 and jh == 1):
                        e(f"  s_add_u32 s75, s75, {4096 if jh == 0 else 32768-4096}")
            e(f"{lab}:")
        e("  s_lshr_b32 s75, s2, 3")
        e("  s_lshl_b32 s75, s75, 16")
        e("  v_add_u32 v15, s75, v14")
        e(f"  s_lshl_b32 s75, s{SNC}, 7")
        e("  v_add_u32 v15, s75, v15")
        e(f"  buffer_load_dwordx4 v[{W2}:{W2+3}], v15, s[{SW2}:{SW2+3}], 0 offen")

    X = 144
    def ln_code():
        for b in range(2):
            for c in range(4):
                e(f"  v_lshlrev_b32 v{X+8*b+2*c}, 16, v{204+4*b+c}")
                e(f"  v_and_b32 v{X+1+8*b+2*c}, 0xffff0000, v{204+4*b+c}")
        for b in range(2):
            t = 160 + 4 * b
            e(f"  v_pk_add_f32 v[{t}:{t+1}], v[{X+8*b}:{X+8*b+1}], v[{X+8*b+2}:{X+8*b+3}]")
            e(f"  v_pk_add_f32 v[{t+2}:{t+3}], v[{X+8*b+4}:{X+8*b+5}], v[{X+8*b+6}:{X+8*b+7}]")
        for b in range(2):
            t = 160 + 4 * b
            e(f"  v_pk_add_f32 v[{t}:{t+1}], v[{t}:{t+1}], v[{t+2}:{t+3}]")
        e("  v_add_f32 v160, v160, v161")
        e("  v_add_f32 v161, v164, v165")
        wave_sum([160, 161], [162, 163])
        e("  v_mul_f32 v160, 0x3b000000, v160")
        e("  v_mul_f32 v161, 0x3b000000, v161")
        bsel = [" op_sel_hi:[1,0]", " op_sel:[0,1] op_sel_hi:[1,1]"]
        for b in range(2):
            for c in range(4):
                t = 168 + 8 * b + 2 * c
                e(f"  v_pk_add_f32 v[{t}:{t+1}], v[{X+8*b+2*c}:{X+8*b+2*c+1}], v[160:161]{bsel[b]} neg_lo:[0,1] neg_hi:[0,1]")
        for b in range(2):
            t = 168 + 8 * b
            e(f"  v_pk_mul_f32 v[{164+2*b}:{165+2*b}], v[{t}:{t+1}], v[{t}:{t+1}]")
        for c in range(1, 4):
            for b in range(2):
                t = 168 + 8 * b + 2 * c
                e(f"  v_pk_fma_f32 v[{164+2*b}:{165+2*b}], v[{t}:{t+1}], v[{t}:{t+1}], v[{164+2*b}:{165+2*b}]")
        e("  v_add_f32 v164, v164, v165")
        e("  v_add_f32 v165, v166, v167")
        wave_sum([164, 165], [162, 163])
        e("  v_mul_f32 v164, 0x3b000000, v164")
        e("  v_mul_f32 v165, 0x3b000000, v165")
        for b in range(2):
            round_bf16(164 + b, 164 + b)
            e(f"  v_add_f32 v{164+b}, 0x3727c5ac, v{164+b}")
            round_bf16(164 + b, 164 + b)
            e(f"  v_sqrt_f32 v{164+b}, v{164+b}")
            e("  s_nop 0")
            round_bf16(164 + b, 164 + b)
            e(f"  v_rcp_f32 v{164+b}, v{164+b}")
            round_bf16(160 + b, 160 + b)
        for b in range(2):
            for c in range(4):
                r = X + 8 * b + 2 * c
                e(f"  v_pk_add_f32 v[{r}:{r+1}], v[{r}:{r+1}], v[160:161]{bsel[b]} neg_lo:[0,1] neg_hi:[0,1]")
            for c in range(4):
                r = X + 8 * b + 2 * c
                e(f"  v_cvt_pk_bf16_f32 v{168+c}, v{r}, v{r+1}")
            for c in range(4):
                r = X + 8 * b + 2 * c
                e(f"  v_lshlrev_b32 v{r}, 16, v{168+c}")
                e(f"  v_and_b32 v{r+1}, 0xffff0000, v{168+c}")
            for c in range(4):
                r = X + 8 * b + 2 * c
                e(f"  v_pk_mul_f32 v[{r}:{r+1}], v[{r}:{r+1}], v[164:165]{bsel[b]}")
            for c in range(4):
                r = X + 8 * b + 2 * c
                e(f"  v_cvt_pk_bf16_f32 v{168+c}, v{r}, v{r+1}")
            for c in range(4):
                r = X + 8 * b + 2 * c
                e(f"  v_lshlrev_b32 v{r}, 16, v{168+c}")
                e(f"  v_and_b32 v{r+1}, 0xffff0000, v{168+c}")
        e("  v_lshlrev_b32 v5, 5, v1")
        for b in range(2):
            e(f"  ds_write_b128 v5, v[{X+8*b}:{X+8*b+3}] offset:{L_XN + b*2048}")
            e(f"  ds_write_b128 v5, v[{X+8*b+4}:{X+8*b+7}] offset:{L_XN + b*2048 + 16}")
        e("  s_waitcnt lgkmcnt(0)")

    def pk_part(w, xr, acc0, acc1, first):
        e(f"  v_lshlrev_b32 v160, 16, v{w}")
        e(f"  v_and_b32 v161, 0xffff0000, v{w}")
        if first:
            e(f"  v_pk_mul_f32 v[{acc0}:{acc0+1}], v[160:161], v[{xr}:{xr+1}] op_sel_hi:[1,0]")
            e(f"  v_pk_mul_f32 v[{acc1}:{acc1+1}], v[160:161], v[{xr}:{xr+1}] op_sel:[0,1] op_sel_hi:[1,1]")
        else:
            e(f"  v_pk_fma_f32 v[{acc0}:{acc0+1}], v[160:161], v[{xr}:{xr+1}], v[{acc0}:{acc0+1}] op_sel_hi:[1,0,1]")
            e(f"  v_pk_fma_f32 v[{acc1}:{acc1+1}], v[160:161], v[{xr}:{xr+1}], v[{acc1}:{acc1+1}] op_sel:[0,1,0] op_sel_hi:[1,1,1]")
    if OPT["rs"]:
        e("  v_lshrrev_b32 v12, 3, v0")
        e("  v_and_b32 v13, 7, v0")
        blkoff(IDXA)
        e(f"  v_add_u32 v228, s75, v{VKOFF}")
        e(f"  v_add_u32 v229, s75, v{VVOFF}")
        pl = kchunk_l(KA, 228) + vchunk_l(VA, 229)
        e("  s_cmp_ge_u32 s3, 4")
        e("  s_cbranch_scc1 K_FLOOD")
        e("  v_lshlrev_b32 v5, 4, v1")
        e(f"  buffer_load_dwordx4 v[204:207], v5, s[{SX}:{SX+3}], 0 offen")
        e(f"  buffer_load_dwordx4 v[208:211], v5, s[{SX}:{SX+3}], 0 offen offset:1024")
        e("  v_lshrrev_b32 v6, 2, v0")
        e("  v_and_b32 v7, 3, v0")
        e("  v_lshlrev_b32 v8, 13, v6")
        e("  v_lshl_add_u32 v8, v7, 3, v8")
        e(f"  s_lshl_b32 s75, s{SCG}, 5")
        e("  v_add_u32 v8, s75, v8")
        for i in range(8):
            if i:
                e(f"  v_add_u32 v8, 0x80000, v8")
            e(f"  buffer_load_dwordx2 v[{212+2*i}:{213+2*i}], v8, s[{SWQ}:{SWQ+3}], 0 offen")
        e("  s_cmp_lg_u32 s3, 0")
        e("  s_cbranch_scc1 K_NOLI")
        e("  v_mov_b32 v8, 8")
        e("  v_mov_b32 v9, 0")
        e("  v_mov_b32 v10, 8")
        e("  v_mov_b32 v11, 8")
        e(f"  v_mov_b32 v5, {L_CNT}")
        e("  s_mov_b64 exec, 1")
        e("  ds_write_b128 v5, v[8:11]")
        e("  v_mov_b32 v8, 0")
        e("  v_mov_b32 v10, 0")
        e("  v_mov_b32 v11, 0")
        e("  ds_write_b128 v5, v[8:11] offset:16")
        e("  s_mov_b64 exec, -1")
        e("  s_waitcnt lgkmcnt(0)")
        e("K_NOLI:")
        e("  s_barrier")
        e(f"  s_mov_b32 s75, {WS_EP}")
        e("  s_load_dword s26, s[24:25], s75")
        e("  v_lshrrev_b32 v230, 3, v1")
        e("  v_lshlrev_b32 v230, 14, v230")
        e("  v_and_b32 v7, 7, v1")
        e("  v_lshl_add_u32 v230, v7, 3, v230")
        e(f"  s_lshl_b32 s75, s{SCG}, 6")
        e(f"  s_add_u32 s75, s75, {WS_QG}")
        e("  v_add_u32 v230, s75, v230")
        e("  s_mul_i32 s75, s3, 192")
        e("  v_lshlrev_b32 v231, 4, v1")
        e("  v_add_u32 v231, s75, v231")
        e("  s_waitcnt vmcnt(8)")
        tl(4)
        ln_code()
        e("  s_add_u32 s26, s26, 1")
        e("  v_lshrrev_b32 v5, 2, v0")
        e("  v_lshlrev_b32 v5, 2, v5")
        for i in range(8):
            e(f"  ds_read2st64_b32 v[{168+2*i}:{169+2*i}], v5 offset0:{(L_XN + i*256)//256} offset1:{(L_XN + i*256 + 2048)//256}")
        e(f"  v_mov_b32 v7, {L_CNT}")
        e("  v_mov_b32 v8, 1")
        e("  v_lshlrev_b32 v9, 3, v1")
        tl(4)
        e("  s_waitcnt vmcnt(0) lgkmcnt(0)")
        tl(4)
        for i in range(8):
            for c in range(2):
                pk_part(212 + 2 * i + c, 168 + 2 * i, 184 + 2 * c, 188 + 2 * c, i == 0)
        dpp_steps(list(range(184, 192)), ["row_ror:4", "row_ror:8"])
        swap_steps(list(range(184, 192)), list(range(204, 212)))
        e("  s_mov_b64 exec, 0xf")
        e(f"  ds_write_b128 v231, v[184:187] offset:{L_QP}")
        e(f"  ds_write_b128 v231, v[188:191] offset:{L_QP+64}")
        e("  s_mov_b64 exec, 1")
        e("  ds_add_rtn_u32 v6, v7, v8 offset:16")
        e("  s_mov_b64 exec, -1")
        e("  s_waitcnt lgkmcnt(0)")
        tl(4)
        e("  v_readfirstlane_b32 s75, v6")
        e("  s_cmp_lg_u32 s75, 3")
        e("  s_cbranch_scc1 K_QW")
        e("  s_mov_b64 exec, 0xffff")
        for w in range(4):
            e(f"  ds_read_b64 v[{160+2*w}:{161+2*w}], v9 offset:{L_QP + w*192}")
        e("  v_mov_b32 v169, s26")
        e("  s_waitcnt lgkmcnt(0)")
        e("  v_pk_add_f32 v[160:161], v[160:161], v[162:163]")
        e("  v_pk_add_f32 v[164:165], v[164:165], v[166:167]")
        e("  v_pk_add_f32 v[160:161], v[160:161], v[164:165]")
        e("  v_cvt_pk_bf16_f32 v168, v160, v161")
        e(f"  buffer_store_dwordx2 v[168:169], v230, s[{SWS}:{SWS+3}], 0 offen sc1")
        e("  s_mov_b64 exec, 1")
        e("  ds_add_u32 v7, v8 offset:20")
        e("  ds_add_u32 v7, v8 offset:24")
        e("  s_mov_b64 exec, -1")
        e("K_QW:")
        e(f"  s_mov_b32 s74, {OPT['bnd']:#x}")
        e("K_QWL:")
        e("  ds_read_b32 v6, v7 offset:20")
        e("  s_waitcnt lgkmcnt(0)")
        e("  v_readfirstlane_b32 s75, v6")
        e("  s_cmp_ge_u32 s75, 5")
        e("  s_cbranch_scc1 K_QGO")
        e("  s_sub_u32 s74, s74, 1")
        e("  s_cmp_lg_u32 s74, 0")
        e("  s_cbranch_scc1 K_QWL")
        e("K_QGO:")
        tl(4)
        PB = [4, 28, 44, 80]
        prs = [b_ + 2*k for b_ in PB for k in range(8)]
        def poll_addr():
            e(f"  s_lshl_b32 s72, s{SB}, 14")
            e(f"  s_lshl_b32 s76, s{SG}, 11")
            e("  s_add_u32 s72, s72, s76")
            e("  s_lshl_b32 s76, s3, 8")
            e("  s_add_u32 s72, s72, s76")
            e(f"  s_add_u32 s72, s72, {WS_QG}")
            e("  s_lshl_b32 s76, s3, 7")
            e("  v_lshlrev_b32 v6, 2, v1")
            e("  v_add_u32 v6, s76, v6")
        def poll_issue():
            for i, b_ in enumerate(PB):
                e(f"  s_load_dwordx16 s[{b_}:{b_+15}], s[24:25], s72 offset:{64*i} glc")
        def poll_check(ok):
            e("  s_waitcnt lgkmcnt(0)")
            e(f"  s_and_b64 s[76:77], s[{prs[0]}:{prs[0]+1}], s[{prs[1]}:{prs[1]+1}]")
            e(f"  s_or_b64 s[78:79], s[{prs[0]}:{prs[0]+1}], s[{prs[1]}:{prs[1]+1}]")
            for r in prs[2:]:
                e(f"  s_and_b64 s[76:77], s[76:77], s[{r}:{r+1}]")
                e(f"  s_or_b64 s[78:79], s[78:79], s[{r}:{r+1}]")
            e("  s_xor_b32 s77, s77, s26")
            e("  s_xor_b32 s79, s79, s26")
            e("  s_or_b32 s77, s77, s79")
            e("  s_cmp_eq_u32 s77, 0")
            e(f"  s_cbranch_scc1 {ok}")
        def poll_save():
            for k, r in enumerate(prs):
                e(f"  v_writelane_b32 v5, s{r}, {k}")
            e("  s_mov_b64 exec, 0xffffffff")
            e(f"  ds_write_b32 v6, v5 offset:{L_Q}")
            e("  s_mov_b64 exec, 1")
            e("  ds_add_u32 v7, v8 offset:24")
            e("  s_mov_b64 exec, -1")
        poll_addr()
        QP = OPT["qp"]
        PS = 16 // QP
        for k in range(QP):
            poll_issue()
            for c in range(k*PS, (k+1)*PS):
                e(pl[c])
            poll_check(f"K_QP{k}")
        e("  s_branch K_SPL")
        for k in range(QP):
            e(f"K_QP{k}:")
            poll_save()
            if OPT["prof"] == 4:
                e("  s_mov_b32 m0, 8")
            tl(4)
            for c in range((k+1)*PS, 16):
                e(pl[c])
            e("  s_branch K_QR")
        e("K_FLOOD:")
        e("  s_barrier")
        e(f"  s_mov_b32 s75, {WS_EP}")
        e("  s_load_dword s26, s[24:25], s75")
        tl(4)
        for c in range(16):
            if c >= OPT["nf"]:
                e(f"  s_waitcnt vmcnt({OPT['nf']-1})")
            e(pl[c])
        e(f"  v_mov_b32 v7, {L_CNT}")
        e("  v_mov_b32 v8, 1")
        e("  s_mov_b64 exec, 1")
        e("  ds_add_u32 v7, v8 offset:20")
        e("  s_mov_b64 exec, -1")
        tl(4)
        e("  s_waitcnt lgkmcnt(0)")
        e("  s_add_u32 s26, s26, 1")
        poll_addr()
        e("K_SPL:")
        e(f"  s_mov_b32 s74, {OPT['bnd']:#x}")
        e("K_SP:")
        poll_issue()
        poll_check("K_SPD")
        if OPT["qsl"]: e(f"  s_sleep {OPT['qsl']}")
        e("  s_sub_u32 s74, s74, 1")
        e("  s_cmp_lg_u32 s74, 0")
        e("  s_cbranch_scc1 K_SP")
        e("K_SPD:")
        poll_save()
        if OPT["prof"] == 4:
            e("  s_mov_b32 m0, 8")
        tl(4)
        e("K_QR:")
        e(f"  s_mov_b32 s74, {OPT['bnd']:#x}")
        e("K_QRL:")
        e("  ds_read_b32 v6, v7 offset:24")
        e("  s_waitcnt lgkmcnt(0)")
        e("  v_readfirstlane_b32 s75, v6")
        e("  s_cmp_ge_u32 s75, 9")
        e("  s_cbranch_scc1 K_QRD")
        e("  s_sub_u32 s74, s74, 1")
        e("  s_cmp_lg_u32 s74, 0")
        e("  s_cbranch_scc1 K_QRL")
        e("K_QRD:")
        if OPT["prof"] == 4:
            e("  s_mov_b32 m0, 9")
        F2 = 16
    else:
        e("  v_lshlrev_b32 v5, 4, v1")
        e(f"  buffer_load_dwordx4 v[204:207], v5, s[{SX}:{SX+3}], 0 offen")
        e(f"  buffer_load_dwordx4 v[208:211], v5, s[{SX}:{SX+3}], 0 offen offset:1024")
        if OPT["xb"]:
            e("  s_barrier")
        e("  v_lshrrev_b32 v6, 2, v0")
        e("  v_and_b32 v7, 3, v0")
        e("  v_lshlrev_b32 v8, 13, v6")
        e("  v_lshl_add_u32 v8, v7, 3, v8")
        e(f"  s_lshl_b32 s75, s{SCG}, 5")
        e("  v_add_u32 v8, s75, v8")
        for i in range(4):
            if i == 0:
                e(f"  buffer_load_dwordx2 v[212:213], v8, s[{SWQ}:{SWQ+3}], 0 offen")
            else:
                e(f"  v_add_u32 v8, 0x100000, v8")
                e(f"  buffer_load_dwordx2 v[{212+2*i}:{213+2*i}], v8, s[{SWQ}:{SWQ+3}], 0 offen")
        e("  v_lshrrev_b32 v12, 3, v0")
        e("  v_and_b32 v13, 7, v0")
        if OPT["rot"]:
            e(f"  s_mul_i32 s73, s2, {OPT['rot']}")
        blkoff(IDXA)
        e(f"  v_add_u32 v224, s75, v{VKOFF}")
        e(f"  v_add_u32 v225, s75, v{VVOFF}")
        pl = kchunk_l(KA, 224) + vchunk_l(VA, 225)
        PRE0 = OPT["pre0"]
        if OPT["bar0"] and PRE0:
            e("  s_barrier")
        for c in range(PRE0):
            e(pl[c])
        e(f"  s_waitcnt vmcnt({4+PRE0})")
        tl(4)
        ln_code()
        e("  s_add_u32 s26, s26, 1")
        e("  v_lshrrev_b32 v5, 2, v0")
        e("  v_lshlrev_b32 v5, 2, v5")
        for i in range(4):
            e(f"  ds_read2st64_b32 v[{168+2*i}:{169+2*i}], v5 offset0:{(L_XN + i*512)//256} offset1:{(L_XN + i*512 + 2048)//256}")
        tl(4)
        e(f"  s_waitcnt vmcnt({PRE0}) lgkmcnt(0)")
        tl(4)
        for c in range(PRE0, F1):
            e(pl[c])
        for i in range(4):
            for c in range(2):
                pk_part(212 + 2 * i + c, 168 + 2 * i, 180 + 2 * c, 184 + 2 * c, i == 0)
        dpp_steps(list(range(180, 188)), ["row_ror:4", "row_ror:8"])
        swap_steps(list(range(180, 188)), list(range(204, 212)))
        e("  s_mul_i32 s75, s3, 192")
        e("  v_lshlrev_b32 v5, 4, v1")
        e("  v_add_u32 v5, s75, v5")
        e("  s_mov_b64 exec, 0xf")
        e(f"  ds_write_b128 v5, v[180:183] offset:{L_QP}")
        e(f"  ds_write_b128 v5, v[184:187] offset:{L_QP+64}")
        e("  s_mov_b64 exec, -1")
        e("  s_waitcnt lgkmcnt(0)")
        tl(4)
        e("  s_barrier")
        e("  s_cmp_lg_u32 s3, 0")
        e("  s_cbranch_scc1 K_B2")
        e("  v_lshlrev_b32 v5, 3, v1")
        e("  s_mov_b64 exec, 0xffff")
        for w in range(8):
            e(f"  ds_read_b64 v[{160+2*w}:{161+2*w}], v5 offset:{L_QP + w*192}")
        e("  v_lshrrev_b32 v6, 3, v1")
        e("  v_lshlrev_b32 v6, 14, v6")
        e("  v_and_b32 v7, 7, v1")
        e("  v_lshl_add_u32 v6, v7, 3, v6")
        e(f"  s_lshl_b32 s75, s{SCG}, 6")
        e(f"  s_add_u32 s75, s75, {WS_QG}")
        e("  v_add_u32 v6, s75, v6")
        e("  v_mov_b32 v8, 8")
        e("  v_mov_b32 v9, 0")
        e("  v_mov_b32 v10, 8")
        e(f"  v_mov_b32 v11, {L_CNT}")
        e("  s_waitcnt lgkmcnt(0)")
        e("  v_pk_add_f32 v[160:161], v[160:161], v[162:163]")
        e("  v_pk_add_f32 v[164:165], v[164:165], v[166:167]")
        e("  v_pk_add_f32 v[168:169], v[168:169], v[170:171]")
        e("  v_pk_add_f32 v[172:173], v[172:173], v[174:175]")
        e("  v_pk_add_f32 v[160:161], v[160:161], v[164:165]")
        e("  v_pk_add_f32 v[168:169], v[168:169], v[172:173]")
        e("  v_pk_add_f32 v[160:161], v[160:161], v[168:169]")
        e("  v_cvt_pk_bf16_f32 v160, v160, v161")
        e("  v_mov_b32 v161, s26")
        e(f"  buffer_store_dwordx2 v[160:161], v6, s[{SWS}:{SWS+3}], 0 offen sc1")
        e("  ds_write_b96 v11, v[8:10]")
        e("  s_mov_b64 exec, -1")
        e("K_B2:")
        tl(4)
        if OPT["bar2"]:
            e("  s_barrier")
        F2 = max(F1, OPT["f2"])
        for c in range(F1, F2):
            e(pl[c])
    if not OPT['rs']:
        e(f"  s_lshl_b32 s75, s{SB}, 14")
        e(f"  s_lshl_b32 s76, s{SG}, 11")
        e("  s_add_u32 s75, s75, s76")
        e("  s_lshl_b32 s76, s3, 8")
        e("  s_add_u32 s75, s75, s76")
        e(f"  s_add_u32 s75, s75, {WS_QG}")
        e("  s_lshl_b32 s76, s3, 7")
        e("  v_lshlrev_b32 v6, 2, v1")
        e("  v_add_u32 v6, s76, v6")
        e(f"  s_mov_b32 s74, {OPT['bnd']:#x}")
        PB = [4, 28, 44, 80]
        tl(4)
        e("K_SP:")
        for i, b_ in enumerate(PB):
            e(f"  s_load_dwordx16 s[{b_}:{b_+15}], s[24:25], s75 offset:{64*i} glc")
        e("  s_waitcnt lgkmcnt(0)")
        prs = [b_ + 2*k for b_ in PB for k in range(8)]
        e(f"  s_and_b64 s[76:77], s[{prs[0]}:{prs[0]+1}], s[{prs[1]}:{prs[1]+1}]")
        e(f"  s_or_b64 s[78:79], s[{prs[0]}:{prs[0]+1}], s[{prs[1]}:{prs[1]+1}]")
        for r in prs[2:]:
            e(f"  s_and_b64 s[76:77], s[76:77], s[{r}:{r+1}]")
            e(f"  s_or_b64 s[78:79], s[78:79], s[{r}:{r+1}]")
        e("  s_xor_b32 s77, s77, s26")
        e("  s_xor_b32 s79, s79, s26")
        e("  s_or_b32 s77, s77, s79")
        e("  s_cmp_eq_u32 s77, 0")
        e("  s_cbranch_scc1 K_SPD")
        e("  s_sub_u32 s74, s74, 1")
        e("  s_cmp_lg_u32 s74, 0")
        e("  s_cbranch_scc1 K_SP")
        e("K_SPD:")
        tl(4)
        for k, r in enumerate(prs):
            e(f"  v_writelane_b32 v5, s{r}, {k}")
        e("  s_mov_b64 exec, 0xffffffff")
        e(f"  ds_write_b32 v6, v5 offset:{L_Q}")
        e("  s_mov_b64 exec, -1")
        e("  s_waitcnt lgkmcnt(0)")
        e("  s_barrier")
    e("K_B3:")
    tl(4)
    e("  s_load_dwordx16 s[4:19], s[0:1], 0")
    e("  s_load_dwordx2 s[96:97], s[0:1], 64")
    for c in range(F2, len(pl)):
        e(pl[c])
    e("  v_and_b32 v5, 3, v3")
    e("  v_lshlrev_b32 v5, 8, v5")
    e("  v_lshl_add_u32 v5, v4, 4, v5")
    for i in range(4):
        e(f"  ds_read_b128 v[{QF+4*i}:{QF+4*i+3}], v5 offset:{L_Q + i*64}")
    derive()
    for r in range(32):
        e(f"  v_mov_b32 v{ACC+r}, 0")
    e(f"  v_mov_b32 v{M_}, 0xf149f2ca")
    e(f"  v_mov_b32 v{L_}, 0")
    e(f"  v_mov_b32 v7, {L_CNT}")
    e("  v_mov_b32 v8, 1")
    e("  s_waitcnt lgkmcnt(0)")
    srd(SX, 4, 5, 2048)
    srd(SW1, 16, 17, 512 * 1792 * 2)
    srd(SWO, 12, 13, 4096 * 512 * 2)
    srd(SW2, 18, 19, 1792 * 512 * 2)
    srd(SOUT, 96, 97, 2048)
    if OPT["warmp"]:
        e("  v_mov_b32 v10, 0")
        e("  s_mov_b64 exec, 1")
        if OPT["warmp"] & 1:
            e(f"  buffer_load_dword v249, v10, s[{SWS}:{SWS+3}], s93 offen sc1")
        if OPT["warmp"] & 2:
            e(f"  s_mov_b32 s75, {16*OPT['ns']*8192}")
            e(f"  buffer_load_dword v249, v10, s[{SK}:{SK+3}], s75 offen nt")
            e(f"  buffer_load_dword v250, v10, s[{SV}:{SV+3}], s75 offen nt")
        e("  s_mov_b64 exec, -1")
    e("  s_mov_b32 s27, 2")
    def x_loads(sfx):
        e("  s_cmp_lg_u32 s27, 2")
        e(f"  s_cbranch_scc1 K_XL{sfx}")
        e("  s_mov_b32 s27, 3")
        e("  v_lshrrev_b32 v9, 1, v0")
        e("  v_and_b32 v10, 1, v0")
        e("  s_movk_i32 s75, 3584")
        e("  v_mul_lo_u32 v11, v9, s75")
        e("  v_lshl_add_u32 v11, v10, 3, v11")
        e(f"  s_lshl_b32 s75, s{SHC}, 4")
        e("  v_add_u32 v11, s75, v11")
        e(f"  buffer_load_dwordx2 v[244:245], v11, s[{SW1}:{SW1+3}], 0 offen")
        e(f"  v_add_u32 v11, {256*3584}, v11")
        e(f"  buffer_load_dwordx2 v[246:247], v11, s[{SW1}:{SW1+3}], 0 offen")
        wo_loads()
        e(f"K_XL{sfx}:")

    def h_phase(sfx):
        e("  s_cmp_eq_u32 s27, 0")
        e(f"  s_cbranch_scc1 K_HSKP{sfx}")
        e("  s_sub_u32 s27, s27, 2")
        e("  s_cmp_eq_u32 s27, 1")
        e(f"  s_cbranch_scc1 K_HSKP{sfx}")
        e("  s_mov_b32 s27, 0")
        e(f"  s_cmp_ge_u32 s{SHC}, 224")
        e(f"  s_cbranch_scc1 K_HSKP{sfx}")
        e("  v_lshrrev_b32 v5, 1, v0")
        e("  v_lshlrev_b32 v5, 2, v5")
        for i in range(2):
            e(f"  ds_read2st64_b32 v[{204+2*i}:{205+2*i}], v5 offset0:{(L_XN + i*1024)//256} offset1:{(L_XN + i*1024 + 2048)//256}")
        e("  s_waitcnt lgkmcnt(0)")
        A = 212
        for i in range(2):
            for c in range(2):
                w = 244 + 2*i + c
                xr = 204 + 2*i
                a0, a1 = A + 2*c, A + 4 + 2*c
                e(f"  v_lshlrev_b32 v208, 16, v{w}")
                e(f"  v_and_b32 v209, 0xffff0000, v{w}")
                if i == 0:
                    e(f"  v_pk_mul_f32 v[{a0}:{a0+1}], v[208:209], v[{xr}:{xr+1}] op_sel_hi:[1,0]")
                    e(f"  v_pk_mul_f32 v[{a1}:{a1+1}], v[208:209], v[{xr}:{xr+1}] op_sel:[0,1] op_sel_hi:[1,1]")
                else:
                    e(f"  v_pk_fma_f32 v[{a0}:{a0+1}], v[208:209], v[{xr}:{xr+1}], v[{a0}:{a0+1}] op_sel_hi:[1,0,1]")
                    e(f"  v_pk_fma_f32 v[{a1}:{a1+1}], v[208:209], v[{xr}:{xr+1}], v[{a1}:{a1+1}] op_sel:[0,1,0] op_sel_hi:[1,1,1]")
        dpp_steps(list(range(A, A+8)), ["quad_perm:[2,3,0,1]", "row_ror:4", "row_ror:8"])
        swap_steps(list(range(A, A+8)), list(range(220, 228)))
        e("  s_mul_i32 s75, s3, 192")
        e("  v_lshlrev_b32 v5, 4, v1")
        e("  v_add_u32 v5, s75, v5")
        e("  s_mov_b64 exec, 0x3")
        e(f"  ds_write_b128 v5, v[{A}:{A+3}] offset:{L_QP+128}")
        e(f"  ds_write_b128 v5, v[{A+4}:{A+7}] offset:{L_QP+160}")
        e("  s_mov_b64 exec, 1")
        e(f"  ds_add_rtn_u32 v6, v7, v8 offset:4")
        e("  s_mov_b64 exec, -1")
        e("  s_waitcnt lgkmcnt(0)")
        e("  v_readfirstlane_b32 s75, v6")
        e("  s_cmp_lg_u32 s75, 7")
        e(f"  s_cbranch_scc1 K_HSKP{sfx}")
        e("  v_lshlrev_b32 v5, 3, v1")
        e("  s_mov_b64 exec, 0xff")
        for w in range(8):
            e(f"  ds_read_b64 v[{204+2*w}:{205+2*w}], v5 offset:{L_QP + w*192 + 128}")
        e("  v_lshrrev_b32 v6, 2, v1")
        e("  s_movk_i32 s75, 7168")
        e("  v_mul_lo_u32 v6, v6, s75")
        e("  v_and_b32 v9, 3, v1")
        e("  v_lshl_add_u32 v6, v9, 3, v6")
        e(f"  s_lshl_b32 s75, s{SHC}, 5")
        e(f"  s_add_u32 s75, s75, {WS_HG}")
        e("  s_waitcnt lgkmcnt(0)")
        e("  v_pk_add_f32 v[204:205], v[204:205], v[206:207]")
        e("  v_pk_add_f32 v[208:209], v[208:209], v[210:211]")
        e("  v_pk_add_f32 v[212:213], v[212:213], v[214:215]")
        e("  v_pk_add_f32 v[216:217], v[216:217], v[218:219]")
        e("  v_pk_add_f32 v[204:205], v[204:205], v[208:209]")
        e("  v_pk_add_f32 v[212:213], v[212:213], v[216:217]")
        e("  v_pk_add_f32 v[204:205], v[204:205], v[212:213]")
        e("  v_max_f32 v204, 0, v204")
        e("  v_max_f32 v205, 0, v205")
        e("  v_cvt_pk_bf16_f32 v204, v204, v205")
        e("  v_mov_b32 v205, s26")
        e(f"  buffer_store_dwordx2 v[204:205], v6, s[{SWS}:{SWS+3}], s75 offen sc1")
        e("  s_mov_b64 exec, -1")
        e(f"K_HSKP{sfx}:")
    def h_loads():
        e("  s_movk_i32 s75, 7168")
        e(f"  buffer_load_dwordx2 v[244:245], v248, s[{SWS}:{SWS+3}], 0 offen sc1")
        e(f"  buffer_load_dwordx2 v[246:247], v248, s[{SWS}:{SWS+3}], s75 offen sc1")

    def c_qk(KR, vk):
        e(f"  s_waitcnt vmcnt({vk})")
        tl()
        for t in range(2):
            for i in range(4):
                c = "0" if i == 0 else f"v[{ST+4*t}:{ST+4*t+3}]"
                e(f"  v_mfma_f32_16x16x32_bf16 v[{ST+4*t}:{ST+4*t+3}], v[{KR+16*t+4*i}:{KR+16*t+4*i+3}], v[{QF+4*i}:{QF+4*i+3}], {c}")
    def c_sm(nop=True):
        if nop:
            e("  s_nop 7")
            e("  s_nop 0")
        e(f"  v_max3_f32 v{T0}, v{ST}, v{ST+1}, v{ST+2}")
        e(f"  v_max3_f32 v{T1}, v{ST+3}, v{ST+4}, v{ST+5}")
        e(f"  v_max3_f32 v{T0}, v{T0}, v{ST+6}, v{ST+7}")
        e(f"  v_max_f32 v{T0}, v{T0}, v{T1}")
        e(f"  v_mov_b32 v{T1}, v{T0}")
        e("  s_nop 1")
        e(f"  v_permlane16_swap_b32 v{T0}, v{T1}")
        e("  s_nop 1")
        e(f"  v_max_f32 v{T0}, v{T0}, v{T1}")
        e(f"  v_mov_b32 v{T1}, v{T0}")
        e("  s_nop 1")
        e(f"  v_permlane32_swap_b32 v{T0}, v{T1}")
        e("  s_nop 1")
        e(f"  v_max3_f32 v{T0}, v{T0}, v{T1}, v{M_}")
        e(f"  v_sub_f32 v{AL}, v{M_}, v{T0}")
        e(f"  v_mul_f32 v{AL}, s{SC}, v{AL}")
        e(f"  v_exp_f32 v{AL}, v{AL}")
        e(f"  v_mov_b32 v{M_}, v{T0}")
        e(f"  v_mul_f32 v{MC}, s{SC}, v{T0}")
        for k in range(8):
            e(f"  v_fma_f32 v{ST+k}, v{ST+k}, s{SC}, -v{MC}")
        for k in range(8):
            e(f"  v_exp_f32 v{ST+k}, v{ST+k}")
        e("  s_nop 0")
        e(f"  v_mul_f32 v{L_}, v{L_}, v{AL}")
        for k in range(8):
            e(f"  v_add_f32 v{L_}, v{L_}, v{ST+k}")
        for q in range(4):
            e(f"  v_cvt_pk_bf16_f32 v{PF+q}, v{ST+2*q}, v{ST+2*q+1}")
        for r in range(32):
            e(f"  v_mul_f32 v{ACC+r}, v{ACC+r}, v{AL}")
    def c_pv(VR, vv):
        if vv is not None:
            e(f"  s_waitcnt vmcnt({vv})")
        tl()
        for t in range(8):
            c = t >> 1
            sel = f"s{SP1}" if (t & 1) else f"s{SP0}"
            for q in range(4):
                e(f"  v_perm_b32 v{TR+4*t+q}, v{VR+4*(2*q+1)+c}, v{VR+4*(2*q)+c}, {sel}")
        e("  s_nop 1")
        for t in range(8):
            e(f"  v_mfma_f32_16x16x32_bf16 v[{ACC+4*t}:{ACC+4*t+3}], v[{TR+4*t}:{TR+4*t+3}], v[{PF}:{PF+3}], v[{ACC+4*t}:{ACC+4*t+3}]")

    def compute(KR, VR, vk, vv):
        c_qk(KR, vk)
        c_sm()
        c_pv(VR, vv)

    def fetch():
        e("  s_mov_b64 exec, 1")
        e("  ds_add_rtn_u32 v9, v7, v8")
        e("  s_mov_b64 exec, -1")
    def getidx(sidx):
        e("  s_waitcnt lgkmcnt(0)")
        e(f"  v_readfirstlane_b32 s{sidx}, v9")

    if OPT["nw"] < 8:
        e(f"  s_cmp_ge_u32 s3, {OPT['nw']}")
        e("  s_cbranch_scc1 K_EXIT")
    def gen_loop(sfx, last):
        if OPT["nbuf"] == 3:
            fetch()
            compute(KA, VA, 24, 16)
            getidx(IDXA)
            loads(KA, VA, IDXA)
            compute(KB, VB, 24, 16)
            e(f"  s_cmp_ge_u32 s{IDXA}, 64")
            e("  s_cbranch_scc1 K_EXIT")
        e(f"K_LOOP{sfx}:")
        if OPT["nbuf"] == 2:
            fetch()
            compute(KA, VA, 24, 16)
            getidx(IDXA)
            loads(KA, VA, IDXA)
            e(f"  s_cmp_ge_u32 s{IDXB}, 64")
            e("  s_cbranch_scc1 K_EXIT")
            fetch()
            compute(KB, VB, 24, 16)
            getidx(IDXB)
            loads(KB, VB, IDXB)
            e(f"  s_cmp_lt_u32 s{IDXA}, 64")
            e(f"  s_cbranch_scc1 K_LOOP{sfx}")
        else:
            NS = OPT["ns"]
            fetch()
            getidx(73)
            if OPT["dup"] > 1:
                e(f"  s_cmp_lt_u32 s73, {OPT['dup']}")
                e(f"  s_cselect_b32 s75, 0, 4096")
                e(f"  s_and_b32 s73, s73, 63")
                e(f"  s_add_u32 s73, s73, s75")
            e(f"  s_cmp_lt_u32 s73, {NS}")
            e(f"  s_cbranch_scc1 K_STA{sfx}")
            e("  v_mov_b32 v9, 1")
            e("  v_mov_b32 v10, 0")
            e("  s_mov_b64 exec, 1")
            e(f"  buffer_atomic_add v9, v10, s[{SWS}:{SWS+3}], s93 offen sc0 sc1")
            e("  s_mov_b64 exec, -1")
            e(f"K_STA{sfx}:")
            compute(KA, VA, 8, 0)
            e(f"  s_cmp_ge_u32 s73, {NS}")
            e(f"  s_cbranch_scc1 K_DY2{sfx}")
            e(f"  s_add_u32 s{IDXA}, s73, s94")
            e(f"  s_branch K_ST2{sfx}")
            e(f"K_DY2{sfx}:")
            e(f"  v_readfirstlane_b32 s{IDXA}, v9")
            e(f"  s_cmp_lt_u32 s{IDXA}, {(1024-16*NS)//OPT['nsub']}")
            e(f"  s_cselect_b32 s{IDXA}, s{IDXA}, 2048")
            e(f"  s_add_u32 s{IDXA}, s{IDXA}, s92")
            e(f"K_ST2{sfx}:")
            if OPT["fifo"]:
                e(f"  s_cmp_ge_u32 s{IDXA}, 1024")
                e(f"  s_cbranch_scc1 K_FD{sfx}")
                e(f"  s_sub_u32 s73, s73, {OPT['fw']}")
                e(f"  s_mov_b32 s74, {OPT['bnd']:#x}")
                e(f"K_FW{sfx}:")
                e("  ds_read_b32 v9, v7 offset:8")
                e("  s_waitcnt lgkmcnt(0)")
                e("  v_readfirstlane_b32 s75, v9")
                e("  s_cmp_ge_u32 s75, s73")
                e(f"  s_cbranch_scc1 K_FD{sfx}")
                if OPT["fsl"]: e(f"  s_sleep {OPT['fsl']}")
                e("  s_sub_u32 s74, s74, 1")
                e("  s_cmp_lg_u32 s74, 0")
                e(f"  s_cbranch_scc1 K_FW{sfx}")
                e(f"K_FD{sfx}:")
            x_loads("L"+sfx)
            loads(KA, VA, IDXA)
            if OPT["fifo"]:
                e("  s_mov_b64 exec, 1")
                e("  ds_add_u32 v7, v8 offset:8")
                e("  s_mov_b64 exec, -1")
            h_phase("L"+sfx)
            e(f"  s_cmp_lt_u32 s{IDXA}, 1024")
            e(f"  s_cbranch_scc1 K_LOOP{sfx}")
        if not last:
            e("  s_branch K_EXIT")
    def fifo_wait(lbl, off):
        e(f"  s_mov_b32 s74, {OPT['bnd']:#x}")
        e(f"{lbl}:")
        e(f"  ds_read_b32 v9, v7 offset:{off}")
        e("  s_waitcnt lgkmcnt(0)")
        e("  v_readfirstlane_b32 s75, v9")
        e("  s_cmp_ge_u32 s75, s73")
        e(f"  s_cbranch_scc1 {lbl}D")
        if OPT["fsl"]: e(f"  s_sleep {OPT['fsl']}")
        e("  s_sub_u32 s74, s74, 1")
        e("  s_cmp_lg_u32 s74, 0")
        e(f"  s_cbranch_scc1 {lbl}")
        e(f"{lbl}D:")
    def fifo_add(off):
        e("  s_mov_b64 exec, 1")
        e(f"  ds_add_u32 v7, v8 offset:{off}")
        e("  s_mov_b64 exec, -1")
    def gen_loop_sp():
        e("K_LOOP:")
        fetch()
        getidx(73)
        c_qk(KA, 8)
        e("  s_cmp_ge_u32 s73, 64")
        e("  s_cbranch_scc1 K_NK")
        e(f"  s_add_u32 s{IDXA}, s73, s94")
        blkoff(IDXA)
        e(f"  v_add_u32 v5, s75, v{VKOFF}")
        e(f"  v_add_u32 v6, s75, v{VVOFF}")
        fifo_wait("K_FK", 8)
        kchunk(KA, 5)
        fifo_add(8)
        e("K_NK:")
        c_sm(nop=True)
        e("  s_cmp_lt_u32 s73, 64")
        e("  s_cbranch_scc1 K_W8")
        e("  s_waitcnt vmcnt(0)")
        e("K_W8:")
        c_pv(VA, 8)
        e("  s_cmp_ge_u32 s73, 64")
        e("  s_cbranch_scc1 K_NV")
        fifo_wait("K_FV", 12)
        vchunk(VA, 6)
        fifo_add(12)
        e("K_NV:")
        x_loads("L")
        h_phase("L")
        e("  s_cmp_lt_u32 s73, 64")
        e("  s_cbranch_scc1 K_LOOP")
    if OPT["sp"]:
        gen_loop_sp()
    elif OPT["T"]:
        e(f"  s_lshl_b32 s75, s{SB}, 3")
        e(f"  s_add_u32 s75, s75, s{SG}")
        e(f"  s_cmp_lt_u32 s75, {OPT['T']}")
        e("  s_cbranch_scc1 K_LOOPlo")
        POL["k"] = "" if OPT["phi"] & 1 else nt
        POL["v"] = "" if OPT["phi"] & 2 else nt
        gen_loop("hi", False)
        POL["k"] = "" if OPT["plo"] & 1 else nt
        POL["v"] = "" if OPT["plo"] & 2 else nt
        gen_loop("lo", True)
    else:
        gen_loop("", True)
    e("K_EXIT:")
    if OPT["prof"] == 1: stamp(4)
    tl(OPT["prof"])
    tl_dump()
    e("  s_cmp_eq_u32 s27, 0")
    e("  s_cbranch_scc1 K_X0")
    x_loads("E")
    e("  s_mov_b32 s27, 1")
    e("  s_waitcnt vmcnt(0)")
    h_phase("E")
    e("K_X0:")
    e("  s_cmp_ge_u32 s2, 224")
    e("  s_cbranch_scc1 K_HSK")
    e("  v_lshrrev_b32 v5, 1, v12")
    e("  v_lshlrev_b32 v248, 3, v5")
    e("  s_lshr_b32 s75, s2, 3")
    e("  s_lshl_b32 s75, s75, 8")
    e(f"  s_add_u32 s75, s75, {WS_HG}")
    e("  v_add_u32 v248, s75, v248")
    h_loads()
    e("K_HSK:")
    e(f"  v_mov_b32 v{T1}, v{L_}")
    e("  s_nop 1")
    e(f"  v_permlane16_swap_b32 v{L_}, v{T1}")
    e("  s_nop 1")
    e(f"  v_add_f32 v{L_}, v{L_}, v{T1}")
    e(f"  v_mov_b32 v{T1}, v{L_}")
    e("  s_nop 1")
    e(f"  v_permlane32_swap_b32 v{L_}, v{T1}")
    e("  s_nop 1")
    e(f"  v_add_f32 v{L_}, v{L_}, v{T1}")
    e("  v_cmp_gt_u32 vcc, 4, v3")
    e("  s_and_saveexec_b64 s[78:79], vcc")
    e("  v_lshlrev_b32 v5, 11, v2")
    e("  v_lshl_add_u32 v5, v3, 9, v5")
    e("  v_lshl_add_u32 v5, v4, 7, v5")
    e("  s_nop 4")
    for t in range(8):
        for r in range(4):
            e(f"  ds_write_b32 v5, v{ACC+4*t+r} offset:{L_O + (r*8+t)*4}")
    e("  v_cmp_gt_u32 vcc, 4, v1")
    e("  s_and_b64 exec, exec, vcc")
    e("  v_lshlrev_b32 v6, 5, v2")
    e("  v_lshl_add_u32 v6, v3, 3, v6")
    e(f"  ds_write_b32 v6, v{M_} offset:{L_ML}")
    e(f"  ds_write_b32 v6, v{L_} offset:{L_ML+4}")
    e("  s_mov_b64 exec, s[78:79]")
    e("  s_waitcnt lgkmcnt(0)")
    e("  s_barrier")
    e("  v_lshrrev_b32 v5, 7, v0")
    e("  v_and_b32 v6, 127, v0")
    e("  v_lshlrev_b32 v7, 3, v5")
    for w in range(8):
        e(f"  ds_read_b64 v[{160+2*w}:{161+2*w}], v7 offset:{L_ML + w*32}")
    e("  v_lshlrev_b32 v8, 9, v5")
    e("  v_lshl_add_u32 v8, v6, 2, v8")
    for w in range(8):
        e(f"  ds_read_b32 v{176+w}, v8 offset:{L_O + w*2048}")
    e("  s_waitcnt lgkmcnt(0)")
    e("  v_max3_f32 v184, v160, v162, v164")
    e("  v_max3_f32 v185, v166, v168, v170")
    e("  v_max3_f32 v184, v184, v172, v174")
    e("  v_max_f32 v184, v184, v185")
    e("  v_mov_b32 v186, 0")
    e("  v_mov_b32 v187, 0")
    for w in range(8):
        e(f"  v_sub_f32 v185, v{160+2*w}, v184")
        e(f"  v_mul_f32 v185, s{SC}, v185")
        e("  v_exp_f32 v185, v185")
        e("  s_nop 0")
        e(f"  v_fmac_f32 v186, v185, v{161+2*w}")
        e(f"  v_fmac_f32 v187, v185, v{176+w}")
    e(f"  s_lshl_b32 s75, s{SB}, 5")
    e(f"  s_lshl_b32 s76, s{SG}, 2")
    e("  s_add_u32 s75, s75, s76")
    e("  s_lshl_b32 s75, s75, 4")
    e(f"  s_add_u32 s75, s75, s{SSPL}")
    e("  v_lshlrev_b32 v7, 4, v5")
    e("  v_add_u32 v7, s75, v7")
    e("  v_lshlrev_b32 v8, 10, v7")
    e("  v_lshl_add_u32 v8, v6, 3, v8")
    e(f"  s_mov_b32 s75, {WS_OG}")
    e("  v_mov_b32 v188, v187")
    e("  v_mov_b32 v189, s26")
    e(f"  buffer_store_dwordx2 v[188:189], v8, s[{SWS}:{SWS+3}], s75 offen sc1")
    e("  v_cmp_eq_u32 vcc, 0, v6")
    e("  s_and_saveexec_b64 s[78:79], vcc")
    e("  v_lshlrev_b32 v7, 4, v7")
    e("  v_mov_b32 v185, v186")
    e("  v_mov_b32 v186, s26")
    e(f"  s_mov_b32 s75, {WS_MG}")
    e(f"  buffer_store_dwordx3 v[184:186], v7, s[{SWS}:{SWS+3}], s75 offen sc1")
    e("  s_mov_b64 exec, s[78:79]")
    if OPT["prof"] == 1: stamp(5)

    def prod(wregs, vecaddr_rows, accbase, nrows):
        for r in range(16):
            e(f"  v_mov_b32 v{accbase+r}, 0")
        for i in range(nrows):
            for c in range(4):
                w = wregs + 4 * i + c
                e(f"  v_lshlrev_b32 v160, 16, v{w}")
                e(f"  v_and_b32 v161, 0xffff0000, v{w}")
                e(f"  v_fmac_f32 v{accbase+2*c}, v160, v{168+2*i}")
                e(f"  v_fmac_f32 v{accbase+1+2*c}, v161, v{168+2*i}")
                e(f"  v_fmac_f32 v{accbase+8+2*c}, v160, v{169+2*i}")
                e(f"  v_fmac_f32 v{accbase+9+2*c}, v161, v{169+2*i}")
        dpp_steps(list(range(accbase, accbase + 16)), ["row_ror:8"])

    def reduce_store(lbase, label, snc):
        e("  v_lshlrev_b32 v5, 2, v2")
        e("  v_add_u32 v5, v5, v4")
        e("  v_lshlrev_b32 v5, 9, v5")
        e("  v_and_b32 v6, 7, v1")
        e("  v_lshl_add_u32 v5, v6, 5, v5")
        e("  v_and_b32 v6, 8, v1")
        e("  v_cmp_eq_u32 vcc, 0, v6")
        e("  s_and_saveexec_b64 s[78:79], vcc")
        e(f"  ds_write_b128 v5, v[180:183] offset:{lbase}")
        e(f"  ds_write_b128 v5, v[184:187] offset:{lbase+16}")
        e(f"  ds_write_b128 v5, v[188:191] offset:{lbase+256}")
        e(f"  ds_write_b128 v5, v[192:195] offset:{lbase+256+16}")
        e("  s_mov_b64 exec, s[78:79]")
        e("  s_waitcnt lgkmcnt(0)")
        e("  s_barrier")
        e("  s_cmp_ge_u32 s3, 2")
        e(f"  s_cbranch_scc1 {label}")
        e("  v_lshlrev_b32 v5, 2, v0")
        for p in range(32):
            e(f"  ds_read_b32 v{204+p}, v5 offset:{lbase + p*512}")
        e("  s_waitcnt lgkmcnt(0)")
        for p in range(1, 31, 2):
            e(f"  v_add_f32 v{204+p}, v{204+p}, v{205+p}")
        e("  v_add_f32 v204, v204, v235")
        for p in range(1, 31, 2):
            e(f"  v_add_f32 v204, v204, v{204+p}")
        e("  v_lshlrev_b32 v5, 12, v2")
        e("  v_lshl_add_u32 v5, v1, 3, v5")
        e(f"  s_lshl_b32 s76, s{snc}, 9")
        e(f"  s_add_u32 s75, s75, s76")
        e("  v_mov_b32 v205, s26")
        e(f"  buffer_store_dwordx2 v[204:205], v5, s[{SWS}:{SWS+3}], s75 offen sc1")
        e(f"{label}:")

    e("  s_cmp_ge_u32 s2, 224")
    e("  s_cbranch_scc1 K_T4")
    e(f"  s_mov_b32 s74, {OPT['bnd']:#x}")
    e("  s_waitcnt vmcnt(1)")
    e("K_HR:")
    e("  v_cmp_ne_u32 vcc, s26, v245")
    e("  v_cmp_ne_u32 s[78:79], s26, v247")
    e("  s_or_b64 vcc, vcc, s[78:79]")
    e("  s_cmp_eq_u64 vcc, 0")
    e("  s_cbranch_scc1 K_HOK")
    h_loads()
    e("  s_waitcnt vmcnt(0)")
    e("  s_sub_u32 s74, s74, 1")
    e("  s_cmp_lg_u32 s74, 0")
    e("  s_cbranch_scc1 K_HR")
    e("K_HOK:")
    e("  v_and_b32 v5, 1, v12")
    e("  v_cmp_eq_u32 vcc, 1, v5")
    e("  v_lshlrev_b32 v168, 16, v244")
    e("  v_and_b32 v5, 0xffff0000, v244")
    e("  v_lshlrev_b32 v169, 16, v246")
    e("  v_and_b32 v6, 0xffff0000, v246")
    e("  v_cndmask_b32 v168, v168, v5, vcc")
    e("  v_cndmask_b32 v169, v169, v6, vcc")
    prod(W2, None, 180, 1)
    e("  s_lshr_b32 s75, s2, 3")
    e("  s_lshl_b32 s75, s75, 13")
    e(f"  s_add_u32 s75, s75, {WS_GG}")
    reduce_store(L_FP, "K_T3B", SNC)
    e("K_T4:")
    if not OPT["mf"]:
        e("  s_cmp_ge_u32 s3, 4")
        e("  s_cbranch_scc1 K_T6")
        e("  v_lshrrev_b32 v6, 7, v0")
        e("  v_and_b32 v7, 127, v0")
        e("  v_lshlrev_b32 v8, 5, v6")
        e(f"  v_add_u32 v8, s{SHEAD}, v8")
        e("  v_lshlrev_b32 v9, 8, v8")
        e("  v_lshlrev_b32 v10, 14, v8")
        e("  v_lshl_add_u32 v10, v7, 3, v10")
        e(f"  s_mov_b32 s76, {WS_MG}")
        def iss2(sp):
            e(f"  s_mov_b32 s75, {WS_OG + 4096*(sp>>2)}")
            bits = {0:"", 1:" sc1", 2:" sc0", 3:" sc0 sc1", 4:" nt", 5:" sc0 nt"}[OPT["p2"]]
            e(f"  buffer_load_dwordx2 v[{16+2*sp}:{17+2*sp}], v10, s[{SWS}:{SWS+3}], s75 offen offset:{(sp&3)*1024}{bits}")
            e(f"  buffer_load_dwordx3 v[{48+4*sp}:{50+4*sp}], v9, s[{SWS}:{SWS+3}], s76 offen offset:{sp*16}{bits}")
        mpoll("K_P2", 16, iss2, lambda sp: [17+2*sp, 50+4*sp], OPT["thr"])
        if OPT["prof"] == 1: stamp(6)
        M = lambda sp: 48+4*sp
        e(f"  v_max3_f32 v112, v{M(0)}, v{M(1)}, v{M(2)}")
        for sp in range(3, 15, 2):
            e(f"  v_max3_f32 v112, v112, v{M(sp)}, v{M(sp+1)}")
        e(f"  v_max_f32 v112, v112, v{M(15)}")
        e("  v_mov_b32 v113, 0")
        e("  v_mov_b32 v114, 0")
        for sp in range(16):
            e(f"  v_sub_f32 v{M(sp)}, v{M(sp)}, v112")
            e(f"  v_mul_f32 v{M(sp)}, s{SC}, v{M(sp)}")
            e(f"  v_exp_f32 v{M(sp)}, v{M(sp)}")
        e("  s_nop 0")
        for sp in range(16):
            e(f"  v_fmac_f32 v113, v{M(sp)}, v{M(sp)+1}")
            e(f"  v_fmac_f32 v114, v{M(sp)}, v{16+2*sp}")
        e("  v_mov_b32 v49, v113")
        e("  v_mov_b32 v50, v114")
        e("  v_rcp_f32 v49, v49")
        e("  s_nop 0")
        e("  v_mul_f32 v50, v50, v49")
        round_bf16(50, 50)
        e("  v_lshlrev_b32 v8, 2, v0")
        e(f"  ds_write_b32 v8, v50 offset:{L_VEC}")
        e("  s_waitcnt lgkmcnt(0)")
        e("K_T6:")
        e("  s_barrier")
        e("  v_lshlrev_b32 v5, 2, v12")
        e(f"  ds_read_b32 v168, v5 offset:{L_VEC}")
        e(f"  ds_read_b32 v169, v5 offset:{L_VEC+512}")
        e(f"  ds_read_b32 v170, v5 offset:{L_VEC+256}")
        e(f"  ds_read_b32 v171, v5 offset:{L_VEC+512+256}")
        e("  s_waitcnt lgkmcnt(0)")
        prod(WO, None, 180, 2)
        e(f"  s_lshl_b32 s75, s{SHEAD}, 13")
        e(f"  s_add_u32 s75, s75, {WS_SG}")
        reduce_store(L_SP, "K_T6B", SNO)
    else:
        e("  s_cmp_ge_u32 s3, 4")
        e("  s_cbranch_scc1 K_END")
        e("  s_and_b32 s75, s3, 1")
        e("  s_cmp_eq_u32 s75, 1")
        e(f"  s_cselect_b32 s75, s{SP1}, s{SP0}")
        for ks in range(4):
            for q in range(4):
                e(f"  v_perm_b32 v{112+ks*4+q}, v{80+ks*8+2*q+1}, v{80+ks*8+2*q}, s75")
        e("  v_lshrrev_b32 v6, 7, v0")
        e("  v_and_b32 v7, 127, v0")
        e("  v_lshlrev_b32 v8, 5, v6")
        e(f"  v_add_u32 v8, s{SHEAD}, v8")
        e("  v_lshlrev_b32 v9, 8, v8")
        e("  v_lshlrev_b32 v10, 14, v8")
        e("  v_lshl_add_u32 v10, v7, 3, v10")
        e(f"  s_mov_b32 s76, {WS_MG}")
        def iss2(sp):
            e(f"  s_mov_b32 s75, {WS_OG + 4096*(sp>>2)}")
            e(f"  buffer_load_dwordx2 v[{16+2*sp}:{17+2*sp}], v10, s[{SWS}:{SWS+3}], s75 offen offset:{(sp&3)*1024} sc1")
            e(f"  buffer_load_dwordx3 v[{48+4*sp}:{50+4*sp}], v9, s[{SWS}:{SWS+3}], s76 offen offset:{sp*16} sc1")
        e("  v_and_b32 v11, 1, v3")
        e("  v_lshlrev_b32 v11, 8, v11")
        e("  v_lshl_add_u32 v11, v4, 4, v11")
        e("  v_and_b32 v12, 1, v4")
        e("  v_lshlrev_b32 v13, 12, v12")
        e("  v_lshl_add_u32 v13, v3, 4, v13")
        e("  s_lshr_b32 s75, s3, 1")
        e("  s_lshl_b32 s75, s75, 8")
        e("  s_and_b32 s78, s3, 1")
        e("  s_lshl_b32 s78, s78, 3")
        e("  s_add_u32 s75, s75, s78")
        e(f"  s_lshl_b32 s78, s{SNO}, 9")
        e("  s_add_u32 s75, s75, s78")
        e(f"  s_lshl_b32 s78, s{SHEAD}, 13")
        e("  s_add_u32 s75, s75, s78")
        e(f"  s_add_u32 s75, s75, {WS_SG}")
        e("  v_add_u32 v13, s75, v13")
        mpoll("K_P2", 16, iss2, lambda sp: [17+2*sp, 50+4*sp], OPT["thr"])
        if OPT["prof"] == 1: stamp(6)
        M = lambda sp: 48+4*sp
        e(f"  v_max3_f32 v128, v{M(0)}, v{M(1)}, v{M(2)}")
        for sp in range(3, 15, 2):
            e(f"  v_max3_f32 v128, v128, v{M(sp)}, v{M(sp+1)}")
        e(f"  v_max_f32 v128, v128, v{M(15)}")
        e("  v_mov_b32 v129, 0")
        e("  v_mov_b32 v130, 0")
        for sp in range(16):
            e(f"  v_sub_f32 v{M(sp)}, v{M(sp)}, v128")
            e(f"  v_mul_f32 v{M(sp)}, s{SC}, v{M(sp)}")
            e(f"  v_exp_f32 v{M(sp)}, v{M(sp)}")
        e("  s_nop 0")
        for sp in range(16):
            e(f"  v_fmac_f32 v129, v{M(sp)}, v{M(sp)+1}")
            e(f"  v_fmac_f32 v130, v{M(sp)}, v{16+2*sp}")
        e("  v_rcp_f32 v129, v129")
        e("  s_nop 0")
        e("  v_mul_f32 v130, v130, v129")
        e("  v_cvt_pk_bf16_f32 v130, v130, v130")
        e("  v_lshlrev_b32 v8, 1, v0")
        e(f"  ds_write_b16 v8, v130 offset:{L_VEC}")
        e("  s_waitcnt lgkmcnt(0)")
        e("  s_barrier")
        for ks in range(4):
            e(f"  ds_read_b128 v[{132+4*ks}:{135+4*ks}], v11 offset:{L_VEC + ks*64}")
        e("  s_waitcnt lgkmcnt(0)")
        for ks in range(4):
            c = "0" if ks == 0 else "v[148:151]"
            e(f"  v_mfma_f32_16x16x32_bf16 v[148:151], v[{132+4*ks}:{135+4*ks}], v[{112+4*ks}:{115+4*ks}], {c}")
        e("  v_cmp_eq_u32 vcc, 1, v12")
        e("  v_mov_b32 v153, s26")
        e("  s_nop 7")
        e("  s_nop 7")
        e("  v_cndmask_b32 v152, v148, v149, vcc")
        e("  s_mov_b64 exec, 0xffffffff")
        e(f"  buffer_store_dwordx2 v[152:153], v13, s[{SWS}:{SWS+3}], 0 offen sc1")
        e("  s_mov_b64 exec, -1")
    if OPT["prof"] == 1: stamp(7)
    e("  s_cmp_ge_u32 s2, 8")
    e("  s_cbranch_scc1 K_END")
    e("  s_cmp_ge_u32 s3, 4")
    e("  s_cbranch_scc1 K_END")
    def gpoll(label, n, base):
        def iss(k):
            e(f"  s_mov_b32 s75, {base + k*8192}")
            e(f"  buffer_load_dwordx2 v[{16+2*k}:{17+2*k}], v10, s[{SWS}:{SWS+3}], s75 offen sc1")
        mpoll(label, n, iss, lambda k: [17+2*k], None)
        for k in range(1, n):
            e(f"  v_add_f32 v16, v16, v{16+2*k}")
    e("  v_and_b32 v5, 1, v2")
    e("  v_lshlrev_b32 v5, 11, v5")
    e("  v_lshl_add_u32 v5, v1, 2, v5")
    e(f"  s_lshl_b32 s76, s{SNC}, 8")
    e("  v_add_u32 v5, s76, v5")
    e("  v_lshlrev_b32 v10, 1, v5")
    e("  s_cmp_ge_u32 s3, 2")
    e("  s_cbranch_scc1 K_FG")
    e("  v_lshrrev_b32 v6, 1, v5")
    e(f"  buffer_load_ushort v4, v6, s[{SX}:{SX+3}], 0 offen")
    gpoll("K_P3", 32, WS_SG)
    round_bf16(16, 16)
    e("  s_barrier")
    e("  v_lshlrev_b32 v7, 2, v0")
    e(f"  ds_read_b32 v8, v7 offset:{L_GX}")
    e("  s_waitcnt lgkmcnt(0)")
    e("  v_mul_f32 v8, v8, v16")
    round_bf16(8, 8)
    e("  v_lshlrev_b32 v4, 16, v4")
    e("  v_add_f32 v8, v8, v4")
    e("  v_cvt_pk_bf16_f32 v8, v8, v8")
    e(f"  buffer_store_short v8, v6, s[{SOUT}:{SOUT+3}], 0 offen")
    e("  s_or_b32 s75, s2, s3")
    e("  s_cmp_lg_u32 s75, 0")
    e("  s_cbranch_scc1 K_END")
    e("  s_mov_b64 exec, 1")
    e(f"  v_mov_b32 v5, {WS_EP}")
    e("  v_mov_b32 v6, s26")
    e(f"  buffer_store_dword v6, v5, s[{SWS}:{SWS+3}], 0 offen")
    e("  s_branch K_END")
    e("K_FG:")
    gpoll("K_P4", 28, WS_GG)
    round_bf16(16, 16)
    e("  v_mul_f32 v5, 0xbfb8aa3b, v16")
    e("  v_exp_f32 v5, v5")
    e("  s_nop 0")
    e("  v_add_f32 v5, 1.0, v5")
    e("  v_rcp_f32 v5, v5")
    e("  s_nop 0")
    e("  v_mul_f32 v5, v5, v16")
    round_bf16(5, 5)
    e("  v_and_b32 v7, 127, v0")
    e("  v_lshlrev_b32 v7, 2, v7")
    e(f"  ds_write_b32 v7, v5 offset:{L_GX}")
    e("  s_waitcnt lgkmcnt(0)")
    e("  s_barrier")
    e("K_END:")
    dump_stamps()
    e("  s_endpgm")
    e('.section .rodata,"a"')
    e(".p2align 6")
    e(f".amdhsa_kernel {name}")
    e("  .amdhsa_next_free_vgpr 256")
    e("  .amdhsa_next_free_sgpr 102")
    e("  .amdhsa_accum_offset 256")
    e("  .amdhsa_group_segment_fixed_size 0")
    e("  .amdhsa_kernarg_size 88")
    e("  .amdhsa_user_sgpr_count 2")
    e("  .amdhsa_user_sgpr_kernarg_segment_ptr 1")
    e("  .amdhsa_system_sgpr_workgroup_id_x 1")
    e(".end_amdhsa_kernel")

def main():
    path = f"cdna_kernels/{NAME}.s"
    for a in sys.argv[1:]:
        if "=" in a:
            k, v = a.split("=", 1)
            OPT[k] = (" " + v if v else "") if k == "nt" else int(v)
        else:
            path = a
    e(HEADER.rstrip("\n"))
    e(f"; @launch grid=(256,1,1) block=(512,1,1) lds={LDS_SIZE}")
    e('.amdgcn_target "amdgcn-amd-amdhsa--gfx950"')
    gen()
    open(path, "w").write("\n".join(out) + "\n")

main()
```

```python
import sys

NAME = "recurrent_scan__gqa_block_cached__dense_activation_relu__decode"

HEADER = """; Kernarg layout for this problem (88 bytes, ptrs only, base s[0:1]):
;   offset   0: d_in[0] A_x  shape=(2, 1, 512) dtype=bfloat16 strides=(1024, 1024, 2) contiguous=True
;   offset   8: d_in[1] A_k_cache  shape=(2, 8, 32768, 128) dtype=bfloat16 strides=(67108864, 8388608, 256, 2) contiguous=True
;   offset  16: d_in[2] A_v_cache  shape=(2, 8, 32768, 128) dtype=bfloat16 strides=(67108864, 8388608, 256, 2) contiguous=True
;   offset  24: d_in[3] A_wq  shape=(512, 4096) dtype=bfloat16 strides=(8192, 2) contiguous=True
;   offset  32: d_in[4] A_wo  shape=(4096, 512) dtype=bfloat16 strides=(1024, 2) contiguous=True
;   offset  40: d_in[5] B_x  shape=(2, 1, 512) dtype=bfloat16 strides=(1024, 1024, 2) contiguous=True
;   offset  48: d_in[6] B_w1  shape=(512, 1792) dtype=bfloat16 strides=(3584, 2) contiguous=True
;   offset  56: d_in[7] B_w2  shape=(1792, 512) dtype=bfloat16 strides=(1024, 2) contiguous=True
"""

WS_Q = 0
WS_H = 16384
WS_ML = 32768
WS_O = 65536
WS_P = 1 << 20
WS_G = WS_P + 131072
WS_SIZE = 536870912
WS_QG = 2 << 20
WS_HG = WS_QG + 32768
WS_EP = WS_QG + 65536
WS_QF = WS_QG + 131072
WS_OG = 5 << 20
WS_MG = 6 << 20
WS_SG = WS_MG + 65536
WS_GG = 7 << 20
WS_PC = 3 << 20

L_XN = 0
L_QP = 4096
L_Q = 5632
L_HV = 6656
L_CNT = 7168
L_O = 8192
L_ML = 26624
L_FP = 27136
L_VEC = 0
L_SP = 8192
L_GX = 1024
LDS_SIZE = 43520

OPT = dict(nt=" nt", sleep=1, prof=0, pre0=0, pace=8, bar0=1, wsc=0, thr=2, p2=1, ilv=0, kx=0, nbuf=1, nw=8, kpl=0, vpl=0, T=0, plo=0, phi=0, mf=1, prex=0, qs=0, warm=0, xb=1, f1=8, np=8, sl=8, psl=8, bnd=0x100000, bar2=1, f2=8, rot=0, map=1, ns=64, fake=0, warmp=0, nsub=4, fifo=1, fw=0, fsl=1, dup=1, rs=1, qsl=0, qp=4, sp=1, nf=10, cb=1, fd=0, fdt=32, gate=0, gthr=2, gsl=1, t2=1, spec=8, psl2=1, pw=1, fsl2=1, fw2=1, obar=0, f1st=1, pf=1)

out = []
def e(s=""):
    out.append(s)

def srd(dst, lo, hi, nbytes):
    e(f"  s_mov_b32 s{dst}, s{lo}")
    e(f"  s_and_b32 s{dst+1}, s{hi}, 0xffff")
    e(f"  s_mov_b32 s{dst+2}, {nbytes}")
    e(f"  s_mov_b32 s{dst+3}, 0x00020000")

def dpp_steps(regs, ctrls):
    for ctrl in ctrls:
        e("  s_nop 1")
        for r in regs:
            e(f"  v_add_f32_dpp v{r}, v{r}, v{r} {ctrl} row_mask:0xf bank_mask:0xf")

def swap_steps(regs, tmp):
    for sw in ["v_permlane16_swap_b32", "v_permlane32_swap_b32"]:
        for r, t in zip(regs, tmp):
            e(f"  v_mov_b32 v{t}, v{r}")
        e("  s_nop 1")
        for r, t in zip(regs, tmp):
            e(f"  {sw} v{r}, v{t}")
        e("  s_nop 1")
        for r, t in zip(regs, tmp):
            e(f"  v_add_f32 v{r}, v{r}, v{t}")

def red_steps(regs, tmp, op, ctrls=("row_ror:4", "row_ror:8")):
    for ctrl in ctrls:
        e("  s_nop 1")
        for r in regs:
            e(f"  {op}_dpp v{r}, v{r}, v{r} {ctrl} row_mask:0xf bank_mask:0xf")
    for sw in ["v_permlane16_swap_b32", "v_permlane32_swap_b32"]:
        for r, t in zip(regs, tmp):
            e(f"  v_mov_b32 v{t}, v{r}")
        e("  s_nop 1")
        for r, t in zip(regs, tmp):
            e(f"  {sw} v{r}, v{t}")
        e("  s_nop 1")
        for r, t in zip(regs, tmp):
            e(f"  {op} v{r}, v{r}, v{t}")

def wave_sum(regs, tmp):
    dpp_steps(regs, ["quad_perm:[1,0,3,2]", "quad_perm:[2,3,0,1]", "row_half_mirror", "row_mirror"])
    swap_steps(regs, tmp)

def round_bf16(dst, src):
    e(f"  v_cvt_pk_bf16_f32 v{dst}, v{src}, v{src}")
    e(f"  v_lshlrev_b32 v{dst}, 16, v{dst}")

WS_PROF = 4 << 20
def stamp(k):
    if not OPT["prof"] or OPT["prof"] >= 3:
        return
    e("  s_memrealtime s[80:81]")
    e("  s_waitcnt lgkmcnt(0)")
    e(f"  s_mov_b32 s{92+k}, s80")

WS_PROF3 = 8 << 20
def tl(k=3):
    if OPT["prof"] != k:
        return
    e("  s_memrealtime s[98:99]")
    e("  s_waitcnt lgkmcnt(0)")
    e("  v_writelane_b32 v251, s98, m0")
    e("  s_add_u32 m0, m0, 1")

def tl6(i):
    if OPT["prof"] != 6:
        return
    e(f"  s_mov_b32 m0, {i}")
    tl(6)

def tl_dump(final=False):
    if OPT["prof"] < 3:
        return
    if (OPT["prof"] == 6) != final:
        return
    if final:
        e("  s_mov_b64 exec, -1")
    e("  s_lshl_b32 s82, s2, 3")
    e("  s_add_u32 s82, s82, s3")
    e("  s_lshl_b32 s82, s82, 8")
    e(f"  s_add_u32 s82, s82, {WS_PROF3}")
    e("  v_lshlrev_b32 v5, 2, v1")
    e(f"  buffer_store_dword v251, v5, s[{SWS}:{SWS+3}], s82 offen")

def dump_stamps():
    if not OPT["prof"]:
        return
    if OPT["prof"] >= 3:
        tl6(7)
        tl_dump(True)
        e("K_END2:")
        return
    e("  s_cmp_ge_u32 s3, 2")
    e("  s_cbranch_scc1 K_END2")
    e("  s_cmp_ge_u32 s2, 256")
    e("  s_cbranch_scc1 K_END2")
    stamp(8)
    e("  s_lshl_b32 s82, s2, 1")
    e("  s_add_u32 s82, s82, s3")
    e("  s_lshl_b32 s82, s82, 6")
    e(f"  s_add_u32 s82, s82, {WS_PROF}")
    e("  s_mov_b64 exec, 1")
    e("  v_mov_b32 v6, 0")
    for k in range(9):
        e(f"  v_mov_b32 v5, s{92+k}")
        e(f"  buffer_store_dword v5, v6, s[{SWS}:{SWS+3}], s82 offen offset:{k*4}")
    e("K_END2:")

SX, SK, SV, SWQ, SW1, SWO, SW2, SWS, SDBG, SOUT = 28, 60, 64, 40, 44, 48, 52, 20, 999, 32
SC, SP0, SP1 = 68, 69, 70
IDXA, IDXB = 72, 73
SG, SR, SB, SSPL, SNC, SHEAD = 86, 87, 88, 89, 90, 91
SNO, SCG, SHC = 83, 84, 85

def poll(label, nlanes, voff, target, tmpv):
    e(f"  s_mov_b64 exec, {(1<<nlanes)-1:#x}")
    e("  s_mov_b32 s74, 0x400000")
    e(f"{label}:")
    e(f"  buffer_load_dword v{tmpv}, v{voff}, s[{SDBG}:{SDBG+3}], 0 offen sc1")
    e("  s_waitcnt vmcnt(0)")
    e(f"  v_cmp_ne_u32 vcc, {target}, v{tmpv}")
    e("  s_cmp_eq_u64 vcc, 0")
    e(f"  s_cbranch_scc1 {label}_DONE")
    if OPT["sleep"]:
        e(f"  s_sleep {OPT['sleep']}")
    e("  s_sub_u32 s74, s74, 1")
    e("  s_cmp_lg_u32 s74, 0")
    e(f"  s_cbranch_scc1 {label}")
    e(f"{label}_DONE:")
    e("  s_mov_b64 exec, -1")

def mpoll(label, n, issue, tags, thr):
    full = (1 << n) - 1
    e("  s_not_b32 s75, s26")
    for k in range(n):
        for x in tags(k):
            e(f"  v_mov_b32 v{x}, s75")
    e("  s_mov_b32 s77, 0")
    e(f"  s_mov_b32 s74, {OPT['bnd']:#x}")
    e(f"{label}:")
    for k in range(n):
        e(f"  s_bitcmp1_b32 s77, {k}")
        e(f"  s_cbranch_scc1 {label}S{k}")
        issue(k)
        e(f"{label}S{k}:")
    if thr is not None:
        e(f"  s_xor_b32 s75, s77, {full:#x}")
        e("  s_bcnt1_i32_b32 s75, s75")
        e(f"  s_cmp_le_u32 s75, {thr}")
        e(f"  s_cbranch_scc1 {label}F")
        e("  s_waitcnt vmcnt(0)")
        e(f"{label}F:")
    if OPT["sleep"]:
        e(f"  s_sleep {OPT['sleep']}")
    for k in range(n):
        t = tags(k)
        e(f"  v_cmp_eq_u32 vcc, s26, v{t[0]}")
        for x in t[1:]:
            e(f"  v_cmp_eq_u32 s[78:79], s26, v{x}")
            e("  s_and_b64 vcc, vcc, s[78:79]")
        e("  s_cmp_eq_u64 vcc, -1")
        e(f"  s_cselect_b32 s75, {1<<k:#x}, 0")
        e("  s_or_b32 s77, s77, s75")
    e(f"  s_cmp_eq_u32 s77, {full:#x}")
    e(f"  s_cbranch_scc1 {label}_DONE")
    e("  s_sub_u32 s74, s74, 1")
    e("  s_cmp_lg_u32 s74, 0")
    e(f"  s_cbranch_scc1 {label}")
    e(f"{label}_DONE:")
    e("  s_waitcnt vmcnt(0)")

def tail2():
    B = OPT['bnd']
    if OPT["obar"]:
        e("  s_barrier")
    e("  s_cmp_%s_u32 s3, 4" % ("lt" if OPT["pf"] else "ge"))
    e("  s_cbranch_scc1 T_NW")
    e("  s_and_b32 s75, s3, 1")
    e("  s_cmp_eq_u32 s75, 1")
    e(f"  s_cselect_b32 s75, s{SP1}, s{SP0}")
    for ks in range(4):
        for q in range(4):
            e(f"  v_perm_b32 v{112+ks*4+q}, v{80+ks*8+2*q+1}, v{80+ks*8+2*q}, s75")
    e("  v_and_b32 v11, 1, v3")
    e("  v_lshlrev_b32 v11, 8, v11")
    e("  v_lshl_add_u32 v11, v4, 4, v11")
    e("  v_and_b32 v12, 1, v4")
    e("  v_lshlrev_b32 v13, 12, v12")
    e("  v_lshl_add_u32 v13, v3, 4, v13")
    e("  s_bfe_u32 s75, s3, 0x10001")
    e("  s_lshl_b32 s75, s75, 8")
    e("  s_and_b32 s78, s3, 1")
    e("  s_lshl_b32 s78, s78, 3")
    e("  s_add_u32 s75, s75, s78")
    e(f"  s_lshl_b32 s78, s{SNO}, 9")
    e("  s_add_u32 s75, s75, s78")
    e(f"  s_lshl_b32 s78, s{SHEAD}, 13")
    e("  s_add_u32 s75, s75, s78")
    e(f"  s_add_u32 s75, s75, {WS_SG}")
    e("  v_add_u32 v13, s75, v13")
    e("T_NW:")
    e("  v_and_b32 v5, 3, v1")
    e("  v_lshrrev_b32 v6, 2, v1")
    e("  s_lshr_b32 s75, s3, 2")
    e("  s_lshl_b32 s75, s75, 5")
    e(f"  s_add_u32 s75, s75, s{SHEAD}")
    e("  s_lshl_b32 s76, s75, 8")
    e("  v_lshlrev_b32 v9, 4, v6")
    e("  v_add_u32 v9, s76, v9")
    e("  s_lshl_b32 s76, s75, 14")
    e("  s_and_b32 s75, s3, 3")
    e("  s_lshl_b32 s75, s75, 8")
    e("  s_add_u32 s76, s76, s75")
    e("  v_lshlrev_b32 v10, 10, v6")
    e("  v_lshl_add_u32 v10, v5, 4, v10")
    e("  v_add_u32 v10, s76, v10")
    e("  s_not_b32 s75, s26")
    for r in [17, 19, 21, 23, 25, 27, 29, 31, 34]:
        e(f"  v_mov_b32 v{r}, s75")
    e("  s_mov_b64 s[76:77], -1")
    e("  s_mov_b64 s[78:79], -1")
    e(f"  s_mov_b32 s72, {WS_MG}")
    e(f"  s_mov_b32 s73, {WS_OG}")
    e(f"  s_mov_b32 s74, {B:#x}")
    e(f"  s_mov_b32 s84, {64 if OPT['f1st'] else OPT['spec']}")
    e("T_P:")
    e("  s_mov_b64 exec, s[76:77]")
    e("  s_cbranch_execz T_P1")
    e(f"  buffer_load_dwordx3 v[32:34], v9, s[{SWS}:{SWS+3}], s72 offen sc1")
    e("T_P1:")
    e("  s_or_b64 s[80:81], s[76:77], s[78:79]")
    e("  s_bcnt1_i32_b64 s75, s[80:81]")
    e("  s_andn2_b64 s[80:81], s[78:79], s[76:77]")
    e(f"  s_cmp_le_u32 s75, s84")
    e(f"  s_mov_b32 s84, {OPT['spec']}")
    e("  s_cselect_b64 exec, s[78:79], s[80:81]")
    e("  s_cbranch_execz T_P2")
    for i in range(4):
        e(f"  buffer_load_dwordx4 v[{16+4*i}:{19+4*i}], v10, s[{SWS}:{SWS+3}], s73 offen offset:{64*i} sc1")
    e("T_P2:")
    e("  s_mov_b64 exec, -1")
    if OPT["pw"] == 1:
        e("  s_waitcnt vmcnt(0)")
    else:
        e(f"  s_cmp_le_u32 s75, {OPT['spec']}")
        e("  s_cbranch_scc1 T_P3")
        e("  s_waitcnt vmcnt(0)")
        e("T_P3:")
        e(f"  s_waitcnt vmcnt({OPT['pw']})")
    if OPT["psl2"]: e(f"  s_sleep {OPT['psl2']}")
    e("  v_cmp_ne_u32 s[76:77], s26, v34")
    e("  v_cmp_ne_u32 s[78:79], s26, v17")
    for r in [19, 21, 23, 25, 27, 29, 31]:
        e(f"  v_cmp_ne_u32 vcc, s26, v{r}")
        e("  s_or_b64 s[78:79], s[78:79], vcc")
    e("  s_or_b64 s[80:81], s[76:77], s[78:79]")
    e("  s_cmp_eq_u64 s[80:81], 0")
    e("  s_cbranch_scc1 T_PD")
    e("  s_sub_u32 s74, s74, 1")
    e("  s_cmp_lg_u32 s74, 0")
    e("  s_cbranch_scc1 T_P")
    e("T_PD:")
    e("  s_waitcnt vmcnt(0)")
    tl6(4)
    e("  v_mov_b32 v35, v32")
    red_steps([35], [36], "v_max_f32")
    e("  v_sub_f32 v32, v32, v35")
    e(f"  v_mul_f32 v32, s{SC}, v32")
    e("  v_exp_f32 v32, v32")
    e("  s_nop 0")
    e("  v_mul_f32 v33, v33, v32")
    vals = [16, 18, 20, 22, 24, 26, 28, 30]
    for r in vals:
        e(f"  v_mul_f32 v{r}, v{r}, v32")
    red_steps([33] + vals, list(range(36, 45)), "v_add_f32")
    e("  v_rcp_f32 v33, v33")
    e("  s_nop 0")
    for r in vals:
        e(f"  v_mul_f32 v{r}, v{r}, v33")
    for i in range(4):
        e(f"  v_cvt_pk_bf16_f32 v{36+i}, v{16+4*i}, v{18+4*i}")
    e("  s_lshl_b32 s75, s3, 6")
    e("  v_lshl_add_u32 v8, v5, 4, s75")
    e("  s_mov_b64 exec, 0xf")
    e(f"  ds_write_b128 v8, v[36:39] offset:{L_VEC}")
    e("  s_mov_b64 exec, -1")
    e("  s_waitcnt lgkmcnt(0)")
    e("  s_barrier")
    e("  s_cmp_%s_u32 s3, 4" % ("lt" if OPT["pf"] else "ge"))
    e("  s_cbranch_scc1 T_F")
    for ks in range(4):
        e(f"  ds_read_b128 v[{132+4*ks}:{135+4*ks}], v11 offset:{L_VEC + ks*64}")
    e("  s_waitcnt lgkmcnt(0)")
    for ks in range(4):
        c = "0" if ks == 0 else "v[148:151]"
        e(f"  v_mfma_f32_16x16x32_bf16 v[148:151], v[{132+4*ks}:{135+4*ks}], v[{112+4*ks}:{115+4*ks}], {c}")
    e("  v_cmp_eq_u32 vcc, 1, v12")
    e("  v_mov_b32 v153, s26")
    e("  s_nop 7")
    e("  s_nop 7")
    e("  v_cndmask_b32 v152, v148, v149, vcc")
    e("  s_mov_b64 exec, 0xffffffff")
    e(f"  buffer_store_dwordx2 v[152:153], v13, s[{SWS}:{SWS+3}], 0 offen sc1")
    e("  s_mov_b64 exec, -1")
    tl6(5)
    e("T_F:")
    e("  s_cmp_ge_u32 s2, 8")
    e("  s_cbranch_scc1 K_END")
    e("  s_lshr_b32 s75, s3, 2")
    e("  s_lshl_b32 s75, s75, 9")
    e("  s_and_b32 s76, s2, 7")
    e("  s_lshl_b32 s76, s76, 6")
    e("  s_add_u32 s75, s75, s76")
    e("  s_and_b32 s76, s3, 3")
    e("  s_lshl_b32 s76, s76, 4")
    e("  s_add_u32 s75, s75, s76")
    e("  v_lshlrev_b32 v7, 1, v5")
    e("  v_add_u32 v7, s75, v7")
    e("  v_lshlrev_b32 v8, 1, v7")
    e(f"  buffer_load_dword v46, v8, s[{SX}:{SX+3}], 0 offen")
    e(f"  buffer_load_dword v47, v8, s[{SX}:{SX+3}], 0 offen offset:16")
    e("  v_lshlrev_b32 v10, 3, v7")
    e("  v_lshl_add_u32 v10, v6, 13, v10")
    def fpoll(lbl, base, m1, dst):
        e("  s_not_b32 s75, s26")
        for r in range(16, 32):
            e(f"  v_mov_b32 v{r}, " + ("s75" if (r & 1) else "0"))
        e("  s_mov_b64 s[76:77], -1")
        e(f"  s_mov_b32 s78, {m1 & 0xffffffff:#x}")
        e(f"  s_mov_b32 s79, {m1 >> 32:#x}")
        e(f"  s_mov_b64 s[82:83], s[78:79]")
        e(f"  s_mov_b32 s72, {base}")
        e(f"  s_mov_b32 s73, {base + 131072}")
        e(f"  s_mov_b32 s74, {B:#x}")
        e(f"{lbl}:")
        e("  s_mov_b64 exec, s[76:77]")
        e(f"  s_cbranch_execz {lbl}1")
        for i in range(2):
            e(f"  buffer_load_dwordx4 v[{16+4*i}:{19+4*i}], v10, s[{SWS}:{SWS+3}], s72 offen offset:{64*i} sc1")
        e(f"{lbl}1:")
        e("  s_mov_b64 exec, s[78:79]")
        e(f"  s_cbranch_execz {lbl}2")
        for i in range(2):
            e(f"  buffer_load_dwordx4 v[{24+4*i}:{27+4*i}], v10, s[{SWS}:{SWS+3}], s73 offen offset:{64*i} sc1")
        e(f"{lbl}2:")
        e("  s_mov_b64 exec, -1")
        e(f"  s_waitcnt vmcnt({0 if OPT['fw2']==1 else OPT['fw2']})")
        if OPT["fsl2"]: e(f"  s_sleep {OPT['fsl2']}")
        e("  v_cmp_ne_u32 s[76:77], s26, v17")
        for r in [19, 21, 23]:
            e(f"  v_cmp_ne_u32 vcc, s26, v{r}")
            e("  s_or_b64 s[76:77], s[76:77], vcc")
        e("  v_cmp_ne_u32 s[78:79], s26, v25")
        for r in [27, 29, 31]:
            e(f"  v_cmp_ne_u32 vcc, s26, v{r}")
            e("  s_or_b64 s[78:79], s[78:79], vcc")
        e("  s_and_b64 s[78:79], s[78:79], s[82:83]")
        e("  s_or_b64 s[80:81], s[76:77], s[78:79]")
        e("  s_cmp_eq_u64 s[80:81], 0")
        e(f"  s_cbranch_scc1 {lbl}D")
        e("  s_sub_u32 s74, s74, 1")
        e("  s_cmp_lg_u32 s74, 0")
        e(f"  s_cbranch_scc1 {lbl}")
        e(f"{lbl}D:")
        e("  s_waitcnt vmcnt(0)")
        for k in range(4):
            e(f"  v_add_f32 v{dst+k}, v{16+2*k}, v{24+2*k}")
        red_steps(list(range(dst, dst+4)), list(range(36, 40)), "v_add_f32")
        for k in range(4):
            round_bf16(dst+k, dst+k)
    fpoll("T_G", WS_GG, (1 << 48) - 1, 40)
    for k in range(4):
        e(f"  v_mul_f32 v{36+k}, 0xbfb8aa3b, v{40+k}")
    for k in range(4):
        e(f"  v_exp_f32 v{36+k}, v{36+k}")
    e("  s_nop 0")
    for k in range(4):
        e(f"  v_add_f32 v{36+k}, 1.0, v{36+k}")
    for k in range(4):
        e(f"  v_rcp_f32 v{36+k}, v{36+k}")
    e("  s_nop 0")
    for k in range(4):
        e(f"  v_mul_f32 v{40+k}, v{36+k}, v{40+k}")
    for k in range(4):
        round_bf16(40+k, 40+k)
    fpoll("T_S", WS_SG, (1 << 64) - 1, 48)
    tl6(6)
    for k in range(4):
        e(f"  v_mul_f32 v{48+k}, v{48+k}, v{40+k}")
    for k in range(4):
        round_bf16(48+k, 48+k)
    for k in range(2):
        e(f"  v_lshlrev_b32 v36, 16, v{46+k}")
        e(f"  v_and_b32 v37, 0xffff0000, v{46+k}")
        e(f"  v_add_f32 v{48+2*k}, v{48+2*k}, v36")
        e(f"  v_add_f32 v{49+2*k}, v{49+2*k}, v37")
        e(f"  v_cvt_pk_bf16_f32 v{48+2*k}, v{48+2*k}, v{49+2*k}")
    e("  s_mov_b64 exec, 0xf")
    e(f"  buffer_store_dword v48, v8, s[{SOUT}:{SOUT+3}], 0 offen")
    e(f"  buffer_store_dword v50, v8, s[{SOUT}:{SOUT+3}], 0 offen offset:16")
    e("  s_or_b32 s75, s2, s3")
    e("  s_cmp_lg_u32 s75, 0")
    e("  s_cbranch_scc1 K_END")
    e("  s_mov_b64 exec, 1")
    e(f"  v_mov_b32 v5, {WS_EP}")
    e("  v_mov_b32 v6, s26")
    e(f"  buffer_store_dword v6, v5, s[{SWS}:{SWS+3}], 0 offen")

def gen():
    nt = OPT["nt"]
    BS = 17 if OPT["ilv"] else 13
    POL = dict(k="" if OPT["kpl"] else nt, v="" if OPT["vpl"] else nt)
    name = NAME + "_kernel"
    e(".text")
    e(f".globl {name}")
    e(".p2align 8")
    e(f".type {name},@function")
    e(f"{name}:")
    KA, VA, KB, VB = 16, 48, 80, 112
    ACC = 144
    QF = 176
    ST = 192
    PF = 200
    TR = 204
    M_, L_, T0, T1, AL, MC = 236, 237, 238, 239, 240, 241
    VKOFF, VVOFF = 242, 243
    WO = 244
    W2 = 252
    e("  s_cmp_ge_u32 s2, 256")
    e("  s_cbranch_scc1 K_END2" if OPT["prof"] else "  s_cbranch_scc1 K_END")
    e("  s_load_dwordx16 s[4:19], s[0:1], 0")
    e("  s_load_dwordx2 s[24:25], s[0:1], 80")
    e("  v_and_b32 v1, 63, v0")
    e("  v_lshrrev_b32 v2, 6, v0")
    e("  v_and_b32 v3, 15, v1")
    e("  v_lshrrev_b32 v4, 4, v1")
    e("  v_mov_b32 v248, 0")
    e("  v_readfirstlane_b32 s3, v2")
    def derive():
        e(f"  s_and_b32 s{SG}, s2, 7")
        e(f"  s_lshr_b32 s{SR}, s2, 3")
        e(f"  s_and_b32 s{SNO}, s{SR}, 7")
        e(f"  s_lshl_b32 s{SCG}, s{SG}, 5")
        e(f"  s_add_u32 s{SCG}, s{SCG}, s{SR}")
        e(f"  s_lshr_b32 s{SHC}, s{SR}, 3")
        e(f"  s_lshl_b32 s{SHC}, s{SHC}, 6")
        e(f"  s_lshl_b32 s74, s{SG}, 3")
        e(f"  s_add_u32 s{SHC}, s{SHC}, s74")
        e(f"  s_add_u32 s{SHC}, s{SHC}, s{SNO}")
        e(f"  s_lshr_b32 s{SB}, s{SR}, 4")
        e(f"  s_and_b32 s{SSPL}, s{SR}, 15")
        e(f"  s_and_b32 s{SNC}, s2, 7")
        e(f"  s_lshr_b32 s{SHEAD}, s{SR}, 3")
        e(f"  s_lshl_b32 s74, s{SG}, 2")
        e(f"  s_add_u32 s{SHEAD}, s{SHEAD}, s74")
        if OPT["map"]:
            e(f"  s_lshr_b32 s{SB}, s2, 7")
            e(f"  s_lshr_b32 s{SG}, s2, 4")
            e(f"  s_and_b32 s{SG}, s{SG}, 7")
            e(f"  s_and_b32 s{SSPL}, s2, 15")
        e(f"  s_lshl_b32 s93, s{SB}, 3")
        e(f"  s_add_u32 s93, s93, s{SG}")
        e(f"  s_mul_i32 s93, s93, {OPT['nsub']}")
        e(f"  s_and_b32 s74, s3, {OPT['nsub']-1}")
        e(f"  s_add_u32 s93, s93, s74")
        e(f"  s_lshl_b32 s93, s93, 8")
        e(f"  s_add_u32 s93, s93, {WS_PC}")
        e(f"  s_mul_i32 s92, s74, {(1024-16*OPT['ns'])//OPT['nsub']}")
        e(f"  s_add_u32 s92, s92, {16*OPT['ns']}")
        e(f"  s_mul_i32 s94, s{SSPL}, {OPT['ns']}")
        e("  s_mov_b32 s95, 0")
    derive()
    e(f"  s_lshl_b32 s74, s{SB}, 3")
    e(f"  s_add_u32 s74, s74, s{SG}")
    e("  s_lshl_b32 s74, s74, 23")

    e(f"  s_mov_b32 s{SC}, 0x3e0293ee")
    e(f"  s_mov_b32 s{SP0}, 0x05040100")
    e(f"  s_mov_b32 s{SP1}, 0x07060302")
    e("  s_lshl_b32 s75, s3, 1")
    e(f"  s_sub_u32 s{IDXA}, s75, 2")
    e(f"  s_sub_u32 s{IDXB}, s75, 1")
    if OPT["nbuf"] == 1:
        e(f"  s_add_u32 s{IDXA}, s3, s94")
        if OPT["nw"] < 8:
            e(f"  s_cmp_ge_u32 s3, {OPT['nw']}")
            e(f"  s_cselect_b32 s{IDXA}, 64, s{IDXA}")
    e("  v_and_b32 v5, 3, v3")
    e("  v_lshrrev_b32 v6, 2, v3")
    e("  v_lshl_add_u32 v5, v5, 2, v6")
    e("  v_lshlrev_b32 v5, 8, v5")
    e(f"  v_lshl_add_u32 v{VKOFF}, v4, 4, v5")
    e(f"  v_lshlrev_b32 v{VVOFF}, 4, v1")
    if OPT["kx"]:
        e(f"  v_lshlrev_b32 v{VKOFF}, 4, v1")
    e("  s_waitcnt lgkmcnt(0)")
    if not OPT["rs"]:
        e(f"  s_mov_b32 s75, {WS_EP}")
        e("  s_load_dword s26, s[24:25], s75")
    srd(SX, 4, 5, 2048)
    srd(SWQ, 10, 11, 512 * 4096 * 2)
    srd(SWS, 24, 25, WS_SIZE)
    e(f"  s_add_u32 s{SK}, s6, s74")
    e(f"  s_addc_u32 s{SK+1}, s7, 0")
    e(f"  s_and_b32 s{SK+1}, s{SK+1}, 0xffff")
    if OPT['ilv']:
        e(f"  s_lshl_b32 s75, s{SSPL}, 13")
        e(f"  s_sub_u32 s{SK+2}, {8<<20}, s75")
    else:
        e(f"  s_mov_b32 s{SK+2}, {8<<20}")
    e(f"  s_mov_b32 s{SK+3}, 0x00020000")
    e(f"  s_add_u32 s{SV}, s8, s74")
    e(f"  s_addc_u32 s{SV+1}, s9, 0")
    e(f"  s_and_b32 s{SV+1}, s{SV+1}, 0xffff")
    e(f"  s_mov_b32 s{SV+2}, s{SK+2}")
    e(f"  s_mov_b32 s{SV+3}, 0x00020000")
    e("  s_movk_i32 s71, 4096")
    e("  s_and_b32 s75, s2, 0x78")
    e("  s_or_b32 s75, s75, s3")
    e("  s_cmp_lg_u32 s75, 0")
    e("  s_cbranch_scc1 K_NOINIT")
    e("  s_lshr_b32 s75, s2, 7")
    e("  s_lshl_b32 s75, s75, 3")
    e("  s_and_b32 s76, s2, 7")
    e("  s_add_u32 s75, s75, s76")
    e(f"  s_mul_i32 s75, s75, {OPT['nsub']*256}")
    e(f"  s_add_u32 s75, s75, {WS_PC}")
    e("  v_mov_b32 v5, 0")
    e("  v_lshlrev_b32 v6, 8, v1")
    e(f"  s_mov_b64 exec, {(1<<OPT['nsub'])-1}")
    e(f"  buffer_store_dword v5, v6, s[{SWS}:{SWS+3}], s75 offen sc1")
    e("  s_mov_b64 exec, -1")
    e("K_NOINIT:")
    if OPT["warm"]:
        e(f"  s_lshl_b32 s75, s{SCG}, 6")
        e(f"  s_add_u32 s75, s75, {WS_QG}")
        e("  s_load_dword s98, s[24:25], s75")
        e("  s_add_u32 s75, s75, 16384")
        e("  s_load_dword s99, s[24:25], s75")
    stamp(0)
    if OPT["prof"] >= 3:
        e("  v_mov_b32 v251, 0")
        e("  s_mov_b32 m0, 0")
        tl(OPT["prof"])
    F1 = max(OPT["f1"], OPT["pre0"])
    def kchunk_l(KR, vo):
        r=[]
        if OPT["kx"]:
            for j in range(8):
                so = "0" if j < 4 else "s71"
                r.append(f"  buffer_load_dwordx4 v[{KR+4*j}:{KR+4*j+3}], v{vo}, s[{SK}:{SK+3}], {so} offen offset:{(j&3)*1024}{nt}")
            return r
        for t in range(2):
            for i in range(4):
                so = "0" if t == 0 else "s71"
                r.append(f"  buffer_load_dwordx4 v[{KR+16*t+4*i}:{KR+16*t+4*i+3}], v{vo}, s[{SK}:{SK+3}], {so} offen offset:{i*64}{POL['k']}")
        return r
    def vchunk_l(VR, vo):
        r=[]
        for j in range(8):
            so = "0" if j < 4 else "s71"
            r.append(f"  buffer_load_dwordx4 v[{VR+4*j}:{VR+4*j+3}], v{vo}, s[{SV}:{SV+3}], {so} offen offset:{(j&3)*1024}{POL['v']}")
        return r
    def kchunk(KR, vo):
        for l in kchunk_l(KR, vo): e(l)
    def vchunk(VR, vo):
        for l in vchunk_l(VR, vo): e(l)
    def blkoff(sidx):
        if OPT["rot"]:
            e(f"  s_add_u32 s75, s{sidx}, s73")
            e("  s_and_b32 s75, s75, 63")
            e(f"  s_lshl_b32 s75, s75, {BS}")
            e(f"  s_cmp_lt_u32 s{sidx}, 64")
            e("  s_cselect_b32 s75, s75, 0x100000")
        else:
            e(f"  s_lshl_b32 s75, s{sidx}, {BS}")
    def loads(KR, VR, sidx):
        blkoff(sidx)
        e(f"  v_add_u32 v5, s75, v{VKOFF}")
        e(f"  v_add_u32 v6, s75, v{VVOFF}")
        kchunk(KR, 5)
        vchunk(VR, 6)
    def wo_loads():
        e("  v_lshlrev_b32 v14, 10, v12")
        e("  v_lshl_add_u32 v14, v13, 4, v14")
        if not OPT["mf"]:
            e(f"  s_lshl_b32 s75, s{SNO}, 7")
            e("  v_add_u32 v15, s75, v14")
            e(f"  s_lshl_b32 s75, s{SHEAD}, 17")
            e("  v_add_u32 v15, s75, v15")
            e(f"  buffer_load_dwordx4 v[{WO}:{WO+3}], v15, s[{SWO}:{SWO+3}], 0 offen")
            e("  v_add_u32 v15, 0x10000, v15")
            e(f"  buffer_load_dwordx4 v[{WO+4}:{WO+7}], v15, s[{SWO}:{SWO+3}], 0 offen")
        else:
            lab = f"K_WOS{len(out)}"
            e("  s_cmp_ge_u32 s3, 4")
            e(f"  s_cbranch_scc1 {lab}")
            e("  v_lshlrev_b32 v15, 13, v4")
            e("  v_lshl_add_u32 v15, v3, 2, v15")
            e(f"  s_lshl_b32 s75, s{SHEAD}, 17")
            e(f"  s_lshl_b32 s76, s{SNO}, 7")
            e("  s_add_u32 s75, s75, s76")
            e("  s_lshr_b32 s76, s3, 1")
            e("  s_lshl_b32 s76, s76, 6")
            e("  s_add_u32 s75, s75, s76")
            for ks in range(4):
                for jh in range(2):
                    for j in range(4):
                        e(f"  buffer_load_dword v{80+ks*8+jh*4+j}, v15, s[{SWO}:{SWO+3}], s75 offen offset:{j*1024}")
                    if not (ks == 3 and jh == 1):
                        e(f"  s_add_u32 s75, s75, {4096 if jh == 0 else 32768-4096}")
            e(f"{lab}:")
        e("  s_lshr_b32 s75, s2, 3")
        e("  s_lshl_b32 s75, s75, 16")
        e("  v_add_u32 v15, s75, v14")
        e(f"  s_lshl_b32 s75, s{SNC}, 7")
        e("  v_add_u32 v15, s75, v15")
        e(f"  buffer_load_dwordx4 v[{W2}:{W2+3}], v15, s[{SW2}:{SW2+3}], 0 offen")

    X = 144
    def ln_code():
        for b in range(2):
            for c in range(4):
                e(f"  v_lshlrev_b32 v{X+8*b+2*c}, 16, v{204+4*b+c}")
                e(f"  v_and_b32 v{X+1+8*b+2*c}, 0xffff0000, v{204+4*b+c}")
        for b in range(2):
            t = 160 + 4 * b
            e(f"  v_pk_add_f32 v[{t}:{t+1}], v[{X+8*b}:{X+8*b+1}], v[{X+8*b+2}:{X+8*b+3}]")
            e(f"  v_pk_add_f32 v[{t+2}:{t+3}], v[{X+8*b+4}:{X+8*b+5}], v[{X+8*b+6}:{X+8*b+7}]")
        for b in range(2):
            t = 160 + 4 * b
            e(f"  v_pk_add_f32 v[{t}:{t+1}], v[{t}:{t+1}], v[{t+2}:{t+3}]")
        e("  v_add_f32 v160, v160, v161")
        e("  v_add_f32 v161, v164, v165")
        wave_sum([160, 161], [162, 163])
        e("  v_mul_f32 v160, 0x3b000000, v160")
        e("  v_mul_f32 v161, 0x3b000000, v161")
        bsel = [" op_sel_hi:[1,0]", " op_sel:[0,1] op_sel_hi:[1,1]"]
        for b in range(2):
            for c in range(4):
                t = 168 + 8 * b + 2 * c
                e(f"  v_pk_add_f32 v[{t}:{t+1}], v[{X+8*b+2*c}:{X+8*b+2*c+1}], v[160:161]{bsel[b]} neg_lo:[0,1] neg_hi:[0,1]")
        for b in range(2):
            t = 168 + 8 * b
            e(f"  v_pk_mul_f32 v[{164+2*b}:{165+2*b}], v[{t}:{t+1}], v[{t}:{t+1}]")
        for c in range(1, 4):
            for b in range(2):
                t = 168 + 8 * b + 2 * c
                e(f"  v_pk_fma_f32 v[{164+2*b}:{165+2*b}], v[{t}:{t+1}], v[{t}:{t+1}], v[{164+2*b}:{165+2*b}]")
        e("  v_add_f32 v164, v164, v165")
        e("  v_add_f32 v165, v166, v167")
        wave_sum([164, 165], [162, 163])
        e("  v_mul_f32 v164, 0x3b000000, v164")
        e("  v_mul_f32 v165, 0x3b000000, v165")
        for b in range(2):
            round_bf16(164 + b, 164 + b)
            e(f"  v_add_f32 v{164+b}, 0x3727c5ac, v{164+b}")
            round_bf16(164 + b, 164 + b)
            e(f"  v_sqrt_f32 v{164+b}, v{164+b}")
            e("  s_nop 0")
            round_bf16(164 + b, 164 + b)
            e(f"  v_rcp_f32 v{164+b}, v{164+b}")
            round_bf16(160 + b, 160 + b)
        for b in range(2):
            for c in range(4):
                r = X + 8 * b + 2 * c
                e(f"  v_pk_add_f32 v[{r}:{r+1}], v[{r}:{r+1}], v[160:161]{bsel[b]} neg_lo:[0,1] neg_hi:[0,1]")
            for c in range(4):
                r = X + 8 * b + 2 * c
                e(f"  v_cvt_pk_bf16_f32 v{168+c}, v{r}, v{r+1}")
            for c in range(4):
                r = X + 8 * b + 2 * c
                e(f"  v_lshlrev_b32 v{r}, 16, v{168+c}")
                e(f"  v_and_b32 v{r+1}, 0xffff0000, v{168+c}")
            for c in range(4):
                r = X + 8 * b + 2 * c
                e(f"  v_pk_mul_f32 v[{r}:{r+1}], v[{r}:{r+1}], v[164:165]{bsel[b]}")
            for c in range(4):
                r = X + 8 * b + 2 * c
                e(f"  v_cvt_pk_bf16_f32 v{168+c}, v{r}, v{r+1}")
            for c in range(4):
                r = X + 8 * b + 2 * c
                e(f"  v_lshlrev_b32 v{r}, 16, v{168+c}")
                e(f"  v_and_b32 v{r+1}, 0xffff0000, v{168+c}")
        e("  v_lshlrev_b32 v5, 5, v1")
        for b in range(2):
            e(f"  ds_write_b128 v5, v[{X+8*b}:{X+8*b+3}] offset:{L_XN + b*2048}")
            e(f"  ds_write_b128 v5, v[{X+8*b+4}:{X+8*b+7}] offset:{L_XN + b*2048 + 16}")
        e("  s_waitcnt lgkmcnt(0)")

    def pk_part(w, xr, acc0, acc1, first):
        e(f"  v_lshlrev_b32 v160, 16, v{w}")
        e(f"  v_and_b32 v161, 0xffff0000, v{w}")
        if first:
            e(f"  v_pk_mul_f32 v[{acc0}:{acc0+1}], v[160:161], v[{xr}:{xr+1}] op_sel_hi:[1,0]")
            e(f"  v_pk_mul_f32 v[{acc1}:{acc1+1}], v[160:161], v[{xr}:{xr+1}] op_sel:[0,1] op_sel_hi:[1,1]")
        else:
            e(f"  v_pk_fma_f32 v[{acc0}:{acc0+1}], v[160:161], v[{xr}:{xr+1}], v[{acc0}:{acc0+1}] op_sel_hi:[1,0,1]")
            e(f"  v_pk_fma_f32 v[{acc1}:{acc1+1}], v[160:161], v[{xr}:{xr+1}], v[{acc1}:{acc1+1}] op_sel:[0,1,0] op_sel_hi:[1,1,1]")
    if OPT["rs"]:
        e("  v_lshrrev_b32 v12, 3, v0")
        e("  v_and_b32 v13, 7, v0")
        blkoff(IDXA)
        e(f"  v_add_u32 v228, s75, v{VKOFF}")
        e(f"  v_add_u32 v229, s75, v{VVOFF}")
        pl = kchunk_l(KA, 228) + vchunk_l(VA, 229)
        e("  s_cmp_ge_u32 s3, 4")
        e("  s_cbranch_scc1 K_FLOOD")
        e("  v_lshlrev_b32 v5, 4, v1")
        e(f"  buffer_load_dwordx4 v[204:207], v5, s[{SX}:{SX+3}], 0 offen")
        e(f"  buffer_load_dwordx4 v[208:211], v5, s[{SX}:{SX+3}], 0 offen offset:1024")
        e("  v_lshrrev_b32 v6, 2, v0")
        e("  v_and_b32 v7, 3, v0")
        e("  v_lshlrev_b32 v8, 13, v6")
        e("  v_lshl_add_u32 v8, v7, 3, v8")
        e(f"  s_lshl_b32 s75, s{SCG}, 5")
        e("  v_add_u32 v8, s75, v8")
        for i in range(8):
            if i:
                e(f"  v_add_u32 v8, 0x80000, v8")
            e(f"  buffer_load_dwordx2 v[{212+2*i}:{213+2*i}], v8, s[{SWQ}:{SWQ+3}], 0 offen")
        e("  s_cmp_lg_u32 s3, 0")
        e("  s_cbranch_scc1 K_NOLI")
        e("  v_mov_b32 v8, 8")
        e("  v_mov_b32 v9, 0")
        e("  v_mov_b32 v10, 8")
        e("  v_mov_b32 v11, 8")
        e(f"  v_mov_b32 v5, {L_CNT}")
        e("  s_mov_b64 exec, 1")
        e("  ds_write_b128 v5, v[8:11]")
        e("  v_mov_b32 v8, 0")
        e("  v_mov_b32 v10, 0")
        e("  v_mov_b32 v11, 0")
        e("  ds_write_b128 v5, v[8:11] offset:16")
        e("  ds_write_b128 v5, v[8:11] offset:32")
        e("  s_mov_b64 exec, -1")
        e("  s_waitcnt lgkmcnt(0)")
        e("K_NOLI:")
        e("  s_barrier")
        e(f"  s_mov_b32 s75, {WS_EP}")
        e("  s_load_dword s26, s[24:25], s75")
        e("  v_lshrrev_b32 v230, 3, v1")
        e("  v_lshlrev_b32 v230, 14, v230")
        e("  v_and_b32 v7, 7, v1")
        e("  v_lshl_add_u32 v230, v7, 3, v230")
        e(f"  s_lshl_b32 s75, s{SCG}, 6")
        e(f"  s_add_u32 s75, s75, {WS_QG}")
        e("  v_add_u32 v230, s75, v230")
        e("  s_mul_i32 s75, s3, 192")
        e("  v_lshlrev_b32 v231, 4, v1")
        e("  v_add_u32 v231, s75, v231")
        e("  s_waitcnt vmcnt(8)")
        tl(4)
        ln_code()
        e("  s_add_u32 s26, s26, 1")
        e("  v_lshrrev_b32 v5, 2, v0")
        e("  v_lshlrev_b32 v5, 2, v5")
        for i in range(8):
            e(f"  ds_read2st64_b32 v[{168+2*i}:{169+2*i}], v5 offset0:{(L_XN + i*256)//256} offset1:{(L_XN + i*256 + 2048)//256}")
        e(f"  v_mov_b32 v7, {L_CNT}")
        e("  v_mov_b32 v8, 1")
        e("  v_lshlrev_b32 v9, 3, v1")
        tl(4)
        e("  s_waitcnt vmcnt(0) lgkmcnt(0)")
        tl(4)
        for i in range(8):
            for c in range(2):
                pk_part(212 + 2 * i + c, 168 + 2 * i, 184 + 2 * c, 188 + 2 * c, i == 0)
        dpp_steps(list(range(184, 192)), ["row_ror:4", "row_ror:8"])
        swap_steps(list(range(184, 192)), list(range(204, 212)))
        e("  s_mov_b64 exec, 0xf")
        e(f"  ds_write_b128 v231, v[184:187] offset:{L_QP}")
        e(f"  ds_write_b128 v231, v[188:191] offset:{L_QP+64}")
        e("  s_mov_b64 exec, 1")
        e("  ds_add_rtn_u32 v6, v7, v8 offset:16")
        e("  s_mov_b64 exec, -1")
        e("  s_waitcnt lgkmcnt(0)")
        tl(4)
        e("  v_readfirstlane_b32 s75, v6")
        e("  s_cmp_lg_u32 s75, 3")
        e("  s_cbranch_scc1 K_QW")
        e("  s_mov_b64 exec, 0xffff")
        for w in range(4):
            e(f"  ds_read_b64 v[{160+2*w}:{161+2*w}], v9 offset:{L_QP + w*192}")
        e("  v_mov_b32 v169, s26")
        e("  s_waitcnt lgkmcnt(0)")
        e("  v_pk_add_f32 v[160:161], v[160:161], v[162:163]")
        e("  v_pk_add_f32 v[164:165], v[164:165], v[166:167]")
        e("  v_pk_add_f32 v[160:161], v[160:161], v[164:165]")
        e("  v_cvt_pk_bf16_f32 v168, v160, v161")
        e(f"  buffer_store_dwordx2 v[168:169], v230, s[{SWS}:{SWS+3}], 0 offen sc1")
        e("  s_mov_b64 exec, 1")
        e("  ds_add_u32 v7, v8 offset:20")
        e("  ds_add_u32 v7, v8 offset:24")
        e("  s_mov_b64 exec, -1")
        e("K_QW:")
        e(f"  s_mov_b32 s74, {OPT['bnd']:#x}")
        e("K_QWL:")
        e("  ds_read_b32 v6, v7 offset:20")
        e("  s_waitcnt lgkmcnt(0)")
        e("  v_readfirstlane_b32 s75, v6")
        e("  s_cmp_ge_u32 s75, 5")
        e("  s_cbranch_scc1 K_QGO")
        e("  s_sub_u32 s74, s74, 1")
        e("  s_cmp_lg_u32 s74, 0")
        e("  s_cbranch_scc1 K_QWL")
        e("K_QGO:")
        tl(4)
        PB = [4, 28, 44, 80]
        prs = [b_ + 2*k for b_ in PB for k in range(8)]
        def poll_addr():
            e(f"  s_lshl_b32 s72, s{SB}, 14")
            e(f"  s_lshl_b32 s76, s{SG}, 11")
            e("  s_add_u32 s72, s72, s76")
            e("  s_lshl_b32 s76, s3, 8")
            e("  s_add_u32 s72, s72, s76")
            e(f"  s_add_u32 s72, s72, {WS_QG}")
            e("  s_lshl_b32 s76, s3, 7")
            e("  v_lshlrev_b32 v6, 2, v1")
            e("  v_add_u32 v6, s76, v6")
        def poll_issue():
            for i, b_ in enumerate(PB):
                e(f"  s_load_dwordx16 s[{b_}:{b_+15}], s[24:25], s72 offset:{64*i} glc")
        def poll_check(ok):
            e("  s_waitcnt lgkmcnt(0)")
            e(f"  s_and_b64 s[76:77], s[{prs[0]}:{prs[0]+1}], s[{prs[1]}:{prs[1]+1}]")
            e(f"  s_or_b64 s[78:79], s[{prs[0]}:{prs[0]+1}], s[{prs[1]}:{prs[1]+1}]")
            for r in prs[2:]:
                e(f"  s_and_b64 s[76:77], s[76:77], s[{r}:{r+1}]")
                e(f"  s_or_b64 s[78:79], s[78:79], s[{r}:{r+1}]")
            e("  s_xor_b32 s77, s77, s26")
            e("  s_xor_b32 s79, s79, s26")
            e("  s_or_b32 s77, s77, s79")
            e("  s_cmp_eq_u32 s77, 0")
            e(f"  s_cbranch_scc1 {ok}")
        def poll_save():
            for k, r in enumerate(prs):
                e(f"  v_writelane_b32 v5, s{r}, {k}")
            e("  s_mov_b64 exec, 0xffffffff")
            e(f"  ds_write_b32 v6, v5 offset:{L_Q}")
            e("  s_mov_b64 exec, 1")
            e("  ds_add_u32 v7, v8 offset:24")
            e("  s_mov_b64 exec, -1")
        poll_addr()
        QP = OPT["qp"]
        PS = 16 // QP
        for k in range(QP):
            poll_issue()
            for c in range(k*PS, (k+1)*PS):
                e(pl[c])
                if c in (7, 15): tl(5)
            poll_check(f"K_QP{k}")
        e("  s_branch K_SPL")
        for k in range(QP):
            e(f"K_QP{k}:")
            poll_save()
            if OPT["prof"] == 4:
                e("  s_mov_b32 m0, 8")
            tl(4)
            for c in range((k+1)*PS, 16):
                e(pl[c])
                if c in (7, 15): tl(5)
            e("  s_branch K_QR")
        e("K_FLOOD:")
        if OPT["pf"] == 2:
            e("  s_barrier")
        if OPT["pf"]:
            srd(SW1, 16, 17, 512 * 1792 * 2)
            srd(SWO, 12, 13, 4096 * 512 * 2)
            srd(SW2, 18, 19, 1792 * 512 * 2)
            e("  v_bfe_u32 v9, v0, 1, 7")
            e("  v_and_b32 v10, 1, v0")
            e("  s_movk_i32 s75, 3584")
            e("  v_mul_lo_u32 v11, v9, s75")
            e("  v_lshl_add_u32 v11, v10, 3, v11")
            e(f"  s_lshl_b32 s75, s{SHC}, 4")
            e("  v_add_u32 v11, s75, v11")
            for i in range(4):
                if i:
                    e(f"  v_add_u32 v11, {128*3584}, v11")
                e(f"  buffer_load_dwordx2 v[{112+2*i}:{113+2*i}], v11, s[{SW1}:{SW1+3}], 0 offen")
        if OPT["pf"] == 1:
            e("  v_lshrrev_b32 v9, 3, v1")
            e("  v_and_b32 v10, 7, v1")
            e("  v_lshlrev_b32 v11, 10, v9")
            e("  v_lshl_add_u32 v11, v10, 4, v11")
            e("  s_lshr_b32 s75, s2, 3")
            e("  s_lshl_b32 s75, s75, 16")
            e("  s_and_b32 s76, s3, 3")
            e("  s_lshl_b32 s76, s76, 14")
            e("  s_add_u32 s75, s75, s76")
            e("  s_and_b32 s76, s2, 7")
            e("  s_lshl_b32 s76, s76, 7")
            e("  s_add_u32 s75, s75, s76")
            e(f"  buffer_load_dwordx4 v[120:123], v11, s[{SW2}:{SW2+3}], s75 offen")
            e("  s_add_u32 s75, s75, 8192")
            e(f"  buffer_load_dwordx4 v[124:127], v11, s[{SW2}:{SW2+3}], s75 offen")
        if OPT["pf"] != 2:
            e("  s_barrier")
        e(f"  s_mov_b32 s75, {WS_EP}")
        e("  s_load_dword s26, s[24:25], s75")
        tl(4)
        NPRE = 6 if OPT["pf"] else 0
        for c in range(16):
            if c >= OPT["nf"]:
                e(f"  s_waitcnt vmcnt({OPT['nf']-1})")
            e(pl[c])
            if c in (7, 15): tl(5)
        e(f"  v_mov_b32 v7, {L_CNT}")
        e("  v_mov_b32 v8, 1")
        e("  s_mov_b64 exec, 1")
        e("  ds_add_u32 v7, v8 offset:20")
        e("  s_mov_b64 exec, -1")
        tl(4)
        if OPT["pf"] == 1:
            e("  v_lshlrev_b32 v15, 13, v4")
            e("  v_lshl_add_u32 v15, v3, 2, v15")
            e(f"  s_lshl_b32 s75, s{SHEAD}, 17")
            e(f"  s_lshl_b32 s76, s{SNO}, 7")
            e("  s_add_u32 s75, s75, s76")
            e("  s_bfe_u32 s76, s3, 0x10001")
            e("  s_lshl_b32 s76, s76, 6")
            e("  s_add_u32 s75, s75, s76")
            for ks in range(4):
                for jh in range(2):
                    for j in range(4):
                        e(f"  buffer_load_dword v{80+ks*8+jh*4+j}, v15, s[{SWO}:{SWO+3}], s75 offen offset:{j*1024}")
                    if not (ks == 3 and jh == 1):
                        e(f"  s_add_u32 s75, s75, {4096 if jh == 0 else 32768-4096}")
        e("  s_waitcnt lgkmcnt(0)")
        e("  s_add_u32 s26, s26, 1")
        if OPT["pf"]:
            e(f"  s_mov_b32 s74, {OPT['bnd']:#x}")
            e("K_XW:")
            e("  ds_read_b32 v6, v7 offset:16")
            e("  s_waitcnt lgkmcnt(0)")
            e("  v_readfirstlane_b32 s75, v6")
            e("  s_cmp_ge_u32 s75, 1")
            e("  s_cbranch_scc1 K_XWD")
            e("  s_sleep 1")
            e("  s_sub_u32 s74, s74, 1")
            e("  s_cmp_lg_u32 s74, 0")
            e("  s_cbranch_scc1 K_XW")
            e("K_XWD:")
            e(f"  s_cmp_ge_u32 s{SHC}, 224")
            e("  s_cbranch_scc1 K_HS")
            e("  v_bfe_u32 v5, v0, 1, 7")
            e("  v_lshlrev_b32 v5, 2, v5")
            for i in range(4):
                e(f"  ds_read2st64_b32 v[{144+2*i}:{145+2*i}], v5 offset0:{(L_XN + i*512)//256} offset1:{(L_XN + i*512 + 2048)//256}")
            e("  s_waitcnt vmcnt(%d) lgkmcnt(0)" % (50 if OPT["pf"] == 1 else 16))
            A = 164
            for i in range(4):
                for c in range(2):
                    pk_part(112 + 2*i + c, 144 + 2*i, A + 2*c, A + 4 + 2*c, i == 0)
            dpp_steps(list(range(A, A+8)), ["quad_perm:[2,3,0,1]", "row_ror:4", "row_ror:8"])
            swap_steps(list(range(A, A+8)), list(range(172, 180)))
            e("  s_mul_i32 s75, s3, 192")
            e("  v_lshlrev_b32 v5, 4, v1")
            e("  v_add_u32 v5, s75, v5")
            e("  s_mov_b64 exec, 0x3")
            e(f"  ds_write_b128 v5, v[{A}:{A+3}] offset:{L_QP+128}")
            e(f"  ds_write_b128 v5, v[{A+4}:{A+7}] offset:{L_QP+160}")
            e("  s_mov_b64 exec, 1")
            e(f"  ds_add_rtn_u32 v6, v7, v8 offset:4")
            e("  s_mov_b64 exec, -1")
            e("  s_waitcnt lgkmcnt(0)")
            e("  v_readfirstlane_b32 s75, v6")
            e("  s_cmp_lg_u32 s75, 3")
            e("  s_cbranch_scc1 K_HS")
            e("  v_lshlrev_b32 v5, 3, v1")
            e("  s_mov_b64 exec, 0xff")
            for w in range(4):
                e(f"  ds_read_b64 v[{144+2*w}:{145+2*w}], v5 offset:{L_QP + (4+w)*192 + 128}")
            e("  v_lshrrev_b32 v6, 2, v1")
            e("  s_movk_i32 s75, 7168")
            e("  v_mul_lo_u32 v6, v6, s75")
            e("  v_and_b32 v9, 3, v1")
            e("  v_lshl_add_u32 v6, v9, 3, v6")
            e(f"  s_lshl_b32 s75, s{SHC}, 5")
            e(f"  s_add_u32 s75, s75, {WS_HG}")
            e("  s_waitcnt lgkmcnt(0)")
            e("  v_pk_add_f32 v[144:145], v[144:145], v[146:147]")
            e("  v_pk_add_f32 v[148:149], v[148:149], v[150:151]")
            e("  v_pk_add_f32 v[144:145], v[144:145], v[148:149]")
            e("  v_max_f32 v144, 0, v144")
            e("  v_max_f32 v145, 0, v145")
            e("  v_cvt_pk_bf16_f32 v144, v144, v145")
            e("  v_mov_b32 v145, s26")
            e(f"  buffer_store_dwordx2 v[144:145], v6, s[{SWS}:{SWS+3}], s75 offen sc1")
            e("  s_mov_b64 exec, -1")
            e("K_HS:")
            tl(4)
        if OPT["pf"] == 1:
            e("  s_cmp_ge_u32 s2, 224")
            e("  s_cbranch_scc1 K_GS")
            e("  s_lshr_b32 s72, s2, 3")
            e("  s_lshl_b32 s72, s72, 8")
            e("  s_and_b32 s76, s3, 3")
            e("  s_lshl_b32 s76, s76, 6")
            e("  s_add_u32 s72, s72, s76")
            e(f"  s_add_u32 s72, s72, {WS_HG}")
            e("  s_add_u32 s73, s72, 7168")
            e(f"  s_mov_b32 s74, {OPT['bnd']:#x}")
            e("K_HP:")
            e("  s_load_dwordx16 s[4:19], s[24:25], s72 glc")
            e("  s_load_dwordx16 s[28:43], s[24:25], s73 glc")
            e("  s_waitcnt lgkmcnt(0)")
            hr = [4 + 2*k for k in range(8)] + [28 + 2*k for k in range(8)]
            e(f"  s_and_b64 s[76:77], s[{hr[0]}:{hr[0]+1}], s[{hr[1]}:{hr[1]+1}]")
            e(f"  s_or_b64 s[78:79], s[{hr[0]}:{hr[0]+1}], s[{hr[1]}:{hr[1]+1}]")
            for r in hr[2:]:
                e(f"  s_and_b64 s[76:77], s[76:77], s[{r}:{r+1}]")
                e(f"  s_or_b64 s[78:79], s[78:79], s[{r}:{r+1}]")
            e("  s_xor_b32 s77, s77, s26")
            e("  s_xor_b32 s79, s79, s26")
            e("  s_or_b32 s77, s77, s79")
            e("  s_cmp_eq_u32 s77, 0")
            e("  s_cbranch_scc1 K_HPD")
            e("  s_sub_u32 s74, s74, 1")
            e("  s_cmp_lg_u32 s74, 0")
            e("  s_cbranch_scc1 K_HP")
            e("K_HPD:")
            for k in range(4):
                e(f"  s_mov_b32 s76, {(0xffff << (16*k)) & 0xffffffff if k < 2 else 0:#x}")
                e(f"  s_mov_b32 s77, {(0xffff << (16*(k-2))) & 0xffffffff if k >= 2 else 0:#x}")
                e("  s_mov_b64 exec, s[76:77]")
                for b in range(2):
                    for i in range(2):
                        e(f"  v_mov_b32 v{144+2*b+i}, s{(4 if b == 0 else 28) + 2*(k+4*i)}")
            e("  s_mov_b64 exec, -1")
            e("  v_and_b32 v5, 8, v1")
            e("  v_cmp_ne_u32 vcc, 0, v5")
            for r in range(144, 148):
                e(f"  v_lshlrev_b32 v148, 16, v{r}")
                e(f"  v_and_b32 v149, 0xffff0000, v{r}")
                e(f"  v_cndmask_b32 v{r}, v148, v149, vcc")
            e("  s_waitcnt vmcnt(48)")
            A = 164
            for i in range(2):
                for c in range(4):
                    w = 120 + 4*i + c
                    e(f"  v_lshlrev_b32 v150, 16, v{w}")
                    e(f"  v_and_b32 v151, 0xffff0000, v{w}")
                    for b in range(2):
                        h = 144 + 2*b + i
                        if i == 0:
                            e(f"  v_mul_f32 v{A+8*b+2*c}, v150, v{h}")
                            e(f"  v_mul_f32 v{A+8*b+2*c+1}, v151, v{h}")
                        else:
                            e(f"  v_fmac_f32 v{A+8*b+2*c}, v150, v{h}")
                            e(f"  v_fmac_f32 v{A+8*b+2*c+1}, v151, v{h}")
            dpp_steps(list(range(A, A+16)), ["row_ror:8"])
            swap_steps(list(range(A, A+16)), list(range(180, 196)))
            e("  s_and_b32 s75, s3, 3")
            e("  s_lshl_b32 s75, s75, 9")
            e("  v_lshlrev_b32 v5, 5, v1")
            e("  v_add_u32 v5, s75, v5")
            e("  s_mov_b64 exec, 0xff")
            e(f"  ds_write_b128 v5, v[{A}:{A+3}] offset:{L_FP}")
            e(f"  ds_write_b128 v5, v[{A+4}:{A+7}] offset:{L_FP+16}")
            e(f"  ds_write_b128 v5, v[{A+8}:{A+11}] offset:{L_FP+256}")
            e(f"  ds_write_b128 v5, v[{A+12}:{A+15}] offset:{L_FP+272}")
            e("  s_mov_b64 exec, 1")
            e(f"  ds_add_rtn_u32 v6, v7, v8 offset:28")
            e("  s_mov_b64 exec, -1")
            e("  s_waitcnt lgkmcnt(0)")
            e("  v_readfirstlane_b32 s75, v6")
            e("  s_cmp_lg_u32 s75, 3")
            e("  s_cbranch_scc1 K_GS")
            e("  v_lshlrev_b32 v5, 3, v1")
            for w in range(4):
                e(f"  ds_read_b64 v[{144+2*w}:{145+2*w}], v5 offset:{L_FP + w*512}")
            e("  v_lshrrev_b32 v6, 5, v1")
            e("  v_lshlrev_b32 v6, 12, v6")
            e("  v_and_b32 v9, 31, v1")
            e("  v_lshl_add_u32 v6, v9, 4, v6")
            e("  s_lshr_b32 s75, s2, 3")
            e("  s_lshl_b32 s75, s75, 13")
            e("  s_and_b32 s76, s2, 7")
            e("  s_lshl_b32 s76, s76, 9")
            e("  s_add_u32 s75, s75, s76")
            e(f"  s_add_u32 s75, s75, {WS_GG}")
            e("  s_waitcnt lgkmcnt(0)")
            e("  v_pk_add_f32 v[144:145], v[144:145], v[146:147]")
            e("  v_pk_add_f32 v[148:149], v[148:149], v[150:151]")
            e("  v_pk_add_f32 v[144:145], v[144:145], v[148:149]")
            e("  v_mov_b32 v146, v145")
            e("  v_mov_b32 v145, s26")
            e("  v_mov_b32 v147, s26")
            e(f"  buffer_store_dwordx4 v[144:147], v6, s[{SWS}:{SWS+3}], s75 offen sc1")
            e("K_GS:")
            tl(4)
        poll_addr()
        e("K_SPL:")
        e(f"  s_mov_b32 s74, {OPT['bnd']:#x}")
        e("K_SP:")
        poll_issue()
        poll_check("K_SPD")
        if OPT["qsl"]: e(f"  s_sleep {OPT['qsl']}")
        e("  s_sub_u32 s74, s74, 1")
        e("  s_cmp_lg_u32 s74, 0")
        e("  s_cbranch_scc1 K_SP")
        e("K_SPD:")
        poll_save()
        if OPT["prof"] == 4:
            e("  s_mov_b32 m0, 8")
        tl(4)
        e("K_QR:")
        e(f"  s_mov_b32 s74, {OPT['bnd']:#x}")
        e("K_QRL:")
        e("  ds_read_b32 v6, v7 offset:24")
        e("  s_waitcnt lgkmcnt(0)")
        e("  v_readfirstlane_b32 s75, v6")
        e("  s_cmp_ge_u32 s75, 9")
        e("  s_cbranch_scc1 K_QRD")
        e("  s_sub_u32 s74, s74, 1")
        e("  s_cmp_lg_u32 s74, 0")
        e("  s_cbranch_scc1 K_QRL")
        e("K_QRD:")
        if OPT["prof"] == 4:
            e("  s_mov_b32 m0, 9")
        F2 = 16
    else:
        e("  v_lshlrev_b32 v5, 4, v1")
        e(f"  buffer_load_dwordx4 v[204:207], v5, s[{SX}:{SX+3}], 0 offen")
        e(f"  buffer_load_dwordx4 v[208:211], v5, s[{SX}:{SX+3}], 0 offen offset:1024")
        if OPT["xb"]:
            e("  s_barrier")
        e("  v_lshrrev_b32 v6, 2, v0")
        e("  v_and_b32 v7, 3, v0")
        e("  v_lshlrev_b32 v8, 13, v6")
        e("  v_lshl_add_u32 v8, v7, 3, v8")
        e(f"  s_lshl_b32 s75, s{SCG}, 5")
        e("  v_add_u32 v8, s75, v8")
        for i in range(4):
            if i == 0:
                e(f"  buffer_load_dwordx2 v[212:213], v8, s[{SWQ}:{SWQ+3}], 0 offen")
            else:
                e(f"  v_add_u32 v8, 0x100000, v8")
                e(f"  buffer_load_dwordx2 v[{212+2*i}:{213+2*i}], v8, s[{SWQ}:{SWQ+3}], 0 offen")
        e("  v_lshrrev_b32 v12, 3, v0")
        e("  v_and_b32 v13, 7, v0")
        if OPT["rot"]:
            e(f"  s_mul_i32 s73, s2, {OPT['rot']}")
        blkoff(IDXA)
        e(f"  v_add_u32 v224, s75, v{VKOFF}")
        e(f"  v_add_u32 v225, s75, v{VVOFF}")
        pl = kchunk_l(KA, 224) + vchunk_l(VA, 225)
        PRE0 = OPT["pre0"]
        if OPT["bar0"] and PRE0:
            e("  s_barrier")
        for c in range(PRE0):
            e(pl[c])
        e(f"  s_waitcnt vmcnt({4+PRE0})")
        tl(4)
        ln_code()
        e("  s_add_u32 s26, s26, 1")
        e("  v_lshrrev_b32 v5, 2, v0")
        e("  v_lshlrev_b32 v5, 2, v5")
        for i in range(4):
            e(f"  ds_read2st64_b32 v[{168+2*i}:{169+2*i}], v5 offset0:{(L_XN + i*512)//256} offset1:{(L_XN + i*512 + 2048)//256}")
        tl(4)
        e(f"  s_waitcnt vmcnt({PRE0}) lgkmcnt(0)")
        tl(4)
        for c in range(PRE0, F1):
            e(pl[c])
        for i in range(4):
            for c in range(2):
                pk_part(212 + 2 * i + c, 168 + 2 * i, 180 + 2 * c, 184 + 2 * c, i == 0)
        dpp_steps(list(range(180, 188)), ["row_ror:4", "row_ror:8"])
        swap_steps(list(range(180, 188)), list(range(204, 212)))
        e("  s_mul_i32 s75, s3, 192")
        e("  v_lshlrev_b32 v5, 4, v1")
        e("  v_add_u32 v5, s75, v5")
        e("  s_mov_b64 exec, 0xf")
        e(f"  ds_write_b128 v5, v[180:183] offset:{L_QP}")
        e(f"  ds_write_b128 v5, v[184:187] offset:{L_QP+64}")
        e("  s_mov_b64 exec, -1")
        e("  s_waitcnt lgkmcnt(0)")
        tl(4)
        e("  s_barrier")
        e("  s_cmp_lg_u32 s3, 0")
        e("  s_cbranch_scc1 K_B2")
        e("  v_lshlrev_b32 v5, 3, v1")
        e("  s_mov_b64 exec, 0xffff")
        for w in range(8):
            e(f"  ds_read_b64 v[{160+2*w}:{161+2*w}], v5 offset:{L_QP + w*192}")
        e("  v_lshrrev_b32 v6, 3, v1")
        e("  v_lshlrev_b32 v6, 14, v6")
        e("  v_and_b32 v7, 7, v1")
        e("  v_lshl_add_u32 v6, v7, 3, v6")
        e(f"  s_lshl_b32 s75, s{SCG}, 6")
        e(f"  s_add_u32 s75, s75, {WS_QG}")
        e("  v_add_u32 v6, s75, v6")
        e("  v_mov_b32 v8, 8")
        e("  v_mov_b32 v9, 0")
        e("  v_mov_b32 v10, 8")
        e(f"  v_mov_b32 v11, {L_CNT}")
        e("  s_waitcnt lgkmcnt(0)")
        e("  v_pk_add_f32 v[160:161], v[160:161], v[162:163]")
        e("  v_pk_add_f32 v[164:165], v[164:165], v[166:167]")
        e("  v_pk_add_f32 v[168:169], v[168:169], v[170:171]")
        e("  v_pk_add_f32 v[172:173], v[172:173], v[174:175]")
        e("  v_pk_add_f32 v[160:161], v[160:161], v[164:165]")
        e("  v_pk_add_f32 v[168:169], v[168:169], v[172:173]")
        e("  v_pk_add_f32 v[160:161], v[160:161], v[168:169]")
        e("  v_cvt_pk_bf16_f32 v160, v160, v161")
        e("  v_mov_b32 v161, s26")
        e(f"  buffer_store_dwordx2 v[160:161], v6, s[{SWS}:{SWS+3}], 0 offen sc1")
        e("  ds_write_b96 v11, v[8:10]")
        e("  s_mov_b64 exec, -1")
        e("K_B2:")
        tl(4)
        if OPT["bar2"]:
            e("  s_barrier")
        F2 = max(F1, OPT["f2"])
        for c in range(F1, F2):
            e(pl[c])
    if not OPT['rs']:
        e(f"  s_lshl_b32 s75, s{SB}, 14")
        e(f"  s_lshl_b32 s76, s{SG}, 11")
        e("  s_add_u32 s75, s75, s76")
        e("  s_lshl_b32 s76, s3, 8")
        e("  s_add_u32 s75, s75, s76")
        e(f"  s_add_u32 s75, s75, {WS_QG}")
        e("  s_lshl_b32 s76, s3, 7")
        e("  v_lshlrev_b32 v6, 2, v1")
        e("  v_add_u32 v6, s76, v6")
        e(f"  s_mov_b32 s74, {OPT['bnd']:#x}")
        PB = [4, 28, 44, 80]
        tl(4)
        e("K_SP:")
        for i, b_ in enumerate(PB):
            e(f"  s_load_dwordx16 s[{b_}:{b_+15}], s[24:25], s75 offset:{64*i} glc")
        e("  s_waitcnt lgkmcnt(0)")
        prs = [b_ + 2*k for b_ in PB for k in range(8)]
        e(f"  s_and_b64 s[76:77], s[{prs[0]}:{prs[0]+1}], s[{prs[1]}:{prs[1]+1}]")
        e(f"  s_or_b64 s[78:79], s[{prs[0]}:{prs[0]+1}], s[{prs[1]}:{prs[1]+1}]")
        for r in prs[2:]:
            e(f"  s_and_b64 s[76:77], s[76:77], s[{r}:{r+1}]")
            e(f"  s_or_b64 s[78:79], s[78:79], s[{r}:{r+1}]")
        e("  s_xor_b32 s77, s77, s26")
        e("  s_xor_b32 s79, s79, s26")
        e("  s_or_b32 s77, s77, s79")
        e("  s_cmp_eq_u32 s77, 0")
        e("  s_cbranch_scc1 K_SPD")
        e("  s_sub_u32 s74, s74, 1")
        e("  s_cmp_lg_u32 s74, 0")
        e("  s_cbranch_scc1 K_SP")
        e("K_SPD:")
        tl(4)
        for k, r in enumerate(prs):
            e(f"  v_writelane_b32 v5, s{r}, {k}")
        e("  s_mov_b64 exec, 0xffffffff")
        e(f"  ds_write_b32 v6, v5 offset:{L_Q}")
        e("  s_mov_b64 exec, -1")
        e("  s_waitcnt lgkmcnt(0)")
        e("  s_barrier")
    e("K_B3:")
    tl(4)
    e("  s_load_dwordx16 s[4:19], s[0:1], 0")
    e("  s_load_dwordx2 s[96:97], s[0:1], 64")
    for c in range(F2, len(pl)):
        e(pl[c])
    e("  v_and_b32 v5, 3, v3")
    e("  v_lshlrev_b32 v5, 8, v5")
    e("  v_lshl_add_u32 v5, v4, 4, v5")
    for i in range(4):
        e(f"  ds_read_b128 v[{QF+4*i}:{QF+4*i+3}], v5 offset:{L_Q + i*64}")
    derive()
    for r in range(32):
        e(f"  v_mov_b32 v{ACC+r}, 0")
    e(f"  v_mov_b32 v{M_}, 0xf149f2ca")
    e(f"  v_mov_b32 v{L_}, 0")
    e(f"  v_mov_b32 v7, {L_CNT}")
    e("  v_mov_b32 v8, 1")
    e("  s_waitcnt lgkmcnt(0)")
    srd(SX, 4, 5, 2048)
    srd(SW1, 16, 17, 512 * 1792 * 2)
    srd(SWO, 12, 13, 4096 * 512 * 2)
    srd(SW2, 18, 19, 1792 * 512 * 2)
    srd(SOUT, 96, 97, 2048)
    if OPT["warmp"]:
        e("  v_mov_b32 v10, 0")
        e("  s_mov_b64 exec, 1")
        if OPT["warmp"] & 1:
            e(f"  buffer_load_dword v249, v10, s[{SWS}:{SWS+3}], s93 offen sc1")
        if OPT["warmp"] & 2:
            e(f"  s_mov_b32 s75, {16*OPT['ns']*8192}")
            e(f"  buffer_load_dword v249, v10, s[{SK}:{SK+3}], s75 offen nt")
            e(f"  buffer_load_dword v250, v10, s[{SV}:{SV+3}], s75 offen nt")
        e("  s_mov_b64 exec, -1")
    if OPT["fd"]:
        e("  s_cmp_ge_u32 s2, 224")
        e("  s_cselect_b32 s95, 2, 0")
    if OPT["pf"] == 2:
        e("  s_cmp_ge_u32 s3, 4")
        e("  s_cselect_b32 s27, 2, 0")
    else:
        e("  s_mov_b32 s27, %d" % (0 if OPT["pf"] else 2))
    def x_loads(sfx):
        e("  s_cmp_lg_u32 s27, 2")
        e(f"  s_cbranch_scc1 K_XL{sfx}")
        e("  s_mov_b32 s27, 3")
        e("  v_lshrrev_b32 v9, 1, v0")
        e("  v_and_b32 v10, 1, v0")
        e("  s_movk_i32 s75, 3584")
        e("  v_mul_lo_u32 v11, v9, s75")
        e("  v_lshl_add_u32 v11, v10, 3, v11")
        e(f"  s_lshl_b32 s75, s{SHC}, 4")
        e("  v_add_u32 v11, s75, v11")
        e(f"  buffer_load_dwordx2 v[244:245], v11, s[{SW1}:{SW1+3}], 0 offen")
        e(f"  v_add_u32 v11, {256*3584}, v11")
        e(f"  buffer_load_dwordx2 v[246:247], v11, s[{SW1}:{SW1+3}], 0 offen")
        wo_loads()
        e(f"K_XL{sfx}:")

    def wo_once(sfx):
        e("  s_cmp_lg_u32 s27, 2")
        e(f"  s_cbranch_scc1 K_WO{sfx}")
        e("  s_mov_b32 s27, 0")
        e("  v_lshlrev_b32 v15, 13, v4")
        e("  v_lshl_add_u32 v15, v3, 2, v15")
        e(f"  s_lshl_b32 s75, s{SHEAD}, 17")
        e(f"  s_lshl_b32 s76, s{SNO}, 7")
        e("  s_add_u32 s75, s75, s76")
        e("  s_bfe_u32 s76, s3, 0x10001")
        e("  s_lshl_b32 s76, s76, 6")
        e("  s_add_u32 s75, s75, s76")
        for ks in range(4):
            for jh in range(2):
                for j in range(4):
                    e(f"  buffer_load_dword v{80+ks*8+jh*4+j}, v15, s[{SWO}:{SWO+3}], s75 offen offset:{j*1024}")
                if not (ks == 3 and jh == 1):
                    e(f"  s_add_u32 s75, s75, {4096 if jh == 0 else 32768-4096}")
        e(f"K_WO{sfx}:")

    def fd_at_exit():
        e("  s_cmp_ge_u32 s2, 224")
        e("  s_cbranch_scc1 K_FX")
        e("  s_mov_b64 exec, 1")
        e("  ds_add_rtn_u32 v6, v7, v8 offset:32")
        e("  s_mov_b64 exec, -1")
        e("  s_waitcnt lgkmcnt(0)")
        e("  v_readfirstlane_b32 s72, v6")
        e("  s_cmp_ge_u32 s72, 4")
        e("  s_cbranch_scc1 K_FX")
        e("  v_lshrrev_b32 v9, 3, v1")
        e("  v_and_b32 v10, 7, v1")
        e("  v_lshlrev_b32 v11, 10, v9")
        e("  v_lshl_add_u32 v11, v10, 4, v11")
        e("  s_lshr_b32 s75, s2, 3")
        e("  s_lshl_b32 s75, s75, 16")
        e("  s_lshl_b32 s76, s72, 14")
        e("  s_add_u32 s75, s75, s76")
        e("  s_and_b32 s76, s2, 7")
        e("  s_lshl_b32 s76, s76, 7")
        e("  s_add_u32 s75, s75, s76")
        e(f"  buffer_load_dwordx4 v[16:19], v11, s[{SW2}:{SW2+3}], s75 offen")
        e("  s_add_u32 s75, s75, 8192")
        e(f"  buffer_load_dwordx4 v[20:23], v11, s[{SW2}:{SW2+3}], s75 offen")
        e("  v_lshlrev_b32 v12, 3, v4")
        e("  s_lshr_b32 s75, s2, 3")
        e("  s_lshl_b32 s75, s75, 8")
        e("  s_lshl_b32 s76, s72, 6")
        e("  s_add_u32 s75, s75, s76")
        e(f"  s_add_u32 s75, s75, {WS_HG}")
        e("  s_add_u32 s76, s75, 7168")
        e(f"  s_mov_b32 s74, {OPT['bnd']:#x}")
        e("K_FXP:")
        e(f"  buffer_load_dwordx2 v[24:25], v12, s[{SWS}:{SWS+3}], s75 offen sc1")
        e(f"  buffer_load_dwordx2 v[26:27], v12, s[{SWS}:{SWS+3}], s75 offen offset:32 sc1")
        e(f"  buffer_load_dwordx2 v[28:29], v12, s[{SWS}:{SWS+3}], s76 offen sc1")
        e(f"  buffer_load_dwordx2 v[30:31], v12, s[{SWS}:{SWS+3}], s76 offen offset:32 sc1")
        e("  s_waitcnt vmcnt(0)")
        e("  v_cmp_ne_u32 s[78:79], s26, v25")
        for r in [27, 29, 31]:
            e(f"  v_cmp_ne_u32 vcc, s26, v{r}")
            e("  s_or_b64 s[78:79], s[78:79], vcc")
        e("  s_cmp_eq_u64 s[78:79], 0")
        e("  s_cbranch_scc1 K_FXD")
        e("  s_sub_u32 s74, s74, 1")
        e("  s_cmp_lg_u32 s74, 0")
        e("  s_cbranch_scc1 K_FXP")
        e("K_FXD:")
        e("  v_and_b32 v5, 8, v1")
        e("  v_cmp_ne_u32 vcc, 0, v5")
        for r in [24, 26, 28, 30]:
            e(f"  v_lshlrev_b32 v48, 16, v{r}")
            e(f"  v_and_b32 v49, 0xffff0000, v{r}")
            e(f"  v_cndmask_b32 v{r}, v48, v49, vcc")
        A = 32
        for i in range(2):
            for c in range(4):
                w = 16 + 4*i + c
                e(f"  v_lshlrev_b32 v48, 16, v{w}")
                e(f"  v_and_b32 v49, 0xffff0000, v{w}")
                for b in range(2):
                    h = 24 + 4*b + 2*i
                    if i == 0:
                        e(f"  v_mul_f32 v{A+8*b+2*c}, v48, v{h}")
                        e(f"  v_mul_f32 v{A+8*b+2*c+1}, v49, v{h}")
                    else:
                        e(f"  v_fmac_f32 v{A+8*b+2*c}, v48, v{h}")
                        e(f"  v_fmac_f32 v{A+8*b+2*c+1}, v49, v{h}")
        dpp_steps(list(range(A, A+16)), ["row_ror:8"])
        swap_steps(list(range(A, A+16)), list(range(48, 64)))
        e("  s_lshl_b32 s75, s72, 9")
        e("  v_lshlrev_b32 v5, 5, v1")
        e("  v_add_u32 v5, s75, v5")
        e("  s_mov_b64 exec, 0xff")
        e(f"  ds_write_b128 v5, v[{A}:{A+3}] offset:{L_FP}")
        e(f"  ds_write_b128 v5, v[{A+4}:{A+7}] offset:{L_FP+16}")
        e(f"  ds_write_b128 v5, v[{A+8}:{A+11}] offset:{L_FP+256}")
        e(f"  ds_write_b128 v5, v[{A+12}:{A+15}] offset:{L_FP+272}")
        e("  s_mov_b64 exec, 1")
        e(f"  ds_add_rtn_u32 v6, v7, v8 offset:28")
        e("  s_mov_b64 exec, -1")
        e("  s_waitcnt lgkmcnt(0)")
        e("  v_readfirstlane_b32 s75, v6")
        e("  s_cmp_lg_u32 s75, 3")
        e("  s_cbranch_scc1 K_FX")
        e("  v_lshlrev_b32 v5, 3, v1")
        for w in range(4):
            e(f"  ds_read_b64 v[{16+2*w}:{17+2*w}], v5 offset:{L_FP + w*512}")
        e("  v_lshrrev_b32 v6, 5, v1")
        e("  v_lshlrev_b32 v6, 12, v6")
        e("  v_and_b32 v9, 31, v1")
        e("  v_lshl_add_u32 v6, v9, 4, v6")
        e("  s_lshr_b32 s75, s2, 3")
        e("  s_lshl_b32 s75, s75, 13")
        e("  s_and_b32 s76, s2, 7")
        e("  s_lshl_b32 s76, s76, 9")
        e("  s_add_u32 s75, s75, s76")
        e(f"  s_add_u32 s75, s75, {WS_GG}")
        e("  s_waitcnt lgkmcnt(0)")
        e("  v_pk_add_f32 v[16:17], v[16:17], v[18:19]")
        e("  v_pk_add_f32 v[20:21], v[20:21], v[22:23]")
        e("  v_pk_add_f32 v[16:17], v[16:17], v[20:21]")
        e("  v_mov_b32 v18, v17")
        e("  v_mov_b32 v17, s26")
        e("  v_mov_b32 v19, s26")
        e(f"  buffer_store_dwordx4 v[16:19], v6, s[{SWS}:{SWS+3}], s75 offen sc1")
        e("K_FX:")

    def h_phase(sfx):
        e("  s_cmp_eq_u32 s27, 0")
        e(f"  s_cbranch_scc1 K_HSKP{sfx}")
        e("  s_sub_u32 s27, s27, 2")
        e("  s_cmp_eq_u32 s27, 1")
        e(f"  s_cbranch_scc1 K_HSKP{sfx}")
        e("  s_mov_b32 s27, 0")
        e(f"  s_cmp_ge_u32 s{SHC}, 224")
        e(f"  s_cbranch_scc1 K_HSKP{sfx}")
        e("  v_lshrrev_b32 v5, 1, v0")
        e("  v_lshlrev_b32 v5, 2, v5")
        for i in range(2):
            e(f"  ds_read2st64_b32 v[{204+2*i}:{205+2*i}], v5 offset0:{(L_XN + i*1024)//256} offset1:{(L_XN + i*1024 + 2048)//256}")
        e("  s_waitcnt lgkmcnt(0)")
        A = 212
        for i in range(2):
            for c in range(2):
                w = 244 + 2*i + c
                xr = 204 + 2*i
                a0, a1 = A + 2*c, A + 4 + 2*c
                e(f"  v_lshlrev_b32 v208, 16, v{w}")
                e(f"  v_and_b32 v209, 0xffff0000, v{w}")
                if i == 0:
                    e(f"  v_pk_mul_f32 v[{a0}:{a0+1}], v[208:209], v[{xr}:{xr+1}] op_sel_hi:[1,0]")
                    e(f"  v_pk_mul_f32 v[{a1}:{a1+1}], v[208:209], v[{xr}:{xr+1}] op_sel:[0,1] op_sel_hi:[1,1]")
                else:
                    e(f"  v_pk_fma_f32 v[{a0}:{a0+1}], v[208:209], v[{xr}:{xr+1}], v[{a0}:{a0+1}] op_sel_hi:[1,0,1]")
                    e(f"  v_pk_fma_f32 v[{a1}:{a1+1}], v[208:209], v[{xr}:{xr+1}], v[{a1}:{a1+1}] op_sel:[0,1,0] op_sel_hi:[1,1,1]")
        dpp_steps(list(range(A, A+8)), ["quad_perm:[2,3,0,1]", "row_ror:4", "row_ror:8"])
        swap_steps(list(range(A, A+8)), list(range(220, 228)))
        e("  s_mul_i32 s75, s3, 192")
        e("  v_lshlrev_b32 v5, 4, v1")
        e("  v_add_u32 v5, s75, v5")
        e("  s_mov_b64 exec, 0x3")
        e(f"  ds_write_b128 v5, v[{A}:{A+3}] offset:{L_QP+128}")
        e(f"  ds_write_b128 v5, v[{A+4}:{A+7}] offset:{L_QP+160}")
        e("  s_mov_b64 exec, 1")
        e(f"  ds_add_rtn_u32 v6, v7, v8 offset:4")
        e("  s_mov_b64 exec, -1")
        e("  s_waitcnt lgkmcnt(0)")
        e("  v_readfirstlane_b32 s75, v6")
        e("  s_cmp_lg_u32 s75, 7")
        e(f"  s_cbranch_scc1 K_HSKP{sfx}")
        e("  v_lshlrev_b32 v5, 3, v1")
        e("  s_mov_b64 exec, 0xff")
        for w in range(8):
            e(f"  ds_read_b64 v[{204+2*w}:{205+2*w}], v5 offset:{L_QP + w*192 + 128}")
        e("  v_lshrrev_b32 v6, 2, v1")
        e("  s_movk_i32 s75, 7168")
        e("  v_mul_lo_u32 v6, v6, s75")
        e("  v_and_b32 v9, 3, v1")
        e("  v_lshl_add_u32 v6, v9, 3, v6")
        e(f"  s_lshl_b32 s75, s{SHC}, 5")
        e(f"  s_add_u32 s75, s75, {WS_HG}")
        e("  s_waitcnt lgkmcnt(0)")
        e("  v_pk_add_f32 v[204:205], v[204:205], v[206:207]")
        e("  v_pk_add_f32 v[208:209], v[208:209], v[210:211]")
        e("  v_pk_add_f32 v[212:213], v[212:213], v[214:215]")
        e("  v_pk_add_f32 v[216:217], v[216:217], v[218:219]")
        e("  v_pk_add_f32 v[204:205], v[204:205], v[208:209]")
        e("  v_pk_add_f32 v[212:213], v[212:213], v[216:217]")
        e("  v_pk_add_f32 v[204:205], v[204:205], v[212:213]")
        e("  v_max_f32 v204, 0, v204")
        e("  v_max_f32 v205, 0, v205")
        e("  v_cvt_pk_bf16_f32 v204, v204, v205")
        e("  v_mov_b32 v205, s26")
        e(f"  buffer_store_dwordx2 v[204:205], v6, s[{SWS}:{SWS+3}], s75 offen sc1")
        e("  s_mov_b64 exec, -1")
        e(f"K_HSKP{sfx}:")
    def h_loads():
        e("  s_movk_i32 s75, 7168")
        e(f"  buffer_load_dwordx2 v[244:245], v248, s[{SWS}:{SWS+3}], 0 offen sc1")
        e(f"  buffer_load_dwordx2 v[246:247], v248, s[{SWS}:{SWS+3}], s75 offen sc1")

    def fd_issue():
        e("  v_lshrrev_b32 v5, 1, v12")
        e("  v_lshlrev_b32 v248, 3, v5")
        e("  s_lshr_b32 s75, s2, 3")
        e("  s_lshl_b32 s75, s75, 8")
        e(f"  s_add_u32 s75, s75, {WS_HG}")
        e("  v_add_u32 v248, s75, v248")
        h_loads()
    def fd_check(bad):
        e("  v_cmp_ne_u32 vcc, s26, v245")
        e("  v_cmp_ne_u32 s[78:79], s26, v247")
        e("  s_or_b64 vcc, vcc, s[78:79]")
        e("  s_cmp_lg_u64 vcc, 0")
        e(f"  s_cbranch_scc1 {bad}")
    def fd_compute(done):
        A = 204
        e("  v_and_b32 v5, 1, v12")
        e("  v_cmp_eq_u32 vcc, 1, v5")
        e("  v_lshlrev_b32 v220, 16, v244")
        e("  v_and_b32 v5, 0xffff0000, v244")
        e("  v_lshlrev_b32 v221, 16, v246")
        e("  v_and_b32 v6, 0xffff0000, v246")
        e("  v_cndmask_b32 v220, v220, v5, vcc")
        e("  v_cndmask_b32 v221, v221, v6, vcc")
        for c in range(4):
            e(f"  v_lshlrev_b32 v222, 16, v{W2+c}")
            e(f"  v_and_b32 v223, 0xffff0000, v{W2+c}")
            e(f"  v_mul_f32 v{A+2*c}, v222, v220")
            e(f"  v_mul_f32 v{A+1+2*c}, v223, v220")
            e(f"  v_mul_f32 v{A+8+2*c}, v222, v221")
            e(f"  v_mul_f32 v{A+9+2*c}, v223, v221")
        dpp_steps(list(range(A, A+16)), ["row_ror:8"])
        swap_steps(list(range(A, A+16)), list(range(220, 236)))
        e("  s_lshl_b32 s75, s3, 9")
        e("  v_lshlrev_b32 v5, 5, v1")
        e("  v_add_u32 v5, s75, v5")
        e("  s_mov_b64 exec, 0xff")
        e(f"  ds_write_b128 v5, v[{A}:{A+3}] offset:{L_FP}")
        e(f"  ds_write_b128 v5, v[{A+4}:{A+7}] offset:{L_FP+16}")
        e(f"  ds_write_b128 v5, v[{A+8}:{A+11}] offset:{L_FP+256}")
        e(f"  ds_write_b128 v5, v[{A+12}:{A+15}] offset:{L_FP+272}")
        e("  s_mov_b64 exec, 1")
        e(f"  ds_add_rtn_u32 v6, v7, v8 offset:28")
        e("  s_mov_b64 exec, -1")
        e("  s_waitcnt lgkmcnt(0)")
        e("  v_readfirstlane_b32 s75, v6")
        e("  s_mov_b32 s95, 2")
        e("  s_cmp_lg_u32 s75, 7")
        e(f"  s_cbranch_scc1 {done}")
        e("  v_lshlrev_b32 v5, 3, v1")
        for w in range(8):
            e(f"  ds_read_b64 v[{204+2*w}:{205+2*w}], v5 offset:{L_FP + w*512}")
        e("  v_lshrrev_b32 v6, 5, v1")
        e("  v_lshlrev_b32 v6, 12, v6")
        e("  v_and_b32 v9, 31, v1")
        e("  v_lshl_add_u32 v6, v9, 4, v6")
        e("  s_lshr_b32 s75, s2, 3")
        e("  s_lshl_b32 s75, s75, 13")
        e("  s_and_b32 s76, s2, 7")
        e("  s_lshl_b32 s76, s76, 9")
        e("  s_add_u32 s75, s75, s76")
        e(f"  s_add_u32 s75, s75, {WS_GG}")
        e("  s_waitcnt lgkmcnt(0)")
        e("  v_pk_add_f32 v[204:205], v[204:205], v[206:207]")
        e("  v_pk_add_f32 v[208:209], v[208:209], v[210:211]")
        e("  v_pk_add_f32 v[212:213], v[212:213], v[214:215]")
        e("  v_pk_add_f32 v[216:217], v[216:217], v[218:219]")
        e("  v_pk_add_f32 v[204:205], v[204:205], v[208:209]")
        e("  v_pk_add_f32 v[212:213], v[212:213], v[216:217]")
        e("  v_pk_add_f32 v[204:205], v[204:205], v[212:213]")
        e("  v_mov_b32 v206, v205")
        e("  v_mov_b32 v205, s26")
        e("  v_mov_b32 v207, s26")
        e(f"  buffer_store_dwordx4 v[204:207], v6, s[{SWS}:{SWS+3}], s75 offen sc1")
    def fd_phase():
        e("  s_cmp_eq_u32 s95, 2")
        e("  s_cbranch_scc1 K_FDS")
        e("  s_cmp_lg_u32 s27, 0")
        e("  s_cbranch_scc1 K_FDS")
        e(f"  s_cmp_lt_u32 s73, {OPT['fdt']}")
        e("  s_cbranch_scc1 K_FDS")
        e("  s_cmp_eq_u32 s95, 0")
        e("  s_cbranch_scc1 K_FDI")
        fd_check("K_FDI")
        fd_compute("K_FDS")
        e("  s_branch K_FDS")
        e("K_FDI:")
        fd_issue()
        e("  s_mov_b32 s95, 1")
        e("K_FDS:")
    def fd_exit():
        e("  s_cmp_eq_u32 s95, 2")
        e("  s_cbranch_scc1 K_FDES")
        e(f"  s_mov_b32 s74, {OPT['bnd']:#x}")
        e("K_FDEL:")
        fd_issue()
        e("  s_waitcnt vmcnt(0)")
        fd_check("K_FDEB")
        e("  s_branch K_FDEC")
        e("K_FDEB:")
        e("  s_sub_u32 s74, s74, 1")
        e("  s_cmp_lg_u32 s74, 0")
        e("  s_cbranch_scc1 K_FDEL")
        e("K_FDEC:")
        fd_compute("K_FDES")
        e("K_FDES:")

    def c_qk(KR, vk):
        e(f"  s_waitcnt vmcnt({vk})")
        tl()
        for t in range(2):
            for i in range(4):
                c = "0" if i == 0 else f"v[{ST+4*t}:{ST+4*t+3}]"
                e(f"  v_mfma_f32_16x16x32_bf16 v[{ST+4*t}:{ST+4*t+3}], v[{KR+16*t+4*i}:{KR+16*t+4*i+3}], v[{QF+4*i}:{QF+4*i+3}], {c}")
    def c_sm(nop=True):
        if nop:
            e("  s_nop 7")
            e("  s_nop 0")
        e(f"  v_max3_f32 v{T0}, v{ST}, v{ST+1}, v{ST+2}")
        e(f"  v_max3_f32 v{T1}, v{ST+3}, v{ST+4}, v{ST+5}")
        e(f"  v_max3_f32 v{T0}, v{T0}, v{ST+6}, v{ST+7}")
        e(f"  v_max_f32 v{T0}, v{T0}, v{T1}")
        e(f"  v_mov_b32 v{T1}, v{T0}")
        e("  s_nop 1")
        e(f"  v_permlane16_swap_b32 v{T0}, v{T1}")
        e("  s_nop 1")
        e(f"  v_max_f32 v{T0}, v{T0}, v{T1}")
        e(f"  v_mov_b32 v{T1}, v{T0}")
        e("  s_nop 1")
        e(f"  v_permlane32_swap_b32 v{T0}, v{T1}")
        e("  s_nop 1")
        e(f"  v_max3_f32 v{T0}, v{T0}, v{T1}, v{M_}")
        e(f"  v_sub_f32 v{AL}, v{M_}, v{T0}")
        e(f"  v_mul_f32 v{AL}, s{SC}, v{AL}")
        e(f"  v_exp_f32 v{AL}, v{AL}")
        e(f"  v_mov_b32 v{M_}, v{T0}")
        e(f"  v_mul_f32 v{MC}, s{SC}, v{T0}")
        for k in range(8):
            e(f"  v_fma_f32 v{ST+k}, v{ST+k}, s{SC}, -v{MC}")
        for k in range(8):
            e(f"  v_exp_f32 v{ST+k}, v{ST+k}")
        e("  s_nop 0")
        e(f"  v_mul_f32 v{L_}, v{L_}, v{AL}")
        for k in range(8):
            e(f"  v_add_f32 v{L_}, v{L_}, v{ST+k}")
        for q in range(4):
            e(f"  v_cvt_pk_bf16_f32 v{PF+q}, v{ST+2*q}, v{ST+2*q+1}")
        for r in range(32):
            e(f"  v_mul_f32 v{ACC+r}, v{ACC+r}, v{AL}")
    def c_pv(VR, vv):
        if vv is not None:
            e(f"  s_waitcnt vmcnt({vv})")
        tl()
        for t in range(8):
            c = t >> 1
            sel = f"s{SP1}" if (t & 1) else f"s{SP0}"
            for q in range(4):
                e(f"  v_perm_b32 v{TR+4*t+q}, v{VR+4*(2*q+1)+c}, v{VR+4*(2*q)+c}, {sel}")
        e("  s_nop 1")
        for t in range(8):
            e(f"  v_mfma_f32_16x16x32_bf16 v[{ACC+4*t}:{ACC+4*t+3}], v[{TR+4*t}:{TR+4*t+3}], v[{PF}:{PF+3}], v[{ACC+4*t}:{ACC+4*t+3}]")

    def compute(KR, VR, vk, vv):
        c_qk(KR, vk)
        c_sm()
        c_pv(VR, vv)

    def fetch():
        e("  s_mov_b64 exec, 1")
        e("  ds_add_rtn_u32 v9, v7, v8")
        e("  s_mov_b64 exec, -1")
    def getidx(sidx):
        e("  s_waitcnt lgkmcnt(0)")
        e(f"  v_readfirstlane_b32 s{sidx}, v9")

    if OPT["nw"] < 8:
        e(f"  s_cmp_ge_u32 s3, {OPT['nw']}")
        e("  s_cbranch_scc1 K_EXIT")
    def gen_loop(sfx, last):
        if OPT["nbuf"] == 3:
            fetch()
            compute(KA, VA, 24, 16)
            getidx(IDXA)
            loads(KA, VA, IDXA)
            compute(KB, VB, 24, 16)
            e(f"  s_cmp_ge_u32 s{IDXA}, 64")
            e("  s_cbranch_scc1 K_EXIT")
        e(f"K_LOOP{sfx}:")
        if OPT["nbuf"] == 2:
            fetch()
            compute(KA, VA, 24, 16)
            getidx(IDXA)
            loads(KA, VA, IDXA)
            e(f"  s_cmp_ge_u32 s{IDXB}, 64")
            e("  s_cbranch_scc1 K_EXIT")
            fetch()
            compute(KB, VB, 24, 16)
            getidx(IDXB)
            loads(KB, VB, IDXB)
            e(f"  s_cmp_lt_u32 s{IDXA}, 64")
            e(f"  s_cbranch_scc1 K_LOOP{sfx}")
        else:
            NS = OPT["ns"]
            fetch()
            getidx(73)
            if OPT["dup"] > 1:
                e(f"  s_cmp_lt_u32 s73, {OPT['dup']}")
                e(f"  s_cselect_b32 s75, 0, 4096")
                e(f"  s_and_b32 s73, s73, 63")
                e(f"  s_add_u32 s73, s73, s75")
            e(f"  s_cmp_lt_u32 s73, {NS}")
            e(f"  s_cbranch_scc1 K_STA{sfx}")
            e("  v_mov_b32 v9, 1")
            e("  v_mov_b32 v10, 0")
            e("  s_mov_b64 exec, 1")
            e(f"  buffer_atomic_add v9, v10, s[{SWS}:{SWS+3}], s93 offen sc0 sc1")
            e("  s_mov_b64 exec, -1")
            e(f"K_STA{sfx}:")
            compute(KA, VA, 8, 0)
            e(f"  s_cmp_ge_u32 s73, {NS}")
            e(f"  s_cbranch_scc1 K_DY2{sfx}")
            e(f"  s_add_u32 s{IDXA}, s73, s94")
            e(f"  s_branch K_ST2{sfx}")
            e(f"K_DY2{sfx}:")
            e(f"  v_readfirstlane_b32 s{IDXA}, v9")
            e(f"  s_cmp_lt_u32 s{IDXA}, {(1024-16*NS)//OPT['nsub']}")
            e(f"  s_cselect_b32 s{IDXA}, s{IDXA}, 2048")
            e(f"  s_add_u32 s{IDXA}, s{IDXA}, s92")
            e(f"K_ST2{sfx}:")
            if OPT["fifo"]:
                e(f"  s_cmp_ge_u32 s{IDXA}, 1024")
                e(f"  s_cbranch_scc1 K_FD{sfx}")
                e(f"  s_sub_u32 s73, s73, {OPT['fw']}")
                e(f"  s_mov_b32 s74, {OPT['bnd']:#x}")
                e(f"K_FW{sfx}:")
                e("  ds_read_b32 v9, v7 offset:8")
                e("  s_waitcnt lgkmcnt(0)")
                e("  v_readfirstlane_b32 s75, v9")
                e("  s_cmp_ge_u32 s75, s73")
                e(f"  s_cbranch_scc1 K_FD{sfx}")
                if OPT["fsl"]: e(f"  s_sleep {OPT['fsl']}")
                e("  s_sub_u32 s74, s74, 1")
                e("  s_cmp_lg_u32 s74, 0")
                e(f"  s_cbranch_scc1 K_FW{sfx}")
                e(f"K_FD{sfx}:")
            x_loads("L"+sfx)
            loads(KA, VA, IDXA)
            if OPT["fifo"]:
                e("  s_mov_b64 exec, 1")
                e("  ds_add_u32 v7, v8 offset:8")
                e("  s_mov_b64 exec, -1")
            h_phase("L"+sfx)
            e(f"  s_cmp_lt_u32 s{IDXA}, 1024")
            e(f"  s_cbranch_scc1 K_LOOP{sfx}")
        if not last:
            e("  s_branch K_EXIT")
    def fifo_wait(lbl, off):
        e(f"  s_mov_b32 s74, {OPT['bnd']:#x}")
        e(f"{lbl}:")
        e(f"  ds_read_b32 v9, v7 offset:{off}")
        e("  s_waitcnt lgkmcnt(0)")
        e("  v_readfirstlane_b32 s75, v9")
        e("  s_cmp_ge_u32 s75, s73")
        e(f"  s_cbranch_scc1 {lbl}D")
        if OPT["fsl"]: e(f"  s_sleep {OPT['fsl']}")
        e("  s_sub_u32 s74, s74, 1")
        e("  s_cmp_lg_u32 s74, 0")
        e(f"  s_cbranch_scc1 {lbl}")
        e(f"{lbl}D:")
    def fifo_add(off):
        e("  s_mov_b64 exec, 1")
        e(f"  ds_add_u32 v7, v8 offset:{off}")
        e("  s_mov_b64 exec, -1")
    def gen_loop_sp():
        e("K_LOOP:")
        fetch()
        getidx(73)
        c_qk(KA, 8)
        e("  s_cmp_ge_u32 s73, 64")
        e("  s_cbranch_scc1 K_NK")
        e(f"  s_add_u32 s{IDXA}, s73, s94")
        blkoff(IDXA)
        e(f"  v_add_u32 v5, s75, v{VKOFF}")
        e(f"  v_add_u32 v6, s75, v{VVOFF}")
        fifo_wait("K_FK", 8)
        kchunk(KA, 5)
        tl(5)
        fifo_add(8)
        e("K_NK:")
        c_sm(nop=True)
        e("  s_cmp_lt_u32 s73, 64")
        e("  s_cbranch_scc1 K_W8")
        e("  s_waitcnt vmcnt(0)")
        e("K_W8:")
        c_pv(VA, 8)
        e("  s_cmp_ge_u32 s73, 64")
        e("  s_cbranch_scc1 K_NV")
        fifo_wait("K_FV", 12)
        vchunk(VA, 6)
        tl(5)
        fifo_add(12)
        e("K_NV:")
        if not OPT["pf"]:
            x_loads("L")
            h_phase("L")
        if OPT["pf"] == 2:
            wo_once("L")
        if OPT["fd"]:
            fd_phase()
        e("  s_cmp_lt_u32 s73, 64")
        e("  s_cbranch_scc1 K_LOOP")
    if OPT["sp"]:
        gen_loop_sp()
    elif OPT["T"]:
        e(f"  s_lshl_b32 s75, s{SB}, 3")
        e(f"  s_add_u32 s75, s75, s{SG}")
        e(f"  s_cmp_lt_u32 s75, {OPT['T']}")
        e("  s_cbranch_scc1 K_LOOPlo")
        POL["k"] = "" if OPT["phi"] & 1 else nt
        POL["v"] = "" if OPT["phi"] & 2 else nt
        gen_loop("hi", False)
        POL["k"] = "" if OPT["plo"] & 1 else nt
        POL["v"] = "" if OPT["plo"] & 2 else nt
        gen_loop("lo", True)
    else:
        gen_loop("", True)
    e("K_EXIT:")
    if OPT["prof"] == 1: stamp(4)
    tl(OPT["prof"])
    tl_dump()
    if not OPT["pf"]:
        e("  s_cmp_eq_u32 s27, 0")
        e("  s_cbranch_scc1 K_X0")
        x_loads("E")
        e("  s_mov_b32 s27, 1")
        e("  s_waitcnt vmcnt(0)")
        h_phase("E")
        e("K_X0:")
    if OPT["pf"] == 2:
        wo_once("E")
    elif OPT["pf"]:
        pass
    elif OPT["fd"]:
        fd_exit()
    else:
        e("  s_cmp_ge_u32 s2, 224")
        e("  s_cbranch_scc1 K_HSK")
        e("  v_lshrrev_b32 v5, 1, v12")
        e("  v_lshlrev_b32 v248, 3, v5")
        e("  s_lshr_b32 s75, s2, 3")
        e("  s_lshl_b32 s75, s75, 8")
        e(f"  s_add_u32 s75, s75, {WS_HG}")
        e("  v_add_u32 v248, s75, v248")
        h_loads()
        e("K_HSK:")
    e(f"  v_mov_b32 v{T1}, v{L_}")
    e("  s_nop 1")
    e(f"  v_permlane16_swap_b32 v{L_}, v{T1}")
    e("  s_nop 1")
    e(f"  v_add_f32 v{L_}, v{L_}, v{T1}")
    e(f"  v_mov_b32 v{T1}, v{L_}")
    e("  s_nop 1")
    e(f"  v_permlane32_swap_b32 v{L_}, v{T1}")
    e("  s_nop 1")
    e(f"  v_add_f32 v{L_}, v{L_}, v{T1}")
    e("  v_cmp_gt_u32 vcc, 4, v3")
    e("  s_and_saveexec_b64 s[78:79], vcc")
    if OPT["cb"]:
        e("  v_lshlrev_b32 v5, 4, v2")
        e("  v_lshl_add_u32 v5, v3, 2, v5")
        e("  v_add_u32 v5, v4, v5")
        e("  v_mul_u32_u24 v5, 144, v5")
        e("  s_nop 4")
        for t in range(8):
            e(f"  ds_write_b128 v5, v[{ACC+4*t}:{ACC+4*t+3}] offset:{L_O + t*16}")
    else:
        e("  v_lshlrev_b32 v5, 11, v2")
        e("  v_lshl_add_u32 v5, v3, 9, v5")
        e("  v_lshl_add_u32 v5, v4, 7, v5")
        e("  s_nop 4")
        for t in range(8):
            for r in range(4):
                e(f"  ds_write_b32 v5, v{ACC+4*t+r} offset:{L_O + (r*8+t)*4}")
    e("  v_cmp_gt_u32 vcc, 4, v1")
    e("  s_and_b64 exec, exec, vcc")
    e("  v_lshlrev_b32 v6, 5, v2")
    e("  v_lshl_add_u32 v6, v3, 3, v6")
    e(f"  ds_write_b32 v6, v{M_} offset:{L_ML}")
    e(f"  ds_write_b32 v6, v{L_} offset:{L_ML+4}")
    e("  s_mov_b64 exec, s[78:79]")
    if OPT["pf"] == 2:
        fd_at_exit()
    e("  s_waitcnt lgkmcnt(0)")
    e("  s_barrier")
    tl6(2)
    e("  v_lshrrev_b32 v5, 7, v0")
    e("  v_and_b32 v6, 127, v0")
    e("  v_lshlrev_b32 v7, 3, v5")
    for w in range(8):
        e(f"  ds_read_b64 v[{160+2*w}:{161+2*w}], v7 offset:{L_ML + w*32}")
    if OPT["cb"]:
        e("  v_lshrrev_b32 v8, 5, v0")
        e("  v_mul_u32_u24 v8, 144, v8")
        if OPT["t2"]:
            e("  v_and_b32 v9, 24, v0")
            e("  v_and_b32 v10, 1, v0")
            e("  v_lshl_add_u32 v9, v10, 2, v9")
            e("  v_bfe_u32 v10, v0, 1, 2")
            e("  v_add_u32 v9, v10, v9")
        else:
            e("  v_and_b32 v9, 31, v0")
        e("  v_lshl_add_u32 v8, v9, 2, v8")
        for w in range(8):
            e(f"  ds_read_b32 v{176+w}, v8 offset:{L_O + w*2304}")
    else:
        e("  v_lshlrev_b32 v8, 9, v5")
        e("  v_lshl_add_u32 v8, v6, 2, v8")
        for w in range(8):
            e(f"  ds_read_b32 v{176+w}, v8 offset:{L_O + w*2048}")
    e("  s_waitcnt lgkmcnt(0)")
    e("  v_max3_f32 v184, v160, v162, v164")
    e("  v_max3_f32 v185, v166, v168, v170")
    e("  v_max3_f32 v184, v184, v172, v174")
    e("  v_max_f32 v184, v184, v185")
    e("  v_mov_b32 v186, 0")
    e("  v_mov_b32 v187, 0")
    for w in range(8):
        e(f"  v_sub_f32 v185, v{160+2*w}, v184")
        e(f"  v_mul_f32 v185, s{SC}, v185")
        e("  v_exp_f32 v185, v185")
        e("  s_nop 0")
        e(f"  v_fmac_f32 v186, v185, v{161+2*w}")
        e(f"  v_fmac_f32 v187, v185, v{176+w}")
    e(f"  s_lshl_b32 s75, s{SB}, 5")
    e(f"  s_lshl_b32 s76, s{SG}, 2")
    e("  s_add_u32 s75, s75, s76")
    e("  s_lshl_b32 s75, s75, 4")
    e(f"  s_add_u32 s75, s75, s{SSPL}")
    e("  v_lshlrev_b32 v7, 4, v5")
    e("  v_add_u32 v7, s75, v7")
    e("  v_lshlrev_b32 v8, 10, v7")
    e("  v_lshl_add_u32 v8, v6, 3, v8")
    e(f"  s_mov_b32 s75, {WS_OG}")
    e("  v_mov_b32 v188, v187")
    e("  v_mov_b32 v189, s26")
    e(f"  buffer_store_dwordx2 v[188:189], v8, s[{SWS}:{SWS+3}], s75 offen sc1")
    e("  v_cmp_eq_u32 vcc, 0, v6")
    e("  s_and_saveexec_b64 s[78:79], vcc")
    e("  v_lshlrev_b32 v7, 4, v7")
    e("  v_mov_b32 v185, v186")
    e("  v_mov_b32 v186, s26")
    e(f"  s_mov_b32 s75, {WS_MG}")
    e(f"  buffer_store_dwordx3 v[184:186], v7, s[{SWS}:{SWS+3}], s75 offen sc1")
    e("  s_mov_b64 exec, s[78:79]")
    if OPT["prof"] == 1: stamp(5)
    tl6(3)

    def prod(wregs, vecaddr_rows, accbase, nrows):
        for r in range(16):
            e(f"  v_mov_b32 v{accbase+r}, 0")
        for i in range(nrows):
            for c in range(4):
                w = wregs + 4 * i + c
                e(f"  v_lshlrev_b32 v160, 16, v{w}")
                e(f"  v_and_b32 v161, 0xffff0000, v{w}")
                e(f"  v_fmac_f32 v{accbase+2*c}, v160, v{168+2*i}")
                e(f"  v_fmac_f32 v{accbase+1+2*c}, v161, v{168+2*i}")
                e(f"  v_fmac_f32 v{accbase+8+2*c}, v160, v{169+2*i}")
                e(f"  v_fmac_f32 v{accbase+9+2*c}, v161, v{169+2*i}")
        dpp_steps(list(range(accbase, accbase + 16)), ["row_ror:8"])

    def reduce_store(lbase, label, snc):
        e("  v_lshlrev_b32 v5, 2, v2")
        e("  v_add_u32 v5, v5, v4")
        e("  v_lshlrev_b32 v5, 9, v5")
        e("  v_and_b32 v6, 7, v1")
        e("  v_lshl_add_u32 v5, v6, 5, v5")
        e("  v_and_b32 v6, 8, v1")
        e("  v_cmp_eq_u32 vcc, 0, v6")
        e("  s_and_saveexec_b64 s[78:79], vcc")
        e(f"  ds_write_b128 v5, v[180:183] offset:{lbase}")
        e(f"  ds_write_b128 v5, v[184:187] offset:{lbase+16}")
        e(f"  ds_write_b128 v5, v[188:191] offset:{lbase+256}")
        e(f"  ds_write_b128 v5, v[192:195] offset:{lbase+256+16}")
        e("  s_mov_b64 exec, s[78:79]")
        e("  s_waitcnt lgkmcnt(0)")
        e("  s_barrier")
        e("  s_cmp_ge_u32 s3, 2")
        e(f"  s_cbranch_scc1 {label}")
        e("  v_lshlrev_b32 v5, 2, v0")
        for p in range(32):
            e(f"  ds_read_b32 v{204+p}, v5 offset:{lbase + p*512}")
        e("  s_waitcnt lgkmcnt(0)")
        for p in range(1, 31, 2):
            e(f"  v_add_f32 v{204+p}, v{204+p}, v{205+p}")
        e("  v_add_f32 v204, v204, v235")
        for p in range(1, 31, 2):
            e(f"  v_add_f32 v204, v204, v{204+p}")
        e("  v_lshlrev_b32 v5, 12, v2")
        e("  v_lshl_add_u32 v5, v1, 3, v5")
        e(f"  s_lshl_b32 s76, s{snc}, 9")
        e(f"  s_add_u32 s75, s75, s76")
        e("  v_mov_b32 v205, s26")
        e(f"  buffer_store_dwordx2 v[204:205], v5, s[{SWS}:{SWS+3}], s75 offen sc1")
        e(f"{label}:")

    if not OPT["fd"] and not OPT["pf"]:
        e("  s_cmp_ge_u32 s2, 224")
        e("  s_cbranch_scc1 K_T4")
        e(f"  s_mov_b32 s74, {OPT['bnd']:#x}")
        e("  s_waitcnt vmcnt(1)")
        e("K_HR:")
        e("  v_cmp_ne_u32 vcc, s26, v245")
        e("  v_cmp_ne_u32 s[78:79], s26, v247")
        e("  s_or_b64 vcc, vcc, s[78:79]")
        e("  s_cmp_eq_u64 vcc, 0")
        e("  s_cbranch_scc1 K_HOK")
        h_loads()
        e("  s_waitcnt vmcnt(0)")
        e("  s_sub_u32 s74, s74, 1")
        e("  s_cmp_lg_u32 s74, 0")
        e("  s_cbranch_scc1 K_HR")
        e("K_HOK:")
        e("  v_and_b32 v5, 1, v12")
        e("  v_cmp_eq_u32 vcc, 1, v5")
        e("  v_lshlrev_b32 v168, 16, v244")
        e("  v_and_b32 v5, 0xffff0000, v244")
        e("  v_lshlrev_b32 v169, 16, v246")
        e("  v_and_b32 v6, 0xffff0000, v246")
        e("  v_cndmask_b32 v168, v168, v5, vcc")
        e("  v_cndmask_b32 v169, v169, v6, vcc")
        prod(W2, None, 180, 1)
        e("  s_lshr_b32 s75, s2, 3")
        e("  s_lshl_b32 s75, s75, 13")
        e(f"  s_add_u32 s75, s75, {WS_GG}")
        reduce_store(L_FP, "K_T3B", SNC)
    e("K_T4:")
    if OPT["t2"]:
        tail2()
        return_early = True
    else:
        return_early = False
    if return_early:
        pass
    elif not OPT["mf"]:
        e("  s_cmp_ge_u32 s3, 4")
        e("  s_cbranch_scc1 K_T6")
        e("  v_lshrrev_b32 v6, 7, v0")
        e("  v_and_b32 v7, 127, v0")
        e("  v_lshlrev_b32 v8, 5, v6")
        e(f"  v_add_u32 v8, s{SHEAD}, v8")
        e("  v_lshlrev_b32 v9, 8, v8")
        e("  v_lshlrev_b32 v10, 14, v8")
        e("  v_lshl_add_u32 v10, v7, 3, v10")
        e(f"  s_mov_b32 s76, {WS_MG}")
        def iss2(sp):
            e(f"  s_mov_b32 s75, {WS_OG + 4096*(sp>>2)}")
            bits = {0:"", 1:" sc1", 2:" sc0", 3:" sc0 sc1", 4:" nt", 5:" sc0 nt"}[OPT["p2"]]
            e(f"  buffer_load_dwordx2 v[{16+2*sp}:{17+2*sp}], v10, s[{SWS}:{SWS+3}], s75 offen offset:{(sp&3)*1024}{bits}")
            e(f"  buffer_load_dwordx3 v[{48+4*sp}:{50+4*sp}], v9, s[{SWS}:{SWS+3}], s76 offen offset:{sp*16}{bits}")
        mpoll("K_P2", 16, iss2, lambda sp: [17+2*sp, 50+4*sp], OPT["thr"])
        if OPT["prof"] == 1: stamp(6)
        M = lambda sp: 48+4*sp
        e(f"  v_max3_f32 v112, v{M(0)}, v{M(1)}, v{M(2)}")
        for sp in range(3, 15, 2):
            e(f"  v_max3_f32 v112, v112, v{M(sp)}, v{M(sp+1)}")
        e(f"  v_max_f32 v112, v112, v{M(15)}")
        e("  v_mov_b32 v113, 0")
        e("  v_mov_b32 v114, 0")
        for sp in range(16):
            e(f"  v_sub_f32 v{M(sp)}, v{M(sp)}, v112")
            e(f"  v_mul_f32 v{M(sp)}, s{SC}, v{M(sp)}")
            e(f"  v_exp_f32 v{M(sp)}, v{M(sp)}")
        e("  s_nop 0")
        for sp in range(16):
            e(f"  v_fmac_f32 v113, v{M(sp)}, v{M(sp)+1}")
            e(f"  v_fmac_f32 v114, v{M(sp)}, v{16+2*sp}")
        e("  v_mov_b32 v49, v113")
        e("  v_mov_b32 v50, v114")
        e("  v_rcp_f32 v49, v49")
        e("  s_nop 0")
        e("  v_mul_f32 v50, v50, v49")
        round_bf16(50, 50)
        e("  v_lshlrev_b32 v8, 2, v0")
        e(f"  ds_write_b32 v8, v50 offset:{L_VEC}")
        e("  s_waitcnt lgkmcnt(0)")
        e("K_T6:")
        e("  s_barrier")
        e("  v_lshlrev_b32 v5, 2, v12")
        e(f"  ds_read_b32 v168, v5 offset:{L_VEC}")
        e(f"  ds_read_b32 v169, v5 offset:{L_VEC+512}")
        e(f"  ds_read_b32 v170, v5 offset:{L_VEC+256}")
        e(f"  ds_read_b32 v171, v5 offset:{L_VEC+512+256}")
        e("  s_waitcnt lgkmcnt(0)")
        prod(WO, None, 180, 2)
        e(f"  s_lshl_b32 s75, s{SHEAD}, 13")
        e(f"  s_add_u32 s75, s75, {WS_SG}")
        reduce_store(L_SP, "K_T6B", SNO)
    else:
        e("  s_cmp_ge_u32 s3, 4")
        e("  s_cbranch_scc1 K_END")
        e("  s_and_b32 s75, s3, 1")
        e("  s_cmp_eq_u32 s75, 1")
        e(f"  s_cselect_b32 s75, s{SP1}, s{SP0}")
        for ks in range(4):
            for q in range(4):
                e(f"  v_perm_b32 v{112+ks*4+q}, v{80+ks*8+2*q+1}, v{80+ks*8+2*q}, s75")
        e("  v_lshrrev_b32 v6, 7, v0")
        e("  v_and_b32 v7, 127, v0")
        e("  v_lshlrev_b32 v8, 5, v6")
        e(f"  v_add_u32 v8, s{SHEAD}, v8")
        e("  v_lshlrev_b32 v9, 8, v8")
        e("  v_lshlrev_b32 v10, 14, v8")
        e("  v_lshl_add_u32 v10, v7, 3, v10")
        e(f"  s_mov_b32 s76, {WS_MG}")
        def iss2(sp):
            e(f"  s_mov_b32 s75, {WS_OG + 4096*(sp>>2)}")
            e(f"  buffer_load_dwordx2 v[{16+2*sp}:{17+2*sp}], v10, s[{SWS}:{SWS+3}], s75 offen offset:{(sp&3)*1024} sc1")
            e(f"  buffer_load_dwordx3 v[{48+4*sp}:{50+4*sp}], v9, s[{SWS}:{SWS+3}], s76 offen offset:{sp*16} sc1")
        e("  v_and_b32 v11, 1, v3")
        e("  v_lshlrev_b32 v11, 8, v11")
        e("  v_lshl_add_u32 v11, v4, 4, v11")
        e("  v_and_b32 v12, 1, v4")
        e("  v_lshlrev_b32 v13, 12, v12")
        e("  v_lshl_add_u32 v13, v3, 4, v13")
        e("  s_lshr_b32 s75, s3, 1")
        e("  s_lshl_b32 s75, s75, 8")
        e("  s_and_b32 s78, s3, 1")
        e("  s_lshl_b32 s78, s78, 3")
        e("  s_add_u32 s75, s75, s78")
        e(f"  s_lshl_b32 s78, s{SNO}, 9")
        e("  s_add_u32 s75, s75, s78")
        e(f"  s_lshl_b32 s78, s{SHEAD}, 13")
        e("  s_add_u32 s75, s75, s78")
        e(f"  s_add_u32 s75, s75, {WS_SG}")
        e("  v_add_u32 v13, s75, v13")
        if OPT["gate"]:
            GB = [4, 36, 52, 80]
            e("  s_lshr_b32 s72, s3, 1")
            e("  s_lshl_b32 s72, s72, 5")
            e(f"  s_add_u32 s72, s72, s{SHEAD}")
            e("  s_lshl_b32 s72, s72, 8")
            e(f"  s_add_u32 s72, s72, {WS_MG}")
            e(f"  s_mov_b32 s74, {OPT['bnd']:#x}")
            e("K_GT:")
            for i, b_ in enumerate(GB):
                e(f"  s_load_dwordx16 s[{b_}:{b_+15}], s[24:25], s72 offset:{64*i} glc")
            e("  s_mov_b32 s75, 0")
            e("  s_waitcnt lgkmcnt(0)")
            for k in range(16):
                e(f"  s_cmp_eq_u32 s{GB[k>>2] + 4*(k&3) + 2}, s26")
                e("  s_addc_u32 s75, s75, 0")
            e(f"  s_cmp_ge_u32 s75, {16-OPT['gthr']}")
            e("  s_cbranch_scc1 K_GTD")
            if OPT["gsl"]: e(f"  s_sleep {OPT['gsl']}")
            e("  s_sub_u32 s74, s74, 1")
            e("  s_cmp_lg_u32 s74, 0")
            e("  s_cbranch_scc1 K_GT")
            e("K_GTD:")
        mpoll("K_P2", 16, iss2, lambda sp: [17+2*sp, 50+4*sp], OPT["thr"])
        if OPT["prof"] == 1: stamp(6)
        tl6(4)
        M = lambda sp: 48+4*sp
        e(f"  v_max3_f32 v128, v{M(0)}, v{M(1)}, v{M(2)}")
        for sp in range(3, 15, 2):
            e(f"  v_max3_f32 v128, v128, v{M(sp)}, v{M(sp+1)}")
        e(f"  v_max_f32 v128, v128, v{M(15)}")
        e("  v_mov_b32 v129, 0")
        e("  v_mov_b32 v130, 0")
        for sp in range(16):
            e(f"  v_sub_f32 v{M(sp)}, v{M(sp)}, v128")
            e(f"  v_mul_f32 v{M(sp)}, s{SC}, v{M(sp)}")
            e(f"  v_exp_f32 v{M(sp)}, v{M(sp)}")
        e("  s_nop 0")
        for sp in range(16):
            e(f"  v_fmac_f32 v129, v{M(sp)}, v{M(sp)+1}")
            e(f"  v_fmac_f32 v130, v{M(sp)}, v{16+2*sp}")
        e("  v_rcp_f32 v129, v129")
        e("  s_nop 0")
        e("  v_mul_f32 v130, v130, v129")
        e("  v_cvt_pk_bf16_f32 v130, v130, v130")
        if OPT["cb"]:
            e("  v_and_b32 v8, 0xe0, v0")
            e("  v_and_b32 v5, 3, v0")
            e("  v_lshl_add_u32 v8, v5, 3, v8")
            e("  v_bfe_u32 v5, v0, 2, 3")
            e("  v_add_u32 v8, v5, v8")
            e("  v_lshlrev_b32 v8, 1, v8")
        else:
            e("  v_lshlrev_b32 v8, 1, v0")
        e(f"  ds_write_b16 v8, v130 offset:{L_VEC}")
        e("  s_waitcnt lgkmcnt(0)")
        e("  s_barrier")
        for ks in range(4):
            e(f"  ds_read_b128 v[{132+4*ks}:{135+4*ks}], v11 offset:{L_VEC + ks*64}")
        e("  s_waitcnt lgkmcnt(0)")
        for ks in range(4):
            c = "0" if ks == 0 else "v[148:151]"
            e(f"  v_mfma_f32_16x16x32_bf16 v[148:151], v[{132+4*ks}:{135+4*ks}], v[{112+4*ks}:{115+4*ks}], {c}")
        e("  v_cmp_eq_u32 vcc, 1, v12")
        e("  v_mov_b32 v153, s26")
        e("  s_nop 7")
        e("  s_nop 7")
        e("  v_cndmask_b32 v152, v148, v149, vcc")
        e("  s_mov_b64 exec, 0xffffffff")
        e(f"  buffer_store_dwordx2 v[152:153], v13, s[{SWS}:{SWS+3}], 0 offen sc1")
        e("  s_mov_b64 exec, -1")
    if not OPT["t2"]:
        if OPT["prof"] == 1: stamp(7)
        tl6(5)
        e("  s_cmp_ge_u32 s2, 8")
        e("  s_cbranch_scc1 K_END")
        e("  s_cmp_ge_u32 s3, 4")
        e("  s_cbranch_scc1 K_END")
        def gpoll(label, n, base):
            def iss(k):
                e(f"  s_mov_b32 s75, {base + k*8192}")
                e(f"  buffer_load_dwordx2 v[{16+2*k}:{17+2*k}], v10, s[{SWS}:{SWS+3}], s75 offen sc1")
            mpoll(label, n, iss, lambda k: [17+2*k], None)
            for k in range(1, n):
                e(f"  v_add_f32 v16, v16, v{16+2*k}")
        e("  v_and_b32 v5, 1, v2")
        e("  v_lshlrev_b32 v5, 11, v5")
        e("  v_lshl_add_u32 v5, v1, 2, v5")
        e(f"  s_and_b32 s76, s2, 7")
        e(f"  s_lshl_b32 s76, s76, 8")
        e("  v_add_u32 v5, s76, v5")
        e("  v_lshlrev_b32 v10, 1, v5")
        e("  s_cmp_ge_u32 s3, 2")
        e("  s_cbranch_scc1 K_FG")
        e("  v_lshrrev_b32 v6, 1, v5")
        e(f"  buffer_load_ushort v4, v6, s[{SX}:{SX+3}], 0 offen")
        gpoll("K_P3", 32, WS_SG)
        tl6(6)
        round_bf16(16, 16)
        e("  s_barrier")
        e("  v_lshlrev_b32 v7, 2, v0")
        e(f"  ds_read_b32 v8, v7 offset:{L_GX}")
        e("  s_waitcnt lgkmcnt(0)")
        e("  v_mul_f32 v8, v8, v16")
        round_bf16(8, 8)
        e("  v_lshlrev_b32 v4, 16, v4")
        e("  v_add_f32 v8, v8, v4")
        e("  v_cvt_pk_bf16_f32 v8, v8, v8")
        e(f"  buffer_store_short v8, v6, s[{SOUT}:{SOUT+3}], 0 offen")
        e("  s_or_b32 s75, s2, s3")
        e("  s_cmp_lg_u32 s75, 0")
        e("  s_cbranch_scc1 K_END")
        e("  s_mov_b64 exec, 1")
        e(f"  v_mov_b32 v5, {WS_EP}")
        e("  v_mov_b32 v6, s26")
        e(f"  buffer_store_dword v6, v5, s[{SWS}:{SWS+3}], 0 offen")
        e("  s_branch K_END")
        e("K_FG:")
        gpoll("K_P4", 28, WS_GG)
        tl6(6)
        round_bf16(16, 16)
        e("  v_mul_f32 v5, 0xbfb8aa3b, v16")
        e("  v_exp_f32 v5, v5")
        e("  s_nop 0")
        e("  v_add_f32 v5, 1.0, v5")
        e("  v_rcp_f32 v5, v5")
        e("  s_nop 0")
        e("  v_mul_f32 v5, v5, v16")
        round_bf16(5, 5)
        e("  v_and_b32 v7, 127, v0")
        e("  v_lshlrev_b32 v7, 2, v7")
        e(f"  ds_write_b32 v7, v5 offset:{L_GX}")
        e("  s_waitcnt lgkmcnt(0)")
        e("  s_barrier")
    e("K_END:")
    dump_stamps()
    e("  s_endpgm")
    e('.section .rodata,"a"')
    e(".p2align 6")
    e(f".amdhsa_kernel {name}")
    e("  .amdhsa_next_free_vgpr 256")
    e("  .amdhsa_next_free_sgpr 102")
    e("  .amdhsa_accum_offset 256")
    e("  .amdhsa_group_segment_fixed_size 0")
    e("  .amdhsa_kernarg_size 88")
    e("  .amdhsa_user_sgpr_count 2")
    e("  .amdhsa_user_sgpr_kernarg_segment_ptr 1")
    e("  .amdhsa_system_sgpr_workgroup_id_x 1")
    e(".end_amdhsa_kernel")

def main():
    path = f"cdna_kernels/{NAME}.s"
    for a in sys.argv[1:]:
        if "=" in a:
            k, v = a.split("=", 1)
            OPT[k] = (" " + v if v else "") if k == "nt" else int(v)
        else:
            path = a
    e(HEADER.rstrip("\n"))
    e(f"; @launch grid=(256,1,1) block=(512,1,1) lds={LDS_SIZE}")
    e('.amdgcn_target "amdgcn-amd-amdhsa--gfx950"')
    gen()
    open(path, "w").write("\n".join(out) + "\n")

main()
```

```python
import sys

NAME = "recurrent_scan__gqa_block_cached__dense_activation_relu__decode"

HEADER = """; Kernarg layout for this problem (88 bytes, ptrs only, base s[0:1]):
;   offset   0: d_in[0] A_x  shape=(2, 1, 512) dtype=bfloat16 strides=(1024, 1024, 2) contiguous=True
;   offset   8: d_in[1] A_k_cache  shape=(2, 8, 32768, 128) dtype=bfloat16 strides=(67108864, 8388608, 256, 2) contiguous=True
;   offset  16: d_in[2] A_v_cache  shape=(2, 8, 32768, 128) dtype=bfloat16 strides=(67108864, 8388608, 256, 2) contiguous=True
;   offset  24: d_in[3] A_wq  shape=(512, 4096) dtype=bfloat16 strides=(8192, 2) contiguous=True
;   offset  32: d_in[4] A_wo  shape=(4096, 512) dtype=bfloat16 strides=(1024, 2) contiguous=True
;   offset  40: d_in[5] B_x  shape=(2, 1, 512) dtype=bfloat16 strides=(1024, 1024, 2) contiguous=True
;   offset  48: d_in[6] B_w1  shape=(512, 1792) dtype=bfloat16 strides=(3584, 2) contiguous=True
;   offset  56: d_in[7] B_w2  shape=(1792, 512) dtype=bfloat16 strides=(1024, 2) contiguous=True
"""

WS_Q = 0
WS_H = 16384
WS_ML = 32768
WS_O = 65536
WS_P = 1 << 20
WS_G = WS_P + 131072
WS_SIZE = 536870912
WS_QG = 2 << 20
WS_HG = WS_QG + 32768
WS_EP = WS_QG + 65536
WS_QF = WS_QG + 131072
WS_OG = 5 << 20
WS_MG = 6 << 20
WS_SG = WS_MG + 65536
WS_GG = 7 << 20
WS_PC = 3 << 20

L_XN = 0
L_QP = 4096
L_Q = 5632
L_HV = 6656
L_CNT = 7168
L_O = 8192
L_ML = 26624
L_FP = 27136
L_VEC = 0
L_SP = 8192
L_GX = 1024
LDS_SIZE = 43520
L_WO = 43520
WS_H2 = 10 << 20

OPT = dict(nt=" nt", sleep=1, prof=0, pre0=0, pace=8, bar0=1, wsc=0, thr=2, p2=1, ilv=0, kx=0, nbuf=1, nw=8, kpl=0, vpl=0, T=0, plo=0, phi=0, mf=1, prex=0, qs=0, warm=0, xb=1, f1=8, np=8, sl=8, psl=8, bnd=0x100000, bar2=1, f2=8, rot=0, map=1, ns=64, fake=0, warmp=0, nsub=4, fifo=1, fw=0, fsl=1, dup=1, rs=1, qsl=0, qp=4, sp=1, nf=10, cb=1, fd=0, fdt=32, gate=0, gthr=2, gsl=1, t2=1, spec=8, psl2=1, pw=1, fsl2=1, fw2=1, obar=0, f1st=1, pf=0, dy=0, dfi=1, x2=0)

out = []
def e(s=""):
    out.append(s)

def srd(dst, lo, hi, nbytes):
    e(f"  s_mov_b32 s{dst}, s{lo}")
    e(f"  s_and_b32 s{dst+1}, s{hi}, 0xffff")
    e(f"  s_mov_b32 s{dst+2}, {nbytes}")
    e(f"  s_mov_b32 s{dst+3}, 0x00020000")

def dpp_steps(regs, ctrls):
    for ctrl in ctrls:
        e("  s_nop 1")
        for r in regs:
            e(f"  v_add_f32_dpp v{r}, v{r}, v{r} {ctrl} row_mask:0xf bank_mask:0xf")

def swap_steps(regs, tmp):
    for sw in ["v_permlane16_swap_b32", "v_permlane32_swap_b32"]:
        for r, t in zip(regs, tmp):
            e(f"  v_mov_b32 v{t}, v{r}")
        e("  s_nop 1")
        for r, t in zip(regs, tmp):
            e(f"  {sw} v{r}, v{t}")
        e("  s_nop 1")
        for r, t in zip(regs, tmp):
            e(f"  v_add_f32 v{r}, v{r}, v{t}")

def red_steps(regs, tmp, op, ctrls=("row_ror:4", "row_ror:8")):
    for ctrl in ctrls:
        e("  s_nop 1")
        for r in regs:
            e(f"  {op}_dpp v{r}, v{r}, v{r} {ctrl} row_mask:0xf bank_mask:0xf")
    for sw in ["v_permlane16_swap_b32", "v_permlane32_swap_b32"]:
        for r, t in zip(regs, tmp):
            e(f"  v_mov_b32 v{t}, v{r}")
        e("  s_nop 1")
        for r, t in zip(regs, tmp):
            e(f"  {sw} v{r}, v{t}")
        e("  s_nop 1")
        for r, t in zip(regs, tmp):
            e(f"  {op} v{r}, v{r}, v{t}")

def wave_sum(regs, tmp):
    dpp_steps(regs, ["quad_perm:[1,0,3,2]", "quad_perm:[2,3,0,1]", "row_half_mirror", "row_mirror"])
    swap_steps(regs, tmp)

def round_bf16(dst, src):
    e(f"  v_cvt_pk_bf16_f32 v{dst}, v{src}, v{src}")
    e(f"  v_lshlrev_b32 v{dst}, 16, v{dst}")

WS_PROF = 4 << 20
def stamp(k):
    if not OPT["prof"] or OPT["prof"] >= 3:
        return
    e("  s_memrealtime s[80:81]")
    e("  s_waitcnt lgkmcnt(0)")
    e(f"  s_mov_b32 s{92+k}, s80")

WS_PROF3 = 8 << 20
def tl(k=3):
    if OPT["prof"] != k:
        return
    e("  s_memrealtime s[98:99]")
    e("  s_waitcnt lgkmcnt(0)")
    e("  v_writelane_b32 v251, s98, m0")
    e("  s_add_u32 m0, m0, 1")
    if k == 7: e("  s_min_u32 m0, m0, 63")

def tl6(i):
    if OPT["prof"] != 6:
        return
    e(f"  s_mov_b32 m0, {i}")
    tl(6)

def tl_dump(final=False):
    if OPT["prof"] < 3:
        return
    if (OPT["prof"] == 6) != final:
        return
    if final:
        e("  s_mov_b64 exec, -1")
    e("  s_lshl_b32 s82, s2, 3")
    e("  s_add_u32 s82, s82, s3")
    e("  s_lshl_b32 s82, s82, 8")
    e(f"  s_add_u32 s82, s82, {WS_PROF3}")
    e("  v_lshlrev_b32 v5, 2, v1")
    e(f"  buffer_store_dword v251, v5, s[{SWS}:{SWS+3}], s82 offen")

def dump_stamps():
    if not OPT["prof"]:
        return
    if OPT["prof"] >= 3:
        tl6(7)
        tl_dump(True)
        e("K_END2:")
        return
    e("  s_cmp_ge_u32 s3, 2")
    e("  s_cbranch_scc1 K_END2")
    e("  s_cmp_ge_u32 s2, 256")
    e("  s_cbranch_scc1 K_END2")
    stamp(8)
    e("  s_lshl_b32 s82, s2, 1")
    e("  s_add_u32 s82, s82, s3")
    e("  s_lshl_b32 s82, s82, 6")
    e(f"  s_add_u32 s82, s82, {WS_PROF}")
    e("  s_mov_b64 exec, 1")
    e("  v_mov_b32 v6, 0")
    for k in range(9):
        e(f"  v_mov_b32 v5, s{92+k}")
        e(f"  buffer_store_dword v5, v6, s[{SWS}:{SWS+3}], s82 offen offset:{k*4}")
    e("K_END2:")

SX, SK, SV, SWQ, SW1, SWO, SW2, SWS, SDBG, SOUT = 28, 60, 64, 40, 44, 48, 52, 20, 999, 32
SC, SP0, SP1 = 68, 69, 70
IDXA, IDXB = 72, 73
SG, SR, SB, SSPL, SNC, SHEAD = 86, 87, 88, 89, 90, 91
SNO, SCG, SHC = 83, 84, 85

def poll(label, nlanes, voff, target, tmpv):
    e(f"  s_mov_b64 exec, {(1<<nlanes)-1:#x}")
    e("  s_mov_b32 s74, 0x400000")
    e(f"{label}:")
    e(f"  buffer_load_dword v{tmpv}, v{voff}, s[{SDBG}:{SDBG+3}], 0 offen sc1")
    e("  s_waitcnt vmcnt(0)")
    e(f"  v_cmp_ne_u32 vcc, {target}, v{tmpv}")
    e("  s_cmp_eq_u64 vcc, 0")
    e(f"  s_cbranch_scc1 {label}_DONE")
    if OPT["sleep"]:
        e(f"  s_sleep {OPT['sleep']}")
    e("  s_sub_u32 s74, s74, 1")
    e("  s_cmp_lg_u32 s74, 0")
    e(f"  s_cbranch_scc1 {label}")
    e(f"{label}_DONE:")
    e("  s_mov_b64 exec, -1")

def mpoll(label, n, issue, tags, thr):
    full = (1 << n) - 1
    e("  s_not_b32 s75, s26")
    for k in range(n):
        for x in tags(k):
            e(f"  v_mov_b32 v{x}, s75")
    e("  s_mov_b32 s77, 0")
    e(f"  s_mov_b32 s74, {OPT['bnd']:#x}")
    e(f"{label}:")
    for k in range(n):
        e(f"  s_bitcmp1_b32 s77, {k}")
        e(f"  s_cbranch_scc1 {label}S{k}")
        issue(k)
        e(f"{label}S{k}:")
    if thr is not None:
        e(f"  s_xor_b32 s75, s77, {full:#x}")
        e("  s_bcnt1_i32_b32 s75, s75")
        e(f"  s_cmp_le_u32 s75, {thr}")
        e(f"  s_cbranch_scc1 {label}F")
        e("  s_waitcnt vmcnt(0)")
        e(f"{label}F:")
    if OPT["sleep"]:
        e(f"  s_sleep {OPT['sleep']}")
    for k in range(n):
        t = tags(k)
        e(f"  v_cmp_eq_u32 vcc, s26, v{t[0]}")
        for x in t[1:]:
            e(f"  v_cmp_eq_u32 s[78:79], s26, v{x}")
            e("  s_and_b64 vcc, vcc, s[78:79]")
        e("  s_cmp_eq_u64 vcc, -1")
        e(f"  s_cselect_b32 s75, {1<<k:#x}, 0")
        e("  s_or_b32 s77, s77, s75")
    e(f"  s_cmp_eq_u32 s77, {full:#x}")
    e(f"  s_cbranch_scc1 {label}_DONE")
    e("  s_sub_u32 s74, s74, 1")
    e("  s_cmp_lg_u32 s74, 0")
    e(f"  s_cbranch_scc1 {label}")
    e(f"{label}_DONE:")
    e("  s_waitcnt vmcnt(0)")

def tail2():
    B = OPT['bnd']
    if OPT["obar"]:
        e("  s_barrier")
    e("  s_cmp_%s_u32 s3, 4" % ("lt" if OPT["pf"] else "ge"))
    e("  s_cbranch_scc1 T_NW")
    e("  s_and_b32 s75, s3, 1")
    e("  s_cmp_eq_u32 s75, 1")
    e(f"  s_cselect_b32 s75, s{SP1}, s{SP0}")
    if OPT["x2"]:
        e("  v_mul_u32_u24 v11, 1152, v4")
        e("  v_lshl_add_u32 v11, v3, 2, v11")
        e("  s_bfe_u32 s76, s3, 0x10001")
        e("  s_lshl_b32 s76, s76, 6")
        e("  v_add_u32 v11, s76, v11")
        for ks in range(4):
            for jj in range(8):
                e(f"  ds_read_b32 v{80+ks*8+jj}, v11 offset:{L_WO + (ks*32+jj)*144}")
        e("  s_waitcnt lgkmcnt(0)")
    for ks in range(4):
        for q in range(4):
            e(f"  v_perm_b32 v{112+ks*4+q}, v{80+ks*8+2*q+1}, v{80+ks*8+2*q}, s75")
    e("  v_and_b32 v11, 1, v3")
    e("  v_lshlrev_b32 v11, 8, v11")
    e("  v_lshl_add_u32 v11, v4, 4, v11")
    e("  v_and_b32 v12, 1, v4")
    e("  v_lshlrev_b32 v13, 12, v12")
    e("  v_lshl_add_u32 v13, v3, 4, v13")
    e("  s_bfe_u32 s75, s3, 0x10001")
    e("  s_lshl_b32 s75, s75, 8")
    e("  s_and_b32 s78, s3, 1")
    e("  s_lshl_b32 s78, s78, 3")
    e("  s_add_u32 s75, s75, s78")
    e(f"  s_lshl_b32 s78, s{SNO}, 9")
    e("  s_add_u32 s75, s75, s78")
    e(f"  s_lshl_b32 s78, s{SHEAD}, 13")
    e("  s_add_u32 s75, s75, s78")
    e(f"  s_add_u32 s75, s75, {WS_SG}")
    e("  v_add_u32 v13, s75, v13")
    e("T_NW:")
    e("  v_and_b32 v5, 3, v1")
    e("  v_lshrrev_b32 v6, 2, v1")
    e("  s_lshr_b32 s75, s3, 2")
    e("  s_lshl_b32 s75, s75, 5")
    e(f"  s_add_u32 s75, s75, s{SHEAD}")
    e("  s_lshl_b32 s76, s75, 8")
    e("  v_lshlrev_b32 v9, 4, v6")
    e("  v_add_u32 v9, s76, v9")
    e("  s_lshl_b32 s76, s75, 14")
    e("  s_and_b32 s75, s3, 3")
    e("  s_lshl_b32 s75, s75, 8")
    e("  s_add_u32 s76, s76, s75")
    e("  v_lshlrev_b32 v10, 10, v6")
    e("  v_lshl_add_u32 v10, v5, 4, v10")
    e("  v_add_u32 v10, s76, v10")
    e("  s_not_b32 s75, s26")
    for r in [17, 19, 21, 23, 25, 27, 29, 31, 34]:
        e(f"  v_mov_b32 v{r}, s75")
    e("  s_mov_b64 s[76:77], -1")
    e("  s_mov_b64 s[78:79], -1")
    e(f"  s_mov_b32 s72, {WS_MG}")
    e(f"  s_mov_b32 s73, {WS_OG}")
    e(f"  s_mov_b32 s74, {B:#x}")
    e(f"  s_mov_b32 s84, {64 if OPT['f1st'] else OPT['spec']}")
    e("T_P:")
    e("  s_mov_b64 exec, s[76:77]")
    e("  s_cbranch_execz T_P1")
    e(f"  buffer_load_dwordx3 v[32:34], v9, s[{SWS}:{SWS+3}], s72 offen sc1")
    e("T_P1:")
    e("  s_or_b64 s[80:81], s[76:77], s[78:79]")
    e("  s_bcnt1_i32_b64 s75, s[80:81]")
    e("  s_andn2_b64 s[80:81], s[78:79], s[76:77]")
    e(f"  s_cmp_le_u32 s75, s84")
    e(f"  s_mov_b32 s84, {OPT['spec']}")
    e("  s_cselect_b64 exec, s[78:79], s[80:81]")
    e("  s_cbranch_execz T_P2")
    for i in range(4):
        e(f"  buffer_load_dwordx4 v[{16+4*i}:{19+4*i}], v10, s[{SWS}:{SWS+3}], s73 offen offset:{64*i} sc1")
    e("T_P2:")
    e("  s_mov_b64 exec, -1")
    if OPT["pw"] == 1:
        e("  s_waitcnt vmcnt(0)")
    else:
        e(f"  s_cmp_le_u32 s75, {OPT['spec']}")
        e("  s_cbranch_scc1 T_P3")
        e("  s_waitcnt vmcnt(0)")
        e("T_P3:")
        e(f"  s_waitcnt vmcnt({OPT['pw']})")
    if OPT["psl2"]: e(f"  s_sleep {OPT['psl2']}")
    e("  v_cmp_ne_u32 s[76:77], s26, v34")
    e("  v_cmp_ne_u32 s[78:79], s26, v17")
    for r in [19, 21, 23, 25, 27, 29, 31]:
        e(f"  v_cmp_ne_u32 vcc, s26, v{r}")
        e("  s_or_b64 s[78:79], s[78:79], vcc")
    e("  s_or_b64 s[80:81], s[76:77], s[78:79]")
    e("  s_cmp_eq_u64 s[80:81], 0")
    e("  s_cbranch_scc1 T_PD")
    e("  s_sub_u32 s74, s74, 1")
    e("  s_cmp_lg_u32 s74, 0")
    e("  s_cbranch_scc1 T_P")
    e("T_PD:")
    e("  s_waitcnt vmcnt(0)")
    tl6(4)
    e("  v_mov_b32 v35, v32")
    red_steps([35], [36], "v_max_f32")
    e("  v_sub_f32 v32, v32, v35")
    e(f"  v_mul_f32 v32, s{SC}, v32")
    e("  v_exp_f32 v32, v32")
    e("  s_nop 0")
    e("  v_mul_f32 v33, v33, v32")
    vals = [16, 18, 20, 22, 24, 26, 28, 30]
    for r in vals:
        e(f"  v_mul_f32 v{r}, v{r}, v32")
    red_steps([33] + vals, list(range(36, 45)), "v_add_f32")
    e("  v_rcp_f32 v33, v33")
    e("  s_nop 0")
    for r in vals:
        e(f"  v_mul_f32 v{r}, v{r}, v33")
    for i in range(4):
        e(f"  v_cvt_pk_bf16_f32 v{36+i}, v{16+4*i}, v{18+4*i}")
    e("  s_lshl_b32 s75, s3, 6")
    e("  v_lshl_add_u32 v8, v5, 4, s75")
    e("  s_mov_b64 exec, 0xf")
    e(f"  ds_write_b128 v8, v[36:39] offset:{L_VEC}")
    e("  s_mov_b64 exec, -1")
    e("  s_waitcnt lgkmcnt(0)")
    e("  s_barrier")
    e("  s_cmp_%s_u32 s3, 4" % ("lt" if OPT["pf"] else "ge"))
    e("  s_cbranch_scc1 T_F")
    for ks in range(4):
        e(f"  ds_read_b128 v[{132+4*ks}:{135+4*ks}], v11 offset:{L_VEC + ks*64}")
    e("  s_waitcnt lgkmcnt(0)")
    for ks in range(4):
        c = "0" if ks == 0 else "v[148:151]"
        e(f"  v_mfma_f32_16x16x32_bf16 v[148:151], v[{132+4*ks}:{135+4*ks}], v[{112+4*ks}:{115+4*ks}], {c}")
    e("  v_cmp_eq_u32 vcc, 1, v12")
    e("  v_mov_b32 v153, s26")
    e("  s_nop 7")
    e("  s_nop 7")
    e("  v_cndmask_b32 v152, v148, v149, vcc")
    e("  s_mov_b64 exec, 0xffffffff")
    e(f"  buffer_store_dwordx2 v[152:153], v13, s[{SWS}:{SWS+3}], 0 offen sc1")
    e("  s_mov_b64 exec, -1")
    tl6(5)
    e("T_F:")
    e("  s_cmp_ge_u32 s2, 8")
    e("  s_cbranch_scc1 K_END")
    e("  s_lshr_b32 s75, s3, 2")
    e("  s_lshl_b32 s75, s75, 9")
    e("  s_and_b32 s76, s2, 7")
    e("  s_lshl_b32 s76, s76, 6")
    e("  s_add_u32 s75, s75, s76")
    e("  s_and_b32 s76, s3, 3")
    e("  s_lshl_b32 s76, s76, 4")
    e("  s_add_u32 s75, s75, s76")
    e("  v_lshlrev_b32 v7, 1, v5")
    e("  v_add_u32 v7, s75, v7")
    e("  v_lshlrev_b32 v8, 1, v7")
    e(f"  buffer_load_dword v46, v8, s[{SX}:{SX+3}], 0 offen")
    e(f"  buffer_load_dword v47, v8, s[{SX}:{SX+3}], 0 offen offset:16")
    e("  v_lshlrev_b32 v10, 3, v7")
    e("  v_lshl_add_u32 v10, v6, 13, v10")
    def fpoll(lbl, base, m1, dst):
        e("  s_not_b32 s75, s26")
        for r in range(16, 32):
            e(f"  v_mov_b32 v{r}, " + ("s75" if (r & 1) else "0"))
        e("  s_mov_b64 s[76:77], -1")
        e(f"  s_mov_b32 s78, {m1 & 0xffffffff:#x}")
        e(f"  s_mov_b32 s79, {m1 >> 32:#x}")
        e(f"  s_mov_b64 s[82:83], s[78:79]")
        e(f"  s_mov_b32 s72, {base}")
        e(f"  s_mov_b32 s73, {base + 131072}")
        e(f"  s_mov_b32 s74, {B:#x}")
        e(f"{lbl}:")
        e("  s_mov_b64 exec, s[76:77]")
        e(f"  s_cbranch_execz {lbl}1")
        for i in range(2):
            e(f"  buffer_load_dwordx4 v[{16+4*i}:{19+4*i}], v10, s[{SWS}:{SWS+3}], s72 offen offset:{64*i} sc1")
        e(f"{lbl}1:")
        e("  s_mov_b64 exec, s[78:79]")
        e(f"  s_cbranch_execz {lbl}2")
        for i in range(2):
            e(f"  buffer_load_dwordx4 v[{24+4*i}:{27+4*i}], v10, s[{SWS}:{SWS+3}], s73 offen offset:{64*i} sc1")
        e(f"{lbl}2:")
        e("  s_mov_b64 exec, -1")
        e(f"  s_waitcnt vmcnt({0 if OPT['fw2']==1 else OPT['fw2']})")
        if OPT["fsl2"]: e(f"  s_sleep {OPT['fsl2']}")
        e("  v_cmp_ne_u32 s[76:77], s26, v17")
        for r in [19, 21, 23]:
            e(f"  v_cmp_ne_u32 vcc, s26, v{r}")
            e("  s_or_b64 s[76:77], s[76:77], vcc")
        e("  v_cmp_ne_u32 s[78:79], s26, v25")
        for r in [27, 29, 31]:
            e(f"  v_cmp_ne_u32 vcc, s26, v{r}")
            e("  s_or_b64 s[78:79], s[78:79], vcc")
        e("  s_and_b64 s[78:79], s[78:79], s[82:83]")
        e("  s_or_b64 s[80:81], s[76:77], s[78:79]")
        e("  s_cmp_eq_u64 s[80:81], 0")
        e(f"  s_cbranch_scc1 {lbl}D")
        e("  s_sub_u32 s74, s74, 1")
        e("  s_cmp_lg_u32 s74, 0")
        e(f"  s_cbranch_scc1 {lbl}")
        e(f"{lbl}D:")
        e("  s_waitcnt vmcnt(0)")
        for k in range(4):
            e(f"  v_add_f32 v{dst+k}, v{16+2*k}, v{24+2*k}")
        red_steps(list(range(dst, dst+4)), list(range(36, 40)), "v_add_f32")
        for k in range(4):
            round_bf16(dst+k, dst+k)
    fpoll("T_G", WS_GG, (1 << 48) - 1, 40)
    for k in range(4):
        e(f"  v_mul_f32 v{36+k}, 0xbfb8aa3b, v{40+k}")
    for k in range(4):
        e(f"  v_exp_f32 v{36+k}, v{36+k}")
    e("  s_nop 0")
    for k in range(4):
        e(f"  v_add_f32 v{36+k}, 1.0, v{36+k}")
    for k in range(4):
        e(f"  v_rcp_f32 v{36+k}, v{36+k}")
    e("  s_nop 0")
    for k in range(4):
        e(f"  v_mul_f32 v{40+k}, v{36+k}, v{40+k}")
    for k in range(4):
        round_bf16(40+k, 40+k)
    fpoll("T_S", WS_SG, (1 << 64) - 1, 48)
    tl6(6)
    for k in range(4):
        e(f"  v_mul_f32 v{48+k}, v{48+k}, v{40+k}")
    for k in range(4):
        round_bf16(48+k, 48+k)
    for k in range(2):
        e(f"  v_lshlrev_b32 v36, 16, v{46+k}")
        e(f"  v_and_b32 v37, 0xffff0000, v{46+k}")
        e(f"  v_add_f32 v{48+2*k}, v{48+2*k}, v36")
        e(f"  v_add_f32 v{49+2*k}, v{49+2*k}, v37")
        e(f"  v_cvt_pk_bf16_f32 v{48+2*k}, v{48+2*k}, v{49+2*k}")
    e("  s_mov_b64 exec, 0xf")
    e(f"  buffer_store_dword v48, v8, s[{SOUT}:{SOUT+3}], 0 offen")
    e(f"  buffer_store_dword v50, v8, s[{SOUT}:{SOUT+3}], 0 offen offset:16")
    e("  s_or_b32 s75, s2, s3")
    e("  s_cmp_lg_u32 s75, 0")
    e("  s_cbranch_scc1 K_END")
    e("  s_mov_b64 exec, 1")
    e(f"  v_mov_b32 v5, {WS_EP}")
    e("  v_mov_b32 v6, s26")
    e(f"  buffer_store_dword v6, v5, s[{SWS}:{SWS+3}], 0 offen")

def gen():
    nt = OPT["nt"]
    BS = 17 if OPT["ilv"] else 13
    POL = dict(k="" if OPT["kpl"] else nt, v="" if OPT["vpl"] else nt)
    name = NAME + "_kernel"
    e(".text")
    e(f".globl {name}")
    e(".p2align 8")
    e(f".type {name},@function")
    e(f"{name}:")
    KA, VA, KB, VB = 16, 48, 80, 112
    ACC = 144
    QF = 176
    ST = 192
    PF = 200
    TR = 204
    M_, L_, T0, T1, AL, MC = 236, 237, 238, 239, 240, 241
    VKOFF, VVOFF = 242, 243
    WO = 244
    W2 = 252
    e("  s_cmp_ge_u32 s2, 256")
    e("  s_cbranch_scc1 K_END2" if OPT["prof"] else "  s_cbranch_scc1 K_END")
    e("  s_load_dwordx16 s[4:19], s[0:1], 0")
    e("  s_load_dwordx2 s[24:25], s[0:1], 80")
    e("  v_and_b32 v1, 63, v0")
    e("  v_lshrrev_b32 v2, 6, v0")
    e("  v_and_b32 v3, 15, v1")
    e("  v_lshrrev_b32 v4, 4, v1")
    e("  v_mov_b32 v248, 0")
    e("  v_readfirstlane_b32 s3, v2")
    def derive():
        e(f"  s_and_b32 s{SG}, s2, 7")
        e(f"  s_lshr_b32 s{SR}, s2, 3")
        e(f"  s_and_b32 s{SNO}, s{SR}, 7")
        e(f"  s_lshl_b32 s{SCG}, s{SG}, 5")
        e(f"  s_add_u32 s{SCG}, s{SCG}, s{SR}")
        e(f"  s_lshr_b32 s{SHC}, s{SR}, 3")
        e(f"  s_lshl_b32 s{SHC}, s{SHC}, 6")
        e(f"  s_lshl_b32 s74, s{SG}, 3")
        e(f"  s_add_u32 s{SHC}, s{SHC}, s74")
        e(f"  s_add_u32 s{SHC}, s{SHC}, s{SNO}")
        e(f"  s_lshr_b32 s{SB}, s{SR}, 4")
        e(f"  s_and_b32 s{SSPL}, s{SR}, 15")
        e(f"  s_and_b32 s{SNC}, s2, 7")
        e(f"  s_lshr_b32 s{SHEAD}, s{SR}, 3")
        e(f"  s_lshl_b32 s74, s{SG}, 2")
        e(f"  s_add_u32 s{SHEAD}, s{SHEAD}, s74")
        if OPT["map"]:
            e(f"  s_lshr_b32 s{SB}, s2, 7")
            e(f"  s_lshr_b32 s{SG}, s2, 4")
            e(f"  s_and_b32 s{SG}, s{SG}, 7")
            e(f"  s_and_b32 s{SSPL}, s2, 15")
        e(f"  s_lshl_b32 s93, s{SB}, 3")
        e(f"  s_add_u32 s93, s93, s{SG}")
        e(f"  s_mul_i32 s93, s93, {OPT['nsub']}")
        e(f"  s_and_b32 s74, s3, {OPT['nsub']-1}")
        e(f"  s_add_u32 s93, s93, s74")
        e(f"  s_lshl_b32 s93, s93, 8")
        e(f"  s_add_u32 s93, s93, {WS_PC}")
        e(f"  s_mul_i32 s92, s74, {(1024-16*OPT['ns'])//OPT['nsub']}")
        e(f"  s_add_u32 s92, s92, {16*OPT['ns']}")
        e(f"  s_mul_i32 s94, s{SSPL}, {OPT['ns']}")
        e("  s_mov_b32 s95, 0")
    derive()
    e(f"  s_lshl_b32 s74, s{SB}, 3")
    e(f"  s_add_u32 s74, s74, s{SG}")
    e("  s_lshl_b32 s74, s74, 23")

    e(f"  s_mov_b32 s{SC}, 0x3e0293ee")
    e(f"  s_mov_b32 s{SP0}, 0x05040100")
    e(f"  s_mov_b32 s{SP1}, 0x07060302")
    e("  s_lshl_b32 s75, s3, 1")
    e(f"  s_sub_u32 s{IDXA}, s75, 2")
    e(f"  s_sub_u32 s{IDXB}, s75, 1")
    if OPT["nbuf"] == 1:
        e(f"  s_add_u32 s{IDXA}, s3, s94")
        if OPT["nw"] < 8:
            e(f"  s_cmp_ge_u32 s3, {OPT['nw']}")
            e(f"  s_cselect_b32 s{IDXA}, 64, s{IDXA}")
    e("  v_and_b32 v5, 3, v3")
    e("  v_lshrrev_b32 v6, 2, v3")
    e("  v_lshl_add_u32 v5, v5, 2, v6")
    e("  v_lshlrev_b32 v5, 8, v5")
    e(f"  v_lshl_add_u32 v{VKOFF}, v4, 4, v5")
    e(f"  v_lshlrev_b32 v{VVOFF}, 4, v1")
    if OPT["kx"]:
        e(f"  v_lshlrev_b32 v{VKOFF}, 4, v1")
    e("  s_waitcnt lgkmcnt(0)")
    if not OPT["rs"]:
        e(f"  s_mov_b32 s75, {WS_EP}")
        e("  s_load_dword s26, s[24:25], s75")
    srd(SX, 4, 5, 2048)
    srd(SWQ, 10, 11, 512 * 4096 * 2)
    srd(SWS, 24, 25, WS_SIZE)
    e(f"  s_add_u32 s{SK}, s6, s74")
    e(f"  s_addc_u32 s{SK+1}, s7, 0")
    e(f"  s_and_b32 s{SK+1}, s{SK+1}, 0xffff")
    if OPT['ilv']:
        e(f"  s_lshl_b32 s75, s{SSPL}, 13")
        e(f"  s_sub_u32 s{SK+2}, {8<<20}, s75")
    else:
        e(f"  s_mov_b32 s{SK+2}, {8<<20}")
    e(f"  s_mov_b32 s{SK+3}, 0x00020000")
    e(f"  s_add_u32 s{SV}, s8, s74")
    e(f"  s_addc_u32 s{SV+1}, s9, 0")
    e(f"  s_and_b32 s{SV+1}, s{SV+1}, 0xffff")
    e(f"  s_mov_b32 s{SV+2}, s{SK+2}")
    e(f"  s_mov_b32 s{SV+3}, 0x00020000")
    e("  s_movk_i32 s71, 4096")
    e("  s_and_b32 s75, s2, 0x78")
    e("  s_or_b32 s75, s75, s3")
    e("  s_cmp_lg_u32 s75, 0")
    e("  s_cbranch_scc1 K_NOINIT")
    e("  s_lshr_b32 s75, s2, 7")
    e("  s_lshl_b32 s75, s75, 3")
    e("  s_and_b32 s76, s2, 7")
    e("  s_add_u32 s75, s75, s76")
    e(f"  s_mul_i32 s75, s75, {OPT['nsub']*256}")
    e(f"  s_add_u32 s75, s75, {WS_PC}")
    e("  v_mov_b32 v5, 0")
    e("  v_lshlrev_b32 v6, 8, v1")
    e(f"  s_mov_b64 exec, {(1<<OPT['nsub'])-1}")
    e(f"  buffer_store_dword v5, v6, s[{SWS}:{SWS+3}], s75 offen sc1")
    e("  s_mov_b64 exec, -1")
    e("K_NOINIT:")
    if OPT["warm"]:
        e(f"  s_lshl_b32 s75, s{SCG}, 6")
        e(f"  s_add_u32 s75, s75, {WS_QG}")
        e("  s_load_dword s98, s[24:25], s75")
        e("  s_add_u32 s75, s75, 16384")
        e("  s_load_dword s99, s[24:25], s75")
    stamp(0)
    if OPT["prof"] >= 3:
        e("  v_mov_b32 v251, 0")
        e("  s_mov_b32 m0, 0")
        tl(OPT["prof"])
    F1 = max(OPT["f1"], OPT["pre0"])
    def kchunk_l(KR, vo):
        r=[]
        if OPT["kx"]:
            for j in range(8):
                so = "0" if j < 4 else "s71"
                r.append(f"  buffer_load_dwordx4 v[{KR+4*j}:{KR+4*j+3}], v{vo}, s[{SK}:{SK+3}], {so} offen offset:{(j&3)*1024}{nt}")
            return r
        for t in range(2):
            for i in range(4):
                so = "0" if t == 0 else "s71"
                r.append(f"  buffer_load_dwordx4 v[{KR+16*t+4*i}:{KR+16*t+4*i+3}], v{vo}, s[{SK}:{SK+3}], {so} offen offset:{i*64}{POL['k']}")
        return r
    def vchunk_l(VR, vo):
        r=[]
        for j in range(8):
            so = "0" if j < 4 else "s71"
            r.append(f"  buffer_load_dwordx4 v[{VR+4*j}:{VR+4*j+3}], v{vo}, s[{SV}:{SV+3}], {so} offen offset:{(j&3)*1024}{POL['v']}")
        return r
    def kchunk(KR, vo):
        for l in kchunk_l(KR, vo): e(l)
    def vchunk(VR, vo):
        for l in vchunk_l(VR, vo): e(l)
    def blkoff(sidx):
        if OPT["rot"]:
            e(f"  s_add_u32 s75, s{sidx}, s73")
            e("  s_and_b32 s75, s75, 63")
            e(f"  s_lshl_b32 s75, s75, {BS}")
            e(f"  s_cmp_lt_u32 s{sidx}, 64")
            e("  s_cselect_b32 s75, s75, 0x100000")
        else:
            e(f"  s_lshl_b32 s75, s{sidx}, {BS}")
    def loads(KR, VR, sidx):
        blkoff(sidx)
        e(f"  v_add_u32 v5, s75, v{VKOFF}")
        e(f"  v_add_u32 v6, s75, v{VVOFF}")
        kchunk(KR, 5)
        vchunk(VR, 6)
    def wo_loads():
        e("  v_lshlrev_b32 v14, 10, v12")
        e("  v_lshl_add_u32 v14, v13, 4, v14")
        if not OPT["mf"]:
            e(f"  s_lshl_b32 s75, s{SNO}, 7")
            e("  v_add_u32 v15, s75, v14")
            e(f"  s_lshl_b32 s75, s{SHEAD}, 17")
            e("  v_add_u32 v15, s75, v15")
            e(f"  buffer_load_dwordx4 v[{WO}:{WO+3}], v15, s[{SWO}:{SWO+3}], 0 offen")
            e("  v_add_u32 v15, 0x10000, v15")
            e(f"  buffer_load_dwordx4 v[{WO+4}:{WO+7}], v15, s[{SWO}:{SWO+3}], 0 offen")
        else:
            lab = f"K_WOS{len(out)}"
            e("  s_cmp_ge_u32 s3, 4")
            e(f"  s_cbranch_scc1 {lab}")
            e("  v_lshlrev_b32 v15, 13, v4")
            e("  v_lshl_add_u32 v15, v3, 2, v15")
            e(f"  s_lshl_b32 s75, s{SHEAD}, 17")
            e(f"  s_lshl_b32 s76, s{SNO}, 7")
            e("  s_add_u32 s75, s75, s76")
            e("  s_lshr_b32 s76, s3, 1")
            e("  s_lshl_b32 s76, s76, 6")
            e("  s_add_u32 s75, s75, s76")
            for ks in range(4):
                for jh in range(2):
                    for j in range(4):
                        e(f"  buffer_load_dword v{80+ks*8+jh*4+j}, v15, s[{SWO}:{SWO+3}], s75 offen offset:{j*1024}")
                    if not (ks == 3 and jh == 1):
                        e(f"  s_add_u32 s75, s75, {4096 if jh == 0 else 32768-4096}")
            e(f"{lab}:")
        e("  s_lshr_b32 s75, s2, 3")
        e("  s_lshl_b32 s75, s75, 16")
        e("  v_add_u32 v15, s75, v14")
        e(f"  s_lshl_b32 s75, s{SNC}, 7")
        e("  v_add_u32 v15, s75, v15")
        e(f"  buffer_load_dwordx4 v[{W2}:{W2+3}], v15, s[{SW2}:{SW2+3}], 0 offen")

    X = 144
    def ln_code():
        for b in range(2):
            for c in range(4):
                e(f"  v_lshlrev_b32 v{X+8*b+2*c}, 16, v{204+4*b+c}")
                e(f"  v_and_b32 v{X+1+8*b+2*c}, 0xffff0000, v{204+4*b+c}")
        for b in range(2):
            t = 160 + 4 * b
            e(f"  v_pk_add_f32 v[{t}:{t+1}], v[{X+8*b}:{X+8*b+1}], v[{X+8*b+2}:{X+8*b+3}]")
            e(f"  v_pk_add_f32 v[{t+2}:{t+3}], v[{X+8*b+4}:{X+8*b+5}], v[{X+8*b+6}:{X+8*b+7}]")
        for b in range(2):
            t = 160 + 4 * b
            e(f"  v_pk_add_f32 v[{t}:{t+1}], v[{t}:{t+1}], v[{t+2}:{t+3}]")
        e("  v_add_f32 v160, v160, v161")
        e("  v_add_f32 v161, v164, v165")
        wave_sum([160, 161], [162, 163])
        e("  v_mul_f32 v160, 0x3b000000, v160")
        e("  v_mul_f32 v161, 0x3b000000, v161")
        bsel = [" op_sel_hi:[1,0]", " op_sel:[0,1] op_sel_hi:[1,1]"]
        for b in range(2):
            for c in range(4):
                t = 168 + 8 * b + 2 * c
                e(f"  v_pk_add_f32 v[{t}:{t+1}], v[{X+8*b+2*c}:{X+8*b+2*c+1}], v[160:161]{bsel[b]} neg_lo:[0,1] neg_hi:[0,1]")
        for b in range(2):
            t = 168 + 8 * b
            e(f"  v_pk_mul_f32 v[{164+2*b}:{165+2*b}], v[{t}:{t+1}], v[{t}:{t+1}]")
        for c in range(1, 4):
            for b in range(2):
                t = 168 + 8 * b + 2 * c
                e(f"  v_pk_fma_f32 v[{164+2*b}:{165+2*b}], v[{t}:{t+1}], v[{t}:{t+1}], v[{164+2*b}:{165+2*b}]")
        e("  v_add_f32 v164, v164, v165")
        e("  v_add_f32 v165, v166, v167")
        wave_sum([164, 165], [162, 163])
        e("  v_mul_f32 v164, 0x3b000000, v164")
        e("  v_mul_f32 v165, 0x3b000000, v165")
        for b in range(2):
            round_bf16(164 + b, 164 + b)
            e(f"  v_add_f32 v{164+b}, 0x3727c5ac, v{164+b}")
            round_bf16(164 + b, 164 + b)
            e(f"  v_sqrt_f32 v{164+b}, v{164+b}")
            e("  s_nop 0")
            round_bf16(164 + b, 164 + b)
            e(f"  v_rcp_f32 v{164+b}, v{164+b}")
            round_bf16(160 + b, 160 + b)
        for b in range(2):
            for c in range(4):
                r = X + 8 * b + 2 * c
                e(f"  v_pk_add_f32 v[{r}:{r+1}], v[{r}:{r+1}], v[160:161]{bsel[b]} neg_lo:[0,1] neg_hi:[0,1]")
            for c in range(4):
                r = X + 8 * b + 2 * c
                e(f"  v_cvt_pk_bf16_f32 v{168+c}, v{r}, v{r+1}")
            for c in range(4):
                r = X + 8 * b + 2 * c
                e(f"  v_lshlrev_b32 v{r}, 16, v{168+c}")
                e(f"  v_and_b32 v{r+1}, 0xffff0000, v{168+c}")
            for c in range(4):
                r = X + 8 * b + 2 * c
                e(f"  v_pk_mul_f32 v[{r}:{r+1}], v[{r}:{r+1}], v[164:165]{bsel[b]}")
            for c in range(4):
                r = X + 8 * b + 2 * c
                e(f"  v_cvt_pk_bf16_f32 v{168+c}, v{r}, v{r+1}")
            for c in range(4):
                r = X + 8 * b + 2 * c
                e(f"  v_lshlrev_b32 v{r}, 16, v{168+c}")
                e(f"  v_and_b32 v{r+1}, 0xffff0000, v{168+c}")
        e("  v_lshlrev_b32 v5, 5, v1")
        for b in range(2):
            e(f"  ds_write_b128 v5, v[{X+8*b}:{X+8*b+3}] offset:{L_XN + b*2048}")
            e(f"  ds_write_b128 v5, v[{X+8*b+4}:{X+8*b+7}] offset:{L_XN + b*2048 + 16}")
        e("  s_waitcnt lgkmcnt(0)")

    def pk_part(w, xr, acc0, acc1, first):
        e(f"  v_lshlrev_b32 v160, 16, v{w}")
        e(f"  v_and_b32 v161, 0xffff0000, v{w}")
        if first:
            e(f"  v_pk_mul_f32 v[{acc0}:{acc0+1}], v[160:161], v[{xr}:{xr+1}] op_sel_hi:[1,0]")
            e(f"  v_pk_mul_f32 v[{acc1}:{acc1+1}], v[160:161], v[{xr}:{xr+1}] op_sel:[0,1] op_sel_hi:[1,1]")
        else:
            e(f"  v_pk_fma_f32 v[{acc0}:{acc0+1}], v[160:161], v[{xr}:{xr+1}], v[{acc0}:{acc0+1}] op_sel_hi:[1,0,1]")
            e(f"  v_pk_fma_f32 v[{acc1}:{acc1+1}], v[160:161], v[{xr}:{xr+1}], v[{acc1}:{acc1+1}] op_sel:[0,1,0] op_sel_hi:[1,1,1]")
    if OPT["rs"]:
        e("  v_lshrrev_b32 v12, 3, v0")
        e("  v_and_b32 v13, 7, v0")
        blkoff(IDXA)
        e(f"  v_add_u32 v228, s75, v{VKOFF}")
        e(f"  v_add_u32 v229, s75, v{VVOFF}")
        pl = kchunk_l(KA, 228) + vchunk_l(VA, 229)
        e("  s_cmp_ge_u32 s3, 4")
        e("  s_cbranch_scc1 K_FLOOD")
        e("  v_lshlrev_b32 v5, 4, v1")
        e(f"  buffer_load_dwordx4 v[204:207], v5, s[{SX}:{SX+3}], 0 offen")
        e(f"  buffer_load_dwordx4 v[208:211], v5, s[{SX}:{SX+3}], 0 offen offset:1024")
        e("  v_lshrrev_b32 v6, 2, v0")
        e("  v_and_b32 v7, 3, v0")
        e("  v_lshlrev_b32 v8, 13, v6")
        e("  v_lshl_add_u32 v8, v7, 3, v8")
        e(f"  s_lshl_b32 s75, s{SCG}, 5")
        e("  v_add_u32 v8, s75, v8")
        for i in range(8):
            if i:
                e(f"  v_add_u32 v8, 0x80000, v8")
            e(f"  buffer_load_dwordx2 v[{212+2*i}:{213+2*i}], v8, s[{SWQ}:{SWQ+3}], 0 offen")
        e("  s_cmp_lg_u32 s3, 0")
        e("  s_cbranch_scc1 K_NOLI")
        e("  v_mov_b32 v8, 8")
        e("  v_mov_b32 v9, 0")
        e("  v_mov_b32 v10, 8")
        e("  v_mov_b32 v11, 8")
        e(f"  v_mov_b32 v5, {L_CNT}")
        e("  s_mov_b64 exec, 1")
        e("  ds_write_b128 v5, v[8:11]")
        e("  v_mov_b32 v8, 0")
        e("  v_mov_b32 v10, 0")
        e("  v_mov_b32 v11, 0")
        e("  ds_write_b128 v5, v[8:11] offset:16")
        e("  ds_write_b128 v5, v[8:11] offset:32")
        e("  s_mov_b64 exec, -1")
        e("  s_waitcnt lgkmcnt(0)")
        e("K_NOLI:")
        e("  s_barrier")
        e(f"  s_mov_b32 s75, {WS_EP}")
        e("  s_load_dword s26, s[24:25], s75")
        e("  v_lshrrev_b32 v230, 3, v1")
        e("  v_lshlrev_b32 v230, 14, v230")
        e("  v_and_b32 v7, 7, v1")
        e("  v_lshl_add_u32 v230, v7, 3, v230")
        e(f"  s_lshl_b32 s75, s{SCG}, 6")
        e(f"  s_add_u32 s75, s75, {WS_QG}")
        e("  v_add_u32 v230, s75, v230")
        e("  s_mul_i32 s75, s3, 192")
        e("  v_lshlrev_b32 v231, 4, v1")
        e("  v_add_u32 v231, s75, v231")
        e("  s_waitcnt vmcnt(8)")
        tl(4)
        ln_code()
        e("  s_add_u32 s26, s26, 1")
        e("  v_lshrrev_b32 v5, 2, v0")
        e("  v_lshlrev_b32 v5, 2, v5")
        for i in range(8):
            e(f"  ds_read2st64_b32 v[{168+2*i}:{169+2*i}], v5 offset0:{(L_XN + i*256)//256} offset1:{(L_XN + i*256 + 2048)//256}")
        e(f"  v_mov_b32 v7, {L_CNT}")
        e("  v_mov_b32 v8, 1")
        e("  v_lshlrev_b32 v9, 3, v1")
        tl(4)
        e("  s_waitcnt vmcnt(0) lgkmcnt(0)")
        tl(4)
        for i in range(8):
            for c in range(2):
                pk_part(212 + 2 * i + c, 168 + 2 * i, 184 + 2 * c, 188 + 2 * c, i == 0)
        dpp_steps(list(range(184, 192)), ["row_ror:4", "row_ror:8"])
        swap_steps(list(range(184, 192)), list(range(204, 212)))
        e("  s_mov_b64 exec, 0xf")
        e(f"  ds_write_b128 v231, v[184:187] offset:{L_QP}")
        e(f"  ds_write_b128 v231, v[188:191] offset:{L_QP+64}")
        e("  s_mov_b64 exec, 1")
        e("  ds_add_rtn_u32 v6, v7, v8 offset:16")
        e("  s_mov_b64 exec, -1")
        e("  s_waitcnt lgkmcnt(0)")
        tl(4)
        e("  v_readfirstlane_b32 s75, v6")
        e("  s_cmp_lg_u32 s75, 3")
        e("  s_cbranch_scc1 K_QW")
        e("  s_mov_b64 exec, 0xffff")
        for w in range(4):
            e(f"  ds_read_b64 v[{160+2*w}:{161+2*w}], v9 offset:{L_QP + w*192}")
        e("  v_mov_b32 v169, s26")
        e("  s_waitcnt lgkmcnt(0)")
        e("  v_pk_add_f32 v[160:161], v[160:161], v[162:163]")
        e("  v_pk_add_f32 v[164:165], v[164:165], v[166:167]")
        e("  v_pk_add_f32 v[160:161], v[160:161], v[164:165]")
        e("  v_cvt_pk_bf16_f32 v168, v160, v161")
        e(f"  buffer_store_dwordx2 v[168:169], v230, s[{SWS}:{SWS+3}], 0 offen sc1")
        e("  s_mov_b64 exec, 1")
        e("  ds_add_u32 v7, v8 offset:20")
        e("  ds_add_u32 v7, v8 offset:24")
        e("  s_mov_b64 exec, -1")
        e("K_QW:")
        e(f"  s_mov_b32 s74, {OPT['bnd']:#x}")
        e("K_QWL:")
        e("  ds_read_b32 v6, v7 offset:20")
        e("  s_waitcnt lgkmcnt(0)")
        e("  v_readfirstlane_b32 s75, v6")
        e("  s_cmp_ge_u32 s75, 5")
        e("  s_cbranch_scc1 K_QGO")
        e("  s_sub_u32 s74, s74, 1")
        e("  s_cmp_lg_u32 s74, 0")
        e("  s_cbranch_scc1 K_QWL")
        e("K_QGO:")
        tl(4)
        PB = [4, 28, 44, 80]
        prs = [b_ + 2*k for b_ in PB for k in range(8)]
        def poll_addr():
            e(f"  s_lshl_b32 s72, s{SB}, 14")
            e(f"  s_lshl_b32 s76, s{SG}, 11")
            e("  s_add_u32 s72, s72, s76")
            e("  s_lshl_b32 s76, s3, 8")
            e("  s_add_u32 s72, s72, s76")
            e(f"  s_add_u32 s72, s72, {WS_QG}")
            e("  s_lshl_b32 s76, s3, 7")
            e("  v_lshlrev_b32 v6, 2, v1")
            e("  v_add_u32 v6, s76, v6")
        def poll_issue():
            for i, b_ in enumerate(PB):
                e(f"  s_load_dwordx16 s[{b_}:{b_+15}], s[24:25], s72 offset:{64*i} glc")
        def poll_check(ok):
            e("  s_waitcnt lgkmcnt(0)")
            e(f"  s_and_b64 s[76:77], s[{prs[0]}:{prs[0]+1}], s[{prs[1]}:{prs[1]+1}]")
            e(f"  s_or_b64 s[78:79], s[{prs[0]}:{prs[0]+1}], s[{prs[1]}:{prs[1]+1}]")
            for r in prs[2:]:
                e(f"  s_and_b64 s[76:77], s[76:77], s[{r}:{r+1}]")
                e(f"  s_or_b64 s[78:79], s[78:79], s[{r}:{r+1}]")
            e("  s_xor_b32 s77, s77, s26")
            e("  s_xor_b32 s79, s79, s26")
            e("  s_or_b32 s77, s77, s79")
            e("  s_cmp_eq_u32 s77, 0")
            e(f"  s_cbranch_scc1 {ok}")
        def poll_save():
            for k, r in enumerate(prs):
                e(f"  v_writelane_b32 v5, s{r}, {k}")
            e("  s_mov_b64 exec, 0xffffffff")
            e(f"  ds_write_b32 v6, v5 offset:{L_Q}")
            e("  s_mov_b64 exec, 1")
            e("  ds_add_u32 v7, v8 offset:24")
            e("  s_mov_b64 exec, -1")
        poll_addr()
        QP = OPT["qp"]
        PS = 16 // QP
        for k in range(QP):
            poll_issue()
            for c in range(k*PS, (k+1)*PS):
                e(pl[c])
                if c in (7, 15): tl(5)
            poll_check(f"K_QP{k}")
        e("  s_branch K_SPL")
        for k in range(QP):
            e(f"K_QP{k}:")
            poll_save()
            if OPT["prof"] == 4:
                e("  s_mov_b32 m0, 8")
            tl(4)
            for c in range((k+1)*PS, 16):
                e(pl[c])
                if c in (7, 15): tl(5)
            e("  s_branch K_QR")
        e("K_FLOOD:")
        if OPT["pf"] == 2:
            e("  s_barrier")
        if OPT["pf"]:
            srd(SW1, 16, 17, 512 * 1792 * 2)
            srd(SWO, 12, 13, 4096 * 512 * 2)
            srd(SW2, 18, 19, 1792 * 512 * 2)
            e("  v_bfe_u32 v9, v0, 1, 7")
            e("  v_and_b32 v10, 1, v0")
            e("  s_movk_i32 s75, 3584")
            e("  v_mul_lo_u32 v11, v9, s75")
            e("  v_lshl_add_u32 v11, v10, 3, v11")
            e(f"  s_lshl_b32 s75, s{SHC}, 4")
            e("  v_add_u32 v11, s75, v11")
            for i in range(4):
                if i:
                    e(f"  v_add_u32 v11, {128*3584}, v11")
                e(f"  buffer_load_dwordx2 v[{112+2*i}:{113+2*i}], v11, s[{SW1}:{SW1+3}], 0 offen")
        if OPT["pf"] == 1:
            e("  v_lshrrev_b32 v9, 3, v1")
            e("  v_and_b32 v10, 7, v1")
            e("  v_lshlrev_b32 v11, 10, v9")
            e("  v_lshl_add_u32 v11, v10, 4, v11")
            e("  s_lshr_b32 s75, s2, 3")
            e("  s_lshl_b32 s75, s75, 16")
            e("  s_and_b32 s76, s3, 3")
            e("  s_lshl_b32 s76, s76, 14")
            e("  s_add_u32 s75, s75, s76")
            e("  s_and_b32 s76, s2, 7")
            e("  s_lshl_b32 s76, s76, 7")
            e("  s_add_u32 s75, s75, s76")
            e(f"  buffer_load_dwordx4 v[120:123], v11, s[{SW2}:{SW2+3}], s75 offen")
            e("  s_add_u32 s75, s75, 8192")
            e(f"  buffer_load_dwordx4 v[124:127], v11, s[{SW2}:{SW2+3}], s75 offen")
        if OPT["pf"] != 2:
            e("  s_barrier")
        e(f"  s_mov_b32 s75, {WS_EP}")
        e("  s_load_dword s26, s[24:25], s75")
        tl(4)
        NPRE = 6 if OPT["pf"] else 0
        for c in range(16):
            if c >= OPT["nf"]:
                e(f"  s_waitcnt vmcnt({OPT['nf']-1})")
            e(pl[c])
            if c in (7, 15): tl(5)
        e(f"  v_mov_b32 v7, {L_CNT}")
        e("  v_mov_b32 v8, 1")
        e("  s_mov_b64 exec, 1")
        e("  ds_add_u32 v7, v8 offset:20")
        e("  s_mov_b64 exec, -1")
        tl(4)
        if OPT["pf"] == 1:
            e("  v_lshlrev_b32 v15, 13, v4")
            e("  v_lshl_add_u32 v15, v3, 2, v15")
            e(f"  s_lshl_b32 s75, s{SHEAD}, 17")
            e(f"  s_lshl_b32 s76, s{SNO}, 7")
            e("  s_add_u32 s75, s75, s76")
            e("  s_bfe_u32 s76, s3, 0x10001")
            e("  s_lshl_b32 s76, s76, 6")
            e("  s_add_u32 s75, s75, s76")
            for ks in range(4):
                for jh in range(2):
                    for j in range(4):
                        e(f"  buffer_load_dword v{80+ks*8+jh*4+j}, v15, s[{SWO}:{SWO+3}], s75 offen offset:{j*1024}")
                    if not (ks == 3 and jh == 1):
                        e(f"  s_add_u32 s75, s75, {4096 if jh == 0 else 32768-4096}")
        e("  s_waitcnt lgkmcnt(0)")
        e("  s_add_u32 s26, s26, 1")
        if OPT["pf"]:
            e(f"  s_mov_b32 s74, {OPT['bnd']:#x}")
            e("K_XW:")
            e("  ds_read_b32 v6, v7 offset:16")
            e("  s_waitcnt lgkmcnt(0)")
            e("  v_readfirstlane_b32 s75, v6")
            e("  s_cmp_ge_u32 s75, 1")
            e("  s_cbranch_scc1 K_XWD")
            e("  s_sleep 1")
            e("  s_sub_u32 s74, s74, 1")
            e("  s_cmp_lg_u32 s74, 0")
            e("  s_cbranch_scc1 K_XW")
            e("K_XWD:")
            e(f"  s_cmp_ge_u32 s{SHC}, 224")
            e("  s_cbranch_scc1 K_HS")
            e("  v_bfe_u32 v5, v0, 1, 7")
            e("  v_lshlrev_b32 v5, 2, v5")
            for i in range(4):
                e(f"  ds_read2st64_b32 v[{144+2*i}:{145+2*i}], v5 offset0:{(L_XN + i*512)//256} offset1:{(L_XN + i*512 + 2048)//256}")
            e("  s_waitcnt vmcnt(%d) lgkmcnt(0)" % (50 if OPT["pf"] == 1 else 16))
            A = 164
            for i in range(4):
                for c in range(2):
                    pk_part(112 + 2*i + c, 144 + 2*i, A + 2*c, A + 4 + 2*c, i == 0)
            dpp_steps(list(range(A, A+8)), ["quad_perm:[2,3,0,1]", "row_ror:4", "row_ror:8"])
            swap_steps(list(range(A, A+8)), list(range(172, 180)))
            e("  s_mul_i32 s75, s3, 192")
            e("  v_lshlrev_b32 v5, 4, v1")
            e("  v_add_u32 v5, s75, v5")
            e("  s_mov_b64 exec, 0x3")
            e(f"  ds_write_b128 v5, v[{A}:{A+3}] offset:{L_QP+128}")
            e(f"  ds_write_b128 v5, v[{A+4}:{A+7}] offset:{L_QP+160}")
            e("  s_mov_b64 exec, 1")
            e(f"  ds_add_rtn_u32 v6, v7, v8 offset:4")
            e("  s_mov_b64 exec, -1")
            e("  s_waitcnt lgkmcnt(0)")
            e("  v_readfirstlane_b32 s75, v6")
            e("  s_cmp_lg_u32 s75, 3")
            e("  s_cbranch_scc1 K_HS")
            e("  v_lshlrev_b32 v5, 3, v1")
            e("  s_mov_b64 exec, 0xff")
            for w in range(4):
                e(f"  ds_read_b64 v[{144+2*w}:{145+2*w}], v5 offset:{L_QP + (4+w)*192 + 128}")
            e("  v_lshrrev_b32 v6, 2, v1")
            e("  s_movk_i32 s75, 7168")
            e("  v_mul_lo_u32 v6, v6, s75")
            e("  v_and_b32 v9, 3, v1")
            e("  v_lshl_add_u32 v6, v9, 3, v6")
            e(f"  s_lshl_b32 s75, s{SHC}, 5")
            e(f"  s_add_u32 s75, s75, {WS_HG}")
            e("  s_waitcnt lgkmcnt(0)")
            e("  v_pk_add_f32 v[144:145], v[144:145], v[146:147]")
            e("  v_pk_add_f32 v[148:149], v[148:149], v[150:151]")
            e("  v_pk_add_f32 v[144:145], v[144:145], v[148:149]")
            e("  v_max_f32 v144, 0, v144")
            e("  v_max_f32 v145, 0, v145")
            e("  v_cvt_pk_bf16_f32 v144, v144, v145")
            e("  v_mov_b32 v145, s26")
            e(f"  buffer_store_dwordx2 v[144:145], v6, s[{SWS}:{SWS+3}], s75 offen sc1")
            e("  s_mov_b64 exec, -1")
            e("K_HS:")
            tl(4)
        if OPT["pf"] == 1:
            e("  s_cmp_ge_u32 s2, 224")
            e("  s_cbranch_scc1 K_GS")
            e("  s_lshr_b32 s72, s2, 3")
            e("  s_lshl_b32 s72, s72, 8")
            e("  s_and_b32 s76, s3, 3")
            e("  s_lshl_b32 s76, s76, 6")
            e("  s_add_u32 s72, s72, s76")
            e(f"  s_add_u32 s72, s72, {WS_HG}")
            e("  s_add_u32 s73, s72, 7168")
            e(f"  s_mov_b32 s74, {OPT['bnd']:#x}")
            e("K_HP:")
            e("  s_load_dwordx16 s[4:19], s[24:25], s72 glc")
            e("  s_load_dwordx16 s[28:43], s[24:25], s73 glc")
            e("  s_waitcnt lgkmcnt(0)")
            hr = [4 + 2*k for k in range(8)] + [28 + 2*k for k in range(8)]
            e(f"  s_and_b64 s[76:77], s[{hr[0]}:{hr[0]+1}], s[{hr[1]}:{hr[1]+1}]")
            e(f"  s_or_b64 s[78:79], s[{hr[0]}:{hr[0]+1}], s[{hr[1]}:{hr[1]+1}]")
            for r in hr[2:]:
                e(f"  s_and_b64 s[76:77], s[76:77], s[{r}:{r+1}]")
                e(f"  s_or_b64 s[78:79], s[78:79], s[{r}:{r+1}]")
            e("  s_xor_b32 s77, s77, s26")
            e("  s_xor_b32 s79, s79, s26")
            e("  s_or_b32 s77, s77, s79")
            e("  s_cmp_eq_u32 s77, 0")
            e("  s_cbranch_scc1 K_HPD")
            e("  s_sub_u32 s74, s74, 1")
            e("  s_cmp_lg_u32 s74, 0")
            e("  s_cbranch_scc1 K_HP")
            e("K_HPD:")
            for k in range(4):
                e(f"  s_mov_b32 s76, {(0xffff << (16*k)) & 0xffffffff if k < 2 else 0:#x}")
                e(f"  s_mov_b32 s77, {(0xffff << (16*(k-2))) & 0xffffffff if k >= 2 else 0:#x}")
                e("  s_mov_b64 exec, s[76:77]")
                for b in range(2):
                    for i in range(2):
                        e(f"  v_mov_b32 v{144+2*b+i}, s{(4 if b == 0 else 28) + 2*(k+4*i)}")
            e("  s_mov_b64 exec, -1")
            e("  v_and_b32 v5, 8, v1")
            e("  v_cmp_ne_u32 vcc, 0, v5")
            for r in range(144, 148):
                e(f"  v_lshlrev_b32 v148, 16, v{r}")
                e(f"  v_and_b32 v149, 0xffff0000, v{r}")
                e(f"  v_cndmask_b32 v{r}, v148, v149, vcc")
            e("  s_waitcnt vmcnt(48)")
            A = 164
            for i in range(2):
                for c in range(4):
                    w = 120 + 4*i + c
                    e(f"  v_lshlrev_b32 v150, 16, v{w}")
                    e(f"  v_and_b32 v151, 0xffff0000, v{w}")
                    for b in range(2):
                        h = 144 + 2*b + i
                        if i == 0:
                            e(f"  v_mul_f32 v{A+8*b+2*c}, v150, v{h}")
                            e(f"  v_mul_f32 v{A+8*b+2*c+1}, v151, v{h}")
                        else:
                            e(f"  v_fmac_f32 v{A+8*b+2*c}, v150, v{h}")
                            e(f"  v_fmac_f32 v{A+8*b+2*c+1}, v151, v{h}")
            dpp_steps(list(range(A, A+16)), ["row_ror:8"])
            swap_steps(list(range(A, A+16)), list(range(180, 196)))
            e("  s_and_b32 s75, s3, 3")
            e("  s_lshl_b32 s75, s75, 9")
            e("  v_lshlrev_b32 v5, 5, v1")
            e("  v_add_u32 v5, s75, v5")
            e("  s_mov_b64 exec, 0xff")
            e(f"  ds_write_b128 v5, v[{A}:{A+3}] offset:{L_FP}")
            e(f"  ds_write_b128 v5, v[{A+4}:{A+7}] offset:{L_FP+16}")
            e(f"  ds_write_b128 v5, v[{A+8}:{A+11}] offset:{L_FP+256}")
            e(f"  ds_write_b128 v5, v[{A+12}:{A+15}] offset:{L_FP+272}")
            e("  s_mov_b64 exec, 1")
            e(f"  ds_add_rtn_u32 v6, v7, v8 offset:28")
            e("  s_mov_b64 exec, -1")
            e("  s_waitcnt lgkmcnt(0)")
            e("  v_readfirstlane_b32 s75, v6")
            e("  s_cmp_lg_u32 s75, 3")
            e("  s_cbranch_scc1 K_GS")
            e("  v_lshlrev_b32 v5, 3, v1")
            for w in range(4):
                e(f"  ds_read_b64 v[{144+2*w}:{145+2*w}], v5 offset:{L_FP + w*512}")
            e("  v_lshrrev_b32 v6, 5, v1")
            e("  v_lshlrev_b32 v6, 12, v6")
            e("  v_and_b32 v9, 31, v1")
            e("  v_lshl_add_u32 v6, v9, 4, v6")
            e("  s_lshr_b32 s75, s2, 3")
            e("  s_lshl_b32 s75, s75, 13")
            e("  s_and_b32 s76, s2, 7")
            e("  s_lshl_b32 s76, s76, 9")
            e("  s_add_u32 s75, s75, s76")
            e(f"  s_add_u32 s75, s75, {WS_GG}")
            e("  s_waitcnt lgkmcnt(0)")
            e("  v_pk_add_f32 v[144:145], v[144:145], v[146:147]")
            e("  v_pk_add_f32 v[148:149], v[148:149], v[150:151]")
            e("  v_pk_add_f32 v[144:145], v[144:145], v[148:149]")
            e("  v_mov_b32 v146, v145")
            e("  v_mov_b32 v145, s26")
            e("  v_mov_b32 v147, s26")
            e(f"  buffer_store_dwordx4 v[144:147], v6, s[{SWS}:{SWS+3}], s75 offen sc1")
            e("K_GS:")
            tl(4)
        poll_addr()
        e("K_SPL:")
        e(f"  s_mov_b32 s74, {OPT['bnd']:#x}")
        e("K_SP:")
        poll_issue()
        poll_check("K_SPD")
        if OPT["qsl"]: e(f"  s_sleep {OPT['qsl']}")
        e("  s_sub_u32 s74, s74, 1")
        e("  s_cmp_lg_u32 s74, 0")
        e("  s_cbranch_scc1 K_SP")
        e("K_SPD:")
        poll_save()
        if OPT["prof"] == 4:
            e("  s_mov_b32 m0, 8")
        tl(4)
        e("K_QR:")
        e(f"  s_mov_b32 s74, {OPT['bnd']:#x}")
        e("K_QRL:")
        e("  ds_read_b32 v6, v7 offset:24")
        e("  s_waitcnt lgkmcnt(0)")
        e("  v_readfirstlane_b32 s75, v6")
        e("  s_cmp_ge_u32 s75, 9")
        e("  s_cbranch_scc1 K_QRD")
        e("  s_sub_u32 s74, s74, 1")
        e("  s_cmp_lg_u32 s74, 0")
        e("  s_cbranch_scc1 K_QRL")
        e("K_QRD:")
        if OPT["prof"] == 4:
            e("  s_mov_b32 m0, 9")
        F2 = 16
    else:
        e("  v_lshlrev_b32 v5, 4, v1")
        e(f"  buffer_load_dwordx4 v[204:207], v5, s[{SX}:{SX+3}], 0 offen")
        e(f"  buffer_load_dwordx4 v[208:211], v5, s[{SX}:{SX+3}], 0 offen offset:1024")
        if OPT["xb"]:
            e("  s_barrier")
        e("  v_lshrrev_b32 v6, 2, v0")
        e("  v_and_b32 v7, 3, v0")
        e("  v_lshlrev_b32 v8, 13, v6")
        e("  v_lshl_add_u32 v8, v7, 3, v8")
        e(f"  s_lshl_b32 s75, s{SCG}, 5")
        e("  v_add_u32 v8, s75, v8")
        for i in range(4):
            if i == 0:
                e(f"  buffer_load_dwordx2 v[212:213], v8, s[{SWQ}:{SWQ+3}], 0 offen")
            else:
                e(f"  v_add_u32 v8, 0x100000, v8")
                e(f"  buffer_load_dwordx2 v[{212+2*i}:{213+2*i}], v8, s[{SWQ}:{SWQ+3}], 0 offen")
        e("  v_lshrrev_b32 v12, 3, v0")
        e("  v_and_b32 v13, 7, v0")
        if OPT["rot"]:
            e(f"  s_mul_i32 s73, s2, {OPT['rot']}")
        blkoff(IDXA)
        e(f"  v_add_u32 v224, s75, v{VKOFF}")
        e(f"  v_add_u32 v225, s75, v{VVOFF}")
        pl = kchunk_l(KA, 224) + vchunk_l(VA, 225)
        PRE0 = OPT["pre0"]
        if OPT["bar0"] and PRE0:
            e("  s_barrier")
        for c in range(PRE0):
            e(pl[c])
        e(f"  s_waitcnt vmcnt({4+PRE0})")
        tl(4)
        ln_code()
        e("  s_add_u32 s26, s26, 1")
        e("  v_lshrrev_b32 v5, 2, v0")
        e("  v_lshlrev_b32 v5, 2, v5")
        for i in range(4):
            e(f"  ds_read2st64_b32 v[{168+2*i}:{169+2*i}], v5 offset0:{(L_XN + i*512)//256} offset1:{(L_XN + i*512 + 2048)//256}")
        tl(4)
        e(f"  s_waitcnt vmcnt({PRE0}) lgkmcnt(0)")
        tl(4)
        for c in range(PRE0, F1):
            e(pl[c])
        for i in range(4):
            for c in range(2):
                pk_part(212 + 2 * i + c, 168 + 2 * i, 180 + 2 * c, 184 + 2 * c, i == 0)
        dpp_steps(list(range(180, 188)), ["row_ror:4", "row_ror:8"])
        swap_steps(list(range(180, 188)), list(range(204, 212)))
        e("  s_mul_i32 s75, s3, 192")
        e("  v_lshlrev_b32 v5, 4, v1")
        e("  v_add_u32 v5, s75, v5")
        e("  s_mov_b64 exec, 0xf")
        e(f"  ds_write_b128 v5, v[180:183] offset:{L_QP}")
        e(f"  ds_write_b128 v5, v[184:187] offset:{L_QP+64}")
        e("  s_mov_b64 exec, -1")
        e("  s_waitcnt lgkmcnt(0)")
        tl(4)
        e("  s_barrier")
        e("  s_cmp_lg_u32 s3, 0")
        e("  s_cbranch_scc1 K_B2")
        e("  v_lshlrev_b32 v5, 3, v1")
        e("  s_mov_b64 exec, 0xffff")
        for w in range(8):
            e(f"  ds_read_b64 v[{160+2*w}:{161+2*w}], v5 offset:{L_QP + w*192}")
        e("  v_lshrrev_b32 v6, 3, v1")
        e("  v_lshlrev_b32 v6, 14, v6")
        e("  v_and_b32 v7, 7, v1")
        e("  v_lshl_add_u32 v6, v7, 3, v6")
        e(f"  s_lshl_b32 s75, s{SCG}, 6")
        e(f"  s_add_u32 s75, s75, {WS_QG}")
        e("  v_add_u32 v6, s75, v6")
        e("  v_mov_b32 v8, 8")
        e("  v_mov_b32 v9, 0")
        e("  v_mov_b32 v10, 8")
        e(f"  v_mov_b32 v11, {L_CNT}")
        e("  s_waitcnt lgkmcnt(0)")
        e("  v_pk_add_f32 v[160:161], v[160:161], v[162:163]")
        e("  v_pk_add_f32 v[164:165], v[164:165], v[166:167]")
        e("  v_pk_add_f32 v[168:169], v[168:169], v[170:171]")
        e("  v_pk_add_f32 v[172:173], v[172:173], v[174:175]")
        e("  v_pk_add_f32 v[160:161], v[160:161], v[164:165]")
        e("  v_pk_add_f32 v[168:169], v[168:169], v[172:173]")
        e("  v_pk_add_f32 v[160:161], v[160:161], v[168:169]")
        e("  v_cvt_pk_bf16_f32 v160, v160, v161")
        e("  v_mov_b32 v161, s26")
        e(f"  buffer_store_dwordx2 v[160:161], v6, s[{SWS}:{SWS+3}], 0 offen sc1")
        e("  ds_write_b96 v11, v[8:10]")
        e("  s_mov_b64 exec, -1")
        e("K_B2:")
        tl(4)
        if OPT["bar2"]:
            e("  s_barrier")
        F2 = max(F1, OPT["f2"])
        for c in range(F1, F2):
            e(pl[c])
    if not OPT['rs']:
        e(f"  s_lshl_b32 s75, s{SB}, 14")
        e(f"  s_lshl_b32 s76, s{SG}, 11")
        e("  s_add_u32 s75, s75, s76")
        e("  s_lshl_b32 s76, s3, 8")
        e("  s_add_u32 s75, s75, s76")
        e(f"  s_add_u32 s75, s75, {WS_QG}")
        e("  s_lshl_b32 s76, s3, 7")
        e("  v_lshlrev_b32 v6, 2, v1")
        e("  v_add_u32 v6, s76, v6")
        e(f"  s_mov_b32 s74, {OPT['bnd']:#x}")
        PB = [4, 28, 44, 80]
        tl(4)
        e("K_SP:")
        for i, b_ in enumerate(PB):
            e(f"  s_load_dwordx16 s[{b_}:{b_+15}], s[24:25], s75 offset:{64*i} glc")
        e("  s_waitcnt lgkmcnt(0)")
        prs = [b_ + 2*k for b_ in PB for k in range(8)]
        e(f"  s_and_b64 s[76:77], s[{prs[0]}:{prs[0]+1}], s[{prs[1]}:{prs[1]+1}]")
        e(f"  s_or_b64 s[78:79], s[{prs[0]}:{prs[0]+1}], s[{prs[1]}:{prs[1]+1}]")
        for r in prs[2:]:
            e(f"  s_and_b64 s[76:77], s[76:77], s[{r}:{r+1}]")
            e(f"  s_or_b64 s[78:79], s[78:79], s[{r}:{r+1}]")
        e("  s_xor_b32 s77, s77, s26")
        e("  s_xor_b32 s79, s79, s26")
        e("  s_or_b32 s77, s77, s79")
        e("  s_cmp_eq_u32 s77, 0")
        e("  s_cbranch_scc1 K_SPD")
        e("  s_sub_u32 s74, s74, 1")
        e("  s_cmp_lg_u32 s74, 0")
        e("  s_cbranch_scc1 K_SP")
        e("K_SPD:")
        tl(4)
        for k, r in enumerate(prs):
            e(f"  v_writelane_b32 v5, s{r}, {k}")
        e("  s_mov_b64 exec, 0xffffffff")
        e(f"  ds_write_b32 v6, v5 offset:{L_Q}")
        e("  s_mov_b64 exec, -1")
        e("  s_waitcnt lgkmcnt(0)")
        e("  s_barrier")
    e("K_B3:")
    tl(4)
    e("  s_load_dwordx16 s[4:19], s[0:1], 0")
    e("  s_load_dwordx2 s[96:97], s[0:1], 64")
    for c in range(F2, len(pl)):
        e(pl[c])
    e("  v_and_b32 v5, 3, v3")
    e("  v_lshlrev_b32 v5, 8, v5")
    e("  v_lshl_add_u32 v5, v4, 4, v5")
    for i in range(4):
        e(f"  ds_read_b128 v[{QF+4*i}:{QF+4*i+3}], v5 offset:{L_Q + i*64}")
    derive()
    for r in range(32):
        e(f"  v_mov_b32 v{ACC+r}, 0")
    e(f"  v_mov_b32 v{M_}, 0xf149f2ca")
    e(f"  v_mov_b32 v{L_}, 0")
    e(f"  v_mov_b32 v7, {L_CNT}")
    e("  v_mov_b32 v8, 1")
    e("  s_waitcnt lgkmcnt(0)")
    srd(SX, 4, 5, 2048)
    srd(SW1, 16, 17, 512 * 1792 * 2)
    srd(SWO, 12, 13, 4096 * 512 * 2)
    srd(SW2, 18, 19, 1792 * 512 * 2)
    srd(SOUT, 96, 97, 2048)
    if OPT["warmp"]:
        e("  v_mov_b32 v10, 0")
        e("  s_mov_b64 exec, 1")
        if OPT["warmp"] & 1:
            e(f"  buffer_load_dword v249, v10, s[{SWS}:{SWS+3}], s93 offen sc1")
        if OPT["warmp"] & 2:
            e(f"  s_mov_b32 s75, {16*OPT['ns']*8192}")
            e(f"  buffer_load_dword v249, v10, s[{SK}:{SK+3}], s75 offen nt")
            e(f"  buffer_load_dword v250, v10, s[{SV}:{SV+3}], s75 offen nt")
        e("  s_mov_b64 exec, -1")
    if OPT["fd"]:
        e("  s_cmp_ge_u32 s2, 224")
        e("  s_cselect_b32 s95, 2, 0")
    if OPT["pf"] == 2:
        e("  s_cmp_ge_u32 s3, 4")
        e("  s_cselect_b32 s27, 2, 0")
    else:
        e("  s_mov_b32 s27, %d" % (0 if OPT["pf"] else 2))
    def x_loads(sfx):
        e("  s_cmp_lg_u32 s27, 2")
        e(f"  s_cbranch_scc1 K_XL{sfx}")
        e("  s_mov_b32 s27, 3")
        if OPT["x2"]:
            e("  v_lshlrev_b32 v14, 10, v12")
            e("  v_lshl_add_u32 v14, v13, 4, v14")
            e("  s_cmp_ge_u32 s2, 224")
            e(f"  s_cbranch_scc1 K_XW{sfx}")
            e("  s_movk_i32 s75, 3584")
            e("  v_mul_lo_u32 v11, v12, s75")
            e("  v_lshl_add_u32 v11, v13, 4, v11")
            e("  s_and_b32 s75, s2, 7")
            e(f"  s_mul_i32 s75, s75, {64*3584}")
            e("  s_lshr_b32 s76, s2, 3")
            e("  s_lshl_b32 s76, s76, 7")
            e("  s_add_u32 s75, s75, s76")
            e(f"  buffer_load_dwordx4 v[244:247], v11, s[{SW1}:{SW1+3}], s75 offen")
            e(f"K_XW{sfx}:")
            e(f"  s_lshl_b32 s75, s{SHEAD}, 17")
            e(f"  s_lshl_b32 s76, s{SNO}, 7")
            e("  s_add_u32 s75, s75, s76")
            e(f"  buffer_load_dwordx4 v[80:83], v14, s[{SWO}:{SWO+3}], s75 offen")
            e("  s_add_u32 s75, s75, 0x10000")
            e(f"  buffer_load_dwordx4 v[84:87], v14, s[{SWO}:{SWO+3}], s75 offen")
            e("  s_lshr_b32 s75, s2, 3")
            e("  s_lshl_b32 s75, s75, 16")
            e("  v_add_u32 v15, s75, v14")
            e(f"  s_lshl_b32 s75, s{SNC}, 7")
            e("  v_add_u32 v15, s75, v15")
            e(f"  buffer_load_dwordx4 v[{W2}:{W2+3}], v15, s[{SW2}:{SW2+3}], 0 offen")
            e(f"K_XL{sfx}:")
            return
        e("  v_lshrrev_b32 v9, 1, v0")
        e("  v_and_b32 v10, 1, v0")
        e("  s_movk_i32 s75, 3584")
        e("  v_mul_lo_u32 v11, v9, s75")
        e("  v_lshl_add_u32 v11, v10, 3, v11")
        e(f"  s_lshl_b32 s75, s{SHC}, 4")
        e("  v_add_u32 v11, s75, v11")
        e(f"  buffer_load_dwordx2 v[244:245], v11, s[{SW1}:{SW1+3}], 0 offen")
        e(f"  v_add_u32 v11, {256*3584}, v11")
        e(f"  buffer_load_dwordx2 v[246:247], v11, s[{SW1}:{SW1+3}], 0 offen")
        wo_loads()
        e(f"K_XL{sfx}:")

    def wo_once(sfx):
        e("  s_cmp_lg_u32 s27, 2")
        e(f"  s_cbranch_scc1 K_WO{sfx}")
        e("  s_mov_b32 s27, 0")
        e("  v_lshlrev_b32 v15, 13, v4")
        e("  v_lshl_add_u32 v15, v3, 2, v15")
        e(f"  s_lshl_b32 s75, s{SHEAD}, 17")
        e(f"  s_lshl_b32 s76, s{SNO}, 7")
        e("  s_add_u32 s75, s75, s76")
        e("  s_bfe_u32 s76, s3, 0x10001")
        e("  s_lshl_b32 s76, s76, 6")
        e("  s_add_u32 s75, s75, s76")
        for ks in range(4):
            for jh in range(2):
                for j in range(4):
                    e(f"  buffer_load_dword v{80+ks*8+jh*4+j}, v15, s[{SWO}:{SWO+3}], s75 offen offset:{j*1024}")
                if not (ks == 3 and jh == 1):
                    e(f"  s_add_u32 s75, s75, {4096 if jh == 0 else 32768-4096}")
        e(f"K_WO{sfx}:")

    def fd_at_exit():
        e("  s_cmp_ge_u32 s2, 224")
        e("  s_cbranch_scc1 K_FX")
        e("  s_mov_b64 exec, 1")
        e("  ds_add_rtn_u32 v6, v7, v8 offset:32")
        e("  s_mov_b64 exec, -1")
        e("  s_waitcnt lgkmcnt(0)")
        e("  v_readfirstlane_b32 s72, v6")
        e("  s_cmp_ge_u32 s72, 4")
        e("  s_cbranch_scc1 K_FX")
        e("  v_lshrrev_b32 v9, 3, v1")
        e("  v_and_b32 v10, 7, v1")
        e("  v_lshlrev_b32 v11, 10, v9")
        e("  v_lshl_add_u32 v11, v10, 4, v11")
        e("  s_lshr_b32 s75, s2, 3")
        e("  s_lshl_b32 s75, s75, 16")
        e("  s_lshl_b32 s76, s72, 14")
        e("  s_add_u32 s75, s75, s76")
        e("  s_and_b32 s76, s2, 7")
        e("  s_lshl_b32 s76, s76, 7")
        e("  s_add_u32 s75, s75, s76")
        e(f"  buffer_load_dwordx4 v[16:19], v11, s[{SW2}:{SW2+3}], s75 offen")
        e("  s_add_u32 s75, s75, 8192")
        e(f"  buffer_load_dwordx4 v[20:23], v11, s[{SW2}:{SW2+3}], s75 offen")
        e("  v_lshlrev_b32 v12, 3, v4")
        e("  s_lshr_b32 s75, s2, 3")
        e("  s_lshl_b32 s75, s75, 8")
        e("  s_lshl_b32 s76, s72, 6")
        e("  s_add_u32 s75, s75, s76")
        e(f"  s_add_u32 s75, s75, {WS_HG}")
        e("  s_add_u32 s76, s75, 7168")
        e(f"  s_mov_b32 s74, {OPT['bnd']:#x}")
        e("K_FXP:")
        e(f"  buffer_load_dwordx2 v[24:25], v12, s[{SWS}:{SWS+3}], s75 offen sc1")
        e(f"  buffer_load_dwordx2 v[26:27], v12, s[{SWS}:{SWS+3}], s75 offen offset:32 sc1")
        e(f"  buffer_load_dwordx2 v[28:29], v12, s[{SWS}:{SWS+3}], s76 offen sc1")
        e(f"  buffer_load_dwordx2 v[30:31], v12, s[{SWS}:{SWS+3}], s76 offen offset:32 sc1")
        e("  s_waitcnt vmcnt(0)")
        e("  v_cmp_ne_u32 s[78:79], s26, v25")
        for r in [27, 29, 31]:
            e(f"  v_cmp_ne_u32 vcc, s26, v{r}")
            e("  s_or_b64 s[78:79], s[78:79], vcc")
        e("  s_cmp_eq_u64 s[78:79], 0")
        e("  s_cbranch_scc1 K_FXD")
        e("  s_sub_u32 s74, s74, 1")
        e("  s_cmp_lg_u32 s74, 0")
        e("  s_cbranch_scc1 K_FXP")
        e("K_FXD:")
        e("  v_and_b32 v5, 8, v1")
        e("  v_cmp_ne_u32 vcc, 0, v5")
        for r in [24, 26, 28, 30]:
            e(f"  v_lshlrev_b32 v48, 16, v{r}")
            e(f"  v_and_b32 v49, 0xffff0000, v{r}")
            e(f"  v_cndmask_b32 v{r}, v48, v49, vcc")
        A = 32
        for i in range(2):
            for c in range(4):
                w = 16 + 4*i + c
                e(f"  v_lshlrev_b32 v48, 16, v{w}")
                e(f"  v_and_b32 v49, 0xffff0000, v{w}")
                for b in range(2):
                    h = 24 + 4*b + 2*i
                    if i == 0:
                        e(f"  v_mul_f32 v{A+8*b+2*c}, v48, v{h}")
                        e(f"  v_mul_f32 v{A+8*b+2*c+1}, v49, v{h}")
                    else:
                        e(f"  v_fmac_f32 v{A+8*b+2*c}, v48, v{h}")
                        e(f"  v_fmac_f32 v{A+8*b+2*c+1}, v49, v{h}")
        dpp_steps(list(range(A, A+16)), ["row_ror:8"])
        swap_steps(list(range(A, A+16)), list(range(48, 64)))
        e("  s_lshl_b32 s75, s72, 9")
        e("  v_lshlrev_b32 v5, 5, v1")
        e("  v_add_u32 v5, s75, v5")
        e("  s_mov_b64 exec, 0xff")
        e(f"  ds_write_b128 v5, v[{A}:{A+3}] offset:{L_FP}")
        e(f"  ds_write_b128 v5, v[{A+4}:{A+7}] offset:{L_FP+16}")
        e(f"  ds_write_b128 v5, v[{A+8}:{A+11}] offset:{L_FP+256}")
        e(f"  ds_write_b128 v5, v[{A+12}:{A+15}] offset:{L_FP+272}")
        e("  s_mov_b64 exec, 1")
        e(f"  ds_add_rtn_u32 v6, v7, v8 offset:28")
        e("  s_mov_b64 exec, -1")
        e("  s_waitcnt lgkmcnt(0)")
        e("  v_readfirstlane_b32 s75, v6")
        e("  s_cmp_lg_u32 s75, 3")
        e("  s_cbranch_scc1 K_FX")
        e("  v_lshlrev_b32 v5, 3, v1")
        for w in range(4):
            e(f"  ds_read_b64 v[{16+2*w}:{17+2*w}], v5 offset:{L_FP + w*512}")
        e("  v_lshrrev_b32 v6, 5, v1")
        e("  v_lshlrev_b32 v6, 12, v6")
        e("  v_and_b32 v9, 31, v1")
        e("  v_lshl_add_u32 v6, v9, 4, v6")
        e("  s_lshr_b32 s75, s2, 3")
        e("  s_lshl_b32 s75, s75, 13")
        e("  s_and_b32 s76, s2, 7")
        e("  s_lshl_b32 s76, s76, 9")
        e("  s_add_u32 s75, s75, s76")
        e(f"  s_add_u32 s75, s75, {WS_GG}")
        e("  s_waitcnt lgkmcnt(0)")
        e("  v_pk_add_f32 v[16:17], v[16:17], v[18:19]")
        e("  v_pk_add_f32 v[20:21], v[20:21], v[22:23]")
        e("  v_pk_add_f32 v[16:17], v[16:17], v[20:21]")
        e("  v_mov_b32 v18, v17")
        e("  v_mov_b32 v17, s26")
        e("  v_mov_b32 v19, s26")
        e(f"  buffer_store_dwordx4 v[16:19], v6, s[{SWS}:{SWS+3}], s75 offen sc1")
        e("K_FX:")

    def h_phase(sfx):
        e("  s_cmp_eq_u32 s27, 0")
        e(f"  s_cbranch_scc1 K_HSKP{sfx}")
        e("  s_sub_u32 s27, s27, 2")
        e("  s_cmp_eq_u32 s27, 1")
        e(f"  s_cbranch_scc1 K_HSKP{sfx}")
        e("  s_mov_b32 s27, 0")
        if OPT["x2"]:
            e("  v_mul_u32_u24 v5, 144, v12")
            e("  v_lshl_add_u32 v5, v13, 4, v5")
            e(f"  ds_write_b128 v5, v[80:83] offset:{L_WO}")
            e(f"  ds_write_b128 v5, v[84:87] offset:{L_WO + 64*144}")
            e("  s_cmp_ge_u32 s2, 224")
            e(f"  s_cbranch_scc1 K_HSKP{sfx}")
            e("  s_and_b32 s75, s2, 7")
            e("  s_lshl_b32 s75, s75, 8")
            e("  v_lshl_add_u32 v5, v12, 2, s75")
            e(f"  ds_read_b32 v204, v5 offset:{L_XN}")
            e(f"  ds_read_b32 v205, v5 offset:{L_XN+2048}")
            e("  s_waitcnt lgkmcnt(0)")
            A = 212
            for c in range(4):
                e(f"  v_lshlrev_b32 v206, 16, v{244+c}")
                e(f"  v_and_b32 v207, 0xffff0000, v{244+c}")
                e(f"  v_mul_f32 v{A+2*c}, v206, v204")
                e(f"  v_mul_f32 v{A+1+2*c}, v207, v204")
                e(f"  v_mul_f32 v{A+8+2*c}, v206, v205")
                e(f"  v_mul_f32 v{A+9+2*c}, v207, v205")
            dpp_steps(list(range(A, A+16)), ["row_ror:8"])
            swap_steps(list(range(A, A+16)), list(range(220+8, 236+8))[:16] if False else [228,229,230,231,232,233,234,235,204,205,206,207,208,209,210,211])
            e("  s_lshl_b32 s75, s3, 9")
            e("  v_lshlrev_b32 v5, 5, v1")
            e("  v_add_u32 v5, s75, v5")
            e("  s_mov_b64 exec, 0xff")
            e(f"  ds_write_b128 v5, v[{A}:{A+3}] offset:{L_FP}")
            e(f"  ds_write_b128 v5, v[{A+4}:{A+7}] offset:{L_FP+16}")
            e(f"  ds_write_b128 v5, v[{A+8}:{A+11}] offset:{L_FP+256}")
            e(f"  ds_write_b128 v5, v[{A+12}:{A+15}] offset:{L_FP+272}")
            e("  s_mov_b64 exec, 1")
            e(f"  ds_add_rtn_u32 v6, v7, v8 offset:4")
            e("  s_mov_b64 exec, -1")
            e("  s_waitcnt lgkmcnt(0)")
            e("  v_readfirstlane_b32 s75, v6")
            e("  s_cmp_lg_u32 s75, 7")
            e(f"  s_cbranch_scc1 K_HSKP{sfx}")
            e("  v_lshlrev_b32 v5, 2, v1")
            for w in range(8):
                e(f"  ds_read_b32 v{204+2*w}, v5 offset:{L_FP + w*512}")
                e(f"  ds_read_b32 v{205+2*w}, v5 offset:{L_FP + w*512 + 256}")
            e("  v_lshlrev_b32 v6, 4, v1")
            e("  s_lshl_b32 s75, s2, 10")
            e("  s_mov_b32 s76, 0")
            e("  s_add_u32 s75, s75, s76")
            e(f"  s_add_u32 s75, s75, {WS_H2}")
            e("  s_waitcnt lgkmcnt(0)")
            e("  v_pk_add_f32 v[204:205], v[204:205], v[206:207]")
            e("  v_pk_add_f32 v[208:209], v[208:209], v[210:211]")
            e("  v_pk_add_f32 v[212:213], v[212:213], v[214:215]")
            e("  v_pk_add_f32 v[216:217], v[216:217], v[218:219]")
            e("  v_pk_add_f32 v[204:205], v[204:205], v[208:209]")
            e("  v_pk_add_f32 v[212:213], v[212:213], v[216:217]")
            e("  v_pk_add_f32 v[204:205], v[204:205], v[212:213]")
            e("  v_mov_b32 v206, s26")
            e("  v_mov_b32 v207, s26")
            e(f"  buffer_store_dwordx4 v[204:207], v6, s[{SWS}:{SWS+3}], s75 offen sc1")
            e(f"K_HSKP{sfx}:")
            return
        e(f"  s_cmp_ge_u32 s{SHC}, 224")
        e(f"  s_cbranch_scc1 K_HSKP{sfx}")
        e("  v_lshrrev_b32 v5, 1, v0")
        e("  v_lshlrev_b32 v5, 2, v5")
        for i in range(2):
            e(f"  ds_read2st64_b32 v[{204+2*i}:{205+2*i}], v5 offset0:{(L_XN + i*1024)//256} offset1:{(L_XN + i*1024 + 2048)//256}")
        e("  s_waitcnt lgkmcnt(0)")
        A = 212
        for i in range(2):
            for c in range(2):
                w = 244 + 2*i + c
                xr = 204 + 2*i
                a0, a1 = A + 2*c, A + 4 + 2*c
                e(f"  v_lshlrev_b32 v208, 16, v{w}")
                e(f"  v_and_b32 v209, 0xffff0000, v{w}")
                if i == 0:
                    e(f"  v_pk_mul_f32 v[{a0}:{a0+1}], v[208:209], v[{xr}:{xr+1}] op_sel_hi:[1,0]")
                    e(f"  v_pk_mul_f32 v[{a1}:{a1+1}], v[208:209], v[{xr}:{xr+1}] op_sel:[0,1] op_sel_hi:[1,1]")
                else:
                    e(f"  v_pk_fma_f32 v[{a0}:{a0+1}], v[208:209], v[{xr}:{xr+1}], v[{a0}:{a0+1}] op_sel_hi:[1,0,1]")
                    e(f"  v_pk_fma_f32 v[{a1}:{a1+1}], v[208:209], v[{xr}:{xr+1}], v[{a1}:{a1+1}] op_sel:[0,1,0] op_sel_hi:[1,1,1]")
        dpp_steps(list(range(A, A+8)), ["quad_perm:[2,3,0,1]", "row_ror:4", "row_ror:8"])
        swap_steps(list(range(A, A+8)), list(range(220, 228)))
        e("  s_mul_i32 s75, s3, 192")
        e("  v_lshlrev_b32 v5, 4, v1")
        e("  v_add_u32 v5, s75, v5")
        e("  s_mov_b64 exec, 0x3")
        e(f"  ds_write_b128 v5, v[{A}:{A+3}] offset:{L_QP+128}")
        e(f"  ds_write_b128 v5, v[{A+4}:{A+7}] offset:{L_QP+160}")
        e("  s_mov_b64 exec, 1")
        e(f"  ds_add_rtn_u32 v6, v7, v8 offset:4")
        e("  s_mov_b64 exec, -1")
        e("  s_waitcnt lgkmcnt(0)")
        e("  v_readfirstlane_b32 s75, v6")
        e("  s_cmp_lg_u32 s75, 7")
        e(f"  s_cbranch_scc1 K_HSKP{sfx}")
        e("  v_lshlrev_b32 v5, 3, v1")
        e("  s_mov_b64 exec, 0xff")
        for w in range(8):
            e(f"  ds_read_b64 v[{204+2*w}:{205+2*w}], v5 offset:{L_QP + w*192 + 128}")
        e("  v_lshrrev_b32 v6, 2, v1")
        e("  s_movk_i32 s75, 7168")
        e("  v_mul_lo_u32 v6, v6, s75")
        e("  v_and_b32 v9, 3, v1")
        e("  v_lshl_add_u32 v6, v9, 3, v6")
        e(f"  s_lshl_b32 s75, s{SHC}, 5")
        e(f"  s_add_u32 s75, s75, {WS_HG}")
        e("  s_waitcnt lgkmcnt(0)")
        e("  v_pk_add_f32 v[204:205], v[204:205], v[206:207]")
        e("  v_pk_add_f32 v[208:209], v[208:209], v[210:211]")
        e("  v_pk_add_f32 v[212:213], v[212:213], v[214:215]")
        e("  v_pk_add_f32 v[216:217], v[216:217], v[218:219]")
        e("  v_pk_add_f32 v[204:205], v[204:205], v[208:209]")
        e("  v_pk_add_f32 v[212:213], v[212:213], v[216:217]")
        e("  v_pk_add_f32 v[204:205], v[204:205], v[212:213]")
        e("  v_max_f32 v204, 0, v204")
        e("  v_max_f32 v205, 0, v205")
        e("  v_cvt_pk_bf16_f32 v204, v204, v205")
        e("  v_mov_b32 v205, s26")
        e(f"  buffer_store_dwordx2 v[204:205], v6, s[{SWS}:{SWS+3}], s75 offen sc1")
        e("  s_mov_b64 exec, -1")
        e(f"K_HSKP{sfx}:")
    def h_loads():
        if OPT["x2"]:
            e(f"  buffer_load_dwordx4 v[244:247], v248, s[{SWS}:{SWS+3}], 0 offen sc1")
            return
        e("  s_movk_i32 s75, 7168")
        e(f"  buffer_load_dwordx2 v[244:245], v248, s[{SWS}:{SWS+3}], 0 offen sc1")
        e(f"  buffer_load_dwordx2 v[246:247], v248, s[{SWS}:{SWS+3}], s75 offen sc1")

    def fd_issue():
        e("  v_lshrrev_b32 v5, 1, v12")
        e("  v_lshlrev_b32 v248, 3, v5")
        e("  s_lshr_b32 s75, s2, 3")
        e("  s_lshl_b32 s75, s75, 8")
        e(f"  s_add_u32 s75, s75, {WS_HG}")
        e("  v_add_u32 v248, s75, v248")
        h_loads()
    def fd_check(bad):
        e("  v_cmp_ne_u32 vcc, s26, v245")
        e("  v_cmp_ne_u32 s[78:79], s26, v247")
        e("  s_or_b64 vcc, vcc, s[78:79]")
        e("  s_cmp_lg_u64 vcc, 0")
        e(f"  s_cbranch_scc1 {bad}")
    def fd_compute(done):
        A = 204
        e("  v_and_b32 v5, 1, v12")
        e("  v_cmp_eq_u32 vcc, 1, v5")
        e("  v_lshlrev_b32 v220, 16, v244")
        e("  v_and_b32 v5, 0xffff0000, v244")
        e("  v_lshlrev_b32 v221, 16, v246")
        e("  v_and_b32 v6, 0xffff0000, v246")
        e("  v_cndmask_b32 v220, v220, v5, vcc")
        e("  v_cndmask_b32 v221, v221, v6, vcc")
        for c in range(4):
            e(f"  v_lshlrev_b32 v222, 16, v{W2+c}")
            e(f"  v_and_b32 v223, 0xffff0000, v{W2+c}")
            e(f"  v_mul_f32 v{A+2*c}, v222, v220")
            e(f"  v_mul_f32 v{A+1+2*c}, v223, v220")
            e(f"  v_mul_f32 v{A+8+2*c}, v222, v221")
            e(f"  v_mul_f32 v{A+9+2*c}, v223, v221")
        dpp_steps(list(range(A, A+16)), ["row_ror:8"])
        swap_steps(list(range(A, A+16)), list(range(220, 236)))
        e("  s_lshl_b32 s75, s3, 9")
        e("  v_lshlrev_b32 v5, 5, v1")
        e("  v_add_u32 v5, s75, v5")
        e("  s_mov_b64 exec, 0xff")
        e(f"  ds_write_b128 v5, v[{A}:{A+3}] offset:{L_FP}")
        e(f"  ds_write_b128 v5, v[{A+4}:{A+7}] offset:{L_FP+16}")
        e(f"  ds_write_b128 v5, v[{A+8}:{A+11}] offset:{L_FP+256}")
        e(f"  ds_write_b128 v5, v[{A+12}:{A+15}] offset:{L_FP+272}")
        e("  s_mov_b64 exec, 1")
        e(f"  ds_add_rtn_u32 v6, v7, v8 offset:28")
        e("  s_mov_b64 exec, -1")
        e("  s_waitcnt lgkmcnt(0)")
        e("  v_readfirstlane_b32 s75, v6")
        e("  s_mov_b32 s95, 2")
        e("  s_cmp_lg_u32 s75, 7")
        e(f"  s_cbranch_scc1 {done}")
        e("  v_lshlrev_b32 v5, 3, v1")
        for w in range(8):
            e(f"  ds_read_b64 v[{204+2*w}:{205+2*w}], v5 offset:{L_FP + w*512}")
        e("  v_lshrrev_b32 v6, 5, v1")
        e("  v_lshlrev_b32 v6, 12, v6")
        e("  v_and_b32 v9, 31, v1")
        e("  v_lshl_add_u32 v6, v9, 4, v6")
        e("  s_lshr_b32 s75, s2, 3")
        e("  s_lshl_b32 s75, s75, 13")
        e("  s_and_b32 s76, s2, 7")
        e("  s_lshl_b32 s76, s76, 9")
        e("  s_add_u32 s75, s75, s76")
        e(f"  s_add_u32 s75, s75, {WS_GG}")
        e("  s_waitcnt lgkmcnt(0)")
        e("  v_pk_add_f32 v[204:205], v[204:205], v[206:207]")
        e("  v_pk_add_f32 v[208:209], v[208:209], v[210:211]")
        e("  v_pk_add_f32 v[212:213], v[212:213], v[214:215]")
        e("  v_pk_add_f32 v[216:217], v[216:217], v[218:219]")
        e("  v_pk_add_f32 v[204:205], v[204:205], v[208:209]")
        e("  v_pk_add_f32 v[212:213], v[212:213], v[216:217]")
        e("  v_pk_add_f32 v[204:205], v[204:205], v[212:213]")
        e("  v_mov_b32 v206, v205")
        e("  v_mov_b32 v205, s26")
        e("  v_mov_b32 v207, s26")
        e(f"  buffer_store_dwordx4 v[204:207], v6, s[{SWS}:{SWS+3}], s75 offen sc1")
    def fd_phase():
        e("  s_cmp_eq_u32 s95, 2")
        e("  s_cbranch_scc1 K_FDS")
        e("  s_cmp_lg_u32 s27, 0")
        e("  s_cbranch_scc1 K_FDS")
        e(f"  s_cmp_lt_u32 s73, {OPT['fdt']}")
        e("  s_cbranch_scc1 K_FDS")
        e("  s_cmp_eq_u32 s95, 0")
        e("  s_cbranch_scc1 K_FDI")
        fd_check("K_FDI")
        fd_compute("K_FDS")
        e("  s_branch K_FDS")
        e("K_FDI:")
        fd_issue()
        e("  s_mov_b32 s95, 1")
        e("K_FDS:")
    def fd_exit():
        e("  s_cmp_eq_u32 s95, 2")
        e("  s_cbranch_scc1 K_FDES")
        e(f"  s_mov_b32 s74, {OPT['bnd']:#x}")
        e("K_FDEL:")
        fd_issue()
        e("  s_waitcnt vmcnt(0)")
        fd_check("K_FDEB")
        e("  s_branch K_FDEC")
        e("K_FDEB:")
        e("  s_sub_u32 s74, s74, 1")
        e("  s_cmp_lg_u32 s74, 0")
        e("  s_cbranch_scc1 K_FDEL")
        e("K_FDEC:")
        fd_compute("K_FDES")
        e("K_FDES:")

    def c_qk(KR, vk):
        e(f"  s_waitcnt vmcnt({vk})")
        tl()
        for t in range(2):
            for i in range(4):
                c = "0" if i == 0 else f"v[{ST+4*t}:{ST+4*t+3}]"
                e(f"  v_mfma_f32_16x16x32_bf16 v[{ST+4*t}:{ST+4*t+3}], v[{KR+16*t+4*i}:{KR+16*t+4*i+3}], v[{QF+4*i}:{QF+4*i+3}], {c}")
    def c_sm(nop=True):
        if nop:
            e("  s_nop 7")
            e("  s_nop 0")
        e(f"  v_max3_f32 v{T0}, v{ST}, v{ST+1}, v{ST+2}")
        e(f"  v_max3_f32 v{T1}, v{ST+3}, v{ST+4}, v{ST+5}")
        e(f"  v_max3_f32 v{T0}, v{T0}, v{ST+6}, v{ST+7}")
        e(f"  v_max_f32 v{T0}, v{T0}, v{T1}")
        e(f"  v_mov_b32 v{T1}, v{T0}")
        e("  s_nop 1")
        e(f"  v_permlane16_swap_b32 v{T0}, v{T1}")
        e("  s_nop 1")
        e(f"  v_max_f32 v{T0}, v{T0}, v{T1}")
        e(f"  v_mov_b32 v{T1}, v{T0}")
        e("  s_nop 1")
        e(f"  v_permlane32_swap_b32 v{T0}, v{T1}")
        e("  s_nop 1")
        e(f"  v_max3_f32 v{T0}, v{T0}, v{T1}, v{M_}")
        e(f"  v_sub_f32 v{AL}, v{M_}, v{T0}")
        e(f"  v_mul_f32 v{AL}, s{SC}, v{AL}")
        e(f"  v_exp_f32 v{AL}, v{AL}")
        e(f"  v_mov_b32 v{M_}, v{T0}")
        e(f"  v_mul_f32 v{MC}, s{SC}, v{T0}")
        for k in range(8):
            e(f"  v_fma_f32 v{ST+k}, v{ST+k}, s{SC}, -v{MC}")
        for k in range(8):
            e(f"  v_exp_f32 v{ST+k}, v{ST+k}")
        e("  s_nop 0")
        e(f"  v_mul_f32 v{L_}, v{L_}, v{AL}")
        for k in range(8):
            e(f"  v_add_f32 v{L_}, v{L_}, v{ST+k}")
        for q in range(4):
            e(f"  v_cvt_pk_bf16_f32 v{PF+q}, v{ST+2*q}, v{ST+2*q+1}")
        for r in range(32):
            e(f"  v_mul_f32 v{ACC+r}, v{ACC+r}, v{AL}")
    def c_pv(VR, vv):
        if vv is not None:
            e(f"  s_waitcnt vmcnt({vv})")
        tl()
        for t in range(8):
            c = t >> 1
            sel = f"s{SP1}" if (t & 1) else f"s{SP0}"
            for q in range(4):
                e(f"  v_perm_b32 v{TR+4*t+q}, v{VR+4*(2*q+1)+c}, v{VR+4*(2*q)+c}, {sel}")
        e("  s_nop 1")
        for t in range(8):
            e(f"  v_mfma_f32_16x16x32_bf16 v[{ACC+4*t}:{ACC+4*t+3}], v[{TR+4*t}:{TR+4*t+3}], v[{PF}:{PF+3}], v[{ACC+4*t}:{ACC+4*t+3}]")

    def compute(KR, VR, vk, vv):
        c_qk(KR, vk)
        c_sm()
        c_pv(VR, vv)

    def fetch():
        e("  s_mov_b64 exec, 1")
        e("  ds_add_rtn_u32 v9, v7, v8")
        e("  s_mov_b64 exec, -1")
    def getidx(sidx):
        e("  s_waitcnt lgkmcnt(0)")
        e(f"  v_readfirstlane_b32 s{sidx}, v9")

    if OPT["nw"] < 8:
        e(f"  s_cmp_ge_u32 s3, {OPT['nw']}")
        e("  s_cbranch_scc1 K_EXIT")
    def gen_loop(sfx, last):
        if OPT["nbuf"] == 3:
            fetch()
            compute(KA, VA, 24, 16)
            getidx(IDXA)
            loads(KA, VA, IDXA)
            compute(KB, VB, 24, 16)
            e(f"  s_cmp_ge_u32 s{IDXA}, 64")
            e("  s_cbranch_scc1 K_EXIT")
        e(f"K_LOOP{sfx}:")
        if OPT["nbuf"] == 2:
            fetch()
            compute(KA, VA, 24, 16)
            getidx(IDXA)
            loads(KA, VA, IDXA)
            e(f"  s_cmp_ge_u32 s{IDXB}, 64")
            e("  s_cbranch_scc1 K_EXIT")
            fetch()
            compute(KB, VB, 24, 16)
            getidx(IDXB)
            loads(KB, VB, IDXB)
            e(f"  s_cmp_lt_u32 s{IDXA}, 64")
            e(f"  s_cbranch_scc1 K_LOOP{sfx}")
        else:
            NS = OPT["ns"]
            fetch()
            getidx(73)
            if OPT["dup"] > 1:
                e(f"  s_cmp_lt_u32 s73, {OPT['dup']}")
                e(f"  s_cselect_b32 s75, 0, 4096")
                e(f"  s_and_b32 s73, s73, 63")
                e(f"  s_add_u32 s73, s73, s75")
            e(f"  s_cmp_lt_u32 s73, {NS}")
            e(f"  s_cbranch_scc1 K_STA{sfx}")
            e("  v_mov_b32 v9, 1")
            e("  v_mov_b32 v10, 0")
            e("  s_mov_b64 exec, 1")
            e(f"  buffer_atomic_add v9, v10, s[{SWS}:{SWS+3}], s93 offen sc0 sc1")
            e("  s_mov_b64 exec, -1")
            e(f"K_STA{sfx}:")
            compute(KA, VA, 8, 0)
            e(f"  s_cmp_ge_u32 s73, {NS}")
            e(f"  s_cbranch_scc1 K_DY2{sfx}")
            e(f"  s_add_u32 s{IDXA}, s73, s94")
            e(f"  s_branch K_ST2{sfx}")
            e(f"K_DY2{sfx}:")
            e(f"  v_readfirstlane_b32 s{IDXA}, v9")
            e(f"  s_cmp_lt_u32 s{IDXA}, {(1024-16*NS)//OPT['nsub']}")
            e(f"  s_cselect_b32 s{IDXA}, s{IDXA}, 2048")
            e(f"  s_add_u32 s{IDXA}, s{IDXA}, s92")
            e(f"K_ST2{sfx}:")
            if OPT["fifo"]:
                e(f"  s_cmp_ge_u32 s{IDXA}, 1024")
                e(f"  s_cbranch_scc1 K_FD{sfx}")
                e(f"  s_sub_u32 s73, s73, {OPT['fw']}")
                e(f"  s_mov_b32 s74, {OPT['bnd']:#x}")
                e(f"K_FW{sfx}:")
                e("  ds_read_b32 v9, v7 offset:8")
                e("  s_waitcnt lgkmcnt(0)")
                e("  v_readfirstlane_b32 s75, v9")
                e("  s_cmp_ge_u32 s75, s73")
                e(f"  s_cbranch_scc1 K_FD{sfx}")
                if OPT["fsl"]: e(f"  s_sleep {OPT['fsl']}")
                e("  s_sub_u32 s74, s74, 1")
                e("  s_cmp_lg_u32 s74, 0")
                e(f"  s_cbranch_scc1 K_FW{sfx}")
                e(f"K_FD{sfx}:")
            x_loads("L"+sfx)
            loads(KA, VA, IDXA)
            if OPT["fifo"]:
                e("  s_mov_b64 exec, 1")
                e("  ds_add_u32 v7, v8 offset:8")
                e("  s_mov_b64 exec, -1")
            h_phase("L"+sfx)
            e(f"  s_cmp_lt_u32 s{IDXA}, 1024")
            e(f"  s_cbranch_scc1 K_LOOP{sfx}")
        if not last:
            e("  s_branch K_EXIT")
    def fifo_wait(lbl, off):
        e(f"  s_mov_b32 s74, {OPT['bnd']:#x}")
        e(f"{lbl}:")
        e(f"  ds_read_b32 v9, v7 offset:{off}")
        e("  s_waitcnt lgkmcnt(0)")
        e("  v_readfirstlane_b32 s75, v9")
        e("  s_cmp_ge_u32 s75, s73")
        e(f"  s_cbranch_scc1 {lbl}D")
        if OPT["fsl"]: e(f"  s_sleep {OPT['fsl']}")
        e("  s_sub_u32 s74, s74, 1")
        e("  s_cmp_lg_u32 s74, 0")
        e(f"  s_cbranch_scc1 {lbl}")
        e(f"{lbl}D:")
    def fifo_add(off):
        e("  s_mov_b64 exec, 1")
        e(f"  ds_add_u32 v7, v8 offset:{off}")
        e("  s_mov_b64 exec, -1")
    def gen_loop_sp():
        e("K_LOOP:")
        fetch()
        getidx(73)
        c_qk(KA, 8)
        tl(7)
        e("  s_cmp_ge_u32 s73, 64")
        e("  s_cbranch_scc1 K_NK")
        e(f"  s_add_u32 s{IDXA}, s73, s94")
        blkoff(IDXA)
        e(f"  v_add_u32 v5, s75, v{VKOFF}")
        e(f"  v_add_u32 v6, s75, v{VVOFF}")
        fifo_wait("K_FK", 8)
        tl(7)
        kchunk(KA, 5)
        tl(5)
        tl(7)
        fifo_add(8)
        e("K_NK:")
        c_sm(nop=True)
        e("  s_cmp_lt_u32 s73, 64")
        e("  s_cbranch_scc1 K_W8")
        e("  s_waitcnt vmcnt(0)")
        e("K_W8:")
        if OPT["prof"] == 7:
            e("  s_waitcnt vmcnt(8)")
            tl(7)
        c_pv(VA, 8)
        e("  s_cmp_ge_u32 s73, 64")
        e("  s_cbranch_scc1 K_NV")
        tl(7)
        fifo_wait("K_FV", 12)
        tl(7)
        vchunk(VA, 6)
        tl(5)
        tl(7)
        fifo_add(12)
        e("K_NV:")
        if not OPT["pf"]:
            x_loads("L")
            h_phase("L")
        if OPT["pf"] == 2:
            wo_once("L")
        if OPT["fd"]:
            fd_phase()
        tl(7)
        e("  s_cmp_lt_u32 s73, 64")
        e("  s_cbranch_scc1 K_LOOP")
    def gen_loop_dy():
        NSW = OPT["ns"] // 8
        POOL = (1024 - 16*OPT["ns"]) // OPT["nsub"]
        e(f"  s_add_u32 s{IDXA}, s3, s94")
        e(f"  s_mov_b32 s36, {NSW-1}")
        e("  v_mov_b32 v249, 0")
        e("K_LOOP:")
        fetch()
        getidx(73)
        c_qk(KA, 8)
        e("  s_cmp_eq_u32 s36, 0")
        e("  s_cbranch_scc1 K_DYN")
        e(f"  s_add_u32 s{IDXA}, s{IDXA}, 8")
        e("  s_sub_u32 s36, s36, 1")
        e("  s_branch K_HAVE")
        e("K_DYN:")
        e(f"  v_readfirstlane_b32 s{IDXA}, v250")
        e(f"  s_cmp_lt_u32 s{IDXA}, {POOL}")
        e(f"  s_cselect_b32 s{IDXA}, s{IDXA}, 2048")
        e(f"  s_add_u32 s{IDXA}, s{IDXA}, s92")
        e(f"  s_cmp_lt_u32 s{IDXA}, 1024")
        e("  s_cbranch_scc1 K_HAVE")
        fifo_add(8)
        fifo_add(12)
        e("  s_branch K_NK")
        e("K_HAVE:")
        blkoff(IDXA)
        e(f"  v_add_u32 v5, s75, v{VKOFF}")
        e(f"  v_add_u32 v6, s75, v{VVOFF}")
        e("  v_mov_b32 v250, 1")
        fifo_wait("K_FK", 8)
        kchunk(KA, 5)
        e("  s_cmp_lg_u32 s36, 0")
        e("  s_cbranch_scc1 K_NAT")
        e("  s_mov_b64 exec, 1")
        e(f"  buffer_atomic_add v250, v249, s[{SWS}:{SWS+3}], s93 offen sc0 sc1")
        e("  s_mov_b64 exec, -1")
        e("K_NAT:")
        tl(5)
        fifo_add(8)
        e("K_NK:")
        c_sm(nop=True)
        e(f"  s_cmp_lt_u32 s{IDXA}, 1024")
        e("  s_cbranch_scc1 K_W8")
        e("  s_waitcnt vmcnt(0)")
        e("K_W8:")
        e("  s_cmp_lg_u32 s36, 0")
        e("  s_cbranch_scc1 K_W8S")
        e("  s_waitcnt vmcnt(9)")
        e("  s_branch K_W9")
        e("K_W8S:")
        e("  s_waitcnt vmcnt(8)")
        e("K_W9:")
        c_pv(VA, None)
        e(f"  s_cmp_ge_u32 s{IDXA}, 1024")
        e("  s_cbranch_scc1 K_NV")
        fifo_wait("K_FV", 12)
        vchunk(VA, 6)
        tl(5)
        fifo_add(12)
        e("K_NV:")
        if not OPT["pf"]:
            x_loads("L")
            h_phase("L")
        if OPT["pf"] == 2:
            wo_once("L")
        e(f"  s_cmp_lt_u32 s{IDXA}, 1024")
        e("  s_cbranch_scc1 K_LOOP")
    if OPT["dy"]:
        gen_loop_dy()
    elif OPT["sp"]:
        gen_loop_sp()
    elif OPT["T"]:
        e(f"  s_lshl_b32 s75, s{SB}, 3")
        e(f"  s_add_u32 s75, s75, s{SG}")
        e(f"  s_cmp_lt_u32 s75, {OPT['T']}")
        e("  s_cbranch_scc1 K_LOOPlo")
        POL["k"] = "" if OPT["phi"] & 1 else nt
        POL["v"] = "" if OPT["phi"] & 2 else nt
        gen_loop("hi", False)
        POL["k"] = "" if OPT["plo"] & 1 else nt
        POL["v"] = "" if OPT["plo"] & 2 else nt
        gen_loop("lo", True)
    else:
        gen_loop("", True)
    e("K_EXIT:")
    if OPT["prof"] == 1: stamp(4)
    tl(OPT["prof"])
    tl_dump()
    if not OPT["pf"]:
        e("  s_cmp_eq_u32 s27, 0")
        e("  s_cbranch_scc1 K_X0")
        x_loads("E")
        e("  s_mov_b32 s27, 1")
        e("  s_waitcnt vmcnt(0)")
        h_phase("E")
        e("K_X0:")
    if OPT["pf"] == 2:
        wo_once("E")
    elif OPT["pf"]:
        pass
    elif OPT["fd"]:
        fd_exit()
    else:
        e("  s_cmp_ge_u32 s2, 224")
        e("  s_cbranch_scc1 K_HSK")
        if OPT["x2"]:
            e("  v_lshlrev_b32 v248, 4, v12")
            e("  v_lshl_add_u32 v248, v13, 10, v248")
            e("  s_lshr_b32 s75, s2, 3")
            e("  s_lshl_b32 s75, s75, 13")
            e(f"  s_add_u32 s75, s75, {WS_H2}")
        else:
            e("  v_lshrrev_b32 v5, 1, v12")
            e("  v_lshlrev_b32 v248, 3, v5")
            e("  s_lshr_b32 s75, s2, 3")
            e("  s_lshl_b32 s75, s75, 8")
            e(f"  s_add_u32 s75, s75, {WS_HG}")
        e("  v_add_u32 v248, s75, v248")
        h_loads()
        e("K_HSK:")
    e(f"  v_mov_b32 v{T1}, v{L_}")
    e("  s_nop 1")
    e(f"  v_permlane16_swap_b32 v{L_}, v{T1}")
    e("  s_nop 1")
    e(f"  v_add_f32 v{L_}, v{L_}, v{T1}")
    e(f"  v_mov_b32 v{T1}, v{L_}")
    e("  s_nop 1")
    e(f"  v_permlane32_swap_b32 v{L_}, v{T1}")
    e("  s_nop 1")
    e(f"  v_add_f32 v{L_}, v{L_}, v{T1}")
    e("  v_cmp_gt_u32 vcc, 4, v3")
    e("  s_and_saveexec_b64 s[78:79], vcc")
    if OPT["cb"]:
        e("  v_lshlrev_b32 v5, 4, v2")
        e("  v_lshl_add_u32 v5, v3, 2, v5")
        e("  v_add_u32 v5, v4, v5")
        e("  v_mul_u32_u24 v5, 144, v5")
        e("  s_nop 4")
        for t in range(8):
            e(f"  ds_write_b128 v5, v[{ACC+4*t}:{ACC+4*t+3}] offset:{L_O + t*16}")
    else:
        e("  v_lshlrev_b32 v5, 11, v2")
        e("  v_lshl_add_u32 v5, v3, 9, v5")
        e("  v_lshl_add_u32 v5, v4, 7, v5")
        e("  s_nop 4")
        for t in range(8):
            for r in range(4):
                e(f"  ds_write_b32 v5, v{ACC+4*t+r} offset:{L_O + (r*8+t)*4}")
    e("  v_cmp_gt_u32 vcc, 4, v1")
    e("  s_and_b64 exec, exec, vcc")
    e("  v_lshlrev_b32 v6, 5, v2")
    e("  v_lshl_add_u32 v6, v3, 3, v6")
    e(f"  ds_write_b32 v6, v{M_} offset:{L_ML}")
    e(f"  ds_write_b32 v6, v{L_} offset:{L_ML+4}")
    e("  s_mov_b64 exec, s[78:79]")
    if OPT["pf"] == 2:
        fd_at_exit()
    e("  s_waitcnt lgkmcnt(0)")
    e("  s_barrier")
    tl6(2)
    e("  v_lshrrev_b32 v5, 7, v0")
    e("  v_and_b32 v6, 127, v0")
    e("  v_lshlrev_b32 v7, 3, v5")
    for w in range(8):
        e(f"  ds_read_b64 v[{160+2*w}:{161+2*w}], v7 offset:{L_ML + w*32}")
    if OPT["cb"]:
        e("  v_lshrrev_b32 v8, 5, v0")
        e("  v_mul_u32_u24 v8, 144, v8")
        if OPT["t2"]:
            e("  v_and_b32 v9, 24, v0")
            e("  v_and_b32 v10, 1, v0")
            e("  v_lshl_add_u32 v9, v10, 2, v9")
            e("  v_bfe_u32 v10, v0, 1, 2")
            e("  v_add_u32 v9, v10, v9")
        else:
            e("  v_and_b32 v9, 31, v0")
        e("  v_lshl_add_u32 v8, v9, 2, v8")
        for w in range(8):
            e(f"  ds_read_b32 v{176+w}, v8 offset:{L_O + w*2304}")
    else:
        e("  v_lshlrev_b32 v8, 9, v5")
        e("  v_lshl_add_u32 v8, v6, 2, v8")
        for w in range(8):
            e(f"  ds_read_b32 v{176+w}, v8 offset:{L_O + w*2048}")
    e("  s_waitcnt lgkmcnt(0)")
    e("  v_max3_f32 v184, v160, v162, v164")
    e("  v_max3_f32 v185, v166, v168, v170")
    e("  v_max3_f32 v184, v184, v172, v174")
    e("  v_max_f32 v184, v184, v185")
    e("  v_mov_b32 v186, 0")
    e("  v_mov_b32 v187, 0")
    for w in range(8):
        e(f"  v_sub_f32 v185, v{160+2*w}, v184")
        e(f"  v_mul_f32 v185, s{SC}, v185")
        e("  v_exp_f32 v185, v185")
        e("  s_nop 0")
        e(f"  v_fmac_f32 v186, v185, v{161+2*w}")
        e(f"  v_fmac_f32 v187, v185, v{176+w}")
    e(f"  s_lshl_b32 s75, s{SB}, 5")
    e(f"  s_lshl_b32 s76, s{SG}, 2")
    e("  s_add_u32 s75, s75, s76")
    e("  s_lshl_b32 s75, s75, 4")
    e(f"  s_add_u32 s75, s75, s{SSPL}")
    e("  v_lshlrev_b32 v7, 4, v5")
    e("  v_add_u32 v7, s75, v7")
    e("  v_lshlrev_b32 v8, 10, v7")
    e("  v_lshl_add_u32 v8, v6, 3, v8")
    e(f"  s_mov_b32 s75, {WS_OG}")
    e("  v_mov_b32 v188, v187")
    e("  v_mov_b32 v189, s26")
    e(f"  buffer_store_dwordx2 v[188:189], v8, s[{SWS}:{SWS+3}], s75 offen sc1")
    e("  v_cmp_eq_u32 vcc, 0, v6")
    e("  s_and_saveexec_b64 s[78:79], vcc")
    e("  v_lshlrev_b32 v7, 4, v7")
    e("  v_mov_b32 v185, v186")
    e("  v_mov_b32 v186, s26")
    e(f"  s_mov_b32 s75, {WS_MG}")
    e(f"  buffer_store_dwordx3 v[184:186], v7, s[{SWS}:{SWS+3}], s75 offen sc1")
    e("  s_mov_b64 exec, s[78:79]")
    if OPT["prof"] == 1: stamp(5)
    tl6(3)

    def prod(wregs, vecaddr_rows, accbase, nrows):
        for r in range(16):
            e(f"  v_mov_b32 v{accbase+r}, 0")
        for i in range(nrows):
            for c in range(4):
                w = wregs + 4 * i + c
                e(f"  v_lshlrev_b32 v160, 16, v{w}")
                e(f"  v_and_b32 v161, 0xffff0000, v{w}")
                e(f"  v_fmac_f32 v{accbase+2*c}, v160, v{168+2*i}")
                e(f"  v_fmac_f32 v{accbase+1+2*c}, v161, v{168+2*i}")
                e(f"  v_fmac_f32 v{accbase+8+2*c}, v160, v{169+2*i}")
                e(f"  v_fmac_f32 v{accbase+9+2*c}, v161, v{169+2*i}")
        dpp_steps(list(range(accbase, accbase + 16)), ["row_ror:8"])

    def reduce_store(lbase, label, snc):
        e("  v_lshlrev_b32 v5, 2, v2")
        e("  v_add_u32 v5, v5, v4")
        e("  v_lshlrev_b32 v5, 9, v5")
        e("  v_and_b32 v6, 7, v1")
        e("  v_lshl_add_u32 v5, v6, 5, v5")
        e("  v_and_b32 v6, 8, v1")
        e("  v_cmp_eq_u32 vcc, 0, v6")
        e("  s_and_saveexec_b64 s[78:79], vcc")
        e(f"  ds_write_b128 v5, v[180:183] offset:{lbase}")
        e(f"  ds_write_b128 v5, v[184:187] offset:{lbase+16}")
        e(f"  ds_write_b128 v5, v[188:191] offset:{lbase+256}")
        e(f"  ds_write_b128 v5, v[192:195] offset:{lbase+256+16}")
        e("  s_mov_b64 exec, s[78:79]")
        e("  s_waitcnt lgkmcnt(0)")
        e("  s_barrier")
        e("  s_cmp_ge_u32 s3, 2")
        e(f"  s_cbranch_scc1 {label}")
        e("  v_lshlrev_b32 v5, 2, v0")
        for p in range(32):
            e(f"  ds_read_b32 v{204+p}, v5 offset:{lbase + p*512}")
        e("  s_waitcnt lgkmcnt(0)")
        for p in range(1, 31, 2):
            e(f"  v_add_f32 v{204+p}, v{204+p}, v{205+p}")
        e("  v_add_f32 v204, v204, v235")
        for p in range(1, 31, 2):
            e(f"  v_add_f32 v204, v204, v{204+p}")
        e("  v_lshlrev_b32 v5, 12, v2")
        e("  v_lshl_add_u32 v5, v1, 3, v5")
        e(f"  s_lshl_b32 s76, s{snc}, 9")
        e(f"  s_add_u32 s75, s75, s76")
        e("  v_mov_b32 v205, s26")
        e(f"  buffer_store_dwordx2 v[204:205], v5, s[{SWS}:{SWS+3}], s75 offen sc1")
        e(f"{label}:")

    if not OPT["fd"] and not OPT["pf"]:
        e("  s_cmp_ge_u32 s2, 224")
        e("  s_cbranch_scc1 K_T4")
        e(f"  s_mov_b32 s74, {OPT['bnd']:#x}")
        e("  s_waitcnt vmcnt(1)")
        e("K_HR:")
        e("  v_cmp_ne_u32 vcc, s26, v%d" % (246 if OPT["x2"] else 245))
        e("  v_cmp_ne_u32 s[78:79], s26, v247")
        e("  s_or_b64 vcc, vcc, s[78:79]")
        e("  s_cmp_eq_u64 vcc, 0")
        e("  s_cbranch_scc1 K_HOK")
        h_loads()
        e("  s_waitcnt vmcnt(0)")
        e("  s_sub_u32 s74, s74, 1")
        e("  s_cmp_lg_u32 s74, 0")
        e("  s_cbranch_scc1 K_HR")
        e("K_HOK:")
        if OPT["x2"]:
            dpp_steps([244, 245], ["quad_perm:[1,0,3,2]", "quad_perm:[2,3,0,1]", "row_half_mirror"])
            e("  v_max_f32 v168, 0, v244")
            e("  v_max_f32 v169, 0, v245")
            round_bf16(168, 168)
            round_bf16(169, 169)
        else:
            e("  v_and_b32 v5, 1, v12")
            e("  v_cmp_eq_u32 vcc, 1, v5")
            e("  v_lshlrev_b32 v168, 16, v244")
            e("  v_and_b32 v5, 0xffff0000, v244")
            e("  v_lshlrev_b32 v169, 16, v246")
            e("  v_and_b32 v6, 0xffff0000, v246")
            e("  v_cndmask_b32 v168, v168, v5, vcc")
            e("  v_cndmask_b32 v169, v169, v6, vcc")
        prod(W2, None, 180, 1)
        e("  s_lshr_b32 s75, s2, 3")
        e("  s_lshl_b32 s75, s75, 13")
        e(f"  s_add_u32 s75, s75, {WS_GG}")
        reduce_store(L_FP, "K_T3B", SNC)
    e("K_T4:")
    if OPT["t2"]:
        tail2()
        return_early = True
    else:
        return_early = False
    if return_early:
        pass
    elif not OPT["mf"]:
        e("  s_cmp_ge_u32 s3, 4")
        e("  s_cbranch_scc1 K_T6")
        e("  v_lshrrev_b32 v6, 7, v0")
        e("  v_and_b32 v7, 127, v0")
        e("  v_lshlrev_b32 v8, 5, v6")
        e(f"  v_add_u32 v8, s{SHEAD}, v8")
        e("  v_lshlrev_b32 v9, 8, v8")
        e("  v_lshlrev_b32 v10, 14, v8")
        e("  v_lshl_add_u32 v10, v7, 3, v10")
        e(f"  s_mov_b32 s76, {WS_MG}")
        def iss2(sp):
            e(f"  s_mov_b32 s75, {WS_OG + 4096*(sp>>2)}")
            bits = {0:"", 1:" sc1", 2:" sc0", 3:" sc0 sc1", 4:" nt", 5:" sc0 nt"}[OPT["p2"]]
            e(f"  buffer_load_dwordx2 v[{16+2*sp}:{17+2*sp}], v10, s[{SWS}:{SWS+3}], s75 offen offset:{(sp&3)*1024}{bits}")
            e(f"  buffer_load_dwordx3 v[{48+4*sp}:{50+4*sp}], v9, s[{SWS}:{SWS+3}], s76 offen offset:{sp*16}{bits}")
        mpoll("K_P2", 16, iss2, lambda sp: [17+2*sp, 50+4*sp], OPT["thr"])
        if OPT["prof"] == 1: stamp(6)
        M = lambda sp: 48+4*sp
        e(f"  v_max3_f32 v112, v{M(0)}, v{M(1)}, v{M(2)}")
        for sp in range(3, 15, 2):
            e(f"  v_max3_f32 v112, v112, v{M(sp)}, v{M(sp+1)}")
        e(f"  v_max_f32 v112, v112, v{M(15)}")
        e("  v_mov_b32 v113, 0")
        e("  v_mov_b32 v114, 0")
        for sp in range(16):
            e(f"  v_sub_f32 v{M(sp)}, v{M(sp)}, v112")
            e(f"  v_mul_f32 v{M(sp)}, s{SC}, v{M(sp)}")
            e(f"  v_exp_f32 v{M(sp)}, v{M(sp)}")
        e("  s_nop 0")
        for sp in range(16):
            e(f"  v_fmac_f32 v113, v{M(sp)}, v{M(sp)+1}")
            e(f"  v_fmac_f32 v114, v{M(sp)}, v{16+2*sp}")
        e("  v_mov_b32 v49, v113")
        e("  v_mov_b32 v50, v114")
        e("  v_rcp_f32 v49, v49")
        e("  s_nop 0")
        e("  v_mul_f32 v50, v50, v49")
        round_bf16(50, 50)
        e("  v_lshlrev_b32 v8, 2, v0")
        e(f"  ds_write_b32 v8, v50 offset:{L_VEC}")
        e("  s_waitcnt lgkmcnt(0)")
        e("K_T6:")
        e("  s_barrier")
        e("  v_lshlrev_b32 v5, 2, v12")
        e(f"  ds_read_b32 v168, v5 offset:{L_VEC}")
        e(f"  ds_read_b32 v169, v5 offset:{L_VEC+512}")
        e(f"  ds_read_b32 v170, v5 offset:{L_VEC+256}")
        e(f"  ds_read_b32 v171, v5 offset:{L_VEC+512+256}")
        e("  s_waitcnt lgkmcnt(0)")
        prod(WO, None, 180, 2)
        e(f"  s_lshl_b32 s75, s{SHEAD}, 13")
        e(f"  s_add_u32 s75, s75, {WS_SG}")
        reduce_store(L_SP, "K_T6B", SNO)
    else:
        e("  s_cmp_ge_u32 s3, 4")
        e("  s_cbranch_scc1 K_END")
        e("  s_and_b32 s75, s3, 1")
        e("  s_cmp_eq_u32 s75, 1")
        e(f"  s_cselect_b32 s75, s{SP1}, s{SP0}")
        for ks in range(4):
            for q in range(4):
                e(f"  v_perm_b32 v{112+ks*4+q}, v{80+ks*8+2*q+1}, v{80+ks*8+2*q}, s75")
        e("  v_lshrrev_b32 v6, 7, v0")
        e("  v_and_b32 v7, 127, v0")
        e("  v_lshlrev_b32 v8, 5, v6")
        e(f"  v_add_u32 v8, s{SHEAD}, v8")
        e("  v_lshlrev_b32 v9, 8, v8")
        e("  v_lshlrev_b32 v10, 14, v8")
        e("  v_lshl_add_u32 v10, v7, 3, v10")
        e(f"  s_mov_b32 s76, {WS_MG}")
        def iss2(sp):
            e(f"  s_mov_b32 s75, {WS_OG + 4096*(sp>>2)}")
            e(f"  buffer_load_dwordx2 v[{16+2*sp}:{17+2*sp}], v10, s[{SWS}:{SWS+3}], s75 offen offset:{(sp&3)*1024} sc1")
            e(f"  buffer_load_dwordx3 v[{48+4*sp}:{50+4*sp}], v9, s[{SWS}:{SWS+3}], s76 offen offset:{sp*16} sc1")
        e("  v_and_b32 v11, 1, v3")
        e("  v_lshlrev_b32 v11, 8, v11")
        e("  v_lshl_add_u32 v11, v4, 4, v11")
        e("  v_and_b32 v12, 1, v4")
        e("  v_lshlrev_b32 v13, 12, v12")
        e("  v_lshl_add_u32 v13, v3, 4, v13")
        e("  s_lshr_b32 s75, s3, 1")
        e("  s_lshl_b32 s75, s75, 8")
        e("  s_and_b32 s78, s3, 1")
        e("  s_lshl_b32 s78, s78, 3")
        e("  s_add_u32 s75, s75, s78")
        e(f"  s_lshl_b32 s78, s{SNO}, 9")
        e("  s_add_u32 s75, s75, s78")
        e(f"  s_lshl_b32 s78, s{SHEAD}, 13")
        e("  s_add_u32 s75, s75, s78")
        e(f"  s_add_u32 s75, s75, {WS_SG}")
        e("  v_add_u32 v13, s75, v13")
        if OPT["gate"]:
            GB = [4, 36, 52, 80]
            e("  s_lshr_b32 s72, s3, 1")
            e("  s_lshl_b32 s72, s72, 5")
            e(f"  s_add_u32 s72, s72, s{SHEAD}")
            e("  s_lshl_b32 s72, s72, 8")
            e(f"  s_add_u32 s72, s72, {WS_MG}")
            e(f"  s_mov_b32 s74, {OPT['bnd']:#x}")
            e("K_GT:")
            for i, b_ in enumerate(GB):
                e(f"  s_load_dwordx16 s[{b_}:{b_+15}], s[24:25], s72 offset:{64*i} glc")
            e("  s_mov_b32 s75, 0")
            e("  s_waitcnt lgkmcnt(0)")
            for k in range(16):
                e(f"  s_cmp_eq_u32 s{GB[k>>2] + 4*(k&3) + 2}, s26")
                e("  s_addc_u32 s75, s75, 0")
            e(f"  s_cmp_ge_u32 s75, {16-OPT['gthr']}")
            e("  s_cbranch_scc1 K_GTD")
            if OPT["gsl"]: e(f"  s_sleep {OPT['gsl']}")
            e("  s_sub_u32 s74, s74, 1")
            e("  s_cmp_lg_u32 s74, 0")
            e("  s_cbranch_scc1 K_GT")
            e("K_GTD:")
        mpoll("K_P2", 16, iss2, lambda sp: [17+2*sp, 50+4*sp], OPT["thr"])
        if OPT["prof"] == 1: stamp(6)
        tl6(4)
        M = lambda sp: 48+4*sp
        e(f"  v_max3_f32 v128, v{M(0)}, v{M(1)}, v{M(2)}")
        for sp in range(3, 15, 2):
            e(f"  v_max3_f32 v128, v128, v{M(sp)}, v{M(sp+1)}")
        e(f"  v_max_f32 v128, v128, v{M(15)}")
        e("  v_mov_b32 v129, 0")
        e("  v_mov_b32 v130, 0")
        for sp in range(16):
            e(f"  v_sub_f32 v{M(sp)}, v{M(sp)}, v128")
            e(f"  v_mul_f32 v{M(sp)}, s{SC}, v{M(sp)}")
            e(f"  v_exp_f32 v{M(sp)}, v{M(sp)}")
        e("  s_nop 0")
        for sp in range(16):
            e(f"  v_fmac_f32 v129, v{M(sp)}, v{M(sp)+1}")
            e(f"  v_fmac_f32 v130, v{M(sp)}, v{16+2*sp}")
        e("  v_rcp_f32 v129, v129")
        e("  s_nop 0")
        e("  v_mul_f32 v130, v130, v129")
        e("  v_cvt_pk_bf16_f32 v130, v130, v130")
        if OPT["cb"]:
            e("  v_and_b32 v8, 0xe0, v0")
            e("  v_and_b32 v5, 3, v0")
            e("  v_lshl_add_u32 v8, v5, 3, v8")
            e("  v_bfe_u32 v5, v0, 2, 3")
            e("  v_add_u32 v8, v5, v8")
            e("  v_lshlrev_b32 v8, 1, v8")
        else:
            e("  v_lshlrev_b32 v8, 1, v0")
        e(f"  ds_write_b16 v8, v130 offset:{L_VEC}")
        e("  s_waitcnt lgkmcnt(0)")
        e("  s_barrier")
        for ks in range(4):
            e(f"  ds_read_b128 v[{132+4*ks}:{135+4*ks}], v11 offset:{L_VEC + ks*64}")
        e("  s_waitcnt lgkmcnt(0)")
        for ks in range(4):
            c = "0" if ks == 0 else "v[148:151]"
            e(f"  v_mfma_f32_16x16x32_bf16 v[148:151], v[{132+4*ks}:{135+4*ks}], v[{112+4*ks}:{115+4*ks}], {c}")
        e("  v_cmp_eq_u32 vcc, 1, v12")
        e("  v_mov_b32 v153, s26")
        e("  s_nop 7")
        e("  s_nop 7")
        e("  v_cndmask_b32 v152, v148, v149, vcc")
        e("  s_mov_b64 exec, 0xffffffff")
        e(f"  buffer_store_dwordx2 v[152:153], v13, s[{SWS}:{SWS+3}], 0 offen sc1")
        e("  s_mov_b64 exec, -1")
    if not OPT["t2"]:
        if OPT["prof"] == 1: stamp(7)
        tl6(5)
        e("  s_cmp_ge_u32 s2, 8")
        e("  s_cbranch_scc1 K_END")
        e("  s_cmp_ge_u32 s3, 4")
        e("  s_cbranch_scc1 K_END")
        def gpoll(label, n, base):
            def iss(k):
                e(f"  s_mov_b32 s75, {base + k*8192}")
                e(f"  buffer_load_dwordx2 v[{16+2*k}:{17+2*k}], v10, s[{SWS}:{SWS+3}], s75 offen sc1")
            mpoll(label, n, iss, lambda k: [17+2*k], None)
            for k in range(1, n):
                e(f"  v_add_f32 v16, v16, v{16+2*k}")
        e("  v_and_b32 v5, 1, v2")
        e("  v_lshlrev_b32 v5, 11, v5")
        e("  v_lshl_add_u32 v5, v1, 2, v5")
        e(f"  s_and_b32 s76, s2, 7")
        e(f"  s_lshl_b32 s76, s76, 8")
        e("  v_add_u32 v5, s76, v5")
        e("  v_lshlrev_b32 v10, 1, v5")
        e("  s_cmp_ge_u32 s3, 2")
        e("  s_cbranch_scc1 K_FG")
        e("  v_lshrrev_b32 v6, 1, v5")
        e(f"  buffer_load_ushort v4, v6, s[{SX}:{SX+3}], 0 offen")
        gpoll("K_P3", 32, WS_SG)
        tl6(6)
        round_bf16(16, 16)
        e("  s_barrier")
        e("  v_lshlrev_b32 v7, 2, v0")
        e(f"  ds_read_b32 v8, v7 offset:{L_GX}")
        e("  s_waitcnt lgkmcnt(0)")
        e("  v_mul_f32 v8, v8, v16")
        round_bf16(8, 8)
        e("  v_lshlrev_b32 v4, 16, v4")
        e("  v_add_f32 v8, v8, v4")
        e("  v_cvt_pk_bf16_f32 v8, v8, v8")
        e(f"  buffer_store_short v8, v6, s[{SOUT}:{SOUT+3}], 0 offen")
        e("  s_or_b32 s75, s2, s3")
        e("  s_cmp_lg_u32 s75, 0")
        e("  s_cbranch_scc1 K_END")
        e("  s_mov_b64 exec, 1")
        e(f"  v_mov_b32 v5, {WS_EP}")
        e("  v_mov_b32 v6, s26")
        e(f"  buffer_store_dword v6, v5, s[{SWS}:{SWS+3}], 0 offen")
        e("  s_branch K_END")
        e("K_FG:")
        gpoll("K_P4", 28, WS_GG)
        tl6(6)
        round_bf16(16, 16)
        e("  v_mul_f32 v5, 0xbfb8aa3b, v16")
        e("  v_exp_f32 v5, v5")
        e("  s_nop 0")
        e("  v_add_f32 v5, 1.0, v5")
        e("  v_rcp_f32 v5, v5")
        e("  s_nop 0")
        e("  v_mul_f32 v5, v5, v16")
        round_bf16(5, 5)
        e("  v_and_b32 v7, 127, v0")
        e("  v_lshlrev_b32 v7, 2, v7")
        e(f"  ds_write_b32 v7, v5 offset:{L_GX}")
        e("  s_waitcnt lgkmcnt(0)")
        e("  s_barrier")
    e("K_END:")
    dump_stamps()
    e("  s_endpgm")
    e('.section .rodata,"a"')
    e(".p2align 6")
    e(f".amdhsa_kernel {name}")
    e("  .amdhsa_next_free_vgpr 256")
    e("  .amdhsa_next_free_sgpr 102")
    e("  .amdhsa_accum_offset 256")
    e("  .amdhsa_group_segment_fixed_size 0")
    e("  .amdhsa_kernarg_size 88")
    e("  .amdhsa_user_sgpr_count 2")
    e("  .amdhsa_user_sgpr_kernarg_segment_ptr 1")
    e("  .amdhsa_system_sgpr_workgroup_id_x 1")
    e(".end_amdhsa_kernel")

def main():
    path = f"cdna_kernels/{NAME}.s"
    for a in sys.argv[1:]:
        if "=" in a:
            k, v = a.split("=", 1)
            OPT[k] = (" " + v if v else "") if k == "nt" else int(v)
        else:
            path = a
    e(HEADER.rstrip("\n"))
    lds = 61952 if OPT["x2"] else LDS_SIZE
    e(f"; @launch grid=(256,1,1) block=(512,1,1) lds={lds}")
    e('.amdgcn_target "amdgcn-amd-amdhsa--gfx950"')
    gen()
    open(path, "w").write("\n".join(out) + "\n")

main()
```

```python
import sys

NAME = "recurrent_scan__gqa_block_cached__dense_activation_relu__decode"

HEADER = """; Kernarg layout for this problem (88 bytes, ptrs only, base s[0:1]):
;   offset   0: d_in[0] A_x  shape=(2, 1, 512) dtype=bfloat16 strides=(1024, 1024, 2) contiguous=True
;   offset   8: d_in[1] A_k_cache  shape=(2, 8, 32768, 128) dtype=bfloat16 strides=(67108864, 8388608, 256, 2) contiguous=True
;   offset  16: d_in[2] A_v_cache  shape=(2, 8, 32768, 128) dtype=bfloat16 strides=(67108864, 8388608, 256, 2) contiguous=True
;   offset  24: d_in[3] A_wq  shape=(512, 4096) dtype=bfloat16 strides=(8192, 2) contiguous=True
;   offset  32: d_in[4] A_wo  shape=(4096, 512) dtype=bfloat16 strides=(1024, 2) contiguous=True
;   offset  40: d_in[5] B_x  shape=(2, 1, 512) dtype=bfloat16 strides=(1024, 1024, 2) contiguous=True
;   offset  48: d_in[6] B_w1  shape=(512, 1792) dtype=bfloat16 strides=(3584, 2) contiguous=True
;   offset  56: d_in[7] B_w2  shape=(1792, 512) dtype=bfloat16 strides=(1024, 2) contiguous=True
"""

WS_Q = 0
WS_H = 16384
WS_ML = 32768
WS_O = 65536
WS_P = 1 << 20
WS_G = WS_P + 131072
WS_SIZE = 536870912
WS_QG = 2 << 20
WS_HG = WS_QG + 32768
WS_EP = WS_QG + 65536
WS_QF = WS_QG + 131072
WS_OG = 5 << 20
WS_MG = 6 << 20
WS_SG = WS_MG + 65536
WS_GG = 7 << 20
WS_PC = 3 << 20

L_XN = 0
L_QP = 4096
L_Q = 5632
L_HV = 6656
L_CNT = 7168
L_O = 8192
L_ML = 26624
L_FP = 27136
L_VEC = 0
L_SP = 8192
L_GX = 1024
LDS_SIZE = 43520
L_DQ = 7232
L_WO = 43520
WS_PR = 11 << 20
WS_H2 = 10 << 20

OPT = dict(nt=" nt", sleep=1, prof=0, pre0=0, pace=8, bar0=1, wsc=0, thr=2, p2=1, ilv=0, kx=0, nbuf=1, nw=8, kpl=0, vpl=0, T=0, plo=0, phi=0, mf=1, prex=0, qs=0, warm=0, xb=1, f1=8, np=8, sl=8, psl=8, bnd=0x100000, bar2=1, f2=8, rot=0, map=1, ns=64, fake=0, warmp=0, nsub=4, fifo=1, fw=0, fsl=1, dup=1, rs=1, qsl=0, qp=4, sp=1, nf=10, cb=1, fd=0, fdt=32, gate=0, gthr=2, gsl=1, t2=1, spec=8, psl2=1, pw=1, fsl2=1, fw2=1, obar=0, f1st=1, pf=0, dy=0, dfi=1, x2=0, dq=0, dd=10, cap=32, il2=0, bm=0, ra=4, rb=0, xw=0, th=0, tp=20, tr=28, te=64, tg=20, tlim=600, tm=3, ts=150)

out = []
def e(s=""):
    out.append(s)

def srd(dst, lo, hi, nbytes):
    e(f"  s_mov_b32 s{dst}, s{lo}")
    e(f"  s_and_b32 s{dst+1}, s{hi}, 0xffff")
    e(f"  s_mov_b32 s{dst+2}, {nbytes}")
    e(f"  s_mov_b32 s{dst+3}, 0x00020000")

def dpp_steps(regs, ctrls):
    for ctrl in ctrls:
        e("  s_nop 1")
        for r in regs:
            e(f"  v_add_f32_dpp v{r}, v{r}, v{r} {ctrl} row_mask:0xf bank_mask:0xf")

def swap_steps(regs, tmp):
    for sw in ["v_permlane16_swap_b32", "v_permlane32_swap_b32"]:
        for r, t in zip(regs, tmp):
            e(f"  v_mov_b32 v{t}, v{r}")
        e("  s_nop 1")
        for r, t in zip(regs, tmp):
            e(f"  {sw} v{r}, v{t}")
        e("  s_nop 1")
        for r, t in zip(regs, tmp):
            e(f"  v_add_f32 v{r}, v{r}, v{t}")

def red_steps(regs, tmp, op, ctrls=("row_ror:4", "row_ror:8")):
    for ctrl in ctrls:
        e("  s_nop 1")
        for r in regs:
            e(f"  {op}_dpp v{r}, v{r}, v{r} {ctrl} row_mask:0xf bank_mask:0xf")
    for sw in ["v_permlane16_swap_b32", "v_permlane32_swap_b32"]:
        for r, t in zip(regs, tmp):
            e(f"  v_mov_b32 v{t}, v{r}")
        e("  s_nop 1")
        for r, t in zip(regs, tmp):
            e(f"  {sw} v{r}, v{t}")
        e("  s_nop 1")
        for r, t in zip(regs, tmp):
            e(f"  {op} v{r}, v{r}, v{t}")

def wave_sum(regs, tmp):
    dpp_steps(regs, ["quad_perm:[1,0,3,2]", "quad_perm:[2,3,0,1]", "row_half_mirror", "row_mirror"])
    swap_steps(regs, tmp)

def round_bf16(dst, src):
    e(f"  v_cvt_pk_bf16_f32 v{dst}, v{src}, v{src}")
    e(f"  v_lshlrev_b32 v{dst}, 16, v{dst}")

WS_PROF = 4 << 20
def stamp(k):
    if not OPT["prof"] or OPT["prof"] >= 3:
        return
    e("  s_memrealtime s[80:81]")
    e("  s_waitcnt lgkmcnt(0)")
    e(f"  s_mov_b32 s{92+k}, s80")

WS_PROF3 = 8 << 20
def tl(k=3):
    if OPT["prof"] != k:
        return
    e("  s_memrealtime s[98:99]")
    e("  s_waitcnt lgkmcnt(0)")
    e("  v_writelane_b32 v251, s98, m0")
    e("  s_add_u32 m0, m0, 1")
    if k == 7: e("  s_min_u32 m0, m0, 63")

def tl6(i):
    if OPT["prof"] != 6:
        return
    e(f"  s_mov_b32 m0, {i}")
    tl(6)

def tl_dump(final=False):
    if OPT["prof"] < 3:
        return
    if (OPT["prof"] == 6) != final:
        return
    if final:
        e("  s_mov_b64 exec, -1")
    e("  s_lshl_b32 s82, s2, 3")
    e("  s_add_u32 s82, s82, s3")
    e("  s_lshl_b32 s82, s82, 8")
    e(f"  s_add_u32 s82, s82, {WS_PROF3}")
    e("  v_lshlrev_b32 v5, 2, v1")
    e(f"  buffer_store_dword v251, v5, s[{SWS}:{SWS+3}], s82 offen")

def dump_stamps():
    if not OPT["prof"]:
        return
    if OPT["prof"] >= 3:
        tl6(7)
        tl_dump(True)
        e("K_END2:")
        return
    e("  s_cmp_ge_u32 s3, 2")
    e("  s_cbranch_scc1 K_END2")
    e("  s_cmp_ge_u32 s2, 256")
    e("  s_cbranch_scc1 K_END2")
    stamp(8)
    e("  s_lshl_b32 s82, s2, 1")
    e("  s_add_u32 s82, s82, s3")
    e("  s_lshl_b32 s82, s82, 6")
    e(f"  s_add_u32 s82, s82, {WS_PROF}")
    e("  s_mov_b64 exec, 1")
    e("  v_mov_b32 v6, 0")
    for k in range(9):
        e(f"  v_mov_b32 v5, s{92+k}")
        e(f"  buffer_store_dword v5, v6, s[{SWS}:{SWS+3}], s82 offen offset:{k*4}")
    e("K_END2:")

SX, SK, SV, SWQ, SW1, SWO, SW2, SWS, SDBG, SOUT = 28, 60, 64, 40, 44, 48, 52, 20, 999, 32
SC, SP0, SP1 = 68, 69, 70
IDXA, IDXB = 72, 73
SG, SR, SB, SSPL, SNC, SHEAD = 86, 87, 88, 89, 90, 91
SNO, SCG, SHC = 83, 84, 85

def poll(label, nlanes, voff, target, tmpv):
    e(f"  s_mov_b64 exec, {(1<<nlanes)-1:#x}")
    e("  s_mov_b32 s74, 0x400000")
    e(f"{label}:")
    e(f"  buffer_load_dword v{tmpv}, v{voff}, s[{SDBG}:{SDBG+3}], 0 offen sc1")
    e("  s_waitcnt vmcnt(0)")
    e(f"  v_cmp_ne_u32 vcc, {target}, v{tmpv}")
    e("  s_cmp_eq_u64 vcc, 0")
    e(f"  s_cbranch_scc1 {label}_DONE")
    if OPT["sleep"]:
        e(f"  s_sleep {OPT['sleep']}")
    e("  s_sub_u32 s74, s74, 1")
    e("  s_cmp_lg_u32 s74, 0")
    e(f"  s_cbranch_scc1 {label}")
    e(f"{label}_DONE:")
    e("  s_mov_b64 exec, -1")

def mpoll(label, n, issue, tags, thr):
    full = (1 << n) - 1
    e("  s_not_b32 s75, s26")
    for k in range(n):
        for x in tags(k):
            e(f"  v_mov_b32 v{x}, s75")
    e("  s_mov_b32 s77, 0")
    e(f"  s_mov_b32 s74, {OPT['bnd']:#x}")
    e(f"{label}:")
    for k in range(n):
        e(f"  s_bitcmp1_b32 s77, {k}")
        e(f"  s_cbranch_scc1 {label}S{k}")
        issue(k)
        e(f"{label}S{k}:")
    if thr is not None:
        e(f"  s_xor_b32 s75, s77, {full:#x}")
        e("  s_bcnt1_i32_b32 s75, s75")
        e(f"  s_cmp_le_u32 s75, {thr}")
        e(f"  s_cbranch_scc1 {label}F")
        e("  s_waitcnt vmcnt(0)")
        e(f"{label}F:")
    if OPT["sleep"]:
        e(f"  s_sleep {OPT['sleep']}")
    for k in range(n):
        t = tags(k)
        e(f"  v_cmp_eq_u32 vcc, s26, v{t[0]}")
        for x in t[1:]:
            e(f"  v_cmp_eq_u32 s[78:79], s26, v{x}")
            e("  s_and_b64 vcc, vcc, s[78:79]")
        e("  s_cmp_eq_u64 vcc, -1")
        e(f"  s_cselect_b32 s75, {1<<k:#x}, 0")
        e("  s_or_b32 s77, s77, s75")
    e(f"  s_cmp_eq_u32 s77, {full:#x}")
    e(f"  s_cbranch_scc1 {label}_DONE")
    e("  s_sub_u32 s74, s74, 1")
    e("  s_cmp_lg_u32 s74, 0")
    e(f"  s_cbranch_scc1 {label}")
    e(f"{label}_DONE:")
    e("  s_waitcnt vmcnt(0)")

def tail2():
    B = OPT['bnd']
    if OPT["obar"]:
        e("  s_barrier")
    e("  s_cmp_%s_u32 s3, 4" % ("lt" if OPT["pf"] else "ge"))
    e("  s_cbranch_scc1 T_NW")
    e("  s_and_b32 s75, s3, 1")
    e("  s_cmp_eq_u32 s75, 1")
    e(f"  s_cselect_b32 s75, s{SP1}, s{SP0}")
    if OPT["x2"]:
        e("  v_mul_u32_u24 v11, 1152, v4")
        e("  v_lshl_add_u32 v11, v3, 2, v11")
        e("  s_bfe_u32 s76, s3, 0x10001")
        e("  s_lshl_b32 s76, s76, 6")
        e("  v_add_u32 v11, s76, v11")
        for ks in range(4):
            for jj in range(8):
                e(f"  ds_read_b32 v{80+ks*8+jj}, v11 offset:{L_WO + (ks*32+jj)*144}")
        e("  s_waitcnt lgkmcnt(0)")
    for ks in range(4):
        for q in range(4):
            e(f"  v_perm_b32 v{112+ks*4+q}, v{80+ks*8+2*q+1}, v{80+ks*8+2*q}, s75")
    e("  v_and_b32 v11, 1, v3")
    e("  v_lshlrev_b32 v11, 8, v11")
    e("  v_lshl_add_u32 v11, v4, 4, v11")
    e("  v_and_b32 v12, 1, v4")
    e("  v_lshlrev_b32 v13, 12, v12")
    e("  v_lshl_add_u32 v13, v3, 4, v13")
    e("  s_bfe_u32 s75, s3, 0x10001")
    e("  s_lshl_b32 s75, s75, 8")
    e("  s_and_b32 s78, s3, 1")
    e("  s_lshl_b32 s78, s78, 3")
    e("  s_add_u32 s75, s75, s78")
    e(f"  s_lshl_b32 s78, s{SNO}, 9")
    e("  s_add_u32 s75, s75, s78")
    e(f"  s_lshl_b32 s78, s{SHEAD}, 13")
    e("  s_add_u32 s75, s75, s78")
    e(f"  s_add_u32 s75, s75, {WS_SG}")
    e("  v_add_u32 v13, s75, v13")
    e("T_NW:")
    e("  v_and_b32 v5, 3, v1")
    e("  v_lshrrev_b32 v6, 2, v1")
    e("  s_lshr_b32 s75, s3, 2")
    e("  s_lshl_b32 s75, s75, 5")
    e(f"  s_add_u32 s75, s75, s{SHEAD}")
    e("  s_lshl_b32 s76, s75, 8")
    e("  v_lshlrev_b32 v9, 4, v6")
    e("  v_add_u32 v9, s76, v9")
    e("  s_lshl_b32 s76, s75, 14")
    e("  s_and_b32 s75, s3, 3")
    e("  s_lshl_b32 s75, s75, 8")
    e("  s_add_u32 s76, s76, s75")
    e("  v_lshlrev_b32 v10, 10, v6")
    e("  v_lshl_add_u32 v10, v5, 4, v10")
    e("  v_add_u32 v10, s76, v10")
    e("  s_not_b32 s75, s26")
    for r in [17, 19, 21, 23, 25, 27, 29, 31, 34]:
        e(f"  v_mov_b32 v{r}, s75")
    e("  s_mov_b64 s[76:77], -1")
    e("  s_mov_b64 s[78:79], -1")
    e(f"  s_mov_b32 s72, {WS_MG}")
    e(f"  s_mov_b32 s73, {WS_OG}")
    e(f"  s_mov_b32 s74, {B:#x}")
    e(f"  s_mov_b32 s84, {64 if OPT['f1st'] else OPT['spec']}")
    e("T_P:")
    e("  s_mov_b64 exec, s[76:77]")
    e("  s_cbranch_execz T_P1")
    e(f"  buffer_load_dwordx3 v[32:34], v9, s[{SWS}:{SWS+3}], s72 offen sc1")
    e("T_P1:")
    e("  s_or_b64 s[80:81], s[76:77], s[78:79]")
    e("  s_bcnt1_i32_b64 s75, s[80:81]")
    e("  s_andn2_b64 s[80:81], s[78:79], s[76:77]")
    e(f"  s_cmp_le_u32 s75, s84")
    e(f"  s_mov_b32 s84, {OPT['spec']}")
    e("  s_cselect_b64 exec, s[78:79], s[80:81]")
    e("  s_cbranch_execz T_P2")
    for i in range(4):
        e(f"  buffer_load_dwordx4 v[{16+4*i}:{19+4*i}], v10, s[{SWS}:{SWS+3}], s73 offen offset:{64*i} sc1")
    e("T_P2:")
    e("  s_mov_b64 exec, -1")
    if OPT["pw"] == 1:
        e("  s_waitcnt vmcnt(0)")
    else:
        e(f"  s_cmp_le_u32 s75, {OPT['spec']}")
        e("  s_cbranch_scc1 T_P3")
        e("  s_waitcnt vmcnt(0)")
        e("T_P3:")
        e(f"  s_waitcnt vmcnt({OPT['pw']})")
    if OPT["psl2"]: e(f"  s_sleep {OPT['psl2']}")
    e("  v_cmp_ne_u32 s[76:77], s26, v34")
    e("  v_cmp_ne_u32 s[78:79], s26, v17")
    for r in [19, 21, 23, 25, 27, 29, 31]:
        e(f"  v_cmp_ne_u32 vcc, s26, v{r}")
        e("  s_or_b64 s[78:79], s[78:79], vcc")
    e("  s_or_b64 s[80:81], s[76:77], s[78:79]")
    e("  s_cmp_eq_u64 s[80:81], 0")
    e("  s_cbranch_scc1 T_PD")
    e("  s_sub_u32 s74, s74, 1")
    e("  s_cmp_lg_u32 s74, 0")
    e("  s_cbranch_scc1 T_P")
    e("T_PD:")
    e("  s_waitcnt vmcnt(0)")
    tl6(4)
    e("  v_mov_b32 v35, v32")
    red_steps([35], [36], "v_max_f32")
    e("  v_sub_f32 v32, v32, v35")
    e(f"  v_mul_f32 v32, s{SC}, v32")
    e("  v_exp_f32 v32, v32")
    e("  s_nop 0")
    e("  v_mul_f32 v33, v33, v32")
    vals = [16, 18, 20, 22, 24, 26, 28, 30]
    for r in vals:
        e(f"  v_mul_f32 v{r}, v{r}, v32")
    red_steps([33] + vals, list(range(36, 45)), "v_add_f32")
    e("  v_rcp_f32 v33, v33")
    e("  s_nop 0")
    for r in vals:
        e(f"  v_mul_f32 v{r}, v{r}, v33")
    for i in range(4):
        e(f"  v_cvt_pk_bf16_f32 v{36+i}, v{16+4*i}, v{18+4*i}")
    e("  s_lshl_b32 s75, s3, 6")
    e("  v_lshl_add_u32 v8, v5, 4, s75")
    e("  s_mov_b64 exec, 0xf")
    e(f"  ds_write_b128 v8, v[36:39] offset:{L_VEC}")
    e("  s_mov_b64 exec, -1")
    e("  s_waitcnt lgkmcnt(0)")
    e("  s_barrier")
    e("  s_cmp_%s_u32 s3, 4" % ("lt" if OPT["pf"] else "ge"))
    e("  s_cbranch_scc1 T_F")
    for ks in range(4):
        e(f"  ds_read_b128 v[{132+4*ks}:{135+4*ks}], v11 offset:{L_VEC + ks*64}")
    e("  s_waitcnt lgkmcnt(0)")
    for ks in range(4):
        c = "0" if ks == 0 else "v[148:151]"
        e(f"  v_mfma_f32_16x16x32_bf16 v[148:151], v[{132+4*ks}:{135+4*ks}], v[{112+4*ks}:{115+4*ks}], {c}")
    e("  v_cmp_eq_u32 vcc, 1, v12")
    e("  v_mov_b32 v153, s26")
    e("  s_nop 7")
    e("  s_nop 7")
    e("  v_cndmask_b32 v152, v148, v149, vcc")
    e("  s_mov_b64 exec, 0xffffffff")
    e(f"  buffer_store_dwordx2 v[152:153], v13, s[{SWS}:{SWS+3}], 0 offen sc1")
    e("  s_mov_b64 exec, -1")
    tl6(5)
    e("T_F:")
    e("  s_cmp_ge_u32 s2, 8")
    e("  s_cbranch_scc1 K_END")
    e("  s_lshr_b32 s75, s3, 2")
    e("  s_lshl_b32 s75, s75, 9")
    e("  s_and_b32 s76, s2, 7")
    e("  s_lshl_b32 s76, s76, 6")
    e("  s_add_u32 s75, s75, s76")
    e("  s_and_b32 s76, s3, 3")
    e("  s_lshl_b32 s76, s76, 4")
    e("  s_add_u32 s75, s75, s76")
    e("  v_lshlrev_b32 v7, 1, v5")
    e("  v_add_u32 v7, s75, v7")
    e("  v_lshlrev_b32 v8, 1, v7")
    e(f"  buffer_load_dword v46, v8, s[{SX}:{SX+3}], 0 offen")
    e(f"  buffer_load_dword v47, v8, s[{SX}:{SX+3}], 0 offen offset:16")
    e("  v_lshlrev_b32 v10, 3, v7")
    e("  v_lshl_add_u32 v10, v6, 13, v10")
    def fpoll(lbl, base, m1, dst):
        e("  s_not_b32 s75, s26")
        for r in range(16, 32):
            e(f"  v_mov_b32 v{r}, " + ("s75" if (r & 1) else "0"))
        e("  s_mov_b64 s[76:77], -1")
        e(f"  s_mov_b32 s78, {m1 & 0xffffffff:#x}")
        e(f"  s_mov_b32 s79, {m1 >> 32:#x}")
        e(f"  s_mov_b64 s[82:83], s[78:79]")
        e(f"  s_mov_b32 s72, {base}")
        e(f"  s_mov_b32 s73, {base + 131072}")
        e(f"  s_mov_b32 s74, {B:#x}")
        e(f"{lbl}:")
        e("  s_mov_b64 exec, s[76:77]")
        e(f"  s_cbranch_execz {lbl}1")
        for i in range(2):
            e(f"  buffer_load_dwordx4 v[{16+4*i}:{19+4*i}], v10, s[{SWS}:{SWS+3}], s72 offen offset:{64*i} sc1")
        e(f"{lbl}1:")
        e("  s_mov_b64 exec, s[78:79]")
        e(f"  s_cbranch_execz {lbl}2")
        for i in range(2):
            e(f"  buffer_load_dwordx4 v[{24+4*i}:{27+4*i}], v10, s[{SWS}:{SWS+3}], s73 offen offset:{64*i} sc1")
        e(f"{lbl}2:")
        e("  s_mov_b64 exec, -1")
        e(f"  s_waitcnt vmcnt({0 if OPT['fw2']==1 else OPT['fw2']})")
        if OPT["fsl2"]: e(f"  s_sleep {OPT['fsl2']}")
        e("  v_cmp_ne_u32 s[76:77], s26, v17")
        for r in [19, 21, 23]:
            e(f"  v_cmp_ne_u32 vcc, s26, v{r}")
            e("  s_or_b64 s[76:77], s[76:77], vcc")
        e("  v_cmp_ne_u32 s[78:79], s26, v25")
        for r in [27, 29, 31]:
            e(f"  v_cmp_ne_u32 vcc, s26, v{r}")
            e("  s_or_b64 s[78:79], s[78:79], vcc")
        e("  s_and_b64 s[78:79], s[78:79], s[82:83]")
        e("  s_or_b64 s[80:81], s[76:77], s[78:79]")
        e("  s_cmp_eq_u64 s[80:81], 0")
        e(f"  s_cbranch_scc1 {lbl}D")
        e("  s_sub_u32 s74, s74, 1")
        e("  s_cmp_lg_u32 s74, 0")
        e(f"  s_cbranch_scc1 {lbl}")
        e(f"{lbl}D:")
        e("  s_waitcnt vmcnt(0)")
        for k in range(4):
            e(f"  v_add_f32 v{dst+k}, v{16+2*k}, v{24+2*k}")
        red_steps(list(range(dst, dst+4)), list(range(36, 40)), "v_add_f32")
        for k in range(4):
            round_bf16(dst+k, dst+k)
    fpoll("T_G", WS_GG, (1 << 48) - 1, 40)
    for k in range(4):
        e(f"  v_mul_f32 v{36+k}, 0xbfb8aa3b, v{40+k}")
    for k in range(4):
        e(f"  v_exp_f32 v{36+k}, v{36+k}")
    e("  s_nop 0")
    for k in range(4):
        e(f"  v_add_f32 v{36+k}, 1.0, v{36+k}")
    for k in range(4):
        e(f"  v_rcp_f32 v{36+k}, v{36+k}")
    e("  s_nop 0")
    for k in range(4):
        e(f"  v_mul_f32 v{40+k}, v{36+k}, v{40+k}")
    for k in range(4):
        round_bf16(40+k, 40+k)
    fpoll("T_S", WS_SG, (1 << 64) - 1, 48)
    tl6(6)
    for k in range(4):
        e(f"  v_mul_f32 v{48+k}, v{48+k}, v{40+k}")
    for k in range(4):
        round_bf16(48+k, 48+k)
    for k in range(2):
        e(f"  v_lshlrev_b32 v36, 16, v{46+k}")
        e(f"  v_and_b32 v37, 0xffff0000, v{46+k}")
        e(f"  v_add_f32 v{48+2*k}, v{48+2*k}, v36")
        e(f"  v_add_f32 v{49+2*k}, v{49+2*k}, v37")
        e(f"  v_cvt_pk_bf16_f32 v{48+2*k}, v{48+2*k}, v{49+2*k}")
    e("  s_mov_b64 exec, 0xf")
    e(f"  buffer_store_dword v48, v8, s[{SOUT}:{SOUT+3}], 0 offen")
    e(f"  buffer_store_dword v50, v8, s[{SOUT}:{SOUT+3}], 0 offen offset:16")
    e("  s_or_b32 s75, s2, s3")
    e("  s_cmp_lg_u32 s75, 0")
    e("  s_cbranch_scc1 K_END")
    e("  s_mov_b64 exec, 1")
    e(f"  v_mov_b32 v5, {WS_EP}")
    e("  v_mov_b32 v6, s26")
    e(f"  buffer_store_dword v6, v5, s[{SWS}:{SWS+3}], 0 offen")

def gen():
    nt = OPT["nt"]
    BS = 17 if OPT["ilv"] else 13
    POL = dict(k="" if OPT["kpl"] else nt, v="" if OPT["vpl"] else nt)
    name = NAME + "_kernel"
    e(".text")
    e(f".globl {name}")
    e(".p2align 8")
    e(f".type {name},@function")
    e(f"{name}:")
    KA, VA, KB, VB = 16, 48, 80, 112
    ACC = 144
    QF = 176
    ST = 192
    PF = 200
    TR = 204
    M_, L_, T0, T1, AL, MC = 236, 237, 238, 239, 240, 241
    VKOFF, VVOFF = 242, 243
    WO = 244
    W2 = 252
    e("  s_cmp_ge_u32 s2, 256")
    e("  s_cbranch_scc1 K_END2" if OPT["prof"] else "  s_cbranch_scc1 K_END")
    e("  s_load_dwordx16 s[4:19], s[0:1], 0")
    e("  s_load_dwordx2 s[24:25], s[0:1], 80")
    e("  v_and_b32 v1, 63, v0")
    e("  v_lshrrev_b32 v2, 6, v0")
    e("  v_and_b32 v3, 15, v1")
    e("  v_lshrrev_b32 v4, 4, v1")
    e("  v_mov_b32 v248, 0")
    e("  v_readfirstlane_b32 s3, v2")
    def derive():
        e(f"  s_and_b32 s{SG}, s2, 7")
        e(f"  s_lshr_b32 s{SR}, s2, 3")
        e(f"  s_and_b32 s{SNO}, s{SR}, 7")
        e(f"  s_lshl_b32 s{SCG}, s{SG}, 5")
        e(f"  s_add_u32 s{SCG}, s{SCG}, s{SR}")
        e(f"  s_lshr_b32 s{SHC}, s{SR}, 3")
        e(f"  s_lshl_b32 s{SHC}, s{SHC}, 6")
        e(f"  s_lshl_b32 s74, s{SG}, 3")
        e(f"  s_add_u32 s{SHC}, s{SHC}, s74")
        e(f"  s_add_u32 s{SHC}, s{SHC}, s{SNO}")
        e(f"  s_lshr_b32 s{SB}, s{SR}, 4")
        e(f"  s_and_b32 s{SSPL}, s{SR}, 15")
        e(f"  s_and_b32 s{SNC}, s2, 7")
        e(f"  s_lshr_b32 s{SHEAD}, s{SR}, 3")
        e(f"  s_lshl_b32 s74, s{SG}, 2")
        e(f"  s_add_u32 s{SHEAD}, s{SHEAD}, s74")
        if OPT["map"]:
            e(f"  s_lshr_b32 s{SB}, s2, 7")
            e(f"  s_lshr_b32 s{SG}, s2, 4")
            e(f"  s_and_b32 s{SG}, s{SG}, 7")
            e(f"  s_and_b32 s{SSPL}, s2, 15")
        e(f"  s_lshl_b32 s93, s{SB}, 3")
        e(f"  s_add_u32 s93, s93, s{SG}")
        e(f"  s_mul_i32 s93, s93, {OPT['nsub']}")
        e(f"  s_and_b32 s74, s3, {OPT['nsub']-1}")
        e(f"  s_add_u32 s93, s93, s74")
        e(f"  s_lshl_b32 s93, s93, 8")
        e(f"  s_add_u32 s93, s93, {WS_PC}")
        e(f"  s_mul_i32 s92, s74, {(1024-16*OPT['ns'])//OPT['nsub']}")
        e(f"  s_add_u32 s92, s92, {16*OPT['ns']}")
        e(f"  s_mul_i32 s94, s{SSPL}, {OPT['ns']}")
        if OPT["il2"]:
            G = 1 << OPT["il2"]
            e(f"  s_lshr_b32 s94, s{SSPL}, {OPT['il2']}")
            e(f"  s_lshl_b32 s94, s94, {OPT['il2']+6}")
            e(f"  s_and_b32 s74, s{SSPL}, {G-1}")
            e(f"  s_add_u32 s94, s94, s74")
        e("  s_mov_b32 s95, 0")
        if OPT["bm"] & 1:
            e(f"  s_mul_i32 s95, s{SSPL}, {OPT['ra']}")
            e(f"  s_lshr_b32 s74, s2, 4")
            e(f"  s_mul_i32 s74, s74, {OPT['rb']}")
            e(f"  s_add_u32 s95, s95, s74")
    def mapidx(src):
        G = OPT["il2"]
        if OPT["bm"] & 2:
            e(f"  s_and_b32 s75, s{src}, 7")
            e(f"  s_lshl_b32 s75, s75, 3")
            e(f"  s_lshr_b32 s76, s{src}, 3")
            e(f"  s_or_b32 s75, s75, s76")
            src = 75
        if OPT["bm"] & 1:
            e(f"  s_add_u32 s75, s{src}, s95")
            e(f"  s_and_b32 s75, s75, 63")
            src = 75
        if G:
            e(f"  s_lshl_b32 s75, s{src}, {G}")
            src = 75
        e(f"  s_add_u32 s{IDXA}, s{src}, s94")
    derive()
    e(f"  s_lshl_b32 s74, s{SB}, 3")
    e(f"  s_add_u32 s74, s74, s{SG}")
    e("  s_lshl_b32 s74, s74, 23")

    e(f"  s_mov_b32 s{SC}, 0x3e0293ee")
    e(f"  s_mov_b32 s{SP0}, 0x05040100")
    e(f"  s_mov_b32 s{SP1}, 0x07060302")
    e("  s_lshl_b32 s75, s3, 1")
    e(f"  s_sub_u32 s{IDXA}, s75, 2")
    e(f"  s_sub_u32 s{IDXB}, s75, 1")
    if OPT["nbuf"] == 1:
        mapidx(3)
        if OPT["nw"] < 8:
            e(f"  s_cmp_ge_u32 s3, {OPT['nw']}")
            e(f"  s_cselect_b32 s{IDXA}, 64, s{IDXA}")
    e("  v_and_b32 v5, 3, v3")
    e("  v_lshrrev_b32 v6, 2, v3")
    e("  v_lshl_add_u32 v5, v5, 2, v6")
    e("  v_lshlrev_b32 v5, 8, v5")
    e(f"  v_lshl_add_u32 v{VKOFF}, v4, 4, v5")
    e(f"  v_lshlrev_b32 v{VVOFF}, 4, v1")
    if OPT["kx"]:
        e(f"  v_lshlrev_b32 v{VKOFF}, 4, v1")
    e("  s_waitcnt lgkmcnt(0)")
    if not OPT["rs"]:
        e(f"  s_mov_b32 s75, {WS_EP}")
        e("  s_load_dword s26, s[24:25], s75")
    srd(SX, 4, 5, 2048)
    srd(SWQ, 10, 11, 512 * 4096 * 2)
    srd(SWS, 24, 25, WS_SIZE)
    e(f"  s_add_u32 s{SK}, s6, s74")
    e(f"  s_addc_u32 s{SK+1}, s7, 0")
    e(f"  s_and_b32 s{SK+1}, s{SK+1}, 0xffff")
    if OPT['ilv']:
        e(f"  s_lshl_b32 s75, s{SSPL}, 13")
        e(f"  s_sub_u32 s{SK+2}, {8<<20}, s75")
    else:
        e(f"  s_mov_b32 s{SK+2}, {8<<20}")
    e(f"  s_mov_b32 s{SK+3}, 0x00020000")
    e(f"  s_add_u32 s{SV}, s8, s74")
    e(f"  s_addc_u32 s{SV+1}, s9, 0")
    e(f"  s_and_b32 s{SV+1}, s{SV+1}, 0xffff")
    e(f"  s_mov_b32 s{SV+2}, s{SK+2}")
    e(f"  s_mov_b32 s{SV+3}, 0x00020000")
    e("  s_movk_i32 s71, 4096")
    e("  s_and_b32 s75, s2, 0x78")
    e("  s_or_b32 s75, s75, s3")
    e("  s_cmp_lg_u32 s75, 0")
    e("  s_cbranch_scc1 K_NOINIT")
    e("  s_lshr_b32 s75, s2, 7")
    e("  s_lshl_b32 s75, s75, 3")
    e("  s_and_b32 s76, s2, 7")
    e("  s_add_u32 s75, s75, s76")
    e(f"  s_mul_i32 s75, s75, {OPT['nsub']*256}")
    e(f"  s_add_u32 s75, s75, {WS_PC}")
    e("  v_mov_b32 v5, 0")
    e("  v_lshlrev_b32 v6, 8, v1")
    e(f"  s_mov_b64 exec, {(1<<OPT['nsub'])-1}")
    e(f"  buffer_store_dword v5, v6, s[{SWS}:{SWS+3}], s75 offen sc1")
    e("  s_mov_b64 exec, -1")
    e("K_NOINIT:")
    if OPT["warm"]:
        e(f"  s_lshl_b32 s75, s{SCG}, 6")
        e(f"  s_add_u32 s75, s75, {WS_QG}")
        e("  s_load_dword s98, s[24:25], s75")
        e("  s_add_u32 s75, s75, 16384")
        e("  s_load_dword s99, s[24:25], s75")
    stamp(0)
    if OPT["prof"] >= 3:
        e("  v_mov_b32 v251, 0")
        e("  s_mov_b32 m0, 0")
        tl(OPT["prof"])
    F1 = max(OPT["f1"], OPT["pre0"])
    def kchunk_l(KR, vo):
        r=[]
        if OPT["kx"]:
            for j in range(8):
                so = "0" if j < 4 else "s71"
                r.append(f"  buffer_load_dwordx4 v[{KR+4*j}:{KR+4*j+3}], v{vo}, s[{SK}:{SK+3}], {so} offen offset:{(j&3)*1024}{nt}")
            return r
        for t in range(2):
            for i in range(4):
                so = "0" if t == 0 else "s71"
                r.append(f"  buffer_load_dwordx4 v[{KR+16*t+4*i}:{KR+16*t+4*i+3}], v{vo}, s[{SK}:{SK+3}], {so} offen offset:{i*64}{POL['k']}")
        return r
    def vchunk_l(VR, vo):
        r=[]
        for j in range(8):
            so = "0" if j < 4 else "s71"
            r.append(f"  buffer_load_dwordx4 v[{VR+4*j}:{VR+4*j+3}], v{vo}, s[{SV}:{SV+3}], {so} offen offset:{(j&3)*1024}{POL['v']}")
        return r
    def kchunk(KR, vo):
        for l in kchunk_l(KR, vo): e(l)
    def vchunk(VR, vo):
        for l in vchunk_l(VR, vo): e(l)
    def blkoff(sidx):
        if OPT["rot"]:
            e(f"  s_add_u32 s75, s{sidx}, s73")
            e("  s_and_b32 s75, s75, 63")
            e(f"  s_lshl_b32 s75, s75, {BS}")
            e(f"  s_cmp_lt_u32 s{sidx}, 64")
            e("  s_cselect_b32 s75, s75, 0x100000")
        else:
            e(f"  s_lshl_b32 s75, s{sidx}, {BS}")
    def loads(KR, VR, sidx):
        blkoff(sidx)
        e(f"  v_add_u32 v5, s75, v{VKOFF}")
        e(f"  v_add_u32 v6, s75, v{VVOFF}")
        kchunk(KR, 5)
        vchunk(VR, 6)
    def wo_loads():
        e("  v_lshlrev_b32 v14, 10, v12")
        e("  v_lshl_add_u32 v14, v13, 4, v14")
        if not OPT["mf"]:
            e(f"  s_lshl_b32 s75, s{SNO}, 7")
            e("  v_add_u32 v15, s75, v14")
            e(f"  s_lshl_b32 s75, s{SHEAD}, 17")
            e("  v_add_u32 v15, s75, v15")
            e(f"  buffer_load_dwordx4 v[{WO}:{WO+3}], v15, s[{SWO}:{SWO+3}], 0 offen")
            e("  v_add_u32 v15, 0x10000, v15")
            e(f"  buffer_load_dwordx4 v[{WO+4}:{WO+7}], v15, s[{SWO}:{SWO+3}], 0 offen")
        else:
            lab = f"K_WOS{len(out)}"
            e("  s_cmp_ge_u32 s3, 4")
            e(f"  s_cbranch_scc1 {lab}")
            e("  v_lshlrev_b32 v15, 13, v4")
            e("  v_lshl_add_u32 v15, v3, 2, v15")
            e(f"  s_lshl_b32 s75, s{SHEAD}, 17")
            e(f"  s_lshl_b32 s76, s{SNO}, 7")
            e("  s_add_u32 s75, s75, s76")
            e("  s_lshr_b32 s76, s3, 1")
            e("  s_lshl_b32 s76, s76, 6")
            e("  s_add_u32 s75, s75, s76")
            for ks in range(4):
                for jh in range(2):
                    for j in range(4):
                        e(f"  buffer_load_dword v{80+ks*8+jh*4+j}, v15, s[{SWO}:{SWO+3}], s75 offen offset:{j*1024}")
                    if not (ks == 3 and jh == 1):
                        e(f"  s_add_u32 s75, s75, {4096 if jh == 0 else 32768-4096}")
            e(f"{lab}:")
        e("  s_lshr_b32 s75, s2, 3")
        e("  s_lshl_b32 s75, s75, 16")
        e("  v_add_u32 v15, s75, v14")
        e(f"  s_lshl_b32 s75, s{SNC}, 7")
        e("  v_add_u32 v15, s75, v15")
        e(f"  buffer_load_dwordx4 v[{W2}:{W2+3}], v15, s[{SW2}:{SW2+3}], 0 offen")

    X = 144
    def ln_code():
        for b in range(2):
            for c in range(4):
                e(f"  v_lshlrev_b32 v{X+8*b+2*c}, 16, v{204+4*b+c}")
                e(f"  v_and_b32 v{X+1+8*b+2*c}, 0xffff0000, v{204+4*b+c}")
        for b in range(2):
            t = 160 + 4 * b
            e(f"  v_pk_add_f32 v[{t}:{t+1}], v[{X+8*b}:{X+8*b+1}], v[{X+8*b+2}:{X+8*b+3}]")
            e(f"  v_pk_add_f32 v[{t+2}:{t+3}], v[{X+8*b+4}:{X+8*b+5}], v[{X+8*b+6}:{X+8*b+7}]")
        for b in range(2):
            t = 160 + 4 * b
            e(f"  v_pk_add_f32 v[{t}:{t+1}], v[{t}:{t+1}], v[{t+2}:{t+3}]")
        e("  v_add_f32 v160, v160, v161")
        e("  v_add_f32 v161, v164, v165")
        wave_sum([160, 161], [162, 163])
        e("  v_mul_f32 v160, 0x3b000000, v160")
        e("  v_mul_f32 v161, 0x3b000000, v161")
        bsel = [" op_sel_hi:[1,0]", " op_sel:[0,1] op_sel_hi:[1,1]"]
        for b in range(2):
            for c in range(4):
                t = 168 + 8 * b + 2 * c
                e(f"  v_pk_add_f32 v[{t}:{t+1}], v[{X+8*b+2*c}:{X+8*b+2*c+1}], v[160:161]{bsel[b]} neg_lo:[0,1] neg_hi:[0,1]")
        for b in range(2):
            t = 168 + 8 * b
            e(f"  v_pk_mul_f32 v[{164+2*b}:{165+2*b}], v[{t}:{t+1}], v[{t}:{t+1}]")
        for c in range(1, 4):
            for b in range(2):
                t = 168 + 8 * b + 2 * c
                e(f"  v_pk_fma_f32 v[{164+2*b}:{165+2*b}], v[{t}:{t+1}], v[{t}:{t+1}], v[{164+2*b}:{165+2*b}]")
        e("  v_add_f32 v164, v164, v165")
        e("  v_add_f32 v165, v166, v167")
        wave_sum([164, 165], [162, 163])
        e("  v_mul_f32 v164, 0x3b000000, v164")
        e("  v_mul_f32 v165, 0x3b000000, v165")
        for b in range(2):
            round_bf16(164 + b, 164 + b)
            e(f"  v_add_f32 v{164+b}, 0x3727c5ac, v{164+b}")
            round_bf16(164 + b, 164 + b)
            e(f"  v_sqrt_f32 v{164+b}, v{164+b}")
            e("  s_nop 0")
            round_bf16(164 + b, 164 + b)
            e(f"  v_rcp_f32 v{164+b}, v{164+b}")
            round_bf16(160 + b, 160 + b)
        for b in range(2):
            for c in range(4):
                r = X + 8 * b + 2 * c
                e(f"  v_pk_add_f32 v[{r}:{r+1}], v[{r}:{r+1}], v[160:161]{bsel[b]} neg_lo:[0,1] neg_hi:[0,1]")
            for c in range(4):
                r = X + 8 * b + 2 * c
                e(f"  v_cvt_pk_bf16_f32 v{168+c}, v{r}, v{r+1}")
            for c in range(4):
                r = X + 8 * b + 2 * c
                e(f"  v_lshlrev_b32 v{r}, 16, v{168+c}")
                e(f"  v_and_b32 v{r+1}, 0xffff0000, v{168+c}")
            for c in range(4):
                r = X + 8 * b + 2 * c
                e(f"  v_pk_mul_f32 v[{r}:{r+1}], v[{r}:{r+1}], v[164:165]{bsel[b]}")
            for c in range(4):
                r = X + 8 * b + 2 * c
                e(f"  v_cvt_pk_bf16_f32 v{168+c}, v{r}, v{r+1}")
            for c in range(4):
                r = X + 8 * b + 2 * c
                e(f"  v_lshlrev_b32 v{r}, 16, v{168+c}")
                e(f"  v_and_b32 v{r+1}, 0xffff0000, v{168+c}")
        e("  v_lshlrev_b32 v5, 5, v1")
        for b in range(2):
            e(f"  ds_write_b128 v5, v[{X+8*b}:{X+8*b+3}] offset:{L_XN + b*2048}")
            e(f"  ds_write_b128 v5, v[{X+8*b+4}:{X+8*b+7}] offset:{L_XN + b*2048 + 16}")
        e("  s_waitcnt lgkmcnt(0)")

    def pk_part(w, xr, acc0, acc1, first):
        e(f"  v_lshlrev_b32 v160, 16, v{w}")
        e(f"  v_and_b32 v161, 0xffff0000, v{w}")
        if first:
            e(f"  v_pk_mul_f32 v[{acc0}:{acc0+1}], v[160:161], v[{xr}:{xr+1}] op_sel_hi:[1,0]")
            e(f"  v_pk_mul_f32 v[{acc1}:{acc1+1}], v[160:161], v[{xr}:{xr+1}] op_sel:[0,1] op_sel_hi:[1,1]")
        else:
            e(f"  v_pk_fma_f32 v[{acc0}:{acc0+1}], v[160:161], v[{xr}:{xr+1}], v[{acc0}:{acc0+1}] op_sel_hi:[1,0,1]")
            e(f"  v_pk_fma_f32 v[{acc1}:{acc1+1}], v[160:161], v[{xr}:{xr+1}], v[{acc1}:{acc1+1}] op_sel:[0,1,0] op_sel_hi:[1,1,1]")
    if OPT["rs"]:
        e("  v_lshrrev_b32 v12, 3, v0")
        e("  v_and_b32 v13, 7, v0")
        blkoff(IDXA)
        e(f"  v_add_u32 v228, s75, v{VKOFF}")
        e(f"  v_add_u32 v229, s75, v{VVOFF}")
        pl = kchunk_l(KA, 228) + vchunk_l(VA, 229)
        e("  s_cmp_ge_u32 s3, 4")
        e("  s_cbranch_scc1 K_FLOOD")
        e("  v_lshlrev_b32 v5, 4, v1")
        e(f"  buffer_load_dwordx4 v[204:207], v5, s[{SX}:{SX+3}], 0 offen")
        e(f"  buffer_load_dwordx4 v[208:211], v5, s[{SX}:{SX+3}], 0 offen offset:1024")
        e("  v_lshrrev_b32 v6, 2, v0")
        e("  v_and_b32 v7, 3, v0")
        e("  v_lshlrev_b32 v8, 13, v6")
        e("  v_lshl_add_u32 v8, v7, 3, v8")
        e(f"  s_lshl_b32 s75, s{SCG}, 5")
        e("  v_add_u32 v8, s75, v8")
        for i in range(8):
            if i:
                e(f"  v_add_u32 v8, 0x80000, v8")
            e(f"  buffer_load_dwordx2 v[{212+2*i}:{213+2*i}], v8, s[{SWQ}:{SWQ+3}], 0 offen")
        e("  s_cmp_lg_u32 s3, 0")
        e("  s_cbranch_scc1 K_NOLI")
        e("  v_mov_b32 v8, 8")
        e("  v_mov_b32 v9, 0")
        e("  v_mov_b32 v10, 8")
        e("  v_mov_b32 v11, 8")
        e(f"  v_mov_b32 v5, {L_CNT}")
        e("  s_mov_b64 exec, 1")
        e("  ds_write_b128 v5, v[8:11]")
        e("  v_mov_b32 v8, 0")
        e("  v_mov_b32 v10, 0")
        e("  v_mov_b32 v11, 0")
        e("  ds_write_b128 v5, v[8:11] offset:16")
        e("  ds_write_b128 v5, v[8:11] offset:32")
        e("  s_mov_b64 exec, -1")
        if OPT["dq"]:
            e("  v_lshlrev_b32 v5, 2, v1")
            e(f"  ds_write_b32 v5, v9 offset:{L_DQ}")
        e("  s_waitcnt lgkmcnt(0)")
        e("K_NOLI:")
        e("  s_barrier")
        e(f"  s_mov_b32 s75, {WS_EP}")
        e("  s_load_dword s26, s[24:25], s75")
        e("  v_lshrrev_b32 v230, 3, v1")
        e("  v_lshlrev_b32 v230, 14, v230")
        e("  v_and_b32 v7, 7, v1")
        e("  v_lshl_add_u32 v230, v7, 3, v230")
        e(f"  s_lshl_b32 s75, s{SCG}, 6")
        e(f"  s_add_u32 s75, s75, {WS_QG}")
        e("  v_add_u32 v230, s75, v230")
        e("  s_mul_i32 s75, s3, 192")
        e("  v_lshlrev_b32 v231, 4, v1")
        e("  v_add_u32 v231, s75, v231")
        e("  s_waitcnt vmcnt(8)")
        tl(4)
        ln_code()
        e("  s_add_u32 s26, s26, 1")
        e("  v_lshrrev_b32 v5, 2, v0")
        e("  v_lshlrev_b32 v5, 2, v5")
        for i in range(8):
            e(f"  ds_read2st64_b32 v[{168+2*i}:{169+2*i}], v5 offset0:{(L_XN + i*256)//256} offset1:{(L_XN + i*256 + 2048)//256}")
        e(f"  v_mov_b32 v7, {L_CNT}")
        e("  v_mov_b32 v8, 1")
        e("  v_lshlrev_b32 v9, 3, v1")
        tl(4)
        e("  s_waitcnt vmcnt(0) lgkmcnt(0)")
        tl(4)
        for i in range(8):
            for c in range(2):
                pk_part(212 + 2 * i + c, 168 + 2 * i, 184 + 2 * c, 188 + 2 * c, i == 0)
        dpp_steps(list(range(184, 192)), ["row_ror:4", "row_ror:8"])
        swap_steps(list(range(184, 192)), list(range(204, 212)))
        e("  s_mov_b64 exec, 0xf")
        e(f"  ds_write_b128 v231, v[184:187] offset:{L_QP}")
        e(f"  ds_write_b128 v231, v[188:191] offset:{L_QP+64}")
        e("  s_mov_b64 exec, 1")
        e("  ds_add_rtn_u32 v6, v7, v8 offset:16")
        e("  s_mov_b64 exec, -1")
        e("  s_waitcnt lgkmcnt(0)")
        tl(4)
        e("  v_readfirstlane_b32 s75, v6")
        e("  s_cmp_lg_u32 s75, 3")
        e("  s_cbranch_scc1 K_QW")
        e("  s_mov_b64 exec, 0xffff")
        for w in range(4):
            e(f"  ds_read_b64 v[{160+2*w}:{161+2*w}], v9 offset:{L_QP + w*192}")
        e("  v_mov_b32 v169, s26")
        e("  s_waitcnt lgkmcnt(0)")
        e("  v_pk_add_f32 v[160:161], v[160:161], v[162:163]")
        e("  v_pk_add_f32 v[164:165], v[164:165], v[166:167]")
        e("  v_pk_add_f32 v[160:161], v[160:161], v[164:165]")
        e("  v_cvt_pk_bf16_f32 v168, v160, v161")
        e(f"  buffer_store_dwordx2 v[168:169], v230, s[{SWS}:{SWS+3}], 0 offen sc1")
        e("  s_mov_b64 exec, 1")
        e("  ds_add_u32 v7, v8 offset:20")
        e("  ds_add_u32 v7, v8 offset:24")
        e("  s_mov_b64 exec, -1")
        e("K_QW:")
        e(f"  s_mov_b32 s74, {OPT['bnd']:#x}")
        e("K_QWL:")
        e("  ds_read_b32 v6, v7 offset:20")
        e("  s_waitcnt lgkmcnt(0)")
        e("  v_readfirstlane_b32 s75, v6")
        e("  s_cmp_ge_u32 s75, 5")
        e("  s_cbranch_scc1 K_QGO")
        e("  s_sub_u32 s74, s74, 1")
        e("  s_cmp_lg_u32 s74, 0")
        e("  s_cbranch_scc1 K_QWL")
        e("K_QGO:")
        tl(4)
        PB = [4, 28, 44, 80]
        prs = [b_ + 2*k for b_ in PB for k in range(8)]
        def poll_addr():
            e(f"  s_lshl_b32 s72, s{SB}, 14")
            e(f"  s_lshl_b32 s76, s{SG}, 11")
            e("  s_add_u32 s72, s72, s76")
            e("  s_lshl_b32 s76, s3, 8")
            e("  s_add_u32 s72, s72, s76")
            e(f"  s_add_u32 s72, s72, {WS_QG}")
            e("  s_lshl_b32 s76, s3, 7")
            e("  v_lshlrev_b32 v6, 2, v1")
            e("  v_add_u32 v6, s76, v6")
        def poll_issue():
            for i, b_ in enumerate(PB):
                e(f"  s_load_dwordx16 s[{b_}:{b_+15}], s[24:25], s72 offset:{64*i} glc")
        def poll_check(ok):
            e("  s_waitcnt lgkmcnt(0)")
            e(f"  s_and_b64 s[76:77], s[{prs[0]}:{prs[0]+1}], s[{prs[1]}:{prs[1]+1}]")
            e(f"  s_or_b64 s[78:79], s[{prs[0]}:{prs[0]+1}], s[{prs[1]}:{prs[1]+1}]")
            for r in prs[2:]:
                e(f"  s_and_b64 s[76:77], s[76:77], s[{r}:{r+1}]")
                e(f"  s_or_b64 s[78:79], s[78:79], s[{r}:{r+1}]")
            e("  s_xor_b32 s77, s77, s26")
            e("  s_xor_b32 s79, s79, s26")
            e("  s_or_b32 s77, s77, s79")
            e("  s_cmp_eq_u32 s77, 0")
            e(f"  s_cbranch_scc1 {ok}")
        def poll_save():
            for k, r in enumerate(prs):
                e(f"  v_writelane_b32 v5, s{r}, {k}")
            e("  s_mov_b64 exec, 0xffffffff")
            e(f"  ds_write_b32 v6, v5 offset:{L_Q}")
            e("  s_mov_b64 exec, 1")
            e("  ds_add_u32 v7, v8 offset:24")
            e("  s_mov_b64 exec, -1")
        poll_addr()
        QP = OPT["qp"]
        PS = 16 // QP
        for k in range(QP):
            poll_issue()
            for c in range(k*PS, (k+1)*PS):
                e(pl[c])
                if c in (7, 15): tl(5)
            poll_check(f"K_QP{k}")
        e("  s_branch K_SPL")
        for k in range(QP):
            e(f"K_QP{k}:")
            poll_save()
            if OPT["prof"] == 4:
                e("  s_mov_b32 m0, 8")
            tl(4)
            for c in range((k+1)*PS, 16):
                e(pl[c])
                if c in (7, 15): tl(5)
            e("  s_branch K_QR")
        e("K_FLOOD:")
        if OPT["pf"] == 2:
            e("  s_barrier")
        if OPT["pf"]:
            srd(SW1, 16, 17, 512 * 1792 * 2)
            srd(SWO, 12, 13, 4096 * 512 * 2)
            srd(SW2, 18, 19, 1792 * 512 * 2)
            e("  v_bfe_u32 v9, v0, 1, 7")
            e("  v_and_b32 v10, 1, v0")
            e("  s_movk_i32 s75, 3584")
            e("  v_mul_lo_u32 v11, v9, s75")
            e("  v_lshl_add_u32 v11, v10, 3, v11")
            e(f"  s_lshl_b32 s75, s{SHC}, 4")
            e("  v_add_u32 v11, s75, v11")
            for i in range(4):
                if i:
                    e(f"  v_add_u32 v11, {128*3584}, v11")
                e(f"  buffer_load_dwordx2 v[{112+2*i}:{113+2*i}], v11, s[{SW1}:{SW1+3}], 0 offen")
        if OPT["pf"] == 1:
            e("  v_lshrrev_b32 v9, 3, v1")
            e("  v_and_b32 v10, 7, v1")
            e("  v_lshlrev_b32 v11, 10, v9")
            e("  v_lshl_add_u32 v11, v10, 4, v11")
            e("  s_lshr_b32 s75, s2, 3")
            e("  s_lshl_b32 s75, s75, 16")
            e("  s_and_b32 s76, s3, 3")
            e("  s_lshl_b32 s76, s76, 14")
            e("  s_add_u32 s75, s75, s76")
            e("  s_and_b32 s76, s2, 7")
            e("  s_lshl_b32 s76, s76, 7")
            e("  s_add_u32 s75, s75, s76")
            e(f"  buffer_load_dwordx4 v[120:123], v11, s[{SW2}:{SW2+3}], s75 offen")
            e("  s_add_u32 s75, s75, 8192")
            e(f"  buffer_load_dwordx4 v[124:127], v11, s[{SW2}:{SW2+3}], s75 offen")
        if OPT["pf"] != 2:
            e("  s_barrier")
        e(f"  s_mov_b32 s75, {WS_EP}")
        e("  s_load_dword s26, s[24:25], s75")
        tl(4)
        NPRE = 6 if OPT["pf"] else 0
        for c in range(16):
            if c >= OPT["nf"]:
                e(f"  s_waitcnt vmcnt({OPT['nf']-1})")
            e(pl[c])
            if c in (7, 15): tl(5)
        e(f"  v_mov_b32 v7, {L_CNT}")
        e("  v_mov_b32 v8, 1")
        e("  s_mov_b64 exec, 1")
        e("  ds_add_u32 v7, v8 offset:20")
        e("  s_mov_b64 exec, -1")
        tl(4)
        if OPT["pf"] == 1:
            e("  v_lshlrev_b32 v15, 13, v4")
            e("  v_lshl_add_u32 v15, v3, 2, v15")
            e(f"  s_lshl_b32 s75, s{SHEAD}, 17")
            e(f"  s_lshl_b32 s76, s{SNO}, 7")
            e("  s_add_u32 s75, s75, s76")
            e("  s_bfe_u32 s76, s3, 0x10001")
            e("  s_lshl_b32 s76, s76, 6")
            e("  s_add_u32 s75, s75, s76")
            for ks in range(4):
                for jh in range(2):
                    for j in range(4):
                        e(f"  buffer_load_dword v{80+ks*8+jh*4+j}, v15, s[{SWO}:{SWO+3}], s75 offen offset:{j*1024}")
                    if not (ks == 3 and jh == 1):
                        e(f"  s_add_u32 s75, s75, {4096 if jh == 0 else 32768-4096}")
        e("  s_waitcnt lgkmcnt(0)")
        e("  s_add_u32 s26, s26, 1")
        if OPT["pf"]:
            e(f"  s_mov_b32 s74, {OPT['bnd']:#x}")
            e("K_XW:")
            e("  ds_read_b32 v6, v7 offset:16")
            e("  s_waitcnt lgkmcnt(0)")
            e("  v_readfirstlane_b32 s75, v6")
            e("  s_cmp_ge_u32 s75, 1")
            e("  s_cbranch_scc1 K_XWD")
            e("  s_sleep 1")
            e("  s_sub_u32 s74, s74, 1")
            e("  s_cmp_lg_u32 s74, 0")
            e("  s_cbranch_scc1 K_XW")
            e("K_XWD:")
            e(f"  s_cmp_ge_u32 s{SHC}, 224")
            e("  s_cbranch_scc1 K_HS")
            e("  v_bfe_u32 v5, v0, 1, 7")
            e("  v_lshlrev_b32 v5, 2, v5")
            for i in range(4):
                e(f"  ds_read2st64_b32 v[{144+2*i}:{145+2*i}], v5 offset0:{(L_XN + i*512)//256} offset1:{(L_XN + i*512 + 2048)//256}")
            e("  s_waitcnt vmcnt(%d) lgkmcnt(0)" % (50 if OPT["pf"] == 1 else 16))
            A = 164
            for i in range(4):
                for c in range(2):
                    pk_part(112 + 2*i + c, 144 + 2*i, A + 2*c, A + 4 + 2*c, i == 0)
            dpp_steps(list(range(A, A+8)), ["quad_perm:[2,3,0,1]", "row_ror:4", "row_ror:8"])
            swap_steps(list(range(A, A+8)), list(range(172, 180)))
            e("  s_mul_i32 s75, s3, 192")
            e("  v_lshlrev_b32 v5, 4, v1")
            e("  v_add_u32 v5, s75, v5")
            e("  s_mov_b64 exec, 0x3")
            e(f"  ds_write_b128 v5, v[{A}:{A+3}] offset:{L_QP+128}")
            e(f"  ds_write_b128 v5, v[{A+4}:{A+7}] offset:{L_QP+160}")
            e("  s_mov_b64 exec, 1")
            e(f"  ds_add_rtn_u32 v6, v7, v8 offset:4")
            e("  s_mov_b64 exec, -1")
            e("  s_waitcnt lgkmcnt(0)")
            e("  v_readfirstlane_b32 s75, v6")
            e("  s_cmp_lg_u32 s75, 3")
            e("  s_cbranch_scc1 K_HS")
            e("  v_lshlrev_b32 v5, 3, v1")
            e("  s_mov_b64 exec, 0xff")
            for w in range(4):
                e(f"  ds_read_b64 v[{144+2*w}:{145+2*w}], v5 offset:{L_QP + (4+w)*192 + 128}")
            e("  v_lshrrev_b32 v6, 2, v1")
            e("  s_movk_i32 s75, 7168")
            e("  v_mul_lo_u32 v6, v6, s75")
            e("  v_and_b32 v9, 3, v1")
            e("  v_lshl_add_u32 v6, v9, 3, v6")
            e(f"  s_lshl_b32 s75, s{SHC}, 5")
            e(f"  s_add_u32 s75, s75, {WS_HG}")
            e("  s_waitcnt lgkmcnt(0)")
            e("  v_pk_add_f32 v[144:145], v[144:145], v[146:147]")
            e("  v_pk_add_f32 v[148:149], v[148:149], v[150:151]")
            e("  v_pk_add_f32 v[144:145], v[144:145], v[148:149]")
            e("  v_max_f32 v144, 0, v144")
            e("  v_max_f32 v145, 0, v145")
            e("  v_cvt_pk_bf16_f32 v144, v144, v145")
            e("  v_mov_b32 v145, s26")
            e(f"  buffer_store_dwordx2 v[144:145], v6, s[{SWS}:{SWS+3}], s75 offen sc1")
            e("  s_mov_b64 exec, -1")
            e("K_HS:")
            tl(4)
        if OPT["pf"] == 1:
            e("  s_cmp_ge_u32 s2, 224")
            e("  s_cbranch_scc1 K_GS")
            e("  s_lshr_b32 s72, s2, 3")
            e("  s_lshl_b32 s72, s72, 8")
            e("  s_and_b32 s76, s3, 3")
            e("  s_lshl_b32 s76, s76, 6")
            e("  s_add_u32 s72, s72, s76")
            e(f"  s_add_u32 s72, s72, {WS_HG}")
            e("  s_add_u32 s73, s72, 7168")
            e(f"  s_mov_b32 s74, {OPT['bnd']:#x}")
            e("K_HP:")
            e("  s_load_dwordx16 s[4:19], s[24:25], s72 glc")
            e("  s_load_dwordx16 s[28:43], s[24:25], s73 glc")
            e("  s_waitcnt lgkmcnt(0)")
            hr = [4 + 2*k for k in range(8)] + [28 + 2*k for k in range(8)]
            e(f"  s_and_b64 s[76:77], s[{hr[0]}:{hr[0]+1}], s[{hr[1]}:{hr[1]+1}]")
            e(f"  s_or_b64 s[78:79], s[{hr[0]}:{hr[0]+1}], s[{hr[1]}:{hr[1]+1}]")
            for r in hr[2:]:
                e(f"  s_and_b64 s[76:77], s[76:77], s[{r}:{r+1}]")
                e(f"  s_or_b64 s[78:79], s[78:79], s[{r}:{r+1}]")
            e("  s_xor_b32 s77, s77, s26")
            e("  s_xor_b32 s79, s79, s26")
            e("  s_or_b32 s77, s77, s79")
            e("  s_cmp_eq_u32 s77, 0")
            e("  s_cbranch_scc1 K_HPD")
            e("  s_sub_u32 s74, s74, 1")
            e("  s_cmp_lg_u32 s74, 0")
            e("  s_cbranch_scc1 K_HP")
            e("K_HPD:")
            for k in range(4):
                e(f"  s_mov_b32 s76, {(0xffff << (16*k)) & 0xffffffff if k < 2 else 0:#x}")
                e(f"  s_mov_b32 s77, {(0xffff << (16*(k-2))) & 0xffffffff if k >= 2 else 0:#x}")
                e("  s_mov_b64 exec, s[76:77]")
                for b in range(2):
                    for i in range(2):
                        e(f"  v_mov_b32 v{144+2*b+i}, s{(4 if b == 0 else 28) + 2*(k+4*i)}")
            e("  s_mov_b64 exec, -1")
            e("  v_and_b32 v5, 8, v1")
            e("  v_cmp_ne_u32 vcc, 0, v5")
            for r in range(144, 148):
                e(f"  v_lshlrev_b32 v148, 16, v{r}")
                e(f"  v_and_b32 v149, 0xffff0000, v{r}")
                e(f"  v_cndmask_b32 v{r}, v148, v149, vcc")
            e("  s_waitcnt vmcnt(48)")
            A = 164
            for i in range(2):
                for c in range(4):
                    w = 120 + 4*i + c
                    e(f"  v_lshlrev_b32 v150, 16, v{w}")
                    e(f"  v_and_b32 v151, 0xffff0000, v{w}")
                    for b in range(2):
                        h = 144 + 2*b + i
                        if i == 0:
                            e(f"  v_mul_f32 v{A+8*b+2*c}, v150, v{h}")
                            e(f"  v_mul_f32 v{A+8*b+2*c+1}, v151, v{h}")
                        else:
                            e(f"  v_fmac_f32 v{A+8*b+2*c}, v150, v{h}")
                            e(f"  v_fmac_f32 v{A+8*b+2*c+1}, v151, v{h}")
            dpp_steps(list(range(A, A+16)), ["row_ror:8"])
            swap_steps(list(range(A, A+16)), list(range(180, 196)))
            e("  s_and_b32 s75, s3, 3")
            e("  s_lshl_b32 s75, s75, 9")
            e("  v_lshlrev_b32 v5, 5, v1")
            e("  v_add_u32 v5, s75, v5")
            e("  s_mov_b64 exec, 0xff")
            e(f"  ds_write_b128 v5, v[{A}:{A+3}] offset:{L_FP}")
            e(f"  ds_write_b128 v5, v[{A+4}:{A+7}] offset:{L_FP+16}")
            e(f"  ds_write_b128 v5, v[{A+8}:{A+11}] offset:{L_FP+256}")
            e(f"  ds_write_b128 v5, v[{A+12}:{A+15}] offset:{L_FP+272}")
            e("  s_mov_b64 exec, 1")
            e(f"  ds_add_rtn_u32 v6, v7, v8 offset:28")
            e("  s_mov_b64 exec, -1")
            e("  s_waitcnt lgkmcnt(0)")
            e("  v_readfirstlane_b32 s75, v6")
            e("  s_cmp_lg_u32 s75, 3")
            e("  s_cbranch_scc1 K_GS")
            e("  v_lshlrev_b32 v5, 3, v1")
            for w in range(4):
                e(f"  ds_read_b64 v[{144+2*w}:{145+2*w}], v5 offset:{L_FP + w*512}")
            e("  v_lshrrev_b32 v6, 5, v1")
            e("  v_lshlrev_b32 v6, 12, v6")
            e("  v_and_b32 v9, 31, v1")
            e("  v_lshl_add_u32 v6, v9, 4, v6")
            e("  s_lshr_b32 s75, s2, 3")
            e("  s_lshl_b32 s75, s75, 13")
            e("  s_and_b32 s76, s2, 7")
            e("  s_lshl_b32 s76, s76, 9")
            e("  s_add_u32 s75, s75, s76")
            e(f"  s_add_u32 s75, s75, {WS_GG}")
            e("  s_waitcnt lgkmcnt(0)")
            e("  v_pk_add_f32 v[144:145], v[144:145], v[146:147]")
            e("  v_pk_add_f32 v[148:149], v[148:149], v[150:151]")
            e("  v_pk_add_f32 v[144:145], v[144:145], v[148:149]")
            e("  v_mov_b32 v146, v145")
            e("  v_mov_b32 v145, s26")
            e("  v_mov_b32 v147, s26")
            e(f"  buffer_store_dwordx4 v[144:147], v6, s[{SWS}:{SWS+3}], s75 offen sc1")
            e("K_GS:")
            tl(4)
        poll_addr()
        e("K_SPL:")
        e(f"  s_mov_b32 s74, {OPT['bnd']:#x}")
        e("K_SP:")
        poll_issue()
        poll_check("K_SPD")
        if OPT["qsl"]: e(f"  s_sleep {OPT['qsl']}")
        e("  s_sub_u32 s74, s74, 1")
        e("  s_cmp_lg_u32 s74, 0")
        e("  s_cbranch_scc1 K_SP")
        e("K_SPD:")
        poll_save()
        if OPT["prof"] == 4:
            e("  s_mov_b32 m0, 8")
        tl(4)
        e("K_QR:")
        e(f"  s_mov_b32 s74, {OPT['bnd']:#x}")
        e("K_QRL:")
        e("  ds_read_b32 v6, v7 offset:24")
        e("  s_waitcnt lgkmcnt(0)")
        e("  v_readfirstlane_b32 s75, v6")
        e("  s_cmp_ge_u32 s75, 9")
        e("  s_cbranch_scc1 K_QRD")
        e("  s_sub_u32 s74, s74, 1")
        e("  s_cmp_lg_u32 s74, 0")
        e("  s_cbranch_scc1 K_QRL")
        e("K_QRD:")
        if OPT["prof"] == 4:
            e("  s_mov_b32 m0, 9")
        F2 = 16
    else:
        e("  v_lshlrev_b32 v5, 4, v1")
        e(f"  buffer_load_dwordx4 v[204:207], v5, s[{SX}:{SX+3}], 0 offen")
        e(f"  buffer_load_dwordx4 v[208:211], v5, s[{SX}:{SX+3}], 0 offen offset:1024")
        if OPT["xb"]:
            e("  s_barrier")
        e("  v_lshrrev_b32 v6, 2, v0")
        e("  v_and_b32 v7, 3, v0")
        e("  v_lshlrev_b32 v8, 13, v6")
        e("  v_lshl_add_u32 v8, v7, 3, v8")
        e(f"  s_lshl_b32 s75, s{SCG}, 5")
        e("  v_add_u32 v8, s75, v8")
        for i in range(4):
            if i == 0:
                e(f"  buffer_load_dwordx2 v[212:213], v8, s[{SWQ}:{SWQ+3}], 0 offen")
            else:
                e(f"  v_add_u32 v8, 0x100000, v8")
                e(f"  buffer_load_dwordx2 v[{212+2*i}:{213+2*i}], v8, s[{SWQ}:{SWQ+3}], 0 offen")
        e("  v_lshrrev_b32 v12, 3, v0")
        e("  v_and_b32 v13, 7, v0")
        if OPT["rot"]:
            e(f"  s_mul_i32 s73, s2, {OPT['rot']}")
        blkoff(IDXA)
        e(f"  v_add_u32 v224, s75, v{VKOFF}")
        e(f"  v_add_u32 v225, s75, v{VVOFF}")
        pl = kchunk_l(KA, 224) + vchunk_l(VA, 225)
        PRE0 = OPT["pre0"]
        if OPT["bar0"] and PRE0:
            e("  s_barrier")
        for c in range(PRE0):
            e(pl[c])
        e(f"  s_waitcnt vmcnt({4+PRE0})")
        tl(4)
        ln_code()
        e("  s_add_u32 s26, s26, 1")
        e("  v_lshrrev_b32 v5, 2, v0")
        e("  v_lshlrev_b32 v5, 2, v5")
        for i in range(4):
            e(f"  ds_read2st64_b32 v[{168+2*i}:{169+2*i}], v5 offset0:{(L_XN + i*512)//256} offset1:{(L_XN + i*512 + 2048)//256}")
        tl(4)
        e(f"  s_waitcnt vmcnt({PRE0}) lgkmcnt(0)")
        tl(4)
        for c in range(PRE0, F1):
            e(pl[c])
        for i in range(4):
            for c in range(2):
                pk_part(212 + 2 * i + c, 168 + 2 * i, 180 + 2 * c, 184 + 2 * c, i == 0)
        dpp_steps(list(range(180, 188)), ["row_ror:4", "row_ror:8"])
        swap_steps(list(range(180, 188)), list(range(204, 212)))
        e("  s_mul_i32 s75, s3, 192")
        e("  v_lshlrev_b32 v5, 4, v1")
        e("  v_add_u32 v5, s75, v5")
        e("  s_mov_b64 exec, 0xf")
        e(f"  ds_write_b128 v5, v[180:183] offset:{L_QP}")
        e(f"  ds_write_b128 v5, v[184:187] offset:{L_QP+64}")
        e("  s_mov_b64 exec, -1")
        e("  s_waitcnt lgkmcnt(0)")
        tl(4)
        e("  s_barrier")
        e("  s_cmp_lg_u32 s3, 0")
        e("  s_cbranch_scc1 K_B2")
        e("  v_lshlrev_b32 v5, 3, v1")
        e("  s_mov_b64 exec, 0xffff")
        for w in range(8):
            e(f"  ds_read_b64 v[{160+2*w}:{161+2*w}], v5 offset:{L_QP + w*192}")
        e("  v_lshrrev_b32 v6, 3, v1")
        e("  v_lshlrev_b32 v6, 14, v6")
        e("  v_and_b32 v7, 7, v1")
        e("  v_lshl_add_u32 v6, v7, 3, v6")
        e(f"  s_lshl_b32 s75, s{SCG}, 6")
        e(f"  s_add_u32 s75, s75, {WS_QG}")
        e("  v_add_u32 v6, s75, v6")
        e("  v_mov_b32 v8, 8")
        e("  v_mov_b32 v9, 0")
        e("  v_mov_b32 v10, 8")
        e(f"  v_mov_b32 v11, {L_CNT}")
        e("  s_waitcnt lgkmcnt(0)")
        e("  v_pk_add_f32 v[160:161], v[160:161], v[162:163]")
        e("  v_pk_add_f32 v[164:165], v[164:165], v[166:167]")
        e("  v_pk_add_f32 v[168:169], v[168:169], v[170:171]")
        e("  v_pk_add_f32 v[172:173], v[172:173], v[174:175]")
        e("  v_pk_add_f32 v[160:161], v[160:161], v[164:165]")
        e("  v_pk_add_f32 v[168:169], v[168:169], v[172:173]")
        e("  v_pk_add_f32 v[160:161], v[160:161], v[168:169]")
        e("  v_cvt_pk_bf16_f32 v160, v160, v161")
        e("  v_mov_b32 v161, s26")
        e(f"  buffer_store_dwordx2 v[160:161], v6, s[{SWS}:{SWS+3}], 0 offen sc1")
        e("  ds_write_b96 v11, v[8:10]")
        e("  s_mov_b64 exec, -1")
        e("K_B2:")
        tl(4)
        if OPT["bar2"]:
            e("  s_barrier")
        F2 = max(F1, OPT["f2"])
        for c in range(F1, F2):
            e(pl[c])
    if not OPT['rs']:
        e(f"  s_lshl_b32 s75, s{SB}, 14")
        e(f"  s_lshl_b32 s76, s{SG}, 11")
        e("  s_add_u32 s75, s75, s76")
        e("  s_lshl_b32 s76, s3, 8")
        e("  s_add_u32 s75, s75, s76")
        e(f"  s_add_u32 s75, s75, {WS_QG}")
        e("  s_lshl_b32 s76, s3, 7")
        e("  v_lshlrev_b32 v6, 2, v1")
        e("  v_add_u32 v6, s76, v6")
        e(f"  s_mov_b32 s74, {OPT['bnd']:#x}")
        PB = [4, 28, 44, 80]
        tl(4)
        e("K_SP:")
        for i, b_ in enumerate(PB):
            e(f"  s_load_dwordx16 s[{b_}:{b_+15}], s[24:25], s75 offset:{64*i} glc")
        e("  s_waitcnt lgkmcnt(0)")
        prs = [b_ + 2*k for b_ in PB for k in range(8)]
        e(f"  s_and_b64 s[76:77], s[{prs[0]}:{prs[0]+1}], s[{prs[1]}:{prs[1]+1}]")
        e(f"  s_or_b64 s[78:79], s[{prs[0]}:{prs[0]+1}], s[{prs[1]}:{prs[1]+1}]")
        for r in prs[2:]:
            e(f"  s_and_b64 s[76:77], s[76:77], s[{r}:{r+1}]")
            e(f"  s_or_b64 s[78:79], s[78:79], s[{r}:{r+1}]")
        e("  s_xor_b32 s77, s77, s26")
        e("  s_xor_b32 s79, s79, s26")
        e("  s_or_b32 s77, s77, s79")
        e("  s_cmp_eq_u32 s77, 0")
        e("  s_cbranch_scc1 K_SPD")
        e("  s_sub_u32 s74, s74, 1")
        e("  s_cmp_lg_u32 s74, 0")
        e("  s_cbranch_scc1 K_SP")
        e("K_SPD:")
        tl(4)
        for k, r in enumerate(prs):
            e(f"  v_writelane_b32 v5, s{r}, {k}")
        e("  s_mov_b64 exec, 0xffffffff")
        e(f"  ds_write_b32 v6, v5 offset:{L_Q}")
        e("  s_mov_b64 exec, -1")
        e("  s_waitcnt lgkmcnt(0)")
        e("  s_barrier")
    e("K_B3:")
    tl(4)
    e("  s_load_dwordx16 s[4:19], s[0:1], 0")
    e("  s_load_dwordx2 s[96:97], s[0:1], 64")
    for c in range(F2, len(pl)):
        e(pl[c])
    e("  v_and_b32 v5, 3, v3")
    e("  v_lshlrev_b32 v5, 8, v5")
    e("  v_lshl_add_u32 v5, v4, 4, v5")
    for i in range(4):
        e(f"  ds_read_b128 v[{QF+4*i}:{QF+4*i+3}], v5 offset:{L_Q + i*64}")
    derive()
    for r in range(32):
        e(f"  v_mov_b32 v{ACC+r}, 0")
    e(f"  v_mov_b32 v{M_}, 0xf149f2ca")
    e(f"  v_mov_b32 v{L_}, 0")
    e(f"  v_mov_b32 v7, {L_CNT}")
    e("  v_mov_b32 v8, 1")
    e("  s_waitcnt lgkmcnt(0)")
    srd(SX, 4, 5, 2048)
    srd(SW1, 16, 17, 512 * 1792 * 2)
    srd(SWO, 12, 13, 4096 * 512 * 2)
    srd(SW2, 18, 19, 1792 * 512 * 2)
    srd(SOUT, 96, 97, 2048)
    if OPT["warmp"]:
        e("  v_mov_b32 v10, 0")
        e("  s_mov_b64 exec, 1")
        if OPT["warmp"] & 1:
            e(f"  buffer_load_dword v249, v10, s[{SWS}:{SWS+3}], s93 offen sc1")
        if OPT["warmp"] & 2:
            e(f"  s_mov_b32 s75, {16*OPT['ns']*8192}")
            e(f"  buffer_load_dword v249, v10, s[{SK}:{SK+3}], s75 offen nt")
            e(f"  buffer_load_dword v250, v10, s[{SV}:{SV+3}], s75 offen nt")
        e("  s_mov_b64 exec, -1")
    if OPT["fd"]:
        e("  s_cmp_ge_u32 s2, 224")
        e("  s_cselect_b32 s95, 2, 0")
    if OPT["pf"] == 2:
        e("  s_cmp_ge_u32 s3, 4")
        e("  s_cselect_b32 s27, 2, 0")
    else:
        e("  s_mov_b32 s27, %d" % (0 if OPT["pf"] else 2))
    def x_loads(sfx):
        e("  s_cmp_lg_u32 s27, 2")
        e(f"  s_cbranch_scc1 K_XL{sfx}")
        e("  s_mov_b32 s27, 3")
        if OPT["x2"]:
            e("  v_lshlrev_b32 v14, 10, v12")
            e("  v_lshl_add_u32 v14, v13, 4, v14")
            e("  s_cmp_ge_u32 s2, 224")
            e(f"  s_cbranch_scc1 K_XW{sfx}")
            e("  s_movk_i32 s75, 3584")
            e("  v_mul_lo_u32 v11, v12, s75")
            e("  v_lshl_add_u32 v11, v13, 4, v11")
            e("  s_and_b32 s75, s2, 7")
            e(f"  s_mul_i32 s75, s75, {64*3584}")
            e("  s_lshr_b32 s76, s2, 3")
            e("  s_lshl_b32 s76, s76, 7")
            e("  s_add_u32 s75, s75, s76")
            e(f"  buffer_load_dwordx4 v[244:247], v11, s[{SW1}:{SW1+3}], s75 offen")
            e(f"K_XW{sfx}:")
            e(f"  s_lshl_b32 s75, s{SHEAD}, 17")
            e(f"  s_lshl_b32 s76, s{SNO}, 7")
            e("  s_add_u32 s75, s75, s76")
            e(f"  buffer_load_dwordx4 v[80:83], v14, s[{SWO}:{SWO+3}], s75 offen")
            e("  s_add_u32 s75, s75, 0x10000")
            e(f"  buffer_load_dwordx4 v[84:87], v14, s[{SWO}:{SWO+3}], s75 offen")
            e("  s_lshr_b32 s75, s2, 3")
            e("  s_lshl_b32 s75, s75, 16")
            e("  v_add_u32 v15, s75, v14")
            e(f"  s_lshl_b32 s75, s{SNC}, 7")
            e("  v_add_u32 v15, s75, v15")
            e(f"  buffer_load_dwordx4 v[{W2}:{W2+3}], v15, s[{SW2}:{SW2+3}], 0 offen")
            e(f"K_XL{sfx}:")
            return
        e("  v_lshrrev_b32 v9, 1, v0")
        e("  v_and_b32 v10, 1, v0")
        e("  s_movk_i32 s75, 3584")
        e("  v_mul_lo_u32 v11, v9, s75")
        e("  v_lshl_add_u32 v11, v10, 3, v11")
        e(f"  s_lshl_b32 s75, s{SHC}, 4")
        e("  v_add_u32 v11, s75, v11")
        e(f"  buffer_load_dwordx2 v[244:245], v11, s[{SW1}:{SW1+3}], 0 offen")
        e(f"  v_add_u32 v11, {256*3584}, v11")
        e(f"  buffer_load_dwordx2 v[246:247], v11, s[{SW1}:{SW1+3}], 0 offen")
        wo_loads()
        e(f"K_XL{sfx}:")

    def wo_once(sfx):
        e("  s_cmp_lg_u32 s27, 2")
        e(f"  s_cbranch_scc1 K_WO{sfx}")
        e("  s_mov_b32 s27, 0")
        e("  v_lshlrev_b32 v15, 13, v4")
        e("  v_lshl_add_u32 v15, v3, 2, v15")
        e(f"  s_lshl_b32 s75, s{SHEAD}, 17")
        e(f"  s_lshl_b32 s76, s{SNO}, 7")
        e("  s_add_u32 s75, s75, s76")
        e("  s_bfe_u32 s76, s3, 0x10001")
        e("  s_lshl_b32 s76, s76, 6")
        e("  s_add_u32 s75, s75, s76")
        for ks in range(4):
            for jh in range(2):
                for j in range(4):
                    e(f"  buffer_load_dword v{80+ks*8+jh*4+j}, v15, s[{SWO}:{SWO+3}], s75 offen offset:{j*1024}")
                if not (ks == 3 and jh == 1):
                    e(f"  s_add_u32 s75, s75, {4096 if jh == 0 else 32768-4096}")
        e(f"K_WO{sfx}:")

    def fd_at_exit():
        e("  s_cmp_ge_u32 s2, 224")
        e("  s_cbranch_scc1 K_FX")
        e("  s_mov_b64 exec, 1")
        e("  ds_add_rtn_u32 v6, v7, v8 offset:32")
        e("  s_mov_b64 exec, -1")
        e("  s_waitcnt lgkmcnt(0)")
        e("  v_readfirstlane_b32 s72, v6")
        e("  s_cmp_ge_u32 s72, 4")
        e("  s_cbranch_scc1 K_FX")
        e("  v_lshrrev_b32 v9, 3, v1")
        e("  v_and_b32 v10, 7, v1")
        e("  v_lshlrev_b32 v11, 10, v9")
        e("  v_lshl_add_u32 v11, v10, 4, v11")
        e("  s_lshr_b32 s75, s2, 3")
        e("  s_lshl_b32 s75, s75, 16")
        e("  s_lshl_b32 s76, s72, 14")
        e("  s_add_u32 s75, s75, s76")
        e("  s_and_b32 s76, s2, 7")
        e("  s_lshl_b32 s76, s76, 7")
        e("  s_add_u32 s75, s75, s76")
        e(f"  buffer_load_dwordx4 v[16:19], v11, s[{SW2}:{SW2+3}], s75 offen")
        e("  s_add_u32 s75, s75, 8192")
        e(f"  buffer_load_dwordx4 v[20:23], v11, s[{SW2}:{SW2+3}], s75 offen")
        e("  v_lshlrev_b32 v12, 3, v4")
        e("  s_lshr_b32 s75, s2, 3")
        e("  s_lshl_b32 s75, s75, 8")
        e("  s_lshl_b32 s76, s72, 6")
        e("  s_add_u32 s75, s75, s76")
        e(f"  s_add_u32 s75, s75, {WS_HG}")
        e("  s_add_u32 s76, s75, 7168")
        e(f"  s_mov_b32 s74, {OPT['bnd']:#x}")
        e("K_FXP:")
        e(f"  buffer_load_dwordx2 v[24:25], v12, s[{SWS}:{SWS+3}], s75 offen sc1")
        e(f"  buffer_load_dwordx2 v[26:27], v12, s[{SWS}:{SWS+3}], s75 offen offset:32 sc1")
        e(f"  buffer_load_dwordx2 v[28:29], v12, s[{SWS}:{SWS+3}], s76 offen sc1")
        e(f"  buffer_load_dwordx2 v[30:31], v12, s[{SWS}:{SWS+3}], s76 offen offset:32 sc1")
        e("  s_waitcnt vmcnt(0)")
        e("  v_cmp_ne_u32 s[78:79], s26, v25")
        for r in [27, 29, 31]:
            e(f"  v_cmp_ne_u32 vcc, s26, v{r}")
            e("  s_or_b64 s[78:79], s[78:79], vcc")
        e("  s_cmp_eq_u64 s[78:79], 0")
        e("  s_cbranch_scc1 K_FXD")
        e("  s_sub_u32 s74, s74, 1")
        e("  s_cmp_lg_u32 s74, 0")
        e("  s_cbranch_scc1 K_FXP")
        e("K_FXD:")
        e("  v_and_b32 v5, 8, v1")
        e("  v_cmp_ne_u32 vcc, 0, v5")
        for r in [24, 26, 28, 30]:
            e(f"  v_lshlrev_b32 v48, 16, v{r}")
            e(f"  v_and_b32 v49, 0xffff0000, v{r}")
            e(f"  v_cndmask_b32 v{r}, v48, v49, vcc")
        A = 32
        for i in range(2):
            for c in range(4):
                w = 16 + 4*i + c
                e(f"  v_lshlrev_b32 v48, 16, v{w}")
                e(f"  v_and_b32 v49, 0xffff0000, v{w}")
                for b in range(2):
                    h = 24 + 4*b + 2*i
                    if i == 0:
                        e(f"  v_mul_f32 v{A+8*b+2*c}, v48, v{h}")
                        e(f"  v_mul_f32 v{A+8*b+2*c+1}, v49, v{h}")
                    else:
                        e(f"  v_fmac_f32 v{A+8*b+2*c}, v48, v{h}")
                        e(f"  v_fmac_f32 v{A+8*b+2*c+1}, v49, v{h}")
        dpp_steps(list(range(A, A+16)), ["row_ror:8"])
        swap_steps(list(range(A, A+16)), list(range(48, 64)))
        e("  s_lshl_b32 s75, s72, 9")
        e("  v_lshlrev_b32 v5, 5, v1")
        e("  v_add_u32 v5, s75, v5")
        e("  s_mov_b64 exec, 0xff")
        e(f"  ds_write_b128 v5, v[{A}:{A+3}] offset:{L_FP}")
        e(f"  ds_write_b128 v5, v[{A+4}:{A+7}] offset:{L_FP+16}")
        e(f"  ds_write_b128 v5, v[{A+8}:{A+11}] offset:{L_FP+256}")
        e(f"  ds_write_b128 v5, v[{A+12}:{A+15}] offset:{L_FP+272}")
        e("  s_mov_b64 exec, 1")
        e(f"  ds_add_rtn_u32 v6, v7, v8 offset:28")
        e("  s_mov_b64 exec, -1")
        e("  s_waitcnt lgkmcnt(0)")
        e("  v_readfirstlane_b32 s75, v6")
        e("  s_cmp_lg_u32 s75, 3")
        e("  s_cbranch_scc1 K_FX")
        e("  v_lshlrev_b32 v5, 3, v1")
        for w in range(4):
            e(f"  ds_read_b64 v[{16+2*w}:{17+2*w}], v5 offset:{L_FP + w*512}")
        e("  v_lshrrev_b32 v6, 5, v1")
        e("  v_lshlrev_b32 v6, 12, v6")
        e("  v_and_b32 v9, 31, v1")
        e("  v_lshl_add_u32 v6, v9, 4, v6")
        e("  s_lshr_b32 s75, s2, 3")
        e("  s_lshl_b32 s75, s75, 13")
        e("  s_and_b32 s76, s2, 7")
        e("  s_lshl_b32 s76, s76, 9")
        e("  s_add_u32 s75, s75, s76")
        e(f"  s_add_u32 s75, s75, {WS_GG}")
        e("  s_waitcnt lgkmcnt(0)")
        e("  v_pk_add_f32 v[16:17], v[16:17], v[18:19]")
        e("  v_pk_add_f32 v[20:21], v[20:21], v[22:23]")
        e("  v_pk_add_f32 v[16:17], v[16:17], v[20:21]")
        e("  v_mov_b32 v18, v17")
        e("  v_mov_b32 v17, s26")
        e("  v_mov_b32 v19, s26")
        e(f"  buffer_store_dwordx4 v[16:19], v6, s[{SWS}:{SWS+3}], s75 offen sc1")
        e("K_FX:")

    def h_phase(sfx):
        e("  s_cmp_eq_u32 s27, 0")
        e(f"  s_cbranch_scc1 K_HSKP{sfx}")
        e("  s_sub_u32 s27, s27, 2")
        e("  s_cmp_eq_u32 s27, 1")
        e(f"  s_cbranch_scc1 K_HSKP{sfx}")
        e("  s_mov_b32 s27, 0")
        if OPT["x2"]:
            e("  v_mul_u32_u24 v5, 144, v12")
            e("  v_lshl_add_u32 v5, v13, 4, v5")
            e(f"  ds_write_b128 v5, v[80:83] offset:{L_WO}")
            e(f"  ds_write_b128 v5, v[84:87] offset:{L_WO + 64*144}")
            e("  s_cmp_ge_u32 s2, 224")
            e(f"  s_cbranch_scc1 K_HSKP{sfx}")
            e("  s_and_b32 s75, s2, 7")
            e("  s_lshl_b32 s75, s75, 8")
            e("  v_lshl_add_u32 v5, v12, 2, s75")
            e(f"  ds_read_b32 v204, v5 offset:{L_XN}")
            e(f"  ds_read_b32 v205, v5 offset:{L_XN+2048}")
            e("  s_waitcnt lgkmcnt(0)")
            A = 212
            for c in range(4):
                e(f"  v_lshlrev_b32 v206, 16, v{244+c}")
                e(f"  v_and_b32 v207, 0xffff0000, v{244+c}")
                e(f"  v_mul_f32 v{A+2*c}, v206, v204")
                e(f"  v_mul_f32 v{A+1+2*c}, v207, v204")
                e(f"  v_mul_f32 v{A+8+2*c}, v206, v205")
                e(f"  v_mul_f32 v{A+9+2*c}, v207, v205")
            dpp_steps(list(range(A, A+16)), ["row_ror:8"])
            swap_steps(list(range(A, A+16)), list(range(220+8, 236+8))[:16] if False else [228,229,230,231,232,233,234,235,204,205,206,207,208,209,210,211])
            e("  s_lshl_b32 s75, s3, 9")
            e("  v_lshlrev_b32 v5, 5, v1")
            e("  v_add_u32 v5, s75, v5")
            e("  s_mov_b64 exec, 0xff")
            e(f"  ds_write_b128 v5, v[{A}:{A+3}] offset:{L_FP}")
            e(f"  ds_write_b128 v5, v[{A+4}:{A+7}] offset:{L_FP+16}")
            e(f"  ds_write_b128 v5, v[{A+8}:{A+11}] offset:{L_FP+256}")
            e(f"  ds_write_b128 v5, v[{A+12}:{A+15}] offset:{L_FP+272}")
            e("  s_mov_b64 exec, 1")
            e(f"  ds_add_rtn_u32 v6, v7, v8 offset:4")
            e("  s_mov_b64 exec, -1")
            e("  s_waitcnt lgkmcnt(0)")
            e("  v_readfirstlane_b32 s75, v6")
            e("  s_cmp_lg_u32 s75, 7")
            e(f"  s_cbranch_scc1 K_HSKP{sfx}")
            e("  v_lshlrev_b32 v5, 2, v1")
            for w in range(8):
                e(f"  ds_read_b32 v{204+2*w}, v5 offset:{L_FP + w*512}")
                e(f"  ds_read_b32 v{205+2*w}, v5 offset:{L_FP + w*512 + 256}")
            e("  v_lshlrev_b32 v6, 4, v1")
            e("  s_lshl_b32 s75, s2, 10")
            e("  s_mov_b32 s76, 0")
            e("  s_add_u32 s75, s75, s76")
            e(f"  s_add_u32 s75, s75, {WS_H2}")
            e("  s_waitcnt lgkmcnt(0)")
            e("  v_pk_add_f32 v[204:205], v[204:205], v[206:207]")
            e("  v_pk_add_f32 v[208:209], v[208:209], v[210:211]")
            e("  v_pk_add_f32 v[212:213], v[212:213], v[214:215]")
            e("  v_pk_add_f32 v[216:217], v[216:217], v[218:219]")
            e("  v_pk_add_f32 v[204:205], v[204:205], v[208:209]")
            e("  v_pk_add_f32 v[212:213], v[212:213], v[216:217]")
            e("  v_pk_add_f32 v[204:205], v[204:205], v[212:213]")
            e("  v_mov_b32 v206, s26")
            e("  v_mov_b32 v207, s26")
            e(f"  buffer_store_dwordx4 v[204:207], v6, s[{SWS}:{SWS+3}], s75 offen sc1")
            if OPT["xw"] == 2 and sfx == "L":
                e("  s_mov_b32 s27, 5")
            e(f"K_HSKP{sfx}:")
            return
        e(f"  s_cmp_ge_u32 s{SHC}, 224")
        e(f"  s_cbranch_scc1 K_HSKP{sfx}")
        e("  v_lshrrev_b32 v5, 1, v0")
        e("  v_lshlrev_b32 v5, 2, v5")
        for i in range(2):
            e(f"  ds_read2st64_b32 v[{204+2*i}:{205+2*i}], v5 offset0:{(L_XN + i*1024)//256} offset1:{(L_XN + i*1024 + 2048)//256}")
        e("  s_waitcnt lgkmcnt(0)")
        A = 212
        for i in range(2):
            for c in range(2):
                w = 244 + 2*i + c
                xr = 204 + 2*i
                a0, a1 = A + 2*c, A + 4 + 2*c
                e(f"  v_lshlrev_b32 v208, 16, v{w}")
                e(f"  v_and_b32 v209, 0xffff0000, v{w}")
                if i == 0:
                    e(f"  v_pk_mul_f32 v[{a0}:{a0+1}], v[208:209], v[{xr}:{xr+1}] op_sel_hi:[1,0]")
                    e(f"  v_pk_mul_f32 v[{a1}:{a1+1}], v[208:209], v[{xr}:{xr+1}] op_sel:[0,1] op_sel_hi:[1,1]")
                else:
                    e(f"  v_pk_fma_f32 v[{a0}:{a0+1}], v[208:209], v[{xr}:{xr+1}], v[{a0}:{a0+1}] op_sel_hi:[1,0,1]")
                    e(f"  v_pk_fma_f32 v[{a1}:{a1+1}], v[208:209], v[{xr}:{xr+1}], v[{a1}:{a1+1}] op_sel:[0,1,0] op_sel_hi:[1,1,1]")
        dpp_steps(list(range(A, A+8)), ["quad_perm:[2,3,0,1]", "row_ror:4", "row_ror:8"])
        swap_steps(list(range(A, A+8)), list(range(220, 228)))
        e("  s_mul_i32 s75, s3, 192")
        e("  v_lshlrev_b32 v5, 4, v1")
        e("  v_add_u32 v5, s75, v5")
        e("  s_mov_b64 exec, 0x3")
        e(f"  ds_write_b128 v5, v[{A}:{A+3}] offset:{L_QP+128}")
        e(f"  ds_write_b128 v5, v[{A+4}:{A+7}] offset:{L_QP+160}")
        e("  s_mov_b64 exec, 1")
        e(f"  ds_add_rtn_u32 v6, v7, v8 offset:4")
        e("  s_mov_b64 exec, -1")
        e("  s_waitcnt lgkmcnt(0)")
        e("  v_readfirstlane_b32 s75, v6")
        e("  s_cmp_lg_u32 s75, 7")
        e(f"  s_cbranch_scc1 K_HSKP{sfx}")
        e("  v_lshlrev_b32 v5, 3, v1")
        e("  s_mov_b64 exec, 0xff")
        for w in range(8):
            e(f"  ds_read_b64 v[{204+2*w}:{205+2*w}], v5 offset:{L_QP + w*192 + 128}")
        e("  v_lshrrev_b32 v6, 2, v1")
        e("  s_movk_i32 s75, 7168")
        e("  v_mul_lo_u32 v6, v6, s75")
        e("  v_and_b32 v9, 3, v1")
        e("  v_lshl_add_u32 v6, v9, 3, v6")
        e(f"  s_lshl_b32 s75, s{SHC}, 5")
        e(f"  s_add_u32 s75, s75, {WS_HG}")
        e("  s_waitcnt lgkmcnt(0)")
        e("  v_pk_add_f32 v[204:205], v[204:205], v[206:207]")
        e("  v_pk_add_f32 v[208:209], v[208:209], v[210:211]")
        e("  v_pk_add_f32 v[212:213], v[212:213], v[214:215]")
        e("  v_pk_add_f32 v[216:217], v[216:217], v[218:219]")
        e("  v_pk_add_f32 v[204:205], v[204:205], v[208:209]")
        e("  v_pk_add_f32 v[212:213], v[212:213], v[216:217]")
        e("  v_pk_add_f32 v[204:205], v[204:205], v[212:213]")
        e("  v_max_f32 v204, 0, v204")
        e("  v_max_f32 v205, 0, v205")
        e("  v_cvt_pk_bf16_f32 v204, v204, v205")
        e("  v_mov_b32 v205, s26")
        e(f"  buffer_store_dwordx2 v[204:205], v6, s[{SWS}:{SWS+3}], s75 offen sc1")
        e("  s_mov_b64 exec, -1")
        e(f"K_HSKP{sfx}:")
    def h_loads():
        if OPT["x2"]:
            e(f"  buffer_load_dwordx4 v[244:247], v248, s[{SWS}:{SWS+3}], 0 offen sc1")
            return
        e("  s_movk_i32 s75, 7168")
        e(f"  buffer_load_dwordx2 v[244:245], v248, s[{SWS}:{SWS+3}], 0 offen sc1")
        e(f"  buffer_load_dwordx2 v[246:247], v248, s[{SWS}:{SWS+3}], s75 offen sc1")

    def fd_issue():
        e("  v_lshrrev_b32 v5, 1, v12")
        e("  v_lshlrev_b32 v248, 3, v5")
        e("  s_lshr_b32 s75, s2, 3")
        e("  s_lshl_b32 s75, s75, 8")
        e(f"  s_add_u32 s75, s75, {WS_HG}")
        e("  v_add_u32 v248, s75, v248")
        h_loads()
    def fd_check(bad):
        e("  v_cmp_ne_u32 vcc, s26, v245")
        e("  v_cmp_ne_u32 s[78:79], s26, v247")
        e("  s_or_b64 vcc, vcc, s[78:79]")
        e("  s_cmp_lg_u64 vcc, 0")
        e(f"  s_cbranch_scc1 {bad}")
    def fd_compute(done):
        A = 204
        e("  v_and_b32 v5, 1, v12")
        e("  v_cmp_eq_u32 vcc, 1, v5")
        e("  v_lshlrev_b32 v220, 16, v244")
        e("  v_and_b32 v5, 0xffff0000, v244")
        e("  v_lshlrev_b32 v221, 16, v246")
        e("  v_and_b32 v6, 0xffff0000, v246")
        e("  v_cndmask_b32 v220, v220, v5, vcc")
        e("  v_cndmask_b32 v221, v221, v6, vcc")
        for c in range(4):
            e(f"  v_lshlrev_b32 v222, 16, v{W2+c}")
            e(f"  v_and_b32 v223, 0xffff0000, v{W2+c}")
            e(f"  v_mul_f32 v{A+2*c}, v222, v220")
            e(f"  v_mul_f32 v{A+1+2*c}, v223, v220")
            e(f"  v_mul_f32 v{A+8+2*c}, v222, v221")
            e(f"  v_mul_f32 v{A+9+2*c}, v223, v221")
        dpp_steps(list(range(A, A+16)), ["row_ror:8"])
        swap_steps(list(range(A, A+16)), list(range(220, 236)))
        e("  s_lshl_b32 s75, s3, 9")
        e("  v_lshlrev_b32 v5, 5, v1")
        e("  v_add_u32 v5, s75, v5")
        e("  s_mov_b64 exec, 0xff")
        e(f"  ds_write_b128 v5, v[{A}:{A+3}] offset:{L_FP}")
        e(f"  ds_write_b128 v5, v[{A+4}:{A+7}] offset:{L_FP+16}")
        e(f"  ds_write_b128 v5, v[{A+8}:{A+11}] offset:{L_FP+256}")
        e(f"  ds_write_b128 v5, v[{A+12}:{A+15}] offset:{L_FP+272}")
        e("  s_mov_b64 exec, 1")
        e(f"  ds_add_rtn_u32 v6, v7, v8 offset:28")
        e("  s_mov_b64 exec, -1")
        e("  s_waitcnt lgkmcnt(0)")
        e("  v_readfirstlane_b32 s75, v6")
        e("  s_mov_b32 s95, 2")
        e("  s_cmp_lg_u32 s75, 7")
        e(f"  s_cbranch_scc1 {done}")
        e("  v_lshlrev_b32 v5, 3, v1")
        for w in range(8):
            e(f"  ds_read_b64 v[{204+2*w}:{205+2*w}], v5 offset:{L_FP + w*512}")
        e("  v_lshrrev_b32 v6, 5, v1")
        e("  v_lshlrev_b32 v6, 12, v6")
        e("  v_and_b32 v9, 31, v1")
        e("  v_lshl_add_u32 v6, v9, 4, v6")
        e("  s_lshr_b32 s75, s2, 3")
        e("  s_lshl_b32 s75, s75, 13")
        e("  s_and_b32 s76, s2, 7")
        e("  s_lshl_b32 s76, s76, 9")
        e("  s_add_u32 s75, s75, s76")
        e(f"  s_add_u32 s75, s75, {WS_GG}")
        e("  s_waitcnt lgkmcnt(0)")
        e("  v_pk_add_f32 v[204:205], v[204:205], v[206:207]")
        e("  v_pk_add_f32 v[208:209], v[208:209], v[210:211]")
        e("  v_pk_add_f32 v[212:213], v[212:213], v[214:215]")
        e("  v_pk_add_f32 v[216:217], v[216:217], v[218:219]")
        e("  v_pk_add_f32 v[204:205], v[204:205], v[208:209]")
        e("  v_pk_add_f32 v[212:213], v[212:213], v[216:217]")
        e("  v_pk_add_f32 v[204:205], v[204:205], v[212:213]")
        e("  v_mov_b32 v206, v205")
        e("  v_mov_b32 v205, s26")
        e("  v_mov_b32 v207, s26")
        e(f"  buffer_store_dwordx4 v[204:207], v6, s[{SWS}:{SWS+3}], s75 offen sc1")
    def fd_phase():
        e("  s_cmp_eq_u32 s95, 2")
        e("  s_cbranch_scc1 K_FDS")
        e("  s_cmp_lg_u32 s27, 0")
        e("  s_cbranch_scc1 K_FDS")
        e(f"  s_cmp_lt_u32 s73, {OPT['fdt']}")
        e("  s_cbranch_scc1 K_FDS")
        e("  s_cmp_eq_u32 s95, 0")
        e("  s_cbranch_scc1 K_FDI")
        fd_check("K_FDI")
        fd_compute("K_FDS")
        e("  s_branch K_FDS")
        e("K_FDI:")
        fd_issue()
        e("  s_mov_b32 s95, 1")
        e("K_FDS:")
    def fd_exit():
        e("  s_cmp_eq_u32 s95, 2")
        e("  s_cbranch_scc1 K_FDES")
        e(f"  s_mov_b32 s74, {OPT['bnd']:#x}")
        e("K_FDEL:")
        fd_issue()
        e("  s_waitcnt vmcnt(0)")
        fd_check("K_FDEB")
        e("  s_branch K_FDEC")
        e("K_FDEB:")
        e("  s_sub_u32 s74, s74, 1")
        e("  s_cmp_lg_u32 s74, 0")
        e("  s_cbranch_scc1 K_FDEL")
        e("K_FDEC:")
        fd_compute("K_FDES")
        e("K_FDES:")

    def c_qk(KR, vk):
        if vk is not None:
            e(f"  s_waitcnt vmcnt({vk})")
        tl()
        for t in range(2):
            for i in range(4):
                c = "0" if i == 0 else f"v[{ST+4*t}:{ST+4*t+3}]"
                e(f"  v_mfma_f32_16x16x32_bf16 v[{ST+4*t}:{ST+4*t+3}], v[{KR+16*t+4*i}:{KR+16*t+4*i+3}], v[{QF+4*i}:{QF+4*i+3}], {c}")
    def c_sm(nop=True):
        if nop:
            e("  s_nop 7")
            e("  s_nop 0")
        e(f"  v_max3_f32 v{T0}, v{ST}, v{ST+1}, v{ST+2}")
        e(f"  v_max3_f32 v{T1}, v{ST+3}, v{ST+4}, v{ST+5}")
        e(f"  v_max3_f32 v{T0}, v{T0}, v{ST+6}, v{ST+7}")
        e(f"  v_max_f32 v{T0}, v{T0}, v{T1}")
        e(f"  v_mov_b32 v{T1}, v{T0}")
        e("  s_nop 1")
        e(f"  v_permlane16_swap_b32 v{T0}, v{T1}")
        e("  s_nop 1")
        e(f"  v_max_f32 v{T0}, v{T0}, v{T1}")
        e(f"  v_mov_b32 v{T1}, v{T0}")
        e("  s_nop 1")
        e(f"  v_permlane32_swap_b32 v{T0}, v{T1}")
        e("  s_nop 1")
        e(f"  v_max3_f32 v{T0}, v{T0}, v{T1}, v{M_}")
        e(f"  v_sub_f32 v{AL}, v{M_}, v{T0}")
        e(f"  v_mul_f32 v{AL}, s{SC}, v{AL}")
        e(f"  v_exp_f32 v{AL}, v{AL}")
        e(f"  v_mov_b32 v{M_}, v{T0}")
        e(f"  v_mul_f32 v{MC}, s{SC}, v{T0}")
        for k in range(8):
            e(f"  v_fma_f32 v{ST+k}, v{ST+k}, s{SC}, -v{MC}")
        for k in range(8):
            e(f"  v_exp_f32 v{ST+k}, v{ST+k}")
        e("  s_nop 0")
        e(f"  v_mul_f32 v{L_}, v{L_}, v{AL}")
        for k in range(8):
            e(f"  v_add_f32 v{L_}, v{L_}, v{ST+k}")
        for q in range(4):
            e(f"  v_cvt_pk_bf16_f32 v{PF+q}, v{ST+2*q}, v{ST+2*q+1}")
        for r in range(32):
            e(f"  v_mul_f32 v{ACC+r}, v{ACC+r}, v{AL}")
    def c_pv(VR, vv):
        if vv is not None:
            e(f"  s_waitcnt vmcnt({vv})")
        tl()
        for t in range(8):
            c = t >> 1
            sel = f"s{SP1}" if (t & 1) else f"s{SP0}"
            for q in range(4):
                e(f"  v_perm_b32 v{TR+4*t+q}, v{VR+4*(2*q+1)+c}, v{VR+4*(2*q)+c}, {sel}")
        e("  s_nop 1")
        for t in range(8):
            e(f"  v_mfma_f32_16x16x32_bf16 v[{ACC+4*t}:{ACC+4*t+3}], v[{TR+4*t}:{TR+4*t+3}], v[{PF}:{PF+3}], v[{ACC+4*t}:{ACC+4*t+3}]")

    def compute(KR, VR, vk, vv):
        c_qk(KR, vk)
        c_sm()
        c_pv(VR, vv)

    def fetch():
        e("  s_mov_b64 exec, 1")
        e("  ds_add_rtn_u32 v9, v7, v8")
        e("  s_mov_b64 exec, -1")
    def getidx(sidx):
        e("  s_waitcnt lgkmcnt(0)")
        e(f"  v_readfirstlane_b32 s{sidx}, v9")

    if OPT["nw"] < 8:
        e(f"  s_cmp_ge_u32 s3, {OPT['nw']}")
        e("  s_cbranch_scc1 K_EXIT")
    def gen_loop(sfx, last):
        if OPT["nbuf"] == 3:
            fetch()
            compute(KA, VA, 24, 16)
            getidx(IDXA)
            loads(KA, VA, IDXA)
            compute(KB, VB, 24, 16)
            e(f"  s_cmp_ge_u32 s{IDXA}, 64")
            e("  s_cbranch_scc1 K_EXIT")
        e(f"K_LOOP{sfx}:")
        if OPT["nbuf"] == 2:
            fetch()
            compute(KA, VA, 24, 16)
            getidx(IDXA)
            loads(KA, VA, IDXA)
            e(f"  s_cmp_ge_u32 s{IDXB}, 64")
            e("  s_cbranch_scc1 K_EXIT")
            fetch()
            compute(KB, VB, 24, 16)
            getidx(IDXB)
            loads(KB, VB, IDXB)
            e(f"  s_cmp_lt_u32 s{IDXA}, 64")
            e(f"  s_cbranch_scc1 K_LOOP{sfx}")
        else:
            NS = OPT["ns"]
            fetch()
            getidx(73)
            if OPT["dup"] > 1:
                e(f"  s_cmp_lt_u32 s73, {OPT['dup']}")
                e(f"  s_cselect_b32 s75, 0, 4096")
                e(f"  s_and_b32 s73, s73, 63")
                e(f"  s_add_u32 s73, s73, s75")
            e(f"  s_cmp_lt_u32 s73, {NS}")
            e(f"  s_cbranch_scc1 K_STA{sfx}")
            e("  v_mov_b32 v9, 1")
            e("  v_mov_b32 v10, 0")
            e("  s_mov_b64 exec, 1")
            e(f"  buffer_atomic_add v9, v10, s[{SWS}:{SWS+3}], s93 offen sc0 sc1")
            e("  s_mov_b64 exec, -1")
            e(f"K_STA{sfx}:")
            compute(KA, VA, 8, 0)
            e(f"  s_cmp_ge_u32 s73, {NS}")
            e(f"  s_cbranch_scc1 K_DY2{sfx}")
            e(f"  s_add_u32 s{IDXA}, s73, s94")
            e(f"  s_branch K_ST2{sfx}")
            e(f"K_DY2{sfx}:")
            e(f"  v_readfirstlane_b32 s{IDXA}, v9")
            e(f"  s_cmp_lt_u32 s{IDXA}, {(1024-16*NS)//OPT['nsub']}")
            e(f"  s_cselect_b32 s{IDXA}, s{IDXA}, 2048")
            e(f"  s_add_u32 s{IDXA}, s{IDXA}, s92")
            e(f"K_ST2{sfx}:")
            if OPT["fifo"]:
                e(f"  s_cmp_ge_u32 s{IDXA}, 1024")
                e(f"  s_cbranch_scc1 K_FD{sfx}")
                e(f"  s_sub_u32 s73, s73, {OPT['fw']}")
                e(f"  s_mov_b32 s74, {OPT['bnd']:#x}")
                e(f"K_FW{sfx}:")
                e("  ds_read_b32 v9, v7 offset:8")
                e("  s_waitcnt lgkmcnt(0)")
                e("  v_readfirstlane_b32 s75, v9")
                e("  s_cmp_ge_u32 s75, s73")
                e(f"  s_cbranch_scc1 K_FD{sfx}")
                if OPT["fsl"]: e(f"  s_sleep {OPT['fsl']}")
                e("  s_sub_u32 s74, s74, 1")
                e("  s_cmp_lg_u32 s74, 0")
                e(f"  s_cbranch_scc1 K_FW{sfx}")
                e(f"K_FD{sfx}:")
            x_loads("L"+sfx)
            loads(KA, VA, IDXA)
            if OPT["fifo"]:
                e("  s_mov_b64 exec, 1")
                e("  ds_add_u32 v7, v8 offset:8")
                e("  s_mov_b64 exec, -1")
            h_phase("L"+sfx)
            e(f"  s_cmp_lt_u32 s{IDXA}, 1024")
            e(f"  s_cbranch_scc1 K_LOOP{sfx}")
        if not last:
            e("  s_branch K_EXIT")
    def fifo_wait(lbl, off):
        e(f"  s_mov_b32 s74, {OPT['bnd']:#x}")
        e(f"{lbl}:")
        e(f"  ds_read_b32 v9, v7 offset:{off}")
        e("  s_waitcnt lgkmcnt(0)")
        e("  v_readfirstlane_b32 s75, v9")
        e("  s_cmp_ge_u32 s75, s73")
        e(f"  s_cbranch_scc1 {lbl}D")
        if OPT["fsl"]: e(f"  s_sleep {OPT['fsl']}")
        e("  s_sub_u32 s74, s74, 1")
        e("  s_cmp_lg_u32 s74, 0")
        e(f"  s_cbranch_scc1 {lbl}")
        e(f"{lbl}D:")
    def fifo_add(off):
        e("  s_mov_b64 exec, 1")
        e(f"  ds_add_u32 v7, v8 offset:{off}")
        e("  s_mov_b64 exec, -1")
    def gate(sfx):
        e("  s_cmp_eq_u32 s36, 0")
        e(f"  s_cbranch_scc1 K_GD{sfx}")
        e(f"K_G{sfx}:")
        e("  s_memrealtime s[98:99]")
        e("  s_waitcnt lgkmcnt(0)")
        e("  s_sub_u32 s75, s98, s39")
        e("  s_cmp_ge_u32 s75, s36")
        e(f"  s_cbranch_scc1 K_GD{sfx}")
        e("  s_sleep 1")
        e(f"  s_branch K_G{sfx}")
        e(f"K_GD{sfx}:")
    def gen_loop_sp():
        if OPT["th"]:
            e("  s_mov_b32 s37, 0")
        e("K_LOOP:")
        if OPT["th"]:
            e("  s_mov_b64 exec, 1")
            e("  ds_add_rtn_u32 v9, v7, v8")
            e("  ds_read_b64 v[10:11], v7 offset:40")
            e("  s_mov_b64 exec, -1")
            e("  s_waitcnt lgkmcnt(0)")
            e("  v_readfirstlane_b32 s73, v9")
            e("  v_readfirstlane_b32 s39, v10")
            e("  v_readfirstlane_b32 s36, v11")
        else:
            fetch()
            getidx(73)
        if OPT["xw"]:
            e("  s_mov_b32 s38, 0")
            e("  s_cmp_lg_u32 s27, 5")
            e("  s_cbranch_scc1 K_WA")
            e("  s_mov_b32 s27, 0")
            e("  s_mov_b32 s38, 1")
            e("K_WA:")
            if OPT["th"]:
                e("  s_cmp_eq_u32 s37, 0")
                e("  s_cbranch_scc1 K_WB")
                e("  s_mov_b32 s38, 1")
                e("  s_cmp_eq_u32 s37, 2")
                e("  s_cselect_b32 s37, 3, 0")
                e("K_WB:")
            e("  s_cmp_eq_u32 s27, 1")
            e("  s_cbranch_scc1 K_WX")
            e("  s_cmp_eq_u32 s38, 0")
            e("  s_cbranch_scc1 K_W0")
            e("  s_waitcnt vmcnt(9)")
            e("  s_branch K_W1")
            e("K_WX:")
            e("  s_cmp_ge_u32 s2, 224")
            e("  s_cbranch_scc1 K_W3")
            e("  s_waitcnt vmcnt(12)")
            e("  s_branch K_W1")
            e("K_W3:")
            e("  s_waitcnt vmcnt(11)")
            e("  s_branch K_W1")
            e("K_W0:")
            e("  s_waitcnt vmcnt(8)")
            e("K_W1:")
            c_qk(KA, None)
        else:
            c_qk(KA, 8)
        tl(7)
        e("  s_cmp_ge_u32 s73, 64")
        e("  s_cbranch_scc1 K_NK")
        mapidx(73)
        blkoff(IDXA)
        e(f"  v_add_u32 v5, s75, v{VKOFF}")
        e(f"  v_add_u32 v6, s75, v{VVOFF}")
        fifo_wait("K_FK", 8)
        if OPT["th"] == 1:
            e("  s_cmp_eq_u32 s36, 0")
            e("  s_cbranch_scc1 K_TNA")
            e(f"  s_cmp_ge_u32 s73, {OPT['te']}")
            e("  s_cbranch_scc1 K_TNA")
            e(f"  s_and_b32 s75, s73, {OPT['tm']}")
            e("  s_cmp_lg_u32 s75, 0")
            e("  s_cbranch_scc1 K_TNA")
            e("K_TSL:")
            e("  s_sleep 1")
            e("  s_sub_u32 s36, s36, 1")
            e("  s_cmp_lg_u32 s36, 0")
            e("  s_cbranch_scc1 K_TSL")
            e("K_TNA:")
        if OPT["th"] == 2:
            gate("K")
        tl(7)
        kchunk(KA, 5)
        tl(5)
        tl(7)
        fifo_add(8)
        e("K_NK:")
        c_sm(nop=True)
        e("  s_cmp_lt_u32 s73, 64")
        e("  s_cbranch_scc1 K_W8")
        e("  s_waitcnt vmcnt(0)")
        e("K_W8:")
        if OPT["prof"] == 7:
            e("  s_waitcnt vmcnt(8)")
            tl(7)
        c_pv(VA, 8)
        if OPT["th"]:
            e(f"  s_cmp_lg_u32 s37, 3")
            e("  s_cbranch_scc1 K_TNC")
            e("  s_mov_b32 s37, 0")
            e("  ds_read_b32 v10, v7 offset:36")
            e("  s_waitcnt lgkmcnt(0)")
            for r in range(244, 248):
                e(f"  v_sub_u32 v11, v{r}, v10")
                e(f"  v_and_b32 v9, 0xff, v11")
                e(f"  v_ashrrev_i32 v{r}, 8, v11")
                e(f"  v_cmp_eq_u32 vcc, 0, v9")
                e(f"  v_cndmask_b32 v{r}, 0, v{r}, vcc")
                e(f"  v_cmp_gt_i32 vcc, {OPT['tlim']}, v{r}")
                e(f"  v_cndmask_b32 v{r}, 0, v{r}, vcc")
            e("  v_max_i32 v244, v244, v245")
            e("  v_max_i32 v246, v246, v247")
            e("  v_max_i32 v244, v244, v246")
            red_steps([244], [245], "v_max_i32", ctrls=("quad_perm:[1,0,3,2]", "quad_perm:[2,3,0,1]", "row_half_mirror", "row_mirror"))
            e("  v_max_i32 v244, 0, v244")
            e(f"  v_mul_u32_u24 v244, {OPT['tg']}, v244")
            e("  v_lshrrev_b32 v244, 8, v244")
            e("  s_mov_b64 exec, 1")
            e("  ds_write_b32 v7, v244 offset:44")
            if OPT["th"] == 2:
                e("  s_memrealtime s[98:99]")
                e("  s_mul_i32 s75, s2, 5")
                e("  s_and_b32 s75, s75, 7")
                e(f"  s_mul_i32 s75, s75, {OPT['ts']}")
                e("  s_waitcnt lgkmcnt(0)")
                e("  s_add_u32 s75, s75, s98")
                e("  v_mov_b32 v9, s75")
                e("  ds_write_b32 v7, v9 offset:40")
            e("  s_mov_b64 exec, -1")
            if OPT["prof"] == 6:
                e("  v_readfirstlane_b32 s75, v244")
                e("  s_add_u32 s75, s75, 1")
                e("  v_writelane_b32 v251, s75, 10")
                e("  v_readfirstlane_b32 s75, v10")
                e("  v_writelane_b32 v251, s75, 11")
                e("  v_writelane_b32 v251, s73, 12")
                e("  s_memrealtime s[98:99]")
                e("  s_waitcnt lgkmcnt(0)")
                e("  v_writelane_b32 v251, s98, 13")
            e("K_TNC:")
        e("  s_cmp_ge_u32 s73, 64")
        e("  s_cbranch_scc1 K_NV")
        tl(7)
        fifo_wait("K_FV", 12)
        if OPT["th"] == 2:
            gate("V")
        tl(7)
        vchunk(VA, 6)
        tl(5)
        tl(7)
        fifo_add(12)
        if OPT["th"]:
            e(f"  s_cmp_lg_u32 s73, {OPT['tp']}")
            e("  s_cbranch_scc1 K_TNP")
            e("  s_memrealtime s[98:99]")
            e("  s_waitcnt lgkmcnt(0)")
            e("  s_lshl_b32 s75, s98, 8")
            e("  s_and_b32 s76, s26, 0xff")
            e("  s_or_b32 s75, s75, s76")
            e("  v_mov_b32 v10, s75")
            e("  v_mov_b32 v11, 0")
            e("  s_lshl_b32 s76, s2, 2")
            e(f"  s_add_u32 s76, s76, {WS_PR}")
            e("  s_mov_b64 exec, 1")
            e(f"  buffer_store_dword v10, v11, s[{SWS}:{SWS+3}], s76 offen sc1")
            e("  ds_write_b32 v7, v10 offset:36")
            e("  s_mov_b64 exec, -1")
            e("  s_mov_b32 s37, 1")
            e("K_TNP:")
            e(f"  s_cmp_lg_u32 s73, {OPT['tr']}")
            e("  s_cbranch_scc1 K_TNR")
            e("  v_lshlrev_b32 v10, 4, v1")
            e(f"  s_mov_b32 s76, {WS_PR}")
            e(f"  buffer_load_dwordx4 v[244:247], v10, s[{SWS}:{SWS+3}], s76 offen sc1")
            e("  s_mov_b32 s37, 2")
            e("K_TNR:")
        e("K_NV:")
        if not OPT["pf"]:
            x_loads("L")
            h_phase("L")
        if OPT["pf"] == 2:
            wo_once("L")
        if OPT["fd"]:
            fd_phase()
        tl(7)
        e("  s_cmp_lt_u32 s73, 64")
        e("  s_cbranch_scc1 K_LOOP")
    def gen_loop_dy():
        NSW = OPT["ns"] // 8
        POOL = (1024 - 16*OPT["ns"]) // OPT["nsub"]
        e(f"  s_add_u32 s{IDXA}, s3, s94")
        e(f"  s_mov_b32 s36, {NSW-1}")
        e("  v_mov_b32 v249, 0")
        e("K_LOOP:")
        fetch()
        getidx(73)
        c_qk(KA, 8)
        e("  s_cmp_eq_u32 s36, 0")
        e("  s_cbranch_scc1 K_DYN")
        e(f"  s_add_u32 s{IDXA}, s{IDXA}, 8")
        e("  s_sub_u32 s36, s36, 1")
        e("  s_branch K_HAVE")
        e("K_DYN:")
        e(f"  v_readfirstlane_b32 s{IDXA}, v250")
        e(f"  s_cmp_lt_u32 s{IDXA}, {POOL}")
        e(f"  s_cselect_b32 s{IDXA}, s{IDXA}, 2048")
        e(f"  s_add_u32 s{IDXA}, s{IDXA}, s92")
        e(f"  s_cmp_lt_u32 s{IDXA}, 1024")
        e("  s_cbranch_scc1 K_HAVE")
        fifo_add(8)
        fifo_add(12)
        e("  s_branch K_NK")
        e("K_HAVE:")
        blkoff(IDXA)
        e(f"  v_add_u32 v5, s75, v{VKOFF}")
        e(f"  v_add_u32 v6, s75, v{VVOFF}")
        e("  v_mov_b32 v250, 1")
        fifo_wait("K_FK", 8)
        kchunk(KA, 5)
        e("  s_cmp_lg_u32 s36, 0")
        e("  s_cbranch_scc1 K_NAT")
        e("  s_mov_b64 exec, 1")
        e(f"  buffer_atomic_add v250, v249, s[{SWS}:{SWS+3}], s93 offen sc0 sc1")
        e("  s_mov_b64 exec, -1")
        e("K_NAT:")
        tl(5)
        fifo_add(8)
        e("K_NK:")
        c_sm(nop=True)
        e(f"  s_cmp_lt_u32 s{IDXA}, 1024")
        e("  s_cbranch_scc1 K_W8")
        e("  s_waitcnt vmcnt(0)")
        e("K_W8:")
        e("  s_cmp_lg_u32 s36, 0")
        e("  s_cbranch_scc1 K_W8S")
        e("  s_waitcnt vmcnt(9)")
        e("  s_branch K_W9")
        e("K_W8S:")
        e("  s_waitcnt vmcnt(8)")
        e("K_W9:")
        c_pv(VA, None)
        e(f"  s_cmp_ge_u32 s{IDXA}, 1024")
        e("  s_cbranch_scc1 K_NV")
        fifo_wait("K_FV", 12)
        vchunk(VA, 6)
        tl(5)
        fifo_add(12)
        e("K_NV:")
        if not OPT["pf"]:
            x_loads("L")
            h_phase("L")
        if OPT["pf"] == 2:
            wo_once("L")
        e(f"  s_cmp_lt_u32 s{IDXA}, 1024")
        e("  s_cbranch_scc1 K_LOOP")
    def gen_loop_dq():
        NS, D, CAP = OPT["ns"], OPT["dd"], OPT["cap"]
        POOL = 1024 - 16*NS
        INV = 4097
        def fetch2():
            e("  s_mov_b64 exec, 1")
            e("  ds_add_rtn_u32 v9, v7, v8")
            e("  ds_read_b32 v10, v7 offset:40")
            e("  s_mov_b64 exec, -1")
        def getidx2():
            e("  s_waitcnt lgkmcnt(0)")
            e("  v_readfirstlane_b32 s73, v9")
            e("  v_readfirstlane_b32 s38, v10")
        def publish(sfx):
            e("  s_cmp_eq_u32 s36, 0")
            e(f"  s_cbranch_scc1 K_NP{sfx}")
            e("  s_mov_b32 s36, 0")
            e("  v_readfirstlane_b32 s75, v250")
            e("  s_add_u32 s76, s75, s92")
            e("  s_add_u32 s76, s76, 1")
            e(f"  s_cmp_lt_u32 s75, {POOL}")
            e(f"  s_cselect_b32 s76, s76, {INV}")
            e("  s_cselect_b32 s77, 0, 1")
            e("  v_mov_b32 v10, s76")
            e("  v_add_u32 v11, 1, v10")
            e("  v_mov_b32 v9, s37")
            e("  v_mov_b32 v5, s77")
            e("  s_mov_b64 exec, 1")
            e(f"  ds_write_b64 v9, v[10:11] offset:{L_DQ}")
            e("  ds_or_b32 v7, v5 offset:40")
            e("  s_mov_b64 exec, -1")
            e(f"K_NP{sfx}:")
        def resolve(sfx):
            e(f"  s_add_u32 s{IDXA}, s73, s94")
            e(f"  s_cmp_lt_u32 s73, {NS}")
            e(f"  s_cbranch_scc1 K_RS{sfx}")
            e(f"  s_mov_b32 s{IDXA}, 4096")
            e(f"  s_cmp_ge_u32 s73, {NS+CAP}")
            e(f"  s_cbranch_scc1 K_RS{sfx}")
            e(f"  s_sub_u32 s75, s73, {NS}")
            e("  s_lshl_b32 s75, s75, 2")
            e("  v_mov_b32 v10, s75")
            e(f"  s_mov_b32 s74, {OPT['bnd']:#x}")
            e(f"K_RW{sfx}:")
            e(f"  ds_read_b32 v9, v10 offset:{L_DQ}")
            e("  s_waitcnt lgkmcnt(0)")
            e(f"  v_readfirstlane_b32 s{IDXA}, v9")
            e(f"  s_cmp_lg_u32 s{IDXA}, 0")
            e(f"  s_cbranch_scc1 K_RV{sfx}")
            e("  s_sub_u32 s74, s74, 1")
            e("  s_cmp_lg_u32 s74, 0")
            e(f"  s_cbranch_scc1 K_RW{sfx}")
            e(f"  s_mov_b32 s{IDXA}, {INV}")
            e(f"K_RV{sfx}:")
            e(f"  s_sub_u32 s{IDXA}, s{IDXA}, 1")
            e(f"K_RS{sfx}:")
        def claim(sfx):
            e(f"  s_sub_u32 s75, s73, {NS-D}")
            e(f"  s_cmp_ge_u32 s75, {CAP}")
            e(f"  s_cbranch_scc1 K_NC{sfx}")
            e("  s_bitcmp1_b32 s75, 0")
            e(f"  s_cbranch_scc1 K_NC{sfx}")
            e("  s_lshl_b32 s37, s75, 2")
            e("  s_cmp_eq_u32 s38, 0")
            e(f"  s_cbranch_scc1 K_CA{sfx}")
            e(f"  v_mov_b32 v10, {INV}")
            e(f"  v_mov_b32 v11, {INV}")
            e("  v_mov_b32 v9, s37")
            e("  s_mov_b64 exec, 1")
            e(f"  ds_write_b64 v9, v[10:11] offset:{L_DQ}")
            e("  s_mov_b64 exec, -1")
            e(f"  s_branch K_NC{sfx}")
            e(f"K_CA{sfx}:")
            e("  s_mov_b32 s36, 1")
            e("  v_mov_b32 v250, 2")
            e("  s_mov_b64 exec, 1")
            e(f"  buffer_atomic_add v250, v249, s[{SWS}:{SWS+3}], s93 offen sc0 sc1")
            e("  s_mov_b64 exec, -1")
            e(f"K_NC{sfx}:")
        e("  s_mov_b32 s36, 0")
        e("  v_mov_b32 v249, 0")
        e("K_LOOP:")
        e("  s_waitcnt vmcnt(8)")
        publish("A")
        fetch2()
        c_qk(KA, None)
        getidx2()
        resolve("A")
        e(f"  s_cmp_lt_u32 s{IDXA}, 1024")
        e("  s_cbranch_scc1 K_HAVE")
        fifo_add(8)
        e("  s_branch K_NK")
        e("K_HAVE:")
        blkoff(IDXA)
        e(f"  v_add_u32 v5, s75, v{VKOFF}")
        e(f"  v_add_u32 v6, s75, v{VVOFF}")
        fifo_wait("K_FK", 8)
        kchunk(KA, 5)
        tl(5)
        fifo_add(8)
        e("K_NK:")
        c_sm(nop=True)
        e(f"  s_cmp_lt_u32 s{IDXA}, 1024")
        e("  s_cbranch_scc1 K_W8")
        e("  s_waitcnt vmcnt(0)")
        e("K_W8:")
        c_pv(VA, 8)
        e(f"  s_cmp_ge_u32 s{IDXA}, 1024")
        e("  s_cbranch_scc1 K_DRI")
        fifo_wait("K_FV", 12)
        claim("A")
        vchunk(VA, 6)
        tl(5)
        fifo_add(12)
        x_loads("L")
        h_phase("L")
        e("  s_branch K_LOOP")
        e("K_DRI:")
        claim("B")
        fifo_add(12)
        e("K_DR:")
        e("  s_waitcnt vmcnt(0)")
        publish("B")
        e(f"  s_cmp_ge_u32 s73, {NS+CAP}")
        e("  s_cbranch_scc1 K_EXIT")
        fetch2()
        getidx2()
        resolve("B")
        e(f"  s_cmp_lt_u32 s{IDXA}, 1024")
        e("  s_cbranch_scc1 K_HV2")
        fifo_add(8)
        e("  s_branch K_DRI")
        e("K_HV2:")
        blkoff(IDXA)
        e(f"  v_add_u32 v5, s75, v{VKOFF}")
        e(f"  v_add_u32 v6, s75, v{VVOFF}")
        fifo_wait("K_FK2", 8)
        kchunk(KA, 5)
        fifo_add(8)
        fifo_wait("K_FV2", 12)
        claim("C")
        vchunk(VA, 6)
        fifo_add(12)
        e("  s_branch K_LOOP")
    if OPT["dq"]:
        gen_loop_dq()
    elif OPT["dy"]:
        gen_loop_dy()
    elif OPT["sp"]:
        gen_loop_sp()
    elif OPT["T"]:
        e(f"  s_lshl_b32 s75, s{SB}, 3")
        e(f"  s_add_u32 s75, s75, s{SG}")
        e(f"  s_cmp_lt_u32 s75, {OPT['T']}")
        e("  s_cbranch_scc1 K_LOOPlo")
        POL["k"] = "" if OPT["phi"] & 1 else nt
        POL["v"] = "" if OPT["phi"] & 2 else nt
        gen_loop("hi", False)
        POL["k"] = "" if OPT["plo"] & 1 else nt
        POL["v"] = "" if OPT["plo"] & 2 else nt
        gen_loop("lo", True)
    else:
        gen_loop("", True)
    e("K_EXIT:")
    if OPT["prof"] == 1: stamp(4)
    tl(OPT["prof"])
    tl_dump()
    if not OPT["pf"]:
        e("  s_cmp_eq_u32 s27, 0")
        e("  s_cbranch_scc1 K_X0")
        if OPT["xw"]:
            e("  s_cmp_eq_u32 s27, 5")
            e("  s_cbranch_scc1 K_X0")
        x_loads("E")
        e("  s_mov_b32 s27, 1")
        e("  s_waitcnt vmcnt(0)")
        h_phase("E")
        e("K_X0:")
    if OPT["pf"] == 2:
        wo_once("E")
    elif OPT["pf"]:
        pass
    elif OPT["fd"]:
        fd_exit()
    else:
        e("  s_cmp_ge_u32 s2, 224")
        e("  s_cbranch_scc1 K_HSK")
        if OPT["x2"]:
            e("  v_lshlrev_b32 v248, 4, v12")
            e("  v_lshl_add_u32 v248, v13, 10, v248")
            e("  s_lshr_b32 s75, s2, 3")
            e("  s_lshl_b32 s75, s75, 13")
            e(f"  s_add_u32 s75, s75, {WS_H2}")
        else:
            e("  v_lshrrev_b32 v5, 1, v12")
            e("  v_lshlrev_b32 v248, 3, v5")
            e("  s_lshr_b32 s75, s2, 3")
            e("  s_lshl_b32 s75, s75, 8")
            e(f"  s_add_u32 s75, s75, {WS_HG}")
        e("  v_add_u32 v248, s75, v248")
        h_loads()
        e("K_HSK:")
    e(f"  v_mov_b32 v{T1}, v{L_}")
    e("  s_nop 1")
    e(f"  v_permlane16_swap_b32 v{L_}, v{T1}")
    e("  s_nop 1")
    e(f"  v_add_f32 v{L_}, v{L_}, v{T1}")
    e(f"  v_mov_b32 v{T1}, v{L_}")
    e("  s_nop 1")
    e(f"  v_permlane32_swap_b32 v{L_}, v{T1}")
    e("  s_nop 1")
    e(f"  v_add_f32 v{L_}, v{L_}, v{T1}")
    e("  v_cmp_gt_u32 vcc, 4, v3")
    e("  s_and_saveexec_b64 s[78:79], vcc")
    if OPT["cb"]:
        e("  v_lshlrev_b32 v5, 4, v2")
        e("  v_lshl_add_u32 v5, v3, 2, v5")
        e("  v_add_u32 v5, v4, v5")
        e("  v_mul_u32_u24 v5, 144, v5")
        e("  s_nop 4")
        for t in range(8):
            e(f"  ds_write_b128 v5, v[{ACC+4*t}:{ACC+4*t+3}] offset:{L_O + t*16}")
    else:
        e("  v_lshlrev_b32 v5, 11, v2")
        e("  v_lshl_add_u32 v5, v3, 9, v5")
        e("  v_lshl_add_u32 v5, v4, 7, v5")
        e("  s_nop 4")
        for t in range(8):
            for r in range(4):
                e(f"  ds_write_b32 v5, v{ACC+4*t+r} offset:{L_O + (r*8+t)*4}")
    e("  v_cmp_gt_u32 vcc, 4, v1")
    e("  s_and_b64 exec, exec, vcc")
    e("  v_lshlrev_b32 v6, 5, v2")
    e("  v_lshl_add_u32 v6, v3, 3, v6")
    e(f"  ds_write_b32 v6, v{M_} offset:{L_ML}")
    e(f"  ds_write_b32 v6, v{L_} offset:{L_ML+4}")
    e("  s_mov_b64 exec, s[78:79]")
    if OPT["pf"] == 2:
        fd_at_exit()
    e("  s_waitcnt lgkmcnt(0)")
    e("  s_barrier")
    tl6(2)
    e("  v_lshrrev_b32 v5, 7, v0")
    e("  v_and_b32 v6, 127, v0")
    e("  v_lshlrev_b32 v7, 3, v5")
    for w in range(8):
        e(f"  ds_read_b64 v[{160+2*w}:{161+2*w}], v7 offset:{L_ML + w*32}")
    if OPT["cb"]:
        e("  v_lshrrev_b32 v8, 5, v0")
        e("  v_mul_u32_u24 v8, 144, v8")
        if OPT["t2"]:
            e("  v_and_b32 v9, 24, v0")
            e("  v_and_b32 v10, 1, v0")
            e("  v_lshl_add_u32 v9, v10, 2, v9")
            e("  v_bfe_u32 v10, v0, 1, 2")
            e("  v_add_u32 v9, v10, v9")
        else:
            e("  v_and_b32 v9, 31, v0")
        e("  v_lshl_add_u32 v8, v9, 2, v8")
        for w in range(8):
            e(f"  ds_read_b32 v{176+w}, v8 offset:{L_O + w*2304}")
    else:
        e("  v_lshlrev_b32 v8, 9, v5")
        e("  v_lshl_add_u32 v8, v6, 2, v8")
        for w in range(8):
            e(f"  ds_read_b32 v{176+w}, v8 offset:{L_O + w*2048}")
    e("  s_waitcnt lgkmcnt(0)")
    e("  v_max3_f32 v184, v160, v162, v164")
    e("  v_max3_f32 v185, v166, v168, v170")
    e("  v_max3_f32 v184, v184, v172, v174")
    e("  v_max_f32 v184, v184, v185")
    e("  v_mov_b32 v186, 0")
    e("  v_mov_b32 v187, 0")
    for w in range(8):
        e(f"  v_sub_f32 v185, v{160+2*w}, v184")
        e(f"  v_mul_f32 v185, s{SC}, v185")
        e("  v_exp_f32 v185, v185")
        e("  s_nop 0")
        e(f"  v_fmac_f32 v186, v185, v{161+2*w}")
        e(f"  v_fmac_f32 v187, v185, v{176+w}")
    e(f"  s_lshl_b32 s75, s{SB}, 5")
    e(f"  s_lshl_b32 s76, s{SG}, 2")
    e("  s_add_u32 s75, s75, s76")
    e("  s_lshl_b32 s75, s75, 4")
    e(f"  s_add_u32 s75, s75, s{SSPL}")
    e("  v_lshlrev_b32 v7, 4, v5")
    e("  v_add_u32 v7, s75, v7")
    e("  v_lshlrev_b32 v8, 10, v7")
    e("  v_lshl_add_u32 v8, v6, 3, v8")
    e(f"  s_mov_b32 s75, {WS_OG}")
    e("  v_mov_b32 v188, v187")
    e("  v_mov_b32 v189, s26")
    e(f"  buffer_store_dwordx2 v[188:189], v8, s[{SWS}:{SWS+3}], s75 offen sc1")
    e("  v_cmp_eq_u32 vcc, 0, v6")
    e("  s_and_saveexec_b64 s[78:79], vcc")
    e("  v_lshlrev_b32 v7, 4, v7")
    e("  v_mov_b32 v185, v186")
    e("  v_mov_b32 v186, s26")
    e(f"  s_mov_b32 s75, {WS_MG}")
    e(f"  buffer_store_dwordx3 v[184:186], v7, s[{SWS}:{SWS+3}], s75 offen sc1")
    e("  s_mov_b64 exec, s[78:79]")
    if OPT["prof"] == 1: stamp(5)
    tl6(3)

    def prod(wregs, vecaddr_rows, accbase, nrows):
        for r in range(16):
            e(f"  v_mov_b32 v{accbase+r}, 0")
        for i in range(nrows):
            for c in range(4):
                w = wregs + 4 * i + c
                e(f"  v_lshlrev_b32 v160, 16, v{w}")
                e(f"  v_and_b32 v161, 0xffff0000, v{w}")
                e(f"  v_fmac_f32 v{accbase+2*c}, v160, v{168+2*i}")
                e(f"  v_fmac_f32 v{accbase+1+2*c}, v161, v{168+2*i}")
                e(f"  v_fmac_f32 v{accbase+8+2*c}, v160, v{169+2*i}")
                e(f"  v_fmac_f32 v{accbase+9+2*c}, v161, v{169+2*i}")
        dpp_steps(list(range(accbase, accbase + 16)), ["row_ror:8"])

    def reduce_store(lbase, label, snc):
        e("  v_lshlrev_b32 v5, 2, v2")
        e("  v_add_u32 v5, v5, v4")
        e("  v_lshlrev_b32 v5, 9, v5")
        e("  v_and_b32 v6, 7, v1")
        e("  v_lshl_add_u32 v5, v6, 5, v5")
        e("  v_and_b32 v6, 8, v1")
        e("  v_cmp_eq_u32 vcc, 0, v6")
        e("  s_and_saveexec_b64 s[78:79], vcc")
        e(f"  ds_write_b128 v5, v[180:183] offset:{lbase}")
        e(f"  ds_write_b128 v5, v[184:187] offset:{lbase+16}")
        e(f"  ds_write_b128 v5, v[188:191] offset:{lbase+256}")
        e(f"  ds_write_b128 v5, v[192:195] offset:{lbase+256+16}")
        e("  s_mov_b64 exec, s[78:79]")
        e("  s_waitcnt lgkmcnt(0)")
        e("  s_barrier")
        e("  s_cmp_ge_u32 s3, 2")
        e(f"  s_cbranch_scc1 {label}")
        e("  v_lshlrev_b32 v5, 2, v0")
        for p in range(32):
            e(f"  ds_read_b32 v{204+p}, v5 offset:{lbase + p*512}")
        e("  s_waitcnt lgkmcnt(0)")
        for p in range(1, 31, 2):
            e(f"  v_add_f32 v{204+p}, v{204+p}, v{205+p}")
        e("  v_add_f32 v204, v204, v235")
        for p in range(1, 31, 2):
            e(f"  v_add_f32 v204, v204, v{204+p}")
        e("  v_lshlrev_b32 v5, 12, v2")
        e("  v_lshl_add_u32 v5, v1, 3, v5")
        e(f"  s_lshl_b32 s76, s{snc}, 9")
        e(f"  s_add_u32 s75, s75, s76")
        e("  v_mov_b32 v205, s26")
        e(f"  buffer_store_dwordx2 v[204:205], v5, s[{SWS}:{SWS+3}], s75 offen sc1")
        e(f"{label}:")

    if not OPT["fd"] and not OPT["pf"]:
        e("  s_cmp_ge_u32 s2, 224")
        e("  s_cbranch_scc1 K_T4")
        e(f"  s_mov_b32 s74, {OPT['bnd']:#x}")
        e("  s_waitcnt vmcnt(1)")
        e("K_HR:")
        e("  v_cmp_ne_u32 vcc, s26, v%d" % (246 if OPT["x2"] else 245))
        e("  v_cmp_ne_u32 s[78:79], s26, v247")
        e("  s_or_b64 vcc, vcc, s[78:79]")
        e("  s_cmp_eq_u64 vcc, 0")
        e("  s_cbranch_scc1 K_HOK")
        h_loads()
        e("  s_waitcnt vmcnt(0)")
        e("  s_sub_u32 s74, s74, 1")
        e("  s_cmp_lg_u32 s74, 0")
        e("  s_cbranch_scc1 K_HR")
        e("K_HOK:")
        if OPT["x2"]:
            dpp_steps([244, 245], ["quad_perm:[1,0,3,2]", "quad_perm:[2,3,0,1]", "row_half_mirror"])
            e("  v_max_f32 v168, 0, v244")
            e("  v_max_f32 v169, 0, v245")
            round_bf16(168, 168)
            round_bf16(169, 169)
        else:
            e("  v_and_b32 v5, 1, v12")
            e("  v_cmp_eq_u32 vcc, 1, v5")
            e("  v_lshlrev_b32 v168, 16, v244")
            e("  v_and_b32 v5, 0xffff0000, v244")
            e("  v_lshlrev_b32 v169, 16, v246")
            e("  v_and_b32 v6, 0xffff0000, v246")
            e("  v_cndmask_b32 v168, v168, v5, vcc")
            e("  v_cndmask_b32 v169, v169, v6, vcc")
        prod(W2, None, 180, 1)
        e("  s_lshr_b32 s75, s2, 3")
        e("  s_lshl_b32 s75, s75, 13")
        e(f"  s_add_u32 s75, s75, {WS_GG}")
        reduce_store(L_FP, "K_T3B", SNC)
    e("K_T4:")
    if OPT["t2"]:
        tail2()
        return_early = True
    else:
        return_early = False
    if return_early:
        pass
    elif not OPT["mf"]:
        e("  s_cmp_ge_u32 s3, 4")
        e("  s_cbranch_scc1 K_T6")
        e("  v_lshrrev_b32 v6, 7, v0")
        e("  v_and_b32 v7, 127, v0")
        e("  v_lshlrev_b32 v8, 5, v6")
        e(f"  v_add_u32 v8, s{SHEAD}, v8")
        e("  v_lshlrev_b32 v9, 8, v8")
        e("  v_lshlrev_b32 v10, 14, v8")
        e("  v_lshl_add_u32 v10, v7, 3, v10")
        e(f"  s_mov_b32 s76, {WS_MG}")
        def iss2(sp):
            e(f"  s_mov_b32 s75, {WS_OG + 4096*(sp>>2)}")
            bits = {0:"", 1:" sc1", 2:" sc0", 3:" sc0 sc1", 4:" nt", 5:" sc0 nt"}[OPT["p2"]]
            e(f"  buffer_load_dwordx2 v[{16+2*sp}:{17+2*sp}], v10, s[{SWS}:{SWS+3}], s75 offen offset:{(sp&3)*1024}{bits}")
            e(f"  buffer_load_dwordx3 v[{48+4*sp}:{50+4*sp}], v9, s[{SWS}:{SWS+3}], s76 offen offset:{sp*16}{bits}")
        mpoll("K_P2", 16, iss2, lambda sp: [17+2*sp, 50+4*sp], OPT["thr"])
        if OPT["prof"] == 1: stamp(6)
        M = lambda sp: 48+4*sp
        e(f"  v_max3_f32 v112, v{M(0)}, v{M(1)}, v{M(2)}")
        for sp in range(3, 15, 2):
            e(f"  v_max3_f32 v112, v112, v{M(sp)}, v{M(sp+1)}")
        e(f"  v_max_f32 v112, v112, v{M(15)}")
        e("  v_mov_b32 v113, 0")
        e("  v_mov_b32 v114, 0")
        for sp in range(16):
            e(f"  v_sub_f32 v{M(sp)}, v{M(sp)}, v112")
            e(f"  v_mul_f32 v{M(sp)}, s{SC}, v{M(sp)}")
            e(f"  v_exp_f32 v{M(sp)}, v{M(sp)}")
        e("  s_nop 0")
        for sp in range(16):
            e(f"  v_fmac_f32 v113, v{M(sp)}, v{M(sp)+1}")
            e(f"  v_fmac_f32 v114, v{M(sp)}, v{16+2*sp}")
        e("  v_mov_b32 v49, v113")
        e("  v_mov_b32 v50, v114")
        e("  v_rcp_f32 v49, v49")
        e("  s_nop 0")
        e("  v_mul_f32 v50, v50, v49")
        round_bf16(50, 50)
        e("  v_lshlrev_b32 v8, 2, v0")
        e(f"  ds_write_b32 v8, v50 offset:{L_VEC}")
        e("  s_waitcnt lgkmcnt(0)")
        e("K_T6:")
        e("  s_barrier")
        e("  v_lshlrev_b32 v5, 2, v12")
        e(f"  ds_read_b32 v168, v5 offset:{L_VEC}")
        e(f"  ds_read_b32 v169, v5 offset:{L_VEC+512}")
        e(f"  ds_read_b32 v170, v5 offset:{L_VEC+256}")
        e(f"  ds_read_b32 v171, v5 offset:{L_VEC+512+256}")
        e("  s_waitcnt lgkmcnt(0)")
        prod(WO, None, 180, 2)
        e(f"  s_lshl_b32 s75, s{SHEAD}, 13")
        e(f"  s_add_u32 s75, s75, {WS_SG}")
        reduce_store(L_SP, "K_T6B", SNO)
    else:
        e("  s_cmp_ge_u32 s3, 4")
        e("  s_cbranch_scc1 K_END")
        e("  s_and_b32 s75, s3, 1")
        e("  s_cmp_eq_u32 s75, 1")
        e(f"  s_cselect_b32 s75, s{SP1}, s{SP0}")
        for ks in range(4):
            for q in range(4):
                e(f"  v_perm_b32 v{112+ks*4+q}, v{80+ks*8+2*q+1}, v{80+ks*8+2*q}, s75")
        e("  v_lshrrev_b32 v6, 7, v0")
        e("  v_and_b32 v7, 127, v0")
        e("  v_lshlrev_b32 v8, 5, v6")
        e(f"  v_add_u32 v8, s{SHEAD}, v8")
        e("  v_lshlrev_b32 v9, 8, v8")
        e("  v_lshlrev_b32 v10, 14, v8")
        e("  v_lshl_add_u32 v10, v7, 3, v10")
        e(f"  s_mov_b32 s76, {WS_MG}")
        def iss2(sp):
            e(f"  s_mov_b32 s75, {WS_OG + 4096*(sp>>2)}")
            e(f"  buffer_load_dwordx2 v[{16+2*sp}:{17+2*sp}], v10, s[{SWS}:{SWS+3}], s75 offen offset:{(sp&3)*1024} sc1")
            e(f"  buffer_load_dwordx3 v[{48+4*sp}:{50+4*sp}], v9, s[{SWS}:{SWS+3}], s76 offen offset:{sp*16} sc1")
        e("  v_and_b32 v11, 1, v3")
        e("  v_lshlrev_b32 v11, 8, v11")
        e("  v_lshl_add_u32 v11, v4, 4, v11")
        e("  v_and_b32 v12, 1, v4")
        e("  v_lshlrev_b32 v13, 12, v12")
        e("  v_lshl_add_u32 v13, v3, 4, v13")
        e("  s_lshr_b32 s75, s3, 1")
        e("  s_lshl_b32 s75, s75, 8")
        e("  s_and_b32 s78, s3, 1")
        e("  s_lshl_b32 s78, s78, 3")
        e("  s_add_u32 s75, s75, s78")
        e(f"  s_lshl_b32 s78, s{SNO}, 9")
        e("  s_add_u32 s75, s75, s78")
        e(f"  s_lshl_b32 s78, s{SHEAD}, 13")
        e("  s_add_u32 s75, s75, s78")
        e(f"  s_add_u32 s75, s75, {WS_SG}")
        e("  v_add_u32 v13, s75, v13")
        if OPT["gate"]:
            GB = [4, 36, 52, 80]
            e("  s_lshr_b32 s72, s3, 1")
            e("  s_lshl_b32 s72, s72, 5")
            e(f"  s_add_u32 s72, s72, s{SHEAD}")
            e("  s_lshl_b32 s72, s72, 8")
            e(f"  s_add_u32 s72, s72, {WS_MG}")
            e(f"  s_mov_b32 s74, {OPT['bnd']:#x}")
            e("K_GT:")
            for i, b_ in enumerate(GB):
                e(f"  s_load_dwordx16 s[{b_}:{b_+15}], s[24:25], s72 offset:{64*i} glc")
            e("  s_mov_b32 s75, 0")
            e("  s_waitcnt lgkmcnt(0)")
            for k in range(16):
                e(f"  s_cmp_eq_u32 s{GB[k>>2] + 4*(k&3) + 2}, s26")
                e("  s_addc_u32 s75, s75, 0")
            e(f"  s_cmp_ge_u32 s75, {16-OPT['gthr']}")
            e("  s_cbranch_scc1 K_GTD")
            if OPT["gsl"]: e(f"  s_sleep {OPT['gsl']}")
            e("  s_sub_u32 s74, s74, 1")
            e("  s_cmp_lg_u32 s74, 0")
            e("  s_cbranch_scc1 K_GT")
            e("K_GTD:")
        mpoll("K_P2", 16, iss2, lambda sp: [17+2*sp, 50+4*sp], OPT["thr"])
        if OPT["prof"] == 1: stamp(6)
        tl6(4)
        M = lambda sp: 48+4*sp
        e(f"  v_max3_f32 v128, v{M(0)}, v{M(1)}, v{M(2)}")
        for sp in range(3, 15, 2):
            e(f"  v_max3_f32 v128, v128, v{M(sp)}, v{M(sp+1)}")
        e(f"  v_max_f32 v128, v128, v{M(15)}")
        e("  v_mov_b32 v129, 0")
        e("  v_mov_b32 v130, 0")
        for sp in range(16):
            e(f"  v_sub_f32 v{M(sp)}, v{M(sp)}, v128")
            e(f"  v_mul_f32 v{M(sp)}, s{SC}, v{M(sp)}")
            e(f"  v_exp_f32 v{M(sp)}, v{M(sp)}")
        e("  s_nop 0")
        for sp in range(16):
            e(f"  v_fmac_f32 v129, v{M(sp)}, v{M(sp)+1}")
            e(f"  v_fmac_f32 v130, v{M(sp)}, v{16+2*sp}")
        e("  v_rcp_f32 v129, v129")
        e("  s_nop 0")
        e("  v_mul_f32 v130, v130, v129")
        e("  v_cvt_pk_bf16_f32 v130, v130, v130")
        if OPT["cb"]:
            e("  v_and_b32 v8, 0xe0, v0")
            e("  v_and_b32 v5, 3, v0")
            e("  v_lshl_add_u32 v8, v5, 3, v8")
            e("  v_bfe_u32 v5, v0, 2, 3")
            e("  v_add_u32 v8, v5, v8")
            e("  v_lshlrev_b32 v8, 1, v8")
        else:
            e("  v_lshlrev_b32 v8, 1, v0")
        e(f"  ds_write_b16 v8, v130 offset:{L_VEC}")
        e("  s_waitcnt lgkmcnt(0)")
        e("  s_barrier")
        for ks in range(4):
            e(f"  ds_read_b128 v[{132+4*ks}:{135+4*ks}], v11 offset:{L_VEC + ks*64}")
        e("  s_waitcnt lgkmcnt(0)")
        for ks in range(4):
            c = "0" if ks == 0 else "v[148:151]"
            e(f"  v_mfma_f32_16x16x32_bf16 v[148:151], v[{132+4*ks}:{135+4*ks}], v[{112+4*ks}:{115+4*ks}], {c}")
        e("  v_cmp_eq_u32 vcc, 1, v12")
        e("  v_mov_b32 v153, s26")
        e("  s_nop 7")
        e("  s_nop 7")
        e("  v_cndmask_b32 v152, v148, v149, vcc")
        e("  s_mov_b64 exec, 0xffffffff")
        e(f"  buffer_store_dwordx2 v[152:153], v13, s[{SWS}:{SWS+3}], 0 offen sc1")
        e("  s_mov_b64 exec, -1")
    if not OPT["t2"]:
        if OPT["prof"] == 1: stamp(7)
        tl6(5)
        e("  s_cmp_ge_u32 s2, 8")
        e("  s_cbranch_scc1 K_END")
        e("  s_cmp_ge_u32 s3, 4")
        e("  s_cbranch_scc1 K_END")
        def gpoll(label, n, base):
            def iss(k):
                e(f"  s_mov_b32 s75, {base + k*8192}")
                e(f"  buffer_load_dwordx2 v[{16+2*k}:{17+2*k}], v10, s[{SWS}:{SWS+3}], s75 offen sc1")
            mpoll(label, n, iss, lambda k: [17+2*k], None)
            for k in range(1, n):
                e(f"  v_add_f32 v16, v16, v{16+2*k}")
        e("  v_and_b32 v5, 1, v2")
        e("  v_lshlrev_b32 v5, 11, v5")
        e("  v_lshl_add_u32 v5, v1, 2, v5")
        e(f"  s_and_b32 s76, s2, 7")
        e(f"  s_lshl_b32 s76, s76, 8")
        e("  v_add_u32 v5, s76, v5")
        e("  v_lshlrev_b32 v10, 1, v5")
        e("  s_cmp_ge_u32 s3, 2")
        e("  s_cbranch_scc1 K_FG")
        e("  v_lshrrev_b32 v6, 1, v5")
        e(f"  buffer_load_ushort v4, v6, s[{SX}:{SX+3}], 0 offen")
        gpoll("K_P3", 32, WS_SG)
        tl6(6)
        round_bf16(16, 16)
        e("  s_barrier")
        e("  v_lshlrev_b32 v7, 2, v0")
        e(f"  ds_read_b32 v8, v7 offset:{L_GX}")
        e("  s_waitcnt lgkmcnt(0)")
        e("  v_mul_f32 v8, v8, v16")
        round_bf16(8, 8)
        e("  v_lshlrev_b32 v4, 16, v4")
        e("  v_add_f32 v8, v8, v4")
        e("  v_cvt_pk_bf16_f32 v8, v8, v8")
        e(f"  buffer_store_short v8, v6, s[{SOUT}:{SOUT+3}], 0 offen")
        e("  s_or_b32 s75, s2, s3")
        e("  s_cmp_lg_u32 s75, 0")
        e("  s_cbranch_scc1 K_END")
        e("  s_mov_b64 exec, 1")
        e(f"  v_mov_b32 v5, {WS_EP}")
        e("  v_mov_b32 v6, s26")
        e(f"  buffer_store_dword v6, v5, s[{SWS}:{SWS+3}], 0 offen")
        e("  s_branch K_END")
        e("K_FG:")
        gpoll("K_P4", 28, WS_GG)
        tl6(6)
        round_bf16(16, 16)
        e("  v_mul_f32 v5, 0xbfb8aa3b, v16")
        e("  v_exp_f32 v5, v5")
        e("  s_nop 0")
        e("  v_add_f32 v5, 1.0, v5")
        e("  v_rcp_f32 v5, v5")
        e("  s_nop 0")
        e("  v_mul_f32 v5, v5, v16")
        round_bf16(5, 5)
        e("  v_and_b32 v7, 127, v0")
        e("  v_lshlrev_b32 v7, 2, v7")
        e(f"  ds_write_b32 v7, v5 offset:{L_GX}")
        e("  s_waitcnt lgkmcnt(0)")
        e("  s_barrier")
    e("K_END:")
    dump_stamps()
    e("  s_endpgm")
    e('.section .rodata,"a"')
    e(".p2align 6")
    e(f".amdhsa_kernel {name}")
    e("  .amdhsa_next_free_vgpr 256")
    e("  .amdhsa_next_free_sgpr 102")
    e("  .amdhsa_accum_offset 256")
    e("  .amdhsa_group_segment_fixed_size 0")
    e("  .amdhsa_kernarg_size 88")
    e("  .amdhsa_user_sgpr_count 2")
    e("  .amdhsa_user_sgpr_kernarg_segment_ptr 1")
    e("  .amdhsa_system_sgpr_workgroup_id_x 1")
    e(".end_amdhsa_kernel")

def main():
    path = f"cdna_kernels/{NAME}.s"
    for a in sys.argv[1:]:
        if "=" in a:
            k, v = a.split("=", 1)
            OPT[k] = (" " + v if v else "") if k == "nt" else int(v)
        else:
            path = a
    e(HEADER.rstrip("\n"))
    lds = 61952 if OPT["x2"] else LDS_SIZE
    e(f"; @launch grid=(256,1,1) block=(512,1,1) lds={lds}")
    e('.amdgcn_target "amdgcn-amd-amdhsa--gfx950"')
    gen()
    open(path, "w").write("\n".join(out) + "\n")

main()
```

```python
import sys

NAME = "recurrent_scan__gqa_block_cached__dense_activation_relu__decode"

HEADER = """; Kernarg layout for this problem (88 bytes, ptrs only, base s[0:1]):
;   offset   0: d_in[0] A_x  shape=(2, 1, 512) dtype=bfloat16 strides=(1024, 1024, 2) contiguous=True
;   offset   8: d_in[1] A_k_cache  shape=(2, 8, 32768, 128) dtype=bfloat16 strides=(67108864, 8388608, 256, 2) contiguous=True
;   offset  16: d_in[2] A_v_cache  shape=(2, 8, 32768, 128) dtype=bfloat16 strides=(67108864, 8388608, 256, 2) contiguous=True
;   offset  24: d_in[3] A_wq  shape=(512, 4096) dtype=bfloat16 strides=(8192, 2) contiguous=True
;   offset  32: d_in[4] A_wo  shape=(4096, 512) dtype=bfloat16 strides=(1024, 2) contiguous=True
;   offset  40: d_in[5] B_x  shape=(2, 1, 512) dtype=bfloat16 strides=(1024, 1024, 2) contiguous=True
;   offset  48: d_in[6] B_w1  shape=(512, 1792) dtype=bfloat16 strides=(3584, 2) contiguous=True
;   offset  56: d_in[7] B_w2  shape=(1792, 512) dtype=bfloat16 strides=(1024, 2) contiguous=True
"""

WS_Q = 0
WS_H = 16384
WS_ML = 32768
WS_O = 65536
WS_P = 1 << 20
WS_G = WS_P + 131072
WS_SIZE = 536870912
WS_QG = 2 << 20
WS_HG = WS_QG + 32768
WS_EP = WS_QG + 65536
WS_QF = WS_QG + 131072
WS_OG = 5 << 20
WS_MG = 6 << 20
WS_SG = WS_MG + 65536
WS_GG = 7 << 20
WS_PC = 3 << 20

L_XN = 0
L_QP = 4096
L_Q = 5632
L_HV = 6656
L_CNT = 7168
L_O = 8192
L_ML = 26624
L_FP = 27136
L_VEC = 0
L_SP = 8192
L_GX = 1024
LDS_SIZE = 43520
L_DQ = 7232
L_WO = 43520
WS_PR = 11 << 20
WS_H2 = 10 << 20

OPT = dict(nt=" nt", sleep=1, prof=0, pre0=0, pace=8, bar0=1, wsc=0, thr=2, p2=1, ilv=0, kx=0, nbuf=1, nw=8, kpl=0, vpl=0, T=0, plo=0, phi=0, mf=1, prex=0, qs=0, warm=0, xb=1, f1=8, np=8, sl=8, psl=8, bnd=0x100000, bar2=1, f2=8, rot=0, map=1, ns=64, fake=0, warmp=0, nsub=4, fifo=1, fw=0, fsl=1, dup=1, rs=1, qsl=0, qp=4, sp=1, nf=10, cb=1, fd=0, fdt=32, gate=0, gthr=2, gsl=1, t2=1, spec=8, psl2=1, pw=1, fsl2=1, fw2=1, obar=0, f1st=1, pf=0, dy=0, dfi=1, x2=0, dq=0, dd=10, cap=32, il2=0, bm=0, ra=4, rb=0, xw=0, th=0, tp=20, tr=28, te=64, tg=20, tlim=600, tm=3, ts=150, jd=0, nd=0, fs=0, mg=0, rg=0, rm=1, rr=1, bs4=2, ps=0, xs=0, rq=0, rz=0, pclk=0, wnt=0, wpol=0)

out = []
def e(s=""):
    if OPT["wnt"] and s.startswith("  buffer_load"):
        for bit, base in ((1, 40), (2, 44), (4, 48), (8, 52), (16, 28)):
            if (OPT["wnt"] & bit) and f"s[{base}:{base+3}]" in s:
                s = s + [" nt", " sc1", " sc0 sc1", " nt sc1"][OPT["wpol"]]
    out.append(s)

def srd(dst, lo, hi, nbytes):
    e(f"  s_mov_b32 s{dst}, s{lo}")
    e(f"  s_and_b32 s{dst+1}, s{hi}, 0xffff")
    e(f"  s_mov_b32 s{dst+2}, {nbytes}")
    e(f"  s_mov_b32 s{dst+3}, 0x00020000")

def dpp_steps(regs, ctrls):
    for ctrl in ctrls:
        e("  s_nop 1")
        for r in regs:
            e(f"  v_add_f32_dpp v{r}, v{r}, v{r} {ctrl} row_mask:0xf bank_mask:0xf")

def swap_steps(regs, tmp):
    for sw in ["v_permlane16_swap_b32", "v_permlane32_swap_b32"]:
        for r, t in zip(regs, tmp):
            e(f"  v_mov_b32 v{t}, v{r}")
        e("  s_nop 1")
        for r, t in zip(regs, tmp):
            e(f"  {sw} v{r}, v{t}")
        e("  s_nop 1")
        for r, t in zip(regs, tmp):
            e(f"  v_add_f32 v{r}, v{r}, v{t}")

def red_steps(regs, tmp, op, ctrls=("row_ror:4", "row_ror:8")):
    for ctrl in ctrls:
        e("  s_nop 1")
        for r in regs:
            e(f"  {op}_dpp v{r}, v{r}, v{r} {ctrl} row_mask:0xf bank_mask:0xf")
    for sw in ["v_permlane16_swap_b32", "v_permlane32_swap_b32"]:
        for r, t in zip(regs, tmp):
            e(f"  v_mov_b32 v{t}, v{r}")
        e("  s_nop 1")
        for r, t in zip(regs, tmp):
            e(f"  {sw} v{r}, v{t}")
        e("  s_nop 1")
        for r, t in zip(regs, tmp):
            e(f"  {op} v{r}, v{r}, v{t}")

def wave_sum(regs, tmp):
    dpp_steps(regs, ["quad_perm:[1,0,3,2]", "quad_perm:[2,3,0,1]", "row_half_mirror", "row_mirror"])
    swap_steps(regs, tmp)

def round_bf16(dst, src):
    e(f"  v_cvt_pk_bf16_f32 v{dst}, v{src}, v{src}")
    e(f"  v_lshlrev_b32 v{dst}, 16, v{dst}")

WS_PROF = 4 << 20
def stamp(k):
    if not OPT["prof"] or OPT["prof"] >= 3:
        return
    e("  s_memrealtime s[80:81]")
    e("  s_waitcnt lgkmcnt(0)")
    e(f"  s_mov_b32 s{92+k}, s80")

WS_PROF3 = 8 << 20
def tl(k=3):
    if OPT["prof"] != k:
        return
    e("  s_memrealtime s[98:99]")
    e("  s_waitcnt lgkmcnt(0)")
    e("  v_writelane_b32 v251, s98, m0")
    if OPT.get("pclk"):
        e("  s_memtime s[98:99]")
        e("  s_waitcnt lgkmcnt(0)")
        e("  s_add_u32 m0, m0, 16")
        e("  v_writelane_b32 v251, s98, m0")
        e("  s_sub_u32 m0, m0, 16")
    e("  s_add_u32 m0, m0, 1")
    if k == 7: e("  s_min_u32 m0, m0, 63")

def tl6(i):
    if OPT["prof"] != 6:
        return
    e(f"  s_mov_b32 m0, {i}")
    tl(6)

def tl_dump(final=False):
    if OPT["prof"] < 3:
        return
    if (OPT["prof"] == 6) != final:
        return
    if final:
        e("  s_mov_b64 exec, -1")
    e("  s_lshl_b32 s82, s2, 3")
    e("  s_add_u32 s82, s82, s3")
    e("  s_lshl_b32 s82, s82, 8")
    e(f"  s_add_u32 s82, s82, {WS_PROF3}")
    e("  v_lshlrev_b32 v5, 2, v1")
    e(f"  buffer_store_dword v251, v5, s[{SWS}:{SWS+3}], s82 offen")

def dump_stamps():
    if not OPT["prof"]:
        return
    if OPT["prof"] >= 3:
        tl6(7)
        tl_dump(True)
        e("K_END2:")
        return
    e("  s_cmp_ge_u32 s3, 2")
    e("  s_cbranch_scc1 K_END2")
    e("  s_cmp_ge_u32 s2, 256")
    e("  s_cbranch_scc1 K_END2")
    stamp(8)
    e("  s_lshl_b32 s82, s2, 1")
    e("  s_add_u32 s82, s82, s3")
    e("  s_lshl_b32 s82, s82, 6")
    e(f"  s_add_u32 s82, s82, {WS_PROF}")
    e("  s_mov_b64 exec, 1")
    e("  v_mov_b32 v6, 0")
    for k in range(9):
        e(f"  v_mov_b32 v5, s{92+k}")
        e(f"  buffer_store_dword v5, v6, s[{SWS}:{SWS+3}], s82 offen offset:{k*4}")
    e("K_END2:")

SX, SK, SV, SWQ, SW1, SWO, SW2, SWS, SDBG, SOUT = 28, 60, 64, 40, 44, 48, 52, 20, 999, 32
SC, SP0, SP1 = 68, 69, 70
IDXA, IDXB = 72, 73
SG, SR, SB, SSPL, SNC, SHEAD = 86, 87, 88, 89, 90, 91
SNO, SCG, SHC = 83, 84, 85

def poll(label, nlanes, voff, target, tmpv):
    e(f"  s_mov_b64 exec, {(1<<nlanes)-1:#x}")
    e("  s_mov_b32 s74, 0x400000")
    e(f"{label}:")
    e(f"  buffer_load_dword v{tmpv}, v{voff}, s[{SDBG}:{SDBG+3}], 0 offen sc1")
    e("  s_waitcnt vmcnt(0)")
    e(f"  v_cmp_ne_u32 vcc, {target}, v{tmpv}")
    e("  s_cmp_eq_u64 vcc, 0")
    e(f"  s_cbranch_scc1 {label}_DONE")
    if OPT["sleep"]:
        e(f"  s_sleep {OPT['sleep']}")
    e("  s_sub_u32 s74, s74, 1")
    e("  s_cmp_lg_u32 s74, 0")
    e(f"  s_cbranch_scc1 {label}")
    e(f"{label}_DONE:")
    e("  s_mov_b64 exec, -1")

def mpoll(label, n, issue, tags, thr):
    full = (1 << n) - 1
    e("  s_not_b32 s75, s26")
    for k in range(n):
        for x in tags(k):
            e(f"  v_mov_b32 v{x}, s75")
    e("  s_mov_b32 s77, 0")
    e(f"  s_mov_b32 s74, {OPT['bnd']:#x}")
    e(f"{label}:")
    for k in range(n):
        e(f"  s_bitcmp1_b32 s77, {k}")
        e(f"  s_cbranch_scc1 {label}S{k}")
        issue(k)
        e(f"{label}S{k}:")
    if thr is not None:
        e(f"  s_xor_b32 s75, s77, {full:#x}")
        e("  s_bcnt1_i32_b32 s75, s75")
        e(f"  s_cmp_le_u32 s75, {thr}")
        e(f"  s_cbranch_scc1 {label}F")
        e("  s_waitcnt vmcnt(0)")
        e(f"{label}F:")
    if OPT["sleep"]:
        e(f"  s_sleep {OPT['sleep']}")
    for k in range(n):
        t = tags(k)
        e(f"  v_cmp_eq_u32 vcc, s26, v{t[0]}")
        for x in t[1:]:
            e(f"  v_cmp_eq_u32 s[78:79], s26, v{x}")
            e("  s_and_b64 vcc, vcc, s[78:79]")
        e("  s_cmp_eq_u64 vcc, -1")
        e(f"  s_cselect_b32 s75, {1<<k:#x}, 0")
        e("  s_or_b32 s77, s77, s75")
    e(f"  s_cmp_eq_u32 s77, {full:#x}")
    e(f"  s_cbranch_scc1 {label}_DONE")
    e("  s_sub_u32 s74, s74, 1")
    e("  s_cmp_lg_u32 s74, 0")
    e(f"  s_cbranch_scc1 {label}")
    e(f"{label}_DONE:")
    e("  s_waitcnt vmcnt(0)")

def tail2():
    B = OPT['bnd']
    if OPT["obar"]:
        e("  s_barrier")
    if OPT["fs"]:
        e("  v_and_b32 v5, 3, v1")
        e("  v_lshrrev_b32 v6, 2, v1")
        e("  s_cmp_lt_u32 s2, 8")
        e("  s_cbranch_scc1 T_FIN")
    if not OPT["jd"]:
        e("  s_cmp_%s_u32 s3, 4" % ("lt" if OPT["pf"] else "ge"))
        e("  s_cbranch_scc1 T_NW")
    e("  s_and_b32 s75, s3, 1")
    e("  s_cmp_eq_u32 s75, 1")
    e(f"  s_cselect_b32 s75, s{SP1}, s{SP0}")
    if OPT["jd"]:
        e("  v_mul_u32_u24 v11, 2176, v4")
        e("  v_lshl_add_u32 v11, v3, 2, v11")
        e("  s_lshr_b32 s76, s3, 1")
        e("  s_lshl_b32 s76, s76, 6")
        e(f"  s_add_u32 s76, s76, {L_WO}")
        e("  v_add_u32 v11, s76, v11")
        for ks in range(4):
            for jj in range(8):
                e(f"  ds_read_b32 v{80+ks*8+jj}, v11 offset:{(ks*32+jj)*272}")
        e("  s_waitcnt lgkmcnt(0)")
    elif OPT["x2"]:
        e("  v_mul_u32_u24 v11, 1152, v4")
        e("  v_lshl_add_u32 v11, v3, 2, v11")
        e("  s_bfe_u32 s76, s3, 0x10001")
        e("  s_lshl_b32 s76, s76, 6")
        e("  v_add_u32 v11, s76, v11")
        for ks in range(4):
            for jj in range(8):
                e(f"  ds_read_b32 v{80+ks*8+jj}, v11 offset:{L_WO + (ks*32+jj)*144}")
        e("  s_waitcnt lgkmcnt(0)")
    for ks in range(4):
        for q in range(4):
            e(f"  v_perm_b32 v{112+ks*4+q}, v{80+ks*8+2*q+1}, v{80+ks*8+2*q}, s75")
    e("  v_and_b32 v11, 1, v3")
    e("  v_lshlrev_b32 v11, 8, v11")
    e("  v_lshl_add_u32 v11, v4, 4, v11")
    e("  v_and_b32 v12, 1, v4")
    e("  v_lshlrev_b32 v13, 12, v12")
    e("  v_lshl_add_u32 v13, v3, 4, v13")
    if OPT["jd"]:
        e("  s_lshr_b32 s75, s3, 1")
    else:
        e("  s_bfe_u32 s75, s3, 0x10001")
    e("  s_lshl_b32 s75, s75, 8")
    e("  s_and_b32 s78, s3, 1")
    e("  s_lshl_b32 s78, s78, 3")
    e("  s_add_u32 s75, s75, s78")
    if OPT["jd"]:
        e(f"  s_and_b32 s78, s{SNO}, 3")
        e(f"  s_lshl_b32 s78, s78, 10")
    else:
        e(f"  s_lshl_b32 s78, s{SNO}, 9")
    e("  s_add_u32 s75, s75, s78")
    e(f"  s_lshl_b32 s78, s{SHEAD}, 13")
    e("  s_add_u32 s75, s75, s78")
    e(f"  s_add_u32 s75, s75, {WS_SG}")
    e("  v_add_u32 v13, s75, v13")
    e("T_NW:")
    e("  v_and_b32 v5, 3, v1")
    e("  v_lshrrev_b32 v6, 2, v1")
    e("  s_lshr_b32 s75, s3, 2")
    e("  s_lshl_b32 s75, s75, 5")
    e(f"  s_add_u32 s75, s75, s{SHEAD}")
    e("  s_lshl_b32 s76, s75, 8")
    e("  v_lshlrev_b32 v9, 4, v6")
    e("  v_add_u32 v9, s76, v9")
    e("  s_lshl_b32 s76, s75, 14")
    e("  s_and_b32 s75, s3, 3")
    e("  s_lshl_b32 s75, s75, 8")
    e("  s_add_u32 s76, s76, s75")
    e("  v_lshlrev_b32 v10, 10, v6")
    e("  v_lshl_add_u32 v10, v5, 4, v10")
    e("  v_add_u32 v10, s76, v10")
    e("  s_not_b32 s75, s26")
    for r in [17, 19, 21, 23, 25, 27, 29, 31, 34]:
        e(f"  v_mov_b32 v{r}, s75")
    e("  s_mov_b64 s[76:77], -1")
    e("  s_mov_b64 s[78:79], -1")
    e(f"  s_mov_b32 s72, {WS_MG}")
    e(f"  s_mov_b32 s73, {WS_OG}")
    e(f"  s_mov_b32 s74, {B:#x}")
    e(f"  s_mov_b32 s84, {64 if OPT['f1st'] else OPT['spec']}")
    e("T_P:")
    e("  s_mov_b64 exec, s[76:77]")
    e("  s_cbranch_execz T_P1")
    e(f"  buffer_load_dwordx3 v[32:34], v9, s[{SWS}:{SWS+3}], s72 offen sc1")
    e("T_P1:")
    e("  s_or_b64 s[80:81], s[76:77], s[78:79]")
    e("  s_bcnt1_i32_b64 s75, s[80:81]")
    e("  s_andn2_b64 s[80:81], s[78:79], s[76:77]")
    e(f"  s_cmp_le_u32 s75, s84")
    e(f"  s_mov_b32 s84, {OPT['spec']}")
    e("  s_cselect_b64 exec, s[78:79], s[80:81]")
    e("  s_cbranch_execz T_P2")
    for i in range(4):
        e(f"  buffer_load_dwordx4 v[{16+4*i}:{19+4*i}], v10, s[{SWS}:{SWS+3}], s73 offen offset:{64*i} sc1")
    e("T_P2:")
    e("  s_mov_b64 exec, -1")
    if OPT["pw"] == 1:
        e("  s_waitcnt vmcnt(0)")
    else:
        e(f"  s_cmp_le_u32 s75, {OPT['spec']}")
        e("  s_cbranch_scc1 T_P3")
        e("  s_waitcnt vmcnt(0)")
        e("T_P3:")
        e(f"  s_waitcnt vmcnt({OPT['pw']})")
    if OPT["psl2"]: e(f"  s_sleep {OPT['psl2']}")
    e("  v_cmp_ne_u32 s[76:77], s26, v34")
    e("  v_cmp_ne_u32 s[78:79], s26, v17")
    for r in [19, 21, 23, 25, 27, 29, 31]:
        e(f"  v_cmp_ne_u32 vcc, s26, v{r}")
        e("  s_or_b64 s[78:79], s[78:79], vcc")
    e("  s_or_b64 s[80:81], s[76:77], s[78:79]")
    e("  s_cmp_eq_u64 s[80:81], 0")
    e("  s_cbranch_scc1 T_PD")
    e("  s_sub_u32 s74, s74, 1")
    e("  s_cmp_lg_u32 s74, 0")
    e("  s_cbranch_scc1 T_P")
    e("T_PD:")
    if not OPT["nd"]:
        e("  s_waitcnt vmcnt(0)")
    tl6(4)
    if OPT["nd"]:
        e("  v_mov_b32 v35, v32")
        e("  v_mov_b32 v46, v32")
        e("  v_mov_b32 v47, v33")
        red_steps([35], [36], "v_max_f32")
        e("  v_sub_f32 v46, v46, v35")
        e(f"  v_mul_f32 v46, s{SC}, v46")
        e("  v_exp_f32 v46, v46")
        e("  s_nop 0")
        e("  v_mul_f32 v47, v47, v46")
        vals = list(range(48, 56))
        for i, r in enumerate(vals):
            e(f"  v_mul_f32 v{r}, v{16+2*i}, v46")
        red_steps([47] + vals, list(range(36, 45)), "v_add_f32")
        e("  v_rcp_f32 v47, v47")
        e("  s_nop 0")
        for r in vals:
            e(f"  v_mul_f32 v{r}, v{r}, v47")
        for i in range(4):
            e(f"  v_cvt_pk_bf16_f32 v{36+i}, v{48+2*i}, v{49+2*i}")
    else:
        e("  v_mov_b32 v35, v32")
        red_steps([35], [36], "v_max_f32")
        e("  v_sub_f32 v32, v32, v35")
        e(f"  v_mul_f32 v32, s{SC}, v32")
        e("  v_exp_f32 v32, v32")
        e("  s_nop 0")
        e("  v_mul_f32 v33, v33, v32")
        vals = [16, 18, 20, 22, 24, 26, 28, 30]
        for r in vals:
            e(f"  v_mul_f32 v{r}, v{r}, v32")
        red_steps([33] + vals, list(range(36, 45)), "v_add_f32")
        e("  v_rcp_f32 v33, v33")
        e("  s_nop 0")
        for r in vals:
            e(f"  v_mul_f32 v{r}, v{r}, v33")
        for i in range(4):
            e(f"  v_cvt_pk_bf16_f32 v{36+i}, v{16+4*i}, v{18+4*i}")
    e("  s_lshl_b32 s75, s3, 6")
    e("  v_lshl_add_u32 v8, v5, 4, s75")
    e("  s_mov_b64 exec, 0xf")
    e(f"  ds_write_b128 v8, v[36:39] offset:{L_VEC}")
    e("  s_mov_b64 exec, -1")
    e("  s_waitcnt lgkmcnt(0)")
    e("  s_barrier")
    if not OPT["jd"]:
        e("  s_cmp_%s_u32 s3, 4" % ("lt" if OPT["pf"] else "ge"))
        e("  s_cbranch_scc1 T_F")
    for ks in range(4):
        e(f"  ds_read_b128 v[{132+4*ks}:{135+4*ks}], v11 offset:{L_VEC + ks*64}")
    e("  s_waitcnt lgkmcnt(0)")
    for ks in range(4):
        c = "0" if ks == 0 else "v[148:151]"
        e(f"  v_mfma_f32_16x16x32_bf16 v[148:151], v[{132+4*ks}:{135+4*ks}], v[{112+4*ks}:{115+4*ks}], {c}")
    e("  v_cmp_eq_u32 vcc, 1, v12")
    e("  v_mov_b32 v153, s26")
    e("  s_nop 7")
    e("  s_nop 7")
    e("  v_cndmask_b32 v152, v148, v149, vcc")
    e("  s_mov_b64 exec, 0xffffffff")
    e(f"  buffer_store_dwordx2 v[152:153], v13, s[{SWS}:{SWS+3}], 0 offen sc1")
    e("  s_mov_b64 exec, -1")
    tl6(5)
    e("T_F:")
    e("  s_cmp_ge_u32 s2, 8")
    e("  s_cbranch_scc1 K_END")
    e("T_FIN:")
    e("  s_lshr_b32 s75, s3, 2")
    e("  s_lshl_b32 s75, s75, 9")
    e("  s_and_b32 s76, s2, 7")
    e("  s_lshl_b32 s76, s76, 6")
    e("  s_add_u32 s75, s75, s76")
    e("  s_and_b32 s76, s3, 3")
    e("  s_lshl_b32 s76, s76, 4")
    e("  s_add_u32 s75, s75, s76")
    e("  v_lshlrev_b32 v7, 1, v5")
    e("  v_add_u32 v7, s75, v7")
    e("  v_lshlrev_b32 v8, 1, v7")
    e(f"  buffer_load_dword v46, v8, s[{SX}:{SX+3}], 0 offen")
    e(f"  buffer_load_dword v47, v8, s[{SX}:{SX+3}], 0 offen offset:16")
    e("  v_lshlrev_b32 v10, 3, v7")
    e("  v_lshl_add_u32 v10, v6, 13, v10")
    def fpoll(lbl, base, m1, dst, R=16):
        if not OPT["nd"]: R = 16
        e("  s_not_b32 s75, s26")
        for r in range(R, R+16):
            e(f"  v_mov_b32 v{r}, " + ("s75" if (r & 1) else "0"))
        e("  s_mov_b64 s[76:77], -1")
        e(f"  s_mov_b32 s78, {m1 & 0xffffffff:#x}")
        e(f"  s_mov_b32 s79, {m1 >> 32:#x}")
        e(f"  s_mov_b64 s[82:83], s[78:79]")
        e(f"  s_mov_b32 s72, {base}")
        e(f"  s_mov_b32 s73, {base + 131072}")
        e(f"  s_mov_b32 s74, {B:#x}")
        e(f"{lbl}:")
        e("  s_mov_b64 exec, s[76:77]")
        e(f"  s_cbranch_execz {lbl}1")
        for i in range(2):
            e(f"  buffer_load_dwordx4 v[{R+4*i}:{R+3+4*i}], v10, s[{SWS}:{SWS+3}], s72 offen offset:{64*i} sc1")
        e(f"{lbl}1:")
        e("  s_mov_b64 exec, s[78:79]")
        e(f"  s_cbranch_execz {lbl}2")
        for i in range(2):
            e(f"  buffer_load_dwordx4 v[{R+8+4*i}:{R+11+4*i}], v10, s[{SWS}:{SWS+3}], s73 offen offset:{64*i} sc1")
        e(f"{lbl}2:")
        e("  s_mov_b64 exec, -1")
        e(f"  s_waitcnt vmcnt({0 if OPT['fw2']==1 else OPT['fw2']})")
        if OPT["fsl2"]: e(f"  s_sleep {OPT['fsl2']}")
        e(f"  v_cmp_ne_u32 s[76:77], s26, v{R+1}")
        for r in [R+3, R+5, R+7]:
            e(f"  v_cmp_ne_u32 vcc, s26, v{r}")
            e("  s_or_b64 s[76:77], s[76:77], vcc")
        e(f"  v_cmp_ne_u32 s[78:79], s26, v{R+9}")
        for r in [R+11, R+13, R+15]:
            e(f"  v_cmp_ne_u32 vcc, s26, v{r}")
            e("  s_or_b64 s[78:79], s[78:79], vcc")
        e("  s_and_b64 s[78:79], s[78:79], s[82:83]")
        e("  s_or_b64 s[80:81], s[76:77], s[78:79]")
        e("  s_cmp_eq_u64 s[80:81], 0")
        e(f"  s_cbranch_scc1 {lbl}D")
        e("  s_sub_u32 s74, s74, 1")
        e("  s_cmp_lg_u32 s74, 0")
        e(f"  s_cbranch_scc1 {lbl}")
        e(f"{lbl}D:")
        if not OPT["nd"]:
            e("  s_waitcnt vmcnt(0)")
        for k in range(4):
            e(f"  v_add_f32 v{dst+k}, v{R+2*k}, v{R+8+2*k}")
        red_steps(list(range(dst, dst+4)), list(range(36, 40)), "v_add_f32")
        for k in range(4):
            round_bf16(dst+k, dst+k)
    def fpoll_mg_g():
        e("  s_not_b32 s75, s26")
        for r in range(160, 192):
            e(f"  v_mov_b32 v{r}, " + ("s75" if (r & 1) else "0"))
        e("  s_mov_b64 s[76:77], -1")
        e("  s_mov_b32 s78, -1")
        e("  s_mov_b32 s79, 0xffff")
        e("  s_mov_b64 s[82:83], s[78:79]")
        e("  s_mov_b64 s[86:87], -1")
        e("  s_mov_b64 s[88:89], -1")
        e(f"  s_mov_b32 s72, {WS_GG}")
        e(f"  s_mov_b32 s73, {WS_GG + 131072}")
        e(f"  s_mov_b32 s84, {WS_SG}")
        e(f"  s_mov_b32 s85, {WS_SG + 131072}")
        e(f"  s_mov_b32 s74, {B:#x}")
        def iss(lbl, mask, so, R):
            e(f"  s_mov_b64 exec, s[{mask}:{mask+1}]")
            e(f"  s_cbranch_execz {lbl}")
            for i in range(2):
                e(f"  buffer_load_dwordx4 v[{R+4*i}:{R+3+4*i}], v10, s[{SWS}:{SWS+3}], s{so} offen offset:{64*i} sc1")
            e(f"{lbl}:")
        def chk(mask, R):
            e(f"  v_cmp_ne_u32 s[{mask}:{mask+1}], s26, v{R+1}")
            for r in [R+3, R+5, R+7]:
                e(f"  v_cmp_ne_u32 vcc, s26, v{r}")
                e(f"  s_or_b64 s[{mask}:{mask+1}], s[{mask}:{mask+1}], vcc")
        e("T_M:")
        iss("T_M1", 76, 72, 160)
        iss("T_M2", 78, 73, 168)
        iss("T_M3", 86, 84, 176)
        iss("T_M4", 88, 85, 184)
        e("  s_mov_b64 exec, -1")
        e("  s_waitcnt vmcnt(0)")
        if OPT["fsl2"]: e(f"  s_sleep {OPT['fsl2']}")
        chk(76, 160)
        chk(78, 168)
        chk(86, 176)
        chk(88, 184)
        e("  s_and_b64 s[78:79], s[78:79], s[82:83]")
        e("  s_or_b64 s[80:81], s[76:77], s[78:79]")
        e("  s_cmp_eq_u64 s[80:81], 0")
        e("  s_cbranch_scc1 T_MD")
        e("  s_sub_u32 s74, s74, 1")
        e("  s_cmp_lg_u32 s74, 0")
        e("  s_cbranch_scc1 T_M")
        e("T_MD:")
        iss("T_M5", 86, 84, 176)
        iss("T_M6", 88, 85, 184)
        e("  s_mov_b64 exec, -1")
        for k in range(4):
            e(f"  v_add_f32 v{40+k}, v{160+2*k}, v{168+2*k}")
        red_steps(list(range(40, 44)), list(range(36, 40)), "v_add_f32")
        for k in range(4):
            round_bf16(40+k, 40+k)
    def fpoll_mg_s():
        def iss(lbl, mask, so, R):
            e(f"  s_mov_b64 exec, s[{mask}:{mask+1}]")
            e(f"  s_cbranch_execz {lbl}")
            for i in range(2):
                e(f"  buffer_load_dwordx4 v[{R+4*i}:{R+3+4*i}], v10, s[{SWS}:{SWS+3}], s{so} offen offset:{64*i} sc1")
            e(f"{lbl}:")
        def chk(mask, R):
            e(f"  v_cmp_ne_u32 s[{mask}:{mask+1}], s26, v{R+1}")
            for r in [R+3, R+5, R+7]:
                e(f"  v_cmp_ne_u32 vcc, s26, v{r}")
                e(f"  s_or_b64 s[{mask}:{mask+1}], s[{mask}:{mask+1}], vcc")
        e(f"  s_mov_b32 s74, {B:#x}")
        e("  s_branch T_N0")
        e("T_N:")
        iss("T_N3", 86, 84, 176)
        iss("T_N4", 88, 85, 184)
        e("  s_mov_b64 exec, -1")
        e("T_N0:")
        e("  s_waitcnt vmcnt(0)")
        chk(86, 176)
        chk(88, 184)
        e("  s_or_b64 s[80:81], s[86:87], s[88:89]")
        e("  s_cmp_eq_u64 s[80:81], 0")
        e("  s_cbranch_scc1 T_ND")
        if OPT["fsl2"]: e(f"  s_sleep {OPT['fsl2']}")
        e("  s_sub_u32 s74, s74, 1")
        e("  s_cmp_lg_u32 s74, 0")
        e("  s_cbranch_scc1 T_N")
        e("T_ND:")
        for k in range(4):
            e(f"  v_add_f32 v{48+k}, v{176+2*k}, v{184+2*k}")
        red_steps(list(range(48, 52)), list(range(36, 40)), "v_add_f32")
        for k in range(4):
            round_bf16(48+k, 48+k)
    if OPT["mg"]:
        fpoll_mg_g()
    else:
        fpoll("T_G", WS_GG, (1 << 48) - 1, 40, 160)
    for k in range(4):
        e(f"  v_mul_f32 v{36+k}, 0xbfb8aa3b, v{40+k}")
    for k in range(4):
        e(f"  v_exp_f32 v{36+k}, v{36+k}")
    e("  s_nop 0")
    for k in range(4):
        e(f"  v_add_f32 v{36+k}, 1.0, v{36+k}")
    for k in range(4):
        e(f"  v_rcp_f32 v{36+k}, v{36+k}")
    e("  s_nop 0")
    for k in range(4):
        e(f"  v_mul_f32 v{40+k}, v{36+k}, v{40+k}")
    for k in range(4):
        round_bf16(40+k, 40+k)
    if OPT["mg"]:
        fpoll_mg_s()
    else:
        fpoll("T_S", WS_SG, (1 << 64) - 1, 48, 176)
    tl6(6)
    for k in range(4):
        e(f"  v_mul_f32 v{48+k}, v{48+k}, v{40+k}")
    for k in range(4):
        round_bf16(48+k, 48+k)
    for k in range(2):
        e(f"  v_lshlrev_b32 v36, 16, v{46+k}")
        e(f"  v_and_b32 v37, 0xffff0000, v{46+k}")
        e(f"  v_add_f32 v{48+2*k}, v{48+2*k}, v36")
        e(f"  v_add_f32 v{49+2*k}, v{49+2*k}, v37")
        e(f"  v_cvt_pk_bf16_f32 v{48+2*k}, v{48+2*k}, v{49+2*k}")
    e("  s_mov_b64 exec, 0xf")
    e(f"  buffer_store_dword v48, v8, s[{SOUT}:{SOUT+3}], 0 offen")
    e(f"  buffer_store_dword v50, v8, s[{SOUT}:{SOUT+3}], 0 offen offset:16")
    e("  s_or_b32 s75, s2, s3")
    e("  s_cmp_lg_u32 s75, 0")
    e("  s_cbranch_scc1 K_END")
    e("  s_mov_b64 exec, 1")
    e(f"  v_mov_b32 v5, {WS_EP}")
    e("  v_mov_b32 v6, s26")
    e(f"  buffer_store_dword v6, v5, s[{SWS}:{SWS+3}], 0 offen")

def gen():
    nt = OPT["nt"]
    BS = 17 if OPT["ilv"] else 13
    POL = dict(k="" if OPT["kpl"] else nt, v="" if OPT["vpl"] else nt)
    name = NAME + "_kernel"
    e(".text")
    e(f".globl {name}")
    e(".p2align 8")
    e(f".type {name},@function")
    e(f"{name}:")
    KA, VA, KB, VB = 16, 48, 80, 112
    ACC = 144
    QF = 176
    ST = 192
    PF = 200
    TR = 204
    M_, L_, T0, T1, AL, MC = 236, 237, 238, 239, 240, 241
    VKOFF, VVOFF = 242, 243
    WO = 244
    W2 = 252
    e("  s_cmp_ge_u32 s2, 256")
    e("  s_cbranch_scc1 K_END2" if OPT["prof"] else "  s_cbranch_scc1 K_END")
    if OPT["xs"]:
        import random
        rnd = random.Random(OPT["xs"])
        bits = (*range(6), *range(6), 6, 7)
        def good(masks):
            steps = list(zip(bits, masks))
            def one(d):
                for bit, mask in reversed(steps):
                    if d >> bit & 1: d ^= mask
                return d % 8 == 0
            apart = [8 << k for k in range(5)]
            return not any(map(one, apart)) and any(map(one, range(1, 8)))
        while True:
            masks = [rnd.randrange(64) & ~(1 << b) for b in bits]
            if all(masks) and good(masks): break
        for b, m in zip(bits, masks):
            e(f"  s_bitcmp1_b32 s2, {b}")
            e(f"  s_cselect_b32 s3, {m}, 0")
            e("  s_xor_b32 s2, s2, s3")
    e("  s_load_dwordx16 s[4:19], s[0:1], 0")
    e("  s_load_dwordx2 s[24:25], s[0:1], 80")
    e("  v_and_b32 v1, 63, v0")
    e("  v_lshrrev_b32 v2, 6, v0")
    e("  v_and_b32 v3, 15, v1")
    e("  v_lshrrev_b32 v4, 4, v1")
    e("  v_mov_b32 v248, 0")
    e("  v_readfirstlane_b32 s3, v2")
    def derive():
        e(f"  s_and_b32 s{SG}, s2, 7")
        e(f"  s_lshr_b32 s{SR}, s2, 3")
        e(f"  s_and_b32 s{SNO}, s{SR}, 7")
        e(f"  s_lshl_b32 s{SCG}, s{SG}, 5")
        e(f"  s_add_u32 s{SCG}, s{SCG}, s{SR}")
        e(f"  s_lshr_b32 s{SHC}, s{SR}, 3")
        e(f"  s_lshl_b32 s{SHC}, s{SHC}, 6")
        e(f"  s_lshl_b32 s74, s{SG}, 3")
        e(f"  s_add_u32 s{SHC}, s{SHC}, s74")
        e(f"  s_add_u32 s{SHC}, s{SHC}, s{SNO}")
        e(f"  s_lshr_b32 s{SB}, s{SR}, 4")
        e(f"  s_and_b32 s{SSPL}, s{SR}, 15")
        e(f"  s_and_b32 s{SNC}, s2, 7")
        e(f"  s_lshr_b32 s{SHEAD}, s{SR}, 3")
        e(f"  s_lshl_b32 s74, s{SG}, 2")
        e(f"  s_add_u32 s{SHEAD}, s{SHEAD}, s74")
        if OPT["map"]:
            e(f"  s_lshr_b32 s{SB}, s2, 7")
            e(f"  s_lshr_b32 s{SG}, s2, 4")
            e(f"  s_and_b32 s{SG}, s{SG}, 7")
            e(f"  s_and_b32 s{SSPL}, s2, 15")
        if OPT["rg"]:
            L = OPT["rg"]; W = 256 >> L
            if OPT["rm"]:
                e(f"  s_and_b32 s75, s2, {(1<<L)-1}")
                e(f"  s_lshr_b32 s76, s2, {L}")
            else:
                e(f"  s_lshr_b32 s75, s2, {8-L}")
                e(f"  s_and_b32 s76, s2, {W-1}")
            e(f"  s_lshr_b32 s74, s75, {L-4}")
            e(f"  s_lshr_b32 s{SB}, s74, 3")
            e(f"  s_and_b32 s{SG}, s74, 7")
            e(f"  s_and_b32 s77, s75, {(1<<(L-4))-1}")
            e(f"  s_lshl_b32 s{SSPL}, s77, {8-L}")
            e(f"  s_add_u32 s{SSPL}, s{SSPL}, s76")
        e(f"  s_lshl_b32 s93, s{SB}, 3")
        e(f"  s_add_u32 s93, s93, s{SG}")
        e(f"  s_mul_i32 s93, s93, {OPT['nsub']}")
        e(f"  s_and_b32 s74, s3, {OPT['nsub']-1}")
        e(f"  s_add_u32 s93, s93, s74")
        e(f"  s_lshl_b32 s93, s93, 8")
        e(f"  s_add_u32 s93, s93, {WS_PC}")
        e(f"  s_mul_i32 s92, s74, {(1024-16*OPT['ns'])//OPT['nsub']}")
        e(f"  s_add_u32 s92, s92, {16*OPT['ns']}")
        e(f"  s_mul_i32 s94, s{SSPL}, {OPT['ns']}")
        if OPT["il2"]:
            G = 1 << OPT["il2"]
            e(f"  s_lshr_b32 s94, s{SSPL}, {OPT['il2']}")
            e(f"  s_lshl_b32 s94, s94, {OPT['il2']+6}")
            e(f"  s_and_b32 s74, s{SSPL}, {G-1}")
            e(f"  s_add_u32 s94, s94, s74")
        e("  s_mov_b32 s95, 0")
        if OPT["rg"]:
            L = OPT["rg"]; W = 256 >> L
            e(f"  s_lshr_b32 s94, s{SSPL}, {8-L}")
            e(f"  s_lshl_b32 s94, s94, {14-L}")
            e(f"  s_and_b32 s76, s{SSPL}, {W-1}")
            e(f"  s_lshl_b32 s76, s76, {OPT['bs4']}")
            e("  s_add_u32 s94, s94, s76")
            if OPT["rm"]:
                e(f"  s_and_b32 s75, s2, {(1<<L)-1}")
            else:
                e(f"  s_lshr_b32 s75, s2, {8-L}")
            e(f"  s_mul_i32 s95, s75, {OPT['rr']}")
            if OPT["rq"]:
                e("  s_lshr_b32 s76, s75, 2")
                e(f"  s_mul_i32 s76, s76, {OPT['rq']}")
                e("  s_add_u32 s95, s95, s76")
            if OPT["rz"]:
                e("  s_lshr_b32 s76, s75, 4")
                e(f"  s_mul_i32 s76, s76, {OPT['rz']}")
                e("  s_add_u32 s95, s95, s76")
        if OPT["bm"] & 1:
            e(f"  s_mul_i32 s95, s{SSPL}, {OPT['ra']}")
            e(f"  s_lshr_b32 s74, s2, 4")
            e(f"  s_mul_i32 s74, s74, {OPT['rb']}")
            e(f"  s_add_u32 s95, s95, s74")
    def mapidx(src):
        G = OPT["il2"]
        if OPT["rg"]:
            B4 = OPT["bs4"]
            e(f"  s_lshr_b32 s75, s{src}, {B4}")
            e("  s_add_u32 s75, s75, s95")
            e(f"  s_and_b32 s75, s75, {(64>>B4)-1}")
            e(f"  s_lshl_b32 s75, s75, {8-OPT['rg']+B4}")
            e(f"  s_and_b32 s76, s{src}, {(1<<B4)-1}")
            e("  s_add_u32 s75, s75, s76")
            e(f"  s_add_u32 s{IDXA}, s75, s94")
            return
        if OPT["bm"] & 2:
            e(f"  s_and_b32 s75, s{src}, 7")
            e(f"  s_lshl_b32 s75, s75, 3")
            e(f"  s_lshr_b32 s76, s{src}, 3")
            e(f"  s_or_b32 s75, s75, s76")
            src = 75
        if OPT["bm"] & 1:
            e(f"  s_add_u32 s75, s{src}, s95")
            e(f"  s_and_b32 s75, s75, 63")
            src = 75
        if G:
            e(f"  s_lshl_b32 s75, s{src}, {G}")
            src = 75
        e(f"  s_add_u32 s{IDXA}, s{src}, s94")
    derive()
    e(f"  s_lshl_b32 s74, s{SB}, 3")
    e(f"  s_add_u32 s74, s74, s{SG}")
    e("  s_lshl_b32 s74, s74, 23")

    e(f"  s_mov_b32 s{SC}, 0x3e0293ee")
    e(f"  s_mov_b32 s{SP0}, 0x05040100")
    e(f"  s_mov_b32 s{SP1}, 0x07060302")
    e("  s_lshl_b32 s75, s3, 1")
    e(f"  s_sub_u32 s{IDXA}, s75, 2")
    e(f"  s_sub_u32 s{IDXB}, s75, 1")
    if OPT["nbuf"] == 1:
        mapidx(3)
        if OPT["nw"] < 8:
            e(f"  s_cmp_ge_u32 s3, {OPT['nw']}")
            e(f"  s_cselect_b32 s{IDXA}, 64, s{IDXA}")
    e("  v_and_b32 v5, 3, v3")
    e("  v_lshrrev_b32 v6, 2, v3")
    e("  v_lshl_add_u32 v5, v5, 2, v6")
    e("  v_lshlrev_b32 v5, 8, v5")
    e(f"  v_lshl_add_u32 v{VKOFF}, v4, 4, v5")
    e(f"  v_lshlrev_b32 v{VVOFF}, 4, v1")
    if OPT["kx"]:
        e(f"  v_lshlrev_b32 v{VKOFF}, 4, v1")
    e("  s_waitcnt lgkmcnt(0)")
    if not OPT["rs"]:
        e(f"  s_mov_b32 s75, {WS_EP}")
        e("  s_load_dword s26, s[24:25], s75")
    srd(SX, 4, 5, 2048)
    srd(SWQ, 10, 11, 512 * 4096 * 2)
    srd(SWS, 24, 25, WS_SIZE)
    e(f"  s_add_u32 s{SK}, s6, s74")
    e(f"  s_addc_u32 s{SK+1}, s7, 0")
    e(f"  s_and_b32 s{SK+1}, s{SK+1}, 0xffff")
    if OPT['ilv']:
        e(f"  s_lshl_b32 s75, s{SSPL}, 13")
        e(f"  s_sub_u32 s{SK+2}, {8<<20}, s75")
    else:
        e(f"  s_mov_b32 s{SK+2}, {8<<20}")
    e(f"  s_mov_b32 s{SK+3}, 0x00020000")
    e(f"  s_add_u32 s{SV}, s8, s74")
    e(f"  s_addc_u32 s{SV+1}, s9, 0")
    e(f"  s_and_b32 s{SV+1}, s{SV+1}, 0xffff")
    e(f"  s_mov_b32 s{SV+2}, s{SK+2}")
    e(f"  s_mov_b32 s{SV+3}, 0x00020000")
    e(f"  s_mov_b32 s71, {1 << OPT['ps']}" if OPT["ps"] else "  s_movk_i32 s71, 4096")
    e("  s_and_b32 s75, s2, 0x78")
    e("  s_or_b32 s75, s75, s3")
    e("  s_cmp_lg_u32 s75, 0")
    e("  s_cbranch_scc1 K_NOINIT")
    e("  s_lshr_b32 s75, s2, 7")
    e("  s_lshl_b32 s75, s75, 3")
    e("  s_and_b32 s76, s2, 7")
    e("  s_add_u32 s75, s75, s76")
    e(f"  s_mul_i32 s75, s75, {OPT['nsub']*256}")
    e(f"  s_add_u32 s75, s75, {WS_PC}")
    e("  v_mov_b32 v5, 0")
    e("  v_lshlrev_b32 v6, 8, v1")
    e(f"  s_mov_b64 exec, {(1<<OPT['nsub'])-1}")
    e(f"  buffer_store_dword v5, v6, s[{SWS}:{SWS+3}], s75 offen sc1")
    e("  s_mov_b64 exec, -1")
    e("K_NOINIT:")
    if OPT["warm"]:
        e(f"  s_lshl_b32 s75, s{SCG}, 6")
        e(f"  s_add_u32 s75, s75, {WS_QG}")
        e("  s_load_dword s98, s[24:25], s75")
        e("  s_add_u32 s75, s75, 16384")
        e("  s_load_dword s99, s[24:25], s75")
    stamp(0)
    if OPT["prof"] >= 3:
        e("  v_mov_b32 v251, 0")
        e("  s_mov_b32 m0, 0")
        tl(OPT["prof"])
    F1 = max(OPT["f1"], OPT["pre0"])
    def kchunk_l(KR, vo):
        r=[]
        if OPT["kx"]:
            for j in range(8):
                so = "0" if j < 4 else "s71"
                r.append(f"  buffer_load_dwordx4 v[{KR+4*j}:{KR+4*j+3}], v{vo}, s[{SK}:{SK+3}], {so} offen offset:{(j&3)*1024}{nt}")
            return r
        for t in range(2):
            for i in range(4):
                so = "0" if t == 0 else "s71"
                r.append(f"  buffer_load_dwordx4 v[{KR+16*t+4*i}:{KR+16*t+4*i+3}], v{vo}, s[{SK}:{SK+3}], {so} offen offset:{i*64}{POL['k']}")
        return r
    def vchunk_l(VR, vo):
        r=[]
        for j in range(8):
            so = "0" if j < 4 else "s71"
            r.append(f"  buffer_load_dwordx4 v[{VR+4*j}:{VR+4*j+3}], v{vo}, s[{SV}:{SV+3}], {so} offen offset:{(j&3)*1024}{POL['v']}")
        return r
    def kchunk(KR, vo):
        for l in kchunk_l(KR, vo): e(l)
    def vchunk(VR, vo):
        for l in vchunk_l(VR, vo): e(l)
    def blkoff(sidx):
        if OPT["rot"]:
            e(f"  s_add_u32 s75, s{sidx}, s73")
            e("  s_and_b32 s75, s75, 63")
            e(f"  s_lshl_b32 s75, s75, {BS}")
            e(f"  s_cmp_lt_u32 s{sidx}, 64")
            e("  s_cselect_b32 s75, s75, 0x100000")
        elif OPT["ps"]:
            a = OPT["ps"] - 12
            e(f"  s_lshr_b32 s75, s{sidx}, {a}")
            e(f"  s_lshl_b32 s75, s75, {OPT['ps']+1}")
            e(f"  s_and_b32 s76, s{sidx}, {(1<<a)-1}")
            e("  s_lshl_b32 s76, s76, 12")
            e("  s_add_u32 s75, s75, s76")
        else:
            e(f"  s_lshl_b32 s75, s{sidx}, {BS}")
    def loads(KR, VR, sidx):
        blkoff(sidx)
        e(f"  v_add_u32 v5, s75, v{VKOFF}")
        e(f"  v_add_u32 v6, s75, v{VVOFF}")
        kchunk(KR, 5)
        vchunk(VR, 6)
    def wo_loads():
        e("  v_lshlrev_b32 v14, 10, v12")
        e("  v_lshl_add_u32 v14, v13, 4, v14")
        if not OPT["mf"]:
            e(f"  s_lshl_b32 s75, s{SNO}, 7")
            e("  v_add_u32 v15, s75, v14")
            e(f"  s_lshl_b32 s75, s{SHEAD}, 17")
            e("  v_add_u32 v15, s75, v15")
            e(f"  buffer_load_dwordx4 v[{WO}:{WO+3}], v15, s[{SWO}:{SWO+3}], 0 offen")
            e("  v_add_u32 v15, 0x10000, v15")
            e(f"  buffer_load_dwordx4 v[{WO+4}:{WO+7}], v15, s[{SWO}:{SWO+3}], 0 offen")
        else:
            lab = f"K_WOS{len(out)}"
            e("  s_cmp_ge_u32 s3, 4")
            e(f"  s_cbranch_scc1 {lab}")
            e("  v_lshlrev_b32 v15, 13, v4")
            e("  v_lshl_add_u32 v15, v3, 2, v15")
            e(f"  s_lshl_b32 s75, s{SHEAD}, 17")
            e(f"  s_lshl_b32 s76, s{SNO}, 7")
            e("  s_add_u32 s75, s75, s76")
            e("  s_lshr_b32 s76, s3, 1")
            e("  s_lshl_b32 s76, s76, 6")
            e("  s_add_u32 s75, s75, s76")
            for ks in range(4):
                for jh in range(2):
                    for j in range(4):
                        e(f"  buffer_load_dword v{80+ks*8+jh*4+j}, v15, s[{SWO}:{SWO+3}], s75 offen offset:{j*1024}")
                    if not (ks == 3 and jh == 1):
                        e(f"  s_add_u32 s75, s75, {4096 if jh == 0 else 32768-4096}")
            e(f"{lab}:")
        e("  s_lshr_b32 s75, s2, 3")
        e("  s_lshl_b32 s75, s75, 16")
        e("  v_add_u32 v15, s75, v14")
        e(f"  s_lshl_b32 s75, s{SNC}, 7")
        e("  v_add_u32 v15, s75, v15")
        e(f"  buffer_load_dwordx4 v[{W2}:{W2+3}], v15, s[{SW2}:{SW2+3}], 0 offen")

    X = 144
    def ln_code():
        for b in range(2):
            for c in range(4):
                e(f"  v_lshlrev_b32 v{X+8*b+2*c}, 16, v{204+4*b+c}")
                e(f"  v_and_b32 v{X+1+8*b+2*c}, 0xffff0000, v{204+4*b+c}")
        for b in range(2):
            t = 160 + 4 * b
            e(f"  v_pk_add_f32 v[{t}:{t+1}], v[{X+8*b}:{X+8*b+1}], v[{X+8*b+2}:{X+8*b+3}]")
            e(f"  v_pk_add_f32 v[{t+2}:{t+3}], v[{X+8*b+4}:{X+8*b+5}], v[{X+8*b+6}:{X+8*b+7}]")
        for b in range(2):
            t = 160 + 4 * b
            e(f"  v_pk_add_f32 v[{t}:{t+1}], v[{t}:{t+1}], v[{t+2}:{t+3}]")
        e("  v_add_f32 v160, v160, v161")
        e("  v_add_f32 v161, v164, v165")
        wave_sum([160, 161], [162, 163])
        e("  v_mul_f32 v160, 0x3b000000, v160")
        e("  v_mul_f32 v161, 0x3b000000, v161")
        bsel = [" op_sel_hi:[1,0]", " op_sel:[0,1] op_sel_hi:[1,1]"]
        for b in range(2):
            for c in range(4):
                t = 168 + 8 * b + 2 * c
                e(f"  v_pk_add_f32 v[{t}:{t+1}], v[{X+8*b+2*c}:{X+8*b+2*c+1}], v[160:161]{bsel[b]} neg_lo:[0,1] neg_hi:[0,1]")
        for b in range(2):
            t = 168 + 8 * b
            e(f"  v_pk_mul_f32 v[{164+2*b}:{165+2*b}], v[{t}:{t+1}], v[{t}:{t+1}]")
        for c in range(1, 4):
            for b in range(2):
                t = 168 + 8 * b + 2 * c
                e(f"  v_pk_fma_f32 v[{164+2*b}:{165+2*b}], v[{t}:{t+1}], v[{t}:{t+1}], v[{164+2*b}:{165+2*b}]")
        e("  v_add_f32 v164, v164, v165")
        e("  v_add_f32 v165, v166, v167")
        wave_sum([164, 165], [162, 163])
        e("  v_mul_f32 v164, 0x3b000000, v164")
        e("  v_mul_f32 v165, 0x3b000000, v165")
        for b in range(2):
            round_bf16(164 + b, 164 + b)
            e(f"  v_add_f32 v{164+b}, 0x3727c5ac, v{164+b}")
            round_bf16(164 + b, 164 + b)
            e(f"  v_sqrt_f32 v{164+b}, v{164+b}")
            e("  s_nop 0")
            round_bf16(164 + b, 164 + b)
            e(f"  v_rcp_f32 v{164+b}, v{164+b}")
            round_bf16(160 + b, 160 + b)
        for b in range(2):
            for c in range(4):
                r = X + 8 * b + 2 * c
                e(f"  v_pk_add_f32 v[{r}:{r+1}], v[{r}:{r+1}], v[160:161]{bsel[b]} neg_lo:[0,1] neg_hi:[0,1]")
            for c in range(4):
                r = X + 8 * b + 2 * c
                e(f"  v_cvt_pk_bf16_f32 v{168+c}, v{r}, v{r+1}")
            for c in range(4):
                r = X + 8 * b + 2 * c
                e(f"  v_lshlrev_b32 v{r}, 16, v{168+c}")
                e(f"  v_and_b32 v{r+1}, 0xffff0000, v{168+c}")
            for c in range(4):
                r = X + 8 * b + 2 * c
                e(f"  v_pk_mul_f32 v[{r}:{r+1}], v[{r}:{r+1}], v[164:165]{bsel[b]}")
            for c in range(4):
                r = X + 8 * b + 2 * c
                e(f"  v_cvt_pk_bf16_f32 v{168+c}, v{r}, v{r+1}")
            for c in range(4):
                r = X + 8 * b + 2 * c
                e(f"  v_lshlrev_b32 v{r}, 16, v{168+c}")
                e(f"  v_and_b32 v{r+1}, 0xffff0000, v{168+c}")
        e("  v_lshlrev_b32 v5, 5, v1")
        for b in range(2):
            e(f"  ds_write_b128 v5, v[{X+8*b}:{X+8*b+3}] offset:{L_XN + b*2048}")
            e(f"  ds_write_b128 v5, v[{X+8*b+4}:{X+8*b+7}] offset:{L_XN + b*2048 + 16}")
        e("  s_waitcnt lgkmcnt(0)")

    def pk_part(w, xr, acc0, acc1, first):
        e(f"  v_lshlrev_b32 v160, 16, v{w}")
        e(f"  v_and_b32 v161, 0xffff0000, v{w}")
        if first:
            e(f"  v_pk_mul_f32 v[{acc0}:{acc0+1}], v[160:161], v[{xr}:{xr+1}] op_sel_hi:[1,0]")
            e(f"  v_pk_mul_f32 v[{acc1}:{acc1+1}], v[160:161], v[{xr}:{xr+1}] op_sel:[0,1] op_sel_hi:[1,1]")
        else:
            e(f"  v_pk_fma_f32 v[{acc0}:{acc0+1}], v[160:161], v[{xr}:{xr+1}], v[{acc0}:{acc0+1}] op_sel_hi:[1,0,1]")
            e(f"  v_pk_fma_f32 v[{acc1}:{acc1+1}], v[160:161], v[{xr}:{xr+1}], v[{acc1}:{acc1+1}] op_sel:[0,1,0] op_sel_hi:[1,1,1]")
    if OPT["rs"]:
        e("  v_lshrrev_b32 v12, 3, v0")
        e("  v_and_b32 v13, 7, v0")
        blkoff(IDXA)
        e(f"  v_add_u32 v228, s75, v{VKOFF}")
        e(f"  v_add_u32 v229, s75, v{VVOFF}")
        pl = kchunk_l(KA, 228) + vchunk_l(VA, 229)
        e("  s_cmp_ge_u32 s3, 4")
        e("  s_cbranch_scc1 K_FLOOD")
        e("  v_lshlrev_b32 v5, 4, v1")
        e(f"  buffer_load_dwordx4 v[204:207], v5, s[{SX}:{SX+3}], 0 offen")
        e(f"  buffer_load_dwordx4 v[208:211], v5, s[{SX}:{SX+3}], 0 offen offset:1024")
        e("  v_lshrrev_b32 v6, 2, v0")
        e("  v_and_b32 v7, 3, v0")
        e("  v_lshlrev_b32 v8, 13, v6")
        e("  v_lshl_add_u32 v8, v7, 3, v8")
        e(f"  s_lshl_b32 s75, s{SCG}, 5")
        e("  v_add_u32 v8, s75, v8")
        for i in range(8):
            if i:
                e(f"  v_add_u32 v8, 0x80000, v8")
            e(f"  buffer_load_dwordx2 v[{212+2*i}:{213+2*i}], v8, s[{SWQ}:{SWQ+3}], 0 offen")
        e("  s_cmp_lg_u32 s3, 0")
        e("  s_cbranch_scc1 K_NOLI")
        e("  v_mov_b32 v8, 8")
        e("  v_mov_b32 v9, 0")
        e("  v_mov_b32 v10, 8")
        e("  v_mov_b32 v11, 8")
        e(f"  v_mov_b32 v5, {L_CNT}")
        e("  s_mov_b64 exec, 1")
        e("  ds_write_b128 v5, v[8:11]")
        e("  v_mov_b32 v8, 0")
        e("  v_mov_b32 v10, 0")
        e("  v_mov_b32 v11, 0")
        e("  ds_write_b128 v5, v[8:11] offset:16")
        e("  ds_write_b128 v5, v[8:11] offset:32")
        e("  s_mov_b64 exec, -1")
        if OPT["dq"]:
            e("  v_lshlrev_b32 v5, 2, v1")
            e(f"  ds_write_b32 v5, v9 offset:{L_DQ}")
        e("  s_waitcnt lgkmcnt(0)")
        e("K_NOLI:")
        e("  s_barrier")
        e(f"  s_mov_b32 s75, {WS_EP}")
        e("  s_load_dword s26, s[24:25], s75")
        e("  v_lshrrev_b32 v230, 3, v1")
        e("  v_lshlrev_b32 v230, 14, v230")
        e("  v_and_b32 v7, 7, v1")
        e("  v_lshl_add_u32 v230, v7, 3, v230")
        e(f"  s_lshl_b32 s75, s{SCG}, 6")
        e(f"  s_add_u32 s75, s75, {WS_QG}")
        e("  v_add_u32 v230, s75, v230")
        e("  s_mul_i32 s75, s3, 192")
        e("  v_lshlrev_b32 v231, 4, v1")
        e("  v_add_u32 v231, s75, v231")
        e("  s_waitcnt vmcnt(8)")
        tl(4)
        ln_code()
        e("  s_add_u32 s26, s26, 1")
        e("  v_lshrrev_b32 v5, 2, v0")
        e("  v_lshlrev_b32 v5, 2, v5")
        for i in range(8):
            e(f"  ds_read2st64_b32 v[{168+2*i}:{169+2*i}], v5 offset0:{(L_XN + i*256)//256} offset1:{(L_XN + i*256 + 2048)//256}")
        e(f"  v_mov_b32 v7, {L_CNT}")
        e("  v_mov_b32 v8, 1")
        e("  v_lshlrev_b32 v9, 3, v1")
        tl(4)
        e("  s_waitcnt vmcnt(0) lgkmcnt(0)")
        tl(4)
        for i in range(8):
            for c in range(2):
                pk_part(212 + 2 * i + c, 168 + 2 * i, 184 + 2 * c, 188 + 2 * c, i == 0)
        dpp_steps(list(range(184, 192)), ["row_ror:4", "row_ror:8"])
        swap_steps(list(range(184, 192)), list(range(204, 212)))
        e("  s_mov_b64 exec, 0xf")
        e(f"  ds_write_b128 v231, v[184:187] offset:{L_QP}")
        e(f"  ds_write_b128 v231, v[188:191] offset:{L_QP+64}")
        e("  s_mov_b64 exec, 1")
        e("  ds_add_rtn_u32 v6, v7, v8 offset:16")
        e("  s_mov_b64 exec, -1")
        e("  s_waitcnt lgkmcnt(0)")
        tl(4)
        e("  v_readfirstlane_b32 s75, v6")
        e("  s_cmp_lg_u32 s75, 3")
        e("  s_cbranch_scc1 K_QW")
        e("  s_mov_b64 exec, 0xffff")
        for w in range(4):
            e(f"  ds_read_b64 v[{160+2*w}:{161+2*w}], v9 offset:{L_QP + w*192}")
        e("  v_mov_b32 v169, s26")
        e("  s_waitcnt lgkmcnt(0)")
        e("  v_pk_add_f32 v[160:161], v[160:161], v[162:163]")
        e("  v_pk_add_f32 v[164:165], v[164:165], v[166:167]")
        e("  v_pk_add_f32 v[160:161], v[160:161], v[164:165]")
        e("  v_cvt_pk_bf16_f32 v168, v160, v161")
        e(f"  buffer_store_dwordx2 v[168:169], v230, s[{SWS}:{SWS+3}], 0 offen sc1")
        e("  s_mov_b64 exec, 1")
        e("  ds_add_u32 v7, v8 offset:20")
        e("  ds_add_u32 v7, v8 offset:24")
        e("  s_mov_b64 exec, -1")
        e("K_QW:")
        e(f"  s_mov_b32 s74, {OPT['bnd']:#x}")
        e("K_QWL:")
        e("  ds_read_b32 v6, v7 offset:20")
        e("  s_waitcnt lgkmcnt(0)")
        e("  v_readfirstlane_b32 s75, v6")
        e("  s_cmp_ge_u32 s75, 5")
        e("  s_cbranch_scc1 K_QGO")
        e("  s_sub_u32 s74, s74, 1")
        e("  s_cmp_lg_u32 s74, 0")
        e("  s_cbranch_scc1 K_QWL")
        e("K_QGO:")
        tl(4)
        PB = [4, 28, 44, 80]
        prs = [b_ + 2*k for b_ in PB for k in range(8)]
        def poll_addr():
            e(f"  s_lshl_b32 s72, s{SB}, 14")
            e(f"  s_lshl_b32 s76, s{SG}, 11")
            e("  s_add_u32 s72, s72, s76")
            e("  s_lshl_b32 s76, s3, 8")
            e("  s_add_u32 s72, s72, s76")
            e(f"  s_add_u32 s72, s72, {WS_QG}")
            e("  s_lshl_b32 s76, s3, 7")
            e("  v_lshlrev_b32 v6, 2, v1")
            e("  v_add_u32 v6, s76, v6")
        def poll_issue():
            for i, b_ in enumerate(PB):
                e(f"  s_load_dwordx16 s[{b_}:{b_+15}], s[24:25], s72 offset:{64*i} glc")
        def poll_check(ok):
            e("  s_waitcnt lgkmcnt(0)")
            e(f"  s_and_b64 s[76:77], s[{prs[0]}:{prs[0]+1}], s[{prs[1]}:{prs[1]+1}]")
            e(f"  s_or_b64 s[78:79], s[{prs[0]}:{prs[0]+1}], s[{prs[1]}:{prs[1]+1}]")
            for r in prs[2:]:
                e(f"  s_and_b64 s[76:77], s[76:77], s[{r}:{r+1}]")
                e(f"  s_or_b64 s[78:79], s[78:79], s[{r}:{r+1}]")
            e("  s_xor_b32 s77, s77, s26")
            e("  s_xor_b32 s79, s79, s26")
            e("  s_or_b32 s77, s77, s79")
            e("  s_cmp_eq_u32 s77, 0")
            e(f"  s_cbranch_scc1 {ok}")
        def poll_save():
            for k, r in enumerate(prs):
                e(f"  v_writelane_b32 v5, s{r}, {k}")
            e("  s_mov_b64 exec, 0xffffffff")
            e(f"  ds_write_b32 v6, v5 offset:{L_Q}")
            e("  s_mov_b64 exec, 1")
            e("  ds_add_u32 v7, v8 offset:24")
            e("  s_mov_b64 exec, -1")
        poll_addr()
        QP = OPT["qp"]
        PS = 16 // QP
        for k in range(QP):
            poll_issue()
            for c in range(k*PS, (k+1)*PS):
                e(pl[c])
                if c in (7, 15): tl(5)
            poll_check(f"K_QP{k}")
        e("  s_branch K_SPL")
        for k in range(QP):
            e(f"K_QP{k}:")
            poll_save()
            if OPT["prof"] == 4:
                e("  s_mov_b32 m0, 8")
            tl(4)
            for c in range((k+1)*PS, 16):
                e(pl[c])
                if c in (7, 15): tl(5)
            e("  s_branch K_QR")
        e("K_FLOOD:")
        if OPT["pf"] == 2:
            e("  s_barrier")
        if OPT["pf"]:
            srd(SW1, 16, 17, 512 * 1792 * 2)
            srd(SWO, 12, 13, 4096 * 512 * 2)
            srd(SW2, 18, 19, 1792 * 512 * 2)
            e("  v_bfe_u32 v9, v0, 1, 7")
            e("  v_and_b32 v10, 1, v0")
            e("  s_movk_i32 s75, 3584")
            e("  v_mul_lo_u32 v11, v9, s75")
            e("  v_lshl_add_u32 v11, v10, 3, v11")
            e(f"  s_lshl_b32 s75, s{SHC}, 4")
            e("  v_add_u32 v11, s75, v11")
            for i in range(4):
                if i:
                    e(f"  v_add_u32 v11, {128*3584}, v11")
                e(f"  buffer_load_dwordx2 v[{112+2*i}:{113+2*i}], v11, s[{SW1}:{SW1+3}], 0 offen")
        if OPT["pf"] == 1:
            e("  v_lshrrev_b32 v9, 3, v1")
            e("  v_and_b32 v10, 7, v1")
            e("  v_lshlrev_b32 v11, 10, v9")
            e("  v_lshl_add_u32 v11, v10, 4, v11")
            e("  s_lshr_b32 s75, s2, 3")
            e("  s_lshl_b32 s75, s75, 16")
            e("  s_and_b32 s76, s3, 3")
            e("  s_lshl_b32 s76, s76, 14")
            e("  s_add_u32 s75, s75, s76")
            e("  s_and_b32 s76, s2, 7")
            e("  s_lshl_b32 s76, s76, 7")
            e("  s_add_u32 s75, s75, s76")
            e(f"  buffer_load_dwordx4 v[120:123], v11, s[{SW2}:{SW2+3}], s75 offen")
            e("  s_add_u32 s75, s75, 8192")
            e(f"  buffer_load_dwordx4 v[124:127], v11, s[{SW2}:{SW2+3}], s75 offen")
        if OPT["pf"] != 2:
            e("  s_barrier")
        e(f"  s_mov_b32 s75, {WS_EP}")
        e("  s_load_dword s26, s[24:25], s75")
        tl(4)
        NPRE = 6 if OPT["pf"] else 0
        for c in range(16):
            if c >= OPT["nf"]:
                e(f"  s_waitcnt vmcnt({OPT['nf']-1})")
            e(pl[c])
            if c in (7, 15): tl(5)
        e(f"  v_mov_b32 v7, {L_CNT}")
        e("  v_mov_b32 v8, 1")
        e("  s_mov_b64 exec, 1")
        e("  ds_add_u32 v7, v8 offset:20")
        e("  s_mov_b64 exec, -1")
        tl(4)
        if OPT["pf"] == 1:
            e("  v_lshlrev_b32 v15, 13, v4")
            e("  v_lshl_add_u32 v15, v3, 2, v15")
            e(f"  s_lshl_b32 s75, s{SHEAD}, 17")
            e(f"  s_lshl_b32 s76, s{SNO}, 7")
            e("  s_add_u32 s75, s75, s76")
            e("  s_bfe_u32 s76, s3, 0x10001")
            e("  s_lshl_b32 s76, s76, 6")
            e("  s_add_u32 s75, s75, s76")
            for ks in range(4):
                for jh in range(2):
                    for j in range(4):
                        e(f"  buffer_load_dword v{80+ks*8+jh*4+j}, v15, s[{SWO}:{SWO+3}], s75 offen offset:{j*1024}")
                    if not (ks == 3 and jh == 1):
                        e(f"  s_add_u32 s75, s75, {4096 if jh == 0 else 32768-4096}")
        e("  s_waitcnt lgkmcnt(0)")
        e("  s_add_u32 s26, s26, 1")
        if OPT["pf"]:
            e(f"  s_mov_b32 s74, {OPT['bnd']:#x}")
            e("K_XW:")
            e("  ds_read_b32 v6, v7 offset:16")
            e("  s_waitcnt lgkmcnt(0)")
            e("  v_readfirstlane_b32 s75, v6")
            e("  s_cmp_ge_u32 s75, 1")
            e("  s_cbranch_scc1 K_XWD")
            e("  s_sleep 1")
            e("  s_sub_u32 s74, s74, 1")
            e("  s_cmp_lg_u32 s74, 0")
            e("  s_cbranch_scc1 K_XW")
            e("K_XWD:")
            e(f"  s_cmp_ge_u32 s{SHC}, 224")
            e("  s_cbranch_scc1 K_HS")
            e("  v_bfe_u32 v5, v0, 1, 7")
            e("  v_lshlrev_b32 v5, 2, v5")
            for i in range(4):
                e(f"  ds_read2st64_b32 v[{144+2*i}:{145+2*i}], v5 offset0:{(L_XN + i*512)//256} offset1:{(L_XN + i*512 + 2048)//256}")
            e("  s_waitcnt vmcnt(%d) lgkmcnt(0)" % (50 if OPT["pf"] == 1 else 16))
            A = 164
            for i in range(4):
                for c in range(2):
                    pk_part(112 + 2*i + c, 144 + 2*i, A + 2*c, A + 4 + 2*c, i == 0)
            dpp_steps(list(range(A, A+8)), ["quad_perm:[2,3,0,1]", "row_ror:4", "row_ror:8"])
            swap_steps(list(range(A, A+8)), list(range(172, 180)))
            e("  s_mul_i32 s75, s3, 192")
            e("  v_lshlrev_b32 v5, 4, v1")
            e("  v_add_u32 v5, s75, v5")
            e("  s_mov_b64 exec, 0x3")
            e(f"  ds_write_b128 v5, v[{A}:{A+3}] offset:{L_QP+128}")
            e(f"  ds_write_b128 v5, v[{A+4}:{A+7}] offset:{L_QP+160}")
            e("  s_mov_b64 exec, 1")
            e(f"  ds_add_rtn_u32 v6, v7, v8 offset:4")
            e("  s_mov_b64 exec, -1")
            e("  s_waitcnt lgkmcnt(0)")
            e("  v_readfirstlane_b32 s75, v6")
            e("  s_cmp_lg_u32 s75, 3")
            e("  s_cbranch_scc1 K_HS")
            e("  v_lshlrev_b32 v5, 3, v1")
            e("  s_mov_b64 exec, 0xff")
            for w in range(4):
                e(f"  ds_read_b64 v[{144+2*w}:{145+2*w}], v5 offset:{L_QP + (4+w)*192 + 128}")
            e("  v_lshrrev_b32 v6, 2, v1")
            e("  s_movk_i32 s75, 7168")
            e("  v_mul_lo_u32 v6, v6, s75")
            e("  v_and_b32 v9, 3, v1")
            e("  v_lshl_add_u32 v6, v9, 3, v6")
            e(f"  s_lshl_b32 s75, s{SHC}, 5")
            e(f"  s_add_u32 s75, s75, {WS_HG}")
            e("  s_waitcnt lgkmcnt(0)")
            e("  v_pk_add_f32 v[144:145], v[144:145], v[146:147]")
            e("  v_pk_add_f32 v[148:149], v[148:149], v[150:151]")
            e("  v_pk_add_f32 v[144:145], v[144:145], v[148:149]")
            e("  v_max_f32 v144, 0, v144")
            e("  v_max_f32 v145, 0, v145")
            e("  v_cvt_pk_bf16_f32 v144, v144, v145")
            e("  v_mov_b32 v145, s26")
            e(f"  buffer_store_dwordx2 v[144:145], v6, s[{SWS}:{SWS+3}], s75 offen sc1")
            e("  s_mov_b64 exec, -1")
            e("K_HS:")
            tl(4)
        if OPT["pf"] == 1:
            e("  s_cmp_ge_u32 s2, 224")
            e("  s_cbranch_scc1 K_GS")
            e("  s_lshr_b32 s72, s2, 3")
            e("  s_lshl_b32 s72, s72, 8")
            e("  s_and_b32 s76, s3, 3")
            e("  s_lshl_b32 s76, s76, 6")
            e("  s_add_u32 s72, s72, s76")
            e(f"  s_add_u32 s72, s72, {WS_HG}")
            e("  s_add_u32 s73, s72, 7168")
            e(f"  s_mov_b32 s74, {OPT['bnd']:#x}")
            e("K_HP:")
            e("  s_load_dwordx16 s[4:19], s[24:25], s72 glc")
            e("  s_load_dwordx16 s[28:43], s[24:25], s73 glc")
            e("  s_waitcnt lgkmcnt(0)")
            hr = [4 + 2*k for k in range(8)] + [28 + 2*k for k in range(8)]
            e(f"  s_and_b64 s[76:77], s[{hr[0]}:{hr[0]+1}], s[{hr[1]}:{hr[1]+1}]")
            e(f"  s_or_b64 s[78:79], s[{hr[0]}:{hr[0]+1}], s[{hr[1]}:{hr[1]+1}]")
            for r in hr[2:]:
                e(f"  s_and_b64 s[76:77], s[76:77], s[{r}:{r+1}]")
                e(f"  s_or_b64 s[78:79], s[78:79], s[{r}:{r+1}]")
            e("  s_xor_b32 s77, s77, s26")
            e("  s_xor_b32 s79, s79, s26")
            e("  s_or_b32 s77, s77, s79")
            e("  s_cmp_eq_u32 s77, 0")
            e("  s_cbranch_scc1 K_HPD")
            e("  s_sub_u32 s74, s74, 1")
            e("  s_cmp_lg_u32 s74, 0")
            e("  s_cbranch_scc1 K_HP")
            e("K_HPD:")
            for k in range(4):
                e(f"  s_mov_b32 s76, {(0xffff << (16*k)) & 0xffffffff if k < 2 else 0:#x}")
                e(f"  s_mov_b32 s77, {(0xffff << (16*(k-2))) & 0xffffffff if k >= 2 else 0:#x}")
                e("  s_mov_b64 exec, s[76:77]")
                for b in range(2):
                    for i in range(2):
                        e(f"  v_mov_b32 v{144+2*b+i}, s{(4 if b == 0 else 28) + 2*(k+4*i)}")
            e("  s_mov_b64 exec, -1")
            e("  v_and_b32 v5, 8, v1")
            e("  v_cmp_ne_u32 vcc, 0, v5")
            for r in range(144, 148):
                e(f"  v_lshlrev_b32 v148, 16, v{r}")
                e(f"  v_and_b32 v149, 0xffff0000, v{r}")
                e(f"  v_cndmask_b32 v{r}, v148, v149, vcc")
            e("  s_waitcnt vmcnt(48)")
            A = 164
            for i in range(2):
                for c in range(4):
                    w = 120 + 4*i + c
                    e(f"  v_lshlrev_b32 v150, 16, v{w}")
                    e(f"  v_and_b32 v151, 0xffff0000, v{w}")
                    for b in range(2):
                        h = 144 + 2*b + i
                        if i == 0:
                            e(f"  v_mul_f32 v{A+8*b+2*c}, v150, v{h}")
                            e(f"  v_mul_f32 v{A+8*b+2*c+1}, v151, v{h}")
                        else:
                            e(f"  v_fmac_f32 v{A+8*b+2*c}, v150, v{h}")
                            e(f"  v_fmac_f32 v{A+8*b+2*c+1}, v151, v{h}")
            dpp_steps(list(range(A, A+16)), ["row_ror:8"])
            swap_steps(list(range(A, A+16)), list(range(180, 196)))
            e("  s_and_b32 s75, s3, 3")
            e("  s_lshl_b32 s75, s75, 9")
            e("  v_lshlrev_b32 v5, 5, v1")
            e("  v_add_u32 v5, s75, v5")
            e("  s_mov_b64 exec, 0xff")
            e(f"  ds_write_b128 v5, v[{A}:{A+3}] offset:{L_FP}")
            e(f"  ds_write_b128 v5, v[{A+4}:{A+7}] offset:{L_FP+16}")
            e(f"  ds_write_b128 v5, v[{A+8}:{A+11}] offset:{L_FP+256}")
            e(f"  ds_write_b128 v5, v[{A+12}:{A+15}] offset:{L_FP+272}")
            e("  s_mov_b64 exec, 1")
            e(f"  ds_add_rtn_u32 v6, v7, v8 offset:28")
            e("  s_mov_b64 exec, -1")
            e("  s_waitcnt lgkmcnt(0)")
            e("  v_readfirstlane_b32 s75, v6")
            e("  s_cmp_lg_u32 s75, 3")
            e("  s_cbranch_scc1 K_GS")
            e("  v_lshlrev_b32 v5, 3, v1")
            for w in range(4):
                e(f"  ds_read_b64 v[{144+2*w}:{145+2*w}], v5 offset:{L_FP + w*512}")
            e("  v_lshrrev_b32 v6, 5, v1")
            e("  v_lshlrev_b32 v6, 12, v6")
            e("  v_and_b32 v9, 31, v1")
            e("  v_lshl_add_u32 v6, v9, 4, v6")
            e("  s_lshr_b32 s75, s2, 3")
            e("  s_lshl_b32 s75, s75, 13")
            e("  s_and_b32 s76, s2, 7")
            e("  s_lshl_b32 s76, s76, 9")
            e("  s_add_u32 s75, s75, s76")
            e(f"  s_add_u32 s75, s75, {WS_GG}")
            e("  s_waitcnt lgkmcnt(0)")
            e("  v_pk_add_f32 v[144:145], v[144:145], v[146:147]")
            e("  v_pk_add_f32 v[148:149], v[148:149], v[150:151]")
            e("  v_pk_add_f32 v[144:145], v[144:145], v[148:149]")
            e("  v_mov_b32 v146, v145")
            e("  v_mov_b32 v145, s26")
            e("  v_mov_b32 v147, s26")
            e(f"  buffer_store_dwordx4 v[144:147], v6, s[{SWS}:{SWS+3}], s75 offen sc1")
            e("K_GS:")
            tl(4)
        poll_addr()
        e("K_SPL:")
        e(f"  s_mov_b32 s74, {OPT['bnd']:#x}")
        e("K_SP:")
        poll_issue()
        poll_check("K_SPD")
        if OPT["qsl"]: e(f"  s_sleep {OPT['qsl']}")
        e("  s_sub_u32 s74, s74, 1")
        e("  s_cmp_lg_u32 s74, 0")
        e("  s_cbranch_scc1 K_SP")
        e("K_SPD:")
        poll_save()
        if OPT["prof"] == 4:
            e("  s_mov_b32 m0, 8")
        tl(4)
        e("K_QR:")
        e(f"  s_mov_b32 s74, {OPT['bnd']:#x}")
        e("K_QRL:")
        e("  ds_read_b32 v6, v7 offset:24")
        e("  s_waitcnt lgkmcnt(0)")
        e("  v_readfirstlane_b32 s75, v6")
        e("  s_cmp_ge_u32 s75, 9")
        e("  s_cbranch_scc1 K_QRD")
        e("  s_sub_u32 s74, s74, 1")
        e("  s_cmp_lg_u32 s74, 0")
        e("  s_cbranch_scc1 K_QRL")
        e("K_QRD:")
        if OPT["prof"] == 4:
            e("  s_mov_b32 m0, 9")
        F2 = 16
    else:
        e("  v_lshlrev_b32 v5, 4, v1")
        e(f"  buffer_load_dwordx4 v[204:207], v5, s[{SX}:{SX+3}], 0 offen")
        e(f"  buffer_load_dwordx4 v[208:211], v5, s[{SX}:{SX+3}], 0 offen offset:1024")
        if OPT["xb"]:
            e("  s_barrier")
        e("  v_lshrrev_b32 v6, 2, v0")
        e("  v_and_b32 v7, 3, v0")
        e("  v_lshlrev_b32 v8, 13, v6")
        e("  v_lshl_add_u32 v8, v7, 3, v8")
        e(f"  s_lshl_b32 s75, s{SCG}, 5")
        e("  v_add_u32 v8, s75, v8")
        for i in range(4):
            if i == 0:
                e(f"  buffer_load_dwordx2 v[212:213], v8, s[{SWQ}:{SWQ+3}], 0 offen")
            else:
                e(f"  v_add_u32 v8, 0x100000, v8")
                e(f"  buffer_load_dwordx2 v[{212+2*i}:{213+2*i}], v8, s[{SWQ}:{SWQ+3}], 0 offen")
        e("  v_lshrrev_b32 v12, 3, v0")
        e("  v_and_b32 v13, 7, v0")
        if OPT["rot"]:
            e(f"  s_mul_i32 s73, s2, {OPT['rot']}")
        blkoff(IDXA)
        e(f"  v_add_u32 v224, s75, v{VKOFF}")
        e(f"  v_add_u32 v225, s75, v{VVOFF}")
        pl = kchunk_l(KA, 224) + vchunk_l(VA, 225)
        PRE0 = OPT["pre0"]
        if OPT["bar0"] and PRE0:
            e("  s_barrier")
        for c in range(PRE0):
            e(pl[c])
        e(f"  s_waitcnt vmcnt({4+PRE0})")
        tl(4)
        ln_code()
        e("  s_add_u32 s26, s26, 1")
        e("  v_lshrrev_b32 v5, 2, v0")
        e("  v_lshlrev_b32 v5, 2, v5")
        for i in range(4):
            e(f"  ds_read2st64_b32 v[{168+2*i}:{169+2*i}], v5 offset0:{(L_XN + i*512)//256} offset1:{(L_XN + i*512 + 2048)//256}")
        tl(4)
        e(f"  s_waitcnt vmcnt({PRE0}) lgkmcnt(0)")
        tl(4)
        for c in range(PRE0, F1):
            e(pl[c])
        for i in range(4):
            for c in range(2):
                pk_part(212 + 2 * i + c, 168 + 2 * i, 180 + 2 * c, 184 + 2 * c, i == 0)
        dpp_steps(list(range(180, 188)), ["row_ror:4", "row_ror:8"])
        swap_steps(list(range(180, 188)), list(range(204, 212)))
        e("  s_mul_i32 s75, s3, 192")
        e("  v_lshlrev_b32 v5, 4, v1")
        e("  v_add_u32 v5, s75, v5")
        e("  s_mov_b64 exec, 0xf")
        e(f"  ds_write_b128 v5, v[180:183] offset:{L_QP}")
        e(f"  ds_write_b128 v5, v[184:187] offset:{L_QP+64}")
        e("  s_mov_b64 exec, -1")
        e("  s_waitcnt lgkmcnt(0)")
        tl(4)
        e("  s_barrier")
        e("  s_cmp_lg_u32 s3, 0")
        e("  s_cbranch_scc1 K_B2")
        e("  v_lshlrev_b32 v5, 3, v1")
        e("  s_mov_b64 exec, 0xffff")
        for w in range(8):
            e(f"  ds_read_b64 v[{160+2*w}:{161+2*w}], v5 offset:{L_QP + w*192}")
        e("  v_lshrrev_b32 v6, 3, v1")
        e("  v_lshlrev_b32 v6, 14, v6")
        e("  v_and_b32 v7, 7, v1")
        e("  v_lshl_add_u32 v6, v7, 3, v6")
        e(f"  s_lshl_b32 s75, s{SCG}, 6")
        e(f"  s_add_u32 s75, s75, {WS_QG}")
        e("  v_add_u32 v6, s75, v6")
        e("  v_mov_b32 v8, 8")
        e("  v_mov_b32 v9, 0")
        e("  v_mov_b32 v10, 8")
        e(f"  v_mov_b32 v11, {L_CNT}")
        e("  s_waitcnt lgkmcnt(0)")
        e("  v_pk_add_f32 v[160:161], v[160:161], v[162:163]")
        e("  v_pk_add_f32 v[164:165], v[164:165], v[166:167]")
        e("  v_pk_add_f32 v[168:169], v[168:169], v[170:171]")
        e("  v_pk_add_f32 v[172:173], v[172:173], v[174:175]")
        e("  v_pk_add_f32 v[160:161], v[160:161], v[164:165]")
        e("  v_pk_add_f32 v[168:169], v[168:169], v[172:173]")
        e("  v_pk_add_f32 v[160:161], v[160:161], v[168:169]")
        e("  v_cvt_pk_bf16_f32 v160, v160, v161")
        e("  v_mov_b32 v161, s26")
        e(f"  buffer_store_dwordx2 v[160:161], v6, s[{SWS}:{SWS+3}], 0 offen sc1")
        e("  ds_write_b96 v11, v[8:10]")
        e("  s_mov_b64 exec, -1")
        e("K_B2:")
        tl(4)
        if OPT["bar2"]:
            e("  s_barrier")
        F2 = max(F1, OPT["f2"])
        for c in range(F1, F2):
            e(pl[c])
    if not OPT['rs']:
        e(f"  s_lshl_b32 s75, s{SB}, 14")
        e(f"  s_lshl_b32 s76, s{SG}, 11")
        e("  s_add_u32 s75, s75, s76")
        e("  s_lshl_b32 s76, s3, 8")
        e("  s_add_u32 s75, s75, s76")
        e(f"  s_add_u32 s75, s75, {WS_QG}")
        e("  s_lshl_b32 s76, s3, 7")
        e("  v_lshlrev_b32 v6, 2, v1")
        e("  v_add_u32 v6, s76, v6")
        e(f"  s_mov_b32 s74, {OPT['bnd']:#x}")
        PB = [4, 28, 44, 80]
        tl(4)
        e("K_SP:")
        for i, b_ in enumerate(PB):
            e(f"  s_load_dwordx16 s[{b_}:{b_+15}], s[24:25], s75 offset:{64*i} glc")
        e("  s_waitcnt lgkmcnt(0)")
        prs = [b_ + 2*k for b_ in PB for k in range(8)]
        e(f"  s_and_b64 s[76:77], s[{prs[0]}:{prs[0]+1}], s[{prs[1]}:{prs[1]+1}]")
        e(f"  s_or_b64 s[78:79], s[{prs[0]}:{prs[0]+1}], s[{prs[1]}:{prs[1]+1}]")
        for r in prs[2:]:
            e(f"  s_and_b64 s[76:77], s[76:77], s[{r}:{r+1}]")
            e(f"  s_or_b64 s[78:79], s[78:79], s[{r}:{r+1}]")
        e("  s_xor_b32 s77, s77, s26")
        e("  s_xor_b32 s79, s79, s26")
        e("  s_or_b32 s77, s77, s79")
        e("  s_cmp_eq_u32 s77, 0")
        e("  s_cbranch_scc1 K_SPD")
        e("  s_sub_u32 s74, s74, 1")
        e("  s_cmp_lg_u32 s74, 0")
        e("  s_cbranch_scc1 K_SP")
        e("K_SPD:")
        tl(4)
        for k, r in enumerate(prs):
            e(f"  v_writelane_b32 v5, s{r}, {k}")
        e("  s_mov_b64 exec, 0xffffffff")
        e(f"  ds_write_b32 v6, v5 offset:{L_Q}")
        e("  s_mov_b64 exec, -1")
        e("  s_waitcnt lgkmcnt(0)")
        e("  s_barrier")
    e("K_B3:")
    tl(4)
    e("  s_load_dwordx16 s[4:19], s[0:1], 0")
    e("  s_load_dwordx2 s[96:97], s[0:1], 64")
    for c in range(F2, len(pl)):
        e(pl[c])
    e("  v_and_b32 v5, 3, v3")
    e("  v_lshlrev_b32 v5, 8, v5")
    e("  v_lshl_add_u32 v5, v4, 4, v5")
    for i in range(4):
        e(f"  ds_read_b128 v[{QF+4*i}:{QF+4*i+3}], v5 offset:{L_Q + i*64}")
    derive()
    for r in range(32):
        e(f"  v_mov_b32 v{ACC+r}, 0")
    e(f"  v_mov_b32 v{M_}, 0xf149f2ca")
    e(f"  v_mov_b32 v{L_}, 0")
    e(f"  v_mov_b32 v7, {L_CNT}")
    e("  v_mov_b32 v8, 1")
    e("  s_waitcnt lgkmcnt(0)")
    srd(SX, 4, 5, 2048)
    srd(SW1, 16, 17, 512 * 1792 * 2)
    srd(SWO, 12, 13, 4096 * 512 * 2)
    srd(SW2, 18, 19, 1792 * 512 * 2)
    srd(SOUT, 96, 97, 2048)
    if OPT["warmp"]:
        e("  v_mov_b32 v10, 0")
        e("  s_mov_b64 exec, 1")
        if OPT["warmp"] & 1:
            e(f"  buffer_load_dword v249, v10, s[{SWS}:{SWS+3}], s93 offen sc1")
        if OPT["warmp"] & 2:
            e(f"  s_mov_b32 s75, {16*OPT['ns']*8192}")
            e(f"  buffer_load_dword v249, v10, s[{SK}:{SK+3}], s75 offen nt")
            e(f"  buffer_load_dword v250, v10, s[{SV}:{SV+3}], s75 offen nt")
        e("  s_mov_b64 exec, -1")
    if OPT["fd"]:
        e("  s_cmp_ge_u32 s2, 224")
        e("  s_cselect_b32 s95, 2, 0")
    if OPT["pf"] == 2:
        e("  s_cmp_ge_u32 s3, 4")
        e("  s_cselect_b32 s27, 2, 0")
    else:
        e("  s_mov_b32 s27, %d" % (0 if OPT["pf"] else 2))
    def x_loads(sfx):
        e("  s_cmp_lg_u32 s27, 2")
        e(f"  s_cbranch_scc1 K_XL{sfx}")
        e("  s_mov_b32 s27, 3")
        if OPT["x2"]:
            e("  v_lshlrev_b32 v14, 10, v12")
            e("  v_lshl_add_u32 v14, v13, 4, v14")
            e("  s_cmp_ge_u32 s2, 224")
            e(f"  s_cbranch_scc1 K_XW{sfx}")
            e("  s_movk_i32 s75, 3584")
            e("  v_mul_lo_u32 v11, v12, s75")
            e("  v_lshl_add_u32 v11, v13, 4, v11")
            e("  s_and_b32 s75, s2, 7")
            e(f"  s_mul_i32 s75, s75, {64*3584}")
            e("  s_lshr_b32 s76, s2, 3")
            e("  s_lshl_b32 s76, s76, 7")
            e("  s_add_u32 s75, s75, s76")
            e(f"  buffer_load_dwordx4 v[244:247], v11, s[{SW1}:{SW1+3}], s75 offen")
            e(f"K_XW{sfx}:")
            e(f"  s_lshl_b32 s75, s{SHEAD}, 17")
            if OPT["jd"]:
                e(f"  s_and_b32 s76, s{SNO}, 3")
                e(f"  s_lshl_b32 s76, s76, 8")
            else:
                e(f"  s_lshl_b32 s76, s{SNO}, 7")
            e("  s_add_u32 s75, s75, s76")
            e(f"  buffer_load_dwordx4 v[80:83], v14, s[{SWO}:{SWO+3}], s75 offen")
            if OPT["jd"]:
                e(f"  buffer_load_dwordx4 v[88:91], v14, s[{SWO}:{SWO+3}], s75 offen offset:128")
            e("  s_add_u32 s75, s75, 0x10000")
            e(f"  buffer_load_dwordx4 v[84:87], v14, s[{SWO}:{SWO+3}], s75 offen")
            if OPT["jd"]:
                e(f"  buffer_load_dwordx4 v[92:95], v14, s[{SWO}:{SWO+3}], s75 offen offset:128")
            e("  s_lshr_b32 s75, s2, 3")
            e("  s_lshl_b32 s75, s75, 16")
            e("  v_add_u32 v15, s75, v14")
            e(f"  s_lshl_b32 s75, s{SNC}, 7")
            e("  v_add_u32 v15, s75, v15")
            e(f"  buffer_load_dwordx4 v[{W2}:{W2+3}], v15, s[{SW2}:{SW2+3}], 0 offen")
            e(f"K_XL{sfx}:")
            return
        e("  v_lshrrev_b32 v9, 1, v0")
        e("  v_and_b32 v10, 1, v0")
        e("  s_movk_i32 s75, 3584")
        e("  v_mul_lo_u32 v11, v9, s75")
        e("  v_lshl_add_u32 v11, v10, 3, v11")
        e(f"  s_lshl_b32 s75, s{SHC}, 4")
        e("  v_add_u32 v11, s75, v11")
        e(f"  buffer_load_dwordx2 v[244:245], v11, s[{SW1}:{SW1+3}], 0 offen")
        e(f"  v_add_u32 v11, {256*3584}, v11")
        e(f"  buffer_load_dwordx2 v[246:247], v11, s[{SW1}:{SW1+3}], 0 offen")
        wo_loads()
        e(f"K_XL{sfx}:")

    def wo_once(sfx):
        e("  s_cmp_lg_u32 s27, 2")
        e(f"  s_cbranch_scc1 K_WO{sfx}")
        e("  s_mov_b32 s27, 0")
        e("  v_lshlrev_b32 v15, 13, v4")
        e("  v_lshl_add_u32 v15, v3, 2, v15")
        e(f"  s_lshl_b32 s75, s{SHEAD}, 17")
        e(f"  s_lshl_b32 s76, s{SNO}, 7")
        e("  s_add_u32 s75, s75, s76")
        e("  s_bfe_u32 s76, s3, 0x10001")
        e("  s_lshl_b32 s76, s76, 6")
        e("  s_add_u32 s75, s75, s76")
        for ks in range(4):
            for jh in range(2):
                for j in range(4):
                    e(f"  buffer_load_dword v{80+ks*8+jh*4+j}, v15, s[{SWO}:{SWO+3}], s75 offen offset:{j*1024}")
                if not (ks == 3 and jh == 1):
                    e(f"  s_add_u32 s75, s75, {4096 if jh == 0 else 32768-4096}")
        e(f"K_WO{sfx}:")

    def fd_at_exit():
        e("  s_cmp_ge_u32 s2, 224")
        e("  s_cbranch_scc1 K_FX")
        e("  s_mov_b64 exec, 1")
        e("  ds_add_rtn_u32 v6, v7, v8 offset:32")
        e("  s_mov_b64 exec, -1")
        e("  s_waitcnt lgkmcnt(0)")
        e("  v_readfirstlane_b32 s72, v6")
        e("  s_cmp_ge_u32 s72, 4")
        e("  s_cbranch_scc1 K_FX")
        e("  v_lshrrev_b32 v9, 3, v1")
        e("  v_and_b32 v10, 7, v1")
        e("  v_lshlrev_b32 v11, 10, v9")
        e("  v_lshl_add_u32 v11, v10, 4, v11")
        e("  s_lshr_b32 s75, s2, 3")
        e("  s_lshl_b32 s75, s75, 16")
        e("  s_lshl_b32 s76, s72, 14")
        e("  s_add_u32 s75, s75, s76")
        e("  s_and_b32 s76, s2, 7")
        e("  s_lshl_b32 s76, s76, 7")
        e("  s_add_u32 s75, s75, s76")
        e(f"  buffer_load_dwordx4 v[16:19], v11, s[{SW2}:{SW2+3}], s75 offen")
        e("  s_add_u32 s75, s75, 8192")
        e(f"  buffer_load_dwordx4 v[20:23], v11, s[{SW2}:{SW2+3}], s75 offen")
        e("  v_lshlrev_b32 v12, 3, v4")
        e("  s_lshr_b32 s75, s2, 3")
        e("  s_lshl_b32 s75, s75, 8")
        e("  s_lshl_b32 s76, s72, 6")
        e("  s_add_u32 s75, s75, s76")
        e(f"  s_add_u32 s75, s75, {WS_HG}")
        e("  s_add_u32 s76, s75, 7168")
        e(f"  s_mov_b32 s74, {OPT['bnd']:#x}")
        e("K_FXP:")
        e(f"  buffer_load_dwordx2 v[24:25], v12, s[{SWS}:{SWS+3}], s75 offen sc1")
        e(f"  buffer_load_dwordx2 v[26:27], v12, s[{SWS}:{SWS+3}], s75 offen offset:32 sc1")
        e(f"  buffer_load_dwordx2 v[28:29], v12, s[{SWS}:{SWS+3}], s76 offen sc1")
        e(f"  buffer_load_dwordx2 v[30:31], v12, s[{SWS}:{SWS+3}], s76 offen offset:32 sc1")
        e("  s_waitcnt vmcnt(0)")
        e("  v_cmp_ne_u32 s[78:79], s26, v25")
        for r in [27, 29, 31]:
            e(f"  v_cmp_ne_u32 vcc, s26, v{r}")
            e("  s_or_b64 s[78:79], s[78:79], vcc")
        e("  s_cmp_eq_u64 s[78:79], 0")
        e("  s_cbranch_scc1 K_FXD")
        e("  s_sub_u32 s74, s74, 1")
        e("  s_cmp_lg_u32 s74, 0")
        e("  s_cbranch_scc1 K_FXP")
        e("K_FXD:")
        e("  v_and_b32 v5, 8, v1")
        e("  v_cmp_ne_u32 vcc, 0, v5")
        for r in [24, 26, 28, 30]:
            e(f"  v_lshlrev_b32 v48, 16, v{r}")
            e(f"  v_and_b32 v49, 0xffff0000, v{r}")
            e(f"  v_cndmask_b32 v{r}, v48, v49, vcc")
        A = 32
        for i in range(2):
            for c in range(4):
                w = 16 + 4*i + c
                e(f"  v_lshlrev_b32 v48, 16, v{w}")
                e(f"  v_and_b32 v49, 0xffff0000, v{w}")
                for b in range(2):
                    h = 24 + 4*b + 2*i
                    if i == 0:
                        e(f"  v_mul_f32 v{A+8*b+2*c}, v48, v{h}")
                        e(f"  v_mul_f32 v{A+8*b+2*c+1}, v49, v{h}")
                    else:
                        e(f"  v_fmac_f32 v{A+8*b+2*c}, v48, v{h}")
                        e(f"  v_fmac_f32 v{A+8*b+2*c+1}, v49, v{h}")
        dpp_steps(list(range(A, A+16)), ["row_ror:8"])
        swap_steps(list(range(A, A+16)), list(range(48, 64)))
        e("  s_lshl_b32 s75, s72, 9")
        e("  v_lshlrev_b32 v5, 5, v1")
        e("  v_add_u32 v5, s75, v5")
        e("  s_mov_b64 exec, 0xff")
        e(f"  ds_write_b128 v5, v[{A}:{A+3}] offset:{L_FP}")
        e(f"  ds_write_b128 v5, v[{A+4}:{A+7}] offset:{L_FP+16}")
        e(f"  ds_write_b128 v5, v[{A+8}:{A+11}] offset:{L_FP+256}")
        e(f"  ds_write_b128 v5, v[{A+12}:{A+15}] offset:{L_FP+272}")
        e("  s_mov_b64 exec, 1")
        e(f"  ds_add_rtn_u32 v6, v7, v8 offset:28")
        e("  s_mov_b64 exec, -1")
        e("  s_waitcnt lgkmcnt(0)")
        e("  v_readfirstlane_b32 s75, v6")
        e("  s_cmp_lg_u32 s75, 3")
        e("  s_cbranch_scc1 K_FX")
        e("  v_lshlrev_b32 v5, 3, v1")
        for w in range(4):
            e(f"  ds_read_b64 v[{16+2*w}:{17+2*w}], v5 offset:{L_FP + w*512}")
        e("  v_lshrrev_b32 v6, 5, v1")
        e("  v_lshlrev_b32 v6, 12, v6")
        e("  v_and_b32 v9, 31, v1")
        e("  v_lshl_add_u32 v6, v9, 4, v6")
        e("  s_lshr_b32 s75, s2, 3")
        e("  s_lshl_b32 s75, s75, 13")
        e("  s_and_b32 s76, s2, 7")
        e("  s_lshl_b32 s76, s76, 9")
        e("  s_add_u32 s75, s75, s76")
        e(f"  s_add_u32 s75, s75, {WS_GG}")
        e("  s_waitcnt lgkmcnt(0)")
        e("  v_pk_add_f32 v[16:17], v[16:17], v[18:19]")
        e("  v_pk_add_f32 v[20:21], v[20:21], v[22:23]")
        e("  v_pk_add_f32 v[16:17], v[16:17], v[20:21]")
        e("  v_mov_b32 v18, v17")
        e("  v_mov_b32 v17, s26")
        e("  v_mov_b32 v19, s26")
        e(f"  buffer_store_dwordx4 v[16:19], v6, s[{SWS}:{SWS+3}], s75 offen sc1")
        e("K_FX:")

    def h_phase(sfx):
        e("  s_cmp_eq_u32 s27, 0")
        e(f"  s_cbranch_scc1 K_HSKP{sfx}")
        e("  s_sub_u32 s27, s27, 2")
        e("  s_cmp_eq_u32 s27, 1")
        e(f"  s_cbranch_scc1 K_HSKP{sfx}")
        e("  s_mov_b32 s27, 0")
        if OPT["x2"]:
            if OPT["jd"]:
                e("  v_mul_u32_u24 v5, 272, v12")
                e("  v_lshl_add_u32 v5, v13, 4, v5")
                e(f"  v_add_u32 v5, {L_WO}, v5")
                e(f"  ds_write_b128 v5, v[80:83]")
                e(f"  ds_write_b128 v5, v[84:87] offset:{64*272}")
                e(f"  ds_write_b128 v5, v[88:91] offset:128")
                e(f"  ds_write_b128 v5, v[92:95] offset:{64*272+128}")
            else:
                e("  v_mul_u32_u24 v5, 144, v12")
                e("  v_lshl_add_u32 v5, v13, 4, v5")
                e(f"  ds_write_b128 v5, v[80:83] offset:{L_WO}")
                e(f"  ds_write_b128 v5, v[84:87] offset:{L_WO + 64*144}")
            e("  s_cmp_ge_u32 s2, 224")
            e(f"  s_cbranch_scc1 K_HSKP{sfx}")
            e("  s_and_b32 s75, s2, 7")
            e("  s_lshl_b32 s75, s75, 8")
            e("  v_lshl_add_u32 v5, v12, 2, s75")
            e(f"  ds_read_b32 v204, v5 offset:{L_XN}")
            e(f"  ds_read_b32 v205, v5 offset:{L_XN+2048}")
            e("  s_waitcnt lgkmcnt(0)")
            A = 212
            for c in range(4):
                e(f"  v_lshlrev_b32 v206, 16, v{244+c}")
                e(f"  v_and_b32 v207, 0xffff0000, v{244+c}")
                e(f"  v_mul_f32 v{A+2*c}, v206, v204")
                e(f"  v_mul_f32 v{A+1+2*c}, v207, v204")
                e(f"  v_mul_f32 v{A+8+2*c}, v206, v205")
                e(f"  v_mul_f32 v{A+9+2*c}, v207, v205")
            dpp_steps(list(range(A, A+16)), ["row_ror:8"])
            swap_steps(list(range(A, A+16)), list(range(220+8, 236+8))[:16] if False else [228,229,230,231,232,233,234,235,204,205,206,207,208,209,210,211])
            e("  s_lshl_b32 s75, s3, 9")
            e("  v_lshlrev_b32 v5, 5, v1")
            e("  v_add_u32 v5, s75, v5")
            e("  s_mov_b64 exec, 0xff")
            e(f"  ds_write_b128 v5, v[{A}:{A+3}] offset:{L_FP}")
            e(f"  ds_write_b128 v5, v[{A+4}:{A+7}] offset:{L_FP+16}")
            e(f"  ds_write_b128 v5, v[{A+8}:{A+11}] offset:{L_FP+256}")
            e(f"  ds_write_b128 v5, v[{A+12}:{A+15}] offset:{L_FP+272}")
            e("  s_mov_b64 exec, 1")
            e(f"  ds_add_rtn_u32 v6, v7, v8 offset:4")
            e("  s_mov_b64 exec, -1")
            e("  s_waitcnt lgkmcnt(0)")
            e("  v_readfirstlane_b32 s75, v6")
            e("  s_cmp_lg_u32 s75, 7")
            e(f"  s_cbranch_scc1 K_HSKP{sfx}")
            e("  v_lshlrev_b32 v5, 2, v1")
            for w in range(8):
                e(f"  ds_read_b32 v{204+2*w}, v5 offset:{L_FP + w*512}")
                e(f"  ds_read_b32 v{205+2*w}, v5 offset:{L_FP + w*512 + 256}")
            e("  v_lshlrev_b32 v6, 4, v1")
            e("  s_lshl_b32 s75, s2, 10")
            e("  s_mov_b32 s76, 0")
            e("  s_add_u32 s75, s75, s76")
            e(f"  s_add_u32 s75, s75, {WS_H2}")
            e("  s_waitcnt lgkmcnt(0)")
            e("  v_pk_add_f32 v[204:205], v[204:205], v[206:207]")
            e("  v_pk_add_f32 v[208:209], v[208:209], v[210:211]")
            e("  v_pk_add_f32 v[212:213], v[212:213], v[214:215]")
            e("  v_pk_add_f32 v[216:217], v[216:217], v[218:219]")
            e("  v_pk_add_f32 v[204:205], v[204:205], v[208:209]")
            e("  v_pk_add_f32 v[212:213], v[212:213], v[216:217]")
            e("  v_pk_add_f32 v[204:205], v[204:205], v[212:213]")
            e("  v_mov_b32 v206, s26")
            e("  v_mov_b32 v207, s26")
            e(f"  buffer_store_dwordx4 v[204:207], v6, s[{SWS}:{SWS+3}], s75 offen sc1")
            if OPT["xw"] == 2 and sfx == "L":
                e("  s_mov_b32 s27, 5")
            e(f"K_HSKP{sfx}:")
            return
        e(f"  s_cmp_ge_u32 s{SHC}, 224")
        e(f"  s_cbranch_scc1 K_HSKP{sfx}")
        e("  v_lshrrev_b32 v5, 1, v0")
        e("  v_lshlrev_b32 v5, 2, v5")
        for i in range(2):
            e(f"  ds_read2st64_b32 v[{204+2*i}:{205+2*i}], v5 offset0:{(L_XN + i*1024)//256} offset1:{(L_XN + i*1024 + 2048)//256}")
        e("  s_waitcnt lgkmcnt(0)")
        A = 212
        for i in range(2):
            for c in range(2):
                w = 244 + 2*i + c
                xr = 204 + 2*i
                a0, a1 = A + 2*c, A + 4 + 2*c
                e(f"  v_lshlrev_b32 v208, 16, v{w}")
                e(f"  v_and_b32 v209, 0xffff0000, v{w}")
                if i == 0:
                    e(f"  v_pk_mul_f32 v[{a0}:{a0+1}], v[208:209], v[{xr}:{xr+1}] op_sel_hi:[1,0]")
                    e(f"  v_pk_mul_f32 v[{a1}:{a1+1}], v[208:209], v[{xr}:{xr+1}] op_sel:[0,1] op_sel_hi:[1,1]")
                else:
                    e(f"  v_pk_fma_f32 v[{a0}:{a0+1}], v[208:209], v[{xr}:{xr+1}], v[{a0}:{a0+1}] op_sel_hi:[1,0,1]")
                    e(f"  v_pk_fma_f32 v[{a1}:{a1+1}], v[208:209], v[{xr}:{xr+1}], v[{a1}:{a1+1}] op_sel:[0,1,0] op_sel_hi:[1,1,1]")
        dpp_steps(list(range(A, A+8)), ["quad_perm:[2,3,0,1]", "row_ror:4", "row_ror:8"])
        swap_steps(list(range(A, A+8)), list(range(220, 228)))
        e("  s_mul_i32 s75, s3, 192")
        e("  v_lshlrev_b32 v5, 4, v1")
        e("  v_add_u32 v5, s75, v5")
        e("  s_mov_b64 exec, 0x3")
        e(f"  ds_write_b128 v5, v[{A}:{A+3}] offset:{L_QP+128}")
        e(f"  ds_write_b128 v5, v[{A+4}:{A+7}] offset:{L_QP+160}")
        e("  s_mov_b64 exec, 1")
        e(f"  ds_add_rtn_u32 v6, v7, v8 offset:4")
        e("  s_mov_b64 exec, -1")
        e("  s_waitcnt lgkmcnt(0)")
        e("  v_readfirstlane_b32 s75, v6")
        e("  s_cmp_lg_u32 s75, 7")
        e(f"  s_cbranch_scc1 K_HSKP{sfx}")
        e("  v_lshlrev_b32 v5, 3, v1")
        e("  s_mov_b64 exec, 0xff")
        for w in range(8):
            e(f"  ds_read_b64 v[{204+2*w}:{205+2*w}], v5 offset:{L_QP + w*192 + 128}")
        e("  v_lshrrev_b32 v6, 2, v1")
        e("  s_movk_i32 s75, 7168")
        e("  v_mul_lo_u32 v6, v6, s75")
        e("  v_and_b32 v9, 3, v1")
        e("  v_lshl_add_u32 v6, v9, 3, v6")
        e(f"  s_lshl_b32 s75, s{SHC}, 5")
        e(f"  s_add_u32 s75, s75, {WS_HG}")
        e("  s_waitcnt lgkmcnt(0)")
        e("  v_pk_add_f32 v[204:205], v[204:205], v[206:207]")
        e("  v_pk_add_f32 v[208:209], v[208:209], v[210:211]")
        e("  v_pk_add_f32 v[212:213], v[212:213], v[214:215]")
        e("  v_pk_add_f32 v[216:217], v[216:217], v[218:219]")
        e("  v_pk_add_f32 v[204:205], v[204:205], v[208:209]")
        e("  v_pk_add_f32 v[212:213], v[212:213], v[216:217]")
        e("  v_pk_add_f32 v[204:205], v[204:205], v[212:213]")
        e("  v_max_f32 v204, 0, v204")
        e("  v_max_f32 v205, 0, v205")
        e("  v_cvt_pk_bf16_f32 v204, v204, v205")
        e("  v_mov_b32 v205, s26")
        e(f"  buffer_store_dwordx2 v[204:205], v6, s[{SWS}:{SWS+3}], s75 offen sc1")
        e("  s_mov_b64 exec, -1")
        e(f"K_HSKP{sfx}:")
    def h_loads():
        if OPT["x2"]:
            e(f"  buffer_load_dwordx4 v[244:247], v248, s[{SWS}:{SWS+3}], 0 offen sc1")
            return
        e("  s_movk_i32 s75, 7168")
        e(f"  buffer_load_dwordx2 v[244:245], v248, s[{SWS}:{SWS+3}], 0 offen sc1")
        e(f"  buffer_load_dwordx2 v[246:247], v248, s[{SWS}:{SWS+3}], s75 offen sc1")

    def fd_issue():
        if OPT["x2"]:
            e("  v_lshlrev_b32 v248, 4, v12")
            e("  v_lshl_add_u32 v248, v13, 10, v248")
            e("  s_lshr_b32 s75, s2, 3")
            e("  s_lshl_b32 s75, s75, 13")
            e(f"  s_add_u32 s75, s75, {WS_H2}")
            e("  v_add_u32 v248, s75, v248")
            h_loads()
            return
        e("  v_lshrrev_b32 v5, 1, v12")
        e("  v_lshlrev_b32 v248, 3, v5")
        e("  s_lshr_b32 s75, s2, 3")
        e("  s_lshl_b32 s75, s75, 8")
        e(f"  s_add_u32 s75, s75, {WS_HG}")
        e("  v_add_u32 v248, s75, v248")
        h_loads()
    def fd_check(bad):
        e("  v_cmp_ne_u32 vcc, s26, v%d" % (246 if OPT["x2"] else 245))
        e("  v_cmp_ne_u32 s[78:79], s26, v247")
        e("  s_or_b64 vcc, vcc, s[78:79]")
        e("  s_cmp_lg_u64 vcc, 0")
        e(f"  s_cbranch_scc1 {bad}")
    def fd_compute(done):
        A = 204
        if OPT["x2"]:
            dpp_steps([244, 245], ["quad_perm:[1,0,3,2]", "quad_perm:[2,3,0,1]", "row_half_mirror"])
            e("  v_max_f32 v220, 0, v244")
            e("  v_max_f32 v221, 0, v245")
            round_bf16(220, 220)
            round_bf16(221, 221)
        else:
            e("  v_and_b32 v5, 1, v12")
            e("  v_cmp_eq_u32 vcc, 1, v5")
            e("  v_lshlrev_b32 v220, 16, v244")
            e("  v_and_b32 v5, 0xffff0000, v244")
            e("  v_lshlrev_b32 v221, 16, v246")
            e("  v_and_b32 v6, 0xffff0000, v246")
            e("  v_cndmask_b32 v220, v220, v5, vcc")
            e("  v_cndmask_b32 v221, v221, v6, vcc")
        for c in range(4):
            e(f"  v_lshlrev_b32 v222, 16, v{W2+c}")
            e(f"  v_and_b32 v223, 0xffff0000, v{W2+c}")
            e(f"  v_mul_f32 v{A+2*c}, v222, v220")
            e(f"  v_mul_f32 v{A+1+2*c}, v223, v220")
            e(f"  v_mul_f32 v{A+8+2*c}, v222, v221")
            e(f"  v_mul_f32 v{A+9+2*c}, v223, v221")
        dpp_steps(list(range(A, A+16)), ["row_ror:8"])
        swap_steps(list(range(A, A+16)), list(range(220, 236)))
        e("  s_lshl_b32 s75, s3, 9")
        e("  v_lshlrev_b32 v5, 5, v1")
        e("  v_add_u32 v5, s75, v5")
        e("  s_mov_b64 exec, 0xff")
        e(f"  ds_write_b128 v5, v[{A}:{A+3}] offset:{L_FP}")
        e(f"  ds_write_b128 v5, v[{A+4}:{A+7}] offset:{L_FP+16}")
        e(f"  ds_write_b128 v5, v[{A+8}:{A+11}] offset:{L_FP+256}")
        e(f"  ds_write_b128 v5, v[{A+12}:{A+15}] offset:{L_FP+272}")
        e("  s_mov_b64 exec, 1")
        e(f"  ds_add_rtn_u32 v6, v7, v8 offset:28")
        e("  s_mov_b64 exec, -1")
        e("  s_waitcnt lgkmcnt(0)")
        e("  v_readfirstlane_b32 s75, v6")
        e("  s_mov_b32 s95, 2")
        e("  s_cmp_lg_u32 s75, 7")
        e(f"  s_cbranch_scc1 {done}")
        e("  v_lshlrev_b32 v5, 3, v1")
        for w in range(8):
            e(f"  ds_read_b64 v[{204+2*w}:{205+2*w}], v5 offset:{L_FP + w*512}")
        e("  v_lshrrev_b32 v6, 5, v1")
        e("  v_lshlrev_b32 v6, 12, v6")
        e("  v_and_b32 v9, 31, v1")
        e("  v_lshl_add_u32 v6, v9, 4, v6")
        e("  s_lshr_b32 s75, s2, 3")
        e("  s_lshl_b32 s75, s75, 13")
        e("  s_and_b32 s76, s2, 7")
        e("  s_lshl_b32 s76, s76, 9")
        e("  s_add_u32 s75, s75, s76")
        e(f"  s_add_u32 s75, s75, {WS_GG}")
        e("  s_waitcnt lgkmcnt(0)")
        e("  v_pk_add_f32 v[204:205], v[204:205], v[206:207]")
        e("  v_pk_add_f32 v[208:209], v[208:209], v[210:211]")
        e("  v_pk_add_f32 v[212:213], v[212:213], v[214:215]")
        e("  v_pk_add_f32 v[216:217], v[216:217], v[218:219]")
        e("  v_pk_add_f32 v[204:205], v[204:205], v[208:209]")
        e("  v_pk_add_f32 v[212:213], v[212:213], v[216:217]")
        e("  v_pk_add_f32 v[204:205], v[204:205], v[212:213]")
        e("  v_mov_b32 v206, v205")
        e("  v_mov_b32 v205, s26")
        e("  v_mov_b32 v207, s26")
        e(f"  buffer_store_dwordx4 v[204:207], v6, s[{SWS}:{SWS+3}], s75 offen sc1")
        e("  s_mov_b32 s37, 1")
    def fd_phase():
        e("  s_cmp_eq_u32 s95, 2")
        e("  s_cbranch_scc1 K_FDS")
        e("  s_cmp_lg_u32 s27, 0")
        e("  s_cbranch_scc1 K_FDS")
        e(f"  s_cmp_lt_u32 s73, {OPT['fdt']}")
        e("  s_cbranch_scc1 K_FDS")
        e("  s_cmp_eq_u32 s95, 0")
        e("  s_cbranch_scc1 K_FDI")
        fd_check("K_FDI")
        fd_compute("K_FDS")
        e("  s_branch K_FDS")
        e("K_FDI:")
        fd_issue()
        e("  s_mov_b32 s95, 1")
        e("  s_mov_b32 s37, 1")
        e("K_FDS:")
    def fd_exit():
        e("  s_cmp_eq_u32 s95, 2")
        e("  s_cbranch_scc1 K_FDES")
        e(f"  s_mov_b32 s74, {OPT['bnd']:#x}")
        e("K_FDEL:")
        fd_issue()
        e("  s_waitcnt vmcnt(0)")
        fd_check("K_FDEB")
        e("  s_branch K_FDEC")
        e("K_FDEB:")
        e("  s_sub_u32 s74, s74, 1")
        e("  s_cmp_lg_u32 s74, 0")
        e("  s_cbranch_scc1 K_FDEL")
        e("K_FDEC:")
        fd_compute("K_FDES")
        e("K_FDES:")

    def c_qk(KR, vk):
        if vk is not None:
            e(f"  s_waitcnt vmcnt({vk})")
        tl()
        for t in range(2):
            for i in range(4):
                c = "0" if i == 0 else f"v[{ST+4*t}:{ST+4*t+3}]"
                e(f"  v_mfma_f32_16x16x32_bf16 v[{ST+4*t}:{ST+4*t+3}], v[{KR+16*t+4*i}:{KR+16*t+4*i+3}], v[{QF+4*i}:{QF+4*i+3}], {c}")
    def c_sm(nop=True):
        if nop:
            e("  s_nop 7")
            e("  s_nop 0")
        e(f"  v_max3_f32 v{T0}, v{ST}, v{ST+1}, v{ST+2}")
        e(f"  v_max3_f32 v{T1}, v{ST+3}, v{ST+4}, v{ST+5}")
        e(f"  v_max3_f32 v{T0}, v{T0}, v{ST+6}, v{ST+7}")
        e(f"  v_max_f32 v{T0}, v{T0}, v{T1}")
        e(f"  v_mov_b32 v{T1}, v{T0}")
        e("  s_nop 1")
        e(f"  v_permlane16_swap_b32 v{T0}, v{T1}")
        e("  s_nop 1")
        e(f"  v_max_f32 v{T0}, v{T0}, v{T1}")
        e(f"  v_mov_b32 v{T1}, v{T0}")
        e("  s_nop 1")
        e(f"  v_permlane32_swap_b32 v{T0}, v{T1}")
        e("  s_nop 1")
        e(f"  v_max3_f32 v{T0}, v{T0}, v{T1}, v{M_}")
        e(f"  v_sub_f32 v{AL}, v{M_}, v{T0}")
        e(f"  v_mul_f32 v{AL}, s{SC}, v{AL}")
        e(f"  v_exp_f32 v{AL}, v{AL}")
        e(f"  v_mov_b32 v{M_}, v{T0}")
        e(f"  v_mul_f32 v{MC}, s{SC}, v{T0}")
        for k in range(8):
            e(f"  v_fma_f32 v{ST+k}, v{ST+k}, s{SC}, -v{MC}")
        for k in range(8):
            e(f"  v_exp_f32 v{ST+k}, v{ST+k}")
        e("  s_nop 0")
        e(f"  v_mul_f32 v{L_}, v{L_}, v{AL}")
        for k in range(8):
            e(f"  v_add_f32 v{L_}, v{L_}, v{ST+k}")
        for q in range(4):
            e(f"  v_cvt_pk_bf16_f32 v{PF+q}, v{ST+2*q}, v{ST+2*q+1}")
        for r in range(32):
            e(f"  v_mul_f32 v{ACC+r}, v{ACC+r}, v{AL}")
    def c_pv(VR, vv):
        if vv is not None:
            e(f"  s_waitcnt vmcnt({vv})")
        tl()
        for t in range(8):
            c = t >> 1
            sel = f"s{SP1}" if (t & 1) else f"s{SP0}"
            for q in range(4):
                e(f"  v_perm_b32 v{TR+4*t+q}, v{VR+4*(2*q+1)+c}, v{VR+4*(2*q)+c}, {sel}")
        e("  s_nop 1")
        for t in range(8):
            e(f"  v_mfma_f32_16x16x32_bf16 v[{ACC+4*t}:{ACC+4*t+3}], v[{TR+4*t}:{TR+4*t+3}], v[{PF}:{PF+3}], v[{ACC+4*t}:{ACC+4*t+3}]")

    def compute(KR, VR, vk, vv):
        c_qk(KR, vk)
        c_sm()
        c_pv(VR, vv)

    def fetch():
        e("  s_mov_b64 exec, 1")
        e("  ds_add_rtn_u32 v9, v7, v8")
        e("  s_mov_b64 exec, -1")
    def getidx(sidx):
        e("  s_waitcnt lgkmcnt(0)")
        e(f"  v_readfirstlane_b32 s{sidx}, v9")

    if OPT["nw"] < 8:
        e(f"  s_cmp_ge_u32 s3, {OPT['nw']}")
        e("  s_cbranch_scc1 K_EXIT")
    def gen_loop(sfx, last):
        if OPT["nbuf"] == 3:
            fetch()
            compute(KA, VA, 24, 16)
            getidx(IDXA)
            loads(KA, VA, IDXA)
            compute(KB, VB, 24, 16)
            e(f"  s_cmp_ge_u32 s{IDXA}, 64")
            e("  s_cbranch_scc1 K_EXIT")
        e(f"K_LOOP{sfx}:")
        if OPT["nbuf"] == 2:
            fetch()
            compute(KA, VA, 24, 16)
            getidx(IDXA)
            loads(KA, VA, IDXA)
            e(f"  s_cmp_ge_u32 s{IDXB}, 64")
            e("  s_cbranch_scc1 K_EXIT")
            fetch()
            compute(KB, VB, 24, 16)
            getidx(IDXB)
            loads(KB, VB, IDXB)
            e(f"  s_cmp_lt_u32 s{IDXA}, 64")
            e(f"  s_cbranch_scc1 K_LOOP{sfx}")
        else:
            NS = OPT["ns"]
            fetch()
            getidx(73)
            if OPT["dup"] > 1:
                e(f"  s_cmp_lt_u32 s73, {OPT['dup']}")
                e(f"  s_cselect_b32 s75, 0, 4096")
                e(f"  s_and_b32 s73, s73, 63")
                e(f"  s_add_u32 s73, s73, s75")
            e(f"  s_cmp_lt_u32 s73, {NS}")
            e(f"  s_cbranch_scc1 K_STA{sfx}")
            e("  v_mov_b32 v9, 1")
            e("  v_mov_b32 v10, 0")
            e("  s_mov_b64 exec, 1")
            e(f"  buffer_atomic_add v9, v10, s[{SWS}:{SWS+3}], s93 offen sc0 sc1")
            e("  s_mov_b64 exec, -1")
            e(f"K_STA{sfx}:")
            compute(KA, VA, 8, 0)
            e(f"  s_cmp_ge_u32 s73, {NS}")
            e(f"  s_cbranch_scc1 K_DY2{sfx}")
            e(f"  s_add_u32 s{IDXA}, s73, s94")
            e(f"  s_branch K_ST2{sfx}")
            e(f"K_DY2{sfx}:")
            e(f"  v_readfirstlane_b32 s{IDXA}, v9")
            e(f"  s_cmp_lt_u32 s{IDXA}, {(1024-16*NS)//OPT['nsub']}")
            e(f"  s_cselect_b32 s{IDXA}, s{IDXA}, 2048")
            e(f"  s_add_u32 s{IDXA}, s{IDXA}, s92")
            e(f"K_ST2{sfx}:")
            if OPT["fifo"]:
                e(f"  s_cmp_ge_u32 s{IDXA}, 1024")
                e(f"  s_cbranch_scc1 K_FD{sfx}")
                e(f"  s_sub_u32 s73, s73, {OPT['fw']}")
                e(f"  s_mov_b32 s74, {OPT['bnd']:#x}")
                e(f"K_FW{sfx}:")
                e("  ds_read_b32 v9, v7 offset:8")
                e("  s_waitcnt lgkmcnt(0)")
                e("  v_readfirstlane_b32 s75, v9")
                e("  s_cmp_ge_u32 s75, s73")
                e(f"  s_cbranch_scc1 K_FD{sfx}")
                if OPT["fsl"]: e(f"  s_sleep {OPT['fsl']}")
                e("  s_sub_u32 s74, s74, 1")
                e("  s_cmp_lg_u32 s74, 0")
                e(f"  s_cbranch_scc1 K_FW{sfx}")
                e(f"K_FD{sfx}:")
            x_loads("L"+sfx)
            loads(KA, VA, IDXA)
            if OPT["fifo"]:
                e("  s_mov_b64 exec, 1")
                e("  ds_add_u32 v7, v8 offset:8")
                e("  s_mov_b64 exec, -1")
            h_phase("L"+sfx)
            e(f"  s_cmp_lt_u32 s{IDXA}, 1024")
            e(f"  s_cbranch_scc1 K_LOOP{sfx}")
        if not last:
            e("  s_branch K_EXIT")
    def fifo_wait(lbl, off):
        e(f"  s_mov_b32 s74, {OPT['bnd']:#x}")
        e(f"{lbl}:")
        e(f"  ds_read_b32 v9, v7 offset:{off}")
        e("  s_waitcnt lgkmcnt(0)")
        e("  v_readfirstlane_b32 s75, v9")
        e("  s_cmp_ge_u32 s75, s73")
        e(f"  s_cbranch_scc1 {lbl}D")
        if OPT["fsl"]: e(f"  s_sleep {OPT['fsl']}")
        e("  s_sub_u32 s74, s74, 1")
        e("  s_cmp_lg_u32 s74, 0")
        e(f"  s_cbranch_scc1 {lbl}")
        e(f"{lbl}D:")
    def fifo_add(off):
        e("  s_mov_b64 exec, 1")
        e(f"  ds_add_u32 v7, v8 offset:{off}")
        e("  s_mov_b64 exec, -1")
    def gate(sfx):
        e("  s_cmp_eq_u32 s36, 0")
        e(f"  s_cbranch_scc1 K_GD{sfx}")
        e(f"K_G{sfx}:")
        e("  s_memrealtime s[98:99]")
        e("  s_waitcnt lgkmcnt(0)")
        e("  s_sub_u32 s75, s98, s39")
        e("  s_cmp_ge_u32 s75, s36")
        e(f"  s_cbranch_scc1 K_GD{sfx}")
        e("  s_sleep 1")
        e(f"  s_branch K_G{sfx}")
        e(f"K_GD{sfx}:")
    def gen_loop_sp():
        if OPT["th"] or OPT["fd"]:
            e("  s_mov_b32 s37, 0")
        e("K_LOOP:")
        if OPT["th"]:
            e("  s_mov_b64 exec, 1")
            e("  ds_add_rtn_u32 v9, v7, v8")
            e("  ds_read_b64 v[10:11], v7 offset:40")
            e("  s_mov_b64 exec, -1")
            e("  s_waitcnt lgkmcnt(0)")
            e("  v_readfirstlane_b32 s73, v9")
            e("  v_readfirstlane_b32 s39, v10")
            e("  v_readfirstlane_b32 s36, v11")
        else:
            fetch()
            getidx(73)
        if OPT["xw"]:
            e("  s_mov_b32 s38, 0")
            e("  s_cmp_lg_u32 s27, 5")
            e("  s_cbranch_scc1 K_WA")
            e("  s_mov_b32 s27, 0")
            e("  s_mov_b32 s38, 1")
            e("K_WA:")
            if OPT["fd"]:
                e("  s_or_b32 s38, s38, s37")
                e("  s_mov_b32 s37, 0")
            if OPT["th"]:
                e("  s_cmp_eq_u32 s37, 0")
                e("  s_cbranch_scc1 K_WB")
                e("  s_mov_b32 s38, 1")
                e("  s_cmp_eq_u32 s37, 2")
                e("  s_cselect_b32 s37, 3, 0")
                e("K_WB:")
            e("  s_cmp_eq_u32 s27, 1")
            e("  s_cbranch_scc1 K_WX")
            e("  s_cmp_eq_u32 s38, 0")
            e("  s_cbranch_scc1 K_W0")
            e("  s_waitcnt vmcnt(9)")
            e("  s_branch K_W1")
            e("K_WX:")
            e("  s_cmp_ge_u32 s2, 224")
            e("  s_cbranch_scc1 K_W3")
            e(f"  s_waitcnt vmcnt({12+2*OPT['jd']})")
            e("  s_branch K_W1")
            e("K_W3:")
            e(f"  s_waitcnt vmcnt({11+2*OPT['jd']})")
            e("  s_branch K_W1")
            e("K_W0:")
            e("  s_waitcnt vmcnt(8)")
            e("K_W1:")
            c_qk(KA, None)
        else:
            c_qk(KA, 8)
        tl(7)
        e("  s_cmp_ge_u32 s73, 64")
        e("  s_cbranch_scc1 K_NK")
        mapidx(73)
        blkoff(IDXA)
        e(f"  v_add_u32 v5, s75, v{VKOFF}")
        e(f"  v_add_u32 v6, s75, v{VVOFF}")
        fifo_wait("K_FK", 8)
        if OPT["th"] == 1:
            e("  s_cmp_eq_u32 s36, 0")
            e("  s_cbranch_scc1 K_TNA")
            e(f"  s_cmp_ge_u32 s73, {OPT['te']}")
            e("  s_cbranch_scc1 K_TNA")
            e(f"  s_and_b32 s75, s73, {OPT['tm']}")
            e("  s_cmp_lg_u32 s75, 0")
            e("  s_cbranch_scc1 K_TNA")
            e("K_TSL:")
            e("  s_sleep 1")
            e("  s_sub_u32 s36, s36, 1")
            e("  s_cmp_lg_u32 s36, 0")
            e("  s_cbranch_scc1 K_TSL")
            e("K_TNA:")
        if OPT["th"] == 2:
            gate("K")
        tl(7)
        kchunk(KA, 5)
        tl(5)
        tl(7)
        fifo_add(8)
        e("K_NK:")
        c_sm(nop=True)
        e("  s_cmp_lt_u32 s73, 64")
        e("  s_cbranch_scc1 K_W8")
        e("  s_waitcnt vmcnt(0)")
        e("K_W8:")
        if OPT["prof"] == 7:
            e("  s_waitcnt vmcnt(8)")
            tl(7)
        c_pv(VA, 8)
        if OPT["th"]:
            e(f"  s_cmp_lg_u32 s37, 3")
            e("  s_cbranch_scc1 K_TNC")
            e("  s_mov_b32 s37, 0")
            e("  ds_read_b32 v10, v7 offset:36")
            e("  s_waitcnt lgkmcnt(0)")
            for r in range(244, 248):
                e(f"  v_sub_u32 v11, v{r}, v10")
                e(f"  v_and_b32 v9, 0xff, v11")
                e(f"  v_ashrrev_i32 v{r}, 8, v11")
                e(f"  v_cmp_eq_u32 vcc, 0, v9")
                e(f"  v_cndmask_b32 v{r}, 0, v{r}, vcc")
                e(f"  v_cmp_gt_i32 vcc, {OPT['tlim']}, v{r}")
                e(f"  v_cndmask_b32 v{r}, 0, v{r}, vcc")
            e("  v_max_i32 v244, v244, v245")
            e("  v_max_i32 v246, v246, v247")
            e("  v_max_i32 v244, v244, v246")
            red_steps([244], [245], "v_max_i32", ctrls=("quad_perm:[1,0,3,2]", "quad_perm:[2,3,0,1]", "row_half_mirror", "row_mirror"))
            e("  v_max_i32 v244, 0, v244")
            e(f"  v_mul_u32_u24 v244, {OPT['tg']}, v244")
            e("  v_lshrrev_b32 v244, 8, v244")
            e("  s_mov_b64 exec, 1")
            e("  ds_write_b32 v7, v244 offset:44")
            if OPT["th"] == 2:
                e("  s_memrealtime s[98:99]")
                e("  s_mul_i32 s75, s2, 5")
                e("  s_and_b32 s75, s75, 7")
                e(f"  s_mul_i32 s75, s75, {OPT['ts']}")
                e("  s_waitcnt lgkmcnt(0)")
                e("  s_add_u32 s75, s75, s98")
                e("  v_mov_b32 v9, s75")
                e("  ds_write_b32 v7, v9 offset:40")
            e("  s_mov_b64 exec, -1")
            if OPT["prof"] == 6:
                e("  v_readfirstlane_b32 s75, v244")
                e("  s_add_u32 s75, s75, 1")
                e("  v_writelane_b32 v251, s75, 10")
                e("  v_readfirstlane_b32 s75, v10")
                e("  v_writelane_b32 v251, s75, 11")
                e("  v_writelane_b32 v251, s73, 12")
                e("  s_memrealtime s[98:99]")
                e("  s_waitcnt lgkmcnt(0)")
                e("  v_writelane_b32 v251, s98, 13")
            e("K_TNC:")
        e("  s_cmp_ge_u32 s73, 64")
        e("  s_cbranch_scc1 K_NV")
        tl(7)
        fifo_wait("K_FV", 12)
        if OPT["th"] == 2:
            gate("V")
        tl(7)
        vchunk(VA, 6)
        tl(5)
        tl(7)
        fifo_add(12)
        if OPT["th"]:
            e(f"  s_cmp_lg_u32 s73, {OPT['tp']}")
            e("  s_cbranch_scc1 K_TNP")
            e("  s_memrealtime s[98:99]")
            e("  s_waitcnt lgkmcnt(0)")
            e("  s_lshl_b32 s75, s98, 8")
            e("  s_and_b32 s76, s26, 0xff")
            e("  s_or_b32 s75, s75, s76")
            e("  v_mov_b32 v10, s75")
            e("  v_mov_b32 v11, 0")
            e("  s_lshl_b32 s76, s2, 2")
            e(f"  s_add_u32 s76, s76, {WS_PR}")
            e("  s_mov_b64 exec, 1")
            e(f"  buffer_store_dword v10, v11, s[{SWS}:{SWS+3}], s76 offen sc1")
            e("  ds_write_b32 v7, v10 offset:36")
            e("  s_mov_b64 exec, -1")
            e("  s_mov_b32 s37, 1")
            e("K_TNP:")
            e(f"  s_cmp_lg_u32 s73, {OPT['tr']}")
            e("  s_cbranch_scc1 K_TNR")
            e("  v_lshlrev_b32 v10, 4, v1")
            e(f"  s_mov_b32 s76, {WS_PR}")
            e(f"  buffer_load_dwordx4 v[244:247], v10, s[{SWS}:{SWS+3}], s76 offen sc1")
            e("  s_mov_b32 s37, 2")
            e("K_TNR:")
        e("K_NV:")
        if not OPT["pf"]:
            x_loads("L")
            h_phase("L")
        if OPT["pf"] == 2:
            wo_once("L")
        if OPT["fd"]:
            fd_phase()
        tl(7)
        e("  s_cmp_lt_u32 s73, 64")
        e("  s_cbranch_scc1 K_LOOP")
    def gen_loop_dy():
        NSW = OPT["ns"] // 8
        POOL = (1024 - 16*OPT["ns"]) // OPT["nsub"]
        e(f"  s_add_u32 s{IDXA}, s3, s94")
        e(f"  s_mov_b32 s36, {NSW-1}")
        e("  v_mov_b32 v249, 0")
        e("K_LOOP:")
        fetch()
        getidx(73)
        c_qk(KA, 8)
        e("  s_cmp_eq_u32 s36, 0")
        e("  s_cbranch_scc1 K_DYN")
        e(f"  s_add_u32 s{IDXA}, s{IDXA}, 8")
        e("  s_sub_u32 s36, s36, 1")
        e("  s_branch K_HAVE")
        e("K_DYN:")
        e(f"  v_readfirstlane_b32 s{IDXA}, v250")
        e(f"  s_cmp_lt_u32 s{IDXA}, {POOL}")
        e(f"  s_cselect_b32 s{IDXA}, s{IDXA}, 2048")
        e(f"  s_add_u32 s{IDXA}, s{IDXA}, s92")
        e(f"  s_cmp_lt_u32 s{IDXA}, 1024")
        e("  s_cbranch_scc1 K_HAVE")
        fifo_add(8)
        fifo_add(12)
        e("  s_branch K_NK")
        e("K_HAVE:")
        blkoff(IDXA)
        e(f"  v_add_u32 v5, s75, v{VKOFF}")
        e(f"  v_add_u32 v6, s75, v{VVOFF}")
        e("  v_mov_b32 v250, 1")
        fifo_wait("K_FK", 8)
        kchunk(KA, 5)
        e("  s_cmp_lg_u32 s36, 0")
        e("  s_cbranch_scc1 K_NAT")
        e("  s_mov_b64 exec, 1")
        e(f"  buffer_atomic_add v250, v249, s[{SWS}:{SWS+3}], s93 offen sc0 sc1")
        e("  s_mov_b64 exec, -1")
        e("K_NAT:")
        tl(5)
        fifo_add(8)
        e("K_NK:")
        c_sm(nop=True)
        e(f"  s_cmp_lt_u32 s{IDXA}, 1024")
        e("  s_cbranch_scc1 K_W8")
        e("  s_waitcnt vmcnt(0)")
        e("K_W8:")
        e("  s_cmp_lg_u32 s36, 0")
        e("  s_cbranch_scc1 K_W8S")
        e("  s_waitcnt vmcnt(9)")
        e("  s_branch K_W9")
        e("K_W8S:")
        e("  s_waitcnt vmcnt(8)")
        e("K_W9:")
        c_pv(VA, None)
        e(f"  s_cmp_ge_u32 s{IDXA}, 1024")
        e("  s_cbranch_scc1 K_NV")
        fifo_wait("K_FV", 12)
        vchunk(VA, 6)
        tl(5)
        fifo_add(12)
        e("K_NV:")
        if not OPT["pf"]:
            x_loads("L")
            h_phase("L")
        if OPT["pf"] == 2:
            wo_once("L")
        e(f"  s_cmp_lt_u32 s{IDXA}, 1024")
        e("  s_cbranch_scc1 K_LOOP")
    def gen_loop_dq():
        NS, D, CAP = OPT["ns"], OPT["dd"], OPT["cap"]
        POOL = 1024 - 16*NS
        INV = 4097
        def fetch2():
            e("  s_mov_b64 exec, 1")
            e("  ds_add_rtn_u32 v9, v7, v8")
            e("  ds_read_b32 v10, v7 offset:40")
            e("  s_mov_b64 exec, -1")
        def getidx2():
            e("  s_waitcnt lgkmcnt(0)")
            e("  v_readfirstlane_b32 s73, v9")
            e("  v_readfirstlane_b32 s38, v10")
        def publish(sfx):
            e("  s_cmp_eq_u32 s36, 0")
            e(f"  s_cbranch_scc1 K_NP{sfx}")
            e("  s_mov_b32 s36, 0")
            e("  v_readfirstlane_b32 s75, v250")
            e("  s_add_u32 s76, s75, s92")
            e("  s_add_u32 s76, s76, 1")
            e(f"  s_cmp_lt_u32 s75, {POOL}")
            e(f"  s_cselect_b32 s76, s76, {INV}")
            e("  s_cselect_b32 s77, 0, 1")
            e("  v_mov_b32 v10, s76")
            e("  v_add_u32 v11, 1, v10")
            e("  v_mov_b32 v9, s37")
            e("  v_mov_b32 v5, s77")
            e("  s_mov_b64 exec, 1")
            e(f"  ds_write_b64 v9, v[10:11] offset:{L_DQ}")
            e("  ds_or_b32 v7, v5 offset:40")
            e("  s_mov_b64 exec, -1")
            e(f"K_NP{sfx}:")
        def resolve(sfx):
            e(f"  s_add_u32 s{IDXA}, s73, s94")
            e(f"  s_cmp_lt_u32 s73, {NS}")
            e(f"  s_cbranch_scc1 K_RS{sfx}")
            e(f"  s_mov_b32 s{IDXA}, 4096")
            e(f"  s_cmp_ge_u32 s73, {NS+CAP}")
            e(f"  s_cbranch_scc1 K_RS{sfx}")
            e(f"  s_sub_u32 s75, s73, {NS}")
            e("  s_lshl_b32 s75, s75, 2")
            e("  v_mov_b32 v10, s75")
            e(f"  s_mov_b32 s74, {OPT['bnd']:#x}")
            e(f"K_RW{sfx}:")
            e(f"  ds_read_b32 v9, v10 offset:{L_DQ}")
            e("  s_waitcnt lgkmcnt(0)")
            e(f"  v_readfirstlane_b32 s{IDXA}, v9")
            e(f"  s_cmp_lg_u32 s{IDXA}, 0")
            e(f"  s_cbranch_scc1 K_RV{sfx}")
            e("  s_sub_u32 s74, s74, 1")
            e("  s_cmp_lg_u32 s74, 0")
            e(f"  s_cbranch_scc1 K_RW{sfx}")
            e(f"  s_mov_b32 s{IDXA}, {INV}")
            e(f"K_RV{sfx}:")
            e(f"  s_sub_u32 s{IDXA}, s{IDXA}, 1")
            e(f"K_RS{sfx}:")
        def claim(sfx):
            e(f"  s_sub_u32 s75, s73, {NS-D}")
            e(f"  s_cmp_ge_u32 s75, {CAP}")
            e(f"  s_cbranch_scc1 K_NC{sfx}")
            e("  s_bitcmp1_b32 s75, 0")
            e(f"  s_cbranch_scc1 K_NC{sfx}")
            e("  s_lshl_b32 s37, s75, 2")
            e("  s_cmp_eq_u32 s38, 0")
            e(f"  s_cbranch_scc1 K_CA{sfx}")
            e(f"  v_mov_b32 v10, {INV}")
            e(f"  v_mov_b32 v11, {INV}")
            e("  v_mov_b32 v9, s37")
            e("  s_mov_b64 exec, 1")
            e(f"  ds_write_b64 v9, v[10:11] offset:{L_DQ}")
            e("  s_mov_b64 exec, -1")
            e(f"  s_branch K_NC{sfx}")
            e(f"K_CA{sfx}:")
            e("  s_mov_b32 s36, 1")
            e("  v_mov_b32 v250, 2")
            e("  s_mov_b64 exec, 1")
            e(f"  buffer_atomic_add v250, v249, s[{SWS}:{SWS+3}], s93 offen sc0 sc1")
            e("  s_mov_b64 exec, -1")
            e(f"K_NC{sfx}:")
        e("  s_mov_b32 s36, 0")
        e("  v_mov_b32 v249, 0")
        e("K_LOOP:")
        e("  s_waitcnt vmcnt(8)")
        publish("A")
        fetch2()
        c_qk(KA, None)
        getidx2()
        resolve("A")
        e(f"  s_cmp_lt_u32 s{IDXA}, 1024")
        e("  s_cbranch_scc1 K_HAVE")
        fifo_add(8)
        e("  s_branch K_NK")
        e("K_HAVE:")
        blkoff(IDXA)
        e(f"  v_add_u32 v5, s75, v{VKOFF}")
        e(f"  v_add_u32 v6, s75, v{VVOFF}")
        fifo_wait("K_FK", 8)
        kchunk(KA, 5)
        tl(5)
        fifo_add(8)
        e("K_NK:")
        c_sm(nop=True)
        e(f"  s_cmp_lt_u32 s{IDXA}, 1024")
        e("  s_cbranch_scc1 K_W8")
        e("  s_waitcnt vmcnt(0)")
        e("K_W8:")
        c_pv(VA, 8)
        e(f"  s_cmp_ge_u32 s{IDXA}, 1024")
        e("  s_cbranch_scc1 K_DRI")
        fifo_wait("K_FV", 12)
        claim("A")
        vchunk(VA, 6)
        tl(5)
        fifo_add(12)
        x_loads("L")
        h_phase("L")
        e("  s_branch K_LOOP")
        e("K_DRI:")
        claim("B")
        fifo_add(12)
        e("K_DR:")
        e("  s_waitcnt vmcnt(0)")
        publish("B")
        e(f"  s_cmp_ge_u32 s73, {NS+CAP}")
        e("  s_cbranch_scc1 K_EXIT")
        fetch2()
        getidx2()
        resolve("B")
        e(f"  s_cmp_lt_u32 s{IDXA}, 1024")
        e("  s_cbranch_scc1 K_HV2")
        fifo_add(8)
        e("  s_branch K_DRI")
        e("K_HV2:")
        blkoff(IDXA)
        e(f"  v_add_u32 v5, s75, v{VKOFF}")
        e(f"  v_add_u32 v6, s75, v{VVOFF}")
        fifo_wait("K_FK2", 8)
        kchunk(KA, 5)
        fifo_add(8)
        fifo_wait("K_FV2", 12)
        claim("C")
        vchunk(VA, 6)
        fifo_add(12)
        e("  s_branch K_LOOP")
    if OPT["dq"]:
        gen_loop_dq()
    elif OPT["dy"]:
        gen_loop_dy()
    elif OPT["sp"]:
        gen_loop_sp()
    elif OPT["T"]:
        e(f"  s_lshl_b32 s75, s{SB}, 3")
        e(f"  s_add_u32 s75, s75, s{SG}")
        e(f"  s_cmp_lt_u32 s75, {OPT['T']}")
        e("  s_cbranch_scc1 K_LOOPlo")
        POL["k"] = "" if OPT["phi"] & 1 else nt
        POL["v"] = "" if OPT["phi"] & 2 else nt
        gen_loop("hi", False)
        POL["k"] = "" if OPT["plo"] & 1 else nt
        POL["v"] = "" if OPT["plo"] & 2 else nt
        gen_loop("lo", True)
    else:
        gen_loop("", True)
    e("K_EXIT:")
    if OPT["prof"] == 1: stamp(4)
    tl(OPT["prof"])
    tl_dump()
    if not OPT["pf"]:
        e("  s_cmp_eq_u32 s27, 0")
        e("  s_cbranch_scc1 K_X0")
        if OPT["xw"]:
            e("  s_cmp_eq_u32 s27, 5")
            e("  s_cbranch_scc1 K_X0")
        x_loads("E")
        e("  s_mov_b32 s27, 1")
        e("  s_waitcnt vmcnt(0)")
        h_phase("E")
        e("K_X0:")
    if OPT["pf"] == 2:
        wo_once("E")
    elif OPT["pf"]:
        pass
    elif OPT["fd"]:
        fd_exit()
    else:
        e("  s_cmp_ge_u32 s2, 224")
        e("  s_cbranch_scc1 K_HSK")
        if OPT["x2"]:
            e("  v_lshlrev_b32 v248, 4, v12")
            e("  v_lshl_add_u32 v248, v13, 10, v248")
            e("  s_lshr_b32 s75, s2, 3")
            e("  s_lshl_b32 s75, s75, 13")
            e(f"  s_add_u32 s75, s75, {WS_H2}")
        else:
            e("  v_lshrrev_b32 v5, 1, v12")
            e("  v_lshlrev_b32 v248, 3, v5")
            e("  s_lshr_b32 s75, s2, 3")
            e("  s_lshl_b32 s75, s75, 8")
            e(f"  s_add_u32 s75, s75, {WS_HG}")
        e("  v_add_u32 v248, s75, v248")
        h_loads()
        e("K_HSK:")
    e(f"  v_mov_b32 v{T1}, v{L_}")
    e("  s_nop 1")
    e(f"  v_permlane16_swap_b32 v{L_}, v{T1}")
    e("  s_nop 1")
    e(f"  v_add_f32 v{L_}, v{L_}, v{T1}")
    e(f"  v_mov_b32 v{T1}, v{L_}")
    e("  s_nop 1")
    e(f"  v_permlane32_swap_b32 v{L_}, v{T1}")
    e("  s_nop 1")
    e(f"  v_add_f32 v{L_}, v{L_}, v{T1}")
    e("  v_cmp_gt_u32 vcc, 4, v3")
    e("  s_and_saveexec_b64 s[78:79], vcc")
    if OPT["cb"]:
        e("  v_lshlrev_b32 v5, 4, v2")
        e("  v_lshl_add_u32 v5, v3, 2, v5")
        e("  v_add_u32 v5, v4, v5")
        e("  v_mul_u32_u24 v5, 144, v5")
        e("  s_nop 4")
        for t in range(8):
            e(f"  ds_write_b128 v5, v[{ACC+4*t}:{ACC+4*t+3}] offset:{L_O + t*16}")
    else:
        e("  v_lshlrev_b32 v5, 11, v2")
        e("  v_lshl_add_u32 v5, v3, 9, v5")
        e("  v_lshl_add_u32 v5, v4, 7, v5")
        e("  s_nop 4")
        for t in range(8):
            for r in range(4):
                e(f"  ds_write_b32 v5, v{ACC+4*t+r} offset:{L_O + (r*8+t)*4}")
    e("  v_cmp_gt_u32 vcc, 4, v1")
    e("  s_and_b64 exec, exec, vcc")
    e("  v_lshlrev_b32 v6, 5, v2")
    e("  v_lshl_add_u32 v6, v3, 3, v6")
    e(f"  ds_write_b32 v6, v{M_} offset:{L_ML}")
    e(f"  ds_write_b32 v6, v{L_} offset:{L_ML+4}")
    e("  s_mov_b64 exec, s[78:79]")
    if OPT["pf"] == 2:
        fd_at_exit()
    e("  s_waitcnt lgkmcnt(0)")
    e("  s_barrier")
    tl6(2)
    e("  v_lshrrev_b32 v5, 7, v0")
    e("  v_and_b32 v6, 127, v0")
    e("  v_lshlrev_b32 v7, 3, v5")
    for w in range(8):
        e(f"  ds_read_b64 v[{160+2*w}:{161+2*w}], v7 offset:{L_ML + w*32}")
    if OPT["cb"]:
        e("  v_lshrrev_b32 v8, 5, v0")
        e("  v_mul_u32_u24 v8, 144, v8")
        if OPT["t2"]:
            e("  v_and_b32 v9, 24, v0")
            e("  v_and_b32 v10, 1, v0")
            e("  v_lshl_add_u32 v9, v10, 2, v9")
            e("  v_bfe_u32 v10, v0, 1, 2")
            e("  v_add_u32 v9, v10, v9")
        else:
            e("  v_and_b32 v9, 31, v0")
        e("  v_lshl_add_u32 v8, v9, 2, v8")
        for w in range(8):
            e(f"  ds_read_b32 v{176+w}, v8 offset:{L_O + w*2304}")
    else:
        e("  v_lshlrev_b32 v8, 9, v5")
        e("  v_lshl_add_u32 v8, v6, 2, v8")
        for w in range(8):
            e(f"  ds_read_b32 v{176+w}, v8 offset:{L_O + w*2048}")
    e("  s_waitcnt lgkmcnt(0)")
    e("  v_max3_f32 v184, v160, v162, v164")
    e("  v_max3_f32 v185, v166, v168, v170")
    e("  v_max3_f32 v184, v184, v172, v174")
    e("  v_max_f32 v184, v184, v185")
    e("  v_mov_b32 v186, 0")
    e("  v_mov_b32 v187, 0")
    for w in range(8):
        e(f"  v_sub_f32 v185, v{160+2*w}, v184")
        e(f"  v_mul_f32 v185, s{SC}, v185")
        e("  v_exp_f32 v185, v185")
        e("  s_nop 0")
        e(f"  v_fmac_f32 v186, v185, v{161+2*w}")
        e(f"  v_fmac_f32 v187, v185, v{176+w}")
    e(f"  s_lshl_b32 s75, s{SB}, 5")
    e(f"  s_lshl_b32 s76, s{SG}, 2")
    e("  s_add_u32 s75, s75, s76")
    e("  s_lshl_b32 s75, s75, 4")
    e(f"  s_add_u32 s75, s75, s{SSPL}")
    e("  v_lshlrev_b32 v7, 4, v5")
    e("  v_add_u32 v7, s75, v7")
    e("  v_lshlrev_b32 v8, 10, v7")
    e("  v_lshl_add_u32 v8, v6, 3, v8")
    e(f"  s_mov_b32 s75, {WS_OG}")
    e("  v_mov_b32 v188, v187")
    e("  v_mov_b32 v189, s26")
    e(f"  buffer_store_dwordx2 v[188:189], v8, s[{SWS}:{SWS+3}], s75 offen sc1")
    e("  v_cmp_eq_u32 vcc, 0, v6")
    e("  s_and_saveexec_b64 s[78:79], vcc")
    e("  v_lshlrev_b32 v7, 4, v7")
    e("  v_mov_b32 v185, v186")
    e("  v_mov_b32 v186, s26")
    e(f"  s_mov_b32 s75, {WS_MG}")
    e(f"  buffer_store_dwordx3 v[184:186], v7, s[{SWS}:{SWS+3}], s75 offen sc1")
    e("  s_mov_b64 exec, s[78:79]")
    if OPT["prof"] == 1: stamp(5)
    tl6(3)

    def prod(wregs, vecaddr_rows, accbase, nrows):
        for r in range(16):
            e(f"  v_mov_b32 v{accbase+r}, 0")
        for i in range(nrows):
            for c in range(4):
                w = wregs + 4 * i + c
                e(f"  v_lshlrev_b32 v160, 16, v{w}")
                e(f"  v_and_b32 v161, 0xffff0000, v{w}")
                e(f"  v_fmac_f32 v{accbase+2*c}, v160, v{168+2*i}")
                e(f"  v_fmac_f32 v{accbase+1+2*c}, v161, v{168+2*i}")
                e(f"  v_fmac_f32 v{accbase+8+2*c}, v160, v{169+2*i}")
                e(f"  v_fmac_f32 v{accbase+9+2*c}, v161, v{169+2*i}")
        dpp_steps(list(range(accbase, accbase + 16)), ["row_ror:8"])

    def reduce_store(lbase, label, snc):
        e("  v_lshlrev_b32 v5, 2, v2")
        e("  v_add_u32 v5, v5, v4")
        e("  v_lshlrev_b32 v5, 9, v5")
        e("  v_and_b32 v6, 7, v1")
        e("  v_lshl_add_u32 v5, v6, 5, v5")
        e("  v_and_b32 v6, 8, v1")
        e("  v_cmp_eq_u32 vcc, 0, v6")
        e("  s_and_saveexec_b64 s[78:79], vcc")
        e(f"  ds_write_b128 v5, v[180:183] offset:{lbase}")
        e(f"  ds_write_b128 v5, v[184:187] offset:{lbase+16}")
        e(f"  ds_write_b128 v5, v[188:191] offset:{lbase+256}")
        e(f"  ds_write_b128 v5, v[192:195] offset:{lbase+256+16}")
        e("  s_mov_b64 exec, s[78:79]")
        e("  s_waitcnt lgkmcnt(0)")
        e("  s_barrier")
        e("  s_cmp_ge_u32 s3, 2")
        e(f"  s_cbranch_scc1 {label}")
        e("  v_lshlrev_b32 v5, 2, v0")
        for p in range(32):
            e(f"  ds_read_b32 v{204+p}, v5 offset:{lbase + p*512}")
        e("  s_waitcnt lgkmcnt(0)")
        for p in range(1, 31, 2):
            e(f"  v_add_f32 v{204+p}, v{204+p}, v{205+p}")
        e("  v_add_f32 v204, v204, v235")
        for p in range(1, 31, 2):
            e(f"  v_add_f32 v204, v204, v{204+p}")
        e("  v_lshlrev_b32 v5, 12, v2")
        e("  v_lshl_add_u32 v5, v1, 3, v5")
        e(f"  s_lshl_b32 s76, s{snc}, 9")
        e(f"  s_add_u32 s75, s75, s76")
        e("  v_mov_b32 v205, s26")
        e(f"  buffer_store_dwordx2 v[204:205], v5, s[{SWS}:{SWS+3}], s75 offen sc1")
        e(f"{label}:")

    if not OPT["fd"] and not OPT["pf"]:
        e("  s_cmp_ge_u32 s2, 224")
        e("  s_cbranch_scc1 K_T4")
        e(f"  s_mov_b32 s74, {OPT['bnd']:#x}")
        e("  s_waitcnt vmcnt(1)")
        e("K_HR:")
        e("  v_cmp_ne_u32 vcc, s26, v%d" % (246 if OPT["x2"] else 245))
        e("  v_cmp_ne_u32 s[78:79], s26, v247")
        e("  s_or_b64 vcc, vcc, s[78:79]")
        e("  s_cmp_eq_u64 vcc, 0")
        e("  s_cbranch_scc1 K_HOK")
        h_loads()
        e("  s_waitcnt vmcnt(0)")
        e("  s_sub_u32 s74, s74, 1")
        e("  s_cmp_lg_u32 s74, 0")
        e("  s_cbranch_scc1 K_HR")
        e("K_HOK:")
        if OPT["x2"]:
            dpp_steps([244, 245], ["quad_perm:[1,0,3,2]", "quad_perm:[2,3,0,1]", "row_half_mirror"])
            e("  v_max_f32 v168, 0, v244")
            e("  v_max_f32 v169, 0, v245")
            round_bf16(168, 168)
            round_bf16(169, 169)
        else:
            e("  v_and_b32 v5, 1, v12")
            e("  v_cmp_eq_u32 vcc, 1, v5")
            e("  v_lshlrev_b32 v168, 16, v244")
            e("  v_and_b32 v5, 0xffff0000, v244")
            e("  v_lshlrev_b32 v169, 16, v246")
            e("  v_and_b32 v6, 0xffff0000, v246")
            e("  v_cndmask_b32 v168, v168, v5, vcc")
            e("  v_cndmask_b32 v169, v169, v6, vcc")
        prod(W2, None, 180, 1)
        e("  s_lshr_b32 s75, s2, 3")
        e("  s_lshl_b32 s75, s75, 13")
        e(f"  s_add_u32 s75, s75, {WS_GG}")
        reduce_store(L_FP, "K_T3B", SNC)
    e("K_T4:")
    if OPT["t2"]:
        tail2()
        return_early = True
    else:
        return_early = False
    if return_early:
        pass
    elif not OPT["mf"]:
        e("  s_cmp_ge_u32 s3, 4")
        e("  s_cbranch_scc1 K_T6")
        e("  v_lshrrev_b32 v6, 7, v0")
        e("  v_and_b32 v7, 127, v0")
        e("  v_lshlrev_b32 v8, 5, v6")
        e(f"  v_add_u32 v8, s{SHEAD}, v8")
        e("  v_lshlrev_b32 v9, 8, v8")
        e("  v_lshlrev_b32 v10, 14, v8")
        e("  v_lshl_add_u32 v10, v7, 3, v10")
        e(f"  s_mov_b32 s76, {WS_MG}")
        def iss2(sp):
            e(f"  s_mov_b32 s75, {WS_OG + 4096*(sp>>2)}")
            bits = {0:"", 1:" sc1", 2:" sc0", 3:" sc0 sc1", 4:" nt", 5:" sc0 nt"}[OPT["p2"]]
            e(f"  buffer_load_dwordx2 v[{16+2*sp}:{17+2*sp}], v10, s[{SWS}:{SWS+3}], s75 offen offset:{(sp&3)*1024}{bits}")
            e(f"  buffer_load_dwordx3 v[{48+4*sp}:{50+4*sp}], v9, s[{SWS}:{SWS+3}], s76 offen offset:{sp*16}{bits}")
        mpoll("K_P2", 16, iss2, lambda sp: [17+2*sp, 50+4*sp], OPT["thr"])
        if OPT["prof"] == 1: stamp(6)
        M = lambda sp: 48+4*sp
        e(f"  v_max3_f32 v112, v{M(0)}, v{M(1)}, v{M(2)}")
        for sp in range(3, 15, 2):
            e(f"  v_max3_f32 v112, v112, v{M(sp)}, v{M(sp+1)}")
        e(f"  v_max_f32 v112, v112, v{M(15)}")
        e("  v_mov_b32 v113, 0")
        e("  v_mov_b32 v114, 0")
        for sp in range(16):
            e(f"  v_sub_f32 v{M(sp)}, v{M(sp)}, v112")
            e(f"  v_mul_f32 v{M(sp)}, s{SC}, v{M(sp)}")
            e(f"  v_exp_f32 v{M(sp)}, v{M(sp)}")
        e("  s_nop 0")
        for sp in range(16):
            e(f"  v_fmac_f32 v113, v{M(sp)}, v{M(sp)+1}")
            e(f"  v_fmac_f32 v114, v{M(sp)}, v{16+2*sp}")
        e("  v_mov_b32 v49, v113")
        e("  v_mov_b32 v50, v114")
        e("  v_rcp_f32 v49, v49")
        e("  s_nop 0")
        e("  v_mul_f32 v50, v50, v49")
        round_bf16(50, 50)
        e("  v_lshlrev_b32 v8, 2, v0")
        e(f"  ds_write_b32 v8, v50 offset:{L_VEC}")
        e("  s_waitcnt lgkmcnt(0)")
        e("K_T6:")
        e("  s_barrier")
        e("  v_lshlrev_b32 v5, 2, v12")
        e(f"  ds_read_b32 v168, v5 offset:{L_VEC}")
        e(f"  ds_read_b32 v169, v5 offset:{L_VEC+512}")
        e(f"  ds_read_b32 v170, v5 offset:{L_VEC+256}")
        e(f"  ds_read_b32 v171, v5 offset:{L_VEC+512+256}")
        e("  s_waitcnt lgkmcnt(0)")
        prod(WO, None, 180, 2)
        e(f"  s_lshl_b32 s75, s{SHEAD}, 13")
        e(f"  s_add_u32 s75, s75, {WS_SG}")
        reduce_store(L_SP, "K_T6B", SNO)
    else:
        e("  s_cmp_ge_u32 s3, 4")
        e("  s_cbranch_scc1 K_END")
        e("  s_and_b32 s75, s3, 1")
        e("  s_cmp_eq_u32 s75, 1")
        e(f"  s_cselect_b32 s75, s{SP1}, s{SP0}")
        for ks in range(4):
            for q in range(4):
                e(f"  v_perm_b32 v{112+ks*4+q}, v{80+ks*8+2*q+1}, v{80+ks*8+2*q}, s75")
        e("  v_lshrrev_b32 v6, 7, v0")
        e("  v_and_b32 v7, 127, v0")
        e("  v_lshlrev_b32 v8, 5, v6")
        e(f"  v_add_u32 v8, s{SHEAD}, v8")
        e("  v_lshlrev_b32 v9, 8, v8")
        e("  v_lshlrev_b32 v10, 14, v8")
        e("  v_lshl_add_u32 v10, v7, 3, v10")
        e(f"  s_mov_b32 s76, {WS_MG}")
        def iss2(sp):
            e(f"  s_mov_b32 s75, {WS_OG + 4096*(sp>>2)}")
            e(f"  buffer_load_dwordx2 v[{16+2*sp}:{17+2*sp}], v10, s[{SWS}:{SWS+3}], s75 offen offset:{(sp&3)*1024} sc1")
            e(f"  buffer_load_dwordx3 v[{48+4*sp}:{50+4*sp}], v9, s[{SWS}:{SWS+3}], s76 offen offset:{sp*16} sc1")
        e("  v_and_b32 v11, 1, v3")
        e("  v_lshlrev_b32 v11, 8, v11")
        e("  v_lshl_add_u32 v11, v4, 4, v11")
        e("  v_and_b32 v12, 1, v4")
        e("  v_lshlrev_b32 v13, 12, v12")
        e("  v_lshl_add_u32 v13, v3, 4, v13")
        e("  s_lshr_b32 s75, s3, 1")
        e("  s_lshl_b32 s75, s75, 8")
        e("  s_and_b32 s78, s3, 1")
        e("  s_lshl_b32 s78, s78, 3")
        e("  s_add_u32 s75, s75, s78")
        e(f"  s_lshl_b32 s78, s{SNO}, 9")
        e("  s_add_u32 s75, s75, s78")
        e(f"  s_lshl_b32 s78, s{SHEAD}, 13")
        e("  s_add_u32 s75, s75, s78")
        e(f"  s_add_u32 s75, s75, {WS_SG}")
        e("  v_add_u32 v13, s75, v13")
        if OPT["gate"]:
            GB = [4, 36, 52, 80]
            e("  s_lshr_b32 s72, s3, 1")
            e("  s_lshl_b32 s72, s72, 5")
            e(f"  s_add_u32 s72, s72, s{SHEAD}")
            e("  s_lshl_b32 s72, s72, 8")
            e(f"  s_add_u32 s72, s72, {WS_MG}")
            e(f"  s_mov_b32 s74, {OPT['bnd']:#x}")
            e("K_GT:")
            for i, b_ in enumerate(GB):
                e(f"  s_load_dwordx16 s[{b_}:{b_+15}], s[24:25], s72 offset:{64*i} glc")
            e("  s_mov_b32 s75, 0")
            e("  s_waitcnt lgkmcnt(0)")
            for k in range(16):
                e(f"  s_cmp_eq_u32 s{GB[k>>2] + 4*(k&3) + 2}, s26")
                e("  s_addc_u32 s75, s75, 0")
            e(f"  s_cmp_ge_u32 s75, {16-OPT['gthr']}")
            e("  s_cbranch_scc1 K_GTD")
            if OPT["gsl"]: e(f"  s_sleep {OPT['gsl']}")
            e("  s_sub_u32 s74, s74, 1")
            e("  s_cmp_lg_u32 s74, 0")
            e("  s_cbranch_scc1 K_GT")
            e("K_GTD:")
        mpoll("K_P2", 16, iss2, lambda sp: [17+2*sp, 50+4*sp], OPT["thr"])
        if OPT["prof"] == 1: stamp(6)
        tl6(4)
        M = lambda sp: 48+4*sp
        e(f"  v_max3_f32 v128, v{M(0)}, v{M(1)}, v{M(2)}")
        for sp in range(3, 15, 2):
            e(f"  v_max3_f32 v128, v128, v{M(sp)}, v{M(sp+1)}")
        e(f"  v_max_f32 v128, v128, v{M(15)}")
        e("  v_mov_b32 v129, 0")
        e("  v_mov_b32 v130, 0")
        for sp in range(16):
            e(f"  v_sub_f32 v{M(sp)}, v{M(sp)}, v128")
            e(f"  v_mul_f32 v{M(sp)}, s{SC}, v{M(sp)}")
            e(f"  v_exp_f32 v{M(sp)}, v{M(sp)}")
        e("  s_nop 0")
        for sp in range(16):
            e(f"  v_fmac_f32 v129, v{M(sp)}, v{M(sp)+1}")
            e(f"  v_fmac_f32 v130, v{M(sp)}, v{16+2*sp}")
        e("  v_rcp_f32 v129, v129")
        e("  s_nop 0")
        e("  v_mul_f32 v130, v130, v129")
        e("  v_cvt_pk_bf16_f32 v130, v130, v130")
        if OPT["cb"]:
            e("  v_and_b32 v8, 0xe0, v0")
            e("  v_and_b32 v5, 3, v0")
            e("  v_lshl_add_u32 v8, v5, 3, v8")
            e("  v_bfe_u32 v5, v0, 2, 3")
            e("  v_add_u32 v8, v5, v8")
            e("  v_lshlrev_b32 v8, 1, v8")
        else:
            e("  v_lshlrev_b32 v8, 1, v0")
        e(f"  ds_write_b16 v8, v130 offset:{L_VEC}")
        e("  s_waitcnt lgkmcnt(0)")
        e("  s_barrier")
        for ks in range(4):
            e(f"  ds_read_b128 v[{132+4*ks}:{135+4*ks}], v11 offset:{L_VEC + ks*64}")
        e("  s_waitcnt lgkmcnt(0)")
        for ks in range(4):
            c = "0" if ks == 0 else "v[148:151]"
            e(f"  v_mfma_f32_16x16x32_bf16 v[148:151], v[{132+4*ks}:{135+4*ks}], v[{112+4*ks}:{115+4*ks}], {c}")
        e("  v_cmp_eq_u32 vcc, 1, v12")
        e("  v_mov_b32 v153, s26")
        e("  s_nop 7")
        e("  s_nop 7")
        e("  v_cndmask_b32 v152, v148, v149, vcc")
        e("  s_mov_b64 exec, 0xffffffff")
        e(f"  buffer_store_dwordx2 v[152:153], v13, s[{SWS}:{SWS+3}], 0 offen sc1")
        e("  s_mov_b64 exec, -1")
    if not OPT["t2"]:
        if OPT["prof"] == 1: stamp(7)
        tl6(5)
        e("  s_cmp_ge_u32 s2, 8")
        e("  s_cbranch_scc1 K_END")
        e("  s_cmp_ge_u32 s3, 4")
        e("  s_cbranch_scc1 K_END")
        def gpoll(label, n, base):
            def iss(k):
                e(f"  s_mov_b32 s75, {base + k*8192}")
                e(f"  buffer_load_dwordx2 v[{16+2*k}:{17+2*k}], v10, s[{SWS}:{SWS+3}], s75 offen sc1")
            mpoll(label, n, iss, lambda k: [17+2*k], None)
            for k in range(1, n):
                e(f"  v_add_f32 v16, v16, v{16+2*k}")
        e("  v_and_b32 v5, 1, v2")
        e("  v_lshlrev_b32 v5, 11, v5")
        e("  v_lshl_add_u32 v5, v1, 2, v5")
        e(f"  s_and_b32 s76, s2, 7")
        e(f"  s_lshl_b32 s76, s76, 8")
        e("  v_add_u32 v5, s76, v5")
        e("  v_lshlrev_b32 v10, 1, v5")
        e("  s_cmp_ge_u32 s3, 2")
        e("  s_cbranch_scc1 K_FG")
        e("  v_lshrrev_b32 v6, 1, v5")
        e(f"  buffer_load_ushort v4, v6, s[{SX}:{SX+3}], 0 offen")
        gpoll("K_P3", 32, WS_SG)
        tl6(6)
        round_bf16(16, 16)
        e("  s_barrier")
        e("  v_lshlrev_b32 v7, 2, v0")
        e(f"  ds_read_b32 v8, v7 offset:{L_GX}")
        e("  s_waitcnt lgkmcnt(0)")
        e("  v_mul_f32 v8, v8, v16")
        round_bf16(8, 8)
        e("  v_lshlrev_b32 v4, 16, v4")
        e("  v_add_f32 v8, v8, v4")
        e("  v_cvt_pk_bf16_f32 v8, v8, v8")
        e(f"  buffer_store_short v8, v6, s[{SOUT}:{SOUT+3}], 0 offen")
        e("  s_or_b32 s75, s2, s3")
        e("  s_cmp_lg_u32 s75, 0")
        e("  s_cbranch_scc1 K_END")
        e("  s_mov_b64 exec, 1")
        e(f"  v_mov_b32 v5, {WS_EP}")
        e("  v_mov_b32 v6, s26")
        e(f"  buffer_store_dword v6, v5, s[{SWS}:{SWS+3}], 0 offen")
        e("  s_branch K_END")
        e("K_FG:")
        gpoll("K_P4", 28, WS_GG)
        tl6(6)
        round_bf16(16, 16)
        e("  v_mul_f32 v5, 0xbfb8aa3b, v16")
        e("  v_exp_f32 v5, v5")
        e("  s_nop 0")
        e("  v_add_f32 v5, 1.0, v5")
        e("  v_rcp_f32 v5, v5")
        e("  s_nop 0")
        e("  v_mul_f32 v5, v5, v16")
        round_bf16(5, 5)
        e("  v_and_b32 v7, 127, v0")
        e("  v_lshlrev_b32 v7, 2, v7")
        e(f"  ds_write_b32 v7, v5 offset:{L_GX}")
        e("  s_waitcnt lgkmcnt(0)")
        e("  s_barrier")
    e("K_END:")
    dump_stamps()
    e("  s_endpgm")
    e('.section .rodata,"a"')
    e(".p2align 6")
    e(f".amdhsa_kernel {name}")
    e("  .amdhsa_next_free_vgpr 256")
    e("  .amdhsa_next_free_sgpr 102")
    e("  .amdhsa_accum_offset 256")
    e("  .amdhsa_group_segment_fixed_size 0")
    e("  .amdhsa_kernarg_size 88")
    e("  .amdhsa_user_sgpr_count 2")
    e("  .amdhsa_user_sgpr_kernarg_segment_ptr 1")
    e("  .amdhsa_system_sgpr_workgroup_id_x 1")
    e(".end_amdhsa_kernel")

def main():
    path = f"cdna_kernels/{NAME}.s"
    for a in sys.argv[1:]:
        if "=" in a:
            k, v = a.split("=", 1)
            OPT[k] = (" " + v if v else "") if k == "nt" else int(v)
        else:
            path = a
    e(HEADER.rstrip("\n"))
    lds = 61952 if OPT["x2"] else LDS_SIZE
    if OPT["jd"]: lds = L_WO + 128*272
    e(f"; @launch grid=(256,1,1) block=(512,1,1) lds={lds}")
    e('.amdgcn_target "amdgcn-amd-amdhsa--gfx950"')
    gen()
    open(path, "w").write("\n".join(out) + "\n")

main()
```

```python
import sys

NAME = "recurrent_scan__gqa_block_cached__dense_activation_relu__decode"

HEADER = """; Kernarg layout for this problem (88 bytes, ptrs only, base s[0:1]):
;   offset   0: d_in[0] A_x  shape=(2, 1, 512) dtype=bfloat16 strides=(1024, 1024, 2) contiguous=True
;   offset   8: d_in[1] A_k_cache  shape=(2, 8, 32768, 128) dtype=bfloat16 strides=(67108864, 8388608, 256, 2) contiguous=True
;   offset  16: d_in[2] A_v_cache  shape=(2, 8, 32768, 128) dtype=bfloat16 strides=(67108864, 8388608, 256, 2) contiguous=True
;   offset  24: d_in[3] A_wq  shape=(512, 4096) dtype=bfloat16 strides=(8192, 2) contiguous=True
;   offset  32: d_in[4] A_wo  shape=(4096, 512) dtype=bfloat16 strides=(1024, 2) contiguous=True
;   offset  40: d_in[5] B_x  shape=(2, 1, 512) dtype=bfloat16 strides=(1024, 1024, 2) contiguous=True
;   offset  48: d_in[6] B_w1  shape=(512, 1792) dtype=bfloat16 strides=(3584, 2) contiguous=True
;   offset  56: d_in[7] B_w2  shape=(1792, 512) dtype=bfloat16 strides=(1024, 2) contiguous=True
"""

WS_Q = 0
WS_H = 16384
WS_ML = 32768
WS_O = 65536
WS_P = 1 << 20
WS_G = WS_P + 131072
WS_SIZE = 536870912
WS_QG = 2 << 20
WS_HG = WS_QG + 32768
WS_EP = WS_QG + 65536
WS_QF = WS_QG + 131072
WS_OG = 5 << 20
WS_MG = 6 << 20
WS_SG = WS_MG + 65536
WS_GG = 7 << 20
WS_PC = 3 << 20

L_XN = 0
L_QP = 4096
L_Q = 5632
L_HV = 6656
L_CNT = 7168
L_O = 8192
L_ML = 26624
L_FP = 27136
L_VEC = 0
L_SP = 8192
L_GX = 1024
LDS_SIZE = 43520
L_DQ = 7232
L_WO = 43520
WS_PR = 11 << 20
WS_H2 = 10 << 20

OPT = dict(nt=" nt", sleep=1, prof=0, pre0=0, pace=8, bar0=1, wsc=0, thr=2, p2=1, ilv=0, kx=0, nbuf=1, nw=8, kpl=0, vpl=0, T=0, plo=0, phi=0, mf=1, prex=0, qs=0, warm=0, xb=1, f1=8, np=8, sl=8, psl=8, bnd=0x100000, bar2=1, f2=8, rot=0, map=1, ns=64, fake=0, warmp=0, nsub=4, fifo=1, fw=0, fsl=1, dup=1, rs=1, qsl=0, qp=4, sp=1, nf=10, cb=1, fd=0, fdt=32, gate=0, gthr=2, gsl=1, t2=1, spec=8, psl2=1, pw=1, fsl2=1, fw2=1, obar=0, f1st=1, pf=0, dy=0, dfi=1, x2=0, dq=0, dd=10, cap=32, il2=0, bm=0, ra=4, rb=0, xw=0, th=0, tp=20, tr=28, te=64, tg=20, tlim=600, tm=3, ts=150, jd=0, nd=0, fs=0, mg=0, rg=0, rm=1, rr=1, bs4=2, ps=0, xs=0, rq=0, rz=0, pclk=0, wnt=0, wpol=0, xm=0, cgx=0, nw2=0, n2t=48, gp=0)

out = []
def e(s=""):
    if OPT["wnt"] and s.startswith("  buffer_load"):
        for bit, base in ((1, 40), (2, 44), (4, 48), (8, 52), (16, 28)):
            if (OPT["wnt"] & bit) and f"s[{base}:{base+3}]" in s:
                s = s + [" nt", " sc1", " sc0 sc1", " nt sc1"][OPT["wpol"]]
    out.append(s)

def srd(dst, lo, hi, nbytes):
    e(f"  s_mov_b32 s{dst}, s{lo}")
    e(f"  s_and_b32 s{dst+1}, s{hi}, 0xffff")
    e(f"  s_mov_b32 s{dst+2}, {nbytes}")
    e(f"  s_mov_b32 s{dst+3}, 0x00020000")

def dpp_steps(regs, ctrls):
    for ctrl in ctrls:
        e("  s_nop 1")
        for r in regs:
            e(f"  v_add_f32_dpp v{r}, v{r}, v{r} {ctrl} row_mask:0xf bank_mask:0xf")

def swap_steps(regs, tmp):
    for sw in ["v_permlane16_swap_b32", "v_permlane32_swap_b32"]:
        for r, t in zip(regs, tmp):
            e(f"  v_mov_b32 v{t}, v{r}")
        e("  s_nop 1")
        for r, t in zip(regs, tmp):
            e(f"  {sw} v{r}, v{t}")
        e("  s_nop 1")
        for r, t in zip(regs, tmp):
            e(f"  v_add_f32 v{r}, v{r}, v{t}")

def red_steps(regs, tmp, op, ctrls=("row_ror:4", "row_ror:8")):
    for ctrl in ctrls:
        e("  s_nop 1")
        for r in regs:
            e(f"  {op}_dpp v{r}, v{r}, v{r} {ctrl} row_mask:0xf bank_mask:0xf")
    for sw in ["v_permlane16_swap_b32", "v_permlane32_swap_b32"]:
        for r, t in zip(regs, tmp):
            e(f"  v_mov_b32 v{t}, v{r}")
        e("  s_nop 1")
        for r, t in zip(regs, tmp):
            e(f"  {sw} v{r}, v{t}")
        e("  s_nop 1")
        for r, t in zip(regs, tmp):
            e(f"  {op} v{r}, v{r}, v{t}")

def wave_sum(regs, tmp):
    dpp_steps(regs, ["quad_perm:[1,0,3,2]", "quad_perm:[2,3,0,1]", "row_half_mirror", "row_mirror"])
    swap_steps(regs, tmp)

def round_bf16(dst, src):
    e(f"  v_cvt_pk_bf16_f32 v{dst}, v{src}, v{src}")
    e(f"  v_lshlrev_b32 v{dst}, 16, v{dst}")

WS_PROF = 4 << 20
def stamp(k):
    if not OPT["prof"] or OPT["prof"] >= 3:
        return
    e("  s_memrealtime s[80:81]")
    e("  s_waitcnt lgkmcnt(0)")
    e(f"  s_mov_b32 s{92+k}, s80")

WS_PROF3 = 8 << 20
def tl(k=3):
    if OPT["prof"] != k:
        return
    e("  s_memrealtime s[98:99]")
    e("  s_waitcnt lgkmcnt(0)")
    e("  v_writelane_b32 v251, s98, m0")
    if OPT.get("pclk"):
        e("  s_memtime s[98:99]")
        e("  s_waitcnt lgkmcnt(0)")
        e("  s_add_u32 m0, m0, 16")
        e("  v_writelane_b32 v251, s98, m0")
        e("  s_sub_u32 m0, m0, 16")
    e("  s_add_u32 m0, m0, 1")
    if k == 7: e("  s_min_u32 m0, m0, 63")

def tl6(i):
    if OPT["prof"] != 6:
        return
    e(f"  s_mov_b32 m0, {i}")
    tl(6)

def tl_dump(final=False):
    if OPT["prof"] < 3:
        return
    if (OPT["prof"] == 6) != final:
        return
    if final:
        e("  s_mov_b64 exec, -1")
    e("  s_lshl_b32 s82, s2, 3")
    e("  s_add_u32 s82, s82, s3")
    e("  s_lshl_b32 s82, s82, 8")
    e(f"  s_add_u32 s82, s82, {WS_PROF3}")
    e("  v_lshlrev_b32 v5, 2, v1")
    e(f"  buffer_store_dword v251, v5, s[{SWS}:{SWS+3}], s82 offen")

def dump_stamps():
    if not OPT["prof"]:
        return
    if OPT["prof"] >= 3:
        tl6(7)
        tl_dump(True)
        e("K_END2:")
        return
    e("  s_cmp_ge_u32 s3, 2")
    e("  s_cbranch_scc1 K_END2")
    e("  s_cmp_ge_u32 s2, 256")
    e("  s_cbranch_scc1 K_END2")
    stamp(8)
    e("  s_lshl_b32 s82, s2, 1")
    e("  s_add_u32 s82, s82, s3")
    e("  s_lshl_b32 s82, s82, 6")
    e(f"  s_add_u32 s82, s82, {WS_PROF}")
    e("  s_mov_b64 exec, 1")
    e("  v_mov_b32 v6, 0")
    for k in range(9):
        e(f"  v_mov_b32 v5, s{92+k}")
        e(f"  buffer_store_dword v5, v6, s[{SWS}:{SWS+3}], s82 offen offset:{k*4}")
    e("K_END2:")

SX, SK, SV, SWQ, SW1, SWO, SW2, SWS, SDBG, SOUT = 28, 60, 64, 40, 44, 48, 52, 20, 999, 32
SC, SP0, SP1 = 68, 69, 70
IDXA, IDXB = 72, 73
SG, SR, SB, SSPL, SNC, SHEAD = 86, 87, 88, 89, 90, 91
SNO, SCG, SHC = 83, 84, 85

def poll(label, nlanes, voff, target, tmpv):
    e(f"  s_mov_b64 exec, {(1<<nlanes)-1:#x}")
    e("  s_mov_b32 s74, 0x400000")
    e(f"{label}:")
    e(f"  buffer_load_dword v{tmpv}, v{voff}, s[{SDBG}:{SDBG+3}], 0 offen sc1")
    e("  s_waitcnt vmcnt(0)")
    e(f"  v_cmp_ne_u32 vcc, {target}, v{tmpv}")
    e("  s_cmp_eq_u64 vcc, 0")
    e(f"  s_cbranch_scc1 {label}_DONE")
    if OPT["sleep"]:
        e(f"  s_sleep {OPT['sleep']}")
    e("  s_sub_u32 s74, s74, 1")
    e("  s_cmp_lg_u32 s74, 0")
    e(f"  s_cbranch_scc1 {label}")
    e(f"{label}_DONE:")
    e("  s_mov_b64 exec, -1")

def mpoll(label, n, issue, tags, thr):
    full = (1 << n) - 1
    e("  s_not_b32 s75, s26")
    for k in range(n):
        for x in tags(k):
            e(f"  v_mov_b32 v{x}, s75")
    e("  s_mov_b32 s77, 0")
    e(f"  s_mov_b32 s74, {OPT['bnd']:#x}")
    e(f"{label}:")
    for k in range(n):
        e(f"  s_bitcmp1_b32 s77, {k}")
        e(f"  s_cbranch_scc1 {label}S{k}")
        issue(k)
        e(f"{label}S{k}:")
    if thr is not None:
        e(f"  s_xor_b32 s75, s77, {full:#x}")
        e("  s_bcnt1_i32_b32 s75, s75")
        e(f"  s_cmp_le_u32 s75, {thr}")
        e(f"  s_cbranch_scc1 {label}F")
        e("  s_waitcnt vmcnt(0)")
        e(f"{label}F:")
    if OPT["sleep"]:
        e(f"  s_sleep {OPT['sleep']}")
    for k in range(n):
        t = tags(k)
        e(f"  v_cmp_eq_u32 vcc, s26, v{t[0]}")
        for x in t[1:]:
            e(f"  v_cmp_eq_u32 s[78:79], s26, v{x}")
            e("  s_and_b64 vcc, vcc, s[78:79]")
        e("  s_cmp_eq_u64 vcc, -1")
        e(f"  s_cselect_b32 s75, {1<<k:#x}, 0")
        e("  s_or_b32 s77, s77, s75")
    e(f"  s_cmp_eq_u32 s77, {full:#x}")
    e(f"  s_cbranch_scc1 {label}_DONE")
    e("  s_sub_u32 s74, s74, 1")
    e("  s_cmp_lg_u32 s74, 0")
    e(f"  s_cbranch_scc1 {label}")
    e(f"{label}_DONE:")
    e("  s_waitcnt vmcnt(0)")

def tail2():
    B = OPT['bnd']
    if OPT["obar"]:
        e("  s_barrier")
    if OPT["fs"]:
        e("  v_and_b32 v5, 3, v1")
        e("  v_lshrrev_b32 v6, 2, v1")
        e("  s_cmp_lt_u32 s2, 8")
        e("  s_cbranch_scc1 T_FIN")
    if not OPT["jd"]:
        e("  s_cmp_%s_u32 s3, 4" % ("lt" if OPT["pf"] else "ge"))
        e("  s_cbranch_scc1 T_NW")
    e("  s_and_b32 s75, s3, 1")
    e("  s_cmp_eq_u32 s75, 1")
    e(f"  s_cselect_b32 s75, s{SP1}, s{SP0}")
    if OPT["jd"]:
        e("  v_mul_u32_u24 v11, 2176, v4")
        e("  v_lshl_add_u32 v11, v3, 2, v11")
        e("  s_lshr_b32 s76, s3, 1")
        e("  s_lshl_b32 s76, s76, 6")
        e(f"  s_add_u32 s76, s76, {L_WO}")
        e("  v_add_u32 v11, s76, v11")
        for ks in range(4):
            for jj in range(8):
                e(f"  ds_read_b32 v{80+ks*8+jj}, v11 offset:{(ks*32+jj)*272}")
        e("  s_waitcnt lgkmcnt(0)")
    elif OPT["x2"]:
        e("  v_mul_u32_u24 v11, 1152, v4")
        e("  v_lshl_add_u32 v11, v3, 2, v11")
        e("  s_bfe_u32 s76, s3, 0x10001")
        e("  s_lshl_b32 s76, s76, 6")
        e("  v_add_u32 v11, s76, v11")
        for ks in range(4):
            for jj in range(8):
                e(f"  ds_read_b32 v{80+ks*8+jj}, v11 offset:{L_WO + (ks*32+jj)*144}")
        e("  s_waitcnt lgkmcnt(0)")
    for ks in range(4):
        for q in range(4):
            e(f"  v_perm_b32 v{112+ks*4+q}, v{80+ks*8+2*q+1}, v{80+ks*8+2*q}, s75")
    e("  v_and_b32 v11, 1, v3")
    e("  v_lshlrev_b32 v11, 8, v11")
    e("  v_lshl_add_u32 v11, v4, 4, v11")
    e("  v_and_b32 v12, 1, v4")
    e("  v_lshlrev_b32 v13, 12, v12")
    e("  v_lshl_add_u32 v13, v3, 4, v13")
    if OPT["jd"]:
        e("  s_lshr_b32 s75, s3, 1")
    else:
        e("  s_bfe_u32 s75, s3, 0x10001")
    e("  s_lshl_b32 s75, s75, 8")
    e("  s_and_b32 s78, s3, 1")
    e("  s_lshl_b32 s78, s78, 3")
    e("  s_add_u32 s75, s75, s78")
    if OPT["jd"]:
        e(f"  s_and_b32 s78, s{SNO}, 3")
        e(f"  s_lshl_b32 s78, s78, 10")
    else:
        e(f"  s_lshl_b32 s78, s{SNO}, 9")
    e("  s_add_u32 s75, s75, s78")
    e(f"  s_lshl_b32 s78, s{SHEAD}, 13")
    e("  s_add_u32 s75, s75, s78")
    e(f"  s_add_u32 s75, s75, {WS_SG}")
    e("  v_add_u32 v13, s75, v13")
    e("T_NW:")
    e("  v_and_b32 v5, 3, v1")
    e("  v_lshrrev_b32 v6, 2, v1")
    e("  s_lshr_b32 s75, s3, 2")
    e("  s_lshl_b32 s75, s75, 5")
    e(f"  s_add_u32 s75, s75, s{SHEAD}")
    e("  s_lshl_b32 s76, s75, 8")
    e("  v_lshlrev_b32 v9, 4, v6")
    e("  v_add_u32 v9, s76, v9")
    e("  s_lshl_b32 s76, s75, 14")
    e("  s_and_b32 s75, s3, 3")
    e("  s_lshl_b32 s75, s75, 8")
    e("  s_add_u32 s76, s76, s75")
    e("  v_lshlrev_b32 v10, 10, v6")
    e("  v_lshl_add_u32 v10, v5, 4, v10")
    e("  v_add_u32 v10, s76, v10")
    e("  s_not_b32 s75, s26")
    for r in [17, 19, 21, 23, 25, 27, 29, 31, 34]:
        e(f"  v_mov_b32 v{r}, s75")
    e("  s_mov_b64 s[76:77], -1")
    e("  s_mov_b64 s[78:79], -1")
    e(f"  s_mov_b32 s72, {WS_MG}")
    e(f"  s_mov_b32 s73, {WS_OG}")
    e(f"  s_mov_b32 s74, {B:#x}")
    e(f"  s_mov_b32 s84, {64 if OPT['f1st'] else OPT['spec']}")
    e("T_P:")
    e("  s_mov_b64 exec, s[76:77]")
    e("  s_cbranch_execz T_P1")
    e(f"  buffer_load_dwordx3 v[32:34], v9, s[{SWS}:{SWS+3}], s72 offen sc1")
    e("T_P1:")
    e("  s_or_b64 s[80:81], s[76:77], s[78:79]")
    e("  s_bcnt1_i32_b64 s75, s[80:81]")
    e("  s_andn2_b64 s[80:81], s[78:79], s[76:77]")
    e(f"  s_cmp_le_u32 s75, s84")
    e(f"  s_mov_b32 s84, {OPT['spec']}")
    e("  s_cselect_b64 exec, s[78:79], s[80:81]")
    e("  s_cbranch_execz T_P2")
    for i in range(4):
        e(f"  buffer_load_dwordx4 v[{16+4*i}:{19+4*i}], v10, s[{SWS}:{SWS+3}], s73 offen offset:{64*i} sc1")
    e("T_P2:")
    e("  s_mov_b64 exec, -1")
    if OPT["pw"] == 1:
        e("  s_waitcnt vmcnt(0)")
    else:
        e(f"  s_cmp_le_u32 s75, {OPT['spec']}")
        e("  s_cbranch_scc1 T_P3")
        e("  s_waitcnt vmcnt(0)")
        e("T_P3:")
        e(f"  s_waitcnt vmcnt({OPT['pw']})")
    if OPT["psl2"]: e(f"  s_sleep {OPT['psl2']}")
    e("  v_cmp_ne_u32 s[76:77], s26, v34")
    e("  v_cmp_ne_u32 s[78:79], s26, v17")
    for r in [19, 21, 23, 25, 27, 29, 31]:
        e(f"  v_cmp_ne_u32 vcc, s26, v{r}")
        e("  s_or_b64 s[78:79], s[78:79], vcc")
    e("  s_or_b64 s[80:81], s[76:77], s[78:79]")
    e("  s_cmp_eq_u64 s[80:81], 0")
    e("  s_cbranch_scc1 T_PD")
    e("  s_sub_u32 s74, s74, 1")
    e("  s_cmp_lg_u32 s74, 0")
    e("  s_cbranch_scc1 T_P")
    e("T_PD:")
    if not OPT["nd"]:
        e("  s_waitcnt vmcnt(0)")
    tl6(4)
    if OPT["nd"]:
        e("  v_mov_b32 v35, v32")
        e("  v_mov_b32 v46, v32")
        e("  v_mov_b32 v47, v33")
        red_steps([35], [36], "v_max_f32")
        e("  v_sub_f32 v46, v46, v35")
        e(f"  v_mul_f32 v46, s{SC}, v46")
        e("  v_exp_f32 v46, v46")
        e("  s_nop 0")
        e("  v_mul_f32 v47, v47, v46")
        vals = list(range(48, 56))
        for i, r in enumerate(vals):
            e(f"  v_mul_f32 v{r}, v{16+2*i}, v46")
        red_steps([47] + vals, list(range(36, 45)), "v_add_f32")
        e("  v_rcp_f32 v47, v47")
        e("  s_nop 0")
        for r in vals:
            e(f"  v_mul_f32 v{r}, v{r}, v47")
        for i in range(4):
            e(f"  v_cvt_pk_bf16_f32 v{36+i}, v{48+2*i}, v{49+2*i}")
    else:
        e("  v_mov_b32 v35, v32")
        red_steps([35], [36], "v_max_f32")
        e("  v_sub_f32 v32, v32, v35")
        e(f"  v_mul_f32 v32, s{SC}, v32")
        e("  v_exp_f32 v32, v32")
        e("  s_nop 0")
        e("  v_mul_f32 v33, v33, v32")
        vals = [16, 18, 20, 22, 24, 26, 28, 30]
        for r in vals:
            e(f"  v_mul_f32 v{r}, v{r}, v32")
        red_steps([33] + vals, list(range(36, 45)), "v_add_f32")
        e("  v_rcp_f32 v33, v33")
        e("  s_nop 0")
        for r in vals:
            e(f"  v_mul_f32 v{r}, v{r}, v33")
        for i in range(4):
            e(f"  v_cvt_pk_bf16_f32 v{36+i}, v{16+4*i}, v{18+4*i}")
    e("  s_lshl_b32 s75, s3, 6")
    e("  v_lshl_add_u32 v8, v5, 4, s75")
    e("  s_mov_b64 exec, 0xf")
    e(f"  ds_write_b128 v8, v[36:39] offset:{L_VEC}")
    e("  s_mov_b64 exec, -1")
    e("  s_waitcnt lgkmcnt(0)")
    e("  s_barrier")
    if not OPT["jd"]:
        e("  s_cmp_%s_u32 s3, 4" % ("lt" if OPT["pf"] else "ge"))
        e("  s_cbranch_scc1 T_F")
    for ks in range(4):
        e(f"  ds_read_b128 v[{132+4*ks}:{135+4*ks}], v11 offset:{L_VEC + ks*64}")
    e("  s_waitcnt lgkmcnt(0)")
    for ks in range(4):
        c = "0" if ks == 0 else "v[148:151]"
        e(f"  v_mfma_f32_16x16x32_bf16 v[148:151], v[{132+4*ks}:{135+4*ks}], v[{112+4*ks}:{115+4*ks}], {c}")
    e("  v_cmp_eq_u32 vcc, 1, v12")
    e("  v_mov_b32 v153, s26")
    e("  s_nop 7")
    e("  s_nop 7")
    e("  v_cndmask_b32 v152, v148, v149, vcc")
    e("  s_mov_b64 exec, 0xffffffff")
    e(f"  buffer_store_dwordx2 v[152:153], v13, s[{SWS}:{SWS+3}], 0 offen sc1")
    e("  s_mov_b64 exec, -1")
    tl6(5)
    e("T_F:")
    e("  s_cmp_ge_u32 s2, 8")
    e("  s_cbranch_scc1 K_END")
    e("T_FIN:")
    e("  s_lshr_b32 s75, s3, 2")
    e("  s_lshl_b32 s75, s75, 9")
    e("  s_and_b32 s76, s2, 7")
    e("  s_lshl_b32 s76, s76, 6")
    e("  s_add_u32 s75, s75, s76")
    e("  s_and_b32 s76, s3, 3")
    e("  s_lshl_b32 s76, s76, 4")
    e("  s_add_u32 s75, s75, s76")
    e("  v_lshlrev_b32 v7, 1, v5")
    e("  v_add_u32 v7, s75, v7")
    e("  v_lshlrev_b32 v8, 1, v7")
    e(f"  buffer_load_dword v46, v8, s[{SX}:{SX+3}], 0 offen")
    e(f"  buffer_load_dword v47, v8, s[{SX}:{SX+3}], 0 offen offset:16")
    e("  v_lshlrev_b32 v10, 3, v7")
    e("  v_lshl_add_u32 v10, v6, 13, v10")
    def fpoll(lbl, base, m1, dst, R=16):
        if not OPT["nd"]: R = 16
        e("  s_not_b32 s75, s26")
        for r in range(R, R+16):
            e(f"  v_mov_b32 v{r}, " + ("s75" if (r & 1) else "0"))
        e("  s_mov_b64 s[76:77], -1")
        e(f"  s_mov_b32 s78, {m1 & 0xffffffff:#x}")
        e(f"  s_mov_b32 s79, {m1 >> 32:#x}")
        e(f"  s_mov_b64 s[82:83], s[78:79]")
        e(f"  s_mov_b32 s72, {base}")
        e(f"  s_mov_b32 s73, {base + 131072}")
        e(f"  s_mov_b32 s74, {B:#x}")
        e(f"{lbl}:")
        e("  s_mov_b64 exec, s[76:77]")
        e(f"  s_cbranch_execz {lbl}1")
        for i in range(2):
            e(f"  buffer_load_dwordx4 v[{R+4*i}:{R+3+4*i}], v10, s[{SWS}:{SWS+3}], s72 offen offset:{64*i} sc1")
        e(f"{lbl}1:")
        e("  s_mov_b64 exec, s[78:79]")
        e(f"  s_cbranch_execz {lbl}2")
        for i in range(2):
            e(f"  buffer_load_dwordx4 v[{R+8+4*i}:{R+11+4*i}], v10, s[{SWS}:{SWS+3}], s73 offen offset:{64*i} sc1")
        e(f"{lbl}2:")
        e("  s_mov_b64 exec, -1")
        e(f"  s_waitcnt vmcnt({0 if OPT['fw2']==1 else OPT['fw2']})")
        if OPT["fsl2"]: e(f"  s_sleep {OPT['fsl2']}")
        e(f"  v_cmp_ne_u32 s[76:77], s26, v{R+1}")
        for r in [R+3, R+5, R+7]:
            e(f"  v_cmp_ne_u32 vcc, s26, v{r}")
            e("  s_or_b64 s[76:77], s[76:77], vcc")
        e(f"  v_cmp_ne_u32 s[78:79], s26, v{R+9}")
        for r in [R+11, R+13, R+15]:
            e(f"  v_cmp_ne_u32 vcc, s26, v{r}")
            e("  s_or_b64 s[78:79], s[78:79], vcc")
        e("  s_and_b64 s[78:79], s[78:79], s[82:83]")
        e("  s_or_b64 s[80:81], s[76:77], s[78:79]")
        e("  s_cmp_eq_u64 s[80:81], 0")
        e(f"  s_cbranch_scc1 {lbl}D")
        e("  s_sub_u32 s74, s74, 1")
        e("  s_cmp_lg_u32 s74, 0")
        e(f"  s_cbranch_scc1 {lbl}")
        e(f"{lbl}D:")
        if not OPT["nd"]:
            e("  s_waitcnt vmcnt(0)")
        for k in range(4):
            e(f"  v_add_f32 v{dst+k}, v{R+2*k}, v{R+8+2*k}")
        red_steps(list(range(dst, dst+4)), list(range(36, 40)), "v_add_f32")
        for k in range(4):
            round_bf16(dst+k, dst+k)
    def fpoll_mg_g():
        e("  s_not_b32 s75, s26")
        for r in range(160, 192):
            e(f"  v_mov_b32 v{r}, " + ("s75" if (r & 1) else "0"))
        e("  s_mov_b64 s[76:77], -1")
        e("  s_mov_b32 s78, -1")
        e("  s_mov_b32 s79, 0xffff")
        e("  s_mov_b64 s[82:83], s[78:79]")
        e("  s_mov_b64 s[86:87], -1")
        e("  s_mov_b64 s[88:89], -1")
        e(f"  s_mov_b32 s72, {WS_GG}")
        e(f"  s_mov_b32 s73, {WS_GG + 131072}")
        e(f"  s_mov_b32 s84, {WS_SG}")
        e(f"  s_mov_b32 s85, {WS_SG + 131072}")
        e(f"  s_mov_b32 s74, {B:#x}")
        def iss(lbl, mask, so, R):
            e(f"  s_mov_b64 exec, s[{mask}:{mask+1}]")
            e(f"  s_cbranch_execz {lbl}")
            for i in range(2):
                e(f"  buffer_load_dwordx4 v[{R+4*i}:{R+3+4*i}], v10, s[{SWS}:{SWS+3}], s{so} offen offset:{64*i} sc1")
            e(f"{lbl}:")
        def chk(mask, R):
            e(f"  v_cmp_ne_u32 s[{mask}:{mask+1}], s26, v{R+1}")
            for r in [R+3, R+5, R+7]:
                e(f"  v_cmp_ne_u32 vcc, s26, v{r}")
                e(f"  s_or_b64 s[{mask}:{mask+1}], s[{mask}:{mask+1}], vcc")
        e("T_M:")
        iss("T_M1", 76, 72, 160)
        iss("T_M2", 78, 73, 168)
        iss("T_M3", 86, 84, 176)
        iss("T_M4", 88, 85, 184)
        e("  s_mov_b64 exec, -1")
        e("  s_waitcnt vmcnt(0)")
        if OPT["fsl2"]: e(f"  s_sleep {OPT['fsl2']}")
        chk(76, 160)
        chk(78, 168)
        chk(86, 176)
        chk(88, 184)
        e("  s_and_b64 s[78:79], s[78:79], s[82:83]")
        e("  s_or_b64 s[80:81], s[76:77], s[78:79]")
        e("  s_cmp_eq_u64 s[80:81], 0")
        e("  s_cbranch_scc1 T_MD")
        e("  s_sub_u32 s74, s74, 1")
        e("  s_cmp_lg_u32 s74, 0")
        e("  s_cbranch_scc1 T_M")
        e("T_MD:")
        iss("T_M5", 86, 84, 176)
        iss("T_M6", 88, 85, 184)
        e("  s_mov_b64 exec, -1")
        for k in range(4):
            e(f"  v_add_f32 v{40+k}, v{160+2*k}, v{168+2*k}")
        red_steps(list(range(40, 44)), list(range(36, 40)), "v_add_f32")
        for k in range(4):
            round_bf16(40+k, 40+k)
    def fpoll_mg_s():
        def iss(lbl, mask, so, R):
            e(f"  s_mov_b64 exec, s[{mask}:{mask+1}]")
            e(f"  s_cbranch_execz {lbl}")
            for i in range(2):
                e(f"  buffer_load_dwordx4 v[{R+4*i}:{R+3+4*i}], v10, s[{SWS}:{SWS+3}], s{so} offen offset:{64*i} sc1")
            e(f"{lbl}:")
        def chk(mask, R):
            e(f"  v_cmp_ne_u32 s[{mask}:{mask+1}], s26, v{R+1}")
            for r in [R+3, R+5, R+7]:
                e(f"  v_cmp_ne_u32 vcc, s26, v{r}")
                e(f"  s_or_b64 s[{mask}:{mask+1}], s[{mask}:{mask+1}], vcc")
        e(f"  s_mov_b32 s74, {B:#x}")
        e("  s_branch T_N0")
        e("T_N:")
        iss("T_N3", 86, 84, 176)
        iss("T_N4", 88, 85, 184)
        e("  s_mov_b64 exec, -1")
        e("T_N0:")
        e("  s_waitcnt vmcnt(0)")
        chk(86, 176)
        chk(88, 184)
        e("  s_or_b64 s[80:81], s[86:87], s[88:89]")
        e("  s_cmp_eq_u64 s[80:81], 0")
        e("  s_cbranch_scc1 T_ND")
        if OPT["fsl2"]: e(f"  s_sleep {OPT['fsl2']}")
        e("  s_sub_u32 s74, s74, 1")
        e("  s_cmp_lg_u32 s74, 0")
        e("  s_cbranch_scc1 T_N")
        e("T_ND:")
        for k in range(4):
            e(f"  v_add_f32 v{48+k}, v{176+2*k}, v{184+2*k}")
        red_steps(list(range(48, 52)), list(range(36, 40)), "v_add_f32")
        for k in range(4):
            round_bf16(48+k, 48+k)
    if OPT["mg"]:
        fpoll_mg_g()
    else:
        fpoll("T_G", WS_GG, (1 << 48) - 1, 40, 160)
    for k in range(4):
        e(f"  v_mul_f32 v{36+k}, 0xbfb8aa3b, v{40+k}")
    for k in range(4):
        e(f"  v_exp_f32 v{36+k}, v{36+k}")
    e("  s_nop 0")
    for k in range(4):
        e(f"  v_add_f32 v{36+k}, 1.0, v{36+k}")
    for k in range(4):
        e(f"  v_rcp_f32 v{36+k}, v{36+k}")
    e("  s_nop 0")
    for k in range(4):
        e(f"  v_mul_f32 v{40+k}, v{36+k}, v{40+k}")
    for k in range(4):
        round_bf16(40+k, 40+k)
    if OPT["mg"]:
        fpoll_mg_s()
    else:
        fpoll("T_S", WS_SG, (1 << 64) - 1, 48, 176)
    tl6(6)
    for k in range(4):
        e(f"  v_mul_f32 v{48+k}, v{48+k}, v{40+k}")
    for k in range(4):
        round_bf16(48+k, 48+k)
    for k in range(2):
        e(f"  v_lshlrev_b32 v36, 16, v{46+k}")
        e(f"  v_and_b32 v37, 0xffff0000, v{46+k}")
        e(f"  v_add_f32 v{48+2*k}, v{48+2*k}, v36")
        e(f"  v_add_f32 v{49+2*k}, v{49+2*k}, v37")
        e(f"  v_cvt_pk_bf16_f32 v{48+2*k}, v{48+2*k}, v{49+2*k}")
    e("  s_mov_b64 exec, 0xf")
    e(f"  buffer_store_dword v48, v8, s[{SOUT}:{SOUT+3}], 0 offen")
    e(f"  buffer_store_dword v50, v8, s[{SOUT}:{SOUT+3}], 0 offen offset:16")
    e("  s_or_b32 s75, s2, s3")
    e("  s_cmp_lg_u32 s75, 0")
    e("  s_cbranch_scc1 K_END")
    e("  s_mov_b64 exec, 1")
    e(f"  v_mov_b32 v5, {WS_EP}")
    e("  v_mov_b32 v6, s26")
    e(f"  buffer_store_dword v6, v5, s[{SWS}:{SWS+3}], 0 offen")

def gen():
    nt = OPT["nt"]
    BS = 17 if OPT["ilv"] else 13
    POL = dict(k="" if OPT["kpl"] else nt, v="" if OPT["vpl"] else nt)
    name = NAME + "_kernel"
    e(".text")
    e(f".globl {name}")
    e(".p2align 8")
    e(f".type {name},@function")
    e(f"{name}:")
    KA, VA, KB, VB = 16, 48, 80, 112
    ACC = 144
    QF = 176
    ST = 192
    PF = 200
    TR = 204
    M_, L_, T0, T1, AL, MC = 236, 237, 238, 239, 240, 241
    VKOFF, VVOFF = 242, 243
    WO = 244
    W2 = 252
    e("  s_cmp_ge_u32 s2, 256")
    e("  s_cbranch_scc1 K_END2" if OPT["prof"] else "  s_cbranch_scc1 K_END")
    if OPT["xm"]:
        e(f"  s_xor_b32 s2, s2, {OPT['xm']}")
    if OPT["xs"]:
        import random
        rnd = random.Random(OPT["xs"])
        bits = (*range(6), *range(6), 6, 7)
        def good(masks):
            steps = list(zip(bits, masks))
            def one(d):
                for bit, mask in reversed(steps):
                    if d >> bit & 1: d ^= mask
                return d % 8 == 0
            apart = [8 << k for k in range(5)]
            return not any(map(one, apart)) and any(map(one, range(1, 8)))
        while True:
            masks = [rnd.randrange(64) & ~(1 << b) for b in bits]
            if all(masks) and good(masks): break
        for b, m in zip(bits, masks):
            e(f"  s_bitcmp1_b32 s2, {b}")
            e(f"  s_cselect_b32 s3, {m}, 0")
            e("  s_xor_b32 s2, s2, s3")
    e("  s_load_dwordx16 s[4:19], s[0:1], 0")
    e("  s_load_dwordx2 s[24:25], s[0:1], 80")
    e("  v_and_b32 v1, 63, v0")
    e("  v_lshrrev_b32 v2, 6, v0")
    e("  v_and_b32 v3, 15, v1")
    e("  v_lshrrev_b32 v4, 4, v1")
    e("  v_mov_b32 v248, 0")
    e("  v_readfirstlane_b32 s3, v2")
    def derive():
        e(f"  s_and_b32 s{SG}, s2, 7")
        e(f"  s_lshr_b32 s{SR}, s2, 3")
        e(f"  s_and_b32 s{SNO}, s{SR}, 7")
        e(f"  s_lshl_b32 s{SCG}, s{SG}, 5")
        e(f"  s_add_u32 s{SCG}, s{SCG}, s{SR}")
        if OPT["cgx"]:
            e(f"  s_xor_b32 s{SCG}, s{SCG}, {OPT['cgx']}")
        e(f"  s_lshr_b32 s{SHC}, s{SR}, 3")
        e(f"  s_lshl_b32 s{SHC}, s{SHC}, 6")
        e(f"  s_lshl_b32 s74, s{SG}, 3")
        e(f"  s_add_u32 s{SHC}, s{SHC}, s74")
        e(f"  s_add_u32 s{SHC}, s{SHC}, s{SNO}")
        e(f"  s_lshr_b32 s{SB}, s{SR}, 4")
        e(f"  s_and_b32 s{SSPL}, s{SR}, 15")
        e(f"  s_and_b32 s{SNC}, s2, 7")
        e(f"  s_lshr_b32 s{SHEAD}, s{SR}, 3")
        e(f"  s_lshl_b32 s74, s{SG}, 2")
        e(f"  s_add_u32 s{SHEAD}, s{SHEAD}, s74")
        if OPT["map"]:
            e(f"  s_lshr_b32 s{SB}, s2, 7")
            e(f"  s_lshr_b32 s{SG}, s2, 4")
            e(f"  s_and_b32 s{SG}, s{SG}, 7")
            e(f"  s_and_b32 s{SSPL}, s2, 15")
        if OPT["rg"]:
            L = OPT["rg"]; W = 256 >> L
            if OPT["rm"]:
                e(f"  s_and_b32 s75, s2, {(1<<L)-1}")
                e(f"  s_lshr_b32 s76, s2, {L}")
            else:
                e(f"  s_lshr_b32 s75, s2, {8-L}")
                e(f"  s_and_b32 s76, s2, {W-1}")
            e(f"  s_lshr_b32 s74, s75, {L-4}")
            e(f"  s_lshr_b32 s{SB}, s74, 3")
            e(f"  s_and_b32 s{SG}, s74, 7")
            e(f"  s_and_b32 s77, s75, {(1<<(L-4))-1}")
            e(f"  s_lshl_b32 s{SSPL}, s77, {8-L}")
            e(f"  s_add_u32 s{SSPL}, s{SSPL}, s76")
        e(f"  s_lshl_b32 s93, s{SB}, 3")
        e(f"  s_add_u32 s93, s93, s{SG}")
        e(f"  s_mul_i32 s93, s93, {OPT['nsub']}")
        e(f"  s_and_b32 s74, s3, {OPT['nsub']-1}")
        e(f"  s_add_u32 s93, s93, s74")
        e(f"  s_lshl_b32 s93, s93, 8")
        e(f"  s_add_u32 s93, s93, {WS_PC}")
        e(f"  s_mul_i32 s92, s74, {(1024-16*OPT['ns'])//OPT['nsub']}")
        e(f"  s_add_u32 s92, s92, {16*OPT['ns']}")
        e(f"  s_mul_i32 s94, s{SSPL}, {OPT['ns']}")
        if OPT["il2"]:
            G = 1 << OPT["il2"]
            e(f"  s_lshr_b32 s94, s{SSPL}, {OPT['il2']}")
            e(f"  s_lshl_b32 s94, s94, {OPT['il2']+6}")
            e(f"  s_and_b32 s74, s{SSPL}, {G-1}")
            e(f"  s_add_u32 s94, s94, s74")
        e("  s_mov_b32 s95, 0")
        if OPT["rg"]:
            L = OPT["rg"]; W = 256 >> L
            e(f"  s_lshr_b32 s94, s{SSPL}, {8-L}")
            e(f"  s_lshl_b32 s94, s94, {14-L}")
            e(f"  s_and_b32 s76, s{SSPL}, {W-1}")
            e(f"  s_lshl_b32 s76, s76, {OPT['bs4']}")
            e("  s_add_u32 s94, s94, s76")
            if OPT["rm"]:
                e(f"  s_and_b32 s75, s2, {(1<<L)-1}")
            else:
                e(f"  s_lshr_b32 s75, s2, {8-L}")
            e(f"  s_mul_i32 s95, s75, {OPT['rr']}")
            if OPT["rq"]:
                e("  s_lshr_b32 s76, s75, 2")
                e(f"  s_mul_i32 s76, s76, {OPT['rq']}")
                e("  s_add_u32 s95, s95, s76")
            if OPT["rz"]:
                e("  s_lshr_b32 s76, s75, 4")
                e(f"  s_mul_i32 s76, s76, {OPT['rz']}")
                e("  s_add_u32 s95, s95, s76")
        if OPT["bm"] & 1:
            e(f"  s_mul_i32 s95, s{SSPL}, {OPT['ra']}")
            e(f"  s_lshr_b32 s74, s2, 4")
            e(f"  s_mul_i32 s74, s74, {OPT['rb']}")
            e(f"  s_add_u32 s95, s95, s74")
    def mapidx(src):
        G = OPT["il2"]
        if OPT["rg"]:
            B4 = OPT["bs4"]
            e(f"  s_lshr_b32 s75, s{src}, {B4}")
            e("  s_add_u32 s75, s75, s95")
            e(f"  s_and_b32 s75, s75, {(64>>B4)-1}")
            e(f"  s_lshl_b32 s75, s75, {8-OPT['rg']+B4}")
            e(f"  s_and_b32 s76, s{src}, {(1<<B4)-1}")
            e("  s_add_u32 s75, s75, s76")
            e(f"  s_add_u32 s{IDXA}, s75, s94")
            return
        if OPT["bm"] & 2:
            e(f"  s_and_b32 s75, s{src}, 7")
            e(f"  s_lshl_b32 s75, s75, 3")
            e(f"  s_lshr_b32 s76, s{src}, 3")
            e(f"  s_or_b32 s75, s75, s76")
            src = 75
        if OPT["bm"] & 1:
            e(f"  s_add_u32 s75, s{src}, s95")
            e(f"  s_and_b32 s75, s75, 63")
            src = 75
        if G:
            e(f"  s_lshl_b32 s75, s{src}, {G}")
            src = 75
        e(f"  s_add_u32 s{IDXA}, s{src}, s94")
    derive()
    e(f"  s_lshl_b32 s74, s{SB}, 3")
    e(f"  s_add_u32 s74, s74, s{SG}")
    e("  s_lshl_b32 s74, s74, 23")

    e(f"  s_mov_b32 s{SC}, 0x3e0293ee")
    e(f"  s_mov_b32 s{SP0}, 0x05040100")
    e(f"  s_mov_b32 s{SP1}, 0x07060302")
    e("  s_lshl_b32 s75, s3, 1")
    e(f"  s_sub_u32 s{IDXA}, s75, 2")
    e(f"  s_sub_u32 s{IDXB}, s75, 1")
    if OPT["nbuf"] == 1:
        mapidx(3)
        if OPT["nw"] < 8:
            e(f"  s_cmp_ge_u32 s3, {OPT['nw']}")
            e(f"  s_cselect_b32 s{IDXA}, 64, s{IDXA}")
    e("  v_and_b32 v5, 3, v3")
    e("  v_lshrrev_b32 v6, 2, v3")
    e("  v_lshl_add_u32 v5, v5, 2, v6")
    e("  v_lshlrev_b32 v5, 8, v5")
    e(f"  v_lshl_add_u32 v{VKOFF}, v4, 4, v5")
    e(f"  v_lshlrev_b32 v{VVOFF}, 4, v1")
    if OPT["kx"]:
        e(f"  v_lshlrev_b32 v{VKOFF}, 4, v1")
    e("  s_waitcnt lgkmcnt(0)")
    if not OPT["rs"]:
        e(f"  s_mov_b32 s75, {WS_EP}")
        e("  s_load_dword s26, s[24:25], s75")
    srd(SX, 4, 5, 2048)
    srd(SWQ, 10, 11, 512 * 4096 * 2)
    srd(SWS, 24, 25, WS_SIZE)
    e(f"  s_add_u32 s{SK}, s6, s74")
    e(f"  s_addc_u32 s{SK+1}, s7, 0")
    e(f"  s_and_b32 s{SK+1}, s{SK+1}, 0xffff")
    if OPT['ilv']:
        e(f"  s_lshl_b32 s75, s{SSPL}, 13")
        e(f"  s_sub_u32 s{SK+2}, {8<<20}, s75")
    else:
        e(f"  s_mov_b32 s{SK+2}, {8<<20}")
    e(f"  s_mov_b32 s{SK+3}, 0x00020000")
    e(f"  s_add_u32 s{SV}, s8, s74")
    e(f"  s_addc_u32 s{SV+1}, s9, 0")
    e(f"  s_and_b32 s{SV+1}, s{SV+1}, 0xffff")
    e(f"  s_mov_b32 s{SV+2}, s{SK+2}")
    e(f"  s_mov_b32 s{SV+3}, 0x00020000")
    e(f"  s_mov_b32 s71, {1 << OPT['ps']}" if OPT["ps"] else "  s_movk_i32 s71, 4096")
    e("  s_and_b32 s75, s2, 0x78")
    e("  s_or_b32 s75, s75, s3")
    e("  s_cmp_lg_u32 s75, 0")
    e("  s_cbranch_scc1 K_NOINIT")
    e("  s_lshr_b32 s75, s2, 7")
    e("  s_lshl_b32 s75, s75, 3")
    e("  s_and_b32 s76, s2, 7")
    e("  s_add_u32 s75, s75, s76")
    e(f"  s_mul_i32 s75, s75, {OPT['nsub']*256}")
    e(f"  s_add_u32 s75, s75, {WS_PC}")
    e("  v_mov_b32 v5, 0")
    e("  v_lshlrev_b32 v6, 8, v1")
    e(f"  s_mov_b64 exec, {(1<<OPT['nsub'])-1}")
    e(f"  buffer_store_dword v5, v6, s[{SWS}:{SWS+3}], s75 offen sc1")
    e("  s_mov_b64 exec, -1")
    e("K_NOINIT:")
    if OPT["warm"]:
        e(f"  s_lshl_b32 s75, s{SCG}, 6")
        e(f"  s_add_u32 s75, s75, {WS_QG}")
        e("  s_load_dword s98, s[24:25], s75")
        e("  s_add_u32 s75, s75, 16384")
        e("  s_load_dword s99, s[24:25], s75")
    stamp(0)
    if OPT["prof"] >= 3:
        e("  v_mov_b32 v251, 0")
        e("  s_mov_b32 m0, 0")
        tl(OPT["prof"])
    F1 = max(OPT["f1"], OPT["pre0"])
    def kchunk_l(KR, vo):
        r=[]
        if OPT["kx"]:
            for j in range(8):
                so = "0" if j < 4 else "s71"
                r.append(f"  buffer_load_dwordx4 v[{KR+4*j}:{KR+4*j+3}], v{vo}, s[{SK}:{SK+3}], {so} offen offset:{(j&3)*1024}{nt}")
            return r
        for t in range(2):
            for i in range(4):
                so = "0" if t == 0 else "s71"
                r.append(f"  buffer_load_dwordx4 v[{KR+16*t+4*i}:{KR+16*t+4*i+3}], v{vo}, s[{SK}:{SK+3}], {so} offen offset:{i*64}{POL['k']}")
        return r
    def vchunk_l(VR, vo):
        r=[]
        for j in range(8):
            so = "0" if j < 4 else "s71"
            r.append(f"  buffer_load_dwordx4 v[{VR+4*j}:{VR+4*j+3}], v{vo}, s[{SV}:{SV+3}], {so} offen offset:{(j&3)*1024}{POL['v']}")
        return r
    def kchunk(KR, vo):
        for l in kchunk_l(KR, vo): e(l)
    def vchunk(VR, vo):
        for l in vchunk_l(VR, vo): e(l)
    def blkoff(sidx):
        if OPT["rot"]:
            e(f"  s_add_u32 s75, s{sidx}, s73")
            e("  s_and_b32 s75, s75, 63")
            e(f"  s_lshl_b32 s75, s75, {BS}")
            e(f"  s_cmp_lt_u32 s{sidx}, 64")
            e("  s_cselect_b32 s75, s75, 0x100000")
        elif OPT["ps"]:
            a = OPT["ps"] - 12
            e(f"  s_lshr_b32 s75, s{sidx}, {a}")
            e(f"  s_lshl_b32 s75, s75, {OPT['ps']+1}")
            e(f"  s_and_b32 s76, s{sidx}, {(1<<a)-1}")
            e("  s_lshl_b32 s76, s76, 12")
            e("  s_add_u32 s75, s75, s76")
        else:
            e(f"  s_lshl_b32 s75, s{sidx}, {BS}")
    def loads(KR, VR, sidx):
        blkoff(sidx)
        e(f"  v_add_u32 v5, s75, v{VKOFF}")
        e(f"  v_add_u32 v6, s75, v{VVOFF}")
        kchunk(KR, 5)
        vchunk(VR, 6)
    def wo_loads():
        e("  v_lshlrev_b32 v14, 10, v12")
        e("  v_lshl_add_u32 v14, v13, 4, v14")
        if not OPT["mf"]:
            e(f"  s_lshl_b32 s75, s{SNO}, 7")
            e("  v_add_u32 v15, s75, v14")
            e(f"  s_lshl_b32 s75, s{SHEAD}, 17")
            e("  v_add_u32 v15, s75, v15")
            e(f"  buffer_load_dwordx4 v[{WO}:{WO+3}], v15, s[{SWO}:{SWO+3}], 0 offen")
            e("  v_add_u32 v15, 0x10000, v15")
            e(f"  buffer_load_dwordx4 v[{WO+4}:{WO+7}], v15, s[{SWO}:{SWO+3}], 0 offen")
        else:
            lab = f"K_WOS{len(out)}"
            e("  s_cmp_ge_u32 s3, 4")
            e(f"  s_cbranch_scc1 {lab}")
            e("  v_lshlrev_b32 v15, 13, v4")
            e("  v_lshl_add_u32 v15, v3, 2, v15")
            e(f"  s_lshl_b32 s75, s{SHEAD}, 17")
            e(f"  s_lshl_b32 s76, s{SNO}, 7")
            e("  s_add_u32 s75, s75, s76")
            e("  s_lshr_b32 s76, s3, 1")
            e("  s_lshl_b32 s76, s76, 6")
            e("  s_add_u32 s75, s75, s76")
            for ks in range(4):
                for jh in range(2):
                    for j in range(4):
                        e(f"  buffer_load_dword v{80+ks*8+jh*4+j}, v15, s[{SWO}:{SWO+3}], s75 offen offset:{j*1024}")
                    if not (ks == 3 and jh == 1):
                        e(f"  s_add_u32 s75, s75, {4096 if jh == 0 else 32768-4096}")
            e(f"{lab}:")
        e("  s_lshr_b32 s75, s2, 3")
        e("  s_lshl_b32 s75, s75, 16")
        e("  v_add_u32 v15, s75, v14")
        e(f"  s_lshl_b32 s75, s{SNC}, 7")
        e("  v_add_u32 v15, s75, v15")
        e(f"  buffer_load_dwordx4 v[{W2}:{W2+3}], v15, s[{SW2}:{SW2+3}], 0 offen")

    X = 144
    def ln_code():
        for b in range(2):
            for c in range(4):
                e(f"  v_lshlrev_b32 v{X+8*b+2*c}, 16, v{204+4*b+c}")
                e(f"  v_and_b32 v{X+1+8*b+2*c}, 0xffff0000, v{204+4*b+c}")
        for b in range(2):
            t = 160 + 4 * b
            e(f"  v_pk_add_f32 v[{t}:{t+1}], v[{X+8*b}:{X+8*b+1}], v[{X+8*b+2}:{X+8*b+3}]")
            e(f"  v_pk_add_f32 v[{t+2}:{t+3}], v[{X+8*b+4}:{X+8*b+5}], v[{X+8*b+6}:{X+8*b+7}]")
        for b in range(2):
            t = 160 + 4 * b
            e(f"  v_pk_add_f32 v[{t}:{t+1}], v[{t}:{t+1}], v[{t+2}:{t+3}]")
        e("  v_add_f32 v160, v160, v161")
        e("  v_add_f32 v161, v164, v165")
        wave_sum([160, 161], [162, 163])
        e("  v_mul_f32 v160, 0x3b000000, v160")
        e("  v_mul_f32 v161, 0x3b000000, v161")
        bsel = [" op_sel_hi:[1,0]", " op_sel:[0,1] op_sel_hi:[1,1]"]
        for b in range(2):
            for c in range(4):
                t = 168 + 8 * b + 2 * c
                e(f"  v_pk_add_f32 v[{t}:{t+1}], v[{X+8*b+2*c}:{X+8*b+2*c+1}], v[160:161]{bsel[b]} neg_lo:[0,1] neg_hi:[0,1]")
        for b in range(2):
            t = 168 + 8 * b
            e(f"  v_pk_mul_f32 v[{164+2*b}:{165+2*b}], v[{t}:{t+1}], v[{t}:{t+1}]")
        for c in range(1, 4):
            for b in range(2):
                t = 168 + 8 * b + 2 * c
                e(f"  v_pk_fma_f32 v[{164+2*b}:{165+2*b}], v[{t}:{t+1}], v[{t}:{t+1}], v[{164+2*b}:{165+2*b}]")
        e("  v_add_f32 v164, v164, v165")
        e("  v_add_f32 v165, v166, v167")
        wave_sum([164, 165], [162, 163])
        e("  v_mul_f32 v164, 0x3b000000, v164")
        e("  v_mul_f32 v165, 0x3b000000, v165")
        for b in range(2):
            round_bf16(164 + b, 164 + b)
            e(f"  v_add_f32 v{164+b}, 0x3727c5ac, v{164+b}")
            round_bf16(164 + b, 164 + b)
            e(f"  v_sqrt_f32 v{164+b}, v{164+b}")
            e("  s_nop 0")
            round_bf16(164 + b, 164 + b)
            e(f"  v_rcp_f32 v{164+b}, v{164+b}")
            round_bf16(160 + b, 160 + b)
        for b in range(2):
            for c in range(4):
                r = X + 8 * b + 2 * c
                e(f"  v_pk_add_f32 v[{r}:{r+1}], v[{r}:{r+1}], v[160:161]{bsel[b]} neg_lo:[0,1] neg_hi:[0,1]")
            for c in range(4):
                r = X + 8 * b + 2 * c
                e(f"  v_cvt_pk_bf16_f32 v{168+c}, v{r}, v{r+1}")
            for c in range(4):
                r = X + 8 * b + 2 * c
                e(f"  v_lshlrev_b32 v{r}, 16, v{168+c}")
                e(f"  v_and_b32 v{r+1}, 0xffff0000, v{168+c}")
            for c in range(4):
                r = X + 8 * b + 2 * c
                e(f"  v_pk_mul_f32 v[{r}:{r+1}], v[{r}:{r+1}], v[164:165]{bsel[b]}")
            for c in range(4):
                r = X + 8 * b + 2 * c
                e(f"  v_cvt_pk_bf16_f32 v{168+c}, v{r}, v{r+1}")
            for c in range(4):
                r = X + 8 * b + 2 * c
                e(f"  v_lshlrev_b32 v{r}, 16, v{168+c}")
                e(f"  v_and_b32 v{r+1}, 0xffff0000, v{168+c}")
        e("  v_lshlrev_b32 v5, 5, v1")
        for b in range(2):
            e(f"  ds_write_b128 v5, v[{X+8*b}:{X+8*b+3}] offset:{L_XN + b*2048}")
            e(f"  ds_write_b128 v5, v[{X+8*b+4}:{X+8*b+7}] offset:{L_XN + b*2048 + 16}")
        e("  s_waitcnt lgkmcnt(0)")

    def pk_part(w, xr, acc0, acc1, first):
        e(f"  v_lshlrev_b32 v160, 16, v{w}")
        e(f"  v_and_b32 v161, 0xffff0000, v{w}")
        if first:
            e(f"  v_pk_mul_f32 v[{acc0}:{acc0+1}], v[160:161], v[{xr}:{xr+1}] op_sel_hi:[1,0]")
            e(f"  v_pk_mul_f32 v[{acc1}:{acc1+1}], v[160:161], v[{xr}:{xr+1}] op_sel:[0,1] op_sel_hi:[1,1]")
        else:
            e(f"  v_pk_fma_f32 v[{acc0}:{acc0+1}], v[160:161], v[{xr}:{xr+1}], v[{acc0}:{acc0+1}] op_sel_hi:[1,0,1]")
            e(f"  v_pk_fma_f32 v[{acc1}:{acc1+1}], v[160:161], v[{xr}:{xr+1}], v[{acc1}:{acc1+1}] op_sel:[0,1,0] op_sel_hi:[1,1,1]")
    if OPT["rs"]:
        e("  v_lshrrev_b32 v12, 3, v0")
        e("  v_and_b32 v13, 7, v0")
        blkoff(IDXA)
        e(f"  v_add_u32 v228, s75, v{VKOFF}")
        e(f"  v_add_u32 v229, s75, v{VVOFF}")
        pl = kchunk_l(KA, 228) + vchunk_l(VA, 229)
        e("  s_cmp_ge_u32 s3, 4")
        e("  s_cbranch_scc1 K_FLOOD")
        e("  v_lshlrev_b32 v5, 4, v1")
        e(f"  buffer_load_dwordx4 v[204:207], v5, s[{SX}:{SX+3}], 0 offen")
        e(f"  buffer_load_dwordx4 v[208:211], v5, s[{SX}:{SX+3}], 0 offen offset:1024")
        e("  v_lshrrev_b32 v6, 2, v0")
        e("  v_and_b32 v7, 3, v0")
        e("  v_lshlrev_b32 v8, 13, v6")
        e("  v_lshl_add_u32 v8, v7, 3, v8")
        e(f"  s_lshl_b32 s75, s{SCG}, 5")
        e("  v_add_u32 v8, s75, v8")
        for i in range(8):
            if i:
                e(f"  v_add_u32 v8, 0x80000, v8")
            e(f"  buffer_load_dwordx2 v[{212+2*i}:{213+2*i}], v8, s[{SWQ}:{SWQ+3}], 0 offen")
        e("  s_cmp_lg_u32 s3, 0")
        e("  s_cbranch_scc1 K_NOLI")
        e("  v_mov_b32 v8, 8")
        e("  v_mov_b32 v9, 0")
        e("  v_mov_b32 v10, 8")
        e("  v_mov_b32 v11, 8")
        e(f"  v_mov_b32 v5, {L_CNT}")
        e("  s_mov_b64 exec, 1")
        e("  ds_write_b128 v5, v[8:11]")
        e("  v_mov_b32 v8, 0")
        e("  v_mov_b32 v10, 0")
        e("  v_mov_b32 v11, 0")
        e("  ds_write_b128 v5, v[8:11] offset:16")
        e("  ds_write_b128 v5, v[8:11] offset:32")
        e("  s_mov_b64 exec, -1")
        if OPT["dq"]:
            e("  v_lshlrev_b32 v5, 2, v1")
            e(f"  ds_write_b32 v5, v9 offset:{L_DQ}")
        e("  s_waitcnt lgkmcnt(0)")
        e("K_NOLI:")
        e("  s_barrier")
        e(f"  s_mov_b32 s75, {WS_EP}")
        e("  s_load_dword s26, s[24:25], s75")
        e("  v_lshrrev_b32 v230, 3, v1")
        e("  v_lshlrev_b32 v230, 14, v230")
        e("  v_and_b32 v7, 7, v1")
        e("  v_lshl_add_u32 v230, v7, 3, v230")
        e(f"  s_lshl_b32 s75, s{SCG}, 6")
        e(f"  s_add_u32 s75, s75, {WS_QG}")
        e("  v_add_u32 v230, s75, v230")
        e("  s_mul_i32 s75, s3, 192")
        e("  v_lshlrev_b32 v231, 4, v1")
        e("  v_add_u32 v231, s75, v231")
        e("  s_waitcnt vmcnt(8)")
        tl(4)
        ln_code()
        e("  s_add_u32 s26, s26, 1")
        e("  v_lshrrev_b32 v5, 2, v0")
        e("  v_lshlrev_b32 v5, 2, v5")
        for i in range(8):
            e(f"  ds_read2st64_b32 v[{168+2*i}:{169+2*i}], v5 offset0:{(L_XN + i*256)//256} offset1:{(L_XN + i*256 + 2048)//256}")
        e(f"  v_mov_b32 v7, {L_CNT}")
        e("  v_mov_b32 v8, 1")
        e("  v_lshlrev_b32 v9, 3, v1")
        tl(4)
        e("  s_waitcnt vmcnt(0) lgkmcnt(0)")
        tl(4)
        for i in range(8):
            for c in range(2):
                pk_part(212 + 2 * i + c, 168 + 2 * i, 184 + 2 * c, 188 + 2 * c, i == 0)
        dpp_steps(list(range(184, 192)), ["row_ror:4", "row_ror:8"])
        swap_steps(list(range(184, 192)), list(range(204, 212)))
        e("  s_mov_b64 exec, 0xf")
        e(f"  ds_write_b128 v231, v[184:187] offset:{L_QP}")
        e(f"  ds_write_b128 v231, v[188:191] offset:{L_QP+64}")
        e("  s_mov_b64 exec, 1")
        e("  ds_add_rtn_u32 v6, v7, v8 offset:16")
        e("  s_mov_b64 exec, -1")
        e("  s_waitcnt lgkmcnt(0)")
        tl(4)
        e("  v_readfirstlane_b32 s75, v6")
        e("  s_cmp_lg_u32 s75, 3")
        e("  s_cbranch_scc1 K_QW")
        e("  s_mov_b64 exec, 0xffff")
        for w in range(4):
            e(f"  ds_read_b64 v[{160+2*w}:{161+2*w}], v9 offset:{L_QP + w*192}")
        e("  v_mov_b32 v169, s26")
        e("  s_waitcnt lgkmcnt(0)")
        e("  v_pk_add_f32 v[160:161], v[160:161], v[162:163]")
        e("  v_pk_add_f32 v[164:165], v[164:165], v[166:167]")
        e("  v_pk_add_f32 v[160:161], v[160:161], v[164:165]")
        e("  v_cvt_pk_bf16_f32 v168, v160, v161")
        e(f"  buffer_store_dwordx2 v[168:169], v230, s[{SWS}:{SWS+3}], 0 offen sc1")
        e("  s_mov_b64 exec, 1")
        e("  ds_add_u32 v7, v8 offset:20")
        e("  ds_add_u32 v7, v8 offset:24")
        e("  s_mov_b64 exec, -1")
        e("K_QW:")
        e(f"  s_mov_b32 s74, {OPT['bnd']:#x}")
        e("K_QWL:")
        e("  ds_read_b32 v6, v7 offset:20")
        e("  s_waitcnt lgkmcnt(0)")
        e("  v_readfirstlane_b32 s75, v6")
        e("  s_cmp_ge_u32 s75, 5")
        e("  s_cbranch_scc1 K_QGO")
        e("  s_sub_u32 s74, s74, 1")
        e("  s_cmp_lg_u32 s74, 0")
        e("  s_cbranch_scc1 K_QWL")
        e("K_QGO:")
        tl(4)
        PB = [4, 28, 44, 80]
        prs = [b_ + 2*k for b_ in PB for k in range(8)]
        def poll_addr():
            e(f"  s_lshl_b32 s72, s{SB}, 14")
            e(f"  s_lshl_b32 s76, s{SG}, 11")
            e("  s_add_u32 s72, s72, s76")
            e("  s_lshl_b32 s76, s3, 8")
            e("  s_add_u32 s72, s72, s76")
            e(f"  s_add_u32 s72, s72, {WS_QG}")
            e("  s_lshl_b32 s76, s3, 7")
            e("  v_lshlrev_b32 v6, 2, v1")
            e("  v_add_u32 v6, s76, v6")
        def poll_issue():
            for i, b_ in enumerate(PB):
                e(f"  s_load_dwordx16 s[{b_}:{b_+15}], s[24:25], s72 offset:{64*i} glc")
        def poll_check(ok):
            e("  s_waitcnt lgkmcnt(0)")
            e(f"  s_and_b64 s[76:77], s[{prs[0]}:{prs[0]+1}], s[{prs[1]}:{prs[1]+1}]")
            e(f"  s_or_b64 s[78:79], s[{prs[0]}:{prs[0]+1}], s[{prs[1]}:{prs[1]+1}]")
            for r in prs[2:]:
                e(f"  s_and_b64 s[76:77], s[76:77], s[{r}:{r+1}]")
                e(f"  s_or_b64 s[78:79], s[78:79], s[{r}:{r+1}]")
            e("  s_xor_b32 s77, s77, s26")
            e("  s_xor_b32 s79, s79, s26")
            e("  s_or_b32 s77, s77, s79")
            e("  s_cmp_eq_u32 s77, 0")
            e(f"  s_cbranch_scc1 {ok}")
        def poll_save():
            for k, r in enumerate(prs):
                e(f"  v_writelane_b32 v5, s{r}, {k}")
            e("  s_mov_b64 exec, 0xffffffff")
            e(f"  ds_write_b32 v6, v5 offset:{L_Q}")
            e("  s_mov_b64 exec, 1")
            e("  ds_add_u32 v7, v8 offset:24")
            e("  s_mov_b64 exec, -1")
        poll_addr()
        QP = OPT["qp"]
        PS = 16 // QP
        for k in range(QP):
            poll_issue()
            for c in range(k*PS, (k+1)*PS):
                e(pl[c])
                if c in (7, 15): tl(5)
            poll_check(f"K_QP{k}")
        e("  s_branch K_SPL")
        for k in range(QP):
            e(f"K_QP{k}:")
            poll_save()
            if OPT["prof"] == 4:
                e("  s_mov_b32 m0, 8")
            tl(4)
            for c in range((k+1)*PS, 16):
                e(pl[c])
                if c in (7, 15): tl(5)
            e("  s_branch K_QR")
        e("K_FLOOD:")
        if OPT["pf"] == 2:
            e("  s_barrier")
        if OPT["pf"]:
            srd(SW1, 16, 17, 512 * 1792 * 2)
            srd(SWO, 12, 13, 4096 * 512 * 2)
            srd(SW2, 18, 19, 1792 * 512 * 2)
            e("  v_bfe_u32 v9, v0, 1, 7")
            e("  v_and_b32 v10, 1, v0")
            e("  s_movk_i32 s75, 3584")
            e("  v_mul_lo_u32 v11, v9, s75")
            e("  v_lshl_add_u32 v11, v10, 3, v11")
            e(f"  s_lshl_b32 s75, s{SHC}, 4")
            e("  v_add_u32 v11, s75, v11")
            for i in range(4):
                if i:
                    e(f"  v_add_u32 v11, {128*3584}, v11")
                e(f"  buffer_load_dwordx2 v[{112+2*i}:{113+2*i}], v11, s[{SW1}:{SW1+3}], 0 offen")
        if OPT["pf"] == 1:
            e("  v_lshrrev_b32 v9, 3, v1")
            e("  v_and_b32 v10, 7, v1")
            e("  v_lshlrev_b32 v11, 10, v9")
            e("  v_lshl_add_u32 v11, v10, 4, v11")
            e("  s_lshr_b32 s75, s2, 3")
            e("  s_lshl_b32 s75, s75, 16")
            e("  s_and_b32 s76, s3, 3")
            e("  s_lshl_b32 s76, s76, 14")
            e("  s_add_u32 s75, s75, s76")
            e("  s_and_b32 s76, s2, 7")
            e("  s_lshl_b32 s76, s76, 7")
            e("  s_add_u32 s75, s75, s76")
            e(f"  buffer_load_dwordx4 v[120:123], v11, s[{SW2}:{SW2+3}], s75 offen")
            e("  s_add_u32 s75, s75, 8192")
            e(f"  buffer_load_dwordx4 v[124:127], v11, s[{SW2}:{SW2+3}], s75 offen")
        if OPT["pf"] != 2:
            e("  s_barrier")
        e(f"  s_mov_b32 s75, {WS_EP}")
        e("  s_load_dword s26, s[24:25], s75")
        tl(4)
        NPRE = 6 if OPT["pf"] else 0
        for c in range(16):
            if c >= OPT["nf"]:
                e(f"  s_waitcnt vmcnt({OPT['nf']-1})")
            e(pl[c])
            if c in (7, 15): tl(5)
        e(f"  v_mov_b32 v7, {L_CNT}")
        e("  v_mov_b32 v8, 1")
        e("  s_mov_b64 exec, 1")
        e("  ds_add_u32 v7, v8 offset:20")
        e("  s_mov_b64 exec, -1")
        tl(4)
        if OPT["pf"] == 1:
            e("  v_lshlrev_b32 v15, 13, v4")
            e("  v_lshl_add_u32 v15, v3, 2, v15")
            e(f"  s_lshl_b32 s75, s{SHEAD}, 17")
            e(f"  s_lshl_b32 s76, s{SNO}, 7")
            e("  s_add_u32 s75, s75, s76")
            e("  s_bfe_u32 s76, s3, 0x10001")
            e("  s_lshl_b32 s76, s76, 6")
            e("  s_add_u32 s75, s75, s76")
            for ks in range(4):
                for jh in range(2):
                    for j in range(4):
                        e(f"  buffer_load_dword v{80+ks*8+jh*4+j}, v15, s[{SWO}:{SWO+3}], s75 offen offset:{j*1024}")
                    if not (ks == 3 and jh == 1):
                        e(f"  s_add_u32 s75, s75, {4096 if jh == 0 else 32768-4096}")
        e("  s_waitcnt lgkmcnt(0)")
        e("  s_add_u32 s26, s26, 1")
        if OPT["pf"]:
            e(f"  s_mov_b32 s74, {OPT['bnd']:#x}")
            e("K_XW:")
            e("  ds_read_b32 v6, v7 offset:16")
            e("  s_waitcnt lgkmcnt(0)")
            e("  v_readfirstlane_b32 s75, v6")
            e("  s_cmp_ge_u32 s75, 1")
            e("  s_cbranch_scc1 K_XWD")
            e("  s_sleep 1")
            e("  s_sub_u32 s74, s74, 1")
            e("  s_cmp_lg_u32 s74, 0")
            e("  s_cbranch_scc1 K_XW")
            e("K_XWD:")
            e(f"  s_cmp_ge_u32 s{SHC}, 224")
            e("  s_cbranch_scc1 K_HS")
            e("  v_bfe_u32 v5, v0, 1, 7")
            e("  v_lshlrev_b32 v5, 2, v5")
            for i in range(4):
                e(f"  ds_read2st64_b32 v[{144+2*i}:{145+2*i}], v5 offset0:{(L_XN + i*512)//256} offset1:{(L_XN + i*512 + 2048)//256}")
            e("  s_waitcnt vmcnt(%d) lgkmcnt(0)" % (50 if OPT["pf"] == 1 else 16))
            A = 164
            for i in range(4):
                for c in range(2):
                    pk_part(112 + 2*i + c, 144 + 2*i, A + 2*c, A + 4 + 2*c, i == 0)
            dpp_steps(list(range(A, A+8)), ["quad_perm:[2,3,0,1]", "row_ror:4", "row_ror:8"])
            swap_steps(list(range(A, A+8)), list(range(172, 180)))
            e("  s_mul_i32 s75, s3, 192")
            e("  v_lshlrev_b32 v5, 4, v1")
            e("  v_add_u32 v5, s75, v5")
            e("  s_mov_b64 exec, 0x3")
            e(f"  ds_write_b128 v5, v[{A}:{A+3}] offset:{L_QP+128}")
            e(f"  ds_write_b128 v5, v[{A+4}:{A+7}] offset:{L_QP+160}")
            e("  s_mov_b64 exec, 1")
            e(f"  ds_add_rtn_u32 v6, v7, v8 offset:4")
            e("  s_mov_b64 exec, -1")
            e("  s_waitcnt lgkmcnt(0)")
            e("  v_readfirstlane_b32 s75, v6")
            e("  s_cmp_lg_u32 s75, 3")
            e("  s_cbranch_scc1 K_HS")
            e("  v_lshlrev_b32 v5, 3, v1")
            e("  s_mov_b64 exec, 0xff")
            for w in range(4):
                e(f"  ds_read_b64 v[{144+2*w}:{145+2*w}], v5 offset:{L_QP + (4+w)*192 + 128}")
            e("  v_lshrrev_b32 v6, 2, v1")
            e("  s_movk_i32 s75, 7168")
            e("  v_mul_lo_u32 v6, v6, s75")
            e("  v_and_b32 v9, 3, v1")
            e("  v_lshl_add_u32 v6, v9, 3, v6")
            e(f"  s_lshl_b32 s75, s{SHC}, 5")
            e(f"  s_add_u32 s75, s75, {WS_HG}")
            e("  s_waitcnt lgkmcnt(0)")
            e("  v_pk_add_f32 v[144:145], v[144:145], v[146:147]")
            e("  v_pk_add_f32 v[148:149], v[148:149], v[150:151]")
            e("  v_pk_add_f32 v[144:145], v[144:145], v[148:149]")
            e("  v_max_f32 v144, 0, v144")
            e("  v_max_f32 v145, 0, v145")
            e("  v_cvt_pk_bf16_f32 v144, v144, v145")
            e("  v_mov_b32 v145, s26")
            e(f"  buffer_store_dwordx2 v[144:145], v6, s[{SWS}:{SWS+3}], s75 offen sc1")
            e("  s_mov_b64 exec, -1")
            e("K_HS:")
            tl(4)
        if OPT["pf"] == 1:
            e("  s_cmp_ge_u32 s2, 224")
            e("  s_cbranch_scc1 K_GS")
            e("  s_lshr_b32 s72, s2, 3")
            e("  s_lshl_b32 s72, s72, 8")
            e("  s_and_b32 s76, s3, 3")
            e("  s_lshl_b32 s76, s76, 6")
            e("  s_add_u32 s72, s72, s76")
            e(f"  s_add_u32 s72, s72, {WS_HG}")
            e("  s_add_u32 s73, s72, 7168")
            e(f"  s_mov_b32 s74, {OPT['bnd']:#x}")
            e("K_HP:")
            e("  s_load_dwordx16 s[4:19], s[24:25], s72 glc")
            e("  s_load_dwordx16 s[28:43], s[24:25], s73 glc")
            e("  s_waitcnt lgkmcnt(0)")
            hr = [4 + 2*k for k in range(8)] + [28 + 2*k for k in range(8)]
            e(f"  s_and_b64 s[76:77], s[{hr[0]}:{hr[0]+1}], s[{hr[1]}:{hr[1]+1}]")
            e(f"  s_or_b64 s[78:79], s[{hr[0]}:{hr[0]+1}], s[{hr[1]}:{hr[1]+1}]")
            for r in hr[2:]:
                e(f"  s_and_b64 s[76:77], s[76:77], s[{r}:{r+1}]")
                e(f"  s_or_b64 s[78:79], s[78:79], s[{r}:{r+1}]")
            e("  s_xor_b32 s77, s77, s26")
            e("  s_xor_b32 s79, s79, s26")
            e("  s_or_b32 s77, s77, s79")
            e("  s_cmp_eq_u32 s77, 0")
            e("  s_cbranch_scc1 K_HPD")
            e("  s_sub_u32 s74, s74, 1")
            e("  s_cmp_lg_u32 s74, 0")
            e("  s_cbranch_scc1 K_HP")
            e("K_HPD:")
            for k in range(4):
                e(f"  s_mov_b32 s76, {(0xffff << (16*k)) & 0xffffffff if k < 2 else 0:#x}")
                e(f"  s_mov_b32 s77, {(0xffff << (16*(k-2))) & 0xffffffff if k >= 2 else 0:#x}")
                e("  s_mov_b64 exec, s[76:77]")
                for b in range(2):
                    for i in range(2):
                        e(f"  v_mov_b32 v{144+2*b+i}, s{(4 if b == 0 else 28) + 2*(k+4*i)}")
            e("  s_mov_b64 exec, -1")
            e("  v_and_b32 v5, 8, v1")
            e("  v_cmp_ne_u32 vcc, 0, v5")
            for r in range(144, 148):
                e(f"  v_lshlrev_b32 v148, 16, v{r}")
                e(f"  v_and_b32 v149, 0xffff0000, v{r}")
                e(f"  v_cndmask_b32 v{r}, v148, v149, vcc")
            e("  s_waitcnt vmcnt(48)")
            A = 164
            for i in range(2):
                for c in range(4):
                    w = 120 + 4*i + c
                    e(f"  v_lshlrev_b32 v150, 16, v{w}")
                    e(f"  v_and_b32 v151, 0xffff0000, v{w}")
                    for b in range(2):
                        h = 144 + 2*b + i
                        if i == 0:
                            e(f"  v_mul_f32 v{A+8*b+2*c}, v150, v{h}")
                            e(f"  v_mul_f32 v{A+8*b+2*c+1}, v151, v{h}")
                        else:
                            e(f"  v_fmac_f32 v{A+8*b+2*c}, v150, v{h}")
                            e(f"  v_fmac_f32 v{A+8*b+2*c+1}, v151, v{h}")
            dpp_steps(list(range(A, A+16)), ["row_ror:8"])
            swap_steps(list(range(A, A+16)), list(range(180, 196)))
            e("  s_and_b32 s75, s3, 3")
            e("  s_lshl_b32 s75, s75, 9")
            e("  v_lshlrev_b32 v5, 5, v1")
            e("  v_add_u32 v5, s75, v5")
            e("  s_mov_b64 exec, 0xff")
            e(f"  ds_write_b128 v5, v[{A}:{A+3}] offset:{L_FP}")
            e(f"  ds_write_b128 v5, v[{A+4}:{A+7}] offset:{L_FP+16}")
            e(f"  ds_write_b128 v5, v[{A+8}:{A+11}] offset:{L_FP+256}")
            e(f"  ds_write_b128 v5, v[{A+12}:{A+15}] offset:{L_FP+272}")
            e("  s_mov_b64 exec, 1")
            e(f"  ds_add_rtn_u32 v6, v7, v8 offset:28")
            e("  s_mov_b64 exec, -1")
            e("  s_waitcnt lgkmcnt(0)")
            e("  v_readfirstlane_b32 s75, v6")
            e("  s_cmp_lg_u32 s75, 3")
            e("  s_cbranch_scc1 K_GS")
            e("  v_lshlrev_b32 v5, 3, v1")
            for w in range(4):
                e(f"  ds_read_b64 v[{144+2*w}:{145+2*w}], v5 offset:{L_FP + w*512}")
            e("  v_lshrrev_b32 v6, 5, v1")
            e("  v_lshlrev_b32 v6, 12, v6")
            e("  v_and_b32 v9, 31, v1")
            e("  v_lshl_add_u32 v6, v9, 4, v6")
            e("  s_lshr_b32 s75, s2, 3")
            e("  s_lshl_b32 s75, s75, 13")
            e("  s_and_b32 s76, s2, 7")
            e("  s_lshl_b32 s76, s76, 9")
            e("  s_add_u32 s75, s75, s76")
            e(f"  s_add_u32 s75, s75, {WS_GG}")
            e("  s_waitcnt lgkmcnt(0)")
            e("  v_pk_add_f32 v[144:145], v[144:145], v[146:147]")
            e("  v_pk_add_f32 v[148:149], v[148:149], v[150:151]")
            e("  v_pk_add_f32 v[144:145], v[144:145], v[148:149]")
            e("  v_mov_b32 v146, v145")
            e("  v_mov_b32 v145, s26")
            e("  v_mov_b32 v147, s26")
            e(f"  buffer_store_dwordx4 v[144:147], v6, s[{SWS}:{SWS+3}], s75 offen sc1")
            e("K_GS:")
            tl(4)
        poll_addr()
        e("K_SPL:")
        e(f"  s_mov_b32 s74, {OPT['bnd']:#x}")
        e("K_SP:")
        poll_issue()
        poll_check("K_SPD")
        if OPT["qsl"]: e(f"  s_sleep {OPT['qsl']}")
        e("  s_sub_u32 s74, s74, 1")
        e("  s_cmp_lg_u32 s74, 0")
        e("  s_cbranch_scc1 K_SP")
        e("K_SPD:")
        poll_save()
        if OPT["prof"] == 4:
            e("  s_mov_b32 m0, 8")
        tl(4)
        e("K_QR:")
        e(f"  s_mov_b32 s74, {OPT['bnd']:#x}")
        e("K_QRL:")
        e("  ds_read_b32 v6, v7 offset:24")
        e("  s_waitcnt lgkmcnt(0)")
        e("  v_readfirstlane_b32 s75, v6")
        e("  s_cmp_ge_u32 s75, 9")
        e("  s_cbranch_scc1 K_QRD")
        e("  s_sub_u32 s74, s74, 1")
        e("  s_cmp_lg_u32 s74, 0")
        e("  s_cbranch_scc1 K_QRL")
        e("K_QRD:")
        if OPT["prof"] == 4:
            e("  s_mov_b32 m0, 9")
        F2 = 16
    else:
        e("  v_lshlrev_b32 v5, 4, v1")
        e(f"  buffer_load_dwordx4 v[204:207], v5, s[{SX}:{SX+3}], 0 offen")
        e(f"  buffer_load_dwordx4 v[208:211], v5, s[{SX}:{SX+3}], 0 offen offset:1024")
        if OPT["xb"]:
            e("  s_barrier")
        e("  v_lshrrev_b32 v6, 2, v0")
        e("  v_and_b32 v7, 3, v0")
        e("  v_lshlrev_b32 v8, 13, v6")
        e("  v_lshl_add_u32 v8, v7, 3, v8")
        e(f"  s_lshl_b32 s75, s{SCG}, 5")
        e("  v_add_u32 v8, s75, v8")
        for i in range(4):
            if i == 0:
                e(f"  buffer_load_dwordx2 v[212:213], v8, s[{SWQ}:{SWQ+3}], 0 offen")
            else:
                e(f"  v_add_u32 v8, 0x100000, v8")
                e(f"  buffer_load_dwordx2 v[{212+2*i}:{213+2*i}], v8, s[{SWQ}:{SWQ+3}], 0 offen")
        e("  v_lshrrev_b32 v12, 3, v0")
        e("  v_and_b32 v13, 7, v0")
        if OPT["rot"]:
            e(f"  s_mul_i32 s73, s2, {OPT['rot']}")
        blkoff(IDXA)
        e(f"  v_add_u32 v224, s75, v{VKOFF}")
        e(f"  v_add_u32 v225, s75, v{VVOFF}")
        pl = kchunk_l(KA, 224) + vchunk_l(VA, 225)
        PRE0 = OPT["pre0"]
        if OPT["bar0"] and PRE0:
            e("  s_barrier")
        for c in range(PRE0):
            e(pl[c])
        e(f"  s_waitcnt vmcnt({4+PRE0})")
        tl(4)
        ln_code()
        e("  s_add_u32 s26, s26, 1")
        e("  v_lshrrev_b32 v5, 2, v0")
        e("  v_lshlrev_b32 v5, 2, v5")
        for i in range(4):
            e(f"  ds_read2st64_b32 v[{168+2*i}:{169+2*i}], v5 offset0:{(L_XN + i*512)//256} offset1:{(L_XN + i*512 + 2048)//256}")
        tl(4)
        e(f"  s_waitcnt vmcnt({PRE0}) lgkmcnt(0)")
        tl(4)
        for c in range(PRE0, F1):
            e(pl[c])
        for i in range(4):
            for c in range(2):
                pk_part(212 + 2 * i + c, 168 + 2 * i, 180 + 2 * c, 184 + 2 * c, i == 0)
        dpp_steps(list(range(180, 188)), ["row_ror:4", "row_ror:8"])
        swap_steps(list(range(180, 188)), list(range(204, 212)))
        e("  s_mul_i32 s75, s3, 192")
        e("  v_lshlrev_b32 v5, 4, v1")
        e("  v_add_u32 v5, s75, v5")
        e("  s_mov_b64 exec, 0xf")
        e(f"  ds_write_b128 v5, v[180:183] offset:{L_QP}")
        e(f"  ds_write_b128 v5, v[184:187] offset:{L_QP+64}")
        e("  s_mov_b64 exec, -1")
        e("  s_waitcnt lgkmcnt(0)")
        tl(4)
        e("  s_barrier")
        e("  s_cmp_lg_u32 s3, 0")
        e("  s_cbranch_scc1 K_B2")
        e("  v_lshlrev_b32 v5, 3, v1")
        e("  s_mov_b64 exec, 0xffff")
        for w in range(8):
            e(f"  ds_read_b64 v[{160+2*w}:{161+2*w}], v5 offset:{L_QP + w*192}")
        e("  v_lshrrev_b32 v6, 3, v1")
        e("  v_lshlrev_b32 v6, 14, v6")
        e("  v_and_b32 v7, 7, v1")
        e("  v_lshl_add_u32 v6, v7, 3, v6")
        e(f"  s_lshl_b32 s75, s{SCG}, 6")
        e(f"  s_add_u32 s75, s75, {WS_QG}")
        e("  v_add_u32 v6, s75, v6")
        e("  v_mov_b32 v8, 8")
        e("  v_mov_b32 v9, 0")
        e("  v_mov_b32 v10, 8")
        e(f"  v_mov_b32 v11, {L_CNT}")
        e("  s_waitcnt lgkmcnt(0)")
        e("  v_pk_add_f32 v[160:161], v[160:161], v[162:163]")
        e("  v_pk_add_f32 v[164:165], v[164:165], v[166:167]")
        e("  v_pk_add_f32 v[168:169], v[168:169], v[170:171]")
        e("  v_pk_add_f32 v[172:173], v[172:173], v[174:175]")
        e("  v_pk_add_f32 v[160:161], v[160:161], v[164:165]")
        e("  v_pk_add_f32 v[168:169], v[168:169], v[172:173]")
        e("  v_pk_add_f32 v[160:161], v[160:161], v[168:169]")
        e("  v_cvt_pk_bf16_f32 v160, v160, v161")
        e("  v_mov_b32 v161, s26")
        e(f"  buffer_store_dwordx2 v[160:161], v6, s[{SWS}:{SWS+3}], 0 offen sc1")
        e("  ds_write_b96 v11, v[8:10]")
        e("  s_mov_b64 exec, -1")
        e("K_B2:")
        tl(4)
        if OPT["bar2"]:
            e("  s_barrier")
        F2 = max(F1, OPT["f2"])
        for c in range(F1, F2):
            e(pl[c])
    if not OPT['rs']:
        e(f"  s_lshl_b32 s75, s{SB}, 14")
        e(f"  s_lshl_b32 s76, s{SG}, 11")
        e("  s_add_u32 s75, s75, s76")
        e("  s_lshl_b32 s76, s3, 8")
        e("  s_add_u32 s75, s75, s76")
        e(f"  s_add_u32 s75, s75, {WS_QG}")
        e("  s_lshl_b32 s76, s3, 7")
        e("  v_lshlrev_b32 v6, 2, v1")
        e("  v_add_u32 v6, s76, v6")
        e(f"  s_mov_b32 s74, {OPT['bnd']:#x}")
        PB = [4, 28, 44, 80]
        tl(4)
        e("K_SP:")
        for i, b_ in enumerate(PB):
            e(f"  s_load_dwordx16 s[{b_}:{b_+15}], s[24:25], s75 offset:{64*i} glc")
        e("  s_waitcnt lgkmcnt(0)")
        prs = [b_ + 2*k for b_ in PB for k in range(8)]
        e(f"  s_and_b64 s[76:77], s[{prs[0]}:{prs[0]+1}], s[{prs[1]}:{prs[1]+1}]")
        e(f"  s_or_b64 s[78:79], s[{prs[0]}:{prs[0]+1}], s[{prs[1]}:{prs[1]+1}]")
        for r in prs[2:]:
            e(f"  s_and_b64 s[76:77], s[76:77], s[{r}:{r+1}]")
            e(f"  s_or_b64 s[78:79], s[78:79], s[{r}:{r+1}]")
        e("  s_xor_b32 s77, s77, s26")
        e("  s_xor_b32 s79, s79, s26")
        e("  s_or_b32 s77, s77, s79")
        e("  s_cmp_eq_u32 s77, 0")
        e("  s_cbranch_scc1 K_SPD")
        e("  s_sub_u32 s74, s74, 1")
        e("  s_cmp_lg_u32 s74, 0")
        e("  s_cbranch_scc1 K_SP")
        e("K_SPD:")
        tl(4)
        for k, r in enumerate(prs):
            e(f"  v_writelane_b32 v5, s{r}, {k}")
        e("  s_mov_b64 exec, 0xffffffff")
        e(f"  ds_write_b32 v6, v5 offset:{L_Q}")
        e("  s_mov_b64 exec, -1")
        e("  s_waitcnt lgkmcnt(0)")
        e("  s_barrier")
    e("K_B3:")
    tl(4)
    e("  s_load_dwordx16 s[4:19], s[0:1], 0")
    e("  s_load_dwordx2 s[96:97], s[0:1], 64")
    for c in range(F2, len(pl)):
        e(pl[c])
    e("  v_and_b32 v5, 3, v3")
    e("  v_lshlrev_b32 v5, 8, v5")
    e("  v_lshl_add_u32 v5, v4, 4, v5")
    for i in range(4):
        e(f"  ds_read_b128 v[{QF+4*i}:{QF+4*i+3}], v5 offset:{L_Q + i*64}")
    derive()
    for r in range(32):
        e(f"  v_mov_b32 v{ACC+r}, 0")
    e(f"  v_mov_b32 v{M_}, 0xf149f2ca")
    e(f"  v_mov_b32 v{L_}, 0")
    e(f"  v_mov_b32 v7, {L_CNT}")
    e("  v_mov_b32 v8, 1")
    e("  s_waitcnt lgkmcnt(0)")
    srd(SX, 4, 5, 2048)
    srd(SW1, 16, 17, 512 * 1792 * 2)
    srd(SWO, 12, 13, 4096 * 512 * 2)
    srd(SW2, 18, 19, 1792 * 512 * 2)
    srd(SOUT, 96, 97, 2048)
    if OPT["warmp"]:
        e("  v_mov_b32 v10, 0")
        e("  s_mov_b64 exec, 1")
        if OPT["warmp"] & 1:
            e(f"  buffer_load_dword v249, v10, s[{SWS}:{SWS+3}], s93 offen sc1")
        if OPT["warmp"] & 2:
            e(f"  s_mov_b32 s75, {16*OPT['ns']*8192}")
            e(f"  buffer_load_dword v249, v10, s[{SK}:{SK+3}], s75 offen nt")
            e(f"  buffer_load_dword v250, v10, s[{SV}:{SV+3}], s75 offen nt")
        e("  s_mov_b64 exec, -1")
    if OPT["fd"]:
        e("  s_cmp_ge_u32 s2, 224")
        e("  s_cselect_b32 s95, 2, 0")
    if OPT["pf"] == 2:
        e("  s_cmp_ge_u32 s3, 4")
        e("  s_cselect_b32 s27, 2, 0")
    else:
        e("  s_mov_b32 s27, %d" % (0 if OPT["pf"] else 2))
    if OPT["gp"]:
        e("  s_load_dwordx2 s[98:99], s[0:1], 72")
        e("  s_and_b32 s75, s2, 60")
        e("  s_lshl_b32 s75, s75, 2")
        e("  v_mov_b32 v250, s75")
        e("  v_mov_b32 v249, 1")
        e("  s_mov_b32 s37, 0")
        e("  s_mov_b32 s36, 0")
        e("  s_waitcnt lgkmcnt(0)")
    def x_loads(sfx):
        e("  s_cmp_lg_u32 s27, 2")
        e(f"  s_cbranch_scc1 K_XL{sfx}")
        e("  s_mov_b32 s27, 3")
        if OPT["x2"]:
            e("  v_lshlrev_b32 v14, 10, v12")
            e("  v_lshl_add_u32 v14, v13, 4, v14")
            e("  s_cmp_ge_u32 s2, 224")
            e(f"  s_cbranch_scc1 K_XW{sfx}")
            e("  s_movk_i32 s75, 3584")
            e("  v_mul_lo_u32 v11, v12, s75")
            e("  v_lshl_add_u32 v11, v13, 4, v11")
            e("  s_and_b32 s75, s2, 7")
            e(f"  s_mul_i32 s75, s75, {64*3584}")
            e("  s_lshr_b32 s76, s2, 3")
            e("  s_lshl_b32 s76, s76, 7")
            e("  s_add_u32 s75, s75, s76")
            e(f"  buffer_load_dwordx4 v[244:247], v11, s[{SW1}:{SW1+3}], s75 offen")
            e(f"K_XW{sfx}:")
            e(f"  s_lshl_b32 s75, s{SHEAD}, 17")
            if OPT["jd"]:
                e(f"  s_and_b32 s76, s{SNO}, 3")
                e(f"  s_lshl_b32 s76, s76, 8")
            else:
                e(f"  s_lshl_b32 s76, s{SNO}, 7")
            e("  s_add_u32 s75, s75, s76")
            e(f"  buffer_load_dwordx4 v[80:83], v14, s[{SWO}:{SWO+3}], s75 offen")
            if OPT["jd"]:
                e(f"  buffer_load_dwordx4 v[88:91], v14, s[{SWO}:{SWO+3}], s75 offen offset:128")
            e("  s_add_u32 s75, s75, 0x10000")
            e(f"  buffer_load_dwordx4 v[84:87], v14, s[{SWO}:{SWO+3}], s75 offen")
            if OPT["jd"]:
                e(f"  buffer_load_dwordx4 v[92:95], v14, s[{SWO}:{SWO+3}], s75 offen offset:128")
            e("  s_lshr_b32 s75, s2, 3")
            e("  s_lshl_b32 s75, s75, 16")
            e("  v_add_u32 v15, s75, v14")
            e(f"  s_lshl_b32 s75, s{SNC}, 7")
            e("  v_add_u32 v15, s75, v15")
            e(f"  buffer_load_dwordx4 v[{W2}:{W2+3}], v15, s[{SW2}:{SW2+3}], 0 offen")
            e(f"K_XL{sfx}:")
            return
        e("  v_lshrrev_b32 v9, 1, v0")
        e("  v_and_b32 v10, 1, v0")
        e("  s_movk_i32 s75, 3584")
        e("  v_mul_lo_u32 v11, v9, s75")
        e("  v_lshl_add_u32 v11, v10, 3, v11")
        e(f"  s_lshl_b32 s75, s{SHC}, 4")
        e("  v_add_u32 v11, s75, v11")
        e(f"  buffer_load_dwordx2 v[244:245], v11, s[{SW1}:{SW1+3}], 0 offen")
        e(f"  v_add_u32 v11, {256*3584}, v11")
        e(f"  buffer_load_dwordx2 v[246:247], v11, s[{SW1}:{SW1+3}], 0 offen")
        wo_loads()
        e(f"K_XL{sfx}:")

    def wo_once(sfx):
        e("  s_cmp_lg_u32 s27, 2")
        e(f"  s_cbranch_scc1 K_WO{sfx}")
        e("  s_mov_b32 s27, 0")
        e("  v_lshlrev_b32 v15, 13, v4")
        e("  v_lshl_add_u32 v15, v3, 2, v15")
        e(f"  s_lshl_b32 s75, s{SHEAD}, 17")
        e(f"  s_lshl_b32 s76, s{SNO}, 7")
        e("  s_add_u32 s75, s75, s76")
        e("  s_bfe_u32 s76, s3, 0x10001")
        e("  s_lshl_b32 s76, s76, 6")
        e("  s_add_u32 s75, s75, s76")
        for ks in range(4):
            for jh in range(2):
                for j in range(4):
                    e(f"  buffer_load_dword v{80+ks*8+jh*4+j}, v15, s[{SWO}:{SWO+3}], s75 offen offset:{j*1024}")
                if not (ks == 3 and jh == 1):
                    e(f"  s_add_u32 s75, s75, {4096 if jh == 0 else 32768-4096}")
        e(f"K_WO{sfx}:")

    def fd_at_exit():
        e("  s_cmp_ge_u32 s2, 224")
        e("  s_cbranch_scc1 K_FX")
        e("  s_mov_b64 exec, 1")
        e("  ds_add_rtn_u32 v6, v7, v8 offset:32")
        e("  s_mov_b64 exec, -1")
        e("  s_waitcnt lgkmcnt(0)")
        e("  v_readfirstlane_b32 s72, v6")
        e("  s_cmp_ge_u32 s72, 4")
        e("  s_cbranch_scc1 K_FX")
        e("  v_lshrrev_b32 v9, 3, v1")
        e("  v_and_b32 v10, 7, v1")
        e("  v_lshlrev_b32 v11, 10, v9")
        e("  v_lshl_add_u32 v11, v10, 4, v11")
        e("  s_lshr_b32 s75, s2, 3")
        e("  s_lshl_b32 s75, s75, 16")
        e("  s_lshl_b32 s76, s72, 14")
        e("  s_add_u32 s75, s75, s76")
        e("  s_and_b32 s76, s2, 7")
        e("  s_lshl_b32 s76, s76, 7")
        e("  s_add_u32 s75, s75, s76")
        e(f"  buffer_load_dwordx4 v[16:19], v11, s[{SW2}:{SW2+3}], s75 offen")
        e("  s_add_u32 s75, s75, 8192")
        e(f"  buffer_load_dwordx4 v[20:23], v11, s[{SW2}:{SW2+3}], s75 offen")
        e("  v_lshlrev_b32 v12, 3, v4")
        e("  s_lshr_b32 s75, s2, 3")
        e("  s_lshl_b32 s75, s75, 8")
        e("  s_lshl_b32 s76, s72, 6")
        e("  s_add_u32 s75, s75, s76")
        e(f"  s_add_u32 s75, s75, {WS_HG}")
        e("  s_add_u32 s76, s75, 7168")
        e(f"  s_mov_b32 s74, {OPT['bnd']:#x}")
        e("K_FXP:")
        e(f"  buffer_load_dwordx2 v[24:25], v12, s[{SWS}:{SWS+3}], s75 offen sc1")
        e(f"  buffer_load_dwordx2 v[26:27], v12, s[{SWS}:{SWS+3}], s75 offen offset:32 sc1")
        e(f"  buffer_load_dwordx2 v[28:29], v12, s[{SWS}:{SWS+3}], s76 offen sc1")
        e(f"  buffer_load_dwordx2 v[30:31], v12, s[{SWS}:{SWS+3}], s76 offen offset:32 sc1")
        e("  s_waitcnt vmcnt(0)")
        e("  v_cmp_ne_u32 s[78:79], s26, v25")
        for r in [27, 29, 31]:
            e(f"  v_cmp_ne_u32 vcc, s26, v{r}")
            e("  s_or_b64 s[78:79], s[78:79], vcc")
        e("  s_cmp_eq_u64 s[78:79], 0")
        e("  s_cbranch_scc1 K_FXD")
        e("  s_sub_u32 s74, s74, 1")
        e("  s_cmp_lg_u32 s74, 0")
        e("  s_cbranch_scc1 K_FXP")
        e("K_FXD:")
        e("  v_and_b32 v5, 8, v1")
        e("  v_cmp_ne_u32 vcc, 0, v5")
        for r in [24, 26, 28, 30]:
            e(f"  v_lshlrev_b32 v48, 16, v{r}")
            e(f"  v_and_b32 v49, 0xffff0000, v{r}")
            e(f"  v_cndmask_b32 v{r}, v48, v49, vcc")
        A = 32
        for i in range(2):
            for c in range(4):
                w = 16 + 4*i + c
                e(f"  v_lshlrev_b32 v48, 16, v{w}")
                e(f"  v_and_b32 v49, 0xffff0000, v{w}")
                for b in range(2):
                    h = 24 + 4*b + 2*i
                    if i == 0:
                        e(f"  v_mul_f32 v{A+8*b+2*c}, v48, v{h}")
                        e(f"  v_mul_f32 v{A+8*b+2*c+1}, v49, v{h}")
                    else:
                        e(f"  v_fmac_f32 v{A+8*b+2*c}, v48, v{h}")
                        e(f"  v_fmac_f32 v{A+8*b+2*c+1}, v49, v{h}")
        dpp_steps(list(range(A, A+16)), ["row_ror:8"])
        swap_steps(list(range(A, A+16)), list(range(48, 64)))
        e("  s_lshl_b32 s75, s72, 9")
        e("  v_lshlrev_b32 v5, 5, v1")
        e("  v_add_u32 v5, s75, v5")
        e("  s_mov_b64 exec, 0xff")
        e(f"  ds_write_b128 v5, v[{A}:{A+3}] offset:{L_FP}")
        e(f"  ds_write_b128 v5, v[{A+4}:{A+7}] offset:{L_FP+16}")
        e(f"  ds_write_b128 v5, v[{A+8}:{A+11}] offset:{L_FP+256}")
        e(f"  ds_write_b128 v5, v[{A+12}:{A+15}] offset:{L_FP+272}")
        e("  s_mov_b64 exec, 1")
        e(f"  ds_add_rtn_u32 v6, v7, v8 offset:28")
        e("  s_mov_b64 exec, -1")
        e("  s_waitcnt lgkmcnt(0)")
        e("  v_readfirstlane_b32 s75, v6")
        e("  s_cmp_lg_u32 s75, 3")
        e("  s_cbranch_scc1 K_FX")
        e("  v_lshlrev_b32 v5, 3, v1")
        for w in range(4):
            e(f"  ds_read_b64 v[{16+2*w}:{17+2*w}], v5 offset:{L_FP + w*512}")
        e("  v_lshrrev_b32 v6, 5, v1")
        e("  v_lshlrev_b32 v6, 12, v6")
        e("  v_and_b32 v9, 31, v1")
        e("  v_lshl_add_u32 v6, v9, 4, v6")
        e("  s_lshr_b32 s75, s2, 3")
        e("  s_lshl_b32 s75, s75, 13")
        e("  s_and_b32 s76, s2, 7")
        e("  s_lshl_b32 s76, s76, 9")
        e("  s_add_u32 s75, s75, s76")
        e(f"  s_add_u32 s75, s75, {WS_GG}")
        e("  s_waitcnt lgkmcnt(0)")
        e("  v_pk_add_f32 v[16:17], v[16:17], v[18:19]")
        e("  v_pk_add_f32 v[20:21], v[20:21], v[22:23]")
        e("  v_pk_add_f32 v[16:17], v[16:17], v[20:21]")
        e("  v_mov_b32 v18, v17")
        e("  v_mov_b32 v17, s26")
        e("  v_mov_b32 v19, s26")
        e(f"  buffer_store_dwordx4 v[16:19], v6, s[{SWS}:{SWS+3}], s75 offen sc1")
        e("K_FX:")

    def h_phase(sfx):
        e("  s_cmp_eq_u32 s27, 0")
        e(f"  s_cbranch_scc1 K_HSKP{sfx}")
        e("  s_sub_u32 s27, s27, 2")
        e("  s_cmp_eq_u32 s27, 1")
        e(f"  s_cbranch_scc1 K_HSKP{sfx}")
        e("  s_mov_b32 s27, 0")
        if OPT["x2"]:
            if OPT["jd"]:
                e("  v_mul_u32_u24 v5, 272, v12")
                e("  v_lshl_add_u32 v5, v13, 4, v5")
                e(f"  v_add_u32 v5, {L_WO}, v5")
                e(f"  ds_write_b128 v5, v[80:83]")
                e(f"  ds_write_b128 v5, v[84:87] offset:{64*272}")
                e(f"  ds_write_b128 v5, v[88:91] offset:128")
                e(f"  ds_write_b128 v5, v[92:95] offset:{64*272+128}")
            else:
                e("  v_mul_u32_u24 v5, 144, v12")
                e("  v_lshl_add_u32 v5, v13, 4, v5")
                e(f"  ds_write_b128 v5, v[80:83] offset:{L_WO}")
                e(f"  ds_write_b128 v5, v[84:87] offset:{L_WO + 64*144}")
            e("  s_cmp_ge_u32 s2, 224")
            e(f"  s_cbranch_scc1 K_HSKP{sfx}")
            e("  s_and_b32 s75, s2, 7")
            e("  s_lshl_b32 s75, s75, 8")
            e("  v_lshl_add_u32 v5, v12, 2, s75")
            e(f"  ds_read_b32 v204, v5 offset:{L_XN}")
            e(f"  ds_read_b32 v205, v5 offset:{L_XN+2048}")
            e("  s_waitcnt lgkmcnt(0)")
            A = 212
            for c in range(4):
                e(f"  v_lshlrev_b32 v206, 16, v{244+c}")
                e(f"  v_and_b32 v207, 0xffff0000, v{244+c}")
                e(f"  v_mul_f32 v{A+2*c}, v206, v204")
                e(f"  v_mul_f32 v{A+1+2*c}, v207, v204")
                e(f"  v_mul_f32 v{A+8+2*c}, v206, v205")
                e(f"  v_mul_f32 v{A+9+2*c}, v207, v205")
            dpp_steps(list(range(A, A+16)), ["row_ror:8"])
            swap_steps(list(range(A, A+16)), list(range(220+8, 236+8))[:16] if False else [228,229,230,231,232,233,234,235,204,205,206,207,208,209,210,211])
            e("  s_lshl_b32 s75, s3, 9")
            e("  v_lshlrev_b32 v5, 5, v1")
            e("  v_add_u32 v5, s75, v5")
            e("  s_mov_b64 exec, 0xff")
            e(f"  ds_write_b128 v5, v[{A}:{A+3}] offset:{L_FP}")
            e(f"  ds_write_b128 v5, v[{A+4}:{A+7}] offset:{L_FP+16}")
            e(f"  ds_write_b128 v5, v[{A+8}:{A+11}] offset:{L_FP+256}")
            e(f"  ds_write_b128 v5, v[{A+12}:{A+15}] offset:{L_FP+272}")
            e("  s_mov_b64 exec, 1")
            e(f"  ds_add_rtn_u32 v6, v7, v8 offset:4")
            e("  s_mov_b64 exec, -1")
            e("  s_waitcnt lgkmcnt(0)")
            e("  v_readfirstlane_b32 s75, v6")
            e("  s_cmp_lg_u32 s75, 7")
            e(f"  s_cbranch_scc1 K_HSKP{sfx}")
            e("  v_lshlrev_b32 v5, 2, v1")
            for w in range(8):
                e(f"  ds_read_b32 v{204+2*w}, v5 offset:{L_FP + w*512}")
                e(f"  ds_read_b32 v{205+2*w}, v5 offset:{L_FP + w*512 + 256}")
            e("  v_lshlrev_b32 v6, 4, v1")
            e("  s_lshl_b32 s75, s2, 10")
            e("  s_mov_b32 s76, 0")
            e("  s_add_u32 s75, s75, s76")
            e(f"  s_add_u32 s75, s75, {WS_H2}")
            e("  s_waitcnt lgkmcnt(0)")
            e("  v_pk_add_f32 v[204:205], v[204:205], v[206:207]")
            e("  v_pk_add_f32 v[208:209], v[208:209], v[210:211]")
            e("  v_pk_add_f32 v[212:213], v[212:213], v[214:215]")
            e("  v_pk_add_f32 v[216:217], v[216:217], v[218:219]")
            e("  v_pk_add_f32 v[204:205], v[204:205], v[208:209]")
            e("  v_pk_add_f32 v[212:213], v[212:213], v[216:217]")
            e("  v_pk_add_f32 v[204:205], v[204:205], v[212:213]")
            e("  v_mov_b32 v206, s26")
            e("  v_mov_b32 v207, s26")
            e(f"  buffer_store_dwordx4 v[204:207], v6, s[{SWS}:{SWS+3}], s75 offen sc1")
            if OPT["xw"] == 2 and sfx == "L":
                e("  s_mov_b32 s27, 5")
            e(f"K_HSKP{sfx}:")
            return
        e(f"  s_cmp_ge_u32 s{SHC}, 224")
        e(f"  s_cbranch_scc1 K_HSKP{sfx}")
        e("  v_lshrrev_b32 v5, 1, v0")
        e("  v_lshlrev_b32 v5, 2, v5")
        for i in range(2):
            e(f"  ds_read2st64_b32 v[{204+2*i}:{205+2*i}], v5 offset0:{(L_XN + i*1024)//256} offset1:{(L_XN + i*1024 + 2048)//256}")
        e("  s_waitcnt lgkmcnt(0)")
        A = 212
        for i in range(2):
            for c in range(2):
                w = 244 + 2*i + c
                xr = 204 + 2*i
                a0, a1 = A + 2*c, A + 4 + 2*c
                e(f"  v_lshlrev_b32 v208, 16, v{w}")
                e(f"  v_and_b32 v209, 0xffff0000, v{w}")
                if i == 0:
                    e(f"  v_pk_mul_f32 v[{a0}:{a0+1}], v[208:209], v[{xr}:{xr+1}] op_sel_hi:[1,0]")
                    e(f"  v_pk_mul_f32 v[{a1}:{a1+1}], v[208:209], v[{xr}:{xr+1}] op_sel:[0,1] op_sel_hi:[1,1]")
                else:
                    e(f"  v_pk_fma_f32 v[{a0}:{a0+1}], v[208:209], v[{xr}:{xr+1}], v[{a0}:{a0+1}] op_sel_hi:[1,0,1]")
                    e(f"  v_pk_fma_f32 v[{a1}:{a1+1}], v[208:209], v[{xr}:{xr+1}], v[{a1}:{a1+1}] op_sel:[0,1,0] op_sel_hi:[1,1,1]")
        dpp_steps(list(range(A, A+8)), ["quad_perm:[2,3,0,1]", "row_ror:4", "row_ror:8"])
        swap_steps(list(range(A, A+8)), list(range(220, 228)))
        e("  s_mul_i32 s75, s3, 192")
        e("  v_lshlrev_b32 v5, 4, v1")
        e("  v_add_u32 v5, s75, v5")
        e("  s_mov_b64 exec, 0x3")
        e(f"  ds_write_b128 v5, v[{A}:{A+3}] offset:{L_QP+128}")
        e(f"  ds_write_b128 v5, v[{A+4}:{A+7}] offset:{L_QP+160}")
        e("  s_mov_b64 exec, 1")
        e(f"  ds_add_rtn_u32 v6, v7, v8 offset:4")
        e("  s_mov_b64 exec, -1")
        e("  s_waitcnt lgkmcnt(0)")
        e("  v_readfirstlane_b32 s75, v6")
        e("  s_cmp_lg_u32 s75, 7")
        e(f"  s_cbranch_scc1 K_HSKP{sfx}")
        e("  v_lshlrev_b32 v5, 3, v1")
        e("  s_mov_b64 exec, 0xff")
        for w in range(8):
            e(f"  ds_read_b64 v[{204+2*w}:{205+2*w}], v5 offset:{L_QP + w*192 + 128}")
        e("  v_lshrrev_b32 v6, 2, v1")
        e("  s_movk_i32 s75, 7168")
        e("  v_mul_lo_u32 v6, v6, s75")
        e("  v_and_b32 v9, 3, v1")
        e("  v_lshl_add_u32 v6, v9, 3, v6")
        e(f"  s_lshl_b32 s75, s{SHC}, 5")
        e(f"  s_add_u32 s75, s75, {WS_HG}")
        e("  s_waitcnt lgkmcnt(0)")
        e("  v_pk_add_f32 v[204:205], v[204:205], v[206:207]")
        e("  v_pk_add_f32 v[208:209], v[208:209], v[210:211]")
        e("  v_pk_add_f32 v[212:213], v[212:213], v[214:215]")
        e("  v_pk_add_f32 v[216:217], v[216:217], v[218:219]")
        e("  v_pk_add_f32 v[204:205], v[204:205], v[208:209]")
        e("  v_pk_add_f32 v[212:213], v[212:213], v[216:217]")
        e("  v_pk_add_f32 v[204:205], v[204:205], v[212:213]")
        e("  v_max_f32 v204, 0, v204")
        e("  v_max_f32 v205, 0, v205")
        e("  v_cvt_pk_bf16_f32 v204, v204, v205")
        e("  v_mov_b32 v205, s26")
        e(f"  buffer_store_dwordx2 v[204:205], v6, s[{SWS}:{SWS+3}], s75 offen sc1")
        e("  s_mov_b64 exec, -1")
        e(f"K_HSKP{sfx}:")
    def h_loads():
        if OPT["x2"]:
            e(f"  buffer_load_dwordx4 v[244:247], v248, s[{SWS}:{SWS+3}], 0 offen sc1")
            return
        e("  s_movk_i32 s75, 7168")
        e(f"  buffer_load_dwordx2 v[244:245], v248, s[{SWS}:{SWS+3}], 0 offen sc1")
        e(f"  buffer_load_dwordx2 v[246:247], v248, s[{SWS}:{SWS+3}], s75 offen sc1")

    def fd_issue():
        if OPT["x2"]:
            e("  v_lshlrev_b32 v248, 4, v12")
            e("  v_lshl_add_u32 v248, v13, 10, v248")
            e("  s_lshr_b32 s75, s2, 3")
            e("  s_lshl_b32 s75, s75, 13")
            e(f"  s_add_u32 s75, s75, {WS_H2}")
            e("  v_add_u32 v248, s75, v248")
            h_loads()
            return
        e("  v_lshrrev_b32 v5, 1, v12")
        e("  v_lshlrev_b32 v248, 3, v5")
        e("  s_lshr_b32 s75, s2, 3")
        e("  s_lshl_b32 s75, s75, 8")
        e(f"  s_add_u32 s75, s75, {WS_HG}")
        e("  v_add_u32 v248, s75, v248")
        h_loads()
    def fd_check(bad):
        e("  v_cmp_ne_u32 vcc, s26, v%d" % (246 if OPT["x2"] else 245))
        e("  v_cmp_ne_u32 s[78:79], s26, v247")
        e("  s_or_b64 vcc, vcc, s[78:79]")
        e("  s_cmp_lg_u64 vcc, 0")
        e(f"  s_cbranch_scc1 {bad}")
    def fd_compute(done):
        A = 204
        if OPT["x2"]:
            dpp_steps([244, 245], ["quad_perm:[1,0,3,2]", "quad_perm:[2,3,0,1]", "row_half_mirror"])
            e("  v_max_f32 v220, 0, v244")
            e("  v_max_f32 v221, 0, v245")
            round_bf16(220, 220)
            round_bf16(221, 221)
        else:
            e("  v_and_b32 v5, 1, v12")
            e("  v_cmp_eq_u32 vcc, 1, v5")
            e("  v_lshlrev_b32 v220, 16, v244")
            e("  v_and_b32 v5, 0xffff0000, v244")
            e("  v_lshlrev_b32 v221, 16, v246")
            e("  v_and_b32 v6, 0xffff0000, v246")
            e("  v_cndmask_b32 v220, v220, v5, vcc")
            e("  v_cndmask_b32 v221, v221, v6, vcc")
        for c in range(4):
            e(f"  v_lshlrev_b32 v222, 16, v{W2+c}")
            e(f"  v_and_b32 v223, 0xffff0000, v{W2+c}")
            e(f"  v_mul_f32 v{A+2*c}, v222, v220")
            e(f"  v_mul_f32 v{A+1+2*c}, v223, v220")
            e(f"  v_mul_f32 v{A+8+2*c}, v222, v221")
            e(f"  v_mul_f32 v{A+9+2*c}, v223, v221")
        dpp_steps(list(range(A, A+16)), ["row_ror:8"])
        swap_steps(list(range(A, A+16)), list(range(220, 236)))
        e("  s_lshl_b32 s75, s3, 9")
        e("  v_lshlrev_b32 v5, 5, v1")
        e("  v_add_u32 v5, s75, v5")
        e("  s_mov_b64 exec, 0xff")
        e(f"  ds_write_b128 v5, v[{A}:{A+3}] offset:{L_FP}")
        e(f"  ds_write_b128 v5, v[{A+4}:{A+7}] offset:{L_FP+16}")
        e(f"  ds_write_b128 v5, v[{A+8}:{A+11}] offset:{L_FP+256}")
        e(f"  ds_write_b128 v5, v[{A+12}:{A+15}] offset:{L_FP+272}")
        e("  s_mov_b64 exec, 1")
        e(f"  ds_add_rtn_u32 v6, v7, v8 offset:28")
        e("  s_mov_b64 exec, -1")
        e("  s_waitcnt lgkmcnt(0)")
        e("  v_readfirstlane_b32 s75, v6")
        e("  s_mov_b32 s95, 2")
        e("  s_cmp_lg_u32 s75, 7")
        e(f"  s_cbranch_scc1 {done}")
        e("  v_lshlrev_b32 v5, 3, v1")
        for w in range(8):
            e(f"  ds_read_b64 v[{204+2*w}:{205+2*w}], v5 offset:{L_FP + w*512}")
        e("  v_lshrrev_b32 v6, 5, v1")
        e("  v_lshlrev_b32 v6, 12, v6")
        e("  v_and_b32 v9, 31, v1")
        e("  v_lshl_add_u32 v6, v9, 4, v6")
        e("  s_lshr_b32 s75, s2, 3")
        e("  s_lshl_b32 s75, s75, 13")
        e("  s_and_b32 s76, s2, 7")
        e("  s_lshl_b32 s76, s76, 9")
        e("  s_add_u32 s75, s75, s76")
        e(f"  s_add_u32 s75, s75, {WS_GG}")
        e("  s_waitcnt lgkmcnt(0)")
        e("  v_pk_add_f32 v[204:205], v[204:205], v[206:207]")
        e("  v_pk_add_f32 v[208:209], v[208:209], v[210:211]")
        e("  v_pk_add_f32 v[212:213], v[212:213], v[214:215]")
        e("  v_pk_add_f32 v[216:217], v[216:217], v[218:219]")
        e("  v_pk_add_f32 v[204:205], v[204:205], v[208:209]")
        e("  v_pk_add_f32 v[212:213], v[212:213], v[216:217]")
        e("  v_pk_add_f32 v[204:205], v[204:205], v[212:213]")
        e("  v_mov_b32 v206, v205")
        e("  v_mov_b32 v205, s26")
        e("  v_mov_b32 v207, s26")
        e(f"  buffer_store_dwordx4 v[204:207], v6, s[{SWS}:{SWS+3}], s75 offen sc1")
        e("  s_mov_b32 s37, 1")
    def fd_phase():
        e("  s_cmp_eq_u32 s95, 2")
        e("  s_cbranch_scc1 K_FDS")
        e("  s_cmp_lg_u32 s27, 0")
        e("  s_cbranch_scc1 K_FDS")
        e(f"  s_cmp_lt_u32 s73, {OPT['fdt']}")
        e("  s_cbranch_scc1 K_FDS")
        e("  s_cmp_eq_u32 s95, 0")
        e("  s_cbranch_scc1 K_FDI")
        fd_check("K_FDI")
        fd_compute("K_FDS")
        e("  s_branch K_FDS")
        e("K_FDI:")
        fd_issue()
        e("  s_mov_b32 s95, 1")
        e("  s_mov_b32 s37, 1")
        e("K_FDS:")
    def fd_exit():
        e("  s_cmp_eq_u32 s95, 2")
        e("  s_cbranch_scc1 K_FDES")
        e(f"  s_mov_b32 s74, {OPT['bnd']:#x}")
        e("K_FDEL:")
        fd_issue()
        e("  s_waitcnt vmcnt(0)")
        fd_check("K_FDEB")
        e("  s_branch K_FDEC")
        e("K_FDEB:")
        e("  s_sub_u32 s74, s74, 1")
        e("  s_cmp_lg_u32 s74, 0")
        e("  s_cbranch_scc1 K_FDEL")
        e("K_FDEC:")
        fd_compute("K_FDES")
        e("K_FDES:")

    def c_qk(KR, vk):
        if vk is not None:
            e(f"  s_waitcnt vmcnt({vk})")
        tl()
        for t in range(2):
            for i in range(4):
                c = "0" if i == 0 else f"v[{ST+4*t}:{ST+4*t+3}]"
                e(f"  v_mfma_f32_16x16x32_bf16 v[{ST+4*t}:{ST+4*t+3}], v[{KR+16*t+4*i}:{KR+16*t+4*i+3}], v[{QF+4*i}:{QF+4*i+3}], {c}")
    def c_sm(nop=True):
        if nop:
            e("  s_nop 7")
            e("  s_nop 0")
        e(f"  v_max3_f32 v{T0}, v{ST}, v{ST+1}, v{ST+2}")
        e(f"  v_max3_f32 v{T1}, v{ST+3}, v{ST+4}, v{ST+5}")
        e(f"  v_max3_f32 v{T0}, v{T0}, v{ST+6}, v{ST+7}")
        e(f"  v_max_f32 v{T0}, v{T0}, v{T1}")
        e(f"  v_mov_b32 v{T1}, v{T0}")
        e("  s_nop 1")
        e(f"  v_permlane16_swap_b32 v{T0}, v{T1}")
        e("  s_nop 1")
        e(f"  v_max_f32 v{T0}, v{T0}, v{T1}")
        e(f"  v_mov_b32 v{T1}, v{T0}")
        e("  s_nop 1")
        e(f"  v_permlane32_swap_b32 v{T0}, v{T1}")
        e("  s_nop 1")
        e(f"  v_max3_f32 v{T0}, v{T0}, v{T1}, v{M_}")
        e(f"  v_sub_f32 v{AL}, v{M_}, v{T0}")
        e(f"  v_mul_f32 v{AL}, s{SC}, v{AL}")
        e(f"  v_exp_f32 v{AL}, v{AL}")
        e(f"  v_mov_b32 v{M_}, v{T0}")
        e(f"  v_mul_f32 v{MC}, s{SC}, v{T0}")
        for k in range(8):
            e(f"  v_fma_f32 v{ST+k}, v{ST+k}, s{SC}, -v{MC}")
        for k in range(8):
            e(f"  v_exp_f32 v{ST+k}, v{ST+k}")
        e("  s_nop 0")
        e(f"  v_mul_f32 v{L_}, v{L_}, v{AL}")
        for k in range(8):
            e(f"  v_add_f32 v{L_}, v{L_}, v{ST+k}")
        for q in range(4):
            e(f"  v_cvt_pk_bf16_f32 v{PF+q}, v{ST+2*q}, v{ST+2*q+1}")
        for r in range(32):
            e(f"  v_mul_f32 v{ACC+r}, v{ACC+r}, v{AL}")
    def c_pv(VR, vv):
        if vv is not None:
            e(f"  s_waitcnt vmcnt({vv})")
        tl()
        for t in range(8):
            c = t >> 1
            sel = f"s{SP1}" if (t & 1) else f"s{SP0}"
            for q in range(4):
                e(f"  v_perm_b32 v{TR+4*t+q}, v{VR+4*(2*q+1)+c}, v{VR+4*(2*q)+c}, {sel}")
        e("  s_nop 1")
        for t in range(8):
            e(f"  v_mfma_f32_16x16x32_bf16 v[{ACC+4*t}:{ACC+4*t+3}], v[{TR+4*t}:{TR+4*t+3}], v[{PF}:{PF+3}], v[{ACC+4*t}:{ACC+4*t+3}]")

    def compute(KR, VR, vk, vv):
        c_qk(KR, vk)
        c_sm()
        c_pv(VR, vv)

    def fetch():
        e("  s_mov_b64 exec, 1")
        e("  ds_add_rtn_u32 v9, v7, v8")
        e("  s_mov_b64 exec, -1")
    def getidx(sidx):
        e("  s_waitcnt lgkmcnt(0)")
        e(f"  v_readfirstlane_b32 s{sidx}, v9")

    if OPT["nw"] < 8:
        e(f"  s_cmp_ge_u32 s3, {OPT['nw']}")
        e("  s_cbranch_scc1 K_EXIT")
    def gen_loop(sfx, last):
        if OPT["nbuf"] == 3:
            fetch()
            compute(KA, VA, 24, 16)
            getidx(IDXA)
            loads(KA, VA, IDXA)
            compute(KB, VB, 24, 16)
            e(f"  s_cmp_ge_u32 s{IDXA}, 64")
            e("  s_cbranch_scc1 K_EXIT")
        e(f"K_LOOP{sfx}:")
        if OPT["nbuf"] == 2:
            fetch()
            compute(KA, VA, 24, 16)
            getidx(IDXA)
            loads(KA, VA, IDXA)
            e(f"  s_cmp_ge_u32 s{IDXB}, 64")
            e("  s_cbranch_scc1 K_EXIT")
            fetch()
            compute(KB, VB, 24, 16)
            getidx(IDXB)
            loads(KB, VB, IDXB)
            e(f"  s_cmp_lt_u32 s{IDXA}, 64")
            e(f"  s_cbranch_scc1 K_LOOP{sfx}")
        else:
            NS = OPT["ns"]
            fetch()
            getidx(73)
            if OPT["dup"] > 1:
                e(f"  s_cmp_lt_u32 s73, {OPT['dup']}")
                e(f"  s_cselect_b32 s75, 0, 4096")
                e(f"  s_and_b32 s73, s73, 63")
                e(f"  s_add_u32 s73, s73, s75")
            e(f"  s_cmp_lt_u32 s73, {NS}")
            e(f"  s_cbranch_scc1 K_STA{sfx}")
            e("  v_mov_b32 v9, 1")
            e("  v_mov_b32 v10, 0")
            e("  s_mov_b64 exec, 1")
            e(f"  buffer_atomic_add v9, v10, s[{SWS}:{SWS+3}], s93 offen sc0 sc1")
            e("  s_mov_b64 exec, -1")
            e(f"K_STA{sfx}:")
            compute(KA, VA, 8, 0)
            e(f"  s_cmp_ge_u32 s73, {NS}")
            e(f"  s_cbranch_scc1 K_DY2{sfx}")
            e(f"  s_add_u32 s{IDXA}, s73, s94")
            e(f"  s_branch K_ST2{sfx}")
            e(f"K_DY2{sfx}:")
            e(f"  v_readfirstlane_b32 s{IDXA}, v9")
            e(f"  s_cmp_lt_u32 s{IDXA}, {(1024-16*NS)//OPT['nsub']}")
            e(f"  s_cselect_b32 s{IDXA}, s{IDXA}, 2048")
            e(f"  s_add_u32 s{IDXA}, s{IDXA}, s92")
            e(f"K_ST2{sfx}:")
            if OPT["fifo"]:
                e(f"  s_cmp_ge_u32 s{IDXA}, 1024")
                e(f"  s_cbranch_scc1 K_FD{sfx}")
                e(f"  s_sub_u32 s73, s73, {OPT['fw']}")
                e(f"  s_mov_b32 s74, {OPT['bnd']:#x}")
                e(f"K_FW{sfx}:")
                e("  ds_read_b32 v9, v7 offset:8")
                e("  s_waitcnt lgkmcnt(0)")
                e("  v_readfirstlane_b32 s75, v9")
                e("  s_cmp_ge_u32 s75, s73")
                e(f"  s_cbranch_scc1 K_FD{sfx}")
                if OPT["fsl"]: e(f"  s_sleep {OPT['fsl']}")
                e("  s_sub_u32 s74, s74, 1")
                e("  s_cmp_lg_u32 s74, 0")
                e(f"  s_cbranch_scc1 K_FW{sfx}")
                e(f"K_FD{sfx}:")
            x_loads("L"+sfx)
            loads(KA, VA, IDXA)
            if OPT["fifo"]:
                e("  s_mov_b64 exec, 1")
                e("  ds_add_u32 v7, v8 offset:8")
                e("  s_mov_b64 exec, -1")
            h_phase("L"+sfx)
            e(f"  s_cmp_lt_u32 s{IDXA}, 1024")
            e(f"  s_cbranch_scc1 K_LOOP{sfx}")
        if not last:
            e("  s_branch K_EXIT")
    def fifo_wait(lbl, off):
        e(f"  s_mov_b32 s74, {OPT['bnd']:#x}")
        e(f"{lbl}:")
        e(f"  ds_read_b32 v9, v7 offset:{off}")
        e("  s_waitcnt lgkmcnt(0)")
        e("  v_readfirstlane_b32 s75, v9")
        e("  s_cmp_ge_u32 s75, s73")
        e(f"  s_cbranch_scc1 {lbl}D")
        if OPT["fsl"]: e(f"  s_sleep {OPT['fsl']}")
        e("  s_sub_u32 s74, s74, 1")
        e("  s_cmp_lg_u32 s74, 0")
        e(f"  s_cbranch_scc1 {lbl}")
        e(f"{lbl}D:")
    def fifo_add(off):
        e("  s_mov_b64 exec, 1")
        e(f"  ds_add_u32 v7, v8 offset:{off}")
        e("  s_mov_b64 exec, -1")
    def gate(sfx):
        e("  s_cmp_eq_u32 s36, 0")
        e(f"  s_cbranch_scc1 K_GD{sfx}")
        e(f"K_G{sfx}:")
        e("  s_memrealtime s[98:99]")
        e("  s_waitcnt lgkmcnt(0)")
        e("  s_sub_u32 s75, s98, s39")
        e("  s_cmp_ge_u32 s75, s36")
        e(f"  s_cbranch_scc1 K_GD{sfx}")
        e("  s_sleep 1")
        e(f"  s_branch K_G{sfx}")
        e(f"K_GD{sfx}:")
    def gen_loop_sp():
        if OPT["th"] or OPT["fd"]:
            e("  s_mov_b32 s37, 0")
        e("K_LOOP:")
        if OPT["th"]:
            e("  s_mov_b64 exec, 1")
            e("  ds_add_rtn_u32 v9, v7, v8")
            e("  ds_read_b64 v[10:11], v7 offset:40")
            e("  s_mov_b64 exec, -1")
            e("  s_waitcnt lgkmcnt(0)")
            e("  v_readfirstlane_b32 s73, v9")
            e("  v_readfirstlane_b32 s39, v10")
            e("  v_readfirstlane_b32 s36, v11")
        else:
            if OPT["gp"]:
                e("  s_cmp_lg_u32 s37, 0")
                e("  s_cbranch_scc1 K_PL")
            if OPT["nw2"]:
                e(f"  s_cmp_lt_u32 s3, {OPT['nw2']}")
                e("  s_cbranch_scc1 K_N2A")
                e("  ds_read_b32 v9, v7")
                e("  s_waitcnt lgkmcnt(0)")
                e("  v_readfirstlane_b32 s73, v9")
                e(f"  s_cmp_lt_u32 s73, {OPT['n2t']}")
                e("  s_cbranch_scc1 K_N2A")
                e("  s_mov_b32 s73, 64")
                e("  s_branch K_N2B")
                e("K_N2A:")
            fetch()
            getidx(73)
            if OPT["gp"]:
                NS = OPT["gp"]; P = (64 - NS) * 16
                e(f"  s_cmp_lt_u32 s73, {NS}")
                e("  s_cbranch_scc1 K_N2B")
                e("  s_mov_b32 s73, 64")
                if OPT["nw2"]:
                    e(f"  s_cmp_ge_u32 s3, {OPT['nw2']}")
                    e("  s_cbranch_scc1 K_N2B")
                e("  s_mov_b32 s37, 1")
                e("  v_mov_b32 v249, 1")
                e("  s_mov_b64 exec, 1")
                e("  global_atomic_add v249, v250, v249, s[98:99] sc0 sc1")
                e("  s_mov_b64 exec, -1")
                e("  s_waitcnt vmcnt(0)")
                e("  s_branch K_PL2")
                e("K_PL:")
                e("  s_waitcnt vmcnt(8)")
                e("K_PL2:")
                e("  v_readfirstlane_b32 s36, v249")
                e(f"  s_cmp_lt_u32 s36, {P}")
                e("  s_cselect_b32 s73, 63, 64")
                if not OPT["nw2"]:
                    e("K_N2B:")
            if OPT["nw2"]:
                e("K_N2B:")
        if OPT["xw"]:
            e("  s_mov_b32 s38, 0")
            e("  s_cmp_lg_u32 s27, 5")
            e("  s_cbranch_scc1 K_WA")
            e("  s_mov_b32 s27, 0")
            e("  s_mov_b32 s38, 1")
            e("K_WA:")
            if OPT["fd"]:
                e("  s_or_b32 s38, s38, s37")
                e("  s_mov_b32 s37, 0")
            if OPT["th"]:
                e("  s_cmp_eq_u32 s37, 0")
                e("  s_cbranch_scc1 K_WB")
                e("  s_mov_b32 s38, 1")
                e("  s_cmp_eq_u32 s37, 2")
                e("  s_cselect_b32 s37, 3, 0")
                e("K_WB:")
            e("  s_cmp_eq_u32 s27, 1")
            e("  s_cbranch_scc1 K_WX")
            e("  s_cmp_eq_u32 s38, 0")
            e("  s_cbranch_scc1 K_W0")
            e("  s_waitcnt vmcnt(9)")
            e("  s_branch K_W1")
            e("K_WX:")
            e("  s_cmp_ge_u32 s2, 224")
            e("  s_cbranch_scc1 K_W3")
            e(f"  s_waitcnt vmcnt({12+2*OPT['jd']})")
            e("  s_branch K_W1")
            e("K_W3:")
            e(f"  s_waitcnt vmcnt({11+2*OPT['jd']})")
            e("  s_branch K_W1")
            e("K_W0:")
            e("  s_waitcnt vmcnt(8)")
            e("K_W1:")
            c_qk(KA, None)
        else:
            c_qk(KA, 8)
        tl(7)
        e("  s_cmp_ge_u32 s73, 64")
        e("  s_cbranch_scc1 K_NK")
        if OPT["gp"]:
            NS = OPT["gp"]
            assert OPT["rg"] == 6 and OPT["bs4"] == 2 and OPT["rm"] == 1
            e("  s_cmp_eq_u32 s37, 0")
            e("  s_cbranch_scc1 K_PMS")
            e("  s_lshr_b32 s75, s36, 4")
            e(f"  s_add_u32 s75, s75, {NS}")
            e("  s_bfe_u32 s76, s36, 0x20002")
            e("  s_and_b32 s77, s2, 60")
            e("  s_add_u32 s77, s77, s76")
            e(f"  s_mul_i32 s77, s77, {OPT['rr']}")
            e("  s_lshr_b32 s78, s75, 2")
            e("  s_add_u32 s78, s78, s77")
            e("  s_and_b32 s78, s78, 15")
            e("  s_lshl_b32 s78, s78, 4")
            e("  s_and_b32 s75, s75, 3")
            e("  s_add_u32 s78, s78, s75")
            e("  s_lshl_b32 s76, s76, 8")
            e("  s_add_u32 s78, s78, s76")
            e("  s_and_b32 s75, s36, 3")
            e("  s_lshl_b32 s75, s75, 2")
            e(f"  s_add_u32 s{IDXA}, s78, s75")
            e("  s_branch K_PMD")
            e("K_PMS:")
        mapidx(73)
        if OPT["gp"]:
            e("K_PMD:")
        blkoff(IDXA)
        e(f"  v_add_u32 v5, s75, v{VKOFF}")
        e(f"  v_add_u32 v6, s75, v{VVOFF}")
        if OPT["gp"]:
            e("  s_cmp_lg_u32 s37, 0")
            e("  s_cbranch_scc1 K_FKD")
        fifo_wait("K_FK", 8)
        if OPT["th"] == 1:
            e("  s_cmp_eq_u32 s36, 0")
            e("  s_cbranch_scc1 K_TNA")
            e(f"  s_cmp_ge_u32 s73, {OPT['te']}")
            e("  s_cbranch_scc1 K_TNA")
            e(f"  s_and_b32 s75, s73, {OPT['tm']}")
            e("  s_cmp_lg_u32 s75, 0")
            e("  s_cbranch_scc1 K_TNA")
            e("K_TSL:")
            e("  s_sleep 1")
            e("  s_sub_u32 s36, s36, 1")
            e("  s_cmp_lg_u32 s36, 0")
            e("  s_cbranch_scc1 K_TSL")
            e("K_TNA:")
        if OPT["th"] == 2:
            gate("K")
        tl(7)
        kchunk(KA, 5)
        tl(5)
        tl(7)
        fifo_add(8)
        e("K_NK:")
        c_sm(nop=True)
        e("  s_cmp_lt_u32 s73, 64")
        e("  s_cbranch_scc1 K_W8")
        e("  s_waitcnt vmcnt(0)")
        e("K_W8:")
        if OPT["prof"] == 7:
            e("  s_waitcnt vmcnt(8)")
            tl(7)
        c_pv(VA, 8)
        if OPT["th"]:
            e(f"  s_cmp_lg_u32 s37, 3")
            e("  s_cbranch_scc1 K_TNC")
            e("  s_mov_b32 s37, 0")
            e("  ds_read_b32 v10, v7 offset:36")
            e("  s_waitcnt lgkmcnt(0)")
            for r in range(244, 248):
                e(f"  v_sub_u32 v11, v{r}, v10")
                e(f"  v_and_b32 v9, 0xff, v11")
                e(f"  v_ashrrev_i32 v{r}, 8, v11")
                e(f"  v_cmp_eq_u32 vcc, 0, v9")
                e(f"  v_cndmask_b32 v{r}, 0, v{r}, vcc")
                e(f"  v_cmp_gt_i32 vcc, {OPT['tlim']}, v{r}")
                e(f"  v_cndmask_b32 v{r}, 0, v{r}, vcc")
            e("  v_max_i32 v244, v244, v245")
            e("  v_max_i32 v246, v246, v247")
            e("  v_max_i32 v244, v244, v246")
            red_steps([244], [245], "v_max_i32", ctrls=("quad_perm:[1,0,3,2]", "quad_perm:[2,3,0,1]", "row_half_mirror", "row_mirror"))
            e("  v_max_i32 v244, 0, v244")
            e(f"  v_mul_u32_u24 v244, {OPT['tg']}, v244")
            e("  v_lshrrev_b32 v244, 8, v244")
            e("  s_mov_b64 exec, 1")
            e("  ds_write_b32 v7, v244 offset:44")
            if OPT["th"] == 2:
                e("  s_memrealtime s[98:99]")
                e("  s_mul_i32 s75, s2, 5")
                e("  s_and_b32 s75, s75, 7")
                e(f"  s_mul_i32 s75, s75, {OPT['ts']}")
                e("  s_waitcnt lgkmcnt(0)")
                e("  s_add_u32 s75, s75, s98")
                e("  v_mov_b32 v9, s75")
                e("  ds_write_b32 v7, v9 offset:40")
            e("  s_mov_b64 exec, -1")
            if OPT["prof"] == 6:
                e("  v_readfirstlane_b32 s75, v244")
                e("  s_add_u32 s75, s75, 1")
                e("  v_writelane_b32 v251, s75, 10")
                e("  v_readfirstlane_b32 s75, v10")
                e("  v_writelane_b32 v251, s75, 11")
                e("  v_writelane_b32 v251, s73, 12")
                e("  s_memrealtime s[98:99]")
                e("  s_waitcnt lgkmcnt(0)")
                e("  v_writelane_b32 v251, s98, 13")
            e("K_TNC:")
        e("  s_cmp_ge_u32 s73, 64")
        e("  s_cbranch_scc1 K_NV")
        tl(7)
        if OPT["gp"]:
            e("  s_cmp_eq_u32 s37, 0")
            e("  s_cbranch_scc1 K_PCS")
            e("  v_mov_b32 v249, 1")
            e("  s_mov_b64 exec, 1")
            e("  global_atomic_add v249, v250, v249, s[98:99] sc0 sc1")
            e("  s_mov_b64 exec, -1")
            e("  s_branch K_FVD")
            e("K_PCS:")
        fifo_wait("K_FV", 12)
        if OPT["th"] == 2:
            gate("V")
        tl(7)
        vchunk(VA, 6)
        tl(5)
        tl(7)
        fifo_add(12)
        if OPT["th"]:
            e(f"  s_cmp_lg_u32 s73, {OPT['tp']}")
            e("  s_cbranch_scc1 K_TNP")
            e("  s_memrealtime s[98:99]")
            e("  s_waitcnt lgkmcnt(0)")
            e("  s_lshl_b32 s75, s98, 8")
            e("  s_and_b32 s76, s26, 0xff")
            e("  s_or_b32 s75, s75, s76")
            e("  v_mov_b32 v10, s75")
            e("  v_mov_b32 v11, 0")
            e("  s_lshl_b32 s76, s2, 2")
            e(f"  s_add_u32 s76, s76, {WS_PR}")
            e("  s_mov_b64 exec, 1")
            e(f"  buffer_store_dword v10, v11, s[{SWS}:{SWS+3}], s76 offen sc1")
            e("  ds_write_b32 v7, v10 offset:36")
            e("  s_mov_b64 exec, -1")
            e("  s_mov_b32 s37, 1")
            e("K_TNP:")
            e(f"  s_cmp_lg_u32 s73, {OPT['tr']}")
            e("  s_cbranch_scc1 K_TNR")
            e("  v_lshlrev_b32 v10, 4, v1")
            e(f"  s_mov_b32 s76, {WS_PR}")
            e(f"  buffer_load_dwordx4 v[244:247], v10, s[{SWS}:{SWS+3}], s76 offen sc1")
            e("  s_mov_b32 s37, 2")
            e("K_TNR:")
        e("K_NV:")
        if not OPT["pf"]:
            x_loads("L")
            h_phase("L")
        if OPT["pf"] == 2:
            wo_once("L")
        if OPT["fd"]:
            fd_phase()
        tl(7)
        e("  s_cmp_lt_u32 s73, 64")
        e("  s_cbranch_scc1 K_LOOP")
    def gen_loop_dy():
        NSW = OPT["ns"] // 8
        POOL = (1024 - 16*OPT["ns"]) // OPT["nsub"]
        e(f"  s_add_u32 s{IDXA}, s3, s94")
        e(f"  s_mov_b32 s36, {NSW-1}")
        e("  v_mov_b32 v249, 0")
        e("K_LOOP:")
        fetch()
        getidx(73)
        c_qk(KA, 8)
        e("  s_cmp_eq_u32 s36, 0")
        e("  s_cbranch_scc1 K_DYN")
        e(f"  s_add_u32 s{IDXA}, s{IDXA}, 8")
        e("  s_sub_u32 s36, s36, 1")
        e("  s_branch K_HAVE")
        e("K_DYN:")
        e(f"  v_readfirstlane_b32 s{IDXA}, v250")
        e(f"  s_cmp_lt_u32 s{IDXA}, {POOL}")
        e(f"  s_cselect_b32 s{IDXA}, s{IDXA}, 2048")
        e(f"  s_add_u32 s{IDXA}, s{IDXA}, s92")
        e(f"  s_cmp_lt_u32 s{IDXA}, 1024")
        e("  s_cbranch_scc1 K_HAVE")
        fifo_add(8)
        fifo_add(12)
        e("  s_branch K_NK")
        e("K_HAVE:")
        blkoff(IDXA)
        e(f"  v_add_u32 v5, s75, v{VKOFF}")
        e(f"  v_add_u32 v6, s75, v{VVOFF}")
        e("  v_mov_b32 v250, 1")
        fifo_wait("K_FK", 8)
        kchunk(KA, 5)
        e("  s_cmp_lg_u32 s36, 0")
        e("  s_cbranch_scc1 K_NAT")
        e("  s_mov_b64 exec, 1")
        e(f"  buffer_atomic_add v250, v249, s[{SWS}:{SWS+3}], s93 offen sc0 sc1")
        e("  s_mov_b64 exec, -1")
        e("K_NAT:")
        tl(5)
        fifo_add(8)
        e("K_NK:")
        c_sm(nop=True)
        e(f"  s_cmp_lt_u32 s{IDXA}, 1024")
        e("  s_cbranch_scc1 K_W8")
        e("  s_waitcnt vmcnt(0)")
        e("K_W8:")
        e("  s_cmp_lg_u32 s36, 0")
        e("  s_cbranch_scc1 K_W8S")
        e("  s_waitcnt vmcnt(9)")
        e("  s_branch K_W9")
        e("K_W8S:")
        e("  s_waitcnt vmcnt(8)")
        e("K_W9:")
        c_pv(VA, None)
        e(f"  s_cmp_ge_u32 s{IDXA}, 1024")
        e("  s_cbranch_scc1 K_NV")
        fifo_wait("K_FV", 12)
        vchunk(VA, 6)
        tl(5)
        fifo_add(12)
        e("K_NV:")
        if not OPT["pf"]:
            x_loads("L")
            h_phase("L")
        if OPT["pf"] == 2:
            wo_once("L")
        e(f"  s_cmp_lt_u32 s{IDXA}, 1024")
        e("  s_cbranch_scc1 K_LOOP")
    def gen_loop_dq():
        NS, D, CAP = OPT["ns"], OPT["dd"], OPT["cap"]
        POOL = 1024 - 16*NS
        INV = 4097
        def fetch2():
            e("  s_mov_b64 exec, 1")
            e("  ds_add_rtn_u32 v9, v7, v8")
            e("  ds_read_b32 v10, v7 offset:40")
            e("  s_mov_b64 exec, -1")
        def getidx2():
            e("  s_waitcnt lgkmcnt(0)")
            e("  v_readfirstlane_b32 s73, v9")
            e("  v_readfirstlane_b32 s38, v10")
        def publish(sfx):
            e("  s_cmp_eq_u32 s36, 0")
            e(f"  s_cbranch_scc1 K_NP{sfx}")
            e("  s_mov_b32 s36, 0")
            e("  v_readfirstlane_b32 s75, v250")
            e("  s_add_u32 s76, s75, s92")
            e("  s_add_u32 s76, s76, 1")
            e(f"  s_cmp_lt_u32 s75, {POOL}")
            e(f"  s_cselect_b32 s76, s76, {INV}")
            e("  s_cselect_b32 s77, 0, 1")
            e("  v_mov_b32 v10, s76")
            e("  v_add_u32 v11, 1, v10")
            e("  v_mov_b32 v9, s37")
            e("  v_mov_b32 v5, s77")
            e("  s_mov_b64 exec, 1")
            e(f"  ds_write_b64 v9, v[10:11] offset:{L_DQ}")
            e("  ds_or_b32 v7, v5 offset:40")
            e("  s_mov_b64 exec, -1")
            e(f"K_NP{sfx}:")
        def resolve(sfx):
            e(f"  s_add_u32 s{IDXA}, s73, s94")
            e(f"  s_cmp_lt_u32 s73, {NS}")
            e(f"  s_cbranch_scc1 K_RS{sfx}")
            e(f"  s_mov_b32 s{IDXA}, 4096")
            e(f"  s_cmp_ge_u32 s73, {NS+CAP}")
            e(f"  s_cbranch_scc1 K_RS{sfx}")
            e(f"  s_sub_u32 s75, s73, {NS}")
            e("  s_lshl_b32 s75, s75, 2")
            e("  v_mov_b32 v10, s75")
            e(f"  s_mov_b32 s74, {OPT['bnd']:#x}")
            e(f"K_RW{sfx}:")
            e(f"  ds_read_b32 v9, v10 offset:{L_DQ}")
            e("  s_waitcnt lgkmcnt(0)")
            e(f"  v_readfirstlane_b32 s{IDXA}, v9")
            e(f"  s_cmp_lg_u32 s{IDXA}, 0")
            e(f"  s_cbranch_scc1 K_RV{sfx}")
            e("  s_sub_u32 s74, s74, 1")
            e("  s_cmp_lg_u32 s74, 0")
            e(f"  s_cbranch_scc1 K_RW{sfx}")
            e(f"  s_mov_b32 s{IDXA}, {INV}")
            e(f"K_RV{sfx}:")
            e(f"  s_sub_u32 s{IDXA}, s{IDXA}, 1")
            e(f"K_RS{sfx}:")
        def claim(sfx):
            e(f"  s_sub_u32 s75, s73, {NS-D}")
            e(f"  s_cmp_ge_u32 s75, {CAP}")
            e(f"  s_cbranch_scc1 K_NC{sfx}")
            e("  s_bitcmp1_b32 s75, 0")
            e(f"  s_cbranch_scc1 K_NC{sfx}")
            e("  s_lshl_b32 s37, s75, 2")
            e("  s_cmp_eq_u32 s38, 0")
            e(f"  s_cbranch_scc1 K_CA{sfx}")
            e(f"  v_mov_b32 v10, {INV}")
            e(f"  v_mov_b32 v11, {INV}")
            e("  v_mov_b32 v9, s37")
            e("  s_mov_b64 exec, 1")
            e(f"  ds_write_b64 v9, v[10:11] offset:{L_DQ}")
            e("  s_mov_b64 exec, -1")
            e(f"  s_branch K_NC{sfx}")
            e(f"K_CA{sfx}:")
            e("  s_mov_b32 s36, 1")
            e("  v_mov_b32 v250, 2")
            e("  s_mov_b64 exec, 1")
            e(f"  buffer_atomic_add v250, v249, s[{SWS}:{SWS+3}], s93 offen sc0 sc1")
            e("  s_mov_b64 exec, -1")
            e(f"K_NC{sfx}:")
        e("  s_mov_b32 s36, 0")
        e("  v_mov_b32 v249, 0")
        e("K_LOOP:")
        e("  s_waitcnt vmcnt(8)")
        publish("A")
        fetch2()
        c_qk(KA, None)
        getidx2()
        resolve("A")
        e(f"  s_cmp_lt_u32 s{IDXA}, 1024")
        e("  s_cbranch_scc1 K_HAVE")
        fifo_add(8)
        e("  s_branch K_NK")
        e("K_HAVE:")
        blkoff(IDXA)
        e(f"  v_add_u32 v5, s75, v{VKOFF}")
        e(f"  v_add_u32 v6, s75, v{VVOFF}")
        fifo_wait("K_FK", 8)
        kchunk(KA, 5)
        tl(5)
        fifo_add(8)
        e("K_NK:")
        c_sm(nop=True)
        e(f"  s_cmp_lt_u32 s{IDXA}, 1024")
        e("  s_cbranch_scc1 K_W8")
        e("  s_waitcnt vmcnt(0)")
        e("K_W8:")
        c_pv(VA, 8)
        e(f"  s_cmp_ge_u32 s{IDXA}, 1024")
        e("  s_cbranch_scc1 K_DRI")
        fifo_wait("K_FV", 12)
        claim("A")
        vchunk(VA, 6)
        tl(5)
        fifo_add(12)
        x_loads("L")
        h_phase("L")
        e("  s_branch K_LOOP")
        e("K_DRI:")
        claim("B")
        fifo_add(12)
        e("K_DR:")
        e("  s_waitcnt vmcnt(0)")
        publish("B")
        e(f"  s_cmp_ge_u32 s73, {NS+CAP}")
        e("  s_cbranch_scc1 K_EXIT")
        fetch2()
        getidx2()
        resolve("B")
        e(f"  s_cmp_lt_u32 s{IDXA}, 1024")
        e("  s_cbranch_scc1 K_HV2")
        fifo_add(8)
        e("  s_branch K_DRI")
        e("K_HV2:")
        blkoff(IDXA)
        e(f"  v_add_u32 v5, s75, v{VKOFF}")
        e(f"  v_add_u32 v6, s75, v{VVOFF}")
        fifo_wait("K_FK2", 8)
        kchunk(KA, 5)
        fifo_add(8)
        fifo_wait("K_FV2", 12)
        claim("C")
        vchunk(VA, 6)
        fifo_add(12)
        e("  s_branch K_LOOP")
    if OPT["dq"]:
        gen_loop_dq()
    elif OPT["dy"]:
        gen_loop_dy()
    elif OPT["sp"]:
        gen_loop_sp()
    elif OPT["T"]:
        e(f"  s_lshl_b32 s75, s{SB}, 3")
        e(f"  s_add_u32 s75, s75, s{SG}")
        e(f"  s_cmp_lt_u32 s75, {OPT['T']}")
        e("  s_cbranch_scc1 K_LOOPlo")
        POL["k"] = "" if OPT["phi"] & 1 else nt
        POL["v"] = "" if OPT["phi"] & 2 else nt
        gen_loop("hi", False)
        POL["k"] = "" if OPT["plo"] & 1 else nt
        POL["v"] = "" if OPT["plo"] & 2 else nt
        gen_loop("lo", True)
    else:
        gen_loop("", True)
    e("K_EXIT:")
    if OPT["prof"] == 1: stamp(4)
    if OPT["prof"] >= 3: tl(OPT["prof"])
    tl_dump()
    if not OPT["pf"]:
        e("  s_cmp_eq_u32 s27, 0")
        e("  s_cbranch_scc1 K_X0")
        if OPT["xw"]:
            e("  s_cmp_eq_u32 s27, 5")
            e("  s_cbranch_scc1 K_X0")
        x_loads("E")
        e("  s_mov_b32 s27, 1")
        e("  s_waitcnt vmcnt(0)")
        h_phase("E")
        e("K_X0:")
    if OPT["pf"] == 2:
        wo_once("E")
    elif OPT["pf"]:
        pass
    elif OPT["fd"]:
        fd_exit()
    else:
        e("  s_cmp_ge_u32 s2, 224")
        e("  s_cbranch_scc1 K_HSK")
        if OPT["x2"]:
            e("  v_lshlrev_b32 v248, 4, v12")
            e("  v_lshl_add_u32 v248, v13, 10, v248")
            e("  s_lshr_b32 s75, s2, 3")
            e("  s_lshl_b32 s75, s75, 13")
            e(f"  s_add_u32 s75, s75, {WS_H2}")
        else:
            e("  v_lshrrev_b32 v5, 1, v12")
            e("  v_lshlrev_b32 v248, 3, v5")
            e("  s_lshr_b32 s75, s2, 3")
            e("  s_lshl_b32 s75, s75, 8")
            e(f"  s_add_u32 s75, s75, {WS_HG}")
        e("  v_add_u32 v248, s75, v248")
        h_loads()
        e("K_HSK:")
    e(f"  v_mov_b32 v{T1}, v{L_}")
    e("  s_nop 1")
    e(f"  v_permlane16_swap_b32 v{L_}, v{T1}")
    e("  s_nop 1")
    e(f"  v_add_f32 v{L_}, v{L_}, v{T1}")
    e(f"  v_mov_b32 v{T1}, v{L_}")
    e("  s_nop 1")
    e(f"  v_permlane32_swap_b32 v{L_}, v{T1}")
    e("  s_nop 1")
    e(f"  v_add_f32 v{L_}, v{L_}, v{T1}")
    e("  v_cmp_gt_u32 vcc, 4, v3")
    e("  s_and_saveexec_b64 s[78:79], vcc")
    if OPT["cb"]:
        e("  v_lshlrev_b32 v5, 4, v2")
        e("  v_lshl_add_u32 v5, v3, 2, v5")
        e("  v_add_u32 v5, v4, v5")
        e("  v_mul_u32_u24 v5, 144, v5")
        e("  s_nop 4")
        for t in range(8):
            e(f"  ds_write_b128 v5, v[{ACC+4*t}:{ACC+4*t+3}] offset:{L_O + t*16}")
    else:
        e("  v_lshlrev_b32 v5, 11, v2")
        e("  v_lshl_add_u32 v5, v3, 9, v5")
        e("  v_lshl_add_u32 v5, v4, 7, v5")
        e("  s_nop 4")
        for t in range(8):
            for r in range(4):
                e(f"  ds_write_b32 v5, v{ACC+4*t+r} offset:{L_O + (r*8+t)*4}")
    e("  v_cmp_gt_u32 vcc, 4, v1")
    e("  s_and_b64 exec, exec, vcc")
    e("  v_lshlrev_b32 v6, 5, v2")
    e("  v_lshl_add_u32 v6, v3, 3, v6")
    e(f"  ds_write_b32 v6, v{M_} offset:{L_ML}")
    e(f"  ds_write_b32 v6, v{L_} offset:{L_ML+4}")
    e("  s_mov_b64 exec, s[78:79]")
    if OPT["pf"] == 2:
        fd_at_exit()
    e("  s_waitcnt lgkmcnt(0)")
    e("  s_barrier")
    tl6(2)
    e("  v_lshrrev_b32 v5, 7, v0")
    e("  v_and_b32 v6, 127, v0")
    e("  v_lshlrev_b32 v7, 3, v5")
    for w in range(8):
        e(f"  ds_read_b64 v[{160+2*w}:{161+2*w}], v7 offset:{L_ML + w*32}")
    if OPT["cb"]:
        e("  v_lshrrev_b32 v8, 5, v0")
        e("  v_mul_u32_u24 v8, 144, v8")
        if OPT["t2"]:
            e("  v_and_b32 v9, 24, v0")
            e("  v_and_b32 v10, 1, v0")
            e("  v_lshl_add_u32 v9, v10, 2, v9")
            e("  v_bfe_u32 v10, v0, 1, 2")
            e("  v_add_u32 v9, v10, v9")
        else:
            e("  v_and_b32 v9, 31, v0")
        e("  v_lshl_add_u32 v8, v9, 2, v8")
        for w in range(8):
            e(f"  ds_read_b32 v{176+w}, v8 offset:{L_O + w*2304}")
    else:
        e("  v_lshlrev_b32 v8, 9, v5")
        e("  v_lshl_add_u32 v8, v6, 2, v8")
        for w in range(8):
            e(f"  ds_read_b32 v{176+w}, v8 offset:{L_O + w*2048}")
    e("  s_waitcnt lgkmcnt(0)")
    e("  v_max3_f32 v184, v160, v162, v164")
    e("  v_max3_f32 v185, v166, v168, v170")
    e("  v_max3_f32 v184, v184, v172, v174")
    e("  v_max_f32 v184, v184, v185")
    e("  v_mov_b32 v186, 0")
    e("  v_mov_b32 v187, 0")
    for w in range(8):
        e(f"  v_sub_f32 v185, v{160+2*w}, v184")
        e(f"  v_mul_f32 v185, s{SC}, v185")
        e("  v_exp_f32 v185, v185")
        e("  s_nop 0")
        e(f"  v_fmac_f32 v186, v185, v{161+2*w}")
        e(f"  v_fmac_f32 v187, v185, v{176+w}")
    e(f"  s_lshl_b32 s75, s{SB}, 5")
    e(f"  s_lshl_b32 s76, s{SG}, 2")
    e("  s_add_u32 s75, s75, s76")
    e("  s_lshl_b32 s75, s75, 4")
    e(f"  s_add_u32 s75, s75, s{SSPL}")
    e("  v_lshlrev_b32 v7, 4, v5")
    e("  v_add_u32 v7, s75, v7")
    e("  v_lshlrev_b32 v8, 10, v7")
    e("  v_lshl_add_u32 v8, v6, 3, v8")
    e(f"  s_mov_b32 s75, {WS_OG}")
    e("  v_mov_b32 v188, v187")
    e("  v_mov_b32 v189, s26")
    e(f"  buffer_store_dwordx2 v[188:189], v8, s[{SWS}:{SWS+3}], s75 offen sc1")
    e("  v_cmp_eq_u32 vcc, 0, v6")
    e("  s_and_saveexec_b64 s[78:79], vcc")
    e("  v_lshlrev_b32 v7, 4, v7")
    e("  v_mov_b32 v185, v186")
    e("  v_mov_b32 v186, s26")
    e(f"  s_mov_b32 s75, {WS_MG}")
    e(f"  buffer_store_dwordx3 v[184:186], v7, s[{SWS}:{SWS+3}], s75 offen sc1")
    e("  s_mov_b64 exec, s[78:79]")
    if OPT["prof"] == 1: stamp(5)
    tl6(3)

    def prod(wregs, vecaddr_rows, accbase, nrows):
        for r in range(16):
            e(f"  v_mov_b32 v{accbase+r}, 0")
        for i in range(nrows):
            for c in range(4):
                w = wregs + 4 * i + c
                e(f"  v_lshlrev_b32 v160, 16, v{w}")
                e(f"  v_and_b32 v161, 0xffff0000, v{w}")
                e(f"  v_fmac_f32 v{accbase+2*c}, v160, v{168+2*i}")
                e(f"  v_fmac_f32 v{accbase+1+2*c}, v161, v{168+2*i}")
                e(f"  v_fmac_f32 v{accbase+8+2*c}, v160, v{169+2*i}")
                e(f"  v_fmac_f32 v{accbase+9+2*c}, v161, v{169+2*i}")
        dpp_steps(list(range(accbase, accbase + 16)), ["row_ror:8"])

    def reduce_store(lbase, label, snc):
        e("  v_lshlrev_b32 v5, 2, v2")
        e("  v_add_u32 v5, v5, v4")
        e("  v_lshlrev_b32 v5, 9, v5")
        e("  v_and_b32 v6, 7, v1")
        e("  v_lshl_add_u32 v5, v6, 5, v5")
        e("  v_and_b32 v6, 8, v1")
        e("  v_cmp_eq_u32 vcc, 0, v6")
        e("  s_and_saveexec_b64 s[78:79], vcc")
        e(f"  ds_write_b128 v5, v[180:183] offset:{lbase}")
        e(f"  ds_write_b128 v5, v[184:187] offset:{lbase+16}")
        e(f"  ds_write_b128 v5, v[188:191] offset:{lbase+256}")
        e(f"  ds_write_b128 v5, v[192:195] offset:{lbase+256+16}")
        e("  s_mov_b64 exec, s[78:79]")
        e("  s_waitcnt lgkmcnt(0)")
        e("  s_barrier")
        e("  s_cmp_ge_u32 s3, 2")
        e(f"  s_cbranch_scc1 {label}")
        e("  v_lshlrev_b32 v5, 2, v0")
        for p in range(32):
            e(f"  ds_read_b32 v{204+p}, v5 offset:{lbase + p*512}")
        e("  s_waitcnt lgkmcnt(0)")
        for p in range(1, 31, 2):
            e(f"  v_add_f32 v{204+p}, v{204+p}, v{205+p}")
        e("  v_add_f32 v204, v204, v235")
        for p in range(1, 31, 2):
            e(f"  v_add_f32 v204, v204, v{204+p}")
        e("  v_lshlrev_b32 v5, 12, v2")
        e("  v_lshl_add_u32 v5, v1, 3, v5")
        e(f"  s_lshl_b32 s76, s{snc}, 9")
        e(f"  s_add_u32 s75, s75, s76")
        e("  v_mov_b32 v205, s26")
        e(f"  buffer_store_dwordx2 v[204:205], v5, s[{SWS}:{SWS+3}], s75 offen sc1")
        e(f"{label}:")

    if not OPT["fd"] and not OPT["pf"]:
        e("  s_cmp_ge_u32 s2, 224")
        e("  s_cbranch_scc1 K_T4")
        e(f"  s_mov_b32 s74, {OPT['bnd']:#x}")
        e("  s_waitcnt vmcnt(1)")
        e("K_HR:")
        e("  v_cmp_ne_u32 vcc, s26, v%d" % (246 if OPT["x2"] else 245))
        e("  v_cmp_ne_u32 s[78:79], s26, v247")
        e("  s_or_b64 vcc, vcc, s[78:79]")
        e("  s_cmp_eq_u64 vcc, 0")
        e("  s_cbranch_scc1 K_HOK")
        h_loads()
        e("  s_waitcnt vmcnt(0)")
        e("  s_sub_u32 s74, s74, 1")
        e("  s_cmp_lg_u32 s74, 0")
        e("  s_cbranch_scc1 K_HR")
        e("K_HOK:")
        if OPT["x2"]:
            dpp_steps([244, 245], ["quad_perm:[1,0,3,2]", "quad_perm:[2,3,0,1]", "row_half_mirror"])
            e("  v_max_f32 v168, 0, v244")
            e("  v_max_f32 v169, 0, v245")
            round_bf16(168, 168)
            round_bf16(169, 169)
        else:
            e("  v_and_b32 v5, 1, v12")
            e("  v_cmp_eq_u32 vcc, 1, v5")
            e("  v_lshlrev_b32 v168, 16, v244")
            e("  v_and_b32 v5, 0xffff0000, v244")
            e("  v_lshlrev_b32 v169, 16, v246")
            e("  v_and_b32 v6, 0xffff0000, v246")
            e("  v_cndmask_b32 v168, v168, v5, vcc")
            e("  v_cndmask_b32 v169, v169, v6, vcc")
        prod(W2, None, 180, 1)
        e("  s_lshr_b32 s75, s2, 3")
        e("  s_lshl_b32 s75, s75, 13")
        e(f"  s_add_u32 s75, s75, {WS_GG}")
        reduce_store(L_FP, "K_T3B", SNC)
    e("K_T4:")
    if OPT["t2"]:
        tail2()
        return_early = True
    else:
        return_early = False
    if return_early:
        pass
    elif not OPT["mf"]:
        e("  s_cmp_ge_u32 s3, 4")
        e("  s_cbranch_scc1 K_T6")
        e("  v_lshrrev_b32 v6, 7, v0")
        e("  v_and_b32 v7, 127, v0")
        e("  v_lshlrev_b32 v8, 5, v6")
        e(f"  v_add_u32 v8, s{SHEAD}, v8")
        e("  v_lshlrev_b32 v9, 8, v8")
        e("  v_lshlrev_b32 v10, 14, v8")
        e("  v_lshl_add_u32 v10, v7, 3, v10")
        e(f"  s_mov_b32 s76, {WS_MG}")
        def iss2(sp):
            e(f"  s_mov_b32 s75, {WS_OG + 4096*(sp>>2)}")
            bits = {0:"", 1:" sc1", 2:" sc0", 3:" sc0 sc1", 4:" nt", 5:" sc0 nt"}[OPT["p2"]]
            e(f"  buffer_load_dwordx2 v[{16+2*sp}:{17+2*sp}], v10, s[{SWS}:{SWS+3}], s75 offen offset:{(sp&3)*1024}{bits}")
            e(f"  buffer_load_dwordx3 v[{48+4*sp}:{50+4*sp}], v9, s[{SWS}:{SWS+3}], s76 offen offset:{sp*16}{bits}")
        mpoll("K_P2", 16, iss2, lambda sp: [17+2*sp, 50+4*sp], OPT["thr"])
        if OPT["prof"] == 1: stamp(6)
        M = lambda sp: 48+4*sp
        e(f"  v_max3_f32 v112, v{M(0)}, v{M(1)}, v{M(2)}")
        for sp in range(3, 15, 2):
            e(f"  v_max3_f32 v112, v112, v{M(sp)}, v{M(sp+1)}")
        e(f"  v_max_f32 v112, v112, v{M(15)}")
        e("  v_mov_b32 v113, 0")
        e("  v_mov_b32 v114, 0")
        for sp in range(16):
            e(f"  v_sub_f32 v{M(sp)}, v{M(sp)}, v112")
            e(f"  v_mul_f32 v{M(sp)}, s{SC}, v{M(sp)}")
            e(f"  v_exp_f32 v{M(sp)}, v{M(sp)}")
        e("  s_nop 0")
        for sp in range(16):
            e(f"  v_fmac_f32 v113, v{M(sp)}, v{M(sp)+1}")
            e(f"  v_fmac_f32 v114, v{M(sp)}, v{16+2*sp}")
        e("  v_mov_b32 v49, v113")
        e("  v_mov_b32 v50, v114")
        e("  v_rcp_f32 v49, v49")
        e("  s_nop 0")
        e("  v_mul_f32 v50, v50, v49")
        round_bf16(50, 50)
        e("  v_lshlrev_b32 v8, 2, v0")
        e(f"  ds_write_b32 v8, v50 offset:{L_VEC}")
        e("  s_waitcnt lgkmcnt(0)")
        e("K_T6:")
        e("  s_barrier")
        e("  v_lshlrev_b32 v5, 2, v12")
        e(f"  ds_read_b32 v168, v5 offset:{L_VEC}")
        e(f"  ds_read_b32 v169, v5 offset:{L_VEC+512}")
        e(f"  ds_read_b32 v170, v5 offset:{L_VEC+256}")
        e(f"  ds_read_b32 v171, v5 offset:{L_VEC+512+256}")
        e("  s_waitcnt lgkmcnt(0)")
        prod(WO, None, 180, 2)
        e(f"  s_lshl_b32 s75, s{SHEAD}, 13")
        e(f"  s_add_u32 s75, s75, {WS_SG}")
        reduce_store(L_SP, "K_T6B", SNO)
    else:
        e("  s_cmp_ge_u32 s3, 4")
        e("  s_cbranch_scc1 K_END")
        e("  s_and_b32 s75, s3, 1")
        e("  s_cmp_eq_u32 s75, 1")
        e(f"  s_cselect_b32 s75, s{SP1}, s{SP0}")
        for ks in range(4):
            for q in range(4):
                e(f"  v_perm_b32 v{112+ks*4+q}, v{80+ks*8+2*q+1}, v{80+ks*8+2*q}, s75")
        e("  v_lshrrev_b32 v6, 7, v0")
        e("  v_and_b32 v7, 127, v0")
        e("  v_lshlrev_b32 v8, 5, v6")
        e(f"  v_add_u32 v8, s{SHEAD}, v8")
        e("  v_lshlrev_b32 v9, 8, v8")
        e("  v_lshlrev_b32 v10, 14, v8")
        e("  v_lshl_add_u32 v10, v7, 3, v10")
        e(f"  s_mov_b32 s76, {WS_MG}")
        def iss2(sp):
            e(f"  s_mov_b32 s75, {WS_OG + 4096*(sp>>2)}")
            e(f"  buffer_load_dwordx2 v[{16+2*sp}:{17+2*sp}], v10, s[{SWS}:{SWS+3}], s75 offen offset:{(sp&3)*1024} sc1")
            e(f"  buffer_load_dwordx3 v[{48+4*sp}:{50+4*sp}], v9, s[{SWS}:{SWS+3}], s76 offen offset:{sp*16} sc1")
        e("  v_and_b32 v11, 1, v3")
        e("  v_lshlrev_b32 v11, 8, v11")
        e("  v_lshl_add_u32 v11, v4, 4, v11")
        e("  v_and_b32 v12, 1, v4")
        e("  v_lshlrev_b32 v13, 12, v12")
        e("  v_lshl_add_u32 v13, v3, 4, v13")
        e("  s_lshr_b32 s75, s3, 1")
        e("  s_lshl_b32 s75, s75, 8")
        e("  s_and_b32 s78, s3, 1")
        e("  s_lshl_b32 s78, s78, 3")
        e("  s_add_u32 s75, s75, s78")
        e(f"  s_lshl_b32 s78, s{SNO}, 9")
        e("  s_add_u32 s75, s75, s78")
        e(f"  s_lshl_b32 s78, s{SHEAD}, 13")
        e("  s_add_u32 s75, s75, s78")
        e(f"  s_add_u32 s75, s75, {WS_SG}")
        e("  v_add_u32 v13, s75, v13")
        if OPT["gate"]:
            GB = [4, 36, 52, 80]
            e("  s_lshr_b32 s72, s3, 1")
            e("  s_lshl_b32 s72, s72, 5")
            e(f"  s_add_u32 s72, s72, s{SHEAD}")
            e("  s_lshl_b32 s72, s72, 8")
            e(f"  s_add_u32 s72, s72, {WS_MG}")
            e(f"  s_mov_b32 s74, {OPT['bnd']:#x}")
            e("K_GT:")
            for i, b_ in enumerate(GB):
                e(f"  s_load_dwordx16 s[{b_}:{b_+15}], s[24:25], s72 offset:{64*i} glc")
            e("  s_mov_b32 s75, 0")
            e("  s_waitcnt lgkmcnt(0)")
            for k in range(16):
                e(f"  s_cmp_eq_u32 s{GB[k>>2] + 4*(k&3) + 2}, s26")
                e("  s_addc_u32 s75, s75, 0")
            e(f"  s_cmp_ge_u32 s75, {16-OPT['gthr']}")
            e("  s_cbranch_scc1 K_GTD")
            if OPT["gsl"]: e(f"  s_sleep {OPT['gsl']}")
            e("  s_sub_u32 s74, s74, 1")
            e("  s_cmp_lg_u32 s74, 0")
            e("  s_cbranch_scc1 K_GT")
            e("K_GTD:")
        mpoll("K_P2", 16, iss2, lambda sp: [17+2*sp, 50+4*sp], OPT["thr"])
        if OPT["prof"] == 1: stamp(6)
        tl6(4)
        M = lambda sp: 48+4*sp
        e(f"  v_max3_f32 v128, v{M(0)}, v{M(1)}, v{M(2)}")
        for sp in range(3, 15, 2):
            e(f"  v_max3_f32 v128, v128, v{M(sp)}, v{M(sp+1)}")
        e(f"  v_max_f32 v128, v128, v{M(15)}")
        e("  v_mov_b32 v129, 0")
        e("  v_mov_b32 v130, 0")
        for sp in range(16):
            e(f"  v_sub_f32 v{M(sp)}, v{M(sp)}, v128")
            e(f"  v_mul_f32 v{M(sp)}, s{SC}, v{M(sp)}")
            e(f"  v_exp_f32 v{M(sp)}, v{M(sp)}")
        e("  s_nop 0")
        for sp in range(16):
            e(f"  v_fmac_f32 v129, v{M(sp)}, v{M(sp)+1}")
            e(f"  v_fmac_f32 v130, v{M(sp)}, v{16+2*sp}")
        e("  v_rcp_f32 v129, v129")
        e("  s_nop 0")
        e("  v_mul_f32 v130, v130, v129")
        e("  v_cvt_pk_bf16_f32 v130, v130, v130")
        if OPT["cb"]:
            e("  v_and_b32 v8, 0xe0, v0")
            e("  v_and_b32 v5, 3, v0")
            e("  v_lshl_add_u32 v8, v5, 3, v8")
            e("  v_bfe_u32 v5, v0, 2, 3")
            e("  v_add_u32 v8, v5, v8")
            e("  v_lshlrev_b32 v8, 1, v8")
        else:
            e("  v_lshlrev_b32 v8, 1, v0")
        e(f"  ds_write_b16 v8, v130 offset:{L_VEC}")
        e("  s_waitcnt lgkmcnt(0)")
        e("  s_barrier")
        for ks in range(4):
            e(f"  ds_read_b128 v[{132+4*ks}:{135+4*ks}], v11 offset:{L_VEC + ks*64}")
        e("  s_waitcnt lgkmcnt(0)")
        for ks in range(4):
            c = "0" if ks == 0 else "v[148:151]"
            e(f"  v_mfma_f32_16x16x32_bf16 v[148:151], v[{132+4*ks}:{135+4*ks}], v[{112+4*ks}:{115+4*ks}], {c}")
        e("  v_cmp_eq_u32 vcc, 1, v12")
        e("  v_mov_b32 v153, s26")
        e("  s_nop 7")
        e("  s_nop 7")
        e("  v_cndmask_b32 v152, v148, v149, vcc")
        e("  s_mov_b64 exec, 0xffffffff")
        e(f"  buffer_store_dwordx2 v[152:153], v13, s[{SWS}:{SWS+3}], 0 offen sc1")
        e("  s_mov_b64 exec, -1")
    if not OPT["t2"]:
        if OPT["prof"] == 1: stamp(7)
        tl6(5)
        e("  s_cmp_ge_u32 s2, 8")
        e("  s_cbranch_scc1 K_END")
        e("  s_cmp_ge_u32 s3, 4")
        e("  s_cbranch_scc1 K_END")
        def gpoll(label, n, base):
            def iss(k):
                e(f"  s_mov_b32 s75, {base + k*8192}")
                e(f"  buffer_load_dwordx2 v[{16+2*k}:{17+2*k}], v10, s[{SWS}:{SWS+3}], s75 offen sc1")
            mpoll(label, n, iss, lambda k: [17+2*k], None)
            for k in range(1, n):
                e(f"  v_add_f32 v16, v16, v{16+2*k}")
        e("  v_and_b32 v5, 1, v2")
        e("  v_lshlrev_b32 v5, 11, v5")
        e("  v_lshl_add_u32 v5, v1, 2, v5")
        e(f"  s_and_b32 s76, s2, 7")
        e(f"  s_lshl_b32 s76, s76, 8")
        e("  v_add_u32 v5, s76, v5")
        e("  v_lshlrev_b32 v10, 1, v5")
        e("  s_cmp_ge_u32 s3, 2")
        e("  s_cbranch_scc1 K_FG")
        e("  v_lshrrev_b32 v6, 1, v5")
        e(f"  buffer_load_ushort v4, v6, s[{SX}:{SX+3}], 0 offen")
        gpoll("K_P3", 32, WS_SG)
        tl6(6)
        round_bf16(16, 16)
        e("  s_barrier")
        e("  v_lshlrev_b32 v7, 2, v0")
        e(f"  ds_read_b32 v8, v7 offset:{L_GX}")
        e("  s_waitcnt lgkmcnt(0)")
        e("  v_mul_f32 v8, v8, v16")
        round_bf16(8, 8)
        e("  v_lshlrev_b32 v4, 16, v4")
        e("  v_add_f32 v8, v8, v4")
        e("  v_cvt_pk_bf16_f32 v8, v8, v8")
        e(f"  buffer_store_short v8, v6, s[{SOUT}:{SOUT+3}], 0 offen")
        e("  s_or_b32 s75, s2, s3")
        e("  s_cmp_lg_u32 s75, 0")
        e("  s_cbranch_scc1 K_END")
        e("  s_mov_b64 exec, 1")
        e(f"  v_mov_b32 v5, {WS_EP}")
        e("  v_mov_b32 v6, s26")
        e(f"  buffer_store_dword v6, v5, s[{SWS}:{SWS+3}], 0 offen")
        e("  s_branch K_END")
        e("K_FG:")
        gpoll("K_P4", 28, WS_GG)
        tl6(6)
        round_bf16(16, 16)
        e("  v_mul_f32 v5, 0xbfb8aa3b, v16")
        e("  v_exp_f32 v5, v5")
        e("  s_nop 0")
        e("  v_add_f32 v5, 1.0, v5")
        e("  v_rcp_f32 v5, v5")
        e("  s_nop 0")
        e("  v_mul_f32 v5, v5, v16")
        round_bf16(5, 5)
        e("  v_and_b32 v7, 127, v0")
        e("  v_lshlrev_b32 v7, 2, v7")
        e(f"  ds_write_b32 v7, v5 offset:{L_GX}")
        e("  s_waitcnt lgkmcnt(0)")
        e("  s_barrier")
    e("K_END:")
    dump_stamps()
    e("  s_endpgm")
    e('.section .rodata,"a"')
    e(".p2align 6")
    e(f".amdhsa_kernel {name}")
    e("  .amdhsa_next_free_vgpr 256")
    e("  .amdhsa_next_free_sgpr 102")
    e("  .amdhsa_accum_offset 256")
    e("  .amdhsa_group_segment_fixed_size 0")
    e("  .amdhsa_kernarg_size 88")
    e("  .amdhsa_user_sgpr_count 2")
    e("  .amdhsa_user_sgpr_kernarg_segment_ptr 1")
    e("  .amdhsa_system_sgpr_workgroup_id_x 1")
    e(".end_amdhsa_kernel")

def main():
    path = f"cdna_kernels/{NAME}.s"
    for a in sys.argv[1:]:
        if "=" in a:
            k, v = a.split("=", 1)
            OPT[k] = (" " + v if v else "") if k == "nt" else int(v)
        else:
            path = a
    e(HEADER.rstrip("\n"))
    lds = 61952 if OPT["x2"] else LDS_SIZE
    if OPT["jd"]: lds = L_WO + 128*272
    e(f"; @launch grid=(256,1,1) block=(512,1,1) lds={lds}")
    e('.amdgcn_target "amdgcn-amd-amdhsa--gfx950"')
    gen()
    open(path, "w").write("\n".join(out) + "\n")

main()
```

```python
import sys

NAME = "recurrent_scan__gqa_block_cached__dense_activation_relu__decode"

HEADER = """; Kernarg layout for this problem (88 bytes, ptrs only, base s[0:1]):
;   offset   0: d_in[0] A_x  shape=(2, 1, 512) dtype=bfloat16 strides=(1024, 1024, 2) contiguous=True
;   offset   8: d_in[1] A_k_cache  shape=(2, 8, 32768, 128) dtype=bfloat16 strides=(67108864, 8388608, 256, 2) contiguous=True
;   offset  16: d_in[2] A_v_cache  shape=(2, 8, 32768, 128) dtype=bfloat16 strides=(67108864, 8388608, 256, 2) contiguous=True
;   offset  24: d_in[3] A_wq  shape=(512, 4096) dtype=bfloat16 strides=(8192, 2) contiguous=True
;   offset  32: d_in[4] A_wo  shape=(4096, 512) dtype=bfloat16 strides=(1024, 2) contiguous=True
;   offset  40: d_in[5] B_x  shape=(2, 1, 512) dtype=bfloat16 strides=(1024, 1024, 2) contiguous=True
;   offset  48: d_in[6] B_w1  shape=(512, 1792) dtype=bfloat16 strides=(3584, 2) contiguous=True
;   offset  56: d_in[7] B_w2  shape=(1792, 512) dtype=bfloat16 strides=(1024, 2) contiguous=True
"""

WS_Q = 0
WS_H = 16384
WS_ML = 32768
WS_O = 65536
WS_P = 1 << 20
WS_G = WS_P + 131072
WS_SIZE = 536870912
WS_QG = 2 << 20
WS_HG = WS_QG + 32768
WS_EP = WS_QG + 65536
WS_QF = WS_QG + 131072
WS_OG = 5 << 20
WS_MG = 6 << 20
WS_SG = WS_MG + 65536
WS_GG = 7 << 20
WS_PC = 3 << 20

L_XN = 0
L_QP = 4096
L_Q = 5632
L_HV = 6656
L_CNT = 7168
L_O = 8192
L_ML = 26624
L_FP = 27136
L_VEC = 0
L_SP = 8192
L_GX = 1024
LDS_SIZE = 43520
L_DQ = 7232
L_WO = 43520
WS_PR = 11 << 20
WS_H2 = 10 << 20

OPT = dict(nt=" nt", sleep=1, prof=0, pre0=0, pace=8, bar0=1, wsc=0, thr=2, p2=1, ilv=0, kx=0, nbuf=1, nw=8, kpl=0, vpl=0, T=0, plo=0, phi=0, mf=1, prex=0, qs=0, warm=0, xb=1, f1=8, np=8, sl=8, psl=8, bnd=0x100000, bar2=1, f2=8, rot=0, map=1, ns=64, fake=0, warmp=0, nsub=4, fifo=1, fw=0, fsl=1, dup=1, rs=1, qsl=0, qp=4, sp=1, nf=10, cb=1, fd=0, fdt=32, gate=0, gthr=2, gsl=1, t2=1, spec=8, psl2=1, pw=1, fsl2=1, fw2=1, obar=0, f1st=1, pf=0, dy=0, dfi=1, x2=0, dq=0, dd=10, cap=32, il2=0, bm=0, ra=4, rb=0, xw=0, th=0, tp=20, tr=28, te=64, tg=20, tlim=600, tm=3, ts=150, jd=0, nd=0, fs=0, mg=0, rg=0, rm=1, rr=1, bs4=2, ps=0, xs=0, rq=0, rz=0, pclk=0, wnt=0, wpol=0, xm=0, cgx=0, nw2=0, n2t=48, gp=0)

out = []
def e(s=""):
    if OPT["wnt"] and s.startswith("  buffer_load"):
        for bit, base in ((1, 40), (2, 44), (4, 48), (8, 52), (16, 28)):
            if (OPT["wnt"] & bit) and f"s[{base}:{base+3}]" in s:
                s = s + [" nt", " sc1", " sc0 sc1", " nt sc1"][OPT["wpol"]]
    out.append(s)

def srd(dst, lo, hi, nbytes):
    e(f"  s_mov_b32 s{dst}, s{lo}")
    e(f"  s_and_b32 s{dst+1}, s{hi}, 0xffff")
    e(f"  s_mov_b32 s{dst+2}, {nbytes}")
    e(f"  s_mov_b32 s{dst+3}, 0x00020000")

def dpp_steps(regs, ctrls):
    for ctrl in ctrls:
        e("  s_nop 1")
        for r in regs:
            e(f"  v_add_f32_dpp v{r}, v{r}, v{r} {ctrl} row_mask:0xf bank_mask:0xf")

def swap_steps(regs, tmp):
    for sw in ["v_permlane16_swap_b32", "v_permlane32_swap_b32"]:
        for r, t in zip(regs, tmp):
            e(f"  v_mov_b32 v{t}, v{r}")
        e("  s_nop 1")
        for r, t in zip(regs, tmp):
            e(f"  {sw} v{r}, v{t}")
        e("  s_nop 1")
        for r, t in zip(regs, tmp):
            e(f"  v_add_f32 v{r}, v{r}, v{t}")

def red_steps(regs, tmp, op, ctrls=("row_ror:4", "row_ror:8")):
    for ctrl in ctrls:
        e("  s_nop 1")
        for r in regs:
            e(f"  {op}_dpp v{r}, v{r}, v{r} {ctrl} row_mask:0xf bank_mask:0xf")
    for sw in ["v_permlane16_swap_b32", "v_permlane32_swap_b32"]:
        for r, t in zip(regs, tmp):
            e(f"  v_mov_b32 v{t}, v{r}")
        e("  s_nop 1")
        for r, t in zip(regs, tmp):
            e(f"  {sw} v{r}, v{t}")
        e("  s_nop 1")
        for r, t in zip(regs, tmp):
            e(f"  {op} v{r}, v{r}, v{t}")

def wave_sum(regs, tmp):
    dpp_steps(regs, ["quad_perm:[1,0,3,2]", "quad_perm:[2,3,0,1]", "row_half_mirror", "row_mirror"])
    swap_steps(regs, tmp)

def round_bf16(dst, src):
    e(f"  v_cvt_pk_bf16_f32 v{dst}, v{src}, v{src}")
    e(f"  v_lshlrev_b32 v{dst}, 16, v{dst}")

WS_PROF = 4 << 20
def stamp(k):
    if not OPT["prof"] or OPT["prof"] >= 3:
        return
    e("  s_memrealtime s[80:81]")
    e("  s_waitcnt lgkmcnt(0)")
    e(f"  s_mov_b32 s{92+k}, s80")

WS_PROF3 = 8 << 20
def tl(k=3):
    if OPT["prof"] != k:
        return
    e("  s_memrealtime s[98:99]")
    e("  s_waitcnt lgkmcnt(0)")
    e("  v_writelane_b32 v251, s98, m0")
    if OPT.get("pclk"):
        e("  s_memtime s[98:99]")
        e("  s_waitcnt lgkmcnt(0)")
        e("  s_add_u32 m0, m0, 16")
        e("  v_writelane_b32 v251, s98, m0")
        e("  s_sub_u32 m0, m0, 16")
    e("  s_add_u32 m0, m0, 1")
    if k == 7: e("  s_min_u32 m0, m0, 63")

def tl6(i):
    if OPT["prof"] != 6:
        return
    e(f"  s_mov_b32 m0, {i}")
    tl(6)

def tl_dump(final=False):
    if OPT["prof"] < 3:
        return
    if (OPT["prof"] == 6) != final:
        return
    if final:
        e("  s_mov_b64 exec, -1")
    e("  s_lshl_b32 s82, s2, 3")
    e("  s_add_u32 s82, s82, s3")
    e("  s_lshl_b32 s82, s82, 8")
    e(f"  s_add_u32 s82, s82, {WS_PROF3}")
    e("  v_lshlrev_b32 v5, 2, v1")
    e(f"  buffer_store_dword v251, v5, s[{SWS}:{SWS+3}], s82 offen")

def dump_stamps():
    if not OPT["prof"]:
        return
    if OPT["prof"] >= 3:
        tl6(7)
        tl_dump(True)
        e("K_END2:")
        return
    e("  s_cmp_ge_u32 s3, 2")
    e("  s_cbranch_scc1 K_END2")
    e("  s_cmp_ge_u32 s2, 256")
    e("  s_cbranch_scc1 K_END2")
    stamp(8)
    e("  s_lshl_b32 s82, s2, 1")
    e("  s_add_u32 s82, s82, s3")
    e("  s_lshl_b32 s82, s82, 6")
    e(f"  s_add_u32 s82, s82, {WS_PROF}")
    e("  s_mov_b64 exec, 1")
    e("  v_mov_b32 v6, 0")
    for k in range(9):
        e(f"  v_mov_b32 v5, s{92+k}")
        e(f"  buffer_store_dword v5, v6, s[{SWS}:{SWS+3}], s82 offen offset:{k*4}")
    e("K_END2:")

SX, SK, SV, SWQ, SW1, SWO, SW2, SWS, SDBG, SOUT = 28, 60, 64, 40, 44, 48, 52, 20, 999, 32
SC, SP0, SP1 = 68, 69, 70
IDXA, IDXB = 72, 73
SG, SR, SB, SSPL, SNC, SHEAD = 86, 87, 88, 89, 90, 91
SNO, SCG, SHC = 83, 84, 85

def poll(label, nlanes, voff, target, tmpv):
    e(f"  s_mov_b64 exec, {(1<<nlanes)-1:#x}")
    e("  s_mov_b32 s74, 0x400000")
    e(f"{label}:")
    e(f"  buffer_load_dword v{tmpv}, v{voff}, s[{SDBG}:{SDBG+3}], 0 offen sc1")
    e("  s_waitcnt vmcnt(0)")
    e(f"  v_cmp_ne_u32 vcc, {target}, v{tmpv}")
    e("  s_cmp_eq_u64 vcc, 0")
    e(f"  s_cbranch_scc1 {label}_DONE")
    if OPT["sleep"]:
        e(f"  s_sleep {OPT['sleep']}")
    e("  s_sub_u32 s74, s74, 1")
    e("  s_cmp_lg_u32 s74, 0")
    e(f"  s_cbranch_scc1 {label}")
    e(f"{label}_DONE:")
    e("  s_mov_b64 exec, -1")

def mpoll(label, n, issue, tags, thr):
    full = (1 << n) - 1
    e("  s_not_b32 s75, s26")
    for k in range(n):
        for x in tags(k):
            e(f"  v_mov_b32 v{x}, s75")
    e("  s_mov_b32 s77, 0")
    e(f"  s_mov_b32 s74, {OPT['bnd']:#x}")
    e(f"{label}:")
    for k in range(n):
        e(f"  s_bitcmp1_b32 s77, {k}")
        e(f"  s_cbranch_scc1 {label}S{k}")
        issue(k)
        e(f"{label}S{k}:")
    if thr is not None:
        e(f"  s_xor_b32 s75, s77, {full:#x}")
        e("  s_bcnt1_i32_b32 s75, s75")
        e(f"  s_cmp_le_u32 s75, {thr}")
        e(f"  s_cbranch_scc1 {label}F")
        e("  s_waitcnt vmcnt(0)")
        e(f"{label}F:")
    if OPT["sleep"]:
        e(f"  s_sleep {OPT['sleep']}")
    for k in range(n):
        t = tags(k)
        e(f"  v_cmp_eq_u32 vcc, s26, v{t[0]}")
        for x in t[1:]:
            e(f"  v_cmp_eq_u32 s[78:79], s26, v{x}")
            e("  s_and_b64 vcc, vcc, s[78:79]")
        e("  s_cmp_eq_u64 vcc, -1")
        e(f"  s_cselect_b32 s75, {1<<k:#x}, 0")
        e("  s_or_b32 s77, s77, s75")
    e(f"  s_cmp_eq_u32 s77, {full:#x}")
    e(f"  s_cbranch_scc1 {label}_DONE")
    e("  s_sub_u32 s74, s74, 1")
    e("  s_cmp_lg_u32 s74, 0")
    e(f"  s_cbranch_scc1 {label}")
    e(f"{label}_DONE:")
    e("  s_waitcnt vmcnt(0)")

def tail2():
    B = OPT['bnd']
    if OPT["obar"]:
        e("  s_barrier")
    if OPT["fs"]:
        e("  v_and_b32 v5, 3, v1")
        e("  v_lshrrev_b32 v6, 2, v1")
        e("  s_cmp_lt_u32 s2, 8")
        e("  s_cbranch_scc1 T_FIN")
    if not OPT["jd"]:
        e("  s_cmp_%s_u32 s3, 4" % ("lt" if OPT["pf"] else "ge"))
        e("  s_cbranch_scc1 T_NW")
    e("  s_and_b32 s75, s3, 1")
    e("  s_cmp_eq_u32 s75, 1")
    e(f"  s_cselect_b32 s75, s{SP1}, s{SP0}")
    if OPT["jd"]:
        e("  v_mul_u32_u24 v11, 2176, v4")
        e("  v_lshl_add_u32 v11, v3, 2, v11")
        e("  s_lshr_b32 s76, s3, 1")
        e("  s_lshl_b32 s76, s76, 6")
        e(f"  s_add_u32 s76, s76, {L_WO}")
        e("  v_add_u32 v11, s76, v11")
        for ks in range(4):
            for jj in range(8):
                e(f"  ds_read_b32 v{80+ks*8+jj}, v11 offset:{(ks*32+jj)*272}")
        e("  s_waitcnt lgkmcnt(0)")
    elif OPT["x2"]:
        e("  v_mul_u32_u24 v11, 1152, v4")
        e("  v_lshl_add_u32 v11, v3, 2, v11")
        e("  s_bfe_u32 s76, s3, 0x10001")
        e("  s_lshl_b32 s76, s76, 6")
        e("  v_add_u32 v11, s76, v11")
        for ks in range(4):
            for jj in range(8):
                e(f"  ds_read_b32 v{80+ks*8+jj}, v11 offset:{L_WO + (ks*32+jj)*144}")
        e("  s_waitcnt lgkmcnt(0)")
    for ks in range(4):
        for q in range(4):
            e(f"  v_perm_b32 v{112+ks*4+q}, v{80+ks*8+2*q+1}, v{80+ks*8+2*q}, s75")
    e("  v_and_b32 v11, 1, v3")
    e("  v_lshlrev_b32 v11, 8, v11")
    e("  v_lshl_add_u32 v11, v4, 4, v11")
    e("  v_and_b32 v12, 1, v4")
    e("  v_lshlrev_b32 v13, 12, v12")
    e("  v_lshl_add_u32 v13, v3, 4, v13")
    if OPT["jd"]:
        e("  s_lshr_b32 s75, s3, 1")
    else:
        e("  s_bfe_u32 s75, s3, 0x10001")
    e("  s_lshl_b32 s75, s75, 8")
    e("  s_and_b32 s78, s3, 1")
    e("  s_lshl_b32 s78, s78, 3")
    e("  s_add_u32 s75, s75, s78")
    if OPT["jd"]:
        e(f"  s_and_b32 s78, s{SNO}, 3")
        e(f"  s_lshl_b32 s78, s78, 10")
    else:
        e(f"  s_lshl_b32 s78, s{SNO}, 9")
    e("  s_add_u32 s75, s75, s78")
    e(f"  s_lshl_b32 s78, s{SHEAD}, 13")
    e("  s_add_u32 s75, s75, s78")
    e(f"  s_add_u32 s75, s75, {WS_SG}")
    e("  v_add_u32 v13, s75, v13")
    e("T_NW:")
    e("  v_and_b32 v5, 3, v1")
    e("  v_lshrrev_b32 v6, 2, v1")
    e("  s_lshr_b32 s75, s3, 2")
    e("  s_lshl_b32 s75, s75, 5")
    e(f"  s_add_u32 s75, s75, s{SHEAD}")
    e("  s_lshl_b32 s76, s75, 8")
    e("  v_lshlrev_b32 v9, 4, v6")
    e("  v_add_u32 v9, s76, v9")
    e("  s_lshl_b32 s76, s75, 14")
    e("  s_and_b32 s75, s3, 3")
    e("  s_lshl_b32 s75, s75, 8")
    e("  s_add_u32 s76, s76, s75")
    e("  v_lshlrev_b32 v10, 10, v6")
    e("  v_lshl_add_u32 v10, v5, 4, v10")
    e("  v_add_u32 v10, s76, v10")
    e("  s_not_b32 s75, s26")
    for r in [17, 19, 21, 23, 25, 27, 29, 31, 34]:
        e(f"  v_mov_b32 v{r}, s75")
    e("  s_mov_b64 s[76:77], -1")
    e("  s_mov_b64 s[78:79], -1")
    e(f"  s_mov_b32 s72, {WS_MG}")
    e(f"  s_mov_b32 s73, {WS_OG}")
    e(f"  s_mov_b32 s74, {B:#x}")
    e(f"  s_mov_b32 s84, {64 if OPT['f1st'] else OPT['spec']}")
    e("T_P:")
    e("  s_mov_b64 exec, s[76:77]")
    e("  s_cbranch_execz T_P1")
    e(f"  buffer_load_dwordx3 v[32:34], v9, s[{SWS}:{SWS+3}], s72 offen sc1")
    e("T_P1:")
    e("  s_or_b64 s[80:81], s[76:77], s[78:79]")
    e("  s_bcnt1_i32_b64 s75, s[80:81]")
    e("  s_andn2_b64 s[80:81], s[78:79], s[76:77]")
    e(f"  s_cmp_le_u32 s75, s84")
    e(f"  s_mov_b32 s84, {OPT['spec']}")
    e("  s_cselect_b64 exec, s[78:79], s[80:81]")
    e("  s_cbranch_execz T_P2")
    for i in range(4):
        e(f"  buffer_load_dwordx4 v[{16+4*i}:{19+4*i}], v10, s[{SWS}:{SWS+3}], s73 offen offset:{64*i} sc1")
    e("T_P2:")
    e("  s_mov_b64 exec, -1")
    if OPT["pw"] == 1:
        e("  s_waitcnt vmcnt(0)")
    else:
        e(f"  s_cmp_le_u32 s75, {OPT['spec']}")
        e("  s_cbranch_scc1 T_P3")
        e("  s_waitcnt vmcnt(0)")
        e("T_P3:")
        e(f"  s_waitcnt vmcnt({OPT['pw']})")
    if OPT["psl2"]: e(f"  s_sleep {OPT['psl2']}")
    e("  v_cmp_ne_u32 s[76:77], s26, v34")
    e("  v_cmp_ne_u32 s[78:79], s26, v17")
    for r in [19, 21, 23, 25, 27, 29, 31]:
        e(f"  v_cmp_ne_u32 vcc, s26, v{r}")
        e("  s_or_b64 s[78:79], s[78:79], vcc")
    e("  s_or_b64 s[80:81], s[76:77], s[78:79]")
    e("  s_cmp_eq_u64 s[80:81], 0")
    e("  s_cbranch_scc1 T_PD")
    e("  s_sub_u32 s74, s74, 1")
    e("  s_cmp_lg_u32 s74, 0")
    e("  s_cbranch_scc1 T_P")
    e("T_PD:")
    if not OPT["nd"]:
        e("  s_waitcnt vmcnt(0)")
    tl6(4)
    if OPT["nd"]:
        e("  v_mov_b32 v35, v32")
        e("  v_mov_b32 v46, v32")
        e("  v_mov_b32 v47, v33")
        red_steps([35], [36], "v_max_f32")
        e("  v_sub_f32 v46, v46, v35")
        e(f"  v_mul_f32 v46, s{SC}, v46")
        e("  v_exp_f32 v46, v46")
        e("  s_nop 0")
        e("  v_mul_f32 v47, v47, v46")
        vals = list(range(48, 56))
        for i, r in enumerate(vals):
            e(f"  v_mul_f32 v{r}, v{16+2*i}, v46")
        red_steps([47] + vals, list(range(36, 45)), "v_add_f32")
        e("  v_rcp_f32 v47, v47")
        e("  s_nop 0")
        for r in vals:
            e(f"  v_mul_f32 v{r}, v{r}, v47")
        for i in range(4):
            e(f"  v_cvt_pk_bf16_f32 v{36+i}, v{48+2*i}, v{49+2*i}")
    else:
        e("  v_mov_b32 v35, v32")
        red_steps([35], [36], "v_max_f32")
        e("  v_sub_f32 v32, v32, v35")
        e(f"  v_mul_f32 v32, s{SC}, v32")
        e("  v_exp_f32 v32, v32")
        e("  s_nop 0")
        e("  v_mul_f32 v33, v33, v32")
        vals = [16, 18, 20, 22, 24, 26, 28, 30]
        for r in vals:
            e(f"  v_mul_f32 v{r}, v{r}, v32")
        red_steps([33] + vals, list(range(36, 45)), "v_add_f32")
        e("  v_rcp_f32 v33, v33")
        e("  s_nop 0")
        for r in vals:
            e(f"  v_mul_f32 v{r}, v{r}, v33")
        for i in range(4):
            e(f"  v_cvt_pk_bf16_f32 v{36+i}, v{16+4*i}, v{18+4*i}")
    e("  s_lshl_b32 s75, s3, 6")
    e("  v_lshl_add_u32 v8, v5, 4, s75")
    e("  s_mov_b64 exec, 0xf")
    e(f"  ds_write_b128 v8, v[36:39] offset:{L_VEC}")
    e("  s_mov_b64 exec, -1")
    e("  s_waitcnt lgkmcnt(0)")
    e("  s_barrier")
    if not OPT["jd"]:
        e("  s_cmp_%s_u32 s3, 4" % ("lt" if OPT["pf"] else "ge"))
        e("  s_cbranch_scc1 T_F")
    for ks in range(4):
        e(f"  ds_read_b128 v[{132+4*ks}:{135+4*ks}], v11 offset:{L_VEC + ks*64}")
    e("  s_waitcnt lgkmcnt(0)")
    for ks in range(4):
        c = "0" if ks == 0 else "v[148:151]"
        e(f"  v_mfma_f32_16x16x32_bf16 v[148:151], v[{132+4*ks}:{135+4*ks}], v[{112+4*ks}:{115+4*ks}], {c}")
    e("  v_cmp_eq_u32 vcc, 1, v12")
    e("  v_mov_b32 v153, s26")
    e("  s_nop 7")
    e("  s_nop 7")
    e("  v_cndmask_b32 v152, v148, v149, vcc")
    e("  s_mov_b64 exec, 0xffffffff")
    e(f"  buffer_store_dwordx2 v[152:153], v13, s[{SWS}:{SWS+3}], 0 offen sc1")
    e("  s_mov_b64 exec, -1")
    tl6(5)
    e("T_F:")
    e("  s_cmp_ge_u32 s2, 8")
    e("  s_cbranch_scc1 K_END")
    e("T_FIN:")
    e("  s_lshr_b32 s75, s3, 2")
    e("  s_lshl_b32 s75, s75, 9")
    e("  s_and_b32 s76, s2, 7")
    e("  s_lshl_b32 s76, s76, 6")
    e("  s_add_u32 s75, s75, s76")
    e("  s_and_b32 s76, s3, 3")
    e("  s_lshl_b32 s76, s76, 4")
    e("  s_add_u32 s75, s75, s76")
    e("  v_lshlrev_b32 v7, 1, v5")
    e("  v_add_u32 v7, s75, v7")
    e("  v_lshlrev_b32 v8, 1, v7")
    e(f"  buffer_load_dword v46, v8, s[{SX}:{SX+3}], 0 offen")
    e(f"  buffer_load_dword v47, v8, s[{SX}:{SX+3}], 0 offen offset:16")
    e("  v_lshlrev_b32 v10, 3, v7")
    e("  v_lshl_add_u32 v10, v6, 13, v10")
    def fpoll(lbl, base, m1, dst, R=16):
        if not OPT["nd"]: R = 16
        e("  s_not_b32 s75, s26")
        for r in range(R, R+16):
            e(f"  v_mov_b32 v{r}, " + ("s75" if (r & 1) else "0"))
        e("  s_mov_b64 s[76:77], -1")
        e(f"  s_mov_b32 s78, {m1 & 0xffffffff:#x}")
        e(f"  s_mov_b32 s79, {m1 >> 32:#x}")
        e(f"  s_mov_b64 s[82:83], s[78:79]")
        e(f"  s_mov_b32 s72, {base}")
        e(f"  s_mov_b32 s73, {base + 131072}")
        e(f"  s_mov_b32 s74, {B:#x}")
        e(f"{lbl}:")
        e("  s_mov_b64 exec, s[76:77]")
        e(f"  s_cbranch_execz {lbl}1")
        for i in range(2):
            e(f"  buffer_load_dwordx4 v[{R+4*i}:{R+3+4*i}], v10, s[{SWS}:{SWS+3}], s72 offen offset:{64*i} sc1")
        e(f"{lbl}1:")
        e("  s_mov_b64 exec, s[78:79]")
        e(f"  s_cbranch_execz {lbl}2")
        for i in range(2):
            e(f"  buffer_load_dwordx4 v[{R+8+4*i}:{R+11+4*i}], v10, s[{SWS}:{SWS+3}], s73 offen offset:{64*i} sc1")
        e(f"{lbl}2:")
        e("  s_mov_b64 exec, -1")
        e(f"  s_waitcnt vmcnt({0 if OPT['fw2']==1 else OPT['fw2']})")
        if OPT["fsl2"]: e(f"  s_sleep {OPT['fsl2']}")
        e(f"  v_cmp_ne_u32 s[76:77], s26, v{R+1}")
        for r in [R+3, R+5, R+7]:
            e(f"  v_cmp_ne_u32 vcc, s26, v{r}")
            e("  s_or_b64 s[76:77], s[76:77], vcc")
        e(f"  v_cmp_ne_u32 s[78:79], s26, v{R+9}")
        for r in [R+11, R+13, R+15]:
            e(f"  v_cmp_ne_u32 vcc, s26, v{r}")
            e("  s_or_b64 s[78:79], s[78:79], vcc")
        e("  s_and_b64 s[78:79], s[78:79], s[82:83]")
        e("  s_or_b64 s[80:81], s[76:77], s[78:79]")
        e("  s_cmp_eq_u64 s[80:81], 0")
        e(f"  s_cbranch_scc1 {lbl}D")
        e("  s_sub_u32 s74, s74, 1")
        e("  s_cmp_lg_u32 s74, 0")
        e(f"  s_cbranch_scc1 {lbl}")
        e(f"{lbl}D:")
        if not OPT["nd"]:
            e("  s_waitcnt vmcnt(0)")
        for k in range(4):
            e(f"  v_add_f32 v{dst+k}, v{R+2*k}, v{R+8+2*k}")
        red_steps(list(range(dst, dst+4)), list(range(36, 40)), "v_add_f32")
        for k in range(4):
            round_bf16(dst+k, dst+k)
    def fpoll_mg_g():
        e("  s_not_b32 s75, s26")
        for r in range(160, 192):
            e(f"  v_mov_b32 v{r}, " + ("s75" if (r & 1) else "0"))
        e("  s_mov_b64 s[76:77], -1")
        e("  s_mov_b32 s78, -1")
        e("  s_mov_b32 s79, 0xffff")
        e("  s_mov_b64 s[82:83], s[78:79]")
        e("  s_mov_b64 s[86:87], -1")
        e("  s_mov_b64 s[88:89], -1")
        e(f"  s_mov_b32 s72, {WS_GG}")
        e(f"  s_mov_b32 s73, {WS_GG + 131072}")
        e(f"  s_mov_b32 s84, {WS_SG}")
        e(f"  s_mov_b32 s85, {WS_SG + 131072}")
        e(f"  s_mov_b32 s74, {B:#x}")
        def iss(lbl, mask, so, R):
            e(f"  s_mov_b64 exec, s[{mask}:{mask+1}]")
            e(f"  s_cbranch_execz {lbl}")
            for i in range(2):
                e(f"  buffer_load_dwordx4 v[{R+4*i}:{R+3+4*i}], v10, s[{SWS}:{SWS+3}], s{so} offen offset:{64*i} sc1")
            e(f"{lbl}:")
        def chk(mask, R):
            e(f"  v_cmp_ne_u32 s[{mask}:{mask+1}], s26, v{R+1}")
            for r in [R+3, R+5, R+7]:
                e(f"  v_cmp_ne_u32 vcc, s26, v{r}")
                e(f"  s_or_b64 s[{mask}:{mask+1}], s[{mask}:{mask+1}], vcc")
        e("T_M:")
        iss("T_M1", 76, 72, 160)
        iss("T_M2", 78, 73, 168)
        iss("T_M3", 86, 84, 176)
        iss("T_M4", 88, 85, 184)
        e("  s_mov_b64 exec, -1")
        e("  s_waitcnt vmcnt(0)")
        if OPT["fsl2"]: e(f"  s_sleep {OPT['fsl2']}")
        chk(76, 160)
        chk(78, 168)
        chk(86, 176)
        chk(88, 184)
        e("  s_and_b64 s[78:79], s[78:79], s[82:83]")
        e("  s_or_b64 s[80:81], s[76:77], s[78:79]")
        e("  s_cmp_eq_u64 s[80:81], 0")
        e("  s_cbranch_scc1 T_MD")
        e("  s_sub_u32 s74, s74, 1")
        e("  s_cmp_lg_u32 s74, 0")
        e("  s_cbranch_scc1 T_M")
        e("T_MD:")
        iss("T_M5", 86, 84, 176)
        iss("T_M6", 88, 85, 184)
        e("  s_mov_b64 exec, -1")
        for k in range(4):
            e(f"  v_add_f32 v{40+k}, v{160+2*k}, v{168+2*k}")
        red_steps(list(range(40, 44)), list(range(36, 40)), "v_add_f32")
        for k in range(4):
            round_bf16(40+k, 40+k)
    def fpoll_mg_s():
        def iss(lbl, mask, so, R):
            e(f"  s_mov_b64 exec, s[{mask}:{mask+1}]")
            e(f"  s_cbranch_execz {lbl}")
            for i in range(2):
                e(f"  buffer_load_dwordx4 v[{R+4*i}:{R+3+4*i}], v10, s[{SWS}:{SWS+3}], s{so} offen offset:{64*i} sc1")
            e(f"{lbl}:")
        def chk(mask, R):
            e(f"  v_cmp_ne_u32 s[{mask}:{mask+1}], s26, v{R+1}")
            for r in [R+3, R+5, R+7]:
                e(f"  v_cmp_ne_u32 vcc, s26, v{r}")
                e(f"  s_or_b64 s[{mask}:{mask+1}], s[{mask}:{mask+1}], vcc")
        e(f"  s_mov_b32 s74, {B:#x}")
        e("  s_branch T_N0")
        e("T_N:")
        iss("T_N3", 86, 84, 176)
        iss("T_N4", 88, 85, 184)
        e("  s_mov_b64 exec, -1")
        e("T_N0:")
        e("  s_waitcnt vmcnt(0)")
        chk(86, 176)
        chk(88, 184)
        e("  s_or_b64 s[80:81], s[86:87], s[88:89]")
        e("  s_cmp_eq_u64 s[80:81], 0")
        e("  s_cbranch_scc1 T_ND")
        if OPT["fsl2"]: e(f"  s_sleep {OPT['fsl2']}")
        e("  s_sub_u32 s74, s74, 1")
        e("  s_cmp_lg_u32 s74, 0")
        e("  s_cbranch_scc1 T_N")
        e("T_ND:")
        for k in range(4):
            e(f"  v_add_f32 v{48+k}, v{176+2*k}, v{184+2*k}")
        red_steps(list(range(48, 52)), list(range(36, 40)), "v_add_f32")
        for k in range(4):
            round_bf16(48+k, 48+k)
    if OPT["mg"]:
        fpoll_mg_g()
    else:
        fpoll("T_G", WS_GG, (1 << 48) - 1, 40, 160)
    for k in range(4):
        e(f"  v_mul_f32 v{36+k}, 0xbfb8aa3b, v{40+k}")
    for k in range(4):
        e(f"  v_exp_f32 v{36+k}, v{36+k}")
    e("  s_nop 0")
    for k in range(4):
        e(f"  v_add_f32 v{36+k}, 1.0, v{36+k}")
    for k in range(4):
        e(f"  v_rcp_f32 v{36+k}, v{36+k}")
    e("  s_nop 0")
    for k in range(4):
        e(f"  v_mul_f32 v{40+k}, v{36+k}, v{40+k}")
    for k in range(4):
        round_bf16(40+k, 40+k)
    if OPT["mg"]:
        fpoll_mg_s()
    else:
        fpoll("T_S", WS_SG, (1 << 64) - 1, 48, 176)
    tl6(6)
    for k in range(4):
        e(f"  v_mul_f32 v{48+k}, v{48+k}, v{40+k}")
    for k in range(4):
        round_bf16(48+k, 48+k)
    for k in range(2):
        e(f"  v_lshlrev_b32 v36, 16, v{46+k}")
        e(f"  v_and_b32 v37, 0xffff0000, v{46+k}")
        e(f"  v_add_f32 v{48+2*k}, v{48+2*k}, v36")
        e(f"  v_add_f32 v{49+2*k}, v{49+2*k}, v37")
        e(f"  v_cvt_pk_bf16_f32 v{48+2*k}, v{48+2*k}, v{49+2*k}")
    e("  s_mov_b64 exec, 0xf")
    e(f"  buffer_store_dword v48, v8, s[{SOUT}:{SOUT+3}], 0 offen")
    e(f"  buffer_store_dword v50, v8, s[{SOUT}:{SOUT+3}], 0 offen offset:16")
    e("  s_or_b32 s75, s2, s3")
    e("  s_cmp_lg_u32 s75, 0")
    e("  s_cbranch_scc1 K_END")
    e("  s_mov_b64 exec, 1")
    e(f"  v_mov_b32 v5, {WS_EP}")
    e("  v_mov_b32 v6, s26")
    e(f"  buffer_store_dword v6, v5, s[{SWS}:{SWS+3}], 0 offen")

def gen():
    nt = OPT["nt"]
    BS = 17 if OPT["ilv"] else 13
    POL = dict(k="" if OPT["kpl"] else nt, v="" if OPT["vpl"] else nt)
    name = NAME + "_kernel"
    e(".text")
    e(f".globl {name}")
    e(".p2align 8")
    e(f".type {name},@function")
    e(f"{name}:")
    KA, VA, KB, VB = 16, 48, 80, 112
    ACC = 144
    QF = 176
    ST = 192
    PF = 200
    TR = 204
    M_, L_, T0, T1, AL, MC = 236, 237, 238, 239, 240, 241
    VKOFF, VVOFF = 242, 243
    WO = 244
    W2 = 252
    e("  s_cmp_ge_u32 s2, 256")
    e("  s_cbranch_scc1 K_END2" if OPT["prof"] else "  s_cbranch_scc1 K_END")
    if OPT["xm"]:
        e(f"  s_xor_b32 s2, s2, {OPT['xm']}")
    if OPT["xs"]:
        import random
        rnd = random.Random(OPT["xs"])
        bits = (*range(6), *range(6), 6, 7)
        def good(masks):
            steps = list(zip(bits, masks))
            def one(d):
                for bit, mask in reversed(steps):
                    if d >> bit & 1: d ^= mask
                return d % 8 == 0
            apart = [8 << k for k in range(5)]
            return not any(map(one, apart)) and any(map(one, range(1, 8)))
        while True:
            masks = [rnd.randrange(64) & ~(1 << b) for b in bits]
            if all(masks) and good(masks): break
        for b, m in zip(bits, masks):
            e(f"  s_bitcmp1_b32 s2, {b}")
            e(f"  s_cselect_b32 s3, {m}, 0")
            e("  s_xor_b32 s2, s2, s3")
    e("  s_load_dwordx16 s[4:19], s[0:1], 0")
    e("  s_load_dwordx2 s[24:25], s[0:1], 80")
    e("  v_and_b32 v1, 63, v0")
    e("  v_lshrrev_b32 v2, 6, v0")
    e("  v_and_b32 v3, 15, v1")
    e("  v_lshrrev_b32 v4, 4, v1")
    e("  v_mov_b32 v248, 0")
    e("  v_readfirstlane_b32 s3, v2")
    def derive():
        e(f"  s_and_b32 s{SG}, s2, 7")
        e(f"  s_lshr_b32 s{SR}, s2, 3")
        e(f"  s_and_b32 s{SNO}, s{SR}, 7")
        e(f"  s_lshl_b32 s{SCG}, s{SG}, 5")
        e(f"  s_add_u32 s{SCG}, s{SCG}, s{SR}")
        if OPT["cgx"]:
            e(f"  s_xor_b32 s{SCG}, s{SCG}, {OPT['cgx']}")
        e(f"  s_lshr_b32 s{SHC}, s{SR}, 3")
        e(f"  s_lshl_b32 s{SHC}, s{SHC}, 6")
        e(f"  s_lshl_b32 s74, s{SG}, 3")
        e(f"  s_add_u32 s{SHC}, s{SHC}, s74")
        e(f"  s_add_u32 s{SHC}, s{SHC}, s{SNO}")
        e(f"  s_lshr_b32 s{SB}, s{SR}, 4")
        e(f"  s_and_b32 s{SSPL}, s{SR}, 15")
        e(f"  s_and_b32 s{SNC}, s2, 7")
        e(f"  s_lshr_b32 s{SHEAD}, s{SR}, 3")
        e(f"  s_lshl_b32 s74, s{SG}, 2")
        e(f"  s_add_u32 s{SHEAD}, s{SHEAD}, s74")
        if OPT["map"]:
            e(f"  s_lshr_b32 s{SB}, s2, 7")
            e(f"  s_lshr_b32 s{SG}, s2, 4")
            e(f"  s_and_b32 s{SG}, s{SG}, 7")
            e(f"  s_and_b32 s{SSPL}, s2, 15")
        if OPT["rg"]:
            L = OPT["rg"]; W = 256 >> L
            if OPT["rm"]:
                e(f"  s_and_b32 s75, s2, {(1<<L)-1}")
                e(f"  s_lshr_b32 s76, s2, {L}")
            else:
                e(f"  s_lshr_b32 s75, s2, {8-L}")
                e(f"  s_and_b32 s76, s2, {W-1}")
            e(f"  s_lshr_b32 s74, s75, {L-4}")
            e(f"  s_lshr_b32 s{SB}, s74, 3")
            e(f"  s_and_b32 s{SG}, s74, 7")
            e(f"  s_and_b32 s77, s75, {(1<<(L-4))-1}")
            e(f"  s_lshl_b32 s{SSPL}, s77, {8-L}")
            e(f"  s_add_u32 s{SSPL}, s{SSPL}, s76")
        e(f"  s_lshl_b32 s93, s{SB}, 3")
        e(f"  s_add_u32 s93, s93, s{SG}")
        e(f"  s_mul_i32 s93, s93, {OPT['nsub']}")
        e(f"  s_and_b32 s74, s3, {OPT['nsub']-1}")
        e(f"  s_add_u32 s93, s93, s74")
        e(f"  s_lshl_b32 s93, s93, 8")
        e(f"  s_add_u32 s93, s93, {WS_PC}")
        e(f"  s_mul_i32 s92, s74, {(1024-16*OPT['ns'])//OPT['nsub']}")
        e(f"  s_add_u32 s92, s92, {16*OPT['ns']}")
        e(f"  s_mul_i32 s94, s{SSPL}, {OPT['ns']}")
        if OPT["il2"]:
            G = 1 << OPT["il2"]
            e(f"  s_lshr_b32 s94, s{SSPL}, {OPT['il2']}")
            e(f"  s_lshl_b32 s94, s94, {OPT['il2']+6}")
            e(f"  s_and_b32 s74, s{SSPL}, {G-1}")
            e(f"  s_add_u32 s94, s94, s74")
        e("  s_mov_b32 s95, 0")
        if OPT["rg"]:
            L = OPT["rg"]; W = 256 >> L
            e(f"  s_lshr_b32 s94, s{SSPL}, {8-L}")
            e(f"  s_lshl_b32 s94, s94, {14-L}")
            e(f"  s_and_b32 s76, s{SSPL}, {W-1}")
            e(f"  s_lshl_b32 s76, s76, {OPT['bs4']}")
            e("  s_add_u32 s94, s94, s76")
            if OPT["rm"]:
                e(f"  s_and_b32 s75, s2, {(1<<L)-1}")
            else:
                e(f"  s_lshr_b32 s75, s2, {8-L}")
            e(f"  s_mul_i32 s95, s75, {OPT['rr']}")
            if OPT["rq"]:
                e("  s_lshr_b32 s76, s75, 2")
                e(f"  s_mul_i32 s76, s76, {OPT['rq']}")
                e("  s_add_u32 s95, s95, s76")
            if OPT["rz"]:
                e("  s_lshr_b32 s76, s75, 4")
                e(f"  s_mul_i32 s76, s76, {OPT['rz']}")
                e("  s_add_u32 s95, s95, s76")
        if OPT["bm"] & 1:
            e(f"  s_mul_i32 s95, s{SSPL}, {OPT['ra']}")
            e(f"  s_lshr_b32 s74, s2, 4")
            e(f"  s_mul_i32 s74, s74, {OPT['rb']}")
            e(f"  s_add_u32 s95, s95, s74")
    def mapidx(src):
        G = OPT["il2"]
        if OPT["rg"]:
            B4 = OPT["bs4"]
            e(f"  s_lshr_b32 s75, s{src}, {B4}")
            e("  s_add_u32 s75, s75, s95")
            e(f"  s_and_b32 s75, s75, {(64>>B4)-1}")
            e(f"  s_lshl_b32 s75, s75, {8-OPT['rg']+B4}")
            e(f"  s_and_b32 s76, s{src}, {(1<<B4)-1}")
            e("  s_add_u32 s75, s75, s76")
            e(f"  s_add_u32 s{IDXA}, s75, s94")
            return
        if OPT["bm"] & 2:
            e(f"  s_and_b32 s75, s{src}, 7")
            e(f"  s_lshl_b32 s75, s75, 3")
            e(f"  s_lshr_b32 s76, s{src}, 3")
            e(f"  s_or_b32 s75, s75, s76")
            src = 75
        if OPT["bm"] & 1:
            e(f"  s_add_u32 s75, s{src}, s95")
            e(f"  s_and_b32 s75, s75, 63")
            src = 75
        if G:
            e(f"  s_lshl_b32 s75, s{src}, {G}")
            src = 75
        e(f"  s_add_u32 s{IDXA}, s{src}, s94")
    derive()
    e(f"  s_lshl_b32 s74, s{SB}, 3")
    e(f"  s_add_u32 s74, s74, s{SG}")
    e("  s_lshl_b32 s74, s74, 23")

    e(f"  s_mov_b32 s{SC}, 0x3e0293ee")
    e(f"  s_mov_b32 s{SP0}, 0x05040100")
    e(f"  s_mov_b32 s{SP1}, 0x07060302")
    e("  s_lshl_b32 s75, s3, 1")
    e(f"  s_sub_u32 s{IDXA}, s75, 2")
    e(f"  s_sub_u32 s{IDXB}, s75, 1")
    if OPT["nbuf"] == 1:
        mapidx(3)
        if OPT["nw"] < 8:
            e(f"  s_cmp_ge_u32 s3, {OPT['nw']}")
            e(f"  s_cselect_b32 s{IDXA}, 64, s{IDXA}")
    e("  v_and_b32 v5, 3, v3")
    e("  v_lshrrev_b32 v6, 2, v3")
    e("  v_lshl_add_u32 v5, v5, 2, v6")
    e("  v_lshlrev_b32 v5, 8, v5")
    e(f"  v_lshl_add_u32 v{VKOFF}, v4, 4, v5")
    e(f"  v_lshlrev_b32 v{VVOFF}, 4, v1")
    if OPT["kx"]:
        e(f"  v_lshlrev_b32 v{VKOFF}, 4, v1")
    e("  s_waitcnt lgkmcnt(0)")
    if not OPT["rs"]:
        e(f"  s_mov_b32 s75, {WS_EP}")
        e("  s_load_dword s26, s[24:25], s75")
    srd(SX, 4, 5, 2048)
    srd(SWQ, 10, 11, 512 * 4096 * 2)
    srd(SWS, 24, 25, WS_SIZE)
    e(f"  s_add_u32 s{SK}, s6, s74")
    e(f"  s_addc_u32 s{SK+1}, s7, 0")
    e(f"  s_and_b32 s{SK+1}, s{SK+1}, 0xffff")
    if OPT['ilv']:
        e(f"  s_lshl_b32 s75, s{SSPL}, 13")
        e(f"  s_sub_u32 s{SK+2}, {8<<20}, s75")
    else:
        e(f"  s_mov_b32 s{SK+2}, {8<<20}")
    e(f"  s_mov_b32 s{SK+3}, 0x00020000")
    e(f"  s_add_u32 s{SV}, s8, s74")
    e(f"  s_addc_u32 s{SV+1}, s9, 0")
    e(f"  s_and_b32 s{SV+1}, s{SV+1}, 0xffff")
    e(f"  s_mov_b32 s{SV+2}, s{SK+2}")
    e(f"  s_mov_b32 s{SV+3}, 0x00020000")
    e(f"  s_mov_b32 s71, {1 << OPT['ps']}" if OPT["ps"] else "  s_movk_i32 s71, 4096")
    e("  s_and_b32 s75, s2, 0x78")
    e("  s_or_b32 s75, s75, s3")
    e("  s_cmp_lg_u32 s75, 0")
    e("  s_cbranch_scc1 K_NOINIT")
    e("  s_lshr_b32 s75, s2, 7")
    e("  s_lshl_b32 s75, s75, 3")
    e("  s_and_b32 s76, s2, 7")
    e("  s_add_u32 s75, s75, s76")
    e(f"  s_mul_i32 s75, s75, {OPT['nsub']*256}")
    e(f"  s_add_u32 s75, s75, {WS_PC}")
    e("  v_mov_b32 v5, 0")
    e("  v_lshlrev_b32 v6, 8, v1")
    e(f"  s_mov_b64 exec, {(1<<OPT['nsub'])-1}")
    e(f"  buffer_store_dword v5, v6, s[{SWS}:{SWS+3}], s75 offen sc1")
    e("  s_mov_b64 exec, -1")
    e("K_NOINIT:")
    if OPT["warm"]:
        e(f"  s_lshl_b32 s75, s{SCG}, 6")
        e(f"  s_add_u32 s75, s75, {WS_QG}")
        e("  s_load_dword s98, s[24:25], s75")
        e("  s_add_u32 s75, s75, 16384")
        e("  s_load_dword s99, s[24:25], s75")
    stamp(0)
    if OPT["prof"] >= 3:
        e("  v_mov_b32 v251, 0")
        e("  s_mov_b32 m0, 0")
        tl(OPT["prof"])
    F1 = max(OPT["f1"], OPT["pre0"])
    def kchunk_l(KR, vo):
        r=[]
        if OPT["kx"]:
            for j in range(8):
                so = "0" if j < 4 else "s71"
                r.append(f"  buffer_load_dwordx4 v[{KR+4*j}:{KR+4*j+3}], v{vo}, s[{SK}:{SK+3}], {so} offen offset:{(j&3)*1024}{nt}")
            return r
        for t in range(2):
            for i in range(4):
                so = "0" if t == 0 else "s71"
                r.append(f"  buffer_load_dwordx4 v[{KR+16*t+4*i}:{KR+16*t+4*i+3}], v{vo}, s[{SK}:{SK+3}], {so} offen offset:{i*64}{POL['k']}")
        return r
    def vchunk_l(VR, vo):
        r=[]
        for j in range(8):
            so = "0" if j < 4 else "s71"
            r.append(f"  buffer_load_dwordx4 v[{VR+4*j}:{VR+4*j+3}], v{vo}, s[{SV}:{SV+3}], {so} offen offset:{(j&3)*1024}{POL['v']}")
        return r
    def kchunk(KR, vo):
        for l in kchunk_l(KR, vo): e(l)
    def vchunk(VR, vo):
        for l in vchunk_l(VR, vo): e(l)
    def blkoff(sidx):
        if OPT["rot"]:
            e(f"  s_add_u32 s75, s{sidx}, s73")
            e("  s_and_b32 s75, s75, 63")
            e(f"  s_lshl_b32 s75, s75, {BS}")
            e(f"  s_cmp_lt_u32 s{sidx}, 64")
            e("  s_cselect_b32 s75, s75, 0x100000")
        elif OPT["ps"]:
            a = OPT["ps"] - 12
            e(f"  s_lshr_b32 s75, s{sidx}, {a}")
            e(f"  s_lshl_b32 s75, s75, {OPT['ps']+1}")
            e(f"  s_and_b32 s76, s{sidx}, {(1<<a)-1}")
            e("  s_lshl_b32 s76, s76, 12")
            e("  s_add_u32 s75, s75, s76")
        else:
            e(f"  s_lshl_b32 s75, s{sidx}, {BS}")
    def loads(KR, VR, sidx):
        blkoff(sidx)
        e(f"  v_add_u32 v5, s75, v{VKOFF}")
        e(f"  v_add_u32 v6, s75, v{VVOFF}")
        kchunk(KR, 5)
        vchunk(VR, 6)
    def wo_loads():
        e("  v_lshlrev_b32 v14, 10, v12")
        e("  v_lshl_add_u32 v14, v13, 4, v14")
        if not OPT["mf"]:
            e(f"  s_lshl_b32 s75, s{SNO}, 7")
            e("  v_add_u32 v15, s75, v14")
            e(f"  s_lshl_b32 s75, s{SHEAD}, 17")
            e("  v_add_u32 v15, s75, v15")
            e(f"  buffer_load_dwordx4 v[{WO}:{WO+3}], v15, s[{SWO}:{SWO+3}], 0 offen")
            e("  v_add_u32 v15, 0x10000, v15")
            e(f"  buffer_load_dwordx4 v[{WO+4}:{WO+7}], v15, s[{SWO}:{SWO+3}], 0 offen")
        else:
            lab = f"K_WOS{len(out)}"
            e("  s_cmp_ge_u32 s3, 4")
            e(f"  s_cbranch_scc1 {lab}")
            e("  v_lshlrev_b32 v15, 13, v4")
            e("  v_lshl_add_u32 v15, v3, 2, v15")
            e(f"  s_lshl_b32 s75, s{SHEAD}, 17")
            e(f"  s_lshl_b32 s76, s{SNO}, 7")
            e("  s_add_u32 s75, s75, s76")
            e("  s_lshr_b32 s76, s3, 1")
            e("  s_lshl_b32 s76, s76, 6")
            e("  s_add_u32 s75, s75, s76")
            for ks in range(4):
                for jh in range(2):
                    for j in range(4):
                        e(f"  buffer_load_dword v{80+ks*8+jh*4+j}, v15, s[{SWO}:{SWO+3}], s75 offen offset:{j*1024}")
                    if not (ks == 3 and jh == 1):
                        e(f"  s_add_u32 s75, s75, {4096 if jh == 0 else 32768-4096}")
            e(f"{lab}:")
        e("  s_lshr_b32 s75, s2, 3")
        e("  s_lshl_b32 s75, s75, 16")
        e("  v_add_u32 v15, s75, v14")
        e(f"  s_lshl_b32 s75, s{SNC}, 7")
        e("  v_add_u32 v15, s75, v15")
        e(f"  buffer_load_dwordx4 v[{W2}:{W2+3}], v15, s[{SW2}:{SW2+3}], 0 offen")

    X = 144
    def ln_code():
        for b in range(2):
            for c in range(4):
                e(f"  v_lshlrev_b32 v{X+8*b+2*c}, 16, v{204+4*b+c}")
                e(f"  v_and_b32 v{X+1+8*b+2*c}, 0xffff0000, v{204+4*b+c}")
        for b in range(2):
            t = 160 + 4 * b
            e(f"  v_pk_add_f32 v[{t}:{t+1}], v[{X+8*b}:{X+8*b+1}], v[{X+8*b+2}:{X+8*b+3}]")
            e(f"  v_pk_add_f32 v[{t+2}:{t+3}], v[{X+8*b+4}:{X+8*b+5}], v[{X+8*b+6}:{X+8*b+7}]")
        for b in range(2):
            t = 160 + 4 * b
            e(f"  v_pk_add_f32 v[{t}:{t+1}], v[{t}:{t+1}], v[{t+2}:{t+3}]")
        e("  v_add_f32 v160, v160, v161")
        e("  v_add_f32 v161, v164, v165")
        wave_sum([160, 161], [162, 163])
        e("  v_mul_f32 v160, 0x3b000000, v160")
        e("  v_mul_f32 v161, 0x3b000000, v161")
        bsel = [" op_sel_hi:[1,0]", " op_sel:[0,1] op_sel_hi:[1,1]"]
        for b in range(2):
            for c in range(4):
                t = 168 + 8 * b + 2 * c
                e(f"  v_pk_add_f32 v[{t}:{t+1}], v[{X+8*b+2*c}:{X+8*b+2*c+1}], v[160:161]{bsel[b]} neg_lo:[0,1] neg_hi:[0,1]")
        for b in range(2):
            t = 168 + 8 * b
            e(f"  v_pk_mul_f32 v[{164+2*b}:{165+2*b}], v[{t}:{t+1}], v[{t}:{t+1}]")
        for c in range(1, 4):
            for b in range(2):
                t = 168 + 8 * b + 2 * c
                e(f"  v_pk_fma_f32 v[{164+2*b}:{165+2*b}], v[{t}:{t+1}], v[{t}:{t+1}], v[{164+2*b}:{165+2*b}]")
        e("  v_add_f32 v164, v164, v165")
        e("  v_add_f32 v165, v166, v167")
        wave_sum([164, 165], [162, 163])
        e("  v_mul_f32 v164, 0x3b000000, v164")
        e("  v_mul_f32 v165, 0x3b000000, v165")
        for b in range(2):
            round_bf16(164 + b, 164 + b)
            e(f"  v_add_f32 v{164+b}, 0x3727c5ac, v{164+b}")
            round_bf16(164 + b, 164 + b)
            e(f"  v_sqrt_f32 v{164+b}, v{164+b}")
            e("  s_nop 0")
            round_bf16(164 + b, 164 + b)
            e(f"  v_rcp_f32 v{164+b}, v{164+b}")
            round_bf16(160 + b, 160 + b)
        for b in range(2):
            for c in range(4):
                r = X + 8 * b + 2 * c
                e(f"  v_pk_add_f32 v[{r}:{r+1}], v[{r}:{r+1}], v[160:161]{bsel[b]} neg_lo:[0,1] neg_hi:[0,1]")
            for c in range(4):
                r = X + 8 * b + 2 * c
                e(f"  v_cvt_pk_bf16_f32 v{168+c}, v{r}, v{r+1}")
            for c in range(4):
                r = X + 8 * b + 2 * c
                e(f"  v_lshlrev_b32 v{r}, 16, v{168+c}")
                e(f"  v_and_b32 v{r+1}, 0xffff0000, v{168+c}")
            for c in range(4):
                r = X + 8 * b + 2 * c
                e(f"  v_pk_mul_f32 v[{r}:{r+1}], v[{r}:{r+1}], v[164:165]{bsel[b]}")
            for c in range(4):
                r = X + 8 * b + 2 * c
                e(f"  v_cvt_pk_bf16_f32 v{168+c}, v{r}, v{r+1}")
            for c in range(4):
                r = X + 8 * b + 2 * c
                e(f"  v_lshlrev_b32 v{r}, 16, v{168+c}")
                e(f"  v_and_b32 v{r+1}, 0xffff0000, v{168+c}")
        e("  v_lshlrev_b32 v5, 5, v1")
        for b in range(2):
            e(f"  ds_write_b128 v5, v[{X+8*b}:{X+8*b+3}] offset:{L_XN + b*2048}")
            e(f"  ds_write_b128 v5, v[{X+8*b+4}:{X+8*b+7}] offset:{L_XN + b*2048 + 16}")
        e("  s_waitcnt lgkmcnt(0)")

    def pk_part(w, xr, acc0, acc1, first):
        e(f"  v_lshlrev_b32 v160, 16, v{w}")
        e(f"  v_and_b32 v161, 0xffff0000, v{w}")
        if first:
            e(f"  v_pk_mul_f32 v[{acc0}:{acc0+1}], v[160:161], v[{xr}:{xr+1}] op_sel_hi:[1,0]")
            e(f"  v_pk_mul_f32 v[{acc1}:{acc1+1}], v[160:161], v[{xr}:{xr+1}] op_sel:[0,1] op_sel_hi:[1,1]")
        else:
            e(f"  v_pk_fma_f32 v[{acc0}:{acc0+1}], v[160:161], v[{xr}:{xr+1}], v[{acc0}:{acc0+1}] op_sel_hi:[1,0,1]")
            e(f"  v_pk_fma_f32 v[{acc1}:{acc1+1}], v[160:161], v[{xr}:{xr+1}], v[{acc1}:{acc1+1}] op_sel:[0,1,0] op_sel_hi:[1,1,1]")
    if OPT["rs"]:
        e("  v_lshrrev_b32 v12, 3, v0")
        e("  v_and_b32 v13, 7, v0")
        blkoff(IDXA)
        e(f"  v_add_u32 v228, s75, v{VKOFF}")
        e(f"  v_add_u32 v229, s75, v{VVOFF}")
        pl = kchunk_l(KA, 228) + vchunk_l(VA, 229)
        e("  s_cmp_ge_u32 s3, 4")
        e("  s_cbranch_scc1 K_FLOOD")
        e("  v_lshlrev_b32 v5, 4, v1")
        e(f"  buffer_load_dwordx4 v[204:207], v5, s[{SX}:{SX+3}], 0 offen")
        e(f"  buffer_load_dwordx4 v[208:211], v5, s[{SX}:{SX+3}], 0 offen offset:1024")
        e("  v_lshrrev_b32 v6, 2, v0")
        e("  v_and_b32 v7, 3, v0")
        e("  v_lshlrev_b32 v8, 13, v6")
        e("  v_lshl_add_u32 v8, v7, 3, v8")
        e(f"  s_lshl_b32 s75, s{SCG}, 5")
        e("  v_add_u32 v8, s75, v8")
        for i in range(8):
            if i:
                e(f"  v_add_u32 v8, 0x80000, v8")
            e(f"  buffer_load_dwordx2 v[{212+2*i}:{213+2*i}], v8, s[{SWQ}:{SWQ+3}], 0 offen")
        e("  s_cmp_lg_u32 s3, 0")
        e("  s_cbranch_scc1 K_NOLI")
        e("  v_mov_b32 v8, 8")
        e("  v_mov_b32 v9, 0")
        e("  v_mov_b32 v10, 8")
        e("  v_mov_b32 v11, 8")
        e(f"  v_mov_b32 v5, {L_CNT}")
        e("  s_mov_b64 exec, 1")
        e("  ds_write_b128 v5, v[8:11]")
        e("  v_mov_b32 v8, 0")
        e("  v_mov_b32 v10, 0")
        e("  v_mov_b32 v11, 0")
        e("  ds_write_b128 v5, v[8:11] offset:16")
        e("  ds_write_b128 v5, v[8:11] offset:32")
        e("  s_mov_b64 exec, -1")
        if OPT["dq"]:
            e("  v_lshlrev_b32 v5, 2, v1")
            e(f"  ds_write_b32 v5, v9 offset:{L_DQ}")
        e("  s_waitcnt lgkmcnt(0)")
        e("K_NOLI:")
        e("  s_barrier")
        e(f"  s_mov_b32 s75, {WS_EP}")
        e("  s_load_dword s26, s[24:25], s75")
        e("  v_lshrrev_b32 v230, 3, v1")
        e("  v_lshlrev_b32 v230, 14, v230")
        e("  v_and_b32 v7, 7, v1")
        e("  v_lshl_add_u32 v230, v7, 3, v230")
        e(f"  s_lshl_b32 s75, s{SCG}, 6")
        e(f"  s_add_u32 s75, s75, {WS_QG}")
        e("  v_add_u32 v230, s75, v230")
        e("  s_mul_i32 s75, s3, 192")
        e("  v_lshlrev_b32 v231, 4, v1")
        e("  v_add_u32 v231, s75, v231")
        e("  s_waitcnt vmcnt(8)")
        tl(4)
        ln_code()
        e("  s_add_u32 s26, s26, 1")
        e("  v_lshrrev_b32 v5, 2, v0")
        e("  v_lshlrev_b32 v5, 2, v5")
        for i in range(8):
            e(f"  ds_read2st64_b32 v[{168+2*i}:{169+2*i}], v5 offset0:{(L_XN + i*256)//256} offset1:{(L_XN + i*256 + 2048)//256}")
        e(f"  v_mov_b32 v7, {L_CNT}")
        e("  v_mov_b32 v8, 1")
        e("  v_lshlrev_b32 v9, 3, v1")
        tl(4)
        e("  s_waitcnt vmcnt(0) lgkmcnt(0)")
        tl(4)
        for i in range(8):
            for c in range(2):
                pk_part(212 + 2 * i + c, 168 + 2 * i, 184 + 2 * c, 188 + 2 * c, i == 0)
        dpp_steps(list(range(184, 192)), ["row_ror:4", "row_ror:8"])
        swap_steps(list(range(184, 192)), list(range(204, 212)))
        e("  s_mov_b64 exec, 0xf")
        e(f"  ds_write_b128 v231, v[184:187] offset:{L_QP}")
        e(f"  ds_write_b128 v231, v[188:191] offset:{L_QP+64}")
        e("  s_mov_b64 exec, 1")
        e("  ds_add_rtn_u32 v6, v7, v8 offset:16")
        e("  s_mov_b64 exec, -1")
        e("  s_waitcnt lgkmcnt(0)")
        tl(4)
        e("  v_readfirstlane_b32 s75, v6")
        e("  s_cmp_lg_u32 s75, 3")
        e("  s_cbranch_scc1 K_QW")
        e("  s_mov_b64 exec, 0xffff")
        for w in range(4):
            e(f"  ds_read_b64 v[{160+2*w}:{161+2*w}], v9 offset:{L_QP + w*192}")
        e("  v_mov_b32 v169, s26")
        e("  s_waitcnt lgkmcnt(0)")
        e("  v_pk_add_f32 v[160:161], v[160:161], v[162:163]")
        e("  v_pk_add_f32 v[164:165], v[164:165], v[166:167]")
        e("  v_pk_add_f32 v[160:161], v[160:161], v[164:165]")
        e("  v_cvt_pk_bf16_f32 v168, v160, v161")
        e(f"  buffer_store_dwordx2 v[168:169], v230, s[{SWS}:{SWS+3}], 0 offen sc1")
        e("  s_mov_b64 exec, 1")
        e("  ds_add_u32 v7, v8 offset:20")
        e("  ds_add_u32 v7, v8 offset:24")
        e("  s_mov_b64 exec, -1")
        e("K_QW:")
        e(f"  s_mov_b32 s74, {OPT['bnd']:#x}")
        e("K_QWL:")
        e("  ds_read_b32 v6, v7 offset:20")
        e("  s_waitcnt lgkmcnt(0)")
        e("  v_readfirstlane_b32 s75, v6")
        e("  s_cmp_ge_u32 s75, 5")
        e("  s_cbranch_scc1 K_QGO")
        e("  s_sub_u32 s74, s74, 1")
        e("  s_cmp_lg_u32 s74, 0")
        e("  s_cbranch_scc1 K_QWL")
        e("K_QGO:")
        tl(4)
        PB = [4, 28, 44, 80]
        prs = [b_ + 2*k for b_ in PB for k in range(8)]
        def poll_addr():
            e(f"  s_lshl_b32 s72, s{SB}, 14")
            e(f"  s_lshl_b32 s76, s{SG}, 11")
            e("  s_add_u32 s72, s72, s76")
            e("  s_lshl_b32 s76, s3, 8")
            e("  s_add_u32 s72, s72, s76")
            e(f"  s_add_u32 s72, s72, {WS_QG}")
            e("  s_lshl_b32 s76, s3, 7")
            e("  v_lshlrev_b32 v6, 2, v1")
            e("  v_add_u32 v6, s76, v6")
        def poll_issue():
            for i, b_ in enumerate(PB):
                e(f"  s_load_dwordx16 s[{b_}:{b_+15}], s[24:25], s72 offset:{64*i} glc")
        def poll_check(ok):
            e("  s_waitcnt lgkmcnt(0)")
            e(f"  s_and_b64 s[76:77], s[{prs[0]}:{prs[0]+1}], s[{prs[1]}:{prs[1]+1}]")
            e(f"  s_or_b64 s[78:79], s[{prs[0]}:{prs[0]+1}], s[{prs[1]}:{prs[1]+1}]")
            for r in prs[2:]:
                e(f"  s_and_b64 s[76:77], s[76:77], s[{r}:{r+1}]")
                e(f"  s_or_b64 s[78:79], s[78:79], s[{r}:{r+1}]")
            e("  s_xor_b32 s77, s77, s26")
            e("  s_xor_b32 s79, s79, s26")
            e("  s_or_b32 s77, s77, s79")
            e("  s_cmp_eq_u32 s77, 0")
            e(f"  s_cbranch_scc1 {ok}")
        def poll_save():
            for k, r in enumerate(prs):
                e(f"  v_writelane_b32 v5, s{r}, {k}")
            e("  s_mov_b64 exec, 0xffffffff")
            e(f"  ds_write_b32 v6, v5 offset:{L_Q}")
            e("  s_mov_b64 exec, 1")
            e("  ds_add_u32 v7, v8 offset:24")
            e("  s_mov_b64 exec, -1")
        poll_addr()
        QP = OPT["qp"]
        PS = 16 // QP
        for k in range(QP):
            poll_issue()
            for c in range(k*PS, (k+1)*PS):
                e(pl[c])
                if c in (7, 15): tl(5)
            poll_check(f"K_QP{k}")
        e("  s_branch K_SPL")
        for k in range(QP):
            e(f"K_QP{k}:")
            poll_save()
            if OPT["prof"] == 4:
                e("  s_mov_b32 m0, 8")
            tl(4)
            for c in range((k+1)*PS, 16):
                e(pl[c])
                if c in (7, 15): tl(5)
            e("  s_branch K_QR")
        e("K_FLOOD:")
        if OPT["pf"] == 2:
            e("  s_barrier")
        if OPT["pf"]:
            srd(SW1, 16, 17, 512 * 1792 * 2)
            srd(SWO, 12, 13, 4096 * 512 * 2)
            srd(SW2, 18, 19, 1792 * 512 * 2)
            e("  v_bfe_u32 v9, v0, 1, 7")
            e("  v_and_b32 v10, 1, v0")
            e("  s_movk_i32 s75, 3584")
            e("  v_mul_lo_u32 v11, v9, s75")
            e("  v_lshl_add_u32 v11, v10, 3, v11")
            e(f"  s_lshl_b32 s75, s{SHC}, 4")
            e("  v_add_u32 v11, s75, v11")
            for i in range(4):
                if i:
                    e(f"  v_add_u32 v11, {128*3584}, v11")
                e(f"  buffer_load_dwordx2 v[{112+2*i}:{113+2*i}], v11, s[{SW1}:{SW1+3}], 0 offen")
        if OPT["pf"] == 1:
            e("  v_lshrrev_b32 v9, 3, v1")
            e("  v_and_b32 v10, 7, v1")
            e("  v_lshlrev_b32 v11, 10, v9")
            e("  v_lshl_add_u32 v11, v10, 4, v11")
            e("  s_lshr_b32 s75, s2, 3")
            e("  s_lshl_b32 s75, s75, 16")
            e("  s_and_b32 s76, s3, 3")
            e("  s_lshl_b32 s76, s76, 14")
            e("  s_add_u32 s75, s75, s76")
            e("  s_and_b32 s76, s2, 7")
            e("  s_lshl_b32 s76, s76, 7")
            e("  s_add_u32 s75, s75, s76")
            e(f"  buffer_load_dwordx4 v[120:123], v11, s[{SW2}:{SW2+3}], s75 offen")
            e("  s_add_u32 s75, s75, 8192")
            e(f"  buffer_load_dwordx4 v[124:127], v11, s[{SW2}:{SW2+3}], s75 offen")
        if OPT["pf"] != 2:
            e("  s_barrier")
        e(f"  s_mov_b32 s75, {WS_EP}")
        e("  s_load_dword s26, s[24:25], s75")
        tl(4)
        NPRE = 6 if OPT["pf"] else 0
        for c in range(16):
            if c >= OPT["nf"]:
                e(f"  s_waitcnt vmcnt({OPT['nf']-1})")
            e(pl[c])
            if c in (7, 15): tl(5)
        e(f"  v_mov_b32 v7, {L_CNT}")
        e("  v_mov_b32 v8, 1")
        e("  s_mov_b64 exec, 1")
        e("  ds_add_u32 v7, v8 offset:20")
        e("  s_mov_b64 exec, -1")
        tl(4)
        if OPT["pf"] == 1:
            e("  v_lshlrev_b32 v15, 13, v4")
            e("  v_lshl_add_u32 v15, v3, 2, v15")
            e(f"  s_lshl_b32 s75, s{SHEAD}, 17")
            e(f"  s_lshl_b32 s76, s{SNO}, 7")
            e("  s_add_u32 s75, s75, s76")
            e("  s_bfe_u32 s76, s3, 0x10001")
            e("  s_lshl_b32 s76, s76, 6")
            e("  s_add_u32 s75, s75, s76")
            for ks in range(4):
                for jh in range(2):
                    for j in range(4):
                        e(f"  buffer_load_dword v{80+ks*8+jh*4+j}, v15, s[{SWO}:{SWO+3}], s75 offen offset:{j*1024}")
                    if not (ks == 3 and jh == 1):
                        e(f"  s_add_u32 s75, s75, {4096 if jh == 0 else 32768-4096}")
        e("  s_waitcnt lgkmcnt(0)")
        e("  s_add_u32 s26, s26, 1")
        if OPT["pf"]:
            e(f"  s_mov_b32 s74, {OPT['bnd']:#x}")
            e("K_XW:")
            e("  ds_read_b32 v6, v7 offset:16")
            e("  s_waitcnt lgkmcnt(0)")
            e("  v_readfirstlane_b32 s75, v6")
            e("  s_cmp_ge_u32 s75, 1")
            e("  s_cbranch_scc1 K_XWD")
            e("  s_sleep 1")
            e("  s_sub_u32 s74, s74, 1")
            e("  s_cmp_lg_u32 s74, 0")
            e("  s_cbranch_scc1 K_XW")
            e("K_XWD:")
            e(f"  s_cmp_ge_u32 s{SHC}, 224")
            e("  s_cbranch_scc1 K_HS")
            e("  v_bfe_u32 v5, v0, 1, 7")
            e("  v_lshlrev_b32 v5, 2, v5")
            for i in range(4):
                e(f"  ds_read2st64_b32 v[{144+2*i}:{145+2*i}], v5 offset0:{(L_XN + i*512)//256} offset1:{(L_XN + i*512 + 2048)//256}")
            e("  s_waitcnt vmcnt(%d) lgkmcnt(0)" % (50 if OPT["pf"] == 1 else 16))
            A = 164
            for i in range(4):
                for c in range(2):
                    pk_part(112 + 2*i + c, 144 + 2*i, A + 2*c, A + 4 + 2*c, i == 0)
            dpp_steps(list(range(A, A+8)), ["quad_perm:[2,3,0,1]", "row_ror:4", "row_ror:8"])
            swap_steps(list(range(A, A+8)), list(range(172, 180)))
            e("  s_mul_i32 s75, s3, 192")
            e("  v_lshlrev_b32 v5, 4, v1")
            e("  v_add_u32 v5, s75, v5")
            e("  s_mov_b64 exec, 0x3")
            e(f"  ds_write_b128 v5, v[{A}:{A+3}] offset:{L_QP+128}")
            e(f"  ds_write_b128 v5, v[{A+4}:{A+7}] offset:{L_QP+160}")
            e("  s_mov_b64 exec, 1")
            e(f"  ds_add_rtn_u32 v6, v7, v8 offset:4")
            e("  s_mov_b64 exec, -1")
            e("  s_waitcnt lgkmcnt(0)")
            e("  v_readfirstlane_b32 s75, v6")
            e("  s_cmp_lg_u32 s75, 3")
            e("  s_cbranch_scc1 K_HS")
            e("  v_lshlrev_b32 v5, 3, v1")
            e("  s_mov_b64 exec, 0xff")
            for w in range(4):
                e(f"  ds_read_b64 v[{144+2*w}:{145+2*w}], v5 offset:{L_QP + (4+w)*192 + 128}")
            e("  v_lshrrev_b32 v6, 2, v1")
            e("  s_movk_i32 s75, 7168")
            e("  v_mul_lo_u32 v6, v6, s75")
            e("  v_and_b32 v9, 3, v1")
            e("  v_lshl_add_u32 v6, v9, 3, v6")
            e(f"  s_lshl_b32 s75, s{SHC}, 5")
            e(f"  s_add_u32 s75, s75, {WS_HG}")
            e("  s_waitcnt lgkmcnt(0)")
            e("  v_pk_add_f32 v[144:145], v[144:145], v[146:147]")
            e("  v_pk_add_f32 v[148:149], v[148:149], v[150:151]")
            e("  v_pk_add_f32 v[144:145], v[144:145], v[148:149]")
            e("  v_max_f32 v144, 0, v144")
            e("  v_max_f32 v145, 0, v145")
            e("  v_cvt_pk_bf16_f32 v144, v144, v145")
            e("  v_mov_b32 v145, s26")
            e(f"  buffer_store_dwordx2 v[144:145], v6, s[{SWS}:{SWS+3}], s75 offen sc1")
            e("  s_mov_b64 exec, -1")
            e("K_HS:")
            tl(4)
        if OPT["pf"] == 1:
            e("  s_cmp_ge_u32 s2, 224")
            e("  s_cbranch_scc1 K_GS")
            e("  s_lshr_b32 s72, s2, 3")
            e("  s_lshl_b32 s72, s72, 8")
            e("  s_and_b32 s76, s3, 3")
            e("  s_lshl_b32 s76, s76, 6")
            e("  s_add_u32 s72, s72, s76")
            e(f"  s_add_u32 s72, s72, {WS_HG}")
            e("  s_add_u32 s73, s72, 7168")
            e(f"  s_mov_b32 s74, {OPT['bnd']:#x}")
            e("K_HP:")
            e("  s_load_dwordx16 s[4:19], s[24:25], s72 glc")
            e("  s_load_dwordx16 s[28:43], s[24:25], s73 glc")
            e("  s_waitcnt lgkmcnt(0)")
            hr = [4 + 2*k for k in range(8)] + [28 + 2*k for k in range(8)]
            e(f"  s_and_b64 s[76:77], s[{hr[0]}:{hr[0]+1}], s[{hr[1]}:{hr[1]+1}]")
            e(f"  s_or_b64 s[78:79], s[{hr[0]}:{hr[0]+1}], s[{hr[1]}:{hr[1]+1}]")
            for r in hr[2:]:
                e(f"  s_and_b64 s[76:77], s[76:77], s[{r}:{r+1}]")
                e(f"  s_or_b64 s[78:79], s[78:79], s[{r}:{r+1}]")
            e("  s_xor_b32 s77, s77, s26")
            e("  s_xor_b32 s79, s79, s26")
            e("  s_or_b32 s77, s77, s79")
            e("  s_cmp_eq_u32 s77, 0")
            e("  s_cbranch_scc1 K_HPD")
            e("  s_sub_u32 s74, s74, 1")
            e("  s_cmp_lg_u32 s74, 0")
            e("  s_cbranch_scc1 K_HP")
            e("K_HPD:")
            for k in range(4):
                e(f"  s_mov_b32 s76, {(0xffff << (16*k)) & 0xffffffff if k < 2 else 0:#x}")
                e(f"  s_mov_b32 s77, {(0xffff << (16*(k-2))) & 0xffffffff if k >= 2 else 0:#x}")
                e("  s_mov_b64 exec, s[76:77]")
                for b in range(2):
                    for i in range(2):
                        e(f"  v_mov_b32 v{144+2*b+i}, s{(4 if b == 0 else 28) + 2*(k+4*i)}")
            e("  s_mov_b64 exec, -1")
            e("  v_and_b32 v5, 8, v1")
            e("  v_cmp_ne_u32 vcc, 0, v5")
            for r in range(144, 148):
                e(f"  v_lshlrev_b32 v148, 16, v{r}")
                e(f"  v_and_b32 v149, 0xffff0000, v{r}")
                e(f"  v_cndmask_b32 v{r}, v148, v149, vcc")
            e("  s_waitcnt vmcnt(48)")
            A = 164
            for i in range(2):
                for c in range(4):
                    w = 120 + 4*i + c
                    e(f"  v_lshlrev_b32 v150, 16, v{w}")
                    e(f"  v_and_b32 v151, 0xffff0000, v{w}")
                    for b in range(2):
                        h = 144 + 2*b + i
                        if i == 0:
                            e(f"  v_mul_f32 v{A+8*b+2*c}, v150, v{h}")
                            e(f"  v_mul_f32 v{A+8*b+2*c+1}, v151, v{h}")
                        else:
                            e(f"  v_fmac_f32 v{A+8*b+2*c}, v150, v{h}")
                            e(f"  v_fmac_f32 v{A+8*b+2*c+1}, v151, v{h}")
            dpp_steps(list(range(A, A+16)), ["row_ror:8"])
            swap_steps(list(range(A, A+16)), list(range(180, 196)))
            e("  s_and_b32 s75, s3, 3")
            e("  s_lshl_b32 s75, s75, 9")
            e("  v_lshlrev_b32 v5, 5, v1")
            e("  v_add_u32 v5, s75, v5")
            e("  s_mov_b64 exec, 0xff")
            e(f"  ds_write_b128 v5, v[{A}:{A+3}] offset:{L_FP}")
            e(f"  ds_write_b128 v5, v[{A+4}:{A+7}] offset:{L_FP+16}")
            e(f"  ds_write_b128 v5, v[{A+8}:{A+11}] offset:{L_FP+256}")
            e(f"  ds_write_b128 v5, v[{A+12}:{A+15}] offset:{L_FP+272}")
            e("  s_mov_b64 exec, 1")
            e(f"  ds_add_rtn_u32 v6, v7, v8 offset:28")
            e("  s_mov_b64 exec, -1")
            e("  s_waitcnt lgkmcnt(0)")
            e("  v_readfirstlane_b32 s75, v6")
            e("  s_cmp_lg_u32 s75, 3")
            e("  s_cbranch_scc1 K_GS")
            e("  v_lshlrev_b32 v5, 3, v1")
            for w in range(4):
                e(f"  ds_read_b64 v[{144+2*w}:{145+2*w}], v5 offset:{L_FP + w*512}")
            e("  v_lshrrev_b32 v6, 5, v1")
            e("  v_lshlrev_b32 v6, 12, v6")
            e("  v_and_b32 v9, 31, v1")
            e("  v_lshl_add_u32 v6, v9, 4, v6")
            e("  s_lshr_b32 s75, s2, 3")
            e("  s_lshl_b32 s75, s75, 13")
            e("  s_and_b32 s76, s2, 7")
            e("  s_lshl_b32 s76, s76, 9")
            e("  s_add_u32 s75, s75, s76")
            e(f"  s_add_u32 s75, s75, {WS_GG}")
            e("  s_waitcnt lgkmcnt(0)")
            e("  v_pk_add_f32 v[144:145], v[144:145], v[146:147]")
            e("  v_pk_add_f32 v[148:149], v[148:149], v[150:151]")
            e("  v_pk_add_f32 v[144:145], v[144:145], v[148:149]")
            e("  v_mov_b32 v146, v145")
            e("  v_mov_b32 v145, s26")
            e("  v_mov_b32 v147, s26")
            e(f"  buffer_store_dwordx4 v[144:147], v6, s[{SWS}:{SWS+3}], s75 offen sc1")
            e("K_GS:")
            tl(4)
        poll_addr()
        e("K_SPL:")
        e(f"  s_mov_b32 s74, {OPT['bnd']:#x}")
        e("K_SP:")
        poll_issue()
        poll_check("K_SPD")
        if OPT["qsl"]: e(f"  s_sleep {OPT['qsl']}")
        e("  s_sub_u32 s74, s74, 1")
        e("  s_cmp_lg_u32 s74, 0")
        e("  s_cbranch_scc1 K_SP")
        e("K_SPD:")
        poll_save()
        if OPT["prof"] == 4:
            e("  s_mov_b32 m0, 8")
        tl(4)
        e("K_QR:")
        e(f"  s_mov_b32 s74, {OPT['bnd']:#x}")
        e("K_QRL:")
        e("  ds_read_b32 v6, v7 offset:24")
        e("  s_waitcnt lgkmcnt(0)")
        e("  v_readfirstlane_b32 s75, v6")
        e("  s_cmp_ge_u32 s75, 9")
        e("  s_cbranch_scc1 K_QRD")
        e("  s_sub_u32 s74, s74, 1")
        e("  s_cmp_lg_u32 s74, 0")
        e("  s_cbranch_scc1 K_QRL")
        e("K_QRD:")
        if OPT["prof"] == 4:
            e("  s_mov_b32 m0, 9")
        F2 = 16
    else:
        e("  v_lshlrev_b32 v5, 4, v1")
        e(f"  buffer_load_dwordx4 v[204:207], v5, s[{SX}:{SX+3}], 0 offen")
        e(f"  buffer_load_dwordx4 v[208:211], v5, s[{SX}:{SX+3}], 0 offen offset:1024")
        if OPT["xb"]:
            e("  s_barrier")
        e("  v_lshrrev_b32 v6, 2, v0")
        e("  v_and_b32 v7, 3, v0")
        e("  v_lshlrev_b32 v8, 13, v6")
        e("  v_lshl_add_u32 v8, v7, 3, v8")
        e(f"  s_lshl_b32 s75, s{SCG}, 5")
        e("  v_add_u32 v8, s75, v8")
        for i in range(4):
            if i == 0:
                e(f"  buffer_load_dwordx2 v[212:213], v8, s[{SWQ}:{SWQ+3}], 0 offen")
            else:
                e(f"  v_add_u32 v8, 0x100000, v8")
                e(f"  buffer_load_dwordx2 v[{212+2*i}:{213+2*i}], v8, s[{SWQ}:{SWQ+3}], 0 offen")
        e("  v_lshrrev_b32 v12, 3, v0")
        e("  v_and_b32 v13, 7, v0")
        if OPT["rot"]:
            e(f"  s_mul_i32 s73, s2, {OPT['rot']}")
        blkoff(IDXA)
        e(f"  v_add_u32 v224, s75, v{VKOFF}")
        e(f"  v_add_u32 v225, s75, v{VVOFF}")
        pl = kchunk_l(KA, 224) + vchunk_l(VA, 225)
        PRE0 = OPT["pre0"]
        if OPT["bar0"] and PRE0:
            e("  s_barrier")
        for c in range(PRE0):
            e(pl[c])
        e(f"  s_waitcnt vmcnt({4+PRE0})")
        tl(4)
        ln_code()
        e("  s_add_u32 s26, s26, 1")
        e("  v_lshrrev_b32 v5, 2, v0")
        e("  v_lshlrev_b32 v5, 2, v5")
        for i in range(4):
            e(f"  ds_read2st64_b32 v[{168+2*i}:{169+2*i}], v5 offset0:{(L_XN + i*512)//256} offset1:{(L_XN + i*512 + 2048)//256}")
        tl(4)
        e(f"  s_waitcnt vmcnt({PRE0}) lgkmcnt(0)")
        tl(4)
        for c in range(PRE0, F1):
            e(pl[c])
        for i in range(4):
            for c in range(2):
                pk_part(212 + 2 * i + c, 168 + 2 * i, 180 + 2 * c, 184 + 2 * c, i == 0)
        dpp_steps(list(range(180, 188)), ["row_ror:4", "row_ror:8"])
        swap_steps(list(range(180, 188)), list(range(204, 212)))
        e("  s_mul_i32 s75, s3, 192")
        e("  v_lshlrev_b32 v5, 4, v1")
        e("  v_add_u32 v5, s75, v5")
        e("  s_mov_b64 exec, 0xf")
        e(f"  ds_write_b128 v5, v[180:183] offset:{L_QP}")
        e(f"  ds_write_b128 v5, v[184:187] offset:{L_QP+64}")
        e("  s_mov_b64 exec, -1")
        e("  s_waitcnt lgkmcnt(0)")
        tl(4)
        e("  s_barrier")
        e("  s_cmp_lg_u32 s3, 0")
        e("  s_cbranch_scc1 K_B2")
        e("  v_lshlrev_b32 v5, 3, v1")
        e("  s_mov_b64 exec, 0xffff")
        for w in range(8):
            e(f"  ds_read_b64 v[{160+2*w}:{161+2*w}], v5 offset:{L_QP + w*192}")
        e("  v_lshrrev_b32 v6, 3, v1")
        e("  v_lshlrev_b32 v6, 14, v6")
        e("  v_and_b32 v7, 7, v1")
        e("  v_lshl_add_u32 v6, v7, 3, v6")
        e(f"  s_lshl_b32 s75, s{SCG}, 6")
        e(f"  s_add_u32 s75, s75, {WS_QG}")
        e("  v_add_u32 v6, s75, v6")
        e("  v_mov_b32 v8, 8")
        e("  v_mov_b32 v9, 0")
        e("  v_mov_b32 v10, 8")
        e(f"  v_mov_b32 v11, {L_CNT}")
        e("  s_waitcnt lgkmcnt(0)")
        e("  v_pk_add_f32 v[160:161], v[160:161], v[162:163]")
        e("  v_pk_add_f32 v[164:165], v[164:165], v[166:167]")
        e("  v_pk_add_f32 v[168:169], v[168:169], v[170:171]")
        e("  v_pk_add_f32 v[172:173], v[172:173], v[174:175]")
        e("  v_pk_add_f32 v[160:161], v[160:161], v[164:165]")
        e("  v_pk_add_f32 v[168:169], v[168:169], v[172:173]")
        e("  v_pk_add_f32 v[160:161], v[160:161], v[168:169]")
        e("  v_cvt_pk_bf16_f32 v160, v160, v161")
        e("  v_mov_b32 v161, s26")
        e(f"  buffer_store_dwordx2 v[160:161], v6, s[{SWS}:{SWS+3}], 0 offen sc1")
        e("  ds_write_b96 v11, v[8:10]")
        e("  s_mov_b64 exec, -1")
        e("K_B2:")
        tl(4)
        if OPT["bar2"]:
            e("  s_barrier")
        F2 = max(F1, OPT["f2"])
        for c in range(F1, F2):
            e(pl[c])
    if not OPT['rs']:
        e(f"  s_lshl_b32 s75, s{SB}, 14")
        e(f"  s_lshl_b32 s76, s{SG}, 11")
        e("  s_add_u32 s75, s75, s76")
        e("  s_lshl_b32 s76, s3, 8")
        e("  s_add_u32 s75, s75, s76")
        e(f"  s_add_u32 s75, s75, {WS_QG}")
        e("  s_lshl_b32 s76, s3, 7")
        e("  v_lshlrev_b32 v6, 2, v1")
        e("  v_add_u32 v6, s76, v6")
        e(f"  s_mov_b32 s74, {OPT['bnd']:#x}")
        PB = [4, 28, 44, 80]
        tl(4)
        e("K_SP:")
        for i, b_ in enumerate(PB):
            e(f"  s_load_dwordx16 s[{b_}:{b_+15}], s[24:25], s75 offset:{64*i} glc")
        e("  s_waitcnt lgkmcnt(0)")
        prs = [b_ + 2*k for b_ in PB for k in range(8)]
        e(f"  s_and_b64 s[76:77], s[{prs[0]}:{prs[0]+1}], s[{prs[1]}:{prs[1]+1}]")
        e(f"  s_or_b64 s[78:79], s[{prs[0]}:{prs[0]+1}], s[{prs[1]}:{prs[1]+1}]")
        for r in prs[2:]:
            e(f"  s_and_b64 s[76:77], s[76:77], s[{r}:{r+1}]")
            e(f"  s_or_b64 s[78:79], s[78:79], s[{r}:{r+1}]")
        e("  s_xor_b32 s77, s77, s26")
        e("  s_xor_b32 s79, s79, s26")
        e("  s_or_b32 s77, s77, s79")
        e("  s_cmp_eq_u32 s77, 0")
        e("  s_cbranch_scc1 K_SPD")
        e("  s_sub_u32 s74, s74, 1")
        e("  s_cmp_lg_u32 s74, 0")
        e("  s_cbranch_scc1 K_SP")
        e("K_SPD:")
        tl(4)
        for k, r in enumerate(prs):
            e(f"  v_writelane_b32 v5, s{r}, {k}")
        e("  s_mov_b64 exec, 0xffffffff")
        e(f"  ds_write_b32 v6, v5 offset:{L_Q}")
        e("  s_mov_b64 exec, -1")
        e("  s_waitcnt lgkmcnt(0)")
        e("  s_barrier")
    e("K_B3:")
    tl(4)
    e("  s_load_dwordx16 s[4:19], s[0:1], 0")
    e("  s_load_dwordx2 s[96:97], s[0:1], 64")
    for c in range(F2, len(pl)):
        e(pl[c])
    e("  v_and_b32 v5, 3, v3")
    e("  v_lshlrev_b32 v5, 8, v5")
    e("  v_lshl_add_u32 v5, v4, 4, v5")
    for i in range(4):
        e(f"  ds_read_b128 v[{QF+4*i}:{QF+4*i+3}], v5 offset:{L_Q + i*64}")
    derive()
    for r in range(32):
        e(f"  v_mov_b32 v{ACC+r}, 0")
    e(f"  v_mov_b32 v{M_}, 0xf149f2ca")
    e(f"  v_mov_b32 v{L_}, 0")
    e(f"  v_mov_b32 v7, {L_CNT}")
    e("  v_mov_b32 v8, 1")
    e("  s_waitcnt lgkmcnt(0)")
    srd(SX, 4, 5, 2048)
    srd(SW1, 16, 17, 512 * 1792 * 2)
    srd(SWO, 12, 13, 4096 * 512 * 2)
    srd(SW2, 18, 19, 1792 * 512 * 2)
    srd(SOUT, 96, 97, 2048)
    if OPT["warmp"]:
        e("  v_mov_b32 v10, 0")
        e("  s_mov_b64 exec, 1")
        if OPT["warmp"] & 1:
            e(f"  buffer_load_dword v249, v10, s[{SWS}:{SWS+3}], s93 offen sc1")
        if OPT["warmp"] & 2:
            e(f"  s_mov_b32 s75, {16*OPT['ns']*8192}")
            e(f"  buffer_load_dword v249, v10, s[{SK}:{SK+3}], s75 offen nt")
            e(f"  buffer_load_dword v250, v10, s[{SV}:{SV+3}], s75 offen nt")
        e("  s_mov_b64 exec, -1")
    if OPT["fd"]:
        e("  s_cmp_ge_u32 s2, 224")
        e("  s_cselect_b32 s95, 2, 0")
    if OPT["pf"] == 2:
        e("  s_cmp_ge_u32 s3, 4")
        e("  s_cselect_b32 s27, 2, 0")
    else:
        e("  s_mov_b32 s27, %d" % (0 if OPT["pf"] else 2))
    if OPT["gp"]:
        e("  s_bfe_u32 s75, s2, 0x40002")
        e(f"  s_mul_i32 s75, s75, {OPT['nsub']*256}")
        e(f"  s_add_u32 s75, s75, {WS_PC}")
        e("  v_mov_b32 v250, s75")
        e("  v_mov_b32 v249, 1")
        e("  s_mov_b32 s37, 0")
        e("  s_mov_b32 s36, 0")
        e("  s_waitcnt lgkmcnt(0)")
    def x_loads(sfx):
        e("  s_cmp_lg_u32 s27, 2")
        e(f"  s_cbranch_scc1 K_XL{sfx}")
        e("  s_mov_b32 s27, 3")
        if OPT["x2"]:
            e("  v_lshlrev_b32 v14, 10, v12")
            e("  v_lshl_add_u32 v14, v13, 4, v14")
            e("  s_cmp_ge_u32 s2, 224")
            e(f"  s_cbranch_scc1 K_XW{sfx}")
            e("  s_movk_i32 s75, 3584")
            e("  v_mul_lo_u32 v11, v12, s75")
            e("  v_lshl_add_u32 v11, v13, 4, v11")
            e("  s_and_b32 s75, s2, 7")
            e(f"  s_mul_i32 s75, s75, {64*3584}")
            e("  s_lshr_b32 s76, s2, 3")
            e("  s_lshl_b32 s76, s76, 7")
            e("  s_add_u32 s75, s75, s76")
            e(f"  buffer_load_dwordx4 v[244:247], v11, s[{SW1}:{SW1+3}], s75 offen")
            e(f"K_XW{sfx}:")
            e(f"  s_lshl_b32 s75, s{SHEAD}, 17")
            if OPT["jd"]:
                e(f"  s_and_b32 s76, s{SNO}, 3")
                e(f"  s_lshl_b32 s76, s76, 8")
            else:
                e(f"  s_lshl_b32 s76, s{SNO}, 7")
            e("  s_add_u32 s75, s75, s76")
            e(f"  buffer_load_dwordx4 v[80:83], v14, s[{SWO}:{SWO+3}], s75 offen")
            if OPT["jd"]:
                e(f"  buffer_load_dwordx4 v[88:91], v14, s[{SWO}:{SWO+3}], s75 offen offset:128")
            e("  s_add_u32 s75, s75, 0x10000")
            e(f"  buffer_load_dwordx4 v[84:87], v14, s[{SWO}:{SWO+3}], s75 offen")
            if OPT["jd"]:
                e(f"  buffer_load_dwordx4 v[92:95], v14, s[{SWO}:{SWO+3}], s75 offen offset:128")
            e("  s_lshr_b32 s75, s2, 3")
            e("  s_lshl_b32 s75, s75, 16")
            e("  v_add_u32 v15, s75, v14")
            e(f"  s_lshl_b32 s75, s{SNC}, 7")
            e("  v_add_u32 v15, s75, v15")
            e(f"  buffer_load_dwordx4 v[{W2}:{W2+3}], v15, s[{SW2}:{SW2+3}], 0 offen")
            e(f"K_XL{sfx}:")
            return
        e("  v_lshrrev_b32 v9, 1, v0")
        e("  v_and_b32 v10, 1, v0")
        e("  s_movk_i32 s75, 3584")
        e("  v_mul_lo_u32 v11, v9, s75")
        e("  v_lshl_add_u32 v11, v10, 3, v11")
        e(f"  s_lshl_b32 s75, s{SHC}, 4")
        e("  v_add_u32 v11, s75, v11")
        e(f"  buffer_load_dwordx2 v[244:245], v11, s[{SW1}:{SW1+3}], 0 offen")
        e(f"  v_add_u32 v11, {256*3584}, v11")
        e(f"  buffer_load_dwordx2 v[246:247], v11, s[{SW1}:{SW1+3}], 0 offen")
        wo_loads()
        e(f"K_XL{sfx}:")

    def wo_once(sfx):
        e("  s_cmp_lg_u32 s27, 2")
        e(f"  s_cbranch_scc1 K_WO{sfx}")
        e("  s_mov_b32 s27, 0")
        e("  v_lshlrev_b32 v15, 13, v4")
        e("  v_lshl_add_u32 v15, v3, 2, v15")
        e(f"  s_lshl_b32 s75, s{SHEAD}, 17")
        e(f"  s_lshl_b32 s76, s{SNO}, 7")
        e("  s_add_u32 s75, s75, s76")
        e("  s_bfe_u32 s76, s3, 0x10001")
        e("  s_lshl_b32 s76, s76, 6")
        e("  s_add_u32 s75, s75, s76")
        for ks in range(4):
            for jh in range(2):
                for j in range(4):
                    e(f"  buffer_load_dword v{80+ks*8+jh*4+j}, v15, s[{SWO}:{SWO+3}], s75 offen offset:{j*1024}")
                if not (ks == 3 and jh == 1):
                    e(f"  s_add_u32 s75, s75, {4096 if jh == 0 else 32768-4096}")
        e(f"K_WO{sfx}:")

    def fd_at_exit():
        e("  s_cmp_ge_u32 s2, 224")
        e("  s_cbranch_scc1 K_FX")
        e("  s_mov_b64 exec, 1")
        e("  ds_add_rtn_u32 v6, v7, v8 offset:32")
        e("  s_mov_b64 exec, -1")
        e("  s_waitcnt lgkmcnt(0)")
        e("  v_readfirstlane_b32 s72, v6")
        e("  s_cmp_ge_u32 s72, 4")
        e("  s_cbranch_scc1 K_FX")
        e("  v_lshrrev_b32 v9, 3, v1")
        e("  v_and_b32 v10, 7, v1")
        e("  v_lshlrev_b32 v11, 10, v9")
        e("  v_lshl_add_u32 v11, v10, 4, v11")
        e("  s_lshr_b32 s75, s2, 3")
        e("  s_lshl_b32 s75, s75, 16")
        e("  s_lshl_b32 s76, s72, 14")
        e("  s_add_u32 s75, s75, s76")
        e("  s_and_b32 s76, s2, 7")
        e("  s_lshl_b32 s76, s76, 7")
        e("  s_add_u32 s75, s75, s76")
        e(f"  buffer_load_dwordx4 v[16:19], v11, s[{SW2}:{SW2+3}], s75 offen")
        e("  s_add_u32 s75, s75, 8192")
        e(f"  buffer_load_dwordx4 v[20:23], v11, s[{SW2}:{SW2+3}], s75 offen")
        e("  v_lshlrev_b32 v12, 3, v4")
        e("  s_lshr_b32 s75, s2, 3")
        e("  s_lshl_b32 s75, s75, 8")
        e("  s_lshl_b32 s76, s72, 6")
        e("  s_add_u32 s75, s75, s76")
        e(f"  s_add_u32 s75, s75, {WS_HG}")
        e("  s_add_u32 s76, s75, 7168")
        e(f"  s_mov_b32 s74, {OPT['bnd']:#x}")
        e("K_FXP:")
        e(f"  buffer_load_dwordx2 v[24:25], v12, s[{SWS}:{SWS+3}], s75 offen sc1")
        e(f"  buffer_load_dwordx2 v[26:27], v12, s[{SWS}:{SWS+3}], s75 offen offset:32 sc1")
        e(f"  buffer_load_dwordx2 v[28:29], v12, s[{SWS}:{SWS+3}], s76 offen sc1")
        e(f"  buffer_load_dwordx2 v[30:31], v12, s[{SWS}:{SWS+3}], s76 offen offset:32 sc1")
        e("  s_waitcnt vmcnt(0)")
        e("  v_cmp_ne_u32 s[78:79], s26, v25")
        for r in [27, 29, 31]:
            e(f"  v_cmp_ne_u32 vcc, s26, v{r}")
            e("  s_or_b64 s[78:79], s[78:79], vcc")
        e("  s_cmp_eq_u64 s[78:79], 0")
        e("  s_cbranch_scc1 K_FXD")
        e("  s_sub_u32 s74, s74, 1")
        e("  s_cmp_lg_u32 s74, 0")
        e("  s_cbranch_scc1 K_FXP")
        e("K_FXD:")
        e("  v_and_b32 v5, 8, v1")
        e("  v_cmp_ne_u32 vcc, 0, v5")
        for r in [24, 26, 28, 30]:
            e(f"  v_lshlrev_b32 v48, 16, v{r}")
            e(f"  v_and_b32 v49, 0xffff0000, v{r}")
            e(f"  v_cndmask_b32 v{r}, v48, v49, vcc")
        A = 32
        for i in range(2):
            for c in range(4):
                w = 16 + 4*i + c
                e(f"  v_lshlrev_b32 v48, 16, v{w}")
                e(f"  v_and_b32 v49, 0xffff0000, v{w}")
                for b in range(2):
                    h = 24 + 4*b + 2*i
                    if i == 0:
                        e(f"  v_mul_f32 v{A+8*b+2*c}, v48, v{h}")
                        e(f"  v_mul_f32 v{A+8*b+2*c+1}, v49, v{h}")
                    else:
                        e(f"  v_fmac_f32 v{A+8*b+2*c}, v48, v{h}")
                        e(f"  v_fmac_f32 v{A+8*b+2*c+1}, v49, v{h}")
        dpp_steps(list(range(A, A+16)), ["row_ror:8"])
        swap_steps(list(range(A, A+16)), list(range(48, 64)))
        e("  s_lshl_b32 s75, s72, 9")
        e("  v_lshlrev_b32 v5, 5, v1")
        e("  v_add_u32 v5, s75, v5")
        e("  s_mov_b64 exec, 0xff")
        e(f"  ds_write_b128 v5, v[{A}:{A+3}] offset:{L_FP}")
        e(f"  ds_write_b128 v5, v[{A+4}:{A+7}] offset:{L_FP+16}")
        e(f"  ds_write_b128 v5, v[{A+8}:{A+11}] offset:{L_FP+256}")
        e(f"  ds_write_b128 v5, v[{A+12}:{A+15}] offset:{L_FP+272}")
        e("  s_mov_b64 exec, 1")
        e(f"  ds_add_rtn_u32 v6, v7, v8 offset:28")
        e("  s_mov_b64 exec, -1")
        e("  s_waitcnt lgkmcnt(0)")
        e("  v_readfirstlane_b32 s75, v6")
        e("  s_cmp_lg_u32 s75, 3")
        e("  s_cbranch_scc1 K_FX")
        e("  v_lshlrev_b32 v5, 3, v1")
        for w in range(4):
            e(f"  ds_read_b64 v[{16+2*w}:{17+2*w}], v5 offset:{L_FP + w*512}")
        e("  v_lshrrev_b32 v6, 5, v1")
        e("  v_lshlrev_b32 v6, 12, v6")
        e("  v_and_b32 v9, 31, v1")
        e("  v_lshl_add_u32 v6, v9, 4, v6")
        e("  s_lshr_b32 s75, s2, 3")
        e("  s_lshl_b32 s75, s75, 13")
        e("  s_and_b32 s76, s2, 7")
        e("  s_lshl_b32 s76, s76, 9")
        e("  s_add_u32 s75, s75, s76")
        e(f"  s_add_u32 s75, s75, {WS_GG}")
        e("  s_waitcnt lgkmcnt(0)")
        e("  v_pk_add_f32 v[16:17], v[16:17], v[18:19]")
        e("  v_pk_add_f32 v[20:21], v[20:21], v[22:23]")
        e("  v_pk_add_f32 v[16:17], v[16:17], v[20:21]")
        e("  v_mov_b32 v18, v17")
        e("  v_mov_b32 v17, s26")
        e("  v_mov_b32 v19, s26")
        e(f"  buffer_store_dwordx4 v[16:19], v6, s[{SWS}:{SWS+3}], s75 offen sc1")
        e("K_FX:")

    def h_phase(sfx):
        e("  s_cmp_eq_u32 s27, 0")
        e(f"  s_cbranch_scc1 K_HSKP{sfx}")
        e("  s_sub_u32 s27, s27, 2")
        e("  s_cmp_eq_u32 s27, 1")
        e(f"  s_cbranch_scc1 K_HSKP{sfx}")
        e("  s_mov_b32 s27, 0")
        if OPT["x2"]:
            if OPT["jd"]:
                e("  v_mul_u32_u24 v5, 272, v12")
                e("  v_lshl_add_u32 v5, v13, 4, v5")
                e(f"  v_add_u32 v5, {L_WO}, v5")
                e(f"  ds_write_b128 v5, v[80:83]")
                e(f"  ds_write_b128 v5, v[84:87] offset:{64*272}")
                e(f"  ds_write_b128 v5, v[88:91] offset:128")
                e(f"  ds_write_b128 v5, v[92:95] offset:{64*272+128}")
            else:
                e("  v_mul_u32_u24 v5, 144, v12")
                e("  v_lshl_add_u32 v5, v13, 4, v5")
                e(f"  ds_write_b128 v5, v[80:83] offset:{L_WO}")
                e(f"  ds_write_b128 v5, v[84:87] offset:{L_WO + 64*144}")
            e("  s_cmp_ge_u32 s2, 224")
            e(f"  s_cbranch_scc1 K_HSKP{sfx}")
            e("  s_and_b32 s75, s2, 7")
            e("  s_lshl_b32 s75, s75, 8")
            e("  v_lshl_add_u32 v5, v12, 2, s75")
            e(f"  ds_read_b32 v204, v5 offset:{L_XN}")
            e(f"  ds_read_b32 v205, v5 offset:{L_XN+2048}")
            e("  s_waitcnt lgkmcnt(0)")
            A = 212
            for c in range(4):
                e(f"  v_lshlrev_b32 v206, 16, v{244+c}")
                e(f"  v_and_b32 v207, 0xffff0000, v{244+c}")
                e(f"  v_mul_f32 v{A+2*c}, v206, v204")
                e(f"  v_mul_f32 v{A+1+2*c}, v207, v204")
                e(f"  v_mul_f32 v{A+8+2*c}, v206, v205")
                e(f"  v_mul_f32 v{A+9+2*c}, v207, v205")
            dpp_steps(list(range(A, A+16)), ["row_ror:8"])
            swap_steps(list(range(A, A+16)), list(range(220+8, 236+8))[:16] if False else [228,229,230,231,232,233,234,235,204,205,206,207,208,209,210,211])
            e("  s_lshl_b32 s75, s3, 9")
            e("  v_lshlrev_b32 v5, 5, v1")
            e("  v_add_u32 v5, s75, v5")
            e("  s_mov_b64 exec, 0xff")
            e(f"  ds_write_b128 v5, v[{A}:{A+3}] offset:{L_FP}")
            e(f"  ds_write_b128 v5, v[{A+4}:{A+7}] offset:{L_FP+16}")
            e(f"  ds_write_b128 v5, v[{A+8}:{A+11}] offset:{L_FP+256}")
            e(f"  ds_write_b128 v5, v[{A+12}:{A+15}] offset:{L_FP+272}")
            e("  s_mov_b64 exec, 1")
            e(f"  ds_add_rtn_u32 v6, v7, v8 offset:4")
            e("  s_mov_b64 exec, -1")
            e("  s_waitcnt lgkmcnt(0)")
            e("  v_readfirstlane_b32 s75, v6")
            e("  s_cmp_lg_u32 s75, 7")
            e(f"  s_cbranch_scc1 K_HSKP{sfx}")
            e("  v_lshlrev_b32 v5, 2, v1")
            for w in range(8):
                e(f"  ds_read_b32 v{204+2*w}, v5 offset:{L_FP + w*512}")
                e(f"  ds_read_b32 v{205+2*w}, v5 offset:{L_FP + w*512 + 256}")
            e("  v_lshlrev_b32 v6, 4, v1")
            e("  s_lshl_b32 s75, s2, 10")
            e("  s_mov_b32 s76, 0")
            e("  s_add_u32 s75, s75, s76")
            e(f"  s_add_u32 s75, s75, {WS_H2}")
            e("  s_waitcnt lgkmcnt(0)")
            e("  v_pk_add_f32 v[204:205], v[204:205], v[206:207]")
            e("  v_pk_add_f32 v[208:209], v[208:209], v[210:211]")
            e("  v_pk_add_f32 v[212:213], v[212:213], v[214:215]")
            e("  v_pk_add_f32 v[216:217], v[216:217], v[218:219]")
            e("  v_pk_add_f32 v[204:205], v[204:205], v[208:209]")
            e("  v_pk_add_f32 v[212:213], v[212:213], v[216:217]")
            e("  v_pk_add_f32 v[204:205], v[204:205], v[212:213]")
            e("  v_mov_b32 v206, s26")
            e("  v_mov_b32 v207, s26")
            e(f"  buffer_store_dwordx4 v[204:207], v6, s[{SWS}:{SWS+3}], s75 offen sc1")
            if OPT["xw"] == 2 and sfx == "L":
                e("  s_mov_b32 s27, 5")
            e(f"K_HSKP{sfx}:")
            return
        e(f"  s_cmp_ge_u32 s{SHC}, 224")
        e(f"  s_cbranch_scc1 K_HSKP{sfx}")
        e("  v_lshrrev_b32 v5, 1, v0")
        e("  v_lshlrev_b32 v5, 2, v5")
        for i in range(2):
            e(f"  ds_read2st64_b32 v[{204+2*i}:{205+2*i}], v5 offset0:{(L_XN + i*1024)//256} offset1:{(L_XN + i*1024 + 2048)//256}")
        e("  s_waitcnt lgkmcnt(0)")
        A = 212
        for i in range(2):
            for c in range(2):
                w = 244 + 2*i + c
                xr = 204 + 2*i
                a0, a1 = A + 2*c, A + 4 + 2*c
                e(f"  v_lshlrev_b32 v208, 16, v{w}")
                e(f"  v_and_b32 v209, 0xffff0000, v{w}")
                if i == 0:
                    e(f"  v_pk_mul_f32 v[{a0}:{a0+1}], v[208:209], v[{xr}:{xr+1}] op_sel_hi:[1,0]")
                    e(f"  v_pk_mul_f32 v[{a1}:{a1+1}], v[208:209], v[{xr}:{xr+1}] op_sel:[0,1] op_sel_hi:[1,1]")
                else:
                    e(f"  v_pk_fma_f32 v[{a0}:{a0+1}], v[208:209], v[{xr}:{xr+1}], v[{a0}:{a0+1}] op_sel_hi:[1,0,1]")
                    e(f"  v_pk_fma_f32 v[{a1}:{a1+1}], v[208:209], v[{xr}:{xr+1}], v[{a1}:{a1+1}] op_sel:[0,1,0] op_sel_hi:[1,1,1]")
        dpp_steps(list(range(A, A+8)), ["quad_perm:[2,3,0,1]", "row_ror:4", "row_ror:8"])
        swap_steps(list(range(A, A+8)), list(range(220, 228)))
        e("  s_mul_i32 s75, s3, 192")
        e("  v_lshlrev_b32 v5, 4, v1")
        e("  v_add_u32 v5, s75, v5")
        e("  s_mov_b64 exec, 0x3")
        e(f"  ds_write_b128 v5, v[{A}:{A+3}] offset:{L_QP+128}")
        e(f"  ds_write_b128 v5, v[{A+4}:{A+7}] offset:{L_QP+160}")
        e("  s_mov_b64 exec, 1")
        e(f"  ds_add_rtn_u32 v6, v7, v8 offset:4")
        e("  s_mov_b64 exec, -1")
        e("  s_waitcnt lgkmcnt(0)")
        e("  v_readfirstlane_b32 s75, v6")
        e("  s_cmp_lg_u32 s75, 7")
        e(f"  s_cbranch_scc1 K_HSKP{sfx}")
        e("  v_lshlrev_b32 v5, 3, v1")
        e("  s_mov_b64 exec, 0xff")
        for w in range(8):
            e(f"  ds_read_b64 v[{204+2*w}:{205+2*w}], v5 offset:{L_QP + w*192 + 128}")
        e("  v_lshrrev_b32 v6, 2, v1")
        e("  s_movk_i32 s75, 7168")
        e("  v_mul_lo_u32 v6, v6, s75")
        e("  v_and_b32 v9, 3, v1")
        e("  v_lshl_add_u32 v6, v9, 3, v6")
        e(f"  s_lshl_b32 s75, s{SHC}, 5")
        e(f"  s_add_u32 s75, s75, {WS_HG}")
        e("  s_waitcnt lgkmcnt(0)")
        e("  v_pk_add_f32 v[204:205], v[204:205], v[206:207]")
        e("  v_pk_add_f32 v[208:209], v[208:209], v[210:211]")
        e("  v_pk_add_f32 v[212:213], v[212:213], v[214:215]")
        e("  v_pk_add_f32 v[216:217], v[216:217], v[218:219]")
        e("  v_pk_add_f32 v[204:205], v[204:205], v[208:209]")
        e("  v_pk_add_f32 v[212:213], v[212:213], v[216:217]")
        e("  v_pk_add_f32 v[204:205], v[204:205], v[212:213]")
        e("  v_max_f32 v204, 0, v204")
        e("  v_max_f32 v205, 0, v205")
        e("  v_cvt_pk_bf16_f32 v204, v204, v205")
        e("  v_mov_b32 v205, s26")
        e(f"  buffer_store_dwordx2 v[204:205], v6, s[{SWS}:{SWS+3}], s75 offen sc1")
        e("  s_mov_b64 exec, -1")
        e(f"K_HSKP{sfx}:")
    def h_loads():
        if OPT["x2"]:
            e(f"  buffer_load_dwordx4 v[244:247], v248, s[{SWS}:{SWS+3}], 0 offen sc1")
            return
        e("  s_movk_i32 s75, 7168")
        e(f"  buffer_load_dwordx2 v[244:245], v248, s[{SWS}:{SWS+3}], 0 offen sc1")
        e(f"  buffer_load_dwordx2 v[246:247], v248, s[{SWS}:{SWS+3}], s75 offen sc1")

    def fd_issue():
        if OPT["x2"]:
            e("  v_lshlrev_b32 v248, 4, v12")
            e("  v_lshl_add_u32 v248, v13, 10, v248")
            e("  s_lshr_b32 s75, s2, 3")
            e("  s_lshl_b32 s75, s75, 13")
            e(f"  s_add_u32 s75, s75, {WS_H2}")
            e("  v_add_u32 v248, s75, v248")
            h_loads()
            return
        e("  v_lshrrev_b32 v5, 1, v12")
        e("  v_lshlrev_b32 v248, 3, v5")
        e("  s_lshr_b32 s75, s2, 3")
        e("  s_lshl_b32 s75, s75, 8")
        e(f"  s_add_u32 s75, s75, {WS_HG}")
        e("  v_add_u32 v248, s75, v248")
        h_loads()
    def fd_check(bad):
        e("  v_cmp_ne_u32 vcc, s26, v%d" % (246 if OPT["x2"] else 245))
        e("  v_cmp_ne_u32 s[78:79], s26, v247")
        e("  s_or_b64 vcc, vcc, s[78:79]")
        e("  s_cmp_lg_u64 vcc, 0")
        e(f"  s_cbranch_scc1 {bad}")
    def fd_compute(done):
        A = 204
        if OPT["x2"]:
            dpp_steps([244, 245], ["quad_perm:[1,0,3,2]", "quad_perm:[2,3,0,1]", "row_half_mirror"])
            e("  v_max_f32 v220, 0, v244")
            e("  v_max_f32 v221, 0, v245")
            round_bf16(220, 220)
            round_bf16(221, 221)
        else:
            e("  v_and_b32 v5, 1, v12")
            e("  v_cmp_eq_u32 vcc, 1, v5")
            e("  v_lshlrev_b32 v220, 16, v244")
            e("  v_and_b32 v5, 0xffff0000, v244")
            e("  v_lshlrev_b32 v221, 16, v246")
            e("  v_and_b32 v6, 0xffff0000, v246")
            e("  v_cndmask_b32 v220, v220, v5, vcc")
            e("  v_cndmask_b32 v221, v221, v6, vcc")
        for c in range(4):
            e(f"  v_lshlrev_b32 v222, 16, v{W2+c}")
            e(f"  v_and_b32 v223, 0xffff0000, v{W2+c}")
            e(f"  v_mul_f32 v{A+2*c}, v222, v220")
            e(f"  v_mul_f32 v{A+1+2*c}, v223, v220")
            e(f"  v_mul_f32 v{A+8+2*c}, v222, v221")
            e(f"  v_mul_f32 v{A+9+2*c}, v223, v221")
        dpp_steps(list(range(A, A+16)), ["row_ror:8"])
        swap_steps(list(range(A, A+16)), list(range(220, 236)))
        e("  s_lshl_b32 s75, s3, 9")
        e("  v_lshlrev_b32 v5, 5, v1")
        e("  v_add_u32 v5, s75, v5")
        e("  s_mov_b64 exec, 0xff")
        e(f"  ds_write_b128 v5, v[{A}:{A+3}] offset:{L_FP}")
        e(f"  ds_write_b128 v5, v[{A+4}:{A+7}] offset:{L_FP+16}")
        e(f"  ds_write_b128 v5, v[{A+8}:{A+11}] offset:{L_FP+256}")
        e(f"  ds_write_b128 v5, v[{A+12}:{A+15}] offset:{L_FP+272}")
        e("  s_mov_b64 exec, 1")
        e(f"  ds_add_rtn_u32 v6, v7, v8 offset:28")
        e("  s_mov_b64 exec, -1")
        e("  s_waitcnt lgkmcnt(0)")
        e("  v_readfirstlane_b32 s75, v6")
        e("  s_mov_b32 s95, 2")
        e("  s_cmp_lg_u32 s75, 7")
        e(f"  s_cbranch_scc1 {done}")
        e("  v_lshlrev_b32 v5, 3, v1")
        for w in range(8):
            e(f"  ds_read_b64 v[{204+2*w}:{205+2*w}], v5 offset:{L_FP + w*512}")
        e("  v_lshrrev_b32 v6, 5, v1")
        e("  v_lshlrev_b32 v6, 12, v6")
        e("  v_and_b32 v9, 31, v1")
        e("  v_lshl_add_u32 v6, v9, 4, v6")
        e("  s_lshr_b32 s75, s2, 3")
        e("  s_lshl_b32 s75, s75, 13")
        e("  s_and_b32 s76, s2, 7")
        e("  s_lshl_b32 s76, s76, 9")
        e("  s_add_u32 s75, s75, s76")
        e(f"  s_add_u32 s75, s75, {WS_GG}")
        e("  s_waitcnt lgkmcnt(0)")
        e("  v_pk_add_f32 v[204:205], v[204:205], v[206:207]")
        e("  v_pk_add_f32 v[208:209], v[208:209], v[210:211]")
        e("  v_pk_add_f32 v[212:213], v[212:213], v[214:215]")
        e("  v_pk_add_f32 v[216:217], v[216:217], v[218:219]")
        e("  v_pk_add_f32 v[204:205], v[204:205], v[208:209]")
        e("  v_pk_add_f32 v[212:213], v[212:213], v[216:217]")
        e("  v_pk_add_f32 v[204:205], v[204:205], v[212:213]")
        e("  v_mov_b32 v206, v205")
        e("  v_mov_b32 v205, s26")
        e("  v_mov_b32 v207, s26")
        e(f"  buffer_store_dwordx4 v[204:207], v6, s[{SWS}:{SWS+3}], s75 offen sc1")
        e("  s_mov_b32 s37, 1")
    def fd_phase():
        e("  s_cmp_eq_u32 s95, 2")
        e("  s_cbranch_scc1 K_FDS")
        e("  s_cmp_lg_u32 s27, 0")
        e("  s_cbranch_scc1 K_FDS")
        e(f"  s_cmp_lt_u32 s73, {OPT['fdt']}")
        e("  s_cbranch_scc1 K_FDS")
        e("  s_cmp_eq_u32 s95, 0")
        e("  s_cbranch_scc1 K_FDI")
        fd_check("K_FDI")
        fd_compute("K_FDS")
        e("  s_branch K_FDS")
        e("K_FDI:")
        fd_issue()
        e("  s_mov_b32 s95, 1")
        e("  s_mov_b32 s37, 1")
        e("K_FDS:")
    def fd_exit():
        e("  s_cmp_eq_u32 s95, 2")
        e("  s_cbranch_scc1 K_FDES")
        e(f"  s_mov_b32 s74, {OPT['bnd']:#x}")
        e("K_FDEL:")
        fd_issue()
        e("  s_waitcnt vmcnt(0)")
        fd_check("K_FDEB")
        e("  s_branch K_FDEC")
        e("K_FDEB:")
        e("  s_sub_u32 s74, s74, 1")
        e("  s_cmp_lg_u32 s74, 0")
        e("  s_cbranch_scc1 K_FDEL")
        e("K_FDEC:")
        fd_compute("K_FDES")
        e("K_FDES:")

    def c_qk(KR, vk):
        if vk is not None:
            e(f"  s_waitcnt vmcnt({vk})")
        tl()
        for t in range(2):
            for i in range(4):
                c = "0" if i == 0 else f"v[{ST+4*t}:{ST+4*t+3}]"
                e(f"  v_mfma_f32_16x16x32_bf16 v[{ST+4*t}:{ST+4*t+3}], v[{KR+16*t+4*i}:{KR+16*t+4*i+3}], v[{QF+4*i}:{QF+4*i+3}], {c}")
    def c_sm(nop=True):
        if nop:
            e("  s_nop 7")
            e("  s_nop 0")
        e(f"  v_max3_f32 v{T0}, v{ST}, v{ST+1}, v{ST+2}")
        e(f"  v_max3_f32 v{T1}, v{ST+3}, v{ST+4}, v{ST+5}")
        e(f"  v_max3_f32 v{T0}, v{T0}, v{ST+6}, v{ST+7}")
        e(f"  v_max_f32 v{T0}, v{T0}, v{T1}")
        e(f"  v_mov_b32 v{T1}, v{T0}")
        e("  s_nop 1")
        e(f"  v_permlane16_swap_b32 v{T0}, v{T1}")
        e("  s_nop 1")
        e(f"  v_max_f32 v{T0}, v{T0}, v{T1}")
        e(f"  v_mov_b32 v{T1}, v{T0}")
        e("  s_nop 1")
        e(f"  v_permlane32_swap_b32 v{T0}, v{T1}")
        e("  s_nop 1")
        e(f"  v_max3_f32 v{T0}, v{T0}, v{T1}, v{M_}")
        e(f"  v_sub_f32 v{AL}, v{M_}, v{T0}")
        e(f"  v_mul_f32 v{AL}, s{SC}, v{AL}")
        e(f"  v_exp_f32 v{AL}, v{AL}")
        e(f"  v_mov_b32 v{M_}, v{T0}")
        e(f"  v_mul_f32 v{MC}, s{SC}, v{T0}")
        for k in range(8):
            e(f"  v_fma_f32 v{ST+k}, v{ST+k}, s{SC}, -v{MC}")
        for k in range(8):
            e(f"  v_exp_f32 v{ST+k}, v{ST+k}")
        e("  s_nop 0")
        e(f"  v_mul_f32 v{L_}, v{L_}, v{AL}")
        for k in range(8):
            e(f"  v_add_f32 v{L_}, v{L_}, v{ST+k}")
        for q in range(4):
            e(f"  v_cvt_pk_bf16_f32 v{PF+q}, v{ST+2*q}, v{ST+2*q+1}")
        for r in range(32):
            e(f"  v_mul_f32 v{ACC+r}, v{ACC+r}, v{AL}")
    def c_pv(VR, vv):
        if vv is not None:
            e(f"  s_waitcnt vmcnt({vv})")
        tl()
        for t in range(8):
            c = t >> 1
            sel = f"s{SP1}" if (t & 1) else f"s{SP0}"
            for q in range(4):
                e(f"  v_perm_b32 v{TR+4*t+q}, v{VR+4*(2*q+1)+c}, v{VR+4*(2*q)+c}, {sel}")
        e("  s_nop 1")
        for t in range(8):
            e(f"  v_mfma_f32_16x16x32_bf16 v[{ACC+4*t}:{ACC+4*t+3}], v[{TR+4*t}:{TR+4*t+3}], v[{PF}:{PF+3}], v[{ACC+4*t}:{ACC+4*t+3}]")

    def compute(KR, VR, vk, vv):
        c_qk(KR, vk)
        c_sm()
        c_pv(VR, vv)

    def fetch():
        e("  s_mov_b64 exec, 1")
        e("  ds_add_rtn_u32 v9, v7, v8")
        e("  s_mov_b64 exec, -1")
    def getidx(sidx):
        e("  s_waitcnt lgkmcnt(0)")
        e(f"  v_readfirstlane_b32 s{sidx}, v9")

    if OPT["nw"] < 8:
        e(f"  s_cmp_ge_u32 s3, {OPT['nw']}")
        e("  s_cbranch_scc1 K_EXIT")
    def gen_loop(sfx, last):
        if OPT["nbuf"] == 3:
            fetch()
            compute(KA, VA, 24, 16)
            getidx(IDXA)
            loads(KA, VA, IDXA)
            compute(KB, VB, 24, 16)
            e(f"  s_cmp_ge_u32 s{IDXA}, 64")
            e("  s_cbranch_scc1 K_EXIT")
        e(f"K_LOOP{sfx}:")
        if OPT["nbuf"] == 2:
            fetch()
            compute(KA, VA, 24, 16)
            getidx(IDXA)
            loads(KA, VA, IDXA)
            e(f"  s_cmp_ge_u32 s{IDXB}, 64")
            e("  s_cbranch_scc1 K_EXIT")
            fetch()
            compute(KB, VB, 24, 16)
            getidx(IDXB)
            loads(KB, VB, IDXB)
            e(f"  s_cmp_lt_u32 s{IDXA}, 64")
            e(f"  s_cbranch_scc1 K_LOOP{sfx}")
        else:
            NS = OPT["ns"]
            fetch()
            getidx(73)
            if OPT["dup"] > 1:
                e(f"  s_cmp_lt_u32 s73, {OPT['dup']}")
                e(f"  s_cselect_b32 s75, 0, 4096")
                e(f"  s_and_b32 s73, s73, 63")
                e(f"  s_add_u32 s73, s73, s75")
            e(f"  s_cmp_lt_u32 s73, {NS}")
            e(f"  s_cbranch_scc1 K_STA{sfx}")
            e("  v_mov_b32 v9, 1")
            e("  v_mov_b32 v10, 0")
            e("  s_mov_b64 exec, 1")
            e(f"  buffer_atomic_add v9, v10, s[{SWS}:{SWS+3}], s93 offen sc0 sc1")
            e("  s_mov_b64 exec, -1")
            e(f"K_STA{sfx}:")
            compute(KA, VA, 8, 0)
            e(f"  s_cmp_ge_u32 s73, {NS}")
            e(f"  s_cbranch_scc1 K_DY2{sfx}")
            e(f"  s_add_u32 s{IDXA}, s73, s94")
            e(f"  s_branch K_ST2{sfx}")
            e(f"K_DY2{sfx}:")
            e(f"  v_readfirstlane_b32 s{IDXA}, v9")
            e(f"  s_cmp_lt_u32 s{IDXA}, {(1024-16*NS)//OPT['nsub']}")
            e(f"  s_cselect_b32 s{IDXA}, s{IDXA}, 2048")
            e(f"  s_add_u32 s{IDXA}, s{IDXA}, s92")
            e(f"K_ST2{sfx}:")
            if OPT["fifo"]:
                e(f"  s_cmp_ge_u32 s{IDXA}, 1024")
                e(f"  s_cbranch_scc1 K_FD{sfx}")
                e(f"  s_sub_u32 s73, s73, {OPT['fw']}")
                e(f"  s_mov_b32 s74, {OPT['bnd']:#x}")
                e(f"K_FW{sfx}:")
                e("  ds_read_b32 v9, v7 offset:8")
                e("  s_waitcnt lgkmcnt(0)")
                e("  v_readfirstlane_b32 s75, v9")
                e("  s_cmp_ge_u32 s75, s73")
                e(f"  s_cbranch_scc1 K_FD{sfx}")
                if OPT["fsl"]: e(f"  s_sleep {OPT['fsl']}")
                e("  s_sub_u32 s74, s74, 1")
                e("  s_cmp_lg_u32 s74, 0")
                e(f"  s_cbranch_scc1 K_FW{sfx}")
                e(f"K_FD{sfx}:")
            x_loads("L"+sfx)
            loads(KA, VA, IDXA)
            if OPT["fifo"]:
                e("  s_mov_b64 exec, 1")
                e("  ds_add_u32 v7, v8 offset:8")
                e("  s_mov_b64 exec, -1")
            h_phase("L"+sfx)
            e(f"  s_cmp_lt_u32 s{IDXA}, 1024")
            e(f"  s_cbranch_scc1 K_LOOP{sfx}")
        if not last:
            e("  s_branch K_EXIT")
    def fifo_wait(lbl, off):
        e(f"  s_mov_b32 s74, {OPT['bnd']:#x}")
        e(f"{lbl}:")
        e(f"  ds_read_b32 v9, v7 offset:{off}")
        e("  s_waitcnt lgkmcnt(0)")
        e("  v_readfirstlane_b32 s75, v9")
        e("  s_cmp_ge_u32 s75, s73")
        e(f"  s_cbranch_scc1 {lbl}D")
        if OPT["fsl"]: e(f"  s_sleep {OPT['fsl']}")
        e("  s_sub_u32 s74, s74, 1")
        e("  s_cmp_lg_u32 s74, 0")
        e(f"  s_cbranch_scc1 {lbl}")
        e(f"{lbl}D:")
    def fifo_add(off):
        e("  s_mov_b64 exec, 1")
        e(f"  ds_add_u32 v7, v8 offset:{off}")
        e("  s_mov_b64 exec, -1")
    def gate(sfx):
        e("  s_cmp_eq_u32 s36, 0")
        e(f"  s_cbranch_scc1 K_GD{sfx}")
        e(f"K_G{sfx}:")
        e("  s_memrealtime s[98:99]")
        e("  s_waitcnt lgkmcnt(0)")
        e("  s_sub_u32 s75, s98, s39")
        e("  s_cmp_ge_u32 s75, s36")
        e(f"  s_cbranch_scc1 K_GD{sfx}")
        e("  s_sleep 1")
        e(f"  s_branch K_G{sfx}")
        e(f"K_GD{sfx}:")
    def gen_loop_sp():
        if OPT["th"] or OPT["fd"]:
            e("  s_mov_b32 s37, 0")
        e("K_LOOP:")
        if OPT["th"]:
            e("  s_mov_b64 exec, 1")
            e("  ds_add_rtn_u32 v9, v7, v8")
            e("  ds_read_b64 v[10:11], v7 offset:40")
            e("  s_mov_b64 exec, -1")
            e("  s_waitcnt lgkmcnt(0)")
            e("  v_readfirstlane_b32 s73, v9")
            e("  v_readfirstlane_b32 s39, v10")
            e("  v_readfirstlane_b32 s36, v11")
        else:
            if OPT["gp"]:
                e("  s_cmp_lg_u32 s37, 0")
                e("  s_cbranch_scc1 K_PL")
            if OPT["nw2"]:
                e(f"  s_cmp_lt_u32 s3, {OPT['nw2']}")
                e("  s_cbranch_scc1 K_N2A")
                e("  ds_read_b32 v9, v7")
                e("  s_waitcnt lgkmcnt(0)")
                e("  v_readfirstlane_b32 s73, v9")
                e(f"  s_cmp_lt_u32 s73, {OPT['n2t']}")
                e("  s_cbranch_scc1 K_N2A")
                e("  s_mov_b32 s73, 64")
                e("  s_branch K_N2B")
                e("K_N2A:")
            fetch()
            getidx(73)
            if OPT["gp"]:
                NS = OPT["gp"]; P = (64 - NS) * 16
                e(f"  s_cmp_lt_u32 s73, {NS}")
                e("  s_cbranch_scc1 K_N2B")
                e("  s_mov_b32 s73, 64")
                if OPT["nw2"]:
                    e(f"  s_cmp_ge_u32 s3, {OPT['nw2']}")
                    e("  s_cbranch_scc1 K_N2B")
                e("  s_mov_b32 s37, 1")
                e("  v_mov_b32 v249, 1")
                e("  s_mov_b64 exec, 1")
                e("  buffer_atomic_add v249, v250, s[20:23], 0 offen sc0 sc1")
                e("  s_mov_b64 exec, -1")
                e("  s_waitcnt vmcnt(0)")
                e("  s_branch K_PL2")
                e("K_PL:")
                e("  s_waitcnt vmcnt(8)")
                e("K_PL2:")
                e("  v_readfirstlane_b32 s36, v249")
                e(f"  s_cmp_lt_u32 s36, {P}")
                e("  s_cselect_b32 s73, 63, 64")
                if not OPT["nw2"]:
                    e("K_N2B:")
            if OPT["nw2"]:
                e("K_N2B:")
        if OPT["xw"]:
            e("  s_mov_b32 s38, 0")
            e("  s_cmp_lg_u32 s27, 5")
            e("  s_cbranch_scc1 K_WA")
            e("  s_mov_b32 s27, 0")
            e("  s_mov_b32 s38, 1")
            e("K_WA:")
            if OPT["fd"]:
                e("  s_or_b32 s38, s38, s37")
                e("  s_mov_b32 s37, 0")
            if OPT["th"]:
                e("  s_cmp_eq_u32 s37, 0")
                e("  s_cbranch_scc1 K_WB")
                e("  s_mov_b32 s38, 1")
                e("  s_cmp_eq_u32 s37, 2")
                e("  s_cselect_b32 s37, 3, 0")
                e("K_WB:")
            e("  s_cmp_eq_u32 s27, 1")
            e("  s_cbranch_scc1 K_WX")
            e("  s_cmp_eq_u32 s38, 0")
            e("  s_cbranch_scc1 K_W0")
            e("  s_waitcnt vmcnt(9)")
            e("  s_branch K_W1")
            e("K_WX:")
            e("  s_cmp_ge_u32 s2, 224")
            e("  s_cbranch_scc1 K_W3")
            e(f"  s_waitcnt vmcnt({12+2*OPT['jd']})")
            e("  s_branch K_W1")
            e("K_W3:")
            e(f"  s_waitcnt vmcnt({11+2*OPT['jd']})")
            e("  s_branch K_W1")
            e("K_W0:")
            e("  s_waitcnt vmcnt(8)")
            e("K_W1:")
            c_qk(KA, None)
        else:
            c_qk(KA, 8)
        tl(7)
        e("  s_cmp_ge_u32 s73, 64")
        e("  s_cbranch_scc1 K_NK")
        if OPT["gp"]:
            NS = OPT["gp"]
            assert OPT["rg"] == 6 and OPT["bs4"] == 2 and OPT["rm"] == 1
            e("  s_cmp_eq_u32 s37, 0")
            e("  s_cbranch_scc1 K_PMS")
            e("  s_lshr_b32 s75, s36, 4")
            e(f"  s_add_u32 s75, s75, {NS}")
            e("  s_bfe_u32 s76, s36, 0x20002")
            e("  s_and_b32 s77, s2, 60")
            e("  s_add_u32 s77, s77, s76")
            e(f"  s_mul_i32 s77, s77, {OPT['rr']}")
            e("  s_lshr_b32 s78, s75, 2")
            e("  s_add_u32 s78, s78, s77")
            e("  s_and_b32 s78, s78, 15")
            e("  s_lshl_b32 s78, s78, 4")
            e("  s_and_b32 s75, s75, 3")
            e("  s_add_u32 s78, s78, s75")
            e("  s_lshl_b32 s76, s76, 8")
            e("  s_add_u32 s78, s78, s76")
            e("  s_and_b32 s75, s36, 3")
            e("  s_lshl_b32 s75, s75, 2")
            e(f"  s_add_u32 s{IDXA}, s78, s75")
            e("  s_branch K_PMD")
            e("K_PMS:")
        mapidx(73)
        if OPT["gp"]:
            e("K_PMD:")
        blkoff(IDXA)
        e(f"  v_add_u32 v5, s75, v{VKOFF}")
        e(f"  v_add_u32 v6, s75, v{VVOFF}")
        if OPT["gp"]:
            e("  s_cmp_lg_u32 s37, 0")
            e("  s_cbranch_scc1 K_FKD")
        fifo_wait("K_FK", 8)
        if OPT["th"] == 1:
            e("  s_cmp_eq_u32 s36, 0")
            e("  s_cbranch_scc1 K_TNA")
            e(f"  s_cmp_ge_u32 s73, {OPT['te']}")
            e("  s_cbranch_scc1 K_TNA")
            e(f"  s_and_b32 s75, s73, {OPT['tm']}")
            e("  s_cmp_lg_u32 s75, 0")
            e("  s_cbranch_scc1 K_TNA")
            e("K_TSL:")
            e("  s_sleep 1")
            e("  s_sub_u32 s36, s36, 1")
            e("  s_cmp_lg_u32 s36, 0")
            e("  s_cbranch_scc1 K_TSL")
            e("K_TNA:")
        if OPT["th"] == 2:
            gate("K")
        tl(7)
        kchunk(KA, 5)
        tl(5)
        tl(7)
        fifo_add(8)
        e("K_NK:")
        c_sm(nop=True)
        e("  s_cmp_lt_u32 s73, 64")
        e("  s_cbranch_scc1 K_W8")
        e("  s_waitcnt vmcnt(0)")
        e("K_W8:")
        if OPT["prof"] == 7:
            e("  s_waitcnt vmcnt(8)")
            tl(7)
        c_pv(VA, 8)
        if OPT["th"]:
            e(f"  s_cmp_lg_u32 s37, 3")
            e("  s_cbranch_scc1 K_TNC")
            e("  s_mov_b32 s37, 0")
            e("  ds_read_b32 v10, v7 offset:36")
            e("  s_waitcnt lgkmcnt(0)")
            for r in range(244, 248):
                e(f"  v_sub_u32 v11, v{r}, v10")
                e(f"  v_and_b32 v9, 0xff, v11")
                e(f"  v_ashrrev_i32 v{r}, 8, v11")
                e(f"  v_cmp_eq_u32 vcc, 0, v9")
                e(f"  v_cndmask_b32 v{r}, 0, v{r}, vcc")
                e(f"  v_cmp_gt_i32 vcc, {OPT['tlim']}, v{r}")
                e(f"  v_cndmask_b32 v{r}, 0, v{r}, vcc")
            e("  v_max_i32 v244, v244, v245")
            e("  v_max_i32 v246, v246, v247")
            e("  v_max_i32 v244, v244, v246")
            red_steps([244], [245], "v_max_i32", ctrls=("quad_perm:[1,0,3,2]", "quad_perm:[2,3,0,1]", "row_half_mirror", "row_mirror"))
            e("  v_max_i32 v244, 0, v244")
            e(f"  v_mul_u32_u24 v244, {OPT['tg']}, v244")
            e("  v_lshrrev_b32 v244, 8, v244")
            e("  s_mov_b64 exec, 1")
            e("  ds_write_b32 v7, v244 offset:44")
            if OPT["th"] == 2:
                e("  s_memrealtime s[98:99]")
                e("  s_mul_i32 s75, s2, 5")
                e("  s_and_b32 s75, s75, 7")
                e(f"  s_mul_i32 s75, s75, {OPT['ts']}")
                e("  s_waitcnt lgkmcnt(0)")
                e("  s_add_u32 s75, s75, s98")
                e("  v_mov_b32 v9, s75")
                e("  ds_write_b32 v7, v9 offset:40")
            e("  s_mov_b64 exec, -1")
            if OPT["prof"] == 6:
                e("  v_readfirstlane_b32 s75, v244")
                e("  s_add_u32 s75, s75, 1")
                e("  v_writelane_b32 v251, s75, 10")
                e("  v_readfirstlane_b32 s75, v10")
                e("  v_writelane_b32 v251, s75, 11")
                e("  v_writelane_b32 v251, s73, 12")
                e("  s_memrealtime s[98:99]")
                e("  s_waitcnt lgkmcnt(0)")
                e("  v_writelane_b32 v251, s98, 13")
            e("K_TNC:")
        e("  s_cmp_ge_u32 s73, 64")
        e("  s_cbranch_scc1 K_NV")
        tl(7)
        if OPT["gp"]:
            e("  s_cmp_eq_u32 s37, 0")
            e("  s_cbranch_scc1 K_PCS")
            e("  v_mov_b32 v249, 1")
            e("  s_mov_b64 exec, 1")
            e("  buffer_atomic_add v249, v250, s[20:23], 0 offen sc0 sc1")
            e("  s_mov_b64 exec, -1")
            e("  s_branch K_FVD")
            e("K_PCS:")
        fifo_wait("K_FV", 12)
        if OPT["th"] == 2:
            gate("V")
        tl(7)
        vchunk(VA, 6)
        tl(5)
        tl(7)
        fifo_add(12)
        if OPT["th"]:
            e(f"  s_cmp_lg_u32 s73, {OPT['tp']}")
            e("  s_cbranch_scc1 K_TNP")
            e("  s_memrealtime s[98:99]")
            e("  s_waitcnt lgkmcnt(0)")
            e("  s_lshl_b32 s75, s98, 8")
            e("  s_and_b32 s76, s26, 0xff")
            e("  s_or_b32 s75, s75, s76")
            e("  v_mov_b32 v10, s75")
            e("  v_mov_b32 v11, 0")
            e("  s_lshl_b32 s76, s2, 2")
            e(f"  s_add_u32 s76, s76, {WS_PR}")
            e("  s_mov_b64 exec, 1")
            e(f"  buffer_store_dword v10, v11, s[{SWS}:{SWS+3}], s76 offen sc1")
            e("  ds_write_b32 v7, v10 offset:36")
            e("  s_mov_b64 exec, -1")
            e("  s_mov_b32 s37, 1")
            e("K_TNP:")
            e(f"  s_cmp_lg_u32 s73, {OPT['tr']}")
            e("  s_cbranch_scc1 K_TNR")
            e("  v_lshlrev_b32 v10, 4, v1")
            e(f"  s_mov_b32 s76, {WS_PR}")
            e(f"  buffer_load_dwordx4 v[244:247], v10, s[{SWS}:{SWS+3}], s76 offen sc1")
            e("  s_mov_b32 s37, 2")
            e("K_TNR:")
        e("K_NV:")
        if not OPT["pf"]:
            x_loads("L")
            h_phase("L")
        if OPT["pf"] == 2:
            wo_once("L")
        if OPT["fd"]:
            fd_phase()
        tl(7)
        e("  s_cmp_lt_u32 s73, 64")
        e("  s_cbranch_scc1 K_LOOP")
    def gen_loop_dy():
        NSW = OPT["ns"] // 8
        POOL = (1024 - 16*OPT["ns"]) // OPT["nsub"]
        e(f"  s_add_u32 s{IDXA}, s3, s94")
        e(f"  s_mov_b32 s36, {NSW-1}")
        e("  v_mov_b32 v249, 0")
        e("K_LOOP:")
        fetch()
        getidx(73)
        c_qk(KA, 8)
        e("  s_cmp_eq_u32 s36, 0")
        e("  s_cbranch_scc1 K_DYN")
        e(f"  s_add_u32 s{IDXA}, s{IDXA}, 8")
        e("  s_sub_u32 s36, s36, 1")
        e("  s_branch K_HAVE")
        e("K_DYN:")
        e(f"  v_readfirstlane_b32 s{IDXA}, v250")
        e(f"  s_cmp_lt_u32 s{IDXA}, {POOL}")
        e(f"  s_cselect_b32 s{IDXA}, s{IDXA}, 2048")
        e(f"  s_add_u32 s{IDXA}, s{IDXA}, s92")
        e(f"  s_cmp_lt_u32 s{IDXA}, 1024")
        e("  s_cbranch_scc1 K_HAVE")
        fifo_add(8)
        fifo_add(12)
        e("  s_branch K_NK")
        e("K_HAVE:")
        blkoff(IDXA)
        e(f"  v_add_u32 v5, s75, v{VKOFF}")
        e(f"  v_add_u32 v6, s75, v{VVOFF}")
        e("  v_mov_b32 v250, 1")
        fifo_wait("K_FK", 8)
        kchunk(KA, 5)
        e("  s_cmp_lg_u32 s36, 0")
        e("  s_cbranch_scc1 K_NAT")
        e("  s_mov_b64 exec, 1")
        e(f"  buffer_atomic_add v250, v249, s[{SWS}:{SWS+3}], s93 offen sc0 sc1")
        e("  s_mov_b64 exec, -1")
        e("K_NAT:")
        tl(5)
        fifo_add(8)
        e("K_NK:")
        c_sm(nop=True)
        e(f"  s_cmp_lt_u32 s{IDXA}, 1024")
        e("  s_cbranch_scc1 K_W8")
        e("  s_waitcnt vmcnt(0)")
        e("K_W8:")
        e("  s_cmp_lg_u32 s36, 0")
        e("  s_cbranch_scc1 K_W8S")
        e("  s_waitcnt vmcnt(9)")
        e("  s_branch K_W9")
        e("K_W8S:")
        e("  s_waitcnt vmcnt(8)")
        e("K_W9:")
        c_pv(VA, None)
        e(f"  s_cmp_ge_u32 s{IDXA}, 1024")
        e("  s_cbranch_scc1 K_NV")
        fifo_wait("K_FV", 12)
        vchunk(VA, 6)
        tl(5)
        fifo_add(12)
        e("K_NV:")
        if not OPT["pf"]:
            x_loads("L")
            h_phase("L")
        if OPT["pf"] == 2:
            wo_once("L")
        e(f"  s_cmp_lt_u32 s{IDXA}, 1024")
        e("  s_cbranch_scc1 K_LOOP")
    def gen_loop_dq():
        NS, D, CAP = OPT["ns"], OPT["dd"], OPT["cap"]
        POOL = 1024 - 16*NS
        INV = 4097
        def fetch2():
            e("  s_mov_b64 exec, 1")
            e("  ds_add_rtn_u32 v9, v7, v8")
            e("  ds_read_b32 v10, v7 offset:40")
            e("  s_mov_b64 exec, -1")
        def getidx2():
            e("  s_waitcnt lgkmcnt(0)")
            e("  v_readfirstlane_b32 s73, v9")
            e("  v_readfirstlane_b32 s38, v10")
        def publish(sfx):
            e("  s_cmp_eq_u32 s36, 0")
            e(f"  s_cbranch_scc1 K_NP{sfx}")
            e("  s_mov_b32 s36, 0")
            e("  v_readfirstlane_b32 s75, v250")
            e("  s_add_u32 s76, s75, s92")
            e("  s_add_u32 s76, s76, 1")
            e(f"  s_cmp_lt_u32 s75, {POOL}")
            e(f"  s_cselect_b32 s76, s76, {INV}")
            e("  s_cselect_b32 s77, 0, 1")
            e("  v_mov_b32 v10, s76")
            e("  v_add_u32 v11, 1, v10")
            e("  v_mov_b32 v9, s37")
            e("  v_mov_b32 v5, s77")
            e("  s_mov_b64 exec, 1")
            e(f"  ds_write_b64 v9, v[10:11] offset:{L_DQ}")
            e("  ds_or_b32 v7, v5 offset:40")
            e("  s_mov_b64 exec, -1")
            e(f"K_NP{sfx}:")
        def resolve(sfx):
            e(f"  s_add_u32 s{IDXA}, s73, s94")
            e(f"  s_cmp_lt_u32 s73, {NS}")
            e(f"  s_cbranch_scc1 K_RS{sfx}")
            e(f"  s_mov_b32 s{IDXA}, 4096")
            e(f"  s_cmp_ge_u32 s73, {NS+CAP}")
            e(f"  s_cbranch_scc1 K_RS{sfx}")
            e(f"  s_sub_u32 s75, s73, {NS}")
            e("  s_lshl_b32 s75, s75, 2")
            e("  v_mov_b32 v10, s75")
            e(f"  s_mov_b32 s74, {OPT['bnd']:#x}")
            e(f"K_RW{sfx}:")
            e(f"  ds_read_b32 v9, v10 offset:{L_DQ}")
            e("  s_waitcnt lgkmcnt(0)")
            e(f"  v_readfirstlane_b32 s{IDXA}, v9")
            e(f"  s_cmp_lg_u32 s{IDXA}, 0")
            e(f"  s_cbranch_scc1 K_RV{sfx}")
            e("  s_sub_u32 s74, s74, 1")
            e("  s_cmp_lg_u32 s74, 0")
            e(f"  s_cbranch_scc1 K_RW{sfx}")
            e(f"  s_mov_b32 s{IDXA}, {INV}")
            e(f"K_RV{sfx}:")
            e(f"  s_sub_u32 s{IDXA}, s{IDXA}, 1")
            e(f"K_RS{sfx}:")
        def claim(sfx):
            e(f"  s_sub_u32 s75, s73, {NS-D}")
            e(f"  s_cmp_ge_u32 s75, {CAP}")
            e(f"  s_cbranch_scc1 K_NC{sfx}")
            e("  s_bitcmp1_b32 s75, 0")
            e(f"  s_cbranch_scc1 K_NC{sfx}")
            e("  s_lshl_b32 s37, s75, 2")
            e("  s_cmp_eq_u32 s38, 0")
            e(f"  s_cbranch_scc1 K_CA{sfx}")
            e(f"  v_mov_b32 v10, {INV}")
            e(f"  v_mov_b32 v11, {INV}")
            e("  v_mov_b32 v9, s37")
            e("  s_mov_b64 exec, 1")
            e(f"  ds_write_b64 v9, v[10:11] offset:{L_DQ}")
            e("  s_mov_b64 exec, -1")
            e(f"  s_branch K_NC{sfx}")
            e(f"K_CA{sfx}:")
            e("  s_mov_b32 s36, 1")
            e("  v_mov_b32 v250, 2")
            e("  s_mov_b64 exec, 1")
            e(f"  buffer_atomic_add v250, v249, s[{SWS}:{SWS+3}], s93 offen sc0 sc1")
            e("  s_mov_b64 exec, -1")
            e(f"K_NC{sfx}:")
        e("  s_mov_b32 s36, 0")
        e("  v_mov_b32 v249, 0")
        e("K_LOOP:")
        e("  s_waitcnt vmcnt(8)")
        publish("A")
        fetch2()
        c_qk(KA, None)
        getidx2()
        resolve("A")
        e(f"  s_cmp_lt_u32 s{IDXA}, 1024")
        e("  s_cbranch_scc1 K_HAVE")
        fifo_add(8)
        e("  s_branch K_NK")
        e("K_HAVE:")
        blkoff(IDXA)
        e(f"  v_add_u32 v5, s75, v{VKOFF}")
        e(f"  v_add_u32 v6, s75, v{VVOFF}")
        fifo_wait("K_FK", 8)
        kchunk(KA, 5)
        tl(5)
        fifo_add(8)
        e("K_NK:")
        c_sm(nop=True)
        e(f"  s_cmp_lt_u32 s{IDXA}, 1024")
        e("  s_cbranch_scc1 K_W8")
        e("  s_waitcnt vmcnt(0)")
        e("K_W8:")
        c_pv(VA, 8)
        e(f"  s_cmp_ge_u32 s{IDXA}, 1024")
        e("  s_cbranch_scc1 K_DRI")
        fifo_wait("K_FV", 12)
        claim("A")
        vchunk(VA, 6)
        tl(5)
        fifo_add(12)
        x_loads("L")
        h_phase("L")
        e("  s_branch K_LOOP")
        e("K_DRI:")
        claim("B")
        fifo_add(12)
        e("K_DR:")
        e("  s_waitcnt vmcnt(0)")
        publish("B")
        e(f"  s_cmp_ge_u32 s73, {NS+CAP}")
        e("  s_cbranch_scc1 K_EXIT")
        fetch2()
        getidx2()
        resolve("B")
        e(f"  s_cmp_lt_u32 s{IDXA}, 1024")
        e("  s_cbranch_scc1 K_HV2")
        fifo_add(8)
        e("  s_branch K_DRI")
        e("K_HV2:")
        blkoff(IDXA)
        e(f"  v_add_u32 v5, s75, v{VKOFF}")
        e(f"  v_add_u32 v6, s75, v{VVOFF}")
        fifo_wait("K_FK2", 8)
        kchunk(KA, 5)
        fifo_add(8)
        fifo_wait("K_FV2", 12)
        claim("C")
        vchunk(VA, 6)
        fifo_add(12)
        e("  s_branch K_LOOP")
    if OPT["dq"]:
        gen_loop_dq()
    elif OPT["dy"]:
        gen_loop_dy()
    elif OPT["sp"]:
        gen_loop_sp()
    elif OPT["T"]:
        e(f"  s_lshl_b32 s75, s{SB}, 3")
        e(f"  s_add_u32 s75, s75, s{SG}")
        e(f"  s_cmp_lt_u32 s75, {OPT['T']}")
        e("  s_cbranch_scc1 K_LOOPlo")
        POL["k"] = "" if OPT["phi"] & 1 else nt
        POL["v"] = "" if OPT["phi"] & 2 else nt
        gen_loop("hi", False)
        POL["k"] = "" if OPT["plo"] & 1 else nt
        POL["v"] = "" if OPT["plo"] & 2 else nt
        gen_loop("lo", True)
    else:
        gen_loop("", True)
    e("K_EXIT:")
    if OPT["prof"] == 1: stamp(4)
    if OPT["prof"] >= 3: tl(OPT["prof"])
    tl_dump()
    if not OPT["pf"]:
        e("  s_cmp_eq_u32 s27, 0")
        e("  s_cbranch_scc1 K_X0")
        if OPT["xw"]:
            e("  s_cmp_eq_u32 s27, 5")
            e("  s_cbranch_scc1 K_X0")
        x_loads("E")
        e("  s_mov_b32 s27, 1")
        e("  s_waitcnt vmcnt(0)")
        h_phase("E")
        e("K_X0:")
    if OPT["pf"] == 2:
        wo_once("E")
    elif OPT["pf"]:
        pass
    elif OPT["fd"]:
        fd_exit()
    else:
        e("  s_cmp_ge_u32 s2, 224")
        e("  s_cbranch_scc1 K_HSK")
        if OPT["x2"]:
            e("  v_lshlrev_b32 v248, 4, v12")
            e("  v_lshl_add_u32 v248, v13, 10, v248")
            e("  s_lshr_b32 s75, s2, 3")
            e("  s_lshl_b32 s75, s75, 13")
            e(f"  s_add_u32 s75, s75, {WS_H2}")
        else:
            e("  v_lshrrev_b32 v5, 1, v12")
            e("  v_lshlrev_b32 v248, 3, v5")
            e("  s_lshr_b32 s75, s2, 3")
            e("  s_lshl_b32 s75, s75, 8")
            e(f"  s_add_u32 s75, s75, {WS_HG}")
        e("  v_add_u32 v248, s75, v248")
        h_loads()
        e("K_HSK:")
    e(f"  v_mov_b32 v{T1}, v{L_}")
    e("  s_nop 1")
    e(f"  v_permlane16_swap_b32 v{L_}, v{T1}")
    e("  s_nop 1")
    e(f"  v_add_f32 v{L_}, v{L_}, v{T1}")
    e(f"  v_mov_b32 v{T1}, v{L_}")
    e("  s_nop 1")
    e(f"  v_permlane32_swap_b32 v{L_}, v{T1}")
    e("  s_nop 1")
    e(f"  v_add_f32 v{L_}, v{L_}, v{T1}")
    e("  v_cmp_gt_u32 vcc, 4, v3")
    e("  s_and_saveexec_b64 s[78:79], vcc")
    if OPT["cb"]:
        e("  v_lshlrev_b32 v5, 4, v2")
        e("  v_lshl_add_u32 v5, v3, 2, v5")
        e("  v_add_u32 v5, v4, v5")
        e("  v_mul_u32_u24 v5, 144, v5")
        e("  s_nop 4")
        for t in range(8):
            e(f"  ds_write_b128 v5, v[{ACC+4*t}:{ACC+4*t+3}] offset:{L_O + t*16}")
    else:
        e("  v_lshlrev_b32 v5, 11, v2")
        e("  v_lshl_add_u32 v5, v3, 9, v5")
        e("  v_lshl_add_u32 v5, v4, 7, v5")
        e("  s_nop 4")
        for t in range(8):
            for r in range(4):
                e(f"  ds_write_b32 v5, v{ACC+4*t+r} offset:{L_O + (r*8+t)*4}")
    e("  v_cmp_gt_u32 vcc, 4, v1")
    e("  s_and_b64 exec, exec, vcc")
    e("  v_lshlrev_b32 v6, 5, v2")
    e("  v_lshl_add_u32 v6, v3, 3, v6")
    e(f"  ds_write_b32 v6, v{M_} offset:{L_ML}")
    e(f"  ds_write_b32 v6, v{L_} offset:{L_ML+4}")
    e("  s_mov_b64 exec, s[78:79]")
    if OPT["pf"] == 2:
        fd_at_exit()
    e("  s_waitcnt lgkmcnt(0)")
    e("  s_barrier")
    tl6(2)
    e("  v_lshrrev_b32 v5, 7, v0")
    e("  v_and_b32 v6, 127, v0")
    e("  v_lshlrev_b32 v7, 3, v5")
    for w in range(8):
        e(f"  ds_read_b64 v[{160+2*w}:{161+2*w}], v7 offset:{L_ML + w*32}")
    if OPT["cb"]:
        e("  v_lshrrev_b32 v8, 5, v0")
        e("  v_mul_u32_u24 v8, 144, v8")
        if OPT["t2"]:
            e("  v_and_b32 v9, 24, v0")
            e("  v_and_b32 v10, 1, v0")
            e("  v_lshl_add_u32 v9, v10, 2, v9")
            e("  v_bfe_u32 v10, v0, 1, 2")
            e("  v_add_u32 v9, v10, v9")
        else:
            e("  v_and_b32 v9, 31, v0")
        e("  v_lshl_add_u32 v8, v9, 2, v8")
        for w in range(8):
            e(f"  ds_read_b32 v{176+w}, v8 offset:{L_O + w*2304}")
    else:
        e("  v_lshlrev_b32 v8, 9, v5")
        e("  v_lshl_add_u32 v8, v6, 2, v8")
        for w in range(8):
            e(f"  ds_read_b32 v{176+w}, v8 offset:{L_O + w*2048}")
    e("  s_waitcnt lgkmcnt(0)")
    e("  v_max3_f32 v184, v160, v162, v164")
    e("  v_max3_f32 v185, v166, v168, v170")
    e("  v_max3_f32 v184, v184, v172, v174")
    e("  v_max_f32 v184, v184, v185")
    e("  v_mov_b32 v186, 0")
    e("  v_mov_b32 v187, 0")
    for w in range(8):
        e(f"  v_sub_f32 v185, v{160+2*w}, v184")
        e(f"  v_mul_f32 v185, s{SC}, v185")
        e("  v_exp_f32 v185, v185")
        e("  s_nop 0")
        e(f"  v_fmac_f32 v186, v185, v{161+2*w}")
        e(f"  v_fmac_f32 v187, v185, v{176+w}")
    e(f"  s_lshl_b32 s75, s{SB}, 5")
    e(f"  s_lshl_b32 s76, s{SG}, 2")
    e("  s_add_u32 s75, s75, s76")
    e("  s_lshl_b32 s75, s75, 4")
    e(f"  s_add_u32 s75, s75, s{SSPL}")
    e("  v_lshlrev_b32 v7, 4, v5")
    e("  v_add_u32 v7, s75, v7")
    e("  v_lshlrev_b32 v8, 10, v7")
    e("  v_lshl_add_u32 v8, v6, 3, v8")
    e(f"  s_mov_b32 s75, {WS_OG}")
    e("  v_mov_b32 v188, v187")
    e("  v_mov_b32 v189, s26")
    e(f"  buffer_store_dwordx2 v[188:189], v8, s[{SWS}:{SWS+3}], s75 offen sc1")
    e("  v_cmp_eq_u32 vcc, 0, v6")
    e("  s_and_saveexec_b64 s[78:79], vcc")
    e("  v_lshlrev_b32 v7, 4, v7")
    e("  v_mov_b32 v185, v186")
    e("  v_mov_b32 v186, s26")
    e(f"  s_mov_b32 s75, {WS_MG}")
    e(f"  buffer_store_dwordx3 v[184:186], v7, s[{SWS}:{SWS+3}], s75 offen sc1")
    e("  s_mov_b64 exec, s[78:79]")
    if OPT["prof"] == 1: stamp(5)
    tl6(3)

    def prod(wregs, vecaddr_rows, accbase, nrows):
        for r in range(16):
            e(f"  v_mov_b32 v{accbase+r}, 0")
        for i in range(nrows):
            for c in range(4):
                w = wregs + 4 * i + c
                e(f"  v_lshlrev_b32 v160, 16, v{w}")
                e(f"  v_and_b32 v161, 0xffff0000, v{w}")
                e(f"  v_fmac_f32 v{accbase+2*c}, v160, v{168+2*i}")
                e(f"  v_fmac_f32 v{accbase+1+2*c}, v161, v{168+2*i}")
                e(f"  v_fmac_f32 v{accbase+8+2*c}, v160, v{169+2*i}")
                e(f"  v_fmac_f32 v{accbase+9+2*c}, v161, v{169+2*i}")
        dpp_steps(list(range(accbase, accbase + 16)), ["row_ror:8"])

    def reduce_store(lbase, label, snc):
        e("  v_lshlrev_b32 v5, 2, v2")
        e("  v_add_u32 v5, v5, v4")
        e("  v_lshlrev_b32 v5, 9, v5")
        e("  v_and_b32 v6, 7, v1")
        e("  v_lshl_add_u32 v5, v6, 5, v5")
        e("  v_and_b32 v6, 8, v1")
        e("  v_cmp_eq_u32 vcc, 0, v6")
        e("  s_and_saveexec_b64 s[78:79], vcc")
        e(f"  ds_write_b128 v5, v[180:183] offset:{lbase}")
        e(f"  ds_write_b128 v5, v[184:187] offset:{lbase+16}")
        e(f"  ds_write_b128 v5, v[188:191] offset:{lbase+256}")
        e(f"  ds_write_b128 v5, v[192:195] offset:{lbase+256+16}")
        e("  s_mov_b64 exec, s[78:79]")
        e("  s_waitcnt lgkmcnt(0)")
        e("  s_barrier")
        e("  s_cmp_ge_u32 s3, 2")
        e(f"  s_cbranch_scc1 {label}")
        e("  v_lshlrev_b32 v5, 2, v0")
        for p in range(32):
            e(f"  ds_read_b32 v{204+p}, v5 offset:{lbase + p*512}")
        e("  s_waitcnt lgkmcnt(0)")
        for p in range(1, 31, 2):
            e(f"  v_add_f32 v{204+p}, v{204+p}, v{205+p}")
        e("  v_add_f32 v204, v204, v235")
        for p in range(1, 31, 2):
            e(f"  v_add_f32 v204, v204, v{204+p}")
        e("  v_lshlrev_b32 v5, 12, v2")
        e("  v_lshl_add_u32 v5, v1, 3, v5")
        e(f"  s_lshl_b32 s76, s{snc}, 9")
        e(f"  s_add_u32 s75, s75, s76")
        e("  v_mov_b32 v205, s26")
        e(f"  buffer_store_dwordx2 v[204:205], v5, s[{SWS}:{SWS+3}], s75 offen sc1")
        e(f"{label}:")

    if not OPT["fd"] and not OPT["pf"]:
        e("  s_cmp_ge_u32 s2, 224")
        e("  s_cbranch_scc1 K_T4")
        e(f"  s_mov_b32 s74, {OPT['bnd']:#x}")
        e("  s_waitcnt vmcnt(1)")
        e("K_HR:")
        e("  v_cmp_ne_u32 vcc, s26, v%d" % (246 if OPT["x2"] else 245))
        e("  v_cmp_ne_u32 s[78:79], s26, v247")
        e("  s_or_b64 vcc, vcc, s[78:79]")
        e("  s_cmp_eq_u64 vcc, 0")
        e("  s_cbranch_scc1 K_HOK")
        h_loads()
        e("  s_waitcnt vmcnt(0)")
        e("  s_sub_u32 s74, s74, 1")
        e("  s_cmp_lg_u32 s74, 0")
        e("  s_cbranch_scc1 K_HR")
        e("K_HOK:")
        if OPT["x2"]:
            dpp_steps([244, 245], ["quad_perm:[1,0,3,2]", "quad_perm:[2,3,0,1]", "row_half_mirror"])
            e("  v_max_f32 v168, 0, v244")
            e("  v_max_f32 v169, 0, v245")
            round_bf16(168, 168)
            round_bf16(169, 169)
        else:
            e("  v_and_b32 v5, 1, v12")
            e("  v_cmp_eq_u32 vcc, 1, v5")
            e("  v_lshlrev_b32 v168, 16, v244")
            e("  v_and_b32 v5, 0xffff0000, v244")
            e("  v_lshlrev_b32 v169, 16, v246")
            e("  v_and_b32 v6, 0xffff0000, v246")
            e("  v_cndmask_b32 v168, v168, v5, vcc")
            e("  v_cndmask_b32 v169, v169, v6, vcc")
        prod(W2, None, 180, 1)
        e("  s_lshr_b32 s75, s2, 3")
        e("  s_lshl_b32 s75, s75, 13")
        e(f"  s_add_u32 s75, s75, {WS_GG}")
        reduce_store(L_FP, "K_T3B", SNC)
    e("K_T4:")
    if OPT["t2"]:
        tail2()
        return_early = True
    else:
        return_early = False
    if return_early:
        pass
    elif not OPT["mf"]:
        e("  s_cmp_ge_u32 s3, 4")
        e("  s_cbranch_scc1 K_T6")
        e("  v_lshrrev_b32 v6, 7, v0")
        e("  v_and_b32 v7, 127, v0")
        e("  v_lshlrev_b32 v8, 5, v6")
        e(f"  v_add_u32 v8, s{SHEAD}, v8")
        e("  v_lshlrev_b32 v9, 8, v8")
        e("  v_lshlrev_b32 v10, 14, v8")
        e("  v_lshl_add_u32 v10, v7, 3, v10")
        e(f"  s_mov_b32 s76, {WS_MG}")
        def iss2(sp):
            e(f"  s_mov_b32 s75, {WS_OG + 4096*(sp>>2)}")
            bits = {0:"", 1:" sc1", 2:" sc0", 3:" sc0 sc1", 4:" nt", 5:" sc0 nt"}[OPT["p2"]]
            e(f"  buffer_load_dwordx2 v[{16+2*sp}:{17+2*sp}], v10, s[{SWS}:{SWS+3}], s75 offen offset:{(sp&3)*1024}{bits}")
            e(f"  buffer_load_dwordx3 v[{48+4*sp}:{50+4*sp}], v9, s[{SWS}:{SWS+3}], s76 offen offset:{sp*16}{bits}")
        mpoll("K_P2", 16, iss2, lambda sp: [17+2*sp, 50+4*sp], OPT["thr"])
        if OPT["prof"] == 1: stamp(6)
        M = lambda sp: 48+4*sp
        e(f"  v_max3_f32 v112, v{M(0)}, v{M(1)}, v{M(2)}")
        for sp in range(3, 15, 2):
            e(f"  v_max3_f32 v112, v112, v{M(sp)}, v{M(sp+1)}")
        e(f"  v_max_f32 v112, v112, v{M(15)}")
        e("  v_mov_b32 v113, 0")
        e("  v_mov_b32 v114, 0")
        for sp in range(16):
            e(f"  v_sub_f32 v{M(sp)}, v{M(sp)}, v112")
            e(f"  v_mul_f32 v{M(sp)}, s{SC}, v{M(sp)}")
            e(f"  v_exp_f32 v{M(sp)}, v{M(sp)}")
        e("  s_nop 0")
        for sp in range(16):
            e(f"  v_fmac_f32 v113, v{M(sp)}, v{M(sp)+1}")
            e(f"  v_fmac_f32 v114, v{M(sp)}, v{16+2*sp}")
        e("  v_mov_b32 v49, v113")
        e("  v_mov_b32 v50, v114")
        e("  v_rcp_f32 v49, v49")
        e("  s_nop 0")
        e("  v_mul_f32 v50, v50, v49")
        round_bf16(50, 50)
        e("  v_lshlrev_b32 v8, 2, v0")
        e(f"  ds_write_b32 v8, v50 offset:{L_VEC}")
        e("  s_waitcnt lgkmcnt(0)")
        e("K_T6:")
        e("  s_barrier")
        e("  v_lshlrev_b32 v5, 2, v12")
        e(f"  ds_read_b32 v168, v5 offset:{L_VEC}")
        e(f"  ds_read_b32 v169, v5 offset:{L_VEC+512}")
        e(f"  ds_read_b32 v170, v5 offset:{L_VEC+256}")
        e(f"  ds_read_b32 v171, v5 offset:{L_VEC+512+256}")
        e("  s_waitcnt lgkmcnt(0)")
        prod(WO, None, 180, 2)
        e(f"  s_lshl_b32 s75, s{SHEAD}, 13")
        e(f"  s_add_u32 s75, s75, {WS_SG}")
        reduce_store(L_SP, "K_T6B", SNO)
    else:
        e("  s_cmp_ge_u32 s3, 4")
        e("  s_cbranch_scc1 K_END")
        e("  s_and_b32 s75, s3, 1")
        e("  s_cmp_eq_u32 s75, 1")
        e(f"  s_cselect_b32 s75, s{SP1}, s{SP0}")
        for ks in range(4):
            for q in range(4):
                e(f"  v_perm_b32 v{112+ks*4+q}, v{80+ks*8+2*q+1}, v{80+ks*8+2*q}, s75")
        e("  v_lshrrev_b32 v6, 7, v0")
        e("  v_and_b32 v7, 127, v0")
        e("  v_lshlrev_b32 v8, 5, v6")
        e(f"  v_add_u32 v8, s{SHEAD}, v8")
        e("  v_lshlrev_b32 v9, 8, v8")
        e("  v_lshlrev_b32 v10, 14, v8")
        e("  v_lshl_add_u32 v10, v7, 3, v10")
        e(f"  s_mov_b32 s76, {WS_MG}")
        def iss2(sp):
            e(f"  s_mov_b32 s75, {WS_OG + 4096*(sp>>2)}")
            e(f"  buffer_load_dwordx2 v[{16+2*sp}:{17+2*sp}], v10, s[{SWS}:{SWS+3}], s75 offen offset:{(sp&3)*1024} sc1")
            e(f"  buffer_load_dwordx3 v[{48+4*sp}:{50+4*sp}], v9, s[{SWS}:{SWS+3}], s76 offen offset:{sp*16} sc1")
        e("  v_and_b32 v11, 1, v3")
        e("  v_lshlrev_b32 v11, 8, v11")
        e("  v_lshl_add_u32 v11, v4, 4, v11")
        e("  v_and_b32 v12, 1, v4")
        e("  v_lshlrev_b32 v13, 12, v12")
        e("  v_lshl_add_u32 v13, v3, 4, v13")
        e("  s_lshr_b32 s75, s3, 1")
        e("  s_lshl_b32 s75, s75, 8")
        e("  s_and_b32 s78, s3, 1")
        e("  s_lshl_b32 s78, s78, 3")
        e("  s_add_u32 s75, s75, s78")
        e(f"  s_lshl_b32 s78, s{SNO}, 9")
        e("  s_add_u32 s75, s75, s78")
        e(f"  s_lshl_b32 s78, s{SHEAD}, 13")
        e("  s_add_u32 s75, s75, s78")
        e(f"  s_add_u32 s75, s75, {WS_SG}")
        e("  v_add_u32 v13, s75, v13")
        if OPT["gate"]:
            GB = [4, 36, 52, 80]
            e("  s_lshr_b32 s72, s3, 1")
            e("  s_lshl_b32 s72, s72, 5")
            e(f"  s_add_u32 s72, s72, s{SHEAD}")
            e("  s_lshl_b32 s72, s72, 8")
            e(f"  s_add_u32 s72, s72, {WS_MG}")
            e(f"  s_mov_b32 s74, {OPT['bnd']:#x}")
            e("K_GT:")
            for i, b_ in enumerate(GB):
                e(f"  s_load_dwordx16 s[{b_}:{b_+15}], s[24:25], s72 offset:{64*i} glc")
            e("  s_mov_b32 s75, 0")
            e("  s_waitcnt lgkmcnt(0)")
            for k in range(16):
                e(f"  s_cmp_eq_u32 s{GB[k>>2] + 4*(k&3) + 2}, s26")
                e("  s_addc_u32 s75, s75, 0")
            e(f"  s_cmp_ge_u32 s75, {16-OPT['gthr']}")
            e("  s_cbranch_scc1 K_GTD")
            if OPT["gsl"]: e(f"  s_sleep {OPT['gsl']}")
            e("  s_sub_u32 s74, s74, 1")
            e("  s_cmp_lg_u32 s74, 0")
            e("  s_cbranch_scc1 K_GT")
            e("K_GTD:")
        mpoll("K_P2", 16, iss2, lambda sp: [17+2*sp, 50+4*sp], OPT["thr"])
        if OPT["prof"] == 1: stamp(6)
        tl6(4)
        M = lambda sp: 48+4*sp
        e(f"  v_max3_f32 v128, v{M(0)}, v{M(1)}, v{M(2)}")
        for sp in range(3, 15, 2):
            e(f"  v_max3_f32 v128, v128, v{M(sp)}, v{M(sp+1)}")
        e(f"  v_max_f32 v128, v128, v{M(15)}")
        e("  v_mov_b32 v129, 0")
        e("  v_mov_b32 v130, 0")
        for sp in range(16):
            e(f"  v_sub_f32 v{M(sp)}, v{M(sp)}, v128")
            e(f"  v_mul_f32 v{M(sp)}, s{SC}, v{M(sp)}")
            e(f"  v_exp_f32 v{M(sp)}, v{M(sp)}")
        e("  s_nop 0")
        for sp in range(16):
            e(f"  v_fmac_f32 v129, v{M(sp)}, v{M(sp)+1}")
            e(f"  v_fmac_f32 v130, v{M(sp)}, v{16+2*sp}")
        e("  v_rcp_f32 v129, v129")
        e("  s_nop 0")
        e("  v_mul_f32 v130, v130, v129")
        e("  v_cvt_pk_bf16_f32 v130, v130, v130")
        if OPT["cb"]:
            e("  v_and_b32 v8, 0xe0, v0")
            e("  v_and_b32 v5, 3, v0")
            e("  v_lshl_add_u32 v8, v5, 3, v8")
            e("  v_bfe_u32 v5, v0, 2, 3")
            e("  v_add_u32 v8, v5, v8")
            e("  v_lshlrev_b32 v8, 1, v8")
        else:
            e("  v_lshlrev_b32 v8, 1, v0")
        e(f"  ds_write_b16 v8, v130 offset:{L_VEC}")
        e("  s_waitcnt lgkmcnt(0)")
        e("  s_barrier")
        for ks in range(4):
            e(f"  ds_read_b128 v[{132+4*ks}:{135+4*ks}], v11 offset:{L_VEC + ks*64}")
        e("  s_waitcnt lgkmcnt(0)")
        for ks in range(4):
            c = "0" if ks == 0 else "v[148:151]"
            e(f"  v_mfma_f32_16x16x32_bf16 v[148:151], v[{132+4*ks}:{135+4*ks}], v[{112+4*ks}:{115+4*ks}], {c}")
        e("  v_cmp_eq_u32 vcc, 1, v12")
        e("  v_mov_b32 v153, s26")
        e("  s_nop 7")
        e("  s_nop 7")
        e("  v_cndmask_b32 v152, v148, v149, vcc")
        e("  s_mov_b64 exec, 0xffffffff")
        e(f"  buffer_store_dwordx2 v[152:153], v13, s[{SWS}:{SWS+3}], 0 offen sc1")
        e("  s_mov_b64 exec, -1")
    if not OPT["t2"]:
        if OPT["prof"] == 1: stamp(7)
        tl6(5)
        e("  s_cmp_ge_u32 s2, 8")
        e("  s_cbranch_scc1 K_END")
        e("  s_cmp_ge_u32 s3, 4")
        e("  s_cbranch_scc1 K_END")
        def gpoll(label, n, base):
            def iss(k):
                e(f"  s_mov_b32 s75, {base + k*8192}")
                e(f"  buffer_load_dwordx2 v[{16+2*k}:{17+2*k}], v10, s[{SWS}:{SWS+3}], s75 offen sc1")
            mpoll(label, n, iss, lambda k: [17+2*k], None)
            for k in range(1, n):
                e(f"  v_add_f32 v16, v16, v{16+2*k}")
        e("  v_and_b32 v5, 1, v2")
        e("  v_lshlrev_b32 v5, 11, v5")
        e("  v_lshl_add_u32 v5, v1, 2, v5")
        e(f"  s_and_b32 s76, s2, 7")
        e(f"  s_lshl_b32 s76, s76, 8")
        e("  v_add_u32 v5, s76, v5")
        e("  v_lshlrev_b32 v10, 1, v5")
        e("  s_cmp_ge_u32 s3, 2")
        e("  s_cbranch_scc1 K_FG")
        e("  v_lshrrev_b32 v6, 1, v5")
        e(f"  buffer_load_ushort v4, v6, s[{SX}:{SX+3}], 0 offen")
        gpoll("K_P3", 32, WS_SG)
        tl6(6)
        round_bf16(16, 16)
        e("  s_barrier")
        e("  v_lshlrev_b32 v7, 2, v0")
        e(f"  ds_read_b32 v8, v7 offset:{L_GX}")
        e("  s_waitcnt lgkmcnt(0)")
        e("  v_mul_f32 v8, v8, v16")
        round_bf16(8, 8)
        e("  v_lshlrev_b32 v4, 16, v4")
        e("  v_add_f32 v8, v8, v4")
        e("  v_cvt_pk_bf16_f32 v8, v8, v8")
        e(f"  buffer_store_short v8, v6, s[{SOUT}:{SOUT+3}], 0 offen")
        e("  s_or_b32 s75, s2, s3")
        e("  s_cmp_lg_u32 s75, 0")
        e("  s_cbranch_scc1 K_END")
        e("  s_mov_b64 exec, 1")
        e(f"  v_mov_b32 v5, {WS_EP}")
        e("  v_mov_b32 v6, s26")
        e(f"  buffer_store_dword v6, v5, s[{SWS}:{SWS+3}], 0 offen")
        e("  s_branch K_END")
        e("K_FG:")
        gpoll("K_P4", 28, WS_GG)
        tl6(6)
        round_bf16(16, 16)
        e("  v_mul_f32 v5, 0xbfb8aa3b, v16")
        e("  v_exp_f32 v5, v5")
        e("  s_nop 0")
        e("  v_add_f32 v5, 1.0, v5")
        e("  v_rcp_f32 v5, v5")
        e("  s_nop 0")
        e("  v_mul_f32 v5, v5, v16")
        round_bf16(5, 5)
        e("  v_and_b32 v7, 127, v0")
        e("  v_lshlrev_b32 v7, 2, v7")
        e(f"  ds_write_b32 v7, v5 offset:{L_GX}")
        e("  s_waitcnt lgkmcnt(0)")
        e("  s_barrier")
    e("K_END:")
    dump_stamps()
    e("  s_endpgm")
    e('.section .rodata,"a"')
    e(".p2align 6")
    e(f".amdhsa_kernel {name}")
    e("  .amdhsa_next_free_vgpr 256")
    e("  .amdhsa_next_free_sgpr 102")
    e("  .amdhsa_accum_offset 256")
    e("  .amdhsa_group_segment_fixed_size 0")
    e("  .amdhsa_kernarg_size 88")
    e("  .amdhsa_user_sgpr_count 2")
    e("  .amdhsa_user_sgpr_kernarg_segment_ptr 1")
    e("  .amdhsa_system_sgpr_workgroup_id_x 1")
    e(".end_amdhsa_kernel")

def main():
    path = f"cdna_kernels/{NAME}.s"
    for a in sys.argv[1:]:
        if "=" in a:
            k, v = a.split("=", 1)
            OPT[k] = (" " + v if v else "") if k == "nt" else int(v)
        else:
            path = a
    e(HEADER.rstrip("\n"))
    lds = 61952 if OPT["x2"] else LDS_SIZE
    if OPT["jd"]: lds = L_WO + 128*272
    e(f"; @launch grid=(256,1,1) block=(512,1,1) lds={lds}")
    e('.amdgcn_target "amdgcn-amd-amdhsa--gfx950"')
    gen()
    open(path, "w").write("\n".join(out) + "\n")

main()
```

```python
import sys

NAME = "recurrent_scan__gqa_block_cached__dense_activation_relu__decode"

HEADER = """; Kernarg layout for this problem (88 bytes, ptrs only, base s[0:1]):
;   offset   0: d_in[0] A_x  shape=(2, 1, 512) dtype=bfloat16 strides=(1024, 1024, 2) contiguous=True
;   offset   8: d_in[1] A_k_cache  shape=(2, 8, 32768, 128) dtype=bfloat16 strides=(67108864, 8388608, 256, 2) contiguous=True
;   offset  16: d_in[2] A_v_cache  shape=(2, 8, 32768, 128) dtype=bfloat16 strides=(67108864, 8388608, 256, 2) contiguous=True
;   offset  24: d_in[3] A_wq  shape=(512, 4096) dtype=bfloat16 strides=(8192, 2) contiguous=True
;   offset  32: d_in[4] A_wo  shape=(4096, 512) dtype=bfloat16 strides=(1024, 2) contiguous=True
;   offset  40: d_in[5] B_x  shape=(2, 1, 512) dtype=bfloat16 strides=(1024, 1024, 2) contiguous=True
;   offset  48: d_in[6] B_w1  shape=(512, 1792) dtype=bfloat16 strides=(3584, 2) contiguous=True
;   offset  56: d_in[7] B_w2  shape=(1792, 512) dtype=bfloat16 strides=(1024, 2) contiguous=True
"""

WS_Q = 0
WS_H = 16384
WS_ML = 32768
WS_O = 65536
WS_P = 1 << 20
WS_G = WS_P + 131072
WS_SIZE = 536870912
WS_QG = 2 << 20
WS_HG = WS_QG + 32768
WS_EP = WS_QG + 65536
WS_QF = WS_QG + 131072
WS_OG = 5 << 20
WS_MG = 6 << 20
WS_SG = WS_MG + 65536
WS_GG = 7 << 20
WS_PC = 3 << 20

L_XN = 0
L_QP = 4096
L_Q = 5632
L_HV = 6656
L_CNT = 7168
L_O = 8192
L_ML = 26624
L_FP = 27136
L_VEC = 0
L_SP = 8192
L_GX = 1024
LDS_SIZE = 43520
L_DQ = 7232
L_WO = 43520
WS_PR = 11 << 20
WS_H2 = 10 << 20

OPT = dict(nt=" nt", sleep=1, prof=0, pre0=0, pace=8, bar0=1, wsc=0, thr=2, p2=1, ilv=0, kx=0, nbuf=1, nw=8, kpl=0, vpl=0, T=0, plo=0, phi=0, mf=1, prex=0, qs=0, warm=0, xb=1, f1=8, np=8, sl=8, psl=8, bnd=0x100000, bar2=1, f2=8, rot=0, map=1, ns=64, fake=0, warmp=0, nsub=4, fifo=1, fw=0, fsl=1, dup=1, rs=1, qsl=0, qp=4, sp=1, nf=10, cb=1, fd=0, fdt=32, gate=0, gthr=2, gsl=1, t2=1, spec=8, psl2=1, pw=1, fsl2=1, fw2=1, obar=0, f1st=1, pf=0, dy=0, dfi=1, x2=0, dq=0, dd=10, cap=32, il2=0, bm=0, ra=4, rb=0, xw=0, th=0, tp=20, tr=28, te=64, tg=20, tlim=600, tm=3, ts=150, jd=0, nd=0, fs=0, mg=0, rg=0, rm=1, rr=1, bs4=2, ps=0, xs=0, rq=0, rz=0, pclk=0, wnt=0, wpol=0, xm=0, cgx=0, nw2=0, n2t=48, gp=0, gf=0)

out = []
def e(s=""):
    if OPT["wnt"] and s.startswith("  buffer_load"):
        for bit, base in ((1, 40), (2, 44), (4, 48), (8, 52), (16, 28)):
            if (OPT["wnt"] & bit) and f"s[{base}:{base+3}]" in s:
                s = s + [" nt", " sc1", " sc0 sc1", " nt sc1"][OPT["wpol"]]
    out.append(s)

def srd(dst, lo, hi, nbytes):
    e(f"  s_mov_b32 s{dst}, s{lo}")
    e(f"  s_and_b32 s{dst+1}, s{hi}, 0xffff")
    e(f"  s_mov_b32 s{dst+2}, {nbytes}")
    e(f"  s_mov_b32 s{dst+3}, 0x00020000")

def dpp_steps(regs, ctrls):
    for ctrl in ctrls:
        e("  s_nop 1")
        for r in regs:
            e(f"  v_add_f32_dpp v{r}, v{r}, v{r} {ctrl} row_mask:0xf bank_mask:0xf")

def swap_steps(regs, tmp):
    for sw in ["v_permlane16_swap_b32", "v_permlane32_swap_b32"]:
        for r, t in zip(regs, tmp):
            e(f"  v_mov_b32 v{t}, v{r}")
        e("  s_nop 1")
        for r, t in zip(regs, tmp):
            e(f"  {sw} v{r}, v{t}")
        e("  s_nop 1")
        for r, t in zip(regs, tmp):
            e(f"  v_add_f32 v{r}, v{r}, v{t}")

def red_steps(regs, tmp, op, ctrls=("row_ror:4", "row_ror:8")):
    for ctrl in ctrls:
        e("  s_nop 1")
        for r in regs:
            e(f"  {op}_dpp v{r}, v{r}, v{r} {ctrl} row_mask:0xf bank_mask:0xf")
    for sw in ["v_permlane16_swap_b32", "v_permlane32_swap_b32"]:
        for r, t in zip(regs, tmp):
            e(f"  v_mov_b32 v{t}, v{r}")
        e("  s_nop 1")
        for r, t in zip(regs, tmp):
            e(f"  {sw} v{r}, v{t}")
        e("  s_nop 1")
        for r, t in zip(regs, tmp):
            e(f"  {op} v{r}, v{r}, v{t}")

def wave_sum(regs, tmp):
    dpp_steps(regs, ["quad_perm:[1,0,3,2]", "quad_perm:[2,3,0,1]", "row_half_mirror", "row_mirror"])
    swap_steps(regs, tmp)

def round_bf16(dst, src):
    e(f"  v_cvt_pk_bf16_f32 v{dst}, v{src}, v{src}")
    e(f"  v_lshlrev_b32 v{dst}, 16, v{dst}")

WS_PROF = 4 << 20
def stamp(k):
    if not OPT["prof"] or OPT["prof"] >= 3:
        return
    e("  s_memrealtime s[80:81]")
    e("  s_waitcnt lgkmcnt(0)")
    e(f"  s_mov_b32 s{92+k}, s80")

WS_PROF3 = 8 << 20
def tl(k=3):
    if OPT["prof"] != k:
        return
    e("  s_memrealtime s[98:99]")
    e("  s_waitcnt lgkmcnt(0)")
    e("  v_writelane_b32 v251, s98, m0")
    if OPT.get("pclk"):
        e("  s_memtime s[98:99]")
        e("  s_waitcnt lgkmcnt(0)")
        e("  s_add_u32 m0, m0, 16")
        e("  v_writelane_b32 v251, s98, m0")
        e("  s_sub_u32 m0, m0, 16")
    e("  s_add_u32 m0, m0, 1")
    if k == 7: e("  s_min_u32 m0, m0, 63")

def tl6(i):
    if OPT["prof"] != 6:
        return
    e(f"  s_mov_b32 m0, {i}")
    tl(6)

def tl_dump(final=False):
    if OPT["prof"] < 3:
        return
    if (OPT["prof"] == 6) != final:
        return
    if final:
        e("  s_mov_b64 exec, -1")
    e("  s_lshl_b32 s82, s2, 3")
    e("  s_add_u32 s82, s82, s3")
    e("  s_lshl_b32 s82, s82, 8")
    e(f"  s_add_u32 s82, s82, {WS_PROF3}")
    e("  v_lshlrev_b32 v5, 2, v1")
    e(f"  buffer_store_dword v251, v5, s[{SWS}:{SWS+3}], s82 offen")

def dump_stamps():
    if not OPT["prof"]:
        return
    if OPT["prof"] >= 3:
        tl6(7)
        tl_dump(True)
        e("K_END2:")
        return
    e("  s_cmp_ge_u32 s3, 2")
    e("  s_cbranch_scc1 K_END2")
    e("  s_cmp_ge_u32 s2, 256")
    e("  s_cbranch_scc1 K_END2")
    stamp(8)
    e("  s_lshl_b32 s82, s2, 1")
    e("  s_add_u32 s82, s82, s3")
    e("  s_lshl_b32 s82, s82, 6")
    e(f"  s_add_u32 s82, s82, {WS_PROF}")
    e("  s_mov_b64 exec, 1")
    e("  v_mov_b32 v6, 0")
    for k in range(9):
        e(f"  v_mov_b32 v5, s{92+k}")
        e(f"  buffer_store_dword v5, v6, s[{SWS}:{SWS+3}], s82 offen offset:{k*4}")
    e("K_END2:")

SX, SK, SV, SWQ, SW1, SWO, SW2, SWS, SDBG, SOUT = 28, 60, 64, 40, 44, 48, 52, 20, 999, 32
SC, SP0, SP1 = 68, 69, 70
IDXA, IDXB = 72, 73
SG, SR, SB, SSPL, SNC, SHEAD = 86, 87, 88, 89, 90, 91
SNO, SCG, SHC = 83, 84, 85

def poll(label, nlanes, voff, target, tmpv):
    e(f"  s_mov_b64 exec, {(1<<nlanes)-1:#x}")
    e("  s_mov_b32 s74, 0x400000")
    e(f"{label}:")
    e(f"  buffer_load_dword v{tmpv}, v{voff}, s[{SDBG}:{SDBG+3}], 0 offen sc1")
    e("  s_waitcnt vmcnt(0)")
    e(f"  v_cmp_ne_u32 vcc, {target}, v{tmpv}")
    e("  s_cmp_eq_u64 vcc, 0")
    e(f"  s_cbranch_scc1 {label}_DONE")
    if OPT["sleep"]:
        e(f"  s_sleep {OPT['sleep']}")
    e("  s_sub_u32 s74, s74, 1")
    e("  s_cmp_lg_u32 s74, 0")
    e(f"  s_cbranch_scc1 {label}")
    e(f"{label}_DONE:")
    e("  s_mov_b64 exec, -1")

def mpoll(label, n, issue, tags, thr):
    full = (1 << n) - 1
    e("  s_not_b32 s75, s26")
    for k in range(n):
        for x in tags(k):
            e(f"  v_mov_b32 v{x}, s75")
    e("  s_mov_b32 s77, 0")
    e(f"  s_mov_b32 s74, {OPT['bnd']:#x}")
    e(f"{label}:")
    for k in range(n):
        e(f"  s_bitcmp1_b32 s77, {k}")
        e(f"  s_cbranch_scc1 {label}S{k}")
        issue(k)
        e(f"{label}S{k}:")
    if thr is not None:
        e(f"  s_xor_b32 s75, s77, {full:#x}")
        e("  s_bcnt1_i32_b32 s75, s75")
        e(f"  s_cmp_le_u32 s75, {thr}")
        e(f"  s_cbranch_scc1 {label}F")
        e("  s_waitcnt vmcnt(0)")
        e(f"{label}F:")
    if OPT["sleep"]:
        e(f"  s_sleep {OPT['sleep']}")
    for k in range(n):
        t = tags(k)
        e(f"  v_cmp_eq_u32 vcc, s26, v{t[0]}")
        for x in t[1:]:
            e(f"  v_cmp_eq_u32 s[78:79], s26, v{x}")
            e("  s_and_b64 vcc, vcc, s[78:79]")
        e("  s_cmp_eq_u64 vcc, -1")
        e(f"  s_cselect_b32 s75, {1<<k:#x}, 0")
        e("  s_or_b32 s77, s77, s75")
    e(f"  s_cmp_eq_u32 s77, {full:#x}")
    e(f"  s_cbranch_scc1 {label}_DONE")
    e("  s_sub_u32 s74, s74, 1")
    e("  s_cmp_lg_u32 s74, 0")
    e(f"  s_cbranch_scc1 {label}")
    e(f"{label}_DONE:")
    e("  s_waitcnt vmcnt(0)")

def tail2():
    B = OPT['bnd']
    if OPT["obar"]:
        e("  s_barrier")
    if OPT["fs"]:
        e("  v_and_b32 v5, 3, v1")
        e("  v_lshrrev_b32 v6, 2, v1")
        e("  s_cmp_lt_u32 s2, 8")
        e("  s_cbranch_scc1 T_FIN")
    if not OPT["jd"]:
        e("  s_cmp_%s_u32 s3, 4" % ("lt" if OPT["pf"] else "ge"))
        e("  s_cbranch_scc1 T_NW")
    e("  s_and_b32 s75, s3, 1")
    e("  s_cmp_eq_u32 s75, 1")
    e(f"  s_cselect_b32 s75, s{SP1}, s{SP0}")
    if OPT["jd"]:
        e("  v_mul_u32_u24 v11, 2176, v4")
        e("  v_lshl_add_u32 v11, v3, 2, v11")
        e("  s_lshr_b32 s76, s3, 1")
        e("  s_lshl_b32 s76, s76, 6")
        e(f"  s_add_u32 s76, s76, {L_WO}")
        e("  v_add_u32 v11, s76, v11")
        for ks in range(4):
            for jj in range(8):
                e(f"  ds_read_b32 v{80+ks*8+jj}, v11 offset:{(ks*32+jj)*272}")
        e("  s_waitcnt lgkmcnt(0)")
    elif OPT["x2"]:
        e("  v_mul_u32_u24 v11, 1152, v4")
        e("  v_lshl_add_u32 v11, v3, 2, v11")
        e("  s_bfe_u32 s76, s3, 0x10001")
        e("  s_lshl_b32 s76, s76, 6")
        e("  v_add_u32 v11, s76, v11")
        for ks in range(4):
            for jj in range(8):
                e(f"  ds_read_b32 v{80+ks*8+jj}, v11 offset:{L_WO + (ks*32+jj)*144}")
        e("  s_waitcnt lgkmcnt(0)")
    for ks in range(4):
        for q in range(4):
            e(f"  v_perm_b32 v{112+ks*4+q}, v{80+ks*8+2*q+1}, v{80+ks*8+2*q}, s75")
    e("  v_and_b32 v11, 1, v3")
    e("  v_lshlrev_b32 v11, 8, v11")
    e("  v_lshl_add_u32 v11, v4, 4, v11")
    e("  v_and_b32 v12, 1, v4")
    e("  v_lshlrev_b32 v13, 12, v12")
    e("  v_lshl_add_u32 v13, v3, 4, v13")
    if OPT["jd"]:
        e("  s_lshr_b32 s75, s3, 1")
    else:
        e("  s_bfe_u32 s75, s3, 0x10001")
    e("  s_lshl_b32 s75, s75, 8")
    e("  s_and_b32 s78, s3, 1")
    e("  s_lshl_b32 s78, s78, 3")
    e("  s_add_u32 s75, s75, s78")
    if OPT["jd"]:
        e(f"  s_and_b32 s78, s{SNO}, 3")
        e(f"  s_lshl_b32 s78, s78, 10")
    else:
        e(f"  s_lshl_b32 s78, s{SNO}, 9")
    e("  s_add_u32 s75, s75, s78")
    e(f"  s_lshl_b32 s78, s{SHEAD}, 13")
    e("  s_add_u32 s75, s75, s78")
    e(f"  s_add_u32 s75, s75, {WS_SG}")
    e("  v_add_u32 v13, s75, v13")
    e("T_NW:")
    e("  v_and_b32 v5, 3, v1")
    e("  v_lshrrev_b32 v6, 2, v1")
    e("  s_lshr_b32 s75, s3, 2")
    e("  s_lshl_b32 s75, s75, 5")
    e(f"  s_add_u32 s75, s75, s{SHEAD}")
    e("  s_lshl_b32 s76, s75, 8")
    e("  v_lshlrev_b32 v9, 4, v6")
    e("  v_add_u32 v9, s76, v9")
    e("  s_lshl_b32 s76, s75, 14")
    e("  s_and_b32 s75, s3, 3")
    e("  s_lshl_b32 s75, s75, 8")
    e("  s_add_u32 s76, s76, s75")
    e("  v_lshlrev_b32 v10, 10, v6")
    e("  v_lshl_add_u32 v10, v5, 4, v10")
    e("  v_add_u32 v10, s76, v10")
    e("  s_not_b32 s75, s26")
    for r in [17, 19, 21, 23, 25, 27, 29, 31, 34]:
        e(f"  v_mov_b32 v{r}, s75")
    e("  s_mov_b64 s[76:77], -1")
    e("  s_mov_b64 s[78:79], -1")
    e(f"  s_mov_b32 s72, {WS_MG}")
    e(f"  s_mov_b32 s73, {WS_OG}")
    e(f"  s_mov_b32 s74, {B:#x}")
    e(f"  s_mov_b32 s84, {64 if OPT['f1st'] else OPT['spec']}")
    e("T_P:")
    e("  s_mov_b64 exec, s[76:77]")
    e("  s_cbranch_execz T_P1")
    e(f"  buffer_load_dwordx3 v[32:34], v9, s[{SWS}:{SWS+3}], s72 offen sc1")
    e("T_P1:")
    e("  s_or_b64 s[80:81], s[76:77], s[78:79]")
    e("  s_bcnt1_i32_b64 s75, s[80:81]")
    e("  s_andn2_b64 s[80:81], s[78:79], s[76:77]")
    e(f"  s_cmp_le_u32 s75, s84")
    e(f"  s_mov_b32 s84, {OPT['spec']}")
    e("  s_cselect_b64 exec, s[78:79], s[80:81]")
    e("  s_cbranch_execz T_P2")
    for i in range(4):
        e(f"  buffer_load_dwordx4 v[{16+4*i}:{19+4*i}], v10, s[{SWS}:{SWS+3}], s73 offen offset:{64*i} sc1")
    e("T_P2:")
    e("  s_mov_b64 exec, -1")
    if OPT["pw"] == 1:
        e("  s_waitcnt vmcnt(0)")
    else:
        e(f"  s_cmp_le_u32 s75, {OPT['spec']}")
        e("  s_cbranch_scc1 T_P3")
        e("  s_waitcnt vmcnt(0)")
        e("T_P3:")
        e(f"  s_waitcnt vmcnt({OPT['pw']})")
    if OPT["psl2"]: e(f"  s_sleep {OPT['psl2']}")
    e("  v_cmp_ne_u32 s[76:77], s26, v34")
    e("  v_cmp_ne_u32 s[78:79], s26, v17")
    for r in [19, 21, 23, 25, 27, 29, 31]:
        e(f"  v_cmp_ne_u32 vcc, s26, v{r}")
        e("  s_or_b64 s[78:79], s[78:79], vcc")
    e("  s_or_b64 s[80:81], s[76:77], s[78:79]")
    e("  s_cmp_eq_u64 s[80:81], 0")
    e("  s_cbranch_scc1 T_PD")
    e("  s_sub_u32 s74, s74, 1")
    e("  s_cmp_lg_u32 s74, 0")
    e("  s_cbranch_scc1 T_P")
    e("T_PD:")
    if not OPT["nd"]:
        e("  s_waitcnt vmcnt(0)")
    tl6(4)
    if OPT["nd"]:
        e("  v_mov_b32 v35, v32")
        e("  v_mov_b32 v46, v32")
        e("  v_mov_b32 v47, v33")
        red_steps([35], [36], "v_max_f32")
        e("  v_sub_f32 v46, v46, v35")
        e(f"  v_mul_f32 v46, s{SC}, v46")
        e("  v_exp_f32 v46, v46")
        e("  s_nop 0")
        e("  v_mul_f32 v47, v47, v46")
        vals = list(range(48, 56))
        for i, r in enumerate(vals):
            e(f"  v_mul_f32 v{r}, v{16+2*i}, v46")
        red_steps([47] + vals, list(range(36, 45)), "v_add_f32")
        e("  v_rcp_f32 v47, v47")
        e("  s_nop 0")
        for r in vals:
            e(f"  v_mul_f32 v{r}, v{r}, v47")
        for i in range(4):
            e(f"  v_cvt_pk_bf16_f32 v{36+i}, v{48+2*i}, v{49+2*i}")
    else:
        e("  v_mov_b32 v35, v32")
        red_steps([35], [36], "v_max_f32")
        e("  v_sub_f32 v32, v32, v35")
        e(f"  v_mul_f32 v32, s{SC}, v32")
        e("  v_exp_f32 v32, v32")
        e("  s_nop 0")
        e("  v_mul_f32 v33, v33, v32")
        vals = [16, 18, 20, 22, 24, 26, 28, 30]
        for r in vals:
            e(f"  v_mul_f32 v{r}, v{r}, v32")
        red_steps([33] + vals, list(range(36, 45)), "v_add_f32")
        e("  v_rcp_f32 v33, v33")
        e("  s_nop 0")
        for r in vals:
            e(f"  v_mul_f32 v{r}, v{r}, v33")
        for i in range(4):
            e(f"  v_cvt_pk_bf16_f32 v{36+i}, v{16+4*i}, v{18+4*i}")
    e("  s_lshl_b32 s75, s3, 6")
    e("  v_lshl_add_u32 v8, v5, 4, s75")
    e("  s_mov_b64 exec, 0xf")
    e(f"  ds_write_b128 v8, v[36:39] offset:{L_VEC}")
    e("  s_mov_b64 exec, -1")
    e("  s_waitcnt lgkmcnt(0)")
    e("  s_barrier")
    if not OPT["jd"]:
        e("  s_cmp_%s_u32 s3, 4" % ("lt" if OPT["pf"] else "ge"))
        e("  s_cbranch_scc1 T_F")
    for ks in range(4):
        e(f"  ds_read_b128 v[{132+4*ks}:{135+4*ks}], v11 offset:{L_VEC + ks*64}")
    e("  s_waitcnt lgkmcnt(0)")
    for ks in range(4):
        c = "0" if ks == 0 else "v[148:151]"
        e(f"  v_mfma_f32_16x16x32_bf16 v[148:151], v[{132+4*ks}:{135+4*ks}], v[{112+4*ks}:{115+4*ks}], {c}")
    e("  v_cmp_eq_u32 vcc, 1, v12")
    e("  v_mov_b32 v153, s26")
    e("  s_nop 7")
    e("  s_nop 7")
    e("  v_cndmask_b32 v152, v148, v149, vcc")
    e("  s_mov_b64 exec, 0xffffffff")
    e(f"  buffer_store_dwordx2 v[152:153], v13, s[{SWS}:{SWS+3}], 0 offen sc1")
    e("  s_mov_b64 exec, -1")
    tl6(5)
    e("T_F:")
    e("  s_cmp_ge_u32 s2, 8")
    e("  s_cbranch_scc1 K_END")
    e("T_FIN:")
    e("  s_lshr_b32 s75, s3, 2")
    e("  s_lshl_b32 s75, s75, 9")
    e("  s_and_b32 s76, s2, 7")
    e("  s_lshl_b32 s76, s76, 6")
    e("  s_add_u32 s75, s75, s76")
    e("  s_and_b32 s76, s3, 3")
    e("  s_lshl_b32 s76, s76, 4")
    e("  s_add_u32 s75, s75, s76")
    e("  v_lshlrev_b32 v7, 1, v5")
    e("  v_add_u32 v7, s75, v7")
    e("  v_lshlrev_b32 v8, 1, v7")
    e(f"  buffer_load_dword v46, v8, s[{SX}:{SX+3}], 0 offen")
    e(f"  buffer_load_dword v47, v8, s[{SX}:{SX+3}], 0 offen offset:16")
    e("  v_lshlrev_b32 v10, 3, v7")
    e("  v_lshl_add_u32 v10, v6, 13, v10")
    def fpoll(lbl, base, m1, dst, R=16):
        if not OPT["nd"]: R = 16
        e("  s_not_b32 s75, s26")
        for r in range(R, R+16):
            e(f"  v_mov_b32 v{r}, " + ("s75" if (r & 1) else "0"))
        e("  s_mov_b64 s[76:77], -1")
        e(f"  s_mov_b32 s78, {m1 & 0xffffffff:#x}")
        e(f"  s_mov_b32 s79, {m1 >> 32:#x}")
        e(f"  s_mov_b64 s[82:83], s[78:79]")
        e(f"  s_mov_b32 s72, {base}")
        e(f"  s_mov_b32 s73, {base + 131072}")
        e(f"  s_mov_b32 s74, {B:#x}")
        e(f"{lbl}:")
        e("  s_mov_b64 exec, s[76:77]")
        e(f"  s_cbranch_execz {lbl}1")
        for i in range(2):
            e(f"  buffer_load_dwordx4 v[{R+4*i}:{R+3+4*i}], v10, s[{SWS}:{SWS+3}], s72 offen offset:{64*i} sc1")
        e(f"{lbl}1:")
        e("  s_mov_b64 exec, s[78:79]")
        e(f"  s_cbranch_execz {lbl}2")
        for i in range(2):
            e(f"  buffer_load_dwordx4 v[{R+8+4*i}:{R+11+4*i}], v10, s[{SWS}:{SWS+3}], s73 offen offset:{64*i} sc1")
        e(f"{lbl}2:")
        e("  s_mov_b64 exec, -1")
        e(f"  s_waitcnt vmcnt({0 if OPT['fw2']==1 else OPT['fw2']})")
        if OPT["fsl2"]: e(f"  s_sleep {OPT['fsl2']}")
        e(f"  v_cmp_ne_u32 s[76:77], s26, v{R+1}")
        for r in [R+3, R+5, R+7]:
            e(f"  v_cmp_ne_u32 vcc, s26, v{r}")
            e("  s_or_b64 s[76:77], s[76:77], vcc")
        e(f"  v_cmp_ne_u32 s[78:79], s26, v{R+9}")
        for r in [R+11, R+13, R+15]:
            e(f"  v_cmp_ne_u32 vcc, s26, v{r}")
            e("  s_or_b64 s[78:79], s[78:79], vcc")
        e("  s_and_b64 s[78:79], s[78:79], s[82:83]")
        e("  s_or_b64 s[80:81], s[76:77], s[78:79]")
        e("  s_cmp_eq_u64 s[80:81], 0")
        e(f"  s_cbranch_scc1 {lbl}D")
        e("  s_sub_u32 s74, s74, 1")
        e("  s_cmp_lg_u32 s74, 0")
        e(f"  s_cbranch_scc1 {lbl}")
        e(f"{lbl}D:")
        if not OPT["nd"]:
            e("  s_waitcnt vmcnt(0)")
        for k in range(4):
            e(f"  v_add_f32 v{dst+k}, v{R+2*k}, v{R+8+2*k}")
        red_steps(list(range(dst, dst+4)), list(range(36, 40)), "v_add_f32")
        for k in range(4):
            round_bf16(dst+k, dst+k)
    def fpoll_mg_g():
        e("  s_not_b32 s75, s26")
        for r in range(160, 192):
            e(f"  v_mov_b32 v{r}, " + ("s75" if (r & 1) else "0"))
        e("  s_mov_b64 s[76:77], -1")
        e("  s_mov_b32 s78, -1")
        e("  s_mov_b32 s79, 0xffff")
        e("  s_mov_b64 s[82:83], s[78:79]")
        e("  s_mov_b64 s[86:87], -1")
        e("  s_mov_b64 s[88:89], -1")
        e(f"  s_mov_b32 s72, {WS_GG}")
        e(f"  s_mov_b32 s73, {WS_GG + 131072}")
        e(f"  s_mov_b32 s84, {WS_SG}")
        e(f"  s_mov_b32 s85, {WS_SG + 131072}")
        e(f"  s_mov_b32 s74, {B:#x}")
        def iss(lbl, mask, so, R):
            e(f"  s_mov_b64 exec, s[{mask}:{mask+1}]")
            e(f"  s_cbranch_execz {lbl}")
            for i in range(2):
                e(f"  buffer_load_dwordx4 v[{R+4*i}:{R+3+4*i}], v10, s[{SWS}:{SWS+3}], s{so} offen offset:{64*i} sc1")
            e(f"{lbl}:")
        def chk(mask, R):
            e(f"  v_cmp_ne_u32 s[{mask}:{mask+1}], s26, v{R+1}")
            for r in [R+3, R+5, R+7]:
                e(f"  v_cmp_ne_u32 vcc, s26, v{r}")
                e(f"  s_or_b64 s[{mask}:{mask+1}], s[{mask}:{mask+1}], vcc")
        e("T_M:")
        iss("T_M1", 76, 72, 160)
        iss("T_M2", 78, 73, 168)
        iss("T_M3", 86, 84, 176)
        iss("T_M4", 88, 85, 184)
        e("  s_mov_b64 exec, -1")
        e("  s_waitcnt vmcnt(0)")
        if OPT["fsl2"]: e(f"  s_sleep {OPT['fsl2']}")
        chk(76, 160)
        chk(78, 168)
        chk(86, 176)
        chk(88, 184)
        e("  s_and_b64 s[78:79], s[78:79], s[82:83]")
        e("  s_or_b64 s[80:81], s[76:77], s[78:79]")
        e("  s_cmp_eq_u64 s[80:81], 0")
        e("  s_cbranch_scc1 T_MD")
        e("  s_sub_u32 s74, s74, 1")
        e("  s_cmp_lg_u32 s74, 0")
        e("  s_cbranch_scc1 T_M")
        e("T_MD:")
        iss("T_M5", 86, 84, 176)
        iss("T_M6", 88, 85, 184)
        e("  s_mov_b64 exec, -1")
        for k in range(4):
            e(f"  v_add_f32 v{40+k}, v{160+2*k}, v{168+2*k}")
        red_steps(list(range(40, 44)), list(range(36, 40)), "v_add_f32")
        for k in range(4):
            round_bf16(40+k, 40+k)
    def fpoll_mg_s():
        def iss(lbl, mask, so, R):
            e(f"  s_mov_b64 exec, s[{mask}:{mask+1}]")
            e(f"  s_cbranch_execz {lbl}")
            for i in range(2):
                e(f"  buffer_load_dwordx4 v[{R+4*i}:{R+3+4*i}], v10, s[{SWS}:{SWS+3}], s{so} offen offset:{64*i} sc1")
            e(f"{lbl}:")
        def chk(mask, R):
            e(f"  v_cmp_ne_u32 s[{mask}:{mask+1}], s26, v{R+1}")
            for r in [R+3, R+5, R+7]:
                e(f"  v_cmp_ne_u32 vcc, s26, v{r}")
                e(f"  s_or_b64 s[{mask}:{mask+1}], s[{mask}:{mask+1}], vcc")
        e(f"  s_mov_b32 s74, {B:#x}")
        e("  s_branch T_N0")
        e("T_N:")
        iss("T_N3", 86, 84, 176)
        iss("T_N4", 88, 85, 184)
        e("  s_mov_b64 exec, -1")
        e("T_N0:")
        e("  s_waitcnt vmcnt(0)")
        chk(86, 176)
        chk(88, 184)
        e("  s_or_b64 s[80:81], s[86:87], s[88:89]")
        e("  s_cmp_eq_u64 s[80:81], 0")
        e("  s_cbranch_scc1 T_ND")
        if OPT["fsl2"]: e(f"  s_sleep {OPT['fsl2']}")
        e("  s_sub_u32 s74, s74, 1")
        e("  s_cmp_lg_u32 s74, 0")
        e("  s_cbranch_scc1 T_N")
        e("T_ND:")
        for k in range(4):
            e(f"  v_add_f32 v{48+k}, v{176+2*k}, v{184+2*k}")
        red_steps(list(range(48, 52)), list(range(36, 40)), "v_add_f32")
        for k in range(4):
            round_bf16(48+k, 48+k)
    if OPT["mg"]:
        fpoll_mg_g()
    else:
        fpoll("T_G", WS_GG, (1 << 48) - 1, 40, 160)
    for k in range(4):
        e(f"  v_mul_f32 v{36+k}, 0xbfb8aa3b, v{40+k}")
    for k in range(4):
        e(f"  v_exp_f32 v{36+k}, v{36+k}")
    e("  s_nop 0")
    for k in range(4):
        e(f"  v_add_f32 v{36+k}, 1.0, v{36+k}")
    for k in range(4):
        e(f"  v_rcp_f32 v{36+k}, v{36+k}")
    e("  s_nop 0")
    for k in range(4):
        e(f"  v_mul_f32 v{40+k}, v{36+k}, v{40+k}")
    for k in range(4):
        round_bf16(40+k, 40+k)
    if OPT["mg"]:
        fpoll_mg_s()
    else:
        fpoll("T_S", WS_SG, (1 << 64) - 1, 48, 176)
    tl6(6)
    for k in range(4):
        e(f"  v_mul_f32 v{48+k}, v{48+k}, v{40+k}")
    for k in range(4):
        round_bf16(48+k, 48+k)
    for k in range(2):
        e(f"  v_lshlrev_b32 v36, 16, v{46+k}")
        e(f"  v_and_b32 v37, 0xffff0000, v{46+k}")
        e(f"  v_add_f32 v{48+2*k}, v{48+2*k}, v36")
        e(f"  v_add_f32 v{49+2*k}, v{49+2*k}, v37")
        e(f"  v_cvt_pk_bf16_f32 v{48+2*k}, v{48+2*k}, v{49+2*k}")
    e("  s_mov_b64 exec, 0xf")
    e(f"  buffer_store_dword v48, v8, s[{SOUT}:{SOUT+3}], 0 offen")
    e(f"  buffer_store_dword v50, v8, s[{SOUT}:{SOUT+3}], 0 offen offset:16")
    e("  s_or_b32 s75, s2, s3")
    e("  s_cmp_lg_u32 s75, 0")
    e("  s_cbranch_scc1 K_END")
    e("  s_mov_b64 exec, 1")
    e(f"  v_mov_b32 v5, {WS_EP}")
    e("  v_mov_b32 v6, s26")
    e(f"  buffer_store_dword v6, v5, s[{SWS}:{SWS+3}], 0 offen")

def gen():
    nt = OPT["nt"]
    BS = 17 if OPT["ilv"] else 13
    POL = dict(k="" if OPT["kpl"] else nt, v="" if OPT["vpl"] else nt)
    name = NAME + "_kernel"
    e(".text")
    e(f".globl {name}")
    e(".p2align 8")
    e(f".type {name},@function")
    e(f"{name}:")
    KA, VA, KB, VB = 16, 48, 80, 112
    ACC = 144
    QF = 176
    ST = 192
    PF = 200
    TR = 204
    M_, L_, T0, T1, AL, MC = 236, 237, 238, 239, 240, 241
    VKOFF, VVOFF = 242, 243
    WO = 244
    W2 = 252
    e("  s_cmp_ge_u32 s2, 256")
    e("  s_cbranch_scc1 K_END2" if OPT["prof"] else "  s_cbranch_scc1 K_END")
    if OPT["xm"]:
        e(f"  s_xor_b32 s2, s2, {OPT['xm']}")
    if OPT["xs"]:
        import random
        rnd = random.Random(OPT["xs"])
        bits = (*range(6), *range(6), 6, 7)
        def good(masks):
            steps = list(zip(bits, masks))
            def one(d):
                for bit, mask in reversed(steps):
                    if d >> bit & 1: d ^= mask
                return d % 8 == 0
            apart = [8 << k for k in range(5)]
            return not any(map(one, apart)) and any(map(one, range(1, 8)))
        while True:
            masks = [rnd.randrange(64) & ~(1 << b) for b in bits]
            if all(masks) and good(masks): break
        for b, m in zip(bits, masks):
            e(f"  s_bitcmp1_b32 s2, {b}")
            e(f"  s_cselect_b32 s3, {m}, 0")
            e("  s_xor_b32 s2, s2, s3")
    e("  s_load_dwordx16 s[4:19], s[0:1], 0")
    e("  s_load_dwordx2 s[24:25], s[0:1], 80")
    e("  v_and_b32 v1, 63, v0")
    e("  v_lshrrev_b32 v2, 6, v0")
    e("  v_and_b32 v3, 15, v1")
    e("  v_lshrrev_b32 v4, 4, v1")
    e("  v_mov_b32 v248, 0")
    e("  v_readfirstlane_b32 s3, v2")
    def derive():
        e(f"  s_and_b32 s{SG}, s2, 7")
        e(f"  s_lshr_b32 s{SR}, s2, 3")
        e(f"  s_and_b32 s{SNO}, s{SR}, 7")
        e(f"  s_lshl_b32 s{SCG}, s{SG}, 5")
        e(f"  s_add_u32 s{SCG}, s{SCG}, s{SR}")
        if OPT["cgx"]:
            e(f"  s_xor_b32 s{SCG}, s{SCG}, {OPT['cgx']}")
        e(f"  s_lshr_b32 s{SHC}, s{SR}, 3")
        e(f"  s_lshl_b32 s{SHC}, s{SHC}, 6")
        e(f"  s_lshl_b32 s74, s{SG}, 3")
        e(f"  s_add_u32 s{SHC}, s{SHC}, s74")
        e(f"  s_add_u32 s{SHC}, s{SHC}, s{SNO}")
        e(f"  s_lshr_b32 s{SB}, s{SR}, 4")
        e(f"  s_and_b32 s{SSPL}, s{SR}, 15")
        e(f"  s_and_b32 s{SNC}, s2, 7")
        e(f"  s_lshr_b32 s{SHEAD}, s{SR}, 3")
        e(f"  s_lshl_b32 s74, s{SG}, 2")
        e(f"  s_add_u32 s{SHEAD}, s{SHEAD}, s74")
        if OPT["map"]:
            e(f"  s_lshr_b32 s{SB}, s2, 7")
            e(f"  s_lshr_b32 s{SG}, s2, 4")
            e(f"  s_and_b32 s{SG}, s{SG}, 7")
            e(f"  s_and_b32 s{SSPL}, s2, 15")
        if OPT["rg"]:
            L = OPT["rg"]; W = 256 >> L
            if OPT["rm"] == 2:
                e("  s_and_b32 s75, s2, 15")
                e("  s_lshl_b32 s75, s75, 2")
                e("  s_bfe_u32 s76, s2, 0x20004")
                e("  s_or_b32 s75, s75, s76")
                e(f"  s_lshr_b32 s76, s2, {L}")
            elif OPT["rm"]:
                e(f"  s_and_b32 s75, s2, {(1<<L)-1}")
                e(f"  s_lshr_b32 s76, s2, {L}")
            else:
                e(f"  s_lshr_b32 s75, s2, {8-L}")
                e(f"  s_and_b32 s76, s2, {W-1}")
            e(f"  s_lshr_b32 s74, s75, {L-4}")
            e(f"  s_lshr_b32 s{SB}, s74, 3")
            e(f"  s_and_b32 s{SG}, s74, 7")
            e(f"  s_and_b32 s77, s75, {(1<<(L-4))-1}")
            e(f"  s_lshl_b32 s{SSPL}, s77, {8-L}")
            e(f"  s_add_u32 s{SSPL}, s{SSPL}, s76")
        e(f"  s_lshl_b32 s93, s{SB}, 3")
        e(f"  s_add_u32 s93, s93, s{SG}")
        e(f"  s_mul_i32 s93, s93, {OPT['nsub']}")
        e(f"  s_and_b32 s74, s3, {OPT['nsub']-1}")
        e(f"  s_add_u32 s93, s93, s74")
        e(f"  s_lshl_b32 s93, s93, 8")
        e(f"  s_add_u32 s93, s93, {WS_PC}")
        e(f"  s_mul_i32 s92, s74, {(1024-16*OPT['ns'])//OPT['nsub']}")
        e(f"  s_add_u32 s92, s92, {16*OPT['ns']}")
        e(f"  s_mul_i32 s94, s{SSPL}, {OPT['ns']}")
        if OPT["il2"]:
            G = 1 << OPT["il2"]
            e(f"  s_lshr_b32 s94, s{SSPL}, {OPT['il2']}")
            e(f"  s_lshl_b32 s94, s94, {OPT['il2']+6}")
            e(f"  s_and_b32 s74, s{SSPL}, {G-1}")
            e(f"  s_add_u32 s94, s94, s74")
        e("  s_mov_b32 s95, 0")
        if OPT["rg"]:
            L = OPT["rg"]; W = 256 >> L
            e(f"  s_lshr_b32 s94, s{SSPL}, {8-L}")
            e(f"  s_lshl_b32 s94, s94, {14-L}")
            e(f"  s_and_b32 s76, s{SSPL}, {W-1}")
            e(f"  s_lshl_b32 s76, s76, {OPT['bs4']}")
            e("  s_add_u32 s94, s94, s76")
            if OPT["rm"] == 2:
                e("  s_and_b32 s75, s2, 15")
                e("  s_lshl_b32 s75, s75, 2")
                e("  s_bfe_u32 s76, s2, 0x20004")
                e("  s_or_b32 s75, s75, s76")
            elif OPT["rm"]:
                e(f"  s_and_b32 s75, s2, {(1<<L)-1}")
            else:
                e(f"  s_lshr_b32 s75, s2, {8-L}")
            e(f"  s_mul_i32 s95, s75, {OPT['rr']}")
            if OPT["rq"]:
                e("  s_lshr_b32 s76, s75, 2")
                e(f"  s_mul_i32 s76, s76, {OPT['rq']}")
                e("  s_add_u32 s95, s95, s76")
            if OPT["rz"]:
                e("  s_lshr_b32 s76, s75, 4")
                e(f"  s_mul_i32 s76, s76, {OPT['rz']}")
                e("  s_add_u32 s95, s95, s76")
        if OPT["bm"] & 1:
            e(f"  s_mul_i32 s95, s{SSPL}, {OPT['ra']}")
            e(f"  s_lshr_b32 s74, s2, 4")
            e(f"  s_mul_i32 s74, s74, {OPT['rb']}")
            e(f"  s_add_u32 s95, s95, s74")
    def mapidx(src):
        G = OPT["il2"]
        if OPT["rg"]:
            B4 = OPT["bs4"]
            e(f"  s_lshr_b32 s75, s{src}, {B4}")
            e("  s_add_u32 s75, s75, s95")
            e(f"  s_and_b32 s75, s75, {(64>>B4)-1}")
            e(f"  s_lshl_b32 s75, s75, {8-OPT['rg']+B4}")
            e(f"  s_and_b32 s76, s{src}, {(1<<B4)-1}")
            e("  s_add_u32 s75, s75, s76")
            e(f"  s_add_u32 s{IDXA}, s75, s94")
            return
        if OPT["bm"] & 2:
            e(f"  s_and_b32 s75, s{src}, 7")
            e(f"  s_lshl_b32 s75, s75, 3")
            e(f"  s_lshr_b32 s76, s{src}, 3")
            e(f"  s_or_b32 s75, s75, s76")
            src = 75
        if OPT["bm"] & 1:
            e(f"  s_add_u32 s75, s{src}, s95")
            e(f"  s_and_b32 s75, s75, 63")
            src = 75
        if G:
            e(f"  s_lshl_b32 s75, s{src}, {G}")
            src = 75
        e(f"  s_add_u32 s{IDXA}, s{src}, s94")
    derive()
    e(f"  s_lshl_b32 s74, s{SB}, 3")
    e(f"  s_add_u32 s74, s74, s{SG}")
    e("  s_lshl_b32 s74, s74, 23")

    e(f"  s_mov_b32 s{SC}, 0x3e0293ee")
    e(f"  s_mov_b32 s{SP0}, 0x05040100")
    e(f"  s_mov_b32 s{SP1}, 0x07060302")
    e("  s_lshl_b32 s75, s3, 1")
    e(f"  s_sub_u32 s{IDXA}, s75, 2")
    e(f"  s_sub_u32 s{IDXB}, s75, 1")
    if OPT["nbuf"] == 1:
        mapidx(3)
        if OPT["nw"] < 8:
            e(f"  s_cmp_ge_u32 s3, {OPT['nw']}")
            e(f"  s_cselect_b32 s{IDXA}, 64, s{IDXA}")
    e("  v_and_b32 v5, 3, v3")
    e("  v_lshrrev_b32 v6, 2, v3")
    e("  v_lshl_add_u32 v5, v5, 2, v6")
    e("  v_lshlrev_b32 v5, 8, v5")
    e(f"  v_lshl_add_u32 v{VKOFF}, v4, 4, v5")
    e(f"  v_lshlrev_b32 v{VVOFF}, 4, v1")
    if OPT["kx"]:
        e(f"  v_lshlrev_b32 v{VKOFF}, 4, v1")
    e("  s_waitcnt lgkmcnt(0)")
    if not OPT["rs"]:
        e(f"  s_mov_b32 s75, {WS_EP}")
        e("  s_load_dword s26, s[24:25], s75")
    srd(SX, 4, 5, 2048)
    srd(SWQ, 10, 11, 512 * 4096 * 2)
    srd(SWS, 24, 25, WS_SIZE)
    e(f"  s_add_u32 s{SK}, s6, s74")
    e(f"  s_addc_u32 s{SK+1}, s7, 0")
    e(f"  s_and_b32 s{SK+1}, s{SK+1}, 0xffff")
    if OPT['ilv']:
        e(f"  s_lshl_b32 s75, s{SSPL}, 13")
        e(f"  s_sub_u32 s{SK+2}, {8<<20}, s75")
    else:
        e(f"  s_mov_b32 s{SK+2}, {8<<20}")
    e(f"  s_mov_b32 s{SK+3}, 0x00020000")
    e(f"  s_add_u32 s{SV}, s8, s74")
    e(f"  s_addc_u32 s{SV+1}, s9, 0")
    e(f"  s_and_b32 s{SV+1}, s{SV+1}, 0xffff")
    e(f"  s_mov_b32 s{SV+2}, s{SK+2}")
    e(f"  s_mov_b32 s{SV+3}, 0x00020000")
    e(f"  s_mov_b32 s71, {1 << OPT['ps']}" if OPT["ps"] else "  s_movk_i32 s71, 4096")
    e("  s_and_b32 s75, s2, 0x78")
    e("  s_or_b32 s75, s75, s3")
    e("  s_cmp_lg_u32 s75, 0")
    e("  s_cbranch_scc1 K_NOINIT")
    e("  s_lshr_b32 s75, s2, 7")
    e("  s_lshl_b32 s75, s75, 3")
    e("  s_and_b32 s76, s2, 7")
    e("  s_add_u32 s75, s75, s76")
    e(f"  s_mul_i32 s75, s75, {OPT['nsub']*256}")
    e(f"  s_add_u32 s75, s75, {WS_PC}")
    e("  v_mov_b32 v5, 0")
    e("  v_lshlrev_b32 v6, 8, v1")
    e(f"  s_mov_b64 exec, {(1<<OPT['nsub'])-1}")
    e(f"  buffer_store_dword v5, v6, s[{SWS}:{SWS+3}], s75 offen sc1")
    e("  s_mov_b64 exec, -1")
    e("K_NOINIT:")
    if OPT["warm"]:
        e(f"  s_lshl_b32 s75, s{SCG}, 6")
        e(f"  s_add_u32 s75, s75, {WS_QG}")
        e("  s_load_dword s98, s[24:25], s75")
        e("  s_add_u32 s75, s75, 16384")
        e("  s_load_dword s99, s[24:25], s75")
    stamp(0)
    if OPT["prof"] >= 3:
        e("  v_mov_b32 v251, 0")
        e("  s_mov_b32 m0, 0")
        tl(OPT["prof"])
    F1 = max(OPT["f1"], OPT["pre0"])
    def kchunk_l(KR, vo):
        r=[]
        if OPT["kx"]:
            for j in range(8):
                so = "0" if j < 4 else "s71"
                r.append(f"  buffer_load_dwordx4 v[{KR+4*j}:{KR+4*j+3}], v{vo}, s[{SK}:{SK+3}], {so} offen offset:{(j&3)*1024}{nt}")
            return r
        for t in range(2):
            for i in range(4):
                so = "0" if t == 0 else "s71"
                r.append(f"  buffer_load_dwordx4 v[{KR+16*t+4*i}:{KR+16*t+4*i+3}], v{vo}, s[{SK}:{SK+3}], {so} offen offset:{i*64}{POL['k']}")
        return r
    def vchunk_l(VR, vo):
        r=[]
        for j in range(8):
            so = "0" if j < 4 else "s71"
            r.append(f"  buffer_load_dwordx4 v[{VR+4*j}:{VR+4*j+3}], v{vo}, s[{SV}:{SV+3}], {so} offen offset:{(j&3)*1024}{POL['v']}")
        return r
    def kchunk(KR, vo):
        for l in kchunk_l(KR, vo): e(l)
    def vchunk(VR, vo):
        for l in vchunk_l(VR, vo): e(l)
    def blkoff(sidx):
        if OPT["rot"]:
            e(f"  s_add_u32 s75, s{sidx}, s73")
            e("  s_and_b32 s75, s75, 63")
            e(f"  s_lshl_b32 s75, s75, {BS}")
            e(f"  s_cmp_lt_u32 s{sidx}, 64")
            e("  s_cselect_b32 s75, s75, 0x100000")
        elif OPT["ps"]:
            a = OPT["ps"] - 12
            e(f"  s_lshr_b32 s75, s{sidx}, {a}")
            e(f"  s_lshl_b32 s75, s75, {OPT['ps']+1}")
            e(f"  s_and_b32 s76, s{sidx}, {(1<<a)-1}")
            e("  s_lshl_b32 s76, s76, 12")
            e("  s_add_u32 s75, s75, s76")
        else:
            e(f"  s_lshl_b32 s75, s{sidx}, {BS}")
    def loads(KR, VR, sidx):
        blkoff(sidx)
        e(f"  v_add_u32 v5, s75, v{VKOFF}")
        e(f"  v_add_u32 v6, s75, v{VVOFF}")
        kchunk(KR, 5)
        vchunk(VR, 6)
    def wo_loads():
        e("  v_lshlrev_b32 v14, 10, v12")
        e("  v_lshl_add_u32 v14, v13, 4, v14")
        if not OPT["mf"]:
            e(f"  s_lshl_b32 s75, s{SNO}, 7")
            e("  v_add_u32 v15, s75, v14")
            e(f"  s_lshl_b32 s75, s{SHEAD}, 17")
            e("  v_add_u32 v15, s75, v15")
            e(f"  buffer_load_dwordx4 v[{WO}:{WO+3}], v15, s[{SWO}:{SWO+3}], 0 offen")
            e("  v_add_u32 v15, 0x10000, v15")
            e(f"  buffer_load_dwordx4 v[{WO+4}:{WO+7}], v15, s[{SWO}:{SWO+3}], 0 offen")
        else:
            lab = f"K_WOS{len(out)}"
            e("  s_cmp_ge_u32 s3, 4")
            e(f"  s_cbranch_scc1 {lab}")
            e("  v_lshlrev_b32 v15, 13, v4")
            e("  v_lshl_add_u32 v15, v3, 2, v15")
            e(f"  s_lshl_b32 s75, s{SHEAD}, 17")
            e(f"  s_lshl_b32 s76, s{SNO}, 7")
            e("  s_add_u32 s75, s75, s76")
            e("  s_lshr_b32 s76, s3, 1")
            e("  s_lshl_b32 s76, s76, 6")
            e("  s_add_u32 s75, s75, s76")
            for ks in range(4):
                for jh in range(2):
                    for j in range(4):
                        e(f"  buffer_load_dword v{80+ks*8+jh*4+j}, v15, s[{SWO}:{SWO+3}], s75 offen offset:{j*1024}")
                    if not (ks == 3 and jh == 1):
                        e(f"  s_add_u32 s75, s75, {4096 if jh == 0 else 32768-4096}")
            e(f"{lab}:")
        e("  s_lshr_b32 s75, s2, 3")
        e("  s_lshl_b32 s75, s75, 16")
        e("  v_add_u32 v15, s75, v14")
        e(f"  s_lshl_b32 s75, s{SNC}, 7")
        e("  v_add_u32 v15, s75, v15")
        e(f"  buffer_load_dwordx4 v[{W2}:{W2+3}], v15, s[{SW2}:{SW2+3}], 0 offen")

    X = 144
    def ln_code():
        for b in range(2):
            for c in range(4):
                e(f"  v_lshlrev_b32 v{X+8*b+2*c}, 16, v{204+4*b+c}")
                e(f"  v_and_b32 v{X+1+8*b+2*c}, 0xffff0000, v{204+4*b+c}")
        for b in range(2):
            t = 160 + 4 * b
            e(f"  v_pk_add_f32 v[{t}:{t+1}], v[{X+8*b}:{X+8*b+1}], v[{X+8*b+2}:{X+8*b+3}]")
            e(f"  v_pk_add_f32 v[{t+2}:{t+3}], v[{X+8*b+4}:{X+8*b+5}], v[{X+8*b+6}:{X+8*b+7}]")
        for b in range(2):
            t = 160 + 4 * b
            e(f"  v_pk_add_f32 v[{t}:{t+1}], v[{t}:{t+1}], v[{t+2}:{t+3}]")
        e("  v_add_f32 v160, v160, v161")
        e("  v_add_f32 v161, v164, v165")
        wave_sum([160, 161], [162, 163])
        e("  v_mul_f32 v160, 0x3b000000, v160")
        e("  v_mul_f32 v161, 0x3b000000, v161")
        bsel = [" op_sel_hi:[1,0]", " op_sel:[0,1] op_sel_hi:[1,1]"]
        for b in range(2):
            for c in range(4):
                t = 168 + 8 * b + 2 * c
                e(f"  v_pk_add_f32 v[{t}:{t+1}], v[{X+8*b+2*c}:{X+8*b+2*c+1}], v[160:161]{bsel[b]} neg_lo:[0,1] neg_hi:[0,1]")
        for b in range(2):
            t = 168 + 8 * b
            e(f"  v_pk_mul_f32 v[{164+2*b}:{165+2*b}], v[{t}:{t+1}], v[{t}:{t+1}]")
        for c in range(1, 4):
            for b in range(2):
                t = 168 + 8 * b + 2 * c
                e(f"  v_pk_fma_f32 v[{164+2*b}:{165+2*b}], v[{t}:{t+1}], v[{t}:{t+1}], v[{164+2*b}:{165+2*b}]")
        e("  v_add_f32 v164, v164, v165")
        e("  v_add_f32 v165, v166, v167")
        wave_sum([164, 165], [162, 163])
        e("  v_mul_f32 v164, 0x3b000000, v164")
        e("  v_mul_f32 v165, 0x3b000000, v165")
        for b in range(2):
            round_bf16(164 + b, 164 + b)
            e(f"  v_add_f32 v{164+b}, 0x3727c5ac, v{164+b}")
            round_bf16(164 + b, 164 + b)
            e(f"  v_sqrt_f32 v{164+b}, v{164+b}")
            e("  s_nop 0")
            round_bf16(164 + b, 164 + b)
            e(f"  v_rcp_f32 v{164+b}, v{164+b}")
            round_bf16(160 + b, 160 + b)
        for b in range(2):
            for c in range(4):
                r = X + 8 * b + 2 * c
                e(f"  v_pk_add_f32 v[{r}:{r+1}], v[{r}:{r+1}], v[160:161]{bsel[b]} neg_lo:[0,1] neg_hi:[0,1]")
            for c in range(4):
                r = X + 8 * b + 2 * c
                e(f"  v_cvt_pk_bf16_f32 v{168+c}, v{r}, v{r+1}")
            for c in range(4):
                r = X + 8 * b + 2 * c
                e(f"  v_lshlrev_b32 v{r}, 16, v{168+c}")
                e(f"  v_and_b32 v{r+1}, 0xffff0000, v{168+c}")
            for c in range(4):
                r = X + 8 * b + 2 * c
                e(f"  v_pk_mul_f32 v[{r}:{r+1}], v[{r}:{r+1}], v[164:165]{bsel[b]}")
            for c in range(4):
                r = X + 8 * b + 2 * c
                e(f"  v_cvt_pk_bf16_f32 v{168+c}, v{r}, v{r+1}")
            for c in range(4):
                r = X + 8 * b + 2 * c
                e(f"  v_lshlrev_b32 v{r}, 16, v{168+c}")
                e(f"  v_and_b32 v{r+1}, 0xffff0000, v{168+c}")
        e("  v_lshlrev_b32 v5, 5, v1")
        for b in range(2):
            e(f"  ds_write_b128 v5, v[{X+8*b}:{X+8*b+3}] offset:{L_XN + b*2048}")
            e(f"  ds_write_b128 v5, v[{X+8*b+4}:{X+8*b+7}] offset:{L_XN + b*2048 + 16}")
        e("  s_waitcnt lgkmcnt(0)")

    def pk_part(w, xr, acc0, acc1, first):
        e(f"  v_lshlrev_b32 v160, 16, v{w}")
        e(f"  v_and_b32 v161, 0xffff0000, v{w}")
        if first:
            e(f"  v_pk_mul_f32 v[{acc0}:{acc0+1}], v[160:161], v[{xr}:{xr+1}] op_sel_hi:[1,0]")
            e(f"  v_pk_mul_f32 v[{acc1}:{acc1+1}], v[160:161], v[{xr}:{xr+1}] op_sel:[0,1] op_sel_hi:[1,1]")
        else:
            e(f"  v_pk_fma_f32 v[{acc0}:{acc0+1}], v[160:161], v[{xr}:{xr+1}], v[{acc0}:{acc0+1}] op_sel_hi:[1,0,1]")
            e(f"  v_pk_fma_f32 v[{acc1}:{acc1+1}], v[160:161], v[{xr}:{xr+1}], v[{acc1}:{acc1+1}] op_sel:[0,1,0] op_sel_hi:[1,1,1]")
    if OPT["rs"]:
        e("  v_lshrrev_b32 v12, 3, v0")
        e("  v_and_b32 v13, 7, v0")
        blkoff(IDXA)
        e(f"  v_add_u32 v228, s75, v{VKOFF}")
        e(f"  v_add_u32 v229, s75, v{VVOFF}")
        pl = kchunk_l(KA, 228) + vchunk_l(VA, 229)
        e("  s_cmp_ge_u32 s3, 4")
        e("  s_cbranch_scc1 K_FLOOD")
        e("  v_lshlrev_b32 v5, 4, v1")
        e(f"  buffer_load_dwordx4 v[204:207], v5, s[{SX}:{SX+3}], 0 offen")
        e(f"  buffer_load_dwordx4 v[208:211], v5, s[{SX}:{SX+3}], 0 offen offset:1024")
        e("  v_lshrrev_b32 v6, 2, v0")
        e("  v_and_b32 v7, 3, v0")
        e("  v_lshlrev_b32 v8, 13, v6")
        e("  v_lshl_add_u32 v8, v7, 3, v8")
        e(f"  s_lshl_b32 s75, s{SCG}, 5")
        e("  v_add_u32 v8, s75, v8")
        for i in range(8):
            if i:
                e(f"  v_add_u32 v8, 0x80000, v8")
            e(f"  buffer_load_dwordx2 v[{212+2*i}:{213+2*i}], v8, s[{SWQ}:{SWQ+3}], 0 offen")
        e("  s_cmp_lg_u32 s3, 0")
        e("  s_cbranch_scc1 K_NOLI")
        e("  v_mov_b32 v8, 8")
        e("  v_mov_b32 v9, 0")
        e("  v_mov_b32 v10, 8")
        e("  v_mov_b32 v11, 8")
        e(f"  v_mov_b32 v5, {L_CNT}")
        e("  s_mov_b64 exec, 1")
        e("  ds_write_b128 v5, v[8:11]")
        e("  v_mov_b32 v8, 0")
        e("  v_mov_b32 v10, 0")
        e("  v_mov_b32 v11, 0")
        e("  ds_write_b128 v5, v[8:11] offset:16")
        e("  ds_write_b128 v5, v[8:11] offset:32")
        e("  s_mov_b64 exec, -1")
        if OPT["dq"]:
            e("  v_lshlrev_b32 v5, 2, v1")
            e(f"  ds_write_b32 v5, v9 offset:{L_DQ}")
        e("  s_waitcnt lgkmcnt(0)")
        e("K_NOLI:")
        e("  s_barrier")
        e(f"  s_mov_b32 s75, {WS_EP}")
        e("  s_load_dword s26, s[24:25], s75")
        e("  v_lshrrev_b32 v230, 3, v1")
        e("  v_lshlrev_b32 v230, 14, v230")
        e("  v_and_b32 v7, 7, v1")
        e("  v_lshl_add_u32 v230, v7, 3, v230")
        e(f"  s_lshl_b32 s75, s{SCG}, 6")
        e(f"  s_add_u32 s75, s75, {WS_QG}")
        e("  v_add_u32 v230, s75, v230")
        e("  s_mul_i32 s75, s3, 192")
        e("  v_lshlrev_b32 v231, 4, v1")
        e("  v_add_u32 v231, s75, v231")
        e("  s_waitcnt vmcnt(8)")
        tl(4)
        ln_code()
        e("  s_add_u32 s26, s26, 1")
        e("  v_lshrrev_b32 v5, 2, v0")
        e("  v_lshlrev_b32 v5, 2, v5")
        for i in range(8):
            e(f"  ds_read2st64_b32 v[{168+2*i}:{169+2*i}], v5 offset0:{(L_XN + i*256)//256} offset1:{(L_XN + i*256 + 2048)//256}")
        e(f"  v_mov_b32 v7, {L_CNT}")
        e("  v_mov_b32 v8, 1")
        e("  v_lshlrev_b32 v9, 3, v1")
        tl(4)
        e("  s_waitcnt vmcnt(0) lgkmcnt(0)")
        tl(4)
        for i in range(8):
            for c in range(2):
                pk_part(212 + 2 * i + c, 168 + 2 * i, 184 + 2 * c, 188 + 2 * c, i == 0)
        dpp_steps(list(range(184, 192)), ["row_ror:4", "row_ror:8"])
        swap_steps(list(range(184, 192)), list(range(204, 212)))
        e("  s_mov_b64 exec, 0xf")
        e(f"  ds_write_b128 v231, v[184:187] offset:{L_QP}")
        e(f"  ds_write_b128 v231, v[188:191] offset:{L_QP+64}")
        e("  s_mov_b64 exec, 1")
        e("  ds_add_rtn_u32 v6, v7, v8 offset:16")
        e("  s_mov_b64 exec, -1")
        e("  s_waitcnt lgkmcnt(0)")
        tl(4)
        e("  v_readfirstlane_b32 s75, v6")
        e("  s_cmp_lg_u32 s75, 3")
        e("  s_cbranch_scc1 K_QW")
        e("  s_mov_b64 exec, 0xffff")
        for w in range(4):
            e(f"  ds_read_b64 v[{160+2*w}:{161+2*w}], v9 offset:{L_QP + w*192}")
        e("  v_mov_b32 v169, s26")
        e("  s_waitcnt lgkmcnt(0)")
        e("  v_pk_add_f32 v[160:161], v[160:161], v[162:163]")
        e("  v_pk_add_f32 v[164:165], v[164:165], v[166:167]")
        e("  v_pk_add_f32 v[160:161], v[160:161], v[164:165]")
        e("  v_cvt_pk_bf16_f32 v168, v160, v161")
        e(f"  buffer_store_dwordx2 v[168:169], v230, s[{SWS}:{SWS+3}], 0 offen sc1")
        e("  s_mov_b64 exec, 1")
        e("  ds_add_u32 v7, v8 offset:20")
        e("  ds_add_u32 v7, v8 offset:24")
        e("  s_mov_b64 exec, -1")
        e("K_QW:")
        e(f"  s_mov_b32 s74, {OPT['bnd']:#x}")
        e("K_QWL:")
        e("  ds_read_b32 v6, v7 offset:20")
        e("  s_waitcnt lgkmcnt(0)")
        e("  v_readfirstlane_b32 s75, v6")
        e("  s_cmp_ge_u32 s75, 5")
        e("  s_cbranch_scc1 K_QGO")
        e("  s_sub_u32 s74, s74, 1")
        e("  s_cmp_lg_u32 s74, 0")
        e("  s_cbranch_scc1 K_QWL")
        e("K_QGO:")
        tl(4)
        PB = [4, 28, 44, 80]
        prs = [b_ + 2*k for b_ in PB for k in range(8)]
        def poll_addr():
            e(f"  s_lshl_b32 s72, s{SB}, 14")
            e(f"  s_lshl_b32 s76, s{SG}, 11")
            e("  s_add_u32 s72, s72, s76")
            e("  s_lshl_b32 s76, s3, 8")
            e("  s_add_u32 s72, s72, s76")
            e(f"  s_add_u32 s72, s72, {WS_QG}")
            e("  s_lshl_b32 s76, s3, 7")
            e("  v_lshlrev_b32 v6, 2, v1")
            e("  v_add_u32 v6, s76, v6")
        def poll_issue():
            for i, b_ in enumerate(PB):
                e(f"  s_load_dwordx16 s[{b_}:{b_+15}], s[24:25], s72 offset:{64*i} glc")
        def poll_check(ok):
            e("  s_waitcnt lgkmcnt(0)")
            e(f"  s_and_b64 s[76:77], s[{prs[0]}:{prs[0]+1}], s[{prs[1]}:{prs[1]+1}]")
            e(f"  s_or_b64 s[78:79], s[{prs[0]}:{prs[0]+1}], s[{prs[1]}:{prs[1]+1}]")
            for r in prs[2:]:
                e(f"  s_and_b64 s[76:77], s[76:77], s[{r}:{r+1}]")
                e(f"  s_or_b64 s[78:79], s[78:79], s[{r}:{r+1}]")
            e("  s_xor_b32 s77, s77, s26")
            e("  s_xor_b32 s79, s79, s26")
            e("  s_or_b32 s77, s77, s79")
            e("  s_cmp_eq_u32 s77, 0")
            e(f"  s_cbranch_scc1 {ok}")
        def poll_save():
            for k, r in enumerate(prs):
                e(f"  v_writelane_b32 v5, s{r}, {k}")
            e("  s_mov_b64 exec, 0xffffffff")
            e(f"  ds_write_b32 v6, v5 offset:{L_Q}")
            e("  s_mov_b64 exec, 1")
            e("  ds_add_u32 v7, v8 offset:24")
            e("  s_mov_b64 exec, -1")
        poll_addr()
        QP = OPT["qp"]
        PS = 16 // QP
        for k in range(QP):
            poll_issue()
            for c in range(k*PS, (k+1)*PS):
                e(pl[c])
                if c in (7, 15): tl(5)
            poll_check(f"K_QP{k}")
        e("  s_branch K_SPL")
        for k in range(QP):
            e(f"K_QP{k}:")
            poll_save()
            if OPT["prof"] == 4:
                e("  s_mov_b32 m0, 8")
            tl(4)
            for c in range((k+1)*PS, 16):
                e(pl[c])
                if c in (7, 15): tl(5)
            e("  s_branch K_QR")
        e("K_FLOOD:")
        if OPT["pf"] == 2:
            e("  s_barrier")
        if OPT["pf"]:
            srd(SW1, 16, 17, 512 * 1792 * 2)
            srd(SWO, 12, 13, 4096 * 512 * 2)
            srd(SW2, 18, 19, 1792 * 512 * 2)
            e("  v_bfe_u32 v9, v0, 1, 7")
            e("  v_and_b32 v10, 1, v0")
            e("  s_movk_i32 s75, 3584")
            e("  v_mul_lo_u32 v11, v9, s75")
            e("  v_lshl_add_u32 v11, v10, 3, v11")
            e(f"  s_lshl_b32 s75, s{SHC}, 4")
            e("  v_add_u32 v11, s75, v11")
            for i in range(4):
                if i:
                    e(f"  v_add_u32 v11, {128*3584}, v11")
                e(f"  buffer_load_dwordx2 v[{112+2*i}:{113+2*i}], v11, s[{SW1}:{SW1+3}], 0 offen")
        if OPT["pf"] == 1:
            e("  v_lshrrev_b32 v9, 3, v1")
            e("  v_and_b32 v10, 7, v1")
            e("  v_lshlrev_b32 v11, 10, v9")
            e("  v_lshl_add_u32 v11, v10, 4, v11")
            e("  s_lshr_b32 s75, s2, 3")
            e("  s_lshl_b32 s75, s75, 16")
            e("  s_and_b32 s76, s3, 3")
            e("  s_lshl_b32 s76, s76, 14")
            e("  s_add_u32 s75, s75, s76")
            e("  s_and_b32 s76, s2, 7")
            e("  s_lshl_b32 s76, s76, 7")
            e("  s_add_u32 s75, s75, s76")
            e(f"  buffer_load_dwordx4 v[120:123], v11, s[{SW2}:{SW2+3}], s75 offen")
            e("  s_add_u32 s75, s75, 8192")
            e(f"  buffer_load_dwordx4 v[124:127], v11, s[{SW2}:{SW2+3}], s75 offen")
        if OPT["pf"] != 2:
            e("  s_barrier")
        e(f"  s_mov_b32 s75, {WS_EP}")
        e("  s_load_dword s26, s[24:25], s75")
        tl(4)
        NPRE = 6 if OPT["pf"] else 0
        for c in range(16):
            if c >= OPT["nf"]:
                e(f"  s_waitcnt vmcnt({OPT['nf']-1})")
            e(pl[c])
            if c in (7, 15): tl(5)
        e(f"  v_mov_b32 v7, {L_CNT}")
        e("  v_mov_b32 v8, 1")
        e("  s_mov_b64 exec, 1")
        e("  ds_add_u32 v7, v8 offset:20")
        e("  s_mov_b64 exec, -1")
        tl(4)
        if OPT["pf"] == 1:
            e("  v_lshlrev_b32 v15, 13, v4")
            e("  v_lshl_add_u32 v15, v3, 2, v15")
            e(f"  s_lshl_b32 s75, s{SHEAD}, 17")
            e(f"  s_lshl_b32 s76, s{SNO}, 7")
            e("  s_add_u32 s75, s75, s76")
            e("  s_bfe_u32 s76, s3, 0x10001")
            e("  s_lshl_b32 s76, s76, 6")
            e("  s_add_u32 s75, s75, s76")
            for ks in range(4):
                for jh in range(2):
                    for j in range(4):
                        e(f"  buffer_load_dword v{80+ks*8+jh*4+j}, v15, s[{SWO}:{SWO+3}], s75 offen offset:{j*1024}")
                    if not (ks == 3 and jh == 1):
                        e(f"  s_add_u32 s75, s75, {4096 if jh == 0 else 32768-4096}")
        e("  s_waitcnt lgkmcnt(0)")
        e("  s_add_u32 s26, s26, 1")
        if OPT["pf"]:
            e(f"  s_mov_b32 s74, {OPT['bnd']:#x}")
            e("K_XW:")
            e("  ds_read_b32 v6, v7 offset:16")
            e("  s_waitcnt lgkmcnt(0)")
            e("  v_readfirstlane_b32 s75, v6")
            e("  s_cmp_ge_u32 s75, 1")
            e("  s_cbranch_scc1 K_XWD")
            e("  s_sleep 1")
            e("  s_sub_u32 s74, s74, 1")
            e("  s_cmp_lg_u32 s74, 0")
            e("  s_cbranch_scc1 K_XW")
            e("K_XWD:")
            e(f"  s_cmp_ge_u32 s{SHC}, 224")
            e("  s_cbranch_scc1 K_HS")
            e("  v_bfe_u32 v5, v0, 1, 7")
            e("  v_lshlrev_b32 v5, 2, v5")
            for i in range(4):
                e(f"  ds_read2st64_b32 v[{144+2*i}:{145+2*i}], v5 offset0:{(L_XN + i*512)//256} offset1:{(L_XN + i*512 + 2048)//256}")
            e("  s_waitcnt vmcnt(%d) lgkmcnt(0)" % (50 if OPT["pf"] == 1 else 16))
            A = 164
            for i in range(4):
                for c in range(2):
                    pk_part(112 + 2*i + c, 144 + 2*i, A + 2*c, A + 4 + 2*c, i == 0)
            dpp_steps(list(range(A, A+8)), ["quad_perm:[2,3,0,1]", "row_ror:4", "row_ror:8"])
            swap_steps(list(range(A, A+8)), list(range(172, 180)))
            e("  s_mul_i32 s75, s3, 192")
            e("  v_lshlrev_b32 v5, 4, v1")
            e("  v_add_u32 v5, s75, v5")
            e("  s_mov_b64 exec, 0x3")
            e(f"  ds_write_b128 v5, v[{A}:{A+3}] offset:{L_QP+128}")
            e(f"  ds_write_b128 v5, v[{A+4}:{A+7}] offset:{L_QP+160}")
            e("  s_mov_b64 exec, 1")
            e(f"  ds_add_rtn_u32 v6, v7, v8 offset:4")
            e("  s_mov_b64 exec, -1")
            e("  s_waitcnt lgkmcnt(0)")
            e("  v_readfirstlane_b32 s75, v6")
            e("  s_cmp_lg_u32 s75, 3")
            e("  s_cbranch_scc1 K_HS")
            e("  v_lshlrev_b32 v5, 3, v1")
            e("  s_mov_b64 exec, 0xff")
            for w in range(4):
                e(f"  ds_read_b64 v[{144+2*w}:{145+2*w}], v5 offset:{L_QP + (4+w)*192 + 128}")
            e("  v_lshrrev_b32 v6, 2, v1")
            e("  s_movk_i32 s75, 7168")
            e("  v_mul_lo_u32 v6, v6, s75")
            e("  v_and_b32 v9, 3, v1")
            e("  v_lshl_add_u32 v6, v9, 3, v6")
            e(f"  s_lshl_b32 s75, s{SHC}, 5")
            e(f"  s_add_u32 s75, s75, {WS_HG}")
            e("  s_waitcnt lgkmcnt(0)")
            e("  v_pk_add_f32 v[144:145], v[144:145], v[146:147]")
            e("  v_pk_add_f32 v[148:149], v[148:149], v[150:151]")
            e("  v_pk_add_f32 v[144:145], v[144:145], v[148:149]")
            e("  v_max_f32 v144, 0, v144")
            e("  v_max_f32 v145, 0, v145")
            e("  v_cvt_pk_bf16_f32 v144, v144, v145")
            e("  v_mov_b32 v145, s26")
            e(f"  buffer_store_dwordx2 v[144:145], v6, s[{SWS}:{SWS+3}], s75 offen sc1")
            e("  s_mov_b64 exec, -1")
            e("K_HS:")
            tl(4)
        if OPT["pf"] == 1:
            e("  s_cmp_ge_u32 s2, 224")
            e("  s_cbranch_scc1 K_GS")
            e("  s_lshr_b32 s72, s2, 3")
            e("  s_lshl_b32 s72, s72, 8")
            e("  s_and_b32 s76, s3, 3")
            e("  s_lshl_b32 s76, s76, 6")
            e("  s_add_u32 s72, s72, s76")
            e(f"  s_add_u32 s72, s72, {WS_HG}")
            e("  s_add_u32 s73, s72, 7168")
            e(f"  s_mov_b32 s74, {OPT['bnd']:#x}")
            e("K_HP:")
            e("  s_load_dwordx16 s[4:19], s[24:25], s72 glc")
            e("  s_load_dwordx16 s[28:43], s[24:25], s73 glc")
            e("  s_waitcnt lgkmcnt(0)")
            hr = [4 + 2*k for k in range(8)] + [28 + 2*k for k in range(8)]
            e(f"  s_and_b64 s[76:77], s[{hr[0]}:{hr[0]+1}], s[{hr[1]}:{hr[1]+1}]")
            e(f"  s_or_b64 s[78:79], s[{hr[0]}:{hr[0]+1}], s[{hr[1]}:{hr[1]+1}]")
            for r in hr[2:]:
                e(f"  s_and_b64 s[76:77], s[76:77], s[{r}:{r+1}]")
                e(f"  s_or_b64 s[78:79], s[78:79], s[{r}:{r+1}]")
            e("  s_xor_b32 s77, s77, s26")
            e("  s_xor_b32 s79, s79, s26")
            e("  s_or_b32 s77, s77, s79")
            e("  s_cmp_eq_u32 s77, 0")
            e("  s_cbranch_scc1 K_HPD")
            e("  s_sub_u32 s74, s74, 1")
            e("  s_cmp_lg_u32 s74, 0")
            e("  s_cbranch_scc1 K_HP")
            e("K_HPD:")
            for k in range(4):
                e(f"  s_mov_b32 s76, {(0xffff << (16*k)) & 0xffffffff if k < 2 else 0:#x}")
                e(f"  s_mov_b32 s77, {(0xffff << (16*(k-2))) & 0xffffffff if k >= 2 else 0:#x}")
                e("  s_mov_b64 exec, s[76:77]")
                for b in range(2):
                    for i in range(2):
                        e(f"  v_mov_b32 v{144+2*b+i}, s{(4 if b == 0 else 28) + 2*(k+4*i)}")
            e("  s_mov_b64 exec, -1")
            e("  v_and_b32 v5, 8, v1")
            e("  v_cmp_ne_u32 vcc, 0, v5")
            for r in range(144, 148):
                e(f"  v_lshlrev_b32 v148, 16, v{r}")
                e(f"  v_and_b32 v149, 0xffff0000, v{r}")
                e(f"  v_cndmask_b32 v{r}, v148, v149, vcc")
            e("  s_waitcnt vmcnt(48)")
            A = 164
            for i in range(2):
                for c in range(4):
                    w = 120 + 4*i + c
                    e(f"  v_lshlrev_b32 v150, 16, v{w}")
                    e(f"  v_and_b32 v151, 0xffff0000, v{w}")
                    for b in range(2):
                        h = 144 + 2*b + i
                        if i == 0:
                            e(f"  v_mul_f32 v{A+8*b+2*c}, v150, v{h}")
                            e(f"  v_mul_f32 v{A+8*b+2*c+1}, v151, v{h}")
                        else:
                            e(f"  v_fmac_f32 v{A+8*b+2*c}, v150, v{h}")
                            e(f"  v_fmac_f32 v{A+8*b+2*c+1}, v151, v{h}")
            dpp_steps(list(range(A, A+16)), ["row_ror:8"])
            swap_steps(list(range(A, A+16)), list(range(180, 196)))
            e("  s_and_b32 s75, s3, 3")
            e("  s_lshl_b32 s75, s75, 9")
            e("  v_lshlrev_b32 v5, 5, v1")
            e("  v_add_u32 v5, s75, v5")
            e("  s_mov_b64 exec, 0xff")
            e(f"  ds_write_b128 v5, v[{A}:{A+3}] offset:{L_FP}")
            e(f"  ds_write_b128 v5, v[{A+4}:{A+7}] offset:{L_FP+16}")
            e(f"  ds_write_b128 v5, v[{A+8}:{A+11}] offset:{L_FP+256}")
            e(f"  ds_write_b128 v5, v[{A+12}:{A+15}] offset:{L_FP+272}")
            e("  s_mov_b64 exec, 1")
            e(f"  ds_add_rtn_u32 v6, v7, v8 offset:28")
            e("  s_mov_b64 exec, -1")
            e("  s_waitcnt lgkmcnt(0)")
            e("  v_readfirstlane_b32 s75, v6")
            e("  s_cmp_lg_u32 s75, 3")
            e("  s_cbranch_scc1 K_GS")
            e("  v_lshlrev_b32 v5, 3, v1")
            for w in range(4):
                e(f"  ds_read_b64 v[{144+2*w}:{145+2*w}], v5 offset:{L_FP + w*512}")
            e("  v_lshrrev_b32 v6, 5, v1")
            e("  v_lshlrev_b32 v6, 12, v6")
            e("  v_and_b32 v9, 31, v1")
            e("  v_lshl_add_u32 v6, v9, 4, v6")
            e("  s_lshr_b32 s75, s2, 3")
            e("  s_lshl_b32 s75, s75, 13")
            e("  s_and_b32 s76, s2, 7")
            e("  s_lshl_b32 s76, s76, 9")
            e("  s_add_u32 s75, s75, s76")
            e(f"  s_add_u32 s75, s75, {WS_GG}")
            e("  s_waitcnt lgkmcnt(0)")
            e("  v_pk_add_f32 v[144:145], v[144:145], v[146:147]")
            e("  v_pk_add_f32 v[148:149], v[148:149], v[150:151]")
            e("  v_pk_add_f32 v[144:145], v[144:145], v[148:149]")
            e("  v_mov_b32 v146, v145")
            e("  v_mov_b32 v145, s26")
            e("  v_mov_b32 v147, s26")
            e(f"  buffer_store_dwordx4 v[144:147], v6, s[{SWS}:{SWS+3}], s75 offen sc1")
            e("K_GS:")
            tl(4)
        poll_addr()
        e("K_SPL:")
        e(f"  s_mov_b32 s74, {OPT['bnd']:#x}")
        e("K_SP:")
        poll_issue()
        poll_check("K_SPD")
        if OPT["qsl"]: e(f"  s_sleep {OPT['qsl']}")
        e("  s_sub_u32 s74, s74, 1")
        e("  s_cmp_lg_u32 s74, 0")
        e("  s_cbranch_scc1 K_SP")
        e("K_SPD:")
        poll_save()
        if OPT["prof"] == 4:
            e("  s_mov_b32 m0, 8")
        tl(4)
        e("K_QR:")
        e(f"  s_mov_b32 s74, {OPT['bnd']:#x}")
        e("K_QRL:")
        e("  ds_read_b32 v6, v7 offset:24")
        e("  s_waitcnt lgkmcnt(0)")
        e("  v_readfirstlane_b32 s75, v6")
        e("  s_cmp_ge_u32 s75, 9")
        e("  s_cbranch_scc1 K_QRD")
        e("  s_sub_u32 s74, s74, 1")
        e("  s_cmp_lg_u32 s74, 0")
        e("  s_cbranch_scc1 K_QRL")
        e("K_QRD:")
        if OPT["prof"] == 4:
            e("  s_mov_b32 m0, 9")
        F2 = 16
    else:
        e("  v_lshlrev_b32 v5, 4, v1")
        e(f"  buffer_load_dwordx4 v[204:207], v5, s[{SX}:{SX+3}], 0 offen")
        e(f"  buffer_load_dwordx4 v[208:211], v5, s[{SX}:{SX+3}], 0 offen offset:1024")
        if OPT["xb"]:
            e("  s_barrier")
        e("  v_lshrrev_b32 v6, 2, v0")
        e("  v_and_b32 v7, 3, v0")
        e("  v_lshlrev_b32 v8, 13, v6")
        e("  v_lshl_add_u32 v8, v7, 3, v8")
        e(f"  s_lshl_b32 s75, s{SCG}, 5")
        e("  v_add_u32 v8, s75, v8")
        for i in range(4):
            if i == 0:
                e(f"  buffer_load_dwordx2 v[212:213], v8, s[{SWQ}:{SWQ+3}], 0 offen")
            else:
                e(f"  v_add_u32 v8, 0x100000, v8")
                e(f"  buffer_load_dwordx2 v[{212+2*i}:{213+2*i}], v8, s[{SWQ}:{SWQ+3}], 0 offen")
        e("  v_lshrrev_b32 v12, 3, v0")
        e("  v_and_b32 v13, 7, v0")
        if OPT["rot"]:
            e(f"  s_mul_i32 s73, s2, {OPT['rot']}")
        blkoff(IDXA)
        e(f"  v_add_u32 v224, s75, v{VKOFF}")
        e(f"  v_add_u32 v225, s75, v{VVOFF}")
        pl = kchunk_l(KA, 224) + vchunk_l(VA, 225)
        PRE0 = OPT["pre0"]
        if OPT["bar0"] and PRE0:
            e("  s_barrier")
        for c in range(PRE0):
            e(pl[c])
        e(f"  s_waitcnt vmcnt({4+PRE0})")
        tl(4)
        ln_code()
        e("  s_add_u32 s26, s26, 1")
        e("  v_lshrrev_b32 v5, 2, v0")
        e("  v_lshlrev_b32 v5, 2, v5")
        for i in range(4):
            e(f"  ds_read2st64_b32 v[{168+2*i}:{169+2*i}], v5 offset0:{(L_XN + i*512)//256} offset1:{(L_XN + i*512 + 2048)//256}")
        tl(4)
        e(f"  s_waitcnt vmcnt({PRE0}) lgkmcnt(0)")
        tl(4)
        for c in range(PRE0, F1):
            e(pl[c])
        for i in range(4):
            for c in range(2):
                pk_part(212 + 2 * i + c, 168 + 2 * i, 180 + 2 * c, 184 + 2 * c, i == 0)
        dpp_steps(list(range(180, 188)), ["row_ror:4", "row_ror:8"])
        swap_steps(list(range(180, 188)), list(range(204, 212)))
        e("  s_mul_i32 s75, s3, 192")
        e("  v_lshlrev_b32 v5, 4, v1")
        e("  v_add_u32 v5, s75, v5")
        e("  s_mov_b64 exec, 0xf")
        e(f"  ds_write_b128 v5, v[180:183] offset:{L_QP}")
        e(f"  ds_write_b128 v5, v[184:187] offset:{L_QP+64}")
        e("  s_mov_b64 exec, -1")
        e("  s_waitcnt lgkmcnt(0)")
        tl(4)
        e("  s_barrier")
        e("  s_cmp_lg_u32 s3, 0")
        e("  s_cbranch_scc1 K_B2")
        e("  v_lshlrev_b32 v5, 3, v1")
        e("  s_mov_b64 exec, 0xffff")
        for w in range(8):
            e(f"  ds_read_b64 v[{160+2*w}:{161+2*w}], v5 offset:{L_QP + w*192}")
        e("  v_lshrrev_b32 v6, 3, v1")
        e("  v_lshlrev_b32 v6, 14, v6")
        e("  v_and_b32 v7, 7, v1")
        e("  v_lshl_add_u32 v6, v7, 3, v6")
        e(f"  s_lshl_b32 s75, s{SCG}, 6")
        e(f"  s_add_u32 s75, s75, {WS_QG}")
        e("  v_add_u32 v6, s75, v6")
        e("  v_mov_b32 v8, 8")
        e("  v_mov_b32 v9, 0")
        e("  v_mov_b32 v10, 8")
        e(f"  v_mov_b32 v11, {L_CNT}")
        e("  s_waitcnt lgkmcnt(0)")
        e("  v_pk_add_f32 v[160:161], v[160:161], v[162:163]")
        e("  v_pk_add_f32 v[164:165], v[164:165], v[166:167]")
        e("  v_pk_add_f32 v[168:169], v[168:169], v[170:171]")
        e("  v_pk_add_f32 v[172:173], v[172:173], v[174:175]")
        e("  v_pk_add_f32 v[160:161], v[160:161], v[164:165]")
        e("  v_pk_add_f32 v[168:169], v[168:169], v[172:173]")
        e("  v_pk_add_f32 v[160:161], v[160:161], v[168:169]")
        e("  v_cvt_pk_bf16_f32 v160, v160, v161")
        e("  v_mov_b32 v161, s26")
        e(f"  buffer_store_dwordx2 v[160:161], v6, s[{SWS}:{SWS+3}], 0 offen sc1")
        e("  ds_write_b96 v11, v[8:10]")
        e("  s_mov_b64 exec, -1")
        e("K_B2:")
        tl(4)
        if OPT["bar2"]:
            e("  s_barrier")
        F2 = max(F1, OPT["f2"])
        for c in range(F1, F2):
            e(pl[c])
    if not OPT['rs']:
        e(f"  s_lshl_b32 s75, s{SB}, 14")
        e(f"  s_lshl_b32 s76, s{SG}, 11")
        e("  s_add_u32 s75, s75, s76")
        e("  s_lshl_b32 s76, s3, 8")
        e("  s_add_u32 s75, s75, s76")
        e(f"  s_add_u32 s75, s75, {WS_QG}")
        e("  s_lshl_b32 s76, s3, 7")
        e("  v_lshlrev_b32 v6, 2, v1")
        e("  v_add_u32 v6, s76, v6")
        e(f"  s_mov_b32 s74, {OPT['bnd']:#x}")
        PB = [4, 28, 44, 80]
        tl(4)
        e("K_SP:")
        for i, b_ in enumerate(PB):
            e(f"  s_load_dwordx16 s[{b_}:{b_+15}], s[24:25], s75 offset:{64*i} glc")
        e("  s_waitcnt lgkmcnt(0)")
        prs = [b_ + 2*k for b_ in PB for k in range(8)]
        e(f"  s_and_b64 s[76:77], s[{prs[0]}:{prs[0]+1}], s[{prs[1]}:{prs[1]+1}]")
        e(f"  s_or_b64 s[78:79], s[{prs[0]}:{prs[0]+1}], s[{prs[1]}:{prs[1]+1}]")
        for r in prs[2:]:
            e(f"  s_and_b64 s[76:77], s[76:77], s[{r}:{r+1}]")
            e(f"  s_or_b64 s[78:79], s[78:79], s[{r}:{r+1}]")
        e("  s_xor_b32 s77, s77, s26")
        e("  s_xor_b32 s79, s79, s26")
        e("  s_or_b32 s77, s77, s79")
        e("  s_cmp_eq_u32 s77, 0")
        e("  s_cbranch_scc1 K_SPD")
        e("  s_sub_u32 s74, s74, 1")
        e("  s_cmp_lg_u32 s74, 0")
        e("  s_cbranch_scc1 K_SP")
        e("K_SPD:")
        tl(4)
        for k, r in enumerate(prs):
            e(f"  v_writelane_b32 v5, s{r}, {k}")
        e("  s_mov_b64 exec, 0xffffffff")
        e(f"  ds_write_b32 v6, v5 offset:{L_Q}")
        e("  s_mov_b64 exec, -1")
        e("  s_waitcnt lgkmcnt(0)")
        e("  s_barrier")
    e("K_B3:")
    tl(4)
    e("  s_load_dwordx16 s[4:19], s[0:1], 0")
    e("  s_load_dwordx2 s[96:97], s[0:1], 64")
    for c in range(F2, len(pl)):
        e(pl[c])
    e("  v_and_b32 v5, 3, v3")
    e("  v_lshlrev_b32 v5, 8, v5")
    e("  v_lshl_add_u32 v5, v4, 4, v5")
    for i in range(4):
        e(f"  ds_read_b128 v[{QF+4*i}:{QF+4*i+3}], v5 offset:{L_Q + i*64}")
    derive()
    for r in range(32):
        e(f"  v_mov_b32 v{ACC+r}, 0")
    e(f"  v_mov_b32 v{M_}, 0xf149f2ca")
    e(f"  v_mov_b32 v{L_}, 0")
    e(f"  v_mov_b32 v7, {L_CNT}")
    e("  v_mov_b32 v8, 1")
    e("  s_waitcnt lgkmcnt(0)")
    srd(SX, 4, 5, 2048)
    srd(SW1, 16, 17, 512 * 1792 * 2)
    srd(SWO, 12, 13, 4096 * 512 * 2)
    srd(SW2, 18, 19, 1792 * 512 * 2)
    srd(SOUT, 96, 97, 2048)
    if OPT["warmp"]:
        e("  v_mov_b32 v10, 0")
        e("  s_mov_b64 exec, 1")
        if OPT["warmp"] & 1:
            e(f"  buffer_load_dword v249, v10, s[{SWS}:{SWS+3}], s93 offen sc1")
        if OPT["warmp"] & 2:
            e(f"  s_mov_b32 s75, {16*OPT['ns']*8192}")
            e(f"  buffer_load_dword v249, v10, s[{SK}:{SK+3}], s75 offen nt")
            e(f"  buffer_load_dword v250, v10, s[{SV}:{SV+3}], s75 offen nt")
        e("  s_mov_b64 exec, -1")
    if OPT["fd"]:
        e("  s_cmp_ge_u32 s2, 224")
        e("  s_cselect_b32 s95, 2, 0")
    if OPT["pf"] == 2:
        e("  s_cmp_ge_u32 s3, 4")
        e("  s_cselect_b32 s27, 2, 0")
    else:
        e("  s_mov_b32 s27, %d" % (0 if OPT["pf"] else 2))
    if OPT["gf"]:
        assert OPT["x2"] and not OPT["th"] and not OPT["fd"] and not OPT["pf"]
        e("  s_cmp_ge_u32 s2, 224")
        e("  s_cselect_b32 s39, 2, 0")
    if OPT["gp"]:
        e("  s_bfe_u32 s75, s2, 0x40002")
        e(f"  s_mul_i32 s75, s75, {OPT['nsub']*256}")
        e(f"  s_add_u32 s75, s75, {WS_PC}")
        e("  v_mov_b32 v250, s75")
        e("  v_mov_b32 v249, 1")
        e("  s_mov_b32 s37, 0")
        e("  s_mov_b32 s36, 0")
        e("  s_waitcnt lgkmcnt(0)")
    def x_loads(sfx):
        e("  s_cmp_lg_u32 s27, 2")
        e(f"  s_cbranch_scc1 K_XL{sfx}")
        e("  s_mov_b32 s27, 3")
        if OPT["x2"]:
            e("  v_lshlrev_b32 v14, 10, v12")
            e("  v_lshl_add_u32 v14, v13, 4, v14")
            e("  s_cmp_ge_u32 s2, 224")
            e(f"  s_cbranch_scc1 K_XW{sfx}")
            e("  s_movk_i32 s75, 3584")
            e("  v_mul_lo_u32 v11, v12, s75")
            e("  v_lshl_add_u32 v11, v13, 4, v11")
            e("  s_and_b32 s75, s2, 7")
            e(f"  s_mul_i32 s75, s75, {64*3584}")
            e("  s_lshr_b32 s76, s2, 3")
            e("  s_lshl_b32 s76, s76, 7")
            e("  s_add_u32 s75, s75, s76")
            e(f"  buffer_load_dwordx4 v[244:247], v11, s[{SW1}:{SW1+3}], s75 offen")
            e(f"K_XW{sfx}:")
            e(f"  s_lshl_b32 s75, s{SHEAD}, 17")
            if OPT["jd"]:
                e(f"  s_and_b32 s76, s{SNO}, 3")
                e(f"  s_lshl_b32 s76, s76, 8")
            else:
                e(f"  s_lshl_b32 s76, s{SNO}, 7")
            e("  s_add_u32 s75, s75, s76")
            e(f"  buffer_load_dwordx4 v[80:83], v14, s[{SWO}:{SWO+3}], s75 offen")
            if OPT["jd"]:
                e(f"  buffer_load_dwordx4 v[88:91], v14, s[{SWO}:{SWO+3}], s75 offen offset:128")
            e("  s_add_u32 s75, s75, 0x10000")
            e(f"  buffer_load_dwordx4 v[84:87], v14, s[{SWO}:{SWO+3}], s75 offen")
            if OPT["jd"]:
                e(f"  buffer_load_dwordx4 v[92:95], v14, s[{SWO}:{SWO+3}], s75 offen offset:128")
            e("  s_lshr_b32 s75, s2, 3")
            e("  s_lshl_b32 s75, s75, 16")
            e("  v_add_u32 v15, s75, v14")
            e(f"  s_lshl_b32 s75, s{SNC}, 7")
            e("  v_add_u32 v15, s75, v15")
            e(f"  buffer_load_dwordx4 v[{W2}:{W2+3}], v15, s[{SW2}:{SW2+3}], 0 offen")
            e(f"K_XL{sfx}:")
            return
        e("  v_lshrrev_b32 v9, 1, v0")
        e("  v_and_b32 v10, 1, v0")
        e("  s_movk_i32 s75, 3584")
        e("  v_mul_lo_u32 v11, v9, s75")
        e("  v_lshl_add_u32 v11, v10, 3, v11")
        e(f"  s_lshl_b32 s75, s{SHC}, 4")
        e("  v_add_u32 v11, s75, v11")
        e(f"  buffer_load_dwordx2 v[244:245], v11, s[{SW1}:{SW1+3}], 0 offen")
        e(f"  v_add_u32 v11, {256*3584}, v11")
        e(f"  buffer_load_dwordx2 v[246:247], v11, s[{SW1}:{SW1+3}], 0 offen")
        wo_loads()
        e(f"K_XL{sfx}:")

    def wo_once(sfx):
        e("  s_cmp_lg_u32 s27, 2")
        e(f"  s_cbranch_scc1 K_WO{sfx}")
        e("  s_mov_b32 s27, 0")
        e("  v_lshlrev_b32 v15, 13, v4")
        e("  v_lshl_add_u32 v15, v3, 2, v15")
        e(f"  s_lshl_b32 s75, s{SHEAD}, 17")
        e(f"  s_lshl_b32 s76, s{SNO}, 7")
        e("  s_add_u32 s75, s75, s76")
        e("  s_bfe_u32 s76, s3, 0x10001")
        e("  s_lshl_b32 s76, s76, 6")
        e("  s_add_u32 s75, s75, s76")
        for ks in range(4):
            for jh in range(2):
                for j in range(4):
                    e(f"  buffer_load_dword v{80+ks*8+jh*4+j}, v15, s[{SWO}:{SWO+3}], s75 offen offset:{j*1024}")
                if not (ks == 3 and jh == 1):
                    e(f"  s_add_u32 s75, s75, {4096 if jh == 0 else 32768-4096}")
        e(f"K_WO{sfx}:")

    def fd_at_exit():
        e("  s_cmp_ge_u32 s2, 224")
        e("  s_cbranch_scc1 K_FX")
        e("  s_mov_b64 exec, 1")
        e("  ds_add_rtn_u32 v6, v7, v8 offset:32")
        e("  s_mov_b64 exec, -1")
        e("  s_waitcnt lgkmcnt(0)")
        e("  v_readfirstlane_b32 s72, v6")
        e("  s_cmp_ge_u32 s72, 4")
        e("  s_cbranch_scc1 K_FX")
        e("  v_lshrrev_b32 v9, 3, v1")
        e("  v_and_b32 v10, 7, v1")
        e("  v_lshlrev_b32 v11, 10, v9")
        e("  v_lshl_add_u32 v11, v10, 4, v11")
        e("  s_lshr_b32 s75, s2, 3")
        e("  s_lshl_b32 s75, s75, 16")
        e("  s_lshl_b32 s76, s72, 14")
        e("  s_add_u32 s75, s75, s76")
        e("  s_and_b32 s76, s2, 7")
        e("  s_lshl_b32 s76, s76, 7")
        e("  s_add_u32 s75, s75, s76")
        e(f"  buffer_load_dwordx4 v[16:19], v11, s[{SW2}:{SW2+3}], s75 offen")
        e("  s_add_u32 s75, s75, 8192")
        e(f"  buffer_load_dwordx4 v[20:23], v11, s[{SW2}:{SW2+3}], s75 offen")
        e("  v_lshlrev_b32 v12, 3, v4")
        e("  s_lshr_b32 s75, s2, 3")
        e("  s_lshl_b32 s75, s75, 8")
        e("  s_lshl_b32 s76, s72, 6")
        e("  s_add_u32 s75, s75, s76")
        e(f"  s_add_u32 s75, s75, {WS_HG}")
        e("  s_add_u32 s76, s75, 7168")
        e(f"  s_mov_b32 s74, {OPT['bnd']:#x}")
        e("K_FXP:")
        e(f"  buffer_load_dwordx2 v[24:25], v12, s[{SWS}:{SWS+3}], s75 offen sc1")
        e(f"  buffer_load_dwordx2 v[26:27], v12, s[{SWS}:{SWS+3}], s75 offen offset:32 sc1")
        e(f"  buffer_load_dwordx2 v[28:29], v12, s[{SWS}:{SWS+3}], s76 offen sc1")
        e(f"  buffer_load_dwordx2 v[30:31], v12, s[{SWS}:{SWS+3}], s76 offen offset:32 sc1")
        e("  s_waitcnt vmcnt(0)")
        e("  v_cmp_ne_u32 s[78:79], s26, v25")
        for r in [27, 29, 31]:
            e(f"  v_cmp_ne_u32 vcc, s26, v{r}")
            e("  s_or_b64 s[78:79], s[78:79], vcc")
        e("  s_cmp_eq_u64 s[78:79], 0")
        e("  s_cbranch_scc1 K_FXD")
        e("  s_sub_u32 s74, s74, 1")
        e("  s_cmp_lg_u32 s74, 0")
        e("  s_cbranch_scc1 K_FXP")
        e("K_FXD:")
        e("  v_and_b32 v5, 8, v1")
        e("  v_cmp_ne_u32 vcc, 0, v5")
        for r in [24, 26, 28, 30]:
            e(f"  v_lshlrev_b32 v48, 16, v{r}")
            e(f"  v_and_b32 v49, 0xffff0000, v{r}")
            e(f"  v_cndmask_b32 v{r}, v48, v49, vcc")
        A = 32
        for i in range(2):
            for c in range(4):
                w = 16 + 4*i + c
                e(f"  v_lshlrev_b32 v48, 16, v{w}")
                e(f"  v_and_b32 v49, 0xffff0000, v{w}")
                for b in range(2):
                    h = 24 + 4*b + 2*i
                    if i == 0:
                        e(f"  v_mul_f32 v{A+8*b+2*c}, v48, v{h}")
                        e(f"  v_mul_f32 v{A+8*b+2*c+1}, v49, v{h}")
                    else:
                        e(f"  v_fmac_f32 v{A+8*b+2*c}, v48, v{h}")
                        e(f"  v_fmac_f32 v{A+8*b+2*c+1}, v49, v{h}")
        dpp_steps(list(range(A, A+16)), ["row_ror:8"])
        swap_steps(list(range(A, A+16)), list(range(48, 64)))
        e("  s_lshl_b32 s75, s72, 9")
        e("  v_lshlrev_b32 v5, 5, v1")
        e("  v_add_u32 v5, s75, v5")
        e("  s_mov_b64 exec, 0xff")
        e(f"  ds_write_b128 v5, v[{A}:{A+3}] offset:{L_FP}")
        e(f"  ds_write_b128 v5, v[{A+4}:{A+7}] offset:{L_FP+16}")
        e(f"  ds_write_b128 v5, v[{A+8}:{A+11}] offset:{L_FP+256}")
        e(f"  ds_write_b128 v5, v[{A+12}:{A+15}] offset:{L_FP+272}")
        e("  s_mov_b64 exec, 1")
        e(f"  ds_add_rtn_u32 v6, v7, v8 offset:28")
        e("  s_mov_b64 exec, -1")
        e("  s_waitcnt lgkmcnt(0)")
        e("  v_readfirstlane_b32 s75, v6")
        e("  s_cmp_lg_u32 s75, 3")
        e("  s_cbranch_scc1 K_FX")
        e("  v_lshlrev_b32 v5, 3, v1")
        for w in range(4):
            e(f"  ds_read_b64 v[{16+2*w}:{17+2*w}], v5 offset:{L_FP + w*512}")
        e("  v_lshrrev_b32 v6, 5, v1")
        e("  v_lshlrev_b32 v6, 12, v6")
        e("  v_and_b32 v9, 31, v1")
        e("  v_lshl_add_u32 v6, v9, 4, v6")
        e("  s_lshr_b32 s75, s2, 3")
        e("  s_lshl_b32 s75, s75, 13")
        e("  s_and_b32 s76, s2, 7")
        e("  s_lshl_b32 s76, s76, 9")
        e("  s_add_u32 s75, s75, s76")
        e(f"  s_add_u32 s75, s75, {WS_GG}")
        e("  s_waitcnt lgkmcnt(0)")
        e("  v_pk_add_f32 v[16:17], v[16:17], v[18:19]")
        e("  v_pk_add_f32 v[20:21], v[20:21], v[22:23]")
        e("  v_pk_add_f32 v[16:17], v[16:17], v[20:21]")
        e("  v_mov_b32 v18, v17")
        e("  v_mov_b32 v17, s26")
        e("  v_mov_b32 v19, s26")
        e(f"  buffer_store_dwordx4 v[16:19], v6, s[{SWS}:{SWS+3}], s75 offen sc1")
        e("K_FX:")

    def h_phase(sfx):
        e("  s_cmp_eq_u32 s27, 0")
        e(f"  s_cbranch_scc1 K_HSKP{sfx}")
        e("  s_sub_u32 s27, s27, 2")
        e("  s_cmp_eq_u32 s27, 1")
        e(f"  s_cbranch_scc1 K_HSKP{sfx}")
        e("  s_mov_b32 s27, 0")
        if OPT["x2"]:
            if OPT["jd"]:
                e("  v_mul_u32_u24 v5, 272, v12")
                e("  v_lshl_add_u32 v5, v13, 4, v5")
                e(f"  v_add_u32 v5, {L_WO}, v5")
                e(f"  ds_write_b128 v5, v[80:83]")
                e(f"  ds_write_b128 v5, v[84:87] offset:{64*272}")
                e(f"  ds_write_b128 v5, v[88:91] offset:128")
                e(f"  ds_write_b128 v5, v[92:95] offset:{64*272+128}")
            else:
                e("  v_mul_u32_u24 v5, 144, v12")
                e("  v_lshl_add_u32 v5, v13, 4, v5")
                e(f"  ds_write_b128 v5, v[80:83] offset:{L_WO}")
                e(f"  ds_write_b128 v5, v[84:87] offset:{L_WO + 64*144}")
            e("  s_cmp_ge_u32 s2, 224")
            e(f"  s_cbranch_scc1 K_HSKP{sfx}")
            e("  s_and_b32 s75, s2, 7")
            e("  s_lshl_b32 s75, s75, 8")
            e("  v_lshl_add_u32 v5, v12, 2, s75")
            e(f"  ds_read_b32 v204, v5 offset:{L_XN}")
            e(f"  ds_read_b32 v205, v5 offset:{L_XN+2048}")
            e("  s_waitcnt lgkmcnt(0)")
            A = 212
            for c in range(4):
                e(f"  v_lshlrev_b32 v206, 16, v{244+c}")
                e(f"  v_and_b32 v207, 0xffff0000, v{244+c}")
                e(f"  v_mul_f32 v{A+2*c}, v206, v204")
                e(f"  v_mul_f32 v{A+1+2*c}, v207, v204")
                e(f"  v_mul_f32 v{A+8+2*c}, v206, v205")
                e(f"  v_mul_f32 v{A+9+2*c}, v207, v205")
            dpp_steps(list(range(A, A+16)), ["row_ror:8"])
            swap_steps(list(range(A, A+16)), list(range(220+8, 236+8))[:16] if False else [228,229,230,231,232,233,234,235,204,205,206,207,208,209,210,211])
            e("  s_lshl_b32 s75, s3, 9")
            e("  v_lshlrev_b32 v5, 5, v1")
            e("  v_add_u32 v5, s75, v5")
            e("  s_mov_b64 exec, 0xff")
            e(f"  ds_write_b128 v5, v[{A}:{A+3}] offset:{L_FP}")
            e(f"  ds_write_b128 v5, v[{A+4}:{A+7}] offset:{L_FP+16}")
            e(f"  ds_write_b128 v5, v[{A+8}:{A+11}] offset:{L_FP+256}")
            e(f"  ds_write_b128 v5, v[{A+12}:{A+15}] offset:{L_FP+272}")
            e("  s_mov_b64 exec, 1")
            e(f"  ds_add_rtn_u32 v6, v7, v8 offset:4")
            e("  s_mov_b64 exec, -1")
            e("  s_waitcnt lgkmcnt(0)")
            e("  v_readfirstlane_b32 s75, v6")
            e("  s_cmp_lg_u32 s75, 7")
            e(f"  s_cbranch_scc1 K_HSKP{sfx}")
            e("  v_lshlrev_b32 v5, 2, v1")
            for w in range(8):
                e(f"  ds_read_b32 v{204+2*w}, v5 offset:{L_FP + w*512}")
                e(f"  ds_read_b32 v{205+2*w}, v5 offset:{L_FP + w*512 + 256}")
            e("  v_lshlrev_b32 v6, 4, v1")
            e("  s_lshl_b32 s75, s2, 10")
            e("  s_mov_b32 s76, 0")
            e("  s_add_u32 s75, s75, s76")
            e(f"  s_add_u32 s75, s75, {WS_H2}")
            e("  s_waitcnt lgkmcnt(0)")
            e("  v_pk_add_f32 v[204:205], v[204:205], v[206:207]")
            e("  v_pk_add_f32 v[208:209], v[208:209], v[210:211]")
            e("  v_pk_add_f32 v[212:213], v[212:213], v[214:215]")
            e("  v_pk_add_f32 v[216:217], v[216:217], v[218:219]")
            e("  v_pk_add_f32 v[204:205], v[204:205], v[208:209]")
            e("  v_pk_add_f32 v[212:213], v[212:213], v[216:217]")
            e("  v_pk_add_f32 v[204:205], v[204:205], v[212:213]")
            e("  v_mov_b32 v206, s26")
            e("  v_mov_b32 v207, s26")
            e(f"  buffer_store_dwordx4 v[204:207], v6, s[{SWS}:{SWS+3}], s75 offen sc1")
            if OPT["xw"] == 2 and sfx == "L":
                e("  s_mov_b32 s27, 5")
            e(f"K_HSKP{sfx}:")
            return
        e(f"  s_cmp_ge_u32 s{SHC}, 224")
        e(f"  s_cbranch_scc1 K_HSKP{sfx}")
        e("  v_lshrrev_b32 v5, 1, v0")
        e("  v_lshlrev_b32 v5, 2, v5")
        for i in range(2):
            e(f"  ds_read2st64_b32 v[{204+2*i}:{205+2*i}], v5 offset0:{(L_XN + i*1024)//256} offset1:{(L_XN + i*1024 + 2048)//256}")
        e("  s_waitcnt lgkmcnt(0)")
        A = 212
        for i in range(2):
            for c in range(2):
                w = 244 + 2*i + c
                xr = 204 + 2*i
                a0, a1 = A + 2*c, A + 4 + 2*c
                e(f"  v_lshlrev_b32 v208, 16, v{w}")
                e(f"  v_and_b32 v209, 0xffff0000, v{w}")
                if i == 0:
                    e(f"  v_pk_mul_f32 v[{a0}:{a0+1}], v[208:209], v[{xr}:{xr+1}] op_sel_hi:[1,0]")
                    e(f"  v_pk_mul_f32 v[{a1}:{a1+1}], v[208:209], v[{xr}:{xr+1}] op_sel:[0,1] op_sel_hi:[1,1]")
                else:
                    e(f"  v_pk_fma_f32 v[{a0}:{a0+1}], v[208:209], v[{xr}:{xr+1}], v[{a0}:{a0+1}] op_sel_hi:[1,0,1]")
                    e(f"  v_pk_fma_f32 v[{a1}:{a1+1}], v[208:209], v[{xr}:{xr+1}], v[{a1}:{a1+1}] op_sel:[0,1,0] op_sel_hi:[1,1,1]")
        dpp_steps(list(range(A, A+8)), ["quad_perm:[2,3,0,1]", "row_ror:4", "row_ror:8"])
        swap_steps(list(range(A, A+8)), list(range(220, 228)))
        e("  s_mul_i32 s75, s3, 192")
        e("  v_lshlrev_b32 v5, 4, v1")
        e("  v_add_u32 v5, s75, v5")
        e("  s_mov_b64 exec, 0x3")
        e(f"  ds_write_b128 v5, v[{A}:{A+3}] offset:{L_QP+128}")
        e(f"  ds_write_b128 v5, v[{A+4}:{A+7}] offset:{L_QP+160}")
        e("  s_mov_b64 exec, 1")
        e(f"  ds_add_rtn_u32 v6, v7, v8 offset:4")
        e("  s_mov_b64 exec, -1")
        e("  s_waitcnt lgkmcnt(0)")
        e("  v_readfirstlane_b32 s75, v6")
        e("  s_cmp_lg_u32 s75, 7")
        e(f"  s_cbranch_scc1 K_HSKP{sfx}")
        e("  v_lshlrev_b32 v5, 3, v1")
        e("  s_mov_b64 exec, 0xff")
        for w in range(8):
            e(f"  ds_read_b64 v[{204+2*w}:{205+2*w}], v5 offset:{L_QP + w*192 + 128}")
        e("  v_lshrrev_b32 v6, 2, v1")
        e("  s_movk_i32 s75, 7168")
        e("  v_mul_lo_u32 v6, v6, s75")
        e("  v_and_b32 v9, 3, v1")
        e("  v_lshl_add_u32 v6, v9, 3, v6")
        e(f"  s_lshl_b32 s75, s{SHC}, 5")
        e(f"  s_add_u32 s75, s75, {WS_HG}")
        e("  s_waitcnt lgkmcnt(0)")
        e("  v_pk_add_f32 v[204:205], v[204:205], v[206:207]")
        e("  v_pk_add_f32 v[208:209], v[208:209], v[210:211]")
        e("  v_pk_add_f32 v[212:213], v[212:213], v[214:215]")
        e("  v_pk_add_f32 v[216:217], v[216:217], v[218:219]")
        e("  v_pk_add_f32 v[204:205], v[204:205], v[208:209]")
        e("  v_pk_add_f32 v[212:213], v[212:213], v[216:217]")
        e("  v_pk_add_f32 v[204:205], v[204:205], v[212:213]")
        e("  v_max_f32 v204, 0, v204")
        e("  v_max_f32 v205, 0, v205")
        e("  v_cvt_pk_bf16_f32 v204, v204, v205")
        e("  v_mov_b32 v205, s26")
        e(f"  buffer_store_dwordx2 v[204:205], v6, s[{SWS}:{SWS+3}], s75 offen sc1")
        e("  s_mov_b64 exec, -1")
        e(f"K_HSKP{sfx}:")
    def h_loads():
        if OPT["x2"]:
            e(f"  buffer_load_dwordx4 v[244:247], v248, s[{SWS}:{SWS+3}], 0 offen sc1")
            return
        e("  s_movk_i32 s75, 7168")
        e(f"  buffer_load_dwordx2 v[244:245], v248, s[{SWS}:{SWS+3}], 0 offen sc1")
        e(f"  buffer_load_dwordx2 v[246:247], v248, s[{SWS}:{SWS+3}], s75 offen sc1")

    def fd_issue():
        if OPT["x2"]:
            e("  v_lshlrev_b32 v248, 4, v12")
            e("  v_lshl_add_u32 v248, v13, 10, v248")
            e("  s_lshr_b32 s75, s2, 3")
            e("  s_lshl_b32 s75, s75, 13")
            e(f"  s_add_u32 s75, s75, {WS_H2}")
            e("  v_add_u32 v248, s75, v248")
            h_loads()
            return
        e("  v_lshrrev_b32 v5, 1, v12")
        e("  v_lshlrev_b32 v248, 3, v5")
        e("  s_lshr_b32 s75, s2, 3")
        e("  s_lshl_b32 s75, s75, 8")
        e(f"  s_add_u32 s75, s75, {WS_HG}")
        e("  v_add_u32 v248, s75, v248")
        h_loads()
    def fd_check(bad):
        e("  v_cmp_ne_u32 vcc, s26, v%d" % (246 if OPT["x2"] else 245))
        e("  v_cmp_ne_u32 s[78:79], s26, v247")
        e("  s_or_b64 vcc, vcc, s[78:79]")
        e("  s_cmp_lg_u64 vcc, 0")
        e(f"  s_cbranch_scc1 {bad}")
    def fd_compute(done):
        A = 204
        if OPT["x2"]:
            dpp_steps([244, 245], ["quad_perm:[1,0,3,2]", "quad_perm:[2,3,0,1]", "row_half_mirror"])
            e("  v_max_f32 v220, 0, v244")
            e("  v_max_f32 v221, 0, v245")
            round_bf16(220, 220)
            round_bf16(221, 221)
        else:
            e("  v_and_b32 v5, 1, v12")
            e("  v_cmp_eq_u32 vcc, 1, v5")
            e("  v_lshlrev_b32 v220, 16, v244")
            e("  v_and_b32 v5, 0xffff0000, v244")
            e("  v_lshlrev_b32 v221, 16, v246")
            e("  v_and_b32 v6, 0xffff0000, v246")
            e("  v_cndmask_b32 v220, v220, v5, vcc")
            e("  v_cndmask_b32 v221, v221, v6, vcc")
        for c in range(4):
            e(f"  v_lshlrev_b32 v222, 16, v{W2+c}")
            e(f"  v_and_b32 v223, 0xffff0000, v{W2+c}")
            e(f"  v_mul_f32 v{A+2*c}, v222, v220")
            e(f"  v_mul_f32 v{A+1+2*c}, v223, v220")
            e(f"  v_mul_f32 v{A+8+2*c}, v222, v221")
            e(f"  v_mul_f32 v{A+9+2*c}, v223, v221")
        dpp_steps(list(range(A, A+16)), ["row_ror:8"])
        swap_steps(list(range(A, A+16)), list(range(220, 236)))
        e("  s_lshl_b32 s75, s3, 9")
        e("  v_lshlrev_b32 v5, 5, v1")
        e("  v_add_u32 v5, s75, v5")
        e("  s_mov_b64 exec, 0xff")
        e(f"  ds_write_b128 v5, v[{A}:{A+3}] offset:{L_FP}")
        e(f"  ds_write_b128 v5, v[{A+4}:{A+7}] offset:{L_FP+16}")
        e(f"  ds_write_b128 v5, v[{A+8}:{A+11}] offset:{L_FP+256}")
        e(f"  ds_write_b128 v5, v[{A+12}:{A+15}] offset:{L_FP+272}")
        e("  s_mov_b64 exec, 1")
        e(f"  ds_add_rtn_u32 v6, v7, v8 offset:28")
        e("  s_mov_b64 exec, -1")
        e("  s_waitcnt lgkmcnt(0)")
        e("  v_readfirstlane_b32 s75, v6")
        e("  s_mov_b32 s95, 2")
        e("  s_cmp_lg_u32 s75, 7")
        e(f"  s_cbranch_scc1 {done}")
        e("  v_lshlrev_b32 v5, 3, v1")
        for w in range(8):
            e(f"  ds_read_b64 v[{204+2*w}:{205+2*w}], v5 offset:{L_FP + w*512}")
        e("  v_lshrrev_b32 v6, 5, v1")
        e("  v_lshlrev_b32 v6, 12, v6")
        e("  v_and_b32 v9, 31, v1")
        e("  v_lshl_add_u32 v6, v9, 4, v6")
        e("  s_lshr_b32 s75, s2, 3")
        e("  s_lshl_b32 s75, s75, 13")
        e("  s_and_b32 s76, s2, 7")
        e("  s_lshl_b32 s76, s76, 9")
        e("  s_add_u32 s75, s75, s76")
        e(f"  s_add_u32 s75, s75, {WS_GG}")
        e("  s_waitcnt lgkmcnt(0)")
        e("  v_pk_add_f32 v[204:205], v[204:205], v[206:207]")
        e("  v_pk_add_f32 v[208:209], v[208:209], v[210:211]")
        e("  v_pk_add_f32 v[212:213], v[212:213], v[214:215]")
        e("  v_pk_add_f32 v[216:217], v[216:217], v[218:219]")
        e("  v_pk_add_f32 v[204:205], v[204:205], v[208:209]")
        e("  v_pk_add_f32 v[212:213], v[212:213], v[216:217]")
        e("  v_pk_add_f32 v[204:205], v[204:205], v[212:213]")
        e("  v_mov_b32 v206, v205")
        e("  v_mov_b32 v205, s26")
        e("  v_mov_b32 v207, s26")
        e(f"  buffer_store_dwordx4 v[204:207], v6, s[{SWS}:{SWS+3}], s75 offen sc1")
        e("  s_mov_b32 s37, 1")
    def fd_phase():
        e("  s_cmp_eq_u32 s95, 2")
        e("  s_cbranch_scc1 K_FDS")
        e("  s_cmp_lg_u32 s27, 0")
        e("  s_cbranch_scc1 K_FDS")
        e(f"  s_cmp_lt_u32 s73, {OPT['fdt']}")
        e("  s_cbranch_scc1 K_FDS")
        e("  s_cmp_eq_u32 s95, 0")
        e("  s_cbranch_scc1 K_FDI")
        fd_check("K_FDI")
        fd_compute("K_FDS")
        e("  s_branch K_FDS")
        e("K_FDI:")
        fd_issue()
        e("  s_mov_b32 s95, 1")
        e("  s_mov_b32 s37, 1")
        e("K_FDS:")
    def fd_exit():
        e("  s_cmp_eq_u32 s95, 2")
        e("  s_cbranch_scc1 K_FDES")
        e(f"  s_mov_b32 s74, {OPT['bnd']:#x}")
        e("K_FDEL:")
        fd_issue()
        e("  s_waitcnt vmcnt(0)")
        fd_check("K_FDEB")
        e("  s_branch K_FDEC")
        e("K_FDEB:")
        e("  s_sub_u32 s74, s74, 1")
        e("  s_cmp_lg_u32 s74, 0")
        e("  s_cbranch_scc1 K_FDEL")
        e("K_FDEC:")
        fd_compute("K_FDES")
        e("K_FDES:")

    def g_addr():
        e("  v_lshlrev_b32 v248, 4, v12")
        e("  v_lshl_add_u32 v248, v13, 10, v248")
        e("  s_lshr_b32 s75, s2, 3")
        e("  s_lshl_b32 s75, s75, 13")
        e(f"  s_add_u32 s75, s75, {WS_H2}")
        e("  v_add_u32 v248, s75, v248")
    def g_load():
        e(f"  buffer_load_dwordx4 v[244:247], v248, s[{SWS}:{SWS+3}], 0 offen sc1")
    def g_check(fail):
        e("  v_cmp_ne_u32 vcc, s26, v246")
        e("  v_cmp_ne_u32 s[78:79], s26, v247")
        e("  s_or_b64 vcc, vcc, s[78:79]")
        e("  s_cmp_eq_u64 vcc, 0")
        e(f"  s_cbranch_scc0 {fail}")
    def g_compute(done):
        dpp_steps([244, 245], ["quad_perm:[1,0,3,2]", "quad_perm:[2,3,0,1]", "row_half_mirror"])
        e("  v_max_f32 v98, 0, v244")
        e("  v_max_f32 v99, 0, v245")
        round_bf16(98, 98)
        round_bf16(99, 99)
        for r in range(100, 116):
            e(f"  v_mov_b32 v{r}, 0")
        for c in range(4):
            e(f"  v_lshlrev_b32 v96, 16, v{W2+c}")
            e(f"  v_and_b32 v97, 0xffff0000, v{W2+c}")
            e(f"  v_fmac_f32 v{100+2*c}, v96, v98")
            e(f"  v_fmac_f32 v{101+2*c}, v97, v98")
            e(f"  v_fmac_f32 v{108+2*c}, v96, v99")
            e(f"  v_fmac_f32 v{109+2*c}, v97, v99")
        dpp_steps(list(range(100, 116)), ["row_ror:8"])
        e("  v_lshlrev_b32 v5, 2, v2")
        e("  v_add_u32 v5, v5, v4")
        e("  v_lshlrev_b32 v5, 9, v5")
        e("  v_and_b32 v6, 7, v1")
        e("  v_lshl_add_u32 v5, v6, 5, v5")
        e("  v_and_b32 v6, 8, v1")
        e("  v_cmp_eq_u32 vcc, 0, v6")
        e("  s_and_saveexec_b64 s[78:79], vcc")
        e(f"  ds_write_b128 v5, v[100:103] offset:{L_FP}")
        e(f"  ds_write_b128 v5, v[104:107] offset:{L_FP+16}")
        e(f"  ds_write_b128 v5, v[108:111] offset:{L_FP+256}")
        e(f"  ds_write_b128 v5, v[112:115] offset:{L_FP+256+16}")
        e(f"  v_mov_b32 v10, {L_CNT}")
        e("  v_mov_b32 v11, 1")
        e("  s_mov_b64 exec, 1")
        e("  s_waitcnt lgkmcnt(0)")
        e("  ds_add_rtn_u32 v6, v10, v11 offset:28")
        e("  s_mov_b64 exec, -1")
        e("  s_waitcnt lgkmcnt(0)")
        e("  v_readfirstlane_b32 s75, v6")
        e("  s_mov_b32 s39, 2")
        e("  s_cmp_lg_u32 s75, 7")
        e(f"  s_cbranch_scc1 {done}")
        e("  s_lshr_b32 s75, s2, 3")
        e("  s_lshl_b32 s75, s75, 13")
        e(f"  s_add_u32 s75, s75, {WS_GG}")
        e(f"  s_lshl_b32 s76, s{SNC}, 9")
        e("  s_add_u32 s75, s75, s76")
        for b in range(2):
            e("  v_lshlrev_b32 v5, 2, v1")
            for q in range(32):
                e(f"  ds_read_b32 v{204+q}, v5 offset:{L_FP + b*256 + q*512}")
            e("  s_waitcnt lgkmcnt(0)")
            for q in range(1, 31, 2):
                e(f"  v_add_f32 v{204+q}, v{204+q}, v{205+q}")
            e("  v_add_f32 v204, v204, v235")
            for q in range(1, 31, 2):
                e(f"  v_add_f32 v204, v204, v{204+q}")
            e("  v_lshlrev_b32 v5, 3, v1")
            e("  v_mov_b32 v205, s26")
            e(f"  buffer_store_dwordx2 v[204:205], v5, s[{SWS}:{SWS+3}], s75 offen offset:0 sc1")
            if b == 0:
                e("  s_add_u32 s75, s75, 4096")
                e("  s_nop 1")
    def g_loop():
        e("  s_cmp_eq_u32 s39, 2")
        e("  s_cbranch_scc1 K_GFS")
        e("  s_cmp_lg_u32 s27, 0")
        e("  s_cbranch_scc1 K_GFS")
        e(f"  s_cmp_lt_u32 s73, {OPT['gf']}")
        e("  s_cbranch_scc1 K_GFS")
        e("  s_cmp_eq_u32 s39, 0")
        e("  s_cbranch_scc1 K_GFI")
        g_check("K_GFI")
        g_compute("K_GFS")
        e("  s_branch K_GFS")
        e("K_GFI:")
        g_addr()
        g_load()
        e("  s_mov_b32 s39, 1")
        e("K_GFS:")

    def c_qk(KR, vk):
        if vk is not None:
            e(f"  s_waitcnt vmcnt({vk})")
        tl()
        for t in range(2):
            for i in range(4):
                c = "0" if i == 0 else f"v[{ST+4*t}:{ST+4*t+3}]"
                e(f"  v_mfma_f32_16x16x32_bf16 v[{ST+4*t}:{ST+4*t+3}], v[{KR+16*t+4*i}:{KR+16*t+4*i+3}], v[{QF+4*i}:{QF+4*i+3}], {c}")
    def c_sm(nop=True):
        if nop:
            e("  s_nop 7")
            e("  s_nop 0")
        e(f"  v_max3_f32 v{T0}, v{ST}, v{ST+1}, v{ST+2}")
        e(f"  v_max3_f32 v{T1}, v{ST+3}, v{ST+4}, v{ST+5}")
        e(f"  v_max3_f32 v{T0}, v{T0}, v{ST+6}, v{ST+7}")
        e(f"  v_max_f32 v{T0}, v{T0}, v{T1}")
        e(f"  v_mov_b32 v{T1}, v{T0}")
        e("  s_nop 1")
        e(f"  v_permlane16_swap_b32 v{T0}, v{T1}")
        e("  s_nop 1")
        e(f"  v_max_f32 v{T0}, v{T0}, v{T1}")
        e(f"  v_mov_b32 v{T1}, v{T0}")
        e("  s_nop 1")
        e(f"  v_permlane32_swap_b32 v{T0}, v{T1}")
        e("  s_nop 1")
        e(f"  v_max3_f32 v{T0}, v{T0}, v{T1}, v{M_}")
        e(f"  v_sub_f32 v{AL}, v{M_}, v{T0}")
        e(f"  v_mul_f32 v{AL}, s{SC}, v{AL}")
        e(f"  v_exp_f32 v{AL}, v{AL}")
        e(f"  v_mov_b32 v{M_}, v{T0}")
        e(f"  v_mul_f32 v{MC}, s{SC}, v{T0}")
        for k in range(8):
            e(f"  v_fma_f32 v{ST+k}, v{ST+k}, s{SC}, -v{MC}")
        for k in range(8):
            e(f"  v_exp_f32 v{ST+k}, v{ST+k}")
        e("  s_nop 0")
        e(f"  v_mul_f32 v{L_}, v{L_}, v{AL}")
        for k in range(8):
            e(f"  v_add_f32 v{L_}, v{L_}, v{ST+k}")
        for q in range(4):
            e(f"  v_cvt_pk_bf16_f32 v{PF+q}, v{ST+2*q}, v{ST+2*q+1}")
        for r in range(32):
            e(f"  v_mul_f32 v{ACC+r}, v{ACC+r}, v{AL}")
    def c_pv(VR, vv):
        if vv is not None:
            e(f"  s_waitcnt vmcnt({vv})")
        tl()
        for t in range(8):
            c = t >> 1
            sel = f"s{SP1}" if (t & 1) else f"s{SP0}"
            for q in range(4):
                e(f"  v_perm_b32 v{TR+4*t+q}, v{VR+4*(2*q+1)+c}, v{VR+4*(2*q)+c}, {sel}")
        e("  s_nop 1")
        for t in range(8):
            e(f"  v_mfma_f32_16x16x32_bf16 v[{ACC+4*t}:{ACC+4*t+3}], v[{TR+4*t}:{TR+4*t+3}], v[{PF}:{PF+3}], v[{ACC+4*t}:{ACC+4*t+3}]")

    def compute(KR, VR, vk, vv):
        c_qk(KR, vk)
        c_sm()
        c_pv(VR, vv)

    def fetch():
        e("  s_mov_b64 exec, 1")
        e("  ds_add_rtn_u32 v9, v7, v8")
        e("  s_mov_b64 exec, -1")
    def getidx(sidx):
        e("  s_waitcnt lgkmcnt(0)")
        e(f"  v_readfirstlane_b32 s{sidx}, v9")

    if OPT["nw"] < 8:
        e(f"  s_cmp_ge_u32 s3, {OPT['nw']}")
        e("  s_cbranch_scc1 K_EXIT")
    def gen_loop(sfx, last):
        if OPT["nbuf"] == 3:
            fetch()
            compute(KA, VA, 24, 16)
            getidx(IDXA)
            loads(KA, VA, IDXA)
            compute(KB, VB, 24, 16)
            e(f"  s_cmp_ge_u32 s{IDXA}, 64")
            e("  s_cbranch_scc1 K_EXIT")
        e(f"K_LOOP{sfx}:")
        if OPT["nbuf"] == 2:
            fetch()
            compute(KA, VA, 24, 16)
            getidx(IDXA)
            loads(KA, VA, IDXA)
            e(f"  s_cmp_ge_u32 s{IDXB}, 64")
            e("  s_cbranch_scc1 K_EXIT")
            fetch()
            compute(KB, VB, 24, 16)
            getidx(IDXB)
            loads(KB, VB, IDXB)
            e(f"  s_cmp_lt_u32 s{IDXA}, 64")
            e(f"  s_cbranch_scc1 K_LOOP{sfx}")
        else:
            NS = OPT["ns"]
            fetch()
            getidx(73)
            if OPT["dup"] > 1:
                e(f"  s_cmp_lt_u32 s73, {OPT['dup']}")
                e(f"  s_cselect_b32 s75, 0, 4096")
                e(f"  s_and_b32 s73, s73, 63")
                e(f"  s_add_u32 s73, s73, s75")
            e(f"  s_cmp_lt_u32 s73, {NS}")
            e(f"  s_cbranch_scc1 K_STA{sfx}")
            e("  v_mov_b32 v9, 1")
            e("  v_mov_b32 v10, 0")
            e("  s_mov_b64 exec, 1")
            e(f"  buffer_atomic_add v9, v10, s[{SWS}:{SWS+3}], s93 offen sc0 sc1")
            e("  s_mov_b64 exec, -1")
            e(f"K_STA{sfx}:")
            compute(KA, VA, 8, 0)
            e(f"  s_cmp_ge_u32 s73, {NS}")
            e(f"  s_cbranch_scc1 K_DY2{sfx}")
            e(f"  s_add_u32 s{IDXA}, s73, s94")
            e(f"  s_branch K_ST2{sfx}")
            e(f"K_DY2{sfx}:")
            e(f"  v_readfirstlane_b32 s{IDXA}, v9")
            e(f"  s_cmp_lt_u32 s{IDXA}, {(1024-16*NS)//OPT['nsub']}")
            e(f"  s_cselect_b32 s{IDXA}, s{IDXA}, 2048")
            e(f"  s_add_u32 s{IDXA}, s{IDXA}, s92")
            e(f"K_ST2{sfx}:")
            if OPT["fifo"]:
                e(f"  s_cmp_ge_u32 s{IDXA}, 1024")
                e(f"  s_cbranch_scc1 K_FD{sfx}")
                e(f"  s_sub_u32 s73, s73, {OPT['fw']}")
                e(f"  s_mov_b32 s74, {OPT['bnd']:#x}")
                e(f"K_FW{sfx}:")
                e("  ds_read_b32 v9, v7 offset:8")
                e("  s_waitcnt lgkmcnt(0)")
                e("  v_readfirstlane_b32 s75, v9")
                e("  s_cmp_ge_u32 s75, s73")
                e(f"  s_cbranch_scc1 K_FD{sfx}")
                if OPT["fsl"]: e(f"  s_sleep {OPT['fsl']}")
                e("  s_sub_u32 s74, s74, 1")
                e("  s_cmp_lg_u32 s74, 0")
                e(f"  s_cbranch_scc1 K_FW{sfx}")
                e(f"K_FD{sfx}:")
            x_loads("L"+sfx)
            loads(KA, VA, IDXA)
            if OPT["fifo"]:
                e("  s_mov_b64 exec, 1")
                e("  ds_add_u32 v7, v8 offset:8")
                e("  s_mov_b64 exec, -1")
            h_phase("L"+sfx)
            e(f"  s_cmp_lt_u32 s{IDXA}, 1024")
            e(f"  s_cbranch_scc1 K_LOOP{sfx}")
        if not last:
            e("  s_branch K_EXIT")
    def fifo_wait(lbl, off):
        e(f"  s_mov_b32 s74, {OPT['bnd']:#x}")
        e(f"{lbl}:")
        e(f"  ds_read_b32 v9, v7 offset:{off}")
        e("  s_waitcnt lgkmcnt(0)")
        e("  v_readfirstlane_b32 s75, v9")
        e("  s_cmp_ge_u32 s75, s73")
        e(f"  s_cbranch_scc1 {lbl}D")
        if OPT["fsl"]: e(f"  s_sleep {OPT['fsl']}")
        e("  s_sub_u32 s74, s74, 1")
        e("  s_cmp_lg_u32 s74, 0")
        e(f"  s_cbranch_scc1 {lbl}")
        e(f"{lbl}D:")
    def fifo_add(off):
        e("  s_mov_b64 exec, 1")
        e(f"  ds_add_u32 v7, v8 offset:{off}")
        e("  s_mov_b64 exec, -1")
    def gate(sfx):
        e("  s_cmp_eq_u32 s36, 0")
        e(f"  s_cbranch_scc1 K_GD{sfx}")
        e(f"K_G{sfx}:")
        e("  s_memrealtime s[98:99]")
        e("  s_waitcnt lgkmcnt(0)")
        e("  s_sub_u32 s75, s98, s39")
        e("  s_cmp_ge_u32 s75, s36")
        e(f"  s_cbranch_scc1 K_GD{sfx}")
        e("  s_sleep 1")
        e(f"  s_branch K_G{sfx}")
        e(f"K_GD{sfx}:")
    def gen_loop_sp():
        if OPT["th"] or OPT["fd"]:
            e("  s_mov_b32 s37, 0")
        e("K_LOOP:")
        if OPT["th"]:
            e("  s_mov_b64 exec, 1")
            e("  ds_add_rtn_u32 v9, v7, v8")
            e("  ds_read_b64 v[10:11], v7 offset:40")
            e("  s_mov_b64 exec, -1")
            e("  s_waitcnt lgkmcnt(0)")
            e("  v_readfirstlane_b32 s73, v9")
            e("  v_readfirstlane_b32 s39, v10")
            e("  v_readfirstlane_b32 s36, v11")
        else:
            if OPT["gp"]:
                e("  s_cmp_lg_u32 s37, 0")
                e("  s_cbranch_scc1 K_PL")
            if OPT["nw2"]:
                e(f"  s_cmp_lt_u32 s3, {OPT['nw2']}")
                e("  s_cbranch_scc1 K_N2A")
                e("  ds_read_b32 v9, v7")
                e("  s_waitcnt lgkmcnt(0)")
                e("  v_readfirstlane_b32 s73, v9")
                e(f"  s_cmp_lt_u32 s73, {OPT['n2t']}")
                e("  s_cbranch_scc1 K_N2A")
                e("  s_mov_b32 s73, 64")
                e("  s_branch K_N2B")
                e("K_N2A:")
            fetch()
            getidx(73)
            if OPT["gp"]:
                NS = OPT["gp"]; P = (64 - NS) * 16
                e(f"  s_cmp_lt_u32 s73, {NS}")
                e("  s_cbranch_scc1 K_N2B")
                e("  s_mov_b32 s73, 64")
                if OPT["nw2"]:
                    e(f"  s_cmp_ge_u32 s3, {OPT['nw2']}")
                    e("  s_cbranch_scc1 K_N2B")
                e("  s_mov_b32 s37, 1")
                e("  v_mov_b32 v249, 1")
                e("  s_mov_b64 exec, 1")
                e("  buffer_atomic_add v249, v250, s[20:23], 0 offen sc0 sc1")
                e("  s_mov_b64 exec, -1")
                e("  s_waitcnt vmcnt(0)")
                e("  s_branch K_PL2")
                e("K_PL:")
                e("  s_waitcnt vmcnt(8)")
                e("K_PL2:")
                e("  v_readfirstlane_b32 s36, v249")
                e(f"  s_cmp_lt_u32 s36, {P}")
                e("  s_cselect_b32 s73, 63, 64")
                if not OPT["nw2"]:
                    e("K_N2B:")
            if OPT["nw2"]:
                e("K_N2B:")
        if OPT["xw"]:
            e("  s_mov_b32 s38, 0")
            e("  s_cmp_lg_u32 s27, 5")
            e("  s_cbranch_scc1 K_WA")
            e("  s_mov_b32 s27, 0")
            e("  s_mov_b32 s38, 1")
            e("K_WA:")
            if OPT["fd"]:
                e("  s_or_b32 s38, s38, s37")
                e("  s_mov_b32 s37, 0")
            if OPT["th"]:
                e("  s_cmp_eq_u32 s37, 0")
                e("  s_cbranch_scc1 K_WB")
                e("  s_mov_b32 s38, 1")
                e("  s_cmp_eq_u32 s37, 2")
                e("  s_cselect_b32 s37, 3, 0")
                e("K_WB:")
            e("  s_cmp_eq_u32 s27, 1")
            e("  s_cbranch_scc1 K_WX")
            e("  s_cmp_eq_u32 s38, 0")
            e("  s_cbranch_scc1 K_W0")
            e("  s_waitcnt vmcnt(9)")
            e("  s_branch K_W1")
            e("K_WX:")
            e("  s_cmp_ge_u32 s2, 224")
            e("  s_cbranch_scc1 K_W3")
            e(f"  s_waitcnt vmcnt({12+2*OPT['jd']})")
            e("  s_branch K_W1")
            e("K_W3:")
            e(f"  s_waitcnt vmcnt({11+2*OPT['jd']})")
            e("  s_branch K_W1")
            e("K_W0:")
            e("  s_waitcnt vmcnt(8)")
            e("K_W1:")
            c_qk(KA, None)
        else:
            c_qk(KA, 8)
        tl(7)
        e("  s_cmp_ge_u32 s73, 64")
        e("  s_cbranch_scc1 K_NK")
        if OPT["gp"]:
            NS = OPT["gp"]
            assert OPT["rg"] == 6 and OPT["bs4"] == 2 and OPT["rm"] == 1
            e("  s_cmp_eq_u32 s37, 0")
            e("  s_cbranch_scc1 K_PMS")
            e("  s_lshr_b32 s75, s36, 4")
            e(f"  s_add_u32 s75, s75, {NS}")
            e("  s_bfe_u32 s76, s36, 0x20002")
            e("  s_and_b32 s77, s2, 60")
            e("  s_add_u32 s77, s77, s76")
            e(f"  s_mul_i32 s77, s77, {OPT['rr']}")
            e("  s_lshr_b32 s78, s75, 2")
            e("  s_add_u32 s78, s78, s77")
            e("  s_and_b32 s78, s78, 15")
            e("  s_lshl_b32 s78, s78, 4")
            e("  s_and_b32 s75, s75, 3")
            e("  s_add_u32 s78, s78, s75")
            e("  s_lshl_b32 s76, s76, 8")
            e("  s_add_u32 s78, s78, s76")
            e("  s_and_b32 s75, s36, 3")
            e("  s_lshl_b32 s75, s75, 2")
            e(f"  s_add_u32 s{IDXA}, s78, s75")
            e("  s_branch K_PMD")
            e("K_PMS:")
        mapidx(73)
        if OPT["gp"]:
            e("K_PMD:")
        blkoff(IDXA)
        e(f"  v_add_u32 v5, s75, v{VKOFF}")
        e(f"  v_add_u32 v6, s75, v{VVOFF}")
        if OPT["gp"]:
            e("  s_cmp_lg_u32 s37, 0")
            e("  s_cbranch_scc1 K_FKD")
        fifo_wait("K_FK", 8)
        if OPT["th"] == 1:
            e("  s_cmp_eq_u32 s36, 0")
            e("  s_cbranch_scc1 K_TNA")
            e(f"  s_cmp_ge_u32 s73, {OPT['te']}")
            e("  s_cbranch_scc1 K_TNA")
            e(f"  s_and_b32 s75, s73, {OPT['tm']}")
            e("  s_cmp_lg_u32 s75, 0")
            e("  s_cbranch_scc1 K_TNA")
            e("K_TSL:")
            e("  s_sleep 1")
            e("  s_sub_u32 s36, s36, 1")
            e("  s_cmp_lg_u32 s36, 0")
            e("  s_cbranch_scc1 K_TSL")
            e("K_TNA:")
        if OPT["th"] == 2:
            gate("K")
        tl(7)
        kchunk(KA, 5)
        tl(5)
        tl(7)
        fifo_add(8)
        e("K_NK:")
        c_sm(nop=True)
        e("  s_cmp_lt_u32 s73, 64")
        e("  s_cbranch_scc1 K_W8")
        e("  s_waitcnt vmcnt(0)")
        e("K_W8:")
        if OPT["prof"] == 7:
            e("  s_waitcnt vmcnt(8)")
            tl(7)
        c_pv(VA, 8)
        if OPT["th"]:
            e(f"  s_cmp_lg_u32 s37, 3")
            e("  s_cbranch_scc1 K_TNC")
            e("  s_mov_b32 s37, 0")
            e("  ds_read_b32 v10, v7 offset:36")
            e("  s_waitcnt lgkmcnt(0)")
            for r in range(244, 248):
                e(f"  v_sub_u32 v11, v{r}, v10")
                e(f"  v_and_b32 v9, 0xff, v11")
                e(f"  v_ashrrev_i32 v{r}, 8, v11")
                e(f"  v_cmp_eq_u32 vcc, 0, v9")
                e(f"  v_cndmask_b32 v{r}, 0, v{r}, vcc")
                e(f"  v_cmp_gt_i32 vcc, {OPT['tlim']}, v{r}")
                e(f"  v_cndmask_b32 v{r}, 0, v{r}, vcc")
            e("  v_max_i32 v244, v244, v245")
            e("  v_max_i32 v246, v246, v247")
            e("  v_max_i32 v244, v244, v246")
            red_steps([244], [245], "v_max_i32", ctrls=("quad_perm:[1,0,3,2]", "quad_perm:[2,3,0,1]", "row_half_mirror", "row_mirror"))
            e("  v_max_i32 v244, 0, v244")
            e(f"  v_mul_u32_u24 v244, {OPT['tg']}, v244")
            e("  v_lshrrev_b32 v244, 8, v244")
            e("  s_mov_b64 exec, 1")
            e("  ds_write_b32 v7, v244 offset:44")
            if OPT["th"] == 2:
                e("  s_memrealtime s[98:99]")
                e("  s_mul_i32 s75, s2, 5")
                e("  s_and_b32 s75, s75, 7")
                e(f"  s_mul_i32 s75, s75, {OPT['ts']}")
                e("  s_waitcnt lgkmcnt(0)")
                e("  s_add_u32 s75, s75, s98")
                e("  v_mov_b32 v9, s75")
                e("  ds_write_b32 v7, v9 offset:40")
            e("  s_mov_b64 exec, -1")
            if OPT["prof"] == 6:
                e("  v_readfirstlane_b32 s75, v244")
                e("  s_add_u32 s75, s75, 1")
                e("  v_writelane_b32 v251, s75, 10")
                e("  v_readfirstlane_b32 s75, v10")
                e("  v_writelane_b32 v251, s75, 11")
                e("  v_writelane_b32 v251, s73, 12")
                e("  s_memrealtime s[98:99]")
                e("  s_waitcnt lgkmcnt(0)")
                e("  v_writelane_b32 v251, s98, 13")
            e("K_TNC:")
        e("  s_cmp_ge_u32 s73, 64")
        e("  s_cbranch_scc1 K_NV")
        tl(7)
        if OPT["gp"]:
            e("  s_cmp_eq_u32 s37, 0")
            e("  s_cbranch_scc1 K_PCS")
            e("  v_mov_b32 v249, 1")
            e("  s_mov_b64 exec, 1")
            e("  buffer_atomic_add v249, v250, s[20:23], 0 offen sc0 sc1")
            e("  s_mov_b64 exec, -1")
            e("  s_branch K_FVD")
            e("K_PCS:")
        fifo_wait("K_FV", 12)
        if OPT["th"] == 2:
            gate("V")
        tl(7)
        vchunk(VA, 6)
        tl(5)
        tl(7)
        fifo_add(12)
        if OPT["th"]:
            e(f"  s_cmp_lg_u32 s73, {OPT['tp']}")
            e("  s_cbranch_scc1 K_TNP")
            e("  s_memrealtime s[98:99]")
            e("  s_waitcnt lgkmcnt(0)")
            e("  s_lshl_b32 s75, s98, 8")
            e("  s_and_b32 s76, s26, 0xff")
            e("  s_or_b32 s75, s75, s76")
            e("  v_mov_b32 v10, s75")
            e("  v_mov_b32 v11, 0")
            e("  s_lshl_b32 s76, s2, 2")
            e(f"  s_add_u32 s76, s76, {WS_PR}")
            e("  s_mov_b64 exec, 1")
            e(f"  buffer_store_dword v10, v11, s[{SWS}:{SWS+3}], s76 offen sc1")
            e("  ds_write_b32 v7, v10 offset:36")
            e("  s_mov_b64 exec, -1")
            e("  s_mov_b32 s37, 1")
            e("K_TNP:")
            e(f"  s_cmp_lg_u32 s73, {OPT['tr']}")
            e("  s_cbranch_scc1 K_TNR")
            e("  v_lshlrev_b32 v10, 4, v1")
            e(f"  s_mov_b32 s76, {WS_PR}")
            e(f"  buffer_load_dwordx4 v[244:247], v10, s[{SWS}:{SWS+3}], s76 offen sc1")
            e("  s_mov_b32 s37, 2")
            e("K_TNR:")
        e("K_NV:")
        if not OPT["pf"]:
            x_loads("L")
            h_phase("L")
        if OPT["pf"] == 2:
            wo_once("L")
        if OPT["fd"]:
            fd_phase()
        if OPT["gf"]:
            g_loop()
        tl(7)
        e("  s_cmp_lt_u32 s73, 64")
        e("  s_cbranch_scc1 K_LOOP")
    def gen_loop_dy():
        NSW = OPT["ns"] // 8
        POOL = (1024 - 16*OPT["ns"]) // OPT["nsub"]
        e(f"  s_add_u32 s{IDXA}, s3, s94")
        e(f"  s_mov_b32 s36, {NSW-1}")
        e("  v_mov_b32 v249, 0")
        e("K_LOOP:")
        fetch()
        getidx(73)
        c_qk(KA, 8)
        e("  s_cmp_eq_u32 s36, 0")
        e("  s_cbranch_scc1 K_DYN")
        e(f"  s_add_u32 s{IDXA}, s{IDXA}, 8")
        e("  s_sub_u32 s36, s36, 1")
        e("  s_branch K_HAVE")
        e("K_DYN:")
        e(f"  v_readfirstlane_b32 s{IDXA}, v250")
        e(f"  s_cmp_lt_u32 s{IDXA}, {POOL}")
        e(f"  s_cselect_b32 s{IDXA}, s{IDXA}, 2048")
        e(f"  s_add_u32 s{IDXA}, s{IDXA}, s92")
        e(f"  s_cmp_lt_u32 s{IDXA}, 1024")
        e("  s_cbranch_scc1 K_HAVE")
        fifo_add(8)
        fifo_add(12)
        e("  s_branch K_NK")
        e("K_HAVE:")
        blkoff(IDXA)
        e(f"  v_add_u32 v5, s75, v{VKOFF}")
        e(f"  v_add_u32 v6, s75, v{VVOFF}")
        e("  v_mov_b32 v250, 1")
        fifo_wait("K_FK", 8)
        kchunk(KA, 5)
        e("  s_cmp_lg_u32 s36, 0")
        e("  s_cbranch_scc1 K_NAT")
        e("  s_mov_b64 exec, 1")
        e(f"  buffer_atomic_add v250, v249, s[{SWS}:{SWS+3}], s93 offen sc0 sc1")
        e("  s_mov_b64 exec, -1")
        e("K_NAT:")
        tl(5)
        fifo_add(8)
        e("K_NK:")
        c_sm(nop=True)
        e(f"  s_cmp_lt_u32 s{IDXA}, 1024")
        e("  s_cbranch_scc1 K_W8")
        e("  s_waitcnt vmcnt(0)")
        e("K_W8:")
        e("  s_cmp_lg_u32 s36, 0")
        e("  s_cbranch_scc1 K_W8S")
        e("  s_waitcnt vmcnt(9)")
        e("  s_branch K_W9")
        e("K_W8S:")
        e("  s_waitcnt vmcnt(8)")
        e("K_W9:")
        c_pv(VA, None)
        e(f"  s_cmp_ge_u32 s{IDXA}, 1024")
        e("  s_cbranch_scc1 K_NV")
        fifo_wait("K_FV", 12)
        vchunk(VA, 6)
        tl(5)
        fifo_add(12)
        e("K_NV:")
        if not OPT["pf"]:
            x_loads("L")
            h_phase("L")
        if OPT["pf"] == 2:
            wo_once("L")
        e(f"  s_cmp_lt_u32 s{IDXA}, 1024")
        e("  s_cbranch_scc1 K_LOOP")
    def gen_loop_dq():
        NS, D, CAP = OPT["ns"], OPT["dd"], OPT["cap"]
        POOL = 1024 - 16*NS
        INV = 4097
        def fetch2():
            e("  s_mov_b64 exec, 1")
            e("  ds_add_rtn_u32 v9, v7, v8")
            e("  ds_read_b32 v10, v7 offset:40")
            e("  s_mov_b64 exec, -1")
        def getidx2():
            e("  s_waitcnt lgkmcnt(0)")
            e("  v_readfirstlane_b32 s73, v9")
            e("  v_readfirstlane_b32 s38, v10")
        def publish(sfx):
            e("  s_cmp_eq_u32 s36, 0")
            e(f"  s_cbranch_scc1 K_NP{sfx}")
            e("  s_mov_b32 s36, 0")
            e("  v_readfirstlane_b32 s75, v250")
            e("  s_add_u32 s76, s75, s92")
            e("  s_add_u32 s76, s76, 1")
            e(f"  s_cmp_lt_u32 s75, {POOL}")
            e(f"  s_cselect_b32 s76, s76, {INV}")
            e("  s_cselect_b32 s77, 0, 1")
            e("  v_mov_b32 v10, s76")
            e("  v_add_u32 v11, 1, v10")
            e("  v_mov_b32 v9, s37")
            e("  v_mov_b32 v5, s77")
            e("  s_mov_b64 exec, 1")
            e(f"  ds_write_b64 v9, v[10:11] offset:{L_DQ}")
            e("  ds_or_b32 v7, v5 offset:40")
            e("  s_mov_b64 exec, -1")
            e(f"K_NP{sfx}:")
        def resolve(sfx):
            e(f"  s_add_u32 s{IDXA}, s73, s94")
            e(f"  s_cmp_lt_u32 s73, {NS}")
            e(f"  s_cbranch_scc1 K_RS{sfx}")
            e(f"  s_mov_b32 s{IDXA}, 4096")
            e(f"  s_cmp_ge_u32 s73, {NS+CAP}")
            e(f"  s_cbranch_scc1 K_RS{sfx}")
            e(f"  s_sub_u32 s75, s73, {NS}")
            e("  s_lshl_b32 s75, s75, 2")
            e("  v_mov_b32 v10, s75")
            e(f"  s_mov_b32 s74, {OPT['bnd']:#x}")
            e(f"K_RW{sfx}:")
            e(f"  ds_read_b32 v9, v10 offset:{L_DQ}")
            e("  s_waitcnt lgkmcnt(0)")
            e(f"  v_readfirstlane_b32 s{IDXA}, v9")
            e(f"  s_cmp_lg_u32 s{IDXA}, 0")
            e(f"  s_cbranch_scc1 K_RV{sfx}")
            e("  s_sub_u32 s74, s74, 1")
            e("  s_cmp_lg_u32 s74, 0")
            e(f"  s_cbranch_scc1 K_RW{sfx}")
            e(f"  s_mov_b32 s{IDXA}, {INV}")
            e(f"K_RV{sfx}:")
            e(f"  s_sub_u32 s{IDXA}, s{IDXA}, 1")
            e(f"K_RS{sfx}:")
        def claim(sfx):
            e(f"  s_sub_u32 s75, s73, {NS-D}")
            e(f"  s_cmp_ge_u32 s75, {CAP}")
            e(f"  s_cbranch_scc1 K_NC{sfx}")
            e("  s_bitcmp1_b32 s75, 0")
            e(f"  s_cbranch_scc1 K_NC{sfx}")
            e("  s_lshl_b32 s37, s75, 2")
            e("  s_cmp_eq_u32 s38, 0")
            e(f"  s_cbranch_scc1 K_CA{sfx}")
            e(f"  v_mov_b32 v10, {INV}")
            e(f"  v_mov_b32 v11, {INV}")
            e("  v_mov_b32 v9, s37")
            e("  s_mov_b64 exec, 1")
            e(f"  ds_write_b64 v9, v[10:11] offset:{L_DQ}")
            e("  s_mov_b64 exec, -1")
            e(f"  s_branch K_NC{sfx}")
            e(f"K_CA{sfx}:")
            e("  s_mov_b32 s36, 1")
            e("  v_mov_b32 v250, 2")
            e("  s_mov_b64 exec, 1")
            e(f"  buffer_atomic_add v250, v249, s[{SWS}:{SWS+3}], s93 offen sc0 sc1")
            e("  s_mov_b64 exec, -1")
            e(f"K_NC{sfx}:")
        e("  s_mov_b32 s36, 0")
        e("  v_mov_b32 v249, 0")
        e("K_LOOP:")
        e("  s_waitcnt vmcnt(8)")
        publish("A")
        fetch2()
        c_qk(KA, None)
        getidx2()
        resolve("A")
        e(f"  s_cmp_lt_u32 s{IDXA}, 1024")
        e("  s_cbranch_scc1 K_HAVE")
        fifo_add(8)
        e("  s_branch K_NK")
        e("K_HAVE:")
        blkoff(IDXA)
        e(f"  v_add_u32 v5, s75, v{VKOFF}")
        e(f"  v_add_u32 v6, s75, v{VVOFF}")
        fifo_wait("K_FK", 8)
        kchunk(KA, 5)
        tl(5)
        fifo_add(8)
        e("K_NK:")
        c_sm(nop=True)
        e(f"  s_cmp_lt_u32 s{IDXA}, 1024")
        e("  s_cbranch_scc1 K_W8")
        e("  s_waitcnt vmcnt(0)")
        e("K_W8:")
        c_pv(VA, 8)
        e(f"  s_cmp_ge_u32 s{IDXA}, 1024")
        e("  s_cbranch_scc1 K_DRI")
        fifo_wait("K_FV", 12)
        claim("A")
        vchunk(VA, 6)
        tl(5)
        fifo_add(12)
        x_loads("L")
        h_phase("L")
        e("  s_branch K_LOOP")
        e("K_DRI:")
        claim("B")
        fifo_add(12)
        e("K_DR:")
        e("  s_waitcnt vmcnt(0)")
        publish("B")
        e(f"  s_cmp_ge_u32 s73, {NS+CAP}")
        e("  s_cbranch_scc1 K_EXIT")
        fetch2()
        getidx2()
        resolve("B")
        e(f"  s_cmp_lt_u32 s{IDXA}, 1024")
        e("  s_cbranch_scc1 K_HV2")
        fifo_add(8)
        e("  s_branch K_DRI")
        e("K_HV2:")
        blkoff(IDXA)
        e(f"  v_add_u32 v5, s75, v{VKOFF}")
        e(f"  v_add_u32 v6, s75, v{VVOFF}")
        fifo_wait("K_FK2", 8)
        kchunk(KA, 5)
        fifo_add(8)
        fifo_wait("K_FV2", 12)
        claim("C")
        vchunk(VA, 6)
        fifo_add(12)
        e("  s_branch K_LOOP")
    if OPT["dq"]:
        gen_loop_dq()
    elif OPT["dy"]:
        gen_loop_dy()
    elif OPT["sp"]:
        gen_loop_sp()
    elif OPT["T"]:
        e(f"  s_lshl_b32 s75, s{SB}, 3")
        e(f"  s_add_u32 s75, s75, s{SG}")
        e(f"  s_cmp_lt_u32 s75, {OPT['T']}")
        e("  s_cbranch_scc1 K_LOOPlo")
        POL["k"] = "" if OPT["phi"] & 1 else nt
        POL["v"] = "" if OPT["phi"] & 2 else nt
        gen_loop("hi", False)
        POL["k"] = "" if OPT["plo"] & 1 else nt
        POL["v"] = "" if OPT["plo"] & 2 else nt
        gen_loop("lo", True)
    else:
        gen_loop("", True)
    e("K_EXIT:")
    if OPT["prof"] == 1: stamp(4)
    if OPT["prof"] >= 3: tl(OPT["prof"])
    tl_dump()
    if not OPT["pf"]:
        e("  s_cmp_eq_u32 s27, 0")
        e("  s_cbranch_scc1 K_X0")
        if OPT["xw"]:
            e("  s_cmp_eq_u32 s27, 5")
            e("  s_cbranch_scc1 K_X0")
        x_loads("E")
        e("  s_mov_b32 s27, 1")
        e("  s_waitcnt vmcnt(0)")
        h_phase("E")
        e("K_X0:")
    if OPT["pf"] == 2:
        wo_once("E")
    elif OPT["pf"]:
        pass
    elif OPT["fd"]:
        fd_exit()
    else:
        if OPT["gf"]:
            e("  s_cmp_eq_u32 s39, 2")
        else:
            e("  s_cmp_ge_u32 s2, 224")
        e("  s_cbranch_scc1 K_HSK")
        if OPT["x2"]:
            e("  v_lshlrev_b32 v248, 4, v12")
            e("  v_lshl_add_u32 v248, v13, 10, v248")
            e("  s_lshr_b32 s75, s2, 3")
            e("  s_lshl_b32 s75, s75, 13")
            e(f"  s_add_u32 s75, s75, {WS_H2}")
        else:
            e("  v_lshrrev_b32 v5, 1, v12")
            e("  v_lshlrev_b32 v248, 3, v5")
            e("  s_lshr_b32 s75, s2, 3")
            e("  s_lshl_b32 s75, s75, 8")
            e(f"  s_add_u32 s75, s75, {WS_HG}")
        e("  v_add_u32 v248, s75, v248")
        h_loads()
        e("K_HSK:")
    e(f"  v_mov_b32 v{T1}, v{L_}")
    e("  s_nop 1")
    e(f"  v_permlane16_swap_b32 v{L_}, v{T1}")
    e("  s_nop 1")
    e(f"  v_add_f32 v{L_}, v{L_}, v{T1}")
    e(f"  v_mov_b32 v{T1}, v{L_}")
    e("  s_nop 1")
    e(f"  v_permlane32_swap_b32 v{L_}, v{T1}")
    e("  s_nop 1")
    e(f"  v_add_f32 v{L_}, v{L_}, v{T1}")
    e("  v_cmp_gt_u32 vcc, 4, v3")
    e("  s_and_saveexec_b64 s[78:79], vcc")
    if OPT["cb"]:
        e("  v_lshlrev_b32 v5, 4, v2")
        e("  v_lshl_add_u32 v5, v3, 2, v5")
        e("  v_add_u32 v5, v4, v5")
        e("  v_mul_u32_u24 v5, 144, v5")
        e("  s_nop 4")
        for t in range(8):
            e(f"  ds_write_b128 v5, v[{ACC+4*t}:{ACC+4*t+3}] offset:{L_O + t*16}")
    else:
        e("  v_lshlrev_b32 v5, 11, v2")
        e("  v_lshl_add_u32 v5, v3, 9, v5")
        e("  v_lshl_add_u32 v5, v4, 7, v5")
        e("  s_nop 4")
        for t in range(8):
            for r in range(4):
                e(f"  ds_write_b32 v5, v{ACC+4*t+r} offset:{L_O + (r*8+t)*4}")
    e("  v_cmp_gt_u32 vcc, 4, v1")
    e("  s_and_b64 exec, exec, vcc")
    e("  v_lshlrev_b32 v6, 5, v2")
    e("  v_lshl_add_u32 v6, v3, 3, v6")
    e(f"  ds_write_b32 v6, v{M_} offset:{L_ML}")
    e(f"  ds_write_b32 v6, v{L_} offset:{L_ML+4}")
    e("  s_mov_b64 exec, s[78:79]")
    if OPT["pf"] == 2:
        fd_at_exit()
    e("  s_waitcnt lgkmcnt(0)")
    e("  s_barrier")
    tl6(2)
    e("  v_lshrrev_b32 v5, 7, v0")
    e("  v_and_b32 v6, 127, v0")
    e("  v_lshlrev_b32 v7, 3, v5")
    for w in range(8):
        e(f"  ds_read_b64 v[{160+2*w}:{161+2*w}], v7 offset:{L_ML + w*32}")
    if OPT["cb"]:
        e("  v_lshrrev_b32 v8, 5, v0")
        e("  v_mul_u32_u24 v8, 144, v8")
        if OPT["t2"]:
            e("  v_and_b32 v9, 24, v0")
            e("  v_and_b32 v10, 1, v0")
            e("  v_lshl_add_u32 v9, v10, 2, v9")
            e("  v_bfe_u32 v10, v0, 1, 2")
            e("  v_add_u32 v9, v10, v9")
        else:
            e("  v_and_b32 v9, 31, v0")
        e("  v_lshl_add_u32 v8, v9, 2, v8")
        for w in range(8):
            e(f"  ds_read_b32 v{176+w}, v8 offset:{L_O + w*2304}")
    else:
        e("  v_lshlrev_b32 v8, 9, v5")
        e("  v_lshl_add_u32 v8, v6, 2, v8")
        for w in range(8):
            e(f"  ds_read_b32 v{176+w}, v8 offset:{L_O + w*2048}")
    e("  s_waitcnt lgkmcnt(0)")
    e("  v_max3_f32 v184, v160, v162, v164")
    e("  v_max3_f32 v185, v166, v168, v170")
    e("  v_max3_f32 v184, v184, v172, v174")
    e("  v_max_f32 v184, v184, v185")
    e("  v_mov_b32 v186, 0")
    e("  v_mov_b32 v187, 0")
    for w in range(8):
        e(f"  v_sub_f32 v185, v{160+2*w}, v184")
        e(f"  v_mul_f32 v185, s{SC}, v185")
        e("  v_exp_f32 v185, v185")
        e("  s_nop 0")
        e(f"  v_fmac_f32 v186, v185, v{161+2*w}")
        e(f"  v_fmac_f32 v187, v185, v{176+w}")
    e(f"  s_lshl_b32 s75, s{SB}, 5")
    e(f"  s_lshl_b32 s76, s{SG}, 2")
    e("  s_add_u32 s75, s75, s76")
    e("  s_lshl_b32 s75, s75, 4")
    e(f"  s_add_u32 s75, s75, s{SSPL}")
    e("  v_lshlrev_b32 v7, 4, v5")
    e("  v_add_u32 v7, s75, v7")
    e("  v_lshlrev_b32 v8, 10, v7")
    e("  v_lshl_add_u32 v8, v6, 3, v8")
    e(f"  s_mov_b32 s75, {WS_OG}")
    e("  v_mov_b32 v188, v187")
    e("  v_mov_b32 v189, s26")
    e(f"  buffer_store_dwordx2 v[188:189], v8, s[{SWS}:{SWS+3}], s75 offen sc1")
    e("  v_cmp_eq_u32 vcc, 0, v6")
    e("  s_and_saveexec_b64 s[78:79], vcc")
    e("  v_lshlrev_b32 v7, 4, v7")
    e("  v_mov_b32 v185, v186")
    e("  v_mov_b32 v186, s26")
    e(f"  s_mov_b32 s75, {WS_MG}")
    e(f"  buffer_store_dwordx3 v[184:186], v7, s[{SWS}:{SWS+3}], s75 offen sc1")
    e("  s_mov_b64 exec, s[78:79]")
    if OPT["prof"] == 1: stamp(5)
    tl6(3)

    def prod(wregs, vecaddr_rows, accbase, nrows):
        for r in range(16):
            e(f"  v_mov_b32 v{accbase+r}, 0")
        for i in range(nrows):
            for c in range(4):
                w = wregs + 4 * i + c
                e(f"  v_lshlrev_b32 v160, 16, v{w}")
                e(f"  v_and_b32 v161, 0xffff0000, v{w}")
                e(f"  v_fmac_f32 v{accbase+2*c}, v160, v{168+2*i}")
                e(f"  v_fmac_f32 v{accbase+1+2*c}, v161, v{168+2*i}")
                e(f"  v_fmac_f32 v{accbase+8+2*c}, v160, v{169+2*i}")
                e(f"  v_fmac_f32 v{accbase+9+2*c}, v161, v{169+2*i}")
        dpp_steps(list(range(accbase, accbase + 16)), ["row_ror:8"])

    def reduce_store(lbase, label, snc):
        e("  v_lshlrev_b32 v5, 2, v2")
        e("  v_add_u32 v5, v5, v4")
        e("  v_lshlrev_b32 v5, 9, v5")
        e("  v_and_b32 v6, 7, v1")
        e("  v_lshl_add_u32 v5, v6, 5, v5")
        e("  v_and_b32 v6, 8, v1")
        e("  v_cmp_eq_u32 vcc, 0, v6")
        e("  s_and_saveexec_b64 s[78:79], vcc")
        e(f"  ds_write_b128 v5, v[180:183] offset:{lbase}")
        e(f"  ds_write_b128 v5, v[184:187] offset:{lbase+16}")
        e(f"  ds_write_b128 v5, v[188:191] offset:{lbase+256}")
        e(f"  ds_write_b128 v5, v[192:195] offset:{lbase+256+16}")
        e("  s_mov_b64 exec, s[78:79]")
        e("  s_waitcnt lgkmcnt(0)")
        e("  s_barrier")
        e("  s_cmp_ge_u32 s3, 2")
        e(f"  s_cbranch_scc1 {label}")
        e("  v_lshlrev_b32 v5, 2, v0")
        for p in range(32):
            e(f"  ds_read_b32 v{204+p}, v5 offset:{lbase + p*512}")
        e("  s_waitcnt lgkmcnt(0)")
        for p in range(1, 31, 2):
            e(f"  v_add_f32 v{204+p}, v{204+p}, v{205+p}")
        e("  v_add_f32 v204, v204, v235")
        for p in range(1, 31, 2):
            e(f"  v_add_f32 v204, v204, v{204+p}")
        e("  v_lshlrev_b32 v5, 12, v2")
        e("  v_lshl_add_u32 v5, v1, 3, v5")
        e(f"  s_lshl_b32 s76, s{snc}, 9")
        e(f"  s_add_u32 s75, s75, s76")
        e("  v_mov_b32 v205, s26")
        e(f"  buffer_store_dwordx2 v[204:205], v5, s[{SWS}:{SWS+3}], s75 offen sc1")
        e(f"{label}:")

    if OPT["gf"]:
        e("  s_cmp_eq_u32 s39, 2")
        e("  s_cbranch_scc1 K_T4")
        e(f"  s_mov_b32 s74, {OPT['bnd']:#x}")
        e("  s_waitcnt vmcnt(0)")
        e("K_HR:")
        g_check("K_HRF")
        e("  s_branch K_HOK")
        e("K_HRF:")
        g_load()
        e("  s_waitcnt vmcnt(0)")
        e("  s_sub_u32 s74, s74, 1")
        e("  s_cmp_lg_u32 s74, 0")
        e("  s_cbranch_scc1 K_HR")
        e("K_HOK:")
        g_compute("K_T4")
    elif not OPT["fd"] and not OPT["pf"]:
        e("  s_cmp_ge_u32 s2, 224")
        e("  s_cbranch_scc1 K_T4")
        e(f"  s_mov_b32 s74, {OPT['bnd']:#x}")
        e("  s_waitcnt vmcnt(1)")
        e("K_HR:")
        e("  v_cmp_ne_u32 vcc, s26, v%d" % (246 if OPT["x2"] else 245))
        e("  v_cmp_ne_u32 s[78:79], s26, v247")
        e("  s_or_b64 vcc, vcc, s[78:79]")
        e("  s_cmp_eq_u64 vcc, 0")
        e("  s_cbranch_scc1 K_HOK")
        h_loads()
        e("  s_waitcnt vmcnt(0)")
        e("  s_sub_u32 s74, s74, 1")
        e("  s_cmp_lg_u32 s74, 0")
        e("  s_cbranch_scc1 K_HR")
        e("K_HOK:")
        if OPT["x2"]:
            dpp_steps([244, 245], ["quad_perm:[1,0,3,2]", "quad_perm:[2,3,0,1]", "row_half_mirror"])
            e("  v_max_f32 v168, 0, v244")
            e("  v_max_f32 v169, 0, v245")
            round_bf16(168, 168)
            round_bf16(169, 169)
        else:
            e("  v_and_b32 v5, 1, v12")
            e("  v_cmp_eq_u32 vcc, 1, v5")
            e("  v_lshlrev_b32 v168, 16, v244")
            e("  v_and_b32 v5, 0xffff0000, v244")
            e("  v_lshlrev_b32 v169, 16, v246")
            e("  v_and_b32 v6, 0xffff0000, v246")
            e("  v_cndmask_b32 v168, v168, v5, vcc")
            e("  v_cndmask_b32 v169, v169, v6, vcc")
        prod(W2, None, 180, 1)
        e("  s_lshr_b32 s75, s2, 3")
        e("  s_lshl_b32 s75, s75, 13")
        e(f"  s_add_u32 s75, s75, {WS_GG}")
        reduce_store(L_FP, "K_T3B", SNC)
    e("K_T4:")
    if OPT["t2"]:
        tail2()
        return_early = True
    else:
        return_early = False
    if return_early:
        pass
    elif not OPT["mf"]:
        e("  s_cmp_ge_u32 s3, 4")
        e("  s_cbranch_scc1 K_T6")
        e("  v_lshrrev_b32 v6, 7, v0")
        e("  v_and_b32 v7, 127, v0")
        e("  v_lshlrev_b32 v8, 5, v6")
        e(f"  v_add_u32 v8, s{SHEAD}, v8")
        e("  v_lshlrev_b32 v9, 8, v8")
        e("  v_lshlrev_b32 v10, 14, v8")
        e("  v_lshl_add_u32 v10, v7, 3, v10")
        e(f"  s_mov_b32 s76, {WS_MG}")
        def iss2(sp):
            e(f"  s_mov_b32 s75, {WS_OG + 4096*(sp>>2)}")
            bits = {0:"", 1:" sc1", 2:" sc0", 3:" sc0 sc1", 4:" nt", 5:" sc0 nt"}[OPT["p2"]]
            e(f"  buffer_load_dwordx2 v[{16+2*sp}:{17+2*sp}], v10, s[{SWS}:{SWS+3}], s75 offen offset:{(sp&3)*1024}{bits}")
            e(f"  buffer_load_dwordx3 v[{48+4*sp}:{50+4*sp}], v9, s[{SWS}:{SWS+3}], s76 offen offset:{sp*16}{bits}")
        mpoll("K_P2", 16, iss2, lambda sp: [17+2*sp, 50+4*sp], OPT["thr"])
        if OPT["prof"] == 1: stamp(6)
        M = lambda sp: 48+4*sp
        e(f"  v_max3_f32 v112, v{M(0)}, v{M(1)}, v{M(2)}")
        for sp in range(3, 15, 2):
            e(f"  v_max3_f32 v112, v112, v{M(sp)}, v{M(sp+1)}")
        e(f"  v_max_f32 v112, v112, v{M(15)}")
        e("  v_mov_b32 v113, 0")
        e("  v_mov_b32 v114, 0")
        for sp in range(16):
            e(f"  v_sub_f32 v{M(sp)}, v{M(sp)}, v112")
            e(f"  v_mul_f32 v{M(sp)}, s{SC}, v{M(sp)}")
            e(f"  v_exp_f32 v{M(sp)}, v{M(sp)}")
        e("  s_nop 0")
        for sp in range(16):
            e(f"  v_fmac_f32 v113, v{M(sp)}, v{M(sp)+1}")
            e(f"  v_fmac_f32 v114, v{M(sp)}, v{16+2*sp}")
        e("  v_mov_b32 v49, v113")
        e("  v_mov_b32 v50, v114")
        e("  v_rcp_f32 v49, v49")
        e("  s_nop 0")
        e("  v_mul_f32 v50, v50, v49")
        round_bf16(50, 50)
        e("  v_lshlrev_b32 v8, 2, v0")
        e(f"  ds_write_b32 v8, v50 offset:{L_VEC}")
        e("  s_waitcnt lgkmcnt(0)")
        e("K_T6:")
        e("  s_barrier")
        e("  v_lshlrev_b32 v5, 2, v12")
        e(f"  ds_read_b32 v168, v5 offset:{L_VEC}")
        e(f"  ds_read_b32 v169, v5 offset:{L_VEC+512}")
        e(f"  ds_read_b32 v170, v5 offset:{L_VEC+256}")
        e(f"  ds_read_b32 v171, v5 offset:{L_VEC+512+256}")
        e("  s_waitcnt lgkmcnt(0)")
        prod(WO, None, 180, 2)
        e(f"  s_lshl_b32 s75, s{SHEAD}, 13")
        e(f"  s_add_u32 s75, s75, {WS_SG}")
        reduce_store(L_SP, "K_T6B", SNO)
    else:
        e("  s_cmp_ge_u32 s3, 4")
        e("  s_cbranch_scc1 K_END")
        e("  s_and_b32 s75, s3, 1")
        e("  s_cmp_eq_u32 s75, 1")
        e(f"  s_cselect_b32 s75, s{SP1}, s{SP0}")
        for ks in range(4):
            for q in range(4):
                e(f"  v_perm_b32 v{112+ks*4+q}, v{80+ks*8+2*q+1}, v{80+ks*8+2*q}, s75")
        e("  v_lshrrev_b32 v6, 7, v0")
        e("  v_and_b32 v7, 127, v0")
        e("  v_lshlrev_b32 v8, 5, v6")
        e(f"  v_add_u32 v8, s{SHEAD}, v8")
        e("  v_lshlrev_b32 v9, 8, v8")
        e("  v_lshlrev_b32 v10, 14, v8")
        e("  v_lshl_add_u32 v10, v7, 3, v10")
        e(f"  s_mov_b32 s76, {WS_MG}")
        def iss2(sp):
            e(f"  s_mov_b32 s75, {WS_OG + 4096*(sp>>2)}")
            e(f"  buffer_load_dwordx2 v[{16+2*sp}:{17+2*sp}], v10, s[{SWS}:{SWS+3}], s75 offen offset:{(sp&3)*1024} sc1")
            e(f"  buffer_load_dwordx3 v[{48+4*sp}:{50+4*sp}], v9, s[{SWS}:{SWS+3}], s76 offen offset:{sp*16} sc1")
        e("  v_and_b32 v11, 1, v3")
        e("  v_lshlrev_b32 v11, 8, v11")
        e("  v_lshl_add_u32 v11, v4, 4, v11")
        e("  v_and_b32 v12, 1, v4")
        e("  v_lshlrev_b32 v13, 12, v12")
        e("  v_lshl_add_u32 v13, v3, 4, v13")
        e("  s_lshr_b32 s75, s3, 1")
        e("  s_lshl_b32 s75, s75, 8")
        e("  s_and_b32 s78, s3, 1")
        e("  s_lshl_b32 s78, s78, 3")
        e("  s_add_u32 s75, s75, s78")
        e(f"  s_lshl_b32 s78, s{SNO}, 9")
        e("  s_add_u32 s75, s75, s78")
        e(f"  s_lshl_b32 s78, s{SHEAD}, 13")
        e("  s_add_u32 s75, s75, s78")
        e(f"  s_add_u32 s75, s75, {WS_SG}")
        e("  v_add_u32 v13, s75, v13")
        if OPT["gate"]:
            GB = [4, 36, 52, 80]
            e("  s_lshr_b32 s72, s3, 1")
            e("  s_lshl_b32 s72, s72, 5")
            e(f"  s_add_u32 s72, s72, s{SHEAD}")
            e("  s_lshl_b32 s72, s72, 8")
            e(f"  s_add_u32 s72, s72, {WS_MG}")
            e(f"  s_mov_b32 s74, {OPT['bnd']:#x}")
            e("K_GT:")
            for i, b_ in enumerate(GB):
                e(f"  s_load_dwordx16 s[{b_}:{b_+15}], s[24:25], s72 offset:{64*i} glc")
            e("  s_mov_b32 s75, 0")
            e("  s_waitcnt lgkmcnt(0)")
            for k in range(16):
                e(f"  s_cmp_eq_u32 s{GB[k>>2] + 4*(k&3) + 2}, s26")
                e("  s_addc_u32 s75, s75, 0")
            e(f"  s_cmp_ge_u32 s75, {16-OPT['gthr']}")
            e("  s_cbranch_scc1 K_GTD")
            if OPT["gsl"]: e(f"  s_sleep {OPT['gsl']}")
            e("  s_sub_u32 s74, s74, 1")
            e("  s_cmp_lg_u32 s74, 0")
            e("  s_cbranch_scc1 K_GT")
            e("K_GTD:")
        mpoll("K_P2", 16, iss2, lambda sp: [17+2*sp, 50+4*sp], OPT["thr"])
        if OPT["prof"] == 1: stamp(6)
        tl6(4)
        M = lambda sp: 48+4*sp
        e(f"  v_max3_f32 v128, v{M(0)}, v{M(1)}, v{M(2)}")
        for sp in range(3, 15, 2):
            e(f"  v_max3_f32 v128, v128, v{M(sp)}, v{M(sp+1)}")
        e(f"  v_max_f32 v128, v128, v{M(15)}")
        e("  v_mov_b32 v129, 0")
        e("  v_mov_b32 v130, 0")
        for sp in range(16):
            e(f"  v_sub_f32 v{M(sp)}, v{M(sp)}, v128")
            e(f"  v_mul_f32 v{M(sp)}, s{SC}, v{M(sp)}")
            e(f"  v_exp_f32 v{M(sp)}, v{M(sp)}")
        e("  s_nop 0")
        for sp in range(16):
            e(f"  v_fmac_f32 v129, v{M(sp)}, v{M(sp)+1}")
            e(f"  v_fmac_f32 v130, v{M(sp)}, v{16+2*sp}")
        e("  v_rcp_f32 v129, v129")
        e("  s_nop 0")
        e("  v_mul_f32 v130, v130, v129")
        e("  v_cvt_pk_bf16_f32 v130, v130, v130")
        if OPT["cb"]:
            e("  v_and_b32 v8, 0xe0, v0")
            e("  v_and_b32 v5, 3, v0")
            e("  v_lshl_add_u32 v8, v5, 3, v8")
            e("  v_bfe_u32 v5, v0, 2, 3")
            e("  v_add_u32 v8, v5, v8")
            e("  v_lshlrev_b32 v8, 1, v8")
        else:
            e("  v_lshlrev_b32 v8, 1, v0")
        e(f"  ds_write_b16 v8, v130 offset:{L_VEC}")
        e("  s_waitcnt lgkmcnt(0)")
        e("  s_barrier")
        for ks in range(4):
            e(f"  ds_read_b128 v[{132+4*ks}:{135+4*ks}], v11 offset:{L_VEC + ks*64}")
        e("  s_waitcnt lgkmcnt(0)")
        for ks in range(4):
            c = "0" if ks == 0 else "v[148:151]"
            e(f"  v_mfma_f32_16x16x32_bf16 v[148:151], v[{132+4*ks}:{135+4*ks}], v[{112+4*ks}:{115+4*ks}], {c}")
        e("  v_cmp_eq_u32 vcc, 1, v12")
        e("  v_mov_b32 v153, s26")
        e("  s_nop 7")
        e("  s_nop 7")
        e("  v_cndmask_b32 v152, v148, v149, vcc")
        e("  s_mov_b64 exec, 0xffffffff")
        e(f"  buffer_store_dwordx2 v[152:153], v13, s[{SWS}:{SWS+3}], 0 offen sc1")
        e("  s_mov_b64 exec, -1")
    if not OPT["t2"]:
        if OPT["prof"] == 1: stamp(7)
        tl6(5)
        e("  s_cmp_ge_u32 s2, 8")
        e("  s_cbranch_scc1 K_END")
        e("  s_cmp_ge_u32 s3, 4")
        e("  s_cbranch_scc1 K_END")
        def gpoll(label, n, base):
            def iss(k):
                e(f"  s_mov_b32 s75, {base + k*8192}")
                e(f"  buffer_load_dwordx2 v[{16+2*k}:{17+2*k}], v10, s[{SWS}:{SWS+3}], s75 offen sc1")
            mpoll(label, n, iss, lambda k: [17+2*k], None)
            for k in range(1, n):
                e(f"  v_add_f32 v16, v16, v{16+2*k}")
        e("  v_and_b32 v5, 1, v2")
        e("  v_lshlrev_b32 v5, 11, v5")
        e("  v_lshl_add_u32 v5, v1, 2, v5")
        e(f"  s_and_b32 s76, s2, 7")
        e(f"  s_lshl_b32 s76, s76, 8")
        e("  v_add_u32 v5, s76, v5")
        e("  v_lshlrev_b32 v10, 1, v5")
        e("  s_cmp_ge_u32 s3, 2")
        e("  s_cbranch_scc1 K_FG")
        e("  v_lshrrev_b32 v6, 1, v5")
        e(f"  buffer_load_ushort v4, v6, s[{SX}:{SX+3}], 0 offen")
        gpoll("K_P3", 32, WS_SG)
        tl6(6)
        round_bf16(16, 16)
        e("  s_barrier")
        e("  v_lshlrev_b32 v7, 2, v0")
        e(f"  ds_read_b32 v8, v7 offset:{L_GX}")
        e("  s_waitcnt lgkmcnt(0)")
        e("  v_mul_f32 v8, v8, v16")
        round_bf16(8, 8)
        e("  v_lshlrev_b32 v4, 16, v4")
        e("  v_add_f32 v8, v8, v4")
        e("  v_cvt_pk_bf16_f32 v8, v8, v8")
        e(f"  buffer_store_short v8, v6, s[{SOUT}:{SOUT+3}], 0 offen")
        e("  s_or_b32 s75, s2, s3")
        e("  s_cmp_lg_u32 s75, 0")
        e("  s_cbranch_scc1 K_END")
        e("  s_mov_b64 exec, 1")
        e(f"  v_mov_b32 v5, {WS_EP}")
        e("  v_mov_b32 v6, s26")
        e(f"  buffer_store_dword v6, v5, s[{SWS}:{SWS+3}], 0 offen")
        e("  s_branch K_END")
        e("K_FG:")
        gpoll("K_P4", 28, WS_GG)
        tl6(6)
        round_bf16(16, 16)
        e("  v_mul_f32 v5, 0xbfb8aa3b, v16")
        e("  v_exp_f32 v5, v5")
        e("  s_nop 0")
        e("  v_add_f32 v5, 1.0, v5")
        e("  v_rcp_f32 v5, v5")
        e("  s_nop 0")
        e("  v_mul_f32 v5, v5, v16")
        round_bf16(5, 5)
        e("  v_and_b32 v7, 127, v0")
        e("  v_lshlrev_b32 v7, 2, v7")
        e(f"  ds_write_b32 v7, v5 offset:{L_GX}")
        e("  s_waitcnt lgkmcnt(0)")
        e("  s_barrier")
    e("K_END:")
    dump_stamps()
    e("  s_endpgm")
    e('.section .rodata,"a"')
    e(".p2align 6")
    e(f".amdhsa_kernel {name}")
    e("  .amdhsa_next_free_vgpr 256")
    e("  .amdhsa_next_free_sgpr 102")
    e("  .amdhsa_accum_offset 256")
    e("  .amdhsa_group_segment_fixed_size 0")
    e("  .amdhsa_kernarg_size 88")
    e("  .amdhsa_user_sgpr_count 2")
    e("  .amdhsa_user_sgpr_kernarg_segment_ptr 1")
    e("  .amdhsa_system_sgpr_workgroup_id_x 1")
    e(".end_amdhsa_kernel")

def main():
    path = f"cdna_kernels/{NAME}.s"
    for a in sys.argv[1:]:
        if "=" in a:
            k, v = a.split("=", 1)
            OPT[k] = (" " + v if v else "") if k == "nt" else int(v)
        else:
            path = a
    e(HEADER.rstrip("\n"))
    lds = 61952 if OPT["x2"] else LDS_SIZE
    if OPT["jd"]: lds = L_WO + 128*272
    e(f"; @launch grid=(256,1,1) block=(512,1,1) lds={lds}")
    e('.amdgcn_target "amdgcn-amd-amdhsa--gfx950"')
    gen()
    open(path, "w").write("\n".join(out) + "\n")

main()
```
